```python
import torch

def _softmax(x, axis=-1):
    return torch.softmax(x, dim=axis)
def _gelu(x):
    return torch.nn.functional.gelu(x, approximate="tanh")
def _silu(x):
    return torch.nn.functional.silu(x)
def _sigmoid(x):
    return torch.sigmoid(x)
def _layernorm(x, axis=-1, eps=1e-5):
    m = x.mean(dim=axis, keepdim=True)
    v = x.var(dim=axis, keepdim=True, unbiased=False)
    return (x - m) / torch.sqrt(v + eps)
def _scatter_add(tgt, idx, src, axis=0):
    return tgt.clone().index_add_(axis, idx, src)
def _segment_sum(src, seg, n):
    out = torch.zeros((n,) + src.shape[1:], dtype=src.dtype)
    return out.index_add_(0, seg, src)
def _pad(x, pw):
    flat = tuple(v for pair in reversed(pw) for v in pair)
    return torch.nn.functional.pad(x, flat)

kernel_name = 'interleave_layers__spectral_gfnet__mixer_channel_mlp__prompt'

def setup_inputs():

    _w = (lambda a: (lambda t: t.to(torch.bfloat16) if t.is_floating_point() else t)(torch.as_tensor(a)))
    def _A_setup():
        B, S, D = 1, 2048, 640
        Df = D // 2 + 1
        return {
            "x": _w((lambda *s: torch.randn(*s, dtype=torch.bfloat16) * 0.05)(B, S, D)),
            "w_r": _w((lambda *s: torch.randn(*s, dtype=torch.bfloat16) * 0.8)(S, Df) * 0.02),
            "w_i": _w((lambda *s: torch.randn(*s, dtype=torch.bfloat16) * 0.8)(S, Df) * 0.02),
        }
    _A_in = _A_setup()

    def _B_setup():
        B, S, D, F = 1, 2048, 640, 1728
        return {
            "x": _w((lambda *s: torch.randn(*s, dtype=torch.bfloat16) * 0.05)(B, S, D)),
            "w1": _w((lambda *s: torch.randn(*s, dtype=torch.bfloat16) * 0.8)(D, F) * (D ** -0.5)),
            "b1": _w((lambda *s: torch.randn(*s, dtype=torch.bfloat16) * 0.4)(F)),
            "w2": _w((lambda *s: torch.randn(*s, dtype=torch.bfloat16) * 0.05)(F, D) * (F ** -0.5)),
            "b2": _w((lambda *s: torch.randn(*s, dtype=torch.bfloat16) * 0.05)(D)),
        }
    _B_in = _B_setup()

    return {
        "A_x": _A_in["x"],
        "A_w_r": _A_in["w_r"],
        "A_w_i": _A_in["w_i"],
        "B_x": _B_in["x"],
        "B_w1": _B_in["w1"],
        "B_b1": _B_in["b1"],
        "B_w2": _B_in["w2"],
        "B_b2": _B_in["b2"],
    }

def reference(A_x, A_w_r, A_w_i, B_x, B_w1, B_b1, B_w2, B_b2):
    def _A_ref(x, w_r, w_i):
        B, S, D = x.shape
        X = (lambda x, axes=(-2,-1): torch.fft.rfft2(x.float(), dim=axes))(x, axes=(-2, -1))
        W = w_r + 1j * w_i
        X = X * W
        y = (lambda x, s, axes=(-2,-1): torch.fft.irfft2(x, s=s, dim=axes).to(torch.bfloat16))(X, (S, D), axes=(-2, -1))
        return y

    def _B_ref(x, w1, b1, w2, b2):
        y = _layernorm(x, axis=-1)
        h = _gelu(torch.einsum("bsd,df->bsf", y, w1) + b1)
        return torch.einsum("bsf,fd->bsd", h, w2) + b2

    x = A_x
    x = x + _A_ref(_layernorm(x, axis=-1), A_w_r, A_w_i)
    x = x + _B_ref(_layernorm(x, axis=-1), B_w1, B_b1, B_w2, B_b2)
    x = x + _A_ref(_layernorm(x, axis=-1), A_w_r, A_w_i)
    x = x + _B_ref(_layernorm(x, axis=-1), B_w1, B_b1, B_w2, B_b2)
    return x
```

```python
import re

REG_RE = re.compile(r"(?<![\w.])(-?\|?)([vas])(?:(\d+)|\[(\d+):(\d+)\])(?![\w])")

TRANS = ("v_exp_f32", "v_log_f32", "v_rcp_f32", "v_rsq_f32", "v_sqrt_f32", "v_sin_f32", "v_cos_f32")


def regs_of(tok):
    tok = tok.strip()
    out = []
    if tok in ("vcc",):
        return [("s", 106), ("s", 107)]
    if tok == "vcc_lo":
        return [("s", 106)]
    if tok == "vcc_hi":
        return [("s", 107)]
    if tok == "m0":
        return [("s", 124)]
    if tok == "exec":
        return [("s", 126), ("s", 127)]
    for m in REG_RE.finditer(tok):
        k = m.group(2)
        if m.group(3) is not None:
            out.append((k, int(m.group(3))))
        else:
            out.extend((k, r) for r in range(int(m.group(4)), int(m.group(5)) + 1))
    return out


def R(base, n=1):
    k = "v" if base < 256 else "a"
    b = base if base < 256 else base - 256
    if n == 1:
        return f"{k}{b}"
    assert (base < 256) == (base + n - 1 < 256)
    return f"{k}[{b}:{b + n - 1}]"


def V(b, n=1):
    return f"v{b}" if n == 1 else f"v[{b}:{b + n - 1}]"


def A(b, n=1):
    return f"a{b}" if n == 1 else f"a[{b}:{b + n - 1}]"


def S(b, n=1):
    return f"s{b}" if n == 1 else f"s[{b}:{b + n - 1}]"


class Inst:
    __slots__ = ("text", "op", "dst", "src", "kind", "srcc", "tag", "passes", "wide_store", "dpp")

    def __init__(self, text, tag=None):
        self.text = text
        self.tag = tag
        body = text.split(";")[0].strip()
        parts = body.split(None, 1)
        op = parts[0]
        for suf in ("_e32", "_e64", "_dpp"):
            if op.endswith(suf):
                op = op[: -len(suf)]
        self.op = op
        rest = parts[1] if len(parts) > 1 else ""
        ops, depth, cur = [], 0, ""
        for ch in rest:
            if ch == "[":
                depth += 1
            elif ch == "]":
                depth -= 1
            if ch == "," and depth == 0:
                ops.append(cur.strip())
                cur = ""
            else:
                cur += ch
        ops.append(cur.strip())
        last_mods = ""
        if ops:
            sp = ops[-1].split(None, 1)
            if sp:
                ops[-1] = sp[0]
                last_mods = sp[1] if len(sp) > 1 else ""
        self.dst, self.src, self.srcc = [], [], []
        self.passes = 0
        self.wide_store = False
        self.dpp = ("row_" in last_mods) or ("quad_perm" in last_mods) or ("wave_" in last_mods)
        allr = [regs_of(o) for o in ops]
        flat = lambda xs: [r for x in xs for r in x]
        if op.startswith("v_mfma"):
            self.kind = "mfma"
            self.dst = allr[0]
            self.src = flat(allr[1:3])
            self.srcc = allr[3]
            self.passes = 8 if "32x32" in op else 4
        elif op.startswith("buffer_load") or op.startswith("global_load"):
            self.kind = "vmem"
            if " lds" in (" " + last_mods) or "_lds_" in op:
                self.src = flat(allr) + [("s", 124)]
                self.kind = "vmem_lds"
            else:
                self.dst = allr[0]
                self.src = flat(allr[1:])
                if "d16" in op:
                    self.src += allr[0]
        elif op.startswith("buffer_store") or op.startswith("global_store") or "atomic" in op and not op.startswith("s_"):
            self.kind = "vmem"
            self.src = flat(allr)
            if "atomic" in op and "sc0" in last_mods:
                self.dst = allr[0]
            self.wide_store = op.endswith("x4") or op.endswith("x3")
            if self.wide_store:
                self.wide_store = allr[0] if op.startswith("buffer") else allr[1]
        elif op in ("buffer_wbl2", "buffer_inv"):
            self.kind = "vmem"
        elif op.startswith("ds_read") or op.startswith("ds_bpermute") or op.startswith("ds_permute") or op.startswith("ds_swizzle"):
            self.kind = "ds"
            self.dst = allr[0]
            self.src = flat(allr[1:])
        elif op.startswith("ds_"):
            self.kind = "ds"
            self.src = flat(allr)
            if "addtid" in op:
                self.src.append(("s", 124))
        elif op.startswith("s_load") or op.startswith("s_buffer_load") or op in ("s_memtime", "s_memrealtime"):
            self.kind = "smem"
            self.dst = allr[0]
            self.src = flat(allr[1:])
        elif op in ("s_waitcnt", "s_nop", "s_barrier", "s_endpgm", "s_setprio", "s_sleep"):
            self.kind = "ctl"
        elif op.startswith("s_cbranch") or op in ("s_branch", "s_setpc_b64", "s_swappc_b64"):
            self.kind = "branch"
            self.src = flat(allr)
        elif op.startswith("s_cmp") or op.startswith("s_bitcmp"):
            self.kind = "salu"
            self.src = flat(allr)
        elif op.startswith("s_"):
            self.kind = "salu"
            self.dst = allr[0]
            self.src = flat(allr[1:])
            if "saveexec" in op:
                self.dst = self.dst + [("s", 126), ("s", 127)]
            if op in ("s_addk_i32", "s_mulk_i32"):
                self.src += allr[0]
        elif op.startswith("v_"):
            self.kind = "valu"
            self.dst = allr[0]
            self.src = flat(allr[1:])
            if (op.startswith("v_permlane") and "swap" in op) or op == "v_swap_b32":
                self.dst = allr[0] + allr[1]
                self.src = allr[0] + allr[1]
            elif op.startswith("v_fmac") or op.startswith("v_pk_fmac") or op.startswith("v_dot2c") or op == "v_writelane_b32":
                self.src += allr[0]
            elif op in ("v_add_co_u32", "v_addc_co_u32", "v_sub_co_u32", "v_subb_co_u32"):
                self.dst = allr[0] + allr[1]
                self.src = flat(allr[2:])
            elif op.startswith("v_cmpx"):
                self.dst = allr[0] + [("s", 126), ("s", 127)]
            if op == "v_cndmask_b32" and len(ops) == 3:
                self.src += [("s", 106), ("s", 107)]
            if self.dpp or "sdwa" in op or "op_sel" in last_mods and not op.startswith("v_pk"):
                self.src += allr[0]
        else:
            raise ValueError("unknown instruction: " + text)


class Asm:
    def __init__(self):
        self.items = []

    def __call__(self, text, tag=None):
        for line in text.strip().split("\n"):
            line = line.strip()
            if not line or line.startswith(";"):
                continue
            if line.endswith(":") or line.startswith("."):
                self.items.append(line)
            else:
                self.items.append(Inst(line, tag))

    def raw(self, text):
        self.items.append(text)

    def label(self, name):
        self.items.append(name + ":")

    def wait_tag(self, tag, lgkm=False):
        self.items.append(("wait_tag", tag))

    def finalize(self):
        out = []
        vm = []
        lg = []
        hist = []
        pos = [0]

        def emit_text(t, states=1):
            out.append("    " + t)
            pos[0] += states

        def do_wait(vn=None, ln=None):
            parts = []
            if vn is not None:
                vn = min(vn, 63)
                if vn < len(vm):
                    del vm[: len(vm) - vn]
                    parts.append(f"vmcnt({vn})")
            if ln is not None:
                ln = min(ln, 15)
                if ln < len(lg):
                    del lg[: len(lg) - ln]
                    parts.append(f"lgkmcnt({ln})")
            if parts:
                emit_text("s_waitcnt " + " ".join(parts))

        def need_states(ins):
            need = 0
            sset = set(ins.src)
            dset = set(ins.dst)
            cset = set(ins.srcc)
            rd = sset | cset
            for p, h in hist:
                dist = pos[0] - p - 1
                req = 0
                hd = set(h.dst)
                if h.kind == "valu":
                    hv = {r for r in hd if r[0] in "va"}
                    hs = {r for r in hd if r[0] == "s"}
                    if ins.kind == "mfma" and hv & rd:
                        req = max(req, 2)
                    if h.op.startswith("v_dot") and hv & (rd | dset):
                        chain = ins.op == h.op and ins.dst == h.dst and not (hv & (sset - dset))
                        if not chain:
                            req = max(req, 3)
                    if ins.kind == "mfma" and ("s", 126) in hs:
                        req = max(req, 4)
                    if ins.kind == "valu":
                        if h.op in TRANS and hv & rd and ins.op not in TRANS:
                            req = max(req, 1)
                        if h.op in TRANS and hv & rd:
                            req = max(req, 1)
                        if (ins.op.startswith("v_permlane") or ins.dpp) and hv & rd:
                            req = max(req, 2)
                        if ins.op in ("v_readfirstlane_b32", "v_readlane_b32") and hv & rd:
                            req = max(req, 1)
                        if hs & rd:
                            req = max(req, 4 if ins.op in ("v_readlane_b32", "v_writelane_b32") else 2)
                        if ("s", 126) in hs and (ins.dpp or ins.op.startswith("v_permlane") or ins.op.startswith("v_read")):
                            req = max(req, 5)
                        if ("op_sel" in h.text or "sdwa" in h.text) and not h.op.startswith("v_pk") and hv & (rd | dset):
                            req = max(req, 1)
                    if ins.kind in ("vmem", "vmem_lds") and hs & rd:
                        req = max(req, 5)
                    if ins.kind in ("salu", "branch", "smem") and hs & rd:
                        req = max(req, 1)
                elif h.kind == "mfma":
                    big = {4: 8, 8: 12}[h.passes]
                    if ins.kind == "mfma":
                        if hd & sset:
                            req = max(req, big)
                        if hd & cset and not (h.dst == ins.srcc and h.passes == ins.passes):
                            req = max(req, {4: 6, 8: 10}[h.passes])
                        if hd & dset and not (h.dst == ins.srcc and h.passes == ins.passes):
                            req = max(req, {4: 6, 8: 10}[h.passes])
                    elif ins.kind in ("valu", "vmem", "vmem_lds", "ds"):
                        if hd & (rd | dset):
                            req = max(req, big)
                        if ins.kind == "valu" and set(h.srcc) & dset:
                            req = max(req, {4: 3, 8: 7}[h.passes])
                elif h.kind == "salu":
                    if ("s", 124) in hd and (ins.kind == "vmem_lds" or "addtid" in ins.op):
                        req = max(req, 1)
                elif h.kind == "vmem" and h.wide_store:
                    if set(h.wide_store) & dset:
                        req = max(req, 2)
                need = max(need, req - dist)
            return need

        for it in self.items:
            if isinstance(it, tuple):
                _, tag = it
                idx = [k for k, e in enumerate(vm) if e[1] == tag]
                if idx:
                    do_wait(vn=len(vm) - 1 - idx[-1])
                continue
            if isinstance(it, str):
                if it.endswith(":"):
                    hist.clear()
                    vm.clear()
                    lg.clear()
                out.append(it)
                continue
            ins = it
            if ins.op == "s_waitcnt":
                m = re.search(r"vmcnt\((\d+)\)", ins.text)
                if m and int(m.group(1)) < len(vm):
                    del vm[: len(vm) - int(m.group(1))]
                m = re.search(r"lgkmcnt\((\d+)\)", ins.text)
                if m and int(m.group(1)) < len(lg):
                    del lg[: len(lg) - int(m.group(1))]
                emit_text(ins.text)
                continue
            touched = set(ins.src) | set(ins.dst) | set(ins.srcc)
            vn = None
            d16_chain = ins.kind == "vmem" and "d16" in ins.op
            for k, e in enumerate(vm):
                t = touched - set(ins.dst) if d16_chain else touched
                if e[0] & t:
                    vn = len(vm) - 1 - k
            ln = None
            for k, e in enumerate(lg):
                if e[0] & touched:
                    ln = 0 if any(x[1] for x in lg) else len(lg) - 1 - k
            do_wait(vn, ln)
            if ins.kind in ("vmem", "vmem_lds") and len(vm) >= 63:
                do_wait(vn=62)
            if ins.kind == "branch":
                pad = 0
                for p, h in hist:
                    dist = pos[0] - p - 1
                    if h.kind == "mfma":
                        pad = max(pad, {4: 8, 8: 12}[h.passes] - dist - 1)
                    elif h.kind == "valu":
                        pad = max(pad, 5 - dist - 1)
                n = max(pad, need_states(ins))
            else:
                n = need_states(ins)
            while n > 0:
                k = min(n, 16)
                emit_text(f"s_nop {k - 1}", k)
                n -= k
            p = pos[0]
            if ins.op == "s_nop":
                emit_text(ins.text, int(ins.text.split()[1]) + 1)
            else:
                emit_text(ins.text)
            hist.append((p, ins))
            while hist and pos[0] - hist[0][0] > 24:
                hist.pop(0)
            if ins.kind in ("vmem", "vmem_lds"):
                vm.append((set(ins.dst), ins.tag))
            elif ins.kind == "ds":
                lg.append((set(ins.dst), False))
            elif ins.kind == "smem":
                lg.append((set(ins.dst), True))
                lg.append((set(), True))
            if ins.op == "s_endpgm":
                hist.clear()
                vm.clear()
                lg.clear()
        return "\n".join(out) + "\n"
```

```python
import numpy as np

S, D, F = 2048, 640, 1728
N1, N2 = 32, 64
EPS = 1e-5

def bf16(x):
    x = np.ascontiguousarray(x, dtype=np.float32)
    u = x.view(np.uint32)
    r = ((u + 0x7FFF + ((u >> 16) & 1)) & 0xFFFF0000).astype(np.uint32)
    return r.view(np.float32)

def bf16_bits(x):
    return (bf16(x).view(np.uint32) >> 16).astype(np.uint16)

def from_bits(u16):
    return (u16.astype(np.uint32) << 16).view(np.float32)

def basis():
    d = np.arange(D, dtype=np.float64)
    Fm = np.zeros((D, D), dtype=np.float64)
    a = np.sqrt(2.0 / D); b = np.sqrt(1.0 / D)
    Fm[:, 0] = b * (1.0 - 2.0 * (np.arange(D) % 2))
    Fm[:, 1] = b
    for j in range(1, D // 2):
        m = (j * np.arange(D)) % D
        Fm[:, 2 * j] = a * np.cos(2 * np.pi * m / D)
        Fm[:, 2 * j + 1] = -a * np.sin(2 * np.pi * m / D)
    return Fm

def gelu(x):
    return x / (1.0 + np.exp(-2.0 * 0.7978845608028654 * (x + 0.044715 * x ** 3)))

def cbf(z):
    return bf16(z.real.astype(np.float32)) + 1j * bf16(z.imag.astype(np.float32))

def column_phase(xh, rstd, wr, wi):
    u = xh * rstd[:, None]
    z = (u[:, 0::2] + 1j * u[:, 1::2]).astype(np.complex64)
    z[:, 0] = u[:, 0]
    z = cbf(z)
    W = (wr + 1j * wi).astype(np.complex64)
    Wc = np.concatenate([W[:, 320:321], W[:, 1:320]], axis=1)
    s1 = np.arange(N1); s2 = np.arange(N2)
    M1 = cbf(np.exp(-2j * np.pi * np.outer(s1, s1) / N1))
    M2 = cbf(np.exp(-2j * np.pi * np.outer(s2, s2) / N2))
    T = np.exp(-2j * np.pi * np.outer(s1, s2) / S).astype(np.complex64)
    X = z.reshape(N1, N2, -1)
    A = np.einsum("qa,abc->qbc", M1, X)
    B = cbf(A * T[:, :, None])
    U = np.einsum("pb,qbc->qpc", M2, B)
    Wq = Wc.reshape(N2, N1, -1).transpose(1, 0, 2)
    V = cbf(U * Wq * np.float32(1.0 / S))
    C = np.einsum("pb,qpc->qbc", M2.conj(), V)
    Dd = cbf(C * T.conj()[:, :, None])
    Y = np.einsum("qa,qbc->abc", M1.conj(), Dd).reshape(S, -1)
    out = xh.copy()
    out[:, 0::2] += Y.real
    out[:, 3::2] += Y.imag[:, 1:]
    return bf16(out)

def stats_rstd(xh):
    m = xh.copy(); m[:, 1] = 0
    v = (m.astype(np.float64) ** 2).sum(1) / D
    return v

def pipeline(x0, wr, wi, w1, b1, w2, b2, keep=None):
    Fb = bf16(basis().astype(np.float32))
    xh0 = bf16(x0 @ Fb)
    w1f = bf16(Fb.T @ w1)
    w2f = bf16(w2 @ Fb)
    b2f = b2 @ Fb
    v0 = x0.astype(np.float64).var(axis=1)
    rstd0 = (1.0 / np.sqrt(v0 + EPS)).astype(np.float32)
    xh1 = column_phase(xh0, rstd0, wr, wi)
    def g1(xh):
        v = stats_rstd(xh)
        r2 = (1.0 / np.sqrt(v + EPS) / np.sqrt(v / (v + EPS) + EPS)).astype(np.float32)
        m = xh.copy(); m[:, 1] = 0
        return bf16(gelu((m @ w1f) * r2[:, None] + b1))
    h1 = g1(xh1)
    xh2 = bf16(xh1 + h1 @ w2f + b2f)
    rstd2 = (1.0 / np.sqrt(stats_rstd(xh2) + EPS)).astype(np.float32)
    xh3 = column_phase(xh2, rstd2, wr, wi)
    h3 = g1(xh3)
    out = bf16(h3 @ w2 + xh3 @ Fb.T + b2)
    if keep is not None:
        keep.update(xh0=xh0, w1f=w1f, w2f=w2f, b2f=b2f, rstd0=rstd0, xh1=xh1, h1=h1, xh2=xh2,
                    rstd2=rstd2, xh3=xh3, h3=h3, out=out)
    return out
```

```python
import sys
import struct
import numpy as np

sys.path.insert(0, "gen")
from asmlib import Asm, Inst, R, V, A, S
import model

SEQ, DM, FF = 2048, 640, 1728

XP_STR = SEQ * 8
XP_SIZE = 160 * XP_STR
H_STR = SEQ * 16
H_SIZE = 216 * H_STR
W1F_STR = FF * 16
W1F_SIZE = 80 * W1F_STR
KB_STR = DM * 16
WA2_SIZE = 224 * KB_STR
W2T_SIZE = 216 * KB_STR
FT_SIZE = 80 * KB_STR
WC_SIZE = 320 * 8192
SS_SIZE = 8192

WS = {}
_off = 0
for _name, _size in (("XP0", XP_SIZE), ("XP1", XP_SIZE), ("XP2", XP_SIZE), ("XP3", XP_SIZE), ("H", H_SIZE),
                     ("W1F", W1F_SIZE), ("WA2", WA2_SIZE), ("W2T", W2T_SIZE), ("WC", WC_SIZE),
                     ("SS0", SS_SIZE), ("SS2", SS_SIZE), ("STAMP", 1 << 20)):
    WS[_name] = _off
    _off += (_size + 4095) // 4096 * 4096
WS_END = _off

P_X, P_WR, P_WI, P_W1, P_B1, P_W2, P_B2, P_OUT, P_WS = 8, 10, 12, 16, 18, 20, 22, 24, 28
SRD0, SRD1, SRD2, SRD3, SRD4, SRD5 = 32, 36, 40, 44, 48, 52
sW, sT, sA, sB, sC, sD, sE, sF = 56, 57, 58, 59, 60, 61, 62, 63
sOP, sOQ = 64, 65
sK0, sK1, sK2, sK3 = 66, 67, 68, 69
sM0, sM1 = 70, 71
sST = 72
vI, vG, vL = 1, 2, 3


def f32bits(x):
    return struct.unpack("<I", struct.pack("<f", x))[0]


def srd(a, dst, base, off, size):
    if off:
        a(f"s_add_u32 s{dst}, s{base}, {off}")
        a(f"s_addc_u32 s{dst + 1}, s{base + 1}, 0")
        a(f"s_and_b32 s{dst + 1}, s{dst + 1}, 0xffff")
    else:
        a(f"s_mov_b32 s{dst}, s{base}")
        a(f"s_and_b32 s{dst + 1}, s{base + 1}, 0xffff")
    a(f"s_mov_b32 s{dst + 2}, {size}")
    a(f"s_mov_b32 s{dst + 3}, 0x20000")


def srd_ws(a, dst, name, size):
    srd(a, dst, P_WS, WS[name], size)


def srd_table(a, dst, sym):
    a(f"s_getpc_b64 s[{dst}:{dst + 1}]")
    a(f"s_add_u32 s{dst}, s{dst}, {sym}@rel32@lo+4")
    a(f"s_addc_u32 s{dst + 1}, s{dst + 1}, {sym}@rel32@hi+12")
    a(f"s_and_b32 s{dst + 1}, s{dst + 1}, 0xffff")
    a(f"s_mov_b32 s{dst + 2}, {FT_SIZE}")
    a(f"s_mov_b32 s{dst + 3}, 0x20000")


class Cfg:
    stamp = False
    st_flags = ""


def mfma(a, d, x, y, c):
    a(f"v_mfma_f32_16x16x32_bf16 {R(d, 4)}, {R(x, 4)}, {R(y, 4)}, {'0' if c is None else R(c, 4)}")


def gemm_ks(a, nsteps, depth, acc, ring, vred, p_is_a, issue_p, issue_q, q_regs=16, prep_q=None,
            after_prologue=None, step_hook=None):
    stage = 20 + q_regs

    def accr(p, q):
        return acc + (q * 5 + p) * 4

    def preg(t, p):
        return ring + (t % depth) * stage + p * 4

    def qbase(t):
        return ring + (t % depth) * stage + 20

    def load_step(t):
        ops = []
        for q in range(4):
            ops.append(("q", q))
        for p in range(5):
            ops.append(("p", p))
        order = [ops[0], ops[4], ops[5], ops[1], ops[6], ops[7], ops[8], ops[2], ops[3]]
        for kind, j in order:
            if kind == "p":
                issue_p(t, j, preg(t, j))
            else:
                issue_q(t, j, qbase(t))

    for t in range(min(depth, nsteps)):
        load_step(t)
    if after_prologue:
        after_prologue()

    vw = [vred, vred + 1, vred + 2]
    vr = vred + 3
    a(f"v_lshlrev_b32 v{vr}, 4, v{vL}")
    for ql in (1, 2, 3):
        a(f"s_xor_b32 s{sA}, s{sW}, {ql}")
        a(f"s_mul_i32 s{sA}, s{sA}, 15360")
        a(f"s_add_u32 s{sA}, s{sA}, {(ql - 1) * 5120}")
        a(f"v_add_u32 v{vw[ql - 1]}, s{sA}, v{vr}")
    a(f"s_mul_i32 s{sA}, s{sW}, 15360")
    a(f"v_add_u32 v{vr}, s{sA}, v{vr}")

    def wr(q, p):
        a(f"ds_write_b128 v{vw[q - 1]}, {R(accr(p, q), 4)} offset:{p * 1024}")

    for t in range(nsteps):
        last = t == nsteps - 1
        if step_hook:
            step_hook(t, qbase(t))
        if prep_q:
            qf = prep_q(t, qbase(t))
        else:
            qf = [qbase(t) + q * 4 for q in range(4)]
        qorder = (1, 2, 3, 0) if last else (0, 1, 2, 3)
        nxt = t + depth
        for n, q in enumerate(qorder):
            for p in range(5):
                c = None if t == 0 else accr(p, q)
                if p_is_a:
                    mfma(a, accr(p, q), preg(t, p), qf[q], c)
                else:
                    mfma(a, accr(p, q), qf[q], preg(t, p), c)
                if last and n >= 2:
                    wr(qorder[n - 2], p)
                if nxt < nsteps:
                    if n == 3:
                        issue_p(nxt, p, preg(nxt, p))
                    if p == 4 and (not prep_q):
                        issue_q(nxt, q, qbase(nxt))
                    if prep_q and n == 0 and p < 4:
                        issue_q(nxt, p, qbase(nxt))
        if last:
            for p in range(5):
                wr(3, p)
    a("s_waitcnt lgkmcnt(0)")
    a("s_barrier")
    for p in range(5):
        for src in range(3):
            a(f"ds_read_b128 {R(accr(p, src + 1), 4)}, v{vr} offset:{src * 5120 + p * 1024}")
    for p in range(5):
        for h in (0, 2):
            d = accr(p, 0) + h
            a(f"v_pk_add_f32 {V(accr(p, 1) + h, 2)}, {V(accr(p, 1) + h, 2)}, {V(accr(p, 2) + h, 2)}")
            a(f"v_pk_add_f32 {V(d, 2)}, {V(d, 2)}, {V(accr(p, 3) + h, 2)}")
        for h in (0, 2):
            d = accr(p, 0) + h
            a(f"v_pk_add_f32 {V(d, 2)}, {V(d, 2)}, {V(accr(p, 1) + h, 2)}")
    return [accr(p, 0) for p in range(5)]


KS_LDS = 61440


def p_loader(a, vp, srd_p, step_bytes):
    state = {"t": None}

    def issue(t, p, dst):
        if state["t"] != t:
            a(f"s_mov_b32 s{sOP}, {t * step_bytes}")
            state["t"] = t
        a(f"buffer_load_dwordx4 {R(dst, 4)}, v{vp}, s[{srd_p}:{srd_p + 3}], s{sOP} offen offset:{p * 256}")
    return issue


def p_addr(a, vp, s_c, wave_steps):
    a(f"v_mul_u32_u24 v{vp}, {DM}, v{vG}")
    a(f"v_add_lshl_u32 v{vp}, v{vp}, v{vI}, 4")
    a(f"s_mul_i32 s{sA}, s{s_c}, 1280")
    a(f"s_mul_i32 s{sB}, s{sW}, {wave_steps * 4 * KB_STR}")
    a(f"s_add_u32 s{sA}, s{sA}, s{sB}")
    a(f"v_add_u32 v{vp}, s{sA}, v{vp}")


def rowmajor_q(a, vq, s_row0, srd_q):
    a(f"v_mul_u32_u24 v{vq}, 1280, v{vI}")
    a(f"v_lshl_add_u32 v{vq}, v{vG}, 4, v{vq}")
    a(f"s_mul_i32 s{sA}, s{s_row0}, 1280")
    a(f"s_mul_i32 s{sB}, s{sW}, 320")
    a(f"s_add_u32 s{sA}, s{sA}, s{sB}")
    for ql in (3, 2, 1, 0):
        a(f"s_xor_b32 s{sB}, s{sW}, {ql}")
        a(f"s_mul_i32 s{sB}, s{sB}, {16 * 1280}")
        a(f"s_add_u32 s{sB}, s{sB}, s{sA}")
        a(f"v_add_u32 v{vq + ql}, s{sB}, v{vq}")

    def issue(t, q, qb):
        a(f"buffer_load_dwordx4 {R(qb + q * 4, 4)}, v{vq + q}, s[{srd_q}:{srd_q + 3}], 0 offen offset:{t * 64}")
    return issue


def role_xhat0(a, depth):
    vp, vq, vred, vo, acc = 4, 5, 9, 13, 16
    ring = 256
    a(f"s_and_b32 s{sC}, s{sT}, 7")
    a(f"s_lshl_b32 s{sC}, s{sC}, 2")
    a(f"s_bfe_u32 s{sD}, s{sT}, 0x20003")
    a(f"s_add_u32 s{sC}, s{sC}, s{sD}")
    a(f"s_lshl_b32 s{sC}, s{sC}, 6")
    a(f"s_lshr_b32 s{sD}, s{sT}, 5")
    srd_table(a, SRD0, "ft1")
    p_addr(a, vp, sD, 5)
    iq = rowmajor_q(a, vq, sC, SRD1)
    a("s_waitcnt lgkmcnt(0)")
    srd(a, SRD1, P_X, 0, SEQ * DM * 2)
    ip = p_loader(a, vp, SRD0, 4 * KB_STR)

    def post():
        srd_ws(a, SRD2, "XP0", XP_SIZE)
        a(f"s_mul_i32 s{sA}, s{sD}, {20 * XP_STR}")
        a(f"s_lshl_b32 s{sB}, s{sW}, 4")
        a(f"s_add_u32 s{sB}, s{sB}, s{sC}")
        a(f"s_lshl_b32 s{sB}, s{sB}, 3")
        a(f"s_add_u32 s{sA}, s{sA}, s{sB}")
        a(f"v_lshlrev_b32 v{vo}, 14, v{vG}")
        a(f"v_lshl_add_u32 v{vo}, v{vI}, 3, v{vo}")
        a(f"v_add_u32 v{vo}, s{sA}, v{vo}")

    res = gemm_ks(a, 5, depth, acc, ring, vred, True, ip, iq, after_prologue=post)
    for p, r in enumerate(res):
        a(f"v_cvt_pk_bf16_f32 v{r}, v{r}, v{r + 1}")
        a(f"v_cvt_pk_bf16_f32 v{r + 1}, v{r + 2}, v{r + 3}")
        a(f"s_mov_b32 s{sOP}, {p * 4 * XP_STR}")
        a(f"buffer_store_dwordx2 {V(r, 2)}, v{vo}, s[{SRD2}:{SRD2 + 3}], s{sOP} offen{Cfg.st_flags}")
    return KS_LDS


def role_w2f(a, depth):
    vp, vq, vred, vo, acc = 4, 5, 9, 13, 16
    ring = 256
    a(f"s_and_b32 s{sD}, s{sT}, 7")
    a(f"s_lshr_b32 s{sE}, s{sT}, 3")
    a(f"s_lshl_b32 s{sC}, s{sE}, 6")
    a(f"s_cmp_eq_u32 s{sE}, 27")
    a(f"s_cselect_b32 s{sC}, 0, s{sC}")
    srd_table(a, SRD0, "ft1")
    p_addr(a, vp, sD, 5)
    iq = rowmajor_q(a, vq, sC, SRD1)
    a("s_waitcnt lgkmcnt(0)")
    a(f"s_cmp_eq_u32 s{sE}, 27")
    a(f"s_cselect_b32 s{SRD1}, s{P_B2}, s{P_W2}")
    a(f"s_cselect_b32 s{SRD1 + 1}, s{P_B2 + 1}, s{P_W2 + 1}")
    a(f"s_mov_b32 s{SRD1 + 2}, {FF * DM * 2}")
    a(f"s_cselect_b32 s{SRD1 + 2}, {DM * 2}, s{SRD1 + 2}")
    a(f"s_and_b32 s{SRD1 + 1}, s{SRD1 + 1}, 0xffff")
    a(f"s_mov_b32 s{SRD1 + 3}, 0x20000")
    ip = p_loader(a, vp, SRD0, 4 * KB_STR)

    def post():
        srd_ws(a, SRD2, "WA2", WA2_SIZE)
        a(f"s_lshl_b32 s{sA}, s{sE}, 2")
        a(f"s_add_u32 s{sA}, s{sA}, s{sW}")
        a(f"s_mul_i32 s{sA}, s{sA}, {2 * KB_STR}")
        a(f"s_mul_i32 s{sB}, s{sD}, 1280")
        a(f"s_add_u32 s{sA}, s{sA}, s{sB}")
        a(f"v_lshrrev_b32 v{vo}, 1, v{vG}")
        a(f"v_mul_u32_u24 v{vo}, {KB_STR}, v{vo}")
        a(f"v_lshl_add_u32 v{vo}, v{vI}, 4, v{vo}")
        a(f"v_and_b32 v{vo + 1}, 1, v{vG}")
        a(f"v_lshl_add_u32 v{vo}, v{vo + 1}, 3, v{vo}")
        a(f"v_add_u32 v{vo}, s{sA}, v{vo}")

    res = gemm_ks(a, 5, depth, acc, ring, vred, False, ip, iq, after_prologue=post)
    for p, r in enumerate(res):
        a(f"v_cvt_pk_bf16_f32 v{r}, v{r}, v{r + 1}")
        a(f"v_cvt_pk_bf16_f32 v{r + 1}, v{r + 2}, v{r + 3}")
        a(f"buffer_store_dwordx2 {V(r, 2)}, v{vo}, s[{SRD2}:{SRD2 + 3}], 0 offen offset:{p * 256}{Cfg.st_flags}")
    return KS_LDS


def role_w1f(a, depth):
    vp, vq, vred, vo, acc, qt = 4, 5, 9, 13, 16, 96
    ring = 112
    a(f"s_and_b32 s{sD}, s{sT}, 7")
    a(f"s_lshr_b32 s{sE}, s{sT}, 3")
    srd_table(a, SRD0, "ft1")
    p_addr(a, vp, sD, 5)
    a(f"v_mul_u32_u24 v{vq}, {8 * FF * 2}, v{vG}")
    a(f"v_lshl_add_u32 v{vq}, v{vI}, 3, v{vq}")
    a(f"s_mul_i32 s{sA}, s{sW}, {160 * FF * 2}")
    a(f"s_lshl_b32 s{sB}, s{sE}, 7")
    a(f"s_add_u32 s{sA}, s{sA}, s{sB}")
    a(f"v_add_u32 v{vq}, s{sA}, v{vq}")
    a(f"s_mov_b32 s{sA}, 0x05040100")
    a(f"s_bitcmp1_b32 s{sW}, 0")
    a(f"s_cselect_b32 s{sK0}, 0x07060302, s{sA}")
    a(f"s_cselect_b32 s{sK1}, s{sA}, 0x07060302")
    a(f"s_bitcmp1_b32 s{sW}, 1")
    a(f"s_cselect_b64 s[{sM0}:{sM1}], -1, 0")
    a("s_waitcnt lgkmcnt(0)")
    srd(a, SRD1, P_W1, 0, DM * FF * 2)
    ip = p_loader(a, vp, SRD0, 4 * KB_STR)

    def iq(t, q, qb):
        for j in (2 * q, 2 * q + 1):
            off = (t * 32 + j) * FF * 2
            if j & 1:
                a(f"buffer_load_dwordx2 {R(qb + j * 2, 2)}, v{vq}, s[{SRD1}:{SRD1 + 3}], s{sOQ} offen offset:{FF * 2}")
            else:
                a(f"s_mov_b32 s{sOQ}, {off}")
                a(f"buffer_load_dwordx2 {R(qb + j * 2, 2)}, v{vq}, s[{SRD1}:{SRD1 + 3}], s{sOQ} offen")

    def prep(t, qb):
        a(f"s_mov_b64 exec, s[{sM0}:{sM1}]")
        for j in range(8):
            a(f"v_swap_b32 v{qb + 2 * j}, v{qb + 2 * j + 1}")
        a("s_mov_b64 exec, -1")
        for ql in range(4):
            for m in range(4):
                sel = sK1 if ql & 1 else sK0
                a(f"v_perm_b32 v{qt + ql * 4 + m}, v{qb + (2 * m + 1) * 2 + (ql >> 1)}, v{qb + (2 * m) * 2 + (ql >> 1)}, s{sel}")
        return [qt + ql * 4 for ql in range(4)]

    def post():
        srd_ws(a, SRD2, "W1F", W1F_SIZE)
        a(f"s_mul_i32 s{sA}, s{sD}, {10 * W1F_STR}")
        a(f"s_lshl_b32 s{sB}, s{sE}, 6")
        a(f"s_add_u32 s{sB}, s{sB}, s{sW}")
        a(f"s_lshl_b32 s{sB}, s{sB}, 4")
        a(f"s_add_u32 s{sA}, s{sA}, s{sB}")
        a(f"v_lshrrev_b32 v{vo}, 1, v{vG}")
        a(f"v_mul_u32_u24 v{vo}, {W1F_STR}, v{vo}")
        a(f"v_lshl_add_u32 v{vo}, v{vI}, 6, v{vo}")
        a(f"v_and_b32 v{vo + 1}, 1, v{vG}")
        a(f"v_lshl_add_u32 v{vo}, v{vo + 1}, 3, v{vo}")
        a(f"v_add_u32 v{vo}, s{sA}, v{vo}")

    res = gemm_ks(a, 5, depth, acc, ring, vred, True, ip, iq, prep_q=prep, after_prologue=post)
    for p, r in enumerate(res):
        a(f"v_cvt_pk_bf16_f32 v{r}, v{r}, v{r + 1}")
        a(f"v_cvt_pk_bf16_f32 v{r + 1}, v{r + 2}, v{r + 3}")
        a(f"s_mov_b32 s{sOP}, {p * 2 * W1F_STR}")
        a(f"buffer_store_dwordx2 {V(r, 2)}, v{vo}, s[{SRD2}:{SRD2 + 3}], s{sOP} offen{Cfg.st_flags}")
    return KS_LDS


def role_wc(a):
    va, vo, vo3, vt, ld, st = 4, 5, 6, 7, 8, 40
    a(f"s_mul_hi_u32 s{sC}, s{sT}, {(1 << 32) // 5 + 1}")
    a(f"s_mul_i32 s{sD}, s{sC}, 5")
    a(f"s_sub_u32 s{sD}, s{sT}, s{sD}")
    a(f"s_lshl_b32 s{sD}, s{sD}, 2")
    a(f"s_add_u32 s{sD}, s{sD}, s{sW}")
    a(f"s_lshl_b32 s{sD}, s{sD}, 2")
    a(f"v_add_u32 v{vt}, s{sD}, v{vG}")
    a(f"v_mul_u32_u24 v{va}, 642, v{vI}")
    a(f"v_lshl_add_u32 v{va}, v{vt}, 3, v{va}")
    a(f"s_mul_i32 s{sA}, s{sC}, {128 * 642}")
    a(f"s_add_u32 s{sA}, s{sA}, 2")
    a(f"v_add_u32 v{va}, s{sA}, v{va}")
    a(f"s_lshr_b32 s{sA}, s{sC}, 2")
    a(f"s_lshl_b32 s{sA}, s{sA}, 11")
    a(f"s_and_b32 s{sB}, s{sC}, 3")
    a(f"s_lshl_b32 s{sB}, s{sB}, 8")
    a(f"s_add_u32 s{sA}, s{sA}, s{sB}")
    a(f"v_lshlrev_b32 v{vo3}, 4, v{vI}")
    a(f"v_add_u32 v{vo3}, s{sA}, v{vo3}")
    a(f"v_lshl_add_u32 v{vo}, v{vt}, 15, v{vo3}")
    a(f"v_cmp_eq_u32 vcc, 79, v{vt}")
    a(f"v_add_u32 v{vt}, {4 * 8192}, v{vo}")
    a(f"v_cndmask_b32 v{vo3}, v{vt}, v{vo3}, vcc")
    a(f"s_mov_b32 s{sK0}, 0x05040100")
    a(f"s_mov_b32 s{sK1}, 0x07060302")
    a("s_waitcnt lgkmcnt(0)")
    srd(a, SRD0, P_WR, 0, SEQ * 642)
    srd(a, SRD1, P_WI, 0, SEQ * 642)
    srd_ws(a, SRD2, "WC", WC_SIZE)
    for u in range(2):
        for r in range(4):
            a(f"s_mov_b32 s{sOP}, {(32 * r + 16 * u) * 642}")
            b = ld + (u * 4 + r) * 4
            a(f"buffer_load_dwordx2 {V(b, 2)}, v{va}, s[{SRD0}:{SRD0 + 3}], s{sOP} offen")
            a(f"buffer_load_dwordx2 {V(b + 2, 2)}, v{va}, s[{SRD1}:{SRD1 + 3}], s{sOP} offen")
    for u in range(2):
        for e in range(4):
            o = st + (u * 4 + e) * 4
            for r in range(4):
                b = ld + (u * 4 + r) * 4
                a(f"v_perm_b32 v{o + r}, v{b + 2 + (e >> 1)}, v{b + (e >> 1)}, s{sK1 if e & 1 else sK0}")
            if e < 3:
                a(f"s_mov_b32 s{sOP}, {(e + 1) * 8192}")
                a(f"buffer_store_dwordx4 {V(o, 4)}, v{vo}, s[{SRD2}:{SRD2 + 3}], s{sOP} offen offset:{u * 1024}{Cfg.st_flags}")
            else:
                a(f"buffer_store_dwordx4 {V(o, 4)}, v{vo3}, s[{SRD2}:{SRD2 + 3}], 0 offen offset:{u * 1024}{Cfg.st_flags}")
    return 0


def dpp_rowsum(a, v, t):
    for k in (8, 4, 2, 1):
        a(f"v_add_f32_dpp v{v}, v{v}, v{v} row_ror:{k} row_mask:0xf bank_mask:0xf")


def role_stats(a):
    va, vo, vt, vz, vone, sm, sq, t0, ld = 4, 5, 6, 7, 8, 10, 12, 16, 20
    a(f"s_lshl_b32 s{sA}, s{sT}, 5")
    a(f"s_lshl_b32 s{sB}, s{sW}, 3")
    a(f"s_add_u32 s{sA}, s{sA}, s{sB}")
    a(f"v_add_u32 v{vt}, s{sA}, v{vG}")
    a(f"v_mul_u32_u24 v{va}, 1280, v{vt}")
    a(f"v_lshl_add_u32 v{va}, v{vI}, 4, v{va}")
    a("s_waitcnt lgkmcnt(0)")
    srd(a, SRD0, P_X, 0, SEQ * DM * 2)
    a(f"s_mov_b32 s{sOP}, {4 * 1280}")
    for h in range(2):
        for j in range(5):
            so = f"s{sOP}" if h else "0"
            a(f"buffer_load_dwordx4 {V(ld + (h * 5 + j) * 4, 4)}, v{va}, s[{SRD0}:{SRD0 + 3}], {so} offen offset:{j * 256}")
    srd_ws(a, SRD1, "SS0", 2 * SS_SIZE)
    a(f"v_bfe_u32 v{vo}, v{vt}, 4, 2")
    a(f"v_lshlrev_b32 v{vo}, 3, v{vo}")
    a(f"v_lshrrev_b32 v{vz}, 8, v{vt}")
    a(f"v_add_u32 v{vo}, v{vo}, v{vz}")
    a(f"v_and_b32 v{vz}, 15, v{vt}")
    a(f"v_lshl_add_u32 v{vo}, v{vo}, 4, v{vz}")
    a(f"v_bfe_u32 v{vz}, v{vt}, 6, 2")
    a(f"v_lshl_add_u32 v{vo}, v{vo}, 2, v{vz}")
    a(f"v_lshlrev_b32 v{vo}, 2, v{vo}")
    a(f"v_mov_b32 v{vz}, 0")
    a(f"v_mov_b32 v{vone}, 0x3f803f80")
    a(f"s_mov_b32 s{sOQ}, {WS['SS2'] - WS['SS0']}")
    a(f"s_mov_b32 s{sK0}, 0xffff0000")
    for h in range(2):
        a(f"buffer_store_dword v{vz}, v{vo}, s[{SRD1}:{SRD1 + 3}], s{sOQ} offen offset:{h * 64}")
    for h in range(2):
        a(f"v_mov_b32 v{sm + h}, 0")
        a(f"v_mov_b32 v{sq + 2 * h}, 0")
        a(f"v_mov_b32 v{sq + 2 * h + 1}, 0")
    for h in range(2):
        for k in range(20):
            a(f"v_dot2c_f32_bf16 v{sm + h}, v{ld + h * 20 + k}, v{vone}")
    for h in range(2):
        dpp_rowsum(a, sm + h, t0)
        a(f"v_mul_f32 v{sm + h}, {f32bits(-1.0 / DM):#x}, v{sm + h}")
    for k in range(20):
        for h in range(2):
            x = ld + h * 20 + k
            t = t0 + 2 * h
            a(f"v_lshlrev_b32 v{t}, 16, v{x}")
            a(f"v_and_b32 v{t + 1}, s{sK0}, v{x}")
            a(f"v_add_f32 v{t}, v{t}, v{sm + h}")
            a(f"v_add_f32 v{t + 1}, v{t + 1}, v{sm + h}")
            a(f"v_fmac_f32 v{sq + 2 * h}, v{t}, v{t}")
            a(f"v_fmac_f32 v{sq + 2 * h + 1}, v{t + 1}, v{t + 1}")
    for h in range(2):
        a(f"v_add_f32 v{sq + 2 * h}, v{sq + 2 * h}, v{sq + 2 * h + 1}")
        dpp_rowsum(a, sq + 2 * h, t0)
        a(f"buffer_store_dword v{sq + 2 * h}, v{vo}, s[{SRD1}:{SRD1 + 3}], 0 offen offset:{h * 64}")
    return 0


def role_w2t(a):
    va, vo, vt, ld, st = 4, 5, 6, 8, 24
    a(f"s_lshl_b32 s{sA}, s{sT}, 8")
    a(f"v_add_u32 v{vo}, s{sA}, v0")
    a(f"v_lshrrev_b32 v{vt}, 5, v{vo}")
    a(f"v_mul_u32_u24 v{vt}, 52429, v{vt}")
    a(f"v_lshrrev_b32 v{vt}, 18, v{vt}")
    a(f"v_mul_u32_u24 v{va}, {10240 - 1280}, v{vt}")
    a(f"v_lshl_add_u32 v{va}, v{vo}, 3, v{va}")
    a(f"v_lshlrev_b32 v{vo}, 6, v{vo}")
    a(f"s_mov_b32 s{sK0}, 0x05040100")
    a(f"s_mov_b32 s{sK1}, 0x07060302")
    a(f"s_mov_b32 s{sOP}, {4 * 1280}")
    a("s_waitcnt lgkmcnt(0)")
    srd(a, SRD0, P_W2, 0, FF * DM * 2)
    srd_ws(a, SRD1, "W2T", W2T_SIZE)
    for j in range(8):
        so = f"s{sOP}" if j >= 4 else "0"
        a(f"buffer_load_dwordx2 {V(ld + 2 * j, 2)}, v{va}, s[{SRD0}:{SRD0 + 3}], {so} offen offset:{(j & 3) * 1280}")
    for e in range(4):
        for m in range(4):
            a(f"v_perm_b32 v{st + e * 4 + m}, v{ld + (2 * m + 1) * 2 + (e >> 1)}, v{ld + 2 * m * 2 + (e >> 1)}, s{sK1 if e & 1 else sK0}")
        a(f"buffer_store_dwordx4 {V(st + e * 4, 4)}, v{vo}, s[{SRD1}:{SRD1 + 3}], 0 offen offset:{e * 16}{Cfg.st_flags}")
    return 0


def cmul_pack(a, dst, re, im, c, s, tmp, conj_w=False):
    for h in (0, 2):
        t0, t1 = tmp + 2 * h, tmp + 2 * h + 2
        a(f"v_pk_mul_f32 {V(t0, 2)}, {V(re + h, 2)}, {V(c + h, 2)}")
        a(f"v_pk_mul_f32 {V(t1, 2)}, {V(im + h, 2)}, {V(c + h, 2)}")
    for h in (0, 2):
        t0, t1 = tmp + 2 * h, tmp + 2 * h + 2
        if conj_w:
            a(f"v_pk_fma_f32 {V(t0, 2)}, {V(im + h, 2)}, {V(s + h, 2)}, {V(t0, 2)} neg_lo:[1,0,0] neg_hi:[1,0,0]")
            a(f"v_pk_fma_f32 {V(t1, 2)}, {V(re + h, 2)}, {V(s + h, 2)}, {V(t1, 2)}")
        else:
            a(f"v_pk_fma_f32 {V(t0, 2)}, {V(im + h, 2)}, {V(s + h, 2)}, {V(t0, 2)}")
            a(f"v_pk_fma_f32 {V(t1, 2)}, {V(re + h, 2)}, {V(s + h, 2)}, {V(t1, 2)} neg_lo:[1,0,0] neg_hi:[1,0,0]")
    for h in (0, 2):
        t0, t1 = tmp + 2 * h, tmp + 2 * h + 2
        n = "-" if conj_w else ""
        a(f"v_cvt_pk_bf16_f32 v{dst + h}, v{t0}, {n}v{t1}")
        a(f"v_cvt_pk_bf16_f32 v{dst + h + 1}, v{t0 + 1}, {n}v{t1 + 1}")


def role_col(a, src, ssn, dst):
    vx, vw, vl0, vmI = 4, 5, 6, 10
    fi, fg, fa, fb = 11, 12, 13, 14
    raw, ss, wraw = 16, 24, 32
    M1, M2 = 40, 72
    T1, T2 = 104, 120
    WU = 136
    ACC = 152
    FO, FG = 168, 176
    TMP = 200

    a(f"s_and_b32 s{sA}, s{sT}, 7")
    a(f"s_lshr_b32 s{sB}, s{sT}, 4")
    a(f"s_lshl_b32 s{sB}, s{sB}, 3")
    a(f"s_add_u32 s{sC}, s{sA}, s{sB}")
    a(f"s_bfe_u32 s{sD}, s{sT}, 0x10003")
    a(f"s_lshl1_add_u32 s{sE}, s{sC}, s{sD}")
    a(f"s_lshl_b32 s{sA}, s{sC}, 14")
    a(f"s_lshl2_add_u32 s{sA}, s{sD}, s{sA}")
    a(f"s_lshl_b32 s{sB}, s{sW}, 7")
    a(f"s_add_u32 s{sA}, s{sA}, s{sB}")
    a(f"v_lshlrev_b32 v{vx}, 11, v{vG}")
    a(f"v_lshl_add_u32 v{vx}, v{vI}, 3, v{vx}")
    a(f"v_add_u32 v{vx}, s{sA}, v{vx}")
    a(f"s_lshl_b32 s{sB}, s{sW}, 11")
    a(f"v_lshlrev_b32 v{vw}, 4, v{vL}")
    a(f"v_add_u32 v{vw}, s{sB}, v{vw}")
    a(f"s_lshl_b32 s{sF}, s{sE}, 13")
    a(f"s_mov_b32 s{sOP}, 8192")
    a("s_waitcnt lgkmcnt(0)")
    srd_ws(a, SRD0, src, XP_SIZE)
    srd_ws(a, SRD1, ssn, SS_SIZE)
    for t in range(2):
        a(f"buffer_load_dwordx4 {V(ss + 4 * t, 4)}, v{vw}, s[{SRD1}:{SRD1 + 3}], 0 offen offset:{t * 1024}")
    for t in range(2):
        for jj in range(4):
            so = f"s{sOP}" if t else "0"
            a(f"buffer_load_dword v{raw + 4 * t + jj}, v{vx}, s[{SRD0}:{SRD0 + 3}], {so} offen offset:{jj * 512}")
    srd_ws(a, SRD2, "WC", WC_SIZE)
    for u in range(2):
        a(f"buffer_load_dwordx4 {V(wraw + 4 * u, 4)}, v{vw}, s[{SRD2}:{SRD2 + 3}], s{sF} offen offset:{u * 1024}")
    srd_ws(a, SRD3, dst, XP_SIZE)

    a(f"v_lshlrev_b32 v{vl0}, 4, v0")
    for kk in (1, 2, 3):
        a(f"v_xor_b32 v{vl0 + kk}, {kk * 1024}, v{vl0}")
    a(f"v_and_b32 v{vmI}, 1, v{vI}")
    a(f"v_mul_u32_u24 v{vmI}, 0x8000, v{vmI}")
    a(f"v_lshl_or_b32 v{vmI}, v{vmI}, 16, v{vmI}")
    a(f"s_mov_b32 s{sK0}, 0x80008000")
    a(f"v_cvt_f32_u32 v{fi}, v{vI}")
    a(f"v_lshlrev_b32 v{fg}, 2, v{vG}")
    a(f"v_cvt_f32_u32 v{fg}, v{fg}")

    def m1(qb, t, var):
        return M1 + ((qb * 2 + t) * 2 + var) * 4

    def m2(kk, var):
        return M2 + (kk * 2 + var) * 4

    a(f"v_mul_f32 v{fa}, {f32bits(1 / 32):#x}, v{fi}")
    for jj in range(4):
        t = TMP + 3 * jj
        a(f"v_add_f32 v{t}, {float(jj)}, v{fg}" if jj in (0, 1, 2) else f"v_add_f32 v{t}, {f32bits(3.0):#x}, v{fg}")
        a(f"v_mul_f32 v{t}, v{t}, v{fa}")
        a(f"v_fract_f32 v{t}, v{t}")
        a(f"v_cos_f32 v{t + 1}, v{t}")
        a(f"v_sin_f32 v{t + 2}, v{t}")
    for jj in range(4):
        t = TMP + 3 * jj
        n = "-" if jj & 1 else ""
        m = "" if jj & 1 else "-"
        a(f"v_cvt_pk_bf16_f32 v{m1(0, 0, 0) + jj}, v{t + 1}, v{t + 2}")
        a(f"v_cvt_pk_bf16_f32 v{m1(0, 0, 1) + jj}, -v{t + 2}, v{t + 1}")
        a(f"v_cvt_pk_bf16_f32 v{m1(1, 0, 0) + jj}, {n}v{t + 1}, {n}v{t + 2}")
        a(f"v_cvt_pk_bf16_f32 v{m1(1, 0, 1) + jj}, {m}v{t + 2}, {n}v{t + 1}")
    for qb in range(2):
        for var in range(2):
            for jj in range(4):
                a(f"v_xor_b32 v{m1(qb, 1, var) + jj}, v{vmI}, v{m1(qb, 0, var) + jj}")

    a(f"s_lshl_b32 s{sA}, s{sW}, 4")
    a(f"v_cvt_f32_u32 v{fb}, s{sA}")
    a(f"v_add_f32 v{TMP + 24}, v{fb}, v{fg}")
    a(f"v_add_f32 v{fb}, v{fb}, v{fi}")
    a(f"v_mul_f32 v{TMP + 25}, {f32bits(1 / 2048):#x}, v{fi}")
    a(f"v_add_f32 v{TMP + 26}, {f32bits(16 / 2048):#x}, v{TMP + 25}")
    for r in range(4):
        t = TMP + r
        a(f"v_add_f32 v{t}, {f32bits(float(r)):#x}, v{TMP + 24}")
    for qb in range(2):
        for r in range(4):
            t = TMP + 4 + (qb * 4 + r)
            a(f"v_mul_f32 v{t}, v{TMP + r}, v{TMP + 25 + qb}")
            a(f"v_cos_f32 v{T1 + qb * 8 + r}, v{t}")
            a(f"v_sin_f32 v{T1 + qb * 8 + 4 + r}, v{t}")

    a(f"v_mul_f32 v{fa}, {f32bits(1 / 64):#x}, v{fb}")
    a(f"s_xor_b32 s{sA}, s{sA}, 16")
    a(f"v_cvt_f32_u32 v{TMP + 24}, s{sA}")
    a(f"v_add_f32 v{TMP + 24}, v{TMP + 24}, v{fg}")
    for kk in range(2):
        for r in range(4):
            t = TMP + 12 + 3 * r
            if kk == 0:
                a(f"v_mul_f32 v{t}, v{TMP + r}, v{fa}")
            else:
                a(f"v_add_f32 v{t}, {f32bits(float(r)):#x}, v{TMP + 24}")
                a(f"v_mul_f32 v{t}, v{t}, v{fa}")
            a(f"v_fract_f32 v{t}, v{t}")
            a(f"v_cos_f32 v{t + 1}, v{t}")
            a(f"v_sin_f32 v{t + 2}, v{t}")
        for r in range(4):
            t = TMP + 12 + 3 * r
            a(f"v_cvt_pk_bf16_f32 v{m2(kk, 0) + r}, v{t + 1}, v{t + 2}")
            a(f"v_cvt_pk_bf16_f32 v{m2(kk, 1) + r}, -v{t + 2}, v{t + 1}")
    for kk in range(2):
        for var in range(2):
            for r in range(4):
                a(f"v_xor_b32 v{m2(kk + 2, var) + r}, v{vmI}, v{m2(kk, var) + r}")

    a(f"v_mul_f32 v{fa}, {f32bits(1 / 2048):#x}, v{fb}")
    for u in range(2):
        for r in range(4):
            t = TMP + (u * 4 + r)
            a(f"v_add_f32 v{t}, {f32bits(float(16 * u + r)):#x}, v{fg}")
            a(f"v_mul_f32 v{t}, v{t}, v{fa}")
            a(f"v_cos_f32 v{T2 + u * 8 + r}, v{t}")
            a(f"v_sin_f32 v{T2 + u * 8 + 4 + r}, v{t}")

    a(f"s_mov_b32 s{sK1}, 0xffff0000")
    a(f"s_cmp_eq_u32 s{sE}, 0")
    a(f"s_cselect_b32 s{sK2}, 0, s{sK1}")
    a(f"s_cselect_b32 s{sK3}, 0, {f32bits(-1 / 2048):#x}")
    a(f"s_mov_b32 s{sA}, {f32bits(1 / DM):#x}")
    a(f"s_mov_b32 s{sB}, {f32bits(1 / 2048):#x}")
    a(f"v_mov_b32 v{fa}, {f32bits(1e-5):#x}")
    for k in range(8):
        a(f"v_fma_f32 v{ss + k}, v{ss + k}, s{sA}, v{fa}")
    for k in range(8):
        a(f"v_rsq_f32 v{ss + k}, v{ss + k}")
    for k in range(8):
        t = TMP + 2 * k
        a(f"v_lshlrev_b32 v{t}, 16, v{raw + k}")
        a(f"v_and_b32 v{t + 1}, s{sK2}, v{raw + k}")
    for k in range(8):
        t = TMP + 2 * k
        a(f"v_mul_f32 v{t}, v{t}, v{ss + k}")
        a(f"v_mul_f32 v{t + 1}, v{t + 1}, v{ss + k}")
    for k in range(8):
        t = TMP + 2 * k
        a(f"v_cvt_pk_bf16_f32 v{FG + k}, v{t}, v{t + 1}")

    def acc(b, var):
        return ACC + (b * 2 + var) * 4

    for t in range(2):
        for qb in range(2):
            for var in range(2):
                mfma(a, acc(qb, var), FG + 4 * t, m1(qb, t, var), None if t == 0 else acc(qb, var))
    for u in range(2):
        for r in range(4):
            a(f"v_lshlrev_b32 v{WU + u * 8 + r}, 16, v{wraw + u * 4 + r}")
            a(f"v_and_b32 v{WU + u * 8 + 4 + r}, s{sK1}, v{wraw + u * 4 + r}")

    def exchange(base, data_is_a):
        for b in range(2):
            a(f"ds_write_b128 v{vl0}, {V(FO + 4 * b, 4)} offset:{base + b * 4096}")
        for b in range(2):
            for var in range(2):
                if data_is_a:
                    mfma(a, acc(b, var), FO + 4 * b, m2(0, var), None)
                else:
                    mfma(a, acc(b, var), m2(0, var), FO + 4 * b, None)
        a("s_waitcnt lgkmcnt(0)")
        a("s_barrier")
        for kk in (1, 2, 3):
            for b in range(2):
                a(f"ds_read_b128 {V(FG + ((kk - 1) * 2 + b) * 4, 4)}, v{vl0 + kk} offset:{base + b * 4096}")
        for kk in (1, 2, 3):
            for b in range(2):
                for var in range(2):
                    f = FG + ((kk - 1) * 2 + b) * 4
                    if data_is_a:
                        mfma(a, acc(b, var), f, m2(kk, var), acc(b, var))
                    else:
                        mfma(a, acc(b, var), m2(kk, var), f, acc(b, var))

    for qb in range(2):
        cmul_pack(a, FO + 4 * qb, acc(qb, 0), acc(qb, 1), T1 + qb * 8, T1 + qb * 8 + 4, TMP + 8 * qb)
    exchange(0, False)
    for u in range(2):
        cmul_pack(a, FO + 4 * u, acc(u, 0), acc(u, 1), WU + u * 8, WU + u * 8 + 4, TMP + 8 * u, conj_w=True)
    exchange(8192, True)
    for k in range(8):
        a(f"v_lshlrev_b32 v{WU + 2 * k}, 16, v{raw + k}")
        a(f"v_and_b32 v{WU + 2 * k + 1}, s{sK1}, v{raw + k}")
    for u in range(2):
        cmul_pack(a, FO + 4 * u, acc(u, 0), acc(u, 1), T2 + u * 8, T2 + u * 8 + 4, TMP + 8 * u)
    for u in range(2):
        for t in range(2):
            for var in range(2):
                mfma(a, acc(t, var), m1(t, u, var), FO + 4 * u, None if u == 0 else acc(t, var))
    for t in range(2):
        for jj in range(4):
            k = 4 * t + jj
            a(f"v_fma_f32 v{WU + 2 * k}, v{acc(t, 0) + jj}, s{sB}, v{WU + 2 * k}")
            a(f"v_fma_f32 v{WU + 2 * k + 1}, v{acc(t, 1) + jj}, s{sK3}, v{WU + 2 * k + 1}")
        for jj in range(4):
            k = 4 * t + jj
            a(f"v_cvt_pk_bf16_f32 v{raw + k}, v{WU + 2 * k}, v{WU + 2 * k + 1}")
            so = f"s{sOP}" if t else "0"
            a(f"buffer_store_dword v{raw + k}, v{vx}, s[{SRD3}:{SRD3 + 3}], {so} offen offset:{jj * 512}{Cfg.st_flags}")
    return 16384


def role_g1(a, src):
    vx, vw, vl, vo, vb, vm = 4, 5, 6, 7, 8, 9
    sq = 10
    X = 16
    ACC = 176
    BR = 232
    TMP = 246
    WR = 256
    NW = 14

    a(f"s_and_b32 s{sA}, s{sT}, 7")
    a(f"s_lshr_b32 s{sB}, s{sA}, 1")
    a(f"s_lshl_b32 s{sB}, s{sB}, 2")
    a(f"s_bfe_u32 s{sC}, s{sT}, 0x20003")
    a(f"s_add_u32 s{sC}, s{sC}, s{sB}")
    a(f"s_and_b32 s{sA}, s{sA}, 1")
    a(f"s_lshl_b32 s{sA}, s{sA}, 3")
    a(f"s_lshr_b32 s{sD}, s{sT}, 5")
    a(f"s_add_u32 s{sD}, s{sD}, s{sA}")
    a(f"s_mul_i32 s{sD}, s{sD}, 27")
    a(f"s_lshr_b32 s{sD}, s{sD}, 2")
    a(f"s_lshl_b32 s{sC}, s{sC}, 7")
    a(f"s_lshl_b32 s{sA}, s{sW}, 5")
    a(f"s_add_u32 s{sC}, s{sC}, s{sA}")
    a(f"v_lshlrev_b32 v{vx}, 15, v{vG}")
    a(f"v_lshl_add_u32 v{vx}, v{vI}, 4, v{vx}")
    a(f"s_lshl_b32 s{sA}, s{sC}, 3")
    a(f"v_add_u32 v{vx}, s{sA}, v{vx}")
    a(f"v_mul_u32_u24 v{vw}, {FF}, v{vG}")
    a(f"v_add_lshl_u32 v{vw}, v{vw}, v{vI}, 4")
    a(f"s_mul_i32 s{sA}, s{sW}, {4 * W1F_STR}")
    a(f"s_lshl_b32 s{sB}, s{sD}, 8")
    a(f"s_add_u32 s{sA}, s{sA}, s{sB}")
    a(f"v_add_u32 v{vw}, s{sA}, v{vw}")
    a(f"s_mul_i32 s{sE}, s{sW}, 7168")
    a(f"v_lshlrev_b32 v{vl}, 4, v{vL}")
    a("s_waitcnt lgkmcnt(0)")
    srd_ws(a, SRD0, "W1F", W1F_SIZE)
    srd_ws(a, SRD1, src, XP_SIZE)

    def xr(ks, st):
        return X + ks * 8 + st * 4

    def issue_chunk(c):
        a(f"s_mov_b32 s{sOP}, {c * 16 * W1F_STR}")
        for ft in range(7):
            a(f"s_add_u32 m0, s{sE}, {c * 28672 + ft * 1024 - ft * 256}")
            a(f"buffer_load_dwordx4 v{vw}, s[{SRD0}:{SRD0 + 3}], s{sOP} offen offset:{ft * 256} lds", tag=f"w{c}")
        for k in range(4):
            ks = 4 * c + k
            for h in range(2):
                a(f"s_mov_b32 s{sOQ}, {(8 * ks + h) * XP_STR}")
                a(f"buffer_load_dwordx4 {V(xr(ks, h), 4)}, v{vx}, s[{SRD1}:{SRD1 + 3}], s{sOQ} offen")

    for c in range(4):
        issue_chunk(c)
    srd(a, SRD2, P_B1, 0, FF * 2)
    srd_ws(a, SRD3, "H", H_SIZE)
    a(f"s_lshl_b32 s{sA}, s{sD}, 5")
    a(f"v_lshlrev_b32 v{vb}, 3, v{vG}")
    a(f"v_add_u32 v{vb}, s{sA}, v{vb}")
    a(f"v_lshrrev_b32 v{vo}, 1, v{vG}")
    a(f"v_mul_u32_u24 v{vo}, {H_STR}, v{vo}")
    a(f"v_lshl_add_u32 v{vo}, v{vI}, 5, v{vo}")
    a(f"v_and_b32 v{vm}, 1, v{vG}")
    a(f"v_lshl_add_u32 v{vo}, v{vm}, 4, v{vo}")
    a(f"s_mul_i32 s{sA}, s{sD}, {2 * H_STR}")
    a(f"s_lshl_b32 s{sB}, s{sC}, 4")
    a(f"s_add_u32 s{sA}, s{sA}, s{sB}")
    a(f"v_add_u32 v{vo}, s{sA}, v{vo}")
    a(f"v_cmp_eq_u32 vcc, 0, v{vG}")
    a(f"v_mov_b32 v{vm}, 0xffff")
    a(f"v_cndmask_b32 v{vm}, -1, v{vm}, vcc")
    for k in range(4):
        a(f"v_mov_b32 v{sq + k}, 0")

    def acc(ft, st):
        return ACC + (ft * 2 + st) * 4

    seq = [(ks, ft) for ks in range(20) for ft in range(7)]

    def wreg(n):
        return WR + (n % NW) * 4

    def rd(n):
        ks, ft = seq[n]
        off = (ks * 7 + ft) * 1024
        if off >= 65536:
            a(f"ds_read_b128 {R(wreg(n), 4)}, v{TMP + (off >> 16)} offset:{off & 0xffff}")
        else:
            a(f"ds_read_b128 {R(wreg(n), 4)}, v{vl} offset:{off}")

    a(f"v_add_u32 v{TMP + 1}, 0x10000, v{vl}")
    a(f"v_add_u32 v{TMP + 2}, 0x20000, v{vl}")
    AHEAD = 8
    nread = 0
    for c in range(5):
        a.wait_tag(f"w{c}")
        a("s_barrier")
        if c == 0:
            issue_chunk(4)
            for ft in range(7):
                a(f"buffer_load_dwordx2 {V(BR + 2 * ft, 2)}, v{vb}, s[{SRD2}:{SRD2 + 3}], 0 offen offset:{ft * 32}")
        hi = (c + 1) * 28
        for n in range(c * 28, hi):
            ks, ft = seq[n]
            while nread < min(hi, n + AHEAD):
                rd(nread)
                nread += 1
            if ft == 0:
                a(f"v_swap_b32 v{xr(ks, 0) + 2}, v{xr(ks, 1)}")
                a(f"v_swap_b32 v{xr(ks, 0) + 3}, v{xr(ks, 1) + 1}")
                if ks == 0:
                    a(f"v_and_b32 v{xr(0, 0)}, v{vm}, v{xr(0, 0)}")
                    a(f"v_and_b32 v{xr(0, 1)}, v{vm}, v{xr(0, 1)}")
            for st in range(2):
                mfma(a, acc(ft, st), wreg(n), xr(ks, st), None if ks == 0 else acc(ft, st))
                if 1 <= ft <= 4:
                    x = xr(ks, st) + ft - 1
                    a(f"v_dot2c_f32_bf16 v{sq + st * 2 + (ft & 1)}, v{x}, v{x}")

    t = TMP + 4
    for st in range(2):
        s = sq + 2 * st
        a(f"v_add_f32 v{s}, v{s}, v{s + 1}")
    for op in ("v_permlane32_swap_b32", "v_permlane16_swap_b32"):
        for st in range(2):
            s = sq + 2 * st
            a(f"v_mov_b32 v{s + 1}, v{s}")
        for st in range(2):
            s = sq + 2 * st
            a(f"{op} v{s}, v{s + 1}")
        for st in range(2):
            s = sq + 2 * st
            a(f"v_add_f32 v{s}, v{s}, v{s + 1}")
    a(f"v_mov_b32 v{t}, {f32bits(1e-5):#x}")
    for st in range(2):
        s = sq + 2 * st
        a(f"v_mul_f32 v{s}, {f32bits(1 / DM):#x}, v{s}")
        a(f"v_add_f32 v{s + 1}, v{s}, v{t}")
        a(f"v_rsq_f32 v{s + 1}, v{s + 1}")
    for st in range(2):
        s = sq + 2 * st
        a(f"v_mul_f32 v{s}, v{s}, v{s + 1}")
        a(f"v_fma_f32 v{s}, v{s}, v{s + 1}, v{t}")
        a(f"v_rsq_f32 v{s}, v{s}")
    for st in range(2):
        s = sq + 2 * st
        a(f"v_mul_f32 v{s}, v{s}, v{s + 1}")

    k0 = -2.0 * 0.7978845608028654 * 1.4426950408889634
    a(f"s_mov_b32 s{sK0}, {f32bits(k0 * 0.044715):#x}")
    a(f"s_mov_b32 s{sK1}, s{sK0}")
    a(f"s_mov_b32 s{sK2}, 0xffff0000")
    a(f"v_mov_b32 v{TMP + 4}, {f32bits(k0):#x}")
    a(f"v_mov_b32 v{TMP + 5}, {f32bits(k0):#x}")
    for ft in range(7):
        B = X + ft * 16
        Z = B + 4
        O = B + 12
        for h in range(2):
            a(f"v_lshlrev_b32 v{B + 2 * h}, 16, v{BR + 2 * ft + h}")
            a(f"v_and_b32 v{B + 2 * h + 1}, s{sK2}, v{BR + 2 * ft + h}")
        prs = [(acc(ft, st) + h, Z + st * 4 + h, B + h, sq + 2 * st) for st in range(2) for h in (0, 2)]
        for x, z, b, s in prs:
            a(f"v_pk_fma_f32 {V(x, 2)}, {V(x, 2)}, {V(s, 2)}, {V(b, 2)} op_sel_hi:[1,0,1]")
        for x, z, b, s in prs:
            a(f"v_pk_mul_f32 {V(z, 2)}, {V(x, 2)}, {V(x, 2)}")
        for x, z, b, s in prs:
            a(f"v_pk_fma_f32 {V(z, 2)}, {V(z, 2)}, s[{sK0}:{sK1}], {V(TMP + 4, 2)}")
        for x, z, b, s in prs:
            a(f"v_pk_mul_f32 {V(z, 2)}, {V(z, 2)}, {V(x, 2)}")
        for k in range(8):
            a(f"v_exp_f32 v{Z + k}, v{Z + k}")
        for x, z, b, s in prs:
            a(f"v_pk_add_f32 {V(z, 2)}, {V(z, 2)}, 1.0 op_sel_hi:[1,0]")
        for k in range(8):
            a(f"v_rcp_f32 v{Z + k}, v{Z + k}")
        for x, z, b, s in prs:
            a(f"v_pk_mul_f32 {V(z, 2)}, {V(z, 2)}, {V(x, 2)}")
        for k in range(4):
            a(f"v_cvt_pk_bf16_f32 v{O + k}, v{Z + 2 * k}, v{Z + 2 * k + 1}")
        a(f"s_mov_b32 s{sOP}, {ft * 2 * H_STR}")
        a(f"v_permlane16_swap_b32 v{O}, v{O + 2}")
        a(f"v_permlane16_swap_b32 v{O + 1}, v{O + 3}")
        a(f"buffer_store_dwordx4 {V(O, 4)}, v{vo}, s[{SRD3}:{SRD3 + 3}], s{sOP} offen{Cfg.st_flags}")
    return 140 * 1024


def role_g2(a, final):
    vp, vq, vred, vo, acc = 4, 5, 9, 13, 16
    vp2, vq2, vone, vs, RES, TMP = 96, 97, 101, 102, 104, 116
    ring = 256
    depth = 7
    a(f"s_and_b32 s{sA}, s{sT}, 7")
    a(f"s_lshr_b32 s{sB}, s{sA}, 1")
    a(f"s_lshl_b32 s{sB}, s{sB}, 3")
    a(f"s_bfe_u32 s{sC}, s{sT}, 0x30003")
    a(f"s_add_u32 s{sC}, s{sC}, s{sB}")
    a(f"s_lshl_b32 s{sC}, s{sC}, 6")
    a(f"s_and_b32 s{sA}, s{sA}, 1")
    a(f"s_lshl_b32 s{sA}, s{sA}, 2")
    a(f"s_lshr_b32 s{sD}, s{sT}, 6")
    a(f"s_add_u32 s{sD}, s{sD}, s{sA}")
    p_addr(a, vp, sD, 14)
    a(f"v_mul_u32_u24 v{vq}, {H_STR}, v{vG}")
    a(f"v_lshl_add_u32 v{vq}, v{vI}, 4, v{vq}")
    a(f"s_mul_i32 s{sA}, s{sW}, {14 * 4 * H_STR}")
    a(f"s_lshl_b32 s{sB}, s{sC}, 4")
    a(f"s_add_u32 s{sA}, s{sA}, s{sB}")
    for ql in (3, 2, 1, 0):
        a(f"s_xor_b32 s{sB}, s{sW}, {ql}")
        a(f"s_lshl_b32 s{sB}, s{sB}, 8")
        a(f"s_add_u32 s{sB}, s{sB}, s{sA}")
        a(f"v_add_u32 v{vq + ql}, s{sB}, v{vq}")
    a("s_waitcnt lgkmcnt(0)")
    if final:
        srd_ws(a, SRD0, "W2T", W2T_SIZE)
    else:
        srd_ws(a, SRD0, "WA2", WA2_SIZE)
    srd_ws(a, SRD1, "H", H_SIZE)
    st = {"p": None, "q": None}

    def ip(t, p, dst):
        if t < 14:
            if st["p"] != t:
                a(f"s_mov_b32 s{sOP}, {t * 4 * KB_STR}")
            a(f"buffer_load_dwordx4 {R(dst, 4)}, v{vp}, s[{SRD0}:{SRD0 + 3}], s{sOP} offen offset:{p * 256}")
        else:
            if st["p"] != t:
                a(f"s_mov_b32 s{sOP}, {(t - 14) * 4 * KB_STR}")
            a(f"buffer_load_dwordx4 {R(dst, 4)}, v{vp2}, s[{SRD4}:{SRD4 + 3}], s{sOP} offen offset:{p * 256}")
        st["p"] = t

    def iq(t, q, qb):
        if t < 14:
            if st["q"] != t:
                a(f"s_mov_b32 s{sOQ}, {t * 4 * H_STR}")
            a(f"buffer_load_dwordx4 {R(qb + q * 4, 4)}, v{vq + q}, s[{SRD1}:{SRD1 + 3}], s{sOQ} offen")
        else:
            if st["q"] != t:
                a(f"s_mov_b32 s{sOQ}, {(t - 14) * 8 * XP_STR}")
                a(f"s_mov_b32 s{sF}, {((t - 14) * 8 + 1) * XP_STR}")
            a(f"buffer_load_dwordx2 {R(qb + q * 4, 2)}, v{vq2 + q}, s[{SRD5}:{SRD5 + 3}], s{sOQ} offen")
            a(f"buffer_load_dwordx2 {R(qb + q * 4 + 2, 2)}, v{vq2 + q}, s[{SRD5}:{SRD5 + 3}], s{sF} offen")
        st["q"] = t

    def post():
        a(f"s_lshl_b32 s{sE}, s{sW}, 4")
        a(f"s_add_u32 s{sE}, s{sE}, s{sC}")
        if final:
            srd_table(a, SRD4, "ft2")
            srd_ws(a, SRD5, "XP3", XP_SIZE)
            srd(a, SRD2, P_OUT, 0, SEQ * DM * 2)
            srd(a, SRD3, P_B2, 0, DM * 2)
            p_addr(a, vp2, sD, 5)
            a(f"v_lshlrev_b32 v{vq2}, 15, v{vG}")
            a(f"v_lshl_add_u32 v{vq2}, v{vI}, 3, v{vq2}")
            a(f"s_mul_i32 s{sA}, s{sW}, {40 * XP_STR}")
            a(f"s_lshl_b32 s{sB}, s{sC}, 3")
            a(f"s_add_u32 s{sA}, s{sA}, s{sB}")
            for ql in (3, 2, 1, 0):
                a(f"s_xor_b32 s{sB}, s{sW}, {ql}")
                a(f"s_lshl_b32 s{sB}, s{sB}, 7")
                a(f"s_add_u32 s{sB}, s{sB}, s{sA}")
                a(f"v_add_u32 v{vq2 + ql}, s{sB}, v{vq2}")
            a(f"s_mul_i32 s{sA}, s{sD}, 160")
            a(f"v_lshlrev_b32 v{vs}, 3, v{vG}")
            a(f"v_add_u32 v{vs}, s{sA}, v{vs}")
            a(f"v_mul_u32_u24 v{vo}, 1280, v{vI}")
            a(f"v_add_u32 v{vo}, v{vo}, v{vs}")
            a(f"s_mul_i32 s{sA}, s{sE}, 1280")
            a(f"v_add_u32 v{vo}, s{sA}, v{vo}")
        else:
            srd_ws(a, SRD2, "XP2", XP_SIZE)
            srd_ws(a, SRD3, "XP1", XP_SIZE)
            srd_ws(a, SRD4, "SS2", SS_SIZE)
            a(f"s_mul_i32 s{sA}, s{sD}, {20 * XP_STR}")
            a(f"s_lshl_b32 s{sB}, s{sE}, 3")
            a(f"s_add_u32 s{sA}, s{sA}, s{sB}")
            a(f"v_lshlrev_b32 v{vo}, 14, v{vG}")
            a(f"v_lshl_add_u32 v{vo}, v{vI}, 3, v{vo}")
            a(f"v_add_u32 v{vo}, s{sA}, v{vo}")
            a(f"s_lshl_b32 s{sA}, s{sW}, 3")
            a(f"s_lshr_b32 s{sB}, s{sC}, 8")
            a(f"s_add_u32 s{sA}, s{sA}, s{sB}")
            a(f"s_lshl_b32 s{sA}, s{sA}, 8")
            a(f"s_bfe_u32 s{sB}, s{sC}, 0x20006")
            a(f"s_lshl2_add_u32 s{sA}, s{sB}, s{sA}")
            a(f"v_lshlrev_b32 v{vs}, 4, v{vI}")
            a(f"v_add_u32 v{vs}, s{sA}, v{vs}")
            a(f"v_lshl_add_u32 v{vs}, v{vG}, 20, v{vs}")
            a(f"s_cmp_eq_u32 s{sW}, 3")
            a(f"s_cselect_b32 s{sA}, 0x3f80, 0")
            a(f"v_mov_b32 v{vone}, s{sA}")
            a(f"v_cmp_eq_u32 vcc, 0, v{vG}")
            a(f"v_cndmask_b32 v{vone}, 0, v{vone}, vcc")
            a(f"s_cmp_eq_u32 s{sD}, 0")
            a(f"s_cselect_b32 s{sA}, 0, 1.0")
            a(f"v_mov_b32 v{vp2}, s{sA}")
            a(f"v_cndmask_b32 v{vp2}, 1.0, v{vp2}, vcc")

    def prep(t, qb):
        if t == 3:
            for p in range(5):
                if final:
                    a(f"buffer_load_dwordx2 {V(RES + 2 * p, 2)}, v{vs}, s[{SRD3}:{SRD3 + 3}], 0 offen offset:{p * 32}")
                else:
                    a(f"s_mov_b32 s{sF}, {p * 4 * XP_STR}")
                    a(f"buffer_load_dwordx2 {V(RES + 2 * p, 2)}, v{vo}, s[{SRD3}:{SRD3 + 3}], s{sF} offen")
        if t == 12 and not final:
            for q in range(4):
                a(f"v_accvgpr_read_b32 v{TMP + q}, {R(qb + q * 4)}")
            for q in range(4):
                a(f"v_or_b32 v{TMP + q}, v{TMP + q}, v{vone}")
            for q in range(4):
                a(f"v_accvgpr_write_b32 {R(qb + q * 4)}, v{TMP + q}")
        return [qb + q * 4 for q in range(4)]

    res = gemm_ks_hook(a, 19 if final else 14, depth, acc, ring, vred, ip, iq, prep, post)
    a(f"s_mov_b32 s{sK2}, 0xffff0000")
    if not final:
        a(f"v_mov_b32 v{TMP + 8}, 0")
        a(f"v_mov_b32 v{TMP + 9}, 0")
    for p, r in enumerate(res):
        for h in range(2):
            a(f"v_lshlrev_b32 v{TMP + 2 * h}, 16, v{RES + 2 * p + h}")
            a(f"v_and_b32 v{TMP + 2 * h + 1}, s{sK2}, v{RES + 2 * p + h}")
        for h in (0, 2):
            a(f"v_pk_add_f32 {V(r + h, 2)}, {V(r + h, 2)}, {V(TMP + h, 2)}")
        a(f"v_cvt_pk_bf16_f32 v{r}, v{r}, v{r + 1}")
        a(f"v_cvt_pk_bf16_f32 v{r + 1}, v{r + 2}, v{r + 3}")
        if final:
            a(f"buffer_store_dwordx2 {V(r, 2)}, v{vo}, s[{SRD2}:{SRD2 + 3}], 0 offen offset:{p * 32}{Cfg.st_flags}")
        else:
            a(f"s_mov_b32 s{sOP}, {p * 4 * XP_STR}")
            a(f"buffer_store_dwordx2 {V(r, 2)}, v{vo}, s[{SRD2}:{SRD2 + 3}], s{sOP} offen{Cfg.st_flags}")
            if p == 0:
                a(f"v_lshlrev_b32 v{TMP + 4}, 16, v{r}")
                a(f"v_and_b32 v{TMP + 5}, s{sK2}, v{r}")
                a(f"v_mul_f32 v{TMP + 5}, v{TMP + 5}, v{vp2}")
                a(f"v_mul_f32 v{TMP + 8}, v{TMP + 4}, v{TMP + 4}")
                a(f"v_fmac_f32 v{TMP + 8}, v{TMP + 5}, v{TMP + 5}")
            else:
                a(f"v_dot2c_f32_bf16 v{TMP + 8}, v{r}, v{r}")
            a(f"v_dot2c_f32_bf16 v{TMP + 9}, v{r + 1}, v{r + 1}")
    if not final:
        s = TMP + 8
        a(f"v_add_f32 v{s}, v{s}, v{s + 1}")
        for op in ("v_permlane32_swap_b32", "v_permlane16_swap_b32"):
            a(f"v_mov_b32 v{s + 1}, v{s}")
            a(f"{op} v{s}, v{s + 1}")
            a(f"v_add_f32 v{s}, v{s}, v{s + 1}")
        a(f"buffer_atomic_add_f32 v{s}, v{vs}, s[{SRD4}:{SRD4 + 3}], 0 offen")
    return KS_LDS


def gemm_ks_hook(a, nsteps, depth, acc, ring, vred, ip, iq, hook, post):
    return gemm_ks(a, nsteps, depth, acc, ring, vred, True, ip, iq, after_prologue=post, step_hook=hook)


def build_kernel(name, idx, roles):
    a = Asm()
    a.raw(f".globl {name}\n.p2align 8\n.type {name},@function")
    a.label(name)
    a("s_load_dwordx16 s[8:23], s[0:1], 0")
    a("s_load_dwordx4 s[24:27], s[0:1], 64")
    a("s_load_dwordx2 s[28:29], s[0:1], 80")
    if Cfg.stamp:
        a(f"s_memrealtime s[{sST}:{sST + 1}]")
    a(f"v_lshrrev_b32 v{vL}, 6, v0")
    a(f"v_and_b32 v{vI}, 15, v0")
    a(f"v_readfirstlane_b32 s{sW}, v{vL}")
    a(f"v_bfe_u32 v{vG}, v0, 4, 2")
    a(f"v_and_b32 v{vL}, 63, v0")
    lds = 0
    start = 0
    for n, (count, fn) in enumerate(roles):
        if n:
            a.label(f"{name}_r{n}")
        a(f"s_cmp_ge_u32 s2, {start + count}")
        a(f"s_cbranch_scc1 {name}_r{n + 1}")
        a(f"s_sub_u32 s{sT}, s2, {start}")
        lds = max(lds, fn(a))
        if Cfg.stamp:
            a("s_waitcnt vmcnt(0)")
            a(f"s_memrealtime s[{sST + 2}:{sST + 3}]")
            a(f"s_lshl_b32 s{sA}, s2, 2")
            a(f"s_add_u32 s{sA}, s{sA}, s{sW}")
            a(f"s_lshl_b32 s{sA}, s{sA}, 3")
            a(f"s_add_u32 s{sA}, s{sA}, {idx * 65536}")
            srd_ws(a, SRD0, "STAMP", 1 << 20)
            a("s_waitcnt lgkmcnt(0)")
            a(f"v_mov_b32 v4, s{sST}")
            a(f"v_mov_b32 v5, s{sST + 2}")
            a(f"v_mov_b32 v6, s{sA}")
            a(f"buffer_store_dwordx2 v[4:5], v6, s[{SRD0}:{SRD0 + 3}], 0 offen")
        a("s_endpgm")
        start += count
    a.label(f"{name}_r{len(roles)}")
    a("s_endpgm")
    nv = na = 0
    ns = 0
    for it in a.items:
        if isinstance(it, Inst):
            for k, r in it.dst + it.src + it.srcc:
                if k == "v":
                    nv = max(nv, r + 1)
                elif k == "a":
                    na = max(na, r + 1)
                elif r < 102:
                    ns = max(ns, r + 1)
    acco = (nv + 3) // 4 * 4
    desc = f""".p2align 6
.amdhsa_kernel {name}
  .amdhsa_next_free_vgpr {acco + na}
  .amdhsa_next_free_sgpr {ns}
  .amdhsa_accum_offset {acco}
  .amdhsa_group_segment_fixed_size 0
  .amdhsa_kernarg_size 88
  .amdhsa_user_sgpr_count 2
  .amdhsa_user_sgpr_kernarg_segment_ptr 1
  .amdhsa_system_sgpr_workgroup_id_x 1
.end_amdhsa_kernel
"""
    launch = f"; @launch kernel={name} grid=({start},1,1) block=(256,1,1) lds={lds}"
    return launch, a.finalize(), desc


def tables():
    L = []
    c = np.sqrt(2.0 / DM) * np.cos(2 * np.pi * np.arange(DM) / DM)
    c[160] = 0
    c[480] = 0
    bits = model.bf16_bits(c.astype(np.float32))
    for n in range(DM):
        L.append(f".set cq{n}, {bits[n]}")
    bb = int(model.bf16_bits(np.float32([np.sqrt(1 / DM)]))[0])
    L.append(".altmacro")
    L.append(".macro e8 a,b,c,d,e,f,g,h\n.short cq\\a, cq\\b, cq\\c, cq\\d, cq\\e, cq\\f, cq\\g, cq\\h\n.endm")
    L.append(".macro e6 a,b,c,d,e,f\n.short cq\\a, cq\\b, cq\\c, cq\\d, cq\\e, cq\\f\n.endm")
    L.append(".p2align 12\nft1:")
    L.append(".set td, 0\n.rept 80")
    L.append(".short " + ", ".join(str(bb | (0x8000 if j & 1 else 0)) for j in range(8)))
    L.append(".short " + ", ".join(str(bb) for j in range(8)))
    L.append(".set tm, 1\n.rept 319")
    L.append("e8 " + ", ".join(f"%((tm*(td+{j}))%640)" for j in range(8)))
    L.append("e8 " + ", ".join(f"%((tm*(td+{j})+160)%640)" for j in range(8)))
    L.append(".set tm, tm+1\n.endr\n.set td, td+8\n.endr")
    L.append(".p2align 12\nft2:")
    L.append(".set td, 0\n.rept 640")
    L.append(f".short {bb}+((td&1)<<15), {bb}")
    L.append("e6 " + ", ".join(f"%(({1 + j // 2}*td+{160 * (j & 1)})%640)" for j in range(6)))
    L.append(".set td, td+1\n.endr")
    L.append(".set tm, 4\n.rept 79\n.set td, 0\n.rept 640")
    L.append("e8 " + ", ".join(f"%(((tm+{j // 2})*td+{160 * (j & 1)})%640)" for j in range(8)))
    L.append(".set td, td+1\n.endr\n.set tm, tm+4\n.endr")
    L.append(".noaltmacro")
    return "\n".join(L) + "\n"


def generate(plan=None):
    if plan is None:
        plan = default_plan()
    launches, code, descs = [], [], []
    for idx, (name, roles) in enumerate(plan):
        l, c, d = build_kernel(name, idx, roles)
        launches.append(l)
        code.append(c)
        descs.append(d)
    out = "\n".join(launches) + "\n"
    out += '.amdgcn_target "amdgcn-amd-amdhsa--gfx950"\n.text\n'
    out += "".join(code)
    out += '.section .rodata,"a"\n'
    out += "".join(descs)
    out += tables()
    return out


def default_plan():
    return [
        ("p0_kernel", [(256, lambda a: role_xhat0(a, 4)), (80, role_wc), (64, role_stats),
                       (224, lambda a: role_w2f(a, 4))]),
        ("c1_kernel", [(320, lambda a: role_col(a, "XP0", "SS0", "XP1")), (216, lambda a: role_w1f(a, 4))]),
        ("g1a_kernel", [(256, lambda a: role_g1(a, "XP1"))]),
        ("g2a_kernel", [(256, lambda a: role_g2(a, False))]),
        ("c2_kernel", [(320, lambda a: role_col(a, "XP2", "SS2", "XP3")), (135, role_w2t)]),
        ("g1b_kernel", [(256, lambda a: role_g1(a, "XP3"))]),
        ("g2b_kernel", [(256, lambda a: role_g2(a, True))]),
    ]


if __name__ == "__main__":
    out = sys.argv[1]
    for opt in sys.argv[2:]:
        if opt == "stamp":
            Cfg.stamp = True
    open(out, "w").write(generate())
```

```python
import re

REG_RE = re.compile(r"(?<![\w.])(-?\|?)([vas])(?:(\d+)|\[(\d+):(\d+)\])(?![\w])")

TRANS = ("v_exp_f32", "v_log_f32", "v_rcp_f32", "v_rsq_f32", "v_sqrt_f32", "v_sin_f32", "v_cos_f32")


def regs_of(tok):
    tok = tok.strip()
    out = []
    if tok in ("vcc",):
        return [("s", 106), ("s", 107)]
    if tok == "vcc_lo":
        return [("s", 106)]
    if tok == "vcc_hi":
        return [("s", 107)]
    if tok == "m0":
        return [("s", 124)]
    if tok == "exec":
        return [("s", 126), ("s", 127)]
    for m in REG_RE.finditer(tok):
        k = m.group(2)
        if m.group(3) is not None:
            out.append((k, int(m.group(3))))
        else:
            out.extend((k, r) for r in range(int(m.group(4)), int(m.group(5)) + 1))
    return out


def R(base, n=1):
    k = "v" if base < 256 else "a"
    b = base if base < 256 else base - 256
    if n == 1:
        return f"{k}{b}"
    assert (base < 256) == (base + n - 1 < 256)
    return f"{k}[{b}:{b + n - 1}]"


def V(b, n=1):
    return f"v{b}" if n == 1 else f"v[{b}:{b + n - 1}]"


def A(b, n=1):
    return f"a{b}" if n == 1 else f"a[{b}:{b + n - 1}]"


def S(b, n=1):
    return f"s{b}" if n == 1 else f"s[{b}:{b + n - 1}]"


class Inst:
    __slots__ = ("text", "op", "dst", "src", "kind", "srcc", "tag", "passes", "wide_store", "dpp")

    def __init__(self, text, tag=None):
        self.text = text
        self.tag = tag
        body = text.split(";")[0].strip()
        parts = body.split(None, 1)
        op = parts[0]
        for suf in ("_e32", "_e64", "_dpp"):
            if op.endswith(suf):
                op = op[: -len(suf)]
        self.op = op
        rest = parts[1] if len(parts) > 1 else ""
        ops, depth, cur = [], 0, ""
        for ch in rest:
            if ch == "[":
                depth += 1
            elif ch == "]":
                depth -= 1
            if ch == "," and depth == 0:
                ops.append(cur.strip())
                cur = ""
            else:
                cur += ch
        ops.append(cur.strip())
        last_mods = ""
        if ops:
            sp = ops[-1].split(None, 1)
            if sp:
                ops[-1] = sp[0]
                last_mods = sp[1] if len(sp) > 1 else ""
        self.dst, self.src, self.srcc = [], [], []
        self.passes = 0
        self.wide_store = False
        self.dpp = ("row_" in last_mods) or ("quad_perm" in last_mods) or ("wave_" in last_mods)
        allr = [regs_of(o) for o in ops]
        flat = lambda xs: [r for x in xs for r in x]
        if op.startswith("v_mfma"):
            self.kind = "mfma"
            self.dst = allr[0]
            self.src = flat(allr[1:3])
            self.srcc = allr[3]
            self.passes = 8 if "32x32" in op else 4
        elif op.startswith("buffer_load") or op.startswith("global_load"):
            self.kind = "vmem"
            if " lds" in (" " + last_mods) or "_lds_" in op:
                self.src = flat(allr) + [("s", 124)]
                self.kind = "vmem_lds"
            else:
                self.dst = allr[0]
                self.src = flat(allr[1:])
                if "d16" in op:
                    self.src += allr[0]
        elif op.startswith("buffer_store") or op.startswith("global_store") or "atomic" in op and not op.startswith("s_"):
            self.kind = "vmem"
            self.src = flat(allr)
            if "atomic" in op and "sc0" in last_mods:
                self.dst = allr[0]
            self.wide_store = op.endswith("x4") or op.endswith("x3")
            if self.wide_store:
                self.wide_store = allr[0] if op.startswith("buffer") else allr[1]
        elif op in ("buffer_wbl2", "buffer_inv"):
            self.kind = "vmem"
        elif op.startswith("ds_read") or op.startswith("ds_bpermute") or op.startswith("ds_permute") or op.startswith("ds_swizzle"):
            self.kind = "ds"
            self.dst = allr[0]
            self.src = flat(allr[1:])
        elif op.startswith("ds_"):
            self.kind = "ds"
            self.src = flat(allr)
            if "addtid" in op:
                self.src.append(("s", 124))
        elif op.startswith("s_load") or op.startswith("s_buffer_load") or op in ("s_memtime", "s_memrealtime"):
            self.kind = "smem"
            self.dst = allr[0]
            self.src = flat(allr[1:])
        elif op in ("s_waitcnt", "s_nop", "s_barrier", "s_endpgm", "s_setprio", "s_sleep"):
            self.kind = "ctl"
        elif op.startswith("s_cbranch") or op in ("s_branch", "s_setpc_b64", "s_swappc_b64"):
            self.kind = "branch"
            self.src = flat(allr)
        elif op.startswith("s_cmp") or op.startswith("s_bitcmp"):
            self.kind = "salu"
            self.src = flat(allr)
        elif op.startswith("s_"):
            self.kind = "salu"
            self.dst = allr[0]
            self.src = flat(allr[1:])
            if "saveexec" in op:
                self.dst = self.dst + [("s", 126), ("s", 127)]
            if op in ("s_addk_i32", "s_mulk_i32"):
                self.src += allr[0]
        elif op.startswith("v_"):
            self.kind = "valu"
            self.dst = allr[0]
            self.src = flat(allr[1:])
            if (op.startswith("v_permlane") and "swap" in op) or op == "v_swap_b32":
                self.dst = allr[0] + allr[1]
                self.src = allr[0] + allr[1]
            elif op.startswith("v_fmac") or op.startswith("v_pk_fmac") or op.startswith("v_dot2c") or op == "v_writelane_b32":
                self.src += allr[0]
            elif op in ("v_add_co_u32", "v_addc_co_u32", "v_sub_co_u32", "v_subb_co_u32"):
                self.dst = allr[0] + allr[1]
                self.src = flat(allr[2:])
            elif op.startswith("v_cmpx"):
                self.dst = allr[0] + [("s", 126), ("s", 127)]
            if op == "v_cndmask_b32" and len(ops) == 3:
                self.src += [("s", 106), ("s", 107)]
            if self.dpp or "sdwa" in op or "op_sel" in last_mods and not op.startswith("v_pk"):
                self.src += allr[0]
        else:
            raise ValueError("unknown instruction: " + text)


class Asm:
    def __init__(self):
        self.items = []
        self.tail = []

    def __call__(self, text, tag=None):
        for line in text.strip().split("\n"):
            line = line.strip()
            if not line or line.startswith(";"):
                continue
            if line.endswith(":") or line.startswith("."):
                self.items.append(line)
            else:
                self.items.append(Inst(line, tag))

    def raw(self, text):
        self.items.append(text)

    def label(self, name, keep=False):
        self.items.append(("keep_label", name) if keep else name + ":")

    def wait_tag(self, tag, lgkm=False):
        self.items.append(("wait_tag", tag))

    def finalize(self):
        out = []
        vm = []
        lg = []
        hist = []
        pos = [0]

        def emit_text(t, states=1):
            out.append("    " + t)
            pos[0] += states

        def do_wait(vn=None, ln=None):
            parts = []
            if vn is not None:
                vn = min(vn, 63)
                if vn < len(vm):
                    del vm[: len(vm) - vn]
                    parts.append(f"vmcnt({vn})")
            if ln is not None:
                ln = min(ln, 15)
                if ln < len(lg):
                    del lg[: len(lg) - ln]
                    parts.append(f"lgkmcnt({ln})")
            if parts:
                emit_text("s_waitcnt " + " ".join(parts))

        def need_states(ins):
            need = 0
            sset = set(ins.src)
            dset = set(ins.dst)
            cset = set(ins.srcc)
            rd = sset | cset
            for p, h in hist:
                dist = pos[0] - p - 1
                req = 0
                hd = set(h.dst)
                if h.kind == "valu":
                    hv = {r for r in hd if r[0] in "va"}
                    hs = {r for r in hd if r[0] == "s"}
                    if ins.kind == "mfma" and hv & rd:
                        req = max(req, 2)
                    if h.op.startswith("v_dot") and hv & (rd | dset):
                        chain = ins.op == h.op and ins.dst == h.dst and not (hv & (sset - dset))
                        if not chain:
                            req = max(req, 3)
                    if ins.kind == "mfma" and ("s", 126) in hs:
                        req = max(req, 4)
                    if ins.kind == "valu":
                        if h.op in TRANS and hv & rd and ins.op not in TRANS:
                            req = max(req, 1)
                        if h.op in TRANS and hv & rd:
                            req = max(req, 1)
                        if (ins.op.startswith("v_permlane") or ins.dpp) and hv & rd:
                            req = max(req, 2)
                        if ins.op in ("v_readfirstlane_b32", "v_readlane_b32") and hv & rd:
                            req = max(req, 1)
                        if hs & rd:
                            req = max(req, 4 if ins.op in ("v_readlane_b32", "v_writelane_b32") else 2)
                        if ("s", 126) in hs and (ins.dpp or ins.op.startswith("v_permlane") or ins.op.startswith("v_read")):
                            req = max(req, 5)
                        if ("op_sel" in h.text or "sdwa" in h.text) and not h.op.startswith("v_pk") and hv & (rd | dset):
                            req = max(req, 1)
                    if ins.kind in ("vmem", "vmem_lds") and hs & rd:
                        req = max(req, 5)
                    if ins.kind in ("salu", "branch", "smem") and hs & rd:
                        req = max(req, 1)
                elif h.kind == "mfma":
                    big = {4: 8, 8: 12}[h.passes]
                    if ins.kind == "mfma":
                        if hd & sset:
                            req = max(req, big)
                        if hd & cset and not (h.dst == ins.srcc and h.passes == ins.passes):
                            req = max(req, {4: 6, 8: 10}[h.passes])
                        if hd & dset and not (h.dst == ins.srcc and h.passes == ins.passes):
                            req = max(req, {4: 6, 8: 10}[h.passes])
                    elif ins.kind in ("valu", "vmem", "vmem_lds", "ds"):
                        if hd & (rd | dset):
                            req = max(req, big)
                        if ins.kind == "valu" and set(h.srcc) & dset:
                            req = max(req, {4: 3, 8: 7}[h.passes])
                elif h.kind == "salu":
                    if ("s", 124) in hd and (ins.kind == "vmem_lds" or "addtid" in ins.op):
                        req = max(req, 1)
                elif h.kind == "vmem" and h.wide_store:
                    if set(h.wide_store) & dset:
                        req = max(req, 2)
                need = max(need, req - dist)
            return need

        for it in self.items:
            if isinstance(it, tuple) and it[0] == "keep_label":
                out.append(it[1] + ":")
                continue
            if isinstance(it, tuple):
                _, tag = it
                idx = [k for k, e in enumerate(vm) if e[1] == tag]
                if idx:
                    do_wait(vn=len(vm) - 1 - idx[-1])
                continue
            if isinstance(it, str):
                if it.endswith(":"):
                    hist.clear()
                    vm.clear()
                    lg.clear()
                out.append(it)
                continue
            ins = it
            if ins.op == "s_waitcnt":
                m = re.search(r"vmcnt\((\d+)\)", ins.text)
                if m and int(m.group(1)) < len(vm):
                    del vm[: len(vm) - int(m.group(1))]
                m = re.search(r"lgkmcnt\((\d+)\)", ins.text)
                if m and int(m.group(1)) < len(lg):
                    del lg[: len(lg) - int(m.group(1))]
                emit_text(ins.text)
                continue
            touched = set(ins.src) | set(ins.dst) | set(ins.srcc)
            vn = None
            d16_chain = ins.kind == "vmem" and "d16" in ins.op
            for k, e in enumerate(vm):
                t = touched - set(ins.dst) if d16_chain else touched
                if e[0] & t:
                    vn = len(vm) - 1 - k
            ln = None
            for k, e in enumerate(lg):
                if e[0] & touched:
                    ln = 0 if any(x[1] for x in lg) else len(lg) - 1 - k
            do_wait(vn, ln)
            if ins.kind in ("vmem", "vmem_lds") and len(vm) >= 63:
                do_wait(vn=62)
            if ins.kind == "branch":
                pad = 0
                for p, h in hist:
                    dist = pos[0] - p - 1
                    if h.kind == "mfma":
                        pad = max(pad, {4: 8, 8: 12}[h.passes] - dist - 1)
                    elif h.kind == "valu":
                        pad = max(pad, 5 - dist - 1)
                n = max(pad, need_states(ins))
            else:
                n = need_states(ins)
            while n > 0:
                k = min(n, 16)
                emit_text(f"s_nop {k - 1}", k)
                n -= k
            p = pos[0]
            if ins.op == "s_nop":
                emit_text(ins.text, int(ins.text.split()[1]) + 1)
            else:
                emit_text(ins.text)
            hist.append((p, ins))
            while hist and pos[0] - hist[0][0] > 24:
                hist.pop(0)
            if ins.kind in ("vmem", "vmem_lds"):
                vm.append((set(ins.dst), ins.tag))
            elif ins.kind == "ds":
                lg.append((set(ins.dst), False))
            elif ins.kind == "smem":
                lg.append((set(ins.dst), True))
                lg.append((set(), True))
            if ins.op == "s_endpgm":
                hist.clear()
                vm.clear()
                lg.clear()
        return "\n".join(out) + "\n"
```

```python
import sys
import struct
import numpy as np

sys.path.insert(0, "gen")
from asmlib import Asm, Inst, R, V, A, S
import model

SEQ, DM, FF = 2048, 640, 1728

XP_STR = SEQ * 8
XP_SIZE = 160 * XP_STR
H_STR = SEQ * 16
H_SIZE = 216 * H_STR
W1F_STR = FF * 16
W1F_SIZE = 80 * W1F_STR
KB_STR = DM * 16
WA2_SIZE = 224 * KB_STR
W2T_SIZE = 216 * KB_STR
FT_SIZE = 80 * KB_STR
WC_SIZE = 320 * 8192
SS_SIZE = 8192
FLAG_SIZE = 8192

WS = {}
_off = 0
for _name, _size in (("XP0", XP_SIZE), ("XP1", XP_SIZE), ("XP2", XP_SIZE), ("XP3", XP_SIZE), ("H", H_SIZE),
                     ("W1F", W1F_SIZE), ("WA2", WA2_SIZE), ("W2T", W2T_SIZE), ("WC", WC_SIZE),
                     ("SS0", SS_SIZE), ("SS2", SS_SIZE), ("FLAG", FLAG_SIZE), ("X3", XP_SIZE), ("STAMP", 1 << 21)):
    WS[_name] = _off
    _off += (_size + 4095) // 4096 * 4096
WS_END = _off

P_X, P_WR, P_WI, P_W1, P_B1, P_W2, P_B2, P_OUT, P_WS = 8, 10, 12, 16, 18, 20, 22, 24, 28
SRD0, SRD1, SRD2, SRD3, SRD4, SRD5 = 32, 36, 40, 44, 48, 52
sW, sT, sA, sB, sC, sD, sE, sF = 56, 57, 58, 59, 60, 61, 62, 63
sOP, sOQ = 64, 65
sK0, sK1, sK2, sK3 = 66, 67, 68, 69
sM0, sM1 = 70, 71
sST = 72
vI, vG, vL = 1, 2, 3


def f32bits(x):
    return struct.unpack("<I", struct.pack("<f", x))[0]


def srd(a, dst, base, off, size):
    if off:
        a(f"s_add_u32 s{dst}, s{base}, {off}")
        a(f"s_addc_u32 s{dst + 1}, s{base + 1}, 0")
        a(f"s_and_b32 s{dst + 1}, s{dst + 1}, 0xffff")
    else:
        a(f"s_mov_b32 s{dst}, s{base}")
        a(f"s_and_b32 s{dst + 1}, s{base + 1}, 0xffff")
    a(f"s_mov_b32 s{dst + 2}, {size}")
    a(f"s_mov_b32 s{dst + 3}, 0x20000")


def srd_ws(a, dst, name, size):
    srd(a, dst, P_WS, WS[name], size)


def srd_table(a, dst, sym):
    a(f"s_getpc_b64 s[{dst}:{dst + 1}]")
    a(f"s_add_u32 s{dst}, s{dst}, {sym}@rel32@lo+4")
    a(f"s_addc_u32 s{dst + 1}, s{dst + 1}, {sym}@rel32@hi+12")
    a(f"s_and_b32 s{dst + 1}, s{dst + 1}, 0xffff")
    a(f"s_mov_b32 s{dst + 2}, {FT_SIZE}")
    a(f"s_mov_b32 s{dst + 3}, 0x20000")


class Cfg:
    stamp = False
    clk = False
    nodot = 0
    g2depth = 7
    g2lay = 0
    plan = 0
    pdepth = 4
    st_flags = ""
    dcbias = 0


def mark(a, n):
    if Cfg.stamp:
        op = "s_memtime" if Cfg.clk and n < 11 else "s_memrealtime"
        a(f"{op} s[{sST + 2 * n}:{sST + 2 * n + 1}]")


def mfma(a, d, x, y, c):
    a(f"v_mfma_f32_16x16x32_bf16 {R(d, 4)}, {R(x, 4)}, {R(y, 4)}, {'0' if c is None else R(c, 4)}")


def gemm_ks(a, nsteps, depth, acc, ring, vred, p_is_a, issue_p, issue_q, q_regs=16, prep_q=None,
            after_prologue=None, step_hook=None):
    stage = 20 + q_regs

    def accr(p, q):
        return acc + (q * 5 + p) * 4

    def preg(t, p):
        return ring + (t % depth) * stage + p * 4

    def qbase(t):
        return ring + (t % depth) * stage + 20

    def load_step(t):
        ops = []
        for q in range(4):
            ops.append(("q", q))
        for p in range(5):
            ops.append(("p", p))
        order = [ops[0], ops[4], ops[5], ops[1], ops[6], ops[7], ops[8], ops[2], ops[3]]
        for kind, j in order:
            if kind == "p":
                issue_p(t, j, preg(t, j))
            else:
                issue_q(t, j, qbase(t))

    for t in range(min(depth, nsteps)):
        load_step(t)
    if after_prologue:
        after_prologue()

    vw = [vred, vred + 1, vred + 2]
    vr = vred + 3
    a(f"v_lshlrev_b32 v{vr}, 4, v{vL}")
    for ql in (1, 2, 3):
        a(f"s_xor_b32 s{sA}, s{sW}, {ql}")
        a(f"s_mul_i32 s{sA}, s{sA}, 15360")
        a(f"s_add_u32 s{sA}, s{sA}, {(ql - 1) * 5120}")
        a(f"v_add_u32 v{vw[ql - 1]}, s{sA}, v{vr}")
    a(f"s_mul_i32 s{sA}, s{sW}, 15360")
    a(f"v_add_u32 v{vr}, s{sA}, v{vr}")

    def wr(q, p):
        a(f"ds_write_b128 v{vw[q - 1]}, {R(accr(p, q), 4)} offset:{p * 1024}")

    mark(a, 1)
    for t in range(nsteps):
        last = t == nsteps - 1
        if t == 1:
            mark(a, 2)
        if t == depth:
            mark(a, 3)
        if step_hook:
            step_hook(t, qbase(t))
        if prep_q:
            qf = prep_q(t, qbase(t))
        else:
            qf = [qbase(t) + q * 4 for q in range(4)]
        qorder = (1, 2, 3, 0) if last else (0, 1, 2, 3)
        nxt = t + depth
        for n, q in enumerate(qorder):
            for p in range(5):
                c = None if t == 0 else accr(p, q)
                if p_is_a:
                    mfma(a, accr(p, q), preg(t, p), qf[q], c)
                else:
                    mfma(a, accr(p, q), qf[q], preg(t, p), c)
                if last and n >= 2:
                    wr(qorder[n - 2], p)
                if nxt < nsteps:
                    if n == 3:
                        issue_p(nxt, p, preg(nxt, p))
                    if p == 4 and (not prep_q):
                        issue_q(nxt, q, qbase(nxt))
                    if prep_q and n == 0 and p < 4:
                        issue_q(nxt, p, qbase(nxt))
        if last:
            for p in range(5):
                wr(3, p)
    mark(a, 4)
    a("s_waitcnt lgkmcnt(0)")
    a("s_barrier")
    mark(a, 5)
    for p in range(5):
        for src in range(3):
            a(f"ds_read_b128 {R(accr(p, src + 1), 4)}, v{vr} offset:{src * 5120 + p * 1024}")
    for p in range(5):
        for h in (0, 2):
            d = accr(p, 0) + h
            a(f"v_pk_add_f32 {V(accr(p, 1) + h, 2)}, {V(accr(p, 1) + h, 2)}, {V(accr(p, 2) + h, 2)}")
            a(f"v_pk_add_f32 {V(d, 2)}, {V(d, 2)}, {V(accr(p, 3) + h, 2)}")
        for h in (0, 2):
            d = accr(p, 0) + h
            a(f"v_pk_add_f32 {V(d, 2)}, {V(d, 2)}, {V(accr(p, 1) + h, 2)}")
    return [accr(p, 0) for p in range(5)]


KS_LDS = 61440


def p_loader(a, vp, srd_p, step_bytes):
    state = {"t": None}

    def issue(t, p, dst):
        if state["t"] != t:
            a(f"s_mov_b32 s{sOP}, {t * step_bytes}")
            state["t"] = t
        a(f"buffer_load_dwordx4 {R(dst, 4)}, v{vp}, s[{srd_p}:{srd_p + 3}], s{sOP} offen offset:{p * 256}")
    return issue


def p_addr(a, vp, s_c, wave_steps):
    a(f"v_mul_u32_u24 v{vp}, {DM}, v{vG}")
    a(f"v_add_lshl_u32 v{vp}, v{vp}, v{vI}, 4")
    a(f"s_mul_i32 s{sA}, s{s_c}, 1280")
    a(f"s_mul_i32 s{sB}, s{sW}, {wave_steps * 4 * KB_STR}")
    a(f"s_add_u32 s{sA}, s{sA}, s{sB}")
    a(f"v_add_u32 v{vp}, s{sA}, v{vp}")


def rowmajor_q(a, vq, s_row0, srd_q):
    a(f"v_mul_u32_u24 v{vq}, 1280, v{vI}")
    a(f"v_lshl_add_u32 v{vq}, v{vG}, 4, v{vq}")
    a(f"s_mul_i32 s{sA}, s{s_row0}, 1280")
    a(f"s_mul_i32 s{sB}, s{sW}, 320")
    a(f"s_add_u32 s{sA}, s{sA}, s{sB}")
    for ql in (3, 2, 1, 0):
        a(f"s_xor_b32 s{sB}, s{sW}, {ql}")
        a(f"s_mul_i32 s{sB}, s{sB}, {16 * 1280}")
        a(f"s_add_u32 s{sB}, s{sB}, s{sA}")
        a(f"v_add_u32 v{vq + ql}, s{sB}, v{vq}")

    def issue(t, q, qb):
        a(f"buffer_load_dwordx4 {R(qb + q * 4, 4)}, v{vq + q}, s[{srd_q}:{srd_q + 3}], 0 offen offset:{t * 64}")
    return issue


def role_xhat0(a, depth):
    vp, vq, vred, vo, acc = 4, 5, 9, 13, 16
    ring = 256
    a(f"s_and_b32 s{sC}, s{sT}, 7")
    a(f"s_lshl_b32 s{sC}, s{sC}, 2")
    a(f"s_bfe_u32 s{sD}, s{sT}, 0x20003")
    a(f"s_add_u32 s{sC}, s{sC}, s{sD}")
    a(f"s_lshl_b32 s{sC}, s{sC}, 6")
    a(f"s_lshr_b32 s{sD}, s{sT}, 5")
    srd_table(a, SRD0, "ft1")
    p_addr(a, vp, sD, 5)
    iq = rowmajor_q(a, vq, sC, SRD1)
    a("s_waitcnt lgkmcnt(0)")
    srd(a, SRD1, P_X, 0, SEQ * DM * 2)
    ip = p_loader(a, vp, SRD0, 4 * KB_STR)

    def post():
        srd_ws(a, SRD2, "XP0", XP_SIZE)
        a(f"s_mul_i32 s{sA}, s{sD}, {20 * XP_STR}")
        a(f"s_lshl_b32 s{sB}, s{sW}, 4")
        a(f"s_add_u32 s{sB}, s{sB}, s{sC}")
        a(f"s_lshl_b32 s{sB}, s{sB}, 3")
        a(f"s_add_u32 s{sA}, s{sA}, s{sB}")
        a(f"v_lshlrev_b32 v{vo}, 14, v{vG}")
        a(f"v_lshl_add_u32 v{vo}, v{vI}, 3, v{vo}")
        a(f"v_add_u32 v{vo}, s{sA}, v{vo}")

    res = gemm_ks(a, 5, depth, acc, ring, vred, True, ip, iq, after_prologue=post)
    for p, r in enumerate(res):
        a(f"v_cvt_pk_bf16_f32 v{r}, v{r}, v{r + 1}")
        a(f"v_cvt_pk_bf16_f32 v{r + 1}, v{r + 2}, v{r + 3}")
        a(f"s_mov_b32 s{sOP}, {p * 4 * XP_STR}")
        a(f"buffer_store_dwordx2 {V(r, 2)}, v{vo}, s[{SRD2}:{SRD2 + 3}], s{sOP} offen{Cfg.st_flags}")
    return KS_LDS


def role_w2f(a, depth, ring=256):
    vp, vq, vred, vo, acc = 4, 5, 9, 13, 16
    a(f"s_and_b32 s{sD}, s{sT}, 7")
    a(f"s_lshr_b32 s{sE}, s{sT}, 3")
    a(f"s_lshl_b32 s{sC}, s{sE}, 6")
    a(f"s_cmp_eq_u32 s{sE}, 27")
    a(f"s_cselect_b32 s{sC}, 0, s{sC}")
    srd_table(a, SRD0, "ft1")
    p_addr(a, vp, sD, 5)
    iq = rowmajor_q(a, vq, sC, SRD1)
    a("s_waitcnt lgkmcnt(0)")
    a(f"s_cmp_eq_u32 s{sE}, 27")
    a(f"s_cselect_b32 s{SRD1}, s{P_B2}, s{P_W2}")
    a(f"s_cselect_b32 s{SRD1 + 1}, s{P_B2 + 1}, s{P_W2 + 1}")
    a(f"s_mov_b32 s{SRD1 + 2}, {FF * DM * 2}")
    a(f"s_cselect_b32 s{SRD1 + 2}, {DM * 2}, s{SRD1 + 2}")
    a(f"s_and_b32 s{SRD1 + 1}, s{SRD1 + 1}, 0xffff")
    a(f"s_mov_b32 s{SRD1 + 3}, 0x20000")
    ip = p_loader(a, vp, SRD0, 4 * KB_STR)

    def post():
        srd_ws(a, SRD2, "WA2", WA2_SIZE)
        a(f"s_lshl_b32 s{sA}, s{sE}, 2")
        a(f"s_add_u32 s{sA}, s{sA}, s{sW}")
        a(f"s_mul_i32 s{sA}, s{sA}, {2 * KB_STR}")
        a(f"s_mul_i32 s{sB}, s{sD}, 1280")
        a(f"s_add_u32 s{sA}, s{sA}, s{sB}")
        a(f"v_lshrrev_b32 v{vo}, 1, v{vG}")
        a(f"v_mul_u32_u24 v{vo}, {KB_STR}, v{vo}")
        a(f"v_lshl_add_u32 v{vo}, v{vI}, 4, v{vo}")
        a(f"v_and_b32 v{vo + 1}, 1, v{vG}")
        a(f"v_lshl_add_u32 v{vo}, v{vo + 1}, 3, v{vo}")
        a(f"v_add_u32 v{vo}, s{sA}, v{vo}")

    res = gemm_ks(a, 5, depth, acc, ring, vred, False, ip, iq, after_prologue=post)
    for p, r in enumerate(res):
        a(f"v_cvt_pk_bf16_f32 v{r}, v{r}, v{r + 1}")
        a(f"v_cvt_pk_bf16_f32 v{r + 1}, v{r + 2}, v{r + 3}")
        a(f"buffer_store_dwordx2 {V(r, 2)}, v{vo}, s[{SRD2}:{SRD2 + 3}], 0 offen offset:{p * 256}{Cfg.st_flags}")
    return KS_LDS


def role_w1f(a, depth):
    vp, vq, vred, vo, acc, qt = 4, 5, 9, 13, 16, 96
    ring = 112
    a(f"s_and_b32 s{sD}, s{sT}, 7")
    a(f"s_lshr_b32 s{sE}, s{sT}, 3")
    srd_table(a, SRD0, "ft1")
    p_addr(a, vp, sD, 5)
    a(f"v_mul_u32_u24 v{vq}, {8 * FF * 2}, v{vG}")
    a(f"v_lshl_add_u32 v{vq}, v{vI}, 3, v{vq}")
    a(f"s_mul_i32 s{sA}, s{sW}, {160 * FF * 2}")
    a(f"s_lshl_b32 s{sB}, s{sE}, 7")
    a(f"s_add_u32 s{sA}, s{sA}, s{sB}")
    a(f"v_add_u32 v{vq}, s{sA}, v{vq}")
    a(f"s_mov_b32 s{sA}, 0x05040100")
    a(f"s_bitcmp1_b32 s{sW}, 0")
    a(f"s_cselect_b32 s{sK0}, 0x07060302, s{sA}")
    a(f"s_cselect_b32 s{sK1}, s{sA}, 0x07060302")
    a(f"s_bitcmp1_b32 s{sW}, 1")
    a(f"s_cselect_b64 s[{sM0}:{sM1}], -1, 0")
    a("s_waitcnt lgkmcnt(0)")
    srd(a, SRD1, P_W1, 0, DM * FF * 2)
    ip = p_loader(a, vp, SRD0, 4 * KB_STR)

    def iq(t, q, qb):
        for j in (2 * q, 2 * q + 1):
            off = (t * 32 + j) * FF * 2
            if j & 1:
                a(f"buffer_load_dwordx2 {R(qb + j * 2, 2)}, v{vq}, s[{SRD1}:{SRD1 + 3}], s{sOQ} offen offset:{FF * 2}")
            else:
                a(f"s_mov_b32 s{sOQ}, {off}")
                a(f"buffer_load_dwordx2 {R(qb + j * 2, 2)}, v{vq}, s[{SRD1}:{SRD1 + 3}], s{sOQ} offen")

    def prep(t, qb):
        a(f"s_mov_b64 exec, s[{sM0}:{sM1}]")
        for j in range(8):
            a(f"v_swap_b32 v{qb + 2 * j}, v{qb + 2 * j + 1}")
        a("s_mov_b64 exec, -1")
        for ql in range(4):
            for m in range(4):
                sel = sK1 if ql & 1 else sK0
                a(f"v_perm_b32 v{qt + ql * 4 + m}, v{qb + (2 * m + 1) * 2 + (ql >> 1)}, v{qb + (2 * m) * 2 + (ql >> 1)}, s{sel}")
        return [qt + ql * 4 for ql in range(4)]

    def post():
        srd_ws(a, SRD2, "W1F", W1F_SIZE)
        a(f"s_mul_i32 s{sA}, s{sD}, {10 * W1F_STR}")
        a(f"s_lshl_b32 s{sB}, s{sE}, 6")
        a(f"s_add_u32 s{sB}, s{sB}, s{sW}")
        a(f"s_lshl_b32 s{sB}, s{sB}, 4")
        a(f"s_add_u32 s{sA}, s{sA}, s{sB}")
        a(f"v_lshrrev_b32 v{vo}, 1, v{vG}")
        a(f"v_mul_u32_u24 v{vo}, {W1F_STR}, v{vo}")
        a(f"v_lshl_add_u32 v{vo}, v{vI}, 6, v{vo}")
        a(f"v_and_b32 v{vo + 1}, 1, v{vG}")
        a(f"v_lshl_add_u32 v{vo}, v{vo + 1}, 3, v{vo}")
        a(f"v_add_u32 v{vo}, s{sA}, v{vo}")
        if Cfg.dcbias:
            srd(a, SRD3, P_B1, 0, FF * 2)
            a(f"s_lshr_b32 s{sB}, s{sB}, 3")
            a(f"v_lshl_add_u32 v6, v{vI}, 3, s{sB}")
            a(f"buffer_load_ushort v7, v6, s[{SRD3}:{SRD3 + 3}], 0 offen")
            a(f"s_cmp_eq_u32 s{sD}, 0")
            a(f"s_cselect_b32 s{sK2}, 0xffff, 0")
            a(f"s_mov_b32 s{sK3}, 0")

    res = gemm_ks(a, 5, depth, acc, ring, vred, True, ip, iq, prep_q=prep, after_prologue=post)
    if Cfg.dcbias:
        a(f"v_lshlrev_b32 v7, 16, v7")
        a(f"v_cndmask_b32_e64 v{res[0] + 1}, v{res[0] + 1}, v7, s[{sK2}:{sK3}]")
    for p, r in enumerate(res):
        a(f"v_cvt_pk_bf16_f32 v{r}, v{r}, v{r + 1}")
        a(f"v_cvt_pk_bf16_f32 v{r + 1}, v{r + 2}, v{r + 3}")
        a(f"s_mov_b32 s{sOP}, {p * 2 * W1F_STR}")
        a(f"buffer_store_dwordx2 {V(r, 2)}, v{vo}, s[{SRD2}:{SRD2 + 3}], s{sOP} offen{Cfg.st_flags}")
    return KS_LDS


def role_wc(a):
    va, vo, vo3, vt, ld, st = 4, 5, 6, 7, 8, 40
    a(f"s_mul_hi_u32 s{sC}, s{sT}, {(1 << 32) // 5 + 1}")
    a(f"s_mul_i32 s{sD}, s{sC}, 5")
    a(f"s_sub_u32 s{sD}, s{sT}, s{sD}")
    a(f"s_lshl_b32 s{sD}, s{sD}, 2")
    a(f"s_add_u32 s{sD}, s{sD}, s{sW}")
    a(f"s_lshl_b32 s{sD}, s{sD}, 2")
    a(f"v_add_u32 v{vt}, s{sD}, v{vG}")
    a(f"v_mul_u32_u24 v{va}, 642, v{vI}")
    a(f"v_lshl_add_u32 v{va}, v{vt}, 3, v{va}")
    a(f"s_mul_i32 s{sA}, s{sC}, {128 * 642}")
    a(f"s_add_u32 s{sA}, s{sA}, 2")
    a(f"v_add_u32 v{va}, s{sA}, v{va}")
    a(f"s_lshr_b32 s{sA}, s{sC}, 2")
    a(f"s_lshl_b32 s{sA}, s{sA}, 11")
    a(f"s_and_b32 s{sB}, s{sC}, 3")
    a(f"s_lshl_b32 s{sB}, s{sB}, 8")
    a(f"s_add_u32 s{sA}, s{sA}, s{sB}")
    a(f"v_lshlrev_b32 v{vo3}, 4, v{vI}")
    a(f"v_add_u32 v{vo3}, s{sA}, v{vo3}")
    a(f"v_lshl_add_u32 v{vo}, v{vt}, 15, v{vo3}")
    a(f"v_cmp_eq_u32 vcc, 79, v{vt}")
    a(f"v_add_u32 v{vt}, {4 * 8192}, v{vo}")
    a(f"v_cndmask_b32 v{vo3}, v{vt}, v{vo3}, vcc")
    a(f"s_mov_b32 s{sK0}, 0x05040100")
    a(f"s_mov_b32 s{sK1}, 0x07060302")
    a("s_waitcnt lgkmcnt(0)")
    srd(a, SRD0, P_WR, 0, SEQ * 642)
    srd(a, SRD1, P_WI, 0, SEQ * 642)
    srd_ws(a, SRD2, "WC", WC_SIZE)
    for u in range(2):
        for r in range(4):
            a(f"s_mov_b32 s{sOP}, {(32 * r + 16 * u) * 642}")
            b = ld + (u * 4 + r) * 4
            a(f"buffer_load_dwordx2 {V(b, 2)}, v{va}, s[{SRD0}:{SRD0 + 3}], s{sOP} offen")
            a(f"buffer_load_dwordx2 {V(b + 2, 2)}, v{va}, s[{SRD1}:{SRD1 + 3}], s{sOP} offen")
    for u in range(2):
        for e in range(4):
            o = st + (u * 4 + e) * 4
            for r in range(4):
                b = ld + (u * 4 + r) * 4
                a(f"v_perm_b32 v{o + r}, v{b + 2 + (e >> 1)}, v{b + (e >> 1)}, s{sK1 if e & 1 else sK0}")
            if e < 3:
                a(f"s_mov_b32 s{sOP}, {(e + 1) * 8192}")
                a(f"buffer_store_dwordx4 {V(o, 4)}, v{vo}, s[{SRD2}:{SRD2 + 3}], s{sOP} offen offset:{u * 1024}{Cfg.st_flags}")
            else:
                a(f"buffer_store_dwordx4 {V(o, 4)}, v{vo3}, s[{SRD2}:{SRD2 + 3}], 0 offen offset:{u * 1024}{Cfg.st_flags}")
    return 0


def dpp_rowsum(a, v, t):
    for k in (8, 4, 2, 1):
        a(f"v_add_f32_dpp v{v}, v{v}, v{v} row_ror:{k} row_mask:0xf bank_mask:0xf")


def role_stats(a):
    va, vo, vt, vz, vone, sm, sq, t0, ld = 4, 5, 6, 7, 8, 10, 12, 16, 20
    a(f"s_lshl_b32 s{sA}, s{sT}, 5")
    a(f"s_lshl_b32 s{sB}, s{sW}, 3")
    a(f"s_add_u32 s{sA}, s{sA}, s{sB}")
    a(f"v_add_u32 v{vt}, s{sA}, v{vG}")
    a(f"v_mul_u32_u24 v{va}, 1280, v{vt}")
    a(f"v_lshl_add_u32 v{va}, v{vI}, 4, v{va}")
    a("s_waitcnt lgkmcnt(0)")
    srd(a, SRD0, P_X, 0, SEQ * DM * 2)
    a(f"s_mov_b32 s{sOP}, {4 * 1280}")
    for h in range(2):
        for j in range(5):
            so = f"s{sOP}" if h else "0"
            a(f"buffer_load_dwordx4 {V(ld + (h * 5 + j) * 4, 4)}, v{va}, s[{SRD0}:{SRD0 + 3}], {so} offen offset:{j * 256}")
    srd_ws(a, SRD1, "SS0", 2 * SS_SIZE)
    a(f"v_bfe_u32 v{vo}, v{vt}, 4, 2")
    a(f"v_lshlrev_b32 v{vo}, 3, v{vo}")
    a(f"v_lshrrev_b32 v{vz}, 8, v{vt}")
    a(f"v_add_u32 v{vo}, v{vo}, v{vz}")
    a(f"v_and_b32 v{vz}, 15, v{vt}")
    a(f"v_lshl_add_u32 v{vo}, v{vo}, 4, v{vz}")
    a(f"v_bfe_u32 v{vz}, v{vt}, 6, 2")
    a(f"v_lshl_add_u32 v{vo}, v{vo}, 2, v{vz}")
    a(f"v_lshlrev_b32 v{vo}, 2, v{vo}")
    a(f"v_mov_b32 v{vz}, 0")
    a(f"v_mov_b32 v{vone}, 0x3f803f80")
    a(f"s_mov_b32 s{sOQ}, {WS['SS2'] - WS['SS0']}")
    a(f"s_mov_b32 s{sK0}, 0xffff0000")
    for h in range(2):
        a(f"buffer_store_dword v{vz}, v{vo}, s[{SRD1}:{SRD1 + 3}], s{sOQ} offen offset:{h * 64}")
    if Cfg.dcbias:
        srd_ws(a, SRD2, "FLAG", FLAG_SIZE)
        a(f"s_lshl_b32 s{sA}, s{sT}, 10")
        a(f"v_lshl_add_u32 v9, v0, 2, s{sA}")
        a(f"buffer_store_dword v{vz}, v9, s[{SRD2}:{SRD2 + 3}], 0 offen")
    for h in range(2):
        a(f"v_mov_b32 v{sm + h}, 0")
        a(f"v_mov_b32 v{sq + 2 * h}, 0")
        a(f"v_mov_b32 v{sq + 2 * h + 1}, 0")
    for h in range(2):
        for k in range(20):
            a(f"v_dot2c_f32_bf16 v{sm + h}, v{ld + h * 20 + k}, v{vone}")
    for h in range(2):
        dpp_rowsum(a, sm + h, t0)
        a(f"v_mul_f32 v{sm + h}, {f32bits(-1.0 / DM):#x}, v{sm + h}")
    for k in range(20):
        for h in range(2):
            x = ld + h * 20 + k
            t = t0 + 2 * h
            a(f"v_lshlrev_b32 v{t}, 16, v{x}")
            a(f"v_and_b32 v{t + 1}, s{sK0}, v{x}")
            a(f"v_add_f32 v{t}, v{t}, v{sm + h}")
            a(f"v_add_f32 v{t + 1}, v{t + 1}, v{sm + h}")
            a(f"v_fmac_f32 v{sq + 2 * h}, v{t}, v{t}")
            a(f"v_fmac_f32 v{sq + 2 * h + 1}, v{t + 1}, v{t + 1}")
    for h in range(2):
        a(f"v_add_f32 v{sq + 2 * h}, v{sq + 2 * h}, v{sq + 2 * h + 1}")
        dpp_rowsum(a, sq + 2 * h, t0)
        a(f"buffer_store_dword v{sq + 2 * h}, v{vo}, s[{SRD1}:{SRD1 + 3}], 0 offen offset:{h * 64}")
    return 0


def role_w2t(a):
    va, vo, vt, ld, st = 4, 5, 6, 8, 24
    a(f"s_lshl_b32 s{sA}, s{sT}, 8")
    a(f"v_add_u32 v{vo}, s{sA}, v0")
    a(f"v_lshrrev_b32 v{vt}, 5, v{vo}")
    a(f"v_mul_u32_u24 v{vt}, 52429, v{vt}")
    a(f"v_lshrrev_b32 v{vt}, 18, v{vt}")
    a(f"v_mul_u32_u24 v{va}, {10240 - 1280}, v{vt}")
    a(f"v_lshl_add_u32 v{va}, v{vo}, 3, v{va}")
    a(f"v_lshlrev_b32 v{vo}, 6, v{vo}")
    a(f"s_mov_b32 s{sK0}, 0x05040100")
    a(f"s_mov_b32 s{sK1}, 0x07060302")
    a(f"s_mov_b32 s{sOP}, {4 * 1280}")
    a("s_waitcnt lgkmcnt(0)")
    srd(a, SRD0, P_W2, 0, FF * DM * 2)
    srd_ws(a, SRD1, "W2T", W2T_SIZE)
    for j in range(8):
        so = f"s{sOP}" if j >= 4 else "0"
        a(f"buffer_load_dwordx2 {V(ld + 2 * j, 2)}, v{va}, s[{SRD0}:{SRD0 + 3}], {so} offen offset:{(j & 3) * 1280}")
    for e in range(4):
        for m in range(4):
            a(f"v_perm_b32 v{st + e * 4 + m}, v{ld + (2 * m + 1) * 2 + (e >> 1)}, v{ld + 2 * m * 2 + (e >> 1)}, s{sK1 if e & 1 else sK0}")
        a(f"buffer_store_dwordx4 {V(st + e * 4, 4)}, v{vo}, s[{SRD1}:{SRD1 + 3}], 0 offen offset:{e * 16}{Cfg.st_flags}")
    return 0


def cmul_pack(a, dst, re, im, c, s, tmp, conj_w=False):
    for h in (0, 2):
        t0, t1 = tmp + 2 * h, tmp + 2 * h + 2
        a(f"v_pk_mul_f32 {V(t0, 2)}, {V(re + h, 2)}, {V(c + h, 2)}")
        a(f"v_pk_mul_f32 {V(t1, 2)}, {V(im + h, 2)}, {V(c + h, 2)}")
    for h in (0, 2):
        t0, t1 = tmp + 2 * h, tmp + 2 * h + 2
        if conj_w:
            a(f"v_pk_fma_f32 {V(t0, 2)}, {V(im + h, 2)}, {V(s + h, 2)}, {V(t0, 2)} neg_lo:[1,0,0] neg_hi:[1,0,0]")
            a(f"v_pk_fma_f32 {V(t1, 2)}, {V(re + h, 2)}, {V(s + h, 2)}, {V(t1, 2)}")
        else:
            a(f"v_pk_fma_f32 {V(t0, 2)}, {V(im + h, 2)}, {V(s + h, 2)}, {V(t0, 2)}")
            a(f"v_pk_fma_f32 {V(t1, 2)}, {V(re + h, 2)}, {V(s + h, 2)}, {V(t1, 2)} neg_lo:[1,0,0] neg_hi:[1,0,0]")
    for h in (0, 2):
        t0, t1 = tmp + 2 * h, tmp + 2 * h + 2
        n = "-" if conj_w else ""
        a(f"v_cvt_pk_bf16_f32 v{dst + h}, v{t0}, {n}v{t1}")
        a(f"v_cvt_pk_bf16_f32 v{dst + h + 1}, v{t0 + 1}, {n}v{t1 + 1}")


def role_col(a, src, ssn, dst):
    vx, vw, vl0, vmI = 4, 5, 6, 10
    fi, fg, fa, fb = 11, 12, 13, 14
    raw, ss, wraw = 16, 24, 32
    M1, M2 = 40, 72
    T1, T2 = 104, 120
    WU = 136
    ACC = 152
    FO, FG = 168, 176
    TMP = 200

    a(f"s_and_b32 s{sA}, s{sT}, 7")
    a(f"s_lshr_b32 s{sB}, s{sT}, 4")
    a(f"s_lshl_b32 s{sB}, s{sB}, 3")
    a(f"s_add_u32 s{sC}, s{sA}, s{sB}")
    a(f"s_bfe_u32 s{sD}, s{sT}, 0x10003")
    a(f"s_lshl1_add_u32 s{sE}, s{sC}, s{sD}")
    a(f"s_lshl_b32 s{sA}, s{sC}, 14")
    a(f"s_lshl2_add_u32 s{sA}, s{sD}, s{sA}")
    a(f"s_lshl_b32 s{sB}, s{sW}, 7")
    a(f"s_add_u32 s{sA}, s{sA}, s{sB}")
    a(f"v_lshlrev_b32 v{vx}, 11, v{vG}")
    a(f"v_lshl_add_u32 v{vx}, v{vI}, 3, v{vx}")
    a(f"v_add_u32 v{vx}, s{sA}, v{vx}")
    a(f"s_lshl_b32 s{sB}, s{sW}, 11")
    a(f"v_lshlrev_b32 v{vw}, 4, v{vL}")
    a(f"v_add_u32 v{vw}, s{sB}, v{vw}")
    a(f"s_lshl_b32 s{sF}, s{sE}, 13")
    a(f"s_mov_b32 s{sOP}, 8192")
    a("s_waitcnt lgkmcnt(0)")
    srd_ws(a, SRD0, src, XP_SIZE)
    srd_ws(a, SRD1, ssn, SS_SIZE)
    for t in range(2):
        a(f"buffer_load_dwordx4 {V(ss + 4 * t, 4)}, v{vw}, s[{SRD1}:{SRD1 + 3}], 0 offen offset:{t * 1024}")
    for t in range(2):
        for jj in range(4):
            so = f"s{sOP}" if t else "0"
            a(f"buffer_load_dword v{raw + 4 * t + jj}, v{vx}, s[{SRD0}:{SRD0 + 3}], {so} offen offset:{jj * 512}")
    srd_ws(a, SRD2, "WC", WC_SIZE)
    for u in range(2):
        a(f"buffer_load_dwordx4 {V(wraw + 4 * u, 4)}, v{vw}, s[{SRD2}:{SRD2 + 3}], s{sF} offen offset:{u * 1024}")
    srd_ws(a, SRD3, dst, XP_SIZE)

    mark(a, 1)
    a(f"v_lshlrev_b32 v{vl0}, 4, v0")
    for kk in (1, 2, 3):
        a(f"v_xor_b32 v{vl0 + kk}, {kk * 1024}, v{vl0}")
    a(f"v_and_b32 v{vmI}, 1, v{vI}")
    a(f"v_mul_u32_u24 v{vmI}, 0x8000, v{vmI}")
    a(f"v_lshl_or_b32 v{vmI}, v{vmI}, 16, v{vmI}")
    a(f"s_mov_b32 s{sK0}, 0x80008000")
    a(f"v_cvt_f32_u32 v{fi}, v{vI}")
    a(f"v_lshlrev_b32 v{fg}, 2, v{vG}")
    a(f"v_cvt_f32_u32 v{fg}, v{fg}")

    def m1(qb, t, var):
        return M1 + ((qb * 2 + t) * 2 + var) * 4

    def m2(kk, var):
        return M2 + (kk * 2 + var) * 4

    a(f"v_mul_f32 v{fa}, {f32bits(1 / 32):#x}, v{fi}")
    for jj in range(4):
        t = TMP + 3 * jj
        a(f"v_add_f32 v{t}, {float(jj)}, v{fg}" if jj in (0, 1, 2) else f"v_add_f32 v{t}, {f32bits(3.0):#x}, v{fg}")
        a(f"v_mul_f32 v{t}, v{t}, v{fa}")
        a(f"v_fract_f32 v{t}, v{t}")
        a(f"v_cos_f32 v{t + 1}, v{t}")
        a(f"v_sin_f32 v{t + 2}, v{t}")
    for jj in range(4):
        t = TMP + 3 * jj
        n = "-" if jj & 1 else ""
        m = "" if jj & 1 else "-"
        a(f"v_cvt_pk_bf16_f32 v{m1(0, 0, 0) + jj}, v{t + 1}, v{t + 2}")
        a(f"v_cvt_pk_bf16_f32 v{m1(0, 0, 1) + jj}, -v{t + 2}, v{t + 1}")
        a(f"v_cvt_pk_bf16_f32 v{m1(1, 0, 0) + jj}, {n}v{t + 1}, {n}v{t + 2}")
        a(f"v_cvt_pk_bf16_f32 v{m1(1, 0, 1) + jj}, {m}v{t + 2}, {n}v{t + 1}")
    for qb in range(2):
        for var in range(2):
            for jj in range(4):
                a(f"v_xor_b32 v{m1(qb, 1, var) + jj}, v{vmI}, v{m1(qb, 0, var) + jj}")

    a(f"s_lshl_b32 s{sA}, s{sW}, 4")
    a(f"v_cvt_f32_u32 v{fb}, s{sA}")
    a(f"v_add_f32 v{TMP + 24}, v{fb}, v{fg}")
    a(f"v_add_f32 v{fb}, v{fb}, v{fi}")
    a(f"v_mul_f32 v{TMP + 25}, {f32bits(1 / 2048):#x}, v{fi}")
    a(f"v_add_f32 v{TMP + 26}, {f32bits(16 / 2048):#x}, v{TMP + 25}")
    for r in range(4):
        t = TMP + r
        a(f"v_add_f32 v{t}, {f32bits(float(r)):#x}, v{TMP + 24}")
    for qb in range(2):
        for r in range(4):
            t = TMP + 4 + (qb * 4 + r)
            a(f"v_mul_f32 v{t}, v{TMP + r}, v{TMP + 25 + qb}")
            a(f"v_cos_f32 v{T1 + qb * 8 + r}, v{t}")
            a(f"v_sin_f32 v{T1 + qb * 8 + 4 + r}, v{t}")

    a(f"v_mul_f32 v{fa}, {f32bits(1 / 64):#x}, v{fb}")
    a(f"s_xor_b32 s{sA}, s{sA}, 16")
    a(f"v_cvt_f32_u32 v{TMP + 24}, s{sA}")
    a(f"v_add_f32 v{TMP + 24}, v{TMP + 24}, v{fg}")
    for kk in range(2):
        for r in range(4):
            t = TMP + 12 + 3 * r
            if kk == 0:
                a(f"v_mul_f32 v{t}, v{TMP + r}, v{fa}")
            else:
                a(f"v_add_f32 v{t}, {f32bits(float(r)):#x}, v{TMP + 24}")
                a(f"v_mul_f32 v{t}, v{t}, v{fa}")
            a(f"v_fract_f32 v{t}, v{t}")
            a(f"v_cos_f32 v{t + 1}, v{t}")
            a(f"v_sin_f32 v{t + 2}, v{t}")
        for r in range(4):
            t = TMP + 12 + 3 * r
            a(f"v_cvt_pk_bf16_f32 v{m2(kk, 0) + r}, v{t + 1}, v{t + 2}")
            a(f"v_cvt_pk_bf16_f32 v{m2(kk, 1) + r}, -v{t + 2}, v{t + 1}")
    for kk in range(2):
        for var in range(2):
            for r in range(4):
                a(f"v_xor_b32 v{m2(kk + 2, var) + r}, v{vmI}, v{m2(kk, var) + r}")

    a(f"v_mul_f32 v{fa}, {f32bits(1 / 2048):#x}, v{fb}")
    for u in range(2):
        for r in range(4):
            t = TMP + (u * 4 + r)
            a(f"v_add_f32 v{t}, {f32bits(float(16 * u + r)):#x}, v{fg}")
            a(f"v_mul_f32 v{t}, v{t}, v{fa}")
            a(f"v_cos_f32 v{T2 + u * 8 + r}, v{t}")
            a(f"v_sin_f32 v{T2 + u * 8 + 4 + r}, v{t}")

    a(f"s_mov_b32 s{sK1}, 0xffff0000")
    a(f"s_cmp_eq_u32 s{sE}, 0")
    a(f"s_cselect_b32 s{sK2}, 0, s{sK1}")
    a(f"s_cselect_b32 s{sK3}, 0, {f32bits(-1 / 2048):#x}")
    a(f"s_mov_b32 s{sA}, {f32bits(1 / DM):#x}")
    a(f"s_mov_b32 s{sB}, {f32bits(1 / 2048):#x}")
    a(f"v_mov_b32 v{fa}, {f32bits(1e-5):#x}")
    mark(a, 2)
    for k in range(8):
        a(f"v_fma_f32 v{ss + k}, v{ss + k}, s{sA}, v{fa}")
    for k in range(8):
        a(f"v_rsq_f32 v{ss + k}, v{ss + k}")
    for k in range(8):
        t = TMP + 2 * k
        a(f"v_lshlrev_b32 v{t}, 16, v{raw + k}")
        a(f"v_and_b32 v{t + 1}, s{sK2}, v{raw + k}")
    for k in range(8):
        t = TMP + 2 * k
        a(f"v_mul_f32 v{t}, v{t}, v{ss + k}")
        a(f"v_mul_f32 v{t + 1}, v{t + 1}, v{ss + k}")
    for k in range(8):
        t = TMP + 2 * k
        a(f"v_cvt_pk_bf16_f32 v{FG + k}, v{t}, v{t + 1}")

    def acc(b, var):
        return ACC + (b * 2 + var) * 4

    mark(a, 3)
    for t in range(2):
        for qb in range(2):
            for var in range(2):
                mfma(a, acc(qb, var), FG + 4 * t, m1(qb, t, var), None if t == 0 else acc(qb, var))
    for u in range(2):
        for r in range(4):
            a(f"v_lshlrev_b32 v{WU + u * 8 + r}, 16, v{wraw + u * 4 + r}")
            a(f"v_and_b32 v{WU + u * 8 + 4 + r}, s{sK1}, v{wraw + u * 4 + r}")

    def exchange(base, data_is_a):
        for b in range(2):
            a(f"ds_write_b128 v{vl0}, {V(FO + 4 * b, 4)} offset:{base + b * 4096}")
        for b in range(2):
            for var in range(2):
                if data_is_a:
                    mfma(a, acc(b, var), FO + 4 * b, m2(0, var), None)
                else:
                    mfma(a, acc(b, var), m2(0, var), FO + 4 * b, None)
        a("s_waitcnt lgkmcnt(0)")
        a("s_barrier")
        for kk in (1, 2, 3):
            for b in range(2):
                a(f"ds_read_b128 {V(FG + ((kk - 1) * 2 + b) * 4, 4)}, v{vl0 + kk} offset:{base + b * 4096}")
        for kk in (1, 2, 3):
            for b in range(2):
                for var in range(2):
                    f = FG + ((kk - 1) * 2 + b) * 4
                    if data_is_a:
                        mfma(a, acc(b, var), f, m2(kk, var), acc(b, var))
                    else:
                        mfma(a, acc(b, var), m2(kk, var), f, acc(b, var))

    for qb in range(2):
        cmul_pack(a, FO + 4 * qb, acc(qb, 0), acc(qb, 1), T1 + qb * 8, T1 + qb * 8 + 4, TMP + 8 * qb)
    exchange(0, False)
    mark(a, 4)
    for u in range(2):
        cmul_pack(a, FO + 4 * u, acc(u, 0), acc(u, 1), WU + u * 8, WU + u * 8 + 4, TMP + 8 * u, conj_w=True)
    exchange(8192, True)
    mark(a, 5)
    for k in range(8):
        a(f"v_lshlrev_b32 v{WU + 2 * k}, 16, v{raw + k}")
        a(f"v_and_b32 v{WU + 2 * k + 1}, s{sK1}, v{raw + k}")
    for u in range(2):
        cmul_pack(a, FO + 4 * u, acc(u, 0), acc(u, 1), T2 + u * 8, T2 + u * 8 + 4, TMP + 8 * u)
    for u in range(2):
        for t in range(2):
            for var in range(2):
                mfma(a, acc(t, var), m1(t, u, var), FO + 4 * u, None if u == 0 else acc(t, var))
    for t in range(2):
        for jj in range(4):
            k = 4 * t + jj
            a(f"v_fma_f32 v{WU + 2 * k}, v{acc(t, 0) + jj}, s{sB}, v{WU + 2 * k}")
            a(f"v_fma_f32 v{WU + 2 * k + 1}, v{acc(t, 1) + jj}, s{sK3}, v{WU + 2 * k + 1}")
        for jj in range(4):
            k = 4 * t + jj
            a(f"v_cvt_pk_bf16_f32 v{raw + k}, v{WU + 2 * k}, v{WU + 2 * k + 1}")
            so = f"s{sOP}" if t else "0"
            a(f"buffer_store_dword v{raw + k}, v{vx}, s[{SRD3}:{SRD3 + 3}], {so} offen offset:{jj * 512}{Cfg.st_flags}")
    return 16384


def role_g1(a, src):
    vx, vw, vl, vo, vb, vm = 4, 5, 6, 7, 8, 9
    sq = 10
    X = 16
    ACC = 176
    BR = 232
    TMP = 246
    WR = 256
    NW = 14

    a(f"s_and_b32 s{sA}, s{sT}, 7")
    a(f"s_lshr_b32 s{sB}, s{sA}, 1")
    a(f"s_lshl_b32 s{sB}, s{sB}, 2")
    a(f"s_bfe_u32 s{sC}, s{sT}, 0x20003")
    a(f"s_add_u32 s{sC}, s{sC}, s{sB}")
    a(f"s_and_b32 s{sA}, s{sA}, 1")
    a(f"s_lshl_b32 s{sA}, s{sA}, 3")
    a(f"s_lshr_b32 s{sD}, s{sT}, 5")
    a(f"s_add_u32 s{sD}, s{sD}, s{sA}")
    a(f"s_mul_i32 s{sD}, s{sD}, 27")
    a(f"s_lshr_b32 s{sD}, s{sD}, 2")
    a(f"s_lshl_b32 s{sC}, s{sC}, 7")
    a(f"s_lshl_b32 s{sA}, s{sW}, 5")
    a(f"s_add_u32 s{sC}, s{sC}, s{sA}")
    a(f"v_lshlrev_b32 v{vx}, 15, v{vG}")
    a(f"v_lshl_add_u32 v{vx}, v{vI}, 4, v{vx}")
    a(f"s_lshl_b32 s{sA}, s{sC}, 3")
    a(f"v_add_u32 v{vx}, s{sA}, v{vx}")
    a(f"v_mul_u32_u24 v{vw}, {FF}, v{vG}")
    a(f"v_add_lshl_u32 v{vw}, v{vw}, v{vI}, 4")
    a(f"s_mul_i32 s{sA}, s{sW}, {4 * W1F_STR}")
    a(f"s_lshl_b32 s{sB}, s{sD}, 8")
    a(f"s_add_u32 s{sA}, s{sA}, s{sB}")
    a(f"v_add_u32 v{vw}, s{sA}, v{vw}")
    a(f"s_mul_i32 s{sE}, s{sW}, 7168")
    a(f"v_lshlrev_b32 v{vl}, 4, v{vL}")
    a("s_waitcnt lgkmcnt(0)")
    srd_ws(a, SRD0, "W1F", W1F_SIZE)
    srd_ws(a, SRD1, src, XP_SIZE)

    def xr(ks, st):
        return X + ks * 8 + st * 4

    def issue_chunk(c):
        a(f"s_mov_b32 s{sOP}, {c * 16 * W1F_STR}")
        for ft in range(7):
            a(f"s_add_u32 m0, s{sE}, {c * 28672 + ft * 1024 - ft * 256}")
            a(f"buffer_load_dwordx4 v{vw}, s[{SRD0}:{SRD0 + 3}], s{sOP} offen offset:{ft * 256} lds", tag=f"w{c}")
        for k in range(4):
            ks = 4 * c + k
            for h in range(2):
                a(f"s_mov_b32 s{sOQ}, {(8 * ks + h) * XP_STR}")
                a(f"buffer_load_dwordx4 {V(xr(ks, h), 4)}, v{vx}, s[{SRD1}:{SRD1 + 3}], s{sOQ} offen")

    for c in range(4):
        issue_chunk(c)
    srd(a, SRD2, P_B1, 0, FF * 2)
    srd_ws(a, SRD3, "H", H_SIZE)
    a(f"s_lshl_b32 s{sA}, s{sD}, 5")
    a(f"v_lshlrev_b32 v{vb}, 3, v{vG}")
    a(f"v_add_u32 v{vb}, s{sA}, v{vb}")
    a(f"v_lshrrev_b32 v{vo}, 1, v{vG}")
    a(f"v_mul_u32_u24 v{vo}, {H_STR}, v{vo}")
    a(f"v_lshl_add_u32 v{vo}, v{vI}, 5, v{vo}")
    a(f"v_and_b32 v{vm}, 1, v{vG}")
    a(f"v_lshl_add_u32 v{vo}, v{vm}, 4, v{vo}")
    a(f"s_mul_i32 s{sA}, s{sD}, {2 * H_STR}")
    a(f"s_lshl_b32 s{sB}, s{sC}, 4")
    a(f"s_add_u32 s{sA}, s{sA}, s{sB}")
    a(f"v_add_u32 v{vo}, s{sA}, v{vo}")
    a(f"v_cmp_eq_u32 vcc, 0, v{vG}")
    a(f"v_mov_b32 v{vm}, 0xffff")
    a(f"v_cndmask_b32 v{vm}, -1, v{vm}, vcc")
    for k in range(4):
        a(f"v_mov_b32 v{sq + k}, 0")

    def acc(ft, st):
        return ACC + (ft * 2 + st) * 4

    seq = [(ks, ft) for ks in range(20) for ft in range(7)]

    def wreg(n):
        return WR + (n % NW) * 4

    def rd(n):
        ks, ft = seq[n]
        off = (ks * 7 + ft) * 1024
        if off >= 65536:
            a(f"ds_read_b128 {R(wreg(n), 4)}, v{TMP + (off >> 16)} offset:{off & 0xffff}")
        else:
            a(f"ds_read_b128 {R(wreg(n), 4)}, v{vl} offset:{off}")

    a(f"v_add_u32 v{TMP + 1}, 0x10000, v{vl}")
    a(f"v_add_u32 v{TMP + 2}, 0x20000, v{vl}")
    AHEAD = 8
    nread = 0
    for c in range(5):
        if c == 0:
            mark(a, 1)
        a.wait_tag(f"w{c}")
        a("s_barrier")
        if c in (0, 1, 4):
            mark(a, {0: 2, 1: 3, 4: 4}[c])
        if c == 0:
            issue_chunk(4)
            for ft in range(7):
                a(f"buffer_load_dwordx2 {V(BR + 2 * ft, 2)}, v{vb}, s[{SRD2}:{SRD2 + 3}], 0 offen offset:{ft * 32}")
        hi = (c + 1) * 28
        for n in range(c * 28, hi):
            ks, ft = seq[n]
            while nread < min(hi, n + AHEAD):
                rd(nread)
                nread += 1
            if ft == 0:
                a(f"v_swap_b32 v{xr(ks, 0) + 2}, v{xr(ks, 1)}")
                a(f"v_swap_b32 v{xr(ks, 0) + 3}, v{xr(ks, 1) + 1}")
                if ks == 0:
                    a(f"v_and_b32 v{xr(0, 0)}, v{vm}, v{xr(0, 0)}")
                    a(f"v_and_b32 v{xr(0, 1)}, v{vm}, v{xr(0, 1)}")
            for st in range(2):
                mfma(a, acc(ft, st), wreg(n), xr(ks, st), None if ks == 0 else acc(ft, st))
                if 1 <= ft <= 4 and not Cfg.nodot:
                    x = xr(ks, st) + ft - 1
                    a(f"v_dot2c_f32_bf16 v{sq + st * 2 + (ft & 1)}, v{x}, v{x}")

    mark(a, 5)
    t = TMP + 4
    for st in range(2):
        s = sq + 2 * st
        a(f"v_add_f32 v{s}, v{s}, v{s + 1}")
    for op in ("v_permlane32_swap_b32", "v_permlane16_swap_b32"):
        for st in range(2):
            s = sq + 2 * st
            a(f"v_mov_b32 v{s + 1}, v{s}")
        for st in range(2):
            s = sq + 2 * st
            a(f"{op} v{s}, v{s + 1}")
        for st in range(2):
            s = sq + 2 * st
            a(f"v_add_f32 v{s}, v{s}, v{s + 1}")
    a(f"v_mov_b32 v{t}, {f32bits(1e-5):#x}")
    for st in range(2):
        s = sq + 2 * st
        a(f"v_mul_f32 v{s}, {f32bits(1 / DM):#x}, v{s}")
        a(f"v_add_f32 v{s + 1}, v{s}, v{t}")
        a(f"v_rsq_f32 v{s + 1}, v{s + 1}")
    for st in range(2):
        s = sq + 2 * st
        a(f"v_mul_f32 v{s}, v{s}, v{s + 1}")
        a(f"v_fma_f32 v{s}, v{s}, v{s + 1}, v{t}")
        a(f"v_rsq_f32 v{s}, v{s}")
    for st in range(2):
        s = sq + 2 * st
        a(f"v_mul_f32 v{s}, v{s}, v{s + 1}")

    k0 = -2.0 * 0.7978845608028654 * 1.4426950408889634
    a(f"s_mov_b32 s{sK0}, {f32bits(k0 * 0.044715):#x}")
    a(f"s_mov_b32 s{sK1}, s{sK0}")
    a(f"s_mov_b32 s{sK2}, 0xffff0000")
    a(f"v_mov_b32 v{TMP + 4}, {f32bits(k0):#x}")
    a(f"v_mov_b32 v{TMP + 5}, {f32bits(k0):#x}")
    for ft in range(7):
        B = X + ft * 16
        Z = B + 4
        O = B + 12
        for h in range(2):
            a(f"v_lshlrev_b32 v{B + 2 * h}, 16, v{BR + 2 * ft + h}")
            a(f"v_and_b32 v{B + 2 * h + 1}, s{sK2}, v{BR + 2 * ft + h}")
        prs = [(acc(ft, st) + h, Z + st * 4 + h, B + h, sq + 2 * st) for st in range(2) for h in (0, 2)]
        for x, z, b, s in prs:
            a(f"v_pk_fma_f32 {V(x, 2)}, {V(x, 2)}, {V(s, 2)}, {V(b, 2)} op_sel_hi:[1,0,1]")
        for x, z, b, s in prs:
            a(f"v_pk_mul_f32 {V(z, 2)}, {V(x, 2)}, {V(x, 2)}")
        for x, z, b, s in prs:
            a(f"v_pk_fma_f32 {V(z, 2)}, {V(z, 2)}, s[{sK0}:{sK1}], {V(TMP + 4, 2)}")
        for x, z, b, s in prs:
            a(f"v_pk_mul_f32 {V(z, 2)}, {V(z, 2)}, {V(x, 2)}")
        for k in range(8):
            a(f"v_exp_f32 v{Z + k}, v{Z + k}")
        for x, z, b, s in prs:
            a(f"v_pk_add_f32 {V(z, 2)}, {V(z, 2)}, 1.0 op_sel_hi:[1,0]")
        for k in range(8):
            a(f"v_rcp_f32 v{Z + k}, v{Z + k}")
        for x, z, b, s in prs:
            a(f"v_pk_mul_f32 {V(z, 2)}, {V(z, 2)}, {V(x, 2)}")
        for k in range(4):
            a(f"v_cvt_pk_bf16_f32 v{O + k}, v{Z + 2 * k}, v{Z + 2 * k + 1}")
        a(f"s_mov_b32 s{sOP}, {ft * 2 * H_STR}")
        a(f"v_permlane16_swap_b32 v{O}, v{O + 2}")
        a(f"v_permlane16_swap_b32 v{O + 1}, v{O + 3}")
        a(f"buffer_store_dwordx4 {V(O, 4)}, v{vo}, s[{SRD3}:{SRD3 + 3}], s{sOP} offen{Cfg.st_flags}")
    return 140 * 1024


def role_g2(a, final):
    vp, vq, vred, vo, acc = 4, 5, 9, 13, 16
    vp2, vq2, vone, vs, RES, TMP = 96, 97, 101, 102, 104, 116
    ring = 256
    depth = Cfg.g2depth
    a(f"s_and_b32 s{sA}, s{sT}, 7")
    a(f"s_lshr_b32 s{sB}, s{sA}, 1")
    a(f"s_lshl_b32 s{sB}, s{sB}, 3")
    a(f"s_bfe_u32 s{sC}, s{sT}, 0x30003")
    a(f"s_add_u32 s{sC}, s{sC}, s{sB}")
    a(f"s_lshl_b32 s{sC}, s{sC}, 6")
    a(f"s_and_b32 s{sA}, s{sA}, 1")
    a(f"s_lshl_b32 s{sA}, s{sA}, 2")
    a(f"s_lshr_b32 s{sD}, s{sT}, 6")
    a(f"s_add_u32 s{sD}, s{sD}, s{sA}")
    p_addr(a, vp, sD, 14)
    a(f"v_mul_u32_u24 v{vq}, {H_STR}, v{vG}")
    a(f"v_lshl_add_u32 v{vq}, v{vI}, 4, v{vq}")
    a(f"s_mul_i32 s{sA}, s{sW}, {14 * 4 * H_STR}")
    a(f"s_lshl_b32 s{sB}, s{sC}, 4")
    a(f"s_add_u32 s{sA}, s{sA}, s{sB}")
    for ql in (3, 2, 1, 0):
        a(f"s_xor_b32 s{sB}, s{sW}, {ql}")
        a(f"s_lshl_b32 s{sB}, s{sB}, 8")
        a(f"s_add_u32 s{sB}, s{sB}, s{sA}")
        a(f"v_add_u32 v{vq + ql}, s{sB}, v{vq}")
    if Cfg.g2lay & 1:
        a(f"s_mul_i32 s{sA}, s{sD}, {54 * 5120}")
        a(f"s_mul_i32 s{sB}, s{sW}, {13 * 5120}")
        a(f"s_add_u32 s{sA}, s{sA}, s{sB}")
        a(f"v_lshlrev_b32 v{vp}, 4, v{vL}")
        a(f"v_add_u32 v{vp}, s{sA}, v{vp}")
    if Cfg.g2lay & 2:
        a(f"s_mul_i32 s{sA}, s{sC}, {54 * 64}")
        a(f"s_mul_i32 s{sB}, s{sW}, {13 * 4096}")
        a(f"s_add_u32 s{sA}, s{sA}, s{sB}")
        a(f"v_lshlrev_b32 v{vq}, 4, v{vL}")
        for ql in (3, 2, 1, 0):
            a(f"s_xor_b32 s{sB}, s{sW}, {ql}")
            a(f"s_lshl_b32 s{sB}, s{sB}, 10")
            a(f"s_add_u32 s{sB}, s{sB}, s{sA}")
            a(f"v_add_u32 v{vq + ql}, s{sB}, v{vq}")
    a("s_waitcnt lgkmcnt(0)")
    if final:
        srd_ws(a, SRD0, "W2T", W2T_SIZE)
    else:
        srd_ws(a, SRD0, "WA2", WA2_SIZE)
    srd_ws(a, SRD1, "H", H_SIZE)
    st = {"p": None, "q": None}

    def ip(t, p, dst):
        if t < 14:
            if Cfg.g2lay & 1:
                a(f"s_mov_b32 s{sOP}, {t * 5120 + p * 1024}")
                a(f"buffer_load_dwordx4 {R(dst, 4)}, v{vp}, s[{SRD0}:{SRD0 + 3}], s{sOP} offen")
                return
            if st["p"] != t:
                a(f"s_mov_b32 s{sOP}, {t * 4 * KB_STR}")
            a(f"buffer_load_dwordx4 {R(dst, 4)}, v{vp}, s[{SRD0}:{SRD0 + 3}], s{sOP} offen offset:{p * 256}")
        else:
            if st["p"] != t:
                a(f"s_mov_b32 s{sOP}, {(t - 14) * 4 * KB_STR}")
            a(f"buffer_load_dwordx4 {R(dst, 4)}, v{vp2}, s[{SRD4}:{SRD4 + 3}], s{sOP} offen offset:{p * 256}")
        st["p"] = t

    def iq(t, q, qb):
        if t < 14:
            if st["q"] != t:
                a(f"s_mov_b32 s{sOQ}, {t * (4096 if Cfg.g2lay & 2 else 4 * H_STR)}")
            a(f"buffer_load_dwordx4 {R(qb + q * 4, 4)}, v{vq + q}, s[{SRD1}:{SRD1 + 3}], s{sOQ} offen")
        else:
            if st["q"] != t:
                a(f"s_mov_b32 s{sOQ}, {(t - 14) * 8 * XP_STR}")
                a(f"s_mov_b32 s{sF}, {((t - 14) * 8 + 1) * XP_STR}")
            a(f"buffer_load_dwordx2 {R(qb + q * 4, 2)}, v{vq2 + q}, s[{SRD5}:{SRD5 + 3}], s{sOQ} offen")
            a(f"buffer_load_dwordx2 {R(qb + q * 4 + 2, 2)}, v{vq2 + q}, s[{SRD5}:{SRD5 + 3}], s{sF} offen")
        st["q"] = t

    def post():
        a(f"s_lshl_b32 s{sE}, s{sW}, 4")
        a(f"s_add_u32 s{sE}, s{sE}, s{sC}")
        if final:
            srd_table(a, SRD4, "ft2")
            srd_ws(a, SRD5, "XP3", XP_SIZE)
            srd(a, SRD2, P_OUT, 0, SEQ * DM * 2)
            srd(a, SRD3, P_B2, 0, DM * 2)
            p_addr(a, vp2, sD, 5)
            a(f"v_lshlrev_b32 v{vq2}, 15, v{vG}")
            a(f"v_lshl_add_u32 v{vq2}, v{vI}, 3, v{vq2}")
            a(f"s_mul_i32 s{sA}, s{sW}, {40 * XP_STR}")
            a(f"s_lshl_b32 s{sB}, s{sC}, 3")
            a(f"s_add_u32 s{sA}, s{sA}, s{sB}")
            for ql in (3, 2, 1, 0):
                a(f"s_xor_b32 s{sB}, s{sW}, {ql}")
                a(f"s_lshl_b32 s{sB}, s{sB}, 7")
                a(f"s_add_u32 s{sB}, s{sB}, s{sA}")
                a(f"v_add_u32 v{vq2 + ql}, s{sB}, v{vq2}")
            a(f"s_mul_i32 s{sA}, s{sD}, 160")
            a(f"v_lshlrev_b32 v{vs}, 3, v{vG}")
            a(f"v_add_u32 v{vs}, s{sA}, v{vs}")
            a(f"v_mul_u32_u24 v{vo}, 1280, v{vI}")
            a(f"v_add_u32 v{vo}, v{vo}, v{vs}")
            a(f"s_mul_i32 s{sA}, s{sE}, 1280")
            a(f"v_add_u32 v{vo}, s{sA}, v{vo}")
        else:
            srd_ws(a, SRD2, "XP2", XP_SIZE)
            srd_ws(a, SRD3, "XP1", XP_SIZE)
            srd_ws(a, SRD4, "SS2", SS_SIZE)
            a(f"s_mul_i32 s{sA}, s{sD}, {20 * XP_STR}")
            a(f"s_lshl_b32 s{sB}, s{sE}, 3")
            a(f"s_add_u32 s{sA}, s{sA}, s{sB}")
            a(f"v_lshlrev_b32 v{vo}, 14, v{vG}")
            a(f"v_lshl_add_u32 v{vo}, v{vI}, 3, v{vo}")
            a(f"v_add_u32 v{vo}, s{sA}, v{vo}")
            a(f"s_lshl_b32 s{sA}, s{sW}, 3")
            a(f"s_lshr_b32 s{sB}, s{sC}, 8")
            a(f"s_add_u32 s{sA}, s{sA}, s{sB}")
            a(f"s_lshl_b32 s{sA}, s{sA}, 8")
            a(f"s_bfe_u32 s{sB}, s{sC}, 0x20006")
            a(f"s_lshl2_add_u32 s{sA}, s{sB}, s{sA}")
            a(f"v_lshlrev_b32 v{vs}, 4, v{vI}")
            a(f"v_add_u32 v{vs}, s{sA}, v{vs}")
            a(f"v_lshl_add_u32 v{vs}, v{vG}, 20, v{vs}")
            a(f"s_cmp_eq_u32 s{sW}, 3")
            a(f"s_cselect_b32 s{sA}, 0x3f80, 0")
            a(f"v_mov_b32 v{vone}, s{sA}")
            a(f"v_cmp_eq_u32 vcc, 0, v{vG}")
            a(f"v_cndmask_b32 v{vone}, 0, v{vone}, vcc")
            a(f"s_cmp_eq_u32 s{sD}, 0")
            a(f"s_cselect_b32 s{sA}, 0, 1.0")
            a(f"v_mov_b32 v{vp2}, s{sA}")
            a(f"v_cndmask_b32 v{vp2}, 1.0, v{vp2}, vcc")

    def prep(t, qb):
        if t == 3:
            for p in range(5):
                if final:
                    a(f"buffer_load_dwordx2 {V(RES + 2 * p, 2)}, v{vs}, s[{SRD3}:{SRD3 + 3}], 0 offen offset:{p * 32}")
                else:
                    a(f"s_mov_b32 s{sF}, {p * 4 * XP_STR}")
                    a(f"buffer_load_dwordx2 {V(RES + 2 * p, 2)}, v{vo}, s[{SRD3}:{SRD3 + 3}], s{sF} offen")
        if t == 12 and not final:
            for q in range(4):
                a(f"v_accvgpr_read_b32 v{TMP + q}, {R(qb + q * 4)}")
            for q in range(4):
                a(f"v_or_b32 v{TMP + q}, v{TMP + q}, v{vone}")
            for q in range(4):
                a(f"v_accvgpr_write_b32 {R(qb + q * 4)}, v{TMP + q}")
        return [qb + q * 4 for q in range(4)]

    res = gemm_ks_hook(a, 19 if final else 14, depth, acc, ring, vred, ip, iq, prep, post)
    a(f"s_mov_b32 s{sK2}, 0xffff0000")
    if not final:
        a(f"v_mov_b32 v{TMP + 8}, 0")
        a(f"v_mov_b32 v{TMP + 9}, 0")
    for p, r in enumerate(res):
        for h in range(2):
            a(f"v_lshlrev_b32 v{TMP + 2 * h}, 16, v{RES + 2 * p + h}")
            a(f"v_and_b32 v{TMP + 2 * h + 1}, s{sK2}, v{RES + 2 * p + h}")
        for h in (0, 2):
            a(f"v_pk_add_f32 {V(r + h, 2)}, {V(r + h, 2)}, {V(TMP + h, 2)}")
        a(f"v_cvt_pk_bf16_f32 v{r}, v{r}, v{r + 1}")
        a(f"v_cvt_pk_bf16_f32 v{r + 1}, v{r + 2}, v{r + 3}")
        if final:
            a(f"buffer_store_dwordx2 {V(r, 2)}, v{vo}, s[{SRD2}:{SRD2 + 3}], 0 offen offset:{p * 32}{Cfg.st_flags}")
        else:
            a(f"s_mov_b32 s{sOP}, {p * 4 * XP_STR}")
            a(f"buffer_store_dwordx2 {V(r, 2)}, v{vo}, s[{SRD2}:{SRD2 + 3}], s{sOP} offen{Cfg.st_flags}")
            if p == 0:
                a(f"v_lshlrev_b32 v{TMP + 4}, 16, v{r}")
                a(f"v_and_b32 v{TMP + 5}, s{sK2}, v{r}")
                a(f"v_mul_f32 v{TMP + 5}, v{TMP + 5}, v{vp2}")
                a(f"v_mul_f32 v{TMP + 8}, v{TMP + 4}, v{TMP + 4}")
                a(f"v_fmac_f32 v{TMP + 8}, v{TMP + 5}, v{TMP + 5}")
            else:
                a(f"v_dot2c_f32_bf16 v{TMP + 8}, v{r}, v{r}")
            a(f"v_dot2c_f32_bf16 v{TMP + 9}, v{r + 1}, v{r + 1}")
    if not final:
        s = TMP + 8
        a(f"v_add_f32 v{s}, v{s}, v{s + 1}")
        for op in ("v_permlane32_swap_b32", "v_permlane16_swap_b32"):
            a(f"v_mov_b32 v{s + 1}, v{s}")
            a(f"{op} v{s}, v{s + 1}")
            a(f"v_add_f32 v{s}, v{s}, v{s + 1}")
        a(f"buffer_atomic_add_f32 v{s}, v{vs}, s[{SRD4}:{SRD4 + 3}], 0 offen")
    return KS_LDS


def gemm_ks_hook(a, nsteps, depth, acc, ring, vred, ip, iq, hook, post):
    return gemm_ks(a, nsteps, depth, acc, ring, vred, True, ip, iq, after_prologue=post, step_hook=hook)


def build_kernel(name, idx, roles):
    a = Asm()
    a.raw(f".globl {name}\n.p2align 8\n.type {name},@function")
    a.label(name)
    a("s_load_dwordx16 s[8:23], s[0:1], 0")
    a("s_load_dwordx4 s[24:27], s[0:1], 64")
    a("s_load_dwordx2 s[28:29], s[0:1], 80")
    if Cfg.stamp:
        a(f"s_memrealtime s[{sST}:{sST + 1}]")
        for j in range(1, 10):
            a(f"s_mov_b32 s{sST + 2 * j}, 0")
    a(f"v_lshrrev_b32 v{vL}, 6, v0")
    a(f"v_and_b32 v{vI}, 15, v0")
    a(f"v_readfirstlane_b32 s{sW}, v{vL}")
    a(f"v_bfe_u32 v{vG}, v0, 4, 2")
    a(f"v_and_b32 v{vL}, 63, v0")
    lds = 0
    start = 0
    for n, (count, fn) in enumerate(roles):
        if n:
            a.label(f"{name}_r{n}")
        a(f"s_cmp_ge_u32 s2, {start + count}")
        a(f"s_cbranch_scc1 {name}_r{n + 1}")
        a(f"s_sub_u32 s{sT}, s2, {start}")
        lds = max(lds, fn(a))
        if Cfg.stamp:
            mark(a, 10)
            a("s_waitcnt vmcnt(0)")
            mark(a, 11)
            a(f"s_lshl_b32 s{sA}, s2, 2")
            a(f"s_add_u32 s{sA}, s{sA}, s{sW}")
            a(f"s_lshl_b32 s{sA}, s{sA}, 6")
            a(f"s_add_u32 s{sA}, s{sA}, {idx * 262144}")
            srd_ws(a, SRD0, "STAMP", 1 << 21)
            a("s_waitcnt lgkmcnt(0)")
            for j in range(12):
                a(f"v_mov_b32 v{4 + j}, s{sST + 2 * j}")
            a(f"v_mov_b32 v16, s{sA}")
            for j in range(3):
                a(f"buffer_store_dwordx4 v[{4 + 4 * j}:{7 + 4 * j}], v16, s[{SRD0}:{SRD0 + 3}], 0 offen offset:{16 * j}")
        a("s_endpgm")
        for fn2 in a.tail:
            fn2()
        a.tail = []
        start += count
    a.label(f"{name}_r{len(roles)}")
    a("s_endpgm")
    nv = na = 0
    ns = 0
    for it in a.items:
        if isinstance(it, Inst):
            for k, r in it.dst + it.src + it.srcc:
                if k == "v":
                    nv = max(nv, r + 1)
                elif k == "a":
                    na = max(na, r + 1)
                elif r < 102:
                    ns = max(ns, r + 1)
    acco = (nv + 3) // 4 * 4
    desc = f""".p2align 6
.amdhsa_kernel {name}
  .amdhsa_next_free_vgpr {acco + na}
  .amdhsa_next_free_sgpr {ns}
  .amdhsa_accum_offset {acco}
  .amdhsa_group_segment_fixed_size 0
  .amdhsa_kernarg_size 88
  .amdhsa_user_sgpr_count 2
  .amdhsa_user_sgpr_kernarg_segment_ptr 1
  .amdhsa_system_sgpr_workgroup_id_x 1
.end_amdhsa_kernel
"""
    launch = f"; @launch kernel={name} grid=({start},1,1) block=(256,1,1) lds={lds}"
    if Cfg.stamp:
        launch += "\n; roles " + name + " " + " ".join(str(c) for c, _ in roles)
    return launch, a.finalize(), desc


def tables():
    L = []
    c = np.sqrt(2.0 / DM) * np.cos(2 * np.pi * np.arange(DM) / DM)
    c[160] = 0
    c[480] = 0
    bits = model.bf16_bits(c.astype(np.float32))
    for n in range(DM):
        L.append(f".set cq{n}, {bits[n]}")
    bb = int(model.bf16_bits(np.float32([np.sqrt(1 / DM)]))[0])
    L.append(".altmacro")
    L.append(".macro e8 a,b,c,d,e,f,g,h\n.short cq\\a, cq\\b, cq\\c, cq\\d, cq\\e, cq\\f, cq\\g, cq\\h\n.endm")
    L.append(".macro e6 a,b,c,d,e,f\n.short cq\\a, cq\\b, cq\\c, cq\\d, cq\\e, cq\\f\n.endm")
    L.append(".p2align 12\nft1:")
    L.append(".set td, 0\n.rept 80")
    L.append(".short " + ", ".join(str(bb | (0x8000 if j & 1 else 0)) for j in range(8)))
    L.append(".short " + ", ".join(str(bb) for j in range(8)))
    L.append(".set tm, 1\n.rept 319")
    L.append("e8 " + ", ".join(f"%((tm*(td+{j}))%640)" for j in range(8)))
    L.append("e8 " + ", ".join(f"%((tm*(td+{j})+160)%640)" for j in range(8)))
    L.append(".set tm, tm+1\n.endr\n.set td, td+8\n.endr")
    L.append(".p2align 12\nft2:")
    L.append(".set td, 0\n.rept 640")
    L.append(f".short {bb}+((td&1)<<15), {bb}")
    L.append("e6 " + ", ".join(f"%(({1 + j // 2}*td+{160 * (j & 1)})%640)" for j in range(6)))
    L.append(".set td, td+1\n.endr")
    L.append(".set tm, 4\n.rept 79\n.set td, 0\n.rept 640")
    L.append("e8 " + ", ".join(f"%(((tm+{j // 2})*td+{160 * (j & 1)})%640)" for j in range(8)))
    L.append(".set td, td+1\n.endr\n.set tm, tm+4\n.endr")
    L.append(".noaltmacro")
    return "\n".join(L) + "\n"


def generate(plan=None):
    if plan is None:
        plan = default_plan()
    launches, code, descs = [], [], []
    for idx, (name, roles) in enumerate(plan):
        l, c, d = build_kernel(name, idx, roles)
        launches.append(l)
        code.append(c)
        descs.append(d)
    out = "\n".join(launches) + "\n"
    out += '.amdgcn_target "amdgcn-amd-amdhsa--gfx950"\n.text\n'
    out += "".join(code)
    out += '.section .rodata,"a"\n'
    out += "".join(descs)
    out += tables()
    return out


def default_plan():
    tail = [
        ("g1a_kernel", [(256, lambda a: role_g1(a, "XP1"))]),
        ("g2a_kernel", [(256, lambda a: role_g2(a, False))]),
        ("c2_kernel", [(320, lambda a: role_col(a, "XP2", "SS2", "XP3")), (135, role_w2t)]),
        ("g1b_kernel", [(256, lambda a: role_g1(a, "XP3"))]),
        ("g2b_kernel", [(256, lambda a: role_g2(a, True))]),
    ]
    d = Cfg.pdepth
    if Cfg.plan == 1:
        return [
            ("p0_kernel", [(256, lambda a: role_xhat0(a, d))]),
            ("p1_kernel", [(80, role_wc), (64, role_stats)]),
            ("p2_kernel", [(224, lambda a: role_w2f(a, d))]),
            ("p3_kernel", [(216, lambda a: role_w1f(a, min(d, 4)))]),
            ("c1_kernel", [(320, lambda a: role_col(a, "XP0", "SS0", "XP1"))]),
        ] + tail[:3]
    if Cfg.plan == 2:
        return [
            ("p0_kernel", [(256, lambda a: role_xhat0(a, d)), (80, role_wc), (64, role_stats)]),
            ("c1_kernel", [(320, lambda a: role_col(a, "XP0", "SS0", "XP1")), (216, lambda a: role_w1f(a, min(d, 4))),
                           (224, lambda a: role_w2f(a, min(d, 4), 112))]),
        ] + tail
    return [
        ("p0_kernel", [(256, lambda a: role_xhat0(a, 4)), (80, role_wc), (64, role_stats),
                       (224, lambda a: role_w2f(a, 4))]),
        ("c1_kernel", [(320, lambda a: role_col(a, "XP0", "SS0", "XP1")), (216, lambda a: role_w1f(a, 4))]),
        ("g1a_kernel", [(256, lambda a: role_g1(a, "XP1"))]),
        ("g2a_kernel", [(256, lambda a: role_g2(a, False))]),
        ("c2_kernel", [(320, lambda a: role_col(a, "XP2", "SS2", "XP3")), (135, role_w2t)]),
        ("g1b_kernel", [(256, lambda a: role_g1(a, "XP3"))]),
        ("g2b_kernel", [(256, lambda a: role_g2(a, True))]),
    ]


if __name__ == "__main__":
    out = sys.argv[1]
    for opt in sys.argv[2:]:
        if opt == "stamp":
            Cfg.stamp = True
        if "=" in opt:
            k, v = opt.split("=")
            setattr(Cfg, k, int(v) if v.lstrip("-").isdigit() else v.replace("_", " "))
        if opt == "clk":
            Cfg.stamp = Cfg.clk = True
    open(out, "w").write(generate())
```

```python
from gen import *

GELU_K0 = -2.0 * 0.7978845608028654 * 1.4426950408889634
EPS = 1e-5
SPIN_MAX = 1 << 16


class MC:
    look = 22
    per_step = 4
    bars = (0, 1, 2, 3, 4, 6, 8, 10, 12, 14, 16, 18)
    gelu_loads = 3
    after_store = 0
    poll_lead = 10
    qdepth = 5


def role_mlp(a, final, name):
    src = "XP3" if final else "XP1"
    vx, vl0, vw, vp = 4, 5, 8, 15
    X, ACC1, Z, vo, vmk, CC = 16, 176, 232, 248, 249, 250
    GR = Z
    vdc, ve = 256 + 248, 10
    WR, NW, AHEAD = 256, 12, 8
    ACC2, EACC = 16, 224
    DIAG = (4, 6, 30, 70)
    sRB, sMM, sFL, sCNT = 96, 97, 98, 99
    SRDF = SRD5

    def preg(t, p):
        base = 256 + 48 + 20 * t if t < 10 else (176 + 20 * (t - 10) if t < 12 else 96 + 20 * (t - 12))
        return base + 4 * p

    def qreg(t, q):
        k = t % MC.qdepth
        return (256 + 16 * k if k < 3 else 136 + 16 * (k - 3)) + 4 * q

    a(f"s_and_b32 s{sA}, s{sT}, 7")
    a(f"s_lshr_b32 s{sB}, s{sA}, 1")
    a(f"s_lshl_b32 s{sB}, s{sB}, 2")
    a(f"s_bfe_u32 s{sRB}, s{sT}, 0x20003")
    a(f"s_add_u32 s{sRB}, s{sRB}, s{sB}")
    a(f"s_and_b32 s{sA}, s{sA}, 1")
    a(f"s_lshl_b32 s{sA}, s{sA}, 3")
    a(f"s_lshr_b32 s{sMM}, s{sT}, 5")
    a(f"s_add_u32 s{sMM}, s{sMM}, s{sA}")
    a(f"s_mul_i32 s{sD}, s{sMM}, 27")
    a(f"s_lshr_b32 s{sD}, s{sD}, 2")
    a(f"s_lshl_b32 s{sC}, s{sRB}, 7")
    a(f"s_lshl_b32 s{sA}, s{sW}, 5")
    a(f"s_add_u32 s{sC}, s{sC}, s{sA}")
    a(f"v_lshlrev_b32 v{vx}, 15, v{vG}")
    a(f"v_lshl_add_u32 v{vx}, v{vI}, 4, v{vx}")
    a(f"s_lshl_b32 s{sA}, s{sC}, 3")
    a(f"v_add_u32 v{vx}, s{sA}, v{vx}")
    a(f"v_mul_u32_u24 v{vl0}, {FF}, v{vG}")
    a(f"v_add_lshl_u32 v{vl0}, v{vl0}, v{vI}, 4")
    a(f"s_lshl_b32 s{sB}, s{sD}, 8")
    a(f"s_add_u32 s{sB}, s{sB}, {12 * W1F_STR}")
    for jj in range(7):
        a(f"s_add_u32 s{sA}, s{sW}, {4 * jj}")
        a(f"s_mul_i32 s{sE}, s{sA}, 37")
        a(f"s_lshr_b32 s{sE}, s{sE}, 8")
        a(f"s_mul_i32 s{sE}, s{sE}, {4 * W1F_STR + 1792}")
        a(f"s_lshl_b32 s{sA}, s{sA}, 8")
        a(f"s_sub_u32 s{sA}, s{sA}, s{sE}")
        a(f"s_add_u32 s{sA}, s{sA}, s{sB}")
        a(f"v_add_u32 v{vw + jj}, s{sA}, v{vl0}")
    a(f"s_lshl_b32 s{sE}, s{sW}, 10")
    a(f"v_lshlrev_b32 v{vl0}, 4, v{vL}")
    a("s_waitcnt lgkmcnt(0)")
    srd_ws(a, SRD0, "W1F", W1F_SIZE)
    srd_ws(a, SRD1, src, XP_SIZE)

    def xr(t, st):
        return X + t * 8 + st * 4

    def acc(ft, st):
        return ACC1 + (ft * 2 + st) * 4

    st_ = {"wc": None, "p": None, "e": None}
    done = set()

    def w_load(j):
        def f():
            c, jj = divmod(j, 7)
            if st_["wc"] != c:
                a(f"s_mov_b32 s{sOP}, {(4 - c) * 16 * W1F_STR}")
                st_["wc"] = c
            a(f"s_add_u32 m0, s{sE}, {j * 4096}")
            a(f"buffer_load_dwordx4 v{vw + jj}, s[{SRD0}:{SRD0 + 3}], s{sOP} offen lds", tag=f"w{j}")
            done.add(("w", j))
        return f

    def x_load(t, h):
        def f():
            a(f"s_mov_b32 s{sOQ}, {(8 * (19 - t) + h) * XP_STR}")
            a(f"buffer_load_dwordx4 {V(xr(t, h), 4)}, v{vx}, s[{SRD1}:{SRD1 + 3}], s{sOQ} offen")
            done.add(("x", t, h))
        return f

    def e_load(j):
        def f():
            c, jj = divmod(j, 3)
            if st_["e"] != c:
                a(f"s_mov_b32 s{sOP}, {(4 - c) * 16 * KB_STR}")
                st_["e"] = c
            a(f"s_add_u32 m0, s{sE}, {j * 4096}")
            a(f"buffer_load_dwordx4 v{ve + jj}, s[{SRD4}:{SRD4 + 3}], s{sOP} offen lds", tag="e")
            done.add(("e", j))
        return f

    def p_load(t, p):
        def f():
            if st_["p"] != t:
                a(f"s_mov_b32 s{sF}, {t * 4 * KB_STR}")
                st_["p"] = t
            a(f"buffer_load_dwordx4 {R(preg(t, p), 4)}, v{vp}, s[{SRD2}:{SRD2 + 3}], s{sF} offen offset:{p * 256}")
        return f

    xorder = list(range(13)) + [19] + list(range(13, 19))
    g1 = []
    jn = 0
    for t in range(20):
        if t == 0:
            g1 += [x_load(0, 0), x_load(0, 1)]
        while jn <= (7 * t + 6) // 4:
            g1.append(w_load(jn))
            jn += 1
        if t + 1 < 20:
            g1 += [x_load(xorder[t + 1], 0), x_load(xorder[t + 1], 1)]
    queue = [(f, 0) for f in g1]
    if final:
        queue += [("esetup", 12)] + [(e_load(j), 12) for j in range(15)]
    queue += [(p_load(t, p), 0) for t in range(10) for p in range(5)]
    late = [(t, p) for t in range(10, 14) for p in range(5)]

    def esetup():
        a(f"s_mul_i32 s{sB}, s{sMM}, 5")
        a(f"s_lshr_b32 s{sB}, s{sB}, 1")
        a(f"s_lshl_b32 s{sB}, s{sB}, 8")
        a(f"s_add_u32 s{sB}, s{sB}, {12 * KB_STR}")
        a(f"v_mul_u32_u24 v{ve + 3}, {DM}, v{vG}")
        a(f"v_add_lshl_u32 v{ve + 3}, v{ve + 3}, v{vI}, 4")
        for jj in range(3):
            a(f"s_add_u32 s{sA}, s{sW}, {4 * jj}")
            a(f"s_mul_i32 s{sK0}, s{sA}, 86")
            a(f"s_lshr_b32 s{sK0}, s{sK0}, 8")
            a(f"s_mul_i32 s{sK0}, s{sK0}, {4 * KB_STR + 768}")
            a(f"s_lshl_b32 s{sA}, s{sA}, 8")
            a(f"s_sub_u32 s{sA}, s{sA}, s{sK0}")
            a(f"s_add_u32 s{sA}, s{sA}, s{sB}")
            a(f"v_add_u32 v{ve + jj}, s{sA}, v{ve + 3}")

    cur = {"bar": -1}

    def issue(n):
        while n > 0 and queue and queue[0][1] <= cur["bar"] + (queue[0][1] == 0):
            f, _ = queue.pop(0)
            if f == "esetup":
                esetup()
                continue
            f()
            n -= 1

    def need(key):
        while key not in done:
            n0 = len(queue)
            issue(1)
            assert len(queue) < n0, key

    issue(MC.look)

    a(f"v_add_u32 v{vl0 + 1}, 0x10000, v{vl0}")
    a(f"v_add_u32 v{vl0 + 2}, 0x20000, v{vl0}")
    srd_ws(a, SRD2, "W2T" if final else "WA2", W2T_SIZE if final else WA2_SIZE)
    srd_ws(a, SRD3, "H", H_SIZE)
    srd_ws(a, SRDF, "FLAG", FLAG_SIZE)
    if final:
        srd_table(a, SRD4, "ft2")
    a(f"v_lshrrev_b32 v{vo}, 1, v{vG}")
    a(f"v_mul_u32_u24 v{vo}, {H_STR}, v{vo}")
    a(f"v_lshl_add_u32 v{vo}, v{vI}, 5, v{vo}")
    a(f"v_and_b32 v{vmk}, 1, v{vG}")
    a(f"v_lshl_add_u32 v{vo}, v{vmk}, 4, v{vo}")
    a(f"s_mul_i32 s{sA}, s{sD}, {2 * H_STR}")
    a(f"s_lshl_b32 s{sB}, s{sC}, 4")
    a(f"s_add_u32 s{sA}, s{sA}, s{sB}")
    a(f"v_add_u32 v{vo}, s{sA}, v{vo}")
    a(f"v_cmp_eq_u32 vcc, 0, v{vG}")
    a(f"v_mov_b32 v{vmk}, 0xffff0000")
    a(f"v_cndmask_b32 v{vmk}, 0, v{vmk}, vcc")
    a(f"s_lshr_b32 s{sA}, s{sMM}, 3")
    a(f"s_lshl_b32 s{sA}, s{sA}, 2")
    a(f"s_and_b32 s{sD}, s{sMM}, 3")
    a(f"s_add_u32 s{sD}, s{sD}, s{sA}")
    p_addr(a, vp, sD, 14)
    for r in range(4):
        m = 0x1000010000100001 << r
        a(f"s_mov_b32 s{DIAG[r]}, {m & 0xffffffff:#x}")
        a(f"s_mov_b32 s{DIAG[r] + 1}, {m >> 32:#x}")
    a(f"s_lshl_b32 s{sFL}, s{sRB}, 7")
    a(f"s_add_u32 s{sFL}, s{sFL}, {2048 if final else 0}")
    mark(a, 1)

    def wreg(n):
        return WR + (n % NW) * 4

    bars = list(MC.bars) + [20]
    rd_ = {"n": 0}

    def lds_read(dst, off):
        a(f"ds_read_b128 {R(dst, 4)}, v{vl0 + (off >> 16)} offset:{off & 0xffff}")

    def rd_upto(hi):
        while rd_["n"] < min(hi, 140):
            n = rd_["n"]
            if n % 7 == 0 and n // 7 in bars:
                t_end = bars[bars.index(n // 7) + 1]
                need(("w", (7 * t_end - 1) // 4))
                a.wait_tag(f"w{(7 * t_end - 1) // 4}")
                a("s_barrier")
                cur["bar"] = n // 7
            lds_read(wreg(n), n * 1024)
            rd_["n"] += 1

    def prep_x(t, first):
        need(("x", t, 1))
        a(f"v_swap_b32 v{xr(t, 0) + 2}, v{xr(t, 1)}")
        a(f"v_swap_b32 v{xr(t, 0) + 3}, v{xr(t, 1) + 1}")
        if t == 19:
            for st in range(2):
                if final:
                    a(f"v_accvgpr_write_b32 {R(vdc + st)}, v{xr(t, st)}")
                a(f"v_bfi_b32 v{xr(t, st)}, v{vmk}, 0, v{xr(t, st)}")
        return [lambda st=st: mfma(a, GR + 4 * st, xr(t, st), xr(t, st), None if first else GR + 4 * st)
                for st in range(2)]

    T = Z + 8

    def stats_ops():
        ops = []
        for r in range(4):
            for st in range(2):
                prev = "0" if r == 0 else f"v{T + 2 * st}"
                ops.append(f"v_cndmask_b32_e64 v{T + 2 * st}, {prev}, v{GR + 4 * st + r}, s[{DIAG[r]}:{DIAG[r] + 1}]")
        for op in ("v_permlane32_swap_b32", "v_permlane16_swap_b32"):
            ops += [f"v_mov_b32 v{T + 2 * st + 1}, v{T + 2 * st}" for st in range(2)]
            ops += [f"{op} v{T + 2 * st}, v{T + 2 * st + 1}" for st in range(2)]
            ops += [f"v_add_f32 v{T + 2 * st}, v{T + 2 * st}, v{T + 2 * st + 1}" for st in range(2)]
        ops.append(f"v_mov_b32 v{T + 4}, {f32bits(EPS * EPS):#x}")
        ops += [f"v_fmamk_f32 v{T + 2 * st}, v{T + 2 * st}, {f32bits((1 + EPS) / DM):#x}, v{T + 4}" for st in range(2)]
        ops += [f"v_rsq_f32 v{T + 2 * st + 1}, v{T + 2 * st}" for st in range(2)]
        ops += [f"v_mul_f32 v{CC + 4 + st}, v{T + 2 * st}, v{T + 2 * st + 1}" for st in range(2)]
        ops += [f"v_cvt_pk_bf16_f32 v{T + 2 * st}, v{CC + 4 + st}, v{CC + 4 + st}" for st in range(2)]
        ops += [f"v_bfi_b32 v{xr(19, st)}, v{vmk}, v{T + 2 * st}, v{xr(19, st)}" for st in range(2)]
        ops += [f"v_mul_f32 v{CC + st}, {f32bits(GELU_K0):#x}, v{T + 2 * st + 1}" for st in range(2)]
        ops += [f"v_mul_f32 v{T + 2 * st}, v{T + 2 * st + 1}, v{T + 2 * st + 1}" for st in range(2)]
        ops += [f"v_mul_f32 v{T + 2 * st}, {f32bits(0.044715):#x}, v{T + 2 * st}" for st in range(2)]
        ops += [f"v_mul_f32 v{CC + 2 + st}, v{CC + st}, v{T + 2 * st}" for st in range(2)]
        return ops

    rd_upto(AHEAD)
    for g in prep_x(0, True):
        g()
    gram_at = {t: ([t + 1] if t + 1 <= 18 else []) for t in range(20)}
    gram_at[14].append(19)
    sops = []
    for t in range(20):
        pend = []
        if t == 18:
            sops = stats_ops()
        for ft in range(7):
            n = 7 * t + ft
            rd_upto(n + AHEAD + 1)
            if ft in (3, 5) and len(gram_at[t]) > (ft - 3) // 2:
                pend = prep_x(gram_at[t][(ft - 3) // 2], False)
            for st in range(2):
                mfma(a, acc(ft, st), wreg(n), xr(t, st), None if t == 0 else acc(ft, st))
                for _ in range(3):
                    if sops and (ft, st) != (0, 0):
                        a(sops.pop(0))
            for g in pend:
                g()
            pend = []
            if ft < MC.per_step * 2 and ft % 2 == 0 or (MC.per_step > 4 and ft % 2 == 1 and ft // 2 < MC.per_step - 4):
                issue(1)
        while sops:
            a(sops.pop(0))
    mark(a, 2)

    if not final:
        queue.extend((p_load(t, p), 0) for t, p in late[10:])
    for ft in range(7):
        Zs = Z + 8 * (ft & 1)
        prs = [(acc(ft, st) + h, Zs + st * 4 + h, st) for st in range(2) for h in (0, 2)]

        def sel(st, pos):
            lo = [0, 0, 0]
            hi = [1, 1, 1]
            for k in pos:
                lo[k] = hi[k] = st
            return f"op_sel:[{lo[0]},{lo[1]},{lo[2]}] op_sel_hi:[{hi[0]},{hi[1]},{hi[2]}]"

        for x, z, st in prs:
            a(f"v_pk_mul_f32 {V(z, 2)}, {V(x, 2)}, {V(x, 2)}")
        for x, z, st in prs:
            a(f"v_pk_fma_f32 {V(z, 2)}, {V(z, 2)}, {V(CC + 2, 2)}, {V(CC, 2)} {sel(st, (1, 2))}")
        for x, z, st in prs:
            a(f"v_pk_mul_f32 {V(z, 2)}, {V(z, 2)}, {V(x, 2)}")
        if MC.gelu_loads > 0:
            issue(1)
        for k in range(8):
            a(f"v_exp_f32 v{Zs + k}, v{Zs + k}")
        for x, z, st in prs:
            a(f"v_pk_fma_f32 {V(z, 2)}, {V(z, 2)}, {V(CC + 4, 2)}, {V(CC + 4, 2)} {sel(st, (1, 2))}")
        if MC.gelu_loads > 1:
            issue(1)
        for k in range(8):
            a(f"v_rcp_f32 v{Zs + k}, v{Zs + k}")
        for x, z, st in prs:
            a(f"v_pk_mul_f32 {V(z, 2)}, {V(z, 2)}, {V(x, 2)}")
        for k in range(4):
            a(f"v_cvt_pk_bf16_f32 v{Zs + k}, v{Zs + 2 * k}, v{Zs + 2 * k + 1}")
        a(f"s_mov_b32 s{sOQ}, {ft * 2 * H_STR}")
        a(f"v_permlane16_swap_b32 v{Zs}, v{Zs + 2}")
        a(f"v_permlane16_swap_b32 v{Zs + 1}, v{Zs + 3}")
        a(f"buffer_store_dwordx4 {V(Zs, 4)}, v{vo}, s[{SRD3}:{SRD3 + 3}], s{sOQ} offen sc1", tag="h")
        if MC.gelu_loads > 2 and ft < 6:
            issue(MC.gelu_loads - 2)
    mark(a, 3)
    queue.extend((p_load(t, p), 0) for t, p in late[:10])

    vq, vred, vo2, vs, vone, vpl, vfl = 216, 220, 4, 9, 13, 14, 8
    RES, BIA, TMP = 224, 234, 244

    def signal(tag, off):
        a.wait_tag(tag)
        a("s_barrier")
        a(f"buffer_store_dword v{vone}, v{vpl}, s[{SRDF}:{SRDF + 3}], s{sFL} offen offset:{off} sc1")

    if final:
        need(("e", 14))
    a(f"v_mov_b32 v{vone}, 1")
    a(f"v_lshlrev_b32 v{vpl}, 20, v0")
    a(f"s_lshl_b32 s{sA}, s{sMM}, 2")
    a(f"v_add_u32 v{vpl}, s{sA}, v{vpl}")
    issue(MC.after_store)
    signal("h", 0)
    mark(a, 4)

    if final:
        for st in range(2):
            a(f"v_accvgpr_read_b32 v{xr(19, st)}, {R(vdc + st)}")
        a.wait_tag("e")
        a("s_barrier")
        srd_ws(a, SRD4, "X3", XP_SIZE)
        a(f"s_mul_i32 s{sA}, s{sMM}, 5")
        a(f"s_lshr_b32 s{sA}, s{sA}, 1")
        a(f"s_mul_i32 s{sA}, s{sA}, {4 * XP_STR}")
        a(f"s_lshl_b32 s{sB}, s{sC}, 3")
        a(f"s_add_u32 s{sA}, s{sA}, s{sB}")
        a(f"v_lshlrev_b32 v{ve}, 14, v{vG}")
        a(f"v_lshl_add_u32 v{ve}, v{vI}, 4, v{ve}")
        a(f"v_add_u32 v{ve}, s{sA}, v{ve}")
        nr = 0
        for n in range(60):
            t, et = divmod(n, 3)
            while nr < min(60, n + AHEAD + 1):
                lds_read(wreg(nr), nr * 1024)
                nr += 1
            for st in range(2):
                d = EACC + (et * 2 + st) * 4
                mfma(a, d, wreg(n), xr(t, st), None if t == 0 else d)
            if n % 3 == 1:
                issue(1)
        queue.extend((p_load(t, p), 0) for t, p in late[10:])
        for et in range(3):
            d = EACC + et * 8
            for k in range(4):
                a(f"v_cvt_pk_bf16_f32 v{d + k}, v{d + 2 * k}, v{d + 2 * k + 1}")
            a(f"s_mov_b32 s{sOQ}, {et * 4 * XP_STR}")
            a(f"buffer_store_dwordx4 {V(d, 4)}, v{ve}, s[{SRD4}:{SRD4 + 3}], s{sOQ} offen sc1", tag="x3")

    a(f"s_bfe_u32 s{sA}, s{sMM}, 0x10002")
    a(f"s_lshl_b32 s{sA}, s{sA}, 6")
    a(f"s_lshl_b32 s{sC}, s{sRB}, 7")
    a(f"s_add_u32 s{sC}, s{sC}, s{sA}")
    a(f"v_lshlrev_b32 v{vfl}, 2, v{vI}")

    def poll_issue(reg, off):
        a(f"buffer_load_dword v{reg}, v{vfl}, s[{SRDF}:{SRDF + 3}], s{sFL} offen offset:{off} sc1")

    def poll_check(reg, off, lab):
        a(f"v_cmp_ne_u32 vcc, 1, v{reg}")
        a(f"s_mov_b32 s{sCNT}, 0")
        a(f"s_cbranch_vccnz {lab}_spin")
        a.label(f"{lab}_ok", keep=True)

        def spin():
            a.label(f"{lab}_spin")
            poll_issue(reg, off)
            a(f"s_add_u32 s{sCNT}, s{sCNT}, 1")
            a(f"s_cmp_ge_u32 s{sCNT}, {SPIN_MAX}")
            a("s_waitcnt vmcnt(0)")
            a(f"s_cbranch_scc1 {lab}_ok")
            a(f"v_cmp_ne_u32 vcc, 1, v{reg}")
            a(f"s_cbranch_vccnz {lab}_spin")
            a(f"s_branch {lab}_ok")
        a.tail.append(spin)

    issue(max(0, len(queue) - MC.poll_lead))
    poll_issue(vmk, 0)
    a(f"v_mul_u32_u24 v{vq}, {H_STR}, v{vG}")
    a(f"v_lshl_add_u32 v{vq}, v{vI}, 4, v{vq}")
    a(f"s_mul_i32 s{sA}, s{sW}, {14 * 4 * H_STR}")
    a(f"s_lshl_b32 s{sB}, s{sC}, 4")
    a(f"s_add_u32 s{sA}, s{sA}, s{sB}")
    for ql in (3, 2, 1, 0):
        a(f"s_xor_b32 s{sB}, s{sW}, {ql}")
        a(f"s_lshl_b32 s{sB}, s{sB}, 8")
        a(f"s_add_u32 s{sB}, s{sB}, s{sA}")
        a(f"v_add_u32 v{vq + ql}, s{sB}, v{vq}")
    issue(1000)
    if final:
        signal("x3", 2048)
    a(f"s_lshl_b32 s{sE}, s{sW}, 4")
    a(f"s_add_u32 s{sE}, s{sE}, s{sC}")
    a(f"s_mul_i32 s{sA}, s{sD}, {20 * XP_STR}")
    a(f"s_lshl_b32 s{sB}, s{sE}, 3")
    a(f"s_add_u32 s{sA}, s{sA}, s{sB}")
    a(f"v_lshlrev_b32 v{vo2}, 14, v{vG}")
    a(f"v_lshl_add_u32 v{vo2}, v{vI}, 3, v{vo2}")
    a(f"v_add_u32 v{vo2}, s{sA}, v{vo2}")
    vw3 = [vred, vred + 1, vred + 2]
    vr = vred + 3
    for ql in (1, 2, 3):
        a(f"s_xor_b32 s{sA}, s{sW}, {ql}")
        a(f"s_mul_i32 s{sA}, s{sA}, 15360")
        a(f"s_add_u32 s{sA}, s{sA}, {(ql - 1) * 5120}")
        a(f"v_add_u32 v{vw3[ql - 1]}, s{sA}, v{vl0}")
    a(f"s_mul_i32 s{sA}, s{sW}, 15360")
    a(f"v_add_u32 v{vr}, s{sA}, v{vl0}")
    poll_check(vmk, 0, f"{name}_pa")
    mark(a, 5)

    qs = {"t": None}

    def q_load(t, q):
        if qs["t"] != t:
            a(f"s_mov_b32 s{sOQ}, {t * 4 * H_STR}")
            qs["t"] = t
        a(f"buffer_load_dwordx4 {R(qreg(t, q), 4)}, v{vq + q}, s[{SRD3}:{SRD3 + 3}], s{sOQ} offen sc1")

    for t in range(MC.qdepth):
        for q in range(4):
            q_load(t, q)

    vout, vdcm = 11, 12
    if final:
        srd(a, SRD0, P_OUT, 0, SEQ * DM * 2)
        srd(a, SRD1, P_B2, 0, DM * 2)
        a(f"s_mul_i32 s{sA}, s{sD}, 160")
        a(f"v_lshlrev_b32 v{vs}, 3, v{vG}")
        a(f"v_add_u32 v{vs}, s{sA}, v{vs}")
        a(f"v_mul_u32_u24 v{vout}, 1280, v{vI}")
        a(f"v_add_u32 v{vout}, v{vout}, v{vs}")
        a(f"s_mul_i32 s{sA}, s{sE}, 1280")
        a(f"v_add_u32 v{vout}, s{sA}, v{vout}")
    else:
        srd_ws(a, SRD0, "XP2", XP_SIZE)
        srd_ws(a, SRD4, "SS2", SS_SIZE)
        a(f"s_lshl_b32 s{sA}, s{sW}, 3")
        a(f"s_lshr_b32 s{sB}, s{sC}, 8")
        a(f"s_add_u32 s{sA}, s{sA}, s{sB}")
        a(f"s_lshl_b32 s{sA}, s{sA}, 8")
        a(f"s_bfe_u32 s{sB}, s{sC}, 0x20006")
        a(f"s_lshl2_add_u32 s{sA}, s{sB}, s{sA}")
        a(f"v_lshlrev_b32 v{vs}, 4, v{vI}")
        a(f"v_add_u32 v{vs}, s{sA}, v{vs}")
        a(f"v_lshl_add_u32 v{vs}, v{vG}, 20, v{vs}")
        a(f"s_cmp_eq_u32 s{sW}, 3")
        a(f"s_cselect_b32 s{sA}, 0x3f80, 0")
        a(f"v_mov_b32 v{vone}, s{sA}")
        a(f"v_cmp_eq_u32 vcc, 0, v{vG}")
        a(f"v_cndmask_b32 v{vone}, 0, v{vone}, vcc")
        a(f"s_cmp_eq_u32 s{sD}, 0")
        a(f"s_cselect_b32 s{sA}, 0, 1.0")
        a(f"v_mov_b32 v{vdcm}, s{sA}")
        a(f"v_cndmask_b32 v{vdcm}, 1.0, v{vdcm}, vcc")

    def accr(p, q):
        return ACC2 + (q * 5 + p) * 4

    def wr(q, p):
        a(f"ds_write_b128 v{vw3[q - 1]}, {R(accr(p, q), 4)} offset:{p * 1024}")

    def res_loads(srd_, flags):
        for p in range(5):
            a(f"s_mov_b32 s{sF}, {p * 4 * XP_STR}")
            a(f"buffer_load_dwordx2 {V(RES + 2 * p, 2)}, v{vo2}, s[{srd_}:{srd_ + 3}], s{sF} offen{flags}")

    NS = 14
    for t in range(NS):
        last = t == NS - 1
        if t == 1:
            mark(a, 6)
        if final and t == 4:
            poll_issue(vmk, 2048)
            for p in range(5):
                a(f"buffer_load_dwordx2 {V(BIA + 2 * p, 2)}, v{vs}, s[{SRD1}:{SRD1 + 3}], 0 offen offset:{p * 32}")
        if final and t == NS - MC.qdepth:
            poll_check(vmk, 2048, f"{name}_pb")
            res_loads(SRD4, " sc1")
        if not final and t == NS - MC.qdepth:
            res_loads(SRD1, "")
        if t == 12 and not final:
            for q in range(4):
                r = qreg(t, q)
                if r >= 256:
                    a(f"v_accvgpr_read_b32 v{TMP + q}, {R(r)}")
                    a(f"v_or_b32 v{TMP + q}, v{TMP + q}, v{vone}")
                    a(f"v_accvgpr_write_b32 {R(r)}, v{TMP + q}")
                else:
                    a(f"v_or_b32 v{r}, v{r}, v{vone}")
        qorder = (1, 2, 3, 0) if last else (0, 1, 2, 3)
        for n, q in enumerate(qorder):
            for p in range(5):
                mfma(a, accr(p, q), preg(t, p), qreg(t, q), None if t == 0 else accr(p, q))
                if last and n >= 2:
                    wr(qorder[n - 2], p)
            if t + MC.qdepth < NS:
                q_load(t + MC.qdepth, q)
        if last:
            for p in range(5):
                wr(3, p)
    mark(a, 7)
    a("s_waitcnt lgkmcnt(0)")
    a("s_barrier")
    mark(a, 8)
    for p in range(5):
        for s_ in range(3):
            a(f"ds_read_b128 {R(accr(p, s_ + 1), 4)}, v{vr} offset:{s_ * 5120 + p * 1024}")
    a(f"s_mov_b32 s{sK2}, 0xffff0000")
    E = 96
    for p in range(5):
        e = E + 8 * p
        for h in range(2):
            a(f"v_lshlrev_b32 v{e + 2 * h}, 16, v{RES + 2 * p + h}")
            a(f"v_and_b32 v{e + 2 * h + 1}, s{sK2}, v{RES + 2 * p + h}")
            if final:
                a(f"v_lshlrev_b32 v{e + 4 + 2 * h}, 16, v{BIA + 2 * p + h}")
                a(f"v_and_b32 v{e + 4 + 2 * h + 1}, s{sK2}, v{BIA + 2 * p + h}")
        for h in (0, 2):
            d = accr(p, 0) + h
            a(f"v_pk_add_f32 {V(d, 2)}, {V(d, 2)}, {V(e + h, 2)}")
            if final:
                a(f"v_pk_add_f32 {V(d, 2)}, {V(d, 2)}, {V(e + 4 + h, 2)}")
    if not final:
        a(f"v_mov_b32 v{TMP + 2}, 0")
        a(f"v_mov_b32 v{TMP + 3}, 0")
    for p in range(5):
        r = accr(p, 0)
        for h in (0, 2):
            a(f"v_pk_add_f32 {V(accr(p, 1) + h, 2)}, {V(accr(p, 1) + h, 2)}, {V(accr(p, 2) + h, 2)}")
            a(f"v_pk_add_f32 {V(r + h, 2)}, {V(r + h, 2)}, {V(accr(p, 3) + h, 2)}")
        for h in (0, 2):
            a(f"v_pk_add_f32 {V(r + h, 2)}, {V(r + h, 2)}, {V(accr(p, 1) + h, 2)}")
        a(f"v_cvt_pk_bf16_f32 v{r}, v{r}, v{r + 1}")
        a(f"v_cvt_pk_bf16_f32 v{r + 1}, v{r + 2}, v{r + 3}")
        if final:
            a(f"buffer_store_dwordx2 {V(r, 2)}, v{vout}, s[{SRD0}:{SRD0 + 3}], 0 offen offset:{p * 32}")
        else:
            a(f"s_mov_b32 s{sOP}, {p * 4 * XP_STR}")
            a(f"buffer_store_dwordx2 {V(r, 2)}, v{vo2}, s[{SRD0}:{SRD0 + 3}], s{sOP} offen")
            if p == 0:
                a(f"v_lshlrev_b32 v{TMP}, 16, v{r}")
                a(f"v_and_b32 v{TMP + 1}, s{sK2}, v{r}")
                a(f"v_mul_f32 v{TMP + 1}, v{TMP + 1}, v{vdcm}")
                a(f"v_mul_f32 v{TMP + 2}, v{TMP}, v{TMP}")
                a(f"v_fmac_f32 v{TMP + 2}, v{TMP + 1}, v{TMP + 1}")
            else:
                a(f"v_dot2c_f32_bf16 v{TMP + 2}, v{r}, v{r}")
            a(f"v_dot2c_f32_bf16 v{TMP + 3}, v{r + 1}, v{r + 1}")
    if not final:
        s = TMP + 2
        a(f"v_add_f32 v{s}, v{s}, v{s + 1}")
        for op in ("v_permlane32_swap_b32", "v_permlane16_swap_b32"):
            a(f"v_mov_b32 v{s + 1}, v{s}")
            a(f"{op} v{s}, v{s + 1}")
            a(f"v_add_f32 v{s}, v{s}, v{s + 1}")
        a(f"buffer_atomic_add_f32 v{s}, v{vs}, s[{SRD4}:{SRD4 + 3}], 0 offen")
    return 140 * 1024


def plan():
    return [
        ("p0_kernel", [(256, lambda a: role_xhat0(a, 4)), (80, role_wc), (64, role_stats)]),
        ("c1_kernel", [(320, lambda a: role_col(a, "XP0", "SS0", "XP1")), (216, lambda a: role_w1f(a, 4)),
                       (224, lambda a: role_w2f(a, 4, 112))]),
        ("m1_kernel", [(256, lambda a: role_mlp(a, False, "m1"))]),
        ("c2_kernel", [(320, lambda a: role_col(a, "XP2", "SS2", "XP3")), (135, role_w2t)]),
        ("m2_kernel", [(256, lambda a: role_mlp(a, True, "m2"))]),
    ]


if __name__ == "__main__":
    Cfg.dcbias = 1
    for opt in sys.argv[2:]:
        if opt == "stamp":
            Cfg.stamp = True
        elif opt == "clk":
            Cfg.stamp = Cfg.clk = True
        else:
            k, v = opt.split("=")
            tgt = MC if hasattr(MC, k) else Cfg
            setattr(tgt, k, eval(v))
    open(sys.argv[1], "w").write(generate(plan()))
```

```python
import sys
import struct
import numpy as np

sys.path.insert(0, "gen")
from asmlib import Asm, Inst, R, V, A, S
import model

SEQ, DM, FF = 2048, 640, 1728

XP_STR = SEQ * 8
XP_SIZE = 160 * XP_STR
H_STR = SEQ * 16
H_SIZE = 216 * H_STR
W1F_STR = FF * 16
W1F_SIZE = 80 * W1F_STR
KB_STR = DM * 16
WA2_SIZE = 224 * KB_STR
W2T_SIZE = 216 * KB_STR
FT_SIZE = 80 * KB_STR
WC_SIZE = 320 * 8192
SS_SIZE = 8192
FLAG_SIZE = 8192

WS = {}
_off = 0
for _name, _size in (("XP0", XP_SIZE), ("XP1", XP_SIZE), ("XP2", XP_SIZE), ("XP3", XP_SIZE), ("H", H_SIZE),
                     ("W1F", W1F_SIZE), ("WA2", WA2_SIZE), ("W2T", W2T_SIZE), ("WC", WC_SIZE),
                     ("SS0", SS_SIZE), ("SS2", SS_SIZE), ("FLAG", FLAG_SIZE), ("X3", XP_SIZE), ("STAMP", 1 << 21)):
    WS[_name] = _off
    _off += (_size + 4095) // 4096 * 4096
WS_END = _off

P_X, P_WR, P_WI, P_W1, P_B1, P_W2, P_B2, P_OUT, P_WS = 8, 10, 12, 16, 18, 20, 22, 24, 28
SRD0, SRD1, SRD2, SRD3, SRD4, SRD5 = 32, 36, 40, 44, 48, 52
sW, sT, sA, sB, sC, sD, sE, sF = 56, 57, 58, 59, 60, 61, 62, 63
sOP, sOQ = 64, 65
sK0, sK1, sK2, sK3 = 66, 67, 68, 69
sM0, sM1 = 70, 71
sST = 72
vI, vG, vL = 1, 2, 3


def f32bits(x):
    return struct.unpack("<I", struct.pack("<f", x))[0]


def srd(a, dst, base, off, size):
    if off:
        a(f"s_add_u32 s{dst}, s{base}, {off}")
        a(f"s_addc_u32 s{dst + 1}, s{base + 1}, 0")
        a(f"s_and_b32 s{dst + 1}, s{dst + 1}, 0xffff")
    else:
        a(f"s_mov_b32 s{dst}, s{base}")
        a(f"s_and_b32 s{dst + 1}, s{base + 1}, 0xffff")
    a(f"s_mov_b32 s{dst + 2}, {size}")
    a(f"s_mov_b32 s{dst + 3}, 0x20000")


def srd_ws(a, dst, name, size):
    srd(a, dst, P_WS, WS[name], size)


def srd_table(a, dst, sym):
    a(f"s_getpc_b64 s[{dst}:{dst + 1}]")
    a(f"s_add_u32 s{dst}, s{dst}, {sym}@rel32@lo+4")
    a(f"s_addc_u32 s{dst + 1}, s{dst + 1}, {sym}@rel32@hi+12")
    a(f"s_and_b32 s{dst + 1}, s{dst + 1}, 0xffff")
    a(f"s_mov_b32 s{dst + 2}, {FT_SIZE}")
    a(f"s_mov_b32 s{dst + 3}, 0x20000")


class Cfg:
    stamp = False
    clk = False
    nodot = 0
    g2depth = 7
    g2lay = 0
    plan = 0
    pdepth = 4
    st_flags = ""
    dcbias = 0
    rho = 0


def mark(a, n):
    if Cfg.stamp:
        op = "s_memtime" if Cfg.clk and n < 11 else "s_memrealtime"
        a(f"{op} s[{sST + 2 * n}:{sST + 2 * n + 1}]")


def mfma(a, d, x, y, c):
    a(f"v_mfma_f32_16x16x32_bf16 {R(d, 4)}, {R(x, 4)}, {R(y, 4)}, {'0' if c is None else R(c, 4)}")


def gemm_ks(a, nsteps, depth, acc, ring, vred, p_is_a, issue_p, issue_q, q_regs=16, prep_q=None,
            after_prologue=None, step_hook=None):
    stage = 20 + q_regs

    def accr(p, q):
        return acc + (q * 5 + p) * 4

    def preg(t, p):
        return ring + (t % depth) * stage + p * 4

    def qbase(t):
        return ring + (t % depth) * stage + 20

    def load_step(t):
        ops = []
        for q in range(4):
            ops.append(("q", q))
        for p in range(5):
            ops.append(("p", p))
        order = [ops[0], ops[4], ops[5], ops[1], ops[6], ops[7], ops[8], ops[2], ops[3]]
        for kind, j in order:
            if kind == "p":
                issue_p(t, j, preg(t, j))
            else:
                issue_q(t, j, qbase(t))

    for t in range(min(depth, nsteps)):
        load_step(t)
    if after_prologue:
        after_prologue()

    vw = [vred, vred + 1, vred + 2]
    vr = vred + 3
    a(f"v_lshlrev_b32 v{vr}, 4, v{vL}")
    for ql in (1, 2, 3):
        a(f"s_xor_b32 s{sA}, s{sW}, {ql}")
        a(f"s_mul_i32 s{sA}, s{sA}, 15360")
        a(f"s_add_u32 s{sA}, s{sA}, {(ql - 1) * 5120}")
        a(f"v_add_u32 v{vw[ql - 1]}, s{sA}, v{vr}")
    a(f"s_mul_i32 s{sA}, s{sW}, 15360")
    a(f"v_add_u32 v{vr}, s{sA}, v{vr}")

    def wr(q, p):
        a(f"ds_write_b128 v{vw[q - 1]}, {R(accr(p, q), 4)} offset:{p * 1024}")

    mark(a, 1)
    for t in range(nsteps):
        last = t == nsteps - 1
        if t == 1:
            mark(a, 2)
        if t == depth:
            mark(a, 3)
        if step_hook:
            step_hook(t, qbase(t))
        if prep_q:
            qf = prep_q(t, qbase(t))
        else:
            qf = [qbase(t) + q * 4 for q in range(4)]
        qorder = (1, 2, 3, 0) if last else (0, 1, 2, 3)
        nxt = t + depth
        for n, q in enumerate(qorder):
            for p in range(5):
                c = None if t == 0 else accr(p, q)
                if p_is_a:
                    mfma(a, accr(p, q), preg(t, p), qf[q], c)
                else:
                    mfma(a, accr(p, q), qf[q], preg(t, p), c)
                if last and n >= 2:
                    wr(qorder[n - 2], p)
                if nxt < nsteps:
                    if n == 3:
                        issue_p(nxt, p, preg(nxt, p))
                    if p == 4 and (not prep_q):
                        issue_q(nxt, q, qbase(nxt))
                    if prep_q and n == 0 and p < 4:
                        issue_q(nxt, p, qbase(nxt))
        if last:
            for p in range(5):
                wr(3, p)
    mark(a, 4)
    a("s_waitcnt lgkmcnt(0)")
    a("s_barrier")
    mark(a, 5)
    for p in range(5):
        for src in range(3):
            a(f"ds_read_b128 {R(accr(p, src + 1), 4)}, v{vr} offset:{src * 5120 + p * 1024}")
    for p in range(5):
        for h in (0, 2):
            d = accr(p, 0) + h
            a(f"v_pk_add_f32 {V(accr(p, 1) + h, 2)}, {V(accr(p, 1) + h, 2)}, {V(accr(p, 2) + h, 2)}")
            a(f"v_pk_add_f32 {V(d, 2)}, {V(d, 2)}, {V(accr(p, 3) + h, 2)}")
        for h in (0, 2):
            d = accr(p, 0) + h
            a(f"v_pk_add_f32 {V(d, 2)}, {V(d, 2)}, {V(accr(p, 1) + h, 2)}")
    return [accr(p, 0) for p in range(5)]


KS_LDS = 61440


def p_loader(a, vp, srd_p, step_bytes):
    state = {"t": None}

    def issue(t, p, dst):
        if state["t"] != t:
            a(f"s_mov_b32 s{sOP}, {t * step_bytes}")
            state["t"] = t
        a(f"buffer_load_dwordx4 {R(dst, 4)}, v{vp}, s[{srd_p}:{srd_p + 3}], s{sOP} offen offset:{p * 256}")
    return issue


def p_addr(a, vp, s_c, wave_steps):
    a(f"v_mul_u32_u24 v{vp}, {DM}, v{vG}")
    a(f"v_add_lshl_u32 v{vp}, v{vp}, v{vI}, 4")
    a(f"s_mul_i32 s{sA}, s{s_c}, 1280")
    a(f"s_mul_i32 s{sB}, s{sW}, {wave_steps * 4 * KB_STR}")
    a(f"s_add_u32 s{sA}, s{sA}, s{sB}")
    a(f"v_add_u32 v{vp}, s{sA}, v{vp}")


def rowmajor_q(a, vq, s_row0, srd_q):
    a(f"v_mul_u32_u24 v{vq}, 1280, v{vI}")
    a(f"v_lshl_add_u32 v{vq}, v{vG}, 4, v{vq}")
    a(f"s_mul_i32 s{sA}, s{s_row0}, 1280")
    a(f"s_mul_i32 s{sB}, s{sW}, 320")
    a(f"s_add_u32 s{sA}, s{sA}, s{sB}")
    for ql in (3, 2, 1, 0):
        a(f"s_xor_b32 s{sB}, s{sW}, {ql}")
        a(f"s_mul_i32 s{sB}, s{sB}, {16 * 1280}")
        a(f"s_add_u32 s{sB}, s{sB}, s{sA}")
        a(f"v_add_u32 v{vq + ql}, s{sB}, v{vq}")

    def issue(t, q, qb):
        a(f"buffer_load_dwordx4 {R(qb + q * 4, 4)}, v{vq + q}, s[{srd_q}:{srd_q + 3}], 0 offen offset:{t * 64}")
    return issue


def role_xhat0(a, depth):
    vp, vq, vred, vo, acc = 4, 5, 9, 13, 16
    ring = 256
    a(f"s_and_b32 s{sC}, s{sT}, 7")
    a(f"s_lshl_b32 s{sC}, s{sC}, 2")
    a(f"s_bfe_u32 s{sD}, s{sT}, 0x20003")
    a(f"s_add_u32 s{sC}, s{sC}, s{sD}")
    a(f"s_lshl_b32 s{sC}, s{sC}, 6")
    a(f"s_lshr_b32 s{sD}, s{sT}, 5")
    srd_table(a, SRD0, "ft1")
    p_addr(a, vp, sD, 5)
    iq = rowmajor_q(a, vq, sC, SRD1)
    a("s_waitcnt lgkmcnt(0)")
    srd(a, SRD1, P_X, 0, SEQ * DM * 2)
    ip = p_loader(a, vp, SRD0, 4 * KB_STR)

    def post():
        srd_ws(a, SRD2, "XP0", XP_SIZE)
        a(f"s_mul_i32 s{sA}, s{sD}, {20 * XP_STR}")
        a(f"s_lshl_b32 s{sB}, s{sW}, 4")
        a(f"s_add_u32 s{sB}, s{sB}, s{sC}")
        a(f"s_lshl_b32 s{sB}, s{sB}, 3")
        a(f"s_add_u32 s{sA}, s{sA}, s{sB}")
        a(f"v_lshlrev_b32 v{vo}, 14, v{vG}")
        a(f"v_lshl_add_u32 v{vo}, v{vI}, 3, v{vo}")
        a(f"v_add_u32 v{vo}, s{sA}, v{vo}")

    res = gemm_ks(a, 5, depth, acc, ring, vred, True, ip, iq, after_prologue=post)
    for p, r in enumerate(res):
        a(f"v_cvt_pk_bf16_f32 v{r}, v{r}, v{r + 1}")
        a(f"v_cvt_pk_bf16_f32 v{r + 1}, v{r + 2}, v{r + 3}")
        a(f"s_mov_b32 s{sOP}, {p * 4 * XP_STR}")
        a(f"buffer_store_dwordx2 {V(r, 2)}, v{vo}, s[{SRD2}:{SRD2 + 3}], s{sOP} offen{Cfg.st_flags}")
    return KS_LDS


def role_w2f(a, depth, ring=256):
    vp, vq, vred, vo, acc = 4, 5, 9, 13, 16
    a(f"s_and_b32 s{sD}, s{sT}, 7")
    a(f"s_lshr_b32 s{sE}, s{sT}, 3")
    a(f"s_lshl_b32 s{sC}, s{sE}, 6")
    a(f"s_cmp_eq_u32 s{sE}, 27")
    a(f"s_cselect_b32 s{sC}, 0, s{sC}")
    srd_table(a, SRD0, "ft1")
    p_addr(a, vp, sD, 5)
    iq = rowmajor_q(a, vq, sC, SRD1)
    a("s_waitcnt lgkmcnt(0)")
    a(f"s_cmp_eq_u32 s{sE}, 27")
    a(f"s_cselect_b32 s{SRD1}, s{P_B2}, s{P_W2}")
    a(f"s_cselect_b32 s{SRD1 + 1}, s{P_B2 + 1}, s{P_W2 + 1}")
    a(f"s_mov_b32 s{SRD1 + 2}, {FF * DM * 2}")
    a(f"s_cselect_b32 s{SRD1 + 2}, {DM * 2}, s{SRD1 + 2}")
    a(f"s_and_b32 s{SRD1 + 1}, s{SRD1 + 1}, 0xffff")
    a(f"s_mov_b32 s{SRD1 + 3}, 0x20000")
    ip = p_loader(a, vp, SRD0, 4 * KB_STR)

    def post():
        srd_ws(a, SRD2, "WA2", WA2_SIZE)
        a(f"s_lshl_b32 s{sA}, s{sE}, 2")
        a(f"s_add_u32 s{sA}, s{sA}, s{sW}")
        a(f"s_mul_i32 s{sA}, s{sA}, {2 * KB_STR}")
        a(f"s_mul_i32 s{sB}, s{sD}, 1280")
        a(f"s_add_u32 s{sA}, s{sA}, s{sB}")
        a(f"v_lshrrev_b32 v{vo}, 1, v{vG}")
        a(f"v_mul_u32_u24 v{vo}, {KB_STR}, v{vo}")
        a(f"v_lshl_add_u32 v{vo}, v{vI}, 4, v{vo}")
        a(f"v_and_b32 v{vo + 1}, 1, v{vG}")
        a(f"v_lshl_add_u32 v{vo}, v{vo + 1}, 3, v{vo}")
        a(f"v_add_u32 v{vo}, s{sA}, v{vo}")

    res = gemm_ks(a, 5, depth, acc, ring, vred, False, ip, iq, after_prologue=post)
    for p, r in enumerate(res):
        a(f"v_cvt_pk_bf16_f32 v{r}, v{r}, v{r + 1}")
        a(f"v_cvt_pk_bf16_f32 v{r + 1}, v{r + 2}, v{r + 3}")
        a(f"buffer_store_dwordx2 {V(r, 2)}, v{vo}, s[{SRD2}:{SRD2 + 3}], 0 offen offset:{p * 256}{Cfg.st_flags}")
    return KS_LDS


def role_w1f(a, depth):
    vp, vq, vred, vo, acc, qt = 4, 5, 9, 13, 16, 96
    ring = 112
    a(f"s_and_b32 s{sD}, s{sT}, 7")
    a(f"s_lshr_b32 s{sE}, s{sT}, 3")
    srd_table(a, SRD0, "ft1")
    p_addr(a, vp, sD, 5)
    a(f"v_mul_u32_u24 v{vq}, {8 * FF * 2}, v{vG}")
    a(f"v_lshl_add_u32 v{vq}, v{vI}, 3, v{vq}")
    a(f"s_mul_i32 s{sA}, s{sW}, {160 * FF * 2}")
    a(f"s_lshl_b32 s{sB}, s{sE}, 7")
    a(f"s_add_u32 s{sA}, s{sA}, s{sB}")
    a(f"v_add_u32 v{vq}, s{sA}, v{vq}")
    a(f"s_mov_b32 s{sA}, 0x05040100")
    a(f"s_bitcmp1_b32 s{sW}, 0")
    a(f"s_cselect_b32 s{sK0}, 0x07060302, s{sA}")
    a(f"s_cselect_b32 s{sK1}, s{sA}, 0x07060302")
    a(f"s_bitcmp1_b32 s{sW}, 1")
    a(f"s_cselect_b64 s[{sM0}:{sM1}], -1, 0")
    a("s_waitcnt lgkmcnt(0)")
    srd(a, SRD1, P_W1, 0, DM * FF * 2)
    ip = p_loader(a, vp, SRD0, 4 * KB_STR)

    def iq(t, q, qb):
        for j in (2 * q, 2 * q + 1):
            off = (t * 32 + j) * FF * 2
            if j & 1:
                a(f"buffer_load_dwordx2 {R(qb + j * 2, 2)}, v{vq}, s[{SRD1}:{SRD1 + 3}], s{sOQ} offen offset:{FF * 2}")
            else:
                a(f"s_mov_b32 s{sOQ}, {off}")
                a(f"buffer_load_dwordx2 {R(qb + j * 2, 2)}, v{vq}, s[{SRD1}:{SRD1 + 3}], s{sOQ} offen")

    def prep(t, qb):
        a(f"s_mov_b64 exec, s[{sM0}:{sM1}]")
        for j in range(8):
            a(f"v_swap_b32 v{qb + 2 * j}, v{qb + 2 * j + 1}")
        a("s_mov_b64 exec, -1")
        for ql in range(4):
            for m in range(4):
                sel = sK1 if ql & 1 else sK0
                a(f"v_perm_b32 v{qt + ql * 4 + m}, v{qb + (2 * m + 1) * 2 + (ql >> 1)}, v{qb + (2 * m) * 2 + (ql >> 1)}, s{sel}")
        return [qt + ql * 4 for ql in range(4)]

    def post():
        srd_ws(a, SRD2, "W1F", W1F_SIZE)
        a(f"s_mul_i32 s{sA}, s{sD}, {10 * W1F_STR}")
        a(f"s_lshl_b32 s{sB}, s{sE}, 6")
        a(f"s_add_u32 s{sB}, s{sB}, s{sW}")
        a(f"s_lshl_b32 s{sB}, s{sB}, 4")
        a(f"s_add_u32 s{sA}, s{sA}, s{sB}")
        a(f"v_lshrrev_b32 v{vo}, 1, v{vG}")
        a(f"v_mul_u32_u24 v{vo}, {W1F_STR}, v{vo}")
        a(f"v_lshl_add_u32 v{vo}, v{vI}, 6, v{vo}")
        a(f"v_and_b32 v{vo + 1}, 1, v{vG}")
        a(f"v_lshl_add_u32 v{vo}, v{vo + 1}, 3, v{vo}")
        a(f"v_add_u32 v{vo}, s{sA}, v{vo}")
        if Cfg.dcbias:
            srd(a, SRD3, P_B1, 0, FF * 2)
            a(f"s_lshr_b32 s{sB}, s{sB}, 3")
            a(f"v_lshl_add_u32 v6, v{vI}, 3, s{sB}")
            a(f"buffer_load_ushort v7, v6, s[{SRD3}:{SRD3 + 3}], 0 offen")
            a(f"s_cmp_eq_u32 s{sD}, 0")
            a(f"s_cselect_b32 s{sK2}, 0xffff, 0")
            a(f"s_mov_b32 s{sK3}, 0")

    res = gemm_ks(a, 5, depth, acc, ring, vred, True, ip, iq, prep_q=prep, after_prologue=post)
    if Cfg.dcbias:
        a(f"v_lshlrev_b32 v7, 16, v7")
        a(f"v_cndmask_b32_e64 v{res[0] + 1}, v{res[0] + 1}, v7, s[{sK2}:{sK3}]")
    for p, r in enumerate(res):
        a(f"v_cvt_pk_bf16_f32 v{r}, v{r}, v{r + 1}")
        a(f"v_cvt_pk_bf16_f32 v{r + 1}, v{r + 2}, v{r + 3}")
        a(f"s_mov_b32 s{sOP}, {p * 2 * W1F_STR}")
        a(f"buffer_store_dwordx2 {V(r, 2)}, v{vo}, s[{SRD2}:{SRD2 + 3}], s{sOP} offen{Cfg.st_flags}")
    return KS_LDS


def role_wc(a):
    va, vo, vo3, vt, ld, st = 4, 5, 6, 7, 8, 40
    a(f"s_mul_hi_u32 s{sC}, s{sT}, {(1 << 32) // 5 + 1}")
    a(f"s_mul_i32 s{sD}, s{sC}, 5")
    a(f"s_sub_u32 s{sD}, s{sT}, s{sD}")
    a(f"s_lshl_b32 s{sD}, s{sD}, 2")
    a(f"s_add_u32 s{sD}, s{sD}, s{sW}")
    a(f"s_lshl_b32 s{sD}, s{sD}, 2")
    a(f"v_add_u32 v{vt}, s{sD}, v{vG}")
    a(f"v_mul_u32_u24 v{va}, 642, v{vI}")
    a(f"v_lshl_add_u32 v{va}, v{vt}, 3, v{va}")
    a(f"s_mul_i32 s{sA}, s{sC}, {128 * 642}")
    a(f"s_add_u32 s{sA}, s{sA}, 2")
    a(f"v_add_u32 v{va}, s{sA}, v{va}")
    a(f"s_lshr_b32 s{sA}, s{sC}, 2")
    a(f"s_lshl_b32 s{sA}, s{sA}, 11")
    a(f"s_and_b32 s{sB}, s{sC}, 3")
    a(f"s_lshl_b32 s{sB}, s{sB}, 8")
    a(f"s_add_u32 s{sA}, s{sA}, s{sB}")
    a(f"v_lshlrev_b32 v{vo3}, 4, v{vI}")
    a(f"v_add_u32 v{vo3}, s{sA}, v{vo3}")
    a(f"v_lshl_add_u32 v{vo}, v{vt}, 15, v{vo3}")
    a(f"v_cmp_eq_u32 vcc, 79, v{vt}")
    a(f"v_add_u32 v{vt}, {4 * 8192}, v{vo}")
    a(f"v_cndmask_b32 v{vo3}, v{vt}, v{vo3}, vcc")
    a(f"s_mov_b32 s{sK0}, 0x05040100")
    a(f"s_mov_b32 s{sK1}, 0x07060302")
    a("s_waitcnt lgkmcnt(0)")
    srd(a, SRD0, P_WR, 0, SEQ * 642)
    srd(a, SRD1, P_WI, 0, SEQ * 642)
    srd_ws(a, SRD2, "WC", WC_SIZE)
    for u in range(2):
        for r in range(4):
            a(f"s_mov_b32 s{sOP}, {(32 * r + 16 * u) * 642}")
            b = ld + (u * 4 + r) * 4
            a(f"buffer_load_dwordx2 {V(b, 2)}, v{va}, s[{SRD0}:{SRD0 + 3}], s{sOP} offen")
            a(f"buffer_load_dwordx2 {V(b + 2, 2)}, v{va}, s[{SRD1}:{SRD1 + 3}], s{sOP} offen")
    for u in range(2):
        for e in range(4):
            o = st + (u * 4 + e) * 4
            for r in range(4):
                b = ld + (u * 4 + r) * 4
                a(f"v_perm_b32 v{o + r}, v{b + 2 + (e >> 1)}, v{b + (e >> 1)}, s{sK1 if e & 1 else sK0}")
            if e < 3:
                a(f"s_mov_b32 s{sOP}, {(e + 1) * 8192}")
                a(f"buffer_store_dwordx4 {V(o, 4)}, v{vo}, s[{SRD2}:{SRD2 + 3}], s{sOP} offen offset:{u * 1024}{Cfg.st_flags}")
            else:
                a(f"buffer_store_dwordx4 {V(o, 4)}, v{vo3}, s[{SRD2}:{SRD2 + 3}], 0 offen offset:{u * 1024}{Cfg.st_flags}")
    return 0


def dpp_rowsum(a, v, t):
    for k in (8, 4, 2, 1):
        a(f"v_add_f32_dpp v{v}, v{v}, v{v} row_ror:{k} row_mask:0xf bank_mask:0xf")


def role_stats(a):
    va, vo, vt, vz, vone, sm, sq, t0, ld = 4, 5, 6, 7, 8, 10, 12, 16, 20
    a(f"s_lshl_b32 s{sA}, s{sT}, 5")
    a(f"s_lshl_b32 s{sB}, s{sW}, 3")
    a(f"s_add_u32 s{sA}, s{sA}, s{sB}")
    a(f"v_add_u32 v{vt}, s{sA}, v{vG}")
    a(f"v_mul_u32_u24 v{va}, 1280, v{vt}")
    a(f"v_lshl_add_u32 v{va}, v{vI}, 4, v{va}")
    a("s_waitcnt lgkmcnt(0)")
    srd(a, SRD0, P_X, 0, SEQ * DM * 2)
    a(f"s_mov_b32 s{sOP}, {4 * 1280}")
    for h in range(2):
        for j in range(5):
            so = f"s{sOP}" if h else "0"
            a(f"buffer_load_dwordx4 {V(ld + (h * 5 + j) * 4, 4)}, v{va}, s[{SRD0}:{SRD0 + 3}], {so} offen offset:{j * 256}")
    srd_ws(a, SRD1, "SS0", 2 * SS_SIZE)
    a(f"v_bfe_u32 v{vo}, v{vt}, 4, 2")
    a(f"v_lshlrev_b32 v{vo}, 3, v{vo}")
    a(f"v_lshrrev_b32 v{vz}, 8, v{vt}")
    a(f"v_add_u32 v{vo}, v{vo}, v{vz}")
    a(f"v_and_b32 v{vz}, 15, v{vt}")
    a(f"v_lshl_add_u32 v{vo}, v{vo}, 4, v{vz}")
    a(f"v_bfe_u32 v{vz}, v{vt}, 6, 2")
    a(f"v_lshl_add_u32 v{vo}, v{vo}, 2, v{vz}")
    a(f"v_lshlrev_b32 v{vo}, 2, v{vo}")
    a(f"v_mov_b32 v{vz}, 0")
    a(f"v_mov_b32 v{vone}, 0x3f803f80")
    a(f"s_mov_b32 s{sOQ}, {WS['SS2'] - WS['SS0']}")
    a(f"s_mov_b32 s{sK0}, 0xffff0000")
    for h in range(2):
        a(f"buffer_store_dword v{vz}, v{vo}, s[{SRD1}:{SRD1 + 3}], s{sOQ} offen offset:{h * 64}")
    if Cfg.dcbias:
        srd_ws(a, SRD2, "FLAG", FLAG_SIZE)
        a(f"s_lshl_b32 s{sA}, s{sT}, 10")
        a(f"v_lshl_add_u32 v9, v0, 2, s{sA}")
        a(f"buffer_store_dword v{vz}, v9, s[{SRD2}:{SRD2 + 3}], 0 offen")
    for h in range(2):
        a(f"v_mov_b32 v{sm + h}, 0")
        a(f"v_mov_b32 v{sq + 2 * h}, 0")
        a(f"v_mov_b32 v{sq + 2 * h + 1}, 0")
    for h in range(2):
        for k in range(20):
            a(f"v_dot2c_f32_bf16 v{sm + h}, v{ld + h * 20 + k}, v{vone}")
    for h in range(2):
        dpp_rowsum(a, sm + h, t0)
        a(f"v_mul_f32 v{sm + h}, {f32bits(-1.0 / DM):#x}, v{sm + h}")
    for k in range(20):
        for h in range(2):
            x = ld + h * 20 + k
            t = t0 + 2 * h
            a(f"v_lshlrev_b32 v{t}, 16, v{x}")
            a(f"v_and_b32 v{t + 1}, s{sK0}, v{x}")
            a(f"v_add_f32 v{t}, v{t}, v{sm + h}")
            a(f"v_add_f32 v{t + 1}, v{t + 1}, v{sm + h}")
            a(f"v_fmac_f32 v{sq + 2 * h}, v{t}, v{t}")
            a(f"v_fmac_f32 v{sq + 2 * h + 1}, v{t + 1}, v{t + 1}")
    for h in range(2):
        a(f"v_add_f32 v{sq + 2 * h}, v{sq + 2 * h}, v{sq + 2 * h + 1}")
        dpp_rowsum(a, sq + 2 * h, t0)
        a(f"buffer_store_dword v{sq + 2 * h}, v{vo}, s[{SRD1}:{SRD1 + 3}], 0 offen offset:{h * 64}")
    return 0


def role_w2t(a, rep=1):
    va, vo, vt, ld, st = 4, 6, 8, 12, 44
    a(f"s_mul_i32 s{sA}, s{sT}, {256 * rep}")
    for n in range(rep):
        a(f"v_add_u32 v{vo + n}, s{sA}, v0")
        if n:
            a(f"v_add_u32 v{vo + n}, {256 * n}, v{vo + n}")
        a(f"v_lshrrev_b32 v{vt}, 5, v{vo + n}")
        a(f"v_mul_u32_u24 v{vt}, 52429, v{vt}")
        a(f"v_lshrrev_b32 v{vt}, 18, v{vt}")
        a(f"v_mul_u32_u24 v{va + n}, {10240 - 1280}, v{vt}")
        a(f"v_lshl_add_u32 v{va + n}, v{vo + n}, 3, v{va + n}")
        a(f"v_lshlrev_b32 v{vo + n}, 6, v{vo + n}")
    a(f"s_mov_b32 s{sK0}, 0x05040100")
    a(f"s_mov_b32 s{sK1}, 0x07060302")
    a(f"s_mov_b32 s{sOP}, {4 * 1280}")
    a("s_waitcnt lgkmcnt(0)")
    srd(a, SRD0, P_W2, 0, FF * DM * 2)
    srd_ws(a, SRD1, "W2T", W2T_SIZE)
    for n in range(rep):
        for j in range(8):
            so = f"s{sOP}" if j >= 4 else "0"
            a(f"buffer_load_dwordx2 {V(ld + 16 * n + 2 * j, 2)}, v{va + n}, s[{SRD0}:{SRD0 + 3}], {so} offen offset:{(j & 3) * 1280}")
    for n in range(rep):
        l, o = ld + 16 * n, st + 16 * n
        for e in range(4):
            for m in range(4):
                a(f"v_perm_b32 v{o + e * 4 + m}, v{l + (2 * m + 1) * 2 + (e >> 1)}, v{l + 2 * m * 2 + (e >> 1)}, s{sK1 if e & 1 else sK0}")
            a(f"buffer_store_dwordx4 {V(o + e * 4, 4)}, v{vo + n}, s[{SRD1}:{SRD1 + 3}], 0 offen offset:{e * 16}")
    return 0


def cmul_pack(a, dst, re, im, c, s, tmp, conj_w=False):
    for h in (0, 2):
        t0, t1 = tmp + 2 * h, tmp + 2 * h + 2
        a(f"v_pk_mul_f32 {V(t0, 2)}, {V(re + h, 2)}, {V(c + h, 2)}")
        a(f"v_pk_mul_f32 {V(t1, 2)}, {V(im + h, 2)}, {V(c + h, 2)}")
    for h in (0, 2):
        t0, t1 = tmp + 2 * h, tmp + 2 * h + 2
        if conj_w:
            a(f"v_pk_fma_f32 {V(t0, 2)}, {V(im + h, 2)}, {V(s + h, 2)}, {V(t0, 2)} neg_lo:[1,0,0] neg_hi:[1,0,0]")
            a(f"v_pk_fma_f32 {V(t1, 2)}, {V(re + h, 2)}, {V(s + h, 2)}, {V(t1, 2)}")
        else:
            a(f"v_pk_fma_f32 {V(t0, 2)}, {V(im + h, 2)}, {V(s + h, 2)}, {V(t0, 2)}")
            a(f"v_pk_fma_f32 {V(t1, 2)}, {V(re + h, 2)}, {V(s + h, 2)}, {V(t1, 2)} neg_lo:[1,0,0] neg_hi:[1,0,0]")
    for h in (0, 2):
        t0, t1 = tmp + 2 * h, tmp + 2 * h + 2
        n = "-" if conj_w else ""
        a(f"v_cvt_pk_bf16_f32 v{dst + h}, v{t0}, {n}v{t1}")
        a(f"v_cvt_pk_bf16_f32 v{dst + h + 1}, v{t0 + 1}, {n}v{t1 + 1}")


def role_col(a, src, ssn, dst):
    vx, vw, vl0, vmI = 4, 5, 6, 10
    fi, fg, fa, fb = 11, 12, 13, 14
    raw, ss, wraw = 16, 24, 32
    M1, M2 = 40, 72
    T1, T2 = 104, 120
    WU = 136
    ACC = 152
    FO, FG = 168, 176
    TMP = 200

    a(f"s_and_b32 s{sA}, s{sT}, 7")
    a(f"s_lshr_b32 s{sB}, s{sT}, 4")
    a(f"s_lshl_b32 s{sB}, s{sB}, 3")
    a(f"s_add_u32 s{sC}, s{sA}, s{sB}")
    a(f"s_bfe_u32 s{sD}, s{sT}, 0x10003")
    a(f"s_lshl1_add_u32 s{sE}, s{sC}, s{sD}")
    a(f"s_lshl_b32 s{sA}, s{sC}, 14")
    a(f"s_lshl2_add_u32 s{sA}, s{sD}, s{sA}")
    a(f"s_lshl_b32 s{sB}, s{sW}, 7")
    a(f"s_add_u32 s{sA}, s{sA}, s{sB}")
    a(f"v_lshlrev_b32 v{vx}, 11, v{vG}")
    a(f"v_lshl_add_u32 v{vx}, v{vI}, 3, v{vx}")
    a(f"v_add_u32 v{vx}, s{sA}, v{vx}")
    a(f"s_lshl_b32 s{sB}, s{sW}, 11")
    a(f"v_lshlrev_b32 v{vw}, 4, v{vL}")
    a(f"v_add_u32 v{vw}, s{sB}, v{vw}")
    a(f"s_lshl_b32 s{sF}, s{sE}, 13")
    a(f"s_mov_b32 s{sOP}, 8192")
    a("s_waitcnt lgkmcnt(0)")
    srd_ws(a, SRD0, src, XP_SIZE)
    srd_ws(a, SRD1, ssn, SS_SIZE)
    for t in range(2):
        a(f"buffer_load_dwordx4 {V(ss + 4 * t, 4)}, v{vw}, s[{SRD1}:{SRD1 + 3}], 0 offen offset:{t * 1024}")
    for t in range(2):
        for jj in range(4):
            so = f"s{sOP}" if t else "0"
            a(f"buffer_load_dword v{raw + 4 * t + jj}, v{vx}, s[{SRD0}:{SRD0 + 3}], {so} offen offset:{jj * 512}")
    srd_ws(a, SRD2, "WC", WC_SIZE)
    for u in range(2):
        a(f"buffer_load_dwordx4 {V(wraw + 4 * u, 4)}, v{vw}, s[{SRD2}:{SRD2 + 3}], s{sF} offen offset:{u * 1024}")
    srd_ws(a, SRD3, dst, XP_SIZE)

    mark(a, 1)
    a(f"v_lshlrev_b32 v{vl0}, 4, v0")
    for kk in (1, 2, 3):
        a(f"v_xor_b32 v{vl0 + kk}, {kk * 1024}, v{vl0}")
    a(f"v_and_b32 v{vmI}, 1, v{vI}")
    a(f"v_mul_u32_u24 v{vmI}, 0x8000, v{vmI}")
    a(f"v_lshl_or_b32 v{vmI}, v{vmI}, 16, v{vmI}")
    a(f"s_mov_b32 s{sK0}, 0x80008000")
    a(f"v_cvt_f32_u32 v{fi}, v{vI}")
    a(f"v_lshlrev_b32 v{fg}, 2, v{vG}")
    a(f"v_cvt_f32_u32 v{fg}, v{fg}")

    def m1(qb, t, var):
        return M1 + ((qb * 2 + t) * 2 + var) * 4

    def m2(kk, var):
        return M2 + (kk * 2 + var) * 4

    a(f"v_mul_f32 v{fa}, {f32bits(1 / 32):#x}, v{fi}")
    for jj in range(4):
        t = TMP + 3 * jj
        a(f"v_add_f32 v{t}, {float(jj)}, v{fg}" if jj in (0, 1, 2) else f"v_add_f32 v{t}, {f32bits(3.0):#x}, v{fg}")
        a(f"v_mul_f32 v{t}, v{t}, v{fa}")
        a(f"v_fract_f32 v{t}, v{t}")
        a(f"v_cos_f32 v{t + 1}, v{t}")
        a(f"v_sin_f32 v{t + 2}, v{t}")
    for jj in range(4):
        t = TMP + 3 * jj
        n = "-" if jj & 1 else ""
        m = "" if jj & 1 else "-"
        a(f"v_cvt_pk_bf16_f32 v{m1(0, 0, 0) + jj}, v{t + 1}, v{t + 2}")
        a(f"v_cvt_pk_bf16_f32 v{m1(0, 0, 1) + jj}, -v{t + 2}, v{t + 1}")
        a(f"v_cvt_pk_bf16_f32 v{m1(1, 0, 0) + jj}, {n}v{t + 1}, {n}v{t + 2}")
        a(f"v_cvt_pk_bf16_f32 v{m1(1, 0, 1) + jj}, {m}v{t + 2}, {n}v{t + 1}")
    for qb in range(2):
        for var in range(2):
            for jj in range(4):
                a(f"v_xor_b32 v{m1(qb, 1, var) + jj}, v{vmI}, v{m1(qb, 0, var) + jj}")

    a(f"s_lshl_b32 s{sA}, s{sW}, 4")
    a(f"v_cvt_f32_u32 v{fb}, s{sA}")
    a(f"v_add_f32 v{TMP + 24}, v{fb}, v{fg}")
    a(f"v_add_f32 v{fb}, v{fb}, v{fi}")
    a(f"v_mul_f32 v{TMP + 25}, {f32bits(1 / 2048):#x}, v{fi}")
    a(f"v_add_f32 v{TMP + 26}, {f32bits(16 / 2048):#x}, v{TMP + 25}")
    for r in range(4):
        t = TMP + r
        a(f"v_add_f32 v{t}, {f32bits(float(r)):#x}, v{TMP + 24}")
    for qb in range(2):
        for r in range(4):
            t = TMP + 4 + (qb * 4 + r)
            a(f"v_mul_f32 v{t}, v{TMP + r}, v{TMP + 25 + qb}")
            a(f"v_cos_f32 v{T1 + qb * 8 + r}, v{t}")
            a(f"v_sin_f32 v{T1 + qb * 8 + 4 + r}, v{t}")

    a(f"v_mul_f32 v{fa}, {f32bits(1 / 64):#x}, v{fb}")
    a(f"s_xor_b32 s{sA}, s{sA}, 16")
    a(f"v_cvt_f32_u32 v{TMP + 24}, s{sA}")
    a(f"v_add_f32 v{TMP + 24}, v{TMP + 24}, v{fg}")
    for kk in range(2):
        for r in range(4):
            t = TMP + 12 + 3 * r
            if kk == 0:
                a(f"v_mul_f32 v{t}, v{TMP + r}, v{fa}")
            else:
                a(f"v_add_f32 v{t}, {f32bits(float(r)):#x}, v{TMP + 24}")
                a(f"v_mul_f32 v{t}, v{t}, v{fa}")
            a(f"v_fract_f32 v{t}, v{t}")
            a(f"v_cos_f32 v{t + 1}, v{t}")
            a(f"v_sin_f32 v{t + 2}, v{t}")
        for r in range(4):
            t = TMP + 12 + 3 * r
            a(f"v_cvt_pk_bf16_f32 v{m2(kk, 0) + r}, v{t + 1}, v{t + 2}")
            a(f"v_cvt_pk_bf16_f32 v{m2(kk, 1) + r}, -v{t + 2}, v{t + 1}")
    for kk in range(2):
        for var in range(2):
            for r in range(4):
                a(f"v_xor_b32 v{m2(kk + 2, var) + r}, v{vmI}, v{m2(kk, var) + r}")

    a(f"v_mul_f32 v{fa}, {f32bits(1 / 2048):#x}, v{fb}")
    for u in range(2):
        for r in range(4):
            t = TMP + (u * 4 + r)
            a(f"v_add_f32 v{t}, {f32bits(float(16 * u + r)):#x}, v{fg}")
            a(f"v_mul_f32 v{t}, v{t}, v{fa}")
            a(f"v_cos_f32 v{T2 + u * 8 + r}, v{t}")
            a(f"v_sin_f32 v{T2 + u * 8 + 4 + r}, v{t}")

    a(f"s_mov_b32 s{sK1}, 0xffff0000")
    a(f"s_cmp_eq_u32 s{sE}, 0")
    a(f"s_cselect_b32 s{sK2}, 0, s{sK1}")
    a(f"s_cselect_b32 s{sK3}, 0, {f32bits(-1 / 2048):#x}")
    a(f"s_mov_b32 s{sA}, {f32bits(1 / DM):#x}")
    a(f"s_mov_b32 s{sB}, {f32bits(1 / 2048):#x}")
    a(f"v_mov_b32 v{fa}, {f32bits(1e-5):#x}")
    mark(a, 2)
    for k in range(8):
        a(f"v_fma_f32 v{ss + k}, v{ss + k}, s{sA}, v{fa}")
    for k in range(8):
        a(f"v_rsq_f32 v{ss + k}, v{ss + k}")
    for k in range(8):
        t = TMP + 2 * k
        a(f"v_lshlrev_b32 v{t}, 16, v{raw + k}")
        a(f"v_and_b32 v{t + 1}, s{sK2}, v{raw + k}")
    for k in range(8):
        t = TMP + 2 * k
        a(f"v_mul_f32 v{t}, v{t}, v{ss + k}")
        a(f"v_mul_f32 v{t + 1}, v{t + 1}, v{ss + k}")
    for k in range(8):
        t = TMP + 2 * k
        a(f"v_cvt_pk_bf16_f32 v{FG + k}, v{t}, v{t + 1}")

    def acc(b, var):
        return ACC + (b * 2 + var) * 4

    mark(a, 3)
    for t in range(2):
        for qb in range(2):
            for var in range(2):
                mfma(a, acc(qb, var), FG + 4 * t, m1(qb, t, var), None if t == 0 else acc(qb, var))
    for u in range(2):
        for r in range(4):
            a(f"v_lshlrev_b32 v{WU + u * 8 + r}, 16, v{wraw + u * 4 + r}")
            a(f"v_and_b32 v{WU + u * 8 + 4 + r}, s{sK1}, v{wraw + u * 4 + r}")

    def exchange(base, data_is_a):
        for b in range(2):
            a(f"ds_write_b128 v{vl0}, {V(FO + 4 * b, 4)} offset:{base + b * 4096}")
        for b in range(2):
            for var in range(2):
                if data_is_a:
                    mfma(a, acc(b, var), FO + 4 * b, m2(0, var), None)
                else:
                    mfma(a, acc(b, var), m2(0, var), FO + 4 * b, None)
        a("s_waitcnt lgkmcnt(0)")
        a("s_barrier")
        for kk in (1, 2, 3):
            for b in range(2):
                a(f"ds_read_b128 {V(FG + ((kk - 1) * 2 + b) * 4, 4)}, v{vl0 + kk} offset:{base + b * 4096}")
        for kk in (1, 2, 3):
            for b in range(2):
                for var in range(2):
                    f = FG + ((kk - 1) * 2 + b) * 4
                    if data_is_a:
                        mfma(a, acc(b, var), f, m2(kk, var), acc(b, var))
                    else:
                        mfma(a, acc(b, var), m2(kk, var), f, acc(b, var))

    for qb in range(2):
        cmul_pack(a, FO + 4 * qb, acc(qb, 0), acc(qb, 1), T1 + qb * 8, T1 + qb * 8 + 4, TMP + 8 * qb)
    exchange(0, False)
    mark(a, 4)
    for u in range(2):
        cmul_pack(a, FO + 4 * u, acc(u, 0), acc(u, 1), WU + u * 8, WU + u * 8 + 4, TMP + 8 * u, conj_w=True)
    exchange(8192, True)
    mark(a, 5)
    for k in range(8):
        a(f"v_lshlrev_b32 v{WU + 2 * k}, 16, v{raw + k}")
        a(f"v_and_b32 v{WU + 2 * k + 1}, s{sK1}, v{raw + k}")
    for u in range(2):
        cmul_pack(a, FO + 4 * u, acc(u, 0), acc(u, 1), T2 + u * 8, T2 + u * 8 + 4, TMP + 8 * u)
    for u in range(2):
        for t in range(2):
            for var in range(2):
                mfma(a, acc(t, var), m1(t, u, var), FO + 4 * u, None if u == 0 else acc(t, var))
    for t in range(2):
        for jj in range(4):
            k = 4 * t + jj
            a(f"v_fma_f32 v{WU + 2 * k}, v{acc(t, 0) + jj}, s{sB}, v{WU + 2 * k}")
            a(f"v_fma_f32 v{WU + 2 * k + 1}, v{acc(t, 1) + jj}, s{sK3}, v{WU + 2 * k + 1}")
        for jj in range(4):
            k = 4 * t + jj
            a(f"v_cvt_pk_bf16_f32 v{raw + k}, v{WU + 2 * k}, v{WU + 2 * k + 1}")
            so = f"s{sOP}" if t else "0"
            a(f"buffer_store_dword v{raw + k}, v{vx}, s[{SRD3}:{SRD3 + 3}], {so} offen offset:{jj * 512}{Cfg.st_flags}")
    return 16384


def role_g1(a, src):
    vx, vw, vl, vo, vb, vm = 4, 5, 6, 7, 8, 9
    sq = 10
    X = 16
    ACC = 176
    BR = 232
    TMP = 246
    WR = 256
    NW = 14

    a(f"s_and_b32 s{sA}, s{sT}, 7")
    a(f"s_lshr_b32 s{sB}, s{sA}, 1")
    a(f"s_lshl_b32 s{sB}, s{sB}, 2")
    a(f"s_bfe_u32 s{sC}, s{sT}, 0x20003")
    a(f"s_add_u32 s{sC}, s{sC}, s{sB}")
    a(f"s_and_b32 s{sA}, s{sA}, 1")
    a(f"s_lshl_b32 s{sA}, s{sA}, 3")
    a(f"s_lshr_b32 s{sD}, s{sT}, 5")
    a(f"s_add_u32 s{sD}, s{sD}, s{sA}")
    a(f"s_mul_i32 s{sD}, s{sD}, 27")
    a(f"s_lshr_b32 s{sD}, s{sD}, 2")
    a(f"s_lshl_b32 s{sC}, s{sC}, 7")
    a(f"s_lshl_b32 s{sA}, s{sW}, 5")
    a(f"s_add_u32 s{sC}, s{sC}, s{sA}")
    a(f"v_lshlrev_b32 v{vx}, 15, v{vG}")
    a(f"v_lshl_add_u32 v{vx}, v{vI}, 4, v{vx}")
    a(f"s_lshl_b32 s{sA}, s{sC}, 3")
    a(f"v_add_u32 v{vx}, s{sA}, v{vx}")
    a(f"v_mul_u32_u24 v{vw}, {FF}, v{vG}")
    a(f"v_add_lshl_u32 v{vw}, v{vw}, v{vI}, 4")
    a(f"s_mul_i32 s{sA}, s{sW}, {4 * W1F_STR}")
    a(f"s_lshl_b32 s{sB}, s{sD}, 8")
    a(f"s_add_u32 s{sA}, s{sA}, s{sB}")
    a(f"v_add_u32 v{vw}, s{sA}, v{vw}")
    a(f"s_mul_i32 s{sE}, s{sW}, 7168")
    a(f"v_lshlrev_b32 v{vl}, 4, v{vL}")
    a("s_waitcnt lgkmcnt(0)")
    srd_ws(a, SRD0, "W1F", W1F_SIZE)
    srd_ws(a, SRD1, src, XP_SIZE)

    def xr(ks, st):
        return X + ks * 8 + st * 4

    def issue_chunk(c):
        a(f"s_mov_b32 s{sOP}, {c * 16 * W1F_STR}")
        for ft in range(7):
            a(f"s_add_u32 m0, s{sE}, {c * 28672 + ft * 1024 - ft * 256}")
            a(f"buffer_load_dwordx4 v{vw}, s[{SRD0}:{SRD0 + 3}], s{sOP} offen offset:{ft * 256} lds", tag=f"w{c}")
        for k in range(4):
            ks = 4 * c + k
            for h in range(2):
                a(f"s_mov_b32 s{sOQ}, {(8 * ks + h) * XP_STR}")
                a(f"buffer_load_dwordx4 {V(xr(ks, h), 4)}, v{vx}, s[{SRD1}:{SRD1 + 3}], s{sOQ} offen")

    for c in range(4):
        issue_chunk(c)
    srd(a, SRD2, P_B1, 0, FF * 2)
    srd_ws(a, SRD3, "H", H_SIZE)
    a(f"s_lshl_b32 s{sA}, s{sD}, 5")
    a(f"v_lshlrev_b32 v{vb}, 3, v{vG}")
    a(f"v_add_u32 v{vb}, s{sA}, v{vb}")
    a(f"v_lshrrev_b32 v{vo}, 1, v{vG}")
    a(f"v_mul_u32_u24 v{vo}, {H_STR}, v{vo}")
    a(f"v_lshl_add_u32 v{vo}, v{vI}, 5, v{vo}")
    a(f"v_and_b32 v{vm}, 1, v{vG}")
    a(f"v_lshl_add_u32 v{vo}, v{vm}, 4, v{vo}")
    a(f"s_mul_i32 s{sA}, s{sD}, {2 * H_STR}")
    a(f"s_lshl_b32 s{sB}, s{sC}, 4")
    a(f"s_add_u32 s{sA}, s{sA}, s{sB}")
    a(f"v_add_u32 v{vo}, s{sA}, v{vo}")
    a(f"v_cmp_eq_u32 vcc, 0, v{vG}")
    a(f"v_mov_b32 v{vm}, 0xffff")
    a(f"v_cndmask_b32 v{vm}, -1, v{vm}, vcc")
    for k in range(4):
        a(f"v_mov_b32 v{sq + k}, 0")

    def acc(ft, st):
        return ACC + (ft * 2 + st) * 4

    seq = [(ks, ft) for ks in range(20) for ft in range(7)]

    def wreg(n):
        return WR + (n % NW) * 4

    def rd(n):
        ks, ft = seq[n]
        off = (ks * 7 + ft) * 1024
        if off >= 65536:
            a(f"ds_read_b128 {R(wreg(n), 4)}, v{TMP + (off >> 16)} offset:{off & 0xffff}")
        else:
            a(f"ds_read_b128 {R(wreg(n), 4)}, v{vl} offset:{off}")

    a(f"v_add_u32 v{TMP + 1}, 0x10000, v{vl}")
    a(f"v_add_u32 v{TMP + 2}, 0x20000, v{vl}")
    AHEAD = 8
    nread = 0
    for c in range(5):
        if c == 0:
            mark(a, 1)
        a.wait_tag(f"w{c}")
        a("s_barrier")
        if c in (0, 1, 4):
            mark(a, {0: 2, 1: 3, 4: 4}[c])
        if c == 0:
            issue_chunk(4)
            for ft in range(7):
                a(f"buffer_load_dwordx2 {V(BR + 2 * ft, 2)}, v{vb}, s[{SRD2}:{SRD2 + 3}], 0 offen offset:{ft * 32}")
        hi = (c + 1) * 28
        for n in range(c * 28, hi):
            ks, ft = seq[n]
            while nread < min(hi, n + AHEAD):
                rd(nread)
                nread += 1
            if ft == 0:
                a(f"v_swap_b32 v{xr(ks, 0) + 2}, v{xr(ks, 1)}")
                a(f"v_swap_b32 v{xr(ks, 0) + 3}, v{xr(ks, 1) + 1}")
                if ks == 0:
                    a(f"v_and_b32 v{xr(0, 0)}, v{vm}, v{xr(0, 0)}")
                    a(f"v_and_b32 v{xr(0, 1)}, v{vm}, v{xr(0, 1)}")
            for st in range(2):
                mfma(a, acc(ft, st), wreg(n), xr(ks, st), None if ks == 0 else acc(ft, st))
                if 1 <= ft <= 4 and not Cfg.nodot:
                    x = xr(ks, st) + ft - 1
                    a(f"v_dot2c_f32_bf16 v{sq + st * 2 + (ft & 1)}, v{x}, v{x}")

    mark(a, 5)
    t = TMP + 4
    for st in range(2):
        s = sq + 2 * st
        a(f"v_add_f32 v{s}, v{s}, v{s + 1}")
    for op in ("v_permlane32_swap_b32", "v_permlane16_swap_b32"):
        for st in range(2):
            s = sq + 2 * st
            a(f"v_mov_b32 v{s + 1}, v{s}")
        for st in range(2):
            s = sq + 2 * st
            a(f"{op} v{s}, v{s + 1}")
        for st in range(2):
            s = sq + 2 * st
            a(f"v_add_f32 v{s}, v{s}, v{s + 1}")
    a(f"v_mov_b32 v{t}, {f32bits(1e-5):#x}")
    for st in range(2):
        s = sq + 2 * st
        a(f"v_mul_f32 v{s}, {f32bits(1 / DM):#x}, v{s}")
        a(f"v_add_f32 v{s + 1}, v{s}, v{t}")
        a(f"v_rsq_f32 v{s + 1}, v{s + 1}")
    for st in range(2):
        s = sq + 2 * st
        a(f"v_mul_f32 v{s}, v{s}, v{s + 1}")
        a(f"v_fma_f32 v{s}, v{s}, v{s + 1}, v{t}")
        a(f"v_rsq_f32 v{s}, v{s}")
    for st in range(2):
        s = sq + 2 * st
        a(f"v_mul_f32 v{s}, v{s}, v{s + 1}")

    k0 = -2.0 * 0.7978845608028654 * 1.4426950408889634
    a(f"s_mov_b32 s{sK0}, {f32bits(k0 * 0.044715):#x}")
    a(f"s_mov_b32 s{sK1}, s{sK0}")
    a(f"s_mov_b32 s{sK2}, 0xffff0000")
    a(f"v_mov_b32 v{TMP + 4}, {f32bits(k0):#x}")
    a(f"v_mov_b32 v{TMP + 5}, {f32bits(k0):#x}")
    for ft in range(7):
        B = X + ft * 16
        Z = B + 4
        O = B + 12
        for h in range(2):
            a(f"v_lshlrev_b32 v{B + 2 * h}, 16, v{BR + 2 * ft + h}")
            a(f"v_and_b32 v{B + 2 * h + 1}, s{sK2}, v{BR + 2 * ft + h}")
        prs = [(acc(ft, st) + h, Z + st * 4 + h, B + h, sq + 2 * st) for st in range(2) for h in (0, 2)]
        for x, z, b, s in prs:
            a(f"v_pk_fma_f32 {V(x, 2)}, {V(x, 2)}, {V(s, 2)}, {V(b, 2)} op_sel_hi:[1,0,1]")
        for x, z, b, s in prs:
            a(f"v_pk_mul_f32 {V(z, 2)}, {V(x, 2)}, {V(x, 2)}")
        for x, z, b, s in prs:
            a(f"v_pk_fma_f32 {V(z, 2)}, {V(z, 2)}, s[{sK0}:{sK1}], {V(TMP + 4, 2)}")
        for x, z, b, s in prs:
            a(f"v_pk_mul_f32 {V(z, 2)}, {V(z, 2)}, {V(x, 2)}")
        for k in range(8):
            a(f"v_exp_f32 v{Z + k}, v{Z + k}")
        for x, z, b, s in prs:
            a(f"v_pk_add_f32 {V(z, 2)}, {V(z, 2)}, 1.0 op_sel_hi:[1,0]")
        for k in range(8):
            a(f"v_rcp_f32 v{Z + k}, v{Z + k}")
        for x, z, b, s in prs:
            a(f"v_pk_mul_f32 {V(z, 2)}, {V(z, 2)}, {V(x, 2)}")
        for k in range(4):
            a(f"v_cvt_pk_bf16_f32 v{O + k}, v{Z + 2 * k}, v{Z + 2 * k + 1}")
        a(f"s_mov_b32 s{sOP}, {ft * 2 * H_STR}")
        a(f"v_permlane16_swap_b32 v{O}, v{O + 2}")
        a(f"v_permlane16_swap_b32 v{O + 1}, v{O + 3}")
        a(f"buffer_store_dwordx4 {V(O, 4)}, v{vo}, s[{SRD3}:{SRD3 + 3}], s{sOP} offen{Cfg.st_flags}")
    return 140 * 1024


def role_g2(a, final):
    vp, vq, vred, vo, acc = 4, 5, 9, 13, 16
    vp2, vq2, vone, vs, RES, TMP = 96, 97, 101, 102, 104, 116
    ring = 256
    depth = Cfg.g2depth
    a(f"s_and_b32 s{sA}, s{sT}, 7")
    a(f"s_lshr_b32 s{sB}, s{sA}, 1")
    a(f"s_lshl_b32 s{sB}, s{sB}, 3")
    a(f"s_bfe_u32 s{sC}, s{sT}, 0x30003")
    a(f"s_add_u32 s{sC}, s{sC}, s{sB}")
    a(f"s_lshl_b32 s{sC}, s{sC}, 6")
    a(f"s_and_b32 s{sA}, s{sA}, 1")
    a(f"s_lshl_b32 s{sA}, s{sA}, 2")
    a(f"s_lshr_b32 s{sD}, s{sT}, 6")
    a(f"s_add_u32 s{sD}, s{sD}, s{sA}")
    p_addr(a, vp, sD, 14)
    a(f"v_mul_u32_u24 v{vq}, {H_STR}, v{vG}")
    a(f"v_lshl_add_u32 v{vq}, v{vI}, 4, v{vq}")
    a(f"s_mul_i32 s{sA}, s{sW}, {14 * 4 * H_STR}")
    a(f"s_lshl_b32 s{sB}, s{sC}, 4")
    a(f"s_add_u32 s{sA}, s{sA}, s{sB}")
    for ql in (3, 2, 1, 0):
        a(f"s_xor_b32 s{sB}, s{sW}, {ql}")
        a(f"s_lshl_b32 s{sB}, s{sB}, 8")
        a(f"s_add_u32 s{sB}, s{sB}, s{sA}")
        a(f"v_add_u32 v{vq + ql}, s{sB}, v{vq}")
    if Cfg.g2lay & 1:
        a(f"s_mul_i32 s{sA}, s{sD}, {54 * 5120}")
        a(f"s_mul_i32 s{sB}, s{sW}, {13 * 5120}")
        a(f"s_add_u32 s{sA}, s{sA}, s{sB}")
        a(f"v_lshlrev_b32 v{vp}, 4, v{vL}")
        a(f"v_add_u32 v{vp}, s{sA}, v{vp}")
    if Cfg.g2lay & 2:
        a(f"s_mul_i32 s{sA}, s{sC}, {54 * 64}")
        a(f"s_mul_i32 s{sB}, s{sW}, {13 * 4096}")
        a(f"s_add_u32 s{sA}, s{sA}, s{sB}")
        a(f"v_lshlrev_b32 v{vq}, 4, v{vL}")
        for ql in (3, 2, 1, 0):
            a(f"s_xor_b32 s{sB}, s{sW}, {ql}")
            a(f"s_lshl_b32 s{sB}, s{sB}, 10")
            a(f"s_add_u32 s{sB}, s{sB}, s{sA}")
            a(f"v_add_u32 v{vq + ql}, s{sB}, v{vq}")
    a("s_waitcnt lgkmcnt(0)")
    if final:
        srd_ws(a, SRD0, "W2T", W2T_SIZE)
    else:
        srd_ws(a, SRD0, "WA2", WA2_SIZE)
    srd_ws(a, SRD1, "H", H_SIZE)
    st = {"p": None, "q": None}

    def ip(t, p, dst):
        if t < 14:
            if Cfg.g2lay & 1:
                a(f"s_mov_b32 s{sOP}, {t * 5120 + p * 1024}")
                a(f"buffer_load_dwordx4 {R(dst, 4)}, v{vp}, s[{SRD0}:{SRD0 + 3}], s{sOP} offen")
                return
            if st["p"] != t:
                a(f"s_mov_b32 s{sOP}, {t * 4 * KB_STR}")
            a(f"buffer_load_dwordx4 {R(dst, 4)}, v{vp}, s[{SRD0}:{SRD0 + 3}], s{sOP} offen offset:{p * 256}")
        else:
            if st["p"] != t:
                a(f"s_mov_b32 s{sOP}, {(t - 14) * 4 * KB_STR}")
            a(f"buffer_load_dwordx4 {R(dst, 4)}, v{vp2}, s[{SRD4}:{SRD4 + 3}], s{sOP} offen offset:{p * 256}")
        st["p"] = t

    def iq(t, q, qb):
        if t < 14:
            if st["q"] != t:
                a(f"s_mov_b32 s{sOQ}, {t * (4096 if Cfg.g2lay & 2 else 4 * H_STR)}")
            a(f"buffer_load_dwordx4 {R(qb + q * 4, 4)}, v{vq + q}, s[{SRD1}:{SRD1 + 3}], s{sOQ} offen")
        else:
            if st["q"] != t:
                a(f"s_mov_b32 s{sOQ}, {(t - 14) * 8 * XP_STR}")
                a(f"s_mov_b32 s{sF}, {((t - 14) * 8 + 1) * XP_STR}")
            a(f"buffer_load_dwordx2 {R(qb + q * 4, 2)}, v{vq2 + q}, s[{SRD5}:{SRD5 + 3}], s{sOQ} offen")
            a(f"buffer_load_dwordx2 {R(qb + q * 4 + 2, 2)}, v{vq2 + q}, s[{SRD5}:{SRD5 + 3}], s{sF} offen")
        st["q"] = t

    def post():
        a(f"s_lshl_b32 s{sE}, s{sW}, 4")
        a(f"s_add_u32 s{sE}, s{sE}, s{sC}")
        if final:
            srd_table(a, SRD4, "ft2")
            srd_ws(a, SRD5, "XP3", XP_SIZE)
            srd(a, SRD2, P_OUT, 0, SEQ * DM * 2)
            srd(a, SRD3, P_B2, 0, DM * 2)
            p_addr(a, vp2, sD, 5)
            a(f"v_lshlrev_b32 v{vq2}, 15, v{vG}")
            a(f"v_lshl_add_u32 v{vq2}, v{vI}, 3, v{vq2}")
            a(f"s_mul_i32 s{sA}, s{sW}, {40 * XP_STR}")
            a(f"s_lshl_b32 s{sB}, s{sC}, 3")
            a(f"s_add_u32 s{sA}, s{sA}, s{sB}")
            for ql in (3, 2, 1, 0):
                a(f"s_xor_b32 s{sB}, s{sW}, {ql}")
                a(f"s_lshl_b32 s{sB}, s{sB}, 7")
                a(f"s_add_u32 s{sB}, s{sB}, s{sA}")
                a(f"v_add_u32 v{vq2 + ql}, s{sB}, v{vq2}")
            a(f"s_mul_i32 s{sA}, s{sD}, 160")
            a(f"v_lshlrev_b32 v{vs}, 3, v{vG}")
            a(f"v_add_u32 v{vs}, s{sA}, v{vs}")
            a(f"v_mul_u32_u24 v{vo}, 1280, v{vI}")
            a(f"v_add_u32 v{vo}, v{vo}, v{vs}")
            a(f"s_mul_i32 s{sA}, s{sE}, 1280")
            a(f"v_add_u32 v{vo}, s{sA}, v{vo}")
        else:
            srd_ws(a, SRD2, "XP2", XP_SIZE)
            srd_ws(a, SRD3, "XP1", XP_SIZE)
            srd_ws(a, SRD4, "SS2", SS_SIZE)
            a(f"s_mul_i32 s{sA}, s{sD}, {20 * XP_STR}")
            a(f"s_lshl_b32 s{sB}, s{sE}, 3")
            a(f"s_add_u32 s{sA}, s{sA}, s{sB}")
            a(f"v_lshlrev_b32 v{vo}, 14, v{vG}")
            a(f"v_lshl_add_u32 v{vo}, v{vI}, 3, v{vo}")
            a(f"v_add_u32 v{vo}, s{sA}, v{vo}")
            a(f"s_lshl_b32 s{sA}, s{sW}, 3")
            a(f"s_lshr_b32 s{sB}, s{sC}, 8")
            a(f"s_add_u32 s{sA}, s{sA}, s{sB}")
            a(f"s_lshl_b32 s{sA}, s{sA}, 8")
            a(f"s_bfe_u32 s{sB}, s{sC}, 0x20006")
            a(f"s_lshl2_add_u32 s{sA}, s{sB}, s{sA}")
            a(f"v_lshlrev_b32 v{vs}, 4, v{vI}")
            a(f"v_add_u32 v{vs}, s{sA}, v{vs}")
            a(f"v_lshl_add_u32 v{vs}, v{vG}, 20, v{vs}")
            a(f"s_cmp_eq_u32 s{sW}, 3")
            a(f"s_cselect_b32 s{sA}, 0x3f80, 0")
            a(f"v_mov_b32 v{vone}, s{sA}")
            a(f"v_cmp_eq_u32 vcc, 0, v{vG}")
            a(f"v_cndmask_b32 v{vone}, 0, v{vone}, vcc")
            a(f"s_cmp_eq_u32 s{sD}, 0")
            a(f"s_cselect_b32 s{sA}, 0, 1.0")
            a(f"v_mov_b32 v{vp2}, s{sA}")
            a(f"v_cndmask_b32 v{vp2}, 1.0, v{vp2}, vcc")

    def prep(t, qb):
        if t == 3:
            for p in range(5):
                if final:
                    a(f"buffer_load_dwordx2 {V(RES + 2 * p, 2)}, v{vs}, s[{SRD3}:{SRD3 + 3}], 0 offen offset:{p * 32}")
                else:
                    a(f"s_mov_b32 s{sF}, {p * 4 * XP_STR}")
                    a(f"buffer_load_dwordx2 {V(RES + 2 * p, 2)}, v{vo}, s[{SRD3}:{SRD3 + 3}], s{sF} offen")
        if t == 12 and not final:
            for q in range(4):
                a(f"v_accvgpr_read_b32 v{TMP + q}, {R(qb + q * 4)}")
            for q in range(4):
                a(f"v_or_b32 v{TMP + q}, v{TMP + q}, v{vone}")
            for q in range(4):
                a(f"v_accvgpr_write_b32 {R(qb + q * 4)}, v{TMP + q}")
        return [qb + q * 4 for q in range(4)]

    res = gemm_ks_hook(a, 19 if final else 14, depth, acc, ring, vred, ip, iq, prep, post)
    a(f"s_mov_b32 s{sK2}, 0xffff0000")
    if not final:
        a(f"v_mov_b32 v{TMP + 8}, 0")
        a(f"v_mov_b32 v{TMP + 9}, 0")
    for p, r in enumerate(res):
        for h in range(2):
            a(f"v_lshlrev_b32 v{TMP + 2 * h}, 16, v{RES + 2 * p + h}")
            a(f"v_and_b32 v{TMP + 2 * h + 1}, s{sK2}, v{RES + 2 * p + h}")
        for h in (0, 2):
            a(f"v_pk_add_f32 {V(r + h, 2)}, {V(r + h, 2)}, {V(TMP + h, 2)}")
        a(f"v_cvt_pk_bf16_f32 v{r}, v{r}, v{r + 1}")
        a(f"v_cvt_pk_bf16_f32 v{r + 1}, v{r + 2}, v{r + 3}")
        if final:
            a(f"buffer_store_dwordx2 {V(r, 2)}, v{vo}, s[{SRD2}:{SRD2 + 3}], 0 offen offset:{p * 32}{Cfg.st_flags}")
        else:
            a(f"s_mov_b32 s{sOP}, {p * 4 * XP_STR}")
            a(f"buffer_store_dwordx2 {V(r, 2)}, v{vo}, s[{SRD2}:{SRD2 + 3}], s{sOP} offen{Cfg.st_flags}")
            if p == 0:
                a(f"v_lshlrev_b32 v{TMP + 4}, 16, v{r}")
                a(f"v_and_b32 v{TMP + 5}, s{sK2}, v{r}")
                a(f"v_mul_f32 v{TMP + 5}, v{TMP + 5}, v{vp2}")
                a(f"v_mul_f32 v{TMP + 8}, v{TMP + 4}, v{TMP + 4}")
                a(f"v_fmac_f32 v{TMP + 8}, v{TMP + 5}, v{TMP + 5}")
            else:
                a(f"v_dot2c_f32_bf16 v{TMP + 8}, v{r}, v{r}")
            a(f"v_dot2c_f32_bf16 v{TMP + 9}, v{r + 1}, v{r + 1}")
    if not final:
        s = TMP + 8
        a(f"v_add_f32 v{s}, v{s}, v{s + 1}")
        for op in ("v_permlane32_swap_b32", "v_permlane16_swap_b32"):
            a(f"v_mov_b32 v{s + 1}, v{s}")
            a(f"{op} v{s}, v{s + 1}")
            a(f"v_add_f32 v{s}, v{s}, v{s + 1}")
        a(f"buffer_atomic_add_f32 v{s}, v{vs}, s[{SRD4}:{SRD4 + 3}], 0 offen")
    return KS_LDS


def gemm_ks_hook(a, nsteps, depth, acc, ring, vred, ip, iq, hook, post):
    return gemm_ks(a, nsteps, depth, acc, ring, vred, True, ip, iq, after_prologue=post, step_hook=hook)


def build_kernel(name, idx, roles):
    a = Asm()
    a.raw(f".globl {name}\n.p2align 8\n.type {name},@function")
    a.label(name)
    a("s_load_dwordx16 s[8:23], s[0:1], 0")
    a("s_load_dwordx4 s[24:27], s[0:1], 64")
    a("s_load_dwordx2 s[28:29], s[0:1], 80")
    if Cfg.stamp:
        a(f"s_memrealtime s[{sST}:{sST + 1}]")
        for j in range(1, 10):
            a(f"s_mov_b32 s{sST + 2 * j}, 0")
    a(f"v_lshrrev_b32 v{vL}, 6, v0")
    a(f"v_and_b32 v{vI}, 15, v0")
    a(f"v_readfirstlane_b32 s{sW}, v{vL}")
    a(f"v_bfe_u32 v{vG}, v0, 4, 2")
    a(f"v_and_b32 v{vL}, 63, v0")
    lds = 0
    start = 0
    starts = [sum(c for c, _ in roles[:n]) for n in range(len(roles) + 1)]
    for n in range(len(roles), 0, -1):
        a(f"s_cmp_ge_u32 s2, {starts[n]}")
        a(f"s_cbranch_scc1 {name}_r{n}")
    for n, (count, fn) in enumerate(roles):
        if n:
            a.label(f"{name}_r{n}")
        a(f"s_sub_u32 s{sT}, s2, {start}")
        lds = max(lds, fn(a))
        if Cfg.stamp:
            mark(a, 10)
            a("s_waitcnt vmcnt(0)")
            mark(a, 11)
            a("s_waitcnt lgkmcnt(0)")
            a(f"s_lshl_b32 s{sA}, s2, 2")
            a(f"s_add_u32 s{sA}, s{sA}, s{sW}")
            a(f"s_lshl_b32 s{sA}, s{sA}, 6")
            a(f"s_add_u32 s{sA}, s{sA}, {idx * 262144}")
            srd_ws(a, SRD0, "STAMP", 1 << 21)
            a("s_waitcnt lgkmcnt(0)")
            for j in range(12):
                a(f"v_mov_b32 v{4 + j}, s{sST + 2 * j}")
            a(f"v_mov_b32 v16, s{sA}")
            for j in range(3):
                a(f"buffer_store_dwordx4 v[{4 + 4 * j}:{7 + 4 * j}], v16, s[{SRD0}:{SRD0 + 3}], 0 offen offset:{16 * j}")
        a("s_endpgm")
        for fn2 in a.tail:
            fn2()
        a.tail = []
        start += count
    a.label(f"{name}_r{len(roles)}")
    a("s_endpgm")
    nv = na = 0
    ns = 0
    for it in a.items:
        if isinstance(it, Inst):
            for k, r in it.dst + it.src + it.srcc:
                if k == "v":
                    nv = max(nv, r + 1)
                elif k == "a":
                    na = max(na, r + 1)
                elif r < 102:
                    ns = max(ns, r + 1)
    acco = (nv + 3) // 4 * 4
    desc = f""".p2align 6
.amdhsa_kernel {name}
  .amdhsa_next_free_vgpr {acco + na}
  .amdhsa_next_free_sgpr {ns}
  .amdhsa_accum_offset {acco}
  .amdhsa_group_segment_fixed_size 0
  .amdhsa_kernarg_size 88
  .amdhsa_user_sgpr_count 2
  .amdhsa_user_sgpr_kernarg_segment_ptr 1
  .amdhsa_system_sgpr_workgroup_id_x 1
.end_amdhsa_kernel
"""
    launch = f"; @launch kernel={name} grid=({start},1,1) block=(256,1,1) lds={lds}"
    if Cfg.stamp:
        launch += "\n; roles " + name + " " + " ".join(str(c) for c, _ in roles)
    return launch, a.finalize(), desc


def tables():
    L = []
    c = np.sqrt(2.0 / DM) * np.cos(2 * np.pi * np.arange(DM) / DM)
    c[160] = 0
    c[480] = 0
    bits = model.bf16_bits(c.astype(np.float32))
    for n in range(DM):
        L.append(f".set cq{n}, {bits[n]}")
    bb = int(model.bf16_bits(np.float32([np.sqrt(1 / DM)]))[0])
    L.append(".altmacro")
    L.append(".macro e8 a,b,c,d,e,f,g,h\n.short cq\\a, cq\\b, cq\\c, cq\\d, cq\\e, cq\\f, cq\\g, cq\\h\n.endm")
    L.append(".macro e6 a,b,c,d,e,f\n.short cq\\a, cq\\b, cq\\c, cq\\d, cq\\e, cq\\f\n.endm")
    L.append(".p2align 12\nft1:")
    L.append(".set td, 0\n.rept 80")
    L.append(".short " + ", ".join(str(bb | (0x8000 if j & 1 else 0)) for j in range(8)))
    L.append(".short " + ", ".join(str(bb) for j in range(8)))
    L.append(".set tm, 1\n.rept 319")
    L.append("e8 " + ", ".join(f"%((tm*(td+{j}))%640)" for j in range(8)))
    L.append("e8 " + ", ".join(f"%((tm*(td+{j})+160)%640)" for j in range(8)))
    L.append(".set tm, tm+1\n.endr\n.set td, td+8\n.endr")
    L.append(".p2align 12\nft2:")
    L.append(".set td, 0\n.rept 640")
    L.append(f".short {bb}+((td&1)<<15), {bb}")
    L.append("e6 " + ", ".join(f"%(({1 + j // 2}*td+{160 * (j & 1)})%640)" for j in range(6)))
    L.append(".set td, td+1\n.endr")
    L.append(".set tm, 4\n.rept 79\n.set td, 0\n.rept 640")
    L.append("e8 " + ", ".join(f"%(((tm+{j // 2})*td+{160 * (j & 1)})%640)" for j in range(8)))
    L.append(".set td, td+1\n.endr\n.set tm, tm+4\n.endr")
    L.append(".noaltmacro")
    return "\n".join(L) + "\n"


def generate(plan=None, tabs=None):
    if plan is None:
        plan = default_plan()
    launches, code, descs = [], [], []
    for idx, (name, roles) in enumerate(plan):
        l, c, d = build_kernel(name, idx, roles)
        launches.append(l)
        code.append(c)
        descs.append(d)
    out = "\n".join(launches) + "\n"
    out += '.amdgcn_target "amdgcn-amd-amdhsa--gfx950"\n.text\n'
    out += "".join(code)
    out += "text_last:\n"
    out += '.section .rodata,"a"\n'
    out += "".join(descs)
    out += (tabs or tables)()
    return out


def default_plan():
    tail = [
        ("g1a_kernel", [(256, lambda a: role_g1(a, "XP1"))]),
        ("g2a_kernel", [(256, lambda a: role_g2(a, False))]),
        ("c2_kernel", [(320, lambda a: role_col(a, "XP2", "SS2", "XP3")), (135, role_w2t)]),
        ("g1b_kernel", [(256, lambda a: role_g1(a, "XP3"))]),
        ("g2b_kernel", [(256, lambda a: role_g2(a, True))]),
    ]
    d = Cfg.pdepth
    if Cfg.plan == 1:
        return [
            ("p0_kernel", [(256, lambda a: role_xhat0(a, d))]),
            ("p1_kernel", [(80, role_wc), (64, role_stats)]),
            ("p2_kernel", [(224, lambda a: role_w2f(a, d))]),
            ("p3_kernel", [(216, lambda a: role_w1f(a, min(d, 4)))]),
            ("c1_kernel", [(320, lambda a: role_col(a, "XP0", "SS0", "XP1"))]),
        ] + tail[:3]
    if Cfg.plan == 2:
        return [
            ("p0_kernel", [(256, lambda a: role_xhat0(a, d)), (80, role_wc), (64, role_stats)]),
            ("c1_kernel", [(320, lambda a: role_col(a, "XP0", "SS0", "XP1")), (216, lambda a: role_w1f(a, min(d, 4))),
                           (224, lambda a: role_w2f(a, min(d, 4), 112))]),
        ] + tail
    return [
        ("p0_kernel", [(256, lambda a: role_xhat0(a, 4)), (80, role_wc), (64, role_stats),
                       (224, lambda a: role_w2f(a, 4))]),
        ("c1_kernel", [(320, lambda a: role_col(a, "XP0", "SS0", "XP1")), (216, lambda a: role_w1f(a, 4))]),
        ("g1a_kernel", [(256, lambda a: role_g1(a, "XP1"))]),
        ("g2a_kernel", [(256, lambda a: role_g2(a, False))]),
        ("c2_kernel", [(320, lambda a: role_col(a, "XP2", "SS2", "XP3")), (135, role_w2t)]),
        ("g1b_kernel", [(256, lambda a: role_g1(a, "XP3"))]),
        ("g2b_kernel", [(256, lambda a: role_g2(a, True))]),
    ]


if __name__ == "__main__":
    out = sys.argv[1]
    for opt in sys.argv[2:]:
        if opt == "stamp":
            Cfg.stamp = True
        if "=" in opt:
            k, v = opt.split("=")
            setattr(Cfg, k, int(v) if v.lstrip("-").isdigit() else v.replace("_", " "))
        if opt == "clk":
            Cfg.stamp = Cfg.clk = True
    open(out, "w").write(generate())
```

```python
from gen import *

GELU_K0 = -2.0 * 0.7978845608028654 * 1.4426950408889634
EPS = 1e-5
SPIN_MAX = 1 << 16


class MC:
    look = 22
    per_step = 4
    bars = (0, 1, 2, 3, 4, 6, 8, 10, 12, 14, 16, 18)
    gelu_loads = 3
    after_store = 0
    poll_lead = 10
    qdepth = 5
    qflags = " sc1"


def role_mlp(a, final, name):
    src = "XP3" if final else "XP1"
    vx, vl0, vw, vp = 4, 5, 8, 15
    X, ACC1, Z, vo, vmk, CC = 16, 176, 232, 248, 249, 250
    GR = Z
    vdc, ve = 256 + 248, 10
    WR, NW, AHEAD = 256, 12, 8
    ACC2, EACC = 16, 224
    DIAG = (4, 6, 30, 70)
    sRB, sMM, sFL, sCNT = 96, 97, 98, 99
    SRDF = SRD5

    def preg(t, p):
        base = 256 + 48 + 20 * t if t < 10 else (176 + 20 * (t - 10) if t < 12 else 96 + 20 * (t - 12))
        return base + 4 * p

    def qreg(t, q):
        k = t % MC.qdepth
        return (256 + 16 * k if k < 3 else 136 + 16 * (k - 3)) + 4 * q

    a(f"s_and_b32 s{sA}, s{sT}, 7")
    a(f"s_lshr_b32 s{sB}, s{sA}, 1")
    a(f"s_lshl_b32 s{sB}, s{sB}, 2")
    a(f"s_bfe_u32 s{sRB}, s{sT}, 0x20003")
    a(f"s_add_u32 s{sRB}, s{sRB}, s{sB}")
    a(f"s_and_b32 s{sA}, s{sA}, 1")
    a(f"s_lshl_b32 s{sA}, s{sA}, 3")
    a(f"s_lshr_b32 s{sMM}, s{sT}, 5")
    a(f"s_add_u32 s{sMM}, s{sMM}, s{sA}")
    a(f"s_mul_i32 s{sD}, s{sMM}, 27")
    a(f"s_lshr_b32 s{sD}, s{sD}, 2")
    a(f"s_lshl_b32 s{sC}, s{sRB}, 7")
    a(f"s_lshl_b32 s{sA}, s{sW}, 5")
    a(f"s_add_u32 s{sC}, s{sC}, s{sA}")
    a(f"v_lshlrev_b32 v{vx}, 15, v{vG}")
    a(f"v_lshl_add_u32 v{vx}, v{vI}, 4, v{vx}")
    a(f"s_lshl_b32 s{sA}, s{sC}, 3")
    a(f"v_add_u32 v{vx}, s{sA}, v{vx}")
    a(f"v_mul_u32_u24 v{vl0}, {FF}, v{vG}")
    a(f"v_add_lshl_u32 v{vl0}, v{vl0}, v{vI}, 4")
    a(f"s_lshl_b32 s{sB}, s{sD}, 8")
    a(f"s_add_u32 s{sB}, s{sB}, {12 * W1F_STR}")
    for jj in range(7):
        a(f"s_add_u32 s{sA}, s{sW}, {4 * jj}")
        a(f"s_mul_i32 s{sE}, s{sA}, 37")
        a(f"s_lshr_b32 s{sE}, s{sE}, 8")
        a(f"s_mul_i32 s{sE}, s{sE}, {4 * W1F_STR + 1792}")
        a(f"s_lshl_b32 s{sA}, s{sA}, 8")
        a(f"s_sub_u32 s{sA}, s{sA}, s{sE}")
        a(f"s_add_u32 s{sA}, s{sA}, s{sB}")
        a(f"v_add_u32 v{vw + jj}, s{sA}, v{vl0}")
    a(f"s_lshl_b32 s{sE}, s{sW}, 10")
    a(f"v_lshlrev_b32 v{vl0}, 4, v{vL}")
    a("s_waitcnt lgkmcnt(0)")
    srd_ws(a, SRD0, "W1F", W1F_SIZE)
    srd_ws(a, SRD1, src, XP_SIZE)

    def xr(t, st):
        return X + t * 8 + st * 4

    def acc(ft, st):
        return ACC1 + (ft * 2 + st) * 4

    st_ = {"wc": None, "p": None, "e": None}
    done = set()

    def w_load(j):
        def f():
            c, jj = divmod(j, 7)
            if st_["wc"] != c:
                a(f"s_mov_b32 s{sOP}, {(4 - c) * 16 * W1F_STR}")
                st_["wc"] = c
            a(f"s_add_u32 m0, s{sE}, {j * 4096}")
            a(f"buffer_load_dwordx4 v{vw + jj}, s[{SRD0}:{SRD0 + 3}], s{sOP} offen lds", tag=f"w{j}")
            done.add(("w", j))
        return f

    def x_load(t, h):
        def f():
            a(f"s_mov_b32 s{sOQ}, {(8 * (19 - t) + h) * XP_STR}")
            a(f"buffer_load_dwordx4 {V(xr(t, h), 4)}, v{vx}, s[{SRD1}:{SRD1 + 3}], s{sOQ} offen")
            done.add(("x", t, h))
        return f

    def e_load(j):
        def f():
            c, jj = divmod(j, 3)
            if st_["e"] != c:
                a(f"s_mov_b32 s{sOP}, {(4 - c) * 16 * KB_STR}")
                st_["e"] = c
            a(f"s_add_u32 m0, s{sE}, {j * 4096}")
            a(f"buffer_load_dwordx4 v{ve + jj}, s[{SRD4}:{SRD4 + 3}], s{sOP} offen lds", tag="e")
            done.add(("e", j))
        return f

    def p_load(t, p):
        def f():
            if st_["p"] != t:
                a(f"s_mov_b32 s{sF}, {t * 4 * KB_STR}")
                st_["p"] = t
            a(f"buffer_load_dwordx4 {R(preg(t, p), 4)}, v{vp}, s[{SRD2}:{SRD2 + 3}], s{sF} offen offset:{p * 256}")
        return f

    xorder = list(range(13)) + [19] + list(range(13, 19))
    g1 = []
    jn = 0
    for t in range(20):
        if t == 0:
            g1 += [x_load(0, 0), x_load(0, 1)]
        while jn <= (7 * t + 6) // 4:
            g1.append(w_load(jn))
            jn += 1
        if t + 1 < 20:
            g1 += [x_load(xorder[t + 1], 0), x_load(xorder[t + 1], 1)]
    queue = [(f, 0) for f in g1]
    if final:
        queue += [("esetup", 12)] + [(e_load(j), 12) for j in range(15)]
    queue += [(p_load(t, p), 0) for t in range(10) for p in range(5)]
    late = [(t, p) for t in range(10, 14) for p in range(5)]

    def esetup():
        a(f"s_mul_i32 s{sB}, s{sMM}, 5")
        a(f"s_lshr_b32 s{sB}, s{sB}, 1")
        a(f"s_lshl_b32 s{sB}, s{sB}, 8")
        a(f"s_add_u32 s{sB}, s{sB}, {12 * KB_STR}")
        a(f"v_mul_u32_u24 v{ve + 3}, {DM}, v{vG}")
        a(f"v_add_lshl_u32 v{ve + 3}, v{ve + 3}, v{vI}, 4")
        for jj in range(3):
            a(f"s_add_u32 s{sA}, s{sW}, {4 * jj}")
            a(f"s_mul_i32 s{sK0}, s{sA}, 86")
            a(f"s_lshr_b32 s{sK0}, s{sK0}, 8")
            a(f"s_mul_i32 s{sK0}, s{sK0}, {4 * KB_STR + 768}")
            a(f"s_lshl_b32 s{sA}, s{sA}, 8")
            a(f"s_sub_u32 s{sA}, s{sA}, s{sK0}")
            a(f"s_add_u32 s{sA}, s{sA}, s{sB}")
            a(f"v_add_u32 v{ve + jj}, s{sA}, v{ve + 3}")

    cur = {"bar": -1}

    def issue(n):
        while n > 0 and queue and queue[0][1] <= cur["bar"] + (queue[0][1] == 0):
            f, _ = queue.pop(0)
            if f == "esetup":
                esetup()
                continue
            f()
            n -= 1

    def need(key):
        while key not in done:
            n0 = len(queue)
            issue(1)
            assert len(queue) < n0, key

    issue(MC.look)

    a(f"v_add_u32 v{vl0 + 1}, 0x10000, v{vl0}")
    a(f"v_add_u32 v{vl0 + 2}, 0x20000, v{vl0}")
    srd_ws(a, SRD2, "W2T" if final else "WA2", W2T_SIZE if final else (218 * KB_STR if Cfg.rho else WA2_SIZE))
    srd_ws(a, SRD3, "H", H_SIZE)
    srd_ws(a, SRDF, "FLAG", FLAG_SIZE)
    if final:
        srd_table(a, SRD4, "ft2")
    a(f"v_lshrrev_b32 v{vo}, 1, v{vG}")
    a(f"v_mul_u32_u24 v{vo}, {H_STR}, v{vo}")
    a(f"v_lshl_add_u32 v{vo}, v{vI}, 5, v{vo}")
    a(f"v_and_b32 v{vmk}, 1, v{vG}")
    a(f"v_lshl_add_u32 v{vo}, v{vmk}, 4, v{vo}")
    a(f"s_mul_i32 s{sA}, s{sD}, {2 * H_STR}")
    a(f"s_lshl_b32 s{sB}, s{sC}, 4")
    a(f"s_add_u32 s{sA}, s{sA}, s{sB}")
    a(f"v_add_u32 v{vo}, s{sA}, v{vo}")
    a(f"v_cmp_eq_u32 vcc, 0, v{vG}")
    a(f"v_mov_b32 v{vmk}, 0xffff0000")
    a(f"v_cndmask_b32 v{vmk}, 0, v{vmk}, vcc")
    a(f"s_lshr_b32 s{sA}, s{sMM}, 3")
    a(f"s_lshl_b32 s{sA}, s{sA}, 2")
    a(f"s_and_b32 s{sD}, s{sMM}, 3")
    a(f"s_add_u32 s{sD}, s{sD}, s{sA}")
    p_addr(a, vp, sD, 14)
    for r in range(4):
        m = 0x1000010000100001 << r
        a(f"s_mov_b32 s{DIAG[r]}, {m & 0xffffffff:#x}")
        a(f"s_mov_b32 s{DIAG[r] + 1}, {m >> 32:#x}")
    a(f"s_lshl_b32 s{sFL}, s{sRB}, 7")
    a(f"s_add_u32 s{sFL}, s{sFL}, {2048 if final else 0}")
    mark(a, 1)

    def wreg(n):
        return WR + (n % NW) * 4

    bars = list(MC.bars) + [20]
    rd_ = {"n": 0}

    def lds_read(dst, off):
        a(f"ds_read_b128 {R(dst, 4)}, v{vl0 + (off >> 16)} offset:{off & 0xffff}")

    def rd_upto(hi):
        while rd_["n"] < min(hi, 140):
            n = rd_["n"]
            if n % 7 == 0 and n // 7 in bars:
                t_end = bars[bars.index(n // 7) + 1]
                need(("w", (7 * t_end - 1) // 4))
                a.wait_tag(f"w{(7 * t_end - 1) // 4}")
                a("s_barrier")
                cur["bar"] = n // 7
            lds_read(wreg(n), n * 1024)
            rd_["n"] += 1

    def prep_x(t, first):
        need(("x", t, 1))
        a(f"v_swap_b32 v{xr(t, 0) + 2}, v{xr(t, 1)}")
        a(f"v_swap_b32 v{xr(t, 0) + 3}, v{xr(t, 1) + 1}")
        if t == 19:
            for st in range(2):
                if final:
                    a(f"v_accvgpr_write_b32 {R(vdc + st)}, v{xr(t, st)}")
                a(f"v_bfi_b32 v{xr(t, st)}, v{vmk}, 0, v{xr(t, st)}")
        return [lambda st=st: mfma(a, GR + 4 * st, xr(t, st), xr(t, st), None if first else GR + 4 * st)
                for st in range(2)]

    T = Z + 8

    def stats_ops():
        ops = []
        for r in range(4):
            for st in range(2):
                prev = "0" if r == 0 else f"v{T + 2 * st}"
                ops.append(f"v_cndmask_b32_e64 v{T + 2 * st}, {prev}, v{GR + 4 * st + r}, s[{DIAG[r]}:{DIAG[r] + 1}]")
        for op in ("v_permlane32_swap_b32", "v_permlane16_swap_b32"):
            ops += [f"v_mov_b32 v{T + 2 * st + 1}, v{T + 2 * st}" for st in range(2)]
            ops += [f"{op} v{T + 2 * st}, v{T + 2 * st + 1}" for st in range(2)]
            ops += [f"v_add_f32 v{T + 2 * st}, v{T + 2 * st}, v{T + 2 * st + 1}" for st in range(2)]
        ops.append(f"v_mov_b32 v{T + 4}, {f32bits(EPS * EPS):#x}")
        ops += [f"v_fmamk_f32 v{T + 2 * st}, v{T + 2 * st}, {f32bits((1 + EPS) / DM):#x}, v{T + 4}" for st in range(2)]
        ops += [f"v_rsq_f32 v{T + 2 * st + 1}, v{T + 2 * st}" for st in range(2)]
        ops += [f"v_mul_f32 v{CC + 4 + st}, v{T + 2 * st}, v{T + 2 * st + 1}" for st in range(2)]
        ops += [f"v_cvt_pk_bf16_f32 v{T + 2 * st}, v{CC + 4 + st}, v{CC + 4 + st}" for st in range(2)]
        ops += [f"v_bfi_b32 v{xr(19, st)}, v{vmk}, v{T + 2 * st}, v{xr(19, st)}" for st in range(2)]
        ops += [f"v_mul_f32 v{CC + st}, {f32bits(GELU_K0):#x}, v{T + 2 * st + 1}" for st in range(2)]
        ops += [f"v_mul_f32 v{T + 2 * st}, v{T + 2 * st + 1}, v{T + 2 * st + 1}" for st in range(2)]
        ops += [f"v_mul_f32 v{T + 2 * st}, {f32bits(0.044715):#x}, v{T + 2 * st}" for st in range(2)]
        ops += [f"v_mul_f32 v{CC + 2 + st}, v{CC + st}, v{T + 2 * st}" for st in range(2)]
        return ops

    rd_upto(AHEAD)
    for g in prep_x(0, True):
        g()
    gram_at = {t: ([t + 1] if t + 1 <= 18 else []) for t in range(20)}
    gram_at[14].append(19)
    sops = []
    for t in range(20):
        pend = []
        if t == 18:
            sops = stats_ops()
        for ft in range(7):
            n = 7 * t + ft
            rd_upto(n + AHEAD + 1)
            if ft in (3, 5) and len(gram_at[t]) > (ft - 3) // 2:
                pend = prep_x(gram_at[t][(ft - 3) // 2], False)
            for st in range(2):
                mfma(a, acc(ft, st), wreg(n), xr(t, st), None if t == 0 else acc(ft, st))
                for _ in range(3):
                    if sops and (ft, st) != (0, 0):
                        a(sops.pop(0))
            for g in pend:
                g()
            pend = []
            if ft < MC.per_step * 2 and ft % 2 == 0 or (MC.per_step > 4 and ft % 2 == 1 and ft // 2 < MC.per_step - 4):
                issue(1)
        while sops:
            a(sops.pop(0))
    mark(a, 2)

    if not final:
        queue.extend((p_load(t, p), 0) for t, p in late[10:])
    for ft in range(7):
        Zs = Z + 8 * (ft & 1)
        prs = [(acc(ft, st) + h, Zs + st * 4 + h, st) for st in range(2) for h in (0, 2)]

        def sel(st, pos):
            lo = [0, 0, 0]
            hi = [1, 1, 1]
            for k in pos:
                lo[k] = hi[k] = st
            return f"op_sel:[{lo[0]},{lo[1]},{lo[2]}] op_sel_hi:[{hi[0]},{hi[1]},{hi[2]}]"

        for x, z, st in prs:
            a(f"v_pk_mul_f32 {V(z, 2)}, {V(x, 2)}, {V(x, 2)}")
        for x, z, st in prs:
            a(f"v_pk_fma_f32 {V(z, 2)}, {V(z, 2)}, {V(CC + 2, 2)}, {V(CC, 2)} {sel(st, (1, 2))}")
        for x, z, st in prs:
            a(f"v_pk_mul_f32 {V(z, 2)}, {V(z, 2)}, {V(x, 2)}")
        if MC.gelu_loads > 0:
            issue(1)
        for k in range(8):
            a(f"v_exp_f32 v{Zs + k}, v{Zs + k}")
        for x, z, st in prs:
            a(f"v_pk_fma_f32 {V(z, 2)}, {V(z, 2)}, {V(CC + 4, 2)}, {V(CC + 4, 2)} {sel(st, (1, 2))}")
        if MC.gelu_loads > 1:
            issue(1)
        for k in range(8):
            a(f"v_rcp_f32 v{Zs + k}, v{Zs + k}")
        for x, z, st in prs:
            a(f"v_pk_mul_f32 {V(z, 2)}, {V(z, 2)}, {V(x, 2)}")
        for k in range(4):
            a(f"v_cvt_pk_bf16_f32 v{Zs + k}, v{Zs + 2 * k}, v{Zs + 2 * k + 1}")
        a(f"s_mov_b32 s{sOQ}, {ft * 2 * H_STR}")
        a(f"v_permlane16_swap_b32 v{Zs}, v{Zs + 2}")
        a(f"v_permlane16_swap_b32 v{Zs + 1}, v{Zs + 3}")
        a(f"buffer_store_dwordx4 {V(Zs, 4)}, v{vo}, s[{SRD3}:{SRD3 + 3}], s{sOQ} offen sc1", tag="h")
        if MC.gelu_loads > 2 and ft < 6:
            issue(MC.gelu_loads - 2)
    mark(a, 3)
    queue.extend((p_load(t, p), 0) for t, p in late[:10])

    vq, vred, vo2, vs, vone, vpl, vfl = 216, 220, 4, 9, 13, 14, 8
    RES, BIA, TMP = 224, 234, 244

    def signal(tag, off):
        a.wait_tag(tag)
        a("s_barrier")
        a(f"buffer_store_dword v{vone}, v{vpl}, s[{SRDF}:{SRDF + 3}], s{sFL} offen offset:{off} sc1")

    if final:
        need(("e", 14))
    a(f"v_mov_b32 v{vone}, 1")
    a(f"v_lshlrev_b32 v{vpl}, 20, v0")
    a(f"s_lshl_b32 s{sA}, s{sMM}, 2")
    a(f"v_add_u32 v{vpl}, s{sA}, v{vpl}")
    issue(MC.after_store)
    signal("h", 0)
    mark(a, 4)

    if final:
        for st in range(2):
            a(f"v_accvgpr_read_b32 v{xr(19, st)}, {R(vdc + st)}")
        a.wait_tag("e")
        a("s_barrier")
        srd_ws(a, SRD4, "X3", XP_SIZE)
        a(f"s_mul_i32 s{sA}, s{sMM}, 5")
        a(f"s_lshr_b32 s{sA}, s{sA}, 1")
        a(f"s_mul_i32 s{sA}, s{sA}, {4 * XP_STR}")
        a(f"s_lshl_b32 s{sB}, s{sC}, 3")
        a(f"s_add_u32 s{sA}, s{sA}, s{sB}")
        a(f"v_lshlrev_b32 v{ve}, 14, v{vG}")
        a(f"v_lshl_add_u32 v{ve}, v{vI}, 4, v{ve}")
        a(f"v_add_u32 v{ve}, s{sA}, v{ve}")
        nr = 0
        for n in range(60):
            t, et = divmod(n, 3)
            while nr < min(60, n + AHEAD + 1):
                lds_read(wreg(nr), nr * 1024)
                nr += 1
            for st in range(2):
                d = EACC + (et * 2 + st) * 4
                mfma(a, d, wreg(n), xr(t, st), None if t == 0 else d)
            if n % 3 == 1:
                issue(1)
        queue.extend((p_load(t, p), 0) for t, p in late[10:])
        for et in range(3):
            d = EACC + et * 8
            for k in range(4):
                a(f"v_cvt_pk_bf16_f32 v{d + k}, v{d + 2 * k}, v{d + 2 * k + 1}")
            a(f"s_mov_b32 s{sOQ}, {et * 4 * XP_STR}")
            a(f"buffer_store_dwordx4 {V(d, 4)}, v{ve}, s[{SRD4}:{SRD4 + 3}], s{sOQ} offen sc1", tag="x3")

    a(f"s_bfe_u32 s{sA}, s{sMM}, 0x10002")
    a(f"s_lshl_b32 s{sA}, s{sA}, 6")
    a(f"s_lshl_b32 s{sC}, s{sRB}, 7")
    a(f"s_add_u32 s{sC}, s{sC}, s{sA}")
    a(f"v_lshlrev_b32 v{vfl}, 2, v{vI}")

    def poll_issue(reg, off):
        a(f"buffer_load_dword v{reg}, v{vfl}, s[{SRDF}:{SRDF + 3}], s{sFL} offen offset:{off} sc1")

    def poll_check(reg, off, lab):
        a(f"v_cmp_ne_u32 vcc, 1, v{reg}")
        a(f"s_mov_b32 s{sCNT}, 0")
        a(f"s_cbranch_vccnz {lab}_spin")
        a.label(f"{lab}_ok", keep=True)

        def spin():
            a.label(f"{lab}_spin")
            poll_issue(reg, off)
            a(f"s_add_u32 s{sCNT}, s{sCNT}, 1")
            a(f"s_cmp_ge_u32 s{sCNT}, {SPIN_MAX}")
            a("s_waitcnt vmcnt(0)")
            a(f"s_cbranch_scc1 {lab}_ok")
            a(f"v_cmp_ne_u32 vcc, 1, v{reg}")
            a(f"s_cbranch_vccnz {lab}_spin")
            a(f"s_branch {lab}_ok")
        a.tail.append(spin)

    issue(max(0, len(queue) - MC.poll_lead))
    poll_issue(vmk, 0)
    a(f"v_mul_u32_u24 v{vq}, {H_STR}, v{vG}")
    a(f"v_lshl_add_u32 v{vq}, v{vI}, 4, v{vq}")
    a(f"s_mul_i32 s{sA}, s{sW}, {14 * 4 * H_STR}")
    a(f"s_lshl_b32 s{sB}, s{sC}, 4")
    a(f"s_add_u32 s{sA}, s{sA}, s{sB}")
    for ql in (3, 2, 1, 0):
        a(f"s_xor_b32 s{sB}, s{sW}, {ql}")
        a(f"s_lshl_b32 s{sB}, s{sB}, 8")
        a(f"s_add_u32 s{sB}, s{sB}, s{sA}")
        a(f"v_add_u32 v{vq + ql}, s{sB}, v{vq}")
    issue(1000)
    if final:
        signal("x3", 2048)
    a(f"s_lshl_b32 s{sE}, s{sW}, 4")
    a(f"s_add_u32 s{sE}, s{sE}, s{sC}")
    a(f"s_mul_i32 s{sA}, s{sD}, {20 * XP_STR}")
    a(f"s_lshl_b32 s{sB}, s{sE}, 3")
    a(f"s_add_u32 s{sA}, s{sA}, s{sB}")
    a(f"v_lshlrev_b32 v{vo2}, 14, v{vG}")
    a(f"v_lshl_add_u32 v{vo2}, v{vI}, 3, v{vo2}")
    a(f"v_add_u32 v{vo2}, s{sA}, v{vo2}")
    vw3 = [vred, vred + 1, vred + 2]
    vr = vred + 3
    for ql in (1, 2, 3):
        a(f"s_xor_b32 s{sA}, s{sW}, {ql}")
        a(f"s_mul_i32 s{sA}, s{sA}, 15360")
        a(f"s_add_u32 s{sA}, s{sA}, {(ql - 1) * 5120}")
        a(f"v_add_u32 v{vw3[ql - 1]}, s{sA}, v{vl0}")
    a(f"s_mul_i32 s{sA}, s{sW}, 15360")
    a(f"v_add_u32 v{vr}, s{sA}, v{vl0}")
    poll_check(vmk, 0, f"{name}_pa")
    mark(a, 5)

    qs = {"t": None}

    def q_load(t, q):
        if qs["t"] != t:
            a(f"s_mov_b32 s{sOQ}, {t * 4 * H_STR}")
            qs["t"] = t
        a(f"buffer_load_dwordx4 {R(qreg(t, q), 4)}, v{vq + q}, s[{SRD3}:{SRD3 + 3}], s{sOQ} offen{MC.qflags}")

    for t in range(MC.qdepth):
        for q in range(4):
            q_load(t, q)

    vout, vdcm = 11, 12
    if final:
        srd(a, SRD0, P_OUT, 0, SEQ * DM * 2)
        srd(a, SRD1, P_B2, 0, DM * 2)
        a(f"s_mul_i32 s{sA}, s{sD}, 160")
        a(f"v_lshlrev_b32 v{vs}, 3, v{vG}")
        a(f"v_add_u32 v{vs}, s{sA}, v{vs}")
        if Cfg.rho:
            a(f"s_bfe_u32 s{sA}, s{sE}, 0x10004")
            a(f"s_lshl_b32 s{sA}, s{sA}, 3")
            a(f"s_lshr_b32 s{sB}, s{sE}, 9")
            a(f"s_lshl4_add_u32 s{sA}, s{sB}, s{sA}")
            a(f"s_bfe_u32 s{sB}, s{sE}, 0x20005")
            a(f"s_lshl_b32 s{sB}, s{sB}, 8")
            a(f"s_add_u32 s{sA}, s{sA}, s{sB}")
            a(f"s_and_b32 s{sB}, s{sE}, 128")
            a(f"s_add_u32 s{sA}, s{sA}, s{sB}")
            a(f"s_and_b32 s{sB}, s{sE}, 256")
            a(f"s_lshl2_add_u32 s{sA}, s{sB}, s{sA}")
            a(f"v_and_b32 v{vout}, 1, v{vI}")
            a(f"v_lshlrev_b32 v{vout}, 6, v{vout}")
            a(f"v_lshrrev_b32 v{vdcm}, 1, v{vI}")
            a(f"v_add3_u32 v{vout}, v{vout}, v{vdcm}, s{sA}")
            a(f"v_mul_u32_u24 v{vout}, 1280, v{vout}")
            a(f"v_add_u32 v{vout}, v{vout}, v{vs}")
        else:
            a(f"v_mul_u32_u24 v{vout}, 1280, v{vI}")
            a(f"v_add_u32 v{vout}, v{vout}, v{vs}")
            a(f"s_mul_i32 s{sA}, s{sE}, 1280")
            a(f"v_add_u32 v{vout}, s{sA}, v{vout}")
    else:
        srd_ws(a, SRD0, "XP2", XP_SIZE)
        srd_ws(a, SRD4, "SS2", SS_SIZE)
        if Cfg.rho:
            a(f"s_lshr_b32 s{sA}, s{sE}, 8")
            a(f"s_lshl_b32 s{sA}, s{sA}, 10")
            a(f"s_and_b32 s{sB}, s{sE}, 127")
            a(f"s_lshl3_add_u32 s{sA}, s{sB}, s{sA}")
            a(f"s_bfe_u32 s{sB}, s{sE}, 0x10007")
            a(f"s_lshl3_add_u32 s{sA}, s{sB}, s{sA}")
            a(f"v_lshrrev_b32 v{vs}, 1, v{vI}")
            a(f"v_lshlrev_b32 v{vs}, 4, v{vs}")
            a(f"v_and_b32 v{vdcm}, 1, v{vI}")
            a(f"v_lshl_add_u32 v{vs}, v{vdcm}, 2, v{vs}")
        else:
            a(f"s_lshl_b32 s{sA}, s{sW}, 3")
            a(f"s_lshr_b32 s{sB}, s{sC}, 8")
            a(f"s_add_u32 s{sA}, s{sA}, s{sB}")
            a(f"s_lshl_b32 s{sA}, s{sA}, 8")
            a(f"s_bfe_u32 s{sB}, s{sC}, 0x20006")
            a(f"s_lshl2_add_u32 s{sA}, s{sB}, s{sA}")
            a(f"v_lshlrev_b32 v{vs}, 4, v{vI}")
        a(f"v_add_u32 v{vs}, s{sA}, v{vs}")
        a(f"v_lshl_add_u32 v{vs}, v{vG}, 20, v{vs}")
        a(f"s_cmp_eq_u32 s{sW}, 3")
        a(f"s_cselect_b32 s{sA}, 0x3f80, 0")
        a(f"v_mov_b32 v{vone}, s{sA}")
        a(f"v_cmp_eq_u32 vcc, 0, v{vG}")
        a(f"v_cndmask_b32 v{vone}, 0, v{vone}, vcc")
        a(f"s_cmp_eq_u32 s{sD}, 0")
        a(f"s_cselect_b32 s{sA}, 0, 1.0")
        a(f"v_mov_b32 v{vdcm}, s{sA}")
        a(f"v_cndmask_b32 v{vdcm}, 1.0, v{vdcm}, vcc")

    def accr(p, q):
        return ACC2 + (q * 5 + p) * 4

    def wr(q, p):
        a(f"ds_write_b128 v{vw3[q - 1]}, {R(accr(p, q), 4)} offset:{p * 1024}")

    def res_loads(srd_, flags):
        for p in range(5):
            a(f"s_mov_b32 s{sF}, {p * 4 * XP_STR}")
            a(f"buffer_load_dwordx2 {V(RES + 2 * p, 2)}, v{vo2}, s[{srd_}:{srd_ + 3}], s{sF} offen{flags}")

    NS = 14
    for t in range(NS):
        last = t == NS - 1
        if t == 1:
            mark(a, 6)
        if final and t == 4:
            poll_issue(vmk, 2048)
            for p in range(5):
                a(f"buffer_load_dwordx2 {V(BIA + 2 * p, 2)}, v{vs}, s[{SRD1}:{SRD1 + 3}], 0 offen offset:{p * 32}")
        if final and t == NS - MC.qdepth:
            poll_check(vmk, 2048, f"{name}_pb")
            res_loads(SRD4, " sc1")
        if not final and t == NS - MC.qdepth:
            res_loads(SRD1, "")
        if t == 12 and not final:
            for q in range(4):
                r = qreg(t, q)
                if r >= 256:
                    a(f"v_accvgpr_read_b32 v{TMP + q}, {R(r)}")
                    a(f"v_or_b32 v{TMP + q}, v{TMP + q}, v{vone}")
                    a(f"v_accvgpr_write_b32 {R(r)}, v{TMP + q}")
                else:
                    a(f"v_or_b32 v{r}, v{r}, v{vone}")
        qorder = (1, 2, 3, 0) if last else (0, 1, 2, 3)
        for n, q in enumerate(qorder):
            for p in range(5):
                mfma(a, accr(p, q), preg(t, p), qreg(t, q), None if t == 0 else accr(p, q))
                if last and n >= 2:
                    wr(qorder[n - 2], p)
            if t + MC.qdepth < NS:
                q_load(t + MC.qdepth, q)
        if last:
            for p in range(5):
                wr(3, p)
    mark(a, 7)
    a("s_waitcnt lgkmcnt(0)")
    a("s_barrier")
    mark(a, 8)
    for p in range(5):
        for s_ in range(3):
            a(f"ds_read_b128 {R(accr(p, s_ + 1), 4)}, v{vr} offset:{s_ * 5120 + p * 1024}")
    a(f"s_mov_b32 s{sK2}, 0xffff0000")
    E = 96
    for p in range(5):
        e = E + 8 * p
        for h in range(2):
            a(f"v_lshlrev_b32 v{e + 2 * h}, 16, v{RES + 2 * p + h}")
            a(f"v_and_b32 v{e + 2 * h + 1}, s{sK2}, v{RES + 2 * p + h}")
            if final:
                a(f"v_lshlrev_b32 v{e + 4 + 2 * h}, 16, v{BIA + 2 * p + h}")
                a(f"v_and_b32 v{e + 4 + 2 * h + 1}, s{sK2}, v{BIA + 2 * p + h}")
        for h in (0, 2):
            d = accr(p, 0) + h
            a(f"v_pk_add_f32 {V(d, 2)}, {V(d, 2)}, {V(e + h, 2)}")
            if final:
                a(f"v_pk_add_f32 {V(d, 2)}, {V(d, 2)}, {V(e + 4 + h, 2)}")
    if not final:
        a(f"v_mov_b32 v{TMP + 2}, 0")
        a(f"v_mov_b32 v{TMP + 3}, 0")
    for p in range(5):
        r = accr(p, 0)
        for h in (0, 2):
            a(f"v_pk_add_f32 {V(accr(p, 1) + h, 2)}, {V(accr(p, 1) + h, 2)}, {V(accr(p, 2) + h, 2)}")
            a(f"v_pk_add_f32 {V(r + h, 2)}, {V(r + h, 2)}, {V(accr(p, 3) + h, 2)}")
        for h in (0, 2):
            a(f"v_pk_add_f32 {V(r + h, 2)}, {V(r + h, 2)}, {V(accr(p, 1) + h, 2)}")
        a(f"v_cvt_pk_bf16_f32 v{r}, v{r}, v{r + 1}")
        a(f"v_cvt_pk_bf16_f32 v{r + 1}, v{r + 2}, v{r + 3}")
        if final:
            a(f"buffer_store_dwordx2 {V(r, 2)}, v{vout}, s[{SRD0}:{SRD0 + 3}], 0 offen offset:{p * 32}")
        else:
            a(f"s_mov_b32 s{sOP}, {p * 4 * XP_STR}")
            a(f"buffer_store_dwordx2 {V(r, 2)}, v{vo2}, s[{SRD0}:{SRD0 + 3}], s{sOP} offen")
            if p == 0:
                a(f"v_lshlrev_b32 v{TMP}, 16, v{r}")
                a(f"v_and_b32 v{TMP + 1}, s{sK2}, v{r}")
                a(f"v_mul_f32 v{TMP + 1}, v{TMP + 1}, v{vdcm}")
                a(f"v_mul_f32 v{TMP + 2}, v{TMP}, v{TMP}")
                a(f"v_fmac_f32 v{TMP + 2}, v{TMP + 1}, v{TMP + 1}")
            else:
                a(f"v_dot2c_f32_bf16 v{TMP + 2}, v{r}, v{r}")
            a(f"v_dot2c_f32_bf16 v{TMP + 3}, v{r + 1}, v{r + 1}")
    if not final:
        s = TMP + 2
        a(f"v_add_f32 v{s}, v{s}, v{s + 1}")
        for op in ("v_permlane32_swap_b32", "v_permlane16_swap_b32"):
            a(f"v_mov_b32 v{s + 1}, v{s}")
            a(f"{op} v{s}, v{s + 1}")
            a(f"v_add_f32 v{s}, v{s}, v{s + 1}")
        a(f"buffer_atomic_add_f32 v{s}, v{vs}, s[{SRD4}:{SRD4 + 3}], 0 offen")
    return 140 * 1024


def plan():
    return [
        ("p0_kernel", [(256, lambda a: role_xhat0(a, 4)), (80, role_wc), (64, role_stats)]),
        ("c1_kernel", [(320, lambda a: role_col(a, "XP0", "SS0", "XP1")), (216, lambda a: role_w1f(a, 4)),
                       (224, lambda a: role_w2f(a, 4, 112))]),
        ("m1_kernel", [(256, lambda a: role_mlp(a, False, "m1"))]),
        ("c2_kernel", [(320, lambda a: role_col(a, "XP2", "SS2", "XP3")), (135, role_w2t)]),
        ("m2_kernel", [(256, lambda a: role_mlp(a, True, "m2"))]),
    ]


if __name__ == "__main__":
    Cfg.dcbias = 1
    for opt in sys.argv[2:]:
        if opt == "stamp":
            Cfg.stamp = True
        elif opt == "clk":
            Cfg.stamp = Cfg.clk = True
        else:
            k, v = opt.split("=")
            tgt = MC if hasattr(MC, k) else Cfg
            setattr(tgt, k, eval(v))
    open(sys.argv[1], "w").write(generate(plan()))
```

```python
import numpy as np
from model import bf16, cbf, gelu, S, D, F, N1, N2, EPS

SC = float(bf16(np.float32([np.sqrt(2.0 / D)]))[0])


def kmap():
    k2 = np.zeros(320, dtype=np.int64)
    for col in range(320):
        kq, ph = col >> 1, col & 1
        slot, th, g, tl = kq >> 4, (kq >> 3) & 1, (kq >> 1) & 3, kq & 1
        e = 20 * (8 * tl + 2 * g + ph)
        if th == 0:
            k2[col] = slot + e
        else:
            k2[col] = 320 - (slot if slot else 10) - e
    k2[0] = 320
    return k2


def rho_of_s(s):
    i, w, s1 = s & 15, (s >> 4) & 3, s >> 6
    rl, rh, g, t = s1 & 1, (s1 >> 1) & 1, (s1 >> 2) & 3, s1 >> 4
    return rl + 2 * i + 32 * g + 128 * rh + 256 * t + 512 * w


def ss_idx(rho):
    return (rho >> 8) * 256 + ((rho >> 1) & 63) * 4 + ((rho >> 7) & 1) * 2 + (rho & 1)


def basis():
    k2 = kmap()
    d = np.arange(D)
    Fm = np.zeros((D, D))
    a = np.sqrt(2.0 / D)
    for col in range(1, 320):
        m = (k2[col] * d) % D
        Fm[:, 2 * col] = a * np.cos(2 * np.pi * m / D)
        Fm[:, 2 * col + 1] = -a * np.sin(2 * np.pi * m / D)
    Fm[:, 0] = np.sqrt(1.0 / D) * (1.0 - 2.0 * (d % 2))
    Fm[:, 1] = np.sqrt(1.0 / D)
    return Fm


def rowfft(x):
    R = x.shape[0]
    X = x.reshape(R, 20, 32).astype(np.float32)
    a = np.arange(20)
    b = np.arange(32)
    out = np.zeros((R, D), dtype=np.float32)
    sc = np.sqrt(2.0 / D)
    for slot in range(10):
        if slot:
            A1 = np.stack([np.cos(2 * np.pi * (a * slot / 20 + ri / 4)) for ri in range(2)])
        else:
            A1 = np.stack([np.cos(2 * np.pi * (a * 10 * ri / 20)) for ri in range(2)])
        A1 = bf16((A1 * sc).astype(np.float32))
        Y = bf16(np.einsum("ra,nab->nbr", A1, X))
        for tau in range(4):
            for m in range(16):
                p, ri = 8 * tau + (m >> 1), m & 1
                q = slot if slot else (0 if tau < 2 else 10)
                th = b * (q + 20 * p) / 640 + ri / 4
                sg = -1.0 if (tau >= 2 and ri) else 1.0
                c, s = sg * np.cos(2 * np.pi * th), sg * np.sin(2 * np.pi * th)
                if slot == 0:
                    if tau == 0 and m == 0:
                        c = np.cos(2 * np.pi * (b / 2 + 0.125))
                    if tau == 0 and m == 1:
                        c = np.cos(2 * np.pi * (b * 0 + 0.125))
                    c, s = (c, 0 * c) if tau < 2 else (0 * c, c)
                c, s = bf16(c.astype(np.float32)), bf16(s.astype(np.float32))
                g, r = m >> 2, m & 3
                kq = 16 * slot + 8 * (tau >> 1) + 2 * g + (tau & 1)
                out[:, 4 * kq + r] = Y[:, :, 0] @ c + Y[:, :, 1] @ s
    return out


def column_phase(xh, rstd, wr, wi):
    u = xh * rstd[:, None]
    z = (u[:, 0::2] + 1j * u[:, 1::2]).astype(np.complex64)
    z[:, 0] = u[:, 0]
    z = cbf(z)
    W = (wr + 1j * wi).astype(np.complex64)
    Wc = W[:, kmap()]
    s1 = np.arange(N1); s2 = np.arange(N2)
    M1 = cbf(np.exp(-2j * np.pi * np.outer(s1, s1) / N1))
    M2 = cbf(np.exp(-2j * np.pi * np.outer(s2, s2) / N2))
    T = np.exp(-2j * np.pi * np.outer(s1, s2) / S).astype(np.complex64)
    X = z.reshape(N1, N2, -1)
    A = np.einsum("qa,abc->qbc", M1, X)
    B = cbf(A * T[:, :, None])
    U = np.einsum("pb,qbc->qpc", M2, B)
    Wq = Wc.reshape(N2, N1, -1).transpose(1, 0, 2)
    V = cbf(U * Wq * np.float32(1.0 / S))
    C = np.einsum("pb,qpc->qbc", M2.conj(), V)
    Dd = cbf(C * T.conj()[:, :, None])
    Y = np.einsum("qa,qbc->abc", M1.conj(), Dd).reshape(S, -1)
    out = xh.copy()
    out[:, 0::2] += Y.real
    out[:, 3::2] += Y.imag[:, 1:]
    return bf16(out)


def stats(xh):
    m = xh.copy(); m[:, 1] = 0
    return (m.astype(np.float64) ** 2).sum(1) / D


def g1(xh, w1f, b1):
    v = stats(xh)
    r2 = (1.0 / np.sqrt(v * (1 + EPS) + EPS * EPS)).astype(np.float32)
    m = xh.copy(); m[:, 1] = 0
    return bf16(gelu((m @ w1f) * r2[:, None] + b1))


def pipeline(x0, wr, wi, w1, b1, w2, b2):
    Fb = bf16(basis().astype(np.float32))
    xh0 = bf16(rowfft(x0))
    w1f = bf16(rowfft(np.ascontiguousarray(w1.T))).T
    w2f = bf16(rowfft(w2))
    b2f = bf16(rowfft(b2[None]))[0]
    rstd0 = (1.0 / np.sqrt(x0.astype(np.float64).var(axis=1) + EPS)).astype(np.float32)
    xh1 = column_phase(xh0, rstd0, wr, wi)
    h1 = g1(xh1, w1f, b1)
    xh2 = bf16(xh1 + h1 @ w2f + b2f)
    rstd2 = (1.0 / np.sqrt(stats(xh2) + EPS)).astype(np.float32)
    xh3 = column_phase(xh2, rstd2, wr, wi)
    h3 = g1(xh3, w1f, b1)
    return bf16(h3 @ w2 + bf16(xh3 @ Fb.T) + b2)


def exact(x0, wr, wi, w1, b1, w2, b2):
    def ln(x):
        return (x - x.mean(1, keepdims=True)) / np.sqrt(x.var(1, keepdims=True) + EPS)
    def A(u):
        return np.fft.irfft2(np.fft.rfft2(u) * (wr + 1j * wi), s=(S, D))
    def B(u):
        return gelu(ln(u) @ w1 + b1) @ w2 + b2
    x = x0.astype(np.float64)
    x = x + A(ln(x)); x = x + B(ln(x)); x = x + A(ln(x)); x = x + B(ln(x))
    return x


if __name__ == "__main__":
    import model
    assert sorted(kmap().tolist()) == list(range(1, 321))
    assert sorted(rho_of_s(np.arange(S)).tolist()) == list(range(S))
    rng = np.random.default_rng(0)
    rn = lambda *s: rng.standard_normal(s).astype(np.float32)
    x0 = bf16(bf16(rn(S, D)) * 0.05)
    wr = bf16(bf16(bf16(rn(S, 321)) * 0.8) * 0.02)
    wi = bf16(bf16(bf16(rn(S, 321)) * 0.8) * 0.02)
    w1 = bf16(bf16(bf16(rn(D, F)) * 0.8) * D ** -0.5)
    b1 = bf16(bf16(rn(F)) * 0.4)
    w2 = bf16(bf16(bf16(rn(F, D)) * 0.05) * F ** -0.5)
    b2 = bf16(bf16(rn(D)) * 0.05)
    e = rowfft(x0[:64]) - x0[:64] @ basis()
    print("rowfft err rms", np.sqrt((e ** 2).mean()), "max", np.abs(e).max(), "signal rms", x0.std())
    e = x0[:64] @ bf16(basis().astype(np.float32)) - x0[:64] @ basis()
    print("dense  err rms", np.sqrt((e ** 2).mean()), "max", np.abs(e).max())
    ex = exact(x0, wr, wi, w1, b1, w2, b2)
    for name, o in (("old", model.pipeline(x0, wr, wi, w1, b1, w2, b2)), ("new", pipeline(x0, wr, wi, w1, b1, w2, b2))):
        e = o - ex
        print(name, "rms", np.sqrt((e ** 2).mean()), "max", np.abs(e).max(), "ref max", np.abs(ex).max())
```

```python
from gen import *
import gen
import model2
import mlp
from mlp import MC, role_mlp

SCALE = float(np.sqrt(2.0 / DM))
SIGN2 = 0x80008000


class FC:
    pre_gen = 1
    plan = 0


def fx(x):
    return f"{f32bits(x):#x}"


class Sched:
    def __init__(self, a, per=2):
        self.a, self.per = a, per
        self.fill = []
        self.done = set()
        self.n = 0

    def add(self, op, ready=-1, key=None):
        self.fill.append((ready, key, op))

    def _pop(self):
        _, key, op = self.fill.pop(0)
        if callable(op):
            op()
        else:
            self.a(op)
        if key is not None and all(k != key for _, k, _ in self.fill):
            self.done.add(key)

    def mfma(self, d, x, y, c, needs=()):
        for k in needs:
            while k not in self.done:
                self._pop()
        mfma(self.a, d, x, y, c)
        cnt = 0
        while self.fill and cnt < self.per and self.fill[0][0] <= self.n:
            self._pop()
            cnt += 1
        self.n += 1

    def flush(self):
        while self.fill:
            self._pop()


def role_fft(a, kind, name):
    vld, vr, vo = 4, 5, 9
    MK, M1, M2, M2N = 10, 14, 15, 16
    vph, vk0, vq20, vgf = 17, 18, 19, 36 - 1
    ACC1, A1, A2, Y, ACCX = 20, 36, 96, 144, 168
    TMP = Y
    G0 = 20
    DAT = 256
    sQ, sFT = sK0, sK1

    def frag(beta, j):
        return DAT + (beta * 5 + j) * 4

    if kind == "w1":
        a(f"s_and_b32 s{sA}, s{sT}, 7")
        a(f"s_lshr_b32 s{sB}, s{sT}, 5")
        a(f"s_lshl3_add_u32 s{sA}, s{sB}, s{sA}")
        a(f"s_cmp_ge_u32 s{sA}, 27")
        a(f"s_cbranch_scc1 {name}_end")
        a(f"s_bfe_u32 s{sB}, s{sT}, 0x20003")
        a(f"s_lshl2_add_u32 s{sFT}, s{sA}, s{sB}")
        a(f"s_and_b32 s{sA}, s{sW}, 1")
        a(f"s_lshl_b32 s{sA}, s{sA}, 2")
        a(f"v_lshrrev_b32 v{vld}, 1, v{vL}")
        a(f"v_xor_b32 v{vld}, s{sA}, v{vld}")
        a(f"v_mul_u32_u24 v{vld}, {FF * 2}, v{vld}")
        a(f"v_and_b32 v{vr}, 1, v{vL}")
        a(f"v_lshl_add_u32 v{vld}, v{vr}, 4, v{vld}")
        a(f"s_mul_i32 s{sA}, s{sW}, {32 * FF * 2}")
        a(f"s_lshl_b32 s{sB}, s{sFT}, 5")
        a(f"s_add_u32 s{sA}, s{sA}, s{sB}")
        a(f"v_add_u32 v{vld}, s{sA}, v{vld}")
    else:
        a(f"s_and_b32 s{sA}, s{sW}, 1")
        a(f"s_lshl_b32 s{sA}, s{sA}, 1")
        a(f"s_xor_b32 s{sA}, s{sA}, s{sW}")
        a(f"s_lshl_b32 s{sA}, s{sA}, 2")
        a(f"v_or_b32 v{vr}, s{sA}, v{vG}")
        a(f"v_xor_b32 v{vr}, v{vr}, v{vI}")
        if kind == "x":
            a(f"s_and_b32 s{sC}, s{sT}, 1")
            a(f"s_lshl_b32 s{sC}, s{sC}, 3")
            a(f"s_lshr_b32 s{sA}, s{sT}, 5")
            a(f"s_lshl4_add_u32 s{sC}, s{sA}, s{sC}")
            a(f"s_bfe_u32 s{sA}, s{sT}, 0x20001")
            a(f"s_lshl_b32 s{sA}, s{sA}, 8")
            a(f"s_add_u32 s{sC}, s{sC}, s{sA}")
            a(f"s_bfe_u32 s{sA}, s{sT}, 0x10003")
            a(f"s_lshl_b32 s{sA}, s{sA}, 7")
            a(f"s_add_u32 s{sC}, s{sC}, s{sA}")
            a(f"s_bfe_u32 s{sA}, s{sT}, 0x10004")
            a(f"s_lshl_b32 s{sA}, s{sA}, 10")
            a(f"s_add_u32 s{sC}, s{sC}, s{sA}")
            a(f"s_lshl1_add_u32 s{sC}, s{sW}, s{sC}")
            a(f"v_and_b32 v{vld}, 1, v{vG}")
            a(f"v_lshlrev_b32 v{vld}, 6, v{vld}")
            a(f"v_lshrrev_b32 v{vr + 1}, 1, v{vG}")
            a(f"v_add3_u32 v{vld}, v{vld}, v{vr + 1}, s{sC}")
        else:
            a(f"s_lshl_b32 s{sC}, s{sT}, 4")
            a(f"s_cmp_eq_u32 s{sT}, 108")
            a(f"s_cselect_b32 s{sC}, 0, s{sC}")
            a(f"s_lshl2_add_u32 s{sC}, s{sW}, s{sC}")
            a(f"v_add_u32 v{vld}, s{sC}, v{vG}")
        a(f"v_mul_u32_u24 v{vld}, 1280, v{vld}")
        a(f"v_lshl_add_u32 v{vld}, v{vr}, 4, v{vld}")
    a(f"s_lshl_b32 s{sE}, s{sW}, 10")

    def issue_loads():
        a("s_waitcnt lgkmcnt(0)")
        if kind == "x":
            srd(a, SRD0, P_X, 0, SEQ * DM * 2)
        elif kind == "w1":
            srd(a, SRD0, P_W1, 0, DM * FF * 2)
        else:
            a(f"s_cmp_eq_u32 s{sT}, 108")
            a(f"s_cselect_b32 s{SRD0}, s{P_B2}, s{P_W2}")
            a(f"s_cselect_b32 s{SRD0 + 1}, s{P_B2 + 1}, s{P_W2 + 1}")
            a(f"s_mov_b32 s{SRD0 + 2}, {FF * DM * 2}")
            a(f"s_cselect_b32 s{SRD0 + 2}, {DM * 2}, s{SRD0 + 2}")
            a(f"s_and_b32 s{SRD0 + 1}, s{SRD0 + 1}, 0xffff")
            a(f"s_mov_b32 s{SRD0 + 3}, 0x20000")
        for j in range(5):
            if kind == "w1":
                a(f"s_add_u32 m0, s{sE}, {j * 4096}")
                a(f"s_mov_b32 s{sOP}, {j * 128 * FF * 2}")
                a(f"buffer_load_dwordx4 v{vld}, s[{SRD0}:{SRD0 + 3}], s{sOP} offen lds")
            else:
                a(f"s_add_u32 m0, s{sE}, {j * 4096 - j * 256}")
                a(f"buffer_load_dwordx4 v{vld}, s[{SRD0}:{SRD0 + 3}], 0 offen offset:{j * 256} lds")
        mark(a, 1)
        if kind == "x":
            srd_ws(a, SRD1, "XP0", XP_SIZE)
        elif kind == "w1":
            srd_ws(a, SRD1, "W1F", W1F_SIZE)
        else:
            srd_ws(a, SRD1, "WA2", WA2_SIZE)

    a(f"v_bfe_u32 v{TMP}, v{vI}, 1, 1")
    a(f"v_lshlrev_b32 v{TMP}, 4, v{TMP}")
    a(f"v_mov_b32 v{TMP + 1}, 0xffff")
    a(f"v_lshlrev_b32 v{TMP}, v{TMP}, v{TMP + 1}")
    a(f"v_lshrrev_b32 v{TMP + 1}, 2, v{vI}")
    for k in range(4):
        a(f"v_cmp_eq_u32 vcc, {k}, v{TMP + 1}")
        a(f"v_cndmask_b32 v{MK + k}, 0, v{TMP}, vcc")
    a(f"v_and_b32 v{M2}, 1, v{vI}")
    a(f"v_cvt_f32_u32 v{vph}, v{M2}")
    a(f"v_mul_f32 v{vph}, 0.5, v{vph}")
    a(f"v_lshrrev_b32 v{vk0}, 1, v{vI}")
    a(f"v_cvt_f32_u32 v{vk0}, v{vk0}")
    a(f"v_mul_f32 v{vk0}, {fx(1 / 32)}, v{vk0}")
    a(f"v_cvt_f32_u32 v{vgf}, v{vG}")

    def gen_a1(base, fq, ph):
        t = TMP
        a(f"v_fma_f32 v{t}, v{vgf}, v{fq}, {ph}")
        for j in range(1, 5):
            a(f"v_fmamk_f32 v{t + j}, v{fq}, {fx(4.0 * j)}, v{t}")
        for j in range(5):
            a(f"v_cos_f32 v{t + j}, v{t + j}")
        for j in range(5):
            a(f"v_mul_f32 v{t + j}, {fx(SCALE)}, v{t + j}")
        for j in range(5):
            a(f"v_cvt_pk_bf16_f32 v{t + j}, v{t + j}, v{t + j}")
        for j in range(5):
            for k in range(4):
                a(f"v_and_b32 v{base + 4 * j + k}, v{MK + k}, v{t + j}")

    def angles(kf, ph):
        t = TMP
        a(f"v_mul_f32 v{t + 8}, v{vgf}, v{kf}")
        a(f"v_fma_f32 v{t}, v{t + 8}, 2.0, v{ph}")
        for k in range(1, 8):
            c = 16 * (k >> 2) + 8 * ((k >> 1) & 1) + (k & 1)
            a(f"v_fmamk_f32 v{t + k}, v{kf}, {fx(float(c))}, v{t}")

    def read_addr():
        if kind == "w1":
            a(f"v_and_b32 v{vr}, 1, v{vG}")
            a(f"v_lshlrev_b32 v{vr}, 7, v{vr}")
            a(f"v_lshl_add_u32 v{vr}, v{vG}, 10, v{vr}")
            a(f"v_lshl_add_u32 v{vr}, v{vI}, 3, v{vr}")
            a(f"v_xor_b32 v{vr + 1}, 128, v{vr}")
        else:
            a(f"v_and_b32 v{vr}, 4, v{vI}")
            a(f"v_lshlrev_b32 v{vr}, 1, v{vr}")
            a(f"v_xor_b32 v{vr}, v{vr}, v{vI}")
            a(f"v_lshlrev_b32 v{vr + 1}, 2, v{vG}")
            a(f"v_xor_b32 v{vr}, v{vr}, v{vr + 1}")
            a(f"v_lshlrev_b32 v{vr}, 4, v{vr}")
            a(f"v_lshl_add_u32 v{vr}, v{vI}, 8, v{vr}")
            for k in (1, 2, 3):
                a(f"v_xor_b32 v{vr + k}, {16 * k}, v{vr}")

    def out_addr():
        if kind == "x":
            a(f"v_lshlrev_b32 v{vo}, 15, v{vG}")
            a(f"v_lshl_add_u32 v{vo}, v{vI}, 3, v{vo}")
            a(f"s_lshl_b32 s{sA}, s{sQ}, 18")
            a(f"s_lshl_b32 s{sB}, s{sT}, 7")
        elif kind == "w1":
            a(f"v_mul_u32_u24 v{vo}, {W1F_STR}, v{vG}")
            a(f"v_lshl_add_u32 v{vo}, v{vI}, 4, v{vo}")
            a(f"s_mul_i32 s{sA}, s{sQ}, {8 * W1F_STR}")
            a(f"s_lshl_b32 s{sB}, s{sFT}, 8")
        else:
            a(f"v_lshrrev_b32 v{vo}, 1, v{vG}")
            a(f"v_mul_u32_u24 v{vo}, {KB_STR}, v{vo}")
            a(f"v_lshrrev_b32 v{vld}, 2, v{vI}")
            a(f"v_lshl_add_u32 v{vo}, v{vld}, 7, v{vo}")
            a(f"v_and_b32 v{vld}, 3, v{vI}")
            a(f"v_lshl_add_u32 v{vo}, v{vld}, 4, v{vo}")
            a(f"v_and_b32 v{vld}, 1, v{vG}")
            a(f"v_lshl_add_u32 v{vo}, v{vld}, 6, v{vo}")
            a(f"s_lshl_b32 s{sA}, s{sQ}, 10")
            a(f"s_mul_i32 s{sB}, s{sT}, {2 * KB_STR}")
        a(f"s_add_u32 s{sA}, s{sA}, s{sB}")
        a(f"v_add_u32 v{vo}, s{sA}, v{vo}")

    def reads():
        a("s_waitcnt vmcnt(0)")
        a("s_barrier")
        mark(a, 3)
        for beta in range(4):
            for j in range(5):
                if kind == "w1":
                    for eh in range(2):
                        a(f"ds_read_b64_tr_b16 {R(frag(beta, j) + 2 * eh, 2)}, v{vr + eh} offset:{4096 * j + 256 * beta}")
                else:
                    a(f"ds_read_b128 {R(frag(beta, j), 4)}, v{vr + beta} offset:{4096 * j}")

    def stage1(sc, n, extra=None):
        for beta in range(4):
            c = 4 * n + beta
            acc = ACC1 + 4 * (c % 4)
            for j in range(5):
                sc.mfma(acc, A1 + 20 * n + 4 * j, frag(beta, j), None if j == 0 else acc,
                        needs=[("y", c - 4)] if j == 0 and c >= 4 else [])
            rdy = sc.n + 5
            if extra:
                extra(beta, acc, rdy, ("y", c))
            for h in range(2):
                sc.add(f"v_cvt_pk_bf16_f32 v{Y + 2 * c + h}, v{acc + 2 * h}, v{acc + 2 * h + 1}", rdy, ("y", c))

    def stage2(sc, n, u, mat, acc, needs, fix=None):
        for tl in range(2):
            for kp in range(2):
                d = acc + 4 * tl
                m, y = mat + (tl * 2 + kp) * 4, Y + 8 * n + 4 * kp
                nd = list(needs) + [("y", 4 * n + 2 * kp), ("y", 4 * n + 2 * kp + 1)]
                if kind == "w2":
                    sc.mfma(d, y, m, None if kp == 0 else d, needs=nd)
                else:
                    sc.mfma(d, m, y, None if kp == 0 else d, needs=nd)
        rdy, key = sc.n + 3, ("o", n, u)
        if fix:
            fix(rdy, key)
        for k in range(4):
            sc.add(f"v_cvt_pk_bf16_f32 v{acc + k}, v{acc + 2 * k}, v{acc + 2 * k + 1}", rdy, key)
        if kind == "x":
            for tl in range(2):
                def st(tl=tl):
                    a(f"s_mov_b32 s{sOP}, {(16 * n + 8 * u + tl) * XP_STR}")
                    a(f"buffer_store_dwordx2 {V(acc + 2 * tl, 2)}, v{vo}, s[{SRD1}:{SRD1 + 3}], s{sOP} offen")
                sc.add(st, rdy, key)
        elif kind == "w1":
            def st():
                a(f"s_mov_b32 s{sOP}, {(8 * n + 4 * u) * W1F_STR}")
                a(f"buffer_store_dwordx4 {V(acc, 4)}, v{vo}, s[{SRD1}:{SRD1 + 3}], s{sOP} offen{Cfg.st_flags}")
            sc.add(st, rdy, key)
        else:
            sc.add(f"v_permlane16_swap_b32 v{acc}, v{acc + 2}", rdy, key)
            sc.add(f"v_permlane16_swap_b32 v{acc + 1}, v{acc + 3}", rdy, key)
            sc.add(f"buffer_store_dwordx4 {V(acc, 4)}, v{vo}, s[{SRD1}:{SRD1 + 3}], 0 offen offset:{1024 * n + 512 * u}{Cfg.st_flags}",
                   rdy, key)

    a(f"s_cmp_eq_u32 s{sW}, 3")
    a(f"s_cbranch_scc1 {name}_sp")

    a(f"s_mul_i32 s{sQ}, s{sW}, 3")
    a(f"s_add_u32 s{sQ}, s{sQ}, 1")
    a(f"v_mul_f32 v{vph}, 0.5, v{vph}")
    a(f"v_cvt_f32_u32 v{vq20}, s{sQ}")
    a(f"v_fmamk_f32 v{vk0}, v{vq20}, {fx(1 / 640)}, v{vk0}")
    a(f"v_mul_f32 v{vq20}, {fx(1 / 20)}, v{vq20}")
    a(f"v_mul_u32_u24 v{M2}, 0x8000, v{M2}")
    a(f"v_lshl_or_b32 v{M2}, v{M2}, 16, v{M2}")
    a(f"v_xor_b32 v{M2N}, {SIGN2:#x}, v{M2}")
    a(f"v_and_b32 v{M1}, 1, v{vG}")
    a(f"v_mul_u32_u24 v{M1}, 0x8000, v{M1}")
    a(f"v_lshl_or_b32 v{M1}, v{M1}, 16, v{M1}")
    for n in range(3):
        if n == FC.pre_gen:
            issue_loads()
        if n:
            a(f"v_add_f32 v{vk0}, {fx(1 / 640)}, v{vk0}")
            a(f"v_add_f32 v{vq20}, {fx(1 / 20)}, v{vq20}")
        gen_a1(A1 + 20 * n, vq20, f"v{vph}")
        angles(vk0, vph)
        for k in range(8):
            a(f"v_sin_f32 v{TMP + 8 + k}, v{TMP + k}")
            a(f"v_cos_f32 v{TMP + k}, v{TMP + k}")
        b = A2 + 16 * n
        for k in range(8):
            a(f"v_cvt_pk_bf16_f32 v{b + k}, v{TMP + k}, v{TMP + 8 + k}")
            if k & 1:
                a(f"v_cvt_pk_bf16_f32 v{b + 8 + k}, -v{TMP + 8 + k}, v{TMP + k}")
        for k in range(8):
            a(f"v_xor_b32 v{b + 8 + k}, v{M1}, v{b + (8 if k & 1 else 0) + k}")
    read_addr()
    out_addr()
    mark(a, 2)
    reads()
    sc = Sched(a)
    for n in range(3):
        stage1(sc, n)
        for k in range(16):
            sc.add(f"v_xor_b32 v{A1 + 20 * n + k}, v{M2N if k & 1 else M2}, v{A2 + 16 * n + k}", sc.n, ("d", n))
    mark(a, 4)
    bufs = [ACCX, ACC1, ACC1 + 8]
    hist = [[], [("y", 8), ("y", 9)], [("y", 10), ("y", 11)]]
    for k in range(6):
        n, u = divmod(k, 2)
        needs = hist[k] if k < 3 else [("o",) + divmod(k - 3, 2)]
        if u:
            needs = needs + [("d", n)]
        stage2(sc, n, u, A1 + 20 * n if u else A2 + 16 * n, bufs[k % 3], needs)
    sc.flush()
    a(f"s_branch {name}_end")

    a.label(f"{name}_sp")
    a(f"s_mov_b32 s{sQ}, 0")
    gen_a1(A1, vph, "0")
    a(f"v_mul_f32 v{vph}, 0.5, v{vph}")
    kf, ph = vq20, M1
    for tau in range(4):
        if tau == 1:
            issue_loads()
        if tau == 0:
            a(f"v_cmp_eq_u32 vcc, 0, v{vI}")
            a(f"v_mov_b32 v{kf}, 0.5")
            a(f"v_cndmask_b32 v{kf}, v{vk0}, v{kf}, vcc")
            a(f"v_cmp_gt_u32 vcc, 2, v{vI}")
            a(f"v_mov_b32 v{ph}, {fx(0.125)}")
            a(f"v_cndmask_b32 v{ph}, v{vph}, v{ph}, vcc")
        else:
            a(f"v_add_f32 v{kf}, {fx(tau / 4 + (10 / 640 if tau >= 2 else 0))}, v{vk0}")
            a(f"v_mul_f32 v{ph}, {'-1.0' if tau >= 2 else '1.0'}, v{vph}")
        angles(kf, ph)
        for k in range(8):
            a(f"v_cos_f32 v{TMP + k}, v{TMP + k}")
        for k in range(8):
            d = A2 + 8 * tau + k
            a(f"v_cvt_pk_bf16_f32 v{d}, v{TMP + k}, 0" if tau < 2 else f"v_cvt_pk_bf16_f32 v{d}, 0, v{TMP + k}")
    read_addr()
    out_addr()
    X0 = A1 + 20
    vs, vz, vb, GR, SM, T = X0, X0 + 1, X0 + 2, X0 + 4, X0 + 8, X0 + 12
    DIAG = (4, 6, 30, 70)
    if kind == "x":
        srd_ws(a, SRD2, "SS0", 2 * SS_SIZE)
        srd_ws(a, SRD3, "FLAG", FLAG_SIZE)
        a(f"s_lshr_b32 s{sA}, s{sT}, 4")
        a(f"s_lshl_b32 s{sA}, s{sA}, 10")
        a(f"s_and_b32 s{sB}, s{sT}, 7")
        a(f"s_lshl_b32 s{sB}, s{sB}, 7")
        a(f"s_add_u32 s{sA}, s{sA}, s{sB}")
        a(f"s_and_b32 s{sB}, s{sT}, 8")
        a(f"s_add_u32 s{sA}, s{sA}, s{sB}")
        a(f"v_lshrrev_b32 v{vs}, 1, v{vI}")
        a(f"v_lshlrev_b32 v{vs}, 4, v{vs}")
        a(f"v_lshl_add_u32 v{vs}, v{M2}, 2, v{vs}")
        a(f"v_lshl_add_u32 v{vs}, v{vG}, 20, v{vs}")
        a(f"v_add_u32 v{vs}, s{sA}, v{vs}")
        a(f"v_mov_b32 v{vz}, 0")
        a(f"s_lshl_b32 s{sA}, s{sT}, 8")
        a(f"v_lshl_add_u32 v{vb}, v{vL}, 2, s{sA}")
        a(f"s_mov_b32 s{sOQ}, {WS['SS2'] - WS['SS0']}")
        for r in range(4):
            m = 0x1000010000100001 << r
            a(f"s_mov_b32 s{DIAG[r]}, {m & 0xffffffff:#x}")
            a(f"s_mov_b32 s{DIAG[r] + 1}, {m >> 32:#x}")
    if kind == "w1":
        srd(a, SRD2, P_B1, 0, FF * 2)
        a(f"s_lshl_b32 s{sA}, s{sFT}, 5")
        a(f"v_lshl_add_u32 v{vs}, v{vI}, 1, s{sA}")
        a(f"buffer_load_ushort v{vb}, v{vs}, s[{SRD2}:{SRD2 + 3}], 0 offen")
        a(f"s_mov_b64 s[{sM0}:{sM1}], 0xffff")
    mark(a, 2)
    reads()
    if kind == "x":
        a(f"buffer_store_dword v{vz}, v{vs}, s[{SRD2}:{SRD2 + 3}], s{sOQ} offen")
        a(f"buffer_store_dword v{vz}, v{vb}, s[{SRD3}:{SRD3 + 3}], 0 offen")
    sc = Sched(a)

    def sums(beta, acc, rdy, key):
        sc.add(f"v_add_f32 v{SM + beta}, v{acc}, v{acc + 2}", rdy, key)

    stage1(sc, 0, sums if kind == "x" else None)
    if kind == "x":
        for k in range(10):
            sc.mfma(GR, DAT + 4 * k, DAT + 4 * k, None if k == 0 else GR)

    def fix(rdy, key):
        sc.add(f"v_lshlrev_b32 v{vb}, 16, v{vb}", rdy, key)
        sc.add(f"v_cndmask_b32_e64 v{ACCX + 1}, v{ACCX + 1}, v{vb}, s[{sM0}:{sM1}]", rdy, key)

    stage2(sc, 0, 0, A2, ACCX, [], fix if kind == "w1" else None)
    stage2(sc, 0, 1, A2 + 16, ACC1, [("y", 0), ("y", 1)])
    if kind == "x":
        sc.add(f"v_add_f32 v{SM}, v{SM}, v{SM + 1}")
        sc.add(f"v_add_f32 v{SM + 2}, v{SM + 2}, v{SM + 3}")
        sc.add(f"v_add_f32 v{SM}, v{SM}, v{SM + 2}")
        for op in ("v_permlane32_swap_b32", "v_permlane16_swap_b32"):
            sc.add(f"v_mov_b32 v{SM + 1}, v{SM}")
            sc.add(f"{op} v{SM}, v{SM + 1}")
            sc.add(f"v_add_f32 v{SM}, v{SM}, v{SM + 1}")
        sc.add(f"v_mul_f32 v{SM}, v{SM}, v{SM}")
        for k in range(10, 20):
            sc.mfma(GR, DAT + 4 * k, DAT + 4 * k, GR)
    sc.flush()
    if kind == "x":
        for r in range(4):
            prev = "0" if r == 0 else f"v{T}"
            a(f"v_cndmask_b32_e64 v{T}, {prev}, v{GR + r}, s[{DIAG[r]}:{DIAG[r] + 1}]")
        for op in ("v_permlane32_swap_b32", "v_permlane16_swap_b32"):
            a(f"v_mov_b32 v{T + 1}, v{T}")
            a(f"{op} v{T}, v{T + 1}")
            a(f"v_add_f32 v{T}, v{T}, v{T + 1}")
        a(f"v_fmamk_f32 v{T}, v{SM}, {fx(-1.0 / (model2.SC * model2.SC * DM))}, v{T}")
        a(f"v_max_f32 v{T}, 0, v{T}")
        a(f"buffer_store_dword v{T}, v{vs}, s[{SRD2}:{SRD2 + 3}], 0 offen")
    a.label(f"{name}_end")
    return 20480


def role_wc2(a):
    vld, va0, va1, va2, vo, vt, LD, ST = 4, 5, 6, 7, 8, 9, 12, 52
    REG = 5248
    a(f"s_bfe_u32 s{sA}, s{sT}, 0x20001")
    a(f"s_lshl_b32 s{sC}, s{sA}, 7")
    a(f"s_lshr_b32 s{sA}, s{sT}, 5")
    a(f"s_lshl_b32 s{sA}, s{sA}, 9")
    a(f"s_add_u32 s{sC}, s{sC}, s{sA}")
    a(f"s_bfe_u32 s{sA}, s{sT}, 0x10003")
    a(f"s_lshl_b32 s{sA}, s{sA}, 6")
    a(f"s_add_u32 s{sC}, s{sC}, s{sA}")
    a(f"s_and_b32 s{sA}, s{sT}, 16")
    a(f"s_add_u32 s{sC}, s{sC}, s{sA}")
    a(f"s_and_b32 s{sA}, s{sT}, 1")
    a(f"s_lshl3_add_u32 s{sC}, s{sA}, s{sC}")
    a(f"s_lshr_b32 s{sA}, s{sW}, 1")
    a(f"s_lshl_b32 s{sA}, s{sA}, 5")
    a(f"s_add_u32 s{sC}, s{sC}, s{sA}")
    a(f"s_mul_i32 s{sC}, s{sC}, 642")
    a(f"s_add_u32 s{sD}, s{sC}, 4096")
    a(f"v_lshlrev_b32 v{vld}, 4, v{vL}")
    a(f"s_mul_i32 s{sE}, s{sW}, {REG}")
    a(f"s_bitcmp1_b32 s{sW}, 0")
    a("s_waitcnt lgkmcnt(0)")
    a(f"s_cselect_b32 s{SRD0}, s{P_WI}, s{P_WR}")
    a(f"s_cselect_b32 s{SRD0 + 1}, s{P_WI + 1}, s{P_WR + 1}")
    a(f"s_and_b32 s{SRD0 + 1}, s{SRD0 + 1}, 0xffff")
    a(f"s_mov_b32 s{SRD0 + 2}, {SEQ * 642}")
    a(f"s_mov_b32 s{SRD0 + 3}, 0x20000")
    a(f"s_mov_b32 m0, s{sE}")
    for j in range(4):
        a(f"buffer_load_dwordx4 v{vld}, s[{SRD0}:{SRD0 + 3}], s{sC} offen offset:{j * 1024} lds")
    a(f"s_add_u32 m0, s{sE}, 4096")
    a(f"buffer_load_dwordx4 v{vld}, s[{SRD0}:{SRD0 + 3}], s{sD} offen lds")
    a("s_mov_b64 exec, 1")
    a(f"buffer_load_dwordx4 v{vld}, s[{SRD0}:{SRD0 + 3}], s{sD} offen offset:1024 lds")
    a("s_mov_b64 exec, -1")
    mark(a, 1)
    srd_ws(a, SRD1, "WC", WC_SIZE)
    a(f"v_bfe_u32 v{vt}, v{vL}, 3, 1")
    a(f"v_lshlrev_b32 v{vt}, 2, v{vt}")
    a(f"v_add_u32 v{vt}, v{vt}, v{vG}")
    a(f"s_cmp_lt_u32 s{sW}, 2")
    a(f"s_cselect_b32 s{sK0}, 1, -1")
    a(f"s_mul_i32 s{sA}, s{sK0}, 80")
    a(f"s_mul_i32 s{sB}, s{sK0}, 40")
    a(f"v_mul_i32_i24 v{va0}, s{sA}, v{vt}")
    a(f"v_and_b32 v{vt}, 7, v{vL}")
    a(f"v_mul_u32_u24 v{va1}, 642, v{vt}")
    a(f"v_add_u32 v{va0}, v{va0}, v{va1}")
    a(f"s_mul_i32 s{sK1}, s{sW}, 5")
    a(f"s_sub_u32 s{sK2}, 325, s{sK1}")
    a(f"s_cmp_lt_u32 s{sW}, 2")
    a(f"s_cselect_b32 s{sK2}, s{sK1}, s{sK2}")
    a(f"s_lshl_b32 s{sK2}, s{sK2}, 1")
    a(f"v_add_u32 v{va0}, s{sK2}, v{va0}")
    a(f"v_add_u32 v{va1}, s{sB}, v{va0}")
    a(f"v_cmp_gt_u32 vcc, 8, v0")
    a(f"v_add_u32 v{va2}, 640, v{va0}")
    a(f"v_cndmask_b32 v{va2}, v{va0}, v{va2}, vcc")
    a(f"v_lshrrev_b32 v{vo}, 3, v{vL}")
    a(f"v_lshlrev_b32 v{vo}, 14, v{vo}")
    a(f"v_lshl_add_u32 v{vo}, v{vt}, 4, v{vo}")
    a(f"s_lshl_b32 s{sA}, s{sT}, 7")
    a(f"s_lshr_b32 s{sB}, s{sW}, 1")
    a(f"s_lshl_b32 s{sB}, s{sB}, 17")
    a(f"s_add_u32 s{sA}, s{sA}, s{sB}")
    a(f"v_add_u32 v{vo}, s{sA}, v{vo}")
    a(f"s_sub_u32 s{sK2}, s{sK1}, 5")
    a(f"s_cmp_lt_u32 s{sW}, 2")
    a(f"s_cselect_b32 s{sK1}, s{sK1}, s{sK2}")
    a("s_waitcnt vmcnt(0)")
    a("s_barrier")
    mark(a, 2)
    for n in range(5):
        for rl in range(2):
            for ph in range(2):
                ad = va1 if ph else (va2 if n == 0 else va0)
                for ar in range(2):
                    a(f"ds_read_u16 v{LD + n * 8 + (rl * 2 + ph) * 2 + ar}, v{ad} offset:{(rl * 2 + ar) * REG + 2 * n}")
    for n in range(5):
        for k in range(4):
            a(f"v_lshl_or_b32 v{ST + 4 * n + k}, v{LD + n * 8 + 2 * k + 1}, 16, v{LD + n * 8 + 2 * k}")
        if n == 0:
            a(f"s_cmp_eq_u32 s{sK1}, 10")
            a(f"s_cselect_b32 s{sOP}, 0, s{sK1}")
            a(f"s_lshl_b32 s{sOP}, s{sOP}, 18")
        else:
            a(f"s_add_i32 s{sK1}, s{sK1}, s{sK0}")
            a(f"s_lshl_b32 s{sOP}, s{sK1}, 18")
        a(f"buffer_store_dwordx4 {V(ST + 4 * n, 4)}, v{vo}, s[{SRD1}:{SRD1 + 3}], s{sOP} offen{Cfg.st_flags}")
    return 4 * REG


def role_col2(a, src, ssn, dst):
    vx, vw, vl0, vmI = 4, 5, 6, 10
    fi, fg, fa, fb = 11, 12, 13, 14
    raw, ss, wraw = 16, 32, 40
    M1, M2 = 56, 88
    T1, T2 = 120, 136
    ACC, FO, TMP, WU0 = 152, 184, 200, 232
    FG = 256
    WU = (WU0, T1)

    a(f"s_mul_i32 s{sB}, s{sW}, 3072")
    a(f"v_lshlrev_b32 v{vl0}, 4, v0")
    a(f"v_add_u32 v{vx}, s{sB}, v{vl0}")
    a(f"s_lshl_b32 s{sB}, s{sW}, 10")
    a(f"v_add_u32 v{vw}, s{sB}, v{vl0}")
    a(f"s_lshl_b32 s{sF}, s{sT}, 14")

    def issue_loads():
        a("s_waitcnt lgkmcnt(0)")
        srd_ws(a, SRD0, src, XP_SIZE)
        srd_ws(a, SRD1, ssn, SS_SIZE)
        for t in range(2):
            a(f"buffer_load_dwordx4 {V(ss + 4 * t, 4)}, v{vw}, s[{SRD1}:{SRD1 + 3}], 0 offen offset:{t * 1024}")
        for k in range(4):
            a(f"buffer_load_dwordx4 {V(raw + 4 * k, 4)}, v{vx}, s[{SRD0}:{SRD0 + 3}], s{sF} offen offset:{k * 1024}")
        srd_ws(a, SRD2, "WC", WC_SIZE)
        for k in range(4):
            a(f"buffer_load_dwordx4 {V(wraw + 4 * k, 4)}, v{vx}, s[{SRD2}:{SRD2 + 3}], s{sF} offen offset:{k * 1024}")
        srd_ws(a, SRD3, dst, XP_SIZE)
        mark(a, 1)

    def pos(base, k, c):
        return base + (k >> 1) * 4 + (k & 1) * 2 + c

    for kk in (1, 2, 3):
        a(f"v_xor_b32 v{vl0 + kk}, {kk * 1024}, v{vl0}")
    a(f"v_and_b32 v{vmI}, 1, v{vI}")
    a(f"v_mul_u32_u24 v{vmI}, 0x8000, v{vmI}")
    a(f"v_lshl_or_b32 v{vmI}, v{vmI}, 16, v{vmI}")
    a(f"v_cvt_f32_u32 v{fi}, v{vI}")
    a(f"v_lshlrev_b32 v{fg}, 2, v{vG}")
    a(f"v_cvt_f32_u32 v{fg}, v{fg}")

    def m1(qb, t, var):
        return M1 + ((qb * 2 + t) * 2 + var) * 4

    def m2(kk, var):
        return M2 + (kk * 2 + var) * 4

    a(f"v_mul_f32 v{fa}, {fx(1 / 32)}, v{fi}")
    a(f"v_mul_f32 v{TMP}, v{fg}, v{fa}")
    for jj in range(1, 4):
        a(f"v_fmamk_f32 v{TMP + 3 * jj}, v{fa}, {fx(float(jj))}, v{TMP}")
    for jj in range(4):
        t = TMP + 3 * jj
        a(f"v_cos_f32 v{t + 1}, v{t}")
        a(f"v_sin_f32 v{t + 2}, v{t}")
    for jj in range(4):
        t = TMP + 3 * jj
        n = "-" if jj & 1 else ""
        m = "" if jj & 1 else "-"
        a(f"v_cvt_pk_bf16_f32 v{m1(0, 0, 0) + jj}, v{t + 1}, v{t + 2}")
        a(f"v_cvt_pk_bf16_f32 v{m1(0, 0, 1) + jj}, -v{t + 2}, v{t + 1}")
        a(f"v_cvt_pk_bf16_f32 v{m1(1, 0, 0) + jj}, {n}v{t + 1}, {n}v{t + 2}")
        a(f"v_cvt_pk_bf16_f32 v{m1(1, 0, 1) + jj}, {m}v{t + 2}, {n}v{t + 1}")
    for qb in range(2):
        for var in range(2):
            for jj in range(4):
                a(f"v_xor_b32 v{m1(qb, 1, var) + jj}, v{vmI}, v{m1(qb, 0, var) + jj}")

    a(f"s_lshl_b32 s{sA}, s{sW}, 4")
    a(f"v_cvt_f32_u32 v{fb}, s{sA}")
    a(f"v_add_f32 v{TMP + 24}, v{fb}, v{fg}")
    a(f"v_add_f32 v{fb}, v{fb}, v{fi}")
    a(f"v_mul_f32 v{TMP + 25}, {fx(1 / 2048)}, v{fi}")
    a(f"v_add_f32 v{TMP + 26}, {fx(16 / 2048)}, v{TMP + 25}")
    for r in range(4):
        a(f"v_add_f32 v{TMP + r}, {fx(float(r))}, v{TMP + 24}")
    for qb in range(2):
        for r in range(4):
            t = TMP + 4 + (qb * 4 + r)
            a(f"v_mul_f32 v{t}, v{TMP + r}, v{TMP + 25 + qb}")
            a(f"v_cos_f32 v{T1 + qb * 8 + r}, v{t}")
            a(f"v_sin_f32 v{T1 + qb * 8 + 4 + r}, v{t}")
    issue_loads()

    a(f"v_mul_f32 v{fa}, {fx(1 / 64)}, v{fb}")
    a(f"s_xor_b32 s{sA}, s{sA}, 16")
    a(f"v_cvt_f32_u32 v{TMP + 24}, s{sA}")
    a(f"v_add_f32 v{TMP + 24}, v{TMP + 24}, v{fg}")
    for kk in range(2):
        for r in range(4):
            t = TMP + 12 + 3 * r
            if kk == 0:
                a(f"v_mul_f32 v{t}, v{TMP + r}, v{fa}")
            else:
                a(f"v_add_f32 v{t}, {fx(float(r))}, v{TMP + 24}")
                a(f"v_mul_f32 v{t}, v{t}, v{fa}")
            a(f"v_cos_f32 v{t + 1}, v{t}")
            a(f"v_sin_f32 v{t + 2}, v{t}")
        for r in range(4):
            t = TMP + 12 + 3 * r
            a(f"v_cvt_pk_bf16_f32 v{m2(kk, 0) + r}, v{t + 1}, v{t + 2}")
            a(f"v_cvt_pk_bf16_f32 v{m2(kk, 1) + r}, -v{t + 2}, v{t + 1}")
    for kk in range(2):
        for var in range(2):
            for r in range(4):
                a(f"v_xor_b32 v{m2(kk + 2, var) + r}, v{vmI}, v{m2(kk, var) + r}")

    a(f"v_mul_f32 v{fa}, {fx(1 / 2048)}, v{fb}")
    a(f"v_mul_f32 v{TMP}, v{fg}, v{fa}")
    for k in range(1, 8):
        a(f"v_fmamk_f32 v{TMP + k}, v{fa}, {fx(float(16 * (k >> 2) + (k & 3)))}, v{TMP}")
    for k in range(8):
        u, r = divmod(k, 4)
        a(f"v_cos_f32 v{T2 + u * 8 + r}, v{TMP + k}")
        a(f"v_sin_f32 v{T2 + u * 8 + 4 + r}, v{TMP + k}")

    a(f"s_mov_b32 s{sK1}, 0xffff0000")
    a(f"s_cmp_eq_u32 s{sT}, 0")
    a(f"s_cselect_b32 s{sK2}, 0, s{sK1}")
    a(f"s_mov_b32 s{sK0}, {fx(-1 / 2048)}")
    a(f"s_cselect_b32 s{sK3}, 0, s{sK0}")
    a(f"s_mov_b32 s{sA}, {fx(1 / DM)}")
    a(f"s_mov_b32 s{sB}, {fx(1 / 2048)}")
    a(f"v_mov_b32 v{fa}, {fx(1e-5)}")
    mark(a, 2)
    for k in range(8):
        a(f"v_fma_f32 v{ss + k}, v{ss + k}, s{sA}, v{fa}")
    for k in range(8):
        a(f"v_rsq_f32 v{ss + k}, v{ss + k}")

    def acc(c, b, var):
        return ACC + c * 16 + (b * 2 + var) * 4

    def fo(c, b):
        return FO + c * 8 + b * 4

    def unpack(dst, base, c, mask):
        ops = []
        for k in range(8):
            ops.append(f"v_lshlrev_b32 v{dst + 2 * k}, 16, v{pos(base, k, c)}")
            ops.append(f"v_and_b32 v{dst + 2 * k + 1}, s{mask}, v{pos(base, k, c)}")
        return ops

    def unpack_w(c):
        ops = []
        for k in range(8):
            u, r = divmod(k, 4)
            ops.append(f"v_lshlrev_b32 v{WU[c] + u * 8 + r}, 16, v{pos(wraw, k, c)}")
            ops.append(f"v_and_b32 v{WU[c] + u * 8 + 4 + r}, s{sK1}, v{pos(wraw, k, c)}")
        return ops

    def scale(c):
        t = TMP + 16 * c
        for k in range(8):
            h = k & 1
            a(f"v_pk_mul_f32 {V(t + 2 * k, 2)}, {V(t + 2 * k, 2)}, {V(ss + k - h, 2)} op_sel:[0,{h}] op_sel_hi:[1,{h}]")
        for k in range(8):
            a(f"v_cvt_pk_bf16_f32 v{fo(c, 0) + k}, v{t + 2 * k}, v{t + 2 * k + 1}")

    sc = Sched(a)

    def stage_a(c):
        for t in range(2):
            for qb in range(2):
                for var in range(2):
                    sc.mfma(acc(c, qb, var), fo(c, t), m1(qb, t, var), None if t == 0 else acc(c, qb, var))
        sc.flush()

    for op in unpack(TMP, raw, 0, sK2):
        a(op)
    scale(0)
    mark(a, 3)
    for op in unpack(TMP + 16, raw, 1, sK1):
        sc.add(op)
    stage_a(0)
    scale(1)
    for op in unpack_w(0):
        sc.add(op)
    stage_a(1)

    def mm(c, b, var, f, kk, data_is_a):
        cc = None if kk == 0 else acc(c, b, var)
        if data_is_a:
            sc.mfma(acc(c, b, var), f, m2(kk, var), cc)
        else:
            sc.mfma(acc(c, b, var), m2(kk, var), f, cc)

    def exchange(base, data_is_a, cm, fill_own, fill_rest):
        for c in range(2):
            for b in range(2):
                cm(c, b)
                a(f"ds_write_b128 v{vl0}, {V(fo(c, b), 4)} offset:{base + (c * 2 + b) * 4096}")
        a("s_waitcnt lgkmcnt(0)")
        a("s_barrier")
        for c in range(2):
            for kk in (1, 2, 3):
                for b in range(2):
                    f = FG + ((c * 3 + kk - 1) * 2 + b) * 4
                    a(f"ds_read_b128 {R(f, 4)}, v{vl0 + kk} offset:{base + (c * 2 + b) * 4096}")
        for op in fill_own:
            sc.add(op)
        for c in range(2):
            for b in range(2):
                for var in range(2):
                    mm(c, b, var, fo(c, b), 0, data_is_a)
        for op in fill_rest:
            sc.add(op)
        for c in range(2):
            for kk in (1, 2, 3):
                for b in range(2):
                    for var in range(2):
                        mm(c, b, var, FG + ((c * 3 + kk - 1) * 2 + b) * 4, kk, data_is_a)
        sc.flush()

    def cm1(c, b):
        cmul_pack(a, fo(c, b), acc(c, b, 0), acc(c, b, 1), T1 + b * 8, T1 + b * 8 + 4, TMP + 8 * (2 * c + b))

    def cm2(c, b):
        cmul_pack(a, fo(c, b), acc(c, b, 0), acc(c, b, 1), WU[c] + b * 8, WU[c] + b * 8 + 4, TMP + 8 * (2 * c + b),
                  conj_w=True)

    exchange(0, False, cm1, unpack_w(1), [])
    mark(a, 4)
    exchange(16384, True, cm2, unpack(WU[0], raw, 0, sK1), unpack(WU[1], raw, 1, sK1))
    mark(a, 5)
    for c in range(2):
        for u in range(2):
            cmul_pack(a, fo(c, u), acc(c, u, 0), acc(c, u, 1), T2 + u * 8, T2 + u * 8 + 4, TMP + 8 * (2 * c + u))
    for t in range(2):
        for c in range(2):
            for u in range(2):
                for var in range(2):
                    sc.mfma(acc(c, t, var), m1(t, u, var), fo(c, u), None if u == 0 else acc(c, t, var))
        rdy = sc.n + 2
        for rh in range(2):
            for c in range(2):
                for rl in range(2):
                    k = 4 * t + 2 * rh + rl
                    w = WU[c] + 2 * k
                    sc.add(f"v_fma_f32 v{w}, v{acc(c, t, 0) + 2 * rh + rl}, s{sB}, v{w}", rdy)
                    sc.add(f"v_fma_f32 v{w + 1}, v{acc(c, t, 1) + 2 * rh + rl}, s{sK0 if c else sK3}, v{w + 1}", rdy)
            for c in range(2):
                for rl in range(2):
                    k = 4 * t + 2 * rh + rl
                    w = WU[c] + 2 * k
                    sc.add(f"v_cvt_pk_bf16_f32 v{pos(raw, k, c)}, v{w}, v{w + 1}", rdy)
            k = 2 * t + rh
            sc.add(f"buffer_store_dwordx4 {V(raw + 4 * k, 4)}, v{vx}, s[{SRD3}:{SRD3 + 3}], s{sF} offen offset:{k * 1024}{Cfg.st_flags}",
                   rdy)
    sc.flush()
    return 32768


def tables():
    L = []
    c = np.sqrt(2.0 / DM) * np.cos(2 * np.pi * np.arange(DM) / DM)
    c[160] = 0
    c[480] = 0
    bits = model.bf16_bits(c.astype(np.float32))
    for n in range(DM):
        L.append(f".set cq{n}, {bits[n]}")
    bb = int(model.bf16_bits(np.float32([np.sqrt(1 / DM)]))[0])
    k2 = model2.kmap()
    L.append(".altmacro")
    L.append(".macro e8 a,b,c,d,e,f,g,h\n.short cq\\a, cq\\b, cq\\c, cq\\d, cq\\e, cq\\f, cq\\g, cq\\h\n.endm")
    L.append(".macro e6 a,b,c,d,e,f\n.short cq\\a, cq\\b, cq\\c, cq\\d, cq\\e, cq\\f\n.endm")
    L.append(".p2align 12\nft2:")
    for kb in range(80):
        L.append(".set td, 0\n.rept 640")
        ent = [f"%(({k2[4 * kb + j // 2]}*td+{160 * (j & 1)})%640)" for j in range(8)]
        if kb == 0:
            L.append(f".short {bb}+((td&1)<<15), {bb}")
            L.append("e6 " + ", ".join(ent[2:]))
        else:
            L.append("e8 " + ", ".join(ent))
        L.append(".set td, td+1\n.endr")
    L.append(".noaltmacro")
    return "\n".join(L) + "\n"


def plan():
    fx_ = (128, lambda a: role_fft(a, "x", "fx"))
    f1 = (128, lambda a: role_fft(a, "w1", "f1"))
    f2 = (112, lambda a: role_fft(a, "w2", "f2"))
    wc = (128, role_wc2)
    w2t = (68, lambda a: role_w2t(a, 2))
    c1 = (160, lambda a: role_col2(a, "XP0", "SS0", "XP1"))
    c2 = (160, lambda a: role_col2(a, "XP2", "SS2", "XP3"))
    m1 = ("m1_kernel", [(256, lambda a: role_mlp(a, False, "m1"))])
    m2 = ("m2_kernel", [(256, lambda a: role_mlp(a, True, "m2"))])
    if FC.plan == 0:
        return [("p0_kernel", [fx_, f1, f2, wc]), ("c1_kernel", [c1]), m1, ("c2_kernel", [c2, w2t]), m2]
    if FC.plan == 1:
        return [("p0_kernel", [fx_, wc, f1, f2]), ("c1_kernel", [c1]), m1, ("c2_kernel", [c2, w2t]), m2]
    if FC.plan == 2:
        return [("p0_kernel", [fx_, wc, f1]), ("c1_kernel", [c1, f2]), m1, ("c2_kernel", [c2, w2t]), m2]
    return [("p0_kernel", [fx_, wc]), ("c1_kernel", [c1, f1, f2]), m1, ("c2_kernel", [c2, w2t]), m2]


if __name__ == "__main__":
    Cfg.dcbias = 1
    Cfg.rho = 1
    for opt in sys.argv[2:]:
        if opt == "stamp":
            Cfg.stamp = True
        elif opt == "clk":
            Cfg.stamp = Cfg.clk = True
        else:
            k, v = opt.split("=")
            tgt = FC if hasattr(FC, k) else MC if hasattr(MC, k) else Cfg
            setattr(tgt, k, eval(v))
    open(sys.argv[1], "w").write(generate(plan(), tables))
```

```python
from gen import *
import model2

SCALE = float(np.sqrt(2.0 / DM))
SIGN2 = 0x80008000
CNT = {"x": 128, "1": 96, "a": 32, "2": 112, "c": 128, "k": 160, "t": 72}


class PC:
    order = ("x2ac", "k1", "kt")
    lay = ("ac2x", "1k", "tk")
    w2t_in = 0
    code_pf = 1
    fl_ld = " nt"
    fl_l2 = " nt"
    fl_a = ""
    warm = 1
    pf_wgs = 16
    fl_x = ""
    fl_w = " sc1"
    fl_w2 = ""
    fl_c = ""


def fx(x):
    return f"{f32bits(x):#x}"


class Sched:
    def __init__(self, a, per=2):
        self.a, self.per = a, per
        self.fill = []
        self.done = set()
        self.n = 0

    def add(self, op, ready=-1, key=None):
        self.fill.append((ready, key, op))

    def _pop(self):
        _, key, op = self.fill.pop(0)
        if callable(op):
            op()
        else:
            self.a(op)
        if key is not None and all(k != key for _, k, _ in self.fill):
            self.done.add(key)

    def mfma(self, d, x, y, c, needs=()):
        for k in needs:
            while k not in self.done:
                self._pop()
        mfma(self.a, d, x, y, c)
        cnt = 0
        while self.fill and cnt < self.per and self.fill[0][0] <= self.n:
            self._pop()
            cnt += 1
        self.n += 1

    def flush(self):
        while self.fill:
            self._pop()


SCRATCH = 32768


def code_prefetch(a, name, dst):
    a(f"s_cmp_ge_u32 s2, {PC.pf_wgs}")
    a(f"s_cbranch_scc1 {name}_npf")
    a(f"s_getpc_b64 s[{SRD5}:{SRD5 + 1}]")
    a.label(f"{name}_here", keep=True)
    a(f"s_and_b32 s{SRD5 + 1}, s{SRD5 + 1}, 0xffff")
    a(f"s_mov_b32 s{SRD5 + 2}, {name}_last-{name}_here")
    a(f"s_mov_b32 s{SRD5 + 3}, 0x20000")
    a(f"s_mov_b32 m0, {SCRATCH}")
    a(f"v_lshlrev_b32 v{dst}, 6, v0")
    a(f"buffer_load_dword v{dst}, s[{SRD5}:{SRD5 + 3}], 0 offen lds")
    a.label(f"{name}_npf")


def touch(a, vt, offs):
    a(f"s_mov_b32 m0, {SCRATCH}")
    a(f"v_lshlrev_b32 v{vt}, 6, v0")
    for off in offs:
        a(f"s_lshl_b32 s{sOP}, s{sT}, 14")
        if off:
            a(f"s_add_u32 s{sOP}, s{sOP}, {off}")
        a(f"buffer_load_dword v{vt}, s[{SRD4}:{SRD4 + 3}], s{sOP} offen lds")


def role_front(a, name, order, lay, ext):
    vld, vr, vo = 4, 5, 9
    MK, M1, M2, M2N = 10, 14, 15, 16
    vph, vk0, vq20, vgf = 17, 18, 19, 35
    ACC1, A1, A2, Y, ACCX = 20, 36, 96, 144, 168
    TMP = Y
    DAT = 176
    sQ, sFT, sKD = sK0, sK1, 96
    KINDS = tuple(k for k in ("x", "w1", "w2") if k[-1] in order.replace("a", "1"))
    fl_w = PC.fl_a if "a" in order else PC.fl_w

    def frag(beta, j):
        return DAT + (beta * 5 + j) * 4

    start, s0 = {}, 0
    for ch in order:
        start[ch] = s0
        s0 += CNT[ch]
    if PC.code_pf:
        code_prefetch(a, name, vld)
    a(f"s_lshl_b32 s{sE}, s{sW}, 10")
    lo, hi = 0, len(order) - 1
    while lo < hi:
        if order[hi] != lay[0]:
            a(f"s_cmp_ge_u32 s2, {start[order[hi]]}")
            a(f"s_cbranch_scc1 {name}_p{order[hi]}")
            hi -= 1
        else:
            a(f"s_cmp_lt_u32 s2, {start[order[lo + 1]]}")
            a(f"s_cbranch_scc1 {name}_p{order[lo]}")
            lo += 1

    def row_loads():
        a(f"s_and_b32 s{sA}, s{sW}, 1")
        a(f"s_lshl_b32 s{sA}, s{sA}, 1")
        a(f"s_xor_b32 s{sA}, s{sA}, s{sW}")
        a(f"s_lshl_b32 s{sA}, s{sA}, 2")
        a(f"v_or_b32 v{vr}, s{sA}, v{vG}")
        a(f"v_xor_b32 v{vr}, v{vr}, v{vI}")
        a(f"v_mul_u32_u24 v{vld}, 1280, v{vld}")
        a(f"v_lshl_add_u32 v{vld}, v{vr}, 4, v{vld}")

    def row_issue(fl):
        for j in range(5):
            a(f"s_add_u32 m0, s{sE}, {j * 4096 - j * 256}")
            a(f"buffer_load_dwordx4 v{vld}, s[{SRD0}:{SRD0 + 3}], 0 offen offset:{j * 256}{fl} lds")
        mark(a, 1)

    def pro_x():
        a(f"s_and_b32 s{sC}, s{sT}, 1")
        a(f"s_lshl_b32 s{sC}, s{sC}, 3")
        a(f"s_lshr_b32 s{sA}, s{sT}, 5")
        a(f"s_lshl4_add_u32 s{sC}, s{sA}, s{sC}")
        a(f"s_bfe_u32 s{sA}, s{sT}, 0x20001")
        a(f"s_lshl_b32 s{sA}, s{sA}, 8")
        a(f"s_add_u32 s{sC}, s{sC}, s{sA}")
        a(f"s_and_b32 s{sA}, s{sT}, 8")
        a(f"s_lshl4_add_u32 s{sC}, s{sA}, s{sC}")
        a(f"s_and_b32 s{sA}, s{sT}, 16")
        a(f"s_lshl_b32 s{sA}, s{sA}, 6")
        a(f"s_add_u32 s{sC}, s{sC}, s{sA}")
        a(f"s_lshl1_add_u32 s{sC}, s{sW}, s{sC}")
        a(f"v_and_b32 v{vld}, 1, v{vG}")
        a(f"v_lshlrev_b32 v{vld}, 6, v{vld}")
        a(f"v_lshrrev_b32 v{vr + 1}, 1, v{vG}")
        a(f"v_add3_u32 v{vld}, v{vld}, v{vr + 1}, s{sC}")
        row_loads()
        a("s_waitcnt lgkmcnt(0)")
        srd(a, SRD0, P_X, 0, SEQ * DM * 2)
        row_issue(PC.fl_ld)
        srd_ws(a, SRD1, "XP0", XP_SIZE)
        a(f"s_mov_b32 s{sKD}, 0")
        a(f"s_branch {name}_gen")

    def pro_w2():
        a(f"s_lshl_b32 s{sC}, s{sT}, 4")
        a(f"s_cmp_eq_u32 s{sT}, 108")
        a(f"s_cselect_b32 s{sC}, 0, s{sC}")
        a(f"s_lshl2_add_u32 s{sC}, s{sW}, s{sC}")
        a(f"v_add_u32 v{vld}, s{sC}, v{vG}")
        row_loads()
        a(f"s_cmp_eq_u32 s{sT}, 108")
        a(f"s_mov_b32 s{SRD0 + 2}, {FF * DM * 2}")
        a(f"s_cselect_b32 s{SRD0 + 2}, {DM * 2}, s{SRD0 + 2}")
        a(f"s_mov_b32 s{SRD0 + 3}, 0x20000")
        a("s_waitcnt lgkmcnt(0)")
        a(f"s_cselect_b32 s{SRD0}, s{P_B2}, s{P_W2}")
        a(f"s_cselect_b32 s{SRD0 + 1}, s{P_B2 + 1}, s{P_W2 + 1}")
        a(f"s_and_b32 s{SRD0 + 1}, s{SRD0 + 1}, 0xffff")
        row_issue(PC.fl_l2)
        srd_ws(a, SRD1, "WA2", WA2_SIZE)
        a(f"s_mov_b32 s{sKD}, 2")
        a(f"s_branch {name}_gen")

    def pro_w1():
        a(f"s_and_b32 s{sA}, s{sT}, 7")
        a(f"s_lshr_b32 s{sB}, s{sT}, 5")
        a(f"s_lshl3_add_u32 s{sA}, s{sB}, s{sA}")
        a(f"s_cmp_ge_u32 s{sA}, 27")
        a(f"s_cbranch_scc1 {name}_end")
        a(f"s_bfe_u32 s{sB}, s{sT}, 0x20003")
        a(f"s_lshl2_add_u32 s{sFT}, s{sA}, s{sB}")
        a(f"s_and_b32 s{sA}, s{sW}, 1")
        a(f"s_lshl_b32 s{sA}, s{sA}, 2")
        a(f"v_lshrrev_b32 v{vld}, 1, v{vL}")
        a(f"v_xor_b32 v{vld}, s{sA}, v{vld}")
        a(f"v_mul_u32_u24 v{vld}, {FF * 2}, v{vld}")
        a(f"v_and_b32 v{vr}, 1, v{vL}")
        a(f"v_lshl_add_u32 v{vld}, v{vr}, 4, v{vld}")
        a(f"s_mul_i32 s{sA}, s{sW}, {32 * FF * 2}")
        a(f"s_lshl_b32 s{sB}, s{sFT}, 5")
        a(f"s_add_u32 s{sA}, s{sA}, s{sB}")
        a(f"v_add_u32 v{vld}, s{sA}, v{vld}")
        a("s_waitcnt lgkmcnt(0)")
        srd(a, SRD0, P_W1, 0, DM * FF * 2)
        for j in range(5):
            a(f"s_add_u32 m0, s{sE}, {j * 4096}")
            a(f"s_mov_b32 s{sOP}, {j * 128 * FF * 2}")
            a(f"buffer_load_dwordx4 v{vld}, s[{SRD0}:{SRD0 + 3}], s{sOP} offen lds")
        mark(a, 1)
        srd_ws(a, SRD1, "W1F", W1F_SIZE)
        a(f"s_mov_b32 s{sKD}, 1")
        a(f"s_branch {name}_gen")

    REG = 5248

    def pro_wc():
        vld, va0, va1, va2, vo, vt, LD, ST = 4, 5, 6, 7, 8, 9, 12, 52
        a(f"s_bfe_u32 s{sA}, s{sT}, 0x20001")
        a(f"s_lshl_b32 s{sC}, s{sA}, 7")
        a(f"s_lshr_b32 s{sA}, s{sT}, 5")
        a(f"s_lshl_b32 s{sA}, s{sA}, 9")
        a(f"s_add_u32 s{sC}, s{sC}, s{sA}")
        a(f"s_and_b32 s{sA}, s{sT}, 8")
        a(f"s_lshl3_add_u32 s{sC}, s{sA}, s{sC}")
        a(f"s_and_b32 s{sA}, s{sT}, 16")
        a(f"s_add_u32 s{sC}, s{sC}, s{sA}")
        a(f"s_and_b32 s{sA}, s{sT}, 1")
        a(f"s_lshl3_add_u32 s{sC}, s{sA}, s{sC}")
        a(f"s_and_b32 s{sA}, s{sW}, 2")
        a(f"s_lshl4_add_u32 s{sC}, s{sA}, s{sC}")
        a(f"s_mul_i32 s{sC}, s{sC}, 642")
        a(f"s_add_u32 s{sD}, s{sC}, 4096")
        a(f"v_lshlrev_b32 v{vld}, 4, v{vL}")
        a(f"s_mul_i32 s{sE}, s{sW}, {REG}")
        a(f"s_mov_b32 s{SRD0 + 2}, {SEQ * 642}")
        a(f"s_mov_b32 s{SRD0 + 3}, 0x20000")
        a(f"s_mov_b32 m0, s{sE}")
        a(f"s_bitcmp1_b32 s{sW}, 0")
        a("s_waitcnt lgkmcnt(0)")
        a(f"s_cselect_b32 s{SRD0}, s{P_WI}, s{P_WR}")
        a(f"s_cselect_b32 s{SRD0 + 1}, s{P_WI + 1}, s{P_WR + 1}")
        a(f"s_and_b32 s{SRD0 + 1}, s{SRD0 + 1}, 0xffff")
        for j in range(4):
            a(f"buffer_load_dwordx4 v{vld}, s[{SRD0}:{SRD0 + 3}], s{sC} offen offset:{j * 1024}{PC.fl_ld} lds")
        a(f"s_add_u32 m0, s{sE}, 4096")
        a(f"buffer_load_dwordx4 v{vld}, s[{SRD0}:{SRD0 + 3}], s{sD} offen{PC.fl_ld} lds")
        a("s_mov_b64 exec, 1")
        a(f"buffer_load_dwordx4 v{vld}, s[{SRD0}:{SRD0 + 3}], s{sD} offen offset:1024{PC.fl_ld} lds")
        a("s_mov_b64 exec, -1")
        mark(a, 1)
        srd_ws(a, SRD1, "WC", WC_SIZE)
        a(f"v_bfe_u32 v{vt}, v{vL}, 3, 1")
        a(f"v_lshlrev_b32 v{vt}, 2, v{vt}")
        a(f"v_add_u32 v{vt}, v{vt}, v{vG}")
        a(f"s_cmp_lt_u32 s{sW}, 2")
        a(f"s_cselect_b32 s{sK0}, 1, -1")
        a(f"s_mul_i32 s{sA}, s{sK0}, 80")
        a(f"s_mul_i32 s{sB}, s{sK0}, 40")
        a(f"v_mul_i32_i24 v{va0}, s{sA}, v{vt}")
        a(f"v_and_b32 v{vt}, 7, v{vL}")
        a(f"v_mul_u32_u24 v{va1}, 642, v{vt}")
        a(f"v_add_u32 v{va0}, v{va0}, v{va1}")
        a(f"s_mul_i32 s{sK1}, s{sW}, 5")
        a(f"s_sub_u32 s{sK2}, 325, s{sK1}")
        a(f"s_cmp_lt_u32 s{sW}, 2")
        a(f"s_cselect_b32 s{sK2}, s{sK1}, s{sK2}")
        a(f"s_lshl_b32 s{sK2}, s{sK2}, 1")
        a(f"v_add_u32 v{va0}, s{sK2}, v{va0}")
        a(f"v_add_u32 v{va1}, s{sB}, v{va0}")
        a(f"v_cmp_gt_u32 vcc, 8, v0")
        a(f"v_add_u32 v{va2}, 640, v{va0}")
        a(f"v_cndmask_b32 v{va2}, v{va0}, v{va2}, vcc")
        a(f"v_lshrrev_b32 v{vo}, 3, v{vL}")
        a(f"v_lshlrev_b32 v{vo}, 14, v{vo}")
        a(f"v_lshl_add_u32 v{vo}, v{vt}, 4, v{vo}")
        a(f"s_lshl_b32 s{sA}, s{sT}, 7")
        a(f"s_lshr_b32 s{sB}, s{sW}, 1")
        a(f"s_lshl_b32 s{sB}, s{sB}, 17")
        a(f"s_add_u32 s{sA}, s{sA}, s{sB}")
        a(f"v_add_u32 v{vo}, s{sA}, v{vo}")
        a(f"s_sub_u32 s{sK2}, s{sK1}, 5")
        a(f"s_cmp_lt_u32 s{sW}, 2")
        a(f"s_cselect_b32 s{sK1}, s{sK1}, s{sK2}")
        a("s_waitcnt vmcnt(0)")
        if PC.warm:
            for ch, ptr in (("1", P_W1), ("2", P_W2)):
                if ch not in order:
                    srd(a, SRD4, ptr, 0, DM * FF * 2)
                    touch(a, vld, (0, 1 << 21))
            a(f"s_getpc_b64 s[{SRD4}:{SRD4 + 1}]")
            a.label(f"{name}_cur", keep=True)
            a(f"s_and_b32 s{SRD4 + 1}, s{SRD4 + 1}, 0xffff")
            a(f"s_mov_b32 s{SRD4 + 2}, text_last-{name}_cur")
            a(f"s_mov_b32 s{SRD4 + 3}, 0x20000")
            touch(a, vld, (0,))
        a("s_barrier")
        mark(a, 3)
        for n in range(5):
            for rl in range(2):
                for ph in range(2):
                    ad = va1 if ph else (va2 if n == 0 else va0)
                    for ar in range(2):
                        a(f"ds_read_u16 v{LD + n * 8 + (rl * 2 + ph) * 2 + ar}, v{ad} offset:{(rl * 2 + ar) * REG + 2 * n}")
        for n in range(5):
            for k in range(4):
                a(f"v_lshl_or_b32 v{ST + 4 * n + k}, v{LD + n * 8 + 2 * k + 1}, 16, v{LD + n * 8 + 2 * k}")
            if n == 0:
                a(f"s_cmp_eq_u32 s{sK1}, 10")
                a(f"s_cselect_b32 s{sOP}, 0, s{sK1}")
                a(f"s_lshl_b32 s{sOP}, s{sOP}, 18")
            else:
                a(f"s_add_i32 s{sK1}, s{sK1}, s{sK0}")
                a(f"s_lshl_b32 s{sOP}, s{sK1}, 18")
            a(f"buffer_store_dwordx4 {V(ST + 4 * n, 4)}, v{vo}, s[{SRD1}:{SRD1 + 3}], s{sOP} offen{PC.fl_c}")
        a(f"s_branch {name}_end")

    pros = {"x": pro_x, "1": pro_w1, "a": pro_w1, "2": pro_w2, "c": pro_wc}
    if "a" in order:
        assert start["a"] % 8 == 0
        start["a"] -= CNT["1"]
    lds = SCRATCH + 256
    for ch in lay:
        if ch != lay[0]:
            a.label(f"{name}_p{ch}")
        if start[ch]:
            a(f"s_sub_i32 s{sT}, s2, {start[ch]}")
        if ch in pros:
            pros[ch]()
        else:
            lds = max(lds, ext[ch](a))
            a(f"s_branch {name}_end")
    if not KINDS:
        a.label(f"{name}_end")
        a.label(f"{name}_last")
        return lds

    a.label(f"{name}_gen")
    a(f"v_bfe_u32 v{TMP}, v{vI}, 1, 1")
    a(f"v_lshlrev_b32 v{TMP}, 4, v{TMP}")
    a(f"v_mov_b32 v{TMP + 1}, 0xffff")
    a(f"v_lshlrev_b32 v{TMP}, v{TMP}, v{TMP + 1}")
    a(f"v_lshrrev_b32 v{TMP + 1}, 2, v{vI}")
    for k in range(4):
        a(f"v_cmp_eq_u32 vcc, {k}, v{TMP + 1}")
        a(f"v_cndmask_b32 v{MK + k}, 0, v{TMP}, vcc")
    a(f"v_and_b32 v{M2}, 1, v{vI}")
    a(f"v_cvt_f32_u32 v{vph}, v{M2}")
    a(f"v_mul_f32 v{vph}, 0.5, v{vph}")
    a(f"v_lshrrev_b32 v{vk0}, 1, v{vI}")
    a(f"v_cvt_f32_u32 v{vk0}, v{vk0}")
    a(f"v_mul_f32 v{vk0}, {fx(1 / 32)}, v{vk0}")
    a(f"v_cvt_f32_u32 v{vgf}, v{vG}")

    def gen_a1(base, fq, ph):
        t = TMP
        a(f"v_fma_f32 v{t}, v{vgf}, v{fq}, {ph}")
        for j in range(1, 5):
            a(f"v_fmamk_f32 v{t + j}, v{fq}, {fx(4.0 * j)}, v{t}")
        for j in range(5):
            a(f"v_cos_f32 v{t + j}, v{t + j}")
        for j in range(5):
            a(f"v_mul_f32 v{t + j}, {fx(SCALE)}, v{t + j}")
        for j in range(5):
            a(f"v_cvt_pk_bf16_f32 v{t + j}, v{t + j}, v{t + j}")
        for j in range(5):
            for k in range(4):
                a(f"v_and_b32 v{base + 4 * j + k}, v{MK + k}, v{t + j}")

    def angles(kf, ph):
        t = TMP
        a(f"v_mul_f32 v{t + 8}, v{vgf}, v{kf}")
        a(f"v_fma_f32 v{t}, v{t + 8}, 2.0, v{ph}")
        for k in range(1, 8):
            c = 16 * (k >> 2) + 8 * ((k >> 1) & 1) + (k & 1)
            a(f"v_fmamk_f32 v{t + k}, v{kf}, {fx(float(c))}, v{t}")

    def addresses(kind):
        if kind == "w1":
            a(f"v_and_b32 v{vr}, 1, v{vG}")
            a(f"v_lshlrev_b32 v{vr}, 7, v{vr}")
            a(f"v_lshl_add_u32 v{vr}, v{vG}, 10, v{vr}")
            a(f"v_lshl_add_u32 v{vr}, v{vI}, 3, v{vr}")
            a(f"v_xor_b32 v{vr + 1}, 128, v{vr}")
        else:
            a(f"v_and_b32 v{vr}, 4, v{vI}")
            a(f"v_lshlrev_b32 v{vr}, 1, v{vr}")
            a(f"v_xor_b32 v{vr}, v{vr}, v{vI}")
            a(f"v_lshlrev_b32 v{vr + 1}, 2, v{vG}")
            a(f"v_xor_b32 v{vr}, v{vr}, v{vr + 1}")
            a(f"v_lshlrev_b32 v{vr}, 4, v{vr}")
            a(f"v_lshl_add_u32 v{vr}, v{vI}, 8, v{vr}")
            for k in (1, 2, 3):
                a(f"v_xor_b32 v{vr + k}, {16 * k}, v{vr}")
        if kind == "x":
            a(f"v_and_b32 v{vld}, 1, v{vI}")
            a(f"v_lshl_add_u32 v{vo}, v{vG}, 1, v{vld}")
            a(f"v_lshlrev_b32 v{vo}, 14, v{vo}")
            a(f"v_and_b32 v{vld}, 14, v{vI}")
            a(f"v_lshl_add_u32 v{vo}, v{vld}, 3, v{vo}")
            a(f"s_lshl_b32 s{sA}, s{sQ}, 18")
            a(f"s_lshl_b32 s{sB}, s{sT}, 7")
            a(f"s_mov_b32 vcc_lo, 0x55555555")
            a(f"s_mov_b32 vcc_hi, 0x55555555")
        elif kind == "w1":
            a(f"v_mul_u32_u24 v{vo}, {W1F_STR}, v{vG}")
            a(f"v_lshl_add_u32 v{vo}, v{vI}, 4, v{vo}")
            a(f"s_mul_i32 s{sA}, s{sQ}, {8 * W1F_STR}")
            a(f"s_lshl_b32 s{sB}, s{sFT}, 8")
        else:
            a(f"v_lshrrev_b32 v{vo}, 1, v{vG}")
            a(f"v_mul_u32_u24 v{vo}, {KB_STR}, v{vo}")
            a(f"v_lshrrev_b32 v{vld}, 2, v{vI}")
            a(f"v_lshl_add_u32 v{vo}, v{vld}, 7, v{vo}")
            a(f"v_and_b32 v{vld}, 3, v{vI}")
            a(f"v_lshl_add_u32 v{vo}, v{vld}, 4, v{vo}")
            a(f"v_and_b32 v{vld}, 1, v{vG}")
            a(f"v_lshl_add_u32 v{vo}, v{vld}, 6, v{vo}")
            a(f"s_lshl_b32 s{sA}, s{sQ}, 10")
            a(f"s_mul_i32 s{sB}, s{sT}, {2 * KB_STR}")
        a(f"s_add_u32 s{sA}, s{sA}, s{sB}")
        a(f"v_add_u32 v{vo}, s{sA}, v{vo}")

    def reads(kind):
        mark(a, 2)
        a("s_waitcnt vmcnt(0)")
        a("s_barrier")
        mark(a, 3)
        for beta in range(4):
            for j in range(5):
                if kind == "w1":
                    for eh in range(2):
                        a(f"ds_read_b64_tr_b16 {R(frag(beta, j) + 2 * eh, 2)}, v{vr + eh} offset:{4096 * j + 256 * beta}")
                else:
                    a(f"ds_read_b128 {R(frag(beta, j), 4)}, v{vr + beta} offset:{4096 * j}")

    def stage1(sc, n, extra=None):
        for beta in range(4):
            c = 4 * n + beta
            acc = ACC1 + 4 * (c % 4)
            for j in range(5):
                sc.mfma(acc, A1 + 20 * n + 4 * j, frag(beta, j), None if j == 0 else acc,
                        needs=[("y", c - 4)] if j == 0 and c >= 4 else [])
            rdy = sc.n + 5
            if extra:
                extra(beta, acc, rdy, ("y", c))
            for h in range(2):
                sc.add(f"v_cvt_pk_bf16_f32 v{Y + 2 * c + h}, v{acc + 2 * h}, v{acc + 2 * h + 1}", rdy, ("y", c))

    par = {"even": True}
    QP = "quad_perm:[1,0,3,2] row_mask:0xf bank_mask:0xf"

    def stage2(kind, sc, n, u, mat, acc, needs, fix=None):
        for tl in range(2):
            for kp in range(2):
                d = acc + 4 * tl
                m, y = mat + (tl * 2 + kp) * 4, Y + 8 * n + 4 * kp
                nd = list(needs) + [("y", 4 * n + 2 * kp), ("y", 4 * n + 2 * kp + 1)]
                if kind == "w2":
                    sc.mfma(d, y, m, None if kp == 0 else d, needs=nd)
                else:
                    sc.mfma(d, m, y, None if kp == 0 else d, needs=nd)
        rdy, key = sc.n + 3, ("o", n, u)
        if fix:
            fix(rdy, key)
        for k in range(4):
            sc.add(f"v_cvt_pk_bf16_f32 v{acc + k}, v{acc + 2 * k}, v{acc + 2 * k + 1}", rdy, key)
        if kind == "x":
            for ph in range(2):
                lo = par["even"]
                for k in range(2):
                    if lo:
                        sc.add(f"v_cndmask_b32_dpp v{acc + 4 + k}, v{acc + 2 + k}, v{acc + k}, vcc {QP}", rdy, key)
                    else:
                        sc.add(f"v_cndmask_b32_dpp v{acc + 6 + k}, v{acc + k}, v{acc + 2 + k}, vcc {QP}", rdy, key)
                if ph == 0:
                    sc.add("s_not_b64 vcc, vcc", rdy, key)
                    par["even"] = not lo

            def st():
                a(f"s_mov_b32 s{sOP}, {(16 * n + 8 * u) * XP_STR}")
                a(f"buffer_store_dwordx4 {V(acc + 4, 4)}, v{vo}, s[{SRD1}:{SRD1 + 3}], s{sOP} offen{PC.fl_x}")
            sc.add(st, rdy, key)
        elif kind == "w1":
            def st():
                a(f"s_mov_b32 s{sOP}, {(8 * n + 4 * u) * W1F_STR}")
                a(f"buffer_store_dwordx4 {V(acc, 4)}, v{vo}, s[{SRD1}:{SRD1 + 3}], s{sOP} offen{fl_w}")
            sc.add(st, rdy, key)
        else:
            sc.add(f"v_permlane16_swap_b32 v{acc}, v{acc + 2}", rdy, key)
            sc.add(f"v_permlane16_swap_b32 v{acc + 1}, v{acc + 3}", rdy, key)
            sc.add(f"buffer_store_dwordx4 {V(acc, 4)}, v{vo}, s[{SRD1}:{SRD1 + 3}], 0 offen offset:{1024 * n + 512 * u}{PC.fl_w2}",
                   rdy, key)

    def dispatch(pre):
        for kind in KINDS[1:]:
            a(f"s_cmp_eq_u32 s{sKD}, {kind[-1]}")
            a(f"s_cbranch_scc1 {pre}_{kind}")

    a(f"s_cmp_eq_u32 s{sW}, 3")
    a(f"s_cbranch_scc1 {name}_sp")

    a(f"s_mul_i32 s{sQ}, s{sW}, 3")
    a(f"s_add_u32 s{sQ}, s{sQ}, 1")
    a(f"v_mul_f32 v{vph}, 0.5, v{vph}")
    a(f"v_cvt_f32_u32 v{vq20}, s{sQ}")
    a(f"v_fmamk_f32 v{vk0}, v{vq20}, {fx(1 / 640)}, v{vk0}")
    a(f"v_mul_f32 v{vq20}, {fx(1 / 20)}, v{vq20}")
    a(f"v_mul_u32_u24 v{M2}, 0x8000, v{M2}")
    a(f"v_lshl_or_b32 v{M2}, v{M2}, 16, v{M2}")
    a(f"v_xor_b32 v{M2N}, {SIGN2:#x}, v{M2}")
    a(f"v_and_b32 v{M1}, 1, v{vG}")
    a(f"v_mul_u32_u24 v{M1}, 0x8000, v{M1}")
    a(f"v_lshl_or_b32 v{M1}, v{M1}, 16, v{M1}")
    for n in range(3):
        if n:
            a(f"v_add_f32 v{vk0}, {fx(1 / 640)}, v{vk0}")
            a(f"v_add_f32 v{vq20}, {fx(1 / 20)}, v{vq20}")
        gen_a1(A1 + 20 * n, vq20, f"v{vph}")
        angles(vk0, vph)
        for k in range(8):
            a(f"v_sin_f32 v{TMP + 8 + k}, v{TMP + k}")
            a(f"v_cos_f32 v{TMP + k}, v{TMP + k}")
        b = A2 + 16 * n
        for k in range(8):
            a(f"v_cvt_pk_bf16_f32 v{b + k}, v{TMP + k}, v{TMP + 8 + k}")
            if k & 1:
                a(f"v_cvt_pk_bf16_f32 v{b + 8 + k}, -v{TMP + 8 + k}, v{TMP + k}")
        for k in range(8):
            a(f"v_xor_b32 v{b + 8 + k}, v{M1}, v{b + (8 if k & 1 else 0) + k}")
    dispatch(f"{name}_t")
    for kind in KINDS:
        if kind != KINDS[0]:
            a.label(f"{name}_t_{kind}")
        par["even"] = True
        addresses(kind)
        reads(kind)
        sc = Sched(a)
        for n in range(3):
            stage1(sc, n)
            for k in range(16):
                sc.add(f"v_xor_b32 v{A1 + 20 * n + k}, v{M2N if k & 1 else M2}, v{A2 + 16 * n + k}", sc.n, ("d", n))
        mark(a, 4)
        bufs = [ACCX, ACC1, ACC1 + 8]
        hist = [[], [("y", 8), ("y", 9)], [("y", 10), ("y", 11)]]
        for k in range(6):
            n, u = divmod(k, 2)
            needs = hist[k] if k < 3 else [("o",) + divmod(k - 3, 2)]
            if u:
                needs = needs + [("d", n)]
            stage2(kind, sc, n, u, A1 + 20 * n if u else A2 + 16 * n, bufs[k % 3], needs)
        sc.flush()
        a(f"s_branch {name}_end")

    a.label(f"{name}_sp")
    a(f"s_mov_b32 s{sQ}, 0")
    gen_a1(A1, vph, "0")
    a(f"v_mul_f32 v{vph}, 0.5, v{vph}")
    kf, ph = vq20, M1
    for tau in range(4):
        if tau == 0:
            a(f"v_cmp_eq_u32 vcc, 0, v{vI}")
            a(f"v_mov_b32 v{kf}, 0.5")
            a(f"v_cndmask_b32 v{kf}, v{vk0}, v{kf}, vcc")
            a(f"v_cmp_gt_u32 vcc, 2, v{vI}")
            a(f"v_mov_b32 v{ph}, {fx(0.125)}")
            a(f"v_cndmask_b32 v{ph}, v{vph}, v{ph}, vcc")
        else:
            a(f"v_add_f32 v{kf}, {fx(tau / 4 + (10 / 640 if tau >= 2 else 0))}, v{vk0}")
            a(f"v_mul_f32 v{ph}, {'-1.0' if tau >= 2 else '1.0'}, v{vph}")
        angles(kf, ph)
        for k in range(8):
            a(f"v_cos_f32 v{TMP + k}, v{TMP + k}")
        for k in range(8):
            d = A2 + 8 * tau + k
            a(f"v_cvt_pk_bf16_f32 v{d}, v{TMP + k}, 0" if tau < 2 else f"v_cvt_pk_bf16_f32 v{d}, 0, v{TMP + k}")
    dispatch(f"{name}_s")
    X0 = A2 + 32
    vs, vz, vb, GR, SM, T = X0, X0 + 1, X0 + 2, X0 + 4, X0 + 8, X0 + 12
    TR = A1 + 20
    DIAG = (4, 6, 30, 70)
    for kind in KINDS:
        if kind != KINDS[0]:
            a.label(f"{name}_s_{kind}")
        par["even"] = True
        addresses(kind)
        if kind == "x":
            srd_ws(a, SRD2, "SS0", 2 * SS_SIZE)
            srd_ws(a, SRD3, "FLAG", FLAG_SIZE)
            a(f"s_lshr_b32 s{sA}, s{sT}, 4")
            a(f"s_lshl_b32 s{sA}, s{sA}, 10")
            a(f"s_and_b32 s{sB}, s{sT}, 7")
            a(f"s_lshl_b32 s{sB}, s{sB}, 7")
            a(f"s_add_u32 s{sA}, s{sA}, s{sB}")
            a(f"s_and_b32 s{sB}, s{sT}, 8")
            a(f"s_add_u32 s{sA}, s{sA}, s{sB}")
            a(f"v_lshrrev_b32 v{vs}, 1, v{vI}")
            a(f"v_lshlrev_b32 v{vs}, 4, v{vs}")
            a(f"v_lshl_add_u32 v{vs}, v{M2}, 2, v{vs}")
            a(f"v_lshl_add_u32 v{vs}, v{vG}, 20, v{vs}")
            a(f"v_add_u32 v{vs}, s{sA}, v{vs}")
            a(f"v_mov_b32 v{vz}, 0")
            a(f"s_lshl_b32 s{sA}, s{sT}, 8")
            a(f"v_lshl_add_u32 v{vb}, v{vL}, 2, s{sA}")
            a(f"s_mov_b32 s{sOQ}, {WS['SS2'] - WS['SS0']}")
            for r in range(4):
                m = 0x1000010000100001 << r
                a(f"s_mov_b32 s{DIAG[r]}, {m & 0xffffffff:#x}")
                a(f"s_mov_b32 s{DIAG[r] + 1}, {m >> 32:#x}")
        if kind == "w1":
            srd(a, SRD2, P_B1, 0, FF * 2)
            a(f"s_lshl_b32 s{sA}, s{sFT}, 5")
            a(f"v_lshl_add_u32 v{vs}, v{vI}, 1, s{sA}")
            a(f"buffer_load_ushort v{vb}, v{vs}, s[{SRD2}:{SRD2 + 3}], 0 offen")
            a(f"s_mov_b64 s[{sM0}:{sM1}], 0xffff")
        w2t = kind == "w2" and PC.w2t_in
        if w2t:
            srd_ws(a, SRD2, "W2T", W2T_SIZE)
            a(f"v_bfe_u32 v{vz}, v{vI}, 1, 1")
            a(f"v_lshl_add_u32 v{vz}, v{vG}, 1, v{vz}")
            a(f"v_lshrrev_b32 v{vb}, 2, v{vI}")
            a(f"v_xor_b32 v{vz}, v{vz}, v{vb}")
            a(f"v_lshlrev_b32 v{vz}, 4, v{vz}")
            a(f"v_lshl_add_u32 v{vz}, v{vb}, 8, v{vz}")
            a(f"v_lshl_add_u32 v{vz}, v{M2}, 3, v{vz}")
            a(f"v_xor_b32 v{vb}, {1024 + 64}, v{vz}")
            a(f"s_mul_i32 s{sA}, s{sT}, {2 * KB_STR}")
            a(f"v_lshl_add_u32 v{vs}, v{vL}, 4, s{sA}")
        reads(kind)
        if kind == "x":
            a(f"buffer_store_dword v{vz}, v{vs}, s[{SRD2}:{SRD2 + 3}], s{sOQ} offen")
            a(f"buffer_store_dword v{vz}, v{vb}, s[{SRD3}:{SRD3 + 3}], 0 offen")
        sc = Sched(a)

        def tr_read(n):
            h, x = divmod(n, 10)
            return [f"ds_read_b64_tr_b16 {V(TR + 4 * (n % 10) + 2 * eh, 2)}, v{vz + eh} "
                    f"offset:{(x >> 1) * 4096 + h * 2048 + 128 * ((x ^ h ^ eh) & 1)}" for eh in range(2)]

        def tr_store(n):
            def f():
                if n % 4 == 0:
                    a(f"s_mov_b32 s{sOQ}, {n * 1024}")
                a(f"buffer_store_dwordx4 {V(TR + 4 * (n % 10), 4)}, v{vs}, s[{SRD2}:{SRD2 + 3}], s{sOQ} offen offset:{(n % 4) * 1024}{PC.fl_w}")
            return f

        if w2t:
            for n in range(10):
                for op in tr_read(n):
                    a(op)

        def sums(beta, acc, rdy, key):
            sc.add(f"v_add_f32 v{SM + beta}, v{acc}, v{acc + 2}", rdy, key)

        stage1(sc, 0, sums if kind == "x" else None)
        if kind == "x":
            for k in range(10):
                sc.mfma(GR, DAT + 4 * k, DAT + 4 * k, None if k == 0 else GR)

        def fix(rdy, key):
            sc.add(f"v_lshlrev_b32 v{vb}, 16, v{vb}", rdy, key)
            sc.add(f"v_cndmask_b32_e64 v{ACCX + 1}, v{ACCX + 1}, v{vb}, s[{sM0}:{sM1}]", rdy, key)

        if w2t:
            sc.flush()
            for n in range(10):
                tr_store(n)()
                for op in tr_read(n + 10):
                    a(op)
        stage2(kind, sc, 0, 0, A2, ACCX, [], fix if kind == "w1" else None)
        stage2(kind, sc, 0, 1, A2 + 16, ACC1, [("y", 0), ("y", 1)])
        if w2t:
            for n in range(10, 20):
                tr_store(n)()
        if kind == "x":
            sc.add(f"v_add_f32 v{SM}, v{SM}, v{SM + 1}")
            sc.add(f"v_add_f32 v{SM + 2}, v{SM + 2}, v{SM + 3}")
            sc.add(f"v_add_f32 v{SM}, v{SM}, v{SM + 2}")
            for op in ("v_permlane32_swap_b32", "v_permlane16_swap_b32"):
                sc.add(f"v_mov_b32 v{SM + 1}, v{SM}")
                sc.add(f"{op} v{SM}, v{SM + 1}")
                sc.add(f"v_add_f32 v{SM}, v{SM}, v{SM + 1}")
            sc.add(f"v_mul_f32 v{SM}, v{SM}, v{SM}")
            for k in range(10, 20):
                sc.mfma(GR, DAT + 4 * k, DAT + 4 * k, GR)
        sc.flush()
        if kind == "x":
            for r in range(4):
                prev = "0" if r == 0 else f"v{T}"
                a(f"v_cndmask_b32_e64 v{T}, {prev}, v{GR + r}, s[{DIAG[r]}:{DIAG[r] + 1}]")
            for op in ("v_permlane32_swap_b32", "v_permlane16_swap_b32"):
                a(f"v_mov_b32 v{T + 1}, v{T}")
                a(f"{op} v{T}, v{T + 1}")
                a(f"v_add_f32 v{T}, v{T}, v{T + 1}")
            a(f"v_fmamk_f32 v{T}, v{SM}, {fx(-1.0 / (model2.SC * model2.SC * DM))}, v{T}")
            a(f"v_max_f32 v{T}, 0, v{T}")
            a(f"buffer_store_dword v{T}, v{vs}, s[{SRD2}:{SRD2 + 3}], 0 offen")
        if kind != KINDS[-1]:
            a(f"s_branch {name}_end")
    a.label(f"{name}_end")
    a.label(f"{name}_last")
    return lds
```

```python
from gen import *
import gen
import model2
import mlp
import p0
from mlp import MC, role_mlp

SCALE = float(np.sqrt(2.0 / DM))
SIGN2 = 0x80008000


class FC:
    pre_gen = 1
    plan = 0


def fx(x):
    return f"{f32bits(x):#x}"


class Sched:
    def __init__(self, a, per=2):
        self.a, self.per = a, per
        self.fill = []
        self.done = set()
        self.n = 0

    def add(self, op, ready=-1, key=None):
        self.fill.append((ready, key, op))

    def _pop(self):
        _, key, op = self.fill.pop(0)
        if callable(op):
            op()
        else:
            self.a(op)
        if key is not None and all(k != key for _, k, _ in self.fill):
            self.done.add(key)

    def mfma(self, d, x, y, c, needs=()):
        for k in needs:
            while k not in self.done:
                self._pop()
        mfma(self.a, d, x, y, c)
        cnt = 0
        while self.fill and cnt < self.per and self.fill[0][0] <= self.n:
            self._pop()
            cnt += 1
        self.n += 1

    def flush(self):
        while self.fill:
            self._pop()


def role_fft(a, kind, name):
    vld, vr, vo = 4, 5, 9
    MK, M1, M2, M2N = 10, 14, 15, 16
    vph, vk0, vq20, vgf = 17, 18, 19, 36 - 1
    ACC1, A1, A2, Y, ACCX = 20, 36, 96, 144, 168
    TMP = Y
    G0 = 20
    DAT = 256
    sQ, sFT = sK0, sK1

    def frag(beta, j):
        return DAT + (beta * 5 + j) * 4

    if kind == "w1":
        a(f"s_and_b32 s{sA}, s{sT}, 7")
        a(f"s_lshr_b32 s{sB}, s{sT}, 5")
        a(f"s_lshl3_add_u32 s{sA}, s{sB}, s{sA}")
        a(f"s_cmp_ge_u32 s{sA}, 27")
        a(f"s_cbranch_scc1 {name}_end")
        a(f"s_bfe_u32 s{sB}, s{sT}, 0x20003")
        a(f"s_lshl2_add_u32 s{sFT}, s{sA}, s{sB}")
        a(f"s_and_b32 s{sA}, s{sW}, 1")
        a(f"s_lshl_b32 s{sA}, s{sA}, 2")
        a(f"v_lshrrev_b32 v{vld}, 1, v{vL}")
        a(f"v_xor_b32 v{vld}, s{sA}, v{vld}")
        a(f"v_mul_u32_u24 v{vld}, {FF * 2}, v{vld}")
        a(f"v_and_b32 v{vr}, 1, v{vL}")
        a(f"v_lshl_add_u32 v{vld}, v{vr}, 4, v{vld}")
        a(f"s_mul_i32 s{sA}, s{sW}, {32 * FF * 2}")
        a(f"s_lshl_b32 s{sB}, s{sFT}, 5")
        a(f"s_add_u32 s{sA}, s{sA}, s{sB}")
        a(f"v_add_u32 v{vld}, s{sA}, v{vld}")
    else:
        a(f"s_and_b32 s{sA}, s{sW}, 1")
        a(f"s_lshl_b32 s{sA}, s{sA}, 1")
        a(f"s_xor_b32 s{sA}, s{sA}, s{sW}")
        a(f"s_lshl_b32 s{sA}, s{sA}, 2")
        a(f"v_or_b32 v{vr}, s{sA}, v{vG}")
        a(f"v_xor_b32 v{vr}, v{vr}, v{vI}")
        if kind == "x":
            a(f"s_and_b32 s{sC}, s{sT}, 1")
            a(f"s_lshl_b32 s{sC}, s{sC}, 3")
            a(f"s_lshr_b32 s{sA}, s{sT}, 5")
            a(f"s_lshl4_add_u32 s{sC}, s{sA}, s{sC}")
            a(f"s_bfe_u32 s{sA}, s{sT}, 0x20001")
            a(f"s_lshl_b32 s{sA}, s{sA}, 8")
            a(f"s_add_u32 s{sC}, s{sC}, s{sA}")
            a(f"s_bfe_u32 s{sA}, s{sT}, 0x10003")
            a(f"s_lshl_b32 s{sA}, s{sA}, 7")
            a(f"s_add_u32 s{sC}, s{sC}, s{sA}")
            a(f"s_bfe_u32 s{sA}, s{sT}, 0x10004")
            a(f"s_lshl_b32 s{sA}, s{sA}, 10")
            a(f"s_add_u32 s{sC}, s{sC}, s{sA}")
            a(f"s_lshl1_add_u32 s{sC}, s{sW}, s{sC}")
            a(f"v_and_b32 v{vld}, 1, v{vG}")
            a(f"v_lshlrev_b32 v{vld}, 6, v{vld}")
            a(f"v_lshrrev_b32 v{vr + 1}, 1, v{vG}")
            a(f"v_add3_u32 v{vld}, v{vld}, v{vr + 1}, s{sC}")
        else:
            a(f"s_lshl_b32 s{sC}, s{sT}, 4")
            a(f"s_cmp_eq_u32 s{sT}, 108")
            a(f"s_cselect_b32 s{sC}, 0, s{sC}")
            a(f"s_lshl2_add_u32 s{sC}, s{sW}, s{sC}")
            a(f"v_add_u32 v{vld}, s{sC}, v{vG}")
        a(f"v_mul_u32_u24 v{vld}, 1280, v{vld}")
        a(f"v_lshl_add_u32 v{vld}, v{vr}, 4, v{vld}")
    a(f"s_lshl_b32 s{sE}, s{sW}, 10")

    def issue_loads():
        a("s_waitcnt lgkmcnt(0)")
        if kind == "x":
            srd(a, SRD0, P_X, 0, SEQ * DM * 2)
        elif kind == "w1":
            srd(a, SRD0, P_W1, 0, DM * FF * 2)
        else:
            a(f"s_cmp_eq_u32 s{sT}, 108")
            a(f"s_cselect_b32 s{SRD0}, s{P_B2}, s{P_W2}")
            a(f"s_cselect_b32 s{SRD0 + 1}, s{P_B2 + 1}, s{P_W2 + 1}")
            a(f"s_mov_b32 s{SRD0 + 2}, {FF * DM * 2}")
            a(f"s_cselect_b32 s{SRD0 + 2}, {DM * 2}, s{SRD0 + 2}")
            a(f"s_and_b32 s{SRD0 + 1}, s{SRD0 + 1}, 0xffff")
            a(f"s_mov_b32 s{SRD0 + 3}, 0x20000")
        for j in range(5):
            if kind == "w1":
                a(f"s_add_u32 m0, s{sE}, {j * 4096}")
                a(f"s_mov_b32 s{sOP}, {j * 128 * FF * 2}")
                a(f"buffer_load_dwordx4 v{vld}, s[{SRD0}:{SRD0 + 3}], s{sOP} offen lds")
            else:
                a(f"s_add_u32 m0, s{sE}, {j * 4096 - j * 256}")
                a(f"buffer_load_dwordx4 v{vld}, s[{SRD0}:{SRD0 + 3}], 0 offen offset:{j * 256} lds")
        mark(a, 1)
        if kind == "x":
            srd_ws(a, SRD1, "XP0", XP_SIZE)
        elif kind == "w1":
            srd_ws(a, SRD1, "W1F", W1F_SIZE)
        else:
            srd_ws(a, SRD1, "WA2", WA2_SIZE)

    a(f"v_bfe_u32 v{TMP}, v{vI}, 1, 1")
    a(f"v_lshlrev_b32 v{TMP}, 4, v{TMP}")
    a(f"v_mov_b32 v{TMP + 1}, 0xffff")
    a(f"v_lshlrev_b32 v{TMP}, v{TMP}, v{TMP + 1}")
    a(f"v_lshrrev_b32 v{TMP + 1}, 2, v{vI}")
    for k in range(4):
        a(f"v_cmp_eq_u32 vcc, {k}, v{TMP + 1}")
        a(f"v_cndmask_b32 v{MK + k}, 0, v{TMP}, vcc")
    a(f"v_and_b32 v{M2}, 1, v{vI}")
    a(f"v_cvt_f32_u32 v{vph}, v{M2}")
    a(f"v_mul_f32 v{vph}, 0.5, v{vph}")
    a(f"v_lshrrev_b32 v{vk0}, 1, v{vI}")
    a(f"v_cvt_f32_u32 v{vk0}, v{vk0}")
    a(f"v_mul_f32 v{vk0}, {fx(1 / 32)}, v{vk0}")
    a(f"v_cvt_f32_u32 v{vgf}, v{vG}")

    def gen_a1(base, fq, ph):
        t = TMP
        a(f"v_fma_f32 v{t}, v{vgf}, v{fq}, {ph}")
        for j in range(1, 5):
            a(f"v_fmamk_f32 v{t + j}, v{fq}, {fx(4.0 * j)}, v{t}")
        for j in range(5):
            a(f"v_cos_f32 v{t + j}, v{t + j}")
        for j in range(5):
            a(f"v_mul_f32 v{t + j}, {fx(SCALE)}, v{t + j}")
        for j in range(5):
            a(f"v_cvt_pk_bf16_f32 v{t + j}, v{t + j}, v{t + j}")
        for j in range(5):
            for k in range(4):
                a(f"v_and_b32 v{base + 4 * j + k}, v{MK + k}, v{t + j}")

    def angles(kf, ph):
        t = TMP
        a(f"v_mul_f32 v{t + 8}, v{vgf}, v{kf}")
        a(f"v_fma_f32 v{t}, v{t + 8}, 2.0, v{ph}")
        for k in range(1, 8):
            c = 16 * (k >> 2) + 8 * ((k >> 1) & 1) + (k & 1)
            a(f"v_fmamk_f32 v{t + k}, v{kf}, {fx(float(c))}, v{t}")

    def read_addr():
        if kind == "w1":
            a(f"v_and_b32 v{vr}, 1, v{vG}")
            a(f"v_lshlrev_b32 v{vr}, 7, v{vr}")
            a(f"v_lshl_add_u32 v{vr}, v{vG}, 10, v{vr}")
            a(f"v_lshl_add_u32 v{vr}, v{vI}, 3, v{vr}")
            a(f"v_xor_b32 v{vr + 1}, 128, v{vr}")
        else:
            a(f"v_and_b32 v{vr}, 4, v{vI}")
            a(f"v_lshlrev_b32 v{vr}, 1, v{vr}")
            a(f"v_xor_b32 v{vr}, v{vr}, v{vI}")
            a(f"v_lshlrev_b32 v{vr + 1}, 2, v{vG}")
            a(f"v_xor_b32 v{vr}, v{vr}, v{vr + 1}")
            a(f"v_lshlrev_b32 v{vr}, 4, v{vr}")
            a(f"v_lshl_add_u32 v{vr}, v{vI}, 8, v{vr}")
            for k in (1, 2, 3):
                a(f"v_xor_b32 v{vr + k}, {16 * k}, v{vr}")

    def out_addr():
        if kind == "x":
            a(f"v_lshlrev_b32 v{vo}, 15, v{vG}")
            a(f"v_lshl_add_u32 v{vo}, v{vI}, 3, v{vo}")
            a(f"s_lshl_b32 s{sA}, s{sQ}, 18")
            a(f"s_lshl_b32 s{sB}, s{sT}, 7")
        elif kind == "w1":
            a(f"v_mul_u32_u24 v{vo}, {W1F_STR}, v{vG}")
            a(f"v_lshl_add_u32 v{vo}, v{vI}, 4, v{vo}")
            a(f"s_mul_i32 s{sA}, s{sQ}, {8 * W1F_STR}")
            a(f"s_lshl_b32 s{sB}, s{sFT}, 8")
        else:
            a(f"v_lshrrev_b32 v{vo}, 1, v{vG}")
            a(f"v_mul_u32_u24 v{vo}, {KB_STR}, v{vo}")
            a(f"v_lshrrev_b32 v{vld}, 2, v{vI}")
            a(f"v_lshl_add_u32 v{vo}, v{vld}, 7, v{vo}")
            a(f"v_and_b32 v{vld}, 3, v{vI}")
            a(f"v_lshl_add_u32 v{vo}, v{vld}, 4, v{vo}")
            a(f"v_and_b32 v{vld}, 1, v{vG}")
            a(f"v_lshl_add_u32 v{vo}, v{vld}, 6, v{vo}")
            a(f"s_lshl_b32 s{sA}, s{sQ}, 10")
            a(f"s_mul_i32 s{sB}, s{sT}, {2 * KB_STR}")
        a(f"s_add_u32 s{sA}, s{sA}, s{sB}")
        a(f"v_add_u32 v{vo}, s{sA}, v{vo}")

    def reads():
        a("s_waitcnt vmcnt(0)")
        a("s_barrier")
        mark(a, 3)
        for beta in range(4):
            for j in range(5):
                if kind == "w1":
                    for eh in range(2):
                        a(f"ds_read_b64_tr_b16 {R(frag(beta, j) + 2 * eh, 2)}, v{vr + eh} offset:{4096 * j + 256 * beta}")
                else:
                    a(f"ds_read_b128 {R(frag(beta, j), 4)}, v{vr + beta} offset:{4096 * j}")

    def stage1(sc, n, extra=None):
        for beta in range(4):
            c = 4 * n + beta
            acc = ACC1 + 4 * (c % 4)
            for j in range(5):
                sc.mfma(acc, A1 + 20 * n + 4 * j, frag(beta, j), None if j == 0 else acc,
                        needs=[("y", c - 4)] if j == 0 and c >= 4 else [])
            rdy = sc.n + 5
            if extra:
                extra(beta, acc, rdy, ("y", c))
            for h in range(2):
                sc.add(f"v_cvt_pk_bf16_f32 v{Y + 2 * c + h}, v{acc + 2 * h}, v{acc + 2 * h + 1}", rdy, ("y", c))

    def stage2(sc, n, u, mat, acc, needs, fix=None):
        for tl in range(2):
            for kp in range(2):
                d = acc + 4 * tl
                m, y = mat + (tl * 2 + kp) * 4, Y + 8 * n + 4 * kp
                nd = list(needs) + [("y", 4 * n + 2 * kp), ("y", 4 * n + 2 * kp + 1)]
                if kind == "w2":
                    sc.mfma(d, y, m, None if kp == 0 else d, needs=nd)
                else:
                    sc.mfma(d, m, y, None if kp == 0 else d, needs=nd)
        rdy, key = sc.n + 3, ("o", n, u)
        if fix:
            fix(rdy, key)
        for k in range(4):
            sc.add(f"v_cvt_pk_bf16_f32 v{acc + k}, v{acc + 2 * k}, v{acc + 2 * k + 1}", rdy, key)
        if kind == "x":
            for tl in range(2):
                def st(tl=tl):
                    a(f"s_mov_b32 s{sOP}, {(16 * n + 8 * u + tl) * XP_STR}")
                    a(f"buffer_store_dwordx2 {V(acc + 2 * tl, 2)}, v{vo}, s[{SRD1}:{SRD1 + 3}], s{sOP} offen")
                sc.add(st, rdy, key)
        elif kind == "w1":
            def st():
                a(f"s_mov_b32 s{sOP}, {(8 * n + 4 * u) * W1F_STR}")
                a(f"buffer_store_dwordx4 {V(acc, 4)}, v{vo}, s[{SRD1}:{SRD1 + 3}], s{sOP} offen{Cfg.st_flags}")
            sc.add(st, rdy, key)
        else:
            sc.add(f"v_permlane16_swap_b32 v{acc}, v{acc + 2}", rdy, key)
            sc.add(f"v_permlane16_swap_b32 v{acc + 1}, v{acc + 3}", rdy, key)
            sc.add(f"buffer_store_dwordx4 {V(acc, 4)}, v{vo}, s[{SRD1}:{SRD1 + 3}], 0 offen offset:{1024 * n + 512 * u}{Cfg.st_flags}",
                   rdy, key)

    a(f"s_cmp_eq_u32 s{sW}, 3")
    a(f"s_cbranch_scc1 {name}_sp")

    a(f"s_mul_i32 s{sQ}, s{sW}, 3")
    a(f"s_add_u32 s{sQ}, s{sQ}, 1")
    a(f"v_mul_f32 v{vph}, 0.5, v{vph}")
    a(f"v_cvt_f32_u32 v{vq20}, s{sQ}")
    a(f"v_fmamk_f32 v{vk0}, v{vq20}, {fx(1 / 640)}, v{vk0}")
    a(f"v_mul_f32 v{vq20}, {fx(1 / 20)}, v{vq20}")
    a(f"v_mul_u32_u24 v{M2}, 0x8000, v{M2}")
    a(f"v_lshl_or_b32 v{M2}, v{M2}, 16, v{M2}")
    a(f"v_xor_b32 v{M2N}, {SIGN2:#x}, v{M2}")
    a(f"v_and_b32 v{M1}, 1, v{vG}")
    a(f"v_mul_u32_u24 v{M1}, 0x8000, v{M1}")
    a(f"v_lshl_or_b32 v{M1}, v{M1}, 16, v{M1}")
    for n in range(3):
        if n == FC.pre_gen:
            issue_loads()
        if n:
            a(f"v_add_f32 v{vk0}, {fx(1 / 640)}, v{vk0}")
            a(f"v_add_f32 v{vq20}, {fx(1 / 20)}, v{vq20}")
        gen_a1(A1 + 20 * n, vq20, f"v{vph}")
        angles(vk0, vph)
        for k in range(8):
            a(f"v_sin_f32 v{TMP + 8 + k}, v{TMP + k}")
            a(f"v_cos_f32 v{TMP + k}, v{TMP + k}")
        b = A2 + 16 * n
        for k in range(8):
            a(f"v_cvt_pk_bf16_f32 v{b + k}, v{TMP + k}, v{TMP + 8 + k}")
            if k & 1:
                a(f"v_cvt_pk_bf16_f32 v{b + 8 + k}, -v{TMP + 8 + k}, v{TMP + k}")
        for k in range(8):
            a(f"v_xor_b32 v{b + 8 + k}, v{M1}, v{b + (8 if k & 1 else 0) + k}")
    read_addr()
    out_addr()
    mark(a, 2)
    reads()
    sc = Sched(a)
    for n in range(3):
        stage1(sc, n)
        for k in range(16):
            sc.add(f"v_xor_b32 v{A1 + 20 * n + k}, v{M2N if k & 1 else M2}, v{A2 + 16 * n + k}", sc.n, ("d", n))
    mark(a, 4)
    bufs = [ACCX, ACC1, ACC1 + 8]
    hist = [[], [("y", 8), ("y", 9)], [("y", 10), ("y", 11)]]
    for k in range(6):
        n, u = divmod(k, 2)
        needs = hist[k] if k < 3 else [("o",) + divmod(k - 3, 2)]
        if u:
            needs = needs + [("d", n)]
        stage2(sc, n, u, A1 + 20 * n if u else A2 + 16 * n, bufs[k % 3], needs)
    sc.flush()
    a(f"s_branch {name}_end")

    a.label(f"{name}_sp")
    a(f"s_mov_b32 s{sQ}, 0")
    gen_a1(A1, vph, "0")
    a(f"v_mul_f32 v{vph}, 0.5, v{vph}")
    kf, ph = vq20, M1
    for tau in range(4):
        if tau == 1:
            issue_loads()
        if tau == 0:
            a(f"v_cmp_eq_u32 vcc, 0, v{vI}")
            a(f"v_mov_b32 v{kf}, 0.5")
            a(f"v_cndmask_b32 v{kf}, v{vk0}, v{kf}, vcc")
            a(f"v_cmp_gt_u32 vcc, 2, v{vI}")
            a(f"v_mov_b32 v{ph}, {fx(0.125)}")
            a(f"v_cndmask_b32 v{ph}, v{vph}, v{ph}, vcc")
        else:
            a(f"v_add_f32 v{kf}, {fx(tau / 4 + (10 / 640 if tau >= 2 else 0))}, v{vk0}")
            a(f"v_mul_f32 v{ph}, {'-1.0' if tau >= 2 else '1.0'}, v{vph}")
        angles(kf, ph)
        for k in range(8):
            a(f"v_cos_f32 v{TMP + k}, v{TMP + k}")
        for k in range(8):
            d = A2 + 8 * tau + k
            a(f"v_cvt_pk_bf16_f32 v{d}, v{TMP + k}, 0" if tau < 2 else f"v_cvt_pk_bf16_f32 v{d}, 0, v{TMP + k}")
    read_addr()
    out_addr()
    X0 = A1 + 20
    vs, vz, vb, GR, SM, T = X0, X0 + 1, X0 + 2, X0 + 4, X0 + 8, X0 + 12
    DIAG = (4, 6, 30, 70)
    if kind == "x":
        srd_ws(a, SRD2, "SS0", 2 * SS_SIZE)
        srd_ws(a, SRD3, "FLAG", FLAG_SIZE)
        a(f"s_lshr_b32 s{sA}, s{sT}, 4")
        a(f"s_lshl_b32 s{sA}, s{sA}, 10")
        a(f"s_and_b32 s{sB}, s{sT}, 7")
        a(f"s_lshl_b32 s{sB}, s{sB}, 7")
        a(f"s_add_u32 s{sA}, s{sA}, s{sB}")
        a(f"s_and_b32 s{sB}, s{sT}, 8")
        a(f"s_add_u32 s{sA}, s{sA}, s{sB}")
        a(f"v_lshrrev_b32 v{vs}, 1, v{vI}")
        a(f"v_lshlrev_b32 v{vs}, 4, v{vs}")
        a(f"v_lshl_add_u32 v{vs}, v{M2}, 2, v{vs}")
        a(f"v_lshl_add_u32 v{vs}, v{vG}, 20, v{vs}")
        a(f"v_add_u32 v{vs}, s{sA}, v{vs}")
        a(f"v_mov_b32 v{vz}, 0")
        a(f"s_lshl_b32 s{sA}, s{sT}, 8")
        a(f"v_lshl_add_u32 v{vb}, v{vL}, 2, s{sA}")
        a(f"s_mov_b32 s{sOQ}, {WS['SS2'] - WS['SS0']}")
        for r in range(4):
            m = 0x1000010000100001 << r
            a(f"s_mov_b32 s{DIAG[r]}, {m & 0xffffffff:#x}")
            a(f"s_mov_b32 s{DIAG[r] + 1}, {m >> 32:#x}")
    if kind == "w1":
        srd(a, SRD2, P_B1, 0, FF * 2)
        a(f"s_lshl_b32 s{sA}, s{sFT}, 5")
        a(f"v_lshl_add_u32 v{vs}, v{vI}, 1, s{sA}")
        a(f"buffer_load_ushort v{vb}, v{vs}, s[{SRD2}:{SRD2 + 3}], 0 offen")
        a(f"s_mov_b64 s[{sM0}:{sM1}], 0xffff")
    mark(a, 2)
    reads()
    if kind == "x":
        a(f"buffer_store_dword v{vz}, v{vs}, s[{SRD2}:{SRD2 + 3}], s{sOQ} offen")
        a(f"buffer_store_dword v{vz}, v{vb}, s[{SRD3}:{SRD3 + 3}], 0 offen")
    sc = Sched(a)

    def sums(beta, acc, rdy, key):
        sc.add(f"v_add_f32 v{SM + beta}, v{acc}, v{acc + 2}", rdy, key)

    stage1(sc, 0, sums if kind == "x" else None)
    if kind == "x":
        for k in range(10):
            sc.mfma(GR, DAT + 4 * k, DAT + 4 * k, None if k == 0 else GR)

    def fix(rdy, key):
        sc.add(f"v_lshlrev_b32 v{vb}, 16, v{vb}", rdy, key)
        sc.add(f"v_cndmask_b32_e64 v{ACCX + 1}, v{ACCX + 1}, v{vb}, s[{sM0}:{sM1}]", rdy, key)

    stage2(sc, 0, 0, A2, ACCX, [], fix if kind == "w1" else None)
    stage2(sc, 0, 1, A2 + 16, ACC1, [("y", 0), ("y", 1)])
    if kind == "x":
        sc.add(f"v_add_f32 v{SM}, v{SM}, v{SM + 1}")
        sc.add(f"v_add_f32 v{SM + 2}, v{SM + 2}, v{SM + 3}")
        sc.add(f"v_add_f32 v{SM}, v{SM}, v{SM + 2}")
        for op in ("v_permlane32_swap_b32", "v_permlane16_swap_b32"):
            sc.add(f"v_mov_b32 v{SM + 1}, v{SM}")
            sc.add(f"{op} v{SM}, v{SM + 1}")
            sc.add(f"v_add_f32 v{SM}, v{SM}, v{SM + 1}")
        sc.add(f"v_mul_f32 v{SM}, v{SM}, v{SM}")
        for k in range(10, 20):
            sc.mfma(GR, DAT + 4 * k, DAT + 4 * k, GR)
    sc.flush()
    if kind == "x":
        for r in range(4):
            prev = "0" if r == 0 else f"v{T}"
            a(f"v_cndmask_b32_e64 v{T}, {prev}, v{GR + r}, s[{DIAG[r]}:{DIAG[r] + 1}]")
        for op in ("v_permlane32_swap_b32", "v_permlane16_swap_b32"):
            a(f"v_mov_b32 v{T + 1}, v{T}")
            a(f"{op} v{T}, v{T + 1}")
            a(f"v_add_f32 v{T}, v{T}, v{T + 1}")
        a(f"v_fmamk_f32 v{T}, v{SM}, {fx(-1.0 / (model2.SC * model2.SC * DM))}, v{T}")
        a(f"v_max_f32 v{T}, 0, v{T}")
        a(f"buffer_store_dword v{T}, v{vs}, s[{SRD2}:{SRD2 + 3}], 0 offen")
    a.label(f"{name}_end")
    return 20480


def role_wc2(a):
    vld, va0, va1, va2, vo, vt, LD, ST = 4, 5, 6, 7, 8, 9, 12, 52
    REG = 5248
    a(f"s_bfe_u32 s{sA}, s{sT}, 0x20001")
    a(f"s_lshl_b32 s{sC}, s{sA}, 7")
    a(f"s_lshr_b32 s{sA}, s{sT}, 5")
    a(f"s_lshl_b32 s{sA}, s{sA}, 9")
    a(f"s_add_u32 s{sC}, s{sC}, s{sA}")
    a(f"s_bfe_u32 s{sA}, s{sT}, 0x10003")
    a(f"s_lshl_b32 s{sA}, s{sA}, 6")
    a(f"s_add_u32 s{sC}, s{sC}, s{sA}")
    a(f"s_and_b32 s{sA}, s{sT}, 16")
    a(f"s_add_u32 s{sC}, s{sC}, s{sA}")
    a(f"s_and_b32 s{sA}, s{sT}, 1")
    a(f"s_lshl3_add_u32 s{sC}, s{sA}, s{sC}")
    a(f"s_lshr_b32 s{sA}, s{sW}, 1")
    a(f"s_lshl_b32 s{sA}, s{sA}, 5")
    a(f"s_add_u32 s{sC}, s{sC}, s{sA}")
    a(f"s_mul_i32 s{sC}, s{sC}, 642")
    a(f"s_add_u32 s{sD}, s{sC}, 4096")
    a(f"v_lshlrev_b32 v{vld}, 4, v{vL}")
    a(f"s_mul_i32 s{sE}, s{sW}, {REG}")
    a(f"s_bitcmp1_b32 s{sW}, 0")
    a("s_waitcnt lgkmcnt(0)")
    a(f"s_cselect_b32 s{SRD0}, s{P_WI}, s{P_WR}")
    a(f"s_cselect_b32 s{SRD0 + 1}, s{P_WI + 1}, s{P_WR + 1}")
    a(f"s_and_b32 s{SRD0 + 1}, s{SRD0 + 1}, 0xffff")
    a(f"s_mov_b32 s{SRD0 + 2}, {SEQ * 642}")
    a(f"s_mov_b32 s{SRD0 + 3}, 0x20000")
    a(f"s_mov_b32 m0, s{sE}")
    for j in range(4):
        a(f"buffer_load_dwordx4 v{vld}, s[{SRD0}:{SRD0 + 3}], s{sC} offen offset:{j * 1024} lds")
    a(f"s_add_u32 m0, s{sE}, 4096")
    a(f"buffer_load_dwordx4 v{vld}, s[{SRD0}:{SRD0 + 3}], s{sD} offen lds")
    a("s_mov_b64 exec, 1")
    a(f"buffer_load_dwordx4 v{vld}, s[{SRD0}:{SRD0 + 3}], s{sD} offen offset:1024 lds")
    a("s_mov_b64 exec, -1")
    mark(a, 1)
    srd_ws(a, SRD1, "WC", WC_SIZE)
    a(f"v_bfe_u32 v{vt}, v{vL}, 3, 1")
    a(f"v_lshlrev_b32 v{vt}, 2, v{vt}")
    a(f"v_add_u32 v{vt}, v{vt}, v{vG}")
    a(f"s_cmp_lt_u32 s{sW}, 2")
    a(f"s_cselect_b32 s{sK0}, 1, -1")
    a(f"s_mul_i32 s{sA}, s{sK0}, 80")
    a(f"s_mul_i32 s{sB}, s{sK0}, 40")
    a(f"v_mul_i32_i24 v{va0}, s{sA}, v{vt}")
    a(f"v_and_b32 v{vt}, 7, v{vL}")
    a(f"v_mul_u32_u24 v{va1}, 642, v{vt}")
    a(f"v_add_u32 v{va0}, v{va0}, v{va1}")
    a(f"s_mul_i32 s{sK1}, s{sW}, 5")
    a(f"s_sub_u32 s{sK2}, 325, s{sK1}")
    a(f"s_cmp_lt_u32 s{sW}, 2")
    a(f"s_cselect_b32 s{sK2}, s{sK1}, s{sK2}")
    a(f"s_lshl_b32 s{sK2}, s{sK2}, 1")
    a(f"v_add_u32 v{va0}, s{sK2}, v{va0}")
    a(f"v_add_u32 v{va1}, s{sB}, v{va0}")
    a(f"v_cmp_gt_u32 vcc, 8, v0")
    a(f"v_add_u32 v{va2}, 640, v{va0}")
    a(f"v_cndmask_b32 v{va2}, v{va0}, v{va2}, vcc")
    a(f"v_lshrrev_b32 v{vo}, 3, v{vL}")
    a(f"v_lshlrev_b32 v{vo}, 14, v{vo}")
    a(f"v_lshl_add_u32 v{vo}, v{vt}, 4, v{vo}")
    a(f"s_lshl_b32 s{sA}, s{sT}, 7")
    a(f"s_lshr_b32 s{sB}, s{sW}, 1")
    a(f"s_lshl_b32 s{sB}, s{sB}, 17")
    a(f"s_add_u32 s{sA}, s{sA}, s{sB}")
    a(f"v_add_u32 v{vo}, s{sA}, v{vo}")
    a(f"s_sub_u32 s{sK2}, s{sK1}, 5")
    a(f"s_cmp_lt_u32 s{sW}, 2")
    a(f"s_cselect_b32 s{sK1}, s{sK1}, s{sK2}")
    a("s_waitcnt vmcnt(0)")
    a("s_barrier")
    mark(a, 2)
    for n in range(5):
        for rl in range(2):
            for ph in range(2):
                ad = va1 if ph else (va2 if n == 0 else va0)
                for ar in range(2):
                    a(f"ds_read_u16 v{LD + n * 8 + (rl * 2 + ph) * 2 + ar}, v{ad} offset:{(rl * 2 + ar) * REG + 2 * n}")
    for n in range(5):
        for k in range(4):
            a(f"v_lshl_or_b32 v{ST + 4 * n + k}, v{LD + n * 8 + 2 * k + 1}, 16, v{LD + n * 8 + 2 * k}")
        if n == 0:
            a(f"s_cmp_eq_u32 s{sK1}, 10")
            a(f"s_cselect_b32 s{sOP}, 0, s{sK1}")
            a(f"s_lshl_b32 s{sOP}, s{sOP}, 18")
        else:
            a(f"s_add_i32 s{sK1}, s{sK1}, s{sK0}")
            a(f"s_lshl_b32 s{sOP}, s{sK1}, 18")
        a(f"buffer_store_dwordx4 {V(ST + 4 * n, 4)}, v{vo}, s[{SRD1}:{SRD1 + 3}], s{sOP} offen{Cfg.st_flags}")
    return 4 * REG


def role_col2(a, src, ssn, dst):
    vx, vw, vl0, vmI = 4, 5, 6, 10
    fi, fg, fa, fb = 11, 12, 13, 14
    raw, ss, wraw = 16, 32, 40
    M1, M2 = 56, 88
    T1, T2 = 120, 136
    ACC, FO, TMP, WU0 = 152, 184, 200, 232
    FGR = [TMP + 4 * k for k in range(8)] + [ss, ss + 4, 248, 252]
    WU = (WU0, T1)

    a(f"s_mul_i32 s{sB}, s{sW}, 3072")
    a(f"v_lshlrev_b32 v{vl0}, 4, v0")
    a(f"v_add_u32 v{vx}, s{sB}, v{vl0}")
    a(f"s_lshl_b32 s{sB}, s{sW}, 10")
    a(f"v_add_u32 v{vw}, s{sB}, v{vl0}")
    a(f"s_lshl_b32 s{sF}, s{sT}, 14")

    def issue_loads():
        a("s_waitcnt lgkmcnt(0)")
        srd_ws(a, SRD0, src, XP_SIZE)
        srd_ws(a, SRD1, ssn, SS_SIZE)
        for t in range(2):
            a(f"buffer_load_dwordx4 {V(ss + 4 * t, 4)}, v{vw}, s[{SRD1}:{SRD1 + 3}], 0 offen offset:{t * 1024}")
        for k in range(4):
            a(f"buffer_load_dwordx4 {V(raw + 4 * k, 4)}, v{vx}, s[{SRD0}:{SRD0 + 3}], s{sF} offen offset:{k * 1024}")
        srd_ws(a, SRD2, "WC", WC_SIZE)
        for k in range(4):
            a(f"buffer_load_dwordx4 {V(wraw + 4 * k, 4)}, v{vx}, s[{SRD2}:{SRD2 + 3}], s{sF} offen offset:{k * 1024}")
        srd_ws(a, SRD3, dst, XP_SIZE)
        mark(a, 1)

    def pos(base, k, c):
        return base + (k >> 1) * 4 + (k & 1) * 2 + c

    for kk in (1, 2, 3):
        a(f"v_xor_b32 v{vl0 + kk}, {kk * 1024}, v{vl0}")
    a(f"v_and_b32 v{vmI}, 1, v{vI}")
    a(f"v_mul_u32_u24 v{vmI}, 0x8000, v{vmI}")
    a(f"v_lshl_or_b32 v{vmI}, v{vmI}, 16, v{vmI}")
    a(f"v_cvt_f32_u32 v{fi}, v{vI}")
    a(f"v_lshlrev_b32 v{fg}, 2, v{vG}")
    a(f"v_cvt_f32_u32 v{fg}, v{fg}")

    def m1(qb, t, var):
        return M1 + ((qb * 2 + t) * 2 + var) * 4

    def m2(kk, var):
        return M2 + (kk * 2 + var) * 4

    a(f"v_mul_f32 v{fa}, {fx(1 / 32)}, v{fi}")
    a(f"v_mul_f32 v{TMP}, v{fg}, v{fa}")
    for jj in range(1, 4):
        a(f"v_fmamk_f32 v{TMP + 3 * jj}, v{fa}, {fx(float(jj))}, v{TMP}")
    for jj in range(4):
        t = TMP + 3 * jj
        a(f"v_cos_f32 v{t + 1}, v{t}")
        a(f"v_sin_f32 v{t + 2}, v{t}")
    for jj in range(4):
        t = TMP + 3 * jj
        n = "-" if jj & 1 else ""
        m = "" if jj & 1 else "-"
        a(f"v_cvt_pk_bf16_f32 v{m1(0, 0, 0) + jj}, v{t + 1}, v{t + 2}")
        a(f"v_cvt_pk_bf16_f32 v{m1(0, 0, 1) + jj}, -v{t + 2}, v{t + 1}")
        a(f"v_cvt_pk_bf16_f32 v{m1(1, 0, 0) + jj}, {n}v{t + 1}, {n}v{t + 2}")
        a(f"v_cvt_pk_bf16_f32 v{m1(1, 0, 1) + jj}, {m}v{t + 2}, {n}v{t + 1}")
    for qb in range(2):
        for var in range(2):
            for jj in range(4):
                a(f"v_xor_b32 v{m1(qb, 1, var) + jj}, v{vmI}, v{m1(qb, 0, var) + jj}")

    a(f"s_lshl_b32 s{sA}, s{sW}, 4")
    a(f"v_cvt_f32_u32 v{fb}, s{sA}")
    a(f"v_add_f32 v{TMP + 24}, v{fb}, v{fg}")
    a(f"v_add_f32 v{fb}, v{fb}, v{fi}")
    a(f"v_mul_f32 v{TMP + 25}, {fx(1 / 2048)}, v{fi}")
    a(f"v_add_f32 v{TMP + 26}, {fx(16 / 2048)}, v{TMP + 25}")
    for r in range(4):
        a(f"v_add_f32 v{TMP + r}, {fx(float(r))}, v{TMP + 24}")
    for qb in range(2):
        for r in range(4):
            t = TMP + 4 + (qb * 4 + r)
            a(f"v_mul_f32 v{t}, v{TMP + r}, v{TMP + 25 + qb}")
            a(f"v_cos_f32 v{T1 + qb * 8 + r}, v{t}")
            a(f"v_sin_f32 v{T1 + qb * 8 + 4 + r}, v{t}")
    issue_loads()

    a(f"v_mul_f32 v{fa}, {fx(1 / 64)}, v{fb}")
    a(f"s_xor_b32 s{sA}, s{sA}, 16")
    a(f"v_cvt_f32_u32 v{TMP + 24}, s{sA}")
    a(f"v_add_f32 v{TMP + 24}, v{TMP + 24}, v{fg}")
    for kk in range(2):
        for r in range(4):
            t = TMP + 12 + 3 * r
            if kk == 0:
                a(f"v_mul_f32 v{t}, v{TMP + r}, v{fa}")
            else:
                a(f"v_add_f32 v{t}, {fx(float(r))}, v{TMP + 24}")
                a(f"v_mul_f32 v{t}, v{t}, v{fa}")
            a(f"v_cos_f32 v{t + 1}, v{t}")
            a(f"v_sin_f32 v{t + 2}, v{t}")
        for r in range(4):
            t = TMP + 12 + 3 * r
            a(f"v_cvt_pk_bf16_f32 v{m2(kk, 0) + r}, v{t + 1}, v{t + 2}")
            a(f"v_cvt_pk_bf16_f32 v{m2(kk, 1) + r}, -v{t + 2}, v{t + 1}")
    for kk in range(2):
        for var in range(2):
            for r in range(4):
                a(f"v_xor_b32 v{m2(kk + 2, var) + r}, v{vmI}, v{m2(kk, var) + r}")

    a(f"v_mul_f32 v{fa}, {fx(1 / 2048)}, v{fb}")
    a(f"v_mul_f32 v{TMP}, v{fg}, v{fa}")
    for k in range(1, 8):
        a(f"v_fmamk_f32 v{TMP + k}, v{fa}, {fx(float(16 * (k >> 2) + (k & 3)))}, v{TMP}")
    for k in range(8):
        u, r = divmod(k, 4)
        a(f"v_cos_f32 v{T2 + u * 8 + r}, v{TMP + k}")
        a(f"v_sin_f32 v{T2 + u * 8 + 4 + r}, v{TMP + k}")

    a(f"s_mov_b32 s{sK1}, 0xffff0000")
    a(f"s_cmp_eq_u32 s{sT}, 0")
    a(f"s_cselect_b32 s{sK2}, 0, s{sK1}")
    a(f"s_mov_b32 s{sK0}, {fx(-1 / 2048)}")
    a(f"s_cselect_b32 s{sK3}, 0, s{sK0}")
    a(f"s_mov_b32 s{sA}, {fx(1 / DM)}")
    a(f"s_mov_b32 s{sB}, {fx(1 / 2048)}")
    a(f"v_mov_b32 v{fa}, {fx(1e-5)}")
    mark(a, 2)
    for k in range(8):
        a(f"v_fma_f32 v{ss + k}, v{ss + k}, s{sA}, v{fa}")
    for k in range(8):
        a(f"v_rsq_f32 v{ss + k}, v{ss + k}")

    def acc(c, b, var):
        return ACC + c * 16 + (b * 2 + var) * 4

    def fo(c, b):
        return FO + c * 8 + b * 4

    def unpack(dst, base, c, mask):
        ops = []
        for k in range(8):
            ops.append(f"v_lshlrev_b32 v{dst + 2 * k}, 16, v{pos(base, k, c)}")
            ops.append(f"v_and_b32 v{dst + 2 * k + 1}, s{mask}, v{pos(base, k, c)}")
        return ops

    def unpack_w(c):
        ops = []
        for k in range(8):
            u, r = divmod(k, 4)
            ops.append(f"v_lshlrev_b32 v{WU[c] + u * 8 + r}, 16, v{pos(wraw, k, c)}")
            ops.append(f"v_and_b32 v{WU[c] + u * 8 + 4 + r}, s{sK1}, v{pos(wraw, k, c)}")
        return ops

    def scale(c):
        t = TMP + 16 * c
        for k in range(8):
            h = k & 1
            a(f"v_pk_mul_f32 {V(t + 2 * k, 2)}, {V(t + 2 * k, 2)}, {V(ss + k - h, 2)} op_sel:[0,{h}] op_sel_hi:[1,{h}]")
        for k in range(8):
            a(f"v_cvt_pk_bf16_f32 v{fo(c, 0) + k}, v{t + 2 * k}, v{t + 2 * k + 1}")

    sc = Sched(a)

    def stage_a(c):
        for t in range(2):
            for qb in range(2):
                for var in range(2):
                    sc.mfma(acc(c, qb, var), fo(c, t), m1(qb, t, var), None if t == 0 else acc(c, qb, var))
        sc.flush()

    for op in unpack(TMP, raw, 0, sK2):
        a(op)
    scale(0)
    mark(a, 3)
    for op in unpack(TMP + 16, raw, 1, sK1):
        sc.add(op)
    stage_a(0)
    scale(1)
    for op in unpack_w(0):
        sc.add(op)
    stage_a(1)

    def mm(c, b, var, f, kk, data_is_a):
        cc = None if kk == 0 else acc(c, b, var)
        if data_is_a:
            sc.mfma(acc(c, b, var), f, m2(kk, var), cc)
        else:
            sc.mfma(acc(c, b, var), m2(kk, var), f, cc)

    def exchange(base, data_is_a, cm, fill_own, fill_rest):
        for c in range(2):
            for b in range(2):
                cm(c, b)
                a(f"ds_write_b128 v{vl0}, {V(fo(c, b), 4)} offset:{base + (c * 2 + b) * 4096}")
        a("s_waitcnt lgkmcnt(0)")
        a("s_barrier")
        for c in range(2):
            for kk in (1, 2, 3):
                for b in range(2):
                    f = FGR[(c * 3 + kk - 1) * 2 + b]
                    a(f"ds_read_b128 {R(f, 4)}, v{vl0 + kk} offset:{base + (c * 2 + b) * 4096}")
        for op in fill_own:
            sc.add(op)
        for c in range(2):
            for b in range(2):
                for var in range(2):
                    mm(c, b, var, fo(c, b), 0, data_is_a)
        for op in fill_rest:
            sc.add(op)
        for c in range(2):
            for kk in (1, 2, 3):
                for b in range(2):
                    for var in range(2):
                        mm(c, b, var, FGR[(c * 3 + kk - 1) * 2 + b], kk, data_is_a)
        sc.flush()

    def cm1(c, b):
        cmul_pack(a, fo(c, b), acc(c, b, 0), acc(c, b, 1), T1 + b * 8, T1 + b * 8 + 4, TMP + 8 * (2 * c + b))

    def cm2(c, b):
        cmul_pack(a, fo(c, b), acc(c, b, 0), acc(c, b, 1), WU[c] + b * 8, WU[c] + b * 8 + 4, TMP + 8 * (2 * c + b),
                  conj_w=True)

    exchange(0, False, cm1, unpack_w(1), [])
    mark(a, 4)
    exchange(16384, True, cm2, unpack(WU[0], raw, 0, sK1), unpack(WU[1], raw, 1, sK1))
    mark(a, 5)
    for c in range(2):
        for u in range(2):
            cmul_pack(a, fo(c, u), acc(c, u, 0), acc(c, u, 1), T2 + u * 8, T2 + u * 8 + 4, TMP + 8 * (2 * c + u))
    for t in range(2):
        for c in range(2):
            for u in range(2):
                for var in range(2):
                    sc.mfma(acc(c, t, var), m1(t, u, var), fo(c, u), None if u == 0 else acc(c, t, var))
        rdy = sc.n + 2
        for rh in range(2):
            for c in range(2):
                for rl in range(2):
                    k = 4 * t + 2 * rh + rl
                    w = WU[c] + 2 * k
                    sc.add(f"v_fma_f32 v{w}, v{acc(c, t, 0) + 2 * rh + rl}, s{sB}, v{w}", rdy)
                    sc.add(f"v_fma_f32 v{w + 1}, v{acc(c, t, 1) + 2 * rh + rl}, s{sK0 if c else sK3}, v{w + 1}", rdy)
            for c in range(2):
                for rl in range(2):
                    k = 4 * t + 2 * rh + rl
                    w = WU[c] + 2 * k
                    sc.add(f"v_cvt_pk_bf16_f32 v{pos(raw, k, c)}, v{w}, v{w + 1}", rdy)
            k = 2 * t + rh
            sc.add(f"buffer_store_dwordx4 {V(raw + 4 * k, 4)}, v{vx}, s[{SRD3}:{SRD3 + 3}], s{sF} offen offset:{k * 1024}{Cfg.st_flags}",
                   rdy)
    sc.flush()
    return 32768


def tables():
    L = []
    c = np.sqrt(2.0 / DM) * np.cos(2 * np.pi * np.arange(DM) / DM)
    c[160] = 0
    c[480] = 0
    bits = model.bf16_bits(c.astype(np.float32))
    for n in range(DM):
        L.append(f".set cq{n}, {bits[n]}")
    bb = int(model.bf16_bits(np.float32([np.sqrt(1 / DM)]))[0])
    k2 = model2.kmap()
    L.append(".altmacro")
    L.append(".macro e8 a,b,c,d,e,f,g,h\n.short cq\\a, cq\\b, cq\\c, cq\\d, cq\\e, cq\\f, cq\\g, cq\\h\n.endm")
    L.append(".macro e6 a,b,c,d,e,f\n.short cq\\a, cq\\b, cq\\c, cq\\d, cq\\e, cq\\f\n.endm")
    L.append(".p2align 12\nft2:")
    for kb in range(80):
        L.append(".set td, 0\n.rept 640")
        ent = [f"%(({k2[4 * kb + j // 2]}*td+{160 * (j & 1)})%640)" for j in range(8)]
        if kb == 0:
            L.append(f".short {bb}+((td&1)<<15), {bb}")
            L.append("e6 " + ", ".join(ent[2:]))
        else:
            L.append("e8 " + ", ".join(ent))
        L.append(".set td, td+1\n.endr")
    L.append(".noaltmacro")
    return "\n".join(L) + "\n"


def plan():
    ext = [{}, {"k": lambda a: role_col2(a, "XP0", "SS0", "XP1")},
           {"k": lambda a: role_col2(a, "XP2", "SS2", "XP3"), "t": lambda a: role_w2t(a, 2)}]
    fr = []
    for n, name in enumerate(("p0", "c1", "c2")):
        o, l = p0.PC.order[n], p0.PC.lay[n]
        fr.append((name + "_kernel", [(sum(p0.CNT[c] for c in o),
                                       lambda a, name=name, o=o, l=l, n=n: p0.role_front(a, name, o, l, ext[n]))]))
    m1 = ("m1_kernel", [(256, lambda a: role_mlp(a, False, "m1"))])
    m2 = ("m2_kernel", [(256, lambda a: role_mlp(a, True, "m2"))])
    return [fr[0], fr[1], m1, fr[2], m2]


if __name__ == "__main__":
    Cfg.dcbias = 1
    Cfg.rho = 1
    Cfg.st_flags = " sc1"
    for opt in sys.argv[2:]:
        if opt == "stamp":
            Cfg.stamp = True
        elif opt == "clk":
            Cfg.stamp = Cfg.clk = True
        else:
            k, v = opt.split("=")
            tgt = [c for c in (FC, MC, p0.PC, Cfg) if hasattr(c, k)][0]
            setattr(tgt, k, eval(v))
    txt = generate(plan(), tables)
    for name, o in zip(("p0", "c1", "c2"), p0.PC.order):
        txt = txt.replace(f"; roles {name}_kernel {sum(p0.CNT[c] for c in o)}",
                          f"; roles {name}_kernel " + " ".join(str(p0.CNT[c]) for c in o))
    open(sys.argv[1], "w").write(txt)
```

```python
import re

REG_RE = re.compile(r"(?<![\w.])(-?\|?)([vas])(?:(\d+)|\[(\d+):(\d+)\])(?![\w])")

TRANS = ("v_exp_f32", "v_log_f32", "v_rcp_f32", "v_rsq_f32", "v_sqrt_f32", "v_sin_f32", "v_cos_f32")


def regs_of(tok):
    tok = tok.strip()
    out = []
    if tok in ("vcc",):
        return [("s", 106), ("s", 107)]
    if tok == "vcc_lo":
        return [("s", 106)]
    if tok == "vcc_hi":
        return [("s", 107)]
    if tok == "m0":
        return [("s", 124)]
    if tok == "exec":
        return [("s", 126), ("s", 127)]
    for m in REG_RE.finditer(tok):
        k = m.group(2)
        if m.group(3) is not None:
            out.append((k, int(m.group(3))))
        else:
            out.extend((k, r) for r in range(int(m.group(4)), int(m.group(5)) + 1))
    return out


def R(base, n=1):
    k = "v" if base < 256 else "a"
    b = base if base < 256 else base - 256
    if n == 1:
        return f"{k}{b}"
    assert (base < 256) == (base + n - 1 < 256)
    return f"{k}[{b}:{b + n - 1}]"


def V(b, n=1):
    return f"v{b}" if n == 1 else f"v[{b}:{b + n - 1}]"


def A(b, n=1):
    return f"a{b}" if n == 1 else f"a[{b}:{b + n - 1}]"


def S(b, n=1):
    return f"s{b}" if n == 1 else f"s[{b}:{b + n - 1}]"


class Inst:
    __slots__ = ("text", "op", "dst", "src", "kind", "srcc", "tag", "passes", "wide_store", "dpp")

    def __init__(self, text, tag=None):
        self.text = text
        self.tag = tag
        body = text.split(";")[0].strip()
        parts = body.split(None, 1)
        op = parts[0]
        for suf in ("_e32", "_e64", "_dpp"):
            if op.endswith(suf):
                op = op[: -len(suf)]
        self.op = op
        rest = parts[1] if len(parts) > 1 else ""
        ops, depth, cur = [], 0, ""
        for ch in rest:
            if ch == "[":
                depth += 1
            elif ch == "]":
                depth -= 1
            if ch == "," and depth == 0:
                ops.append(cur.strip())
                cur = ""
            else:
                cur += ch
        ops.append(cur.strip())
        last_mods = ""
        if ops:
            sp = ops[-1].split(None, 1)
            if sp:
                ops[-1] = sp[0]
                last_mods = sp[1] if len(sp) > 1 else ""
        self.dst, self.src, self.srcc = [], [], []
        self.passes = 0
        self.wide_store = False
        self.dpp = ("row_" in last_mods) or ("quad_perm" in last_mods) or ("wave_" in last_mods)
        allr = [regs_of(o) for o in ops]
        flat = lambda xs: [r for x in xs for r in x]
        if op.startswith("v_mfma"):
            self.kind = "mfma"
            self.dst = allr[0]
            self.src = flat(allr[1:3])
            self.srcc = allr[3]
            self.passes = 8 if "32x32" in op else 4
        elif op.startswith("buffer_load") or op.startswith("global_load"):
            self.kind = "vmem"
            if " lds" in (" " + last_mods) or "_lds_" in op:
                self.src = flat(allr) + [("s", 124)]
                self.kind = "vmem_lds"
            else:
                self.dst = allr[0]
                self.src = flat(allr[1:])
                if "d16" in op:
                    self.src += allr[0]
        elif op.startswith("buffer_store") or op.startswith("global_store") or "atomic" in op and not op.startswith("s_"):
            self.kind = "vmem"
            self.src = flat(allr)
            if "atomic" in op and "sc0" in last_mods:
                self.dst = allr[0]
            self.wide_store = op.endswith("x4") or op.endswith("x3")
            if self.wide_store:
                self.wide_store = allr[0] if op.startswith("buffer") else allr[1]
        elif op in ("buffer_wbl2", "buffer_inv"):
            self.kind = "vmem"
        elif op.startswith("ds_read") or op.startswith("ds_bpermute") or op.startswith("ds_permute") or op.startswith("ds_swizzle"):
            self.kind = "ds"
            self.dst = allr[0]
            self.src = flat(allr[1:])
        elif op.startswith("ds_"):
            self.kind = "ds"
            self.src = flat(allr)
            if "addtid" in op:
                self.src.append(("s", 124))
        elif op.startswith("s_load") or op.startswith("s_buffer_load") or op in ("s_memtime", "s_memrealtime"):
            self.kind = "smem"
            self.dst = allr[0]
            self.src = flat(allr[1:])
        elif op in ("s_waitcnt", "s_nop", "s_barrier", "s_endpgm", "s_setprio", "s_sleep"):
            self.kind = "ctl"
        elif op.startswith("s_cbranch") or op in ("s_branch", "s_setpc_b64", "s_swappc_b64"):
            self.kind = "branch"
            self.src = flat(allr)
        elif op.startswith("s_cmp") or op.startswith("s_bitcmp"):
            self.kind = "salu"
            self.src = flat(allr)
        elif op.startswith("s_"):
            self.kind = "salu"
            self.dst = allr[0]
            self.src = flat(allr[1:])
            if "saveexec" in op:
                self.dst = self.dst + [("s", 126), ("s", 127)]
            if op in ("s_addk_i32", "s_mulk_i32"):
                self.src += allr[0]
        elif op.startswith("v_"):
            self.kind = "valu"
            self.dst = allr[0]
            self.src = flat(allr[1:])
            if (op.startswith("v_permlane") and "swap" in op) or op == "v_swap_b32":
                self.dst = allr[0] + allr[1]
                self.src = allr[0] + allr[1]
            elif op.startswith("v_fmac") or op.startswith("v_pk_fmac") or op.startswith("v_dot2c") or op == "v_writelane_b32":
                self.src += allr[0]
            elif op in ("v_add_co_u32", "v_addc_co_u32", "v_sub_co_u32", "v_subb_co_u32"):
                self.dst = allr[0] + allr[1]
                self.src = flat(allr[2:])
            elif op.startswith("v_cmpx"):
                self.dst = allr[0] + [("s", 126), ("s", 127)]
            if op == "v_cndmask_b32" and len(ops) == 3:
                self.src += [("s", 106), ("s", 107)]
            if self.dpp or "sdwa" in op or "op_sel" in last_mods and not op.startswith("v_pk"):
                self.src += allr[0]
        else:
            raise ValueError("unknown instruction: " + text)


class Asm:
    def __init__(self):
        self.items = []
        self.tail = []

    def __call__(self, text, tag=None):
        for line in text.strip().split("\n"):
            line = line.strip()
            if not line or line.startswith(";"):
                continue
            if line.endswith(":") or line.startswith("."):
                self.items.append(line)
            else:
                self.items.append(Inst(line, tag))
                if tag == "touch":
                    self.items[-1].dst = []

    def raw(self, text):
        self.items.append(text)

    def label(self, name, keep=False):
        self.items.append(("keep_label", name) if keep else name + ":")

    def wait_tag(self, tag, lgkm=False):
        self.items.append(("wait_tag", tag))

    def wait_regs(self, *toks):
        self.items.append(("wait_regs", {r for t in toks for r in regs_of(t)}))

    def finalize(self):
        out = []
        vm = []
        lg = []
        hist = []
        pos = [0]

        def emit_text(t, states=1):
            out.append("    " + t)
            pos[0] += states

        def do_wait(vn=None, ln=None):
            parts = []
            if vn is not None:
                vn = min(vn, 63)
                if vn < len(vm):
                    del vm[: len(vm) - vn]
                    parts.append(f"vmcnt({vn})")
            if ln is not None:
                ln = min(ln, 15)
                if ln < len(lg):
                    del lg[: len(lg) - ln]
                    parts.append(f"lgkmcnt({ln})")
            if parts:
                emit_text("s_waitcnt " + " ".join(parts))

        def need_states(ins):
            need = 0
            sset = set(ins.src)
            dset = set(ins.dst)
            cset = set(ins.srcc)
            rd = sset | cset
            for p, h in hist:
                dist = pos[0] - p - 1
                req = 0
                hd = set(h.dst)
                if h.kind == "valu":
                    hv = {r for r in hd if r[0] in "va"}
                    hs = {r for r in hd if r[0] == "s"}
                    if ins.kind == "mfma" and hv & rd:
                        req = max(req, 2)
                    if ins.kind == "mfma" and h.op.startswith("v_pk_"):
                        req = max(req, 1)
                    if h.op.startswith("v_dot") and hv & (rd | dset):
                        chain = ins.op == h.op and ins.dst == h.dst and not (hv & (sset - dset))
                        if not chain:
                            req = max(req, 3)
                    if ins.kind == "mfma" and ("s", 126) in hs:
                        req = max(req, 4)
                    if ins.kind == "valu":
                        if h.op in TRANS and hv & rd and ins.op not in TRANS:
                            req = max(req, 1)
                        if h.op in TRANS and hv & rd:
                            req = max(req, 1)
                        if (ins.op.startswith("v_permlane") or ins.dpp) and hv & rd:
                            req = max(req, 2)
                        if ins.op in ("v_readfirstlane_b32", "v_readlane_b32") and hv & rd:
                            req = max(req, 1)
                        if hs & rd:
                            req = max(req, 4 if ins.op in ("v_readlane_b32", "v_writelane_b32") else 2)
                        if ("s", 126) in hs and (ins.dpp or ins.op.startswith("v_permlane") or ins.op.startswith("v_read")):
                            req = max(req, 5)
                        if ("op_sel" in h.text or "sdwa" in h.text) and not h.op.startswith("v_pk") and hv & (rd | dset):
                            req = max(req, 1)
                    if ins.kind in ("vmem", "vmem_lds") and hs & rd:
                        req = max(req, 5)
                    if ins.kind in ("salu", "branch", "smem") and hs & rd:
                        req = max(req, 1)
                elif h.kind == "mfma":
                    big = {4: 8, 8: 12}[h.passes]
                    if ins.kind == "mfma":
                        if hd & sset:
                            req = max(req, big)
                        if hd & cset and not (h.dst == ins.srcc and h.passes == ins.passes):
                            req = max(req, {4: 6, 8: 10}[h.passes])
                        if hd & dset and not (h.dst == ins.srcc and h.passes == ins.passes):
                            req = max(req, {4: 6, 8: 10}[h.passes])
                    elif ins.kind in ("valu", "vmem", "vmem_lds", "ds"):
                        if hd & (rd | dset):
                            req = max(req, big)
                        if ins.kind == "valu" and set(h.srcc) & dset:
                            req = max(req, {4: 3, 8: 7}[h.passes])
                elif h.kind == "salu":
                    if ("s", 124) in hd and (ins.kind == "vmem_lds" or "addtid" in ins.op):
                        req = max(req, 1)
                elif h.kind == "vmem" and h.wide_store:
                    if set(h.wide_store) & dset:
                        req = max(req, 2)
                need = max(need, req - dist)
            return need

        for it in self.items:
            if isinstance(it, tuple) and it[0] == "keep_label":
                out.append(it[1] + ":")
                continue
            if isinstance(it, tuple) and it[0] == "wait_regs":
                vn = ln = None
                for k, e in enumerate(vm):
                    if e[0] & it[1]:
                        vn = len(vm) - 1 - k
                for k, e in enumerate(lg):
                    if e[0] & it[1]:
                        ln = 0 if any(x[1] for x in lg) else len(lg) - 1 - k
                do_wait(vn, ln)
                continue
            if isinstance(it, tuple):
                _, tag = it
                idx = [k for k, e in enumerate(vm) if e[1] == tag]
                if idx:
                    do_wait(vn=len(vm) - 1 - idx[-1])
                continue
            if isinstance(it, str):
                if it.endswith(":"):
                    hist.clear()
                    vm.clear()
                    lg.clear()
                out.append(it)
                continue
            ins = it
            if ins.op == "s_waitcnt":
                m = re.search(r"vmcnt\((\d+)\)", ins.text)
                if m and int(m.group(1)) < len(vm):
                    del vm[: len(vm) - int(m.group(1))]
                m = re.search(r"lgkmcnt\((\d+)\)", ins.text)
                if m and int(m.group(1)) < len(lg):
                    del lg[: len(lg) - int(m.group(1))]
                emit_text(ins.text)
                continue
            touched = set(ins.src) | set(ins.dst) | set(ins.srcc)
            vn = None
            d16_chain = ins.kind == "vmem" and "d16" in ins.op
            for k, e in enumerate(vm):
                t = touched - set(ins.dst) if d16_chain else touched
                if e[0] & t:
                    vn = len(vm) - 1 - k
            ln = None
            for k, e in enumerate(lg):
                if e[0] & touched:
                    ln = 0 if any(x[1] for x in lg) else len(lg) - 1 - k
            do_wait(vn, ln)
            if ins.kind in ("vmem", "vmem_lds") and len(vm) >= 63:
                do_wait(vn=62)
            if ins.kind == "branch" and ins.tag != "nopad":
                pad = 0
                for p, h in hist:
                    dist = pos[0] - p - 1
                    if h.kind == "mfma":
                        pad = max(pad, {4: 8, 8: 12}[h.passes] - dist - 1)
                    elif h.kind == "valu":
                        pad = max(pad, 5 - dist - 1)
                n = max(pad, need_states(ins))
            else:
                n = need_states(ins)
            while n > 0:
                k = min(n, 16)
                emit_text(f"s_nop {k - 1}", k)
                n -= k
            p = pos[0]
            if ins.op == "s_nop":
                emit_text(ins.text, int(ins.text.split()[1]) + 1)
            else:
                emit_text(ins.text)
            hist.append((p, ins))
            while hist and pos[0] - hist[0][0] > 24:
                hist.pop(0)
            if ins.kind in ("vmem", "vmem_lds"):
                vm.append((set(ins.dst), ins.tag))
            elif ins.kind == "ds":
                lg.append((set(ins.dst), False))
            elif ins.kind == "smem":
                lg.append((set(ins.dst), True))
                lg.append((set(), True))
            if ins.op == "s_endpgm":
                hist.clear()
                vm.clear()
                lg.clear()
        return "\n".join(out) + "\n"
```

```python
import sys
import struct
import numpy as np

sys.path.insert(0, "gen")
from asmlib import Asm, Inst, R, V, A, S
import model

SEQ, DM, FF = 2048, 640, 1728

XP_STR = SEQ * 8
XP_SIZE = 160 * XP_STR
H_STR = SEQ * 16
H_SIZE = 216 * H_STR
W1F_STR = FF * 16
W1F_SIZE = 80 * W1F_STR
KB_STR = DM * 16
WA2_SIZE = 224 * KB_STR
W2T_SIZE = 216 * KB_STR
FT_SIZE = 80 * KB_STR
WC_SIZE = 320 * 8192
SS_SIZE = 8192
FLAG_SIZE = 8192

WS = {}
_off = 0
for _name, _size in (("XP0", XP_SIZE), ("XP1", XP_SIZE), ("XP2", XP_SIZE), ("XP3", XP_SIZE), ("H", H_SIZE),
                     ("W1F", W1F_SIZE), ("WA2", WA2_SIZE), ("W2T", W2T_SIZE), ("WC", WC_SIZE),
                     ("SS0", SS_SIZE), ("SS2", SS_SIZE), ("FLAG", FLAG_SIZE), ("X3", XP_SIZE), ("H2", H_SIZE), ("STAMP", 1 << 21)):
    WS[_name] = _off
    _off += (_size + 4095) // 4096 * 4096
WS_END = _off

P_X, P_WR, P_WI, P_W1, P_B1, P_W2, P_B2, P_OUT, P_WS = 8, 10, 12, 16, 18, 20, 22, 24, 28
SRD0, SRD1, SRD2, SRD3, SRD4, SRD5 = 32, 36, 40, 44, 48, 52
sW, sT, sA, sB, sC, sD, sE, sF = 56, 57, 58, 59, 60, 61, 62, 63
sOP, sOQ = 64, 65
sK0, sK1, sK2, sK3 = 66, 67, 68, 69
sM0, sM1 = 70, 71
sST = 72
vI, vG, vL = 1, 2, 3


def f32bits(x):
    return struct.unpack("<I", struct.pack("<f", x))[0]


def srd(a, dst, base, off, size):
    if off:
        a(f"s_add_u32 s{dst}, s{base}, {off}")
        a(f"s_addc_u32 s{dst + 1}, s{base + 1}, 0")
        a(f"s_and_b32 s{dst + 1}, s{dst + 1}, 0xffff")
    else:
        a(f"s_mov_b32 s{dst}, s{base}")
        a(f"s_and_b32 s{dst + 1}, s{base + 1}, 0xffff")
    a(f"s_mov_b32 s{dst + 2}, {size}")
    a(f"s_mov_b32 s{dst + 3}, 0x20000")


def srd_ws(a, dst, name, size):
    srd(a, dst, P_WS, WS[name], size)


def srd_table(a, dst, sym):
    a(f"s_getpc_b64 s[{dst}:{dst + 1}]")
    a(f"s_add_u32 s{dst}, s{dst}, {sym}@rel32@lo+4")
    a(f"s_addc_u32 s{dst + 1}, s{dst + 1}, {sym}@rel32@hi+12")
    a(f"s_and_b32 s{dst + 1}, s{dst + 1}, 0xffff")
    a(f"s_mov_b32 s{dst + 2}, {FT_SIZE}")
    a(f"s_mov_b32 s{dst + 3}, 0x20000")


def srd_code(a, dst, kern):
    a(f"s_getpc_b64 s[{dst}:{dst + 1}]")
    a(f"s_add_u32 s{dst}, s{dst}, {kern}_code@rel32@lo+4")
    a(f"s_addc_u32 s{dst + 1}, s{dst + 1}, {kern}_code@rel32@hi+12")
    a(f"s_and_b32 s{dst + 1}, s{dst + 1}, 0xffff")
    a(f"s_mov_b32 s{dst + 2}, {kern}_cend-{kern}_code")
    a(f"s_mov_b32 s{dst + 3}, 0x20000")


class Cfg:
    stamp = False
    clk = False
    nodot = 0
    g2depth = 7
    g2lay = 0
    plan = 0
    pdepth = 4
    st_flags = ""
    dcbias = 0
    rho = 0


def mark(a, n):
    if Cfg.stamp:
        op = "s_memtime" if Cfg.clk and n < 11 else "s_memrealtime"
        a(f"{op} s[{sST + 2 * n}:{sST + 2 * n + 1}]")


def mfma(a, d, x, y, c):
    a(f"v_mfma_f32_16x16x32_bf16 {R(d, 4)}, {R(x, 4)}, {R(y, 4)}, {'0' if c is None else R(c, 4)}")


def gemm_ks(a, nsteps, depth, acc, ring, vred, p_is_a, issue_p, issue_q, q_regs=16, prep_q=None,
            after_prologue=None, step_hook=None):
    stage = 20 + q_regs

    def accr(p, q):
        return acc + (q * 5 + p) * 4

    def preg(t, p):
        return ring + (t % depth) * stage + p * 4

    def qbase(t):
        return ring + (t % depth) * stage + 20

    def load_step(t):
        ops = []
        for q in range(4):
            ops.append(("q", q))
        for p in range(5):
            ops.append(("p", p))
        order = [ops[0], ops[4], ops[5], ops[1], ops[6], ops[7], ops[8], ops[2], ops[3]]
        for kind, j in order:
            if kind == "p":
                issue_p(t, j, preg(t, j))
            else:
                issue_q(t, j, qbase(t))

    for t in range(min(depth, nsteps)):
        load_step(t)
    if after_prologue:
        after_prologue()

    vw = [vred, vred + 1, vred + 2]
    vr = vred + 3
    a(f"v_lshlrev_b32 v{vr}, 4, v{vL}")
    for ql in (1, 2, 3):
        a(f"s_xor_b32 s{sA}, s{sW}, {ql}")
        a(f"s_mul_i32 s{sA}, s{sA}, 15360")
        a(f"s_add_u32 s{sA}, s{sA}, {(ql - 1) * 5120}")
        a(f"v_add_u32 v{vw[ql - 1]}, s{sA}, v{vr}")
    a(f"s_mul_i32 s{sA}, s{sW}, 15360")
    a(f"v_add_u32 v{vr}, s{sA}, v{vr}")

    def wr(q, p):
        a(f"ds_write_b128 v{vw[q - 1]}, {R(accr(p, q), 4)} offset:{p * 1024}")

    mark(a, 1)
    for t in range(nsteps):
        last = t == nsteps - 1
        if t == 1:
            mark(a, 2)
        if t == depth:
            mark(a, 3)
        if step_hook:
            step_hook(t, qbase(t))
        if prep_q:
            qf = prep_q(t, qbase(t))
        else:
            qf = [qbase(t) + q * 4 for q in range(4)]
        qorder = (1, 2, 3, 0) if last else (0, 1, 2, 3)
        nxt = t + depth
        for n, q in enumerate(qorder):
            for p in range(5):
                c = None if t == 0 else accr(p, q)
                if p_is_a:
                    mfma(a, accr(p, q), preg(t, p), qf[q], c)
                else:
                    mfma(a, accr(p, q), qf[q], preg(t, p), c)
                if last and n >= 2:
                    wr(qorder[n - 2], p)
                if nxt < nsteps:
                    if n == 3:
                        issue_p(nxt, p, preg(nxt, p))
                    if p == 4 and (not prep_q):
                        issue_q(nxt, q, qbase(nxt))
                    if prep_q and n == 0 and p < 4:
                        issue_q(nxt, p, qbase(nxt))
        if last:
            for p in range(5):
                wr(3, p)
    mark(a, 4)
    a("s_waitcnt lgkmcnt(0)")
    a("s_barrier")
    mark(a, 5)
    for p in range(5):
        for src in range(3):
            a(f"ds_read_b128 {R(accr(p, src + 1), 4)}, v{vr} offset:{src * 5120 + p * 1024}")
    for p in range(5):
        for h in (0, 2):
            d = accr(p, 0) + h
            a(f"v_pk_add_f32 {V(accr(p, 1) + h, 2)}, {V(accr(p, 1) + h, 2)}, {V(accr(p, 2) + h, 2)}")
            a(f"v_pk_add_f32 {V(d, 2)}, {V(d, 2)}, {V(accr(p, 3) + h, 2)}")
        for h in (0, 2):
            d = accr(p, 0) + h
            a(f"v_pk_add_f32 {V(d, 2)}, {V(d, 2)}, {V(accr(p, 1) + h, 2)}")
    return [accr(p, 0) for p in range(5)]


KS_LDS = 61440


def p_loader(a, vp, srd_p, step_bytes):
    state = {"t": None}

    def issue(t, p, dst):
        if state["t"] != t:
            a(f"s_mov_b32 s{sOP}, {t * step_bytes}")
            state["t"] = t
        a(f"buffer_load_dwordx4 {R(dst, 4)}, v{vp}, s[{srd_p}:{srd_p + 3}], s{sOP} offen offset:{p * 256}")
    return issue


def p_addr(a, vp, s_c, wave_steps):
    a(f"v_mul_u32_u24 v{vp}, {DM}, v{vG}")
    a(f"v_add_lshl_u32 v{vp}, v{vp}, v{vI}, 4")
    a(f"s_mul_i32 s{sA}, s{s_c}, 1280")
    a(f"s_mul_i32 s{sB}, s{sW}, {wave_steps * 4 * KB_STR}")
    a(f"s_add_u32 s{sA}, s{sA}, s{sB}")
    a(f"v_add_u32 v{vp}, s{sA}, v{vp}")


def rowmajor_q(a, vq, s_row0, srd_q):
    a(f"v_mul_u32_u24 v{vq}, 1280, v{vI}")
    a(f"v_lshl_add_u32 v{vq}, v{vG}, 4, v{vq}")
    a(f"s_mul_i32 s{sA}, s{s_row0}, 1280")
    a(f"s_mul_i32 s{sB}, s{sW}, 320")
    a(f"s_add_u32 s{sA}, s{sA}, s{sB}")
    for ql in (3, 2, 1, 0):
        a(f"s_xor_b32 s{sB}, s{sW}, {ql}")
        a(f"s_mul_i32 s{sB}, s{sB}, {16 * 1280}")
        a(f"s_add_u32 s{sB}, s{sB}, s{sA}")
        a(f"v_add_u32 v{vq + ql}, s{sB}, v{vq}")

    def issue(t, q, qb):
        a(f"buffer_load_dwordx4 {R(qb + q * 4, 4)}, v{vq + q}, s[{srd_q}:{srd_q + 3}], 0 offen offset:{t * 64}")
    return issue


def role_xhat0(a, depth):
    vp, vq, vred, vo, acc = 4, 5, 9, 13, 16
    ring = 256
    a(f"s_and_b32 s{sC}, s{sT}, 7")
    a(f"s_lshl_b32 s{sC}, s{sC}, 2")
    a(f"s_bfe_u32 s{sD}, s{sT}, 0x20003")
    a(f"s_add_u32 s{sC}, s{sC}, s{sD}")
    a(f"s_lshl_b32 s{sC}, s{sC}, 6")
    a(f"s_lshr_b32 s{sD}, s{sT}, 5")
    srd_table(a, SRD0, "ft1")
    p_addr(a, vp, sD, 5)
    iq = rowmajor_q(a, vq, sC, SRD1)
    a("s_waitcnt lgkmcnt(0)")
    srd(a, SRD1, P_X, 0, SEQ * DM * 2)
    ip = p_loader(a, vp, SRD0, 4 * KB_STR)

    def post():
        srd_ws(a, SRD2, "XP0", XP_SIZE)
        a(f"s_mul_i32 s{sA}, s{sD}, {20 * XP_STR}")
        a(f"s_lshl_b32 s{sB}, s{sW}, 4")
        a(f"s_add_u32 s{sB}, s{sB}, s{sC}")
        a(f"s_lshl_b32 s{sB}, s{sB}, 3")
        a(f"s_add_u32 s{sA}, s{sA}, s{sB}")
        a(f"v_lshlrev_b32 v{vo}, 14, v{vG}")
        a(f"v_lshl_add_u32 v{vo}, v{vI}, 3, v{vo}")
        a(f"v_add_u32 v{vo}, s{sA}, v{vo}")

    res = gemm_ks(a, 5, depth, acc, ring, vred, True, ip, iq, after_prologue=post)
    for p, r in enumerate(res):
        a(f"v_cvt_pk_bf16_f32 v{r}, v{r}, v{r + 1}")
        a(f"v_cvt_pk_bf16_f32 v{r + 1}, v{r + 2}, v{r + 3}")
        a(f"s_mov_b32 s{sOP}, {p * 4 * XP_STR}")
        a(f"buffer_store_dwordx2 {V(r, 2)}, v{vo}, s[{SRD2}:{SRD2 + 3}], s{sOP} offen{Cfg.st_flags}")
    return KS_LDS


def role_w2f(a, depth, ring=256):
    vp, vq, vred, vo, acc = 4, 5, 9, 13, 16
    a(f"s_and_b32 s{sD}, s{sT}, 7")
    a(f"s_lshr_b32 s{sE}, s{sT}, 3")
    a(f"s_lshl_b32 s{sC}, s{sE}, 6")
    a(f"s_cmp_eq_u32 s{sE}, 27")
    a(f"s_cselect_b32 s{sC}, 0, s{sC}")
    srd_table(a, SRD0, "ft1")
    p_addr(a, vp, sD, 5)
    iq = rowmajor_q(a, vq, sC, SRD1)
    a("s_waitcnt lgkmcnt(0)")
    a(f"s_cmp_eq_u32 s{sE}, 27")
    a(f"s_cselect_b32 s{SRD1}, s{P_B2}, s{P_W2}")
    a(f"s_cselect_b32 s{SRD1 + 1}, s{P_B2 + 1}, s{P_W2 + 1}")
    a(f"s_mov_b32 s{SRD1 + 2}, {FF * DM * 2}")
    a(f"s_cselect_b32 s{SRD1 + 2}, {DM * 2}, s{SRD1 + 2}")
    a(f"s_and_b32 s{SRD1 + 1}, s{SRD1 + 1}, 0xffff")
    a(f"s_mov_b32 s{SRD1 + 3}, 0x20000")
    ip = p_loader(a, vp, SRD0, 4 * KB_STR)

    def post():
        srd_ws(a, SRD2, "WA2", WA2_SIZE)
        a(f"s_lshl_b32 s{sA}, s{sE}, 2")
        a(f"s_add_u32 s{sA}, s{sA}, s{sW}")
        a(f"s_mul_i32 s{sA}, s{sA}, {2 * KB_STR}")
        a(f"s_mul_i32 s{sB}, s{sD}, 1280")
        a(f"s_add_u32 s{sA}, s{sA}, s{sB}")
        a(f"v_lshrrev_b32 v{vo}, 1, v{vG}")
        a(f"v_mul_u32_u24 v{vo}, {KB_STR}, v{vo}")
        a(f"v_lshl_add_u32 v{vo}, v{vI}, 4, v{vo}")
        a(f"v_and_b32 v{vo + 1}, 1, v{vG}")
        a(f"v_lshl_add_u32 v{vo}, v{vo + 1}, 3, v{vo}")
        a(f"v_add_u32 v{vo}, s{sA}, v{vo}")

    res = gemm_ks(a, 5, depth, acc, ring, vred, False, ip, iq, after_prologue=post)
    for p, r in enumerate(res):
        a(f"v_cvt_pk_bf16_f32 v{r}, v{r}, v{r + 1}")
        a(f"v_cvt_pk_bf16_f32 v{r + 1}, v{r + 2}, v{r + 3}")
        a(f"buffer_store_dwordx2 {V(r, 2)}, v{vo}, s[{SRD2}:{SRD2 + 3}], 0 offen offset:{p * 256}{Cfg.st_flags}")
    return KS_LDS


def role_w1f(a, depth):
    vp, vq, vred, vo, acc, qt = 4, 5, 9, 13, 16, 96
    ring = 112
    a(f"s_and_b32 s{sD}, s{sT}, 7")
    a(f"s_lshr_b32 s{sE}, s{sT}, 3")
    srd_table(a, SRD0, "ft1")
    p_addr(a, vp, sD, 5)
    a(f"v_mul_u32_u24 v{vq}, {8 * FF * 2}, v{vG}")
    a(f"v_lshl_add_u32 v{vq}, v{vI}, 3, v{vq}")
    a(f"s_mul_i32 s{sA}, s{sW}, {160 * FF * 2}")
    a(f"s_lshl_b32 s{sB}, s{sE}, 7")
    a(f"s_add_u32 s{sA}, s{sA}, s{sB}")
    a(f"v_add_u32 v{vq}, s{sA}, v{vq}")
    a(f"s_mov_b32 s{sA}, 0x05040100")
    a(f"s_bitcmp1_b32 s{sW}, 0")
    a(f"s_cselect_b32 s{sK0}, 0x07060302, s{sA}")
    a(f"s_cselect_b32 s{sK1}, s{sA}, 0x07060302")
    a(f"s_bitcmp1_b32 s{sW}, 1")
    a(f"s_cselect_b64 s[{sM0}:{sM1}], -1, 0")
    a("s_waitcnt lgkmcnt(0)")
    srd(a, SRD1, P_W1, 0, DM * FF * 2)
    ip = p_loader(a, vp, SRD0, 4 * KB_STR)

    def iq(t, q, qb):
        for j in (2 * q, 2 * q + 1):
            off = (t * 32 + j) * FF * 2
            if j & 1:
                a(f"buffer_load_dwordx2 {R(qb + j * 2, 2)}, v{vq}, s[{SRD1}:{SRD1 + 3}], s{sOQ} offen offset:{FF * 2}")
            else:
                a(f"s_mov_b32 s{sOQ}, {off}")
                a(f"buffer_load_dwordx2 {R(qb + j * 2, 2)}, v{vq}, s[{SRD1}:{SRD1 + 3}], s{sOQ} offen")

    def prep(t, qb):
        a(f"s_mov_b64 exec, s[{sM0}:{sM1}]")
        for j in range(8):
            a(f"v_swap_b32 v{qb + 2 * j}, v{qb + 2 * j + 1}")
        a("s_mov_b64 exec, -1")
        for ql in range(4):
            for m in range(4):
                sel = sK1 if ql & 1 else sK0
                a(f"v_perm_b32 v{qt + ql * 4 + m}, v{qb + (2 * m + 1) * 2 + (ql >> 1)}, v{qb + (2 * m) * 2 + (ql >> 1)}, s{sel}")
        return [qt + ql * 4 for ql in range(4)]

    def post():
        srd_ws(a, SRD2, "W1F", W1F_SIZE)
        a(f"s_mul_i32 s{sA}, s{sD}, {10 * W1F_STR}")
        a(f"s_lshl_b32 s{sB}, s{sE}, 6")
        a(f"s_add_u32 s{sB}, s{sB}, s{sW}")
        a(f"s_lshl_b32 s{sB}, s{sB}, 4")
        a(f"s_add_u32 s{sA}, s{sA}, s{sB}")
        a(f"v_lshrrev_b32 v{vo}, 1, v{vG}")
        a(f"v_mul_u32_u24 v{vo}, {W1F_STR}, v{vo}")
        a(f"v_lshl_add_u32 v{vo}, v{vI}, 6, v{vo}")
        a(f"v_and_b32 v{vo + 1}, 1, v{vG}")
        a(f"v_lshl_add_u32 v{vo}, v{vo + 1}, 3, v{vo}")
        a(f"v_add_u32 v{vo}, s{sA}, v{vo}")
        if Cfg.dcbias:
            srd(a, SRD3, P_B1, 0, FF * 2)
            a(f"s_lshr_b32 s{sB}, s{sB}, 3")
            a(f"v_lshl_add_u32 v6, v{vI}, 3, s{sB}")
            a(f"buffer_load_ushort v7, v6, s[{SRD3}:{SRD3 + 3}], 0 offen")
            a(f"s_cmp_eq_u32 s{sD}, 0")
            a(f"s_cselect_b32 s{sK2}, 0xffff, 0")
            a(f"s_mov_b32 s{sK3}, 0")

    res = gemm_ks(a, 5, depth, acc, ring, vred, True, ip, iq, prep_q=prep, after_prologue=post)
    if Cfg.dcbias:
        a(f"v_lshlrev_b32 v7, 16, v7")
        a(f"v_cndmask_b32_e64 v{res[0] + 1}, v{res[0] + 1}, v7, s[{sK2}:{sK3}]")
    for p, r in enumerate(res):
        a(f"v_cvt_pk_bf16_f32 v{r}, v{r}, v{r + 1}")
        a(f"v_cvt_pk_bf16_f32 v{r + 1}, v{r + 2}, v{r + 3}")
        a(f"s_mov_b32 s{sOP}, {p * 2 * W1F_STR}")
        a(f"buffer_store_dwordx2 {V(r, 2)}, v{vo}, s[{SRD2}:{SRD2 + 3}], s{sOP} offen{Cfg.st_flags}")
    return KS_LDS


def role_wc(a):
    va, vo, vo3, vt, ld, st = 4, 5, 6, 7, 8, 40
    a(f"s_mul_hi_u32 s{sC}, s{sT}, {(1 << 32) // 5 + 1}")
    a(f"s_mul_i32 s{sD}, s{sC}, 5")
    a(f"s_sub_u32 s{sD}, s{sT}, s{sD}")
    a(f"s_lshl_b32 s{sD}, s{sD}, 2")
    a(f"s_add_u32 s{sD}, s{sD}, s{sW}")
    a(f"s_lshl_b32 s{sD}, s{sD}, 2")
    a(f"v_add_u32 v{vt}, s{sD}, v{vG}")
    a(f"v_mul_u32_u24 v{va}, 642, v{vI}")
    a(f"v_lshl_add_u32 v{va}, v{vt}, 3, v{va}")
    a(f"s_mul_i32 s{sA}, s{sC}, {128 * 642}")
    a(f"s_add_u32 s{sA}, s{sA}, 2")
    a(f"v_add_u32 v{va}, s{sA}, v{va}")
    a(f"s_lshr_b32 s{sA}, s{sC}, 2")
    a(f"s_lshl_b32 s{sA}, s{sA}, 11")
    a(f"s_and_b32 s{sB}, s{sC}, 3")
    a(f"s_lshl_b32 s{sB}, s{sB}, 8")
    a(f"s_add_u32 s{sA}, s{sA}, s{sB}")
    a(f"v_lshlrev_b32 v{vo3}, 4, v{vI}")
    a(f"v_add_u32 v{vo3}, s{sA}, v{vo3}")
    a(f"v_lshl_add_u32 v{vo}, v{vt}, 15, v{vo3}")
    a(f"v_cmp_eq_u32 vcc, 79, v{vt}")
    a(f"v_add_u32 v{vt}, {4 * 8192}, v{vo}")
    a(f"v_cndmask_b32 v{vo3}, v{vt}, v{vo3}, vcc")
    a(f"s_mov_b32 s{sK0}, 0x05040100")
    a(f"s_mov_b32 s{sK1}, 0x07060302")
    a("s_waitcnt lgkmcnt(0)")
    srd(a, SRD0, P_WR, 0, SEQ * 642)
    srd(a, SRD1, P_WI, 0, SEQ * 642)
    srd_ws(a, SRD2, "WC", WC_SIZE)
    for u in range(2):
        for r in range(4):
            a(f"s_mov_b32 s{sOP}, {(32 * r + 16 * u) * 642}")
            b = ld + (u * 4 + r) * 4
            a(f"buffer_load_dwordx2 {V(b, 2)}, v{va}, s[{SRD0}:{SRD0 + 3}], s{sOP} offen")
            a(f"buffer_load_dwordx2 {V(b + 2, 2)}, v{va}, s[{SRD1}:{SRD1 + 3}], s{sOP} offen")
    for u in range(2):
        for e in range(4):
            o = st + (u * 4 + e) * 4
            for r in range(4):
                b = ld + (u * 4 + r) * 4
                a(f"v_perm_b32 v{o + r}, v{b + 2 + (e >> 1)}, v{b + (e >> 1)}, s{sK1 if e & 1 else sK0}")
            if e < 3:
                a(f"s_mov_b32 s{sOP}, {(e + 1) * 8192}")
                a(f"buffer_store_dwordx4 {V(o, 4)}, v{vo}, s[{SRD2}:{SRD2 + 3}], s{sOP} offen offset:{u * 1024}{Cfg.st_flags}")
            else:
                a(f"buffer_store_dwordx4 {V(o, 4)}, v{vo3}, s[{SRD2}:{SRD2 + 3}], 0 offen offset:{u * 1024}{Cfg.st_flags}")
    return 0


def dpp_rowsum(a, v, t):
    for k in (8, 4, 2, 1):
        a(f"v_add_f32_dpp v{v}, v{v}, v{v} row_ror:{k} row_mask:0xf bank_mask:0xf")


def role_stats(a):
    va, vo, vt, vz, vone, sm, sq, t0, ld = 4, 5, 6, 7, 8, 10, 12, 16, 20
    a(f"s_lshl_b32 s{sA}, s{sT}, 5")
    a(f"s_lshl_b32 s{sB}, s{sW}, 3")
    a(f"s_add_u32 s{sA}, s{sA}, s{sB}")
    a(f"v_add_u32 v{vt}, s{sA}, v{vG}")
    a(f"v_mul_u32_u24 v{va}, 1280, v{vt}")
    a(f"v_lshl_add_u32 v{va}, v{vI}, 4, v{va}")
    a("s_waitcnt lgkmcnt(0)")
    srd(a, SRD0, P_X, 0, SEQ * DM * 2)
    a(f"s_mov_b32 s{sOP}, {4 * 1280}")
    for h in range(2):
        for j in range(5):
            so = f"s{sOP}" if h else "0"
            a(f"buffer_load_dwordx4 {V(ld + (h * 5 + j) * 4, 4)}, v{va}, s[{SRD0}:{SRD0 + 3}], {so} offen offset:{j * 256}")
    srd_ws(a, SRD1, "SS0", 2 * SS_SIZE)
    a(f"v_bfe_u32 v{vo}, v{vt}, 4, 2")
    a(f"v_lshlrev_b32 v{vo}, 3, v{vo}")
    a(f"v_lshrrev_b32 v{vz}, 8, v{vt}")
    a(f"v_add_u32 v{vo}, v{vo}, v{vz}")
    a(f"v_and_b32 v{vz}, 15, v{vt}")
    a(f"v_lshl_add_u32 v{vo}, v{vo}, 4, v{vz}")
    a(f"v_bfe_u32 v{vz}, v{vt}, 6, 2")
    a(f"v_lshl_add_u32 v{vo}, v{vo}, 2, v{vz}")
    a(f"v_lshlrev_b32 v{vo}, 2, v{vo}")
    a(f"v_mov_b32 v{vz}, 0")
    a(f"v_mov_b32 v{vone}, 0x3f803f80")
    a(f"s_mov_b32 s{sOQ}, {WS['SS2'] - WS['SS0']}")
    a(f"s_mov_b32 s{sK0}, 0xffff0000")
    for h in range(2):
        a(f"buffer_store_dword v{vz}, v{vo}, s[{SRD1}:{SRD1 + 3}], s{sOQ} offen offset:{h * 64}")
    if Cfg.dcbias:
        srd_ws(a, SRD2, "FLAG", FLAG_SIZE)
        a(f"s_lshl_b32 s{sA}, s{sT}, 10")
        a(f"v_lshl_add_u32 v9, v0, 2, s{sA}")
        a(f"buffer_store_dword v{vz}, v9, s[{SRD2}:{SRD2 + 3}], 0 offen")
    for h in range(2):
        a(f"v_mov_b32 v{sm + h}, 0")
        a(f"v_mov_b32 v{sq + 2 * h}, 0")
        a(f"v_mov_b32 v{sq + 2 * h + 1}, 0")
    for h in range(2):
        for k in range(20):
            a(f"v_dot2c_f32_bf16 v{sm + h}, v{ld + h * 20 + k}, v{vone}")
    for h in range(2):
        dpp_rowsum(a, sm + h, t0)
        a(f"v_mul_f32 v{sm + h}, {f32bits(-1.0 / DM):#x}, v{sm + h}")
    for k in range(20):
        for h in range(2):
            x = ld + h * 20 + k
            t = t0 + 2 * h
            a(f"v_lshlrev_b32 v{t}, 16, v{x}")
            a(f"v_and_b32 v{t + 1}, s{sK0}, v{x}")
            a(f"v_add_f32 v{t}, v{t}, v{sm + h}")
            a(f"v_add_f32 v{t + 1}, v{t + 1}, v{sm + h}")
            a(f"v_fmac_f32 v{sq + 2 * h}, v{t}, v{t}")
            a(f"v_fmac_f32 v{sq + 2 * h + 1}, v{t + 1}, v{t + 1}")
    for h in range(2):
        a(f"v_add_f32 v{sq + 2 * h}, v{sq + 2 * h}, v{sq + 2 * h + 1}")
        dpp_rowsum(a, sq + 2 * h, t0)
        a(f"buffer_store_dword v{sq + 2 * h}, v{vo}, s[{SRD1}:{SRD1 + 3}], 0 offen offset:{h * 64}")
    return 0


def role_w2t(a, rep=1):
    va, vo, vt, ld, st = 4, 6, 8, 12, 44
    a(f"s_mul_i32 s{sA}, s{sT}, {256 * rep}")
    for n in range(rep):
        a(f"v_add_u32 v{vo + n}, s{sA}, v0")
        if n:
            a(f"v_add_u32 v{vo + n}, {256 * n}, v{vo + n}")
        a(f"v_lshrrev_b32 v{vt}, 5, v{vo + n}")
        a(f"v_mul_u32_u24 v{vt}, 52429, v{vt}")
        a(f"v_lshrrev_b32 v{vt}, 18, v{vt}")
        a(f"v_mul_u32_u24 v{va + n}, {10240 - 1280}, v{vt}")
        a(f"v_lshl_add_u32 v{va + n}, v{vo + n}, 3, v{va + n}")
        a(f"v_lshlrev_b32 v{vo + n}, 6, v{vo + n}")
    a(f"s_mov_b32 s{sK0}, 0x05040100")
    a(f"s_mov_b32 s{sK1}, 0x07060302")
    a(f"s_mov_b32 s{sOP}, {4 * 1280}")
    a("s_waitcnt lgkmcnt(0)")
    srd(a, SRD0, P_W2, 0, FF * DM * 2)
    srd_ws(a, SRD1, "W2T", W2T_SIZE)
    for n in range(rep):
        for j in range(8):
            so = f"s{sOP}" if j >= 4 else "0"
            a(f"buffer_load_dwordx2 {V(ld + 16 * n + 2 * j, 2)}, v{va + n}, s[{SRD0}:{SRD0 + 3}], {so} offen offset:{(j & 3) * 1280}")
    for n in range(rep):
        l, o = ld + 16 * n, st + 16 * n
        for e in range(4):
            for m in range(4):
                a(f"v_perm_b32 v{o + e * 4 + m}, v{l + (2 * m + 1) * 2 + (e >> 1)}, v{l + 2 * m * 2 + (e >> 1)}, s{sK1 if e & 1 else sK0}")
            a(f"buffer_store_dwordx4 {V(o + e * 4, 4)}, v{vo + n}, s[{SRD1}:{SRD1 + 3}], 0 offen offset:{e * 16}")
    return 0


def cmul_pack(a, dst, re, im, c, s, tmp, conj_w=False):
    for h in (0, 2):
        t0, t1 = tmp + 2 * h, tmp + 2 * h + 2
        a(f"v_pk_mul_f32 {V(t0, 2)}, {V(re + h, 2)}, {V(c + h, 2)}")
        a(f"v_pk_mul_f32 {V(t1, 2)}, {V(im + h, 2)}, {V(c + h, 2)}")
    for h in (0, 2):
        t0, t1 = tmp + 2 * h, tmp + 2 * h + 2
        if conj_w:
            a(f"v_pk_fma_f32 {V(t0, 2)}, {V(im + h, 2)}, {V(s + h, 2)}, {V(t0, 2)} neg_lo:[1,0,0] neg_hi:[1,0,0]")
            a(f"v_pk_fma_f32 {V(t1, 2)}, {V(re + h, 2)}, {V(s + h, 2)}, {V(t1, 2)}")
        else:
            a(f"v_pk_fma_f32 {V(t0, 2)}, {V(im + h, 2)}, {V(s + h, 2)}, {V(t0, 2)}")
            a(f"v_pk_fma_f32 {V(t1, 2)}, {V(re + h, 2)}, {V(s + h, 2)}, {V(t1, 2)} neg_lo:[1,0,0] neg_hi:[1,0,0]")
    for h in (0, 2):
        t0, t1 = tmp + 2 * h, tmp + 2 * h + 2
        n = "-" if conj_w else ""
        a(f"v_cvt_pk_bf16_f32 v{dst + h}, v{t0}, {n}v{t1}")
        a(f"v_cvt_pk_bf16_f32 v{dst + h + 1}, v{t0 + 1}, {n}v{t1 + 1}")


def role_col(a, src, ssn, dst):
    vx, vw, vl0, vmI = 4, 5, 6, 10
    fi, fg, fa, fb = 11, 12, 13, 14
    raw, ss, wraw = 16, 24, 32
    M1, M2 = 40, 72
    T1, T2 = 104, 120
    WU = 136
    ACC = 152
    FO, FG = 168, 176
    TMP = 200

    a(f"s_and_b32 s{sA}, s{sT}, 7")
    a(f"s_lshr_b32 s{sB}, s{sT}, 4")
    a(f"s_lshl_b32 s{sB}, s{sB}, 3")
    a(f"s_add_u32 s{sC}, s{sA}, s{sB}")
    a(f"s_bfe_u32 s{sD}, s{sT}, 0x10003")
    a(f"s_lshl1_add_u32 s{sE}, s{sC}, s{sD}")
    a(f"s_lshl_b32 s{sA}, s{sC}, 14")
    a(f"s_lshl2_add_u32 s{sA}, s{sD}, s{sA}")
    a(f"s_lshl_b32 s{sB}, s{sW}, 7")
    a(f"s_add_u32 s{sA}, s{sA}, s{sB}")
    a(f"v_lshlrev_b32 v{vx}, 11, v{vG}")
    a(f"v_lshl_add_u32 v{vx}, v{vI}, 3, v{vx}")
    a(f"v_add_u32 v{vx}, s{sA}, v{vx}")
    a(f"s_lshl_b32 s{sB}, s{sW}, 11")
    a(f"v_lshlrev_b32 v{vw}, 4, v{vL}")
    a(f"v_add_u32 v{vw}, s{sB}, v{vw}")
    a(f"s_lshl_b32 s{sF}, s{sE}, 13")
    a(f"s_mov_b32 s{sOP}, 8192")
    a("s_waitcnt lgkmcnt(0)")
    srd_ws(a, SRD0, src, XP_SIZE)
    srd_ws(a, SRD1, ssn, SS_SIZE)
    for t in range(2):
        a(f"buffer_load_dwordx4 {V(ss + 4 * t, 4)}, v{vw}, s[{SRD1}:{SRD1 + 3}], 0 offen offset:{t * 1024}")
    for t in range(2):
        for jj in range(4):
            so = f"s{sOP}" if t else "0"
            a(f"buffer_load_dword v{raw + 4 * t + jj}, v{vx}, s[{SRD0}:{SRD0 + 3}], {so} offen offset:{jj * 512}")
    srd_ws(a, SRD2, "WC", WC_SIZE)
    for u in range(2):
        a(f"buffer_load_dwordx4 {V(wraw + 4 * u, 4)}, v{vw}, s[{SRD2}:{SRD2 + 3}], s{sF} offen offset:{u * 1024}")
    srd_ws(a, SRD3, dst, XP_SIZE)

    mark(a, 1)
    a(f"v_lshlrev_b32 v{vl0}, 4, v0")
    for kk in (1, 2, 3):
        a(f"v_xor_b32 v{vl0 + kk}, {kk * 1024}, v{vl0}")
    a(f"v_and_b32 v{vmI}, 1, v{vI}")
    a(f"v_mul_u32_u24 v{vmI}, 0x8000, v{vmI}")
    a(f"v_lshl_or_b32 v{vmI}, v{vmI}, 16, v{vmI}")
    a(f"s_mov_b32 s{sK0}, 0x80008000")
    a(f"v_cvt_f32_u32 v{fi}, v{vI}")
    a(f"v_lshlrev_b32 v{fg}, 2, v{vG}")
    a(f"v_cvt_f32_u32 v{fg}, v{fg}")

    def m1(qb, t, var):
        return M1 + ((qb * 2 + t) * 2 + var) * 4

    def m2(kk, var):
        return M2 + (kk * 2 + var) * 4

    a(f"v_mul_f32 v{fa}, {f32bits(1 / 32):#x}, v{fi}")
    for jj in range(4):
        t = TMP + 3 * jj
        a(f"v_add_f32 v{t}, {float(jj)}, v{fg}" if jj in (0, 1, 2) else f"v_add_f32 v{t}, {f32bits(3.0):#x}, v{fg}")
        a(f"v_mul_f32 v{t}, v{t}, v{fa}")
        a(f"v_fract_f32 v{t}, v{t}")
        a(f"v_cos_f32 v{t + 1}, v{t}")
        a(f"v_sin_f32 v{t + 2}, v{t}")
    for jj in range(4):
        t = TMP + 3 * jj
        n = "-" if jj & 1 else ""
        m = "" if jj & 1 else "-"
        a(f"v_cvt_pk_bf16_f32 v{m1(0, 0, 0) + jj}, v{t + 1}, v{t + 2}")
        a(f"v_cvt_pk_bf16_f32 v{m1(0, 0, 1) + jj}, -v{t + 2}, v{t + 1}")
        a(f"v_cvt_pk_bf16_f32 v{m1(1, 0, 0) + jj}, {n}v{t + 1}, {n}v{t + 2}")
        a(f"v_cvt_pk_bf16_f32 v{m1(1, 0, 1) + jj}, {m}v{t + 2}, {n}v{t + 1}")
    for qb in range(2):
        for var in range(2):
            for jj in range(4):
                a(f"v_xor_b32 v{m1(qb, 1, var) + jj}, v{vmI}, v{m1(qb, 0, var) + jj}")

    a(f"s_lshl_b32 s{sA}, s{sW}, 4")
    a(f"v_cvt_f32_u32 v{fb}, s{sA}")
    a(f"v_add_f32 v{TMP + 24}, v{fb}, v{fg}")
    a(f"v_add_f32 v{fb}, v{fb}, v{fi}")
    a(f"v_mul_f32 v{TMP + 25}, {f32bits(1 / 2048):#x}, v{fi}")
    a(f"v_add_f32 v{TMP + 26}, {f32bits(16 / 2048):#x}, v{TMP + 25}")
    for r in range(4):
        t = TMP + r
        a(f"v_add_f32 v{t}, {f32bits(float(r)):#x}, v{TMP + 24}")
    for qb in range(2):
        for r in range(4):
            t = TMP + 4 + (qb * 4 + r)
            a(f"v_mul_f32 v{t}, v{TMP + r}, v{TMP + 25 + qb}")
            a(f"v_cos_f32 v{T1 + qb * 8 + r}, v{t}")
            a(f"v_sin_f32 v{T1 + qb * 8 + 4 + r}, v{t}")

    a(f"v_mul_f32 v{fa}, {f32bits(1 / 64):#x}, v{fb}")
    a(f"s_xor_b32 s{sA}, s{sA}, 16")
    a(f"v_cvt_f32_u32 v{TMP + 24}, s{sA}")
    a(f"v_add_f32 v{TMP + 24}, v{TMP + 24}, v{fg}")
    for kk in range(2):
        for r in range(4):
            t = TMP + 12 + 3 * r
            if kk == 0:
                a(f"v_mul_f32 v{t}, v{TMP + r}, v{fa}")
            else:
                a(f"v_add_f32 v{t}, {f32bits(float(r)):#x}, v{TMP + 24}")
                a(f"v_mul_f32 v{t}, v{t}, v{fa}")
            a(f"v_fract_f32 v{t}, v{t}")
            a(f"v_cos_f32 v{t + 1}, v{t}")
            a(f"v_sin_f32 v{t + 2}, v{t}")
        for r in range(4):
            t = TMP + 12 + 3 * r
            a(f"v_cvt_pk_bf16_f32 v{m2(kk, 0) + r}, v{t + 1}, v{t + 2}")
            a(f"v_cvt_pk_bf16_f32 v{m2(kk, 1) + r}, -v{t + 2}, v{t + 1}")
    for kk in range(2):
        for var in range(2):
            for r in range(4):
                a(f"v_xor_b32 v{m2(kk + 2, var) + r}, v{vmI}, v{m2(kk, var) + r}")

    a(f"v_mul_f32 v{fa}, {f32bits(1 / 2048):#x}, v{fb}")
    for u in range(2):
        for r in range(4):
            t = TMP + (u * 4 + r)
            a(f"v_add_f32 v{t}, {f32bits(float(16 * u + r)):#x}, v{fg}")
            a(f"v_mul_f32 v{t}, v{t}, v{fa}")
            a(f"v_cos_f32 v{T2 + u * 8 + r}, v{t}")
            a(f"v_sin_f32 v{T2 + u * 8 + 4 + r}, v{t}")

    a(f"s_mov_b32 s{sK1}, 0xffff0000")
    a(f"s_cmp_eq_u32 s{sE}, 0")
    a(f"s_cselect_b32 s{sK2}, 0, s{sK1}")
    a(f"s_cselect_b32 s{sK3}, 0, {f32bits(-1 / 2048):#x}")
    a(f"s_mov_b32 s{sA}, {f32bits(1 / DM):#x}")
    a(f"s_mov_b32 s{sB}, {f32bits(1 / 2048):#x}")
    a(f"v_mov_b32 v{fa}, {f32bits(1e-5):#x}")
    mark(a, 2)
    for k in range(8):
        a(f"v_fma_f32 v{ss + k}, v{ss + k}, s{sA}, v{fa}")
    for k in range(8):
        a(f"v_rsq_f32 v{ss + k}, v{ss + k}")
    for k in range(8):
        t = TMP + 2 * k
        a(f"v_lshlrev_b32 v{t}, 16, v{raw + k}")
        a(f"v_and_b32 v{t + 1}, s{sK2}, v{raw + k}")
    for k in range(8):
        t = TMP + 2 * k
        a(f"v_mul_f32 v{t}, v{t}, v{ss + k}")
        a(f"v_mul_f32 v{t + 1}, v{t + 1}, v{ss + k}")
    for k in range(8):
        t = TMP + 2 * k
        a(f"v_cvt_pk_bf16_f32 v{FG + k}, v{t}, v{t + 1}")

    def acc(b, var):
        return ACC + (b * 2 + var) * 4

    mark(a, 3)
    for t in range(2):
        for qb in range(2):
            for var in range(2):
                mfma(a, acc(qb, var), FG + 4 * t, m1(qb, t, var), None if t == 0 else acc(qb, var))
    for u in range(2):
        for r in range(4):
            a(f"v_lshlrev_b32 v{WU + u * 8 + r}, 16, v{wraw + u * 4 + r}")
            a(f"v_and_b32 v{WU + u * 8 + 4 + r}, s{sK1}, v{wraw + u * 4 + r}")

    def exchange(base, data_is_a):
        for b in range(2):
            a(f"ds_write_b128 v{vl0}, {V(FO + 4 * b, 4)} offset:{base + b * 4096}")
        for b in range(2):
            for var in range(2):
                if data_is_a:
                    mfma(a, acc(b, var), FO + 4 * b, m2(0, var), None)
                else:
                    mfma(a, acc(b, var), m2(0, var), FO + 4 * b, None)
        a("s_waitcnt lgkmcnt(0)")
        a("s_barrier")
        for kk in (1, 2, 3):
            for b in range(2):
                a(f"ds_read_b128 {V(FG + ((kk - 1) * 2 + b) * 4, 4)}, v{vl0 + kk} offset:{base + b * 4096}")
        for kk in (1, 2, 3):
            for b in range(2):
                for var in range(2):
                    f = FG + ((kk - 1) * 2 + b) * 4
                    if data_is_a:
                        mfma(a, acc(b, var), f, m2(kk, var), acc(b, var))
                    else:
                        mfma(a, acc(b, var), m2(kk, var), f, acc(b, var))

    for qb in range(2):
        cmul_pack(a, FO + 4 * qb, acc(qb, 0), acc(qb, 1), T1 + qb * 8, T1 + qb * 8 + 4, TMP + 8 * qb)
    exchange(0, False)
    mark(a, 4)
    for u in range(2):
        cmul_pack(a, FO + 4 * u, acc(u, 0), acc(u, 1), WU + u * 8, WU + u * 8 + 4, TMP + 8 * u, conj_w=True)
    exchange(8192, True)
    mark(a, 5)
    for k in range(8):
        a(f"v_lshlrev_b32 v{WU + 2 * k}, 16, v{raw + k}")
        a(f"v_and_b32 v{WU + 2 * k + 1}, s{sK1}, v{raw + k}")
    for u in range(2):
        cmul_pack(a, FO + 4 * u, acc(u, 0), acc(u, 1), T2 + u * 8, T2 + u * 8 + 4, TMP + 8 * u)
    for u in range(2):
        for t in range(2):
            for var in range(2):
                mfma(a, acc(t, var), m1(t, u, var), FO + 4 * u, None if u == 0 else acc(t, var))
    for t in range(2):
        for jj in range(4):
            k = 4 * t + jj
            a(f"v_fma_f32 v{WU + 2 * k}, v{acc(t, 0) + jj}, s{sB}, v{WU + 2 * k}")
            a(f"v_fma_f32 v{WU + 2 * k + 1}, v{acc(t, 1) + jj}, s{sK3}, v{WU + 2 * k + 1}")
        for jj in range(4):
            k = 4 * t + jj
            a(f"v_cvt_pk_bf16_f32 v{raw + k}, v{WU + 2 * k}, v{WU + 2 * k + 1}")
            so = f"s{sOP}" if t else "0"
            a(f"buffer_store_dword v{raw + k}, v{vx}, s[{SRD3}:{SRD3 + 3}], {so} offen offset:{jj * 512}{Cfg.st_flags}")
    return 16384


def role_g1(a, src):
    vx, vw, vl, vo, vb, vm = 4, 5, 6, 7, 8, 9
    sq = 10
    X = 16
    ACC = 176
    BR = 232
    TMP = 246
    WR = 256
    NW = 14

    a(f"s_and_b32 s{sA}, s{sT}, 7")
    a(f"s_lshr_b32 s{sB}, s{sA}, 1")
    a(f"s_lshl_b32 s{sB}, s{sB}, 2")
    a(f"s_bfe_u32 s{sC}, s{sT}, 0x20003")
    a(f"s_add_u32 s{sC}, s{sC}, s{sB}")
    a(f"s_and_b32 s{sA}, s{sA}, 1")
    a(f"s_lshl_b32 s{sA}, s{sA}, 3")
    a(f"s_lshr_b32 s{sD}, s{sT}, 5")
    a(f"s_add_u32 s{sD}, s{sD}, s{sA}")
    a(f"s_mul_i32 s{sD}, s{sD}, 27")
    a(f"s_lshr_b32 s{sD}, s{sD}, 2")
    a(f"s_lshl_b32 s{sC}, s{sC}, 7")
    a(f"s_lshl_b32 s{sA}, s{sW}, 5")
    a(f"s_add_u32 s{sC}, s{sC}, s{sA}")
    a(f"v_lshlrev_b32 v{vx}, 15, v{vG}")
    a(f"v_lshl_add_u32 v{vx}, v{vI}, 4, v{vx}")
    a(f"s_lshl_b32 s{sA}, s{sC}, 3")
    a(f"v_add_u32 v{vx}, s{sA}, v{vx}")
    a(f"v_mul_u32_u24 v{vw}, {FF}, v{vG}")
    a(f"v_add_lshl_u32 v{vw}, v{vw}, v{vI}, 4")
    a(f"s_mul_i32 s{sA}, s{sW}, {4 * W1F_STR}")
    a(f"s_lshl_b32 s{sB}, s{sD}, 8")
    a(f"s_add_u32 s{sA}, s{sA}, s{sB}")
    a(f"v_add_u32 v{vw}, s{sA}, v{vw}")
    a(f"s_mul_i32 s{sE}, s{sW}, 7168")
    a(f"v_lshlrev_b32 v{vl}, 4, v{vL}")
    a("s_waitcnt lgkmcnt(0)")
    srd_ws(a, SRD0, "W1F", W1F_SIZE)
    srd_ws(a, SRD1, src, XP_SIZE)

    def xr(ks, st):
        return X + ks * 8 + st * 4

    def issue_chunk(c):
        a(f"s_mov_b32 s{sOP}, {c * 16 * W1F_STR}")
        for ft in range(7):
            a(f"s_add_u32 m0, s{sE}, {c * 28672 + ft * 1024 - ft * 256}")
            a(f"buffer_load_dwordx4 v{vw}, s[{SRD0}:{SRD0 + 3}], s{sOP} offen offset:{ft * 256} lds", tag=f"w{c}")
        for k in range(4):
            ks = 4 * c + k
            for h in range(2):
                a(f"s_mov_b32 s{sOQ}, {(8 * ks + h) * XP_STR}")
                a(f"buffer_load_dwordx4 {V(xr(ks, h), 4)}, v{vx}, s[{SRD1}:{SRD1 + 3}], s{sOQ} offen")

    for c in range(4):
        issue_chunk(c)
    srd(a, SRD2, P_B1, 0, FF * 2)
    srd_ws(a, SRD3, "H", H_SIZE)
    a(f"s_lshl_b32 s{sA}, s{sD}, 5")
    a(f"v_lshlrev_b32 v{vb}, 3, v{vG}")
    a(f"v_add_u32 v{vb}, s{sA}, v{vb}")
    a(f"v_lshrrev_b32 v{vo}, 1, v{vG}")
    a(f"v_mul_u32_u24 v{vo}, {H_STR}, v{vo}")
    a(f"v_lshl_add_u32 v{vo}, v{vI}, 5, v{vo}")
    a(f"v_and_b32 v{vm}, 1, v{vG}")
    a(f"v_lshl_add_u32 v{vo}, v{vm}, 4, v{vo}")
    a(f"s_mul_i32 s{sA}, s{sD}, {2 * H_STR}")
    a(f"s_lshl_b32 s{sB}, s{sC}, 4")
    a(f"s_add_u32 s{sA}, s{sA}, s{sB}")
    a(f"v_add_u32 v{vo}, s{sA}, v{vo}")
    a(f"v_cmp_eq_u32 vcc, 0, v{vG}")
    a(f"v_mov_b32 v{vm}, 0xffff")
    a(f"v_cndmask_b32 v{vm}, -1, v{vm}, vcc")
    for k in range(4):
        a(f"v_mov_b32 v{sq + k}, 0")

    def acc(ft, st):
        return ACC + (ft * 2 + st) * 4

    seq = [(ks, ft) for ks in range(20) for ft in range(7)]

    def wreg(n):
        return WR + (n % NW) * 4

    def rd(n):
        ks, ft = seq[n]
        off = (ks * 7 + ft) * 1024
        if off >= 65536:
            a(f"ds_read_b128 {R(wreg(n), 4)}, v{TMP + (off >> 16)} offset:{off & 0xffff}")
        else:
            a(f"ds_read_b128 {R(wreg(n), 4)}, v{vl} offset:{off}")

    a(f"v_add_u32 v{TMP + 1}, 0x10000, v{vl}")
    a(f"v_add_u32 v{TMP + 2}, 0x20000, v{vl}")
    AHEAD = 8
    nread = 0
    for c in range(5):
        if c == 0:
            mark(a, 1)
        a.wait_tag(f"w{c}")
        a("s_barrier")
        if c in (0, 1, 4):
            mark(a, {0: 2, 1: 3, 4: 4}[c])
        if c == 0:
            issue_chunk(4)
            for ft in range(7):
                a(f"buffer_load_dwordx2 {V(BR + 2 * ft, 2)}, v{vb}, s[{SRD2}:{SRD2 + 3}], 0 offen offset:{ft * 32}")
        hi = (c + 1) * 28
        for n in range(c * 28, hi):
            ks, ft = seq[n]
            while nread < min(hi, n + AHEAD):
                rd(nread)
                nread += 1
            if ft == 0:
                a(f"v_swap_b32 v{xr(ks, 0) + 2}, v{xr(ks, 1)}")
                a(f"v_swap_b32 v{xr(ks, 0) + 3}, v{xr(ks, 1) + 1}")
                if ks == 0:
                    a(f"v_and_b32 v{xr(0, 0)}, v{vm}, v{xr(0, 0)}")
                    a(f"v_and_b32 v{xr(0, 1)}, v{vm}, v{xr(0, 1)}")
            for st in range(2):
                mfma(a, acc(ft, st), wreg(n), xr(ks, st), None if ks == 0 else acc(ft, st))
                if 1 <= ft <= 4 and not Cfg.nodot:
                    x = xr(ks, st) + ft - 1
                    a(f"v_dot2c_f32_bf16 v{sq + st * 2 + (ft & 1)}, v{x}, v{x}")

    mark(a, 5)
    t = TMP + 4
    for st in range(2):
        s = sq + 2 * st
        a(f"v_add_f32 v{s}, v{s}, v{s + 1}")
    for op in ("v_permlane32_swap_b32", "v_permlane16_swap_b32"):
        for st in range(2):
            s = sq + 2 * st
            a(f"v_mov_b32 v{s + 1}, v{s}")
        for st in range(2):
            s = sq + 2 * st
            a(f"{op} v{s}, v{s + 1}")
        for st in range(2):
            s = sq + 2 * st
            a(f"v_add_f32 v{s}, v{s}, v{s + 1}")
    a(f"v_mov_b32 v{t}, {f32bits(1e-5):#x}")
    for st in range(2):
        s = sq + 2 * st
        a(f"v_mul_f32 v{s}, {f32bits(1 / DM):#x}, v{s}")
        a(f"v_add_f32 v{s + 1}, v{s}, v{t}")
        a(f"v_rsq_f32 v{s + 1}, v{s + 1}")
    for st in range(2):
        s = sq + 2 * st
        a(f"v_mul_f32 v{s}, v{s}, v{s + 1}")
        a(f"v_fma_f32 v{s}, v{s}, v{s + 1}, v{t}")
        a(f"v_rsq_f32 v{s}, v{s}")
    for st in range(2):
        s = sq + 2 * st
        a(f"v_mul_f32 v{s}, v{s}, v{s + 1}")

    k0 = -2.0 * 0.7978845608028654 * 1.4426950408889634
    a(f"s_mov_b32 s{sK0}, {f32bits(k0 * 0.044715):#x}")
    a(f"s_mov_b32 s{sK1}, s{sK0}")
    a(f"s_mov_b32 s{sK2}, 0xffff0000")
    a(f"v_mov_b32 v{TMP + 4}, {f32bits(k0):#x}")
    a(f"v_mov_b32 v{TMP + 5}, {f32bits(k0):#x}")
    for ft in range(7):
        B = X + ft * 16
        Z = B + 4
        O = B + 12
        for h in range(2):
            a(f"v_lshlrev_b32 v{B + 2 * h}, 16, v{BR + 2 * ft + h}")
            a(f"v_and_b32 v{B + 2 * h + 1}, s{sK2}, v{BR + 2 * ft + h}")
        prs = [(acc(ft, st) + h, Z + st * 4 + h, B + h, sq + 2 * st) for st in range(2) for h in (0, 2)]
        for x, z, b, s in prs:
            a(f"v_pk_fma_f32 {V(x, 2)}, {V(x, 2)}, {V(s, 2)}, {V(b, 2)} op_sel_hi:[1,0,1]")
        for x, z, b, s in prs:
            a(f"v_pk_mul_f32 {V(z, 2)}, {V(x, 2)}, {V(x, 2)}")
        for x, z, b, s in prs:
            a(f"v_pk_fma_f32 {V(z, 2)}, {V(z, 2)}, s[{sK0}:{sK1}], {V(TMP + 4, 2)}")
        for x, z, b, s in prs:
            a(f"v_pk_mul_f32 {V(z, 2)}, {V(z, 2)}, {V(x, 2)}")
        for k in range(8):
            a(f"v_exp_f32 v{Z + k}, v{Z + k}")
        for x, z, b, s in prs:
            a(f"v_pk_add_f32 {V(z, 2)}, {V(z, 2)}, 1.0 op_sel_hi:[1,0]")
        for k in range(8):
            a(f"v_rcp_f32 v{Z + k}, v{Z + k}")
        for x, z, b, s in prs:
            a(f"v_pk_mul_f32 {V(z, 2)}, {V(z, 2)}, {V(x, 2)}")
        for k in range(4):
            a(f"v_cvt_pk_bf16_f32 v{O + k}, v{Z + 2 * k}, v{Z + 2 * k + 1}")
        a(f"s_mov_b32 s{sOP}, {ft * 2 * H_STR}")
        a(f"v_permlane16_swap_b32 v{O}, v{O + 2}")
        a(f"v_permlane16_swap_b32 v{O + 1}, v{O + 3}")
        a(f"buffer_store_dwordx4 {V(O, 4)}, v{vo}, s[{SRD3}:{SRD3 + 3}], s{sOP} offen{Cfg.st_flags}")
    return 140 * 1024


def role_g2(a, final):
    vp, vq, vred, vo, acc = 4, 5, 9, 13, 16
    vp2, vq2, vone, vs, RES, TMP = 96, 97, 101, 102, 104, 116
    ring = 256
    depth = Cfg.g2depth
    a(f"s_and_b32 s{sA}, s{sT}, 7")
    a(f"s_lshr_b32 s{sB}, s{sA}, 1")
    a(f"s_lshl_b32 s{sB}, s{sB}, 3")
    a(f"s_bfe_u32 s{sC}, s{sT}, 0x30003")
    a(f"s_add_u32 s{sC}, s{sC}, s{sB}")
    a(f"s_lshl_b32 s{sC}, s{sC}, 6")
    a(f"s_and_b32 s{sA}, s{sA}, 1")
    a(f"s_lshl_b32 s{sA}, s{sA}, 2")
    a(f"s_lshr_b32 s{sD}, s{sT}, 6")
    a(f"s_add_u32 s{sD}, s{sD}, s{sA}")
    p_addr(a, vp, sD, 14)
    a(f"v_mul_u32_u24 v{vq}, {H_STR}, v{vG}")
    a(f"v_lshl_add_u32 v{vq}, v{vI}, 4, v{vq}")
    a(f"s_mul_i32 s{sA}, s{sW}, {14 * 4 * H_STR}")
    a(f"s_lshl_b32 s{sB}, s{sC}, 4")
    a(f"s_add_u32 s{sA}, s{sA}, s{sB}")
    for ql in (3, 2, 1, 0):
        a(f"s_xor_b32 s{sB}, s{sW}, {ql}")
        a(f"s_lshl_b32 s{sB}, s{sB}, 8")
        a(f"s_add_u32 s{sB}, s{sB}, s{sA}")
        a(f"v_add_u32 v{vq + ql}, s{sB}, v{vq}")
    if Cfg.g2lay & 1:
        a(f"s_mul_i32 s{sA}, s{sD}, {54 * 5120}")
        a(f"s_mul_i32 s{sB}, s{sW}, {13 * 5120}")
        a(f"s_add_u32 s{sA}, s{sA}, s{sB}")
        a(f"v_lshlrev_b32 v{vp}, 4, v{vL}")
        a(f"v_add_u32 v{vp}, s{sA}, v{vp}")
    if Cfg.g2lay & 2:
        a(f"s_mul_i32 s{sA}, s{sC}, {54 * 64}")
        a(f"s_mul_i32 s{sB}, s{sW}, {13 * 4096}")
        a(f"s_add_u32 s{sA}, s{sA}, s{sB}")
        a(f"v_lshlrev_b32 v{vq}, 4, v{vL}")
        for ql in (3, 2, 1, 0):
            a(f"s_xor_b32 s{sB}, s{sW}, {ql}")
            a(f"s_lshl_b32 s{sB}, s{sB}, 10")
            a(f"s_add_u32 s{sB}, s{sB}, s{sA}")
            a(f"v_add_u32 v{vq + ql}, s{sB}, v{vq}")
    a("s_waitcnt lgkmcnt(0)")
    if final:
        srd_ws(a, SRD0, "W2T", W2T_SIZE)
    else:
        srd_ws(a, SRD0, "WA2", WA2_SIZE)
    srd_ws(a, SRD1, "H", H_SIZE)
    st = {"p": None, "q": None}

    def ip(t, p, dst):
        if t < 14:
            if Cfg.g2lay & 1:
                a(f"s_mov_b32 s{sOP}, {t * 5120 + p * 1024}")
                a(f"buffer_load_dwordx4 {R(dst, 4)}, v{vp}, s[{SRD0}:{SRD0 + 3}], s{sOP} offen")
                return
            if st["p"] != t:
                a(f"s_mov_b32 s{sOP}, {t * 4 * KB_STR}")
            a(f"buffer_load_dwordx4 {R(dst, 4)}, v{vp}, s[{SRD0}:{SRD0 + 3}], s{sOP} offen offset:{p * 256}")
        else:
            if st["p"] != t:
                a(f"s_mov_b32 s{sOP}, {(t - 14) * 4 * KB_STR}")
            a(f"buffer_load_dwordx4 {R(dst, 4)}, v{vp2}, s[{SRD4}:{SRD4 + 3}], s{sOP} offen offset:{p * 256}")
        st["p"] = t

    def iq(t, q, qb):
        if t < 14:
            if st["q"] != t:
                a(f"s_mov_b32 s{sOQ}, {t * (4096 if Cfg.g2lay & 2 else 4 * H_STR)}")
            a(f"buffer_load_dwordx4 {R(qb + q * 4, 4)}, v{vq + q}, s[{SRD1}:{SRD1 + 3}], s{sOQ} offen")
        else:
            if st["q"] != t:
                a(f"s_mov_b32 s{sOQ}, {(t - 14) * 8 * XP_STR}")
                a(f"s_mov_b32 s{sF}, {((t - 14) * 8 + 1) * XP_STR}")
            a(f"buffer_load_dwordx2 {R(qb + q * 4, 2)}, v{vq2 + q}, s[{SRD5}:{SRD5 + 3}], s{sOQ} offen")
            a(f"buffer_load_dwordx2 {R(qb + q * 4 + 2, 2)}, v{vq2 + q}, s[{SRD5}:{SRD5 + 3}], s{sF} offen")
        st["q"] = t

    def post():
        a(f"s_lshl_b32 s{sE}, s{sW}, 4")
        a(f"s_add_u32 s{sE}, s{sE}, s{sC}")
        if final:
            srd_table(a, SRD4, "ft2")
            srd_ws(a, SRD5, "XP3", XP_SIZE)
            srd(a, SRD2, P_OUT, 0, SEQ * DM * 2)
            srd(a, SRD3, P_B2, 0, DM * 2)
            p_addr(a, vp2, sD, 5)
            a(f"v_lshlrev_b32 v{vq2}, 15, v{vG}")
            a(f"v_lshl_add_u32 v{vq2}, v{vI}, 3, v{vq2}")
            a(f"s_mul_i32 s{sA}, s{sW}, {40 * XP_STR}")
            a(f"s_lshl_b32 s{sB}, s{sC}, 3")
            a(f"s_add_u32 s{sA}, s{sA}, s{sB}")
            for ql in (3, 2, 1, 0):
                a(f"s_xor_b32 s{sB}, s{sW}, {ql}")
                a(f"s_lshl_b32 s{sB}, s{sB}, 7")
                a(f"s_add_u32 s{sB}, s{sB}, s{sA}")
                a(f"v_add_u32 v{vq2 + ql}, s{sB}, v{vq2}")
            a(f"s_mul_i32 s{sA}, s{sD}, 160")
            a(f"v_lshlrev_b32 v{vs}, 3, v{vG}")
            a(f"v_add_u32 v{vs}, s{sA}, v{vs}")
            a(f"v_mul_u32_u24 v{vo}, 1280, v{vI}")
            a(f"v_add_u32 v{vo}, v{vo}, v{vs}")
            a(f"s_mul_i32 s{sA}, s{sE}, 1280")
            a(f"v_add_u32 v{vo}, s{sA}, v{vo}")
        else:
            srd_ws(a, SRD2, "XP2", XP_SIZE)
            srd_ws(a, SRD3, "XP1", XP_SIZE)
            srd_ws(a, SRD4, "SS2", SS_SIZE)
            a(f"s_mul_i32 s{sA}, s{sD}, {20 * XP_STR}")
            a(f"s_lshl_b32 s{sB}, s{sE}, 3")
            a(f"s_add_u32 s{sA}, s{sA}, s{sB}")
            a(f"v_lshlrev_b32 v{vo}, 14, v{vG}")
            a(f"v_lshl_add_u32 v{vo}, v{vI}, 3, v{vo}")
            a(f"v_add_u32 v{vo}, s{sA}, v{vo}")
            a(f"s_lshl_b32 s{sA}, s{sW}, 3")
            a(f"s_lshr_b32 s{sB}, s{sC}, 8")
            a(f"s_add_u32 s{sA}, s{sA}, s{sB}")
            a(f"s_lshl_b32 s{sA}, s{sA}, 8")
            a(f"s_bfe_u32 s{sB}, s{sC}, 0x20006")
            a(f"s_lshl2_add_u32 s{sA}, s{sB}, s{sA}")
            a(f"v_lshlrev_b32 v{vs}, 4, v{vI}")
            a(f"v_add_u32 v{vs}, s{sA}, v{vs}")
            a(f"v_lshl_add_u32 v{vs}, v{vG}, 20, v{vs}")
            a(f"s_cmp_eq_u32 s{sW}, 3")
            a(f"s_cselect_b32 s{sA}, 0x3f80, 0")
            a(f"v_mov_b32 v{vone}, s{sA}")
            a(f"v_cmp_eq_u32 vcc, 0, v{vG}")
            a(f"v_cndmask_b32 v{vone}, 0, v{vone}, vcc")
            a(f"s_cmp_eq_u32 s{sD}, 0")
            a(f"s_cselect_b32 s{sA}, 0, 1.0")
            a(f"v_mov_b32 v{vp2}, s{sA}")
            a(f"v_cndmask_b32 v{vp2}, 1.0, v{vp2}, vcc")

    def prep(t, qb):
        if t == 3:
            for p in range(5):
                if final:
                    a(f"buffer_load_dwordx2 {V(RES + 2 * p, 2)}, v{vs}, s[{SRD3}:{SRD3 + 3}], 0 offen offset:{p * 32}")
                else:
                    a(f"s_mov_b32 s{sF}, {p * 4 * XP_STR}")
                    a(f"buffer_load_dwordx2 {V(RES + 2 * p, 2)}, v{vo}, s[{SRD3}:{SRD3 + 3}], s{sF} offen")
        if t == 12 and not final:
            for q in range(4):
                a(f"v_accvgpr_read_b32 v{TMP + q}, {R(qb + q * 4)}")
            for q in range(4):
                a(f"v_or_b32 v{TMP + q}, v{TMP + q}, v{vone}")
            for q in range(4):
                a(f"v_accvgpr_write_b32 {R(qb + q * 4)}, v{TMP + q}")
        return [qb + q * 4 for q in range(4)]

    res = gemm_ks_hook(a, 19 if final else 14, depth, acc, ring, vred, ip, iq, prep, post)
    a(f"s_mov_b32 s{sK2}, 0xffff0000")
    if not final:
        a(f"v_mov_b32 v{TMP + 8}, 0")
        a(f"v_mov_b32 v{TMP + 9}, 0")
    for p, r in enumerate(res):
        for h in range(2):
            a(f"v_lshlrev_b32 v{TMP + 2 * h}, 16, v{RES + 2 * p + h}")
            a(f"v_and_b32 v{TMP + 2 * h + 1}, s{sK2}, v{RES + 2 * p + h}")
        for h in (0, 2):
            a(f"v_pk_add_f32 {V(r + h, 2)}, {V(r + h, 2)}, {V(TMP + h, 2)}")
        a(f"v_cvt_pk_bf16_f32 v{r}, v{r}, v{r + 1}")
        a(f"v_cvt_pk_bf16_f32 v{r + 1}, v{r + 2}, v{r + 3}")
        if final:
            a(f"buffer_store_dwordx2 {V(r, 2)}, v{vo}, s[{SRD2}:{SRD2 + 3}], 0 offen offset:{p * 32}{Cfg.st_flags}")
        else:
            a(f"s_mov_b32 s{sOP}, {p * 4 * XP_STR}")
            a(f"buffer_store_dwordx2 {V(r, 2)}, v{vo}, s[{SRD2}:{SRD2 + 3}], s{sOP} offen{Cfg.st_flags}")
            if p == 0:
                a(f"v_lshlrev_b32 v{TMP + 4}, 16, v{r}")
                a(f"v_and_b32 v{TMP + 5}, s{sK2}, v{r}")
                a(f"v_mul_f32 v{TMP + 5}, v{TMP + 5}, v{vp2}")
                a(f"v_mul_f32 v{TMP + 8}, v{TMP + 4}, v{TMP + 4}")
                a(f"v_fmac_f32 v{TMP + 8}, v{TMP + 5}, v{TMP + 5}")
            else:
                a(f"v_dot2c_f32_bf16 v{TMP + 8}, v{r}, v{r}")
            a(f"v_dot2c_f32_bf16 v{TMP + 9}, v{r + 1}, v{r + 1}")
    if not final:
        s = TMP + 8
        a(f"v_add_f32 v{s}, v{s}, v{s + 1}")
        for op in ("v_permlane32_swap_b32", "v_permlane16_swap_b32"):
            a(f"v_mov_b32 v{s + 1}, v{s}")
            a(f"{op} v{s}, v{s + 1}")
            a(f"v_add_f32 v{s}, v{s}, v{s + 1}")
        a(f"buffer_atomic_add_f32 v{s}, v{vs}, s[{SRD4}:{SRD4 + 3}], 0 offen")
    return KS_LDS


def gemm_ks_hook(a, nsteps, depth, acc, ring, vred, ip, iq, hook, post):
    return gemm_ks(a, nsteps, depth, acc, ring, vred, True, ip, iq, after_prologue=post, step_hook=hook)


def build_kernel(name, idx, roles, block=256):
    a = Asm()
    a.raw(f".globl {name}\n.p2align 8\n.type {name},@function")
    a.label(name)
    a.label(name + "_code")
    a("s_load_dwordx16 s[8:23], s[0:1], 0")
    a("s_load_dwordx4 s[24:27], s[0:1], 64")
    a("s_load_dwordx2 s[28:29], s[0:1], 80")
    if Cfg.stamp:
        a(f"s_memrealtime s[{sST}:{sST + 1}]")
        for j in range(1, 10):
            a(f"s_mov_b32 s{sST + 2 * j}, 0")
    a(f"v_lshrrev_b32 v{vL}, 6, v0")
    a(f"v_and_b32 v{vI}, 15, v0")
    a(f"v_readfirstlane_b32 s{sW}, v{vL}")
    a(f"v_bfe_u32 v{vG}, v0, 4, 2")
    a(f"v_and_b32 v{vL}, 63, v0")
    lds = 0
    start = 0
    starts = [sum(c for c, _ in roles[:n]) for n in range(len(roles) + 1)]
    for n in range(len(roles), 0, -1):
        a(f"s_cmp_ge_u32 s2, {starts[n]}")
        a(f"s_cbranch_scc1 {name}_r{n}")
    for n, (count, fn) in enumerate(roles):
        if n:
            a.label(f"{name}_r{n}")
        a(f"s_sub_u32 s{sT}, s2, {start}")
        lds = max(lds, fn(a))
        if Cfg.stamp:
            mark(a, 10)
            a("s_waitcnt vmcnt(0)")
            mark(a, 11)
            a("s_waitcnt lgkmcnt(0)")
            a(f"s_mul_i32 s{sA}, s2, {block // 64}")
            a(f"s_add_u32 s{sA}, s{sA}, s{sW}")
            a(f"s_lshl_b32 s{sA}, s{sA}, 6")
            a(f"s_add_u32 s{sA}, s{sA}, {idx * 262144}")
            srd_ws(a, SRD0, "STAMP", 1 << 21)
            a("s_waitcnt lgkmcnt(0)")
            for j in range(12):
                a(f"v_mov_b32 v{4 + j}, s{sST + 2 * j}")
            a(f"v_mov_b32 v16, s{sA}")
            for j in range(3):
                a(f"buffer_store_dwordx4 v[{4 + 4 * j}:{7 + 4 * j}], v16, s[{SRD0}:{SRD0 + 3}], 0 offen offset:{16 * j}")
            a(f"s_getreg_b32 s{sB}, hwreg(HW_REG_XCC_ID)")
            a(f"v_mov_b32 v17, s{sB}")
            a(f"buffer_store_dword v17, v16, s[{SRD0}:{SRD0 + 3}], 0 offen offset:48")
        a("s_endpgm")
        for fn2 in a.tail:
            fn2()
        a.tail = []
        start += count
    a.label(f"{name}_r{len(roles)}")
    a("s_endpgm")
    a.label(name + "_cend")
    nv = na = 0
    ns = 0
    for it in a.items:
        if isinstance(it, Inst):
            for k, r in it.dst + it.src + it.srcc:
                if k == "v":
                    nv = max(nv, r + 1)
                elif k == "a":
                    na = max(na, r + 1)
                elif r < 102:
                    ns = max(ns, r + 1)
    acco = (nv + 3) // 4 * 4
    desc = f""".p2align 6
.amdhsa_kernel {name}
  .amdhsa_next_free_vgpr {acco + na}
  .amdhsa_next_free_sgpr {ns}
  .amdhsa_accum_offset {acco}
  .amdhsa_group_segment_fixed_size 0
  .amdhsa_kernarg_size 88
  .amdhsa_user_sgpr_count 2
  .amdhsa_user_sgpr_kernarg_segment_ptr 1
  .amdhsa_system_sgpr_workgroup_id_x 1
.end_amdhsa_kernel
"""
    launch = f"; @launch kernel={name} grid=({start},1,1) block=({block},1,1) lds={lds}"
    if Cfg.stamp:
        launch += "\n; roles " + name + " " + " ".join(str(c * block // 256) for c, _ in roles)
    return launch, a.finalize(), desc


def tables():
    L = []
    c = np.sqrt(2.0 / DM) * np.cos(2 * np.pi * np.arange(DM) / DM)
    c[160] = 0
    c[480] = 0
    bits = model.bf16_bits(c.astype(np.float32))
    for n in range(DM):
        L.append(f".set cq{n}, {bits[n]}")
    bb = int(model.bf16_bits(np.float32([np.sqrt(1 / DM)]))[0])
    L.append(".altmacro")
    L.append(".macro e8 a,b,c,d,e,f,g,h\n.short cq\\a, cq\\b, cq\\c, cq\\d, cq\\e, cq\\f, cq\\g, cq\\h\n.endm")
    L.append(".macro e6 a,b,c,d,e,f\n.short cq\\a, cq\\b, cq\\c, cq\\d, cq\\e, cq\\f\n.endm")
    L.append(".p2align 12\nft1:")
    L.append(".set td, 0\n.rept 80")
    L.append(".short " + ", ".join(str(bb | (0x8000 if j & 1 else 0)) for j in range(8)))
    L.append(".short " + ", ".join(str(bb) for j in range(8)))
    L.append(".set tm, 1\n.rept 319")
    L.append("e8 " + ", ".join(f"%((tm*(td+{j}))%640)" for j in range(8)))
    L.append("e8 " + ", ".join(f"%((tm*(td+{j})+160)%640)" for j in range(8)))
    L.append(".set tm, tm+1\n.endr\n.set td, td+8\n.endr")
    L.append(".p2align 12\nft2:")
    L.append(".set td, 0\n.rept 640")
    L.append(f".short {bb}+((td&1)<<15), {bb}")
    L.append("e6 " + ", ".join(f"%(({1 + j // 2}*td+{160 * (j & 1)})%640)" for j in range(6)))
    L.append(".set td, td+1\n.endr")
    L.append(".set tm, 4\n.rept 79\n.set td, 0\n.rept 640")
    L.append("e8 " + ", ".join(f"%(((tm+{j // 2})*td+{160 * (j & 1)})%640)" for j in range(8)))
    L.append(".set td, td+1\n.endr\n.set tm, tm+4\n.endr")
    L.append(".noaltmacro")
    return "\n".join(L) + "\n"


def generate(plan=None, tabs=None):
    if plan is None:
        plan = default_plan()
    launches, code, descs = [], [], []
    for idx, (name, roles, *blk) in enumerate(plan):
        l, c, d = build_kernel(name, idx, roles, *blk)
        launches.append(l)
        code.append(c)
        descs.append(d)
    out = "\n".join(launches) + "\n"
    out += '.amdgcn_target "amdgcn-amd-amdhsa--gfx950"\n.text\n'
    out += "".join(code)
    out += "text_last:\n"
    out += '.section .rodata,"a"\n'
    out += "".join(descs)
    out += (tabs or tables)()
    return out


def default_plan():
    tail = [
        ("g1a_kernel", [(256, lambda a: role_g1(a, "XP1"))]),
        ("g2a_kernel", [(256, lambda a: role_g2(a, False))]),
        ("c2_kernel", [(320, lambda a: role_col(a, "XP2", "SS2", "XP3")), (135, role_w2t)]),
        ("g1b_kernel", [(256, lambda a: role_g1(a, "XP3"))]),
        ("g2b_kernel", [(256, lambda a: role_g2(a, True))]),
    ]
    d = Cfg.pdepth
    if Cfg.plan == 1:
        return [
            ("p0_kernel", [(256, lambda a: role_xhat0(a, d))]),
            ("p1_kernel", [(80, role_wc), (64, role_stats)]),
            ("p2_kernel", [(224, lambda a: role_w2f(a, d))]),
            ("p3_kernel", [(216, lambda a: role_w1f(a, min(d, 4)))]),
            ("c1_kernel", [(320, lambda a: role_col(a, "XP0", "SS0", "XP1"))]),
        ] + tail[:3]
    if Cfg.plan == 2:
        return [
            ("p0_kernel", [(256, lambda a: role_xhat0(a, d)), (80, role_wc), (64, role_stats)]),
            ("c1_kernel", [(320, lambda a: role_col(a, "XP0", "SS0", "XP1")), (216, lambda a: role_w1f(a, min(d, 4))),
                           (224, lambda a: role_w2f(a, min(d, 4), 112))]),
        ] + tail
    return [
        ("p0_kernel", [(256, lambda a: role_xhat0(a, 4)), (80, role_wc), (64, role_stats),
                       (224, lambda a: role_w2f(a, 4))]),
        ("c1_kernel", [(320, lambda a: role_col(a, "XP0", "SS0", "XP1")), (216, lambda a: role_w1f(a, 4))]),
        ("g1a_kernel", [(256, lambda a: role_g1(a, "XP1"))]),
        ("g2a_kernel", [(256, lambda a: role_g2(a, False))]),
        ("c2_kernel", [(320, lambda a: role_col(a, "XP2", "SS2", "XP3")), (135, role_w2t)]),
        ("g1b_kernel", [(256, lambda a: role_g1(a, "XP3"))]),
        ("g2b_kernel", [(256, lambda a: role_g2(a, True))]),
    ]


if __name__ == "__main__":
    out = sys.argv[1]
    for opt in sys.argv[2:]:
        if opt == "stamp":
            Cfg.stamp = True
        if "=" in opt:
            k, v = opt.split("=")
            setattr(Cfg, k, int(v) if v.lstrip("-").isdigit() else v.replace("_", " "))
        if opt == "clk":
            Cfg.stamp = Cfg.clk = True
    open(out, "w").write(generate())
```

```python
from gen import *
from gen import mark as gen_mark

GELU_K0 = -2.0 * 0.7978845608028654 * 1.4426950408889634
EPS = 1e-5
SPIN_MAX = 1 << 16


class MC:
    look = 22
    per_step = 4
    bars = (0, 1, 2, 3, 4, 6, 8, 10, 12, 14, 16, 18)
    gelu_loads = 3
    after_store = 0
    poll_lead = 10
    qdepth = 5
    qflags = " sc1"
    g1marks = ()


def role_mlp(a, final, name):
    def mark(a, n, g1=False):
        if not MC.g1marks or g1 or n == 1:
            gen_mark(a, n)
        elif n == 2:
            gen_mark(a, 9)

    src = "XP3" if final else "XP1"
    vx, vl0, vw, vp = 4, 5, 8, 15
    X, ACC1, Z, vo, vmk, CC = 16, 176, 232, 248, 249, 250
    GR = Z
    vdc, ve = 256 + 248, 10
    WR, NW, AHEAD = 256, 12, 8
    ACC2, EACC = 16, 224
    DIAG = (4, 6, 30, 70)
    sRB, sMM, sFL, sCNT = 96, 97, 98, 99
    SRDF = SRD5

    def preg(t, p):
        base = 256 + 48 + 20 * t if t < 10 else (176 + 20 * (t - 10) if t < 12 else 96 + 20 * (t - 12))
        return base + 4 * p

    def qreg(t, q):
        k = t % MC.qdepth
        return (256 + 16 * k if k < 3 else 136 + 16 * (k - 3)) + 4 * q

    a(f"s_and_b32 s{sA}, s{sT}, 7")
    a(f"s_lshr_b32 s{sB}, s{sA}, 1")
    a(f"s_lshl_b32 s{sB}, s{sB}, 2")
    a(f"s_bfe_u32 s{sRB}, s{sT}, 0x20003")
    a(f"s_add_u32 s{sRB}, s{sRB}, s{sB}")
    a(f"s_and_b32 s{sA}, s{sA}, 1")
    a(f"s_lshl_b32 s{sA}, s{sA}, 3")
    a(f"s_lshr_b32 s{sMM}, s{sT}, 5")
    a(f"s_add_u32 s{sMM}, s{sMM}, s{sA}")
    a(f"s_mul_i32 s{sD}, s{sMM}, 27")
    a(f"s_lshr_b32 s{sD}, s{sD}, 2")
    a(f"s_lshl_b32 s{sC}, s{sRB}, 7")
    a(f"s_lshl_b32 s{sA}, s{sW}, 5")
    a(f"s_add_u32 s{sC}, s{sC}, s{sA}")
    a(f"v_lshlrev_b32 v{vx}, 15, v{vG}")
    a(f"v_lshl_add_u32 v{vx}, v{vI}, 4, v{vx}")
    a(f"s_lshl_b32 s{sA}, s{sC}, 3")
    a(f"v_add_u32 v{vx}, s{sA}, v{vx}")
    a(f"v_mul_u32_u24 v{vl0}, {FF}, v{vG}")
    a(f"v_add_lshl_u32 v{vl0}, v{vl0}, v{vI}, 4")
    a(f"s_lshl_b32 s{sB}, s{sD}, 8")
    a(f"s_add_u32 s{sB}, s{sB}, {12 * W1F_STR}")
    for jj in range(7):
        a(f"s_add_u32 s{sA}, s{sW}, {4 * jj}")
        a(f"s_mul_i32 s{sE}, s{sA}, 37")
        a(f"s_lshr_b32 s{sE}, s{sE}, 8")
        a(f"s_mul_i32 s{sE}, s{sE}, {4 * W1F_STR + 1792}")
        a(f"s_lshl_b32 s{sA}, s{sA}, 8")
        a(f"s_sub_u32 s{sA}, s{sA}, s{sE}")
        a(f"s_add_u32 s{sA}, s{sA}, s{sB}")
        a(f"v_add_u32 v{vw + jj}, s{sA}, v{vl0}")
    a(f"s_lshl_b32 s{sE}, s{sW}, 10")
    a(f"v_lshlrev_b32 v{vl0}, 4, v{vL}")
    a("s_waitcnt lgkmcnt(0)")
    srd_ws(a, SRD0, "W1F", W1F_SIZE)
    srd_ws(a, SRD1, src, XP_SIZE)

    def xr(t, st):
        return X + t * 8 + st * 4

    def acc(ft, st):
        return ACC1 + (ft * 2 + st) * 4

    st_ = {"wc": None, "p": None, "e": None}
    done = set()

    def w_load(j):
        def f():
            c, jj = divmod(j, 7)
            if st_["wc"] != c:
                a(f"s_mov_b32 s{sOP}, {(4 - c) * 16 * W1F_STR}")
                st_["wc"] = c
            a(f"s_add_u32 m0, s{sE}, {j * 4096}")
            a(f"buffer_load_dwordx4 v{vw + jj}, s[{SRD0}:{SRD0 + 3}], s{sOP} offen lds", tag=f"w{j}")
            done.add(("w", j))
        return f

    def x_load(t, h):
        def f():
            a(f"s_mov_b32 s{sOQ}, {(8 * (19 - t) + h) * XP_STR}")
            a(f"buffer_load_dwordx4 {V(xr(t, h), 4)}, v{vx}, s[{SRD1}:{SRD1 + 3}], s{sOQ} offen")
            done.add(("x", t, h))
        return f

    def e_load(j):
        def f():
            c, jj = divmod(j, 3)
            if st_["e"] != c:
                a(f"s_mov_b32 s{sOP}, {(4 - c) * 16 * KB_STR}")
                st_["e"] = c
            a(f"s_add_u32 m0, s{sE}, {j * 4096}")
            a(f"buffer_load_dwordx4 v{ve + jj}, s[{SRD4}:{SRD4 + 3}], s{sOP} offen lds", tag="e")
            done.add(("e", j))
        return f

    def p_load(t, p):
        def f():
            if st_["p"] != t:
                a(f"s_mov_b32 s{sF}, {t * 4 * KB_STR}")
                st_["p"] = t
            a(f"buffer_load_dwordx4 {R(preg(t, p), 4)}, v{vp}, s[{SRD2}:{SRD2 + 3}], s{sF} offen offset:{p * 256}")
        return f

    xorder = list(range(13)) + [19] + list(range(13, 19))
    g1 = []
    jn = 0
    for t in range(20):
        if t == 0:
            g1 += [x_load(0, 0), x_load(0, 1)]
        while jn <= (7 * t + 6) // 4:
            g1.append(w_load(jn))
            jn += 1
        if t + 1 < 20:
            g1 += [x_load(xorder[t + 1], 0), x_load(xorder[t + 1], 1)]
    queue = [(f, 0) for f in g1]
    if final:
        queue += [("esetup", 12)] + [(e_load(j), 12) for j in range(15)]
    queue += [(p_load(t, p), 0) for t in range(10) for p in range(5)]
    late = [(t, p) for t in range(10, 14) for p in range(5)]

    def esetup():
        a(f"s_mul_i32 s{sB}, s{sMM}, 5")
        a(f"s_lshr_b32 s{sB}, s{sB}, 1")
        a(f"s_lshl_b32 s{sB}, s{sB}, 8")
        a(f"s_add_u32 s{sB}, s{sB}, {12 * KB_STR}")
        a(f"v_mul_u32_u24 v{ve + 3}, {DM}, v{vG}")
        a(f"v_add_lshl_u32 v{ve + 3}, v{ve + 3}, v{vI}, 4")
        for jj in range(3):
            a(f"s_add_u32 s{sA}, s{sW}, {4 * jj}")
            a(f"s_mul_i32 s{sK0}, s{sA}, 86")
            a(f"s_lshr_b32 s{sK0}, s{sK0}, 8")
            a(f"s_mul_i32 s{sK0}, s{sK0}, {4 * KB_STR + 768}")
            a(f"s_lshl_b32 s{sA}, s{sA}, 8")
            a(f"s_sub_u32 s{sA}, s{sA}, s{sK0}")
            a(f"s_add_u32 s{sA}, s{sA}, s{sB}")
            a(f"v_add_u32 v{ve + jj}, s{sA}, v{ve + 3}")

    cur = {"bar": -1}

    def issue(n):
        while n > 0 and queue and queue[0][1] <= cur["bar"] + (queue[0][1] == 0):
            f, _ = queue.pop(0)
            if f == "esetup":
                esetup()
                continue
            f()
            n -= 1

    def need(key):
        while key not in done:
            n0 = len(queue)
            issue(1)
            assert len(queue) < n0, key

    issue(MC.look)

    a(f"v_add_u32 v{vl0 + 1}, 0x10000, v{vl0}")
    a(f"v_add_u32 v{vl0 + 2}, 0x20000, v{vl0}")
    srd_ws(a, SRD2, "W2T" if final else "WA2", W2T_SIZE if final else (218 * KB_STR if Cfg.rho else WA2_SIZE))
    srd_ws(a, SRD3, "H", H_SIZE)
    srd_ws(a, SRDF, "FLAG", FLAG_SIZE)
    if final:
        srd_table(a, SRD4, "ft2")
    a(f"v_lshrrev_b32 v{vo}, 1, v{vG}")
    a(f"v_mul_u32_u24 v{vo}, {H_STR}, v{vo}")
    a(f"v_lshl_add_u32 v{vo}, v{vI}, 5, v{vo}")
    a(f"v_and_b32 v{vmk}, 1, v{vG}")
    a(f"v_lshl_add_u32 v{vo}, v{vmk}, 4, v{vo}")
    a(f"s_mul_i32 s{sA}, s{sD}, {2 * H_STR}")
    a(f"s_lshl_b32 s{sB}, s{sC}, 4")
    a(f"s_add_u32 s{sA}, s{sA}, s{sB}")
    a(f"v_add_u32 v{vo}, s{sA}, v{vo}")
    a(f"v_cmp_eq_u32 vcc, 0, v{vG}")
    a(f"v_mov_b32 v{vmk}, 0xffff0000")
    a(f"v_cndmask_b32 v{vmk}, 0, v{vmk}, vcc")
    a(f"s_lshr_b32 s{sA}, s{sMM}, 3")
    a(f"s_lshl_b32 s{sA}, s{sA}, 2")
    a(f"s_and_b32 s{sD}, s{sMM}, 3")
    a(f"s_add_u32 s{sD}, s{sD}, s{sA}")
    p_addr(a, vp, sD, 14)
    for r in range(4):
        m = 0x1000010000100001 << r
        a(f"s_mov_b32 s{DIAG[r]}, {m & 0xffffffff:#x}")
        a(f"s_mov_b32 s{DIAG[r] + 1}, {m >> 32:#x}")
    a(f"s_lshl_b32 s{sFL}, s{sRB}, 7")
    a(f"s_add_u32 s{sFL}, s{sFL}, {2048 if final else 0}")
    mark(a, 1)

    def wreg(n):
        return WR + (n % NW) * 4

    bars = list(MC.bars) + [20]
    rd_ = {"n": 0}

    def lds_read(dst, off):
        a(f"ds_read_b128 {R(dst, 4)}, v{vl0 + (off >> 16)} offset:{off & 0xffff}")

    def rd_upto(hi):
        while rd_["n"] < min(hi, 140):
            n = rd_["n"]
            if n % 7 == 0 and n // 7 in bars:
                t_end = bars[bars.index(n // 7) + 1]
                need(("w", (7 * t_end - 1) // 4))
                a.wait_tag(f"w{(7 * t_end - 1) // 4}")
                a("s_barrier")
                cur["bar"] = n // 7
            lds_read(wreg(n), n * 1024)
            rd_["n"] += 1

    def prep_x(t, first):
        need(("x", t, 1))
        a(f"v_swap_b32 v{xr(t, 0) + 2}, v{xr(t, 1)}")
        a(f"v_swap_b32 v{xr(t, 0) + 3}, v{xr(t, 1) + 1}")
        if t == 19:
            for st in range(2):
                if final:
                    a(f"v_accvgpr_write_b32 {R(vdc + st)}, v{xr(t, st)}")
                a(f"v_bfi_b32 v{xr(t, st)}, v{vmk}, 0, v{xr(t, st)}")
        return [lambda st=st: mfma(a, GR + 4 * st, xr(t, st), xr(t, st), None if first else GR + 4 * st)
                for st in range(2)]

    T = Z + 8

    def stats_ops():
        ops = []
        for r in range(4):
            for st in range(2):
                prev = "0" if r == 0 else f"v{T + 2 * st}"
                ops.append(f"v_cndmask_b32_e64 v{T + 2 * st}, {prev}, v{GR + 4 * st + r}, s[{DIAG[r]}:{DIAG[r] + 1}]")
        for op in ("v_permlane32_swap_b32", "v_permlane16_swap_b32"):
            ops += [f"v_mov_b32 v{T + 2 * st + 1}, v{T + 2 * st}" for st in range(2)]
            ops += [f"{op} v{T + 2 * st}, v{T + 2 * st + 1}" for st in range(2)]
            ops += [f"v_add_f32 v{T + 2 * st}, v{T + 2 * st}, v{T + 2 * st + 1}" for st in range(2)]
        ops.append(f"v_mov_b32 v{T + 4}, {f32bits(EPS * EPS):#x}")
        ops += [f"v_fmamk_f32 v{T + 2 * st}, v{T + 2 * st}, {f32bits((1 + EPS) / DM):#x}, v{T + 4}" for st in range(2)]
        ops += [f"v_rsq_f32 v{T + 2 * st + 1}, v{T + 2 * st}" for st in range(2)]
        ops += [f"v_mul_f32 v{CC + 4 + st}, v{T + 2 * st}, v{T + 2 * st + 1}" for st in range(2)]
        ops += [f"v_cvt_pk_bf16_f32 v{T + 2 * st}, v{CC + 4 + st}, v{CC + 4 + st}" for st in range(2)]
        ops += [f"v_bfi_b32 v{xr(19, st)}, v{vmk}, v{T + 2 * st}, v{xr(19, st)}" for st in range(2)]
        ops += [f"v_mul_f32 v{CC + st}, {f32bits(GELU_K0):#x}, v{T + 2 * st + 1}" for st in range(2)]
        ops += [f"v_mul_f32 v{T + 2 * st}, v{T + 2 * st + 1}, v{T + 2 * st + 1}" for st in range(2)]
        ops += [f"v_mul_f32 v{T + 2 * st}, {f32bits(0.044715):#x}, v{T + 2 * st}" for st in range(2)]
        ops += [f"v_mul_f32 v{CC + 2 + st}, v{CC + st}, v{T + 2 * st}" for st in range(2)]
        return ops

    rd_upto(AHEAD)
    for g in prep_x(0, True):
        g()
    gram_at = {t: ([t + 1] if t + 1 <= 18 else []) for t in range(20)}
    gram_at[14].append(19)
    sops = []
    for t in range(20):
        pend = []
        if t in MC.g1marks:
            mark(a, 2 + MC.g1marks.index(t), True)
        if t == 18:
            sops = stats_ops()
        for ft in range(7):
            n = 7 * t + ft
            rd_upto(n + AHEAD + 1)
            if ft in (3, 5) and len(gram_at[t]) > (ft - 3) // 2:
                pend = prep_x(gram_at[t][(ft - 3) // 2], False)
            for st in range(2):
                mfma(a, acc(ft, st), wreg(n), xr(t, st), None if t == 0 else acc(ft, st))
                for _ in range(3):
                    if sops and (ft, st) != (0, 0):
                        a(sops.pop(0))
            for g in pend:
                g()
            pend = []
            if ft < MC.per_step * 2 and ft % 2 == 0 or (MC.per_step > 4 and ft % 2 == 1 and ft // 2 < MC.per_step - 4):
                issue(1)
        while sops:
            a(sops.pop(0))
    mark(a, 2)

    if not final:
        queue.extend((p_load(t, p), 0) for t, p in late[10:])
    for ft in range(7):
        Zs = Z + 8 * (ft & 1)
        prs = [(acc(ft, st) + h, Zs + st * 4 + h, st) for st in range(2) for h in (0, 2)]

        def sel(st, pos):
            lo = [0, 0, 0]
            hi = [1, 1, 1]
            for k in pos:
                lo[k] = hi[k] = st
            return f"op_sel:[{lo[0]},{lo[1]},{lo[2]}] op_sel_hi:[{hi[0]},{hi[1]},{hi[2]}]"

        for x, z, st in prs:
            a(f"v_pk_mul_f32 {V(z, 2)}, {V(x, 2)}, {V(x, 2)}")
        for x, z, st in prs:
            a(f"v_pk_fma_f32 {V(z, 2)}, {V(z, 2)}, {V(CC + 2, 2)}, {V(CC, 2)} {sel(st, (1, 2))}")
        for x, z, st in prs:
            a(f"v_pk_mul_f32 {V(z, 2)}, {V(z, 2)}, {V(x, 2)}")
        if MC.gelu_loads > 0:
            issue(1)
        for k in range(8):
            a(f"v_exp_f32 v{Zs + k}, v{Zs + k}")
        for x, z, st in prs:
            a(f"v_pk_fma_f32 {V(z, 2)}, {V(z, 2)}, {V(CC + 4, 2)}, {V(CC + 4, 2)} {sel(st, (1, 2))}")
        if MC.gelu_loads > 1:
            issue(1)
        for k in range(8):
            a(f"v_rcp_f32 v{Zs + k}, v{Zs + k}")
        for x, z, st in prs:
            a(f"v_pk_mul_f32 {V(z, 2)}, {V(z, 2)}, {V(x, 2)}")
        for k in range(4):
            a(f"v_cvt_pk_bf16_f32 v{Zs + k}, v{Zs + 2 * k}, v{Zs + 2 * k + 1}")
        a(f"s_mov_b32 s{sOQ}, {ft * 2 * H_STR}")
        a(f"v_permlane16_swap_b32 v{Zs}, v{Zs + 2}")
        a(f"v_permlane16_swap_b32 v{Zs + 1}, v{Zs + 3}")
        a(f"buffer_store_dwordx4 {V(Zs, 4)}, v{vo}, s[{SRD3}:{SRD3 + 3}], s{sOQ} offen sc1", tag="h")
        if MC.gelu_loads > 2 and ft < 6:
            issue(MC.gelu_loads - 2)
    mark(a, 3)
    queue.extend((p_load(t, p), 0) for t, p in late[:10])

    vq, vred, vo2, vs, vone, vpl, vfl = 216, 220, 4, 9, 13, 14, 8
    RES, BIA, TMP = 224, 234, 244

    def signal(tag, off):
        a.wait_tag(tag)
        a("s_barrier")
        a(f"buffer_store_dword v{vone}, v{vpl}, s[{SRDF}:{SRDF + 3}], s{sFL} offen offset:{off} sc1")

    if final:
        need(("e", 14))
    a(f"v_mov_b32 v{vone}, 1")
    a(f"v_lshlrev_b32 v{vpl}, 20, v0")
    a(f"s_lshl_b32 s{sA}, s{sMM}, 2")
    a(f"v_add_u32 v{vpl}, s{sA}, v{vpl}")
    issue(MC.after_store)
    signal("h", 0)
    mark(a, 4)

    if final:
        for st in range(2):
            a(f"v_accvgpr_read_b32 v{xr(19, st)}, {R(vdc + st)}")
        a.wait_tag("e")
        a("s_barrier")
        srd_ws(a, SRD4, "X3", XP_SIZE)
        a(f"s_mul_i32 s{sA}, s{sMM}, 5")
        a(f"s_lshr_b32 s{sA}, s{sA}, 1")
        a(f"s_mul_i32 s{sA}, s{sA}, {4 * XP_STR}")
        a(f"s_lshl_b32 s{sB}, s{sC}, 3")
        a(f"s_add_u32 s{sA}, s{sA}, s{sB}")
        a(f"v_lshlrev_b32 v{ve}, 14, v{vG}")
        a(f"v_lshl_add_u32 v{ve}, v{vI}, 4, v{ve}")
        a(f"v_add_u32 v{ve}, s{sA}, v{ve}")
        nr = 0
        for n in range(60):
            t, et = divmod(n, 3)
            while nr < min(60, n + AHEAD + 1):
                lds_read(wreg(nr), nr * 1024)
                nr += 1
            for st in range(2):
                d = EACC + (et * 2 + st) * 4
                mfma(a, d, wreg(n), xr(t, st), None if t == 0 else d)
            if n % 3 == 1:
                issue(1)
        queue.extend((p_load(t, p), 0) for t, p in late[10:])
        for et in range(3):
            d = EACC + et * 8
            for k in range(4):
                a(f"v_cvt_pk_bf16_f32 v{d + k}, v{d + 2 * k}, v{d + 2 * k + 1}")
            a(f"s_mov_b32 s{sOQ}, {et * 4 * XP_STR}")
            a(f"buffer_store_dwordx4 {V(d, 4)}, v{ve}, s[{SRD4}:{SRD4 + 3}], s{sOQ} offen sc1", tag="x3")

    a(f"s_bfe_u32 s{sA}, s{sMM}, 0x10002")
    a(f"s_lshl_b32 s{sA}, s{sA}, 6")
    a(f"s_lshl_b32 s{sC}, s{sRB}, 7")
    a(f"s_add_u32 s{sC}, s{sC}, s{sA}")
    a(f"v_lshlrev_b32 v{vfl}, 2, v{vI}")

    def poll_issue(reg, off):
        a(f"buffer_load_dword v{reg}, v{vfl}, s[{SRDF}:{SRDF + 3}], s{sFL} offen offset:{off} sc1")

    def poll_check(reg, off, lab):
        a(f"v_cmp_ne_u32 vcc, 1, v{reg}")
        a(f"s_mov_b32 s{sCNT}, 0")
        a(f"s_cbranch_vccnz {lab}_spin")
        a.label(f"{lab}_ok", keep=True)

        def spin():
            a.label(f"{lab}_spin")
            poll_issue(reg, off)
            a(f"s_add_u32 s{sCNT}, s{sCNT}, 1")
            a(f"s_cmp_ge_u32 s{sCNT}, {SPIN_MAX}")
            a("s_waitcnt vmcnt(0)")
            a(f"s_cbranch_scc1 {lab}_ok")
            a(f"v_cmp_ne_u32 vcc, 1, v{reg}")
            a(f"s_cbranch_vccnz {lab}_spin")
            a(f"s_branch {lab}_ok")
        a.tail.append(spin)

    issue(max(0, len(queue) - MC.poll_lead))
    poll_issue(vmk, 0)
    a(f"v_mul_u32_u24 v{vq}, {H_STR}, v{vG}")
    a(f"v_lshl_add_u32 v{vq}, v{vI}, 4, v{vq}")
    a(f"s_mul_i32 s{sA}, s{sW}, {14 * 4 * H_STR}")
    a(f"s_lshl_b32 s{sB}, s{sC}, 4")
    a(f"s_add_u32 s{sA}, s{sA}, s{sB}")
    for ql in (3, 2, 1, 0):
        a(f"s_xor_b32 s{sB}, s{sW}, {ql}")
        a(f"s_lshl_b32 s{sB}, s{sB}, 8")
        a(f"s_add_u32 s{sB}, s{sB}, s{sA}")
        a(f"v_add_u32 v{vq + ql}, s{sB}, v{vq}")
    issue(1000)
    if final:
        signal("x3", 2048)
    a(f"s_lshl_b32 s{sE}, s{sW}, 4")
    a(f"s_add_u32 s{sE}, s{sE}, s{sC}")
    a(f"s_mul_i32 s{sA}, s{sD}, {20 * XP_STR}")
    a(f"s_lshl_b32 s{sB}, s{sE}, 3")
    a(f"s_add_u32 s{sA}, s{sA}, s{sB}")
    a(f"v_lshlrev_b32 v{vo2}, 14, v{vG}")
    a(f"v_lshl_add_u32 v{vo2}, v{vI}, 3, v{vo2}")
    a(f"v_add_u32 v{vo2}, s{sA}, v{vo2}")
    vw3 = [vred, vred + 1, vred + 2]
    vr = vred + 3
    for ql in (1, 2, 3):
        a(f"s_xor_b32 s{sA}, s{sW}, {ql}")
        a(f"s_mul_i32 s{sA}, s{sA}, 15360")
        a(f"s_add_u32 s{sA}, s{sA}, {(ql - 1) * 5120}")
        a(f"v_add_u32 v{vw3[ql - 1]}, s{sA}, v{vl0}")
    a(f"s_mul_i32 s{sA}, s{sW}, 15360")
    a(f"v_add_u32 v{vr}, s{sA}, v{vl0}")
    poll_check(vmk, 0, f"{name}_pa")
    mark(a, 5)

    qs = {"t": None}

    def q_load(t, q):
        if qs["t"] != t:
            a(f"s_mov_b32 s{sOQ}, {t * 4 * H_STR}")
            qs["t"] = t
        a(f"buffer_load_dwordx4 {R(qreg(t, q), 4)}, v{vq + q}, s[{SRD3}:{SRD3 + 3}], s{sOQ} offen{MC.qflags}")

    for t in range(MC.qdepth):
        for q in range(4):
            q_load(t, q)

    vout, vdcm = 11, 12
    if final:
        srd(a, SRD0, P_OUT, 0, SEQ * DM * 2)
        srd(a, SRD1, P_B2, 0, DM * 2)
        a(f"s_mul_i32 s{sA}, s{sD}, 160")
        a(f"v_lshlrev_b32 v{vs}, 3, v{vG}")
        a(f"v_add_u32 v{vs}, s{sA}, v{vs}")
        if Cfg.rho:
            a(f"s_bfe_u32 s{sA}, s{sE}, 0x10004")
            a(f"s_lshl_b32 s{sA}, s{sA}, 3")
            a(f"s_lshr_b32 s{sB}, s{sE}, 9")
            a(f"s_lshl4_add_u32 s{sA}, s{sB}, s{sA}")
            a(f"s_bfe_u32 s{sB}, s{sE}, 0x20005")
            a(f"s_lshl_b32 s{sB}, s{sB}, 8")
            a(f"s_add_u32 s{sA}, s{sA}, s{sB}")
            a(f"s_and_b32 s{sB}, s{sE}, 128")
            a(f"s_add_u32 s{sA}, s{sA}, s{sB}")
            a(f"s_and_b32 s{sB}, s{sE}, 256")
            a(f"s_lshl2_add_u32 s{sA}, s{sB}, s{sA}")
            a(f"v_and_b32 v{vout}, 1, v{vI}")
            a(f"v_lshlrev_b32 v{vout}, 6, v{vout}")
            a(f"v_lshrrev_b32 v{vdcm}, 1, v{vI}")
            a(f"v_add3_u32 v{vout}, v{vout}, v{vdcm}, s{sA}")
            a(f"v_mul_u32_u24 v{vout}, 1280, v{vout}")
            a(f"v_add_u32 v{vout}, v{vout}, v{vs}")
        else:
            a(f"v_mul_u32_u24 v{vout}, 1280, v{vI}")
            a(f"v_add_u32 v{vout}, v{vout}, v{vs}")
            a(f"s_mul_i32 s{sA}, s{sE}, 1280")
            a(f"v_add_u32 v{vout}, s{sA}, v{vout}")
    else:
        srd_ws(a, SRD0, "XP2", XP_SIZE)
        srd_ws(a, SRD4, "SS2", SS_SIZE)
        if Cfg.rho:
            a(f"s_lshr_b32 s{sA}, s{sE}, 8")
            a(f"s_lshl_b32 s{sA}, s{sA}, 10")
            a(f"s_and_b32 s{sB}, s{sE}, 127")
            a(f"s_lshl3_add_u32 s{sA}, s{sB}, s{sA}")
            a(f"s_bfe_u32 s{sB}, s{sE}, 0x10007")
            a(f"s_lshl3_add_u32 s{sA}, s{sB}, s{sA}")
            a(f"v_lshrrev_b32 v{vs}, 1, v{vI}")
            a(f"v_lshlrev_b32 v{vs}, 4, v{vs}")
            a(f"v_and_b32 v{vdcm}, 1, v{vI}")
            a(f"v_lshl_add_u32 v{vs}, v{vdcm}, 2, v{vs}")
        else:
            a(f"s_lshl_b32 s{sA}, s{sW}, 3")
            a(f"s_lshr_b32 s{sB}, s{sC}, 8")
            a(f"s_add_u32 s{sA}, s{sA}, s{sB}")
            a(f"s_lshl_b32 s{sA}, s{sA}, 8")
            a(f"s_bfe_u32 s{sB}, s{sC}, 0x20006")
            a(f"s_lshl2_add_u32 s{sA}, s{sB}, s{sA}")
            a(f"v_lshlrev_b32 v{vs}, 4, v{vI}")
        a(f"v_add_u32 v{vs}, s{sA}, v{vs}")
        a(f"v_lshl_add_u32 v{vs}, v{vG}, 20, v{vs}")
        a(f"s_cmp_eq_u32 s{sW}, 3")
        a(f"s_cselect_b32 s{sA}, 0x3f80, 0")
        a(f"v_mov_b32 v{vone}, s{sA}")
        a(f"v_cmp_eq_u32 vcc, 0, v{vG}")
        a(f"v_cndmask_b32 v{vone}, 0, v{vone}, vcc")
        a(f"s_cmp_eq_u32 s{sD}, 0")
        a(f"s_cselect_b32 s{sA}, 0, 1.0")
        a(f"v_mov_b32 v{vdcm}, s{sA}")
        a(f"v_cndmask_b32 v{vdcm}, 1.0, v{vdcm}, vcc")

    def accr(p, q):
        return ACC2 + (q * 5 + p) * 4

    def wr(q, p):
        a(f"ds_write_b128 v{vw3[q - 1]}, {R(accr(p, q), 4)} offset:{p * 1024}")

    def res_loads(srd_, flags):
        for p in range(5):
            a(f"s_mov_b32 s{sF}, {p * 4 * XP_STR}")
            a(f"buffer_load_dwordx2 {V(RES + 2 * p, 2)}, v{vo2}, s[{srd_}:{srd_ + 3}], s{sF} offen{flags}")

    NS = 14
    for t in range(NS):
        last = t == NS - 1
        if t == 1:
            mark(a, 6)
        if final and t == 4:
            poll_issue(vmk, 2048)
            for p in range(5):
                a(f"buffer_load_dwordx2 {V(BIA + 2 * p, 2)}, v{vs}, s[{SRD1}:{SRD1 + 3}], 0 offen offset:{p * 32}")
        if final and t == NS - MC.qdepth:
            poll_check(vmk, 2048, f"{name}_pb")
            res_loads(SRD4, " sc1")
        if not final and t == NS - MC.qdepth:
            res_loads(SRD1, "")
        if t == 12 and not final:
            for q in range(4):
                r = qreg(t, q)
                if r >= 256:
                    a(f"v_accvgpr_read_b32 v{TMP + q}, {R(r)}")
                    a(f"v_or_b32 v{TMP + q}, v{TMP + q}, v{vone}")
                    a(f"v_accvgpr_write_b32 {R(r)}, v{TMP + q}")
                else:
                    a(f"v_or_b32 v{r}, v{r}, v{vone}")
        qorder = (1, 2, 3, 0) if last else (0, 1, 2, 3)
        for n, q in enumerate(qorder):
            for p in range(5):
                mfma(a, accr(p, q), preg(t, p), qreg(t, q), None if t == 0 else accr(p, q))
                if last and n >= 2:
                    wr(qorder[n - 2], p)
            if t + MC.qdepth < NS:
                q_load(t + MC.qdepth, q)
        if last:
            for p in range(5):
                wr(3, p)
    mark(a, 7)
    a("s_waitcnt lgkmcnt(0)")
    a("s_barrier")
    mark(a, 8)
    for p in range(5):
        for s_ in range(3):
            a(f"ds_read_b128 {R(accr(p, s_ + 1), 4)}, v{vr} offset:{s_ * 5120 + p * 1024}")
    a(f"s_mov_b32 s{sK2}, 0xffff0000")
    E = 96
    for p in range(5):
        e = E + 8 * p
        for h in range(2):
            a(f"v_lshlrev_b32 v{e + 2 * h}, 16, v{RES + 2 * p + h}")
            a(f"v_and_b32 v{e + 2 * h + 1}, s{sK2}, v{RES + 2 * p + h}")
            if final:
                a(f"v_lshlrev_b32 v{e + 4 + 2 * h}, 16, v{BIA + 2 * p + h}")
                a(f"v_and_b32 v{e + 4 + 2 * h + 1}, s{sK2}, v{BIA + 2 * p + h}")
        for h in (0, 2):
            d = accr(p, 0) + h
            a(f"v_pk_add_f32 {V(d, 2)}, {V(d, 2)}, {V(e + h, 2)}")
            if final:
                a(f"v_pk_add_f32 {V(d, 2)}, {V(d, 2)}, {V(e + 4 + h, 2)}")
    if not final:
        a(f"v_mov_b32 v{TMP + 2}, 0")
        a(f"v_mov_b32 v{TMP + 3}, 0")
    for p in range(5):
        r = accr(p, 0)
        for h in (0, 2):
            a(f"v_pk_add_f32 {V(accr(p, 1) + h, 2)}, {V(accr(p, 1) + h, 2)}, {V(accr(p, 2) + h, 2)}")
            a(f"v_pk_add_f32 {V(r + h, 2)}, {V(r + h, 2)}, {V(accr(p, 3) + h, 2)}")
        for h in (0, 2):
            a(f"v_pk_add_f32 {V(r + h, 2)}, {V(r + h, 2)}, {V(accr(p, 1) + h, 2)}")
        a(f"v_cvt_pk_bf16_f32 v{r}, v{r}, v{r + 1}")
        a(f"v_cvt_pk_bf16_f32 v{r + 1}, v{r + 2}, v{r + 3}")
        if final:
            a(f"buffer_store_dwordx2 {V(r, 2)}, v{vout}, s[{SRD0}:{SRD0 + 3}], 0 offen offset:{p * 32}")
        else:
            a(f"s_mov_b32 s{sOP}, {p * 4 * XP_STR}")
            a(f"buffer_store_dwordx2 {V(r, 2)}, v{vo2}, s[{SRD0}:{SRD0 + 3}], s{sOP} offen")
            if p == 0:
                a(f"v_lshlrev_b32 v{TMP}, 16, v{r}")
                a(f"v_and_b32 v{TMP + 1}, s{sK2}, v{r}")
                a(f"v_mul_f32 v{TMP + 1}, v{TMP + 1}, v{vdcm}")
                a(f"v_mul_f32 v{TMP + 2}, v{TMP}, v{TMP}")
                a(f"v_fmac_f32 v{TMP + 2}, v{TMP + 1}, v{TMP + 1}")
            else:
                a(f"v_dot2c_f32_bf16 v{TMP + 2}, v{r}, v{r}")
            a(f"v_dot2c_f32_bf16 v{TMP + 3}, v{r + 1}, v{r + 1}")
    if not final:
        s = TMP + 2
        a(f"v_add_f32 v{s}, v{s}, v{s + 1}")
        for op in ("v_permlane32_swap_b32", "v_permlane16_swap_b32"):
            a(f"v_mov_b32 v{s + 1}, v{s}")
            a(f"{op} v{s}, v{s + 1}")
            a(f"v_add_f32 v{s}, v{s}, v{s + 1}")
        a(f"buffer_atomic_add_f32 v{s}, v{vs}, s[{SRD4}:{SRD4 + 3}], 0 offen")
    return 140 * 1024


def plan():
    return [
        ("p0_kernel", [(256, lambda a: role_xhat0(a, 4)), (80, role_wc), (64, role_stats)]),
        ("c1_kernel", [(320, lambda a: role_col(a, "XP0", "SS0", "XP1")), (216, lambda a: role_w1f(a, 4)),
                       (224, lambda a: role_w2f(a, 4, 112))]),
        ("m1_kernel", [(256, lambda a: role_mlp(a, False, "m1"))]),
        ("c2_kernel", [(320, lambda a: role_col(a, "XP2", "SS2", "XP3")), (135, role_w2t)]),
        ("m2_kernel", [(256, lambda a: role_mlp(a, True, "m2"))]),
    ]


if __name__ == "__main__":
    Cfg.dcbias = 1
    for opt in sys.argv[2:]:
        if opt == "stamp":
            Cfg.stamp = True
        elif opt == "clk":
            Cfg.stamp = Cfg.clk = True
        else:
            k, v = opt.split("=")
            tgt = MC if hasattr(MC, k) else Cfg
            setattr(tgt, k, eval(v))
    open(sys.argv[1], "w").write(generate(plan()))
```

```python
from gen import *
from gen import mark as gen_mark
from math import gcd

GELU_K0 = -2.0 * 0.7978845608028654 * 1.4426950408889634
EPS = 1e-5
SPIN_MAX = 1 << 16


class M2:
    na = 4
    look = 20
    rate_a = 3
    rate_a2 = 3
    rate_b = 1.5
    bars = (0, 1, 2, 3, 4, 6, 8, 10, 12, 14, 16, 18)
    gelu_loads = 3
    ev = ({"sa": ("b", 8), "ia": ("h", 5), "ca": ("h", 6), "sb": ("g", 2), "ib": ("g", 4), "cb": ("g", 6), "res": ("g", 9)},
          {"sa": ("b", 8), "ia": ("h", 5), "ca": ("c", 0), "sb": ("c", 8), "ib": ("g", 0), "cb": ("g", 3),
           "sx": ("g", 2), "ix": ("g", 6), "res": ("g", 9)})
    e1 = {}
    e2 = {}
    cb_burst = 4
    lead = 12
    g2_rate = 1.1
    rate_c = 1.5
    pre_g2 = 4
    mx = ""
    mw = ""
    mp = ""
    mq = " sc1"
    rowsplit = 0
    probe = 0
    h2 = 1
    dry = 0
    marks = ()


def role_mlp2(a, final, name):
    def mark(a, n):
        if not M2.marks or n == 1:
            gen_mark(a, n)

    ev = dict(M2.ev[final], **(M2.e2 if final else M2.e1))
    act = {}

    def fine(*key):
        if key in M2.marks:
            gen_mark(a, 2 + M2.marks.index(key))
        for k in ("sa", "sb", "sx", "ca", "cb", "res", "ia", "ib", "ix"):
            if ev.get(k) == key:
                act[k]()

    NA, NB = M2.na, 7 - M2.na
    src = "XP3" if final else "XP1"
    vx, vl0, vad, vx2, vp = 4, 5, 8, 14, 15
    X, ACC1, Z, vo, vmk, CC = 16, 176, 232, 248, 249, 250
    GR = Z
    vdc, ve = 256 + 248, 10
    WR, NW, AHEAD = 256, 12, 8
    ACC2, EACC = 96, 224
    DIAG = (4, 6, 30, 70)
    sRB, sMM, sFL, sCNT = 96, 97, 98, 99
    sSG, sHO, sHS = sK1, sK3, 100
    SRDF = SRD5
    vq, vred, vo2, vs, vone, vpl, vfl = 196, 200, 4, 9, 13, 14, 204
    SRDQ, sCQ = 8, 12
    RES, BIA, TMP = 224, 234, 244
    vout, vdcm = 11, 12

    first = {t0 + k for t0 in (0, 6, 20) for k in range(NA)} | {19 - k for k in range(NA)}
    ORDER = [s for s in range(14) if {2 * s, 2 * s + 1} <= first]
    NAS = len(ORDER)
    ORDER += [s for s in range(14) if s not in ORDER]
    QD = 7

    def preg(u, p):
        return {10: 176, 11: 256}.get(u, 256 + 48 + 20 * (u % 12)) + 4 * p

    def qreg(u, q):
        k = u % QD
        return {5: 208, 6: 256 + 20}.get(k, 16 + 16 * k) + 4 * q

    sst = {}

    done = set()
    sched = set()
    fifo = []

    def later(op, key=None, tag=None):
        fifo.append((op, key, tag))

    def pop():
        op, key, tag = fifo.pop(0)
        if callable(op):
            op()
        else:
            a(op, tag=tag)
        if key is not None:
            done.add(key)

    def flush():
        while fifo:
            pop()

    def mf(d, x, y, c, slots=2):
        mfma(a, d, x, y, c)
        for _ in range(slots):
            if fifo:
                pop()

    def soff(r, val):
        if sst.get(r) != val:
            later(f"s_mov_b32 s{r}, {val}")
            sst[r] = val

    def tile_addr(dst, nf, f0, stride, lane, sbase, tstep):
        per = nf // gcd(4, nf)
        span = 4 * per // nf
        for jj in range(per):
            a(f"s_add_u32 s{sA}, s{sW}, {4 * jj + f0}")
            if span > 1:
                a(f"s_add_u32 s{sK0}, s{sW}, {4 * jj}")
                a(f"s_mul_i32 s{sK0}, s{sK0}, {256 // nf + 1}")
                a(f"s_lshr_b32 s{sK0}, s{sK0}, 8")
                a(f"s_mul_i32 s{sF}, s{sK0}, {nf}")
                a(f"s_sub_u32 s{sA}, s{sA}, s{sF}")
            a(f"s_mul_i32 s{sA}, s{sA}, {tstep}")
            a(f"s_add_u32 s{sA}, s{sA}, s{sbase}")
            if span > 1:
                a(f"s_sub_u32 s{sK0}, {span - 1}, s{sK0}")
                a(f"s_mul_i32 s{sK0}, s{sK0}, {4 * stride}")
                a(f"s_add_u32 s{sA}, s{sA}, s{sK0}")
            a(f"v_add_u32 v{dst + jj}, s{sA}, v{lane}")
        sst.pop(sF, None)
        return per, span

    a(f"s_and_b32 s{sA}, s{sT}, 7")
    a(f"s_lshr_b32 s{sB}, s{sA}, 1")
    a(f"s_lshl_b32 s{sB}, s{sB}, 2")
    a(f"s_bfe_u32 s{sRB}, s{sT}, 0x20003")
    a(f"s_add_u32 s{sRB}, s{sRB}, s{sB}")
    a(f"s_and_b32 s{sA}, s{sA}, 1")
    a(f"s_lshl_b32 s{sA}, s{sA}, 3")
    a(f"s_lshr_b32 s{sMM}, s{sT}, 5")
    a(f"s_add_u32 s{sMM}, s{sMM}, s{sA}")
    a(f"s_mul_i32 s{sD}, s{sMM}, 27")
    a(f"s_lshr_b32 s{sD}, s{sD}, 2")
    a(f"s_lshl_b32 s{sC}, s{sRB}, 7")
    a(f"s_lshl_b32 s{sA}, s{sW}, 5")
    a(f"s_add_u32 s{sC}, s{sC}, s{sA}")
    a(f"v_lshlrev_b32 v{vx}, 15, v{vG}")
    a(f"v_lshl_add_u32 v{vx}, v{vI}, 4, v{vx}")
    a(f"s_lshl_b32 s{sA}, s{sC}, 3")
    a(f"v_add_u32 v{vx}, s{sA}, v{vx}")
    a(f"v_add_u32 v{vx2}, {XP_STR}, v{vx}")
    a(f"v_mul_u32_u24 v{vl0}, {FF}, v{vG}")
    a(f"v_add_lshl_u32 v{vl0}, v{vl0}, v{vI}, 4")
    a(f"s_and_b32 s{sA}, s{sMM}, 3")
    a(f"s_cmp_eq_u32 s{sA}, 2")
    a(f"s_cselect_b32 s{sHO}, 6, 0")
    a(f"s_cselect_b32 s{sHS}, -1, 1")
    a(f"s_lshl_b32 s{sSG}, s{sHS}, 8")
    a(f"s_add_u32 s{sB}, s{sD}, s{sHO}")
    a(f"s_lshl_b32 s{sB}, s{sB}, 8")
    geo = {"a": (vad,) + tile_addr(vad, NA, 0, W1F_STR, vl0, sB, f"s{sSG}")}
    vb = vad + geo["a"][1]
    geo["e"] = (vad, 3, 4)
    a(f"s_lshl_b32 s{sE}, s{sW}, 10")
    a("s_waitcnt lgkmcnt(0)")
    srd_ws(a, SRD0, "W1F", W1F_SIZE)
    srd_ws(a, SRD1, src, XP_SIZE)
    LBASE = {"a": 0, "b": 20 * NA * 1024, "e": 0}

    def xr(t, st):
        return X + t * 8 + st * 4

    def acc(ft, st):
        return ACC1 + (ft * 2 + st) * 4

    queue = []

    def w_load(kind, j):
        def f(key):
            reg, per, span = geo[kind]
            c, jj = divmod(j, per)
            srd_, stride = (SRD4, KB_STR) if kind == "e" else (SRD0, W1F_STR)
            later(f"s_add_u32 m0, s{sE}, {LBASE[kind] + j * 4096}")
            soff(sOP, (20 - span * (c + 1)) * 4 * stride)
            later(f"buffer_load_dwordx4 v{reg + jj}, s[{srd_}:{srd_ + 3}], s{sOP} offen{M2.mw} lds", key, f"{kind}{j}")
        return (kind, j), f

    def x_load(t, h):
        def f(key):
            soff(sOQ, 8 * (19 - t) * XP_STR)
            later(f"buffer_load_dwordx4 {V(xr(t, h), 4)}, v{vx2 if h else vx}, s[{SRD1}:{SRD1 + 3}], s{sOQ} offen{M2.mx}", key)
        return ("x", t, h), f

    def p_load(u, p):
        def f(key):
            soff(sF, ORDER[u] * 4 * KB_STR)
            later(f"buffer_load_dwordx4 {R(preg(u, p), 4)}, v{vp}, s[{SRD2}:{SRD2 + 3}], s{sF} offen offset:{p * 256}{M2.mp}", key)
        return ("p", u, p), f

    def q_load(u, q):
        def f(key):
            soff(sOQ, ORDER[u] * 4 * H_STR)
            later(f"buffer_load_dwordx4 {R(qreg(u, q), 4)}, v{vq + q}, s[{SRDQ}:{SRDQ + 3}], s{sOQ} offen{M2.mq}", key)
        return ("q", u, q), f

    def esetup():
        a(f"s_mul_i32 s{sB}, s{sMM}, 5")
        a(f"s_lshr_b32 s{sB}, s{sB}, 1")
        a(f"s_lshl_b32 s{sB}, s{sB}, 8")
        a(f"v_mul_u32_u24 v{vad + 3}, {DM}, v{vG}")
        a(f"v_add_lshl_u32 v{vad + 3}, v{vad + 3}, v{vI}, 4")
        tile_addr(vad, 3, 0, KB_STR, vad + 3, sB, 256)

    def push(item, *gates):
        queue.append((item[0], item[1], gates))

    credit = [0.0]
    order = []

    def issue(n):
        credit[0] += n
        while credit[0] >= 1:
            k = next((k for k, it in enumerate(queue) if all(g in done for g in it[2])), None)
            if k is None:
                credit[0] = 0
                return
            key, f, _ = queue.pop(k)
            f(key)
            sched.add(key)
            order.append(key)
            credit[0] -= 1

    def now(n):
        issue(n)
        flush()

    def plan(key):
        while key not in sched:
            n0 = len(queue)
            credit[0] = 0
            issue(1)
            assert len(queue) < n0, key

    def need(key):
        if key[0] in "abexpq":
            plan(key)
        while key not in done:
            pop()

    xorder = list(range(13)) + [19] + list(range(13, 19))
    jn = 0
    for t in range(20):
        if t == 0:
            push(x_load(0, 0))
            push(x_load(0, 1))
        while jn <= (NA * t + NA - 1) // 4:
            push(w_load("a", jn))
            jn += 1
        if t + 1 < 20:
            push(x_load(xorder[t + 1], 0))
            push(x_load(xorder[t + 1], 1))
    for j in range(5 * NB):
        push(w_load("b", j), "setup")
    if final:
        for j in range(15):
            push(w_load("e", j), "b0")

    def q_gates(u, q):
        g = ["pa" if u < NAS else "pb", "qa"]
        if u >= QD:
            g.append(("qfree", u - QD, q))
        else:
            g.append({5: ("gelu", 5), 6: ("xfree", 19)}.get(u, ("xfree", 2 * u + 1)))
        return g

    def p_gates(u):
        return ["setup"] + ([] if u < 10 else [("gelu", 2), ("xfree", 19), ("qfree", 0, 3), ("qfree", 1, 3)][u - 10:u - 9])

    for u in range(14):
        for p in range(5):
            push(p_load(u, p), *p_gates(u))
        for q in range(4):
            push(q_load(u, q), *q_gates(u, q))

    now(M2.look)

    geo["b"] = (vb,) + tile_addr(vb, NB, NA, W1F_STR, vl0, sB, f"s{sSG}")
    assert vb + geo["b"][1] <= vx2
    a(f"v_lshlrev_b32 v{vl0}, 4, v{vL}")
    a(f"s_mul_i32 s{sHO}, s{sHO}, {2 * H_STR}")
    a(f"s_mul_i32 s{sHS}, s{sHS}, {2 * H_STR}")
    a(f"v_add_u32 v{vl0 + 1}, 0x10000, v{vl0}")
    a(f"v_add_u32 v{vl0 + 2}, 0x20000, v{vl0}")
    srd_ws(a, SRD2, "W2T" if final else "WA2", 0)
    a(f"s_add_u32 s{sA}, s{sW}, 1")
    a(f"s_mul_i32 s{SRD2 + 2}, s{sA}, {54 * KB_STR}")
    if not final:
        a(f"s_cmp_eq_u32 s{sW}, 3")
        a(f"s_cselect_b32 s{SRD2 + 2}, {218 * KB_STR}, s{SRD2 + 2}")
    srd_ws(a, SRD3, "H2" if final and M2.h2 else "H", H_SIZE)
    srd_ws(a, SRDF, "FLAG", FLAG_SIZE)
    if final:
        srd_table(a, SRD4, "ft2")
    a(f"v_lshrrev_b32 v{vo}, 1, v{vG}")
    a(f"v_mul_u32_u24 v{vo}, {H_STR}, v{vo}")
    a(f"v_lshl_add_u32 v{vo}, v{vI}, 5, v{vo}")
    a(f"v_and_b32 v{vmk}, 1, v{vG}")
    a(f"v_lshl_add_u32 v{vo}, v{vmk}, 4, v{vo}")
    a(f"s_mul_i32 s{sA}, s{sD}, {2 * H_STR}")
    a(f"s_lshl_b32 s{sB}, s{sC}, 4")
    a(f"s_add_u32 s{sA}, s{sA}, s{sB}")
    a(f"v_add_u32 v{vo}, s{sA}, v{vo}")
    a(f"v_cmp_eq_u32 vcc, 0, v{vG}")
    a(f"v_mov_b32 v{vmk}, 0xffff0000")
    a(f"v_cndmask_b32 v{vmk}, 0, v{vmk}, vcc")
    if M2.rowsplit:
        a(f"s_and_b32 s{sD}, s{sMM}, 7")
    else:
        a(f"s_lshr_b32 s{sA}, s{sMM}, 3")
        a(f"s_lshl_b32 s{sA}, s{sA}, 2")
        a(f"s_and_b32 s{sD}, s{sMM}, 3")
        a(f"s_add_u32 s{sD}, s{sD}, s{sA}")
    a(f"v_mul_u32_u24 v{vp}, {DM}, v{vG}")
    a(f"v_add_lshl_u32 v{vp}, v{vp}, v{vI}, 4")
    a(f"s_mul_i32 s{sA}, s{sD}, 1280")
    a(f"s_mul_i32 s{sB}, s{sW}, {54 * KB_STR}")
    a(f"s_add_u32 s{sA}, s{sA}, s{sB}")
    a(f"v_add_u32 v{vp}, s{sA}, v{vp}")
    for r in range(4):
        m = 0x1000010000100001 << r
        a(f"s_mov_b32 s{DIAG[r]}, {m & 0xffffffff:#x}")
        a(f"s_mov_b32 s{DIAG[r] + 1}, {m >> 32:#x}")
    a(f"s_lshl_b32 s{sFL}, s{sRB}, 7")
    a(f"s_add_u32 s{sFL}, s{sFL}, {2048 if final else 0}")
    a(f"s_bfe_u32 s{sA}, s{sMM}, {0x10003 if M2.rowsplit else 0x10002}")
    a(f"s_lshl_b32 s{sA}, s{sA}, 6")
    a(f"s_lshl_b32 s{sCQ}, s{sRB}, 7")
    a(f"s_add_u32 s{sCQ}, s{sCQ}, s{sA}")
    a(f"s_mov_b64 s[{SRDQ}:{SRDQ + 1}], s[{SRD3}:{SRD3 + 1}]")
    a(f"s_mul_i32 s{sA}, s{sW}, {54 * H_STR}")
    a(f"s_add_u32 s{SRDQ + 2}, s{sA}, {54 * H_STR}")
    a(f"s_mov_b32 s{SRDQ + 3}, 0x20000")
    a(f"s_lshl4_add_u32 s{sA}, s{sCQ}, s{sA}")
    for ql in range(4):
        a(f"s_xor_b32 s{sB}, s{sW}, {ql}")
        a(f"s_lshl_b32 s{sB}, s{sB}, 8")
        a(f"s_add_u32 s{sCQ + 1 + ql}, s{sB}, s{sA}")
    done.add("setup")
    mark(a, 1)

    def q_addr():
        later(f"v_mul_u32_u24 v{vq}, {H_STR}, v{vG}")
        later(f"v_lshl_add_u32 v{vq}, v{vI}, 4, v{vq}")
        for ql in (3, 2, 1, 0):
            later(f"v_add_u32 v{vq + ql}, s{sCQ + 1 + ql}, v{vq}")
        later(f"v_and_b32 v{vfl}, 3, v{vI}")
        later(f"s_lshl_b32 s{sA}, s{sW}, 4")
        later(f"v_lshl_add_u32 v{vfl}, v{vfl}, 2, s{sA}")
        later(f"v_lshlrev_b32 v{vpl}, 20, v0")
        later(f"s_lshl_b32 s{sA}, s{sMM}, 2")
        later(f"v_add_u32 v{vpl}, s{sA}, v{vpl}", "qa")

    if M2.dry:
        q_addr()
        done.update({("gelu", 2), ("xfree", 19)})
        for n, cnt in enumerate((40 - M2.look, 20, 15, 30, 30)):
            now(cnt)
            gen_mark(a, 2 + n)
        done.update({"pa", "pb", ("gelu", 5)} | {("xfree", t) for t in range(20)} | {("qfree", u, q) for u in range(14) for q in range(4)})
        for n, cnt in enumerate((22, 22, 22)):
            now(cnt)
            gen_mark(a, 7 + n)
        return 140 * 1024

    seq = [("a", n) for n in range(20 * NA)] + [("b", n) for n in range(20 * NB)]
    if final:
        seq += [("e", n) for n in range(60)]
    START = {"a": 0, "b": 20 * NA, "e": 140}
    bars = list(M2.bars) + [20]
    rd_ = {"n": 0}

    def wreg(n):
        return WR + (n % NW) * 4

    def rd_upto(hi):
        while rd_["n"] < min(hi, len(seq)):
            kind, n = seq[rd_["n"]]
            if kind == "a" and n % NA == 0 and n // NA in bars:
                j = (NA * bars[bars.index(n // NA) + 1] - 1) // 4
                plan(("a", j))
                later(lambda j=j: a.wait_tag(f"a{j}"))
                later("s_barrier")
            if kind != "a" and kind + "0" not in done:
                return
            off = LBASE[kind] + n * 1024
            later(f"ds_read_b128 {R(wreg(rd_['n']), 4)}, v{vl0 + (off >> 16)} offset:{off & 0xffff}", ("rd", rd_["n"]))
            rd_["n"] += 1

    def frag(n, last):
        rd_upto(n + AHEAD + 1)
        if n % 2 == 0:
            need(("rd", n + 1))
            a.wait_regs(R(wreg(n), 4), R(wreg(n + 1), 4))
        return 2 - n % 2

    def open_round(kind):
        j = (5 * NB if kind == "b" else 15) - 1
        need((kind, j))
        flush()
        a.wait_tag(f"{kind}{j}")
        a("s_barrier")
        if kind == "b" and final:
            esetup()
        done.add(kind + "0")
        rd_upto(START[kind] + AHEAD)
        flush()

    def prep_x(t):
        plan(("x", t, 1))
        ops = [f"v_swap_b32 v{xr(t, 0) + 2}, v{xr(t, 1)}", f"v_swap_b32 v{xr(t, 0) + 3}, v{xr(t, 1) + 1}"]
        if t == 19:
            for st in range(2):
                if final:
                    ops.append(f"v_accvgpr_write_b32 {R(vdc + st)}, v{xr(t, st)}")
                ops.append(f"v_bfi_b32 v{xr(t, st)}, v{vmk}, 0, v{xr(t, st)}")
        for op in ops[:-1]:
            later(op)
        later(ops[-1], ("sw", t))

    def gram(t, slots):
        need(("sw", t))
        for st in range(2):
            mf(GR + 4 * st, xr(t, st), xr(t, st), None if t == 0 else GR + 4 * st, slots if st else 2)

    T = Z + 8

    def stats_ops():
        ops = []
        for r in range(4):
            for st in range(2):
                prev = "0" if r == 0 else f"v{T + 2 * st}"
                ops.append(f"v_cndmask_b32_e64 v{T + 2 * st}, {prev}, v{GR + 4 * st + r}, s[{DIAG[r]}:{DIAG[r] + 1}]")
        for op in ("v_permlane32_swap_b32", "v_permlane16_swap_b32"):
            ops += [f"v_mov_b32 v{T + 2 * st + 1}, v{T + 2 * st}" for st in range(2)]
            ops += [f"{op} v{T + 2 * st}, v{T + 2 * st + 1}" for st in range(2)]
            ops += [f"v_add_f32 v{T + 2 * st}, v{T + 2 * st}, v{T + 2 * st + 1}" for st in range(2)]
        ops.append(f"v_mov_b32 v{T + 4}, {f32bits(EPS * EPS):#x}")
        ops += [f"v_fmamk_f32 v{T + 2 * st}, v{T + 2 * st}, {f32bits((1 + EPS) / DM):#x}, v{T + 4}" for st in range(2)]
        ops += [f"v_rsq_f32 v{T + 2 * st + 1}, v{T + 2 * st}" for st in range(2)]
        ops += [f"v_mul_f32 v{CC + 4 + st}, v{T + 2 * st}, v{T + 2 * st + 1}" for st in range(2)]
        ops += [f"v_cvt_pk_bf16_f32 v{T + 2 * st}, v{CC + 4 + st}, v{CC + 4 + st}" for st in range(2)]
        ops += [f"v_bfi_b32 v{xr(19, st)}, v{vmk}, v{T + 2 * st}, v{xr(19, st)}" for st in range(2)]
        late = [f"v_mul_f32 v{CC + st}, {f32bits(GELU_K0):#x}, v{T + 2 * st + 1}" for st in range(2)]
        late += [f"v_mul_f32 v{T + 2 * st}, v{T + 2 * st + 1}, v{T + 2 * st + 1}" for st in range(2)]
        late += [f"v_mul_f32 v{T + 2 * st}, {f32bits(0.044715):#x}, v{T + 2 * st}" for st in range(2)]
        late += [f"v_mul_f32 v{CC + 2 + st}, v{CC + st}, v{T + 2 * st}" for st in range(2)]
        return ops, late

    rd_upto(AHEAD)
    prep_x(0)
    gram(0, 2)
    gram_at = {t: ([t + 1] if t + 1 <= 18 else []) for t in range(20)}
    gram_at[14].append(19)
    for t in range(20):
        fine("a", t)
        for ft in range(NA):
            n = NA * t + ft
            sl = frag(n, False)
            if ft < len(gram_at[t]):
                prep_x(gram_at[t][ft])
            if t == 18 and ft == 0:
                sops, late = stats_ops()
                for op in sops[:-1]:
                    later(op)
                later(sops[-1], "stats")
            if t == 19 and ft == 0:
                need("stats")
                for op in late:
                    later(op)
            g = gram_at[t][ft - (NA - 2)] if NA - 2 <= ft < NA - 2 + len(gram_at[t]) else None
            issue((M2.rate_a if queue[0][0][0] in "xa" else M2.rate_a2) / NA)
            boost = 2 if t == 18 else 0
            for st in range(2):
                mf(acc(ft, st), wreg(n), xr(t, st), None if t == 0 else acc(ft, st),
                   (sl if st and g is None else 2) + boost)
            if g is not None:
                gram(g, sl)
    flush()
    mark(a, 2)

    def gelu(ft, tag):
        fine("h", ft)
        flush()
        Zs = Z + 8 * (ft & 1)
        prs = [(acc(ft, st) + h, Zs + st * 4 + h, st) for st in range(2) for h in (0, 2)]

        def sel(st):
            return f"op_sel:[0,{st},{st}] op_sel_hi:[1,{st},{st}]"

        for x, z, st in prs:
            a(f"v_pk_mul_f32 {V(z, 2)}, {V(x, 2)}, {V(x, 2)}")
        for x, z, st in prs:
            a(f"v_pk_fma_f32 {V(z, 2)}, {V(z, 2)}, {V(CC + 2, 2)}, {V(CC, 2)} {sel(st)}")
        for x, z, st in prs:
            a(f"v_pk_mul_f32 {V(z, 2)}, {V(z, 2)}, {V(x, 2)}")
        now(M2.gelu_loads / 3)
        for k in range(8):
            a(f"v_exp_f32 v{Zs + k}, v{Zs + k}")
        for x, z, st in prs:
            a(f"v_pk_fma_f32 {V(z, 2)}, {V(z, 2)}, {V(CC + 4, 2)}, {V(CC + 4, 2)} {sel(st)}")
        now(M2.gelu_loads / 3)
        for k in range(8):
            a(f"v_rcp_f32 v{Zs + k}, v{Zs + k}")
        now(M2.gelu_loads / 3)
        for x, z, st in prs:
            a(f"v_pk_mul_f32 {V(z, 2)}, {V(z, 2)}, {V(x, 2)}")
        for k in range(4):
            a(f"v_cvt_pk_bf16_f32 v{Zs + k}, v{Zs + 2 * k}, v{Zs + 2 * k + 1}")
        if ft:
            a(f"s_add_u32 s{sHO}, s{sHO}, s{sHS}")
        a(f"v_permlane16_swap_b32 v{Zs}, v{Zs + 2}")
        a(f"v_permlane16_swap_b32 v{Zs + 1}, v{Zs + 3}")
        a(f"buffer_store_dwordx4 {V(Zs, 4)}, v{vo}, s[{SRD3}:{SRD3 + 3}], s{sHO} offen sc1", tag=tag)
        done.add(("gelu", ft))

    def signal(tag, off, val):
        later(f"v_mov_b32 v{vone}, {val}")
        later(lambda: a.wait_tag(tag))
        later("s_barrier")
        later(f"buffer_store_dword v{vone}, v{vpl}, s[{SRDF}:{SRDF + 3}], s{sFL} offen offset:{off} sc1")

    def poll_text(off):
        return f"buffer_load_dword v{vmk}, v{vfl}, s[{SRDF}:{SRDF + 3}], s{sFL} offen offset:{off} sc1"

    def poll_issue(off, key):
        later(poll_text(off), ("i", key))

    def poll_check(off, val, key):
        lab = f"{name}_{key}"
        need(("i", key))
        a(f"v_cmp_gt_u32 vcc, {val}, v{vmk}")
        a(f"s_mov_b32 s{sCNT}, 0")
        a(f"s_cbranch_vccnz {lab}_spin")
        a.label(f"{lab}_ok", keep=True)

        def spin():
            a.label(f"{lab}_spin")
            a(poll_text(off))
            a(f"s_add_u32 s{sCNT}, s{sCNT}, 1")
            a(f"s_cmp_ge_u32 s{sCNT}, {SPIN_MAX}")
            a("s_waitcnt vmcnt(0)")
            a(f"s_cbranch_scc1 {lab}_ok")
            a(f"v_cmp_gt_u32 vcc, {val}, v{vmk}")
            a(f"s_cbranch_vccnz {lab}_spin")
            a(f"s_branch {lab}_ok")
        a.tail.append(spin)
        done.add(key)

    def res_loads(srd_, flags):
        for p in range(5):
            soff(sOP, p * 4 * XP_STR)
            later(f"buffer_load_dwordx2 {V(RES + 2 * p, 2)}, v{vo2}, s[{srd_}:{srd_ + 3}], s{sOP} offen{flags}")

    def check_b():
        poll_check(0, 2, "pb")
        issue(M2.cb_burst)

    def issue_x():
        assert "pb" in done
        later(f"v_and_b32 v{vfl}, 1, v{vI}")
        later(f"s_lshl_b32 s{sA}, s{sD}, 3")
        later(f"v_lshl_add_u32 v{vfl}, v{vfl}, 2, s{sA}")
        poll_issue(2048, "px")
        for p in range(5):
            later(f"buffer_load_dwordx2 {V(BIA + 2 * p, 2)}, v{vs}, s[{SRD1}:{SRD1 + 3}], 0 offen offset:{p * 32}")

    def res():
        if final:
            poll_check(2048, 1, "px")
            res_loads(SRD4, " sc1")
        else:
            res_loads(SRD1, "")

    act.update(sa=lambda: signal("ha", 0, 1), sb=lambda: signal("hb", 0, 2), sx=lambda: signal("x3", 2048, 1),
               ia=lambda: poll_issue(0, "pa"), ca=lambda: poll_check(0, 1, "pa"),
               ib=lambda: poll_issue(0, "pb"), cb=check_b, ix=issue_x, res=res)

    for ft in range(NA):
        if ft == NA - 1:
            open_round("b")
        gelu(ft, "ha")
    mark(a, 3)

    q_addr()
    for t in range(20):
        fine("b", t)
        for k in range(NB):
            n = START["b"] + NB * t + k
            sl = frag(n, False)
            issue(M2.rate_b / NB)
            for st in range(2):
                mf(acc(NA + k, st), wreg(n), xr(t, st), None if t == 0 else acc(NA + k, st), sl if st else 2)
        if not final:
            done.add(("xfree", t))
    flush()
    mark(a, 4)
    for ft in range(NA, 7):
        if final and ft == 6:
            open_round("e")
        gelu(ft, "hb")
    mark(a, 5)

    if final:
        a(f"s_mul_i32 s{sA}, s{sMM}, 5")
        a(f"s_lshr_b32 s{sA}, s{sA}, 1")
        a(f"s_mul_i32 s{sA}, s{sA}, {4 * XP_STR}")
        a(f"s_lshl_b32 s{sB}, s{sC}, 3")
        a(f"s_add_u32 s{sA}, s{sA}, s{sB}")
        a(f"v_lshlrev_b32 v{ve}, 14, v{vG}")
        a(f"v_lshl_add_u32 v{ve}, v{vI}, 4, v{ve}")
        a(f"v_add_u32 v{ve}, s{sA}, v{ve}")
        for st in range(2):
            a(f"v_accvgpr_read_b32 v{xr(19, st)}, {R(vdc + st)}")
        srd_ws(a, SRD4, "X3", XP_SIZE)

    def out_setup():
        a(f"s_lshl_b32 s{sE}, s{sW}, 4")
        a(f"s_add_u32 s{sE}, s{sE}, s{sCQ}")
        a(f"s_mul_i32 s{sA}, s{sD}, {20 * XP_STR}")
        a(f"s_lshl_b32 s{sB}, s{sE}, 3")
        a(f"s_add_u32 s{sA}, s{sA}, s{sB}")
        a(f"v_lshlrev_b32 v{vo2}, 14, v{vG}")
        a(f"v_lshl_add_u32 v{vo2}, v{vI}, 3, v{vo2}")
        a(f"v_add_u32 v{vo2}, s{sA}, v{vo2}")
        for ql in (1, 2, 3):
            a(f"s_xor_b32 s{sA}, s{sW}, {ql}")
            a(f"s_mul_i32 s{sA}, s{sA}, 15360")
            a(f"s_add_u32 s{sA}, s{sA}, {(ql - 1) * 5120}")
            a(f"v_add_u32 v{vred + ql - 1}, s{sA}, v{vl0}")
        a(f"s_mul_i32 s{sA}, s{sW}, 15360")
        a(f"v_add_u32 v{vred + 3}, s{sA}, v{vl0}")
        if final:
            srd(a, SRD0, P_OUT, 0, SEQ * DM * 2)
            srd(a, SRD1, P_B2, 0, DM * 2)
            a(f"s_mul_i32 s{sA}, s{sD}, 160")
            a(f"v_lshlrev_b32 v{vs}, 3, v{vG}")
            a(f"v_add_u32 v{vs}, s{sA}, v{vs}")
            a(f"s_bfe_u32 s{sA}, s{sE}, 0x10004")
            a(f"s_lshl_b32 s{sA}, s{sA}, 3")
            a(f"s_lshr_b32 s{sB}, s{sE}, 9")
            a(f"s_lshl4_add_u32 s{sA}, s{sB}, s{sA}")
            a(f"s_bfe_u32 s{sB}, s{sE}, 0x20005")
            a(f"s_lshl_b32 s{sB}, s{sB}, 8")
            a(f"s_add_u32 s{sA}, s{sA}, s{sB}")
            a(f"s_and_b32 s{sB}, s{sE}, 128")
            a(f"s_add_u32 s{sA}, s{sA}, s{sB}")
            a(f"s_and_b32 s{sB}, s{sE}, 256")
            a(f"s_lshl2_add_u32 s{sA}, s{sB}, s{sA}")
            a(f"v_and_b32 v{vout}, 1, v{vI}")
            a(f"v_lshlrev_b32 v{vout}, 6, v{vout}")
            a(f"v_lshrrev_b32 v{vdcm}, 1, v{vI}")
            a(f"v_add3_u32 v{vout}, v{vout}, v{vdcm}, s{sA}")
            a(f"v_mul_u32_u24 v{vout}, 1280, v{vout}")
            a(f"v_add_u32 v{vout}, v{vout}, v{vs}")
        else:
            srd_ws(a, SRD0, "XP2", XP_SIZE)
            srd_ws(a, SRD4, "SS2", SS_SIZE)
            a(f"s_lshr_b32 s{sA}, s{sE}, 8")
            a(f"s_lshl_b32 s{sA}, s{sA}, 10")
            a(f"s_and_b32 s{sB}, s{sE}, 127")
            a(f"s_lshl3_add_u32 s{sA}, s{sB}, s{sA}")
            a(f"s_bfe_u32 s{sB}, s{sE}, 0x10007")
            a(f"s_lshl3_add_u32 s{sA}, s{sB}, s{sA}")
            a(f"v_lshrrev_b32 v{vs}, 1, v{vI}")
            a(f"v_lshlrev_b32 v{vs}, 4, v{vs}")
            a(f"v_and_b32 v{vdcm}, 1, v{vI}")
            a(f"v_lshl_add_u32 v{vs}, v{vdcm}, 2, v{vs}")
            a(f"v_add_u32 v{vs}, s{sA}, v{vs}")
            a(f"v_lshl_add_u32 v{vs}, v{vG}, 20, v{vs}")
            a(f"s_cmp_eq_u32 s{sW}, 3")
            a(f"s_cselect_b32 s{sA}, 0x3f80, 0")
            a(f"v_mov_b32 v{vout}, s{sA}")
            a(f"v_cmp_eq_u32 vcc, 2, v{vG}")
            a(f"v_cndmask_b32 v{vout}, 0, v{vout}, vcc")
            a(f"s_cmp_eq_u32 s{sD}, 0")
            a(f"s_cselect_b32 s{sA}, 0, 1.0")
            a(f"v_mov_b32 v{vdcm}, s{sA}")
            a(f"v_cmp_eq_u32 vcc, 0, v{vG}")
            a(f"v_cndmask_b32 v{vdcm}, 1.0, v{vdcm}, vcc")

    if final:
        for t in range(20):
            fine("c", t)
            for et in range(3):
                n = START["e"] + 3 * t + et
                sl = frag(n, False)
                issue(M2.rate_c / 3)
                for st in range(2):
                    d = EACC + (et * 2 + st) * 4
                    mf(d, wreg(n), xr(t, st), None if t == 0 else d, sl if st else 2)
            done.add(("xfree", t))
        now(4)
        for et in range(3):
            d = EACC + et * 8
            for k in range(4):
                a(f"v_cvt_pk_bf16_f32 v{d + k}, v{d + 2 * k}, v{d + 2 * k + 1}")
            a(f"s_mov_b32 s{sHO}, {et * 4 * XP_STR}")
            a(f"buffer_store_dwordx4 {V(d, 4)}, v{ve}, s[{SRD4}:{SRD4 + 3}], s{sHO} offen sc1", tag="x3")
        mark(a, 6)
        now(4)
        out_setup()
    else:
        fine("p", 0)
        if M2.probe:
            a("s_waitcnt vmcnt(0)")
            gen_mark(a, 3)
            for k in range(4):
                for u, q in [(u, q) for u in range(7) for q in range(4)][7 * k:7 * k + 7]:
                    it = next(it for it in queue if it[0] == ("q", u, q))
                    queue.remove(it)
                    it[1](it[0])
                    sched.add(it[0])
                flush()
                gen_mark(a, 4 + k)
            a("s_waitcnt vmcnt(0)")
            gen_mark(a, 8)
        now(M2.pre_g2)
        out_setup()
        mark(a, 6)

    def deficit(u):
        must = sum(1 for it in queue if it[0][1] <= u)
        if must:
            return must + M2.lead
        last = max(k for k, key in enumerate(order) if key[0] in "pq" and key[1] <= u)
        return M2.lead - (len(order) - 1 - last)

    def accr(p, q):
        return ACC2 + (q * 5 + p) * 4

    def wr(q, p):
        later(f"ds_write_b128 v{vred + q - 1}, {R(accr(p, q), 4)} offset:{p * 1024}")

    NS = 14
    for u in range(NS):
        last = u == NS - 1
        fine("g", u)
        if u == 1:
            mark(a, 7)
        for p in range(5):
            need(("p", u, p))
        for q in range(4):
            need(("q", u, q))
        if ORDER[u] == 13 and not final:
            for q in range(4):
                r = qreg(u, q)
                if r >= 256:
                    a(f"v_accvgpr_read_b32 v{TMP + q}, {R(r)}")
                    a(f"v_or_b32 v{TMP + q}, v{TMP + q}, v{vout}")
                    a(f"v_accvgpr_write_b32 {R(r)}, v{TMP + q}")
                else:
                    a(f"v_or_b32 v{r}, v{r}, v{vout}")
        qorder = (1, 2, 3, 0) if last else (0, 1, 2, 3)
        rate = max(M2.g2_rate, deficit(u + 1) / 4)
        for n, q in enumerate(qorder):
            for p in range(5):
                if last and n >= 1:
                    wr(qorder[n - 1], p)
                if p == 0 and n:
                    done.add(("qfree", u, qorder[n - 1]))
                if p < 4:
                    issue(rate / 4)
                mf(accr(p, q), preg(u, p), qreg(u, q), None if u == 0 else accr(p, q), 1 if p == 4 else 2)
        done.add(("qfree", u, qorder[3]))
    flush()
    assert not queue
    mark(a, 8)
    a("s_waitcnt lgkmcnt(0)")
    a("s_barrier")
    mark(a, 9)
    for p in range(5):
        for s_ in range(3):
            a(f"ds_read_b128 {R(accr(p, s_ + 1), 4)}, v{vred + 3} offset:{s_ * 5120 + p * 1024}")
    a(f"s_mov_b32 s{sK2}, 0xffff0000")
    E = 16
    for p in range(5):
        e = E + 8 * p
        for h in range(2):
            a(f"v_lshlrev_b32 v{e + 2 * h}, 16, v{RES + 2 * p + h}")
            a(f"v_and_b32 v{e + 2 * h + 1}, s{sK2}, v{RES + 2 * p + h}")
            if final:
                a(f"v_lshlrev_b32 v{e + 4 + 2 * h}, 16, v{BIA + 2 * p + h}")
                a(f"v_and_b32 v{e + 4 + 2 * h + 1}, s{sK2}, v{BIA + 2 * p + h}")
        for h in (0, 2):
            d = accr(p, 0) + h
            a(f"v_pk_add_f32 {V(d, 2)}, {V(d, 2)}, {V(e + h, 2)}")
            if final:
                a(f"v_pk_add_f32 {V(d, 2)}, {V(d, 2)}, {V(e + 4 + h, 2)}")
    if not final:
        a(f"v_mov_b32 v{TMP + 2}, 0")
        a(f"v_mov_b32 v{TMP + 3}, 0")
    for p in range(5):
        r = accr(p, 0)
        for h in (0, 2):
            a(f"v_pk_add_f32 {V(accr(p, 1) + h, 2)}, {V(accr(p, 1) + h, 2)}, {V(accr(p, 2) + h, 2)}")
            a(f"v_pk_add_f32 {V(r + h, 2)}, {V(r + h, 2)}, {V(accr(p, 3) + h, 2)}")
        for h in (0, 2):
            a(f"v_pk_add_f32 {V(r + h, 2)}, {V(r + h, 2)}, {V(accr(p, 1) + h, 2)}")
        a(f"v_cvt_pk_bf16_f32 v{r}, v{r}, v{r + 1}")
        a(f"v_cvt_pk_bf16_f32 v{r + 1}, v{r + 2}, v{r + 3}")
        if final:
            a(f"buffer_store_dwordx2 {V(r, 2)}, v{vout}, s[{SRD0}:{SRD0 + 3}], 0 offen offset:{p * 32}")
        else:
            a(f"s_mov_b32 s{sOP}, {p * 4 * XP_STR}")
            a(f"buffer_store_dwordx2 {V(r, 2)}, v{vo2}, s[{SRD0}:{SRD0 + 3}], s{sOP} offen")
            if p == 0:
                a(f"v_lshlrev_b32 v{TMP}, 16, v{r}")
                a(f"v_and_b32 v{TMP + 1}, s{sK2}, v{r}")
                a(f"v_mul_f32 v{TMP + 1}, v{TMP + 1}, v{vdcm}")
                a(f"v_mul_f32 v{TMP + 2}, v{TMP}, v{TMP}")
                a(f"v_fmac_f32 v{TMP + 2}, v{TMP + 1}, v{TMP + 1}")
            else:
                a(f"v_dot2c_f32_bf16 v{TMP + 2}, v{r}, v{r}")
            a(f"v_dot2c_f32_bf16 v{TMP + 3}, v{r + 1}, v{r + 1}")
    if not final:
        s = TMP + 2
        a(f"v_add_f32 v{s}, v{s}, v{s + 1}")
        for op in ("v_permlane32_swap_b32", "v_permlane16_swap_b32"):
            a(f"v_mov_b32 v{s + 1}, v{s}")
            a(f"{op} v{s}, v{s + 1}")
            a(f"v_add_f32 v{s}, v{s}, v{s + 1}")
        a(f"buffer_atomic_add_f32 v{s}, v{vs}, s[{SRD4}:{SRD4 + 3}], 0 offen")
    return 140 * 1024
```

```python
from gen import *
import model2

SCALE = float(np.sqrt(2.0 / DM))
SIGN2 = 0x80008000
CNT = {"x": 128, "1": 96, "a": 32, "2": 112, "c": 128, "k": 160, "t": 72}


class PC:
    order = ("x2ac", "k1", "kt")
    lay = ("x2ac", "k1", "kt")
    w2t_in = 0
    code_pf = 1
    fl_ld = " nt"
    fl_l2 = " nt"
    fl_a = ""
    warm = 1
    pf_wgs = 16
    touch_ws = ()
    fl_t = ""
    fl_x = ""
    fl_w = " sc1"
    fl_w2 = ""
    fl_c = ""


def fx(x):
    return f"{f32bits(x):#x}"


class Sched:
    def __init__(self, a, per=2):
        self.a, self.per = a, per
        self.fill = []
        self.done = set()
        self.n = 0

    def add(self, op, ready=-1, key=None):
        self.fill.append((ready, key, op))

    def _pop(self):
        _, key, op = self.fill.pop(0)
        if callable(op):
            op()
        else:
            self.a(op)
        if key is not None and all(k != key for _, k, _ in self.fill):
            self.done.add(key)

    def mfma(self, d, x, y, c, needs=()):
        for k in needs:
            while k not in self.done:
                self._pop()
        mfma(self.a, d, x, y, c)
        cnt = 0
        while self.fill and cnt < self.per and self.fill[0][0] <= self.n:
            self._pop()
            cnt += 1
        self.n += 1

    def flush(self):
        while self.fill:
            self._pop()


SCRATCH = 32768


def code_prefetch(a, name, dst):
    a(f"s_cmp_ge_u32 s2, {PC.pf_wgs}")
    a(f"s_cbranch_scc1 {name}_npf")
    a(f"s_getpc_b64 s[{SRD5}:{SRD5 + 1}]")
    a.label(f"{name}_here", keep=True)
    a(f"s_and_b32 s{SRD5 + 1}, s{SRD5 + 1}, 0xffff")
    a(f"s_mov_b32 s{SRD5 + 2}, {name}_last-{name}_here")
    a(f"s_mov_b32 s{SRD5 + 3}, 0x20000")
    a(f"s_mov_b32 m0, {SCRATCH}")
    a(f"v_lshlrev_b32 v{dst}, 6, v0")
    a(f"buffer_load_dword v{dst}, s[{SRD5}:{SRD5 + 3}], 0 offen lds")
    a.label(f"{name}_npf")


def touch(a, vt, offs):
    a(f"s_mov_b32 m0, {SCRATCH}")
    a(f"v_lshlrev_b32 v{vt}, 6, v0")
    for off in offs:
        a(f"s_lshl_b32 s{sOP}, s{sT}, 14")
        if off:
            a(f"s_add_u32 s{sOP}, s{sOP}, {off}")
        a(f"buffer_load_dword v{vt}, s[{SRD4}:{SRD4 + 3}], s{sOP} offen lds")


def role_front(a, name, order, lay, ext):
    vld, vr, vo = 4, 5, 9
    MK, M1, M2, M2N = 10, 14, 15, 16
    vph, vk0, vq20, vgf = 17, 18, 19, 35
    ACC1, A1, A2, Y, ACCX = 20, 36, 96, 144, 168
    TMP = Y
    DAT = 176
    sQ, sFT, sKD = sK0, sK1, 96
    KINDS = tuple(k for k in ("x", "w1", "w2") if k[-1] in order.replace("a", "1"))
    fl_w = PC.fl_a if "a" in order else PC.fl_w

    def frag(beta, j):
        return DAT + (beta * 5 + j) * 4

    start, s0 = {}, 0
    for ch in order:
        start[ch] = s0
        s0 += CNT[ch]
    if PC.code_pf:
        code_prefetch(a, name, vld)
    a(f"s_lshl_b32 s{sE}, s{sW}, 10")
    lo, hi = 0, len(order) - 1
    while lo < hi:
        if order[hi] != lay[0]:
            a(f"s_cmp_ge_u32 s2, {start[order[hi]]}")
            a(f"s_cbranch_scc1 {name}_p{order[hi]}")
            hi -= 1
        else:
            a(f"s_cmp_lt_u32 s2, {start[order[lo + 1]]}")
            a(f"s_cbranch_scc1 {name}_p{order[lo]}")
            lo += 1

    def row_loads():
        a(f"s_and_b32 s{sA}, s{sW}, 1")
        a(f"s_lshl_b32 s{sA}, s{sA}, 1")
        a(f"s_xor_b32 s{sA}, s{sA}, s{sW}")
        a(f"s_lshl_b32 s{sA}, s{sA}, 2")
        a(f"v_or_b32 v{vr}, s{sA}, v{vG}")
        a(f"v_xor_b32 v{vr}, v{vr}, v{vI}")
        a(f"v_mul_u32_u24 v{vld}, 1280, v{vld}")
        a(f"v_lshl_add_u32 v{vld}, v{vr}, 4, v{vld}")

    def row_issue(fl):
        for j in range(5):
            a(f"s_add_u32 m0, s{sE}, {j * 4096 - j * 256}")
            a(f"buffer_load_dwordx4 v{vld}, s[{SRD0}:{SRD0 + 3}], 0 offen offset:{j * 256}{fl} lds")
        mark(a, 1)

    def pro_x():
        a(f"s_and_b32 s{sC}, s{sT}, 1")
        a(f"s_lshl_b32 s{sC}, s{sC}, 3")
        a(f"s_lshr_b32 s{sA}, s{sT}, 5")
        a(f"s_lshl4_add_u32 s{sC}, s{sA}, s{sC}")
        a(f"s_bfe_u32 s{sA}, s{sT}, 0x20001")
        a(f"s_lshl_b32 s{sA}, s{sA}, 8")
        a(f"s_add_u32 s{sC}, s{sC}, s{sA}")
        a(f"s_and_b32 s{sA}, s{sT}, 8")
        a(f"s_lshl4_add_u32 s{sC}, s{sA}, s{sC}")
        a(f"s_and_b32 s{sA}, s{sT}, 16")
        a(f"s_lshl_b32 s{sA}, s{sA}, 6")
        a(f"s_add_u32 s{sC}, s{sC}, s{sA}")
        a(f"s_lshl1_add_u32 s{sC}, s{sW}, s{sC}")
        a(f"v_and_b32 v{vld}, 1, v{vG}")
        a(f"v_lshlrev_b32 v{vld}, 6, v{vld}")
        a(f"v_lshrrev_b32 v{vr + 1}, 1, v{vG}")
        a(f"v_add3_u32 v{vld}, v{vld}, v{vr + 1}, s{sC}")
        row_loads()
        a("s_waitcnt lgkmcnt(0)")
        srd(a, SRD0, P_X, 0, SEQ * DM * 2)
        row_issue(PC.fl_ld)
        srd_ws(a, SRD1, "XP0", XP_SIZE)
        a(f"s_mov_b32 s{sKD}, 0")
        a(f"s_branch {name}_gen")

    def pro_w2():
        a(f"s_lshl_b32 s{sC}, s{sT}, 4")
        a(f"s_cmp_eq_u32 s{sT}, 108")
        a(f"s_cselect_b32 s{sC}, 0, s{sC}")
        a(f"s_lshl2_add_u32 s{sC}, s{sW}, s{sC}")
        a(f"v_add_u32 v{vld}, s{sC}, v{vG}")
        row_loads()
        a(f"s_cmp_eq_u32 s{sT}, 108")
        a(f"s_mov_b32 s{SRD0 + 2}, {FF * DM * 2}")
        a(f"s_cselect_b32 s{SRD0 + 2}, {DM * 2}, s{SRD0 + 2}")
        a(f"s_mov_b32 s{SRD0 + 3}, 0x20000")
        a("s_waitcnt lgkmcnt(0)")
        a(f"s_cselect_b32 s{SRD0}, s{P_B2}, s{P_W2}")
        a(f"s_cselect_b32 s{SRD0 + 1}, s{P_B2 + 1}, s{P_W2 + 1}")
        a(f"s_and_b32 s{SRD0 + 1}, s{SRD0 + 1}, 0xffff")
        row_issue(PC.fl_l2)
        srd_ws(a, SRD1, "WA2", WA2_SIZE)
        a(f"s_mov_b32 s{sKD}, 2")
        a(f"s_branch {name}_gen")

    def pro_w1():
        a(f"s_and_b32 s{sA}, s{sT}, 7")
        a(f"s_lshr_b32 s{sB}, s{sT}, 5")
        a(f"s_lshl3_add_u32 s{sA}, s{sB}, s{sA}")
        a(f"s_cmp_ge_u32 s{sA}, 27")
        a(f"s_cbranch_scc1 {name}_end")
        a(f"s_bfe_u32 s{sB}, s{sT}, 0x20003")
        a(f"s_lshl2_add_u32 s{sFT}, s{sA}, s{sB}")
        a(f"s_and_b32 s{sA}, s{sW}, 1")
        a(f"s_lshl_b32 s{sA}, s{sA}, 2")
        a(f"v_lshrrev_b32 v{vld}, 1, v{vL}")
        a(f"v_xor_b32 v{vld}, s{sA}, v{vld}")
        a(f"v_mul_u32_u24 v{vld}, {FF * 2}, v{vld}")
        a(f"v_and_b32 v{vr}, 1, v{vL}")
        a(f"v_lshl_add_u32 v{vld}, v{vr}, 4, v{vld}")
        a(f"s_mul_i32 s{sA}, s{sW}, {32 * FF * 2}")
        a(f"s_lshl_b32 s{sB}, s{sFT}, 5")
        a(f"s_add_u32 s{sA}, s{sA}, s{sB}")
        a(f"v_add_u32 v{vld}, s{sA}, v{vld}")
        a("s_waitcnt lgkmcnt(0)")
        srd(a, SRD0, P_W1, 0, DM * FF * 2)
        for j in range(5):
            a(f"s_add_u32 m0, s{sE}, {j * 4096}")
            a(f"s_mov_b32 s{sOP}, {j * 128 * FF * 2}")
            a(f"buffer_load_dwordx4 v{vld}, s[{SRD0}:{SRD0 + 3}], s{sOP} offen lds")
        mark(a, 1)
        srd_ws(a, SRD1, "W1F", W1F_SIZE)
        a(f"s_mov_b32 s{sKD}, 1")
        a(f"s_branch {name}_gen")

    REG = 5248

    def pro_wc():
        vld, va0, va1, va2, vo, vt, LD, ST = 4, 5, 6, 7, 8, 9, 12, 52
        a(f"s_bfe_u32 s{sA}, s{sT}, 0x20001")
        a(f"s_lshl_b32 s{sC}, s{sA}, 7")
        a(f"s_lshr_b32 s{sA}, s{sT}, 5")
        a(f"s_lshl_b32 s{sA}, s{sA}, 9")
        a(f"s_add_u32 s{sC}, s{sC}, s{sA}")
        a(f"s_and_b32 s{sA}, s{sT}, 8")
        a(f"s_lshl3_add_u32 s{sC}, s{sA}, s{sC}")
        a(f"s_and_b32 s{sA}, s{sT}, 16")
        a(f"s_add_u32 s{sC}, s{sC}, s{sA}")
        a(f"s_and_b32 s{sA}, s{sT}, 1")
        a(f"s_lshl3_add_u32 s{sC}, s{sA}, s{sC}")
        a(f"s_and_b32 s{sA}, s{sW}, 2")
        a(f"s_lshl4_add_u32 s{sC}, s{sA}, s{sC}")
        a(f"s_mul_i32 s{sC}, s{sC}, 642")
        a(f"s_add_u32 s{sD}, s{sC}, 4096")
        a(f"v_lshlrev_b32 v{vld}, 4, v{vL}")
        a(f"s_mul_i32 s{sE}, s{sW}, {REG}")
        a(f"s_mov_b32 s{SRD0 + 2}, {SEQ * 642}")
        a(f"s_mov_b32 s{SRD0 + 3}, 0x20000")
        a(f"s_mov_b32 m0, s{sE}")
        a(f"s_bitcmp1_b32 s{sW}, 0")
        a("s_waitcnt lgkmcnt(0)")
        a(f"s_cselect_b32 s{SRD0}, s{P_WI}, s{P_WR}")
        a(f"s_cselect_b32 s{SRD0 + 1}, s{P_WI + 1}, s{P_WR + 1}")
        a(f"s_and_b32 s{SRD0 + 1}, s{SRD0 + 1}, 0xffff")
        for j in range(4):
            a(f"buffer_load_dwordx4 v{vld}, s[{SRD0}:{SRD0 + 3}], s{sC} offen offset:{j * 1024}{PC.fl_ld} lds")
        a(f"s_add_u32 m0, s{sE}, 4096")
        a(f"buffer_load_dwordx4 v{vld}, s[{SRD0}:{SRD0 + 3}], s{sD} offen{PC.fl_ld} lds")
        a("s_mov_b64 exec, 1")
        a(f"buffer_load_dwordx4 v{vld}, s[{SRD0}:{SRD0 + 3}], s{sD} offen offset:1024{PC.fl_ld} lds")
        a("s_mov_b64 exec, -1")
        mark(a, 1)
        srd_ws(a, SRD1, "WC", WC_SIZE)
        a(f"v_bfe_u32 v{vt}, v{vL}, 3, 1")
        a(f"v_lshlrev_b32 v{vt}, 2, v{vt}")
        a(f"v_add_u32 v{vt}, v{vt}, v{vG}")
        a(f"s_cmp_lt_u32 s{sW}, 2")
        a(f"s_cselect_b32 s{sK0}, 1, -1")
        a(f"s_mul_i32 s{sA}, s{sK0}, 80")
        a(f"s_mul_i32 s{sB}, s{sK0}, 40")
        a(f"v_mul_i32_i24 v{va0}, s{sA}, v{vt}")
        a(f"v_and_b32 v{vt}, 7, v{vL}")
        a(f"v_mul_u32_u24 v{va1}, 642, v{vt}")
        a(f"v_add_u32 v{va0}, v{va0}, v{va1}")
        a(f"s_mul_i32 s{sK1}, s{sW}, 5")
        a(f"s_sub_u32 s{sK2}, 325, s{sK1}")
        a(f"s_cmp_lt_u32 s{sW}, 2")
        a(f"s_cselect_b32 s{sK2}, s{sK1}, s{sK2}")
        a(f"s_lshl_b32 s{sK2}, s{sK2}, 1")
        a(f"v_add_u32 v{va0}, s{sK2}, v{va0}")
        a(f"v_add_u32 v{va1}, s{sB}, v{va0}")
        a(f"v_cmp_gt_u32 vcc, 8, v0")
        a(f"v_add_u32 v{va2}, 640, v{va0}")
        a(f"v_cndmask_b32 v{va2}, v{va0}, v{va2}, vcc")
        a(f"v_lshrrev_b32 v{vo}, 3, v{vL}")
        a(f"v_lshlrev_b32 v{vo}, 14, v{vo}")
        a(f"v_lshl_add_u32 v{vo}, v{vt}, 4, v{vo}")
        a(f"s_lshl_b32 s{sA}, s{sT}, 7")
        a(f"s_lshr_b32 s{sB}, s{sW}, 1")
        a(f"s_lshl_b32 s{sB}, s{sB}, 17")
        a(f"s_add_u32 s{sA}, s{sA}, s{sB}")
        a(f"v_add_u32 v{vo}, s{sA}, v{vo}")
        a(f"s_sub_u32 s{sK2}, s{sK1}, 5")
        a(f"s_cmp_lt_u32 s{sW}, 2")
        a(f"s_cselect_b32 s{sK1}, s{sK1}, s{sK2}")
        a("s_waitcnt vmcnt(0)")
        if PC.warm:
            for ch, ptr in (("1", P_W1), ("2", P_W2)):
                if ch not in order:
                    srd(a, SRD4, ptr, 0, DM * FF * 2)
                    touch(a, vld, (0, 1 << 21))
            a(f"s_getpc_b64 s[{SRD4}:{SRD4 + 1}]")
            a.label(f"{name}_cur", keep=True)
            a(f"s_and_b32 s{SRD4 + 1}, s{SRD4 + 1}, 0xffff")
            a(f"s_mov_b32 s{SRD4 + 2}, text_last-{name}_cur")
            a(f"s_mov_b32 s{SRD4 + 3}, 0x20000")
            touch(a, vld, (0,))
        for nm in PC.touch_ws:
            srd_ws(a, SRD4, nm, H_SIZE)
            a(f"v_lshlrev_b32 v{vld}, 7, v0")
            for off in (0, 1 << 22):
                a(f"s_lshl_b32 s{sOP}, s{sT}, 15")
                a(f"s_add_u32 s{sOP}, s{sOP}, {off}")
                a(f"buffer_load_dword v{vld}, s[{SRD4}:{SRD4 + 3}], s{sOP} offen{PC.fl_t} lds")
        a("s_barrier")
        mark(a, 3)
        for n in range(5):
            for rl in range(2):
                for ph in range(2):
                    ad = va1 if ph else (va2 if n == 0 else va0)
                    for ar in range(2):
                        a(f"ds_read_u16 v{LD + n * 8 + (rl * 2 + ph) * 2 + ar}, v{ad} offset:{(rl * 2 + ar) * REG + 2 * n}")
        for n in range(5):
            for k in range(4):
                a(f"v_lshl_or_b32 v{ST + 4 * n + k}, v{LD + n * 8 + 2 * k + 1}, 16, v{LD + n * 8 + 2 * k}")
            if n == 0:
                a(f"s_cmp_eq_u32 s{sK1}, 10")
                a(f"s_cselect_b32 s{sOP}, 0, s{sK1}")
                a(f"s_lshl_b32 s{sOP}, s{sOP}, 18")
            else:
                a(f"s_add_i32 s{sK1}, s{sK1}, s{sK0}")
                a(f"s_lshl_b32 s{sOP}, s{sK1}, 18")
            a(f"buffer_store_dwordx4 {V(ST + 4 * n, 4)}, v{vo}, s[{SRD1}:{SRD1 + 3}], s{sOP} offen{PC.fl_c}")
        a(f"s_branch {name}_end")

    pros = {"x": pro_x, "1": pro_w1, "a": pro_w1, "2": pro_w2, "c": pro_wc}
    if "a" in order:
        assert start["a"] % 8 == 0
        start["a"] -= CNT["1"]
    lds = SCRATCH + 256
    for ch in lay:
        if ch != lay[0]:
            a.label(f"{name}_p{ch}")
        if start[ch]:
            a(f"s_sub_i32 s{sT}, s2, {start[ch]}")
        if ch in pros:
            pros[ch]()
        else:
            lds = max(lds, ext[ch](a))
            a(f"s_branch {name}_end")
    if not KINDS:
        a.label(f"{name}_end")
        a.label(f"{name}_last")
        return lds

    a.label(f"{name}_gen")
    a(f"v_bfe_u32 v{TMP}, v{vI}, 1, 1")
    a(f"v_lshlrev_b32 v{TMP}, 4, v{TMP}")
    a(f"v_mov_b32 v{TMP + 1}, 0xffff")
    a(f"v_lshlrev_b32 v{TMP}, v{TMP}, v{TMP + 1}")
    a(f"v_lshrrev_b32 v{TMP + 1}, 2, v{vI}")
    for k in range(4):
        a(f"v_cmp_eq_u32 vcc, {k}, v{TMP + 1}")
        a(f"v_cndmask_b32 v{MK + k}, 0, v{TMP}, vcc")
    a(f"v_and_b32 v{M2}, 1, v{vI}")
    a(f"v_cvt_f32_u32 v{vph}, v{M2}")
    a(f"v_mul_f32 v{vph}, 0.5, v{vph}")
    a(f"v_lshrrev_b32 v{vk0}, 1, v{vI}")
    a(f"v_cvt_f32_u32 v{vk0}, v{vk0}")
    a(f"v_mul_f32 v{vk0}, {fx(1 / 32)}, v{vk0}")
    a(f"v_cvt_f32_u32 v{vgf}, v{vG}")

    def gen_a1(base, fq, ph):
        t = TMP
        a(f"v_fma_f32 v{t}, v{vgf}, v{fq}, {ph}")
        for j in range(1, 5):
            a(f"v_fmamk_f32 v{t + j}, v{fq}, {fx(4.0 * j)}, v{t}")
        for j in range(5):
            a(f"v_cos_f32 v{t + j}, v{t + j}")
        for j in range(5):
            a(f"v_mul_f32 v{t + j}, {fx(SCALE)}, v{t + j}")
        for j in range(5):
            a(f"v_cvt_pk_bf16_f32 v{t + j}, v{t + j}, v{t + j}")
        for j in range(5):
            for k in range(4):
                a(f"v_and_b32 v{base + 4 * j + k}, v{MK + k}, v{t + j}")

    def angles(kf, ph):
        t = TMP
        a(f"v_mul_f32 v{t + 8}, v{vgf}, v{kf}")
        a(f"v_fma_f32 v{t}, v{t + 8}, 2.0, v{ph}")
        for k in range(1, 8):
            c = 16 * (k >> 2) + 8 * ((k >> 1) & 1) + (k & 1)
            a(f"v_fmamk_f32 v{t + k}, v{kf}, {fx(float(c))}, v{t}")

    def addresses(kind):
        if kind == "w1":
            a(f"v_and_b32 v{vr}, 1, v{vG}")
            a(f"v_lshlrev_b32 v{vr}, 7, v{vr}")
            a(f"v_lshl_add_u32 v{vr}, v{vG}, 10, v{vr}")
            a(f"v_lshl_add_u32 v{vr}, v{vI}, 3, v{vr}")
            a(f"v_xor_b32 v{vr + 1}, 128, v{vr}")
        else:
            a(f"v_and_b32 v{vr}, 4, v{vI}")
            a(f"v_lshlrev_b32 v{vr}, 1, v{vr}")
            a(f"v_xor_b32 v{vr}, v{vr}, v{vI}")
            a(f"v_lshlrev_b32 v{vr + 1}, 2, v{vG}")
            a(f"v_xor_b32 v{vr}, v{vr}, v{vr + 1}")
            a(f"v_lshlrev_b32 v{vr}, 4, v{vr}")
            a(f"v_lshl_add_u32 v{vr}, v{vI}, 8, v{vr}")
            for k in (1, 2, 3):
                a(f"v_xor_b32 v{vr + k}, {16 * k}, v{vr}")
        if kind == "x":
            a(f"v_and_b32 v{vld}, 1, v{vI}")
            a(f"v_lshl_add_u32 v{vo}, v{vG}, 1, v{vld}")
            a(f"v_lshlrev_b32 v{vo}, 14, v{vo}")
            a(f"v_and_b32 v{vld}, 14, v{vI}")
            a(f"v_lshl_add_u32 v{vo}, v{vld}, 3, v{vo}")
            a(f"s_lshl_b32 s{sA}, s{sQ}, 18")
            a(f"s_lshl_b32 s{sB}, s{sT}, 7")
            a(f"s_mov_b32 vcc_lo, 0x55555555")
            a(f"s_mov_b32 vcc_hi, 0x55555555")
        elif kind == "w1":
            a(f"v_mul_u32_u24 v{vo}, {W1F_STR}, v{vG}")
            a(f"v_lshl_add_u32 v{vo}, v{vI}, 4, v{vo}")
            a(f"s_mul_i32 s{sA}, s{sQ}, {8 * W1F_STR}")
            a(f"s_lshl_b32 s{sB}, s{sFT}, 8")
        else:
            a(f"v_lshrrev_b32 v{vo}, 1, v{vG}")
            a(f"v_mul_u32_u24 v{vo}, {KB_STR}, v{vo}")
            a(f"v_lshrrev_b32 v{vld}, 2, v{vI}")
            a(f"v_lshl_add_u32 v{vo}, v{vld}, 7, v{vo}")
            a(f"v_and_b32 v{vld}, 3, v{vI}")
            a(f"v_lshl_add_u32 v{vo}, v{vld}, 4, v{vo}")
            a(f"v_and_b32 v{vld}, 1, v{vG}")
            a(f"v_lshl_add_u32 v{vo}, v{vld}, 6, v{vo}")
            a(f"s_lshl_b32 s{sA}, s{sQ}, 10")
            a(f"s_mul_i32 s{sB}, s{sT}, {2 * KB_STR}")
        a(f"s_add_u32 s{sA}, s{sA}, s{sB}")
        a(f"v_add_u32 v{vo}, s{sA}, v{vo}")

    def reads(kind):
        mark(a, 2)
        a("s_waitcnt vmcnt(0)")
        a("s_barrier")
        mark(a, 3)
        for beta in range(4):
            for j in range(5):
                if kind == "w1":
                    for eh in range(2):
                        a(f"ds_read_b64_tr_b16 {R(frag(beta, j) + 2 * eh, 2)}, v{vr + eh} offset:{4096 * j + 256 * beta}")
                else:
                    a(f"ds_read_b128 {R(frag(beta, j), 4)}, v{vr + beta} offset:{4096 * j}")

    def stage1(sc, n, extra=None):
        for beta in range(4):
            c = 4 * n + beta
            acc = ACC1 + 4 * (c % 4)
            for j in range(5):
                sc.mfma(acc, A1 + 20 * n + 4 * j, frag(beta, j), None if j == 0 else acc,
                        needs=[("y", c - 4)] if j == 0 and c >= 4 else [])
            rdy = sc.n + 5
            if extra:
                extra(beta, acc, rdy, ("y", c))
            for h in range(2):
                sc.add(f"v_cvt_pk_bf16_f32 v{Y + 2 * c + h}, v{acc + 2 * h}, v{acc + 2 * h + 1}", rdy, ("y", c))

    par = {"even": True}
    QP = "quad_perm:[1,0,3,2] row_mask:0xf bank_mask:0xf"

    def stage2(kind, sc, n, u, mat, acc, needs, fix=None):
        for tl in range(2):
            for kp in range(2):
                d = acc + 4 * tl
                m, y = mat + (tl * 2 + kp) * 4, Y + 8 * n + 4 * kp
                nd = list(needs) + [("y", 4 * n + 2 * kp), ("y", 4 * n + 2 * kp + 1)]
                if kind == "w2":
                    sc.mfma(d, y, m, None if kp == 0 else d, needs=nd)
                else:
                    sc.mfma(d, m, y, None if kp == 0 else d, needs=nd)
        rdy, key = sc.n + 3, ("o", n, u)
        if fix:
            fix(rdy, key)
        for k in range(4):
            sc.add(f"v_cvt_pk_bf16_f32 v{acc + k}, v{acc + 2 * k}, v{acc + 2 * k + 1}", rdy, key)
        if kind == "x":
            for ph in range(2):
                lo = par["even"]
                for k in range(2):
                    if lo:
                        sc.add(f"v_cndmask_b32_dpp v{acc + 4 + k}, v{acc + 2 + k}, v{acc + k}, vcc {QP}", rdy, key)
                    else:
                        sc.add(f"v_cndmask_b32_dpp v{acc + 6 + k}, v{acc + k}, v{acc + 2 + k}, vcc {QP}", rdy, key)
                if ph == 0:
                    sc.add("s_not_b64 vcc, vcc", rdy, key)
                    par["even"] = not lo

            def st():
                a(f"s_mov_b32 s{sOP}, {(16 * n + 8 * u) * XP_STR}")
                a(f"buffer_store_dwordx4 {V(acc + 4, 4)}, v{vo}, s[{SRD1}:{SRD1 + 3}], s{sOP} offen{PC.fl_x}")
            sc.add(st, rdy, key)
        elif kind == "w1":
            def st():
                a(f"s_mov_b32 s{sOP}, {(8 * n + 4 * u) * W1F_STR}")
                a(f"buffer_store_dwordx4 {V(acc, 4)}, v{vo}, s[{SRD1}:{SRD1 + 3}], s{sOP} offen{fl_w}")
            sc.add(st, rdy, key)
        else:
            sc.add(f"v_permlane16_swap_b32 v{acc}, v{acc + 2}", rdy, key)
            sc.add(f"v_permlane16_swap_b32 v{acc + 1}, v{acc + 3}", rdy, key)
            sc.add(f"buffer_store_dwordx4 {V(acc, 4)}, v{vo}, s[{SRD1}:{SRD1 + 3}], 0 offen offset:{1024 * n + 512 * u}{PC.fl_w2}",
                   rdy, key)

    def dispatch(pre):
        for kind in KINDS[1:]:
            a(f"s_cmp_eq_u32 s{sKD}, {kind[-1]}")
            a(f"s_cbranch_scc1 {pre}_{kind}")

    a(f"s_cmp_eq_u32 s{sW}, 3")
    a(f"s_cbranch_scc1 {name}_sp")

    a(f"s_mul_i32 s{sQ}, s{sW}, 3")
    a(f"s_add_u32 s{sQ}, s{sQ}, 1")
    a(f"v_mul_f32 v{vph}, 0.5, v{vph}")
    a(f"v_cvt_f32_u32 v{vq20}, s{sQ}")
    a(f"v_fmamk_f32 v{vk0}, v{vq20}, {fx(1 / 640)}, v{vk0}")
    a(f"v_mul_f32 v{vq20}, {fx(1 / 20)}, v{vq20}")
    a(f"v_mul_u32_u24 v{M2}, 0x8000, v{M2}")
    a(f"v_lshl_or_b32 v{M2}, v{M2}, 16, v{M2}")
    a(f"v_xor_b32 v{M2N}, {SIGN2:#x}, v{M2}")
    a(f"v_and_b32 v{M1}, 1, v{vG}")
    a(f"v_mul_u32_u24 v{M1}, 0x8000, v{M1}")
    a(f"v_lshl_or_b32 v{M1}, v{M1}, 16, v{M1}")
    for n in range(3):
        if n:
            a(f"v_add_f32 v{vk0}, {fx(1 / 640)}, v{vk0}")
            a(f"v_add_f32 v{vq20}, {fx(1 / 20)}, v{vq20}")
        gen_a1(A1 + 20 * n, vq20, f"v{vph}")
        angles(vk0, vph)
        for k in range(8):
            a(f"v_sin_f32 v{TMP + 8 + k}, v{TMP + k}")
            a(f"v_cos_f32 v{TMP + k}, v{TMP + k}")
        b = A2 + 16 * n
        for k in range(8):
            a(f"v_cvt_pk_bf16_f32 v{b + k}, v{TMP + k}, v{TMP + 8 + k}")
            if k & 1:
                a(f"v_cvt_pk_bf16_f32 v{b + 8 + k}, -v{TMP + 8 + k}, v{TMP + k}")
        for k in range(8):
            a(f"v_xor_b32 v{b + 8 + k}, v{M1}, v{b + (8 if k & 1 else 0) + k}")
    dispatch(f"{name}_t")
    for kind in KINDS:
        if kind != KINDS[0]:
            a.label(f"{name}_t_{kind}")
        par["even"] = True
        addresses(kind)
        reads(kind)
        sc = Sched(a)
        for n in range(3):
            stage1(sc, n)
            for k in range(16):
                sc.add(f"v_xor_b32 v{A1 + 20 * n + k}, v{M2N if k & 1 else M2}, v{A2 + 16 * n + k}", sc.n, ("d", n))
        mark(a, 4)
        bufs = [ACCX, ACC1, ACC1 + 8]
        hist = [[], [("y", 8), ("y", 9)], [("y", 10), ("y", 11)]]
        for k in range(6):
            n, u = divmod(k, 2)
            needs = hist[k] if k < 3 else [("o",) + divmod(k - 3, 2)]
            if u:
                needs = needs + [("d", n)]
            stage2(kind, sc, n, u, A1 + 20 * n if u else A2 + 16 * n, bufs[k % 3], needs)
        sc.flush()
        a(f"s_branch {name}_end")

    a.label(f"{name}_sp")
    a(f"s_mov_b32 s{sQ}, 0")
    gen_a1(A1, vph, "0")
    a(f"v_mul_f32 v{vph}, 0.5, v{vph}")
    kf, ph = vq20, M1
    for tau in range(4):
        if tau == 0:
            a(f"v_cmp_eq_u32 vcc, 0, v{vI}")
            a(f"v_mov_b32 v{kf}, 0.5")
            a(f"v_cndmask_b32 v{kf}, v{vk0}, v{kf}, vcc")
            a(f"v_cmp_gt_u32 vcc, 2, v{vI}")
            a(f"v_mov_b32 v{ph}, {fx(0.125)}")
            a(f"v_cndmask_b32 v{ph}, v{vph}, v{ph}, vcc")
        else:
            a(f"v_add_f32 v{kf}, {fx(tau / 4 + (10 / 640 if tau >= 2 else 0))}, v{vk0}")
            a(f"v_mul_f32 v{ph}, {'-1.0' if tau >= 2 else '1.0'}, v{vph}")
        angles(kf, ph)
        for k in range(8):
            a(f"v_cos_f32 v{TMP + k}, v{TMP + k}")
        for k in range(8):
            d = A2 + 8 * tau + k
            a(f"v_cvt_pk_bf16_f32 v{d}, v{TMP + k}, 0" if tau < 2 else f"v_cvt_pk_bf16_f32 v{d}, 0, v{TMP + k}")
    dispatch(f"{name}_s")
    X0 = A2 + 32
    vs, vz, vb, GR, SM, T = X0, X0 + 1, X0 + 2, X0 + 4, X0 + 8, X0 + 12
    TR = A1 + 20
    DIAG = (4, 6, 30, 70)
    for kind in KINDS:
        if kind != KINDS[0]:
            a.label(f"{name}_s_{kind}")
        par["even"] = True
        addresses(kind)
        if kind == "x":
            srd_ws(a, SRD2, "SS0", 2 * SS_SIZE)
            srd_ws(a, SRD3, "FLAG", FLAG_SIZE)
            a(f"s_lshr_b32 s{sA}, s{sT}, 4")
            a(f"s_lshl_b32 s{sA}, s{sA}, 10")
            a(f"s_and_b32 s{sB}, s{sT}, 7")
            a(f"s_lshl_b32 s{sB}, s{sB}, 7")
            a(f"s_add_u32 s{sA}, s{sA}, s{sB}")
            a(f"s_and_b32 s{sB}, s{sT}, 8")
            a(f"s_add_u32 s{sA}, s{sA}, s{sB}")
            a(f"v_lshrrev_b32 v{vs}, 1, v{vI}")
            a(f"v_lshlrev_b32 v{vs}, 4, v{vs}")
            a(f"v_lshl_add_u32 v{vs}, v{M2}, 2, v{vs}")
            a(f"v_lshl_add_u32 v{vs}, v{vG}, 20, v{vs}")
            a(f"v_add_u32 v{vs}, s{sA}, v{vs}")
            a(f"v_mov_b32 v{vz}, 0")
            a(f"s_lshl_b32 s{sA}, s{sT}, 8")
            a(f"v_lshl_add_u32 v{vb}, v{vL}, 2, s{sA}")
            a(f"s_mov_b32 s{sOQ}, {WS['SS2'] - WS['SS0']}")
            for r in range(4):
                m = 0x1000010000100001 << r
                a(f"s_mov_b32 s{DIAG[r]}, {m & 0xffffffff:#x}")
                a(f"s_mov_b32 s{DIAG[r] + 1}, {m >> 32:#x}")
        if kind == "w1":
            srd(a, SRD2, P_B1, 0, FF * 2)
            a(f"s_lshl_b32 s{sA}, s{sFT}, 5")
            a(f"v_lshl_add_u32 v{vs}, v{vI}, 1, s{sA}")
            a(f"buffer_load_ushort v{vb}, v{vs}, s[{SRD2}:{SRD2 + 3}], 0 offen")
            a(f"s_mov_b64 s[{sM0}:{sM1}], 0xffff")
        w2t = kind == "w2" and PC.w2t_in
        if w2t:
            srd_ws(a, SRD2, "W2T", W2T_SIZE)
            a(f"v_bfe_u32 v{vz}, v{vI}, 1, 1")
            a(f"v_lshl_add_u32 v{vz}, v{vG}, 1, v{vz}")
            a(f"v_lshrrev_b32 v{vb}, 2, v{vI}")
            a(f"v_xor_b32 v{vz}, v{vz}, v{vb}")
            a(f"v_lshlrev_b32 v{vz}, 4, v{vz}")
            a(f"v_lshl_add_u32 v{vz}, v{vb}, 8, v{vz}")
            a(f"v_lshl_add_u32 v{vz}, v{M2}, 3, v{vz}")
            a(f"v_xor_b32 v{vb}, {1024 + 64}, v{vz}")
            a(f"s_mul_i32 s{sA}, s{sT}, {2 * KB_STR}")
            a(f"v_lshl_add_u32 v{vs}, v{vL}, 4, s{sA}")
        reads(kind)
        if kind == "x":
            a(f"buffer_store_dword v{vz}, v{vs}, s[{SRD2}:{SRD2 + 3}], s{sOQ} offen")
            a(f"buffer_store_dword v{vz}, v{vb}, s[{SRD3}:{SRD3 + 3}], 0 offen")
        sc = Sched(a)

        def tr_read(n):
            h, x = divmod(n, 10)
            return [f"ds_read_b64_tr_b16 {V(TR + 4 * (n % 10) + 2 * eh, 2)}, v{vz + eh} "
                    f"offset:{(x >> 1) * 4096 + h * 2048 + 128 * ((x ^ h ^ eh) & 1)}" for eh in range(2)]

        def tr_store(n):
            def f():
                if n % 4 == 0:
                    a(f"s_mov_b32 s{sOQ}, {n * 1024}")
                a(f"buffer_store_dwordx4 {V(TR + 4 * (n % 10), 4)}, v{vs}, s[{SRD2}:{SRD2 + 3}], s{sOQ} offen offset:{(n % 4) * 1024}{PC.fl_w}")
            return f

        if w2t:
            for n in range(10):
                for op in tr_read(n):
                    a(op)

        def sums(beta, acc, rdy, key):
            sc.add(f"v_add_f32 v{SM + beta}, v{acc}, v{acc + 2}", rdy, key)

        stage1(sc, 0, sums if kind == "x" else None)
        if kind == "x":
            for k in range(10):
                sc.mfma(GR, DAT + 4 * k, DAT + 4 * k, None if k == 0 else GR)

        def fix(rdy, key):
            sc.add(f"v_lshlrev_b32 v{vb}, 16, v{vb}", rdy, key)
            sc.add(f"v_cndmask_b32_e64 v{ACCX + 1}, v{ACCX + 1}, v{vb}, s[{sM0}:{sM1}]", rdy, key)

        if w2t:
            sc.flush()
            for n in range(10):
                tr_store(n)()
                for op in tr_read(n + 10):
                    a(op)
        stage2(kind, sc, 0, 0, A2, ACCX, [], fix if kind == "w1" else None)
        stage2(kind, sc, 0, 1, A2 + 16, ACC1, [("y", 0), ("y", 1)])
        if w2t:
            for n in range(10, 20):
                tr_store(n)()
        if kind == "x":
            sc.add(f"v_add_f32 v{SM}, v{SM}, v{SM + 1}")
            sc.add(f"v_add_f32 v{SM + 2}, v{SM + 2}, v{SM + 3}")
            sc.add(f"v_add_f32 v{SM}, v{SM}, v{SM + 2}")
            for op in ("v_permlane32_swap_b32", "v_permlane16_swap_b32"):
                sc.add(f"v_mov_b32 v{SM + 1}, v{SM}")
                sc.add(f"{op} v{SM}, v{SM + 1}")
                sc.add(f"v_add_f32 v{SM}, v{SM}, v{SM + 1}")
            sc.add(f"v_mul_f32 v{SM}, v{SM}, v{SM}")
            for k in range(10, 20):
                sc.mfma(GR, DAT + 4 * k, DAT + 4 * k, GR)
        sc.flush()
        if kind == "x":
            for r in range(4):
                prev = "0" if r == 0 else f"v{T}"
                a(f"v_cndmask_b32_e64 v{T}, {prev}, v{GR + r}, s[{DIAG[r]}:{DIAG[r] + 1}]")
            for op in ("v_permlane32_swap_b32", "v_permlane16_swap_b32"):
                a(f"v_mov_b32 v{T + 1}, v{T}")
                a(f"{op} v{T}, v{T + 1}")
                a(f"v_add_f32 v{T}, v{T}, v{T + 1}")
            a(f"v_fmamk_f32 v{T}, v{SM}, {fx(-1.0 / (model2.SC * model2.SC * DM))}, v{T}")
            a(f"v_max_f32 v{T}, 0, v{T}")
            a(f"buffer_store_dword v{T}, v{vs}, s[{SRD2}:{SRD2 + 3}], 0 offen")
        if kind != KINDS[-1]:
            a(f"s_branch {name}_end")
    a.label(f"{name}_end")
    a.label(f"{name}_last")
    return lds
```

```python
from gen import *
import gen
import model2
import mlp
import p0
from mlp import MC, role_mlp
from mlp2 import M2, role_mlp2

SCALE = float(np.sqrt(2.0 / DM))
SIGN2 = 0x80008000


class FC:
    pre_gen = 1
    plan = 0
    mlp = 2
    warm = ("m", "ne")
    wpos = 1
    wsplit = 1
    wfl = ""


def fx(x):
    return f"{f32bits(x):#x}"


class Sched:
    def __init__(self, a, per=2):
        self.a, self.per = a, per
        self.fill = []
        self.done = set()
        self.n = 0

    def add(self, op, ready=-1, key=None):
        self.fill.append((ready, key, op))

    def _pop(self):
        _, key, op = self.fill.pop(0)
        if callable(op):
            op()
        else:
            self.a(op)
        if key is not None and all(k != key for _, k, _ in self.fill):
            self.done.add(key)

    def mfma(self, d, x, y, c, needs=()):
        for k in needs:
            while k not in self.done:
                self._pop()
        mfma(self.a, d, x, y, c)
        cnt = 0
        while self.fill and cnt < self.per and self.fill[0][0] <= self.n:
            self._pop()
            cnt += 1
        self.n += 1

    def flush(self):
        while self.fill:
            self._pop()


def role_fft(a, kind, name):
    vld, vr, vo = 4, 5, 9
    MK, M1, M2, M2N = 10, 14, 15, 16
    vph, vk0, vq20, vgf = 17, 18, 19, 36 - 1
    ACC1, A1, A2, Y, ACCX = 20, 36, 96, 144, 168
    TMP = Y
    G0 = 20
    DAT = 256
    sQ, sFT = sK0, sK1

    def frag(beta, j):
        return DAT + (beta * 5 + j) * 4

    if kind == "w1":
        a(f"s_and_b32 s{sA}, s{sT}, 7")
        a(f"s_lshr_b32 s{sB}, s{sT}, 5")
        a(f"s_lshl3_add_u32 s{sA}, s{sB}, s{sA}")
        a(f"s_cmp_ge_u32 s{sA}, 27")
        a(f"s_cbranch_scc1 {name}_end")
        a(f"s_bfe_u32 s{sB}, s{sT}, 0x20003")
        a(f"s_lshl2_add_u32 s{sFT}, s{sA}, s{sB}")
        a(f"s_and_b32 s{sA}, s{sW}, 1")
        a(f"s_lshl_b32 s{sA}, s{sA}, 2")
        a(f"v_lshrrev_b32 v{vld}, 1, v{vL}")
        a(f"v_xor_b32 v{vld}, s{sA}, v{vld}")
        a(f"v_mul_u32_u24 v{vld}, {FF * 2}, v{vld}")
        a(f"v_and_b32 v{vr}, 1, v{vL}")
        a(f"v_lshl_add_u32 v{vld}, v{vr}, 4, v{vld}")
        a(f"s_mul_i32 s{sA}, s{sW}, {32 * FF * 2}")
        a(f"s_lshl_b32 s{sB}, s{sFT}, 5")
        a(f"s_add_u32 s{sA}, s{sA}, s{sB}")
        a(f"v_add_u32 v{vld}, s{sA}, v{vld}")
    else:
        a(f"s_and_b32 s{sA}, s{sW}, 1")
        a(f"s_lshl_b32 s{sA}, s{sA}, 1")
        a(f"s_xor_b32 s{sA}, s{sA}, s{sW}")
        a(f"s_lshl_b32 s{sA}, s{sA}, 2")
        a(f"v_or_b32 v{vr}, s{sA}, v{vG}")
        a(f"v_xor_b32 v{vr}, v{vr}, v{vI}")
        if kind == "x":
            a(f"s_and_b32 s{sC}, s{sT}, 1")
            a(f"s_lshl_b32 s{sC}, s{sC}, 3")
            a(f"s_lshr_b32 s{sA}, s{sT}, 5")
            a(f"s_lshl4_add_u32 s{sC}, s{sA}, s{sC}")
            a(f"s_bfe_u32 s{sA}, s{sT}, 0x20001")
            a(f"s_lshl_b32 s{sA}, s{sA}, 8")
            a(f"s_add_u32 s{sC}, s{sC}, s{sA}")
            a(f"s_bfe_u32 s{sA}, s{sT}, 0x10003")
            a(f"s_lshl_b32 s{sA}, s{sA}, 7")
            a(f"s_add_u32 s{sC}, s{sC}, s{sA}")
            a(f"s_bfe_u32 s{sA}, s{sT}, 0x10004")
            a(f"s_lshl_b32 s{sA}, s{sA}, 10")
            a(f"s_add_u32 s{sC}, s{sC}, s{sA}")
            a(f"s_lshl1_add_u32 s{sC}, s{sW}, s{sC}")
            a(f"v_and_b32 v{vld}, 1, v{vG}")
            a(f"v_lshlrev_b32 v{vld}, 6, v{vld}")
            a(f"v_lshrrev_b32 v{vr + 1}, 1, v{vG}")
            a(f"v_add3_u32 v{vld}, v{vld}, v{vr + 1}, s{sC}")
        else:
            a(f"s_lshl_b32 s{sC}, s{sT}, 4")
            a(f"s_cmp_eq_u32 s{sT}, 108")
            a(f"s_cselect_b32 s{sC}, 0, s{sC}")
            a(f"s_lshl2_add_u32 s{sC}, s{sW}, s{sC}")
            a(f"v_add_u32 v{vld}, s{sC}, v{vG}")
        a(f"v_mul_u32_u24 v{vld}, 1280, v{vld}")
        a(f"v_lshl_add_u32 v{vld}, v{vr}, 4, v{vld}")
    a(f"s_lshl_b32 s{sE}, s{sW}, 10")

    def issue_loads():
        a("s_waitcnt lgkmcnt(0)")
        if kind == "x":
            srd(a, SRD0, P_X, 0, SEQ * DM * 2)
        elif kind == "w1":
            srd(a, SRD0, P_W1, 0, DM * FF * 2)
        else:
            a(f"s_cmp_eq_u32 s{sT}, 108")
            a(f"s_cselect_b32 s{SRD0}, s{P_B2}, s{P_W2}")
            a(f"s_cselect_b32 s{SRD0 + 1}, s{P_B2 + 1}, s{P_W2 + 1}")
            a(f"s_mov_b32 s{SRD0 + 2}, {FF * DM * 2}")
            a(f"s_cselect_b32 s{SRD0 + 2}, {DM * 2}, s{SRD0 + 2}")
            a(f"s_and_b32 s{SRD0 + 1}, s{SRD0 + 1}, 0xffff")
            a(f"s_mov_b32 s{SRD0 + 3}, 0x20000")
        for j in range(5):
            if kind == "w1":
                a(f"s_add_u32 m0, s{sE}, {j * 4096}")
                a(f"s_mov_b32 s{sOP}, {j * 128 * FF * 2}")
                a(f"buffer_load_dwordx4 v{vld}, s[{SRD0}:{SRD0 + 3}], s{sOP} offen lds")
            else:
                a(f"s_add_u32 m0, s{sE}, {j * 4096 - j * 256}")
                a(f"buffer_load_dwordx4 v{vld}, s[{SRD0}:{SRD0 + 3}], 0 offen offset:{j * 256} lds")
        mark(a, 1)
        if kind == "x":
            srd_ws(a, SRD1, "XP0", XP_SIZE)
        elif kind == "w1":
            srd_ws(a, SRD1, "W1F", W1F_SIZE)
        else:
            srd_ws(a, SRD1, "WA2", WA2_SIZE)

    a(f"v_bfe_u32 v{TMP}, v{vI}, 1, 1")
    a(f"v_lshlrev_b32 v{TMP}, 4, v{TMP}")
    a(f"v_mov_b32 v{TMP + 1}, 0xffff")
    a(f"v_lshlrev_b32 v{TMP}, v{TMP}, v{TMP + 1}")
    a(f"v_lshrrev_b32 v{TMP + 1}, 2, v{vI}")
    for k in range(4):
        a(f"v_cmp_eq_u32 vcc, {k}, v{TMP + 1}")
        a(f"v_cndmask_b32 v{MK + k}, 0, v{TMP}, vcc")
    a(f"v_and_b32 v{M2}, 1, v{vI}")
    a(f"v_cvt_f32_u32 v{vph}, v{M2}")
    a(f"v_mul_f32 v{vph}, 0.5, v{vph}")
    a(f"v_lshrrev_b32 v{vk0}, 1, v{vI}")
    a(f"v_cvt_f32_u32 v{vk0}, v{vk0}")
    a(f"v_mul_f32 v{vk0}, {fx(1 / 32)}, v{vk0}")
    a(f"v_cvt_f32_u32 v{vgf}, v{vG}")

    def gen_a1(base, fq, ph):
        t = TMP
        a(f"v_fma_f32 v{t}, v{vgf}, v{fq}, {ph}")
        for j in range(1, 5):
            a(f"v_fmamk_f32 v{t + j}, v{fq}, {fx(4.0 * j)}, v{t}")
        for j in range(5):
            a(f"v_cos_f32 v{t + j}, v{t + j}")
        for j in range(5):
            a(f"v_mul_f32 v{t + j}, {fx(SCALE)}, v{t + j}")
        for j in range(5):
            a(f"v_cvt_pk_bf16_f32 v{t + j}, v{t + j}, v{t + j}")
        for j in range(5):
            for k in range(4):
                a(f"v_and_b32 v{base + 4 * j + k}, v{MK + k}, v{t + j}")

    def angles(kf, ph):
        t = TMP
        a(f"v_mul_f32 v{t + 8}, v{vgf}, v{kf}")
        a(f"v_fma_f32 v{t}, v{t + 8}, 2.0, v{ph}")
        for k in range(1, 8):
            c = 16 * (k >> 2) + 8 * ((k >> 1) & 1) + (k & 1)
            a(f"v_fmamk_f32 v{t + k}, v{kf}, {fx(float(c))}, v{t}")

    def read_addr():
        if kind == "w1":
            a(f"v_and_b32 v{vr}, 1, v{vG}")
            a(f"v_lshlrev_b32 v{vr}, 7, v{vr}")
            a(f"v_lshl_add_u32 v{vr}, v{vG}, 10, v{vr}")
            a(f"v_lshl_add_u32 v{vr}, v{vI}, 3, v{vr}")
            a(f"v_xor_b32 v{vr + 1}, 128, v{vr}")
        else:
            a(f"v_and_b32 v{vr}, 4, v{vI}")
            a(f"v_lshlrev_b32 v{vr}, 1, v{vr}")
            a(f"v_xor_b32 v{vr}, v{vr}, v{vI}")
            a(f"v_lshlrev_b32 v{vr + 1}, 2, v{vG}")
            a(f"v_xor_b32 v{vr}, v{vr}, v{vr + 1}")
            a(f"v_lshlrev_b32 v{vr}, 4, v{vr}")
            a(f"v_lshl_add_u32 v{vr}, v{vI}, 8, v{vr}")
            for k in (1, 2, 3):
                a(f"v_xor_b32 v{vr + k}, {16 * k}, v{vr}")

    def out_addr():
        if kind == "x":
            a(f"v_lshlrev_b32 v{vo}, 15, v{vG}")
            a(f"v_lshl_add_u32 v{vo}, v{vI}, 3, v{vo}")
            a(f"s_lshl_b32 s{sA}, s{sQ}, 18")
            a(f"s_lshl_b32 s{sB}, s{sT}, 7")
        elif kind == "w1":
            a(f"v_mul_u32_u24 v{vo}, {W1F_STR}, v{vG}")
            a(f"v_lshl_add_u32 v{vo}, v{vI}, 4, v{vo}")
            a(f"s_mul_i32 s{sA}, s{sQ}, {8 * W1F_STR}")
            a(f"s_lshl_b32 s{sB}, s{sFT}, 8")
        else:
            a(f"v_lshrrev_b32 v{vo}, 1, v{vG}")
            a(f"v_mul_u32_u24 v{vo}, {KB_STR}, v{vo}")
            a(f"v_lshrrev_b32 v{vld}, 2, v{vI}")
            a(f"v_lshl_add_u32 v{vo}, v{vld}, 7, v{vo}")
            a(f"v_and_b32 v{vld}, 3, v{vI}")
            a(f"v_lshl_add_u32 v{vo}, v{vld}, 4, v{vo}")
            a(f"v_and_b32 v{vld}, 1, v{vG}")
            a(f"v_lshl_add_u32 v{vo}, v{vld}, 6, v{vo}")
            a(f"s_lshl_b32 s{sA}, s{sQ}, 10")
            a(f"s_mul_i32 s{sB}, s{sT}, {2 * KB_STR}")
        a(f"s_add_u32 s{sA}, s{sA}, s{sB}")
        a(f"v_add_u32 v{vo}, s{sA}, v{vo}")

    def reads():
        a("s_waitcnt vmcnt(0)")
        a("s_barrier")
        mark(a, 3)
        for beta in range(4):
            for j in range(5):
                if kind == "w1":
                    for eh in range(2):
                        a(f"ds_read_b64_tr_b16 {R(frag(beta, j) + 2 * eh, 2)}, v{vr + eh} offset:{4096 * j + 256 * beta}")
                else:
                    a(f"ds_read_b128 {R(frag(beta, j), 4)}, v{vr + beta} offset:{4096 * j}")

    def stage1(sc, n, extra=None):
        for beta in range(4):
            c = 4 * n + beta
            acc = ACC1 + 4 * (c % 4)
            for j in range(5):
                sc.mfma(acc, A1 + 20 * n + 4 * j, frag(beta, j), None if j == 0 else acc,
                        needs=[("y", c - 4)] if j == 0 and c >= 4 else [])
            rdy = sc.n + 5
            if extra:
                extra(beta, acc, rdy, ("y", c))
            for h in range(2):
                sc.add(f"v_cvt_pk_bf16_f32 v{Y + 2 * c + h}, v{acc + 2 * h}, v{acc + 2 * h + 1}", rdy, ("y", c))

    def stage2(sc, n, u, mat, acc, needs, fix=None):
        for tl in range(2):
            for kp in range(2):
                d = acc + 4 * tl
                m, y = mat + (tl * 2 + kp) * 4, Y + 8 * n + 4 * kp
                nd = list(needs) + [("y", 4 * n + 2 * kp), ("y", 4 * n + 2 * kp + 1)]
                if kind == "w2":
                    sc.mfma(d, y, m, None if kp == 0 else d, needs=nd)
                else:
                    sc.mfma(d, m, y, None if kp == 0 else d, needs=nd)
        rdy, key = sc.n + 3, ("o", n, u)
        if fix:
            fix(rdy, key)
        for k in range(4):
            sc.add(f"v_cvt_pk_bf16_f32 v{acc + k}, v{acc + 2 * k}, v{acc + 2 * k + 1}", rdy, key)
        if kind == "x":
            for tl in range(2):
                def st(tl=tl):
                    a(f"s_mov_b32 s{sOP}, {(16 * n + 8 * u + tl) * XP_STR}")
                    a(f"buffer_store_dwordx2 {V(acc + 2 * tl, 2)}, v{vo}, s[{SRD1}:{SRD1 + 3}], s{sOP} offen")
                sc.add(st, rdy, key)
        elif kind == "w1":
            def st():
                a(f"s_mov_b32 s{sOP}, {(8 * n + 4 * u) * W1F_STR}")
                a(f"buffer_store_dwordx4 {V(acc, 4)}, v{vo}, s[{SRD1}:{SRD1 + 3}], s{sOP} offen{Cfg.st_flags}")
            sc.add(st, rdy, key)
        else:
            sc.add(f"v_permlane16_swap_b32 v{acc}, v{acc + 2}", rdy, key)
            sc.add(f"v_permlane16_swap_b32 v{acc + 1}, v{acc + 3}", rdy, key)
            sc.add(f"buffer_store_dwordx4 {V(acc, 4)}, v{vo}, s[{SRD1}:{SRD1 + 3}], 0 offen offset:{1024 * n + 512 * u}{Cfg.st_flags}",
                   rdy, key)

    a(f"s_cmp_eq_u32 s{sW}, 3")
    a(f"s_cbranch_scc1 {name}_sp")

    a(f"s_mul_i32 s{sQ}, s{sW}, 3")
    a(f"s_add_u32 s{sQ}, s{sQ}, 1")
    a(f"v_mul_f32 v{vph}, 0.5, v{vph}")
    a(f"v_cvt_f32_u32 v{vq20}, s{sQ}")
    a(f"v_fmamk_f32 v{vk0}, v{vq20}, {fx(1 / 640)}, v{vk0}")
    a(f"v_mul_f32 v{vq20}, {fx(1 / 20)}, v{vq20}")
    a(f"v_mul_u32_u24 v{M2}, 0x8000, v{M2}")
    a(f"v_lshl_or_b32 v{M2}, v{M2}, 16, v{M2}")
    a(f"v_xor_b32 v{M2N}, {SIGN2:#x}, v{M2}")
    a(f"v_and_b32 v{M1}, 1, v{vG}")
    a(f"v_mul_u32_u24 v{M1}, 0x8000, v{M1}")
    a(f"v_lshl_or_b32 v{M1}, v{M1}, 16, v{M1}")
    for n in range(3):
        if n == FC.pre_gen:
            issue_loads()
        if n:
            a(f"v_add_f32 v{vk0}, {fx(1 / 640)}, v{vk0}")
            a(f"v_add_f32 v{vq20}, {fx(1 / 20)}, v{vq20}")
        gen_a1(A1 + 20 * n, vq20, f"v{vph}")
        angles(vk0, vph)
        for k in range(8):
            a(f"v_sin_f32 v{TMP + 8 + k}, v{TMP + k}")
            a(f"v_cos_f32 v{TMP + k}, v{TMP + k}")
        b = A2 + 16 * n
        for k in range(8):
            a(f"v_cvt_pk_bf16_f32 v{b + k}, v{TMP + k}, v{TMP + 8 + k}")
            if k & 1:
                a(f"v_cvt_pk_bf16_f32 v{b + 8 + k}, -v{TMP + 8 + k}, v{TMP + k}")
        for k in range(8):
            a(f"v_xor_b32 v{b + 8 + k}, v{M1}, v{b + (8 if k & 1 else 0) + k}")
    read_addr()
    out_addr()
    mark(a, 2)
    reads()
    sc = Sched(a)
    for n in range(3):
        stage1(sc, n)
        for k in range(16):
            sc.add(f"v_xor_b32 v{A1 + 20 * n + k}, v{M2N if k & 1 else M2}, v{A2 + 16 * n + k}", sc.n, ("d", n))
    mark(a, 4)
    bufs = [ACCX, ACC1, ACC1 + 8]
    hist = [[], [("y", 8), ("y", 9)], [("y", 10), ("y", 11)]]
    for k in range(6):
        n, u = divmod(k, 2)
        needs = hist[k] if k < 3 else [("o",) + divmod(k - 3, 2)]
        if u:
            needs = needs + [("d", n)]
        stage2(sc, n, u, A1 + 20 * n if u else A2 + 16 * n, bufs[k % 3], needs)
    sc.flush()
    a(f"s_branch {name}_end")

    a.label(f"{name}_sp")
    a(f"s_mov_b32 s{sQ}, 0")
    gen_a1(A1, vph, "0")
    a(f"v_mul_f32 v{vph}, 0.5, v{vph}")
    kf, ph = vq20, M1
    for tau in range(4):
        if tau == 1:
            issue_loads()
        if tau == 0:
            a(f"v_cmp_eq_u32 vcc, 0, v{vI}")
            a(f"v_mov_b32 v{kf}, 0.5")
            a(f"v_cndmask_b32 v{kf}, v{vk0}, v{kf}, vcc")
            a(f"v_cmp_gt_u32 vcc, 2, v{vI}")
            a(f"v_mov_b32 v{ph}, {fx(0.125)}")
            a(f"v_cndmask_b32 v{ph}, v{vph}, v{ph}, vcc")
        else:
            a(f"v_add_f32 v{kf}, {fx(tau / 4 + (10 / 640 if tau >= 2 else 0))}, v{vk0}")
            a(f"v_mul_f32 v{ph}, {'-1.0' if tau >= 2 else '1.0'}, v{vph}")
        angles(kf, ph)
        for k in range(8):
            a(f"v_cos_f32 v{TMP + k}, v{TMP + k}")
        for k in range(8):
            d = A2 + 8 * tau + k
            a(f"v_cvt_pk_bf16_f32 v{d}, v{TMP + k}, 0" if tau < 2 else f"v_cvt_pk_bf16_f32 v{d}, 0, v{TMP + k}")
    read_addr()
    out_addr()
    X0 = A1 + 20
    vs, vz, vb, GR, SM, T = X0, X0 + 1, X0 + 2, X0 + 4, X0 + 8, X0 + 12
    DIAG = (4, 6, 30, 70)
    if kind == "x":
        srd_ws(a, SRD2, "SS0", 2 * SS_SIZE)
        srd_ws(a, SRD3, "FLAG", FLAG_SIZE)
        a(f"s_lshr_b32 s{sA}, s{sT}, 4")
        a(f"s_lshl_b32 s{sA}, s{sA}, 10")
        a(f"s_and_b32 s{sB}, s{sT}, 7")
        a(f"s_lshl_b32 s{sB}, s{sB}, 7")
        a(f"s_add_u32 s{sA}, s{sA}, s{sB}")
        a(f"s_and_b32 s{sB}, s{sT}, 8")
        a(f"s_add_u32 s{sA}, s{sA}, s{sB}")
        a(f"v_lshrrev_b32 v{vs}, 1, v{vI}")
        a(f"v_lshlrev_b32 v{vs}, 4, v{vs}")
        a(f"v_lshl_add_u32 v{vs}, v{M2}, 2, v{vs}")
        a(f"v_lshl_add_u32 v{vs}, v{vG}, 20, v{vs}")
        a(f"v_add_u32 v{vs}, s{sA}, v{vs}")
        a(f"v_mov_b32 v{vz}, 0")
        a(f"s_lshl_b32 s{sA}, s{sT}, 8")
        a(f"v_lshl_add_u32 v{vb}, v{vL}, 2, s{sA}")
        a(f"s_mov_b32 s{sOQ}, {WS['SS2'] - WS['SS0']}")
        for r in range(4):
            m = 0x1000010000100001 << r
            a(f"s_mov_b32 s{DIAG[r]}, {m & 0xffffffff:#x}")
            a(f"s_mov_b32 s{DIAG[r] + 1}, {m >> 32:#x}")
    if kind == "w1":
        srd(a, SRD2, P_B1, 0, FF * 2)
        a(f"s_lshl_b32 s{sA}, s{sFT}, 5")
        a(f"v_lshl_add_u32 v{vs}, v{vI}, 1, s{sA}")
        a(f"buffer_load_ushort v{vb}, v{vs}, s[{SRD2}:{SRD2 + 3}], 0 offen")
        a(f"s_mov_b64 s[{sM0}:{sM1}], 0xffff")
    mark(a, 2)
    reads()
    if kind == "x":
        a(f"buffer_store_dword v{vz}, v{vs}, s[{SRD2}:{SRD2 + 3}], s{sOQ} offen")
        a(f"buffer_store_dword v{vz}, v{vb}, s[{SRD3}:{SRD3 + 3}], 0 offen")
    sc = Sched(a)

    def sums(beta, acc, rdy, key):
        sc.add(f"v_add_f32 v{SM + beta}, v{acc}, v{acc + 2}", rdy, key)

    stage1(sc, 0, sums if kind == "x" else None)
    if kind == "x":
        for k in range(10):
            sc.mfma(GR, DAT + 4 * k, DAT + 4 * k, None if k == 0 else GR)

    def fix(rdy, key):
        sc.add(f"v_lshlrev_b32 v{vb}, 16, v{vb}", rdy, key)
        sc.add(f"v_cndmask_b32_e64 v{ACCX + 1}, v{ACCX + 1}, v{vb}, s[{sM0}:{sM1}]", rdy, key)

    stage2(sc, 0, 0, A2, ACCX, [], fix if kind == "w1" else None)
    stage2(sc, 0, 1, A2 + 16, ACC1, [("y", 0), ("y", 1)])
    if kind == "x":
        sc.add(f"v_add_f32 v{SM}, v{SM}, v{SM + 1}")
        sc.add(f"v_add_f32 v{SM + 2}, v{SM + 2}, v{SM + 3}")
        sc.add(f"v_add_f32 v{SM}, v{SM}, v{SM + 2}")
        for op in ("v_permlane32_swap_b32", "v_permlane16_swap_b32"):
            sc.add(f"v_mov_b32 v{SM + 1}, v{SM}")
            sc.add(f"{op} v{SM}, v{SM + 1}")
            sc.add(f"v_add_f32 v{SM}, v{SM}, v{SM + 1}")
        sc.add(f"v_mul_f32 v{SM}, v{SM}, v{SM}")
        for k in range(10, 20):
            sc.mfma(GR, DAT + 4 * k, DAT + 4 * k, GR)
    sc.flush()
    if kind == "x":
        for r in range(4):
            prev = "0" if r == 0 else f"v{T}"
            a(f"v_cndmask_b32_e64 v{T}, {prev}, v{GR + r}, s[{DIAG[r]}:{DIAG[r] + 1}]")
        for op in ("v_permlane32_swap_b32", "v_permlane16_swap_b32"):
            a(f"v_mov_b32 v{T + 1}, v{T}")
            a(f"{op} v{T}, v{T + 1}")
            a(f"v_add_f32 v{T}, v{T}, v{T + 1}")
        a(f"v_fmamk_f32 v{T}, v{SM}, {fx(-1.0 / (model2.SC * model2.SC * DM))}, v{T}")
        a(f"v_max_f32 v{T}, 0, v{T}")
        a(f"buffer_store_dword v{T}, v{vs}, s[{SRD2}:{SRD2 + 3}], 0 offen")
    a.label(f"{name}_end")
    return 20480


def role_wc2(a):
    vld, va0, va1, va2, vo, vt, LD, ST = 4, 5, 6, 7, 8, 9, 12, 52
    REG = 5248
    a(f"s_bfe_u32 s{sA}, s{sT}, 0x20001")
    a(f"s_lshl_b32 s{sC}, s{sA}, 7")
    a(f"s_lshr_b32 s{sA}, s{sT}, 5")
    a(f"s_lshl_b32 s{sA}, s{sA}, 9")
    a(f"s_add_u32 s{sC}, s{sC}, s{sA}")
    a(f"s_bfe_u32 s{sA}, s{sT}, 0x10003")
    a(f"s_lshl_b32 s{sA}, s{sA}, 6")
    a(f"s_add_u32 s{sC}, s{sC}, s{sA}")
    a(f"s_and_b32 s{sA}, s{sT}, 16")
    a(f"s_add_u32 s{sC}, s{sC}, s{sA}")
    a(f"s_and_b32 s{sA}, s{sT}, 1")
    a(f"s_lshl3_add_u32 s{sC}, s{sA}, s{sC}")
    a(f"s_lshr_b32 s{sA}, s{sW}, 1")
    a(f"s_lshl_b32 s{sA}, s{sA}, 5")
    a(f"s_add_u32 s{sC}, s{sC}, s{sA}")
    a(f"s_mul_i32 s{sC}, s{sC}, 642")
    a(f"s_add_u32 s{sD}, s{sC}, 4096")
    a(f"v_lshlrev_b32 v{vld}, 4, v{vL}")
    a(f"s_mul_i32 s{sE}, s{sW}, {REG}")
    a(f"s_bitcmp1_b32 s{sW}, 0")
    a("s_waitcnt lgkmcnt(0)")
    a(f"s_cselect_b32 s{SRD0}, s{P_WI}, s{P_WR}")
    a(f"s_cselect_b32 s{SRD0 + 1}, s{P_WI + 1}, s{P_WR + 1}")
    a(f"s_and_b32 s{SRD0 + 1}, s{SRD0 + 1}, 0xffff")
    a(f"s_mov_b32 s{SRD0 + 2}, {SEQ * 642}")
    a(f"s_mov_b32 s{SRD0 + 3}, 0x20000")
    a(f"s_mov_b32 m0, s{sE}")
    for j in range(4):
        a(f"buffer_load_dwordx4 v{vld}, s[{SRD0}:{SRD0 + 3}], s{sC} offen offset:{j * 1024} lds")
    a(f"s_add_u32 m0, s{sE}, 4096")
    a(f"buffer_load_dwordx4 v{vld}, s[{SRD0}:{SRD0 + 3}], s{sD} offen lds")
    a("s_mov_b64 exec, 1")
    a(f"buffer_load_dwordx4 v{vld}, s[{SRD0}:{SRD0 + 3}], s{sD} offen offset:1024 lds")
    a("s_mov_b64 exec, -1")
    mark(a, 1)
    srd_ws(a, SRD1, "WC", WC_SIZE)
    a(f"v_bfe_u32 v{vt}, v{vL}, 3, 1")
    a(f"v_lshlrev_b32 v{vt}, 2, v{vt}")
    a(f"v_add_u32 v{vt}, v{vt}, v{vG}")
    a(f"s_cmp_lt_u32 s{sW}, 2")
    a(f"s_cselect_b32 s{sK0}, 1, -1")
    a(f"s_mul_i32 s{sA}, s{sK0}, 80")
    a(f"s_mul_i32 s{sB}, s{sK0}, 40")
    a(f"v_mul_i32_i24 v{va0}, s{sA}, v{vt}")
    a(f"v_and_b32 v{vt}, 7, v{vL}")
    a(f"v_mul_u32_u24 v{va1}, 642, v{vt}")
    a(f"v_add_u32 v{va0}, v{va0}, v{va1}")
    a(f"s_mul_i32 s{sK1}, s{sW}, 5")
    a(f"s_sub_u32 s{sK2}, 325, s{sK1}")
    a(f"s_cmp_lt_u32 s{sW}, 2")
    a(f"s_cselect_b32 s{sK2}, s{sK1}, s{sK2}")
    a(f"s_lshl_b32 s{sK2}, s{sK2}, 1")
    a(f"v_add_u32 v{va0}, s{sK2}, v{va0}")
    a(f"v_add_u32 v{va1}, s{sB}, v{va0}")
    a(f"v_cmp_gt_u32 vcc, 8, v0")
    a(f"v_add_u32 v{va2}, 640, v{va0}")
    a(f"v_cndmask_b32 v{va2}, v{va0}, v{va2}, vcc")
    a(f"v_lshrrev_b32 v{vo}, 3, v{vL}")
    a(f"v_lshlrev_b32 v{vo}, 14, v{vo}")
    a(f"v_lshl_add_u32 v{vo}, v{vt}, 4, v{vo}")
    a(f"s_lshl_b32 s{sA}, s{sT}, 7")
    a(f"s_lshr_b32 s{sB}, s{sW}, 1")
    a(f"s_lshl_b32 s{sB}, s{sB}, 17")
    a(f"s_add_u32 s{sA}, s{sA}, s{sB}")
    a(f"v_add_u32 v{vo}, s{sA}, v{vo}")
    a(f"s_sub_u32 s{sK2}, s{sK1}, 5")
    a(f"s_cmp_lt_u32 s{sW}, 2")
    a(f"s_cselect_b32 s{sK1}, s{sK1}, s{sK2}")
    a("s_waitcnt vmcnt(0)")
    a("s_barrier")
    mark(a, 2)
    for n in range(5):
        for rl in range(2):
            for ph in range(2):
                ad = va1 if ph else (va2 if n == 0 else va0)
                for ar in range(2):
                    a(f"ds_read_u16 v{LD + n * 8 + (rl * 2 + ph) * 2 + ar}, v{ad} offset:{(rl * 2 + ar) * REG + 2 * n}")
    for n in range(5):
        for k in range(4):
            a(f"v_lshl_or_b32 v{ST + 4 * n + k}, v{LD + n * 8 + 2 * k + 1}, 16, v{LD + n * 8 + 2 * k}")
        if n == 0:
            a(f"s_cmp_eq_u32 s{sK1}, 10")
            a(f"s_cselect_b32 s{sOP}, 0, s{sK1}")
            a(f"s_lshl_b32 s{sOP}, s{sOP}, 18")
        else:
            a(f"s_add_i32 s{sK1}, s{sK1}, s{sK0}")
            a(f"s_lshl_b32 s{sOP}, s{sK1}, 18")
        a(f"buffer_store_dwordx4 {V(ST + 4 * n, 4)}, v{vo}, s[{SRD1}:{SRD1 + 3}], s{sOP} offen{Cfg.st_flags}")
    return 4 * REG


def warm_lines(a, streams, v0_, idx_waves):
    if not streams:
        return
    va, vb, vc = v0_, v0_ + 1, v0_ + 2
    idx_waves(sA)
    a(f"s_and_b32 s{sB}, s{sT}, 1")
    a(f"s_mov_b32 m0, {p0.SCRATCH}")
    a(f"v_lshlrev_b32 v{va}, 7, v{vL}")

    def ld(v, so, off=0):
        for h in range(FC.wsplit):
            a(f"buffer_load_dword v{v}, s[{SRD4}:{SRD4 + 3}], s{so} offen offset:{off + 64 * h}{FC.wfl} lds")

    for ch in streams:
        if ch == "1":
            srd_ws(a, SRD4, "W1F", W1F_SIZE)
            a(f"s_mul_i32 s{sOP}, s{sA}, {W1F_STR}")
            a(f"s_mul_i32 s{sOQ}, s{sB}, {W1F_STR // 2}")
            a(f"s_add_u32 s{sOP}, s{sOP}, s{sOQ}")
            a(f"s_add_u32 s{sOQ}, s{sOP}, 8192")
            ld(va, sOP)
            a(f"s_mov_b32 exec_hi, {(1 << 12) - 1}")
            ld(va, sOQ)
            a("s_mov_b32 exec_hi, -1")
        elif ch in "mn":
            srd_code(a, SRD4, "m1_kernel" if ch == "m" else "m2_kernel")
            a(f"s_lshl_b32 s{sOP}, s{sA}, 13")
            ld(va, sOP)
        elif ch == "e":
            srd_table(a, SRD4, "ft2")
            a(f"s_lshl1_add_u32 s{sOP}, s{sA}, s{sB}")
            a(f"s_mul_i32 s{sOP}, s{sOP}, {KB_STR // 2}")
            a(f"s_mov_b32 exec_hi, {(1 << 8) - 1}")
            ld(va, sOP)
            a("s_mov_b32 exec_hi, -1")
        else:
            srd_ws(a, SRD4, "WA2" if ch == "a" else "W2T", WA2_SIZE if ch == "a" else W2T_SIZE)
            a(f"v_cmp_lt_u32 vcc, 39, v{vL}")
            a(f"v_add_u32 v{vb}, {KB_STR // 2}, v{va}")
            a(f"v_cndmask_b32 v{vb}, v{va}, v{vb}, vcc")
            a(f"v_cmp_lt_u32 vcc, 15, v{vL}")
            a(f"v_add_u32 v{vc}, {KB_STR // 2}, v{va}")
            a(f"v_cndmask_b32 v{vc}, v{va}, v{vc}, vcc")
            a(f"s_mul_i32 s{sOP}, s{sA}, {3 * KB_STR}")
            a(f"s_mul_i32 s{sOQ}, s{sB}, {KB_STR // 2}")
            a(f"s_add_u32 s{sOP}, s{sOP}, s{sOQ}")
            a(f"s_add_u32 s{sOQ}, s{sOP}, {8192 + KB_STR // 2}")
            ld(vb, sOP)
            a(f"s_mov_b32 exec_hi, {(1 << 24) - 1}")
            ld(vc, sOQ)
            a("s_mov_b32 exec_hi, -1")


def role_col2(a, src, ssn, dst, warm=""):
    vx, vw, vl0, vmI = 4, 5, 6, 10
    fi, fg, fa, fb = 11, 12, 13, 14
    raw, ss, wraw = 16, 32, 40
    M1, M2 = 56, 88
    T1, T2 = 120, 136
    ACC, FO, TMP, WU0 = 152, 184, 200, 232
    FGR = [TMP + 4 * k for k in range(8)] + [ss, ss + 4, 248, 252]
    WU = (WU0, T1)

    a(f"s_mul_i32 s{sB}, s{sW}, 3072")
    a(f"v_lshlrev_b32 v{vl0}, 4, v0")
    a(f"v_add_u32 v{vx}, s{sB}, v{vl0}")
    a(f"s_lshl_b32 s{sB}, s{sW}, 10")
    a(f"v_add_u32 v{vw}, s{sB}, v{vl0}")
    a(f"s_lshl_b32 s{sF}, s{sT}, 14")

    def issue_loads():
        a("s_waitcnt lgkmcnt(0)")
        srd_ws(a, SRD0, src, XP_SIZE)
        srd_ws(a, SRD1, ssn, SS_SIZE)
        for t in range(2):
            a(f"buffer_load_dwordx4 {V(ss + 4 * t, 4)}, v{vw}, s[{SRD1}:{SRD1 + 3}], 0 offen offset:{t * 1024}")
        for k in range(4):
            a(f"buffer_load_dwordx4 {V(raw + 4 * k, 4)}, v{vx}, s[{SRD0}:{SRD0 + 3}], s{sF} offen offset:{k * 1024}")
        srd_ws(a, SRD2, "WC", WC_SIZE)
        for k in range(4):
            a(f"buffer_load_dwordx4 {V(wraw + 4 * k, 4)}, v{vx}, s[{SRD2}:{SRD2 + 3}], s{sF} offen offset:{k * 1024}")
        srd_ws(a, SRD3, dst, XP_SIZE)
        mark(a, 1)

    def pos(base, k, c):
        return base + (k >> 1) * 4 + (k & 1) * 2 + c

    for kk in (1, 2, 3):
        a(f"v_xor_b32 v{vl0 + kk}, {kk * 1024}, v{vl0}")
    a(f"v_and_b32 v{vmI}, 1, v{vI}")
    a(f"v_mul_u32_u24 v{vmI}, 0x8000, v{vmI}")
    a(f"v_lshl_or_b32 v{vmI}, v{vmI}, 16, v{vmI}")
    a(f"v_cvt_f32_u32 v{fi}, v{vI}")
    a(f"v_lshlrev_b32 v{fg}, 2, v{vG}")
    a(f"v_cvt_f32_u32 v{fg}, v{fg}")

    def m1(qb, t, var):
        return M1 + ((qb * 2 + t) * 2 + var) * 4

    def m2(kk, var):
        return M2 + (kk * 2 + var) * 4

    a(f"v_mul_f32 v{fa}, {fx(1 / 32)}, v{fi}")
    a(f"v_mul_f32 v{TMP}, v{fg}, v{fa}")
    for jj in range(1, 4):
        a(f"v_fmamk_f32 v{TMP + 3 * jj}, v{fa}, {fx(float(jj))}, v{TMP}")
    for jj in range(4):
        t = TMP + 3 * jj
        a(f"v_cos_f32 v{t + 1}, v{t}")
        a(f"v_sin_f32 v{t + 2}, v{t}")
    for jj in range(4):
        t = TMP + 3 * jj
        n = "-" if jj & 1 else ""
        m = "" if jj & 1 else "-"
        a(f"v_cvt_pk_bf16_f32 v{m1(0, 0, 0) + jj}, v{t + 1}, v{t + 2}")
        a(f"v_cvt_pk_bf16_f32 v{m1(0, 0, 1) + jj}, -v{t + 2}, v{t + 1}")
        a(f"v_cvt_pk_bf16_f32 v{m1(1, 0, 0) + jj}, {n}v{t + 1}, {n}v{t + 2}")
        a(f"v_cvt_pk_bf16_f32 v{m1(1, 0, 1) + jj}, {m}v{t + 2}, {n}v{t + 1}")
    for qb in range(2):
        for var in range(2):
            for jj in range(4):
                a(f"v_xor_b32 v{m1(qb, 1, var) + jj}, v{vmI}, v{m1(qb, 0, var) + jj}")

    a(f"s_lshl_b32 s{sA}, s{sW}, 4")
    a(f"v_cvt_f32_u32 v{fb}, s{sA}")
    a(f"v_add_f32 v{TMP + 24}, v{fb}, v{fg}")
    a(f"v_add_f32 v{fb}, v{fb}, v{fi}")
    a(f"v_mul_f32 v{TMP + 25}, {fx(1 / 2048)}, v{fi}")
    a(f"v_add_f32 v{TMP + 26}, {fx(16 / 2048)}, v{TMP + 25}")
    for r in range(4):
        a(f"v_add_f32 v{TMP + r}, {fx(float(r))}, v{TMP + 24}")
    for qb in range(2):
        for r in range(4):
            t = TMP + 4 + (qb * 4 + r)
            a(f"v_mul_f32 v{t}, v{TMP + r}, v{TMP + 25 + qb}")
            a(f"v_cos_f32 v{T1 + qb * 8 + r}, v{t}")
            a(f"v_sin_f32 v{T1 + qb * 8 + 4 + r}, v{t}")
    issue_loads()

    def do_warm(pos):
        def idx(r):
            a(f"s_lshr_b32 s{r}, s{sT}, 3")
            a(f"s_lshl2_add_u32 s{r}, s{r}, s{sW}")
        if pos == FC.wpos:
            a(f"s_mov_b64 s[4:5], s[{sA}:{sA + 1}]")
            warm_lines(a, warm, 248, idx)
            a(f"s_mov_b64 s[{sA}:{sA + 1}], s[4:5]")

    do_warm(0)
    a(f"v_mul_f32 v{fa}, {fx(1 / 64)}, v{fb}")
    a(f"s_xor_b32 s{sA}, s{sA}, 16")
    a(f"v_cvt_f32_u32 v{TMP + 24}, s{sA}")
    a(f"v_add_f32 v{TMP + 24}, v{TMP + 24}, v{fg}")
    for kk in range(2):
        for r in range(4):
            t = TMP + 12 + 3 * r
            if kk == 0:
                a(f"v_mul_f32 v{t}, v{TMP + r}, v{fa}")
            else:
                a(f"v_add_f32 v{t}, {fx(float(r))}, v{TMP + 24}")
                a(f"v_mul_f32 v{t}, v{t}, v{fa}")
            a(f"v_cos_f32 v{t + 1}, v{t}")
            a(f"v_sin_f32 v{t + 2}, v{t}")
        for r in range(4):
            t = TMP + 12 + 3 * r
            a(f"v_cvt_pk_bf16_f32 v{m2(kk, 0) + r}, v{t + 1}, v{t + 2}")
            a(f"v_cvt_pk_bf16_f32 v{m2(kk, 1) + r}, -v{t + 2}, v{t + 1}")
    for kk in range(2):
        for var in range(2):
            for r in range(4):
                a(f"v_xor_b32 v{m2(kk + 2, var) + r}, v{vmI}, v{m2(kk, var) + r}")

    a(f"v_mul_f32 v{fa}, {fx(1 / 2048)}, v{fb}")
    a(f"v_mul_f32 v{TMP}, v{fg}, v{fa}")
    for k in range(1, 8):
        a(f"v_fmamk_f32 v{TMP + k}, v{fa}, {fx(float(16 * (k >> 2) + (k & 3)))}, v{TMP}")
    for k in range(8):
        u, r = divmod(k, 4)
        a(f"v_cos_f32 v{T2 + u * 8 + r}, v{TMP + k}")
        a(f"v_sin_f32 v{T2 + u * 8 + 4 + r}, v{TMP + k}")

    a(f"s_mov_b32 s{sK1}, 0xffff0000")
    a(f"s_cmp_eq_u32 s{sT}, 0")
    a(f"s_cselect_b32 s{sK2}, 0, s{sK1}")
    a(f"s_mov_b32 s{sK0}, {fx(-1 / 2048)}")
    a(f"s_cselect_b32 s{sK3}, 0, s{sK0}")
    a(f"s_mov_b32 s{sA}, {fx(1 / DM)}")
    a(f"s_mov_b32 s{sB}, {fx(1 / 2048)}")
    a(f"v_mov_b32 v{fa}, {fx(1e-5)}")
    mark(a, 2)
    for k in range(8):
        a(f"v_fma_f32 v{ss + k}, v{ss + k}, s{sA}, v{fa}")
    for k in range(8):
        a(f"v_rsq_f32 v{ss + k}, v{ss + k}")

    def acc(c, b, var):
        return ACC + c * 16 + (b * 2 + var) * 4

    def fo(c, b):
        return FO + c * 8 + b * 4

    def unpack(dst, base, c, mask):
        ops = []
        for k in range(8):
            ops.append(f"v_lshlrev_b32 v{dst + 2 * k}, 16, v{pos(base, k, c)}")
            ops.append(f"v_and_b32 v{dst + 2 * k + 1}, s{mask}, v{pos(base, k, c)}")
        return ops

    def unpack_w(c):
        ops = []
        for k in range(8):
            u, r = divmod(k, 4)
            ops.append(f"v_lshlrev_b32 v{WU[c] + u * 8 + r}, 16, v{pos(wraw, k, c)}")
            ops.append(f"v_and_b32 v{WU[c] + u * 8 + 4 + r}, s{sK1}, v{pos(wraw, k, c)}")
        return ops

    def scale(c):
        t = TMP + 16 * c
        for k in range(8):
            h = k & 1
            a(f"v_pk_mul_f32 {V(t + 2 * k, 2)}, {V(t + 2 * k, 2)}, {V(ss + k - h, 2)} op_sel:[0,{h}] op_sel_hi:[1,{h}]")
        for k in range(8):
            a(f"v_cvt_pk_bf16_f32 v{fo(c, 0) + k}, v{t + 2 * k}, v{t + 2 * k + 1}")

    sc = Sched(a)

    def stage_a(c):
        for t in range(2):
            for qb in range(2):
                for var in range(2):
                    sc.mfma(acc(c, qb, var), fo(c, t), m1(qb, t, var), None if t == 0 else acc(c, qb, var))
        sc.flush()

    for op in unpack(TMP, raw, 0, sK2):
        a(op)
    scale(0)
    mark(a, 3)
    for op in unpack(TMP + 16, raw, 1, sK1):
        sc.add(op)
    stage_a(0)
    scale(1)
    for op in unpack_w(0):
        sc.add(op)
    stage_a(1)
    do_warm(1)

    def mm(c, b, var, f, kk, data_is_a):
        cc = None if kk == 0 else acc(c, b, var)
        if data_is_a:
            sc.mfma(acc(c, b, var), f, m2(kk, var), cc)
        else:
            sc.mfma(acc(c, b, var), m2(kk, var), f, cc)

    def exchange(base, data_is_a, cm, fill_own, fill_rest):
        for c in range(2):
            for b in range(2):
                cm(c, b)
                a(f"ds_write_b128 v{vl0}, {V(fo(c, b), 4)} offset:{base + (c * 2 + b) * 4096}")
        a("s_waitcnt lgkmcnt(0)")
        a("s_barrier")
        for c in range(2):
            for kk in (1, 2, 3):
                for b in range(2):
                    f = FGR[(c * 3 + kk - 1) * 2 + b]
                    a(f"ds_read_b128 {R(f, 4)}, v{vl0 + kk} offset:{base + (c * 2 + b) * 4096}")
        for op in fill_own:
            sc.add(op)
        for c in range(2):
            for b in range(2):
                for var in range(2):
                    mm(c, b, var, fo(c, b), 0, data_is_a)
        for op in fill_rest:
            sc.add(op)
        for c in range(2):
            for kk in (1, 2, 3):
                for b in range(2):
                    for var in range(2):
                        mm(c, b, var, FGR[(c * 3 + kk - 1) * 2 + b], kk, data_is_a)
        sc.flush()

    def cm1(c, b):
        cmul_pack(a, fo(c, b), acc(c, b, 0), acc(c, b, 1), T1 + b * 8, T1 + b * 8 + 4, TMP + 8 * (2 * c + b))

    def cm2(c, b):
        cmul_pack(a, fo(c, b), acc(c, b, 0), acc(c, b, 1), WU[c] + b * 8, WU[c] + b * 8 + 4, TMP + 8 * (2 * c + b),
                  conj_w=True)

    exchange(0, False, cm1, unpack_w(1), [])
    mark(a, 4)
    do_warm(2)
    exchange(16384, True, cm2, unpack(WU[0], raw, 0, sK1), unpack(WU[1], raw, 1, sK1))
    mark(a, 5)
    for c in range(2):
        for u in range(2):
            cmul_pack(a, fo(c, u), acc(c, u, 0), acc(c, u, 1), T2 + u * 8, T2 + u * 8 + 4, TMP + 8 * (2 * c + u))
    for t in range(2):
        for c in range(2):
            for u in range(2):
                for var in range(2):
                    sc.mfma(acc(c, t, var), m1(t, u, var), fo(c, u), None if u == 0 else acc(c, t, var))
        rdy = sc.n + 2
        for rh in range(2):
            for c in range(2):
                for rl in range(2):
                    k = 4 * t + 2 * rh + rl
                    w = WU[c] + 2 * k
                    sc.add(f"v_fma_f32 v{w}, v{acc(c, t, 0) + 2 * rh + rl}, s{sB}, v{w}", rdy)
                    sc.add(f"v_fma_f32 v{w + 1}, v{acc(c, t, 1) + 2 * rh + rl}, s{sK0 if c else sK3}, v{w + 1}", rdy)
            for c in range(2):
                for rl in range(2):
                    k = 4 * t + 2 * rh + rl
                    w = WU[c] + 2 * k
                    sc.add(f"v_cvt_pk_bf16_f32 v{pos(raw, k, c)}, v{w}, v{w + 1}", rdy)
            k = 2 * t + rh
            sc.add(f"buffer_store_dwordx4 {V(raw + 4 * k, 4)}, v{vx}, s[{SRD3}:{SRD3 + 3}], s{sF} offen offset:{k * 1024}{Cfg.st_flags}",
                   rdy)
    sc.flush()
    return 32768


def tables():
    L = []
    c = np.sqrt(2.0 / DM) * np.cos(2 * np.pi * np.arange(DM) / DM)
    c[160] = 0
    c[480] = 0
    bits = model.bf16_bits(c.astype(np.float32))
    for n in range(DM):
        L.append(f".set cq{n}, {bits[n]}")
    bb = int(model.bf16_bits(np.float32([np.sqrt(1 / DM)]))[0])
    k2 = model2.kmap()
    L.append(".altmacro")
    L.append(".macro e8 a,b,c,d,e,f,g,h\n.short cq\\a, cq\\b, cq\\c, cq\\d, cq\\e, cq\\f, cq\\g, cq\\h\n.endm")
    L.append(".macro e6 a,b,c,d,e,f\n.short cq\\a, cq\\b, cq\\c, cq\\d, cq\\e, cq\\f\n.endm")
    L.append(".p2align 12\nft2:")
    for kb in range(80):
        L.append(".set td, 0\n.rept 640")
        ent = [f"%(({k2[4 * kb + j // 2]}*td+{160 * (j & 1)})%640)" for j in range(8)]
        if kb == 0:
            L.append(f".short {bb}+((td&1)<<15), {bb}")
            L.append("e6 " + ", ".join(ent[2:]))
        else:
            L.append("e8 " + ", ".join(ent))
        L.append(".set td, td+1\n.endr")
    L.append(".noaltmacro")
    return "\n".join(L) + "\n"


def plan():
    ext = [{}, {"k": lambda a: role_col2(a, "XP0", "SS0", "XP1", FC.warm[0])},
           {"k": lambda a: role_col2(a, "XP2", "SS2", "XP3", FC.warm[1]), "t": lambda a: role_w2t(a, 2)}]
    fr = []
    for n, name in enumerate(("p0", "c1", "c2")):
        o, l = p0.PC.order[n], p0.PC.lay[n]
        fr.append((name + "_kernel", [(sum(p0.CNT[c] for c in o),
                                       lambda a, name=name, o=o, l=l, n=n: p0.role_front(a, name, o, l, ext[n]))]))
    rm = role_mlp2 if FC.mlp == 2 else role_mlp
    m1 = ("m1_kernel", [(256, lambda a: rm(a, False, "m1"))])
    m2 = ("m2_kernel", [(256, lambda a: rm(a, True, "m2"))])
    if FC.plan == 1:
        return [fr[0], fr[1], m1, ("m3_kernel", [(256, lambda a: rm(a, False, "m3"))]), fr[2], m2,
                ("m4_kernel", [(256, lambda a: rm(a, True, "m4"))])]
    return [fr[0], fr[1], m1, fr[2], m2]


if __name__ == "__main__":
    Cfg.dcbias = 1
    Cfg.rho = 1
    Cfg.st_flags = " sc1"
    for opt in sys.argv[2:]:
        if opt == "stamp":
            Cfg.stamp = True
        elif opt == "clk":
            Cfg.stamp = Cfg.clk = True
        else:
            k, v = opt.split("=", 1)
            tgt = [c for c in (FC, M2 if FC.mlp == 2 else MC, p0.PC, Cfg) if hasattr(c, k)][0]
            v = eval(v)
            setattr(tgt, k, v.replace("_", " ") if isinstance(v, str) else v)
    txt = generate(plan(), tables)
    for name, o in zip(("p0", "c1", "c2"), p0.PC.order):
        txt = txt.replace(f"; roles {name}_kernel {sum(p0.CNT[c] for c in o)}",
                          f"; roles {name}_kernel " + " ".join(str(p0.CNT[c]) for c in o))
    open(sys.argv[1], "w").write(txt)
```

```python
import sys
import struct
import numpy as np

sys.path.insert(0, "gen")
from asmlib import Asm, Inst, R, V, A, S
import model

SEQ, DM, FF = 2048, 640, 1728

XP_STR = SEQ * 8
XP_SIZE = 160 * XP_STR
H_STR = SEQ * 16
H_SIZE = 216 * H_STR
W1F_STR = FF * 16
W1F_SIZE = 80 * W1F_STR
KB_STR = DM * 16
WA2_SIZE = 224 * KB_STR
W2T_SIZE = 224 * KB_STR
FT_SIZE = 80 * KB_STR
WC_SIZE = 320 * 8192
SS_SIZE = 8192
SS2_SIZE = 16384
FLAG_SIZE = 320 * 1024

WS = {}
_off = 0
for _name, _size in (("XP0", XP_SIZE), ("XP1", XP_SIZE), ("XP2", XP_SIZE), ("XP3", XP_SIZE), ("H", H_SIZE), ("H2", H_SIZE),
                     ("W1F", W1F_SIZE), ("WA2", WA2_SIZE), ("W2T", W2T_SIZE), ("WC", WC_SIZE),
                     ("SS0", SS_SIZE), ("SS2", SS2_SIZE), ("FLAG", FLAG_SIZE), ("X3", XP_SIZE), ("STAMP", 1 << 21)):
    WS[_name] = _off
    _off += (_size + 4095) // 4096 * 4096
WS_END = _off

P_X, P_WR, P_WI, P_W1, P_B1, P_W2, P_B2, P_OUT, P_WS = 8, 10, 12, 16, 18, 20, 22, 24, 28
SRD0, SRD1, SRD2, SRD3, SRD4, SRD5 = 32, 36, 40, 44, 48, 52
sW, sT, sA, sB, sC, sD, sE, sF = 56, 57, 58, 59, 60, 61, 62, 63
sOP, sOQ = 64, 65
sK0, sK1, sK2, sK3 = 66, 67, 68, 69
sM0, sM1 = 70, 71
sST = 72
vI, vG, vL = 1, 2, 3


def f32bits(x):
    return struct.unpack("<I", struct.pack("<f", x))[0]


def srd(a, dst, base, off, size):
    if off:
        a(f"s_add_u32 s{dst}, s{base}, {off}")
        a(f"s_addc_u32 s{dst + 1}, s{base + 1}, 0")
        a(f"s_and_b32 s{dst + 1}, s{dst + 1}, 0xffff")
    else:
        a(f"s_mov_b32 s{dst}, s{base}")
        a(f"s_and_b32 s{dst + 1}, s{base + 1}, 0xffff")
    a(f"s_mov_b32 s{dst + 2}, {size}")
    a(f"s_mov_b32 s{dst + 3}, 0x20000")


def srd_ws(a, dst, name, size):
    srd(a, dst, P_WS, WS[name], size)


def srd_table(a, dst, sym):
    a(f"s_getpc_b64 s[{dst}:{dst + 1}]")
    a(f"s_add_u32 s{dst}, s{dst}, {sym}@rel32@lo+4")
    a(f"s_addc_u32 s{dst + 1}, s{dst + 1}, {sym}@rel32@hi+12")
    a(f"s_and_b32 s{dst + 1}, s{dst + 1}, 0xffff")
    a(f"s_mov_b32 s{dst + 2}, {FT_SIZE}")
    a(f"s_mov_b32 s{dst + 3}, 0x20000")


def srd_code(a, dst, kern):
    a(f"s_getpc_b64 s[{dst}:{dst + 1}]")
    a(f"s_add_u32 s{dst}, s{dst}, {kern}_code@rel32@lo+4")
    a(f"s_addc_u32 s{dst + 1}, s{dst + 1}, {kern}_code@rel32@hi+12")
    a(f"s_and_b32 s{dst + 1}, s{dst + 1}, 0xffff")
    a(f"s_mov_b32 s{dst + 2}, {kern}_cend-{kern}_code")
    a(f"s_mov_b32 s{dst + 3}, 0x20000")


class Cfg:
    stamp = False
    clk = False
    nodot = 0
    g2depth = 7
    g2lay = 0
    plan = 0
    pdepth = 4
    st_flags = ""
    dcbias = 0
    rho = 0


def mark(a, n):
    if Cfg.stamp:
        op = "s_memtime" if Cfg.clk and n < 11 else "s_memrealtime"
        a(f"{op} s[{sST + 2 * n}:{sST + 2 * n + 1}]")


def mfma(a, d, x, y, c):
    a(f"v_mfma_f32_16x16x32_bf16 {R(d, 4)}, {R(x, 4)}, {R(y, 4)}, {'0' if c is None else R(c, 4)}")


def gemm_ks(a, nsteps, depth, acc, ring, vred, p_is_a, issue_p, issue_q, q_regs=16, prep_q=None,
            after_prologue=None, step_hook=None):
    stage = 20 + q_regs

    def accr(p, q):
        return acc + (q * 5 + p) * 4

    def preg(t, p):
        return ring + (t % depth) * stage + p * 4

    def qbase(t):
        return ring + (t % depth) * stage + 20

    def load_step(t):
        ops = []
        for q in range(4):
            ops.append(("q", q))
        for p in range(5):
            ops.append(("p", p))
        order = [ops[0], ops[4], ops[5], ops[1], ops[6], ops[7], ops[8], ops[2], ops[3]]
        for kind, j in order:
            if kind == "p":
                issue_p(t, j, preg(t, j))
            else:
                issue_q(t, j, qbase(t))

    for t in range(min(depth, nsteps)):
        load_step(t)
    if after_prologue:
        after_prologue()

    vw = [vred, vred + 1, vred + 2]
    vr = vred + 3
    a(f"v_lshlrev_b32 v{vr}, 4, v{vL}")
    for ql in (1, 2, 3):
        a(f"s_xor_b32 s{sA}, s{sW}, {ql}")
        a(f"s_mul_i32 s{sA}, s{sA}, 15360")
        a(f"s_add_u32 s{sA}, s{sA}, {(ql - 1) * 5120}")
        a(f"v_add_u32 v{vw[ql - 1]}, s{sA}, v{vr}")
    a(f"s_mul_i32 s{sA}, s{sW}, 15360")
    a(f"v_add_u32 v{vr}, s{sA}, v{vr}")

    def wr(q, p):
        a(f"ds_write_b128 v{vw[q - 1]}, {R(accr(p, q), 4)} offset:{p * 1024}")

    mark(a, 1)
    for t in range(nsteps):
        last = t == nsteps - 1
        if t == 1:
            mark(a, 2)
        if t == depth:
            mark(a, 3)
        if step_hook:
            step_hook(t, qbase(t))
        if prep_q:
            qf = prep_q(t, qbase(t))
        else:
            qf = [qbase(t) + q * 4 for q in range(4)]
        qorder = (1, 2, 3, 0) if last else (0, 1, 2, 3)
        nxt = t + depth
        for n, q in enumerate(qorder):
            for p in range(5):
                c = None if t == 0 else accr(p, q)
                if p_is_a:
                    mfma(a, accr(p, q), preg(t, p), qf[q], c)
                else:
                    mfma(a, accr(p, q), qf[q], preg(t, p), c)
                if last and n >= 2:
                    wr(qorder[n - 2], p)
                if nxt < nsteps:
                    if n == 3:
                        issue_p(nxt, p, preg(nxt, p))
                    if p == 4 and (not prep_q):
                        issue_q(nxt, q, qbase(nxt))
                    if prep_q and n == 0 and p < 4:
                        issue_q(nxt, p, qbase(nxt))
        if last:
            for p in range(5):
                wr(3, p)
    mark(a, 4)
    a("s_waitcnt lgkmcnt(0)")
    a("s_barrier")
    mark(a, 5)
    for p in range(5):
        for src in range(3):
            a(f"ds_read_b128 {R(accr(p, src + 1), 4)}, v{vr} offset:{src * 5120 + p * 1024}")
    for p in range(5):
        for h in (0, 2):
            d = accr(p, 0) + h
            a(f"v_pk_add_f32 {V(accr(p, 1) + h, 2)}, {V(accr(p, 1) + h, 2)}, {V(accr(p, 2) + h, 2)}")
            a(f"v_pk_add_f32 {V(d, 2)}, {V(d, 2)}, {V(accr(p, 3) + h, 2)}")
        for h in (0, 2):
            d = accr(p, 0) + h
            a(f"v_pk_add_f32 {V(d, 2)}, {V(d, 2)}, {V(accr(p, 1) + h, 2)}")
    return [accr(p, 0) for p in range(5)]


KS_LDS = 61440


def p_loader(a, vp, srd_p, step_bytes):
    state = {"t": None}

    def issue(t, p, dst):
        if state["t"] != t:
            a(f"s_mov_b32 s{sOP}, {t * step_bytes}")
            state["t"] = t
        a(f"buffer_load_dwordx4 {R(dst, 4)}, v{vp}, s[{srd_p}:{srd_p + 3}], s{sOP} offen offset:{p * 256}")
    return issue


def p_addr(a, vp, s_c, wave_steps):
    a(f"v_mul_u32_u24 v{vp}, {DM}, v{vG}")
    a(f"v_add_lshl_u32 v{vp}, v{vp}, v{vI}, 4")
    a(f"s_mul_i32 s{sA}, s{s_c}, 1280")
    a(f"s_mul_i32 s{sB}, s{sW}, {wave_steps * 4 * KB_STR}")
    a(f"s_add_u32 s{sA}, s{sA}, s{sB}")
    a(f"v_add_u32 v{vp}, s{sA}, v{vp}")


def rowmajor_q(a, vq, s_row0, srd_q):
    a(f"v_mul_u32_u24 v{vq}, 1280, v{vI}")
    a(f"v_lshl_add_u32 v{vq}, v{vG}, 4, v{vq}")
    a(f"s_mul_i32 s{sA}, s{s_row0}, 1280")
    a(f"s_mul_i32 s{sB}, s{sW}, 320")
    a(f"s_add_u32 s{sA}, s{sA}, s{sB}")
    for ql in (3, 2, 1, 0):
        a(f"s_xor_b32 s{sB}, s{sW}, {ql}")
        a(f"s_mul_i32 s{sB}, s{sB}, {16 * 1280}")
        a(f"s_add_u32 s{sB}, s{sB}, s{sA}")
        a(f"v_add_u32 v{vq + ql}, s{sB}, v{vq}")

    def issue(t, q, qb):
        a(f"buffer_load_dwordx4 {R(qb + q * 4, 4)}, v{vq + q}, s[{srd_q}:{srd_q + 3}], 0 offen offset:{t * 64}")
    return issue


def role_xhat0(a, depth):
    vp, vq, vred, vo, acc = 4, 5, 9, 13, 16
    ring = 256
    a(f"s_and_b32 s{sC}, s{sT}, 7")
    a(f"s_lshl_b32 s{sC}, s{sC}, 2")
    a(f"s_bfe_u32 s{sD}, s{sT}, 0x20003")
    a(f"s_add_u32 s{sC}, s{sC}, s{sD}")
    a(f"s_lshl_b32 s{sC}, s{sC}, 6")
    a(f"s_lshr_b32 s{sD}, s{sT}, 5")
    srd_table(a, SRD0, "ft1")
    p_addr(a, vp, sD, 5)
    iq = rowmajor_q(a, vq, sC, SRD1)
    a("s_waitcnt lgkmcnt(0)")
    srd(a, SRD1, P_X, 0, SEQ * DM * 2)
    ip = p_loader(a, vp, SRD0, 4 * KB_STR)

    def post():
        srd_ws(a, SRD2, "XP0", XP_SIZE)
        a(f"s_mul_i32 s{sA}, s{sD}, {20 * XP_STR}")
        a(f"s_lshl_b32 s{sB}, s{sW}, 4")
        a(f"s_add_u32 s{sB}, s{sB}, s{sC}")
        a(f"s_lshl_b32 s{sB}, s{sB}, 3")
        a(f"s_add_u32 s{sA}, s{sA}, s{sB}")
        a(f"v_lshlrev_b32 v{vo}, 14, v{vG}")
        a(f"v_lshl_add_u32 v{vo}, v{vI}, 3, v{vo}")
        a(f"v_add_u32 v{vo}, s{sA}, v{vo}")

    res = gemm_ks(a, 5, depth, acc, ring, vred, True, ip, iq, after_prologue=post)
    for p, r in enumerate(res):
        a(f"v_cvt_pk_bf16_f32 v{r}, v{r}, v{r + 1}")
        a(f"v_cvt_pk_bf16_f32 v{r + 1}, v{r + 2}, v{r + 3}")
        a(f"s_mov_b32 s{sOP}, {p * 4 * XP_STR}")
        a(f"buffer_store_dwordx2 {V(r, 2)}, v{vo}, s[{SRD2}:{SRD2 + 3}], s{sOP} offen{Cfg.st_flags}")
    return KS_LDS


def role_w2f(a, depth, ring=256):
    vp, vq, vred, vo, acc = 4, 5, 9, 13, 16
    a(f"s_and_b32 s{sD}, s{sT}, 7")
    a(f"s_lshr_b32 s{sE}, s{sT}, 3")
    a(f"s_lshl_b32 s{sC}, s{sE}, 6")
    a(f"s_cmp_eq_u32 s{sE}, 27")
    a(f"s_cselect_b32 s{sC}, 0, s{sC}")
    srd_table(a, SRD0, "ft1")
    p_addr(a, vp, sD, 5)
    iq = rowmajor_q(a, vq, sC, SRD1)
    a("s_waitcnt lgkmcnt(0)")
    a(f"s_cmp_eq_u32 s{sE}, 27")
    a(f"s_cselect_b32 s{SRD1}, s{P_B2}, s{P_W2}")
    a(f"s_cselect_b32 s{SRD1 + 1}, s{P_B2 + 1}, s{P_W2 + 1}")
    a(f"s_mov_b32 s{SRD1 + 2}, {FF * DM * 2}")
    a(f"s_cselect_b32 s{SRD1 + 2}, {DM * 2}, s{SRD1 + 2}")
    a(f"s_and_b32 s{SRD1 + 1}, s{SRD1 + 1}, 0xffff")
    a(f"s_mov_b32 s{SRD1 + 3}, 0x20000")
    ip = p_loader(a, vp, SRD0, 4 * KB_STR)

    def post():
        srd_ws(a, SRD2, "WA2", WA2_SIZE)
        a(f"s_lshl_b32 s{sA}, s{sE}, 2")
        a(f"s_add_u32 s{sA}, s{sA}, s{sW}")
        a(f"s_mul_i32 s{sA}, s{sA}, {2 * KB_STR}")
        a(f"s_mul_i32 s{sB}, s{sD}, 1280")
        a(f"s_add_u32 s{sA}, s{sA}, s{sB}")
        a(f"v_lshrrev_b32 v{vo}, 1, v{vG}")
        a(f"v_mul_u32_u24 v{vo}, {KB_STR}, v{vo}")
        a(f"v_lshl_add_u32 v{vo}, v{vI}, 4, v{vo}")
        a(f"v_and_b32 v{vo + 1}, 1, v{vG}")
        a(f"v_lshl_add_u32 v{vo}, v{vo + 1}, 3, v{vo}")
        a(f"v_add_u32 v{vo}, s{sA}, v{vo}")

    res = gemm_ks(a, 5, depth, acc, ring, vred, False, ip, iq, after_prologue=post)
    for p, r in enumerate(res):
        a(f"v_cvt_pk_bf16_f32 v{r}, v{r}, v{r + 1}")
        a(f"v_cvt_pk_bf16_f32 v{r + 1}, v{r + 2}, v{r + 3}")
        a(f"buffer_store_dwordx2 {V(r, 2)}, v{vo}, s[{SRD2}:{SRD2 + 3}], 0 offen offset:{p * 256}{Cfg.st_flags}")
    return KS_LDS


def role_w1f(a, depth):
    vp, vq, vred, vo, acc, qt = 4, 5, 9, 13, 16, 96
    ring = 112
    a(f"s_and_b32 s{sD}, s{sT}, 7")
    a(f"s_lshr_b32 s{sE}, s{sT}, 3")
    srd_table(a, SRD0, "ft1")
    p_addr(a, vp, sD, 5)
    a(f"v_mul_u32_u24 v{vq}, {8 * FF * 2}, v{vG}")
    a(f"v_lshl_add_u32 v{vq}, v{vI}, 3, v{vq}")
    a(f"s_mul_i32 s{sA}, s{sW}, {160 * FF * 2}")
    a(f"s_lshl_b32 s{sB}, s{sE}, 7")
    a(f"s_add_u32 s{sA}, s{sA}, s{sB}")
    a(f"v_add_u32 v{vq}, s{sA}, v{vq}")
    a(f"s_mov_b32 s{sA}, 0x05040100")
    a(f"s_bitcmp1_b32 s{sW}, 0")
    a(f"s_cselect_b32 s{sK0}, 0x07060302, s{sA}")
    a(f"s_cselect_b32 s{sK1}, s{sA}, 0x07060302")
    a(f"s_bitcmp1_b32 s{sW}, 1")
    a(f"s_cselect_b64 s[{sM0}:{sM1}], -1, 0")
    a("s_waitcnt lgkmcnt(0)")
    srd(a, SRD1, P_W1, 0, DM * FF * 2)
    ip = p_loader(a, vp, SRD0, 4 * KB_STR)

    def iq(t, q, qb):
        for j in (2 * q, 2 * q + 1):
            off = (t * 32 + j) * FF * 2
            if j & 1:
                a(f"buffer_load_dwordx2 {R(qb + j * 2, 2)}, v{vq}, s[{SRD1}:{SRD1 + 3}], s{sOQ} offen offset:{FF * 2}")
            else:
                a(f"s_mov_b32 s{sOQ}, {off}")
                a(f"buffer_load_dwordx2 {R(qb + j * 2, 2)}, v{vq}, s[{SRD1}:{SRD1 + 3}], s{sOQ} offen")

    def prep(t, qb):
        a(f"s_mov_b64 exec, s[{sM0}:{sM1}]")
        for j in range(8):
            a(f"v_swap_b32 v{qb + 2 * j}, v{qb + 2 * j + 1}")
        a("s_mov_b64 exec, -1")
        for ql in range(4):
            for m in range(4):
                sel = sK1 if ql & 1 else sK0
                a(f"v_perm_b32 v{qt + ql * 4 + m}, v{qb + (2 * m + 1) * 2 + (ql >> 1)}, v{qb + (2 * m) * 2 + (ql >> 1)}, s{sel}")
        return [qt + ql * 4 for ql in range(4)]

    def post():
        srd_ws(a, SRD2, "W1F", W1F_SIZE)
        a(f"s_mul_i32 s{sA}, s{sD}, {10 * W1F_STR}")
        a(f"s_lshl_b32 s{sB}, s{sE}, 6")
        a(f"s_add_u32 s{sB}, s{sB}, s{sW}")
        a(f"s_lshl_b32 s{sB}, s{sB}, 4")
        a(f"s_add_u32 s{sA}, s{sA}, s{sB}")
        a(f"v_lshrrev_b32 v{vo}, 1, v{vG}")
        a(f"v_mul_u32_u24 v{vo}, {W1F_STR}, v{vo}")
        a(f"v_lshl_add_u32 v{vo}, v{vI}, 6, v{vo}")
        a(f"v_and_b32 v{vo + 1}, 1, v{vG}")
        a(f"v_lshl_add_u32 v{vo}, v{vo + 1}, 3, v{vo}")
        a(f"v_add_u32 v{vo}, s{sA}, v{vo}")
        if Cfg.dcbias:
            srd(a, SRD3, P_B1, 0, FF * 2)
            a(f"s_lshr_b32 s{sB}, s{sB}, 3")
            a(f"v_lshl_add_u32 v6, v{vI}, 3, s{sB}")
            a(f"buffer_load_ushort v7, v6, s[{SRD3}:{SRD3 + 3}], 0 offen")
            a(f"s_cmp_eq_u32 s{sD}, 0")
            a(f"s_cselect_b32 s{sK2}, 0xffff, 0")
            a(f"s_mov_b32 s{sK3}, 0")

    res = gemm_ks(a, 5, depth, acc, ring, vred, True, ip, iq, prep_q=prep, after_prologue=post)
    if Cfg.dcbias:
        a(f"v_lshlrev_b32 v7, 16, v7")
        a(f"v_cndmask_b32_e64 v{res[0] + 1}, v{res[0] + 1}, v7, s[{sK2}:{sK3}]")
    for p, r in enumerate(res):
        a(f"v_cvt_pk_bf16_f32 v{r}, v{r}, v{r + 1}")
        a(f"v_cvt_pk_bf16_f32 v{r + 1}, v{r + 2}, v{r + 3}")
        a(f"s_mov_b32 s{sOP}, {p * 2 * W1F_STR}")
        a(f"buffer_store_dwordx2 {V(r, 2)}, v{vo}, s[{SRD2}:{SRD2 + 3}], s{sOP} offen{Cfg.st_flags}")
    return KS_LDS


def role_wc(a):
    va, vo, vo3, vt, ld, st = 4, 5, 6, 7, 8, 40
    a(f"s_mul_hi_u32 s{sC}, s{sT}, {(1 << 32) // 5 + 1}")
    a(f"s_mul_i32 s{sD}, s{sC}, 5")
    a(f"s_sub_u32 s{sD}, s{sT}, s{sD}")
    a(f"s_lshl_b32 s{sD}, s{sD}, 2")
    a(f"s_add_u32 s{sD}, s{sD}, s{sW}")
    a(f"s_lshl_b32 s{sD}, s{sD}, 2")
    a(f"v_add_u32 v{vt}, s{sD}, v{vG}")
    a(f"v_mul_u32_u24 v{va}, 642, v{vI}")
    a(f"v_lshl_add_u32 v{va}, v{vt}, 3, v{va}")
    a(f"s_mul_i32 s{sA}, s{sC}, {128 * 642}")
    a(f"s_add_u32 s{sA}, s{sA}, 2")
    a(f"v_add_u32 v{va}, s{sA}, v{va}")
    a(f"s_lshr_b32 s{sA}, s{sC}, 2")
    a(f"s_lshl_b32 s{sA}, s{sA}, 11")
    a(f"s_and_b32 s{sB}, s{sC}, 3")
    a(f"s_lshl_b32 s{sB}, s{sB}, 8")
    a(f"s_add_u32 s{sA}, s{sA}, s{sB}")
    a(f"v_lshlrev_b32 v{vo3}, 4, v{vI}")
    a(f"v_add_u32 v{vo3}, s{sA}, v{vo3}")
    a(f"v_lshl_add_u32 v{vo}, v{vt}, 15, v{vo3}")
    a(f"v_cmp_eq_u32 vcc, 79, v{vt}")
    a(f"v_add_u32 v{vt}, {4 * 8192}, v{vo}")
    a(f"v_cndmask_b32 v{vo3}, v{vt}, v{vo3}, vcc")
    a(f"s_mov_b32 s{sK0}, 0x05040100")
    a(f"s_mov_b32 s{sK1}, 0x07060302")
    a("s_waitcnt lgkmcnt(0)")
    srd(a, SRD0, P_WR, 0, SEQ * 642)
    srd(a, SRD1, P_WI, 0, SEQ * 642)
    srd_ws(a, SRD2, "WC", WC_SIZE)
    for u in range(2):
        for r in range(4):
            a(f"s_mov_b32 s{sOP}, {(32 * r + 16 * u) * 642}")
            b = ld + (u * 4 + r) * 4
            a(f"buffer_load_dwordx2 {V(b, 2)}, v{va}, s[{SRD0}:{SRD0 + 3}], s{sOP} offen")
            a(f"buffer_load_dwordx2 {V(b + 2, 2)}, v{va}, s[{SRD1}:{SRD1 + 3}], s{sOP} offen")
    for u in range(2):
        for e in range(4):
            o = st + (u * 4 + e) * 4
            for r in range(4):
                b = ld + (u * 4 + r) * 4
                a(f"v_perm_b32 v{o + r}, v{b + 2 + (e >> 1)}, v{b + (e >> 1)}, s{sK1 if e & 1 else sK0}")
            if e < 3:
                a(f"s_mov_b32 s{sOP}, {(e + 1) * 8192}")
                a(f"buffer_store_dwordx4 {V(o, 4)}, v{vo}, s[{SRD2}:{SRD2 + 3}], s{sOP} offen offset:{u * 1024}{Cfg.st_flags}")
            else:
                a(f"buffer_store_dwordx4 {V(o, 4)}, v{vo3}, s[{SRD2}:{SRD2 + 3}], 0 offen offset:{u * 1024}{Cfg.st_flags}")
    return 0


def dpp_rowsum(a, v, t):
    for k in (8, 4, 2, 1):
        a(f"v_add_f32_dpp v{v}, v{v}, v{v} row_ror:{k} row_mask:0xf bank_mask:0xf")


def role_stats(a):
    va, vo, vt, vz, vone, sm, sq, t0, ld = 4, 5, 6, 7, 8, 10, 12, 16, 20
    a(f"s_lshl_b32 s{sA}, s{sT}, 5")
    a(f"s_lshl_b32 s{sB}, s{sW}, 3")
    a(f"s_add_u32 s{sA}, s{sA}, s{sB}")
    a(f"v_add_u32 v{vt}, s{sA}, v{vG}")
    a(f"v_mul_u32_u24 v{va}, 1280, v{vt}")
    a(f"v_lshl_add_u32 v{va}, v{vI}, 4, v{va}")
    a("s_waitcnt lgkmcnt(0)")
    srd(a, SRD0, P_X, 0, SEQ * DM * 2)
    a(f"s_mov_b32 s{sOP}, {4 * 1280}")
    for h in range(2):
        for j in range(5):
            so = f"s{sOP}" if h else "0"
            a(f"buffer_load_dwordx4 {V(ld + (h * 5 + j) * 4, 4)}, v{va}, s[{SRD0}:{SRD0 + 3}], {so} offen offset:{j * 256}")
    srd_ws(a, SRD1, "SS0", 2 * SS_SIZE)
    a(f"v_bfe_u32 v{vo}, v{vt}, 4, 2")
    a(f"v_lshlrev_b32 v{vo}, 3, v{vo}")
    a(f"v_lshrrev_b32 v{vz}, 8, v{vt}")
    a(f"v_add_u32 v{vo}, v{vo}, v{vz}")
    a(f"v_and_b32 v{vz}, 15, v{vt}")
    a(f"v_lshl_add_u32 v{vo}, v{vo}, 4, v{vz}")
    a(f"v_bfe_u32 v{vz}, v{vt}, 6, 2")
    a(f"v_lshl_add_u32 v{vo}, v{vo}, 2, v{vz}")
    a(f"v_lshlrev_b32 v{vo}, 2, v{vo}")
    a(f"v_mov_b32 v{vz}, 0")
    a(f"v_mov_b32 v{vone}, 0x3f803f80")
    a(f"s_mov_b32 s{sOQ}, {WS['SS2'] - WS['SS0']}")
    a(f"s_mov_b32 s{sK0}, 0xffff0000")
    for h in range(2):
        a(f"buffer_store_dword v{vz}, v{vo}, s[{SRD1}:{SRD1 + 3}], s{sOQ} offen offset:{h * 64}")
    if Cfg.dcbias:
        srd_ws(a, SRD2, "FLAG", FLAG_SIZE)
        a(f"s_lshl_b32 s{sA}, s{sT}, 10")
        a(f"v_lshl_add_u32 v9, v0, 2, s{sA}")
        a(f"buffer_store_dword v{vz}, v9, s[{SRD2}:{SRD2 + 3}], 0 offen")
    for h in range(2):
        a(f"v_mov_b32 v{sm + h}, 0")
        a(f"v_mov_b32 v{sq + 2 * h}, 0")
        a(f"v_mov_b32 v{sq + 2 * h + 1}, 0")
    for h in range(2):
        for k in range(20):
            a(f"v_dot2c_f32_bf16 v{sm + h}, v{ld + h * 20 + k}, v{vone}")
    for h in range(2):
        dpp_rowsum(a, sm + h, t0)
        a(f"v_mul_f32 v{sm + h}, {f32bits(-1.0 / DM):#x}, v{sm + h}")
    for k in range(20):
        for h in range(2):
            x = ld + h * 20 + k
            t = t0 + 2 * h
            a(f"v_lshlrev_b32 v{t}, 16, v{x}")
            a(f"v_and_b32 v{t + 1}, s{sK0}, v{x}")
            a(f"v_add_f32 v{t}, v{t}, v{sm + h}")
            a(f"v_add_f32 v{t + 1}, v{t + 1}, v{sm + h}")
            a(f"v_fmac_f32 v{sq + 2 * h}, v{t}, v{t}")
            a(f"v_fmac_f32 v{sq + 2 * h + 1}, v{t + 1}, v{t + 1}")
    for h in range(2):
        a(f"v_add_f32 v{sq + 2 * h}, v{sq + 2 * h}, v{sq + 2 * h + 1}")
        dpp_rowsum(a, sq + 2 * h, t0)
        a(f"buffer_store_dword v{sq + 2 * h}, v{vo}, s[{SRD1}:{SRD1 + 3}], 0 offen offset:{h * 64}")
    return 0


def role_w2t(a, rep=1):
    va, vo, vt, ld, st = 4, 6, 8, 12, 44
    a(f"s_mul_i32 s{sA}, s{sT}, {256 * rep}")
    for n in range(rep):
        a(f"v_add_u32 v{vo + n}, s{sA}, v0")
        if n:
            a(f"v_add_u32 v{vo + n}, {256 * n}, v{vo + n}")
        a(f"v_lshrrev_b32 v{vt}, 5, v{vo + n}")
        a(f"v_mul_u32_u24 v{vt}, 52429, v{vt}")
        a(f"v_lshrrev_b32 v{vt}, 18, v{vt}")
        a(f"v_mul_u32_u24 v{va + n}, {10240 - 1280}, v{vt}")
        a(f"v_lshl_add_u32 v{va + n}, v{vo + n}, 3, v{va + n}")
        a(f"v_lshlrev_b32 v{vo + n}, 6, v{vo + n}")
    a(f"s_mov_b32 s{sK0}, 0x05040100")
    a(f"s_mov_b32 s{sK1}, 0x07060302")
    a(f"s_mov_b32 s{sOP}, {4 * 1280}")
    a("s_waitcnt lgkmcnt(0)")
    srd(a, SRD0, P_W2, 0, FF * DM * 2)
    srd_ws(a, SRD1, "W2T", W2T_SIZE)
    for n in range(rep):
        for j in range(8):
            so = f"s{sOP}" if j >= 4 else "0"
            a(f"buffer_load_dwordx2 {V(ld + 16 * n + 2 * j, 2)}, v{va + n}, s[{SRD0}:{SRD0 + 3}], {so} offen offset:{(j & 3) * 1280}")
    for n in range(rep):
        l, o = ld + 16 * n, st + 16 * n
        for e in range(4):
            for m in range(4):
                a(f"v_perm_b32 v{o + e * 4 + m}, v{l + (2 * m + 1) * 2 + (e >> 1)}, v{l + 2 * m * 2 + (e >> 1)}, s{sK1 if e & 1 else sK0}")
            a(f"buffer_store_dwordx4 {V(o + e * 4, 4)}, v{vo + n}, s[{SRD1}:{SRD1 + 3}], 0 offen offset:{e * 16}")
    return 0


def cmul_pack(a, dst, re, im, c, s, tmp, conj_w=False):
    for h in (0, 2):
        t0, t1 = tmp + 2 * h, tmp + 2 * h + 2
        a(f"v_pk_mul_f32 {V(t0, 2)}, {V(re + h, 2)}, {V(c + h, 2)}")
        a(f"v_pk_mul_f32 {V(t1, 2)}, {V(im + h, 2)}, {V(c + h, 2)}")
    for h in (0, 2):
        t0, t1 = tmp + 2 * h, tmp + 2 * h + 2
        if conj_w:
            a(f"v_pk_fma_f32 {V(t0, 2)}, {V(im + h, 2)}, {V(s + h, 2)}, {V(t0, 2)} neg_lo:[1,0,0] neg_hi:[1,0,0]")
            a(f"v_pk_fma_f32 {V(t1, 2)}, {V(re + h, 2)}, {V(s + h, 2)}, {V(t1, 2)}")
        else:
            a(f"v_pk_fma_f32 {V(t0, 2)}, {V(im + h, 2)}, {V(s + h, 2)}, {V(t0, 2)}")
            a(f"v_pk_fma_f32 {V(t1, 2)}, {V(re + h, 2)}, {V(s + h, 2)}, {V(t1, 2)} neg_lo:[1,0,0] neg_hi:[1,0,0]")
    for h in (0, 2):
        t0, t1 = tmp + 2 * h, tmp + 2 * h + 2
        n = "-" if conj_w else ""
        a(f"v_cvt_pk_bf16_f32 v{dst + h}, v{t0}, {n}v{t1}")
        a(f"v_cvt_pk_bf16_f32 v{dst + h + 1}, v{t0 + 1}, {n}v{t1 + 1}")


def role_col(a, src, ssn, dst):
    vx, vw, vl0, vmI = 4, 5, 6, 10
    fi, fg, fa, fb = 11, 12, 13, 14
    raw, ss, wraw = 16, 24, 32
    M1, M2 = 40, 72
    T1, T2 = 104, 120
    WU = 136
    ACC = 152
    FO, FG = 168, 176
    TMP = 200

    a(f"s_and_b32 s{sA}, s{sT}, 7")
    a(f"s_lshr_b32 s{sB}, s{sT}, 4")
    a(f"s_lshl_b32 s{sB}, s{sB}, 3")
    a(f"s_add_u32 s{sC}, s{sA}, s{sB}")
    a(f"s_bfe_u32 s{sD}, s{sT}, 0x10003")
    a(f"s_lshl1_add_u32 s{sE}, s{sC}, s{sD}")
    a(f"s_lshl_b32 s{sA}, s{sC}, 14")
    a(f"s_lshl2_add_u32 s{sA}, s{sD}, s{sA}")
    a(f"s_lshl_b32 s{sB}, s{sW}, 7")
    a(f"s_add_u32 s{sA}, s{sA}, s{sB}")
    a(f"v_lshlrev_b32 v{vx}, 11, v{vG}")
    a(f"v_lshl_add_u32 v{vx}, v{vI}, 3, v{vx}")
    a(f"v_add_u32 v{vx}, s{sA}, v{vx}")
    a(f"s_lshl_b32 s{sB}, s{sW}, 11")
    a(f"v_lshlrev_b32 v{vw}, 4, v{vL}")
    a(f"v_add_u32 v{vw}, s{sB}, v{vw}")
    a(f"s_lshl_b32 s{sF}, s{sE}, 13")
    a(f"s_mov_b32 s{sOP}, 8192")
    a("s_waitcnt lgkmcnt(0)")
    srd_ws(a, SRD0, src, XP_SIZE)
    srd_ws(a, SRD1, ssn, SS_SIZE)
    for t in range(2):
        a(f"buffer_load_dwordx4 {V(ss + 4 * t, 4)}, v{vw}, s[{SRD1}:{SRD1 + 3}], 0 offen offset:{t * 1024}")
    for t in range(2):
        for jj in range(4):
            so = f"s{sOP}" if t else "0"
            a(f"buffer_load_dword v{raw + 4 * t + jj}, v{vx}, s[{SRD0}:{SRD0 + 3}], {so} offen offset:{jj * 512}")
    srd_ws(a, SRD2, "WC", WC_SIZE)
    for u in range(2):
        a(f"buffer_load_dwordx4 {V(wraw + 4 * u, 4)}, v{vw}, s[{SRD2}:{SRD2 + 3}], s{sF} offen offset:{u * 1024}")
    srd_ws(a, SRD3, dst, XP_SIZE)

    mark(a, 1)
    a(f"v_lshlrev_b32 v{vl0}, 4, v0")
    for kk in (1, 2, 3):
        a(f"v_xor_b32 v{vl0 + kk}, {kk * 1024}, v{vl0}")
    a(f"v_and_b32 v{vmI}, 1, v{vI}")
    a(f"v_mul_u32_u24 v{vmI}, 0x8000, v{vmI}")
    a(f"v_lshl_or_b32 v{vmI}, v{vmI}, 16, v{vmI}")
    a(f"s_mov_b32 s{sK0}, 0x80008000")
    a(f"v_cvt_f32_u32 v{fi}, v{vI}")
    a(f"v_lshlrev_b32 v{fg}, 2, v{vG}")
    a(f"v_cvt_f32_u32 v{fg}, v{fg}")

    def m1(qb, t, var):
        return M1 + ((qb * 2 + t) * 2 + var) * 4

    def m2(kk, var):
        return M2 + (kk * 2 + var) * 4

    a(f"v_mul_f32 v{fa}, {f32bits(1 / 32):#x}, v{fi}")
    for jj in range(4):
        t = TMP + 3 * jj
        a(f"v_add_f32 v{t}, {float(jj)}, v{fg}" if jj in (0, 1, 2) else f"v_add_f32 v{t}, {f32bits(3.0):#x}, v{fg}")
        a(f"v_mul_f32 v{t}, v{t}, v{fa}")
        a(f"v_fract_f32 v{t}, v{t}")
        a(f"v_cos_f32 v{t + 1}, v{t}")
        a(f"v_sin_f32 v{t + 2}, v{t}")
    for jj in range(4):
        t = TMP + 3 * jj
        n = "-" if jj & 1 else ""
        m = "" if jj & 1 else "-"
        a(f"v_cvt_pk_bf16_f32 v{m1(0, 0, 0) + jj}, v{t + 1}, v{t + 2}")
        a(f"v_cvt_pk_bf16_f32 v{m1(0, 0, 1) + jj}, -v{t + 2}, v{t + 1}")
        a(f"v_cvt_pk_bf16_f32 v{m1(1, 0, 0) + jj}, {n}v{t + 1}, {n}v{t + 2}")
        a(f"v_cvt_pk_bf16_f32 v{m1(1, 0, 1) + jj}, {m}v{t + 2}, {n}v{t + 1}")
    for qb in range(2):
        for var in range(2):
            for jj in range(4):
                a(f"v_xor_b32 v{m1(qb, 1, var) + jj}, v{vmI}, v{m1(qb, 0, var) + jj}")

    a(f"s_lshl_b32 s{sA}, s{sW}, 4")
    a(f"v_cvt_f32_u32 v{fb}, s{sA}")
    a(f"v_add_f32 v{TMP + 24}, v{fb}, v{fg}")
    a(f"v_add_f32 v{fb}, v{fb}, v{fi}")
    a(f"v_mul_f32 v{TMP + 25}, {f32bits(1 / 2048):#x}, v{fi}")
    a(f"v_add_f32 v{TMP + 26}, {f32bits(16 / 2048):#x}, v{TMP + 25}")
    for r in range(4):
        t = TMP + r
        a(f"v_add_f32 v{t}, {f32bits(float(r)):#x}, v{TMP + 24}")
    for qb in range(2):
        for r in range(4):
            t = TMP + 4 + (qb * 4 + r)
            a(f"v_mul_f32 v{t}, v{TMP + r}, v{TMP + 25 + qb}")
            a(f"v_cos_f32 v{T1 + qb * 8 + r}, v{t}")
            a(f"v_sin_f32 v{T1 + qb * 8 + 4 + r}, v{t}")

    a(f"v_mul_f32 v{fa}, {f32bits(1 / 64):#x}, v{fb}")
    a(f"s_xor_b32 s{sA}, s{sA}, 16")
    a(f"v_cvt_f32_u32 v{TMP + 24}, s{sA}")
    a(f"v_add_f32 v{TMP + 24}, v{TMP + 24}, v{fg}")
    for kk in range(2):
        for r in range(4):
            t = TMP + 12 + 3 * r
            if kk == 0:
                a(f"v_mul_f32 v{t}, v{TMP + r}, v{fa}")
            else:
                a(f"v_add_f32 v{t}, {f32bits(float(r)):#x}, v{TMP + 24}")
                a(f"v_mul_f32 v{t}, v{t}, v{fa}")
            a(f"v_fract_f32 v{t}, v{t}")
            a(f"v_cos_f32 v{t + 1}, v{t}")
            a(f"v_sin_f32 v{t + 2}, v{t}")
        for r in range(4):
            t = TMP + 12 + 3 * r
            a(f"v_cvt_pk_bf16_f32 v{m2(kk, 0) + r}, v{t + 1}, v{t + 2}")
            a(f"v_cvt_pk_bf16_f32 v{m2(kk, 1) + r}, -v{t + 2}, v{t + 1}")
    for kk in range(2):
        for var in range(2):
            for r in range(4):
                a(f"v_xor_b32 v{m2(kk + 2, var) + r}, v{vmI}, v{m2(kk, var) + r}")

    a(f"v_mul_f32 v{fa}, {f32bits(1 / 2048):#x}, v{fb}")
    for u in range(2):
        for r in range(4):
            t = TMP + (u * 4 + r)
            a(f"v_add_f32 v{t}, {f32bits(float(16 * u + r)):#x}, v{fg}")
            a(f"v_mul_f32 v{t}, v{t}, v{fa}")
            a(f"v_cos_f32 v{T2 + u * 8 + r}, v{t}")
            a(f"v_sin_f32 v{T2 + u * 8 + 4 + r}, v{t}")

    a(f"s_mov_b32 s{sK1}, 0xffff0000")
    a(f"s_cmp_eq_u32 s{sE}, 0")
    a(f"s_cselect_b32 s{sK2}, 0, s{sK1}")
    a(f"s_cselect_b32 s{sK3}, 0, {f32bits(-1 / 2048):#x}")
    a(f"s_mov_b32 s{sA}, {f32bits(1 / DM):#x}")
    a(f"s_mov_b32 s{sB}, {f32bits(1 / 2048):#x}")
    a(f"v_mov_b32 v{fa}, {f32bits(1e-5):#x}")
    mark(a, 2)
    for k in range(8):
        a(f"v_fma_f32 v{ss + k}, v{ss + k}, s{sA}, v{fa}")
    for k in range(8):
        a(f"v_rsq_f32 v{ss + k}, v{ss + k}")
    for k in range(8):
        t = TMP + 2 * k
        a(f"v_lshlrev_b32 v{t}, 16, v{raw + k}")
        a(f"v_and_b32 v{t + 1}, s{sK2}, v{raw + k}")
    for k in range(8):
        t = TMP + 2 * k
        a(f"v_mul_f32 v{t}, v{t}, v{ss + k}")
        a(f"v_mul_f32 v{t + 1}, v{t + 1}, v{ss + k}")
    for k in range(8):
        t = TMP + 2 * k
        a(f"v_cvt_pk_bf16_f32 v{FG + k}, v{t}, v{t + 1}")

    def acc(b, var):
        return ACC + (b * 2 + var) * 4

    mark(a, 3)
    for t in range(2):
        for qb in range(2):
            for var in range(2):
                mfma(a, acc(qb, var), FG + 4 * t, m1(qb, t, var), None if t == 0 else acc(qb, var))
    for u in range(2):
        for r in range(4):
            a(f"v_lshlrev_b32 v{WU + u * 8 + r}, 16, v{wraw + u * 4 + r}")
            a(f"v_and_b32 v{WU + u * 8 + 4 + r}, s{sK1}, v{wraw + u * 4 + r}")

    def exchange(base, data_is_a):
        for b in range(2):
            a(f"ds_write_b128 v{vl0}, {V(FO + 4 * b, 4)} offset:{base + b * 4096}")
        for b in range(2):
            for var in range(2):
                if data_is_a:
                    mfma(a, acc(b, var), FO + 4 * b, m2(0, var), None)
                else:
                    mfma(a, acc(b, var), m2(0, var), FO + 4 * b, None)
        a("s_waitcnt lgkmcnt(0)")
        a("s_barrier")
        for kk in (1, 2, 3):
            for b in range(2):
                a(f"ds_read_b128 {V(FG + ((kk - 1) * 2 + b) * 4, 4)}, v{vl0 + kk} offset:{base + b * 4096}")
        for kk in (1, 2, 3):
            for b in range(2):
                for var in range(2):
                    f = FG + ((kk - 1) * 2 + b) * 4
                    if data_is_a:
                        mfma(a, acc(b, var), f, m2(kk, var), acc(b, var))
                    else:
                        mfma(a, acc(b, var), m2(kk, var), f, acc(b, var))

    for qb in range(2):
        cmul_pack(a, FO + 4 * qb, acc(qb, 0), acc(qb, 1), T1 + qb * 8, T1 + qb * 8 + 4, TMP + 8 * qb)
    exchange(0, False)
    mark(a, 4)
    for u in range(2):
        cmul_pack(a, FO + 4 * u, acc(u, 0), acc(u, 1), WU + u * 8, WU + u * 8 + 4, TMP + 8 * u, conj_w=True)
    exchange(8192, True)
    mark(a, 5)
    for k in range(8):
        a(f"v_lshlrev_b32 v{WU + 2 * k}, 16, v{raw + k}")
        a(f"v_and_b32 v{WU + 2 * k + 1}, s{sK1}, v{raw + k}")
    for u in range(2):
        cmul_pack(a, FO + 4 * u, acc(u, 0), acc(u, 1), T2 + u * 8, T2 + u * 8 + 4, TMP + 8 * u)
    for u in range(2):
        for t in range(2):
            for var in range(2):
                mfma(a, acc(t, var), m1(t, u, var), FO + 4 * u, None if u == 0 else acc(t, var))
    for t in range(2):
        for jj in range(4):
            k = 4 * t + jj
            a(f"v_fma_f32 v{WU + 2 * k}, v{acc(t, 0) + jj}, s{sB}, v{WU + 2 * k}")
            a(f"v_fma_f32 v{WU + 2 * k + 1}, v{acc(t, 1) + jj}, s{sK3}, v{WU + 2 * k + 1}")
        for jj in range(4):
            k = 4 * t + jj
            a(f"v_cvt_pk_bf16_f32 v{raw + k}, v{WU + 2 * k}, v{WU + 2 * k + 1}")
            so = f"s{sOP}" if t else "0"
            a(f"buffer_store_dword v{raw + k}, v{vx}, s[{SRD3}:{SRD3 + 3}], {so} offen offset:{jj * 512}{Cfg.st_flags}")
    return 16384


def role_g1(a, src):
    vx, vw, vl, vo, vb, vm = 4, 5, 6, 7, 8, 9
    sq = 10
    X = 16
    ACC = 176
    BR = 232
    TMP = 246
    WR = 256
    NW = 14

    a(f"s_and_b32 s{sA}, s{sT}, 7")
    a(f"s_lshr_b32 s{sB}, s{sA}, 1")
    a(f"s_lshl_b32 s{sB}, s{sB}, 2")
    a(f"s_bfe_u32 s{sC}, s{sT}, 0x20003")
    a(f"s_add_u32 s{sC}, s{sC}, s{sB}")
    a(f"s_and_b32 s{sA}, s{sA}, 1")
    a(f"s_lshl_b32 s{sA}, s{sA}, 3")
    a(f"s_lshr_b32 s{sD}, s{sT}, 5")
    a(f"s_add_u32 s{sD}, s{sD}, s{sA}")
    a(f"s_mul_i32 s{sD}, s{sD}, 27")
    a(f"s_lshr_b32 s{sD}, s{sD}, 2")
    a(f"s_lshl_b32 s{sC}, s{sC}, 7")
    a(f"s_lshl_b32 s{sA}, s{sW}, 5")
    a(f"s_add_u32 s{sC}, s{sC}, s{sA}")
    a(f"v_lshlrev_b32 v{vx}, 15, v{vG}")
    a(f"v_lshl_add_u32 v{vx}, v{vI}, 4, v{vx}")
    a(f"s_lshl_b32 s{sA}, s{sC}, 3")
    a(f"v_add_u32 v{vx}, s{sA}, v{vx}")
    a(f"v_mul_u32_u24 v{vw}, {FF}, v{vG}")
    a(f"v_add_lshl_u32 v{vw}, v{vw}, v{vI}, 4")
    a(f"s_mul_i32 s{sA}, s{sW}, {4 * W1F_STR}")
    a(f"s_lshl_b32 s{sB}, s{sD}, 8")
    a(f"s_add_u32 s{sA}, s{sA}, s{sB}")
    a(f"v_add_u32 v{vw}, s{sA}, v{vw}")
    a(f"s_mul_i32 s{sE}, s{sW}, 7168")
    a(f"v_lshlrev_b32 v{vl}, 4, v{vL}")
    a("s_waitcnt lgkmcnt(0)")
    srd_ws(a, SRD0, "W1F", W1F_SIZE)
    srd_ws(a, SRD1, src, XP_SIZE)

    def xr(ks, st):
        return X + ks * 8 + st * 4

    def issue_chunk(c):
        a(f"s_mov_b32 s{sOP}, {c * 16 * W1F_STR}")
        for ft in range(7):
            a(f"s_add_u32 m0, s{sE}, {c * 28672 + ft * 1024 - ft * 256}")
            a(f"buffer_load_dwordx4 v{vw}, s[{SRD0}:{SRD0 + 3}], s{sOP} offen offset:{ft * 256} lds", tag=f"w{c}")
        for k in range(4):
            ks = 4 * c + k
            for h in range(2):
                a(f"s_mov_b32 s{sOQ}, {(8 * ks + h) * XP_STR}")
                a(f"buffer_load_dwordx4 {V(xr(ks, h), 4)}, v{vx}, s[{SRD1}:{SRD1 + 3}], s{sOQ} offen")

    for c in range(4):
        issue_chunk(c)
    srd(a, SRD2, P_B1, 0, FF * 2)
    srd_ws(a, SRD3, "H", H_SIZE)
    a(f"s_lshl_b32 s{sA}, s{sD}, 5")
    a(f"v_lshlrev_b32 v{vb}, 3, v{vG}")
    a(f"v_add_u32 v{vb}, s{sA}, v{vb}")
    a(f"v_lshrrev_b32 v{vo}, 1, v{vG}")
    a(f"v_mul_u32_u24 v{vo}, {H_STR}, v{vo}")
    a(f"v_lshl_add_u32 v{vo}, v{vI}, 5, v{vo}")
    a(f"v_and_b32 v{vm}, 1, v{vG}")
    a(f"v_lshl_add_u32 v{vo}, v{vm}, 4, v{vo}")
    a(f"s_mul_i32 s{sA}, s{sD}, {2 * H_STR}")
    a(f"s_lshl_b32 s{sB}, s{sC}, 4")
    a(f"s_add_u32 s{sA}, s{sA}, s{sB}")
    a(f"v_add_u32 v{vo}, s{sA}, v{vo}")
    a(f"v_cmp_eq_u32 vcc, 0, v{vG}")
    a(f"v_mov_b32 v{vm}, 0xffff")
    a(f"v_cndmask_b32 v{vm}, -1, v{vm}, vcc")
    for k in range(4):
        a(f"v_mov_b32 v{sq + k}, 0")

    def acc(ft, st):
        return ACC + (ft * 2 + st) * 4

    seq = [(ks, ft) for ks in range(20) for ft in range(7)]

    def wreg(n):
        return WR + (n % NW) * 4

    def rd(n):
        ks, ft = seq[n]
        off = (ks * 7 + ft) * 1024
        if off >= 65536:
            a(f"ds_read_b128 {R(wreg(n), 4)}, v{TMP + (off >> 16)} offset:{off & 0xffff}")
        else:
            a(f"ds_read_b128 {R(wreg(n), 4)}, v{vl} offset:{off}")

    a(f"v_add_u32 v{TMP + 1}, 0x10000, v{vl}")
    a(f"v_add_u32 v{TMP + 2}, 0x20000, v{vl}")
    AHEAD = 8
    nread = 0
    for c in range(5):
        if c == 0:
            mark(a, 1)
        a.wait_tag(f"w{c}")
        a("s_barrier")
        if c in (0, 1, 4):
            mark(a, {0: 2, 1: 3, 4: 4}[c])
        if c == 0:
            issue_chunk(4)
            for ft in range(7):
                a(f"buffer_load_dwordx2 {V(BR + 2 * ft, 2)}, v{vb}, s[{SRD2}:{SRD2 + 3}], 0 offen offset:{ft * 32}")
        hi = (c + 1) * 28
        for n in range(c * 28, hi):
            ks, ft = seq[n]
            while nread < min(hi, n + AHEAD):
                rd(nread)
                nread += 1
            if ft == 0:
                a(f"v_swap_b32 v{xr(ks, 0) + 2}, v{xr(ks, 1)}")
                a(f"v_swap_b32 v{xr(ks, 0) + 3}, v{xr(ks, 1) + 1}")
                if ks == 0:
                    a(f"v_and_b32 v{xr(0, 0)}, v{vm}, v{xr(0, 0)}")
                    a(f"v_and_b32 v{xr(0, 1)}, v{vm}, v{xr(0, 1)}")
            for st in range(2):
                mfma(a, acc(ft, st), wreg(n), xr(ks, st), None if ks == 0 else acc(ft, st))
                if 1 <= ft <= 4 and not Cfg.nodot:
                    x = xr(ks, st) + ft - 1
                    a(f"v_dot2c_f32_bf16 v{sq + st * 2 + (ft & 1)}, v{x}, v{x}")

    mark(a, 5)
    t = TMP + 4
    for st in range(2):
        s = sq + 2 * st
        a(f"v_add_f32 v{s}, v{s}, v{s + 1}")
    for op in ("v_permlane32_swap_b32", "v_permlane16_swap_b32"):
        for st in range(2):
            s = sq + 2 * st
            a(f"v_mov_b32 v{s + 1}, v{s}")
        for st in range(2):
            s = sq + 2 * st
            a(f"{op} v{s}, v{s + 1}")
        for st in range(2):
            s = sq + 2 * st
            a(f"v_add_f32 v{s}, v{s}, v{s + 1}")
    a(f"v_mov_b32 v{t}, {f32bits(1e-5):#x}")
    for st in range(2):
        s = sq + 2 * st
        a(f"v_mul_f32 v{s}, {f32bits(1 / DM):#x}, v{s}")
        a(f"v_add_f32 v{s + 1}, v{s}, v{t}")
        a(f"v_rsq_f32 v{s + 1}, v{s + 1}")
    for st in range(2):
        s = sq + 2 * st
        a(f"v_mul_f32 v{s}, v{s}, v{s + 1}")
        a(f"v_fma_f32 v{s}, v{s}, v{s + 1}, v{t}")
        a(f"v_rsq_f32 v{s}, v{s}")
    for st in range(2):
        s = sq + 2 * st
        a(f"v_mul_f32 v{s}, v{s}, v{s + 1}")

    k0 = -2.0 * 0.7978845608028654 * 1.4426950408889634
    a(f"s_mov_b32 s{sK0}, {f32bits(k0 * 0.044715):#x}")
    a(f"s_mov_b32 s{sK1}, s{sK0}")
    a(f"s_mov_b32 s{sK2}, 0xffff0000")
    a(f"v_mov_b32 v{TMP + 4}, {f32bits(k0):#x}")
    a(f"v_mov_b32 v{TMP + 5}, {f32bits(k0):#x}")
    for ft in range(7):
        B = X + ft * 16
        Z = B + 4
        O = B + 12
        for h in range(2):
            a(f"v_lshlrev_b32 v{B + 2 * h}, 16, v{BR + 2 * ft + h}")
            a(f"v_and_b32 v{B + 2 * h + 1}, s{sK2}, v{BR + 2 * ft + h}")
        prs = [(acc(ft, st) + h, Z + st * 4 + h, B + h, sq + 2 * st) for st in range(2) for h in (0, 2)]
        for x, z, b, s in prs:
            a(f"v_pk_fma_f32 {V(x, 2)}, {V(x, 2)}, {V(s, 2)}, {V(b, 2)} op_sel_hi:[1,0,1]")
        for x, z, b, s in prs:
            a(f"v_pk_mul_f32 {V(z, 2)}, {V(x, 2)}, {V(x, 2)}")
        for x, z, b, s in prs:
            a(f"v_pk_fma_f32 {V(z, 2)}, {V(z, 2)}, s[{sK0}:{sK1}], {V(TMP + 4, 2)}")
        for x, z, b, s in prs:
            a(f"v_pk_mul_f32 {V(z, 2)}, {V(z, 2)}, {V(x, 2)}")
        for k in range(8):
            a(f"v_exp_f32 v{Z + k}, v{Z + k}")
        for x, z, b, s in prs:
            a(f"v_pk_add_f32 {V(z, 2)}, {V(z, 2)}, 1.0 op_sel_hi:[1,0]")
        for k in range(8):
            a(f"v_rcp_f32 v{Z + k}, v{Z + k}")
        for x, z, b, s in prs:
            a(f"v_pk_mul_f32 {V(z, 2)}, {V(z, 2)}, {V(x, 2)}")
        for k in range(4):
            a(f"v_cvt_pk_bf16_f32 v{O + k}, v{Z + 2 * k}, v{Z + 2 * k + 1}")
        a(f"s_mov_b32 s{sOP}, {ft * 2 * H_STR}")
        a(f"v_permlane16_swap_b32 v{O}, v{O + 2}")
        a(f"v_permlane16_swap_b32 v{O + 1}, v{O + 3}")
        a(f"buffer_store_dwordx4 {V(O, 4)}, v{vo}, s[{SRD3}:{SRD3 + 3}], s{sOP} offen{Cfg.st_flags}")
    return 140 * 1024


def role_g2(a, final):
    vp, vq, vred, vo, acc = 4, 5, 9, 13, 16
    vp2, vq2, vone, vs, RES, TMP = 96, 97, 101, 102, 104, 116
    ring = 256
    depth = Cfg.g2depth
    a(f"s_and_b32 s{sA}, s{sT}, 7")
    a(f"s_lshr_b32 s{sB}, s{sA}, 1")
    a(f"s_lshl_b32 s{sB}, s{sB}, 3")
    a(f"s_bfe_u32 s{sC}, s{sT}, 0x30003")
    a(f"s_add_u32 s{sC}, s{sC}, s{sB}")
    a(f"s_lshl_b32 s{sC}, s{sC}, 6")
    a(f"s_and_b32 s{sA}, s{sA}, 1")
    a(f"s_lshl_b32 s{sA}, s{sA}, 2")
    a(f"s_lshr_b32 s{sD}, s{sT}, 6")
    a(f"s_add_u32 s{sD}, s{sD}, s{sA}")
    p_addr(a, vp, sD, 14)
    a(f"v_mul_u32_u24 v{vq}, {H_STR}, v{vG}")
    a(f"v_lshl_add_u32 v{vq}, v{vI}, 4, v{vq}")
    a(f"s_mul_i32 s{sA}, s{sW}, {14 * 4 * H_STR}")
    a(f"s_lshl_b32 s{sB}, s{sC}, 4")
    a(f"s_add_u32 s{sA}, s{sA}, s{sB}")
    for ql in (3, 2, 1, 0):
        a(f"s_xor_b32 s{sB}, s{sW}, {ql}")
        a(f"s_lshl_b32 s{sB}, s{sB}, 8")
        a(f"s_add_u32 s{sB}, s{sB}, s{sA}")
        a(f"v_add_u32 v{vq + ql}, s{sB}, v{vq}")
    if Cfg.g2lay & 1:
        a(f"s_mul_i32 s{sA}, s{sD}, {54 * 5120}")
        a(f"s_mul_i32 s{sB}, s{sW}, {13 * 5120}")
        a(f"s_add_u32 s{sA}, s{sA}, s{sB}")
        a(f"v_lshlrev_b32 v{vp}, 4, v{vL}")
        a(f"v_add_u32 v{vp}, s{sA}, v{vp}")
    if Cfg.g2lay & 2:
        a(f"s_mul_i32 s{sA}, s{sC}, {54 * 64}")
        a(f"s_mul_i32 s{sB}, s{sW}, {13 * 4096}")
        a(f"s_add_u32 s{sA}, s{sA}, s{sB}")
        a(f"v_lshlrev_b32 v{vq}, 4, v{vL}")
        for ql in (3, 2, 1, 0):
            a(f"s_xor_b32 s{sB}, s{sW}, {ql}")
            a(f"s_lshl_b32 s{sB}, s{sB}, 10")
            a(f"s_add_u32 s{sB}, s{sB}, s{sA}")
            a(f"v_add_u32 v{vq + ql}, s{sB}, v{vq}")
    a("s_waitcnt lgkmcnt(0)")
    if final:
        srd_ws(a, SRD0, "W2T", W2T_SIZE)
    else:
        srd_ws(a, SRD0, "WA2", WA2_SIZE)
    srd_ws(a, SRD1, "H", H_SIZE)
    st = {"p": None, "q": None}

    def ip(t, p, dst):
        if t < 14:
            if Cfg.g2lay & 1:
                a(f"s_mov_b32 s{sOP}, {t * 5120 + p * 1024}")
                a(f"buffer_load_dwordx4 {R(dst, 4)}, v{vp}, s[{SRD0}:{SRD0 + 3}], s{sOP} offen")
                return
            if st["p"] != t:
                a(f"s_mov_b32 s{sOP}, {t * 4 * KB_STR}")
            a(f"buffer_load_dwordx4 {R(dst, 4)}, v{vp}, s[{SRD0}:{SRD0 + 3}], s{sOP} offen offset:{p * 256}")
        else:
            if st["p"] != t:
                a(f"s_mov_b32 s{sOP}, {(t - 14) * 4 * KB_STR}")
            a(f"buffer_load_dwordx4 {R(dst, 4)}, v{vp2}, s[{SRD4}:{SRD4 + 3}], s{sOP} offen offset:{p * 256}")
        st["p"] = t

    def iq(t, q, qb):
        if t < 14:
            if st["q"] != t:
                a(f"s_mov_b32 s{sOQ}, {t * (4096 if Cfg.g2lay & 2 else 4 * H_STR)}")
            a(f"buffer_load_dwordx4 {R(qb + q * 4, 4)}, v{vq + q}, s[{SRD1}:{SRD1 + 3}], s{sOQ} offen")
        else:
            if st["q"] != t:
                a(f"s_mov_b32 s{sOQ}, {(t - 14) * 8 * XP_STR}")
                a(f"s_mov_b32 s{sF}, {((t - 14) * 8 + 1) * XP_STR}")
            a(f"buffer_load_dwordx2 {R(qb + q * 4, 2)}, v{vq2 + q}, s[{SRD5}:{SRD5 + 3}], s{sOQ} offen")
            a(f"buffer_load_dwordx2 {R(qb + q * 4 + 2, 2)}, v{vq2 + q}, s[{SRD5}:{SRD5 + 3}], s{sF} offen")
        st["q"] = t

    def post():
        a(f"s_lshl_b32 s{sE}, s{sW}, 4")
        a(f"s_add_u32 s{sE}, s{sE}, s{sC}")
        if final:
            srd_table(a, SRD4, "ft2")
            srd_ws(a, SRD5, "XP3", XP_SIZE)
            srd(a, SRD2, P_OUT, 0, SEQ * DM * 2)
            srd(a, SRD3, P_B2, 0, DM * 2)
            p_addr(a, vp2, sD, 5)
            a(f"v_lshlrev_b32 v{vq2}, 15, v{vG}")
            a(f"v_lshl_add_u32 v{vq2}, v{vI}, 3, v{vq2}")
            a(f"s_mul_i32 s{sA}, s{sW}, {40 * XP_STR}")
            a(f"s_lshl_b32 s{sB}, s{sC}, 3")
            a(f"s_add_u32 s{sA}, s{sA}, s{sB}")
            for ql in (3, 2, 1, 0):
                a(f"s_xor_b32 s{sB}, s{sW}, {ql}")
                a(f"s_lshl_b32 s{sB}, s{sB}, 7")
                a(f"s_add_u32 s{sB}, s{sB}, s{sA}")
                a(f"v_add_u32 v{vq2 + ql}, s{sB}, v{vq2}")
            a(f"s_mul_i32 s{sA}, s{sD}, 160")
            a(f"v_lshlrev_b32 v{vs}, 3, v{vG}")
            a(f"v_add_u32 v{vs}, s{sA}, v{vs}")
            a(f"v_mul_u32_u24 v{vo}, 1280, v{vI}")
            a(f"v_add_u32 v{vo}, v{vo}, v{vs}")
            a(f"s_mul_i32 s{sA}, s{sE}, 1280")
            a(f"v_add_u32 v{vo}, s{sA}, v{vo}")
        else:
            srd_ws(a, SRD2, "XP2", XP_SIZE)
            srd_ws(a, SRD3, "XP1", XP_SIZE)
            srd_ws(a, SRD4, "SS2", SS_SIZE)
            a(f"s_mul_i32 s{sA}, s{sD}, {20 * XP_STR}")
            a(f"s_lshl_b32 s{sB}, s{sE}, 3")
            a(f"s_add_u32 s{sA}, s{sA}, s{sB}")
            a(f"v_lshlrev_b32 v{vo}, 14, v{vG}")
            a(f"v_lshl_add_u32 v{vo}, v{vI}, 3, v{vo}")
            a(f"v_add_u32 v{vo}, s{sA}, v{vo}")
            a(f"s_lshl_b32 s{sA}, s{sW}, 3")
            a(f"s_lshr_b32 s{sB}, s{sC}, 8")
            a(f"s_add_u32 s{sA}, s{sA}, s{sB}")
            a(f"s_lshl_b32 s{sA}, s{sA}, 8")
            a(f"s_bfe_u32 s{sB}, s{sC}, 0x20006")
            a(f"s_lshl2_add_u32 s{sA}, s{sB}, s{sA}")
            a(f"v_lshlrev_b32 v{vs}, 4, v{vI}")
            a(f"v_add_u32 v{vs}, s{sA}, v{vs}")
            a(f"v_lshl_add_u32 v{vs}, v{vG}, 20, v{vs}")
            a(f"s_cmp_eq_u32 s{sW}, 3")
            a(f"s_cselect_b32 s{sA}, 0x3f80, 0")
            a(f"v_mov_b32 v{vone}, s{sA}")
            a(f"v_cmp_eq_u32 vcc, 0, v{vG}")
            a(f"v_cndmask_b32 v{vone}, 0, v{vone}, vcc")
            a(f"s_cmp_eq_u32 s{sD}, 0")
            a(f"s_cselect_b32 s{sA}, 0, 1.0")
            a(f"v_mov_b32 v{vp2}, s{sA}")
            a(f"v_cndmask_b32 v{vp2}, 1.0, v{vp2}, vcc")

    def prep(t, qb):
        if t == 3:
            for p in range(5):
                if final:
                    a(f"buffer_load_dwordx2 {V(RES + 2 * p, 2)}, v{vs}, s[{SRD3}:{SRD3 + 3}], 0 offen offset:{p * 32}")
                else:
                    a(f"s_mov_b32 s{sF}, {p * 4 * XP_STR}")
                    a(f"buffer_load_dwordx2 {V(RES + 2 * p, 2)}, v{vo}, s[{SRD3}:{SRD3 + 3}], s{sF} offen")
        if t == 12 and not final:
            for q in range(4):
                a(f"v_accvgpr_read_b32 v{TMP + q}, {R(qb + q * 4)}")
            for q in range(4):
                a(f"v_or_b32 v{TMP + q}, v{TMP + q}, v{vone}")
            for q in range(4):
                a(f"v_accvgpr_write_b32 {R(qb + q * 4)}, v{TMP + q}")
        return [qb + q * 4 for q in range(4)]

    res = gemm_ks_hook(a, 19 if final else 14, depth, acc, ring, vred, ip, iq, prep, post)
    a(f"s_mov_b32 s{sK2}, 0xffff0000")
    if not final:
        a(f"v_mov_b32 v{TMP + 8}, 0")
        a(f"v_mov_b32 v{TMP + 9}, 0")
    for p, r in enumerate(res):
        for h in range(2):
            a(f"v_lshlrev_b32 v{TMP + 2 * h}, 16, v{RES + 2 * p + h}")
            a(f"v_and_b32 v{TMP + 2 * h + 1}, s{sK2}, v{RES + 2 * p + h}")
        for h in (0, 2):
            a(f"v_pk_add_f32 {V(r + h, 2)}, {V(r + h, 2)}, {V(TMP + h, 2)}")
        a(f"v_cvt_pk_bf16_f32 v{r}, v{r}, v{r + 1}")
        a(f"v_cvt_pk_bf16_f32 v{r + 1}, v{r + 2}, v{r + 3}")
        if final:
            a(f"buffer_store_dwordx2 {V(r, 2)}, v{vo}, s[{SRD2}:{SRD2 + 3}], 0 offen offset:{p * 32}{Cfg.st_flags}")
        else:
            a(f"s_mov_b32 s{sOP}, {p * 4 * XP_STR}")
            a(f"buffer_store_dwordx2 {V(r, 2)}, v{vo}, s[{SRD2}:{SRD2 + 3}], s{sOP} offen{Cfg.st_flags}")
            if p == 0:
                a(f"v_lshlrev_b32 v{TMP + 4}, 16, v{r}")
                a(f"v_and_b32 v{TMP + 5}, s{sK2}, v{r}")
                a(f"v_mul_f32 v{TMP + 5}, v{TMP + 5}, v{vp2}")
                a(f"v_mul_f32 v{TMP + 8}, v{TMP + 4}, v{TMP + 4}")
                a(f"v_fmac_f32 v{TMP + 8}, v{TMP + 5}, v{TMP + 5}")
            else:
                a(f"v_dot2c_f32_bf16 v{TMP + 8}, v{r}, v{r}")
            a(f"v_dot2c_f32_bf16 v{TMP + 9}, v{r + 1}, v{r + 1}")
    if not final:
        s = TMP + 8
        a(f"v_add_f32 v{s}, v{s}, v{s + 1}")
        for op in ("v_permlane32_swap_b32", "v_permlane16_swap_b32"):
            a(f"v_mov_b32 v{s + 1}, v{s}")
            a(f"{op} v{s}, v{s + 1}")
            a(f"v_add_f32 v{s}, v{s}, v{s + 1}")
        a(f"buffer_atomic_add_f32 v{s}, v{vs}, s[{SRD4}:{SRD4 + 3}], 0 offen")
    return KS_LDS


def gemm_ks_hook(a, nsteps, depth, acc, ring, vred, ip, iq, hook, post):
    return gemm_ks(a, nsteps, depth, acc, ring, vred, True, ip, iq, after_prologue=post, step_hook=hook)


def build_kernel(name, idx, roles, block=256):
    a = Asm()
    a.raw(f".globl {name}\n.p2align 8\n.type {name},@function")
    a.label(name)
    a.label(name + "_code")
    a("s_load_dwordx16 s[8:23], s[0:1], 0")
    a("s_load_dwordx4 s[24:27], s[0:1], 64")
    a("s_load_dwordx2 s[28:29], s[0:1], 80")
    if Cfg.stamp:
        a(f"s_memrealtime s[{sST}:{sST + 1}]")
        for j in range(1, 10):
            a(f"s_mov_b32 s{sST + 2 * j}, 0")
    a(f"v_lshrrev_b32 v{vL}, 6, v0")
    a(f"v_and_b32 v{vI}, 15, v0")
    a(f"v_readfirstlane_b32 s{sW}, v{vL}")
    a(f"v_bfe_u32 v{vG}, v0, 4, 2")
    a(f"v_and_b32 v{vL}, 63, v0")
    lds = 0
    start = 0
    starts = [sum(c for c, _ in roles[:n]) for n in range(len(roles) + 1)]
    for n in range(len(roles), 0, -1):
        a(f"s_cmp_ge_u32 s2, {starts[n]}")
        a(f"s_cbranch_scc1 {name}_r{n}")
    for n, (count, fn) in enumerate(roles):
        if n:
            a.label(f"{name}_r{n}")
        a(f"s_sub_u32 s{sT}, s2, {start}")
        lds = max(lds, fn(a))
        if Cfg.stamp:
            mark(a, 10)
            a("s_waitcnt vmcnt(0)")
            mark(a, 11)
            a("s_waitcnt lgkmcnt(0)")
            a(f"s_mul_i32 s{sA}, s2, {block // 64}")
            a(f"s_add_u32 s{sA}, s{sA}, s{sW}")
            a(f"s_lshl_b32 s{sA}, s{sA}, 6")
            a(f"s_add_u32 s{sA}, s{sA}, {idx * 262144}")
            srd_ws(a, SRD0, "STAMP", 1 << 21)
            a("s_waitcnt lgkmcnt(0)")
            for j in range(12):
                a(f"v_mov_b32 v{4 + j}, s{sST + 2 * j}")
            a(f"v_mov_b32 v16, s{sA}")
            for j in range(3):
                a(f"buffer_store_dwordx4 v[{4 + 4 * j}:{7 + 4 * j}], v16, s[{SRD0}:{SRD0 + 3}], 0 offen offset:{16 * j}")
            a(f"s_getreg_b32 s{sB}, hwreg(HW_REG_XCC_ID)")
            a(f"v_mov_b32 v17, s{sB}")
            a(f"buffer_store_dword v17, v16, s[{SRD0}:{SRD0 + 3}], 0 offen offset:48")
        a("s_endpgm")
        for fn2 in a.tail:
            fn2()
        a.tail = []
        start += count
    a.label(f"{name}_r{len(roles)}")
    a("s_endpgm")
    a.label(name + "_cend")
    nv = na = 0
    ns = 0
    for it in a.items:
        if isinstance(it, Inst):
            for k, r in it.dst + it.src + it.srcc:
                if k == "v":
                    nv = max(nv, r + 1)
                elif k == "a":
                    na = max(na, r + 1)
                elif r < 102:
                    ns = max(ns, r + 1)
    acco = (nv + 3) // 4 * 4
    desc = f""".p2align 6
.amdhsa_kernel {name}
  .amdhsa_next_free_vgpr {acco + na}
  .amdhsa_next_free_sgpr {ns}
  .amdhsa_accum_offset {acco}
  .amdhsa_group_segment_fixed_size 0
  .amdhsa_kernarg_size 88
  .amdhsa_user_sgpr_count 2
  .amdhsa_user_sgpr_kernarg_segment_ptr 1
  .amdhsa_system_sgpr_workgroup_id_x 1
.end_amdhsa_kernel
"""
    launch = f"; @launch kernel={name} grid=({start},1,1) block=({block},1,1) lds={lds}"
    if Cfg.stamp:
        launch += "\n; roles " + name + " " + " ".join(str(c * block // 256) for c, _ in roles)
    return launch, a.finalize(), desc


def tables():
    L = []
    c = np.sqrt(2.0 / DM) * np.cos(2 * np.pi * np.arange(DM) / DM)
    c[160] = 0
    c[480] = 0
    bits = model.bf16_bits(c.astype(np.float32))
    for n in range(DM):
        L.append(f".set cq{n}, {bits[n]}")
    bb = int(model.bf16_bits(np.float32([np.sqrt(1 / DM)]))[0])
    L.append(".altmacro")
    L.append(".macro e8 a,b,c,d,e,f,g,h\n.short cq\\a, cq\\b, cq\\c, cq\\d, cq\\e, cq\\f, cq\\g, cq\\h\n.endm")
    L.append(".macro e6 a,b,c,d,e,f\n.short cq\\a, cq\\b, cq\\c, cq\\d, cq\\e, cq\\f\n.endm")
    L.append(".p2align 12\nft1:")
    L.append(".set td, 0\n.rept 80")
    L.append(".short " + ", ".join(str(bb | (0x8000 if j & 1 else 0)) for j in range(8)))
    L.append(".short " + ", ".join(str(bb) for j in range(8)))
    L.append(".set tm, 1\n.rept 319")
    L.append("e8 " + ", ".join(f"%((tm*(td+{j}))%640)" for j in range(8)))
    L.append("e8 " + ", ".join(f"%((tm*(td+{j})+160)%640)" for j in range(8)))
    L.append(".set tm, tm+1\n.endr\n.set td, td+8\n.endr")
    L.append(".p2align 12\nft2:")
    L.append(".set td, 0\n.rept 640")
    L.append(f".short {bb}+((td&1)<<15), {bb}")
    L.append("e6 " + ", ".join(f"%(({1 + j // 2}*td+{160 * (j & 1)})%640)" for j in range(6)))
    L.append(".set td, td+1\n.endr")
    L.append(".set tm, 4\n.rept 79\n.set td, 0\n.rept 640")
    L.append("e8 " + ", ".join(f"%(((tm+{j // 2})*td+{160 * (j & 1)})%640)" for j in range(8)))
    L.append(".set td, td+1\n.endr\n.set tm, tm+4\n.endr")
    L.append(".noaltmacro")
    return "\n".join(L) + "\n"


def generate(plan=None, tabs=None):
    if plan is None:
        plan = default_plan()
    launches, code, descs = [], [], []
    for idx, (name, roles, *blk) in enumerate(plan):
        l, c, d = build_kernel(name, idx, roles, *blk)
        launches.append(l)
        code.append(c)
        descs.append(d)
    out = "\n".join(launches) + "\n"
    out += '.amdgcn_target "amdgcn-amd-amdhsa--gfx950"\n.text\n'
    out += "".join(code)
    out += "text_last:\n"
    out += '.section .rodata,"a"\n'
    out += "".join(descs)
    out += (tabs or tables)()
    return out


def default_plan():
    tail = [
        ("g1a_kernel", [(256, lambda a: role_g1(a, "XP1"))]),
        ("g2a_kernel", [(256, lambda a: role_g2(a, False))]),
        ("c2_kernel", [(320, lambda a: role_col(a, "XP2", "SS2", "XP3")), (135, role_w2t)]),
        ("g1b_kernel", [(256, lambda a: role_g1(a, "XP3"))]),
        ("g2b_kernel", [(256, lambda a: role_g2(a, True))]),
    ]
    d = Cfg.pdepth
    if Cfg.plan == 1:
        return [
            ("p0_kernel", [(256, lambda a: role_xhat0(a, d))]),
            ("p1_kernel", [(80, role_wc), (64, role_stats)]),
            ("p2_kernel", [(224, lambda a: role_w2f(a, d))]),
            ("p3_kernel", [(216, lambda a: role_w1f(a, min(d, 4)))]),
            ("c1_kernel", [(320, lambda a: role_col(a, "XP0", "SS0", "XP1"))]),
        ] + tail[:3]
    if Cfg.plan == 2:
        return [
            ("p0_kernel", [(256, lambda a: role_xhat0(a, d)), (80, role_wc), (64, role_stats)]),
            ("c1_kernel", [(320, lambda a: role_col(a, "XP0", "SS0", "XP1")), (216, lambda a: role_w1f(a, min(d, 4))),
                           (224, lambda a: role_w2f(a, min(d, 4), 112))]),
        ] + tail
    return [
        ("p0_kernel", [(256, lambda a: role_xhat0(a, 4)), (80, role_wc), (64, role_stats),
                       (224, lambda a: role_w2f(a, 4))]),
        ("c1_kernel", [(320, lambda a: role_col(a, "XP0", "SS0", "XP1")), (216, lambda a: role_w1f(a, 4))]),
        ("g1a_kernel", [(256, lambda a: role_g1(a, "XP1"))]),
        ("g2a_kernel", [(256, lambda a: role_g2(a, False))]),
        ("c2_kernel", [(320, lambda a: role_col(a, "XP2", "SS2", "XP3")), (135, role_w2t)]),
        ("g1b_kernel", [(256, lambda a: role_g1(a, "XP3"))]),
        ("g2b_kernel", [(256, lambda a: role_g2(a, True))]),
    ]


if __name__ == "__main__":
    out = sys.argv[1]
    for opt in sys.argv[2:]:
        if opt == "stamp":
            Cfg.stamp = True
        if "=" in opt:
            k, v = opt.split("=")
            setattr(Cfg, k, int(v) if v.lstrip("-").isdigit() else v.replace("_", " "))
        if opt == "clk":
            Cfg.stamp = Cfg.clk = True
    open(out, "w").write(generate())
```

```python
from gen import *
import model2

SCALE = float(np.sqrt(2.0 / DM))
SIGN2 = 0x80008000
CNT = {"x": 128, "1": 96, "a": 32, "2": 112, "c": 128, "k": 160, "t": 72}


class PC:
    order = ("x2ac", "k1", "kt")
    lay = ("x2ac", "k1", "kt")
    w2t_in = 0
    code_pf = 1
    fl_ld = " nt"
    fl_l2 = " nt"
    fl_a = ""
    warm = 1
    pf_wgs = 16
    touch_ws = ()
    fl_t = ""
    fl_x = ""
    fl_w = " sc1"
    fl_w2 = ""
    fl_c = ""
    fused = 0
    fl_p = " sc1"
    fill = XP_SIZE
    warm_all = 0
    w1frag = 0


def fx(x):
    return f"{f32bits(x):#x}"


class Sched:
    def __init__(self, a, per=2):
        self.a, self.per = a, per
        self.fill = []
        self.done = set()
        self.n = 0

    def add(self, op, ready=-1, key=None):
        self.fill.append((ready, key, op))

    def _pop(self):
        _, key, op = self.fill.pop(0)
        if callable(op):
            op()
        else:
            self.a(op)
        if key is not None and all(k != key for _, k, _ in self.fill):
            self.done.add(key)

    def mfma(self, d, x, y, c, needs=()):
        for k in needs:
            while k not in self.done:
                self._pop()
        mfma(self.a, d, x, y, c)
        cnt = 0
        while self.fill and cnt < self.per and self.fill[0][0] <= self.n:
            self._pop()
            cnt += 1
        self.n += 1

    def flush(self):
        while self.fill:
            self._pop()


SCRATCH = 32768


def code_prefetch(a, name, dst):
    a(f"s_cmp_ge_u32 s2, {PC.pf_wgs}")
    a(f"s_cbranch_scc1 {name}_npf")
    a(f"s_getpc_b64 s[{SRD5}:{SRD5 + 1}]")
    a.label(f"{name}_here", keep=True)
    a(f"s_and_b32 s{SRD5 + 1}, s{SRD5 + 1}, 0xffff")
    a(f"s_mov_b32 s{SRD5 + 2}, {name}_last-{name}_here")
    a(f"s_mov_b32 s{SRD5 + 3}, 0x20000")
    a(f"s_mov_b32 m0, {SCRATCH}")
    a(f"v_lshlrev_b32 v{dst}, 6, v0")
    a(f"buffer_load_dword v{dst}, s[{SRD5}:{SRD5 + 3}], 0 offen lds")
    a.label(f"{name}_npf")


def touch(a, vt, offs, sh=0):
    a(f"s_mov_b32 m0, {SCRATCH}")
    a(f"v_lshlrev_b32 v{vt}, 6, v0")
    for off in offs:
        a(f"s_lshr_b32 s{sOP}, s{sT}, {sh}")
        a(f"s_lshl_b32 s{sOP}, s{sOP}, 14")
        if off:
            a(f"s_add_u32 s{sOP}, s{sOP}, {off}")
        a(f"buffer_load_dword v{vt}, s[{SRD4}:{SRD4 + 3}], s{sOP} offen lds")


def fill_count(order):
    return -(-PC.fill // (4096 * CNT["c"])) if PC.fused else 0


def fill(a, order, vo, vd):
    n = fill_count(order)
    srd_ws(a, SRD5, "XP1", PC.fill)
    a(f"s_mul_i32 s{sA}, s{sT}, {4096 * n}")
    a(f"v_lshl_add_u32 v{vo}, v0, 4, s{sA}")
    for k in range(4):
        a(f"v_mov_b32 v{vd + k}, -1")
    for k in range(n):
        a(f"s_mov_b32 s{sOP}, {k * 4096}")
        a(f"buffer_store_dwordx4 {V(vd, 4)}, v{vo}, s[{SRD5}:{SRD5 + 3}], s{sOP} offen{PC.fl_p}")


def role_front(a, name, order, lay, ext):
    vld, vr, vo = 4, 5, 9
    MK, M1, M2, M2N = 10, 14, 15, 16
    vph, vk0, vq20, vgf = 17, 18, 19, 35
    ACC1, A1, A2, Y, ACCX = 20, 36, 96, 144, 168
    TMP = Y
    DAT = 176
    sQ, sFT, sKD = sK0, sK1, 96
    KINDS = tuple(k for k in ("x", "w1", "w2") if k[-1] in order.replace("a", "1"))
    fl_w = PC.fl_a if "a" in order else PC.fl_w

    def frag(beta, j):
        return DAT + (beta * 5 + j) * 4

    start, s0 = {}, 0
    for ch in order:
        start[ch] = s0
        s0 += CNT[ch]
    if PC.code_pf:
        code_prefetch(a, name, vld)
    a(f"s_lshl_b32 s{sE}, s{sW}, 10")
    lo, hi = 0, len(order) - 1
    while lo < hi:
        if order[hi] != lay[0]:
            a(f"s_cmp_ge_u32 s2, {start[order[hi]]}")
            a(f"s_cbranch_scc1 {name}_p{order[hi]}")
            hi -= 1
        else:
            a(f"s_cmp_lt_u32 s2, {start[order[lo + 1]]}")
            a(f"s_cbranch_scc1 {name}_p{order[lo]}")
            lo += 1

    def row_loads():
        a(f"s_and_b32 s{sA}, s{sW}, 1")
        a(f"s_lshl_b32 s{sA}, s{sA}, 1")
        a(f"s_xor_b32 s{sA}, s{sA}, s{sW}")
        a(f"s_lshl_b32 s{sA}, s{sA}, 2")
        a(f"v_or_b32 v{vr}, s{sA}, v{vG}")
        a(f"v_xor_b32 v{vr}, v{vr}, v{vI}")
        a(f"v_mul_u32_u24 v{vld}, 1280, v{vld}")
        a(f"v_lshl_add_u32 v{vld}, v{vr}, 4, v{vld}")

    def row_issue(fl):
        for j in range(5):
            a(f"s_add_u32 m0, s{sE}, {j * 4096 - j * 256}")
            a(f"buffer_load_dwordx4 v{vld}, s[{SRD0}:{SRD0 + 3}], 0 offen offset:{j * 256}{fl} lds")
        mark(a, 1)

    def pro_x():
        a(f"s_and_b32 s{sC}, s{sT}, 1")
        a(f"s_lshl_b32 s{sC}, s{sC}, 3")
        a(f"s_lshr_b32 s{sA}, s{sT}, 5")
        a(f"s_lshl4_add_u32 s{sC}, s{sA}, s{sC}")
        a(f"s_bfe_u32 s{sA}, s{sT}, 0x20001")
        a(f"s_lshl_b32 s{sA}, s{sA}, 8")
        a(f"s_add_u32 s{sC}, s{sC}, s{sA}")
        a(f"s_and_b32 s{sA}, s{sT}, 8")
        a(f"s_lshl4_add_u32 s{sC}, s{sA}, s{sC}")
        a(f"s_and_b32 s{sA}, s{sT}, 16")
        a(f"s_lshl_b32 s{sA}, s{sA}, 6")
        a(f"s_add_u32 s{sC}, s{sC}, s{sA}")
        a(f"s_lshl1_add_u32 s{sC}, s{sW}, s{sC}")
        a(f"v_and_b32 v{vld}, 1, v{vG}")
        a(f"v_lshlrev_b32 v{vld}, 6, v{vld}")
        a(f"v_lshrrev_b32 v{vr + 1}, 1, v{vG}")
        a(f"v_add3_u32 v{vld}, v{vld}, v{vr + 1}, s{sC}")
        row_loads()
        a("s_waitcnt lgkmcnt(0)")
        srd(a, SRD0, P_X, 0, SEQ * DM * 2)
        row_issue(PC.fl_ld)
        srd_ws(a, SRD1, "XP0", XP_SIZE)
        a(f"s_mov_b32 s{sKD}, 0")
        a(f"s_branch {name}_gen")

    def pro_w2():
        a(f"s_lshl_b32 s{sC}, s{sT}, 4")
        a(f"s_cmp_eq_u32 s{sT}, 108")
        a(f"s_cselect_b32 s{sC}, 0, s{sC}")
        a(f"s_lshl2_add_u32 s{sC}, s{sW}, s{sC}")
        a(f"v_add_u32 v{vld}, s{sC}, v{vG}")
        row_loads()
        a(f"s_cmp_eq_u32 s{sT}, 108")
        a(f"s_mov_b32 s{SRD0 + 2}, {FF * DM * 2}")
        a(f"s_cselect_b32 s{SRD0 + 2}, {DM * 2}, s{SRD0 + 2}")
        a(f"s_mov_b32 s{SRD0 + 3}, 0x20000")
        a("s_waitcnt lgkmcnt(0)")
        a(f"s_cselect_b32 s{SRD0}, s{P_B2}, s{P_W2}")
        a(f"s_cselect_b32 s{SRD0 + 1}, s{P_B2 + 1}, s{P_W2 + 1}")
        a(f"s_and_b32 s{SRD0 + 1}, s{SRD0 + 1}, 0xffff")
        row_issue(PC.fl_l2)
        srd_ws(a, SRD1, "WA2", WA2_SIZE)
        a(f"s_mov_b32 s{sKD}, 2")
        a(f"s_branch {name}_gen")

    def pro_w1():
        a(f"s_and_b32 s{sA}, s{sT}, 7")
        a(f"s_lshr_b32 s{sB}, s{sT}, 5")
        a(f"s_lshl3_add_u32 s{sA}, s{sB}, s{sA}")
        a(f"s_cmp_ge_u32 s{sA}, 27")
        a(f"s_cbranch_scc1 {name}_end")
        a(f"s_bfe_u32 s{sB}, s{sT}, 0x20003")
        a(f"s_lshl2_add_u32 s{sFT}, s{sA}, s{sB}")
        a(f"s_and_b32 s{sA}, s{sW}, 1")
        a(f"s_lshl_b32 s{sA}, s{sA}, 2")
        a(f"v_lshrrev_b32 v{vld}, 1, v{vL}")
        a(f"v_xor_b32 v{vld}, s{sA}, v{vld}")
        a(f"v_mul_u32_u24 v{vld}, {FF * 2}, v{vld}")
        a(f"v_and_b32 v{vr}, 1, v{vL}")
        a(f"v_lshl_add_u32 v{vld}, v{vr}, 4, v{vld}")
        a(f"s_mul_i32 s{sA}, s{sW}, {32 * FF * 2}")
        a(f"s_lshl_b32 s{sB}, s{sFT}, 5")
        a(f"s_add_u32 s{sA}, s{sA}, s{sB}")
        a(f"v_add_u32 v{vld}, s{sA}, v{vld}")
        a("s_waitcnt lgkmcnt(0)")
        srd(a, SRD0, P_W1, 0, DM * FF * 2)
        for j in range(5):
            a(f"s_add_u32 m0, s{sE}, {j * 4096}")
            a(f"s_mov_b32 s{sOP}, {j * 128 * FF * 2}")
            a(f"buffer_load_dwordx4 v{vld}, s[{SRD0}:{SRD0 + 3}], s{sOP} offen lds")
        mark(a, 1)
        srd_ws(a, SRD1, "W1F", W1F_SIZE)
        a(f"s_mov_b32 s{sKD}, 1")
        a(f"s_branch {name}_gen")

    REG = 5248

    def pro_wc():
        vld, va0, va1, va2, vo, vt, LD, ST = 4, 5, 6, 7, 8, 9, 12, 52
        a(f"s_bfe_u32 s{sA}, s{sT}, 0x20001")
        a(f"s_lshl_b32 s{sC}, s{sA}, 7")
        a(f"s_lshr_b32 s{sA}, s{sT}, 5")
        a(f"s_lshl_b32 s{sA}, s{sA}, 9")
        a(f"s_add_u32 s{sC}, s{sC}, s{sA}")
        a(f"s_and_b32 s{sA}, s{sT}, 8")
        a(f"s_lshl3_add_u32 s{sC}, s{sA}, s{sC}")
        a(f"s_and_b32 s{sA}, s{sT}, 16")
        a(f"s_add_u32 s{sC}, s{sC}, s{sA}")
        a(f"s_and_b32 s{sA}, s{sT}, 1")
        a(f"s_lshl3_add_u32 s{sC}, s{sA}, s{sC}")
        a(f"s_and_b32 s{sA}, s{sW}, 2")
        a(f"s_lshl4_add_u32 s{sC}, s{sA}, s{sC}")
        a(f"s_mul_i32 s{sC}, s{sC}, 642")
        a(f"s_add_u32 s{sD}, s{sC}, 4096")
        a(f"v_lshlrev_b32 v{vld}, 4, v{vL}")
        a(f"s_mul_i32 s{sE}, s{sW}, {REG}")
        a(f"s_mov_b32 s{SRD0 + 2}, {SEQ * 642}")
        a(f"s_mov_b32 s{SRD0 + 3}, 0x20000")
        a(f"s_mov_b32 m0, s{sE}")
        a(f"s_bitcmp1_b32 s{sW}, 0")
        a("s_waitcnt lgkmcnt(0)")
        a(f"s_cselect_b32 s{SRD0}, s{P_WI}, s{P_WR}")
        a(f"s_cselect_b32 s{SRD0 + 1}, s{P_WI + 1}, s{P_WR + 1}")
        a(f"s_and_b32 s{SRD0 + 1}, s{SRD0 + 1}, 0xffff")
        for j in range(4):
            a(f"buffer_load_dwordx4 v{vld}, s[{SRD0}:{SRD0 + 3}], s{sC} offen offset:{j * 1024}{PC.fl_ld} lds")
        a(f"s_add_u32 m0, s{sE}, 4096")
        a(f"buffer_load_dwordx4 v{vld}, s[{SRD0}:{SRD0 + 3}], s{sD} offen{PC.fl_ld} lds")
        a("s_mov_b64 exec, 1")
        a(f"buffer_load_dwordx4 v{vld}, s[{SRD0}:{SRD0 + 3}], s{sD} offen offset:1024{PC.fl_ld} lds")
        a("s_mov_b64 exec, -1")
        mark(a, 1)
        if PC.fused:
            fill(a, order, vo, ST)
        srd_ws(a, SRD1, "WC", WC_SIZE)
        a(f"v_bfe_u32 v{vt}, v{vL}, 3, 1")
        a(f"v_lshlrev_b32 v{vt}, 2, v{vt}")
        a(f"v_add_u32 v{vt}, v{vt}, v{vG}")
        a(f"s_cmp_lt_u32 s{sW}, 2")
        a(f"s_cselect_b32 s{sK0}, 1, -1")
        a(f"s_mul_i32 s{sA}, s{sK0}, 80")
        a(f"s_mul_i32 s{sB}, s{sK0}, 40")
        a(f"v_mul_i32_i24 v{va0}, s{sA}, v{vt}")
        a(f"v_and_b32 v{vt}, 7, v{vL}")
        a(f"v_mul_u32_u24 v{va1}, 642, v{vt}")
        a(f"v_add_u32 v{va0}, v{va0}, v{va1}")
        a(f"s_mul_i32 s{sK1}, s{sW}, 5")
        a(f"s_sub_u32 s{sK2}, 325, s{sK1}")
        a(f"s_cmp_lt_u32 s{sW}, 2")
        a(f"s_cselect_b32 s{sK2}, s{sK1}, s{sK2}")
        a(f"s_lshl_b32 s{sK2}, s{sK2}, 1")
        a(f"v_add_u32 v{va0}, s{sK2}, v{va0}")
        a(f"v_add_u32 v{va1}, s{sB}, v{va0}")
        a(f"v_cmp_gt_u32 vcc, 8, v0")
        a(f"v_add_u32 v{va2}, 640, v{va0}")
        a(f"v_cndmask_b32 v{va2}, v{va0}, v{va2}, vcc")
        a(f"v_lshrrev_b32 v{vo}, 3, v{vL}")
        a(f"v_lshlrev_b32 v{vo}, 14, v{vo}")
        a(f"v_lshl_add_u32 v{vo}, v{vt}, 4, v{vo}")
        a(f"s_lshl_b32 s{sA}, s{sT}, 7")
        a(f"s_lshr_b32 s{sB}, s{sW}, 1")
        a(f"s_lshl_b32 s{sB}, s{sB}, 17")
        a(f"s_add_u32 s{sA}, s{sA}, s{sB}")
        a(f"v_add_u32 v{vo}, s{sA}, v{vo}")
        a(f"s_sub_u32 s{sK2}, s{sK1}, 5")
        a(f"s_cmp_lt_u32 s{sW}, 2")
        a(f"s_cselect_b32 s{sK1}, s{sK1}, s{sK2}")
        a(f"s_waitcnt vmcnt({fill_count(order)})")
        if PC.warm:
            for ch, ptr in (("1", P_W1), ("2", P_W2)):
                if ch not in order:
                    srd(a, SRD4, ptr, 0, DM * FF * 2)
                    touch(a, vld, (0, 1 << 21))
            a(f"s_getpc_b64 s[{SRD4}:{SRD4 + 1}]")
            a.label(f"{name}_cur", keep=True)
            a(f"s_and_b32 s{SRD4 + 1}, s{SRD4 + 1}, 0xffff")
            a(f"s_mov_b32 s{SRD4 + 2}, text_last-{name}_cur")
            a(f"s_mov_b32 s{SRD4 + 3}, 0x20000")
            touch(a, vld, (0,), 3 if PC.warm_all else 0)
        for nm in PC.touch_ws:
            srd_ws(a, SRD4, nm, H_SIZE)
            a(f"v_lshlrev_b32 v{vld}, 7, v0")
            for off in (0, 1 << 22):
                a(f"s_lshl_b32 s{sOP}, s{sT}, 15")
                a(f"s_add_u32 s{sOP}, s{sOP}, {off}")
                a(f"buffer_load_dword v{vld}, s[{SRD4}:{SRD4 + 3}], s{sOP} offen{PC.fl_t} lds")
        a("s_barrier")
        mark(a, 3)
        for n in range(5):
            for rl in range(2):
                for ph in range(2):
                    ad = va1 if ph else (va2 if n == 0 else va0)
                    for ar in range(2):
                        a(f"ds_read_u16 v{LD + n * 8 + (rl * 2 + ph) * 2 + ar}, v{ad} offset:{(rl * 2 + ar) * REG + 2 * n}")
        for n in range(5):
            for k in range(4):
                a(f"v_lshl_or_b32 v{ST + 4 * n + k}, v{LD + n * 8 + 2 * k + 1}, 16, v{LD + n * 8 + 2 * k}")
            if n == 0:
                a(f"s_cmp_eq_u32 s{sK1}, 10")
                a(f"s_cselect_b32 s{sOP}, 0, s{sK1}")
                a(f"s_lshl_b32 s{sOP}, s{sOP}, 18")
            else:
                a(f"s_add_i32 s{sK1}, s{sK1}, s{sK0}")
                a(f"s_lshl_b32 s{sOP}, s{sK1}, 18")
            a(f"buffer_store_dwordx4 {V(ST + 4 * n, 4)}, v{vo}, s[{SRD1}:{SRD1 + 3}], s{sOP} offen{PC.fl_c}")
        a(f"s_branch {name}_end")

    pros = {"x": pro_x, "1": pro_w1, "a": pro_w1, "2": pro_w2, "c": pro_wc}
    if "a" in order:
        assert start["a"] % 8 == 0
        start["a"] -= CNT["1"]
    lds = SCRATCH + 256
    for ch in lay:
        if ch != lay[0]:
            a.label(f"{name}_p{ch}")
        if start[ch]:
            a(f"s_sub_i32 s{sT}, s2, {start[ch]}")
        if ch in pros:
            pros[ch]()
        else:
            lds = max(lds, ext[ch](a))
            a(f"s_branch {name}_end")
    if not KINDS:
        a.label(f"{name}_end")
        a.label(f"{name}_last")
        return lds

    a.label(f"{name}_gen")
    a(f"v_bfe_u32 v{TMP}, v{vI}, 1, 1")
    a(f"v_lshlrev_b32 v{TMP}, 4, v{TMP}")
    a(f"v_mov_b32 v{TMP + 1}, 0xffff")
    a(f"v_lshlrev_b32 v{TMP}, v{TMP}, v{TMP + 1}")
    a(f"v_lshrrev_b32 v{TMP + 1}, 2, v{vI}")
    for k in range(4):
        a(f"v_cmp_eq_u32 vcc, {k}, v{TMP + 1}")
        a(f"v_cndmask_b32 v{MK + k}, 0, v{TMP}, vcc")
    a(f"v_and_b32 v{M2}, 1, v{vI}")
    a(f"v_cvt_f32_u32 v{vph}, v{M2}")
    a(f"v_mul_f32 v{vph}, 0.5, v{vph}")
    a(f"v_lshrrev_b32 v{vk0}, 1, v{vI}")
    a(f"v_cvt_f32_u32 v{vk0}, v{vk0}")
    a(f"v_mul_f32 v{vk0}, {fx(1 / 32)}, v{vk0}")
    a(f"v_cvt_f32_u32 v{vgf}, v{vG}")

    def gen_a1(base, fq, ph):
        t = TMP
        a(f"v_fma_f32 v{t}, v{vgf}, v{fq}, {ph}")
        for j in range(1, 5):
            a(f"v_fmamk_f32 v{t + j}, v{fq}, {fx(4.0 * j)}, v{t}")
        for j in range(5):
            a(f"v_cos_f32 v{t + j}, v{t + j}")
        for j in range(5):
            a(f"v_mul_f32 v{t + j}, {fx(SCALE)}, v{t + j}")
        for j in range(5):
            a(f"v_cvt_pk_bf16_f32 v{t + j}, v{t + j}, v{t + j}")
        for j in range(5):
            for k in range(4):
                a(f"v_and_b32 v{base + 4 * j + k}, v{MK + k}, v{t + j}")

    def angles(kf, ph):
        t = TMP
        a(f"v_mul_f32 v{t + 8}, v{vgf}, v{kf}")
        a(f"v_fma_f32 v{t}, v{t + 8}, 2.0, v{ph}")
        for k in range(1, 8):
            c = 16 * (k >> 2) + 8 * ((k >> 1) & 1) + (k & 1)
            a(f"v_fmamk_f32 v{t + k}, v{kf}, {fx(float(c))}, v{t}")

    def addresses(kind):
        if kind == "w1":
            a(f"v_and_b32 v{vr}, 1, v{vG}")
            a(f"v_lshlrev_b32 v{vr}, 7, v{vr}")
            a(f"v_lshl_add_u32 v{vr}, v{vG}, 10, v{vr}")
            a(f"v_lshl_add_u32 v{vr}, v{vI}, 3, v{vr}")
            a(f"v_xor_b32 v{vr + 1}, 128, v{vr}")
        else:
            a(f"v_and_b32 v{vr}, 4, v{vI}")
            a(f"v_lshlrev_b32 v{vr}, 1, v{vr}")
            a(f"v_xor_b32 v{vr}, v{vr}, v{vI}")
            a(f"v_lshlrev_b32 v{vr + 1}, 2, v{vG}")
            a(f"v_xor_b32 v{vr}, v{vr}, v{vr + 1}")
            a(f"v_lshlrev_b32 v{vr}, 4, v{vr}")
            a(f"v_lshl_add_u32 v{vr}, v{vI}, 8, v{vr}")
            for k in (1, 2, 3):
                a(f"v_xor_b32 v{vr + k}, {16 * k}, v{vr}")
        if kind == "x":
            a(f"v_and_b32 v{vld}, 1, v{vI}")
            a(f"v_lshl_add_u32 v{vo}, v{vG}, 1, v{vld}")
            a(f"v_lshlrev_b32 v{vo}, 14, v{vo}")
            a(f"v_and_b32 v{vld}, 14, v{vI}")
            a(f"v_lshl_add_u32 v{vo}, v{vld}, 3, v{vo}")
            a(f"s_lshl_b32 s{sA}, s{sQ}, 18")
            a(f"s_lshl_b32 s{sB}, s{sT}, 7")
            a(f"s_mov_b32 vcc_lo, 0x55555555")
            a(f"s_mov_b32 vcc_hi, 0x55555555")
        elif kind == "w1" and PC.w1frag:
            a(f"v_lshlrev_b32 v{vo}, 4, v{vL}")
            a(f"s_lshl_b32 s{sA}, s{sQ}, 11")
            a(f"s_mul_i32 s{sB}, s{sFT}, 20480")
        elif kind == "w1":
            a(f"v_mul_u32_u24 v{vo}, {W1F_STR}, v{vG}")
            a(f"v_lshl_add_u32 v{vo}, v{vI}, 4, v{vo}")
            a(f"s_mul_i32 s{sA}, s{sQ}, {8 * W1F_STR}")
            a(f"s_lshl_b32 s{sB}, s{sFT}, 8")
        else:
            a(f"v_lshrrev_b32 v{vo}, 1, v{vG}")
            a(f"v_mul_u32_u24 v{vo}, {KB_STR}, v{vo}")
            a(f"v_lshrrev_b32 v{vld}, 2, v{vI}")
            a(f"v_lshl_add_u32 v{vo}, v{vld}, 7, v{vo}")
            a(f"v_and_b32 v{vld}, 3, v{vI}")
            a(f"v_lshl_add_u32 v{vo}, v{vld}, 4, v{vo}")
            a(f"v_and_b32 v{vld}, 1, v{vG}")
            a(f"v_lshl_add_u32 v{vo}, v{vld}, 6, v{vo}")
            a(f"s_lshl_b32 s{sA}, s{sQ}, 10")
            a(f"s_mul_i32 s{sB}, s{sT}, {2 * KB_STR}")
        a(f"s_add_u32 s{sA}, s{sA}, s{sB}")
        a(f"v_add_u32 v{vo}, s{sA}, v{vo}")

    def reads(kind):
        mark(a, 2)
        a("s_waitcnt vmcnt(0)")
        a("s_barrier")
        mark(a, 3)
        for beta in range(4):
            for j in range(5):
                if kind == "w1":
                    for eh in range(2):
                        a(f"ds_read_b64_tr_b16 {R(frag(beta, j) + 2 * eh, 2)}, v{vr + eh} offset:{4096 * j + 256 * beta}")
                else:
                    a(f"ds_read_b128 {R(frag(beta, j), 4)}, v{vr + beta} offset:{4096 * j}")

    def stage1(sc, n, extra=None):
        for beta in range(4):
            c = 4 * n + beta
            acc = ACC1 + 4 * (c % 4)
            for j in range(5):
                sc.mfma(acc, A1 + 20 * n + 4 * j, frag(beta, j), None if j == 0 else acc,
                        needs=[("y", c - 4)] if j == 0 and c >= 4 else [])
            rdy = sc.n + 5
            if extra:
                extra(beta, acc, rdy, ("y", c))
            for h in range(2):
                sc.add(f"v_cvt_pk_bf16_f32 v{Y + 2 * c + h}, v{acc + 2 * h}, v{acc + 2 * h + 1}", rdy, ("y", c))

    par = {"even": True}
    QP = "quad_perm:[1,0,3,2] row_mask:0xf bank_mask:0xf"

    def stage2(kind, sc, n, u, mat, acc, needs, fix=None):
        for tl in range(2):
            for kp in range(2):
                d = acc + 4 * tl
                m, y = mat + (tl * 2 + kp) * 4, Y + 8 * n + 4 * kp
                nd = list(needs) + [("y", 4 * n + 2 * kp), ("y", 4 * n + 2 * kp + 1)]
                if kind == "w2":
                    sc.mfma(d, y, m, None if kp == 0 else d, needs=nd)
                else:
                    sc.mfma(d, m, y, None if kp == 0 else d, needs=nd)
        rdy, key = sc.n + 3, ("o", n, u)
        if fix:
            fix(rdy, key)
        for k in range(4):
            sc.add(f"v_cvt_pk_bf16_f32 v{acc + k}, v{acc + 2 * k}, v{acc + 2 * k + 1}", rdy, key)
        if kind == "x":
            for ph in range(2):
                lo = par["even"]
                for k in range(2):
                    if lo:
                        sc.add(f"v_cndmask_b32_dpp v{acc + 4 + k}, v{acc + 2 + k}, v{acc + k}, vcc {QP}", rdy, key)
                    else:
                        sc.add(f"v_cndmask_b32_dpp v{acc + 6 + k}, v{acc + k}, v{acc + 2 + k}, vcc {QP}", rdy, key)
                if ph == 0:
                    sc.add("s_not_b64 vcc, vcc", rdy, key)
                    par["even"] = not lo

            def st():
                a(f"s_mov_b32 s{sOP}, {(16 * n + 8 * u) * XP_STR}")
                a(f"buffer_store_dwordx4 {V(acc + 4, 4)}, v{vo}, s[{SRD1}:{SRD1 + 3}], s{sOP} offen{PC.fl_x}")
            sc.add(st, rdy, key)
        elif kind == "w1":
            def st():
                a(f"s_mov_b32 s{sOP}, {(2 * n + u) * 1024 if PC.w1frag else (8 * n + 4 * u) * W1F_STR}")
                a(f"buffer_store_dwordx4 {V(acc, 4)}, v{vo}, s[{SRD1}:{SRD1 + 3}], s{sOP} offen{fl_w}")
            sc.add(st, rdy, key)
        else:
            sc.add(f"v_permlane16_swap_b32 v{acc}, v{acc + 2}", rdy, key)
            sc.add(f"v_permlane16_swap_b32 v{acc + 1}, v{acc + 3}", rdy, key)
            sc.add(f"buffer_store_dwordx4 {V(acc, 4)}, v{vo}, s[{SRD1}:{SRD1 + 3}], 0 offen offset:{1024 * n + 512 * u}{PC.fl_w2}",
                   rdy, key)

    def dispatch(pre):
        for kind in KINDS[1:]:
            a(f"s_cmp_eq_u32 s{sKD}, {kind[-1]}")
            a(f"s_cbranch_scc1 {pre}_{kind}")

    a(f"s_cmp_eq_u32 s{sW}, 3")
    a(f"s_cbranch_scc1 {name}_sp")

    a(f"s_mul_i32 s{sQ}, s{sW}, 3")
    a(f"s_add_u32 s{sQ}, s{sQ}, 1")
    a(f"v_mul_f32 v{vph}, 0.5, v{vph}")
    a(f"v_cvt_f32_u32 v{vq20}, s{sQ}")
    a(f"v_fmamk_f32 v{vk0}, v{vq20}, {fx(1 / 640)}, v{vk0}")
    a(f"v_mul_f32 v{vq20}, {fx(1 / 20)}, v{vq20}")
    a(f"v_mul_u32_u24 v{M2}, 0x8000, v{M2}")
    a(f"v_lshl_or_b32 v{M2}, v{M2}, 16, v{M2}")
    a(f"v_xor_b32 v{M2N}, {SIGN2:#x}, v{M2}")
    a(f"v_and_b32 v{M1}, 1, v{vG}")
    a(f"v_mul_u32_u24 v{M1}, 0x8000, v{M1}")
    a(f"v_lshl_or_b32 v{M1}, v{M1}, 16, v{M1}")
    for n in range(3):
        if n:
            a(f"v_add_f32 v{vk0}, {fx(1 / 640)}, v{vk0}")
            a(f"v_add_f32 v{vq20}, {fx(1 / 20)}, v{vq20}")
        gen_a1(A1 + 20 * n, vq20, f"v{vph}")
        angles(vk0, vph)
        for k in range(8):
            a(f"v_sin_f32 v{TMP + 8 + k}, v{TMP + k}")
            a(f"v_cos_f32 v{TMP + k}, v{TMP + k}")
        b = A2 + 16 * n
        for k in range(8):
            a(f"v_cvt_pk_bf16_f32 v{b + k}, v{TMP + k}, v{TMP + 8 + k}")
            if k & 1:
                a(f"v_cvt_pk_bf16_f32 v{b + 8 + k}, -v{TMP + 8 + k}, v{TMP + k}")
        for k in range(8):
            a(f"v_xor_b32 v{b + 8 + k}, v{M1}, v{b + (8 if k & 1 else 0) + k}")
    dispatch(f"{name}_t")
    for kind in KINDS:
        if kind != KINDS[0]:
            a.label(f"{name}_t_{kind}")
        par["even"] = True
        addresses(kind)
        reads(kind)
        sc = Sched(a)
        for n in range(3):
            stage1(sc, n)
            for k in range(16):
                sc.add(f"v_xor_b32 v{A1 + 20 * n + k}, v{M2N if k & 1 else M2}, v{A2 + 16 * n + k}", sc.n, ("d", n))
        mark(a, 4)
        bufs = [ACCX, ACC1, ACC1 + 8]
        hist = [[], [("y", 8), ("y", 9)], [("y", 10), ("y", 11)]]
        for k in range(6):
            n, u = divmod(k, 2)
            needs = hist[k] if k < 3 else [("o",) + divmod(k - 3, 2)]
            if u:
                needs = needs + [("d", n)]
            stage2(kind, sc, n, u, A1 + 20 * n if u else A2 + 16 * n, bufs[k % 3], needs)
        sc.flush()
        a(f"s_branch {name}_end")

    a.label(f"{name}_sp")
    a(f"s_mov_b32 s{sQ}, 0")
    gen_a1(A1, vph, "0")
    a(f"v_mul_f32 v{vph}, 0.5, v{vph}")
    kf, ph = vq20, M1
    for tau in range(4):
        if tau == 0:
            a(f"v_cmp_eq_u32 vcc, 0, v{vI}")
            a(f"v_mov_b32 v{kf}, 0.5")
            a(f"v_cndmask_b32 v{kf}, v{vk0}, v{kf}, vcc")
            a(f"v_cmp_gt_u32 vcc, 2, v{vI}")
            a(f"v_mov_b32 v{ph}, {fx(0.125)}")
            a(f"v_cndmask_b32 v{ph}, v{vph}, v{ph}, vcc")
        else:
            a(f"v_add_f32 v{kf}, {fx(tau / 4 + (10 / 640 if tau >= 2 else 0))}, v{vk0}")
            a(f"v_mul_f32 v{ph}, {'-1.0' if tau >= 2 else '1.0'}, v{vph}")
        angles(kf, ph)
        for k in range(8):
            a(f"v_cos_f32 v{TMP + k}, v{TMP + k}")
        for k in range(8):
            d = A2 + 8 * tau + k
            a(f"v_cvt_pk_bf16_f32 v{d}, v{TMP + k}, 0" if tau < 2 else f"v_cvt_pk_bf16_f32 v{d}, 0, v{TMP + k}")
    dispatch(f"{name}_s")
    X0 = A2 + 32
    vs, vz, vb, GR, SM, T = X0, X0 + 1, X0 + 2, X0 + 4, X0 + 8, X0 + 12
    TR = A1 + 20
    DIAG = (4, 6, 30, 70)
    for kind in KINDS:
        if kind != KINDS[0]:
            a.label(f"{name}_s_{kind}")
        par["even"] = True
        addresses(kind)
        if kind == "x":
            srd_ws(a, SRD2, "SS0", 2 * SS_SIZE)
            if PC.fused:
                srd_ws(a, SRD3, "SS2", SS2_SIZE + FLAG_SIZE)
            else:
                srd_ws(a, SRD3, "FLAG", FLAG_SIZE)
            a(f"s_lshr_b32 s{sA}, s{sT}, 4")
            a(f"s_lshl_b32 s{sA}, s{sA}, 10")
            a(f"s_and_b32 s{sB}, s{sT}, 7")
            a(f"s_lshl_b32 s{sB}, s{sB}, 7")
            a(f"s_add_u32 s{sA}, s{sA}, s{sB}")
            a(f"s_and_b32 s{sB}, s{sT}, 8")
            a(f"s_add_u32 s{sA}, s{sA}, s{sB}")
            a(f"v_lshrrev_b32 v{vs}, 1, v{vI}")
            a(f"v_lshlrev_b32 v{vs}, 4, v{vs}")
            a(f"v_lshl_add_u32 v{vs}, v{M2}, 2, v{vs}")
            a(f"v_lshl_add_u32 v{vs}, v{vG}, 20, v{vs}")
            a(f"v_add_u32 v{vs}, s{sA}, v{vs}")
            a(f"v_mov_b32 v{vz}, 0")
            a(f"s_lshl_b32 s{sA}, s{sT}, {10 if PC.fused else 8}")
            a(f"v_lshl_add_u32 v{vb}, v{vL}, {4 if PC.fused else 2}, s{sA}")
            if PC.fused:
                for k in range(4):
                    a(f"v_mov_b32 v{T + k}, 0")
            a(f"s_mov_b32 s{sOQ}, {WS['SS2'] - WS['SS0']}")
            for r in range(4):
                m = 0x1000010000100001 << r
                a(f"s_mov_b32 s{DIAG[r]}, {m & 0xffffffff:#x}")
                a(f"s_mov_b32 s{DIAG[r] + 1}, {m >> 32:#x}")
        if kind == "w1":
            srd(a, SRD2, P_B1, 0, FF * 2)
            a(f"s_lshl_b32 s{sA}, s{sFT}, 5")
            a(f"v_lshl_add_u32 v{vs}, v{vI}, 1, s{sA}")
            a(f"buffer_load_ushort v{vb}, v{vs}, s[{SRD2}:{SRD2 + 3}], 0 offen")
            a(f"s_mov_b64 s[{sM0}:{sM1}], 0xffff")
        w2t = kind == "w2" and PC.w2t_in
        if w2t:
            srd_ws(a, SRD2, "W2T", W2T_SIZE)
            a(f"v_bfe_u32 v{vz}, v{vI}, 1, 1")
            a(f"v_lshl_add_u32 v{vz}, v{vG}, 1, v{vz}")
            a(f"v_lshrrev_b32 v{vb}, 2, v{vI}")
            a(f"v_xor_b32 v{vz}, v{vz}, v{vb}")
            a(f"v_lshlrev_b32 v{vz}, 4, v{vz}")
            a(f"v_lshl_add_u32 v{vz}, v{vb}, 8, v{vz}")
            a(f"v_lshl_add_u32 v{vz}, v{M2}, 3, v{vz}")
            a(f"v_xor_b32 v{vb}, {1024 + 64}, v{vz}")
            a(f"s_mul_i32 s{sA}, s{sT}, {2 * KB_STR}")
            a(f"v_lshl_add_u32 v{vs}, v{vL}, 4, s{sA}")
        reads(kind)
        if kind == "x" and PC.fused:
            a(f"buffer_store_dwordx4 {V(T, 4)}, v{vb}, s[{SRD3}:{SRD3 + 3}], 0 offen")
        elif kind == "x":
            a(f"buffer_store_dword v{vz}, v{vs}, s[{SRD2}:{SRD2 + 3}], s{sOQ} offen")
            a(f"buffer_store_dword v{vz}, v{vb}, s[{SRD3}:{SRD3 + 3}], 0 offen")
        sc = Sched(a)

        def tr_read(n):
            h, x = divmod(n, 10)
            return [f"ds_read_b64_tr_b16 {V(TR + 4 * (n % 10) + 2 * eh, 2)}, v{vz + eh} "
                    f"offset:{(x >> 1) * 4096 + h * 2048 + 128 * ((x ^ h ^ eh) & 1)}" for eh in range(2)]

        def tr_store(n):
            def f():
                if n % 4 == 0:
                    a(f"s_mov_b32 s{sOQ}, {n * 1024}")
                a(f"buffer_store_dwordx4 {V(TR + 4 * (n % 10), 4)}, v{vs}, s[{SRD2}:{SRD2 + 3}], s{sOQ} offen offset:{(n % 4) * 1024}{PC.fl_w}")
            return f

        if w2t:
            for n in range(10):
                for op in tr_read(n):
                    a(op)

        def sums(beta, acc, rdy, key):
            sc.add(f"v_add_f32 v{SM + beta}, v{acc}, v{acc + 2}", rdy, key)

        stage1(sc, 0, sums if kind == "x" else None)
        if kind == "x":
            for k in range(10):
                sc.mfma(GR, DAT + 4 * k, DAT + 4 * k, None if k == 0 else GR)

        def fix(rdy, key):
            sc.add(f"v_lshlrev_b32 v{vb}, 16, v{vb}", rdy, key)
            sc.add(f"v_cndmask_b32_e64 v{ACCX + 1}, v{ACCX + 1}, v{vb}, s[{sM0}:{sM1}]", rdy, key)

        if w2t:
            sc.flush()
            for n in range(10):
                tr_store(n)()
                for op in tr_read(n + 10):
                    a(op)
        stage2(kind, sc, 0, 0, A2, ACCX, [], fix if kind == "w1" else None)
        stage2(kind, sc, 0, 1, A2 + 16, ACC1, [("y", 0), ("y", 1)])
        if w2t:
            for n in range(10, 20):
                tr_store(n)()
        if kind == "x":
            sc.add(f"v_add_f32 v{SM}, v{SM}, v{SM + 1}")
            sc.add(f"v_add_f32 v{SM + 2}, v{SM + 2}, v{SM + 3}")
            sc.add(f"v_add_f32 v{SM}, v{SM}, v{SM + 2}")
            for op in ("v_permlane32_swap_b32", "v_permlane16_swap_b32"):
                sc.add(f"v_mov_b32 v{SM + 1}, v{SM}")
                sc.add(f"{op} v{SM}, v{SM + 1}")
                sc.add(f"v_add_f32 v{SM}, v{SM}, v{SM + 1}")
            sc.add(f"v_mul_f32 v{SM}, v{SM}, v{SM}")
            for k in range(10, 20):
                sc.mfma(GR, DAT + 4 * k, DAT + 4 * k, GR)
        sc.flush()
        if kind == "x":
            for r in range(4):
                prev = "0" if r == 0 else f"v{T}"
                a(f"v_cndmask_b32_e64 v{T}, {prev}, v{GR + r}, s[{DIAG[r]}:{DIAG[r] + 1}]")
            for op in ("v_permlane32_swap_b32", "v_permlane16_swap_b32"):
                a(f"v_mov_b32 v{T + 1}, v{T}")
                a(f"{op} v{T}, v{T + 1}")
                a(f"v_add_f32 v{T}, v{T}, v{T + 1}")
            a(f"v_fmamk_f32 v{T}, v{SM}, {fx(-1.0 / (model2.SC * model2.SC * DM))}, v{T}")
            a(f"v_max_f32 v{T}, 0, v{T}")
            a(f"buffer_store_dword v{T}, v{vs}, s[{SRD2}:{SRD2 + 3}], 0 offen")
        if kind != KINDS[-1]:
            a(f"s_branch {name}_end")
    a.label(f"{name}_end")
    a.label(f"{name}_last")
    return lds
```

```python
from gen import *
import gen
import p0
import fe
from p0 import Sched, fx
from asmlib import TRANS

GELU_K0 = -2.0 * 0.7978845608028654 * 1.4426950408889634
EPS = 1e-5
SPIN_MAX = 1 << 14
NCOL = 160
LDS_X = 140 * 1024
LDS_RED = 100 * 1024
HINT = (4096, 4096 + 32768)

SRDQ, SRDF, SRDW, SRDP = 8, 12, SRD4, SRD5
sFT, sSG, sDC, sRP = 16, 17, 18, 19
sRB, sMM, sFL, sCNT, sHS, sHO = 96, 97, 98, 99, 100, 101
sMSK = 26
vW, vo, vp = 10, 11, 15
aST, aDUM, aPO = 256 + 250, 256 + 251, 256 + 252
LEVELS = ((0, 3, 9, 10), (1, 4, 8, 11), (2, 5, 7, 12), (6, 13))
ORDER = [s for lv in LEVELS for s in lv]


class FZ:
    rounds = (4, 2, 1)
    look = 16
    rate_a = 2
    rate_b = 0.5
    rate_g = 3
    rate_e = 1.5
    pre_p = (10, 10)
    burst = ((12, 0), (6, 8))
    period = (90, 90)
    stop = ("x2", "x2")
    hint_at = ("x1", "x1")
    q_at = (("h", 6), ("h", 6))
    rd_at = (("b", 2), ("b", 12))
    r2_at = (("g", 6), ("g", 11))
    pre_g2 = 24
    g2_rate = 1.1
    lead = 24
    x3 = (("g", 2), ("g", 6), ("g", 9))
    res_at = ("g", 9)
    ebar = 4
    tcost = 16
    marks = None
    clk = 0
    mx = ""
    mq = ""
    mc = " sc1"
    code_pf = 1
    w2t_at = 42


class Marks:
    def __init__(self):
        self.names, self.pend = [], []

    def __call__(self, a, name):
        if not Cfg.stamp or FZ.marks is not None and name not in FZ.marks:
            return
        k = len(self.pend)
        assert k < 12, name
        self.pend.append(len(self.names))
        self.names.append(name)
        a(f"{'s_memtime' if FZ.clk else 's_memrealtime'} s[{sST + 2 * k}:{sST + 2 * k + 1}]")

    def stash(self, a, tmp):
        if not self.pend:
            return
        a("s_waitcnt lgkmcnt(0)")
        a(f"v_accvgpr_read_b32 v{tmp}, {R(aST)}")
        for k, lane in enumerate(self.pend):
            a(f"v_writelane_b32 v{tmp}, s{sST + 2 * k}, {lane}")
        a(f"v_writelane_b32 v{tmp}, s{sCNT}, {len(self.names)}")
        self.names.append("#" + self.names[self.pend[-1]])
        assert len(self.names) < 63
        a(f"v_accvgpr_write_b32 {R(aST)}, v{tmp}")
        self.pend = []


mk = Marks()


def preg(u, p):
    return 256 + {10: 0, 11: 20}.get(u, 48 + 20 * (u % 12)) + 4 * p


def decode(a):
    a(f"s_and_b32 s{sA}, s{sT}, 7")
    a(f"s_lshr_b32 s{sB}, s{sA}, 1")
    a(f"s_lshl_b32 s{sB}, s{sB}, 2")
    a(f"s_bfe_u32 s{sRB}, s{sT}, 0x20003")
    a(f"s_add_u32 s{sRB}, s{sRB}, s{sB}")
    a(f"s_and_b32 s{sA}, s{sA}, 1")
    a(f"s_lshl_b32 s{sA}, s{sA}, 3")
    a(f"s_lshr_b32 s{sMM}, s{sT}, 5")
    a(f"s_add_u32 s{sMM}, s{sMM}, s{sA}")
    a(f"s_lshl_b32 s{sFL}, s{sRB}, 7")
    a(f"s_mov_b32 s{sCNT}, 0")
    for k in range(4):
        a(f"v_accvgpr_write_b32 {R(aPO + k)}, -1")
    if Cfg.stamp:
        a(f"v_accvgpr_write_b32 {R(aST)}, 0")


def pre_setup(a, ph, t0):
    a(f"s_lshl_b32 s{sE}, s{sW}, 10")
    a(f"s_and_b32 s{sA}, s{sMM}, 3")
    a(f"s_cmp_eq_u32 s{sA}, 0")
    a(f"s_cselect_b32 s{sMSK}, 0x40000000, 0")
    a(f"s_cmp_eq_u32 s{sA}, 2")
    a(f"s_cselect_b32 s{sHO}, 6, 0")
    a(f"s_cselect_b32 s{sHS}, -1, 1")
    a(f"s_lshl_b32 s{sSG}, s{sHS}, 8")
    a(f"s_lshl_b32 s{sFT}, s{sHO}, 8")
    if ph:
        a(f"s_mul_i32 s{sB}, s{sSG}, 5")
        a(f"s_add_u32 s{sFT}, s{sFT}, s{sB}")
    a(f"s_mul_i32 s{sHO}, s{sHO}, {2 * H_STR}")
    a(f"s_mul_i32 s{sHS}, s{sHS}, {2 * H_STR}")
    a(f"s_lshr_b32 s{sB}, s{sMM}, 3")
    a(f"s_lshl2_add_u32 s{sDC}, s{sB}, s{sA}")
    a(f"s_mul_i32 s{sD}, s{sMM}, 27")
    a(f"s_lshr_b32 s{sD}, s{sD}, 2")
    a(f"v_mul_u32_u24 v{vW}, {FF}, v{vG}")
    a(f"v_add_lshl_u32 v{vW}, v{vW}, v{vI}, 4")
    a(f"s_mul_i32 s{sA}, s{sW}, {4 * W1F_STR}")
    a(f"s_lshl_b32 s{sB}, s{sD}, 8")
    a(f"s_add_u32 s{sA}, s{sA}, s{sB}")
    a(f"v_add_u32 v{vW}, s{sA}, v{vW}")
    a(f"v_lshrrev_b32 v{vo}, 1, v{vG}")
    a(f"v_mul_u32_u24 v{vo}, {H_STR}, v{vo}")
    a(f"v_lshl_add_u32 v{vo}, v{vI}, 5, v{vo}")
    a(f"v_and_b32 v{t0}, 1, v{vG}")
    a(f"v_lshl_add_u32 v{vo}, v{t0}, 4, v{vo}")
    a(f"s_mul_i32 s{sA}, s{sD}, {2 * H_STR}")
    a(f"s_lshl_b32 s{sB}, s{sRB}, 11")
    a(f"s_add_u32 s{sA}, s{sA}, s{sB}")
    a(f"s_lshl_b32 s{sB}, s{sW}, 9")
    a(f"s_add_u32 s{sA}, s{sA}, s{sB}")
    a(f"v_add_u32 v{vo}, s{sA}, v{vo}")
    a(f"v_add_u32 v{t0}, s{sMSK}, v{vo}")
    a(f"v_mul_u32_u24 v{vp}, {DM}, v{vG}")
    a(f"v_add_lshl_u32 v{vp}, v{vp}, v{vI}, 4")
    a(f"s_mul_i32 s{sA}, s{sDC}, 1280")
    a(f"s_mul_i32 s{sB}, s{sW}, {54 * KB_STR}")
    a(f"s_add_u32 s{sA}, s{sA}, s{sB}")
    a(f"v_add_u32 v{vp}, s{sA}, v{vp}")


def pre_srds(a, ph):
    srd_ws(a, SRDW, "W1F", W1F_SIZE)
    srd_ws(a, SRDP, "W2T" if ph else "WA2", 0)
    a(f"s_add_u32 s{sOP}, s{sW}, 1")
    a(f"s_mul_i32 s{SRDP + 2}, s{sOP}, {54 * KB_STR}")
    if not ph:
        a(f"s_cmp_eq_u32 s{sW}, 3")
        a(f"s_cselect_b32 s{SRDP + 2}, {218 * KB_STR}, s{SRDP + 2}")
        srd_ws(a, SRDF, "FLAG", FLAG_SIZE)
    srd_ws(a, SRDQ, "H2" if ph else "H", H_SIZE)


def pre_ops(ph, t0):
    ops = []
    for k in range(7):
        g = [f"s_mul_i32 s{sOQ}, s{sHS}, {k}", f"s_add_u32 s{sOQ}, s{sOQ}, s{sHO}"]
        g.append(f"buffer_store_dwordx4 {R(aPO, 4)}, v{t0 if k == 6 else vo}, s[{SRDQ}:{SRDQ + 3}], s{sOQ} offen sc1")
        ops.append(g)
    po, ops = ops, []
    for ft in range(5 if ph else 0, 7):
        for c in range(5):
            g = [f"s_add_u32 m0, s{sE}, {(ft * 20 + 4 * c) * 1024}",
                 f"s_add_u32 s{sOP}, s{sFT}, {c * 16 * W1F_STR}",
                 f"buffer_load_dwordx4 v{vW}, s[{SRDW}:{SRDW + 3}], s{sOP} offen lds"]
            if c == 4:
                g.append(f"s_add_u32 s{sFT}, s{sFT}, s{sSG}")
            ops.append(g)
    for u in range(FZ.pre_p[ph]):
        for p in range(5):
            ops.append([f"s_mov_b32 s{sOP}, {ORDER[u] * 4 * KB_STR}",
                        f"buffer_load_dwordx4 {R(preg(u, p), 4)}, v{vp}, s[{SRDP}:{SRDP + 3}], s{sOP} offen offset:{p * 256}"])
    out = []
    for k, op in enumerate(ops):
        out.append(op)
        if k % 4 == 3 and po:
            out.append(po.pop(0))
    return out + po


class Paced:
    def __init__(self, a, ops, period):
        self.a, self.ops, self.period = a, ops, period
        self.on = False
        self.t = 0

    def burst(self, n):
        for _ in range(min(n, len(self.ops))):
            for x in self.ops.pop(0):
                self.a(x)

    def __call__(self, text, tag=None):
        self.a(text, tag)
        if self.on:
            op = text.split()[0]
            self.t += 16 if op.startswith("v_mfma") or op in TRANS else 4
            if self.t >= self.period:
                self.t -= self.period
                self.burst(1)

    def __getattr__(self, n):
        return getattr(self.a, n)


def x_setup(a, ph):
    vx, vx2 = 4, 8
    a(f"s_lshl_b32 s{sC}, s{sRB}, 10")
    a(f"s_lshl_b32 s{sA}, s{sW}, 8")
    a(f"s_add_u32 s{sC}, s{sC}, s{sA}")
    a(f"v_lshlrev_b32 v{vx}, 15, v{vG}")
    a(f"v_lshl_add_u32 v{vx}, v{vI}, 4, v{vx}")
    a(f"v_add_u32 v{vx}, s{sC}, v{vx}")
    a(f"v_add_u32 v{vx2}, {XP_STR}, v{vx}")
    srd_ws(a, SRD1, "XP3" if ph else "XP1", XP_SIZE)


def budget(a, out):
    a(f"s_add_u32 s{sCNT}, s{sCNT}, 1")
    a(f"s_cmp_ge_u32 s{sCNT}, {SPIN_MAX}")
    a(f"s_cbranch_scc1 {out}")


def col_phase(a0, ph):
    src, dst = ("XP2", "XP3") if ph else ("XP0", "XP1")
    vx, vw, vl0, vt0, vh = 4, 5, 6, 12, 13
    raw, ss, wraw = 16, 32, 40
    M1, M2 = 56, 88
    T1, T2 = 120, 136
    ACC, FO, TMP, WU0 = 152, 184, 200, 232
    vmI, fi, fg, fa, fb = 176, 177, 178, 179, 180
    SL = ACC
    FGR = [TMP + 4 * k for k in range(8)] + [ss, ss + 4, 248, 252]
    WU = (WU0, T1)
    a = Paced(a0, pre_ops(ph, vt0), FZ.period[ph])
    nm = f"c{ph + 1}"

    def point(name):
        mk(a0, nm + name)
        if name == FZ.hint_at[ph]:
            a0(f"buffer_store_dword {R(aPO)}, v{vh}, s[{SRDF}:{SRDF + 3}], 0 offen sc1")
        if name == FZ.stop[ph]:
            a.on = False

    a(f"s_mul_i32 s{sB}, s{sW}, 3072")
    a(f"v_lshlrev_b32 v{vl0}, 4, v0")
    a(f"v_add_u32 v{vx}, s{sB}, v{vl0}")
    if not ph:
        a(f"s_lshl_b32 s{sB}, s{sW}, 10")
        a(f"v_add_u32 v{vw}, s{sB}, v{vl0}")
    a(f"s_lshl_b32 s{sF}, s{sT}, 14")
    a(f"v_add_u32 v{vl0}, {LDS_X}, v{vl0}")

    def data_loads(e):
        fl = " sc1" if ph else ""
        if ph:
            for k in range(4):
                e(f"buffer_load_dwordx4 {V(raw + 4 * k, 4)}, v{vx}, s[{SRD0}:{SRD0 + 3}], s{sF} offen offset:{k * 1024}{fl}")
            for k in range(4):
                e(f"buffer_load_dwordx3 {V(SL + 4 * k, 3)}, v{vx}, s[{SRD1}:{SRD1 + 3}], 0 offen offset:{k * 1024}{fl}")
        else:
            for t in range(2):
                e(f"buffer_load_dwordx4 {V(ss + 4 * t, 4)}, v{vw}, s[{SRD1}:{SRD1 + 3}], 0 offen offset:{t * 1024}")
            for k in range(4):
                e(f"buffer_load_dwordx4 {V(raw + 4 * k, 4)}, v{vx}, s[{SRD0}:{SRD0 + 3}], s{sF} offen offset:{k * 1024}")

    def early_loads():
        if not ph:
            a("s_waitcnt lgkmcnt(0)")
        srd_ws(a, SRD0, src, XP_SIZE)
        srd_ws(a, SRD1, "SS2" if ph else "SS0", SS2_SIZE if ph else SS_SIZE)
        if not ph:
            data_loads(a)
        srd_ws(a, SRD2, "WC", WC_SIZE)
        for k in range(4):
            a(f"buffer_load_dwordx4 {V(wraw + 4 * k, 4)}, v{vx}, s[{SRD2}:{SRD2 + 3}], s{sF} offen offset:{k * 1024}")
        srd_ws(a, SRD3, dst, XP_SIZE)
        point("ld")
        pre_setup(a, ph, vt0)
        pre_srds(a, ph)
        a(f"s_lshl_b32 s{sA}, s{sT}, 7")
        a(f"s_add_u32 s{sA}, s{sA}, {HINT[ph]}")
        a(f"v_lshl_add_u32 v{vh}, v0, 20, s{sA}")
        if ph:
            a("s_barrier")
        a.burst(FZ.burst[ph][0])
        a.on = not ph

    def pos(base, k, c):
        return base + (k >> 1) * 4 + (k & 1) * 2 + c

    if ph:
        early_loads()
    for kk in (1, 2, 3):
        a(f"v_xor_b32 v{vl0 + kk}, {kk * 1024}, v{vl0}")
    a(f"v_and_b32 v{vmI}, 1, v{vI}")
    a(f"v_mul_u32_u24 v{vmI}, 0x8000, v{vmI}")
    a(f"v_lshl_or_b32 v{vmI}, v{vmI}, 16, v{vmI}")
    a(f"v_cvt_f32_u32 v{fi}, v{vI}")
    a(f"v_lshlrev_b32 v{fg}, 2, v{vG}")
    a(f"v_cvt_f32_u32 v{fg}, v{fg}")

    def m1(qb, t, var):
        return M1 + ((qb * 2 + t) * 2 + var) * 4

    def m2(kk, var):
        return M2 + (kk * 2 + var) * 4

    a(f"v_mul_f32 v{fa}, {fx(1 / 32)}, v{fi}")
    a(f"v_mul_f32 v{TMP}, v{fg}, v{fa}")
    for jj in range(1, 4):
        a(f"v_fmamk_f32 v{TMP + 3 * jj}, v{fa}, {fx(float(jj))}, v{TMP}")
    for jj in range(4):
        t = TMP + 3 * jj
        a(f"v_cos_f32 v{t + 1}, v{t}")
        a(f"v_sin_f32 v{t + 2}, v{t}")
    for jj in range(4):
        t = TMP + 3 * jj
        n = "-" if jj & 1 else ""
        m = "" if jj & 1 else "-"
        a(f"v_cvt_pk_bf16_f32 v{m1(0, 0, 0) + jj}, v{t + 1}, v{t + 2}")
        a(f"v_cvt_pk_bf16_f32 v{m1(0, 0, 1) + jj}, -v{t + 2}, v{t + 1}")
        a(f"v_cvt_pk_bf16_f32 v{m1(1, 0, 0) + jj}, {n}v{t + 1}, {n}v{t + 2}")
        a(f"v_cvt_pk_bf16_f32 v{m1(1, 0, 1) + jj}, {m}v{t + 2}, {n}v{t + 1}")
    for qb in range(2):
        for var in range(2):
            for jj in range(4):
                a(f"v_xor_b32 v{m1(qb, 1, var) + jj}, v{vmI}, v{m1(qb, 0, var) + jj}")

    a(f"s_lshl_b32 s{sK0}, s{sW}, 4")
    a(f"v_cvt_f32_u32 v{fb}, s{sK0}")
    a(f"v_add_f32 v{TMP + 24}, v{fb}, v{fg}")
    a(f"v_add_f32 v{fb}, v{fb}, v{fi}")
    a(f"v_mul_f32 v{TMP + 25}, {fx(1 / 2048)}, v{fi}")
    a(f"v_add_f32 v{TMP + 26}, {fx(16 / 2048)}, v{TMP + 25}")
    for r in range(4):
        a(f"v_add_f32 v{TMP + r}, {fx(float(r))}, v{TMP + 24}")
    for qb in range(2):
        for r in range(4):
            t = TMP + 4 + (qb * 4 + r)
            a(f"v_mul_f32 v{t}, v{TMP + r}, v{TMP + 25 + qb}")
            a(f"v_cos_f32 v{T1 + qb * 8 + r}, v{t}")
            a(f"v_sin_f32 v{T1 + qb * 8 + 4 + r}, v{t}")
    if not ph:
        early_loads()

    a(f"v_mul_f32 v{fa}, {fx(1 / 64)}, v{fb}")
    a(f"s_xor_b32 s{sK0}, s{sK0}, 16")
    a(f"v_cvt_f32_u32 v{TMP + 24}, s{sK0}")
    a(f"v_add_f32 v{TMP + 24}, v{TMP + 24}, v{fg}")
    for kk in range(2):
        for r in range(4):
            t = TMP + 12 + 3 * r
            if kk == 0:
                a(f"v_mul_f32 v{t}, v{TMP + r}, v{fa}")
            else:
                a(f"v_add_f32 v{t}, {fx(float(r))}, v{TMP + 24}")
                a(f"v_mul_f32 v{t}, v{t}, v{fa}")
            a(f"v_cos_f32 v{t + 1}, v{t}")
            a(f"v_sin_f32 v{t + 2}, v{t}")
        for r in range(4):
            t = TMP + 12 + 3 * r
            a(f"v_cvt_pk_bf16_f32 v{m2(kk, 0) + r}, v{t + 1}, v{t + 2}")
            a(f"v_cvt_pk_bf16_f32 v{m2(kk, 1) + r}, -v{t + 2}, v{t + 1}")
    for kk in range(2):
        for var in range(2):
            for r in range(4):
                a(f"v_xor_b32 v{m2(kk + 2, var) + r}, v{vmI}, v{m2(kk, var) + r}")

    if ph:
        point("cs")
        a.wait_tag("out")
        point("dr")
        data_loads(a)
        nb = min(FZ.burst[ph][1], len(a.ops))
        a.burst(nb)
        mk.stash(a0, TMP)

    a(f"v_mul_f32 v{fa}, {fx(1 / 2048)}, v{fb}")
    a(f"v_mul_f32 v{TMP}, v{fg}, v{fa}")
    for k in range(1, 8):
        a(f"v_fmamk_f32 v{TMP + k}, v{fa}, {fx(float(16 * (k >> 2) + (k & 3)))}, v{TMP}")
    for k in range(8):
        u, r = divmod(k, 4)
        a(f"v_cos_f32 v{T2 + u * 8 + r}, v{TMP + k}")
        a(f"v_sin_f32 v{T2 + u * 8 + 4 + r}, v{TMP + k}")

    a0(f"s_mov_b32 s{sK1}, 0xffff0000")
    a0(f"s_cmp_eq_u32 s{sT}, 0")
    a0(f"s_cselect_b32 s{sK2}, 0, s{sK1}")
    a0(f"s_mov_b32 s{sK0}, {fx(-1 / 2048)}")
    a0(f"s_cselect_b32 s{sK3}, 0, s{sK0}")
    a(f"s_mov_b32 s{sA}, {fx(1 / DM)}")
    a(f"s_mov_b32 s{sB}, {fx(1 / 2048)}")
    a(f"v_mov_b32 v{fa}, {fx(1e-5)}")
    point("k")
    if ph:
        def test(e):
            e(f"v_max3_u32 v{fi}, v{raw}, v{raw + 2}, v{raw + 4}")
            e(f"v_max3_u32 v{fi}, v{fi}, v{raw + 6}, v{raw + 8}")
            e(f"v_max3_u32 v{fi}, v{fi}, v{raw + 10}, v{raw + 12}")
            e(f"v_cmp_u_f32 vcc, v{fi}, v{raw + 14}")
            e(f"v_min3_f32 v{fg}, v{SL + 2}, v{SL + 6}, v{SL + 10}")
            e(f"v_min_f32 v{fg}, v{fg}, v{SL + 14}")
            e(f"v_cndmask_b32 v{fg}, v{fg}, 0, vcc")
            e(f"v_cmp_gt_f32 vcc, {fx(7.5)}, v{fg}")

        test(a0)
        a0(f"s_cbranch_vccnz {nm}_again")
        a0.label(f"{nm}_ok", keep=True)

        def again():
            a0.label(f"{nm}_again")
            budget(a0, f"{nm}_ok")
            data_loads(a0)
            a0("s_waitcnt vmcnt(0)")
            test(a0)
            a0(f"s_cbranch_vccnz {nm}_again")
            a0(f"s_branch {nm}_ok")
        a0.tail.append(again)
        a.on = True
        for k in range(8):
            a(f"v_fma_f32 v{ss + k}, v{SL + 4 * (k >> 1) + (k & 1)}, s{sA}, v{fa}")
    else:
        for k in range(8):
            a(f"v_fma_f32 v{ss + k}, v{ss + k}, s{sA}, v{fa}")
    for k in range(8):
        a(f"v_rsq_f32 v{ss + k}, v{ss + k}")

    def acc(c, b, var):
        return ACC + c * 16 + (b * 2 + var) * 4

    def fo(c, b):
        return FO + c * 8 + b * 4

    def unpack(dst_, base, c, mask):
        ops = []
        for k in range(8):
            ops.append(f"v_lshlrev_b32 v{dst_ + 2 * k}, 16, v{pos(base, k, c)}")
            ops.append(f"v_and_b32 v{dst_ + 2 * k + 1}, s{mask}, v{pos(base, k, c)}")
        return ops

    def unpack_w(c):
        ops = []
        for k in range(8):
            u, r = divmod(k, 4)
            ops.append(f"v_lshlrev_b32 v{WU[c] + u * 8 + r}, 16, v{pos(wraw, k, c)}")
            ops.append(f"v_and_b32 v{WU[c] + u * 8 + 4 + r}, s{sK1}, v{pos(wraw, k, c)}")
        return ops

    def scale(c):
        t = TMP + 16 * c
        for k in range(8):
            h = k & 1
            a(f"v_pk_mul_f32 {V(t + 2 * k, 2)}, {V(t + 2 * k, 2)}, {V(ss + k - h, 2)} op_sel:[0,{h}] op_sel_hi:[1,{h}]")
        for k in range(8):
            a(f"v_cvt_pk_bf16_f32 v{fo(c, 0) + k}, v{t + 2 * k}, v{t + 2 * k + 1}")

    sc = Sched(a)

    def stage_a(c):
        for t in range(2):
            for qb in range(2):
                for var in range(2):
                    sc.mfma(acc(c, qb, var), fo(c, t), m1(qb, t, var), None if t == 0 else acc(c, qb, var))
        sc.flush()

    for op in unpack(TMP, raw, 0, sK2):
        a(op)
    scale(0)
    point("s0")
    for op in unpack(TMP + 16, raw, 1, sK1):
        sc.add(op)
    stage_a(0)
    scale(1)
    for op in unpack_w(0):
        sc.add(op)
    stage_a(1)
    point("a")

    def mm(c, b, var, f, kk, data_is_a):
        cc = None if kk == 0 else acc(c, b, var)
        if data_is_a:
            sc.mfma(acc(c, b, var), f, m2(kk, var), cc)
        else:
            sc.mfma(acc(c, b, var), m2(kk, var), f, cc)

    def exchange(n, data_is_a, cm, fill_own, fill_rest):
        for c in range(2):
            for b in range(2):
                cm(c, b)
                if n == 2 and c == b == 0:
                    a("s_barrier")
                a(f"ds_write_b128 v{vl0}, {V(fo(c, b), 4)} offset:{(c * 2 + b) * 4096}")
        a("s_waitcnt lgkmcnt(0)")
        a("s_barrier")
        point(f"b{n}")
        for c in range(2):
            for kk in (1, 2, 3):
                for b in range(2):
                    f = FGR[(c * 3 + kk - 1) * 2 + b]
                    a(f"ds_read_b128 {R(f, 4)}, v{vl0 + kk} offset:{(c * 2 + b) * 4096}")
        for op in fill_own:
            sc.add(op)
        for c in range(2):
            for b in range(2):
                for var in range(2):
                    mm(c, b, var, fo(c, b), 0, data_is_a)
        for op in fill_rest:
            sc.add(op)
        for c in range(2):
            for kk in (1, 2, 3):
                for b in range(2):
                    for var in range(2):
                        mm(c, b, var, FGR[(c * 3 + kk - 1) * 2 + b], kk, data_is_a)
        sc.flush()
        point(f"x{n}")

    def cm1(c, b):
        cmul_pack(a, fo(c, b), acc(c, b, 0), acc(c, b, 1), T1 + b * 8, T1 + b * 8 + 4, TMP + 8 * (2 * c + b))

    def cm2(c, b):
        cmul_pack(a, fo(c, b), acc(c, b, 0), acc(c, b, 1), WU[c] + b * 8, WU[c] + b * 8 + 4, TMP + 8 * (2 * c + b),
                  conj_w=True)

    exchange(1, False, cm1, unpack_w(1), [])
    exchange(2, True, cm2, unpack(WU[0], raw, 0, sK1), unpack(WU[1], raw, 1, sK1))
    for c in range(2):
        for u in range(2):
            cmul_pack(a, fo(c, u), acc(c, u, 0), acc(c, u, 1), T2 + u * 8, T2 + u * 8 + 4, TMP + 8 * (2 * c + u))
    for t in range(2):
        for c in range(2):
            for u in range(2):
                for var in range(2):
                    sc.mfma(acc(c, t, var), m1(t, u, var), fo(c, u), None if u == 0 else acc(c, t, var))
        rdy = sc.n + 2
        for rh in range(2):
            for c in range(2):
                for rl in range(2):
                    k = 4 * t + 2 * rh + rl
                    w = WU[c] + 2 * k
                    sc.add(f"v_fma_f32 v{w}, v{acc(c, t, 0) + 2 * rh + rl}, s{sB}, v{w}", rdy)
                    sc.add(f"v_fma_f32 v{w + 1}, v{acc(c, t, 1) + 2 * rh + rl}, s{sK0 if c else sK3}, v{w + 1}", rdy)
            for c in range(2):
                for rl in range(2):
                    k = 4 * t + 2 * rh + rl
                    w = WU[c] + 2 * k
                    sc.add(f"v_cvt_pk_bf16_f32 v{pos(raw, k, c)}, v{w}, v{w + 1}", rdy)
            k = 2 * t + rh
            sc.add(lambda k=k: a(f"buffer_store_dwordx4 {V(raw + 4 * k, 4)}, v{vx}, s[{SRD3}:{SRD3 + 3}], s{sF} "
                                 f"offen offset:{k * 1024} sc1", "col"), rdy)
    sc.flush()
    a.on = False
    point("st")
    print(f"{nm}: {len(a.ops)} requests after the stores", file=sys.stderr)
    a.burst(len(a.ops))
    x_setup(a0, ph)
    mk.stash(a0, TMP)
    a0.wait_tag("col")


def idle_phase(a, ph):
    nm = f"n{ph + 1}"
    vt0, vh = 12, 13
    if not ph:
        a("s_waitcnt lgkmcnt(0)")
    pre_setup(a, ph, vt0)
    if ph:
        a("s_barrier")
    pre_srds(a, ph)
    ops = pre_ops(ph, vt0)
    if not ph:
        va, vd, vt, ld, st = 16, 18, 20, 24, 56
        a(f"s_sub_u32 s{sA}, s{sT}, {NCOL}")
        a(f"s_lshl_b32 s{sA}, s{sA}, 8")
        for n in range(2):
            a(f"v_add_u32 v{vd + n}, s{sA}, v0")
            if n:
                a(f"v_add_u32 v{vd + n}, {256 * (256 - NCOL)}, v{vd + n}")
            a(f"v_lshrrev_b32 v{vt}, 5, v{vd + n}")
            a(f"v_mul_u32_u24 v{vt}, 52429, v{vt}")
            a(f"v_lshrrev_b32 v{vt}, 18, v{vt}")
            a(f"v_mul_u32_u24 v{va + n}, {10240 - 1280}, v{vt}")
            a(f"v_lshl_add_u32 v{va + n}, v{vd + n}, 3, v{va + n}")
            a(f"v_lshlrev_b32 v{vd + n}, 6, v{vd + n}")
        a(f"s_mov_b32 s{sK0}, 0x05040100")
        a(f"s_mov_b32 s{sK1}, 0x07060302")
        a(f"s_mov_b32 s{sK2}, {4 * 1280}")
        srd(a, SRD0, P_W2, 0, FF * DM * 2)
        srd_ws(a, SRD2, "W2T", W2T_SIZE)
        for n in range(2):
            for j in range(8):
                so = f"s{sK2}" if j >= 4 else "0"
                a(f"buffer_load_dwordx2 {V(ld + 16 * n + 2 * j, 2)}, v{va + n}, s[{SRD0}:{SRD0 + 3}], {so} offen offset:{(j & 3) * 1280}")
        if FZ.code_pf:
            a(f"s_getpc_b64 s[{SRD1}:{SRD1 + 1}]")
            a(f"s_add_u32 s{SRD1}, s{SRD1}, mk_kernel_code@rel32@lo+4")
            a(f"s_addc_u32 s{SRD1 + 1}, s{SRD1 + 1}, mk_kernel_code@rel32@hi+12")
            a(f"s_and_b32 s{SRD1 + 1}, s{SRD1 + 1}, 0xffff")
            a(f"s_mov_b32 s{SRD1 + 2}, mk_kernel_cend-mk_kernel_code")
            a(f"s_mov_b32 s{SRD1 + 3}, 0x20000")
            a(f"s_sub_u32 s{sA}, s{sT}, {NCOL}")
            a(f"s_lshr_b32 s{sA}, s{sA}, 3")
            a(f"s_lshl_b32 s{sA}, s{sA}, 14")
            a(f"v_lshl_add_u32 v{vt}, v0, 6, s{sA}")
            a(f"buffer_load_dword {R(aDUM)}, v{vt}, s[{SRD1}:{SRD1 + 3}], 0 offen")
        for g in ops[:FZ.w2t_at]:
            for x in g:
                a(x)
        ops = ops[FZ.w2t_at:]
        a(f"v_lshlrev_b32 v{vt}, 6, v0")
        a(f"v_add_u32 v{vt}, {LDS_X}, v{vt}")
        a(f"v_mul_u32_u24 v{vt + 1}, 48, v{vL}")
        for n in range(2):
            a(f"v_sub_u32 v{vd + n}, v{vd + n}, v{vt + 1}")
        a(f"v_sub_u32 v{vt + 1}, v{vt}, v{vt + 1}")
        for n in range(2):
            l, o = ld + 16 * n, st + 16 * n
            for e in range(4):
                for m in range(4):
                    a(f"v_perm_b32 v{o + e * 4 + m}, v{l + (2 * m + 1) * 2 + (e >> 1)}, v{l + 2 * m * 2 + (e >> 1)}, s{sK1 if e & 1 else sK0}")
                a(f"ds_write_b128 v{vt}, {V(o + e * 4, 4)} offset:{e * 16}")
            for e in range(4):
                a(f"ds_read_b128 {V(l + e * 4, 4)}, v{vt + 1} offset:{e * 1024}")
            for e in range(4):
                a(f"buffer_store_dwordx4 {V(l + e * 4, 4)}, v{vd + n}, s[{SRD2}:{SRD2 + 3}], 0 offen offset:{e * 1024} sc1")
    for g in ops:
        for x in g:
            a(x)
    mk(a, nm + "is")
    x_setup(a, ph)
    a(f"v_mul_u32_u24 v{vh}, 5, v{vL}")
    a(f"v_lshrrev_b32 v{vh}, 1, v{vh}")
    a(f"v_lshlrev_b32 v{vh}, 7, v{vh}")
    a(f"s_mov_b32 s{sOP}, {HINT[ph]}")
    a("s_waitcnt vmcnt(0)")
    mk(a, nm + "dn")
    mk.stash(a, 16)
    a(f"s_cmp_lg_u32 s{sW}, 0")
    a(f"s_cbranch_scc1 {nm}_ok")
    a.label(f"{nm}_spin")
    a(f"buffer_load_dword v{vt0}, v{vh}, s[{SRDF}:{SRDF + 3}], s{sOP} offen sc1")
    budget(a, f"{nm}_ok")
    a(f"v_cmp_eq_u32 vcc, 0, v{vt0}")
    a(f"s_cbranch_vccnz {nm}_spin")
    a.label(f"{nm}_ok")
    a("s_barrier")


def mlp_phase(a, final):
    name = f"m{final + 1}"
    vx, vl0, vx2, vck = 4, 5, 8, 9
    X, ACC1, Z, vmk, CC = 16, 176, 232, 249, 250
    GR = Z
    vdc = 256 + 248
    WR, NW, AHEAD = 256, 12, 8
    ACC2, EACC = 96, 224
    DIAG = (4, 6, 30, 70)
    vad, ve, vq, vfl, vpl, vpo = 10, 12, 13, 14, 248, 9
    vred, vo2, vs, vout, vdcm = 250, 4, 8, 10, 12
    sQ = (sK0, sK1, sK2, sK3)
    sCQ = 27
    RES, BIA, TMP = 224, 234, 244
    QS = (176, 192, 208, 16, 32, 48, 64, 80)
    QD = len(QS)
    act = {}

    def fine(*key):
        mk(a, name + key[0] + str(key[1])) if FZ.marks is not None else None
        for f in act.get(key, ()):
            f()

    def at(key, f):
        act.setdefault(tuple(key), []).append(f)

    def qreg(u, q):
        return QS[u % QD] + 4 * q

    done, sched = set(), set()
    fifo, gq, log = [], [], []
    gcred = [0.0, 0.0]

    def later(op, key=None, tag=None):
        fifo.append((op, key, tag))

    def run(op, key, tag):
        if callable(op):
            op()
        else:
            a(op, tag=tag)
        if key is not None:
            done.add(key)

    def pop():
        run(*fifo.pop(0))

    def flush():
        while fifo:
            pop()

    def gpop():
        op, key, tag = gq.pop(0)
        run(op, key, tag)
        return 0 if callable(op) else FZ.tcost if op.split()[0] in TRANS else 4

    def mf(d, x, y, c, slots=2):
        mfma(a, d, x, y, c)
        if gq:
            gcred[0] += gcred[1]
            while gq and gcred[0] > 0:
                gcred[0] -= gpop()
            slots = min(slots, 1) if len(fifo) < 3 else slots
        for _ in range(slots):
            if fifo:
                pop()

    sst = {}
    tested, busy = set(), []

    def vm(text, sreg=None, sexp=None, key=None, tag=None, again=True, q=None, first=None):
        q = fifo if q is None else q
        if sreg is not None and sst.get(sreg) != sexp:
            q.append((sexp.replace("@", f"s{sreg}"), None, None))
            sst[sreg] = sexp

        def emit():
            a((text if first is None else text.replace(" sc1", first)).replace("@", f"s{sreg}"), tag=tag)
            log.append((key, text if again else None, sexp))
        q.append((emit, key, None))

    def verify(keys, regs, lab, key):
        test = f"v_cmp_u_f32 vcc, v{regs[0]}, v{regs[1]}"

        def branch():
            idx = [k for k, e in enumerate(log) if e[0] in keys]
            rep = log[idx[0]:]
            assert len(idx) == 2 and not tested & {e[0] for e in rep}, lab
            tested.update(keys)
            young = len(log) - 1 - idx[-1]
            a(f"s_cbranch_vccnz {lab}_again", tag="nopad")
            a.label(f"{lab}_ok", keep=True)
            busy.clear()

            def stub():
                a.label(f"{lab}_again")
                a("s_nop 7")
                budget(a, f"{lab}_out")
                a(f"s_waitcnt vmcnt({max(0, 62 - len(rep))})")
                last = None
                for _, text, sexp in rep:
                    if text is None:
                        a.raw(f"    buffer_load_dword {R(aDUM)}, off, s[{SRDP}:{SRDP + 3}], 0")
                        continue
                    if sexp is not None and sexp != last:
                        a(sexp.replace("@", f"s{sRP}"))
                        last = sexp
                    a.raw("    " + text.replace("@", f"s{sRP}"))
                a(f"s_waitcnt vmcnt({young})")
                a(test)
                a(f"s_cbranch_vccnz {lab}_again")
                a.label(f"{lab}_out")
                a(f"s_branch {lab}_ok")
            a.tail.append(stub)
        later(lambda: (a(test), busy.append(lab)))
        later(branch, key)

    def xr(t, st):
        return X + t * 8 + st * 4

    def acc(ft, st):
        return ACC1 + (ft * 2 + st) * 4

    queue = []

    def x_load(t, h):
        return ("x", t, h), lambda key: vm(
            f"buffer_load_dwordx4 {V(xr(t, h), 4)}, v{vx2 if h else vx}, s[{SRD1}:{SRD1 + 3}], @ offen sc1",
            sOQ, f"s_mov_b32 @, {8 * (19 - t) * XP_STR}", key, first=FZ.mx)

    def e_load(j):
        def f(key):
            et, c = divmod(j, 5)
            later(f"s_add_u32 m0, s{sE}, {(et * 20 + 4 * c) * 1024 - et * 256}")
            vm(f"buffer_load_dwordx4 v{vad}, s[{SRD4}:{SRD4 + 3}], @ offen offset:{et * 256} lds",
               sOP, f"s_mov_b32 @, {c * 16 * KB_STR}", key, "e", again=False)
        return ("e", j), f

    def p_load(u, p):
        return ("p", u, p), lambda key: vm(
            f"buffer_load_dwordx4 {R(preg(u, p), 4)}, v{vp}, s[{SRDP}:{SRDP + 3}], @ offen offset:{p * 256}",
            sF, f"s_mov_b32 @, {ORDER[u] * 4 * KB_STR}", key)

    def q_load(u, q):
        return ("q", u, q), lambda key: vm(
            f"buffer_load_dwordx4 {V(qreg(u, q), 4)}, v{vq}, s[{SRDQ}:{SRDQ + 3}], @ offen sc1",
            sOQ, f"s_add_u32 @, s{sQ[q]}, {ORDER[u] * 4 * H_STR}", key, first=FZ.mq)

    def o_fill(k):
        if k < 5:
            return ("z", k), lambda key: vm(
                f"buffer_store_dwordx2 {R(aPO, 2)}, v{vo2}, s[{SRD0}:{SRD0 + 3}], @ offen sc1",
                sOP, f"s_mov_b32 @, {k * 4 * XP_STR}", key, "z", again=False)
        return ("z", k), lambda key: vm(
            f"buffer_store_dwordx4 {R(aPO, 4)}, v{vx2}, s[{SRD2}:{SRD2 + 3}], 0 offen offset:{(k - 5) * 1024} sc1",
            key=key, tag="z", again=False)

    def push(item, *gates):
        queue.append((item[0], item[1], gates))

    credit = [0.0]
    order = []

    def issue(n):
        credit[0] += n
        while credit[0] >= 1:
            k = next((k for k, it in enumerate(queue) if all(g in done for g in it[2])), None)
            if k is None:
                credit[0] = 0
                return
            key, f, _ = queue.pop(k)
            f(key)
            sched.add(key)
            order.append(key)
            credit[0] -= 1

    def now(n):
        issue(n)
        flush()

    def plan(key):
        while key not in sched:
            n0 = len(queue)
            credit[0] = 0
            issue(1)
            assert len(queue) < n0, key

    def need(key):
        if key[0] in ("x", "e", "p", "q", "z"):
            plan(key)
        while key not in done:
            pop()

    xorder = list(range(13)) + [19] + list(range(13, 19))
    for t in xorder:
        push(x_load(t, 0))
        push(x_load(t, 1))
    if final:
        for j in range(15):
            push(e_load(j), "ebar")
    else:
        for k in range(9):
            push(o_fill(k), "oset")
    for u in range(FZ.pre_p[final]):
        for p in range(5):
            done.add(("p", u, p))
            sched.add(("p", u, p))

    def q_gates(u, q):
        g = ["qgo", "ready"]
        if u >= QD:
            g.append(("qfree", u - QD, 3 if u == 13 and q == 0 else q))
        else:
            g.append(("gelu", 2 * u + 1) if u < 3 else ("xfree", 2 * (u - 3) + 1))
        return g

    def p_gates(u):
        return ["xok"] + ([] if u < 10 else [("xfree", 19), ("xfree", 19), ("qfree", 0, 3), ("qfree", 1, 3)][u - 10:u - 9])

    for u in range(FZ.pre_p[final], 10):
        for p in range(5):
            push(p_load(u, p), *p_gates(u))
    for u in range(14):
        for q in ((1, 2, 3, 0) if u == 13 else range(4)):
            push(q_load(u, q), *q_gates(u, q))
        if u >= 4 and u + 6 < 14:
            for p in range(5):
                push(p_load(u + 6, p), *p_gates(u + 6))

    mk(a, name + "go")
    now(FZ.look)

    a(f"v_lshlrev_b32 v{vl0}, 4, v{vL}")
    a(f"v_add_u32 v{vl0 + 1}, 0x10000, v{vl0}")
    a(f"v_add_u32 v{vl0 + 2}, 0x20000, v{vl0}")
    a(f"v_lshlrev_b32 v{vpl}, 20, v0")
    a(f"s_lshl_b32 s{sA}, s{sMM}, 2")
    a(f"v_add_u32 v{vpl}, s{sA}, v{vpl}")
    a(f"v_mov_b32 v{vck}, {3 if final else 1}")
    a.raw(f"    s_waitcnt vmcnt({FZ.look})")
    a("s_barrier")
    vm(f"buffer_store_dword v{vck}, v{vpl}, s[{SRDF}:{SRDF + 3}], s{sFL} offen sc1", again=False)
    flush()
    a(f"s_mov_b64 s[{SRD3}:{SRD3 + 1}], s[{SRDQ}:{SRDQ + 1}]")
    a(f"s_mov_b32 s{SRD3 + 2}, {H_SIZE}")
    a(f"s_mov_b32 s{SRD3 + 3}, 0x20000")
    a(f"v_cmp_eq_u32 vcc, 0, v{vG}")
    a(f"v_mov_b32 v{vmk}, 0xffff0000")
    a(f"v_cndmask_b32 v{vmk}, 0, v{vmk}, vcc")
    for r in range(4):
        m = 0x1000010000100001 << r
        a(f"s_mov_b32 s{DIAG[r]}, {m & 0xffffffff:#x}")
        a(f"s_mov_b32 s{DIAG[r] + 1}, {m >> 32:#x}")
    a(f"s_bfe_u32 s{sA}, s{sMM}, 0x10002")
    a(f"s_lshl_b32 s{sA}, s{sA}, 6")
    a(f"s_lshl_b32 s{sCQ}, s{sRB}, 7")
    a(f"s_add_u32 s{sCQ}, s{sCQ}, s{sA}")
    a(f"s_mul_i32 s{sA}, s{sW}, {54 * H_STR}")
    a(f"s_add_u32 s{SRDQ + 2}, s{sA}, {54 * H_STR}")
    a(f"s_lshl4_add_u32 s{sA}, s{sCQ}, s{sA}")
    a(f"v_mul_u32_u24 v{vq}, {H_STR}, v{vG}")
    a(f"v_lshl_add_u32 v{vq}, v{vI}, 4, v{vq}")
    a(f"v_add_u32 v{vq}, s{sA}, v{vq}")
    for ql in range(4):
        a(f"s_xor_b32 s{sQ[ql]}, s{sW}, {ql}")
        a(f"s_lshl_b32 s{sQ[ql]}, s{sQ[ql]}, 8")
    a(f"v_and_b32 v{vfl}, 3, v{vI}")
    a(f"s_lshl_b32 s{sA}, s{sW}, 4")
    a(f"v_lshl_add_u32 v{vfl}, v{vfl}, 2, s{sA}")
    a(f"s_lshl_b32 s{sD}, s{sW}, 4")
    a(f"s_add_u32 s{sD}, s{sD}, s{sCQ}")
    if final:
        srd_table(a, SRD4, "ft2")
        a(f"s_mul_i32 s{sB}, s{sMM}, 5")
        a(f"s_lshr_b32 s{sB}, s{sB}, 1")
        a(f"s_lshl_b32 s{sA}, s{sB}, 8")
        a(f"v_mul_u32_u24 v{vad}, {DM}, v{vG}")
        a(f"v_add_lshl_u32 v{vad}, v{vad}, v{vI}, 4")
        a(f"v_add_u32 v{vad}, s{sA}, v{vad}")
        a(f"s_mul_i32 s{sA}, s{sW}, {4 * KB_STR}")
        a(f"v_add_u32 v{vad}, s{sA}, v{vad}")
        a(f"s_mul_i32 s{sA}, s{sB}, {4 * XP_STR}")
        a(f"s_add_u32 s{sA}, s{sA}, s{sC}")
        a(f"v_lshlrev_b32 v{ve}, 14, v{vG}")
        a(f"v_lshl_add_u32 v{ve}, v{vI}, 4, v{ve}")
        a(f"v_add_u32 v{ve}, s{sA}, v{ve}")
        srd_ws(a, SRD2, "X3", XP_SIZE)
        srd(a, SRD0, P_OUT, 0, SEQ * DM * 2)
    else:
        srd_ws(a, SRD0, "XP2", XP_SIZE)
        srd_ws(a, SRD2, "XP3", XP_SIZE)
        srd_ws(a, SRD4, "SS2", SS2_SIZE)
    mk.stash(a, Z)

    def o_addr():
        later(f"s_mul_i32 s{sA}, s{sDC}, {20 * XP_STR}")
        later(f"s_lshl3_add_u32 s{sA}, s{sD}, s{sA}")
        later(f"v_lshlrev_b32 v{vo2}, 14, v{vG}")
        later(f"v_lshl_add_u32 v{vo2}, v{vI}, 3, v{vo2}")
        later(f"v_add_u32 v{vo2}, s{sA}, v{vo2}")
        if not final:
            later(f"s_lshl2_add_u32 s{sA}, s{sT}, s{sW}")
            later(f"s_lshl_b32 s{sA}, s{sA}, 12")
            later(f"v_add_u32 v{vx2}, s{sA}, v{vl0}", "oset")

    tiles, f0 = [], 0
    for n in FZ.rounds:
        tiles.append(list(range(f0, f0 + n)))
        f0 += n
    seq = [("w", ft, t) for tl in tiles for t in range(20) for ft in tl]
    if final:
        seq += [("e", et, t) for t in range(20) for et in range(3)]
    rd_ = {"n": 0, "use": 0}

    def wreg(n):
        return WR + (n % NW) * 4

    def rd_upto(hi):
        while rd_["n"] < min(hi, len(seq)):
            kind, ft, t = seq[rd_["n"]]
            if kind == "e" and "e0" not in done:
                return
            off = (ft * 20 + 19 - t) * 1024
            later(f"ds_read_b128 {R(wreg(rd_['n']), 4)}, v{vl0 + (off >> 16)} offset:{off & 0xffff}", ("rd", rd_["n"]))
            rd_["n"] += 1

    def frag():
        n = rd_["use"]
        rd_["use"] += 1
        rd_upto(n + AHEAD + 1)
        if n % 2 == 0:
            need(("rd", n + 1))
            a.wait_regs(R(wreg(n), 4), R(wreg(n + 1), 4))
        return n, 2 - n % 2

    def prep_x(t):
        plan(("x", t, 1))
        verify({("x", t, 0), ("x", t, 1)}, (xr(t, 0), xr(t, 1)), f"{name}_x{t}", "xok" if t == xorder[-1] else None)
        ops = [f"v_swap_b32 v{xr(t, 0) + 2}, v{xr(t, 1)}", f"v_swap_b32 v{xr(t, 0) + 3}, v{xr(t, 1) + 1}"]
        if t == 19:
            for st in range(2):
                if final:
                    ops.append(f"v_accvgpr_write_b32 {R(vdc + st)}, v{xr(t, st)}")
                ops.append(f"v_bfi_b32 v{xr(t, st)}, v{vmk}, 0, v{xr(t, st)}")
        for op in ops[:-1]:
            later(op)
        later(ops[-1], ("sw", t))

    def gram(t, slots):
        need(("sw", t))
        for st in range(2):
            mf(GR + 4 * st, xr(t, st), xr(t, st), None if t == 0 else GR + 4 * st, slots if st else 2)

    T = Z + 8

    def stats_ops():
        ops = []
        for r in range(4):
            for st in range(2):
                prev = "0" if r == 0 else f"v{T + 2 * st}"
                ops.append(f"v_cndmask_b32_e64 v{T + 2 * st}, {prev}, v{GR + 4 * st + r}, s[{DIAG[r]}:{DIAG[r] + 1}]")
        for op in ("v_permlane32_swap_b32", "v_permlane16_swap_b32"):
            ops += [f"v_mov_b32 v{T + 2 * st + 1}, v{T + 2 * st}" for st in range(2)]
            ops += [f"{op} v{T + 2 * st}, v{T + 2 * st + 1}" for st in range(2)]
            ops += [f"v_add_f32 v{T + 2 * st}, v{T + 2 * st}, v{T + 2 * st + 1}" for st in range(2)]
        ops.append(f"v_mov_b32 v{T + 4}, {f32bits(EPS * EPS):#x}")
        ops += [f"v_fmamk_f32 v{T + 2 * st}, v{T + 2 * st}, {f32bits((1 + EPS) / DM):#x}, v{T + 4}" for st in range(2)]
        ops += [f"v_rsq_f32 v{T + 2 * st + 1}, v{T + 2 * st}" for st in range(2)]
        ops += [f"v_mul_f32 v{CC + 4 + st}, v{T + 2 * st}, v{T + 2 * st + 1}" for st in range(2)]
        ops += [f"v_cvt_pk_bf16_f32 v{T + 2 * st}, v{CC + 4 + st}, v{CC + 4 + st}" for st in range(2)]
        ops += [f"v_bfi_b32 v{xr(19, st)}, v{vmk}, v{T + 2 * st}, v{xr(19, st)}" for st in range(2)]
        late = [f"v_mul_f32 v{CC + st}, {f32bits(GELU_K0):#x}, v{T + 2 * st + 1}" for st in range(2)]
        late += [f"v_mul_f32 v{T + 2 * st}, v{T + 2 * st + 1}, v{T + 2 * st + 1}" for st in range(2)]
        late += [f"v_mul_f32 v{T + 2 * st}, {f32bits(0.044715):#x}, v{T + 2 * st}" for st in range(2)]
        late += [f"v_mul_f32 v{CC + 2 + st}, v{CC + st}, v{T + 2 * st}" for st in range(2)]
        return ops, late

    def signal(tag, off, val):
        later(f"v_mov_b32 v{vck}, {val}")
        later(lambda: a.wait_tag(tag))
        later("s_barrier")
        vm(f"buffer_store_dword v{vck}, v{vpl}, s[{SRDF}:{SRDF + 3}], s{sFL} offen offset:{off} sc1", again=False)

    def poll(key, text, test, val):
        lab = f"{name}_{key}"

        def check():
            need(("i", key))
            while busy:
                pop()
            for x in test:
                a(x)
            a(f"s_cbranch_vccnz {lab}_spin")
            a.label(f"{lab}_ok", keep=True)

            def spin():
                a.label(f"{lab}_spin")
                a(text)
                a("s_waitcnt vmcnt(0)")
                budget(a, f"{lab}_ok")
                for x in test:
                    a(x)
                a(f"s_cbranch_vccnz {lab}_spin")
                a(f"s_branch {lab}_ok")
            a.tail.append(spin)
            done.add(key)
        return (lambda: vm(text, key=("i", key), again=False)), check

    def poll1(key, off, val):
        return poll(key, f"buffer_load_dword v{vmk}, v{vfl}, s[{SRDF}:{SRDF + 3}], s{sFL} offen offset:{off} sc1",
                    [f"v_cmp_gt_u32 vcc, {val}, v{vmk}"], val)

    i_, c_ = poll1("ready", 0, 3 if final else 1)
    at(FZ.rd_at[0], i_)
    at(FZ.rd_at[1], c_)
    at(FZ.q_at[final], lambda: done.add("qgo"))
    at(("b", 0), o_addr)

    def res_loads(srd_):
        for p in range(5):
            vm(f"buffer_load_dwordx2 {V(RES + 2 * p, 2)}, v{vo2}, s[{srd_}:{srd_ + 3}], @ offen sc1",
               sOP, f"s_mov_b32 @, {p * 4 * XP_STR}")

    if final:
        ix, cx = poll1("px", 2048, 1)

        def issue_x():
            later(f"v_and_b32 v{vfl}, 1, v{vI}")
            later(f"s_lshl_b32 s{sA}, s{sDC}, 3")
            later(f"v_lshl_add_u32 v{vfl}, v{vfl}, 2, s{sA}")
            ix()
            for p in range(5):
                vm(f"buffer_load_dwordx2 {V(BIA + 2 * p, 2)}, v{vs}, s[{SRD1}:{SRD1 + 3}], 0 offen offset:{p * 32}")

        def ebar():
            later("s_barrier", "ebar")
        at(("b", FZ.ebar), ebar)
        at(FZ.x3[0], lambda: signal("x3", 2048, 1))
        at(FZ.x3[1], issue_x)
        at(FZ.x3[2], lambda: (cx(), res_loads(SRD2)))
    else:
        i2, c2 = poll("r2", f"buffer_load_dwordx4 {V(BIA, 4)}, v{vfl}, s[{SRDF}:{SRDF + 3}], 0 offen sc1",
                      [f"v_min3_u32 v{BIA}, v{BIA}, v{BIA + 1}, v{BIA + 2}", f"v_min_u32 v{BIA}, v{BIA}, v{BIA + 3}",
                       f"v_cmp_gt_u32 vcc, 2, v{BIA}"], 2)

        def issue_r2():
            later(f"v_lshrrev_b32 v{vfl}, 2, v{vL}")
            later(f"v_lshlrev_b32 v{vfl}, 7, v{vfl}")
            later(f"v_and_b32 v{vck}, 3, v{vL}")
            later(f"v_lshl_add_u32 v{vfl}, v{vck}, 4, v{vfl}")
            i2()
        at(FZ.r2_at[0], issue_r2)
        at(FZ.r2_at[1], c2)
        at(FZ.res_at, lambda: res_loads(SRD1))

    NA = FZ.rounds[0]
    rd_upto(AHEAD)
    prep_x(0)
    gram(0, 2)
    mk(a, name + "x0")
    gram_at = {t: ([t + 1] if t + 1 <= 18 else []) for t in range(20)}
    gram_at[12].insert(0, 19)
    for t in range(20):
        fine("a", t)
        for ft in range(NA):
            n, sl = frag()
            if ft < len(gram_at[t]):
                prep_x(gram_at[t][ft])
            if t == 18 and ft == 0:
                sops, late = stats_ops()
                for op in sops[:-1]:
                    later(op)
                later(sops[-1], "stats")
            if t == 19 and ft == 0:
                need("stats")
                for op in late:
                    later(op)
            g = gram_at[t][ft - (NA - 2)] if NA - 2 <= ft < NA - 2 + len(gram_at[t]) else None
            issue(FZ.rate_a / NA)
            boost = 2 if t == 18 else 0
            for st in range(2):
                mf(acc(ft, st), wreg(n), xr(t, st), None if t == 0 else acc(ft, st),
                   (sl if st and g is None else 2) + boost)
            if g is not None:
                gram(g, sl)
    flush()
    mk(a, name + "A")

    def gelu(ft):
        Zs = Z + 8 * (ft & 1)
        prs = [(acc(ft, st) + h, Zs + st * 4 + h, st) for st in range(2) for h in (0, 2)]
        n0 = len(gq)

        def g(op, key=None):
            gq.append((op, key, None))

        def sel(st):
            return f"op_sel:[0,{st},{st}] op_sel_hi:[1,{st},{st}]"

        g(lambda: fine("h", ft))
        for x, z, st in prs:
            g(f"v_pk_mul_f32 {V(z, 2)}, {V(x, 2)}, {V(x, 2)}")
        for x, z, st in prs:
            g(f"v_pk_fma_f32 {V(z, 2)}, {V(z, 2)}, {V(CC + 2, 2)}, {V(CC, 2)} {sel(st)}")
        for x, z, st in prs:
            g(f"v_pk_mul_f32 {V(z, 2)}, {V(z, 2)}, {V(x, 2)}")
        for k in range(8):
            g(f"v_exp_f32 v{Zs + k}, v{Zs + k}")
        for x, z, st in prs:
            g(f"v_pk_fma_f32 {V(z, 2)}, {V(z, 2)}, {V(CC + 4, 2)}, {V(CC + 4, 2)} {sel(st)}")
        for k in range(8):
            g(f"v_rcp_f32 v{Zs + k}, v{Zs + k}")
        for x, z, st in prs:
            g(f"v_pk_mul_f32 {V(z, 2)}, {V(z, 2)}, {V(x, 2)}")
        for k in range(4):
            g(f"v_cvt_pk_bf16_f32 v{Zs + k}, v{Zs + 2 * k}, v{Zs + 2 * k + 1}")
        if ft:
            g(f"s_add_u32 s{sHO}, s{sHO}, s{sHS}")
        if ft == 6:
            g(f"v_add_u32 v{vo}, s{sMSK}, v{vo}")
        g(f"v_permlane16_swap_b32 v{Zs}, v{Zs + 2}")
        g(f"v_permlane16_swap_b32 v{Zs + 1}, v{Zs + 3}")
        vm(f"buffer_store_dwordx4 {V(Zs, 4)}, v{vo}, s[{SRD3}:{SRD3 + 3}], s{sHO} offen sc1", key=("gelu", ft),
           tag=f"h{ft}", again=False, q=gq)
        return sum(0 if callable(op) else FZ.tcost if op.split()[0] in TRANS else 4 for op, _, _ in gq[n0:])

    def gflush():
        n = 0
        while gq:
            gpop()
            n += 1
            if n % 15 == 0:
                now(FZ.rate_g / 3)
        flush()

    for r in range(1, len(tiles)):
        cost = sum(gelu(ft) for ft in tiles[r - 1])
        gcred[0], gcred[1] = -40.0, cost / (40 * len(tiles[r]) - 3)
        for t in range(20):
            fine("bcd"[r - 1], t)
            for ft in tiles[r]:
                n, sl = frag()
                issue(FZ.rate_b / len(tiles[r]))
                for st in range(2):
                    mf(acc(ft, st), wreg(n), xr(t, st), None if t == 0 else acc(ft, st), sl if st else 2)
            if not final and r == len(tiles) - 1:
                done.add(("xfree", t))
        gflush()
        mk(a, name + "BCD"[r - 1])
    if final:
        need(("e", 14))
        flush()
        a.wait_tag("e")
        a("s_barrier")
        done.add("e0")
        rd_upto(140 + AHEAD)
        flush()
    for ft in tiles[-1]:
        gelu(ft)
    gflush()
    mk(a, name + "H")

    def out_setup():
        for ql in (1, 2, 3):
            a(f"s_xor_b32 s{sA}, s{sW}, {ql}")
            a(f"s_mul_i32 s{sA}, s{sA}, 15360")
            a(f"s_add_u32 s{sA}, s{sA}, {LDS_RED + (ql - 1) * 5120}")
            a(f"v_add_u32 v{vred + ql - 1}, s{sA}, v{vl0}")
        a(f"s_mul_i32 s{sA}, s{sW}, 15360")
        a(f"s_add_u32 s{sA}, s{sA}, {LDS_RED}")
        a(f"v_add_u32 v{vred + 3}, s{sA}, v{vl0}")
        if final:
            srd(a, SRD1, P_B2, 0, DM * 2)
            a(f"s_mul_i32 s{sA}, s{sDC}, 160")
            a(f"v_lshlrev_b32 v{vs}, 3, v{vG}")
            a(f"v_add_u32 v{vs}, s{sA}, v{vs}")
            a(f"s_bfe_u32 s{sA}, s{sD}, 0x10004")
            a(f"s_lshl_b32 s{sA}, s{sA}, 3")
            a(f"s_lshr_b32 s{sB}, s{sD}, 9")
            a(f"s_lshl4_add_u32 s{sA}, s{sB}, s{sA}")
            a(f"s_bfe_u32 s{sB}, s{sD}, 0x20005")
            a(f"s_lshl_b32 s{sB}, s{sB}, 8")
            a(f"s_add_u32 s{sA}, s{sA}, s{sB}")
            a(f"s_and_b32 s{sB}, s{sD}, 128")
            a(f"s_add_u32 s{sA}, s{sA}, s{sB}")
            a(f"s_and_b32 s{sB}, s{sD}, 256")
            a(f"s_lshl2_add_u32 s{sA}, s{sB}, s{sA}")
            a(f"v_and_b32 v{vout}, 1, v{vI}")
            a(f"v_lshlrev_b32 v{vout}, 6, v{vout}")
            a(f"v_lshrrev_b32 v{vdcm}, 1, v{vI}")
            a(f"v_add3_u32 v{vout}, v{vout}, v{vdcm}, s{sA}")
            a(f"v_mul_u32_u24 v{vout}, 1280, v{vout}")
            a(f"v_add_u32 v{vout}, v{vout}, v{vs}")
        else:
            a(f"v_lshrrev_b32 v{vs}, 1, v{vI}")
            a(f"v_lshlrev_b32 v{vs}, 4, v{vs}")
            a(f"v_and_b32 v{vdcm}, 1, v{vI}")
            a(f"v_lshl_add_u32 v{vs}, v{vdcm}, 2, v{vs}")
            a(f"v_and_b32 v{vdcm}, 1, v{vG}")
            a(f"v_lshl_add_u32 v{vs}, v{vdcm}, 3, v{vs}")
            a(f"v_lshrrev_b32 v{vdcm}, 1, v{vG}")
            a(f"v_lshl_add_u32 v{vs}, v{vdcm}, 20, v{vs}")
            a(f"s_lshl_b32 s{sA}, s{sD}, 3")
            a(f"v_add_u32 v{vs}, s{sA}, v{vs}")
            a(f"s_cmp_eq_u32 s{sW}, 3")
            a(f"s_cselect_b32 s{sA}, 0x3f80, 0")
            a(f"v_mov_b32 v{vout}, s{sA}")
            a(f"v_cmp_eq_u32 vcc, 2, v{vG}")
            a(f"v_cndmask_b32 v{vout}, 0, v{vout}, vcc")
            a(f"s_cmp_eq_u32 s{sDC}, 0")
            a(f"s_cselect_b32 s{sA}, 0, 1.0")
            a(f"v_mov_b32 v{vdcm}, s{sA}")
            a(f"v_cmp_eq_u32 vcc, 0, v{vG}")
            a(f"v_cndmask_b32 v{vdcm}, 1.0, v{vdcm}, vcc")

    fine("p", 0)
    if final:
        for st in range(2):
            a(f"v_accvgpr_read_b32 v{xr(19, st)}, {R(vdc + st)}")
        for t in range(20):
            fine("e", t)
            for et in range(3):
                n, sl = frag()
                issue(FZ.rate_e / 3)
                for st in range(2):
                    d = EACC + (et * 2 + st) * 4
                    mf(d, wreg(n), xr(t, st), None if t == 0 else d, sl if st else 2)
            done.add(("xfree", t))
        now(4)
        for et in range(3):
            d = EACC + et * 8
            for k in range(4):
                a(f"v_cvt_pk_bf16_f32 v{d + k}, v{d + 2 * k}, v{d + 2 * k + 1}")
            vm(f"buffer_store_dwordx4 {V(d, 4)}, v{ve}, s[{SRD2}:{SRD2 + 3}], @ offen sc1",
               sOP, f"s_mov_b32 @, {et * 4 * XP_STR}", tag="x3", again=False)
            flush()
        mk(a, name + "E")
        now(4)
        out_setup()
    else:
        need(("z", 8))
        now(FZ.pre_g2 // 2)
        out_setup()
        signal("z", 0, 2)
        now(FZ.pre_g2 - FZ.pre_g2 // 2)
    mk.stash(a, TMP)

    def deficit(u):
        must = sum(1 for it in queue if it[0][1] <= u)
        if must:
            return must + FZ.lead
        last = max(k for k, key in enumerate(order) if key[0] in "pq" and key[1] <= u)
        return FZ.lead - (len(order) - 1 - last)

    def accr(p, q):
        return ACC2 + (q * 5 + p) * 4

    def wr(q, p):
        later(f"ds_write_b128 v{vred + q - 1}, {R(accr(p, q), 4)} offset:{p * 1024}")

    NS = 14
    slots = [(u, q) for u in range(NS) for q in ((1, 2, 3, 0) if u == NS - 1 else (0, 1, 2, 3))]

    def q_check(n):
        (u, q0), (_, q1) = slots[n], slots[n + 1]
        plan(("q", u, q1))
        verify({("q", u, q0), ("q", u, q1)}, (qreg(u, q0), qreg(u, q1)), f"{name}_q{n}", None)
        if ORDER[u] == 13 and not final:
            later(f"v_or_b32 v{qreg(u, q0)}, v{qreg(u, q0)}, v{vout}")
            later(f"v_or_b32 v{qreg(u, q1)}, v{qreg(u, q1)}, v{vout}")
        later(lambda: None, ("qok", n))

    q_check(0)
    for n, (u, q) in enumerate(slots):
        last = u == NS - 1
        if n % 4 == 0:
            fine("g", u)
            if u == 1:
                mk(a, name + "g1")
            for p in range(5):
                need(("p", u, p))
            rate = max(FZ.g2_rate, deficit(u + 1) / 4)
        need(("qok", n & ~1))
        for p in range(5):
            if last and n % 4:
                wr(slots[n - 1][1], p)
            if p == 0 and n:
                done.add(("qfree",) + slots[n - 1])
            if p < 4:
                issue(rate / 4)
            if p == 2 and n % 2 and n + 1 < len(slots):
                q_check(n + 1)
            mf(accr(p, q), preg(u, p), qreg(u, q), None if u == 0 else accr(p, q), 1 if p == 4 else 2)
    flush()
    assert not queue
    mk(a, name + "G")
    a("s_waitcnt lgkmcnt(0)")
    a("s_barrier")
    for p in range(5):
        for s_ in range(3):
            a(f"ds_read_b128 {R(accr(p, s_ + 1), 4)}, v{vred + 3} offset:{s_ * 5120 + p * 1024}")
    a(f"s_mov_b32 s{sK2}, 0xffff0000")
    E = 16
    for p in range(5):
        e = E + 8 * p
        for h in range(2):
            a(f"v_lshlrev_b32 v{e + 2 * h}, 16, v{RES + 2 * p + h}")
            a(f"v_and_b32 v{e + 2 * h + 1}, s{sK2}, v{RES + 2 * p + h}")
            if final:
                a(f"v_lshlrev_b32 v{e + 4 + 2 * h}, 16, v{BIA + 2 * p + h}")
                a(f"v_and_b32 v{e + 4 + 2 * h + 1}, s{sK2}, v{BIA + 2 * p + h}")
        for h in (0, 2):
            d = accr(p, 0) + h
            a(f"v_pk_add_f32 {V(d, 2)}, {V(d, 2)}, {V(e + h, 2)}")
            if final:
                a(f"v_pk_add_f32 {V(d, 2)}, {V(d, 2)}, {V(e + 4 + h, 2)}")
    if not final:
        a(f"v_mov_b32 v{TMP + 2}, 0")
        a(f"v_mov_b32 v{TMP + 3}, 0")
        a(f"v_cmp_eq_u32 vcc, 0, v{vG}")
    for p in range(5):
        r = accr(p, 0)
        for h in (0, 2):
            a(f"v_pk_add_f32 {V(accr(p, 1) + h, 2)}, {V(accr(p, 1) + h, 2)}, {V(accr(p, 2) + h, 2)}")
            a(f"v_pk_add_f32 {V(r + h, 2)}, {V(r + h, 2)}, {V(accr(p, 3) + h, 2)}")
        for h in (0, 2):
            a(f"v_pk_add_f32 {V(r + h, 2)}, {V(r + h, 2)}, {V(accr(p, 1) + h, 2)}")
        a(f"v_cvt_pk_bf16_f32 v{r}, v{r}, v{r + 1}")
        a(f"v_cvt_pk_bf16_f32 v{r + 1}, v{r + 2}, v{r + 3}")
        if final:
            a(f"buffer_store_dwordx2 {V(r, 2)}, v{vout}, s[{SRD0}:{SRD0 + 3}], 0 offen offset:{p * 32}")
        else:
            a(f"s_mov_b32 s{sOP}, {p * 4 * XP_STR}")
            a(f"buffer_store_dwordx2 {V(r, 2)}, v{vo2}, s[{SRD0}:{SRD0 + 3}], s{sOP} offen sc1")
            if p == 0:
                a(f"v_lshlrev_b32 v{TMP}, 16, v{r}")
                a(f"v_and_b32 v{TMP + 1}, s{sK2}, v{r}")
                a(f"v_mul_f32 v{TMP + 1}, v{TMP + 1}, v{vdcm}")
                a(f"v_mul_f32 v{TMP + 2}, v{TMP}, v{TMP}")
                a(f"v_fmac_f32 v{TMP + 2}, v{TMP + 1}, v{TMP + 1}")
            else:
                a(f"v_dot2c_f32_bf16 v{TMP + 2}, v{r}, v{r}")
            a(f"v_dot2c_f32_bf16 v{TMP + 3}, v{r + 1}, v{r + 1}")
    if not final:
        s = TMP + 2
        a(f"v_add_f32 v{s}, v{s}, v{s + 1}")
        for op in ("v_permlane32_swap_b32", "v_permlane16_swap_b32"):
            a(f"v_mov_b32 v{s + 1}, v{s}")
            a(f"{op} v{s}, v{s + 1}")
            a(f"v_add_f32 v{s}, v{s}, v{s + 1}")
        a(f"v_cndmask_b32 v{s}, 1.0, v{s}, vcc")
        a(f"buffer_atomic_add_f32 v{s}, v{vs}, s[{SRD4}:{SRD4 + 3}], 0 offen sc1", tag="out")
    mk(a, name + "end")


def role_fused(a):
    stamp, Cfg.stamp = Cfg.stamp, Cfg.stamp
    if stamp:
        mk.names.append("start")
        mk.pend.append(0)
    decode(a)
    for ph in range(2):
        a(f"s_cmp_ge_u32 s{sT}, {NCOL}")
        a(f"s_cbranch_scc1 idle{ph}")
        pend = list(mk.pend)

        def idle(ph=ph, pend=pend):
            keep, mk.pend = mk.pend, pend
            a.label(f"idle{ph}")
            idle_phase(a, ph)
            a(f"s_branch join{ph}")
            mk.pend = keep
        a.tail.append(idle)
        col_phase(a, ph)
        a.label(f"join{ph}")
        mlp_phase(a, ph)
    if stamp:
        a("s_waitcnt vmcnt(0)")
        mk(a, "drain")
        mk.stash(a, 4)
        a(f"v_writelane_b32 v4, s{sCNT}, 63")
        srd_ws(a, SRD0, "STAMP", 1 << 21)
        a(f"s_lshl_b32 s{sA}, s2, 10")
        a(f"s_add_u32 s{sA}, s{sA}, {1 << 20}")
        a(f"v_lshl_add_u32 v5, v0, 2, s{sA}")
        a(f"buffer_store_dword v4, v5, s[{SRD0}:{SRD0 + 3}], 0 offen")
    return 160 * 1024


def plan():
    o = p0.PC.order[0]
    return [("p0_kernel", [(sum(p0.CNT[c] for c in o), lambda a: p0.role_front(a, "p0", o, o, {}))]),
            ("mk_kernel", [(256, role_fused)])]


if __name__ == "__main__":
    p0.CNT["1"] = 128
    p0.PC.order = ("x21c",)
    p0.PC.fused = 1
    p0.PC.fl_w = ""
    for opt in sys.argv[2:]:
        if opt == "stamp":
            Cfg.stamp = True
        else:
            k, v = opt.split("=", 1)
            tgt = [c for c in (FZ, p0.PC, Cfg) if hasattr(c, k)][0]
            v = eval(v)
            setattr(tgt, k, v.replace("_", " ") if isinstance(v, str) else v)
    txt = generate(plan(), fe.tables)
    o = p0.PC.order[0]
    txt = txt.replace(f"; roles p0_kernel {sum(p0.CNT[c] for c in o)}",
                      "; roles p0_kernel " + " ".join(str(p0.CNT[c]) for c in o))
    if Cfg.stamp:
        txt = txt.replace(".amdgcn_target", ("; clk\n" if FZ.clk else "") + "; marks " + " ".join(mk.names) + "\n.amdgcn_target", 1)
    open(sys.argv[1], "w").write(txt)
```

```python
from gen import *
import model2

SCALE = float(np.sqrt(2.0 / DM))
SIGN2 = 0x80008000
CNT = {"x": 128, "1": 96, "a": 32, "2": 112, "c": 128, "k": 160, "t": 72}


class PC:
    order = ("x2ac", "k1", "kt")
    lay = ("x2ac", "k1", "kt")
    w2t_in = 0
    code_pf = 1
    fl_ld = " nt"
    fl_l2 = " nt"
    fl_a = ""
    warm = 1
    pf_wgs = 16
    touch_ws = ()
    fl_t = ""
    fl_x = ""
    fl_w = " sc1"
    fl_w2 = ""
    fl_c = ""
    fused = 0
    fl_p = " sc1"
    fill = XP_SIZE
    warm_all = 0
    w1frag = 0
    xscale = 0


def fx(x):
    return f"{f32bits(x):#x}"


class Sched:
    def __init__(self, a, per=2):
        self.a, self.per = a, per
        self.fill = []
        self.done = set()
        self.n = 0

    def add(self, op, ready=-1, key=None):
        self.fill.append((ready, key, op))

    def _pop(self):
        _, key, op = self.fill.pop(0)
        if callable(op):
            op()
        else:
            self.a(op)
        if key is not None and all(k != key for _, k, _ in self.fill):
            self.done.add(key)

    def mfma(self, d, x, y, c, needs=()):
        for k in needs:
            while k not in self.done:
                self._pop()
        mfma(self.a, d, x, y, c)
        cnt = 0
        while self.fill and cnt < self.per and self.fill[0][0] <= self.n:
            self._pop()
            cnt += 1
        self.n += 1

    def flush(self):
        while self.fill:
            self._pop()


SCRATCH = 32768


def code_prefetch(a, name, dst):
    a(f"s_cmp_ge_u32 s2, {PC.pf_wgs}")
    a(f"s_cbranch_scc1 {name}_npf")
    a(f"s_getpc_b64 s[{SRD5}:{SRD5 + 1}]")
    a.label(f"{name}_here", keep=True)
    a(f"s_and_b32 s{SRD5 + 1}, s{SRD5 + 1}, 0xffff")
    a(f"s_mov_b32 s{SRD5 + 2}, {name}_last-{name}_here")
    a(f"s_mov_b32 s{SRD5 + 3}, 0x20000")
    a(f"s_mov_b32 m0, {SCRATCH}")
    a(f"v_lshlrev_b32 v{dst}, 6, v0")
    a(f"buffer_load_dword v{dst}, s[{SRD5}:{SRD5 + 3}], 0 offen lds")
    a.label(f"{name}_npf")


def touch(a, vt, offs, sh=0):
    a(f"s_mov_b32 m0, {SCRATCH}")
    a(f"v_lshlrev_b32 v{vt}, 6, v0")
    for off in offs:
        a(f"s_lshr_b32 s{sOP}, s{sT}, {sh}")
        a(f"s_lshl_b32 s{sOP}, s{sOP}, 14")
        if off:
            a(f"s_add_u32 s{sOP}, s{sOP}, {off}")
        a(f"buffer_load_dword v{vt}, s[{SRD4}:{SRD4 + 3}], s{sOP} offen lds")


def fill_count(order):
    return -(-PC.fill // (4096 * CNT["c"])) if PC.fused else 0


def fill(a, order, vo, vd):
    n = fill_count(order)
    srd_ws(a, SRD5, "XP1", PC.fill)
    a(f"s_mul_i32 s{sA}, s{sT}, {4096 * n}")
    a(f"v_lshl_add_u32 v{vo}, v0, 4, s{sA}")
    for k in range(4):
        a(f"v_mov_b32 v{vd + k}, -1")
    for k in range(n):
        a(f"s_mov_b32 s{sOP}, {k * 4096}")
        a(f"buffer_store_dwordx4 {V(vd, 4)}, v{vo}, s[{SRD5}:{SRD5 + 3}], s{sOP} offen{PC.fl_p}")


def role_front(a, name, order, lay, ext):
    vld, vr, vo = 4, 5, 9
    MK, M1, M2, M2N = 10, 14, 15, 16
    vph, vk0, vq20, vgf = 17, 18, 19, 35
    ACC1, A1, A2, Y, ACCX = 20, 36, 96, 144, 168
    TMP = Y
    DAT = 176
    sQ, sFT, sKD, sSC = sK0, sK1, 96, 97
    KINDS = tuple(k for k in ("x", "w1", "w2") if k[-1] in order.replace("a", "1"))
    fl_w = PC.fl_a if "a" in order else PC.fl_w

    def frag(beta, j):
        return DAT + (beta * 5 + j) * 4

    start, s0 = {}, 0
    for ch in order:
        start[ch] = s0
        s0 += CNT[ch]
    if PC.code_pf:
        code_prefetch(a, name, vld)
    a(f"s_lshl_b32 s{sE}, s{sW}, 10")
    lo, hi = 0, len(order) - 1
    while lo < hi:
        if order[hi] != lay[0]:
            a(f"s_cmp_ge_u32 s2, {start[order[hi]]}")
            a(f"s_cbranch_scc1 {name}_p{order[hi]}")
            hi -= 1
        else:
            a(f"s_cmp_lt_u32 s2, {start[order[lo + 1]]}")
            a(f"s_cbranch_scc1 {name}_p{order[lo]}")
            lo += 1

    def row_loads():
        a(f"s_and_b32 s{sA}, s{sW}, 1")
        a(f"s_lshl_b32 s{sA}, s{sA}, 1")
        a(f"s_xor_b32 s{sA}, s{sA}, s{sW}")
        a(f"s_lshl_b32 s{sA}, s{sA}, 2")
        a(f"v_or_b32 v{vr}, s{sA}, v{vG}")
        a(f"v_xor_b32 v{vr}, v{vr}, v{vI}")
        a(f"v_mul_u32_u24 v{vld}, 1280, v{vld}")
        a(f"v_lshl_add_u32 v{vld}, v{vr}, 4, v{vld}")

    def row_issue(fl):
        for j in range(5):
            a(f"s_add_u32 m0, s{sE}, {j * 4096 - j * 256}")
            a(f"buffer_load_dwordx4 v{vld}, s[{SRD0}:{SRD0 + 3}], 0 offen offset:{j * 256}{fl} lds")
        mark(a, 1)

    def pro_x():
        a(f"s_and_b32 s{sC}, s{sT}, 1")
        a(f"s_lshl_b32 s{sC}, s{sC}, 3")
        a(f"s_lshr_b32 s{sA}, s{sT}, 5")
        a(f"s_lshl4_add_u32 s{sC}, s{sA}, s{sC}")
        a(f"s_bfe_u32 s{sA}, s{sT}, 0x20001")
        a(f"s_lshl_b32 s{sA}, s{sA}, 8")
        a(f"s_add_u32 s{sC}, s{sC}, s{sA}")
        a(f"s_and_b32 s{sA}, s{sT}, 8")
        a(f"s_lshl4_add_u32 s{sC}, s{sA}, s{sC}")
        a(f"s_and_b32 s{sA}, s{sT}, 16")
        a(f"s_lshl_b32 s{sA}, s{sA}, 6")
        a(f"s_add_u32 s{sC}, s{sC}, s{sA}")
        a(f"s_lshl1_add_u32 s{sC}, s{sW}, s{sC}")
        a(f"v_and_b32 v{vld}, 1, v{vG}")
        a(f"v_lshlrev_b32 v{vld}, 6, v{vld}")
        a(f"v_lshrrev_b32 v{vr + 1}, 1, v{vG}")
        a(f"v_add3_u32 v{vld}, v{vld}, v{vr + 1}, s{sC}")
        row_loads()
        a("s_waitcnt lgkmcnt(0)")
        srd(a, SRD0, P_X, 0, SEQ * DM * 2)
        row_issue(PC.fl_ld)
        srd_ws(a, SRD1, "XP0", XP_SIZE)
        a(f"s_mov_b32 s{sKD}, 0")
        a(f"s_branch {name}_gen")

    def pro_w2():
        a(f"s_lshl_b32 s{sC}, s{sT}, 4")
        a(f"s_cmp_eq_u32 s{sT}, 108")
        a(f"s_cselect_b32 s{sC}, 0, s{sC}")
        a(f"s_lshl2_add_u32 s{sC}, s{sW}, s{sC}")
        a(f"v_add_u32 v{vld}, s{sC}, v{vG}")
        row_loads()
        a(f"s_cmp_eq_u32 s{sT}, 108")
        a(f"s_mov_b32 s{SRD0 + 2}, {FF * DM * 2}")
        a(f"s_cselect_b32 s{SRD0 + 2}, {DM * 2}, s{SRD0 + 2}")
        a(f"s_mov_b32 s{SRD0 + 3}, 0x20000")
        a("s_waitcnt lgkmcnt(0)")
        a(f"s_cselect_b32 s{SRD0}, s{P_B2}, s{P_W2}")
        a(f"s_cselect_b32 s{SRD0 + 1}, s{P_B2 + 1}, s{P_W2 + 1}")
        a(f"s_and_b32 s{SRD0 + 1}, s{SRD0 + 1}, 0xffff")
        row_issue(PC.fl_l2)
        srd_ws(a, SRD1, "WA2", WA2_SIZE)
        a(f"s_mov_b32 s{sKD}, 2")
        a(f"s_branch {name}_gen")

    def pro_w1():
        a(f"s_and_b32 s{sA}, s{sT}, 7")
        a(f"s_lshr_b32 s{sB}, s{sT}, 5")
        a(f"s_lshl3_add_u32 s{sA}, s{sB}, s{sA}")
        a(f"s_cmp_ge_u32 s{sA}, 27")
        a(f"s_cbranch_scc1 {name}_end")
        a(f"s_bfe_u32 s{sB}, s{sT}, 0x20003")
        a(f"s_lshl2_add_u32 s{sFT}, s{sA}, s{sB}")
        a(f"s_and_b32 s{sA}, s{sW}, 1")
        a(f"s_lshl_b32 s{sA}, s{sA}, 2")
        a(f"v_lshrrev_b32 v{vld}, 1, v{vL}")
        a(f"v_xor_b32 v{vld}, s{sA}, v{vld}")
        a(f"v_mul_u32_u24 v{vld}, {FF * 2}, v{vld}")
        a(f"v_and_b32 v{vr}, 1, v{vL}")
        a(f"v_lshl_add_u32 v{vld}, v{vr}, 4, v{vld}")
        a(f"s_mul_i32 s{sA}, s{sW}, {32 * FF * 2}")
        a(f"s_lshl_b32 s{sB}, s{sFT}, 5")
        a(f"s_add_u32 s{sA}, s{sA}, s{sB}")
        a(f"v_add_u32 v{vld}, s{sA}, v{vld}")
        a("s_waitcnt lgkmcnt(0)")
        srd(a, SRD0, P_W1, 0, DM * FF * 2)
        for j in range(5):
            a(f"s_add_u32 m0, s{sE}, {j * 4096}")
            a(f"s_mov_b32 s{sOP}, {j * 128 * FF * 2}")
            a(f"buffer_load_dwordx4 v{vld}, s[{SRD0}:{SRD0 + 3}], s{sOP} offen lds")
        mark(a, 1)
        srd_ws(a, SRD1, "W1F", W1F_SIZE)
        a(f"s_mov_b32 s{sKD}, 1")
        a(f"s_branch {name}_gen")

    REG = 5248

    def pro_wc():
        vld, va0, va1, va2, vo, vt, LD, ST = 4, 5, 6, 7, 8, 9, 12, 52
        a(f"s_bfe_u32 s{sA}, s{sT}, 0x20001")
        a(f"s_lshl_b32 s{sC}, s{sA}, 7")
        a(f"s_lshr_b32 s{sA}, s{sT}, 5")
        a(f"s_lshl_b32 s{sA}, s{sA}, 9")
        a(f"s_add_u32 s{sC}, s{sC}, s{sA}")
        a(f"s_and_b32 s{sA}, s{sT}, 8")
        a(f"s_lshl3_add_u32 s{sC}, s{sA}, s{sC}")
        a(f"s_and_b32 s{sA}, s{sT}, 16")
        a(f"s_add_u32 s{sC}, s{sC}, s{sA}")
        a(f"s_and_b32 s{sA}, s{sT}, 1")
        a(f"s_lshl3_add_u32 s{sC}, s{sA}, s{sC}")
        a(f"s_and_b32 s{sA}, s{sW}, 2")
        a(f"s_lshl4_add_u32 s{sC}, s{sA}, s{sC}")
        a(f"s_mul_i32 s{sC}, s{sC}, 642")
        a(f"s_add_u32 s{sD}, s{sC}, 4096")
        a(f"v_lshlrev_b32 v{vld}, 4, v{vL}")
        a(f"s_mul_i32 s{sE}, s{sW}, {REG}")
        a(f"s_mov_b32 s{SRD0 + 2}, {SEQ * 642}")
        a(f"s_mov_b32 s{SRD0 + 3}, 0x20000")
        a(f"s_mov_b32 m0, s{sE}")
        a(f"s_bitcmp1_b32 s{sW}, 0")
        a("s_waitcnt lgkmcnt(0)")
        a(f"s_cselect_b32 s{SRD0}, s{P_WI}, s{P_WR}")
        a(f"s_cselect_b32 s{SRD0 + 1}, s{P_WI + 1}, s{P_WR + 1}")
        a(f"s_and_b32 s{SRD0 + 1}, s{SRD0 + 1}, 0xffff")
        for j in range(4):
            a(f"buffer_load_dwordx4 v{vld}, s[{SRD0}:{SRD0 + 3}], s{sC} offen offset:{j * 1024}{PC.fl_ld} lds")
        a(f"s_add_u32 m0, s{sE}, 4096")
        a(f"buffer_load_dwordx4 v{vld}, s[{SRD0}:{SRD0 + 3}], s{sD} offen{PC.fl_ld} lds")
        a("s_mov_b64 exec, 1")
        a(f"buffer_load_dwordx4 v{vld}, s[{SRD0}:{SRD0 + 3}], s{sD} offen offset:1024{PC.fl_ld} lds")
        a("s_mov_b64 exec, -1")
        mark(a, 1)
        if PC.fused and PC.fill:
            fill(a, order, vo, ST)
        srd_ws(a, SRD1, "WC", WC_SIZE)
        a(f"v_bfe_u32 v{vt}, v{vL}, 3, 1")
        a(f"v_lshlrev_b32 v{vt}, 2, v{vt}")
        a(f"v_add_u32 v{vt}, v{vt}, v{vG}")
        a(f"s_cmp_lt_u32 s{sW}, 2")
        a(f"s_cselect_b32 s{sK0}, 1, -1")
        a(f"s_mul_i32 s{sA}, s{sK0}, 80")
        a(f"s_mul_i32 s{sB}, s{sK0}, 40")
        a(f"v_mul_i32_i24 v{va0}, s{sA}, v{vt}")
        a(f"v_and_b32 v{vt}, 7, v{vL}")
        a(f"v_mul_u32_u24 v{va1}, 642, v{vt}")
        a(f"v_add_u32 v{va0}, v{va0}, v{va1}")
        a(f"s_mul_i32 s{sK1}, s{sW}, 5")
        a(f"s_sub_u32 s{sK2}, 325, s{sK1}")
        a(f"s_cmp_lt_u32 s{sW}, 2")
        a(f"s_cselect_b32 s{sK2}, s{sK1}, s{sK2}")
        a(f"s_lshl_b32 s{sK2}, s{sK2}, 1")
        a(f"v_add_u32 v{va0}, s{sK2}, v{va0}")
        a(f"v_add_u32 v{va1}, s{sB}, v{va0}")
        a(f"v_cmp_gt_u32 vcc, 8, v0")
        a(f"v_add_u32 v{va2}, 640, v{va0}")
        a(f"v_cndmask_b32 v{va2}, v{va0}, v{va2}, vcc")
        a(f"v_lshrrev_b32 v{vo}, 3, v{vL}")
        a(f"v_lshlrev_b32 v{vo}, 14, v{vo}")
        a(f"v_lshl_add_u32 v{vo}, v{vt}, 4, v{vo}")
        a(f"s_lshl_b32 s{sA}, s{sT}, 7")
        a(f"s_lshr_b32 s{sB}, s{sW}, 1")
        a(f"s_lshl_b32 s{sB}, s{sB}, 17")
        a(f"s_add_u32 s{sA}, s{sA}, s{sB}")
        a(f"v_add_u32 v{vo}, s{sA}, v{vo}")
        a(f"s_sub_u32 s{sK2}, s{sK1}, 5")
        a(f"s_cmp_lt_u32 s{sW}, 2")
        a(f"s_cselect_b32 s{sK1}, s{sK1}, s{sK2}")
        a(f"s_waitcnt vmcnt({fill_count(order)})")
        if PC.warm:
            for ch, ptr in (("1", P_W1), ("2", P_W2)):
                if ch not in order:
                    srd(a, SRD4, ptr, 0, DM * FF * 2)
                    touch(a, vld, (0, 1 << 21))
            a(f"s_getpc_b64 s[{SRD4}:{SRD4 + 1}]")
            a.label(f"{name}_cur", keep=True)
            a(f"s_and_b32 s{SRD4 + 1}, s{SRD4 + 1}, 0xffff")
            a(f"s_mov_b32 s{SRD4 + 2}, text_last-{name}_cur")
            a(f"s_mov_b32 s{SRD4 + 3}, 0x20000")
            touch(a, vld, (0,), 3 if PC.warm_all else 0)
        for nm in PC.touch_ws:
            srd_ws(a, SRD4, nm, H_SIZE)
            a(f"v_lshlrev_b32 v{vld}, 7, v0")
            for off in (0, 1 << 22):
                a(f"s_lshl_b32 s{sOP}, s{sT}, 15")
                a(f"s_add_u32 s{sOP}, s{sOP}, {off}")
                a(f"buffer_load_dword v{vld}, s[{SRD4}:{SRD4 + 3}], s{sOP} offen{PC.fl_t} lds")
        a("s_barrier")
        mark(a, 3)
        for n in range(5):
            for rl in range(2):
                for ph in range(2):
                    ad = va1 if ph else (va2 if n == 0 else va0)
                    for ar in range(2):
                        a(f"ds_read_u16 v{LD + n * 8 + (rl * 2 + ph) * 2 + ar}, v{ad} offset:{(rl * 2 + ar) * REG + 2 * n}")
        for n in range(5):
            for k in range(4):
                a(f"v_lshl_or_b32 v{ST + 4 * n + k}, v{LD + n * 8 + 2 * k + 1}, 16, v{LD + n * 8 + 2 * k}")
            if n == 0:
                a(f"s_cmp_eq_u32 s{sK1}, 10")
                a(f"s_cselect_b32 s{sOP}, 0, s{sK1}")
                a(f"s_lshl_b32 s{sOP}, s{sOP}, 18")
            else:
                a(f"s_add_i32 s{sK1}, s{sK1}, s{sK0}")
                a(f"s_lshl_b32 s{sOP}, s{sK1}, 18")
            a(f"buffer_store_dwordx4 {V(ST + 4 * n, 4)}, v{vo}, s[{SRD1}:{SRD1 + 3}], s{sOP} offen{PC.fl_c}")
        a(f"s_branch {name}_end")

    pros = {"x": pro_x, "1": pro_w1, "a": pro_w1, "2": pro_w2, "c": pro_wc}
    if "a" in order:
        assert start["a"] % 8 == 0
        start["a"] -= CNT["1"]
    lds = SCRATCH + 256
    for ch in lay:
        if ch != lay[0]:
            a.label(f"{name}_p{ch}")
        if start[ch]:
            a(f"s_sub_i32 s{sT}, s2, {start[ch]}")
        if ch in pros:
            pros[ch]()
        else:
            lds = max(lds, ext[ch](a))
            a(f"s_branch {name}_end")
    if not KINDS:
        a.label(f"{name}_end")
        a.label(f"{name}_last")
        return lds

    a.label(f"{name}_gen")
    a(f"s_mov_b32 s{sSC}, {fx(SCALE)}")
    if PC.xscale:
        a(f"s_cmp_eq_u32 s{sKD}, 0")
        a(f"s_cselect_b32 s{sSC}, {fx(SCALE * 2.0 ** PC.xscale)}, s{sSC}")
    a(f"v_bfe_u32 v{TMP}, v{vI}, 1, 1")
    a(f"v_lshlrev_b32 v{TMP}, 4, v{TMP}")
    a(f"v_mov_b32 v{TMP + 1}, 0xffff")
    a(f"v_lshlrev_b32 v{TMP}, v{TMP}, v{TMP + 1}")
    a(f"v_lshrrev_b32 v{TMP + 1}, 2, v{vI}")
    for k in range(4):
        a(f"v_cmp_eq_u32 vcc, {k}, v{TMP + 1}")
        a(f"v_cndmask_b32 v{MK + k}, 0, v{TMP}, vcc")
    a(f"v_and_b32 v{M2}, 1, v{vI}")
    a(f"v_cvt_f32_u32 v{vph}, v{M2}")
    a(f"v_mul_f32 v{vph}, 0.5, v{vph}")
    a(f"v_lshrrev_b32 v{vk0}, 1, v{vI}")
    a(f"v_cvt_f32_u32 v{vk0}, v{vk0}")
    a(f"v_mul_f32 v{vk0}, {fx(1 / 32)}, v{vk0}")
    a(f"v_cvt_f32_u32 v{vgf}, v{vG}")

    def gen_a1(base, fq, ph):
        t = TMP
        a(f"v_fma_f32 v{t}, v{vgf}, v{fq}, {ph}")
        for j in range(1, 5):
            a(f"v_fmamk_f32 v{t + j}, v{fq}, {fx(4.0 * j)}, v{t}")
        for j in range(5):
            a(f"v_cos_f32 v{t + j}, v{t + j}")
        for j in range(5):
            a(f"v_mul_f32 v{t + j}, s{sSC}, v{t + j}")
        for j in range(5):
            a(f"v_cvt_pk_bf16_f32 v{t + j}, v{t + j}, v{t + j}")
        for j in range(5):
            for k in range(4):
                a(f"v_and_b32 v{base + 4 * j + k}, v{MK + k}, v{t + j}")

    def angles(kf, ph):
        t = TMP
        a(f"v_mul_f32 v{t + 8}, v{vgf}, v{kf}")
        a(f"v_fma_f32 v{t}, v{t + 8}, 2.0, v{ph}")
        for k in range(1, 8):
            c = 16 * (k >> 2) + 8 * ((k >> 1) & 1) + (k & 1)
            a(f"v_fmamk_f32 v{t + k}, v{kf}, {fx(float(c))}, v{t}")

    def addresses(kind):
        if kind == "w1":
            a(f"v_and_b32 v{vr}, 1, v{vG}")
            a(f"v_lshlrev_b32 v{vr}, 7, v{vr}")
            a(f"v_lshl_add_u32 v{vr}, v{vG}, 10, v{vr}")
            a(f"v_lshl_add_u32 v{vr}, v{vI}, 3, v{vr}")
            a(f"v_xor_b32 v{vr + 1}, 128, v{vr}")
        else:
            a(f"v_and_b32 v{vr}, 4, v{vI}")
            a(f"v_lshlrev_b32 v{vr}, 1, v{vr}")
            a(f"v_xor_b32 v{vr}, v{vr}, v{vI}")
            a(f"v_lshlrev_b32 v{vr + 1}, 2, v{vG}")
            a(f"v_xor_b32 v{vr}, v{vr}, v{vr + 1}")
            a(f"v_lshlrev_b32 v{vr}, 4, v{vr}")
            a(f"v_lshl_add_u32 v{vr}, v{vI}, 8, v{vr}")
            for k in (1, 2, 3):
                a(f"v_xor_b32 v{vr + k}, {16 * k}, v{vr}")
        if kind == "x":
            a(f"v_and_b32 v{vld}, 1, v{vI}")
            a(f"v_lshl_add_u32 v{vo}, v{vG}, 1, v{vld}")
            a(f"v_lshlrev_b32 v{vo}, 14, v{vo}")
            a(f"v_and_b32 v{vld}, 14, v{vI}")
            a(f"v_lshl_add_u32 v{vo}, v{vld}, 3, v{vo}")
            a(f"s_lshl_b32 s{sA}, s{sQ}, 18")
            a(f"s_lshl_b32 s{sB}, s{sT}, 7")
            a(f"s_mov_b32 vcc_lo, 0x55555555")
            a(f"s_mov_b32 vcc_hi, 0x55555555")
        elif kind == "w1" and PC.w1frag:
            a(f"v_lshlrev_b32 v{vo}, 4, v{vL}")
            a(f"s_lshl_b32 s{sA}, s{sQ}, 11")
            a(f"s_mul_i32 s{sB}, s{sFT}, 20480")
        elif kind == "w1":
            a(f"v_mul_u32_u24 v{vo}, {W1F_STR}, v{vG}")
            a(f"v_lshl_add_u32 v{vo}, v{vI}, 4, v{vo}")
            a(f"s_mul_i32 s{sA}, s{sQ}, {8 * W1F_STR}")
            a(f"s_lshl_b32 s{sB}, s{sFT}, 8")
        else:
            a(f"v_lshrrev_b32 v{vo}, 1, v{vG}")
            a(f"v_mul_u32_u24 v{vo}, {KB_STR}, v{vo}")
            a(f"v_lshrrev_b32 v{vld}, 2, v{vI}")
            a(f"v_lshl_add_u32 v{vo}, v{vld}, 7, v{vo}")
            a(f"v_and_b32 v{vld}, 3, v{vI}")
            a(f"v_lshl_add_u32 v{vo}, v{vld}, 4, v{vo}")
            a(f"v_and_b32 v{vld}, 1, v{vG}")
            a(f"v_lshl_add_u32 v{vo}, v{vld}, 6, v{vo}")
            a(f"s_lshl_b32 s{sA}, s{sQ}, 10")
            a(f"s_mul_i32 s{sB}, s{sT}, {2 * KB_STR}")
        a(f"s_add_u32 s{sA}, s{sA}, s{sB}")
        a(f"v_add_u32 v{vo}, s{sA}, v{vo}")

    def reads(kind):
        mark(a, 2)
        a("s_waitcnt vmcnt(0)")
        a("s_barrier")
        mark(a, 3)
        for beta in range(4):
            for j in range(5):
                if kind == "w1":
                    for eh in range(2):
                        a(f"ds_read_b64_tr_b16 {R(frag(beta, j) + 2 * eh, 2)}, v{vr + eh} offset:{4096 * j + 256 * beta}")
                else:
                    a(f"ds_read_b128 {R(frag(beta, j), 4)}, v{vr + beta} offset:{4096 * j}")

    def stage1(sc, n, extra=None):
        for beta in range(4):
            c = 4 * n + beta
            acc = ACC1 + 4 * (c % 4)
            for j in range(5):
                sc.mfma(acc, A1 + 20 * n + 4 * j, frag(beta, j), None if j == 0 else acc,
                        needs=[("y", c - 4)] if j == 0 and c >= 4 else [])
            rdy = sc.n + 5
            if extra:
                extra(beta, acc, rdy, ("y", c))
            for h in range(2):
                sc.add(f"v_cvt_pk_bf16_f32 v{Y + 2 * c + h}, v{acc + 2 * h}, v{acc + 2 * h + 1}", rdy, ("y", c))

    par = {"even": True}
    QP = "quad_perm:[1,0,3,2] row_mask:0xf bank_mask:0xf"

    def stage2(kind, sc, n, u, mat, acc, needs, fix=None):
        for tl in range(2):
            for kp in range(2):
                d = acc + 4 * tl
                m, y = mat + (tl * 2 + kp) * 4, Y + 8 * n + 4 * kp
                nd = list(needs) + [("y", 4 * n + 2 * kp), ("y", 4 * n + 2 * kp + 1)]
                if kind == "w2":
                    sc.mfma(d, y, m, None if kp == 0 else d, needs=nd)
                else:
                    sc.mfma(d, m, y, None if kp == 0 else d, needs=nd)
        rdy, key = sc.n + 3, ("o", n, u)
        if fix:
            fix(rdy, key)
        for k in range(4):
            sc.add(f"v_cvt_pk_bf16_f32 v{acc + k}, v{acc + 2 * k}, v{acc + 2 * k + 1}", rdy, key)
        if kind == "x":
            for ph in range(2):
                lo = par["even"]
                for k in range(2):
                    if lo:
                        sc.add(f"v_cndmask_b32_dpp v{acc + 4 + k}, v{acc + 2 + k}, v{acc + k}, vcc {QP}", rdy, key)
                    else:
                        sc.add(f"v_cndmask_b32_dpp v{acc + 6 + k}, v{acc + k}, v{acc + 2 + k}, vcc {QP}", rdy, key)
                if ph == 0:
                    sc.add("s_not_b64 vcc, vcc", rdy, key)
                    par["even"] = not lo

            def st():
                a(f"s_mov_b32 s{sOP}, {(16 * n + 8 * u) * XP_STR}")
                a(f"buffer_store_dwordx4 {V(acc + 4, 4)}, v{vo}, s[{SRD1}:{SRD1 + 3}], s{sOP} offen{PC.fl_x}")
            sc.add(st, rdy, key)
        elif kind == "w1":
            def st():
                a(f"s_mov_b32 s{sOP}, {(2 * n + u) * 1024 if PC.w1frag else (8 * n + 4 * u) * W1F_STR}")
                a(f"buffer_store_dwordx4 {V(acc, 4)}, v{vo}, s[{SRD1}:{SRD1 + 3}], s{sOP} offen{fl_w}")
            sc.add(st, rdy, key)
        else:
            sc.add(f"v_permlane16_swap_b32 v{acc}, v{acc + 2}", rdy, key)
            sc.add(f"v_permlane16_swap_b32 v{acc + 1}, v{acc + 3}", rdy, key)
            sc.add(f"buffer_store_dwordx4 {V(acc, 4)}, v{vo}, s[{SRD1}:{SRD1 + 3}], 0 offen offset:{1024 * n + 512 * u}{PC.fl_w2}",
                   rdy, key)

    def dispatch(pre):
        for kind in KINDS[1:]:
            a(f"s_cmp_eq_u32 s{sKD}, {kind[-1]}")
            a(f"s_cbranch_scc1 {pre}_{kind}")

    a(f"s_cmp_eq_u32 s{sW}, 3")
    a(f"s_cbranch_scc1 {name}_sp")

    a(f"s_mul_i32 s{sQ}, s{sW}, 3")
    a(f"s_add_u32 s{sQ}, s{sQ}, 1")
    a(f"v_mul_f32 v{vph}, 0.5, v{vph}")
    a(f"v_cvt_f32_u32 v{vq20}, s{sQ}")
    a(f"v_fmamk_f32 v{vk0}, v{vq20}, {fx(1 / 640)}, v{vk0}")
    a(f"v_mul_f32 v{vq20}, {fx(1 / 20)}, v{vq20}")
    a(f"v_mul_u32_u24 v{M2}, 0x8000, v{M2}")
    a(f"v_lshl_or_b32 v{M2}, v{M2}, 16, v{M2}")
    a(f"v_xor_b32 v{M2N}, {SIGN2:#x}, v{M2}")
    a(f"v_and_b32 v{M1}, 1, v{vG}")
    a(f"v_mul_u32_u24 v{M1}, 0x8000, v{M1}")
    a(f"v_lshl_or_b32 v{M1}, v{M1}, 16, v{M1}")
    for n in range(3):
        if n:
            a(f"v_add_f32 v{vk0}, {fx(1 / 640)}, v{vk0}")
            a(f"v_add_f32 v{vq20}, {fx(1 / 20)}, v{vq20}")
        gen_a1(A1 + 20 * n, vq20, f"v{vph}")
        angles(vk0, vph)
        for k in range(8):
            a(f"v_sin_f32 v{TMP + 8 + k}, v{TMP + k}")
            a(f"v_cos_f32 v{TMP + k}, v{TMP + k}")
        b = A2 + 16 * n
        for k in range(8):
            a(f"v_cvt_pk_bf16_f32 v{b + k}, v{TMP + k}, v{TMP + 8 + k}")
            if k & 1:
                a(f"v_cvt_pk_bf16_f32 v{b + 8 + k}, -v{TMP + 8 + k}, v{TMP + k}")
        for k in range(8):
            a(f"v_xor_b32 v{b + 8 + k}, v{M1}, v{b + (8 if k & 1 else 0) + k}")
    dispatch(f"{name}_t")
    for kind in KINDS:
        if kind != KINDS[0]:
            a.label(f"{name}_t_{kind}")
        par["even"] = True
        addresses(kind)
        reads(kind)
        sc = Sched(a)
        for n in range(3):
            stage1(sc, n)
            for k in range(16):
                sc.add(f"v_xor_b32 v{A1 + 20 * n + k}, v{M2N if k & 1 else M2}, v{A2 + 16 * n + k}", sc.n, ("d", n))
        mark(a, 4)
        bufs = [ACCX, ACC1, ACC1 + 8]
        hist = [[], [("y", 8), ("y", 9)], [("y", 10), ("y", 11)]]
        for k in range(6):
            n, u = divmod(k, 2)
            needs = hist[k] if k < 3 else [("o",) + divmod(k - 3, 2)]
            if u:
                needs = needs + [("d", n)]
            stage2(kind, sc, n, u, A1 + 20 * n if u else A2 + 16 * n, bufs[k % 3], needs)
        sc.flush()
        a(f"s_branch {name}_end")

    a.label(f"{name}_sp")
    a(f"s_mov_b32 s{sQ}, 0")
    gen_a1(A1, vph, "0")
    a(f"v_mul_f32 v{vph}, 0.5, v{vph}")
    kf, ph = vq20, M1
    for tau in range(4):
        if tau == 0:
            a(f"v_cmp_eq_u32 vcc, 0, v{vI}")
            a(f"v_mov_b32 v{kf}, 0.5")
            a(f"v_cndmask_b32 v{kf}, v{vk0}, v{kf}, vcc")
            a(f"v_cmp_gt_u32 vcc, 2, v{vI}")
            a(f"v_mov_b32 v{ph}, {fx(0.125)}")
            a(f"v_cndmask_b32 v{ph}, v{vph}, v{ph}, vcc")
        else:
            a(f"v_add_f32 v{kf}, {fx(tau / 4 + (10 / 640 if tau >= 2 else 0))}, v{vk0}")
            a(f"v_mul_f32 v{ph}, {'-1.0' if tau >= 2 else '1.0'}, v{vph}")
        angles(kf, ph)
        for k in range(8):
            a(f"v_cos_f32 v{TMP + k}, v{TMP + k}")
        for k in range(8):
            d = A2 + 8 * tau + k
            a(f"v_cvt_pk_bf16_f32 v{d}, v{TMP + k}, 0" if tau < 2 else f"v_cvt_pk_bf16_f32 v{d}, 0, v{TMP + k}")
    dispatch(f"{name}_s")
    X0 = A2 + 32
    vs, vz, vb, GR, SM, T = X0, X0 + 1, X0 + 2, X0 + 4, X0 + 8, X0 + 12
    TR = A1 + 20
    DIAG = (4, 6, 30, 70)
    for kind in KINDS:
        if kind != KINDS[0]:
            a.label(f"{name}_s_{kind}")
        par["even"] = True
        addresses(kind)
        if kind == "x":
            srd_ws(a, SRD2, "SS0", 2 * SS_SIZE)
            if PC.fused:
                srd_ws(a, SRD3, "SS2", SS2_SIZE + FLAG_SIZE)
            else:
                srd_ws(a, SRD3, "FLAG", FLAG_SIZE)
            a(f"s_lshr_b32 s{sA}, s{sT}, 4")
            a(f"s_lshl_b32 s{sA}, s{sA}, 10")
            a(f"s_and_b32 s{sB}, s{sT}, 7")
            a(f"s_lshl_b32 s{sB}, s{sB}, 7")
            a(f"s_add_u32 s{sA}, s{sA}, s{sB}")
            a(f"s_and_b32 s{sB}, s{sT}, 8")
            a(f"s_add_u32 s{sA}, s{sA}, s{sB}")
            a(f"v_lshrrev_b32 v{vs}, 1, v{vI}")
            a(f"v_lshlrev_b32 v{vs}, 4, v{vs}")
            a(f"v_lshl_add_u32 v{vs}, v{M2}, 2, v{vs}")
            a(f"v_lshl_add_u32 v{vs}, v{vG}, 20, v{vs}")
            a(f"v_add_u32 v{vs}, s{sA}, v{vs}")
            a(f"v_mov_b32 v{vz}, 0")
            a(f"s_lshl_b32 s{sA}, s{sT}, {10 if PC.fused else 8}")
            a(f"v_lshl_add_u32 v{vb}, v{vL}, {4 if PC.fused else 2}, s{sA}")
            if PC.fused:
                for k in range(4):
                    a(f"v_mov_b32 v{T + k}, 0")
            a(f"s_mov_b32 s{sOQ}, {WS['SS2'] - WS['SS0']}")
            for r in range(4):
                m = 0x1000010000100001 << r
                a(f"s_mov_b32 s{DIAG[r]}, {m & 0xffffffff:#x}")
                a(f"s_mov_b32 s{DIAG[r] + 1}, {m >> 32:#x}")
        if kind == "w1":
            srd(a, SRD2, P_B1, 0, FF * 2)
            a(f"s_lshl_b32 s{sA}, s{sFT}, 5")
            a(f"v_lshl_add_u32 v{vs}, v{vI}, 1, s{sA}")
            a(f"buffer_load_ushort v{vb}, v{vs}, s[{SRD2}:{SRD2 + 3}], 0 offen")
            a(f"s_mov_b64 s[{sM0}:{sM1}], 0xffff")
        w2t = kind == "w2" and PC.w2t_in
        if w2t:
            srd_ws(a, SRD2, "W2T", W2T_SIZE)
            a(f"v_bfe_u32 v{vz}, v{vI}, 1, 1")
            a(f"v_lshl_add_u32 v{vz}, v{vG}, 1, v{vz}")
            a(f"v_lshrrev_b32 v{vb}, 2, v{vI}")
            a(f"v_xor_b32 v{vz}, v{vz}, v{vb}")
            a(f"v_lshlrev_b32 v{vz}, 4, v{vz}")
            a(f"v_lshl_add_u32 v{vz}, v{vb}, 8, v{vz}")
            a(f"v_lshl_add_u32 v{vz}, v{M2}, 3, v{vz}")
            a(f"v_xor_b32 v{vb}, {1024 + 64}, v{vz}")
            a(f"s_mul_i32 s{sA}, s{sT}, {2 * KB_STR}")
            a(f"v_lshl_add_u32 v{vs}, v{vL}, 4, s{sA}")
        reads(kind)
        if kind == "x" and PC.fused:
            a(f"buffer_store_dwordx4 {V(T, 4)}, v{vb}, s[{SRD3}:{SRD3 + 3}], 0 offen")
        elif kind == "x":
            a(f"buffer_store_dword v{vz}, v{vs}, s[{SRD2}:{SRD2 + 3}], s{sOQ} offen")
            a(f"buffer_store_dword v{vz}, v{vb}, s[{SRD3}:{SRD3 + 3}], 0 offen")
        sc = Sched(a)

        def tr_read(n):
            h, x = divmod(n, 10)
            return [f"ds_read_b64_tr_b16 {V(TR + 4 * (n % 10) + 2 * eh, 2)}, v{vz + eh} "
                    f"offset:{(x >> 1) * 4096 + h * 2048 + 128 * ((x ^ h ^ eh) & 1)}" for eh in range(2)]

        def tr_store(n):
            def f():
                if n % 4 == 0:
                    a(f"s_mov_b32 s{sOQ}, {n * 1024}")
                a(f"buffer_store_dwordx4 {V(TR + 4 * (n % 10), 4)}, v{vs}, s[{SRD2}:{SRD2 + 3}], s{sOQ} offen offset:{(n % 4) * 1024}{PC.fl_w}")
            return f

        if w2t:
            for n in range(10):
                for op in tr_read(n):
                    a(op)

        def sums(beta, acc, rdy, key):
            sc.add(f"v_add_f32 v{SM + beta}, v{acc}, v{acc + 2}", rdy, key)

        stage1(sc, 0, sums if kind == "x" else None)
        if kind == "x":
            for k in range(10):
                sc.mfma(GR, DAT + 4 * k, DAT + 4 * k, None if k == 0 else GR)

        def fix(rdy, key):
            sc.add(f"v_lshlrev_b32 v{vb}, 16, v{vb}", rdy, key)
            sc.add(f"v_cndmask_b32_e64 v{ACCX + 1}, v{ACCX + 1}, v{vb}, s[{sM0}:{sM1}]", rdy, key)

        if w2t:
            sc.flush()
            for n in range(10):
                tr_store(n)()
                for op in tr_read(n + 10):
                    a(op)
        stage2(kind, sc, 0, 0, A2, ACCX, [], fix if kind == "w1" else None)
        stage2(kind, sc, 0, 1, A2 + 16, ACC1, [("y", 0), ("y", 1)])
        if w2t:
            for n in range(10, 20):
                tr_store(n)()
        if kind == "x":
            sc.add(f"v_add_f32 v{SM}, v{SM}, v{SM + 1}")
            sc.add(f"v_add_f32 v{SM + 2}, v{SM + 2}, v{SM + 3}")
            sc.add(f"v_add_f32 v{SM}, v{SM}, v{SM + 2}")
            for op in ("v_permlane32_swap_b32", "v_permlane16_swap_b32"):
                sc.add(f"v_mov_b32 v{SM + 1}, v{SM}")
                sc.add(f"{op} v{SM}, v{SM + 1}")
                sc.add(f"v_add_f32 v{SM}, v{SM}, v{SM + 1}")
            if PC.xscale:
                sc.add(f"v_mul_f32 v{SM}, {fx(2.0 ** -PC.xscale)}, v{SM}")
            sc.add(f"v_mul_f32 v{SM}, v{SM}, v{SM}")
            for k in range(10, 20):
                sc.mfma(GR, DAT + 4 * k, DAT + 4 * k, GR)
        sc.flush()
        if kind == "x":
            for r in range(4):
                prev = "0" if r == 0 else f"v{T}"
                a(f"v_cndmask_b32_e64 v{T}, {prev}, v{GR + r}, s[{DIAG[r]}:{DIAG[r] + 1}]")
            for op in ("v_permlane32_swap_b32", "v_permlane16_swap_b32"):
                a(f"v_mov_b32 v{T + 1}, v{T}")
                a(f"{op} v{T}, v{T + 1}")
                a(f"v_add_f32 v{T}, v{T}, v{T + 1}")
            a(f"v_fmamk_f32 v{T}, v{SM}, {fx(-1.0 / (model2.SC * model2.SC * DM))}, v{T}")
            a(f"v_max_f32 v{T}, 0, v{T}")
            a(f"buffer_store_dword v{T}, v{vs}, s[{SRD2}:{SRD2 + 3}], 0 offen")
        if kind != KINDS[-1]:
            a(f"s_branch {name}_end")
    a.label(f"{name}_end")
    a.label(f"{name}_last")
    return lds
```

```python
from gen import *
import gen
import p0
import model2
from p0 import Sched, fx
from asmlib import TRANS

GELU_K0 = -2.0 * 0.7978845608028654 * 1.4426950408889634
EPS = 1e-5
SPIN_MAX = 1 << 14
NCOL = 160
TILE = 20480
LDS_X = 7 * TILE
LDS_RED = 5 * TILE
HINT = (4096, 4096 + 32768)
PX = 4096 + 24576
S_LO, S_X = -97, (-24, 24)
UP = [s - S_LO for s in S_X]
T_X = [2.0 ** (d - 127) for d in UP]
T_H, H_OFF = T_X[0], -2.0 ** -40

SRDQ, SRDF, SRDW, SRDP = 8, 12, SRD4, SRD5
sDC, sRP, sHO, sTB = 16, 17, 18, 19
sRB, sMM, sFL, sCNT, sGA, sGB = 96, 97, 98, 99, 100, 101
sMSK, sCQ = 26, 27
vW, vo, vp = 10, 11, 15
WR, NW, NP = 256, 8, 11
aPO = WR
aST, aDUM, vdc = 256 + 252, 256 + 253, 256 + 254
NS = 14


class FZ:
    look = 10
    pre_p = (6, 11)
    burst = ((4, 0), (10, 0))
    period = (90, 90)
    stop = ("x2", "x2")
    hint_at = ("x1", "x1")
    po_every = 5
    cap = 10
    row = 70
    srow = 120
    lat = 750
    dbl = (12, 15)
    xc_at = 1
    b_pre = 0
    pure = (2, 1)
    in_b = (5, 3)
    in_e = 5
    g2pk = (1, 1)
    qdel = (1300, 1300)
    qc_rem = 7
    split0 = 1
    ktail = 3
    rd_at = (("b", 1), ("b", 8))
    x3 = (("g", 3), ("g", 6), ("g", 8))
    res_at = ("g", 7)
    ebar = 1
    e_ok = 17
    marks = None
    clk = 0
    code_pf = 1
    halt = 0
    verbose = 0


class Marks:
    def __init__(self):
        self.names, self.pend = [], []

    def __call__(self, a, name):
        if not Cfg.stamp or FZ.marks is not None and name not in FZ.marks:
            return
        k = len(self.pend)
        assert k < 12, name
        self.pend.append(len(self.names))
        self.names.append(name)
        a(f"{'s_memtime' if FZ.clk else 's_memrealtime'} s[{sST + 2 * k}:{sST + 2 * k + 1}]")

    def stash(self, a, tmp):
        if not self.pend:
            return
        a("s_waitcnt lgkmcnt(0)")
        a(f"v_accvgpr_read_b32 v{tmp}, {R(aST)}")
        for k, lane in enumerate(self.pend):
            a(f"v_writelane_b32 v{tmp}, s{sST + 2 * k}, {lane}")
        a(f"v_writelane_b32 v{tmp}, s{sCNT}, {len(self.names)}")
        self.names.append("#" + self.names[self.pend[-1]])
        assert len(self.names) < 63
        a(f"v_accvgpr_write_b32 {R(aST)}, v{tmp}")
        self.pend = []


mk = Marks()


def preg(u, p):
    return WR + (0 if u == NP else 4 * NW + 20 * (u % (NP + 1))) + 4 * p


def kblock(u):
    return 2 * (14 * (u & 1) + (u >> 1))


def decode(a):
    a(f"s_and_b32 s{sA}, s{sT}, 7")
    a(f"s_lshr_b32 s{sB}, s{sA}, 1")
    a(f"s_lshl_b32 s{sB}, s{sB}, 2")
    a(f"s_bfe_u32 s{sRB}, s{sT}, 0x20003")
    a(f"s_add_u32 s{sRB}, s{sRB}, s{sB}")
    a(f"s_and_b32 s{sA}, s{sA}, 1")
    a(f"s_lshl_b32 s{sA}, s{sA}, 3")
    a(f"s_lshr_b32 s{sMM}, s{sT}, 5")
    a(f"s_add_u32 s{sMM}, s{sMM}, s{sA}")
    a(f"s_lshl_b32 s{sFL}, s{sRB}, 7")
    a(f"s_mov_b32 s{sCNT}, 0")
    for k in range(4):
        a(f"v_accvgpr_write_b32 {R(aPO + k)}, -1")
    if Cfg.stamp:
        a(f"v_accvgpr_write_b32 {R(aST)}, 0")


def pre_setup(a, ph, t0):
    if not ph:
        a(f"s_and_b32 s{sA}, s{sMM}, 3")
        a(f"s_cmp_eq_u32 s{sA}, 3")
        a(f"s_cselect_b32 s{sMSK}, 0x40000000, 0")
        a(f"s_lshr_b32 s{sB}, s{sMM}, 3")
        a(f"s_lshl2_add_u32 s{sDC}, s{sB}, s{sA}")
        a(f"s_mul_i32 s{sTB}, s{sMM}, 7")
        a(f"s_lshr_b32 s{sB}, s{sMM}, 2")
        a(f"s_sub_u32 s{sTB}, s{sTB}, s{sB}")
        a(f"s_mul_i32 s{sE}, s{sW}, {7 * TILE // 4}")
    else:
        a(f"s_mul_i32 s{sE}, s{sW}, {2 * TILE // 4}")
        a(f"s_add_u32 s{sE}, s{sE}, {5 * TILE}")
    a(f"s_mov_b32 m0, s{sE}")
    a(f"v_lshlrev_b32 v{vW}, 4, v{vL}")
    a(f"s_mul_i32 s{sA}, s{sTB}, {TILE}")
    a(f"s_add_u32 s{sA}, s{sA}, {WS['W1F']}")
    a(f"s_add_u32 s{SRDW}, s{P_WS}, s{sA}")
    a(f"s_addc_u32 s{SRDW + 1}, s{P_WS + 1}, 0")
    a(f"s_and_b32 s{SRDW + 1}, s{SRDW + 1}, 0xffff")
    a(f"s_mov_b32 s{SRDW + 2}, {7 * TILE}")
    a(f"s_mov_b32 s{SRDW + 3}, 0x20000")
    a(f"v_lshrrev_b32 v{vo}, 1, v{vG}")
    a(f"v_and_b32 v{t0}, 1, v{vG}")
    if not ph:
        a(f"v_mad_u32_u24 v{vp}, v{vo}, 14, v{t0}")
        a(f"v_mul_u32_u24 v{vp}, {KB_STR}, v{vp}")
        a(f"v_lshl_add_u32 v{vp}, v{vI}, 4, v{vp}")
        a(f"s_mul_i32 s{sA}, s{sDC}, 1280")
        a(f"s_mul_i32 s{sB}, s{sW}, {54 * KB_STR}")
        a(f"s_add_u32 s{sA}, s{sA}, s{sB}")
        a(f"v_add_u32 v{vp}, s{sA}, v{vp}")
    a(f"v_lshlrev_b32 v{vo}, 15, v{vo}")
    a(f"v_lshl_add_u32 v{vo}, v{vI}, 5, v{vo}")
    a(f"v_lshl_add_u32 v{vo}, v{t0}, 4, v{vo}")
    a(f"s_lshl_b32 s{sA}, s{sTB}, 16")
    a(f"s_lshl4_add_u32 s{sA}, s{sFL}, s{sA}")
    a(f"s_lshl_b32 s{sB}, s{sW}, 9")
    a(f"s_add_u32 s{sA}, s{sA}, s{sB}")
    a(f"v_add_u32 v{vo}, s{sA}, v{vo}")
    if ph:
        a(f"s_add_u32 s{SRDP}, s{SRDP}, {WS['W2T'] - WS['WA2']}")
        a(f"s_addc_u32 s{SRDP + 1}, s{SRDP + 1}, 0")
    else:
        a(f"v_add_u32 v{t0}, s{sMSK}, v{vo}")
        srd_ws(a, SRDP, "WA2", 218 * KB_STR)
        a(f"s_add_u32 s{sA}, s{sW}, 1")
        a(f"s_mul_i32 s{sA}, s{sA}, {54 * KB_STR}")
        a(f"s_cmp_eq_u32 s{sW}, 3")
        a(f"s_cselect_b32 s{SRDP + 2}, s{SRDP + 2}, s{sA}")
        srd_ws(a, SRDF, "FLAG", FLAG_SIZE)
        srd_ws(a, SRDQ, "H", H_SIZE)


def pre_ops(ph, t0):
    po, ops = [], []
    for k in range(0 if ph else 7):
        po.append([f"s_mov_b32 s{sOQ}, {k * 2 * H_STR}",
                   f"buffer_store_dwordx4 {R(aPO, 4)}, v{t0 if k == 6 else vo}, s[{SRDQ}:{SRDQ + 3}], s{sOQ} offen sc1"])
    n = 10 if ph else 35
    for k in range(n):
        g = [f"buffer_load_dwordx4 v{vW}, s[{SRDW}:{SRDW + 3}], m0 offen offset:{(k & 3) * 1024} lds"]
        if k & 3 == 3:
            g.append("s_add_u32 m0, m0, 4096")
        ops.append(g)
    for u in range(FZ.pre_p[ph]):
        for p in range(5):
            g = [f"buffer_load_dwordx4 {R(preg(u, p), 4)}, v{vp}, s[{SRDP}:{SRDP + 3}], s{sOP} offen offset:{p * 256}"]
            ops.append(([f"s_mov_b32 s{sOP}, {kblock(u) * KB_STR}"] if p == 0 else []) + g)
    out = []
    for k, op in enumerate(ops):
        out.append(op)
        if k % FZ.po_every == FZ.po_every - 1 and po:
            out.append(po.pop(0))
    assert not po
    return out


class Paced:
    def __init__(self, a, ops, period):
        self.a, self.ops, self.period = a, ops, period
        self.on = False
        self.t = 0

    def burst(self, n):
        for _ in range(min(n, len(self.ops))):
            for x in self.ops.pop(0):
                self.a(x)

    def __call__(self, text, tag=None):
        self.a(text, tag)
        if self.on:
            op = text.split()[0]
            self.t += 16 if op.startswith("v_mfma") else 8 if op in TRANS else 4
            if self.t >= self.period:
                self.t -= self.period
                self.burst(1)

    def __getattr__(self, n):
        return getattr(self.a, n)


def budget(a, out):
    a(f"s_add_u32 s{sCNT}, s{sCNT}, 1")
    a(f"s_cmp_ge_u32 s{sCNT}, {SPIN_MAX}")
    a(f"s_cbranch_scc1 {out}")


def col_phase(a0, ph):
    vx, vw, vl0, vt0, vh = 4, 5, 6, 12, 13
    raw, ss, wraw = 16, 32, 40
    M1, M2 = 56, 88
    T1, T2 = 120, 136
    ACC, FO, TMP, WU0 = 152, 184, 200, 232
    vmI, fi, fg, fa, fb = 176, 177, 178, 179, 180
    SL = ACC
    FGR = [TMP + 4 * k for k in range(8)] + [ss, ss + 4, 248, 252]
    WU = (WU0, T1)
    a = Paced(a0, pre_ops(ph, vt0), FZ.period[ph])
    nm = f"c{ph + 1}"

    def point(name):
        mk(a0, nm + name)
        if name == FZ.hint_at[ph]:
            a0(f"buffer_store_dword v{vh}, v{vh}, s[{SRDF}:{SRDF + 3}], 0 offen sc1")
        if name == FZ.stop[ph]:
            a.on = False

    a(f"s_mul_i32 s{sB}, s{sW}, 3072")
    a(f"v_lshlrev_b32 v{vl0}, 4, v0")
    a(f"v_add_u32 v{vx}, s{sB}, v{vl0}")
    if not ph:
        a(f"s_lshl_b32 s{sB}, s{sW}, 10")
        a(f"v_add_u32 v{vw}, s{sB}, v{vl0}")
    a(f"s_lshl_b32 s{sF}, s{sT}, 14")
    a(f"v_add_u32 v{vl0}, {LDS_X}, v{vl0}")

    def data_loads(e):
        if ph:
            for k in range(4):
                e(f"buffer_load_dwordx4 {V(raw + 4 * k, 4)}, v{vx}, s[{SRD0}:{SRD0 + 3}], s{sF} offen offset:{k * 1024} sc1")
            for k in range(4):
                e(f"buffer_load_dwordx3 {V(SL + 4 * k, 3)}, v{vx}, s[{SRD1}:{SRD1 + 3}], 0 offen offset:{k * 1024} sc1")
        else:
            for t in range(2):
                e(f"buffer_load_dwordx4 {V(ss + 4 * t, 4)}, v{vw}, s[{SRD1}:{SRD1 + 3}], 0 offen offset:{t * 1024}")
            for k in range(4):
                e(f"buffer_load_dwordx4 {V(raw + 4 * k, 4)}, v{vx}, s[{SRD0}:{SRD0 + 3}], s{sF} offen offset:{k * 1024} sc1")

    def early_loads():
        if not ph:
            a("s_waitcnt lgkmcnt(0)")
            srd_ws(a, SRD0, "XP0", XP_SIZE)
            srd_ws(a, SRD1, "SS0", SS_SIZE)
            data_loads(a)
        srd_ws(a, SRD2, "WC", WC_SIZE)
        for k in range(4):
            a(f"buffer_load_dwordx4 {V(wraw + 4 * k, 4)}, v{vx}, s[{SRD2}:{SRD2 + 3}], s{sF} offen offset:{k * 1024}")
        point("ld")
        pre_setup(a, ph, vt0)
        a(f"s_lshl_b32 s{sA}, s{sT}, 7")
        a(f"s_add_u32 s{sA}, s{sA}, {HINT[ph]}")
        a(f"v_lshl_add_u32 v{vh}, v0, 20, s{sA}")
        if ph:
            a("s_barrier")
        a.burst(FZ.burst[ph][0])
        a.on = not ph

    def pos(base, k, c):
        return base + (k >> 1) * 4 + (k & 1) * 2 + c

    if ph:
        early_loads()
    for kk in (1, 2, 3):
        a(f"v_xor_b32 v{vl0 + kk}, {kk * 1024}, v{vl0}")
    a(f"v_and_b32 v{vmI}, 1, v{vI}")
    a(f"v_mul_u32_u24 v{vmI}, 0x8000, v{vmI}")
    a(f"v_lshl_or_b32 v{vmI}, v{vmI}, 16, v{vmI}")
    a(f"v_cvt_f32_u32 v{fi}, v{vI}")
    a(f"v_lshlrev_b32 v{fg}, 2, v{vG}")
    a(f"v_cvt_f32_u32 v{fg}, v{fg}")

    def m1(qb, t, var):
        return M1 + ((qb * 2 + t) * 2 + var) * 4

    def m2(kk, var):
        return M2 + (kk * 2 + var) * 4

    a(f"v_mul_f32 v{fa}, {fx(1 / 32)}, v{fi}")
    a(f"v_mul_f32 v{TMP}, v{fg}, v{fa}")
    for jj in range(1, 4):
        a(f"v_fmamk_f32 v{TMP + 3 * jj}, v{fa}, {fx(float(jj))}, v{TMP}")
    for jj in range(4):
        t = TMP + 3 * jj
        a(f"v_cos_f32 v{t + 1}, v{t}")
        a(f"v_sin_f32 v{t + 2}, v{t}")
    for jj in range(4):
        t = TMP + 3 * jj
        n = "-" if jj & 1 else ""
        m = "" if jj & 1 else "-"
        a(f"v_cvt_pk_bf16_f32 v{m1(0, 0, 0) + jj}, v{t + 1}, v{t + 2}")
        a(f"v_cvt_pk_bf16_f32 v{m1(0, 0, 1) + jj}, -v{t + 2}, v{t + 1}")
        a(f"v_cvt_pk_bf16_f32 v{m1(1, 0, 0) + jj}, {n}v{t + 1}, {n}v{t + 2}")
        a(f"v_cvt_pk_bf16_f32 v{m1(1, 0, 1) + jj}, {m}v{t + 2}, {n}v{t + 1}")
    for qb in range(2):
        for var in range(2):
            for jj in range(4):
                a(f"v_xor_b32 v{m1(qb, 1, var) + jj}, v{vmI}, v{m1(qb, 0, var) + jj}")

    a(f"s_lshl_b32 s{sK0}, s{sW}, 4")
    a(f"v_cvt_f32_u32 v{fb}, s{sK0}")
    a(f"v_add_f32 v{TMP + 24}, v{fb}, v{fg}")
    a(f"v_add_f32 v{fb}, v{fb}, v{fi}")
    a(f"v_mul_f32 v{TMP + 25}, {fx(1 / 2048)}, v{fi}")
    a(f"v_add_f32 v{TMP + 26}, {fx(16 / 2048)}, v{TMP + 25}")
    for r in range(4):
        a(f"v_add_f32 v{TMP + r}, {fx(float(r))}, v{TMP + 24}")
    for qb in range(2):
        for r in range(4):
            t = TMP + 4 + (qb * 4 + r)
            a(f"v_mul_f32 v{t}, v{TMP + r}, v{TMP + 25 + qb}")
            a(f"v_cos_f32 v{T1 + qb * 8 + r}, v{t}")
            a(f"v_sin_f32 v{T1 + qb * 8 + 4 + r}, v{t}")
    if not ph:
        early_loads()

    a(f"v_mul_f32 v{fa}, {fx(1 / 64)}, v{fb}")
    a(f"s_xor_b32 s{sK0}, s{sK0}, 16")
    a(f"v_cvt_f32_u32 v{TMP + 24}, s{sK0}")
    a(f"v_add_f32 v{TMP + 24}, v{TMP + 24}, v{fg}")
    for kk in range(2):
        for r in range(4):
            t = TMP + 12 + 3 * r
            if kk == 0:
                a(f"v_mul_f32 v{t}, v{TMP + r}, v{fa}")
            else:
                a(f"v_add_f32 v{t}, {fx(float(r))}, v{TMP + 24}")
                a(f"v_mul_f32 v{t}, v{t}, v{fa}")
            a(f"v_cos_f32 v{t + 1}, v{t}")
            a(f"v_sin_f32 v{t + 2}, v{t}")
        for r in range(4):
            t = TMP + 12 + 3 * r
            a(f"v_cvt_pk_bf16_f32 v{m2(kk, 0) + r}, v{t + 1}, v{t + 2}")
            a(f"v_cvt_pk_bf16_f32 v{m2(kk, 1) + r}, -v{t + 2}, v{t + 1}")
    for kk in range(2):
        for var in range(2):
            for r in range(4):
                a(f"v_xor_b32 v{m2(kk + 2, var) + r}, v{vmI}, v{m2(kk, var) + r}")

    if ph:
        point("cs")
        a.wait_tag("out")
        point("dr")
        data_loads(a)
        a.burst(FZ.burst[ph][1])
        mk.stash(a0, TMP)

    a(f"v_mul_f32 v{fa}, {fx(1 / 2048)}, v{fb}")
    a(f"v_mul_f32 v{TMP}, v{fg}, v{fa}")
    for k in range(1, 8):
        a(f"v_fmamk_f32 v{TMP + k}, v{fa}, {fx(float(16 * (k >> 2) + (k & 3)))}, v{TMP}")
    for k in range(8):
        u, r = divmod(k, 4)
        a(f"v_cos_f32 v{T2 + u * 8 + r}, v{TMP + k}")
        a(f"v_sin_f32 v{T2 + u * 8 + 4 + r}, v{TMP + k}")

    a0(f"s_mov_b32 s{sK1}, 0xffff0000")
    a0(f"s_cmp_eq_u32 s{sT}, 0")
    a0(f"s_cselect_b32 s{sK2}, 0, s{sK1}")
    a0(f"s_mov_b32 s{sK0}, {fx(-1 / 2048)}")
    a0(f"s_cselect_b32 s{sK3}, 0, s{sK0}")
    a(f"s_mov_b32 s{sA}, {fx(1 / DM)}")
    a(f"s_mov_b32 s{sB}, {fx(1 / 2048)}")
    a(f"s_mov_b32 s{sC}, {UP[ph] * 0x800080:#x}")
    a(f"v_mov_b32 v{fa}, {fx(1e-5)}")
    point("k")
    if ph:
        def test(e):
            e(f"v_max3_f32 v{fi}, |v{raw}|, |v{raw + 2}|, |v{raw + 4}|")
            e(f"v_max3_f32 v{fb}, |v{raw + 6}|, |v{raw + 8}|, |v{raw + 10}|")
            e(f"v_max3_f32 v{fi}, v{fi}, |v{raw + 12}|, |v{raw + 14}|")
            e(f"v_max_f32 v{fi}, v{fi}, v{fb}")
            e(f"v_min3_f32 v{fg}, v{SL + 2}, v{SL + 6}, v{SL + 10}")
            e(f"v_min_f32 v{fg}, v{fg}, v{SL + 14}")
            e(f"v_fmamk_f32 v{fg}, v{fi}, {fx(-8 / T_X[0])}, v{fg}")
            e(f"v_cmp_gt_f32 vcc, {fx(7.5)}, v{fg}")

        def var_ops(e):
            for k in range(8):
                e(f"v_fma_f32 v{ss + k}, v{SL + 4 * (k >> 1) + (k & 1)}, s{sA}, v{fa}")

        test(a0)
        var_ops(a0)
        a0(f"s_cbranch_vccnz {nm}_again", tag="nopad")
        a0.label(f"{nm}_ok", keep=True)

        def again():
            a0.label(f"{nm}_again")
            budget(a0, f"{nm}_ok")
            data_loads(a0)
            a0("s_waitcnt vmcnt(0)")
            test(a0)
            var_ops(a0)
            a0(f"s_cbranch_vccnz {nm}_again")
            a0(f"s_branch {nm}_ok")
        a0.tail.append(again)
        a.on = True
    else:
        for k in range(8):
            a(f"v_fma_f32 v{ss + k}, v{ss + k}, s{sA}, v{fa}")
    for k in range(8):
        a(f"v_rsq_f32 v{ss + k}, v{ss + k}")

    def acc(c, b, var):
        return ACC + c * 16 + (b * 2 + var) * 4

    def fo(c, b):
        return FO + c * 8 + b * 4

    def unpack(dst_, base, c, mask):
        ops = []
        for k in range(8):
            ops.append(f"v_lshlrev_b32 v{dst_ + 2 * k}, 16, v{pos(base, k, c)}")
            ops.append(f"v_and_b32 v{dst_ + 2 * k + 1}, s{mask}, v{pos(base, k, c)}")
        return ops

    def unpack_w(c):
        ops = []
        for k in range(8):
            u, r = divmod(k, 4)
            ops.append(f"v_lshlrev_b32 v{WU[c] + u * 8 + r}, 16, v{pos(wraw, k, c)}")
            ops.append(f"v_and_b32 v{WU[c] + u * 8 + 4 + r}, s{sK1}, v{pos(wraw, k, c)}")
        return ops

    def scale(c):
        t = TMP + 16 * c
        for k in range(8):
            h = k & 1
            a(f"v_pk_mul_f32 {V(t + 2 * k, 2)}, {V(t + 2 * k, 2)}, {V(ss + k - h, 2)} op_sel:[0,{h}] op_sel_hi:[1,{h}]")
        for k in range(8):
            a(f"v_cvt_pk_bf16_f32 v{fo(c, 0) + k}, v{t + 2 * k}, v{t + 2 * k + 1}")

    sc = Sched(a)

    def stage_a(c):
        for t in range(2):
            for qb in range(2):
                for var in range(2):
                    sc.mfma(acc(c, qb, var), fo(c, t), m1(qb, t, var), None if t == 0 else acc(c, qb, var))
        sc.flush()

    for op in unpack(TMP, raw, 0, sK2):
        a(op)
    scale(0)
    point("s0")
    for op in unpack(TMP + 16, raw, 1, sK1):
        sc.add(op)
    stage_a(0)
    scale(1)
    for op in unpack_w(0):
        sc.add(op)
    stage_a(1)
    point("a")

    def mm(c, b, var, f, kk, data_is_a):
        cc = None if kk == 0 else acc(c, b, var)
        if data_is_a:
            sc.mfma(acc(c, b, var), f, m2(kk, var), cc)
        else:
            sc.mfma(acc(c, b, var), m2(kk, var), f, cc)

    def exchange(n, data_is_a, cm, fill_own, fill_rest):
        for c in range(2):
            for b in range(2):
                cm(c, b)
                if n == 2 and c == b == 0:
                    a("s_barrier")
                a(f"ds_write_b128 v{vl0}, {V(fo(c, b), 4)} offset:{(c * 2 + b) * 4096}")
        a("s_waitcnt lgkmcnt(0)")
        a("s_barrier")
        point(f"b{n}")
        for c in range(2):
            for kk in (1, 2, 3):
                for b in range(2):
                    f = FGR[(c * 3 + kk - 1) * 2 + b]
                    a(f"ds_read_b128 {R(f, 4)}, v{vl0 + kk} offset:{(c * 2 + b) * 4096}")
        for op in fill_own:
            sc.add(op)
        for c in range(2):
            for b in range(2):
                for var in range(2):
                    mm(c, b, var, fo(c, b), 0, data_is_a)
        for op in fill_rest:
            sc.add(op)
        for c in range(2):
            for kk in (1, 2, 3):
                for b in range(2):
                    for var in range(2):
                        mm(c, b, var, FGR[(c * 3 + kk - 1) * 2 + b], kk, data_is_a)
        sc.flush()
        point(f"x{n}")

    def cm1(c, b):
        cmul_pack(a, fo(c, b), acc(c, b, 0), acc(c, b, 1), T1 + b * 8, T1 + b * 8 + 4, TMP + 8 * (2 * c + b))

    def cm2(c, b):
        cmul_pack(a, fo(c, b), acc(c, b, 0), acc(c, b, 1), WU[c] + b * 8, WU[c] + b * 8 + 4, TMP + 8 * (2 * c + b),
                  conj_w=True)

    exchange(1, False, cm1, unpack_w(1), [])
    exchange(2, True, cm2, unpack(WU[0], raw, 0, sK1), unpack(WU[1], raw, 1, sK1))
    for c in range(2):
        for u in range(2):
            cmul_pack(a, fo(c, u), acc(c, u, 0), acc(c, u, 1), T2 + u * 8, T2 + u * 8 + 4, TMP + 8 * (2 * c + u))
    while any("lds" in g[0] or "store" in g[-1] for g in a.ops):
        a.burst(1)
    a.on = False
    for t in range(2):
        for c in range(2):
            for u in range(2):
                for var in range(2):
                    sc.mfma(acc(c, t, var), m1(t, u, var), fo(c, u), None if u == 0 else acc(c, t, var))
        rdy = sc.n + 2
        for rh in range(2):
            for c in range(2):
                for rl in range(2):
                    k = 4 * t + 2 * rh + rl
                    w = WU[c] + 2 * k
                    sc.add(f"v_fma_f32 v{w}, v{acc(c, t, 0) + 2 * rh + rl}, s{sB}, v{w}", rdy)
                    sc.add(f"v_fma_f32 v{w + 1}, v{acc(c, t, 1) + 2 * rh + rl}, s{sK0 if c else sK3}, v{w + 1}", rdy)
            for c in range(2):
                for rl in range(2):
                    k = 4 * t + 2 * rh + rl
                    w = WU[c] + 2 * k
                    sc.add(f"v_cvt_pk_bf16_f32 v{pos(raw, k, c)}, v{w}, v{w + 1}", rdy)
            k = 2 * t + rh
            for j in range(4):
                sc.add(f"v_add_u32 v{raw + 4 * k + j}, s{sC}, v{raw + 4 * k + j}", rdy)
            sc.add(f"buffer_store_dwordx4 {V(raw + 4 * k, 4)}, v{vx}, s[{SRD0}:{SRD0 + 3}], s{sF} offen offset:{k * 1024} sc1", rdy)
    sc.flush()
    point("st")
    n = len(a.ops)
    print(f"{nm}: {n} requests after the stores", file=sys.stderr)
    a.burst(n)
    mk.stash(a0, TMP)
    return n


def idle_phase(a, ph):
    nm = f"n{ph + 1}"
    vt0, vh = 12, 13
    if not ph:
        a("s_waitcnt lgkmcnt(0)")
        if FZ.code_pf:
            srd_code(a, SRD1, "mk_kernel")
            a(f"s_sub_u32 s{sA}, s{sT}, {NCOL}")
            a(f"s_lshr_b32 s{sA}, s{sA}, 3")
            a(f"s_lshl_b32 s{sA}, s{sA}, 14")
            a(f"v_lshl_add_u32 v{vh}, v0, 6, s{sA}")
            a(f"buffer_load_dword {R(aDUM)}, v{vh}, s[{SRD1}:{SRD1 + 3}], 0 offen")
        srd_ws(a, SRD0, "XP0", XP_SIZE)
    pre_setup(a, ph, vt0)
    if ph:
        a("s_barrier")
    for g in pre_ops(ph, vt0):
        for x in g:
            a(x)
    mk(a, nm + "is")
    a(f"v_mul_u32_u24 v{vh}, 5, v{vL}")
    a(f"v_lshrrev_b32 v{vh}, 1, v{vh}")
    a(f"v_lshlrev_b32 v{vh}, 7, v{vh}")
    a(f"s_mov_b32 s{sOP}, {HINT[ph]}")
    a("s_waitcnt vmcnt(0)")
    mk(a, nm + "dn")
    mk.stash(a, 16)
    a(f"s_cmp_lg_u32 s{sW}, 0")
    a(f"s_cbranch_scc1 {nm}_ok")
    a.label(f"{nm}_spin")
    a(f"buffer_load_dword v{vt0}, v{vh}, s[{SRDF}:{SRDF + 3}], s{sOP} offen sc1")
    budget(a, f"{nm}_ok")
    a(f"v_cmp_eq_u32 vcc, 0, v{vt0}")
    a(f"s_cbranch_vccnz {nm}_spin")
    a.label(f"{nm}_ok")
    a("s_barrier")


def classify(text):
    o = text.split()[0]
    if o.startswith("v_pk_") or o.startswith("v_dot2"):
        return "p", 4
    if o in TRANS or o.startswith("v_swap") or o.startswith("v_permlane"):
        return "v", 8
    if o.startswith("v_"):
        return "v", 4
    if o.startswith("ds_"):
        return "d", 4
    if o.startswith("buffer_"):
        return "b", 4
    if o.startswith("s_cbranch"):
        return "j", 10
    return "s", 4


class Item:
    def __init__(self, kind, cost, fn, key=None, gate=None, until=None, alt=None):
        self.kind, self.cost, self.fn, self.key, self.gate, self.until, self.alt = kind, cost, fn, key, gate, until, alt


class Slots:
    def __init__(self, a):
        self.a = a
        self.t, self.tM, self.tv, self.tc = 0, -100, -100, -100
        self.done, self.eta = {}, {}
        self.C, self.L, self.M, self.G = [], [], [], []
        self.fly = []
        self.feed = []
        self.pk = True
        self.stall = 0

    def item(self, op, key=None, gate=None, tag=None):
        k, c = classify(op)

        def fn():
            if op.startswith("v_cmp"):
                self.tc = self.t
            self.a(op, tag=tag)
        return Item(k, c, fn, key, gate)

    def mem(self, key, store=False, part=1.0):
        last = self.fly[-1] if self.fly else 0
        self.fly.append(max(self.t + FZ.lat, last + part * (FZ.srow if store else FZ.row)))
        self.eta[key] = self.fly[-1]

    def inflight(self):
        return sum(1 for x in self.fly[-FZ.cap - 4:] if x > self.t)

    def run(self, it):
        if it.kind in "db":
            self.t = max(self.t, self.tv + 12)
        elif it.kind == "p":
            self.t = max(self.t, self.tM + 28)
        elif it.kind == "j":
            self.t = max(self.t, self.tc + 26)
        if it.kind in "vp":
            self.tv = self.t
        it.fn()
        self.t += it.cost
        if it.until is not None and self.eta.get(it.until, 0) > self.t:
            self.stall += self.eta[it.until] - self.t
            self.t = self.eta[it.until]
        if it.key is not None:
            self.done[it.key] = self.t

    def ready(self, it):
        if it.kind == "j" and self.t < self.tc + 26:
            return False
        return it.gate is None or it.gate()

    def expand(self):
        while self.G and self.G[0].kind == "p" and not self.pk and self.G[0].alt:
            self.G[:1] = self.G[0].alt

    def heads(self, q, room, small):
        out = []
        for it in q:
            if it.kind == "p" or not self.ready(it) or it.cost > room or small and it.cost > 4:
                break
            if it.kind in "db" and any(x.kind == "v" for x in out) or it.kind == "j" and out:
                break
            out.append(it)
            room -= it.cost
        return out

    def place(self, picks):
        seqs = []
        for q, n in picks:
            seqs.append(q[:n])
            del q[:n]
        rank = lambda s: 0 if any(x.kind in "db" for x in s) else 2 if any(x.kind == "v" for x in s) else 1
        seqs.sort(key=lambda s: (rank(s), any(x.kind == "v" or x.until is not None for x in s)))
        for s in seqs:
            for it in s:
                self.run(it)

    def fill(self, room, streams, small=False):
        picks = []
        for q in streams:
            h = self.heads(q, room, small)
            if h:
                picks.append((q, len(h)))
                room -= sum(x.cost for x in h)
        return picks, room

    def mf(self, d, x, y, c, wait=None, urgent=False):
        self.t = self.tM = max(self.t, self.tM + 16)
        mfma(self.a, d, x, y, c)
        self.t += 8
        for f in self.feed:
            f()
        self.expand()
        W = [wait] if wait else []
        n = next((k for k, it in enumerate(self.G[:5]) if it.kind == "p"), None)
        if n is not None and self.pk:
            pre = self.G[:n + 1]
            cost = sum(x.cost for x in pre[:-1])
            if cost <= 16 and all(self.ready(x) and x.kind in "vps" for x in pre):
                picks, room = self.fill(20 - cost, (W, self.C, self.L, self.M), small=True)
                self.place(picks)
                while self.G and (n > 0 or self.G[0].kind == "p" and self.ready(self.G[0])):
                    self.run(self.G.pop(0))
                    n -= 1
                if self.G and self.G[0].kind in "vs" and self.G[0].until is None and self.ready(self.G[0]):
                    self.run(self.G.pop(0))
                else:
                    self.t += 4
                return
        if not W and self.C and self.C[0].cost >= 8 and self.ready(self.C[0]):
            self.run(self.C.pop(0))
            return
        picks, room = self.fill(8, (W, self.C, self.L, self.M, self.G), small=True)
        must = W or urgent or any(q is self.C for q, _ in picks)
        if room and not must and self.G and self.G[0].cost == 8 and self.ready(self.G[0]):
            self.run(self.G.pop(0))
            return
        self.place(picks)

    def need(self, key):
        while key not in self.done:
            q = next(q for q in (self.C, self.L, self.M, self.G) if any(it.key == key for it in q))
            self.run(q.pop(0))

    def pure(self, key):
        while key not in self.done:
            it = self.G.pop(0)
            self.run(it)
            if it.cost == 8:
                for f in self.feed:
                    f()
                picks, _ = self.fill(8, (self.M, self.L, self.C), small=True)
                self.place(picks)

    def flush(self):
        for q in (self.L, self.M, self.C, self.G):
            while q:
                self.run(q.pop(0))


def mlp_phase(a, final, behind):
    name = f"m{final + 1}"
    vx, vl0, vx2, vck, ve, vfl = 4, 5, 8, 9, 12, 14
    vq = (13, 4, 8, 10)
    X, ACC1, Z, vpl, vmk, CC = 16, 176, 232, 248, 249, 250
    GR, T = Z, Z + 8
    ACC2, EACC = 96, 176
    DIAG = (4, 6, 30, 70)
    sKC, sRS = sK0, sK2
    vo2, vs, vout, vor, vrd = 200, 201, 202, 203, 204
    vred = (5, 6, 7)
    RES, RU, TMP = 208, 218, 244
    QS = (16, 32, 48, 64, 80, 176)
    QD = len(QS)
    SRDX, SRDH = SRD0, SRD3
    s = Slots(a)
    done = s.done
    act = {}
    log, sst, tested = [], {}, set()

    def fine(*key):
        if FZ.marks is not None:
            mk(a, name + key[0] + str(key[1]))
        for f in act.pop(key, ()):
            f()

    def at(key, f):
        act.setdefault(tuple(key), []).append(f)

    def note(tag):
        mk(a, name + tag)
        print(f"{name}{tag:4s} t={s.t:6.0f} stall={s.stall:.0f}", file=sys.stderr)

    def qreg(u, q):
        return QS[u % QD] + 4 * q

    def put(q, op, key=None, gate=None):
        q.append(s.item(op, key, gate))

    def vm(q, text, sreg=None, sexp=None, key=None, tag=None, again=True, gate=None, part=1.0):
        if sreg is not None and sst.get(sreg) != sexp:
            put(q, sexp.replace("@", f"s{sreg}"), gate=gate)
            sst[sreg] = sexp

        def emit():
            a(text.replace("@", f"s{sreg}"), tag=tag)
            log.append((key, text if again else None, sexp))
            s.mem(key, "store" in text, part)
        q.append(Item("b", 4, emit, key, gate))

    def wait_item(key, regs):
        return Item("s", 4, lambda: a.wait_regs(*regs), until=key)

    def lower(regs, thr):
        ops, r = [], [f"|v{x}|" for x in regs]
        while len(r) > 1:
            n = min(3, len(r))
            ops.append(f"{'v_min3_f32' if n == 3 else 'v_min_f32_e64'} v{vck}, " + ", ".join(r[:n]))
            r[:n] = [f"v{vck}"]
        return ops + [f"v_cmp_gt_f32 vcc, {fx(thr)}, v{vck}"]

    def unset(regs):
        ops, r = [], [f"v{x}" for x in regs]
        if len(r) > 2:
            n = len(r) - 1
            ops.append(f"{'v_max3_u32' if n == 3 else 'v_max_u32'} v{vck}, " + ", ".join(r[:n]))
            r[:n] = [f"v{vck}"]
        return ops + [f"v_cmp_u_f32 vcc, {r[0]}, {r[1]}"]

    def verify(keys, regs, test, lab, key):
        for k in keys:
            plan(k)

        def branch():
            idx = [k for k, e in enumerate(log) if e[0] in keys]
            rep = log[idx[0]:]
            assert len(idx) == len(keys) and not tested & {e[0] for e in rep}, lab
            tested.update(keys)
            young = len(log) - 1 - idx[-1]
            a(f"s_cbranch_vccnz {lab}_again", tag="nopad")
            a.label(f"{lab}_ok", keep=True)

            def stub():
                a.label(f"{lab}_again")
                a("s_nop 7")
                budget(a, f"{lab}_out")
                a(f"s_waitcnt vmcnt({max(0, 62 - len(rep))})")
                last = None
                for _, text, sexp in rep:
                    if text is None:
                        a.raw(f"    buffer_load_dword {R(aDUM)}, off, s[{SRDP}:{SRDP + 3}], 0")
                        continue
                    if sexp is not None and sexp != last:
                        a(sexp.replace("@", f"s{sRP}"))
                        last = sexp
                    a.raw("    " + text.replace("@", f"s{sRP}"))
                a(f"s_waitcnt vmcnt({young})")
                for x in test:
                    a(x)
                a(f"s_cbranch_vccnz {lab}_again")
                a.label(f"{lab}_out")
                a(f"s_branch {lab}_ok")
            a.tail.append(stub)
        w = wait_item(keys[-1], [V(r, 4) for r in regs])
        f0 = w.fn
        w.fn = lambda: ([s.need(k) for k in keys], f0())
        w.gate = lambda: all(k in done for k in keys)
        s.C.append(w)
        for x in test:
            put(s.C, x)
        s.C.append(Item("j", 10, branch, key))

    def xr(t, st):
        return X + t * 8 + st * 4

    def acc(ft, st):
        return ACC1 + (ft * 2 + st) * 4

    queue, sched = [], set()

    def x_load(t, h):
        return ("x", t, h), lambda key: vm(
            s.M, f"buffer_load_dwordx4 {V(xr(t, h), 4)}, v{vx2 if h else vx}, s[{SRDX}:{SRDX + 3}], @ offen sc1",
            sOQ, f"s_mov_b32 @, {8 * (19 - t) * XP_STR}", key)

    def e_load(j):
        def f(key):
            vm(s.M, f"buffer_load_dwordx4 v{vl0}, s[{SRD4}:{SRD4 + 3}], m0 offen offset:{(j & 3) * 1024} lds",
               key=key, tag="e", again=False)
            if j & 3 == 3:
                put(s.M, "s_add_u32 m0, m0, 4096")
        return ("e", j), f

    def p_load(u, p):
        return ("p", u, p), lambda key: vm(
            s.M, f"buffer_load_dwordx4 {R(preg(u, p), 4)}, v{vp}, s[{SRDP}:{SRDP + 3}], @ offen offset:{p * 256}",
            sF, f"s_mov_b32 @, {kblock(u) * KB_STR}", key)

    def q_load(u, q):
        return ("q", u, q), lambda key: vm(
            s.M, f"buffer_load_dwordx4 {V(qreg(u, q), 4)}, v{vq[q]}, s[{SRDQ}:{SRDQ + 3}], @ offen sc1",
            sOQ, f"s_mov_b32 @, {kblock(u) * H_STR}", key)

    def r_load(p):
        srd_ = SRD2 if final else SRDX
        return ("r", p), lambda key: vm(
            s.M, f"buffer_load_dwordx2 {V(RES + 2 * p, 2)}, v{vo2}, s[{srd_}:{srd_ + 3}], @ offen sc1",
            sOP, f"s_mov_b32 @, {p * 4 * XP_STR}", key, part=0.6)

    def push(item, *gates, after=None, chain=None):
        queue.append((item[0], item[1], gates, after, chain))

    def issue(force=False):
        seen = set()
        for k, (key, f, gates, after, chain) in enumerate(queue):
            ok = all(g in done for g in gates) and chain not in seen
            if ok and after and not force:
                ok = done[after[0]] + after[1] <= s.t
            if ok:
                del queue[k]
                f(key)
                sched.add(key)
                return True
            if chain:
                seen.add(chain)
        return False

    def plan(key):
        while key not in sched:
            assert issue(True), key

    def feed_m():
        if not any(it.kind == "b" for it in s.M) and s.inflight() < FZ.cap:
            issue()
    s.feed.append(feed_m)

    KT = FZ.ktail
    units = [[(u, q) for q in range(4)] for u in range(NS - KT)]
    if FZ.split0:
        units[:1] = [units[0][:2], units[0][2:]]
    units += [[(u, q) for u in range(NS - KT, NS)] for q in (1, 2, 3, 0)]
    xorder = list(range(FZ.dbl[0] + 1)) + [19] + list(range(FZ.dbl[0] + 1, 19))
    for t in xorder:
        push(x_load(t, 0))
        push(x_load(t, 1))
    if final:
        for j in range(15):
            push(e_load(j), "ebar")
    for u in range(FZ.pre_p[final]):
        for p in range(5):
            done[("p", u, p)] = 0
            sched.add(("p", u, p))
    for p in range(5):
        push(r_load(p), "rgo")
    for u, q in [x for un in units for x in un]:
        g = ["qset", ("gelu", u >> 1)] + ([] if final else ["ready"])
        if u >= QD:
            g.append(("qfree", u - QD, q))
        elif u < 5:
            g.append(("xfree", 2 * u + (q >> 1)))
        else:
            g.append("edone" if final else ("s5", 1))
        push(q_load(u, q), *g, after=(("gelu", u >> 1), FZ.qdel[final]), chain="q")
    for u in range(FZ.pre_p[final], NS):
        for p in range(5):
            push(p_load(u, p), *(["xok"] if u < NP else [("xfree", 19)] if u == NP else [("qfree", u - NP - 1, 3)]))

    a(f"s_lshl_b32 s{sC}, s{sRB}, 10")
    a(f"s_lshl_b32 s{sA}, s{sW}, 8")
    a(f"s_add_u32 s{sC}, s{sC}, s{sA}")
    a(f"v_lshlrev_b32 v{vx}, 15, v{vG}")
    a(f"v_lshl_add_u32 v{vx}, v{vI}, 4, v{vx}")
    a(f"v_add_u32 v{vx}, s{sC}, v{vx}")
    a(f"v_add_u32 v{vx2}, {XP_STR}, v{vx}")
    a(f"v_lshlrev_b32 v{vl0}, 4, v{vL}")
    a(f"v_add_u32 v{vl0 + 1}, 0x10000, v{vl0}")
    a(f"v_add_u32 v{vl0 + 2}, 0x20000, v{vl0}")
    a(f"s_mov_b64 s[{SRDH}:{SRDH + 1}], s[{SRDQ}:{SRDQ + 1}]")
    a(f"s_mov_b32 s{SRDH + 2}, {H_SIZE}")
    a(f"s_mov_b32 s{SRDH + 3}, 0x20000")
    a(f"v_cmp_eq_u32 vcc, 0, v{vG}")
    a(f"v_mov_b32 v{vmk}, 0xffff0000")
    a(f"v_cndmask_b32 v{vmk}, 0, v{vmk}, vcc")
    for r in range(4):
        m = 0x1000010000100001 << r
        a(f"s_mov_b32 s{DIAG[r]}, {m & 0xffffffff:#x}")
        a(f"s_mov_b32 s{DIAG[r] + 1}, {m >> 32:#x}")
    a(f"s_bfe_u32 s{sA}, s{sMM}, 0x10002")
    a(f"s_lshl_b32 s{sA}, s{sA}, 6")
    a(f"s_add_u32 s{sCQ}, s{sFL}, s{sA}")
    a(f"s_lshl4_add_u32 s{sD}, s{sW}, s{sCQ}")
    a(f"s_mul_i32 s{sA}, s{sW}, {54 * H_STR}")
    a(f"s_add_u32 s{SRDQ + 2}, s{sA}, {54 * H_STR}")
    a(f"s_lshl4_add_u32 s{sA}, s{sD}, s{sA}")
    a(f"v_lshrrev_b32 v{vq[0]}, 1, v{vG}")
    a(f"v_and_b32 v{vck}, 1, v{vG}")
    a(f"v_mad_u32_u24 v{vq[0]}, v{vq[0]}, 14, v{vck}")
    a(f"v_lshlrev_b32 v{vq[0]}, 15, v{vq[0]}")
    a(f"v_lshl_add_u32 v{vq[0]}, v{vI}, 4, v{vq[0]}")
    a(f"v_add_u32 v{vq[0]}, s{sA}, v{vq[0]}")
    a(f"v_xor_b32 v{vq[3]}, 0x300, v{vq[0]}")
    a(f"s_mov_b32 s{sKC}, {fx(H_OFF)}")
    a(f"s_mov_b32 s{sKC + 1}, {fx(H_OFF)}")
    a(f"s_mov_b32 s{sRS}, {fx(2.0 ** (-S_X[1] if final else -UP[0]))}")
    a(f"s_mov_b32 s{sRS + 1}, 0xffff0000")
    if final:
        srd_table(a, SRD4, "ft2")
        a(f"s_mul_i32 s{sB}, s{sMM}, 5")
        a(f"s_lshr_b32 s{sB}, s{sB}, 1")
        a(f"s_mul_i32 s{sA}, s{sB}, {TILE}")
        a(f"s_add_u32 s{SRD4}, s{SRD4}, s{sA}")
        a(f"s_addc_u32 s{SRD4 + 1}, s{SRD4 + 1}, 0")
        a(f"s_mov_b32 s{SRD4 + 2}, {3 * TILE}")
        a(f"s_mul_i32 m0, s{sW}, {3 * TILE // 4}")
        a(f"s_lshl_b32 s{sA}, s{sB}, 16")
        a(f"s_add_u32 s{sA}, s{sA}, s{sC}")
        a(f"v_lshlrev_b32 v{ve}, 14, v{vG}")
        a(f"v_lshl_add_u32 v{ve}, v{vI}, 4, v{ve}")
        a(f"v_add_u32 v{ve}, s{sA}, v{ve}")
        srd_ws(a, SRD2, "X3", XP_SIZE)
        srd(a, SRD1, P_OUT, 0, SEQ * DM * 2)
        a(f"s_lshl2_add_u32 s{sA}, s{sMM}, s{sW}")
        a(f"s_lshl_b32 s{sA}, s{sA}, 2")
        a(f"s_lshl1_add_u32 s{sA}, s{sFL}, s{sA}")
        a(f"v_lshl_add_u32 v{vpl}, v{vL}, 20, s{sA}")
        a(f"s_bfe_u32 s{sA}, s{sD}, 0x20005")
        a(f"s_lshl3_add_u32 s{sA}, s{sDC}, s{sA}")
        a(f"s_lshl_b32 s{sA}, s{sA}, 2")
        a(f"s_lshl1_add_u32 s{sA}, s{sFL}, s{sA}")
        a(f"v_and_b32 v{vfl}, 1, v{vI}")
        a(f"v_lshl_add_u32 v{vfl}, v{vfl}, 4, s{sA}")
    else:
        srd_ws(a, SRD1, "SS2", SS2_SIZE)
        a(f"s_lshl2_add_u32 s{sA}, s{sMM}, s{sFL}")
        a(f"v_lshl_add_u32 v{vpl}, v0, 20, s{sA}")
        a(f"s_lshl4_add_u32 s{sA}, s{sW}, s{sFL}")
        a(f"v_and_b32 v{vfl}, 3, v{vI}")
        a(f"v_lshl_add_u32 v{vfl}, v{vfl}, 2, s{sA}")
    a.raw(f"    s_waitcnt vmcnt({behind})")
    mk(a, name + "go")
    for _ in range(FZ.look):
        issue()
    s.flush()
    a("s_barrier")
    if not final:
        vm(s.M, f"buffer_store_dword v{vl0 + 1}, v{vpl}, s[{SRDF}:{SRDF + 3}], 0 offen sc1", again=False, part=0.2)
    mk.stash(a, Z)

    TA, TB, TE = (0, 1, 2, 3), (4, 5, 6), (0, 1, 2)
    groups = [("a", TA, t) for t in range(19)] + [("b", TB, t) for t in range(20)]
    groups.insert(19 + FZ.b_pre, ("a", TA, 19))
    if final:
        groups += [("e", TE, t) for t in range(20)]
    seq = [(kind, ft, t) for kind, tl, t in groups for ft in tl]
    rd_ = {"n": 0, "free": 0}

    def wreg(n):
        return WR + (n % NW) * 4

    def feed_l():
        while rd_["n"] < min(rd_["free"] + NW, len(seq)) and len(s.L) < 2:
            kind, ft, t = seq[rd_["n"]]
            if kind == "e" and "e0" not in done:
                return
            off = ft * TILE + (19 - t) * 1024
            put(s.L, f"ds_read_b128 {R(wreg(rd_['n']), 4)}, v{vl0 + (off >> 16)} offset:{off & 0xffff}", ("rd", rd_["n"]))
            rd_["n"] += 1
    s.feed.append(feed_l)

    def rd_need(n):
        while ("rd", n) not in done:
            feed_l()
            if not s.L:
                s.need("e0")
                continue
            s.run(s.L.pop(0))

    def prep_x(ts):
        keys = [("x", t, h) for t in xorder if t in ts for h in range(2)]
        regs = [xr(k[1], k[2]) for k in keys]
        verify(keys, regs, lower(regs, T_X[final]), f"{name}_x{ts[0]}", "xok" if xorder[-1] in ts else None)
        for t in ts:
            ops = [f"v_swap_b32 v{xr(t, 0) + 2}, v{xr(t, 1)}", f"v_swap_b32 v{xr(t, 0) + 3}, v{xr(t, 1) + 1}"]
            if t == 19:
                for st in range(2):
                    if final:
                        ops.append(f"v_accvgpr_write_b32 {R(vdc + st)}, v{xr(t, st)}")
                    ops.append(f"v_bfi_b32 v{xr(t, st)}, v{vmk}, 0, v{xr(t, st)}")
            for op in ops[:-1]:
                put(s.C, op)
            put(s.C, ops[-1], ("sw", t))

    def gram(t, wait=None):
        s.need(("sw", t))
        for st in range(2):
            s.mf(GR + 4 * st, xr(t, st), xr(t, st), None if t == 0 else GR + 4 * st, wait if st else None)

    def stats():
        t0 = s.tM + 40
        ops = []
        for r in range(4):
            for st in range(2):
                prev = "0" if r == 0 else f"v{T + 2 * st}"
                ops.append(f"v_cndmask_b32_e64 v{T + 2 * st}, {prev}, v{GR + 4 * st + r}, s[{DIAG[r]}:{DIAG[r] + 1}]")
        for op in ("v_permlane32_swap_b32", "v_permlane16_swap_b32"):
            ops += [f"v_mov_b32 v{T + 2 * st + 1}, v{T + 2 * st}" for st in range(2)]
            ops += [f"{op} v{T + 2 * st}, v{T + 2 * st + 1}" for st in range(2)]
            ops += [f"v_add_f32 v{T + 2 * st}, v{T + 2 * st}, v{T + 2 * st + 1}" for st in range(2)]
        ops += [f"v_fmamk_f32 v{T + 2 * st}, v{T + 2 * st}, {fx((1 + EPS) / DM)}, v{T + 4}" for st in range(2)]
        ops += [f"v_rsq_f32 v{T + 2 * st + 1}, v{T + 2 * st}" for st in range(2)]
        ops += [f"v_mul_f32 v{CC + 4 + st}, v{T + 2 * st}, v{T + 2 * st + 1}" for st in range(2)]
        ops += [f"v_cvt_pk_bf16_f32 v{T + 2 * st}, v{CC + 4 + st}, v{CC + 4 + st}" for st in range(2)]
        ops += [f"v_bfi_b32 v{xr(19, st)}, v{vmk}, v{T + 2 * st}, v{xr(19, st)}" for st in range(2)]
        late = [f"v_mul_f32 v{CC + st}, {fx(GELU_K0)}, v{T + 2 * st + 1}" for st in range(2)]
        late += [f"v_mul_f32 v{T + 2 * st}, v{T + 2 * st + 1}, v{T + 2 * st + 1}" for st in range(2)]
        late += [f"v_mul_f32 v{T + 2 * st}, {fx(0.044715)}, v{T + 2 * st}" for st in range(2)]
        late += [f"v_mul_f32 v{CC + 2 + st}, v{CC + st}, v{T + 2 * st}" for st in range(2)]
        if not final:
            late += [f"v_mul_f32 v{CC + 4 + st}, {fx(2.0 ** -S_LO)}, v{CC + 4 + st}" for st in range(2)]
        put(s.G, f"v_mov_b32 v{T + 4}, {fx(EPS * EPS * 4.0 ** S_X[final])}")
        put(s.G, f"v_xor_b32 v{vq[1]}, 0x100, v{vq[0]}")
        put(s.G, f"v_xor_b32 v{vq[2]}, 0x200, v{vq[0]}", "qset")
        put(s.G, ops[0], gate=lambda: s.t >= t0)
        for op in ops[1:-1]:
            put(s.G, op)
        put(s.G, ops[-1], "stats")
        for op in late:
            put(s.G, op)

    def poll(key, off):
        lab = f"{name}_{key}"
        text = f"buffer_load_dword v{vmk}, v{vfl}, s[{SRDF}:{SRDF + 3}], @ offen sc1"
        test = f"v_cmp_eq_u32 vcc, 0, v{vmk}"

        def branch():
            a(f"s_cbranch_vccnz {lab}_spin", tag="nopad")
            a.label(f"{lab}_ok", keep=True)

            def spin():
                a.label(f"{lab}_spin")
                a(f"s_mov_b32 s{sRP}, {off}")
                a(text.replace("@", f"s{sRP}"))
                a("s_waitcnt vmcnt(0)")
                budget(a, f"{lab}_ok")
                a(test)
                a(f"s_cbranch_vccnz {lab}_spin")
                a(f"s_branch {lab}_ok")
            a.tail.append(spin)

        def check():
            s.C.append(wait_item(("i", key), [f"v{vmk}"]))
            put(s.C, test)
            s.C.append(Item("j", 10, branch, key))
        return (lambda: vm(s.C, text, sE, f"s_mov_b32 @, {off}", ("i", key), again=False, part=0.2)), check

    if final:
        ix, cx = poll("rgo", PX)

        def signal():
            s.C.append(Item("s", 4, lambda: a.wait_tag("x3"), until="x3"))
            vm(s.C, f"buffer_store_dword v{vl0 + 1}, v{vpl}, s[{SRDF}:{SRDF + 3}], @ offen sc1", sE, f"s_mov_b32 @, {PX}",
               again=False, part=0.2)

        def e_ok():
            plan(("e", 14))
            s.C.append(Item("s", 4, lambda: (s.need(("e", 14)), a.wait_tag("e")), until=("e", 14),
                            gate=lambda: ("e", 14) in done))
            put(s.C, "s_barrier", "e0")
        at(("b", FZ.b_pre + FZ.ebar), lambda: put(s.C, "s_barrier", "ebar"))
        at(("b", FZ.e_ok), e_ok)
        at(FZ.x3[0], signal)
        at(FZ.x3[1], ix)
        at(FZ.x3[2], lambda: (s.need("oset"), cx()))
    else:
        i_, c_ = poll("ready", 0)
        at(FZ.rd_at[0], lambda: (s.need("stats"), i_()))
        at(FZ.rd_at[1], c_)
        at(FZ.res_at, lambda: (s.need("oset"), done.setdefault("rgo", s.t)))

    post = []

    def gelu(ft):
        Zs = Z + 8 * (ft & 1)
        prs = [(acc(ft, st) + h, Zs + st * 4 + h, st) for st in range(2) for h in (0, 2)]
        t0 = s.tM + 40

        def stage(pk, plain, key=None, gate=None):
            for n, (x, z, st) in enumerate(prs):
                k = key if n == 3 else None
                sel = f"op_sel:[0,{st},{st}] op_sel_hi:[1,{st},{st}]"
                it = s.item(pk.format(x=V(x, 2), z=V(z, 2), sel=sel), k, gate)
                it.alt = [s.item(plain.format(x=V(x + e), z=V(z + e), c0=V(CC + st), c2=V(CC + 2 + st), c4=V(CC + 4 + st)),
                                 k if e else None, gate) for e in range(2)]
                s.G.append(it)

        stage("v_pk_mul_f32 {z}, {x}, {x}", "v_mul_f32 {z}, {x}, {x}", gate=lambda: s.t >= t0)
        stage("v_pk_fma_f32 {z}, {z}, %s, %s {sel}" % (V(CC + 2, 2), V(CC, 2)), "v_fma_f32 {z}, {z}, {c2}, {c0}")
        stage("v_pk_mul_f32 {z}, {z}, {x}", "v_mul_f32 {z}, {z}, {x}")
        close()
        for k in range(8):
            put(s.G, f"v_exp_f32 v{Zs + k}, v{Zs + k}")
        stage("v_pk_fma_f32 {z}, {z}, %s, %s {sel}" % (V(CC + 4, 2), V(CC + 4, 2)), "v_fma_f32 {z}, {z}, {c4}, {c4}")
        for k in range(8):
            put(s.G, f"v_rcp_f32 v{Zs + k}, v{Zs + k}")
        if final:
            stage("v_pk_fma_f32 {z}, {z}, {x}, s[%d:%d]" % (sKC, sKC + 1), "v_fma_f32 {z}, {z}, {x}, s%d" % sKC, ("s5", ft))
        else:
            stage("v_pk_mul_f32 {z}, {z}, {x}", "v_mul_f32 {z}, {z}, {x}", ("s5", ft))

        def out():
            for k in range(4):
                put(s.G, f"v_cvt_pk_bf16_f32 v{Zs + k}, v{Zs + 2 * k}, v{Zs + 2 * k + 1}")
            if ft == 6:
                put(s.G, f"v_add_u32 v{vo}, s{sMSK}, v{vo}")
            put(s.G, f"v_permlane16_swap_b32 v{Zs}, v{Zs + 2}")
            put(s.G, f"v_permlane16_swap_b32 v{Zs + 1}, v{Zs + 3}")
            vm(s.G, f"buffer_store_dwordx4 {V(Zs, 4)}, v{vo}, s[{SRDH}:{SRDH + 3}], @ offen sc1", sHO,
               f"s_mov_b32 @, {ft * 2 * H_STR}", ("gelu", ft), again=False)
        post.append(out)

    def close():
        while post:
            post.pop()()

    def out_setup():
        g = lambda op, key=None: put(s.G, op, key)
        g(f"s_mul_i32 s{sGA}, s{sDC}, {20 * XP_STR}")
        g(f"s_lshl3_add_u32 s{sGA}, s{sD}, s{sGA}")
        g(f"v_lshlrev_b32 v{vo2}, 14, v{vG}")
        g(f"v_lshl_add_u32 v{vo2}, v{vI}, 3, v{vo2}")
        g(f"v_add_u32 v{vo2}, s{sGA}, v{vo2}", "oset")
        g(f"v_lshrrev_b32 v{vor}, 1, v{vG}")
        g(f"s_mov_b32 s{sGA}, {0x3f800000 + (0x3f80 if final else (127 + S_LO) << 7):#x}")
        g(f"v_mul_lo_u32 v{vor}, v{vor}, s{sGA}", "vor")
        g(f"s_mul_i32 s{sGA}, s{sW}, 15360")
        g(f"s_add_u32 s{sGA}, s{sGA}, {LDS_RED}")
        g(f"v_lshl_add_u32 v{vrd}, v{vL}, 4, s{sGA}")
        for ql in (1, 2, 3):
            g(f"s_xor_b32 s{sGA}, s{sW}, {ql}")
            g(f"s_mul_i32 s{sGA}, s{sGA}, 15360")
            g(f"s_add_u32 s{sGA}, s{sGA}, {LDS_RED + (ql - 1) * 5120}")
            g(f"v_lshl_add_u32 v{vred[ql - 1]}, v{vL}, 4, s{sGA}")
        if final:
            g(f"s_bfe_u32 s{sGA}, s{sD}, 0x10004")
            g(f"s_lshl_b32 s{sGA}, s{sGA}, 3")
            g(f"s_lshr_b32 s{sGB}, s{sD}, 9")
            g(f"s_lshl4_add_u32 s{sGA}, s{sGB}, s{sGA}")
            g(f"s_bfe_u32 s{sGB}, s{sD}, 0x20005")
            g(f"s_lshl_b32 s{sGB}, s{sGB}, 8")
            g(f"s_add_u32 s{sGA}, s{sGA}, s{sGB}")
            g(f"s_and_b32 s{sGB}, s{sD}, 128")
            g(f"s_add_u32 s{sGA}, s{sGA}, s{sGB}")
            g(f"s_and_b32 s{sGB}, s{sD}, 256")
            g(f"s_lshl2_add_u32 s{sGA}, s{sGB}, s{sGA}")
            g(f"v_and_b32 v{vout}, 1, v{vI}")
            g(f"v_lshlrev_b32 v{vout}, 6, v{vout}")
            g(f"v_lshrrev_b32 v{vs}, 1, v{vI}")
            g(f"v_add3_u32 v{vout}, v{vout}, v{vs}, s{sGA}")
            g(f"v_mul_u32_u24 v{vout}, 1280, v{vout}")
            g(f"s_mul_i32 s{sGA}, s{sDC}, 160")
            g(f"v_lshl_add_u32 v{vout}, v{vG}, 3, v{vout}")
            g(f"v_add_u32 v{vout}, s{sGA}, v{vout}", "setup")
        else:
            g(f"v_lshrrev_b32 v{vs}, 1, v{vI}")
            g(f"v_lshlrev_b32 v{vs}, 4, v{vs}")
            g(f"v_and_b32 v{vout}, 1, v{vI}")
            g(f"v_lshl_add_u32 v{vs}, v{vout}, 2, v{vs}")
            g(f"v_and_b32 v{vout}, 1, v{vG}")
            g(f"v_lshl_add_u32 v{vs}, v{vout}, 3, v{vs}")
            g(f"v_lshrrev_b32 v{vout}, 1, v{vG}")
            g(f"v_lshl_add_u32 v{vs}, v{vout}, 20, v{vs}")
            g(f"s_lshl_b32 s{sGA}, s{sD}, 3")
            g(f"v_add_u32 v{vs}, s{sGA}, v{vs}")
            g(f"v_add_u32 v{vout}, s{sDC}, v{vG}")
            g(f"v_min_u32 v{vout}, 1, v{vout}")
            g(f"v_mul_u32_u24 v{vout}, 0xffff, v{vout}")
            g(f"v_lshlrev_b32 v{vout}, 16, v{vout}")
            g(f"v_or_b32 v{vout}, 0xffff, v{vout}")
            g(f"v_mov_b32 v{TMP + 2}, 0")
            g(f"v_mov_b32 v{TMP + 3}, 0")
            g(f"s_mov_b64 s[{DIAG[0]}:{DIAG[0] + 1}], 0xffff")
            g(f"s_mov_b32 s{sGB}, {-S_LO * 0x800080:#x}", "setup")

    gl, rest = {}, xorder[1:]
    for t in range(19):
        n = 2 if t in FZ.dbl else 1
        gl[t], rest = sorted(rest[:n]), rest[n:]
    rd_need(NW - 1)
    prep_x([0])
    n = 0

    def grp_wait(k):
        nx = sum(len(g[1]) for g in groups[:k + 1]) - 1
        if k >= len(groups):
            return None
        return Item("s", 4, lambda: (rd_need(nx), a.wait_regs(R(wreg(nx), 4))))

    gram(0, grp_wait(0))
    for k, (kind, tl, t) in enumerate(groups):
        fine(kind, t)
        grams = gl.get(t, []) if kind == "a" else []
        if kind == "a" and t == 19:
            s.need("stats")
        if kind == "e" and t == 0:
            s.need(("s5", 2))
            for st in range(2):
                put(s.C, f"v_accvgpr_read_b32 v{xr(19, st)}, {R(vdc + st)}", ("dc", st))
        if kind == "e" and t == 19:
            s.need(("dc", 1))
        hi = sum(len(g[1]) for g in groups[:k + 2])
        for j, ft in enumerate(tl):
            for st in range(2):
                if grams and 2 * j + st == (FZ.xc_at if len(grams) == 1 else 0):
                    prep_x(grams)
                d = (EACC if kind == "e" else ACC1) + (ft * 2 + st) * 4
                last = j == len(tl) - 1 and st and not grams
                if st:
                    rd_["free"] = n + 1
                s.mf(d, wreg(n), xr(t, st), None if t == 0 else d, grp_wait(k + 1) if last else None,
                     urgent=rd_["n"] - len(s.L) < hi)
            n += 1
        for g in grams:
            gram(g, grp_wait(k + 1) if g == grams[-1] else None)
        if grams and xorder[-1] in grams:
            stats()
        if kind == ("e" if final else "b"):
            done[("xfree", t)] = s.t
        if kind == "a" and t == 19:
            note("A")
            for ft in TA:
                gelu(ft)
            close()
            if FZ.pure[final]:
                s.pure(("gelu", FZ.pure[final] - 1))
        if kind == "b" and t == 19:
            for ft in TB:
                gelu(ft)
            close()
            if FZ.in_b[final]:
                s.pure(("gelu", FZ.in_b[final] - 1))
    if final:
        note("E")
        t0 = s.tM + 40
        for et in TE:
            d = EACC + et * 8
            for k in range(4):
                put(s.C, f"v_cvt_pk_bf16_f32 v{d + k}, v{d + 2 * k}, v{d + 2 * k + 1}", gate=lambda: s.t >= t0)
            vm(s.C, f"buffer_store_dwordx4 {V(d, 4)}, v{ve}, s[{SRD2}:{SRD2 + 3}], @ offen sc1",
               sE, f"s_mov_b32 @, {et * 4 * XP_STR}", {1: "edone", 2: "x3"}.get(et), tag="x3", again=False)
        epi, s.C = s.C, []
        s.pure(("gelu", FZ.in_e - 1))
    out_setup()
    s.pk = bool(FZ.g2pk[final])
    mk.stash(a, vck)

    def accr(p, q):
        return ACC2 + (q * 5 + p) * 4

    def q_check(n):
        keys = [("q",) + x for x in units[n]]
        regs = [qreg(*x) for x in units[n]]
        fix = [f"v_or_b32 v{qreg(u, q)}, v{qreg(u, q)}, v{vor}" for u, q in units[n] if u == NS - 1]
        if fix:
            s.need("vor")
        verify(keys, regs, fix + (lower(regs, T_H) if final else unset(regs)), f"{name}_q{n}", ("qok", n))

    def writes(q):
        t0 = s.tM + 40
        s.need("setup")
        for p in range(5):
            put(s.L, f"ds_write_b128 v{vred[q - 1]}, {R(accr(p, q), 4)} offset:{p * 1024}", ("wr", q, p),
                gate=lambda p=p: s.t >= t0 - 16 * (4 - p))

    def reads(q, k):
        for p in range(5):
            put(q, f"ds_read_b128 {R(accr(p, k), 4)}, v{vrd} offset:{(k - 1) * 5120 + p * 1024}")

    def res_ops():
        plan(("r", 4))
        w = wait_item(("r", 4), [V(RES, 10)])
        w.gate = lambda: s.eta.get(("r", 4), 1e9) <= s.t
        f0 = w.fn
        w.fn = lambda: (s.need(("r", 4)), f0())
        s.G.append(w)
        for p in range(5):
            for h in range(2):
                u_, r, d = RU + 2 * h, RES + 2 * p + h, accr(p, 0) + 2 * h
                put(s.G, f"v_lshlrev_b32 v{u_}, 16, v{r}")
                put(s.G, f"v_and_b32 v{u_ + 1}, s{sRS + 1}, v{r}")
                put(s.G, f"v_fmac_f32 v{d}, s{sRS}, v{u_}")
                put(s.G, f"v_fmac_f32 v{d + 1}, s{sRS}, v{u_ + 1}", ("res", p) if h else None)

    q_check(0)
    if final:
        if FZ.split0:
            q_check(1)
        s.C += epi
    seen = set()
    for n, un in enumerate(units):
        tailq = un[0][1] if len({u for u, _ in un}) > 1 or KT == 1 and un[0][0] == NS - 1 else None
        s.need(("qok", n))
        left = 5 * len(un)
        if tailq == 1:
            res_ops()
        if tailq == 0:
            s.need(("wr", 2, 4))
            put(s.C, "s_waitcnt lgkmcnt(0)")
            put(s.C, "s_barrier", "bar1")
            s.need("bar1")
            writes(3)
            reads(s.L, 1)
            reads(s.L, 2)
        elif tailq is not None and tailq > 1:
            writes(tailq - 1)
        for u, q in un:
            if u not in seen:
                fine("g", u)
                if u == 1:
                    note("g1")
                for p in range(5):
                    plan(("p", u, p))
                    s.need(("p", u, p))
                seen.add(u)
            for p in range(5):
                if left == min(FZ.qc_rem, 5 * len(un)) and n + 1 < len(units) and not (final and FZ.split0 and n == 0):
                    q_check(n + 1)
                if tailq == 0:
                    s.need(("res", p))
                s.mf(accr(p, q), preg(u, p), qreg(u, q), None if u == 0 else accr(p, q))
                left -= 1
            done[("qfree", u, q)] = s.t
    s.flush()
    assert not queue and not act, (queue, act)
    a("s_waitcnt lgkmcnt(0)")
    a("s_barrier")
    reads(s.L, 3)
    s.flush()
    for p in range(5):
        for h in (0, 2):
            a(f"v_pk_add_f32 {V(accr(p, 1) + h, 2)}, {V(accr(p, 1) + h, 2)}, {V(accr(p, 2) + h, 2)}")
    for p in range(5):
        for h in (0, 2):
            a(f"v_pk_add_f32 {V(accr(p, 0) + h, 2)}, {V(accr(p, 0) + h, 2)}, {V(accr(p, 1) + h, 2)}")
    for p in range(5):
        r = accr(p, 0)
        for h in (0, 2):
            a(f"v_pk_add_f32 {V(r + h, 2)}, {V(r + h, 2)}, {V(accr(p, 3) + h, 2)}")
        a(f"v_cvt_pk_bf16_f32 v{r}, v{r}, v{r + 1}")
        a(f"v_cvt_pk_bf16_f32 v{r + 1}, v{r + 2}, v{r + 3}")
        if final:
            a(f"buffer_store_dwordx2 {V(r, 2)}, v{vout}, s[{SRD1}:{SRD1 + 3}], 0 offen offset:{p * 32}")
        else:
            a(f"s_mov_b32 s{sOP}, {p * 4 * XP_STR}")
            a(f"buffer_store_dwordx2 {V(r, 2)}, v{vo2}, s[{SRDX}:{SRDX + 3}], s{sOP} offen sc1")
    if not final:
        for p in range(5):
            r = accr(p, 0)
            for h in range(2):
                a(f"v_add_u32 v{r + 2 + h}, s{sGB}, v{r + h}")
            if p == 0:
                a(f"v_and_b32 v{r + 2}, v{vout}, v{r + 2}")
        for p in range(5):
            for h in range(2):
                r = accr(p, 0) + 2 + h
                a(f"v_dot2c_f32_bf16 v{TMP + 2 + h}, v{r}, v{r}")
        z = TMP + 2
        a(f"v_add_f32 v{z}, v{z}, v{z + 1}")
        for op in ("v_permlane32_swap_b32", "v_permlane16_swap_b32"):
            a(f"v_mov_b32 v{z + 1}, v{z}")
            a(f"{op} v{z}, v{z + 1}")
            a(f"v_add_f32 v{z}, v{z}, v{z + 1}")
        a(f"v_cndmask_b32_e64 v{z}, 1.0, v{z}, s[{DIAG[0]}:{DIAG[0] + 1}]")
        a(f"buffer_atomic_add_f32 v{z}, v{vs}, s[{SRD1}:{SRD1 + 3}], 0 offen sc1", tag="out")
    mk(a, name + "end")


def role_fused(a):
    if Cfg.stamp:
        mk.names.append("start")
        mk.pend.append(0)
    decode(a)
    for ph in range(2):
        a(f"s_cmp_ge_u32 s{sT}, {NCOL}")
        a(f"s_cbranch_scc1 idle{ph}", tag="nopad")
        pend = list(mk.pend)

        def idle(ph=ph, pend=pend):
            keep, mk.pend = mk.pend, pend
            a.label(f"idle{ph}")
            idle_phase(a, ph)
            a(f"s_branch join{ph}")
            mk.pend = keep
        a.tail.append(idle)
        n = col_phase(a, ph)
        a.label(f"join{ph}")
        if FZ.halt == 2 * ph + 1:
            break
        mlp_phase(a, ph, n)
        if FZ.halt == 2 * ph + 2:
            break
    if Cfg.stamp:
        a("s_waitcnt vmcnt(0)")
        mk(a, "drain")
        mk.stash(a, 4)
        a(f"v_writelane_b32 v4, s{sCNT}, 63")
        srd_ws(a, SRD0, "STAMP", 1 << 21)
        a(f"s_lshl_b32 s{sA}, s2, 10")
        a(f"s_add_u32 s{sA}, s{sA}, {1 << 20}")
        a(f"v_lshl_add_u32 v5, v0, 2, s{sA}")
        a(f"buffer_store_dword v4, v5, s[{SRD0}:{SRD0 + 3}], 0 offen")
    return 160 * 1024


def tables():
    L = []
    c = np.sqrt(2.0 / DM) * np.cos(2 * np.pi * np.arange(DM) / DM)
    c[160] = 0
    c[480] = 0
    bits = model.bf16_bits(c.astype(np.float32))
    for n in range(DM):
        L.append(f".set cq{n}, {bits[n]}")
    bb = int(model.bf16_bits(np.float32([np.sqrt(1 / DM)]))[0])
    k2 = model2.kmap()
    L.append(".altmacro")
    L.append(".macro e8 a,b,c,d,e,f,g,h\n.short cq\\a, cq\\b, cq\\c, cq\\d, cq\\e, cq\\f, cq\\g, cq\\h\n.endm")
    L.append(".macro e6 a,b,c,d,e,f\n.short cq\\a, cq\\b, cq\\c, cq\\d, cq\\e, cq\\f\n.endm")
    L.append(".p2align 12\nft2:\n.set tt, 0\n.rept 40")
    for kb in range(80):
        L.append(".set td, tt\n.rept 16")
        ent = [f"%(({k2[4 * kb + j // 2]}*td+{160 * (j & 1)})%640)" for j in range(8)]
        if kb == 0:
            L.append(f".short {bb}+((td&1)<<15), {bb}")
            L.append("e6 " + ", ".join(ent[2:]))
        else:
            L.append("e8 " + ", ".join(ent))
        L.append(".set td, td+1\n.endr")
    L.append(".set tt, tt+16\n.endr\n.noaltmacro")
    return "\n".join(L) + "\n"


def plan():
    o = p0.PC.order[0]
    return [("p0_kernel", [(sum(p0.CNT[c] for c in o), lambda a: p0.role_front(a, "p0", o, o, {}))]),
            ("mk_kernel", [(256, role_fused)])]


if __name__ == "__main__":
    p0.CNT["1"] = 128
    p0.PC.order = ("x21c",)
    p0.PC.fused = 1
    p0.PC.fl_w = ""
    p0.PC.fill = 0
    p0.PC.w2t_in = 1
    p0.PC.w1frag = 1
    p0.PC.xscale = S_LO
    for opt in sys.argv[2:]:
        if opt == "stamp":
            Cfg.stamp = True
        else:
            k, v = opt.split("=", 1)
            tgt = [c for c in (FZ, p0.PC, Cfg) if hasattr(c, k)][0]
            v = eval(v)
            setattr(tgt, k, v.replace("_", " ") if isinstance(v, str) else v)
    txt = generate(plan(), tables)
    o = p0.PC.order[0]
    txt = txt.replace(f"; roles p0_kernel {sum(p0.CNT[c] for c in o)}",
                      "; roles p0_kernel " + " ".join(str(p0.CNT[c]) for c in o))
    if Cfg.stamp:
        txt = txt.replace(".amdgcn_target", ("; clk\n" if FZ.clk else "") + f"; halt {FZ.halt}\n; marks " + " ".join(mk.names)
                          + "\n.amdgcn_target", 1)
    open(sys.argv[1], "w").write(txt)
```

```python
from gen import *
import model2

SCALE = float(np.sqrt(2.0 / DM))
SIGN2 = 0x80008000
CNT = {"x": 128, "1": 96, "a": 32, "2": 112, "c": 128, "k": 160, "t": 72}


class PC:
    order = ("x2ac", "k1", "kt")
    lay = ("x2ac", "k1", "kt")
    w2t_in = 0
    code_pf = 1
    fl_ld = " nt"
    fl_l2 = " nt"
    fl_a = ""
    warm = 1
    pf_wgs = 16
    touch_ws = ()
    fl_t = ""
    fl_x = ""
    fl_w = " sc1"
    fl_w2 = ""
    fl_c = ""
    fused = 0
    fl_p = " sc1"
    fill = XP_SIZE
    warm_all = 0
    w1frag = 0
    xscale = 0


def fx(x):
    return f"{f32bits(x):#x}"


class Sched:
    def __init__(self, a, per=2):
        self.a, self.per = a, per
        self.fill = []
        self.done = set()
        self.n = 0

    def add(self, op, ready=-1, key=None):
        self.fill.append((ready, key, op))

    def _pop(self):
        _, key, op = self.fill.pop(0)
        if callable(op):
            op()
        else:
            self.a(op)
        if key is not None and all(k != key for _, k, _ in self.fill):
            self.done.add(key)

    def mfma(self, d, x, y, c, needs=()):
        for k in needs:
            while k not in self.done:
                self._pop()
        mfma(self.a, d, x, y, c)
        cnt = 0
        while self.fill and cnt < self.per and self.fill[0][0] <= self.n:
            self._pop()
            cnt += 1
        self.n += 1

    def flush(self):
        while self.fill:
            self._pop()


SCRATCH = 32768


def code_prefetch(a, name, dst):
    a(f"s_cmp_ge_u32 s2, {PC.pf_wgs}")
    a(f"s_cbranch_scc1 {name}_npf")
    a(f"s_getpc_b64 s[{SRD5}:{SRD5 + 1}]")
    a.label(f"{name}_here", keep=True)
    a(f"s_and_b32 s{SRD5 + 1}, s{SRD5 + 1}, 0xffff")
    a(f"s_mov_b32 s{SRD5 + 2}, {name}_last-{name}_here")
    a(f"s_mov_b32 s{SRD5 + 3}, 0x20000")
    a(f"s_mov_b32 m0, {SCRATCH}")
    a(f"v_lshlrev_b32 v{dst}, 6, v0")
    a(f"buffer_load_dword v{dst}, s[{SRD5}:{SRD5 + 3}], 0 offen lds")
    a.label(f"{name}_npf")


def touch(a, vt, offs, sh=0):
    a(f"s_mov_b32 m0, {SCRATCH}")
    a(f"v_lshlrev_b32 v{vt}, 6, v0")
    for off in offs:
        a(f"s_lshr_b32 s{sOP}, s{sT}, {sh}")
        a(f"s_lshl_b32 s{sOP}, s{sOP}, 14")
        if off:
            a(f"s_add_u32 s{sOP}, s{sOP}, {off}")
        a(f"buffer_load_dword v{vt}, s[{SRD4}:{SRD4 + 3}], s{sOP} offen lds")


def fill_count(order):
    return -(-PC.fill // (4096 * CNT["c"])) if PC.fused else 0


def fill(a, order, vo, vd):
    n = fill_count(order)
    srd_ws(a, SRD5, "XP1", PC.fill)
    a(f"s_mul_i32 s{sA}, s{sT}, {4096 * n}")
    a(f"v_lshl_add_u32 v{vo}, v0, 4, s{sA}")
    for k in range(4):
        a(f"v_mov_b32 v{vd + k}, -1")
    for k in range(n):
        a(f"s_mov_b32 s{sOP}, {k * 4096}")
        a(f"buffer_store_dwordx4 {V(vd, 4)}, v{vo}, s[{SRD5}:{SRD5 + 3}], s{sOP} offen{PC.fl_p}")


def role_front(a, name, order, lay, ext):
    vld, vr, vo = 4, 5, 9
    MK, M1, M2, M2N = 10, 14, 15, 16
    vph, vk0, vq20, vgf = 17, 18, 19, 35
    ACC1, A1, A2, Y, ACCX = 20, 36, 96, 144, 168
    TMP = Y
    DAT = 176
    sQ, sFT, sKD, sSC = sK0, sK1, 96, 97
    KINDS = tuple(k for k in ("x", "w1", "w2") if k[-1] in order.replace("a", "1"))
    fl_w = PC.fl_a if "a" in order else PC.fl_w

    def frag(beta, j):
        return DAT + (beta * 5 + j) * 4

    start, s0 = {}, 0
    for ch in order:
        start[ch] = s0
        s0 += CNT[ch]
    if PC.code_pf:
        code_prefetch(a, name, vld)
    a(f"s_lshl_b32 s{sE}, s{sW}, 10")
    lo, hi = 0, len(order) - 1
    while lo < hi:
        if order[hi] != lay[0]:
            a(f"s_cmp_ge_u32 s2, {start[order[hi]]}")
            a(f"s_cbranch_scc1 {name}_p{order[hi]}")
            hi -= 1
        else:
            a(f"s_cmp_lt_u32 s2, {start[order[lo + 1]]}")
            a(f"s_cbranch_scc1 {name}_p{order[lo]}")
            lo += 1

    def row_loads():
        a(f"s_and_b32 s{sA}, s{sW}, 1")
        a(f"s_lshl_b32 s{sA}, s{sA}, 1")
        a(f"s_xor_b32 s{sA}, s{sA}, s{sW}")
        a(f"s_lshl_b32 s{sA}, s{sA}, 2")
        a(f"v_or_b32 v{vr}, s{sA}, v{vG}")
        a(f"v_xor_b32 v{vr}, v{vr}, v{vI}")
        a(f"v_mul_u32_u24 v{vld}, 1280, v{vld}")
        a(f"v_lshl_add_u32 v{vld}, v{vr}, 4, v{vld}")

    def row_issue(fl):
        for j in range(5):
            a(f"s_add_u32 m0, s{sE}, {j * 4096 - j * 256}")
            a(f"buffer_load_dwordx4 v{vld}, s[{SRD0}:{SRD0 + 3}], 0 offen offset:{j * 256}{fl} lds")
        mark(a, 1)

    def pro_x():
        a(f"s_and_b32 s{sC}, s{sT}, 1")
        a(f"s_lshl_b32 s{sC}, s{sC}, 3")
        a(f"s_lshr_b32 s{sA}, s{sT}, 5")
        a(f"s_lshl4_add_u32 s{sC}, s{sA}, s{sC}")
        a(f"s_bfe_u32 s{sA}, s{sT}, 0x20001")
        a(f"s_lshl_b32 s{sA}, s{sA}, 8")
        a(f"s_add_u32 s{sC}, s{sC}, s{sA}")
        a(f"s_and_b32 s{sA}, s{sT}, 8")
        a(f"s_lshl4_add_u32 s{sC}, s{sA}, s{sC}")
        a(f"s_and_b32 s{sA}, s{sT}, 16")
        a(f"s_lshl_b32 s{sA}, s{sA}, 6")
        a(f"s_add_u32 s{sC}, s{sC}, s{sA}")
        a(f"s_lshl1_add_u32 s{sC}, s{sW}, s{sC}")
        a(f"v_and_b32 v{vld}, 1, v{vG}")
        a(f"v_lshlrev_b32 v{vld}, 6, v{vld}")
        a(f"v_lshrrev_b32 v{vr + 1}, 1, v{vG}")
        a(f"v_add3_u32 v{vld}, v{vld}, v{vr + 1}, s{sC}")
        row_loads()
        a("s_waitcnt lgkmcnt(0)")
        srd(a, SRD0, P_X, 0, SEQ * DM * 2)
        row_issue(PC.fl_ld)
        srd_ws(a, SRD1, "XP0", XP_SIZE)
        a(f"s_mov_b32 s{sKD}, 0")
        a(f"s_branch {name}_gen")

    def pro_w2():
        a(f"s_lshl_b32 s{sC}, s{sT}, 4")
        a(f"s_cmp_eq_u32 s{sT}, 108")
        a(f"s_cselect_b32 s{sC}, 0, s{sC}")
        a(f"s_lshl2_add_u32 s{sC}, s{sW}, s{sC}")
        a(f"v_add_u32 v{vld}, s{sC}, v{vG}")
        row_loads()
        a(f"s_cmp_eq_u32 s{sT}, 108")
        a(f"s_mov_b32 s{SRD0 + 2}, {FF * DM * 2}")
        a(f"s_cselect_b32 s{SRD0 + 2}, {DM * 2}, s{SRD0 + 2}")
        a(f"s_mov_b32 s{SRD0 + 3}, 0x20000")
        a("s_waitcnt lgkmcnt(0)")
        a(f"s_cselect_b32 s{SRD0}, s{P_B2}, s{P_W2}")
        a(f"s_cselect_b32 s{SRD0 + 1}, s{P_B2 + 1}, s{P_W2 + 1}")
        a(f"s_and_b32 s{SRD0 + 1}, s{SRD0 + 1}, 0xffff")
        row_issue(PC.fl_l2)
        srd_ws(a, SRD1, "WA2", WA2_SIZE)
        a(f"s_mov_b32 s{sKD}, 2")
        a(f"s_branch {name}_gen")

    def pro_w1():
        a(f"s_and_b32 s{sA}, s{sT}, 7")
        a(f"s_lshr_b32 s{sB}, s{sT}, 5")
        a(f"s_lshl3_add_u32 s{sA}, s{sB}, s{sA}")
        a(f"s_cmp_ge_u32 s{sA}, 27")
        a(f"s_cbranch_scc1 {name}_end")
        a(f"s_bfe_u32 s{sB}, s{sT}, 0x20003")
        a(f"s_lshl2_add_u32 s{sFT}, s{sA}, s{sB}")
        a(f"s_and_b32 s{sA}, s{sW}, 1")
        a(f"s_lshl_b32 s{sA}, s{sA}, 2")
        a(f"v_lshrrev_b32 v{vld}, 1, v{vL}")
        a(f"v_xor_b32 v{vld}, s{sA}, v{vld}")
        a(f"v_mul_u32_u24 v{vld}, {FF * 2}, v{vld}")
        a(f"v_and_b32 v{vr}, 1, v{vL}")
        a(f"v_lshl_add_u32 v{vld}, v{vr}, 4, v{vld}")
        a(f"s_mul_i32 s{sA}, s{sW}, {32 * FF * 2}")
        a(f"s_lshl_b32 s{sB}, s{sFT}, 5")
        a(f"s_add_u32 s{sA}, s{sA}, s{sB}")
        a(f"v_add_u32 v{vld}, s{sA}, v{vld}")
        a("s_waitcnt lgkmcnt(0)")
        srd(a, SRD0, P_W1, 0, DM * FF * 2)
        for j in range(5):
            a(f"s_add_u32 m0, s{sE}, {j * 4096}")
            a(f"s_mov_b32 s{sOP}, {j * 128 * FF * 2}")
            a(f"buffer_load_dwordx4 v{vld}, s[{SRD0}:{SRD0 + 3}], s{sOP} offen lds")
        mark(a, 1)
        srd_ws(a, SRD1, "W1F", W1F_SIZE)
        a(f"s_mov_b32 s{sKD}, 1")
        a(f"s_branch {name}_gen")

    REG = 5248

    def pro_wc():
        vld, va0, va1, va2, vo, vt, LD, ST = 4, 5, 6, 7, 8, 9, 12, 52
        a(f"s_bfe_u32 s{sA}, s{sT}, 0x20001")
        a(f"s_lshl_b32 s{sC}, s{sA}, 7")
        a(f"s_lshr_b32 s{sA}, s{sT}, 5")
        a(f"s_lshl_b32 s{sA}, s{sA}, 9")
        a(f"s_add_u32 s{sC}, s{sC}, s{sA}")
        a(f"s_and_b32 s{sA}, s{sT}, 8")
        a(f"s_lshl3_add_u32 s{sC}, s{sA}, s{sC}")
        a(f"s_and_b32 s{sA}, s{sT}, 16")
        a(f"s_add_u32 s{sC}, s{sC}, s{sA}")
        a(f"s_and_b32 s{sA}, s{sT}, 1")
        a(f"s_lshl3_add_u32 s{sC}, s{sA}, s{sC}")
        a(f"s_and_b32 s{sA}, s{sW}, 2")
        a(f"s_lshl4_add_u32 s{sC}, s{sA}, s{sC}")
        a(f"s_mul_i32 s{sC}, s{sC}, 642")
        a(f"s_add_u32 s{sD}, s{sC}, 4096")
        a(f"v_lshlrev_b32 v{vld}, 4, v{vL}")
        a(f"s_mul_i32 s{sE}, s{sW}, {REG}")
        a(f"s_mov_b32 s{SRD0 + 2}, {SEQ * 642}")
        a(f"s_mov_b32 s{SRD0 + 3}, 0x20000")
        a(f"s_mov_b32 m0, s{sE}")
        a(f"s_bitcmp1_b32 s{sW}, 0")
        a("s_waitcnt lgkmcnt(0)")
        a(f"s_cselect_b32 s{SRD0}, s{P_WI}, s{P_WR}")
        a(f"s_cselect_b32 s{SRD0 + 1}, s{P_WI + 1}, s{P_WR + 1}")
        a(f"s_and_b32 s{SRD0 + 1}, s{SRD0 + 1}, 0xffff")
        for j in range(4):
            a(f"buffer_load_dwordx4 v{vld}, s[{SRD0}:{SRD0 + 3}], s{sC} offen offset:{j * 1024}{PC.fl_ld} lds")
        a(f"s_add_u32 m0, s{sE}, 4096")
        a(f"buffer_load_dwordx4 v{vld}, s[{SRD0}:{SRD0 + 3}], s{sD} offen{PC.fl_ld} lds")
        a("s_mov_b64 exec, 1")
        a(f"buffer_load_dwordx4 v{vld}, s[{SRD0}:{SRD0 + 3}], s{sD} offen offset:1024{PC.fl_ld} lds")
        a("s_mov_b64 exec, -1")
        mark(a, 1)
        if PC.fused and PC.fill:
            fill(a, order, vo, ST)
        srd_ws(a, SRD1, "WC", WC_SIZE)
        a(f"v_bfe_u32 v{vt}, v{vL}, 3, 1")
        a(f"v_lshlrev_b32 v{vt}, 2, v{vt}")
        a(f"v_add_u32 v{vt}, v{vt}, v{vG}")
        a(f"s_cmp_lt_u32 s{sW}, 2")
        a(f"s_cselect_b32 s{sK0}, 1, -1")
        a(f"s_mul_i32 s{sA}, s{sK0}, 80")
        a(f"s_mul_i32 s{sB}, s{sK0}, 40")
        a(f"v_mul_i32_i24 v{va0}, s{sA}, v{vt}")
        a(f"v_and_b32 v{vt}, 7, v{vL}")
        a(f"v_mul_u32_u24 v{va1}, 642, v{vt}")
        a(f"v_add_u32 v{va0}, v{va0}, v{va1}")
        a(f"s_mul_i32 s{sK1}, s{sW}, 5")
        a(f"s_sub_u32 s{sK2}, 325, s{sK1}")
        a(f"s_cmp_lt_u32 s{sW}, 2")
        a(f"s_cselect_b32 s{sK2}, s{sK1}, s{sK2}")
        a(f"s_lshl_b32 s{sK2}, s{sK2}, 1")
        a(f"v_add_u32 v{va0}, s{sK2}, v{va0}")
        a(f"v_add_u32 v{va1}, s{sB}, v{va0}")
        a(f"v_cmp_gt_u32 vcc, 8, v0")
        a(f"v_add_u32 v{va2}, 640, v{va0}")
        a(f"v_cndmask_b32 v{va2}, v{va0}, v{va2}, vcc")
        a(f"v_lshrrev_b32 v{vo}, 3, v{vL}")
        a(f"v_lshlrev_b32 v{vo}, 14, v{vo}")
        a(f"v_lshl_add_u32 v{vo}, v{vt}, 4, v{vo}")
        a(f"s_lshl_b32 s{sA}, s{sT}, 7")
        a(f"s_lshr_b32 s{sB}, s{sW}, 1")
        a(f"s_lshl_b32 s{sB}, s{sB}, 17")
        a(f"s_add_u32 s{sA}, s{sA}, s{sB}")
        a(f"v_add_u32 v{vo}, s{sA}, v{vo}")
        a(f"s_sub_u32 s{sK2}, s{sK1}, 5")
        a(f"s_cmp_lt_u32 s{sW}, 2")
        a(f"s_cselect_b32 s{sK1}, s{sK1}, s{sK2}")
        a(f"s_waitcnt vmcnt({fill_count(order)})")
        if PC.warm:
            for ch, ptr in (("1", P_W1), ("2", P_W2)):
                if ch not in order:
                    srd(a, SRD4, ptr, 0, DM * FF * 2)
                    touch(a, vld, (0, 1 << 21))
            a(f"s_getpc_b64 s[{SRD4}:{SRD4 + 1}]")
            a.label(f"{name}_cur", keep=True)
            a(f"s_and_b32 s{SRD4 + 1}, s{SRD4 + 1}, 0xffff")
            a(f"s_mov_b32 s{SRD4 + 2}, text_last-{name}_cur")
            a(f"s_mov_b32 s{SRD4 + 3}, 0x20000")
            touch(a, vld, (0,), 3 if PC.warm_all else 0)
        for nm in PC.touch_ws:
            srd_ws(a, SRD4, nm, H_SIZE)
            a(f"v_lshlrev_b32 v{vld}, 7, v0")
            for off in (0, 1 << 22):
                a(f"s_lshl_b32 s{sOP}, s{sT}, 15")
                a(f"s_add_u32 s{sOP}, s{sOP}, {off}")
                a(f"buffer_load_dword v{vld}, s[{SRD4}:{SRD4 + 3}], s{sOP} offen{PC.fl_t} lds")
        a("s_barrier")
        mark(a, 3)
        for n in range(5):
            for rl in range(2):
                for ph in range(2):
                    ad = va1 if ph else (va2 if n == 0 else va0)
                    for ar in range(2):
                        a(f"ds_read_u16 v{LD + n * 8 + (rl * 2 + ph) * 2 + ar}, v{ad} offset:{(rl * 2 + ar) * REG + 2 * n}")
        for n in range(5):
            for k in range(4):
                a(f"v_lshl_or_b32 v{ST + 4 * n + k}, v{LD + n * 8 + 2 * k + 1}, 16, v{LD + n * 8 + 2 * k}")
            if n == 0:
                a(f"s_cmp_eq_u32 s{sK1}, 10")
                a(f"s_cselect_b32 s{sOP}, 0, s{sK1}")
                a(f"s_lshl_b32 s{sOP}, s{sOP}, 18")
            else:
                a(f"s_add_i32 s{sK1}, s{sK1}, s{sK0}")
                a(f"s_lshl_b32 s{sOP}, s{sK1}, 18")
            a(f"buffer_store_dwordx4 {V(ST + 4 * n, 4)}, v{vo}, s[{SRD1}:{SRD1 + 3}], s{sOP} offen{PC.fl_c}")
        a(f"s_branch {name}_end")

    pros = {"x": pro_x, "1": pro_w1, "a": pro_w1, "2": pro_w2, "c": pro_wc}
    if "a" in order:
        assert start["a"] % 8 == 0
        start["a"] -= CNT["1"]
    lds = SCRATCH + 256
    for ch in lay:
        if ch != lay[0]:
            a.label(f"{name}_p{ch}")
        if start[ch]:
            a(f"s_sub_i32 s{sT}, s2, {start[ch]}")
        if ch in pros:
            pros[ch]()
        else:
            lds = max(lds, ext[ch](a))
            a(f"s_branch {name}_end")
    if not KINDS:
        a.label(f"{name}_end")
        a.label(f"{name}_last")
        return lds

    a.label(f"{name}_gen")
    a(f"s_mov_b32 s{sSC}, {fx(SCALE)}")
    if PC.xscale:
        a(f"s_cmp_eq_u32 s{sKD}, 0")
        a(f"s_cselect_b32 s{sSC}, {fx(SCALE * 2.0 ** PC.xscale)}, s{sSC}")
    a(f"v_bfe_u32 v{TMP}, v{vI}, 1, 1")
    a(f"v_lshlrev_b32 v{TMP}, 4, v{TMP}")
    a(f"v_mov_b32 v{TMP + 1}, 0xffff")
    a(f"v_lshlrev_b32 v{TMP}, v{TMP}, v{TMP + 1}")
    a(f"v_lshrrev_b32 v{TMP + 1}, 2, v{vI}")
    for k in range(4):
        a(f"v_cmp_eq_u32 vcc, {k}, v{TMP + 1}")
        a(f"v_cndmask_b32 v{MK + k}, 0, v{TMP}, vcc")
    a(f"v_and_b32 v{M2}, 1, v{vI}")
    a(f"v_cvt_f32_u32 v{vph}, v{M2}")
    a(f"v_mul_f32 v{vph}, 0.5, v{vph}")
    a(f"v_lshrrev_b32 v{vk0}, 1, v{vI}")
    a(f"v_cvt_f32_u32 v{vk0}, v{vk0}")
    a(f"v_mul_f32 v{vk0}, {fx(1 / 32)}, v{vk0}")
    a(f"v_cvt_f32_u32 v{vgf}, v{vG}")

    def gen_a1(base, fq, ph):
        t = TMP
        a(f"v_fma_f32 v{t}, v{vgf}, v{fq}, {ph}")
        for j in range(1, 5):
            a(f"v_fmamk_f32 v{t + j}, v{fq}, {fx(4.0 * j)}, v{t}")
        for j in range(5):
            a(f"v_cos_f32 v{t + j}, v{t + j}")
        for j in range(5):
            a(f"v_mul_f32 v{t + j}, s{sSC}, v{t + j}")
        for j in range(5):
            a(f"v_cvt_pk_bf16_f32 v{t + j}, v{t + j}, v{t + j}")
        for j in range(5):
            for k in range(4):
                a(f"v_and_b32 v{base + 4 * j + k}, v{MK + k}, v{t + j}")

    def angles(kf, ph):
        t = TMP
        a(f"v_mul_f32 v{t + 8}, v{vgf}, v{kf}")
        a(f"v_fma_f32 v{t}, v{t + 8}, 2.0, v{ph}")
        for k in range(1, 8):
            c = 16 * (k >> 2) + 8 * ((k >> 1) & 1) + (k & 1)
            a(f"v_fmamk_f32 v{t + k}, v{kf}, {fx(float(c))}, v{t}")

    def addresses(kind):
        if kind == "w1":
            a(f"v_and_b32 v{vr}, 1, v{vG}")
            a(f"v_lshlrev_b32 v{vr}, 7, v{vr}")
            a(f"v_lshl_add_u32 v{vr}, v{vG}, 10, v{vr}")
            a(f"v_lshl_add_u32 v{vr}, v{vI}, 3, v{vr}")
            a(f"v_xor_b32 v{vr + 1}, 128, v{vr}")
        else:
            a(f"v_and_b32 v{vr}, 4, v{vI}")
            a(f"v_lshlrev_b32 v{vr}, 1, v{vr}")
            a(f"v_xor_b32 v{vr}, v{vr}, v{vI}")
            a(f"v_lshlrev_b32 v{vr + 1}, 2, v{vG}")
            a(f"v_xor_b32 v{vr}, v{vr}, v{vr + 1}")
            a(f"v_lshlrev_b32 v{vr}, 4, v{vr}")
            a(f"v_lshl_add_u32 v{vr}, v{vI}, 8, v{vr}")
            for k in (1, 2, 3):
                a(f"v_xor_b32 v{vr + k}, {16 * k}, v{vr}")
        if kind == "x":
            a(f"v_and_b32 v{vld}, 1, v{vI}")
            a(f"v_lshl_add_u32 v{vo}, v{vG}, 1, v{vld}")
            a(f"v_lshlrev_b32 v{vo}, 14, v{vo}")
            a(f"v_and_b32 v{vld}, 14, v{vI}")
            a(f"v_lshl_add_u32 v{vo}, v{vld}, 3, v{vo}")
            a(f"s_lshl_b32 s{sA}, s{sQ}, 18")
            a(f"s_lshl_b32 s{sB}, s{sT}, 7")
            a(f"s_mov_b32 vcc_lo, 0x55555555")
            a(f"s_mov_b32 vcc_hi, 0x55555555")
        elif kind == "w1" and PC.w1frag:
            a(f"v_lshlrev_b32 v{vo}, 4, v{vL}")
            a(f"s_lshl_b32 s{sA}, s{sQ}, 11")
            a(f"s_mul_i32 s{sB}, s{sFT}, 20480")
        elif kind == "w1":
            a(f"v_mul_u32_u24 v{vo}, {W1F_STR}, v{vG}")
            a(f"v_lshl_add_u32 v{vo}, v{vI}, 4, v{vo}")
            a(f"s_mul_i32 s{sA}, s{sQ}, {8 * W1F_STR}")
            a(f"s_lshl_b32 s{sB}, s{sFT}, 8")
        else:
            a(f"v_lshrrev_b32 v{vo}, 1, v{vG}")
            a(f"v_mul_u32_u24 v{vo}, {KB_STR}, v{vo}")
            a(f"v_lshrrev_b32 v{vld}, 2, v{vI}")
            a(f"v_lshl_add_u32 v{vo}, v{vld}, 7, v{vo}")
            a(f"v_and_b32 v{vld}, 3, v{vI}")
            a(f"v_lshl_add_u32 v{vo}, v{vld}, 4, v{vo}")
            a(f"v_and_b32 v{vld}, 1, v{vG}")
            a(f"v_lshl_add_u32 v{vo}, v{vld}, 6, v{vo}")
            a(f"s_lshl_b32 s{sA}, s{sQ}, 10")
            a(f"s_mul_i32 s{sB}, s{sT}, {2 * KB_STR}")
        a(f"s_add_u32 s{sA}, s{sA}, s{sB}")
        a(f"v_add_u32 v{vo}, s{sA}, v{vo}")

    def reads(kind):
        mark(a, 2)
        a("s_waitcnt vmcnt(0)")
        a("s_barrier")
        mark(a, 3)
        for beta in range(4):
            for j in range(5):
                if kind == "w1":
                    for eh in range(2):
                        a(f"ds_read_b64_tr_b16 {R(frag(beta, j) + 2 * eh, 2)}, v{vr + eh} offset:{4096 * j + 256 * beta}")
                else:
                    a(f"ds_read_b128 {R(frag(beta, j), 4)}, v{vr + beta} offset:{4096 * j}")

    def stage1(sc, n, extra=None):
        for beta in range(4):
            c = 4 * n + beta
            acc = ACC1 + 4 * (c % 4)
            for j in range(5):
                sc.mfma(acc, A1 + 20 * n + 4 * j, frag(beta, j), None if j == 0 else acc,
                        needs=[("y", c - 4)] if j == 0 and c >= 4 else [])
            rdy = sc.n + 5
            if extra:
                extra(beta, acc, rdy, ("y", c))
            for h in range(2):
                sc.add(f"v_cvt_pk_bf16_f32 v{Y + 2 * c + h}, v{acc + 2 * h}, v{acc + 2 * h + 1}", rdy, ("y", c))

    par = {"even": True}
    QP = "quad_perm:[1,0,3,2] row_mask:0xf bank_mask:0xf"

    def stage2(kind, sc, n, u, mat, acc, needs, fix=None):
        for tl in range(2):
            for kp in range(2):
                d = acc + 4 * tl
                m, y = mat + (tl * 2 + kp) * 4, Y + 8 * n + 4 * kp
                nd = list(needs) + [("y", 4 * n + 2 * kp), ("y", 4 * n + 2 * kp + 1)]
                if kind == "w2":
                    sc.mfma(d, y, m, None if kp == 0 else d, needs=nd)
                else:
                    sc.mfma(d, m, y, None if kp == 0 else d, needs=nd)
        rdy, key = sc.n + 3, ("o", n, u)
        if fix:
            fix(rdy, key)
        for k in range(4):
            sc.add(f"v_cvt_pk_bf16_f32 v{acc + k}, v{acc + 2 * k}, v{acc + 2 * k + 1}", rdy, key)
        if kind == "x":
            for ph in range(2):
                lo = par["even"]
                for k in range(2):
                    if lo:
                        sc.add(f"v_cndmask_b32_dpp v{acc + 4 + k}, v{acc + 2 + k}, v{acc + k}, vcc {QP}", rdy, key)
                    else:
                        sc.add(f"v_cndmask_b32_dpp v{acc + 6 + k}, v{acc + k}, v{acc + 2 + k}, vcc {QP}", rdy, key)
                if ph == 0:
                    sc.add("s_not_b64 vcc, vcc", rdy, key)
                    par["even"] = not lo

            def st():
                a(f"s_mov_b32 s{sOP}, {(16 * n + 8 * u) * XP_STR}")
                a(f"buffer_store_dwordx4 {V(acc + 4, 4)}, v{vo}, s[{SRD1}:{SRD1 + 3}], s{sOP} offen{PC.fl_x}")
            sc.add(st, rdy, key)
        elif kind == "w1":
            def st():
                a(f"s_mov_b32 s{sOP}, {(2 * n + u) * 1024 if PC.w1frag else (8 * n + 4 * u) * W1F_STR}")
                a(f"buffer_store_dwordx4 {V(acc, 4)}, v{vo}, s[{SRD1}:{SRD1 + 3}], s{sOP} offen{fl_w}")
            sc.add(st, rdy, key)
        else:
            sc.add(f"v_permlane16_swap_b32 v{acc}, v{acc + 2}", rdy, key)
            sc.add(f"v_permlane16_swap_b32 v{acc + 1}, v{acc + 3}", rdy, key)
            sc.add(f"buffer_store_dwordx4 {V(acc, 4)}, v{vo}, s[{SRD1}:{SRD1 + 3}], 0 offen offset:{1024 * n + 512 * u}{PC.fl_w2}",
                   rdy, key)

    def dispatch(pre):
        for kind in KINDS[1:]:
            a(f"s_cmp_eq_u32 s{sKD}, {kind[-1]}")
            a(f"s_cbranch_scc1 {pre}_{kind}")

    a(f"s_cmp_eq_u32 s{sW}, 3")
    a(f"s_cbranch_scc1 {name}_sp")

    a(f"s_mul_i32 s{sQ}, s{sW}, 3")
    a(f"s_add_u32 s{sQ}, s{sQ}, 1")
    a(f"v_mul_f32 v{vph}, 0.5, v{vph}")
    a(f"v_cvt_f32_u32 v{vq20}, s{sQ}")
    a(f"v_fmamk_f32 v{vk0}, v{vq20}, {fx(1 / 640)}, v{vk0}")
    a(f"v_mul_f32 v{vq20}, {fx(1 / 20)}, v{vq20}")
    a(f"v_mul_u32_u24 v{M2}, 0x8000, v{M2}")
    a(f"v_lshl_or_b32 v{M2}, v{M2}, 16, v{M2}")
    a(f"v_xor_b32 v{M2N}, {SIGN2:#x}, v{M2}")
    a(f"v_and_b32 v{M1}, 1, v{vG}")
    a(f"v_mul_u32_u24 v{M1}, 0x8000, v{M1}")
    a(f"v_lshl_or_b32 v{M1}, v{M1}, 16, v{M1}")
    for n in range(3):
        if n:
            a(f"v_add_f32 v{vk0}, {fx(1 / 640)}, v{vk0}")
            a(f"v_add_f32 v{vq20}, {fx(1 / 20)}, v{vq20}")
        gen_a1(A1 + 20 * n, vq20, f"v{vph}")
        angles(vk0, vph)
        for k in range(8):
            a(f"v_sin_f32 v{TMP + 8 + k}, v{TMP + k}")
            a(f"v_cos_f32 v{TMP + k}, v{TMP + k}")
        b = A2 + 16 * n
        for k in range(8):
            a(f"v_cvt_pk_bf16_f32 v{b + k}, v{TMP + k}, v{TMP + 8 + k}")
            if k & 1:
                a(f"v_cvt_pk_bf16_f32 v{b + 8 + k}, -v{TMP + 8 + k}, v{TMP + k}")
        for k in range(8):
            a(f"v_xor_b32 v{b + 8 + k}, v{M1}, v{b + (8 if k & 1 else 0) + k}")
    dispatch(f"{name}_t")
    for kind in KINDS:
        if kind != KINDS[0]:
            a.label(f"{name}_t_{kind}")
        par["even"] = True
        addresses(kind)
        reads(kind)
        sc = Sched(a)
        for n in range(3):
            stage1(sc, n)
            for k in range(16):
                sc.add(f"v_xor_b32 v{A1 + 20 * n + k}, v{M2N if k & 1 else M2}, v{A2 + 16 * n + k}", sc.n, ("d", n))
        mark(a, 4)
        bufs = [ACCX, ACC1, ACC1 + 8]
        hist = [[], [("y", 8), ("y", 9)], [("y", 10), ("y", 11)]]
        for k in range(6):
            n, u = divmod(k, 2)
            needs = hist[k] if k < 3 else [("o",) + divmod(k - 3, 2)]
            if u:
                needs = needs + [("d", n)]
            stage2(kind, sc, n, u, A1 + 20 * n if u else A2 + 16 * n, bufs[k % 3], needs)
        sc.flush()
        a(f"s_branch {name}_end")

    a.label(f"{name}_sp")
    a(f"s_mov_b32 s{sQ}, 0")
    gen_a1(A1, vph, "0")
    a(f"v_mul_f32 v{vph}, 0.5, v{vph}")
    kf, ph = vq20, M1
    for tau in range(4):
        if tau == 0:
            a(f"v_cmp_eq_u32 vcc, 0, v{vI}")
            a(f"v_mov_b32 v{kf}, 0.5")
            a(f"v_cndmask_b32 v{kf}, v{vk0}, v{kf}, vcc")
            a(f"v_cmp_gt_u32 vcc, 2, v{vI}")
            a(f"v_mov_b32 v{ph}, {fx(0.125)}")
            a(f"v_cndmask_b32 v{ph}, v{vph}, v{ph}, vcc")
        else:
            a(f"v_add_f32 v{kf}, {fx(tau / 4 + (10 / 640 if tau >= 2 else 0))}, v{vk0}")
            a(f"v_mul_f32 v{ph}, {'-1.0' if tau >= 2 else '1.0'}, v{vph}")
        angles(kf, ph)
        for k in range(8):
            a(f"v_cos_f32 v{TMP + k}, v{TMP + k}")
        for k in range(8):
            d = A2 + 8 * tau + k
            a(f"v_cvt_pk_bf16_f32 v{d}, v{TMP + k}, 0" if tau < 2 else f"v_cvt_pk_bf16_f32 v{d}, 0, v{TMP + k}")
    dispatch(f"{name}_s")
    X0 = A2 + 32
    vs, vz, vb, GR, SM, T = X0, X0 + 1, X0 + 2, X0 + 4, X0 + 8, X0 + 12
    TR = A1 + 20
    DIAG = (4, 6, 30, 70)
    for kind in KINDS:
        if kind != KINDS[0]:
            a.label(f"{name}_s_{kind}")
        par["even"] = True
        addresses(kind)
        if kind == "x":
            srd_ws(a, SRD2, "SS0", 2 * SS_SIZE)
            if PC.fused:
                srd_ws(a, SRD3, "SS2", SS2_SIZE + FLAG_SIZE)
            else:
                srd_ws(a, SRD3, "FLAG", FLAG_SIZE)
            a(f"s_lshr_b32 s{sA}, s{sT}, 4")
            a(f"s_lshl_b32 s{sA}, s{sA}, 10")
            a(f"s_and_b32 s{sB}, s{sT}, 7")
            a(f"s_lshl_b32 s{sB}, s{sB}, 7")
            a(f"s_add_u32 s{sA}, s{sA}, s{sB}")
            a(f"s_and_b32 s{sB}, s{sT}, 8")
            a(f"s_add_u32 s{sA}, s{sA}, s{sB}")
            a(f"v_lshrrev_b32 v{vs}, 1, v{vI}")
            a(f"v_lshlrev_b32 v{vs}, 4, v{vs}")
            a(f"v_lshl_add_u32 v{vs}, v{M2}, 2, v{vs}")
            a(f"v_lshl_add_u32 v{vs}, v{vG}, 20, v{vs}")
            a(f"v_add_u32 v{vs}, s{sA}, v{vs}")
            if PC.fused == 2:
                a(f"s_lshl_b32 s{sA}, s{sT}, 3")
                a(f"v_and_or_b32 v{vb}, v{vL}, 7, s{sA}")
                a(f"v_bfe_u32 v{vz}, v{vL}, 3, 1")
                a(f"v_mad_u32_u24 v{T}, v{vz}, 3, 4")
                a(f"v_lshlrev_b32 v{vb}, v{T}, v{vb}")
                a(f"v_lshl_add_u32 v{vb}, v{vz}, 14, v{vb}")
                a(f"v_lshl_add_u32 v{vb}, v{vG}, 20, v{vb}")
            else:
                a(f"v_mov_b32 v{vz}, 0")
                a(f"s_lshl_b32 s{sA}, s{sT}, {10 if PC.fused else 8}")
                a(f"v_lshl_add_u32 v{vb}, v{vL}, {4 if PC.fused else 2}, s{sA}")
            if PC.fused:
                for k in range(4):
                    a(f"v_mov_b32 v{T + k}, 0")
            a(f"s_mov_b32 s{sOQ}, {WS['SS2'] - WS['SS0']}")
            for r in range(4):
                m = 0x1000010000100001 << r
                a(f"s_mov_b32 s{DIAG[r]}, {m & 0xffffffff:#x}")
                a(f"s_mov_b32 s{DIAG[r] + 1}, {m >> 32:#x}")
        if kind == "w1":
            srd(a, SRD2, P_B1, 0, FF * 2)
            a(f"s_lshl_b32 s{sA}, s{sFT}, 5")
            a(f"v_lshl_add_u32 v{vs}, v{vI}, 1, s{sA}")
            a(f"buffer_load_ushort v{vb}, v{vs}, s[{SRD2}:{SRD2 + 3}], 0 offen")
            a(f"s_mov_b64 s[{sM0}:{sM1}], 0xffff")
        w2t = kind == "w2" and PC.w2t_in
        if w2t:
            srd_ws(a, SRD2, "W2T", W2T_SIZE)
            a(f"v_bfe_u32 v{vz}, v{vI}, 1, 1")
            a(f"v_lshl_add_u32 v{vz}, v{vG}, 1, v{vz}")
            a(f"v_lshrrev_b32 v{vb}, 2, v{vI}")
            a(f"v_xor_b32 v{vz}, v{vz}, v{vb}")
            a(f"v_lshlrev_b32 v{vz}, 4, v{vz}")
            a(f"v_lshl_add_u32 v{vz}, v{vb}, 8, v{vz}")
            a(f"v_lshl_add_u32 v{vz}, v{M2}, 3, v{vz}")
            a(f"v_xor_b32 v{vb}, {1024 + 64}, v{vz}")
            a(f"s_mul_i32 s{sA}, s{sT}, {2 * KB_STR}")
            a(f"v_lshl_add_u32 v{vs}, v{vL}, 4, s{sA}")
        reads(kind)
        if kind == "x" and PC.fused:
            a(f"buffer_store_dwordx4 {V(T, 4)}, v{vb}, s[{SRD3}:{SRD3 + 3}], 0 offen")
        elif kind == "x":
            a(f"buffer_store_dword v{vz}, v{vs}, s[{SRD2}:{SRD2 + 3}], s{sOQ} offen")
            a(f"buffer_store_dword v{vz}, v{vb}, s[{SRD3}:{SRD3 + 3}], 0 offen")
        sc = Sched(a)

        def tr_read(n):
            h, x = divmod(n, 10)
            return [f"ds_read_b64_tr_b16 {V(TR + 4 * (n % 10) + 2 * eh, 2)}, v{vz + eh} "
                    f"offset:{(x >> 1) * 4096 + h * 2048 + 128 * ((x ^ h ^ eh) & 1)}" for eh in range(2)]

        def tr_store(n):
            def f():
                if n % 4 == 0:
                    a(f"s_mov_b32 s{sOQ}, {n * 1024}")
                a(f"buffer_store_dwordx4 {V(TR + 4 * (n % 10), 4)}, v{vs}, s[{SRD2}:{SRD2 + 3}], s{sOQ} offen offset:{(n % 4) * 1024}{PC.fl_w}")
            return f

        if w2t:
            for n in range(10):
                for op in tr_read(n):
                    a(op)

        def sums(beta, acc, rdy, key):
            sc.add(f"v_add_f32 v{SM + beta}, v{acc}, v{acc + 2}", rdy, key)

        stage1(sc, 0, sums if kind == "x" else None)
        if kind == "x":
            for k in range(10):
                sc.mfma(GR, DAT + 4 * k, DAT + 4 * k, None if k == 0 else GR)

        def fix(rdy, key):
            sc.add(f"v_lshlrev_b32 v{vb}, 16, v{vb}", rdy, key)
            sc.add(f"v_cndmask_b32_e64 v{ACCX + 1}, v{ACCX + 1}, v{vb}, s[{sM0}:{sM1}]", rdy, key)

        if w2t:
            sc.flush()
            for n in range(10):
                tr_store(n)()
                for op in tr_read(n + 10):
                    a(op)
        stage2(kind, sc, 0, 0, A2, ACCX, [], fix if kind == "w1" else None)
        stage2(kind, sc, 0, 1, A2 + 16, ACC1, [("y", 0), ("y", 1)])
        if w2t:
            for n in range(10, 20):
                tr_store(n)()
        if kind == "x":
            sc.add(f"v_add_f32 v{SM}, v{SM}, v{SM + 1}")
            sc.add(f"v_add_f32 v{SM + 2}, v{SM + 2}, v{SM + 3}")
            sc.add(f"v_add_f32 v{SM}, v{SM}, v{SM + 2}")
            for op in ("v_permlane32_swap_b32", "v_permlane16_swap_b32"):
                sc.add(f"v_mov_b32 v{SM + 1}, v{SM}")
                sc.add(f"{op} v{SM}, v{SM + 1}")
                sc.add(f"v_add_f32 v{SM}, v{SM}, v{SM + 1}")
            if PC.xscale:
                sc.add(f"v_mul_f32 v{SM}, {fx(2.0 ** -PC.xscale)}, v{SM}")
            sc.add(f"v_mul_f32 v{SM}, v{SM}, v{SM}")
            for k in range(10, 20):
                sc.mfma(GR, DAT + 4 * k, DAT + 4 * k, GR)
        sc.flush()
        if kind == "x":
            for r in range(4):
                prev = "0" if r == 0 else f"v{T}"
                a(f"v_cndmask_b32_e64 v{T}, {prev}, v{GR + r}, s[{DIAG[r]}:{DIAG[r] + 1}]")
            for op in ("v_permlane32_swap_b32", "v_permlane16_swap_b32"):
                a(f"v_mov_b32 v{T + 1}, v{T}")
                a(f"{op} v{T}, v{T + 1}")
                a(f"v_add_f32 v{T}, v{T}, v{T + 1}")
            a(f"v_fmamk_f32 v{T}, v{SM}, {fx(-1.0 / (model2.SC * model2.SC * DM))}, v{T}")
            a(f"v_max_f32 v{T}, 0, v{T}")
            a(f"buffer_store_dword v{T}, v{vs}, s[{SRD2}:{SRD2 + 3}], 0 offen")
        if kind != KINDS[-1]:
            a(f"s_branch {name}_end")
    a.label(f"{name}_end")
    a.label(f"{name}_last")
    return lds
```

```python
from gen import *
import gen
import p0
import model2
from p0 import Sched, fx
from asmlib import TRANS

GELU_K0 = -2.0 * 0.7978845608028654 * 1.4426950408889634
EPS = 1e-5
SPIN_MAX = 1 << 14
NCOL = 160
TILE = 20480
LDS_X = LDS_RED = 0
PX, READY, POST, HINT = 0, 4, 132, (260, 388)
S_LO, S_X = -97, (-24, 24)
UP = [s - S_LO for s in S_X]
T_X = [2.0 ** (d - 127) for d in UP]
T_H, H_OFF = T_X[0], -2.0 ** -40

SRDQ, SRDF, SRDW, SRDP = 8, 12, SRD4, SRD5
sDC, sRP, sHO, sTB = 16, 17, 18, 19
sRB, sMM, sFL, sCNT, sGA, sGB = 96, 97, 98, 99, 100, 101
sMSK, sCQ = 26, 27
sPK, sEB = 20, 21
vW, vo, vp = 10, 11, 15
WR, NW, NP = 256, 8, 11
aPO = WR
aST, aDUM, vdc = 256 + 252, 256 + 253, 256 + 254
NS = 14


class FZ:
    look = 10
    pre_p = (8, 8)
    burst = ((4, 0), (10, 0))
    period = (90, 90)
    stop = ("x2", "x2")
    hint_at = ("x1", "x1")
    po_every = 5
    cap = 12
    row = 70
    srow = 120
    lat = 750
    dbl = (12, 15)
    xc_at = 1
    b_pre = 0
    pure = (2, 1)
    in_b = (5, 3)
    in_e = 5
    g2pk = (1, 1)
    qdel = (1600, 1600)
    qc_rem = 7
    split0 = 1
    ktail = 3
    rd_at = (("b", 1), ("b", 8))
    x3 = (("g", 3), ("g", 6), ("g", 8))
    res_at = ("g", 7)
    ebar = 1
    e_ok = 17
    marks = None
    clk = 0
    code_pf = 1
    halt = 0
    verbose = 0
    map = 2
    post = 'bar2'
    x_nocnt = 0
    x_op = 'buffer-atomic-add-f32'
    wgap = 48
    park = (3, 2)
    gbar = 5
    ft_pf = 1
    p_lead = 14
    r_q = 2
    qf = (" sc1", " sc1")
    xf = (" sc1", " sc1")
    hf = " sc1"


class Marks:
    def __init__(self):
        self.names, self.pend = [], []

    def __call__(self, a, name):
        if not Cfg.stamp or FZ.marks is not None and name not in FZ.marks:
            return
        k = len(self.pend)
        assert k < 12, name
        self.pend.append(len(self.names))
        self.names.append(name)
        a(f"{'s_memtime' if FZ.clk else 's_memrealtime'} s[{sST + 2 * k}:{sST + 2 * k + 1}]")

    def stash(self, a, tmp):
        if not self.pend:
            return
        a("s_waitcnt lgkmcnt(0)")
        a(f"v_accvgpr_read_b32 v{tmp}, {R(aST)}")
        for k, lane in enumerate(self.pend):
            a(f"v_writelane_b32 v{tmp}, s{sST + 2 * k}, {lane}")
        a(f"v_writelane_b32 v{tmp}, s{sCNT}, {len(self.names)}")
        self.names.append("#" + self.names[self.pend[-1]])
        assert len(self.names) < 63
        a(f"v_accvgpr_write_b32 {R(aST)}, v{tmp}")
        self.pend = []


mk = Marks()


def preg(u, p):
    return WR + (0 if u == NP else 4 * NW + 20 * (u % (NP + 1))) + 4 * p


def kblock(u):
    return 2 * (14 * (u & 1) + (u >> 1))


def decode(a):
    a(f"s_and_b32 s{sA}, s{sT}, 7")
    if FZ.map == 1:
        a(f"s_bfe_u32 s{sRB}, s{sT}, 0x10003")
        a(f"s_lshl1_add_u32 s{sRB}, s{sA}, s{sRB}")
        a(f"s_lshr_b32 s{sMM}, s{sT}, 4")
    else:
        a(f"s_lshr_b32 s{sB}, s{sA}, 1")
        a(f"s_lshl_b32 s{sB}, s{sB}, 2")
        a(f"s_bfe_u32 s{sRB}, s{sT}, {0x20006 if FZ.map == 2 else 0x20003:#x}")
        a(f"s_add_u32 s{sRB}, s{sRB}, s{sB}")
        a(f"s_and_b32 s{sA}, s{sA}, 1")
        a(f"s_lshl_b32 s{sA}, s{sA}, 3")
        a(f"s_bfe_u32 s{sMM}, s{sT}, {0x30003 if FZ.map == 2 else 0x30005:#x}")
        a(f"s_add_u32 s{sMM}, s{sMM}, s{sA}")
    a(f"s_lshl_b32 s{sFL}, s{sRB}, 7")
    a(f"s_mov_b32 s{sCNT}, 0")
    for k in range(4):
        a(f"v_accvgpr_write_b32 {R(aPO + k)}, -1")
    if Cfg.stamp:
        a(f"v_accvgpr_write_b32 {R(aST)}, 0")


def pre_setup(a, ph, t0):
    if not ph:
        a(f"s_and_b32 s{sA}, s{sMM}, 3")
        a(f"s_cmp_eq_u32 s{sA}, 3")
        a(f"s_cselect_b32 s{sMSK}, 0x40000000, 0")
        a(f"s_lshr_b32 s{sB}, s{sMM}, 3")
        a(f"s_lshl2_add_u32 s{sDC}, s{sB}, s{sA}")
        a(f"s_mul_i32 s{sTB}, s{sMM}, 7")
        a(f"s_lshr_b32 s{sB}, s{sMM}, 2")
        a(f"s_sub_u32 s{sTB}, s{sTB}, s{sB}")
        a(f"s_mul_i32 s{sPK}, s{sW}, {TILE // 4}")
        a(f"s_mul_i32 s{sEB}, s{sW}, {3 * TILE // 4}")
    a(f"s_mul_i32 s{sE}, s{sW}, {(2 if ph else 7) * TILE // 4}")
    a(f"s_add_u32 m0, s{sE}, {TILE}")
    a(f"v_lshlrev_b32 v{vW}, 4, v{vL}")
    a(f"s_mul_i32 s{sA}, s{sTB}, {TILE}")
    a(f"s_add_u32 s{sA}, s{sA}, {WS['W1F'] - TILE}")
    a(f"s_add_u32 s{SRDW}, s{P_WS}, s{sA}")
    a(f"s_addc_u32 s{SRDW + 1}, s{P_WS + 1}, 0")
    a(f"s_and_b32 s{SRDW + 1}, s{SRDW + 1}, 0xffff")
    a(f"s_mov_b32 s{SRDW + 2}, {8 * TILE}")
    a(f"s_mov_b32 s{SRDW + 3}, 0x20000")
    a(f"v_lshrrev_b32 v{vo}, 1, v{vG}")
    a(f"v_and_b32 v{t0}, 1, v{vG}")
    if not ph:
        a(f"v_mad_u32_u24 v{vp}, v{vo}, 14, v{t0}")
        a(f"v_mul_u32_u24 v{vp}, {KB_STR}, v{vp}")
        a(f"v_lshl_add_u32 v{vp}, v{vI}, 4, v{vp}")
        a(f"s_mul_i32 s{sA}, s{sDC}, 1280")
        a(f"s_mul_i32 s{sB}, s{sW}, {54 * KB_STR}")
        a(f"s_add_u32 s{sA}, s{sA}, s{sB}")
        a(f"v_add_u32 v{vp}, s{sA}, v{vp}")
    a(f"v_lshlrev_b32 v{vo}, 15, v{vo}")
    a(f"v_lshl_add_u32 v{vo}, v{vI}, 5, v{vo}")
    a(f"v_lshl_add_u32 v{vo}, v{t0}, 4, v{vo}")
    a(f"s_lshl_b32 s{sA}, s{sTB}, 16")
    a(f"s_lshl4_add_u32 s{sA}, s{sFL}, s{sA}")
    a(f"s_lshl_b32 s{sB}, s{sW}, 9")
    a(f"s_add_u32 s{sA}, s{sA}, s{sB}")
    a(f"v_add_u32 v{vo}, s{sA}, v{vo}")
    if ph:
        a(f"s_add_u32 s{SRDP}, s{SRDP}, {WS['W2T'] - WS['WA2']}")
        a(f"s_addc_u32 s{SRDP + 1}, s{SRDP + 1}, 0")
    else:
        a(f"v_add_u32 v{t0}, s{sMSK}, v{vo}")
        srd_ws(a, SRDP, "WA2", 218 * KB_STR)
        a(f"s_add_u32 s{sA}, s{sW}, 1")
        a(f"s_mul_i32 s{sA}, s{sA}, {54 * KB_STR}")
        a(f"s_cmp_eq_u32 s{sW}, 3")
        a(f"s_cselect_b32 s{SRDP + 2}, s{SRDP + 2}, s{sA}")
        srd_ws(a, SRDF, "FLAG", FLAG_SIZE)
        srd_ws(a, SRDQ, "H", H_SIZE)


def pre_ops(ph, t0):
    po, ops = [], []
    for k in range(0 if ph else 7):
        po.append([f"s_mov_b32 s{sOQ}, {k * 2 * H_STR}",
                   f"buffer_store_dwordx4 {R(aPO, 4)}, v{t0 if k == 6 else vo}, s[{SRDQ}:{SRDQ + 3}], s{sOQ} offen sc1"])
    n = 10 if ph else 35
    for k in range(n):
        g = [f"buffer_load_dwordx4 v{vW}, s[{SRDW}:{SRDW + 3}], m0 offen offset:{(k & 3) * 1024} lds"]
        if k & 3 == 3:
            g.append("s_add_u32 m0, m0, 4096")
        ops.append(g)
    for u in range(FZ.pre_p[ph]):
        for p in range(5):
            g = [f"buffer_load_dwordx4 {R(preg(u, p), 4)}, v{vp}, s[{SRDP}:{SRDP + 3}], s{sOP} offen offset:{p * 256}"]
            ops.append(([f"s_mov_b32 s{sOP}, {kblock(u) * KB_STR}"] if p == 0 else []) + g)
    out = []
    for k, op in enumerate(ops):
        out.append(op)
        if k % FZ.po_every == FZ.po_every - 1 and po:
            out.append(po.pop(0))
    assert not po
    return out


class Paced:
    def __init__(self, a, ops, period):
        self.a, self.ops, self.period = a, ops, period
        self.on = False
        self.t = 0

    def burst(self, n):
        for _ in range(min(n, len(self.ops))):
            for x in self.ops.pop(0):
                self.a(x)

    def __call__(self, text, tag=None):
        self.a(text, tag)
        if self.on:
            op = text.split()[0]
            self.t += 16 if op.startswith("v_mfma") else 8 if op in TRANS else 4
            if self.t >= self.period:
                self.t -= self.period
                self.burst(1)

    def __getattr__(self, n):
        return getattr(self.a, n)


def budget(a, out):
    a(f"s_add_u32 s{sCNT}, s{sCNT}, 1")
    a(f"s_cmp_ge_u32 s{sCNT}, {SPIN_MAX}")
    a(f"s_cbranch_scc1 {out}")


def col_phase(a0, ph):
    vx, vw, vl0, vt0, vh = 4, 5, 6, 12, 13
    raw, ss, wraw = 16, 32, 40
    M1, M2 = 56, 88
    T1, T2 = 120, 136
    ACC, FO, TMP, WU0 = 152, 184, 200, 232
    vmI, fi, fg, fa, fb = 176, 177, 178, 179, 180
    SL = ACC
    FGR = [TMP + 4 * k for k in range(8)] + [ss, ss + 4, 248, 252]
    WU = (WU0, T1)
    a = Paced(a0, pre_ops(ph, vt0), FZ.period[ph])
    nm = f"c{ph + 1}"

    def point(name):
        mk(a0, nm + name)
        if name == FZ.hint_at[ph]:
            a0(f"buffer_store_dword v{vh}, v{vh}, s[{SRDF}:{SRDF + 3}], 0 offen sc1")
        if name == FZ.stop[ph]:
            a.on = False

    a(f"s_mul_i32 s{sB}, s{sW}, 3072")
    a(f"v_lshlrev_b32 v{vl0}, 4, v0")
    a(f"v_add_u32 v{vx}, s{sB}, v{vl0}")
    if not ph:
        a(f"s_lshl_b32 s{sB}, s{sW}, 10")
        a(f"v_add_u32 v{vw}, s{sB}, v{vl0}")
    a(f"s_lshl_b32 s{sF}, s{sT}, 14")

    def data_loads(e):
        if ph:
            for k in range(4):
                e(f"buffer_load_dwordx4 {V(raw + 4 * k, 4)}, v{vx}, s[{SRD0}:{SRD0 + 3}], s{sF} offen offset:{k * 1024} sc1")
            for k in range(4):
                e(f"buffer_load_dwordx3 {V(SL + 4 * k, 3)}, v{vx}, s[{SRD1}:{SRD1 + 3}], 0 offen offset:{k * 1024} sc1")
        else:
            for t in range(2):
                e(f"buffer_load_dwordx4 {V(ss + 4 * t, 4)}, v{vw}, s[{SRD1}:{SRD1 + 3}], 0 offen offset:{t * 1024}")
            for k in range(4):
                e(f"buffer_load_dwordx4 {V(raw + 4 * k, 4)}, v{vx}, s[{SRD0}:{SRD0 + 3}], s{sF} offen offset:{k * 1024} sc1")

    def early_loads():
        if not ph:
            a("s_waitcnt lgkmcnt(0)")
            srd_ws(a, SRD0, "XP0", XP_SIZE)
            srd_ws(a, SRD1, "SS0", SS_SIZE)
            data_loads(a)
        srd_ws(a, SRD2, "WC", WC_SIZE)
        for k in range(4):
            a(f"buffer_load_dwordx4 {V(wraw + 4 * k, 4)}, v{vx}, s[{SRD2}:{SRD2 + 3}], s{sF} offen offset:{k * 1024}")
        point("ld")
        pre_setup(a, ph, vt0)
        a(f"s_lshl_b32 s{sA}, s{sT}, 9")
        a(f"s_add_u32 s{sA}, s{sA}, {HINT[ph]}")
        a(f"v_lshl_add_u32 v{vh}, v0, 20, s{sA}")
        if ph:
            a("s_barrier")
        a.burst(FZ.burst[ph][0])
        a.on = not ph

    def pos(base, k, c):
        return base + (k >> 1) * 4 + (k & 1) * 2 + c

    if ph:
        early_loads()
    for kk in (1, 2, 3):
        a(f"v_xor_b32 v{vl0 + kk}, {kk * 1024}, v{vl0}")
    a(f"v_and_b32 v{vmI}, 1, v{vI}")
    a(f"v_mul_u32_u24 v{vmI}, 0x8000, v{vmI}")
    a(f"v_lshl_or_b32 v{vmI}, v{vmI}, 16, v{vmI}")
    a(f"v_cvt_f32_u32 v{fi}, v{vI}")
    a(f"v_lshlrev_b32 v{fg}, 2, v{vG}")
    a(f"v_cvt_f32_u32 v{fg}, v{fg}")

    def m1(qb, t, var):
        return M1 + ((qb * 2 + t) * 2 + var) * 4

    def m2(kk, var):
        return M2 + (kk * 2 + var) * 4

    a(f"v_mul_f32 v{fa}, {fx(1 / 32)}, v{fi}")
    a(f"v_mul_f32 v{TMP}, v{fg}, v{fa}")
    for jj in range(1, 4):
        a(f"v_fmamk_f32 v{TMP + 3 * jj}, v{fa}, {fx(float(jj))}, v{TMP}")
    for jj in range(4):
        t = TMP + 3 * jj
        a(f"v_cos_f32 v{t + 1}, v{t}")
        a(f"v_sin_f32 v{t + 2}, v{t}")
    for jj in range(4):
        t = TMP + 3 * jj
        n = "-" if jj & 1 else ""
        m = "" if jj & 1 else "-"
        a(f"v_cvt_pk_bf16_f32 v{m1(0, 0, 0) + jj}, v{t + 1}, v{t + 2}")
        a(f"v_cvt_pk_bf16_f32 v{m1(0, 0, 1) + jj}, -v{t + 2}, v{t + 1}")
        a(f"v_cvt_pk_bf16_f32 v{m1(1, 0, 0) + jj}, {n}v{t + 1}, {n}v{t + 2}")
        a(f"v_cvt_pk_bf16_f32 v{m1(1, 0, 1) + jj}, {m}v{t + 2}, {n}v{t + 1}")
    for qb in range(2):
        for var in range(2):
            for jj in range(4):
                a(f"v_xor_b32 v{m1(qb, 1, var) + jj}, v{vmI}, v{m1(qb, 0, var) + jj}")

    a(f"s_lshl_b32 s{sK0}, s{sW}, 4")
    a(f"v_cvt_f32_u32 v{fb}, s{sK0}")
    a(f"v_add_f32 v{TMP + 24}, v{fb}, v{fg}")
    a(f"v_add_f32 v{fb}, v{fb}, v{fi}")
    a(f"v_mul_f32 v{TMP + 25}, {fx(1 / 2048)}, v{fi}")
    a(f"v_add_f32 v{TMP + 26}, {fx(16 / 2048)}, v{TMP + 25}")
    for r in range(4):
        a(f"v_add_f32 v{TMP + r}, {fx(float(r))}, v{TMP + 24}")
    for qb in range(2):
        for r in range(4):
            t = TMP + 4 + (qb * 4 + r)
            a(f"v_mul_f32 v{t}, v{TMP + r}, v{TMP + 25 + qb}")
            a(f"v_cos_f32 v{T1 + qb * 8 + r}, v{t}")
            a(f"v_sin_f32 v{T1 + qb * 8 + 4 + r}, v{t}")
    if not ph:
        early_loads()

    a(f"v_mul_f32 v{fa}, {fx(1 / 64)}, v{fb}")
    a(f"s_xor_b32 s{sK0}, s{sK0}, 16")
    a(f"v_cvt_f32_u32 v{TMP + 24}, s{sK0}")
    a(f"v_add_f32 v{TMP + 24}, v{TMP + 24}, v{fg}")
    for kk in range(2):
        for r in range(4):
            t = TMP + 12 + 3 * r
            if kk == 0:
                a(f"v_mul_f32 v{t}, v{TMP + r}, v{fa}")
            else:
                a(f"v_add_f32 v{t}, {fx(float(r))}, v{TMP + 24}")
                a(f"v_mul_f32 v{t}, v{t}, v{fa}")
            a(f"v_cos_f32 v{t + 1}, v{t}")
            a(f"v_sin_f32 v{t + 2}, v{t}")
        for r in range(4):
            t = TMP + 12 + 3 * r
            a(f"v_cvt_pk_bf16_f32 v{m2(kk, 0) + r}, v{t + 1}, v{t + 2}")
            a(f"v_cvt_pk_bf16_f32 v{m2(kk, 1) + r}, -v{t + 2}, v{t + 1}")
    for kk in range(2):
        for var in range(2):
            for r in range(4):
                a(f"v_xor_b32 v{m2(kk + 2, var) + r}, v{vmI}, v{m2(kk, var) + r}")

    if ph:
        point("cs")
        if FZ.post:
            a(f"v_lshlrev_b32 v{TMP}, 9, v0")
            a0.label(f"{nm}_poll")
            a0(f"buffer_load_dword v{TMP + 1}, v{TMP}, s[{SRDF}:{SRDF + 3}], 0 offen offset:{POST} sc1")
            budget(a0, f"{nm}_seen")
            a0(f"v_cmp_eq_u32 vcc, 0, v{TMP + 1}")
            a0(f"s_cbranch_vccnz {nm}_poll")
            a0.label(f"{nm}_seen")
            a0("s_waitcnt vmcnt(0)")
        else:
            a.wait_tag("out")
        point("dr")
        if FZ.halt == 25:
            mk.stash(a0, TMP)
            return 0
        data_loads(a)
        a.burst(FZ.burst[ph][1])
        mk.stash(a0, TMP)

    a(f"v_mul_f32 v{fa}, {fx(1 / 2048)}, v{fb}")
    a(f"v_mul_f32 v{TMP}, v{fg}, v{fa}")
    for k in range(1, 8):
        a(f"v_fmamk_f32 v{TMP + k}, v{fa}, {fx(float(16 * (k >> 2) + (k & 3)))}, v{TMP}")
    for k in range(8):
        u, r = divmod(k, 4)
        a(f"v_cos_f32 v{T2 + u * 8 + r}, v{TMP + k}")
        a(f"v_sin_f32 v{T2 + u * 8 + 4 + r}, v{TMP + k}")

    a0(f"s_mov_b32 s{sK1}, 0xffff0000")
    a0(f"s_cmp_eq_u32 s{sT}, 0")
    a0(f"s_cselect_b32 s{sK2}, 0, s{sK1}")
    a0(f"s_mov_b32 s{sK0}, {fx(-1 / 2048)}")
    a0(f"s_cselect_b32 s{sK3}, 0, s{sK0}")
    a(f"s_mov_b32 s{sA}, {fx(1 / DM)}")
    a(f"s_mov_b32 s{sB}, {fx(1 / 2048)}")
    a(f"s_mov_b32 s{sC}, {UP[ph] * 0x800080:#x}")
    a(f"v_mov_b32 v{fa}, {fx(1e-5)}")
    point("k")
    if ph:
        def test(e):
            e(f"v_max3_f32 v{fi}, |v{raw}|, |v{raw + 2}|, |v{raw + 4}|")
            e(f"v_max3_f32 v{fb}, |v{raw + 6}|, |v{raw + 8}|, |v{raw + 10}|")
            e(f"v_max3_f32 v{fi}, v{fi}, |v{raw + 12}|, |v{raw + 14}|")
            e(f"v_max_f32 v{fi}, v{fi}, v{fb}")
            e(f"v_min3_f32 v{fg}, v{SL + 2}, v{SL + 6}, v{SL + 10}")
            e(f"v_min_f32 v{fg}, v{fg}, v{SL + 14}")
            e(f"v_fmamk_f32 v{fg}, v{fi}, {fx(-8 / T_X[0])}, v{fg}")
            e(f"v_cmp_gt_f32 vcc, {fx(7.5)}, v{fg}")

        def var_ops(e):
            for k in range(8):
                e(f"v_fma_f32 v{ss + k}, v{SL + 4 * (k >> 1) + (k & 1)}, s{sA}, v{fa}")

        test(a0)
        var_ops(a0)
        a0(f"s_cbranch_vccnz {nm}_again", tag="nopad")
        a0.label(f"{nm}_ok", keep=True)

        def again():
            a0.label(f"{nm}_again")
            budget(a0, f"{nm}_ok")
            data_loads(a0)
            a0("s_waitcnt vmcnt(0)")
            test(a0)
            var_ops(a0)
            a0(f"s_cbranch_vccnz {nm}_again")
            a0(f"s_branch {nm}_ok")
        a0.tail.append(again)
        a.on = True
    else:
        for k in range(8):
            a(f"v_fma_f32 v{ss + k}, v{ss + k}, s{sA}, v{fa}")
    for k in range(8):
        a(f"v_rsq_f32 v{ss + k}, v{ss + k}")

    def acc(c, b, var):
        return ACC + c * 16 + (b * 2 + var) * 4

    def fo(c, b):
        return FO + c * 8 + b * 4

    def unpack(dst_, base, c, mask):
        ops = []
        for k in range(8):
            ops.append(f"v_lshlrev_b32 v{dst_ + 2 * k}, 16, v{pos(base, k, c)}")
            ops.append(f"v_and_b32 v{dst_ + 2 * k + 1}, s{mask}, v{pos(base, k, c)}")
        return ops

    def unpack_w(c):
        ops = []
        for k in range(8):
            u, r = divmod(k, 4)
            ops.append(f"v_lshlrev_b32 v{WU[c] + u * 8 + r}, 16, v{pos(wraw, k, c)}")
            ops.append(f"v_and_b32 v{WU[c] + u * 8 + 4 + r}, s{sK1}, v{pos(wraw, k, c)}")
        return ops

    def scale(c):
        t = TMP + 16 * c
        for k in range(8):
            h = k & 1
            a(f"v_pk_mul_f32 {V(t + 2 * k, 2)}, {V(t + 2 * k, 2)}, {V(ss + k - h, 2)} op_sel:[0,{h}] op_sel_hi:[1,{h}]")
        for k in range(8):
            a(f"v_cvt_pk_bf16_f32 v{fo(c, 0) + k}, v{t + 2 * k}, v{t + 2 * k + 1}")

    sc = Sched(a)

    def stage_a(c):
        for t in range(2):
            for qb in range(2):
                for var in range(2):
                    sc.mfma(acc(c, qb, var), fo(c, t), m1(qb, t, var), None if t == 0 else acc(c, qb, var))
        sc.flush()

    for op in unpack(TMP, raw, 0, sK2):
        a(op)
    scale(0)
    point("s0")
    for op in unpack(TMP + 16, raw, 1, sK1):
        sc.add(op)
    stage_a(0)
    scale(1)
    for op in unpack_w(0):
        sc.add(op)
    stage_a(1)
    point("a")

    def mm(c, b, var, f, kk, data_is_a):
        cc = None if kk == 0 else acc(c, b, var)
        if data_is_a:
            sc.mfma(acc(c, b, var), f, m2(kk, var), cc)
        else:
            sc.mfma(acc(c, b, var), m2(kk, var), f, cc)

    def exchange(n, data_is_a, cm, fill_own, fill_rest):
        for c in range(2):
            for b in range(2):
                cm(c, b)
                if n == 2 and c == b == 0:
                    a("s_barrier")
                a(f"ds_write_b128 v{vl0}, {V(fo(c, b), 4)} offset:{(c * 2 + b) * 4096}")
        a("s_waitcnt lgkmcnt(0)")
        a("s_barrier")
        point(f"b{n}")
        for c in range(2):
            for kk in (1, 2, 3):
                for b in range(2):
                    f = FGR[(c * 3 + kk - 1) * 2 + b]
                    a(f"ds_read_b128 {R(f, 4)}, v{vl0 + kk} offset:{(c * 2 + b) * 4096}")
        for op in fill_own:
            sc.add(op)
        for c in range(2):
            for b in range(2):
                for var in range(2):
                    mm(c, b, var, fo(c, b), 0, data_is_a)
        for op in fill_rest:
            sc.add(op)
        for c in range(2):
            for kk in (1, 2, 3):
                for b in range(2):
                    for var in range(2):
                        mm(c, b, var, FGR[(c * 3 + kk - 1) * 2 + b], kk, data_is_a)
        sc.flush()
        point(f"x{n}")

    def cm1(c, b):
        cmul_pack(a, fo(c, b), acc(c, b, 0), acc(c, b, 1), T1 + b * 8, T1 + b * 8 + 4, TMP + 8 * (2 * c + b))

    def cm2(c, b):
        cmul_pack(a, fo(c, b), acc(c, b, 0), acc(c, b, 1), WU[c] + b * 8, WU[c] + b * 8 + 4, TMP + 8 * (2 * c + b),
                  conj_w=True)

    exchange(1, False, cm1, unpack_w(1), [])
    exchange(2, True, cm2, unpack(WU[0], raw, 0, sK1), unpack(WU[1], raw, 1, sK1))
    for c in range(2):
        for u in range(2):
            cmul_pack(a, fo(c, u), acc(c, u, 0), acc(c, u, 1), T2 + u * 8, T2 + u * 8 + 4, TMP + 8 * (2 * c + u))
    while any("lds" in g[0] or "store" in g[-1] for g in a.ops):
        a.burst(1)
    a.on = False
    for t in range(2):
        for c in range(2):
            for u in range(2):
                for var in range(2):
                    sc.mfma(acc(c, t, var), m1(t, u, var), fo(c, u), None if u == 0 else acc(c, t, var))
        rdy = sc.n + 2
        for rh in range(2):
            for c in range(2):
                for rl in range(2):
                    k = 4 * t + 2 * rh + rl
                    w = WU[c] + 2 * k
                    sc.add(f"v_fma_f32 v{w}, v{acc(c, t, 0) + 2 * rh + rl}, s{sB}, v{w}", rdy)
                    sc.add(f"v_fma_f32 v{w + 1}, v{acc(c, t, 1) + 2 * rh + rl}, s{sK0 if c else sK3}, v{w + 1}", rdy)
            for c in range(2):
                for rl in range(2):
                    k = 4 * t + 2 * rh + rl
                    w = WU[c] + 2 * k
                    sc.add(f"v_cvt_pk_bf16_f32 v{pos(raw, k, c)}, v{w}, v{w + 1}", rdy)
            k = 2 * t + rh
            for j in range(4):
                sc.add(f"v_add_u32 v{raw + 4 * k + j}, s{sC}, v{raw + 4 * k + j}", rdy)
            sc.add(f"buffer_store_dwordx4 {V(raw + 4 * k, 4)}, v{vx}, s[{SRD0}:{SRD0 + 3}], s{sF} offen offset:{k * 1024} sc1", rdy)
    sc.flush()
    point("st")
    n = len(a.ops)
    print(f"{nm}: {n} requests after the stores", file=sys.stderr)
    a.burst(n)
    mk.stash(a0, TMP)
    return n


def idle_phase(a, ph):
    nm = f"n{ph + 1}"
    vt0, vh = 12, 13
    if not ph:
        a("s_waitcnt lgkmcnt(0)")
        if FZ.code_pf:
            srd_code(a, SRD1, "mk_kernel")
            a(f"s_sub_u32 s{sA}, s{sT}, {NCOL}")
            a(f"s_lshr_b32 s{sA}, s{sA}, 3")
            a(f"s_lshl_b32 s{sA}, s{sA}, 14")
            a(f"v_lshl_add_u32 v{vh}, v0, 6, s{sA}")
            a(f"buffer_load_dword {R(aDUM)}, v{vh}, s[{SRD1}:{SRD1 + 3}], 0 offen")
        srd_ws(a, SRD0, "XP0", XP_SIZE)
    if FZ.ft_pf >> (1 - ph) & 1:
        srd_table(a, SRD1, "ft2")
        a(f"s_sub_u32 s{sA}, s{sT}, {NCOL}")
        a(f"s_lshr_b32 s{sA}, s{sA}, 3")
        a(f"s_mul_i32 s{sA}, s{sA}, {3 << 15}")
        a(f"v_lshl_add_u32 v{vh}, v0, 7, s{sA}")
        for k in range(3):
            a(f"s_mov_b32 s{sOP}, {k << 15}")
            a.raw(f"    buffer_load_dword {R(aDUM)}, v{vh}, s[{SRD1}:{SRD1 + 3}], s{sOP} offen")
    pre_setup(a, ph, vt0)
    if ph:
        a("s_barrier")
    for g in pre_ops(ph, vt0):
        for x in g:
            a(x)
    mk(a, nm + "is")
    a(f"v_mul_u32_u24 v{vh}, 5, v{vL}")
    a(f"v_lshrrev_b32 v{vh}, 1, v{vh}")
    a(f"v_lshlrev_b32 v{vh}, 9, v{vh}")
    a(f"s_mov_b32 s{sOP}, {HINT[ph]}")
    a("s_waitcnt vmcnt(0)")
    mk(a, nm + "dn")
    mk.stash(a, 16)
    if FZ.halt == 25 and ph:
        return
    a(f"s_cmp_lg_u32 s{sW}, 0")
    a(f"s_cbranch_scc1 {nm}_ok")
    a.label(f"{nm}_spin")
    a(f"buffer_load_dword v{vt0}, v{vh}, s[{SRDF}:{SRDF + 3}], s{sOP} offen sc1")
    budget(a, f"{nm}_ok")
    a(f"v_cmp_eq_u32 vcc, 0, v{vt0}")
    a(f"s_cbranch_vccnz {nm}_spin")
    a.label(f"{nm}_ok")
    a("s_barrier")


def classify(text):
    o = text.split()[0]
    if o.startswith("v_pk_") or o.startswith("v_dot2"):
        return "p", 4
    if o in TRANS or o.startswith("v_swap") or o.startswith("v_permlane"):
        return "v", 8
    if o.startswith("v_"):
        return "v", 4
    if o.startswith("ds_"):
        return "d", 4
    if o.startswith("buffer_"):
        return "b", 4
    if o.startswith("s_cbranch"):
        return "j", 10
    return "s", 4


class Item:
    def __init__(self, kind, cost, fn, key=None, gate=None, until=None, alt=None):
        self.kind, self.cost, self.fn, self.key, self.gate, self.until, self.alt = kind, cost, fn, key, gate, until, alt


class Slots:
    def __init__(self, a):
        self.a = a
        self.t, self.tM, self.tv, self.tc = 0, -100, -100, -100
        self.done, self.eta = {}, {}
        self.C, self.L, self.M, self.G = [], [], [], []
        self.fly = []
        self.feed = []
        self.pk = True
        self.stall = 0

    def item(self, op, key=None, gate=None, tag=None):
        k, c = classify(op)

        def fn():
            if op.startswith("v_cmp"):
                self.tc = self.t
            self.a(op, tag=tag)
        return Item(k, c, fn, key, gate)

    def mem(self, key, store=False, part=1.0):
        last = self.fly[-1] if self.fly else 0
        self.fly.append(max(self.t + FZ.lat, last + part * (FZ.srow if store else FZ.row)))
        self.eta[key] = self.fly[-1]
        if FZ.verbose:
            print(f"  {self.t:6.0f} issue {key} eta {self.fly[-1]:.0f} fly {self.inflight()}", file=sys.stderr)

    def inflight(self):
        return sum(1 for x in self.fly[-FZ.cap - 4:] if x > self.t)

    def run(self, it):
        if it.kind in "db":
            self.t = max(self.t, self.tv + 12)
        elif it.kind == "p":
            self.t = max(self.t, self.tM + 28)
        elif it.kind == "j":
            self.t = max(self.t, self.tc + 26)
        if it.kind in "vp":
            self.tv = self.t
        it.fn()
        self.t += it.cost
        if it.until is not None and self.eta.get(it.until, 0) > self.t:
            self.stall += self.eta[it.until] - self.t
            if FZ.verbose:
                print(f"  {self.t:6.0f} STALL {it.until} {self.eta[it.until] - self.t:.0f}", file=sys.stderr)
            self.t = self.eta[it.until]
        if it.key is not None:
            self.done[it.key] = self.t

    def ready(self, it):
        if it.kind == "j" and self.t < self.tc + 26:
            return False
        return it.gate is None or it.gate()

    def expand(self):
        while self.G and self.G[0].kind == "p" and not self.pk and self.G[0].alt:
            self.G[:1] = self.G[0].alt

    def heads(self, q, room, small):
        out = []
        for it in q:
            if it.kind == "p" or not self.ready(it) or it.cost > room or small and it.cost > 4:
                break
            if it.kind in "db" and any(x.kind == "v" for x in out) or it.kind == "j" and out:
                break
            out.append(it)
            room -= it.cost
        return out

    def place(self, picks):
        seqs = []
        for q, n in picks:
            seqs.append(q[:n])
            del q[:n]
        rank = lambda s: 0 if any(x.kind in "db" for x in s) else 2 if any(x.kind == "v" for x in s) else 1
        seqs.sort(key=lambda s: (rank(s), any(x.kind == "v" or x.until is not None for x in s)))
        for s in seqs:
            for it in s:
                self.run(it)

    def fill(self, room, streams, small=False):
        picks = []
        for q in streams:
            h = self.heads(q, room, small)
            if h:
                picks.append((q, len(h)))
                room -= sum(x.cost for x in h)
        return picks, room

    def mf(self, d, x, y, c, wait=None, urgent=False):
        self.t = self.tM = max(self.t, self.tM + 16)
        mfma(self.a, d, x, y, c)
        self.t += 8
        for f in self.feed:
            f()
        self.expand()
        W = [wait] if wait else []
        n = next((k for k, it in enumerate(self.G[:5]) if it.kind == "p"), None)
        if n is not None and self.pk:
            pre = self.G[:n + 1]
            cost = sum(x.cost for x in pre[:-1])
            if cost <= 16 and all(self.ready(x) and x.kind in "vps" for x in pre):
                picks, room = self.fill(20 - cost, (W, self.C, self.L, self.M), small=True)
                self.place(picks)
                while self.G and (n > 0 or self.G[0].kind == "p" and self.ready(self.G[0])):
                    self.run(self.G.pop(0))
                    n -= 1
                if self.G and self.G[0].kind in "vs" and self.G[0].until is None and self.ready(self.G[0]):
                    self.run(self.G.pop(0))
                else:
                    self.t += 4
                return
        if not W and self.C and self.C[0].cost >= 8 and self.ready(self.C[0]):
            self.run(self.C.pop(0))
            return
        picks, room = self.fill(8, (W, self.C, self.L, self.M, self.G), small=True)
        must = W or urgent or any(q is self.C for q, _ in picks)
        if room and not must and self.G and self.G[0].cost == 8 and self.ready(self.G[0]):
            self.run(self.G.pop(0))
            return
        self.place(picks)

    def need(self, key):
        while key not in self.done:
            q = next(q for q in (self.C, self.L, self.M, self.G) if any(it.key == key for it in q))
            self.run(q.pop(0))

    def pure(self, key):
        while key not in self.done:
            it = self.G.pop(0)
            self.run(it)
            if it.cost == 8:
                for f in self.feed:
                    f()
                picks, _ = self.fill(8, (self.M, self.L, self.C), small=True)
                self.place(picks)

    def flush(self):
        for q in (self.L, self.M, self.C, self.G):
            while q:
                self.run(q.pop(0))


def mlp_phase(a, final, behind):
    name = f"m{final + 1}"
    vx, vl0, vx2, vck, ve, vfl = 4, 5, 8, 9, 12, 14
    vq = (13, 4, 8, 10)
    X, ACC1, Z, vpl, vmk, CC = 16, 176, 232, 248, 249, 250
    GR, T = Z, Z + 8
    ACC2, EACC = 96, 176
    DIAG = (4, 6, 30, 70)
    sKC, sRS = sK0, sK2
    vo2, vs, vout, vor, vrd, vpk = 200, 201, 202, 203, 204, 205
    vred = (5, 6, 7)
    RES, RU, TMP = 208, 218, 244
    QS = (16, 32, 48, 64, 80, 176)
    QD = len(QS)
    SRDX, SRDH = SRD0, SRD3
    s = Slots(a)
    done = s.done
    act = {}
    log, sst, tested = [], {}, set()

    def fine(*key):
        if FZ.verbose:
            print(f"{s.t:6.0f} {key}", file=sys.stderr)
        if FZ.marks is not None:
            mk(a, name + key[0] + str(key[1]))
        for f in act.pop(key, ()):
            f()

    def at(key, f):
        act.setdefault(tuple(key), []).append(f)

    def note(tag):
        mk(a, name + tag)
        print(f"{name}{tag:4s} t={s.t:6.0f} stall={s.stall:.0f}", file=sys.stderr)

    def qreg(u, q):
        return QS[u % QD] + 4 * q

    def put(q, op, key=None, gate=None):
        q.append(s.item(op, key, gate))

    def vm(q, text, sreg=None, sexp=None, key=None, tag=None, again=True, gate=None, part=1.0, first=" sc1", m0=None):
        if m0 is not None and sst.get("m0") != m0:
            put(q, m0, gate=gate)
            sst["m0"] = m0
        if sreg is not None and sst.get(sreg) != sexp:
            put(q, sexp.replace("@", f"s{sreg}"), gate=gate)
            sst[sreg] = sexp

        def emit():
            a(text.replace("@", f"s{sreg}").replace(" sc1", first), tag=tag)
            log.append((key, text if again else None, sexp))
            s.mem(key, "store" in text, part)
        q.append(Item("b", 4, emit, key, gate))

    def wait_item(key, regs):
        return Item("s", 4, lambda: a.wait_regs(*regs), until=key)

    def lower(regs, thr):
        ops, r = [], [f"|v{x}|" for x in regs]
        while len(r) > 1:
            n = min(3, len(r))
            ops.append(f"{'v_min3_f32' if n == 3 else 'v_min_f32_e64'} v{vck}, " + ", ".join(r[:n]))
            r[:n] = [f"v{vck}"]
        return ops + [f"v_cmp_gt_f32 vcc, {fx(thr)}, v{vck}"]

    def unset(regs):
        ops, r = [], [f"v{x}" for x in regs]
        if len(r) > 2:
            n = len(r) - 1
            ops.append(f"{'v_max3_u32' if n == 3 else 'v_max_u32'} v{vck}, " + ", ".join(r[:n]))
            r[:n] = [f"v{vck}"]
        return ops + [f"v_cmp_u_f32 vcc, {r[0]}, {r[1]}"]

    def verify(keys, regs, test, lab, key):
        for k in keys:
            plan(k)

        def branch():
            idx = [k for k, e in enumerate(log) if e[0] in keys]
            rep = log[idx[0]:]
            assert len(idx) == len(keys) and not tested & {e[0] for e in rep}, lab
            tested.update(keys)
            young = len(log) - 1 - idx[-1]
            a(f"s_cbranch_vccnz {lab}_again", tag="nopad")
            a.label(f"{lab}_ok", keep=True)

            def stub():
                a.label(f"{lab}_again")
                a("s_nop 7")
                budget(a, f"{lab}_out")
                a(f"s_waitcnt vmcnt({max(0, 62 - len(rep))})")
                last = None
                for _, text, sexp in rep:
                    if text is None:
                        a.raw(f"    buffer_load_dword {R(aDUM)}, off, s[{SRDP}:{SRDP + 3}], 0")
                        continue
                    if sexp is not None and sexp != last:
                        a(sexp.replace("@", f"s{sRP}"))
                        last = sexp
                    a.raw("    " + text.replace("@", f"s{sRP}"))
                a(f"s_waitcnt vmcnt({young})")
                for x in test:
                    a(x)
                a(f"s_cbranch_vccnz {lab}_again")
                a.label(f"{lab}_out")
                a(f"s_branch {lab}_ok")
            a.tail.append(stub)
        w = wait_item(keys[-1], [V(r, 4) for r in regs])
        f0 = w.fn
        w.fn = lambda: ([s.need(k) for k in keys], f0())
        w.gate = lambda: all(k in done for k in keys)
        s.C.append(w)
        for x in test:
            put(s.C, x)
        s.C.append(Item("j", 10, branch, key))

    def xr(t, st):
        return X + t * 8 + st * 4

    def acc(ft, st):
        return ACC1 + (ft * 2 + st) * 4

    queue, sched = [], set()

    def x_load(t, h):
        return ("x", t, h), lambda key: vm(
            s.M, f"buffer_load_dwordx4 {V(xr(t, h), 4)}, v{vx2 if h else vx}, s[{SRDX}:{SRDX + 3}], @ offen sc1",
            sOQ, f"s_mov_b32 @, {8 * (19 - t) * XP_STR}", key, first=FZ.xf[final])

    def e_load(j):
        return ("e", j), lambda key: vm(
            s.M, f"buffer_load_dwordx4 v{vl0}, s[{SRD4}:{SRD4 + 3}], m0 offen offset:{(j & 3) * 1024} lds",
            key=key, tag="e", again=False, m0=f"s_add_u32 m0, s{sEB}, {2 * TILE + (j >> 2) * 4096}")

    def k_load(u, p):
        return ("k", u, p), lambda key: vm(
            s.M, f"buffer_load_dwordx4 v{vp}, s[{SRDP}:{SRDP + 3}], @ offen offset:{p * 256} lds",
            sF, f"s_mov_b32 @, {kblock(u) * KB_STR}", key, tag=f"k{u}", again=False,
            m0=f"s_add_u32 m0, s{sPK}, {(u - NP) * TILE + p * 768}")

    def p_load(u, p):
        return ("p", u, p), lambda key: vm(
            s.M, f"buffer_load_dwordx4 {R(preg(u, p), 4)}, v{vp}, s[{SRDP}:{SRDP + 3}], @ offen offset:{p * 256}",
            sF, f"s_mov_b32 @, {kblock(u) * KB_STR}", key)

    def q_load(u, q):
        return ("q", u, q), lambda key: vm(
            s.M, f"buffer_load_dwordx4 {V(qreg(u, q), 4)}, v{vq[q]}, s[{SRDQ}:{SRDQ + 3}], @ offen sc1",
            sOQ, f"s_mov_b32 @, {kblock(u) * H_STR}", key, first=FZ.qf[final])

    def r_load(p):
        srd_ = SRD2 if final else SRDX
        return ("r", p), lambda key: vm(
            s.M, f"buffer_load_dwordx2 {V(RES + 2 * p, 2)}, v{vo2}, s[{srd_}:{srd_ + 3}], @ offen sc1",
            sOP, f"s_mov_b32 @, {p * 4 * XP_STR}", key, part=0.6)

    def push(item, *gates, after=None, chain=None):
        queue.append((item[0], item[1], gates, after, chain))

    def issue(force=False):
        seen = set()
        for k, (key, f, gates, after, chain) in enumerate(queue):
            ok = all(g in done for g in gates) and chain not in seen
            if ok and after and not force:
                ok = done[after[0]] + after[1] <= s.t
            if ok:
                del queue[k]
                f(key)
                sched.add(key)
                return True
            if chain:
                seen.add(chain)
        return False

    def plan(key):
        while key not in sched:
            assert issue(True), key

    def feed_m():
        if not any(it.kind == "b" for it in s.M) and s.inflight() < FZ.cap:
            issue()
    s.feed.append(feed_m)

    KT = FZ.ktail
    units = [[(u, q) for q in range(4)] for u in range(NS - KT)]
    if FZ.split0:
        units[:1] = [units[0][:2], units[0][2:]]
    units += [[(u, q) for u in range(NS - KT, NS)] for q in (1, 2, 3, 0)]
    xorder = list(range(FZ.dbl[0] + 1)) + [19] + list(range(FZ.dbl[0] + 1, 19))
    for t in xorder:
        push(x_load(t, 0))
        push(x_load(t, 1))
    if final:
        for j in range(15):
            push(e_load(j), "ebar")
    for u in range(FZ.pre_p[final]):
        for p in range(5):
            done[("p", u, p)] = 0
            sched.add(("p", u, p))
    pushed = set(range(FZ.pre_p[final]))
    parked = set(range(NP, NP + FZ.park[final]))

    def push_p(u):
        if u < NS and u not in pushed:
            pushed.add(u)
            for p in range(5):
                if u in parked:
                    push(k_load(u, p), "xok" if u == NP else "ebar")
                else:
                    push(p_load(u, p), *(["xok"] if u < NP else [("xfree", 19)] if u == NP else [("qfree", u - NP - 1, 3)]))

    for u, q in [x for un in units for x in un]:
        for k in range(FZ.p_lead + 1):
            push_p(u + k)
        if (u, q) == (NS - KT, FZ.r_q):
            for p in range(5):
                push(r_load(p), "rgo")
        g = ["qset", ("gelu", u >> 1)] + ([] if final else ["ready"])
        if u >= QD:
            g.append(("qfree", u - QD, q))
        elif u < 5:
            g.append(("xfree", 2 * u + (q >> 1)))
        else:
            g.append("edone" if final else ("s5", 1))
        push(q_load(u, q), *g, after=(("gelu", u >> 1), FZ.qdel[final]), chain="q")

    a(f"s_lshl_b32 s{sC}, s{sRB}, 10")
    a(f"s_lshl_b32 s{sA}, s{sW}, 8")
    a(f"s_add_u32 s{sC}, s{sC}, s{sA}")
    a(f"v_lshlrev_b32 v{vx}, 15, v{vG}")
    a(f"v_lshl_add_u32 v{vx}, v{vI}, 4, v{vx}")
    a(f"v_add_u32 v{vx}, s{sC}, v{vx}")
    a(f"v_add_u32 v{vx2}, {XP_STR}, v{vx}")
    a(f"v_lshlrev_b32 v{vl0}, 4, v{vL}")
    a(f"v_add_u32 v{vl0 + 1}, 0x10000, v{vl0}")
    a(f"v_add_u32 v{vl0 + 2}, 0x20000, v{vl0}")
    a(f"s_mov_b64 s[{SRDH}:{SRDH + 1}], s[{SRDQ}:{SRDQ + 1}]")
    a(f"s_mov_b32 s{SRDH + 2}, {H_SIZE}")
    a(f"s_mov_b32 s{SRDH + 3}, 0x20000")
    a(f"v_cmp_eq_u32 vcc, 0, v{vG}")
    a(f"v_mov_b32 v{vmk}, 0xffff0000")
    a(f"v_cndmask_b32 v{vmk}, 0, v{vmk}, vcc")
    for r in range(4):
        m = 0x1000010000100001 << r
        a(f"s_mov_b32 s{DIAG[r]}, {m & 0xffffffff:#x}")
        a(f"s_mov_b32 s{DIAG[r] + 1}, {m >> 32:#x}")
    a(f"s_bfe_u32 s{sA}, s{sMM}, 0x10002")
    a(f"s_lshl_b32 s{sA}, s{sA}, 6")
    a(f"s_add_u32 s{sCQ}, s{sFL}, s{sA}")
    a(f"s_lshl4_add_u32 s{sD}, s{sW}, s{sCQ}")
    a(f"s_mul_i32 s{sA}, s{sW}, {54 * H_STR}")
    a(f"s_add_u32 s{SRDQ + 2}, s{sA}, {54 * H_STR}")
    a(f"s_lshl4_add_u32 s{sA}, s{sD}, s{sA}")
    a(f"v_lshrrev_b32 v{vq[0]}, 1, v{vG}")
    a(f"v_and_b32 v{vck}, 1, v{vG}")
    a(f"v_mad_u32_u24 v{vq[0]}, v{vq[0]}, 14, v{vck}")
    a(f"v_lshlrev_b32 v{vq[0]}, 15, v{vq[0]}")
    a(f"v_lshl_add_u32 v{vq[0]}, v{vI}, 4, v{vq[0]}")
    a(f"v_add_u32 v{vq[0]}, s{sA}, v{vq[0]}")
    a(f"v_xor_b32 v{vq[3]}, 0x300, v{vq[0]}")
    a(f"s_mov_b32 s{sKC}, {fx(H_OFF)}")
    a(f"s_mov_b32 s{sKC + 1}, {fx(H_OFF)}")
    a(f"s_mov_b32 s{sRS}, {fx(2.0 ** (-S_X[1] if final else -UP[0]))}")
    a(f"s_mov_b32 s{sRS + 1}, 0xffff0000")
    if final:
        srd_table(a, SRD4, "ft2")
        a(f"s_mul_i32 s{sB}, s{sMM}, 5")
        a(f"s_lshr_b32 s{sB}, s{sB}, 1")
        a(f"s_mul_i32 s{sA}, s{sB}, {TILE}")
        a(f"s_add_u32 s{SRD4}, s{SRD4}, s{sA}")
        a(f"s_addc_u32 s{SRD4 + 1}, s{SRD4 + 1}, 0")
        a(f"s_sub_u32 s{SRD4}, s{SRD4}, {2 * TILE}")
        a(f"s_subb_u32 s{SRD4 + 1}, s{SRD4 + 1}, 0")
        a(f"s_mov_b32 s{SRD4 + 2}, {5 * TILE}")
        a(f"s_lshl_b32 s{sA}, s{sB}, 16")
        a(f"s_add_u32 s{sA}, s{sA}, s{sC}")
        a(f"v_lshlrev_b32 v{ve}, 14, v{vG}")
        a(f"v_lshl_add_u32 v{ve}, v{vI}, 4, v{ve}")
        a(f"v_add_u32 v{ve}, s{sA}, v{ve}")
        srd_ws(a, SRD2, "X3", XP_SIZE)
        srd(a, SRD1, P_OUT, 0, SEQ * DM * 2)
        a(f"s_lshl_b32 s{sB}, s{sRB}, 13")
        a(f"s_lshl2_add_u32 s{sA}, s{sMM}, s{sW}")
        a(f"s_lshl_b32 s{sA}, s{sA}, 7")
        a(f"s_add_u32 s{sA}, s{sA}, s{sB}")
        a(f"v_lshl_add_u32 v{vpl}, v{vL}, 20, s{sA}")
        a(f"s_bfe_u32 s{sA}, s{sD}, 0x20005")
        a(f"s_lshl3_add_u32 s{sA}, s{sDC}, s{sA}")
        a(f"s_lshl_b32 s{sA}, s{sA}, 7")
        a(f"s_add_u32 s{sA}, s{sA}, s{sB}")
        a(f"v_and_b32 v{vfl}, 1, v{vI}")
        a(f"v_lshl_add_u32 v{vfl}, v{vfl}, 9, s{sA}")
    else:
        srd_ws(a, SRD1, "SS2", SS2_SIZE)
        a(f"s_lshl4_add_u32 s{sA}, s{sRB}, s{sMM}")
        a(f"s_lshl_b32 s{sA}, s{sA}, 9")
        a(f"v_lshl_add_u32 v{vpl}, v0, 20, s{sA}")
        a(f"s_lshl2_add_u32 s{sA}, s{sRB}, s{sW}")
        a(f"s_lshl_b32 s{sA}, s{sA}, 11")
        a(f"v_and_b32 v{vfl}, 3, v{vI}")
        a(f"v_lshl_add_u32 v{vfl}, v{vfl}, 9, s{sA}")
    a.raw(f"    s_waitcnt vmcnt({behind})")
    mk(a, name + "go")
    for _ in range(FZ.look):
        issue()
    s.flush()
    a("s_barrier")
    if not final:
        vm(s.M, f"buffer_store_dword v{vl0 + 1}, v{vpl}, s[{SRDF}:{SRDF + 3}], 0 offen offset:{READY} sc1", again=False, part=0.2)
    mk.stash(a, Z)

    TA, TB, TE = (0, 1, 2, 3), (4, 5, 6), (0, 1, 2)
    groups = [("a", TA, t) for t in range(19)] + [("b", TB, t) for t in range(20)]
    groups.insert(19 + FZ.b_pre, ("a", TA, 19))
    if final:
        groups += [("e", TE, t) for t in range(20)]
    seq = [(kind, ft, t) for kind, tl, t in groups for ft in tl]
    rd_ = {"n": 0, "free": 0}

    def wreg(n):
        return WR + (n % NW) * 4

    def feed_l():
        while rd_["n"] < min(rd_["free"] + NW, len(seq)) and len(s.L) < 2:
            kind, ft, t = seq[rd_["n"]]
            if kind == "e" and "e0" not in done:
                return
            off = (ft + (2 if kind == "e" else 1)) * TILE + (19 - t) * 1024
            put(s.L, f"ds_read_b128 {R(wreg(rd_['n']), 4)}, v{vl0 + (off >> 16)} offset:{off & 0xffff}", ("rd", rd_["n"]))
            rd_["n"] += 1
    s.feed.append(feed_l)

    def rd_need(n):
        while ("rd", n) not in done:
            feed_l()
            if not s.L:
                s.need("e0")
                continue
            s.run(s.L.pop(0))

    def prep_x(ts):
        keys = [("x", t, h) for t in xorder if t in ts for h in range(2)]
        regs = [xr(k[1], k[2]) for k in keys]
        verify(keys, regs, lower(regs, T_X[final]), f"{name}_x{ts[0]}", "xok" if xorder[-1] in ts else None)
        for t in ts:
            ops = [f"v_swap_b32 v{xr(t, 0) + 2}, v{xr(t, 1)}", f"v_swap_b32 v{xr(t, 0) + 3}, v{xr(t, 1) + 1}"]
            if t == 19:
                for st in range(2):
                    if final:
                        ops.append(f"v_accvgpr_write_b32 {R(vdc + st)}, v{xr(t, st)}")
                    ops.append(f"v_bfi_b32 v{xr(t, st)}, v{vmk}, 0, v{xr(t, st)}")
            for op in ops[:-1]:
                put(s.C, op)
            put(s.C, ops[-1], ("sw", t))

    def gram(t, wait=None):
        s.need(("sw", t))
        for st in range(2):
            s.mf(GR + 4 * st, xr(t, st), xr(t, st), None if t == 0 else GR + 4 * st, wait if st else None)

    def stats():
        t0 = s.tM + 40
        ops = []
        for r in range(4):
            for st in range(2):
                prev = "0" if r == 0 else f"v{T + 2 * st}"
                ops.append(f"v_cndmask_b32_e64 v{T + 2 * st}, {prev}, v{GR + 4 * st + r}, s[{DIAG[r]}:{DIAG[r] + 1}]")
        for op in ("v_permlane32_swap_b32", "v_permlane16_swap_b32"):
            ops += [f"v_mov_b32 v{T + 2 * st + 1}, v{T + 2 * st}" for st in range(2)]
            ops += [f"{op} v{T + 2 * st}, v{T + 2 * st + 1}" for st in range(2)]
            ops += [f"v_add_f32 v{T + 2 * st}, v{T + 2 * st}, v{T + 2 * st + 1}" for st in range(2)]
        ops += [f"v_fmamk_f32 v{T + 2 * st}, v{T + 2 * st}, {fx((1 + EPS) / DM)}, v{T + 4}" for st in range(2)]
        ops += [f"v_rsq_f32 v{T + 2 * st + 1}, v{T + 2 * st}" for st in range(2)]
        ops += [f"v_mul_f32 v{CC + 4 + st}, v{T + 2 * st}, v{T + 2 * st + 1}" for st in range(2)]
        ops += [f"v_cvt_pk_bf16_f32 v{T + 2 * st}, v{CC + 4 + st}, v{CC + 4 + st}" for st in range(2)]
        ops += [f"v_bfi_b32 v{xr(19, st)}, v{vmk}, v{T + 2 * st}, v{xr(19, st)}" for st in range(2)]
        late = [f"v_mul_f32 v{CC + st}, {fx(GELU_K0)}, v{T + 2 * st + 1}" for st in range(2)]
        late += [f"v_mul_f32 v{T + 2 * st}, v{T + 2 * st + 1}, v{T + 2 * st + 1}" for st in range(2)]
        late += [f"v_mul_f32 v{T + 2 * st}, {fx(0.044715)}, v{T + 2 * st}" for st in range(2)]
        late += [f"v_mul_f32 v{CC + 2 + st}, v{CC + st}, v{T + 2 * st}" for st in range(2)]
        if not final:
            late += [f"v_mul_f32 v{CC + 4 + st}, {fx(2.0 ** -S_LO)}, v{CC + 4 + st}" for st in range(2)]
        put(s.G, f"v_mov_b32 v{T + 4}, {fx(EPS * EPS * 4.0 ** S_X[final])}")
        put(s.G, f"v_xor_b32 v{vq[1]}, 0x100, v{vq[0]}")
        put(s.G, f"v_xor_b32 v{vq[2]}, 0x200, v{vq[0]}", "qset")
        put(s.G, ops[0], gate=lambda: s.t >= t0)
        for op in ops[1:-1]:
            put(s.G, op)
        put(s.G, ops[-1], "stats")
        for op in late:
            put(s.G, op)

    def poll(key, off):
        lab = f"{name}_{key}"
        text = f"buffer_load_dword v{vmk}, v{vfl}, s[{SRDF}:{SRDF + 3}], @ offen sc1"
        test = f"v_cmp_eq_u32 vcc, 0, v{vmk}"

        def branch():
            a(f"s_cbranch_vccnz {lab}_spin", tag="nopad")
            a.label(f"{lab}_ok", keep=True)

            def spin():
                a.label(f"{lab}_spin")
                a(f"s_mov_b32 s{sRP}, {off}")
                a(text.replace("@", f"s{sRP}"))
                a("s_waitcnt vmcnt(0)")
                budget(a, f"{lab}_ok")
                a(test)
                a(f"s_cbranch_vccnz {lab}_spin")
                a(f"s_branch {lab}_ok")
            a.tail.append(spin)

        def check():
            s.C.append(wait_item(("i", key), [f"v{vmk}"]))
            put(s.C, test)
            s.C.append(Item("j", 10, branch, key))
        return (lambda: vm(s.C, text, sE, f"s_mov_b32 @, {off}", ("i", key), again=False, part=0.2)), check

    if final:
        ix, cx = poll("rgo", PX)

        def signal():
            s.C.append(Item("s", 4, lambda: a.wait_tag("x3"), until="x3"))
            vm(s.C, f"buffer_store_dword v{vl0 + 1}, v{vpl}, s[{SRDF}:{SRDF + 3}], @ offen sc1", sE, f"s_mov_b32 @, {PX}",
               again=False, part=0.2)

        def e_ok():
            plan(("e", 14))
            s.C.append(Item("s", 4, lambda: (s.need(("e", 14)), a.wait_tag("e")), until=("e", 14),
                            gate=lambda: ("e", 14) in done))
            put(s.C, "s_barrier", "e0")
        at(("b", FZ.e_ok), e_ok)
        at(FZ.x3[0], signal)
        at(FZ.x3[1], ix)
        at(FZ.x3[2], lambda: (s.need("oset"), cx()))
    else:
        i_, c_ = poll("ready", READY)
        at(FZ.rd_at[0], lambda: (s.need("stats"), i_()))
        at(FZ.rd_at[1], c_)
        at(FZ.res_at, lambda: (s.need("oset"), done.setdefault("rgo", s.t)))

    at(("b", FZ.b_pre + FZ.ebar), lambda: put(s.C, "s_barrier", "ebar"))

    post = []

    def gelu(ft):
        Zs = Z + 8 * (ft & 1)
        prs = [(acc(ft, st) + h, Zs + st * 4 + h, st) for st in range(2) for h in (0, 2)]
        t0 = s.tM + 40

        def stage(pk, plain, key=None, gate=None):
            for n, (x, z, st) in enumerate(prs):
                k = key if n == 3 else None
                sel = f"op_sel:[0,{st},{st}] op_sel_hi:[1,{st},{st}]"
                it = s.item(pk.format(x=V(x, 2), z=V(z, 2), sel=sel), k, gate)
                it.alt = [s.item(plain.format(x=V(x + e), z=V(z + e), c0=V(CC + st), c2=V(CC + 2 + st), c4=V(CC + 4 + st)),
                                 k if e else None, gate) for e in range(2)]
                s.G.append(it)

        stage("v_pk_mul_f32 {z}, {x}, {x}", "v_mul_f32 {z}, {x}, {x}", gate=lambda: s.t >= t0)
        stage("v_pk_fma_f32 {z}, {z}, %s, %s {sel}" % (V(CC + 2, 2), V(CC, 2)), "v_fma_f32 {z}, {z}, {c2}, {c0}")
        stage("v_pk_mul_f32 {z}, {z}, {x}", "v_mul_f32 {z}, {z}, {x}")
        close()
        for k in range(8):
            put(s.G, f"v_exp_f32 v{Zs + k}, v{Zs + k}")
        stage("v_pk_fma_f32 {z}, {z}, %s, %s {sel}" % (V(CC + 4, 2), V(CC + 4, 2)), "v_fma_f32 {z}, {z}, {c4}, {c4}")
        for k in range(8):
            put(s.G, f"v_rcp_f32 v{Zs + k}, v{Zs + k}")
        if final:
            stage("v_pk_fma_f32 {z}, {z}, {x}, s[%d:%d]" % (sKC, sKC + 1), "v_fma_f32 {z}, {z}, {x}, s%d" % sKC, ("s5", ft))
        else:
            stage("v_pk_mul_f32 {z}, {z}, {x}", "v_mul_f32 {z}, {z}, {x}", ("s5", ft))

        def out():
            for k in range(4):
                put(s.G, f"v_cvt_pk_bf16_f32 v{Zs + k}, v{Zs + 2 * k}, v{Zs + 2 * k + 1}")
            if ft == 6:
                put(s.G, f"v_add_u32 v{vo}, s{sMSK}, v{vo}")
            put(s.G, f"v_permlane16_swap_b32 v{Zs}, v{Zs + 2}")
            put(s.G, f"v_permlane16_swap_b32 v{Zs + 1}, v{Zs + 3}")
            vm(s.G, f"buffer_store_dwordx4 {V(Zs, 4)}, v{vo}, s[{SRDH}:{SRDH + 3}], @ offen sc1", sHO,
               f"s_mov_b32 @, {ft * 2 * H_STR}", ("gelu", ft), again=False, first=FZ.hf)
        post.append(out)

    def close():
        while post:
            post.pop()()

    def out_setup():
        g = lambda op, key=None: put(s.G, op, key)
        g(f"v_lshl_add_u32 v{vpk}, v{vL}, 4, s{sPK}", "vpk")
        g(f"s_mul_i32 s{sGA}, s{sDC}, {20 * XP_STR}")
        g(f"s_lshl3_add_u32 s{sGA}, s{sD}, s{sGA}")
        g(f"v_lshlrev_b32 v{vo2}, 14, v{vG}")
        g(f"v_lshl_add_u32 v{vo2}, v{vI}, 3, v{vo2}")
        g(f"v_add_u32 v{vo2}, s{sGA}, v{vo2}", "oset")
        g(f"v_lshrrev_b32 v{vor}, 1, v{vG}")
        g(f"s_mov_b32 s{sGA}, {0x3f800000 + (0x3f80 if final else (127 + S_LO) << 7):#x}")
        g(f"v_mul_lo_u32 v{vor}, v{vor}, s{sGA}", "vor")
        g(f"v_lshl_add_u32 v{vrd}, v{vL}, 4, s{sEB}")
        for ql in (1, 2, 3):
            g(f"s_xor_b32 s{sGA}, s{sW}, {ql}")
            g(f"s_mul_i32 s{sGA}, s{sGA}, 15360")
            if ql > 1:
                g(f"s_add_u32 s{sGA}, s{sGA}, {(ql - 1) * 5120}")
            g(f"v_lshl_add_u32 v{vred[ql - 1]}, v{vL}, 4, s{sGA}")
        if final:
            g(f"s_bfe_u32 s{sGA}, s{sD}, 0x10004")
            g(f"s_lshl_b32 s{sGA}, s{sGA}, 3")
            g(f"s_lshr_b32 s{sGB}, s{sD}, 9")
            g(f"s_lshl4_add_u32 s{sGA}, s{sGB}, s{sGA}")
            g(f"s_bfe_u32 s{sGB}, s{sD}, 0x20005")
            g(f"s_lshl_b32 s{sGB}, s{sGB}, 8")
            g(f"s_add_u32 s{sGA}, s{sGA}, s{sGB}")
            g(f"s_and_b32 s{sGB}, s{sD}, 128")
            g(f"s_add_u32 s{sGA}, s{sGA}, s{sGB}")
            g(f"s_and_b32 s{sGB}, s{sD}, 256")
            g(f"s_lshl2_add_u32 s{sGA}, s{sGB}, s{sGA}")
            g(f"v_and_b32 v{vout}, 1, v{vI}")
            g(f"v_lshlrev_b32 v{vout}, 6, v{vout}")
            g(f"v_lshrrev_b32 v{vs}, 1, v{vI}")
            g(f"v_add3_u32 v{vout}, v{vout}, v{vs}, s{sGA}")
            g(f"v_mul_u32_u24 v{vout}, 1280, v{vout}")
            g(f"s_mul_i32 s{sGA}, s{sDC}, 160")
            g(f"v_lshl_add_u32 v{vout}, v{vG}, 3, v{vout}")
            g(f"v_add_u32 v{vout}, s{sGA}, v{vout}", "setup")
        else:
            g(f"v_lshrrev_b32 v{vs}, 1, v{vI}")
            g(f"v_lshlrev_b32 v{vs}, 4, v{vs}")
            g(f"v_and_b32 v{vout}, 1, v{vI}")
            g(f"v_lshl_add_u32 v{vs}, v{vout}, 2, v{vs}")
            g(f"v_and_b32 v{vout}, 1, v{vG}")
            g(f"v_lshl_add_u32 v{vs}, v{vout}, 3, v{vs}")
            g(f"v_lshrrev_b32 v{vout}, {0 if FZ.x_nocnt else 1}, v{vG}")
            g(f"v_lshl_add_u32 v{vs}, v{vout}, 20, v{vs}")
            g(f"s_lshl_b32 s{sGA}, s{sD}, 3")
            g(f"v_add_u32 v{vs}, s{sGA}, v{vs}")
            g(f"v_add_u32 v{vout}, s{sDC}, v{vG}")
            g(f"v_min_u32 v{vout}, 1, v{vout}")
            g(f"v_mul_u32_u24 v{vout}, 0xffff, v{vout}")
            g(f"v_lshlrev_b32 v{vout}, 16, v{vout}")
            g(f"v_or_b32 v{vout}, 0xffff, v{vout}")
            g(f"v_mov_b32 v{TMP + 2}, 0")
            g(f"v_mov_b32 v{TMP + 3}, 0")
            g(f"s_mov_b64 s[{DIAG[0]}:{DIAG[0] + 1}], 0xffff")
            g(f"s_mov_b32 s{sGB}, {-S_LO * 0x800080:#x}", "setup")

    gl, rest = {}, xorder[1:]
    for t in range(19):
        n = 2 if t in FZ.dbl else 1
        gl[t], rest = sorted(rest[:n]), rest[n:]
    rd_need(NW - 1)
    prep_x([0])
    n = 0

    def grp_wait(k):
        nx = sum(len(g[1]) for g in groups[:k + 1]) - 1
        if k >= len(groups):
            return None
        return Item("s", 4, lambda: (rd_need(nx), a.wait_regs(R(wreg(nx), 4))))

    gram(0, grp_wait(0))
    for k, (kind, tl, t) in enumerate(groups):
        fine(kind, t)
        grams = gl.get(t, []) if kind == "a" else []
        if kind == "a" and t == 19:
            s.need("stats")
        if kind == "e" and t == 0:
            s.need(("s5", 2))
            for st in range(2):
                put(s.C, f"v_accvgpr_read_b32 v{xr(19, st)}, {R(vdc + st)}", ("dc", st))
        if kind == "e" and t == 19:
            s.need(("dc", 1))
        hi = sum(len(g[1]) for g in groups[:k + 2])
        for j, ft in enumerate(tl):
            for st in range(2):
                if grams and 2 * j + st == (FZ.xc_at if len(grams) == 1 else 0):
                    prep_x(grams)
                d = (EACC if kind == "e" else ACC1) + (ft * 2 + st) * 4
                last = j == len(tl) - 1 and st and not grams
                if st:
                    rd_["free"] = n + 1
                s.mf(d, wreg(n), xr(t, st), None if t == 0 else d, grp_wait(k + 1) if last else None,
                     urgent=rd_["n"] - len(s.L) < hi)
            n += 1
        for g in grams:
            gram(g, grp_wait(k + 1) if g == grams[-1] else None)
        if grams and xorder[-1] in grams:
            stats()
        if kind == ("e" if final else "b"):
            done[("xfree", t)] = s.t
        if kind == "a" and t == 19:
            note("A")
            for ft in TA:
                gelu(ft)
            close()
            if FZ.pure[final]:
                s.pure(("gelu", FZ.pure[final] - 1))
        if kind == "b" and t == 19:
            for ft in TB:
                gelu(ft)
            close()
            if FZ.in_b[final]:
                s.pure(("gelu", FZ.in_b[final] - 1))
    if final:
        note("E")
        t0 = s.tM + 40
        for et in TE:
            d = EACC + et * 8
            for k in range(4):
                put(s.C, f"v_cvt_pk_bf16_f32 v{d + k}, v{d + 2 * k}, v{d + 2 * k + 1}", gate=lambda: s.t >= t0)
            vm(s.C, f"buffer_store_dwordx4 {V(d, 4)}, v{ve}, s[{SRD2}:{SRD2 + 3}], @ offen sc1",
               sE, f"s_mov_b32 @, {et * 4 * XP_STR}", {1: "edone", 2: "x3"}.get(et), tag="x3", again=False)
        epi, s.C = s.C, []
        s.pure(("gelu", FZ.in_e - 1))
    out_setup()
    s.pk = bool(FZ.g2pk[final])
    mk.stash(a, vck)

    def accr(p, q):
        return ACC2 + (q * 5 + p) * 4

    def q_check(n):
        keys = [("q",) + x for x in units[n]]
        regs = [qreg(*x) for x in units[n]]
        fix = [f"v_or_b32 v{qreg(u, q)}, v{qreg(u, q)}, v{vor}" for u, q in units[n] if u == NS - 1]
        if fix:
            s.need("vor")
        verify(keys, regs, fix + (lower(regs, T_H) if final else unset(regs)), f"{name}_q{n}", ("qok", n))

    def writes(q):
        t0 = s.tM + 40
        s.need("setup")
        for p in range(5):
            put(s.L, f"ds_write_b128 v{vred[q - 1]}, {R(accr(p, q), 4)} offset:{p * 1024}", ("wr", q, p),
                gate=lambda p=p: s.t >= max(t0 - 16 * (4 - p), t0 - 40 + FZ.wgap * p))

    def reads(q, k):
        for p in range(5):
            put(q, f"ds_read_b128 {R(accr(p, k), 4)}, v{vrd} offset:{(k - 1) * 5120 + p * 1024}")

    def res_ops():
        plan(("r", 4))
        w = wait_item(("r", 4), [V(RES, 10)])
        w.gate = lambda: s.eta.get(("r", 4), 1e9) <= s.t
        f0 = w.fn
        w.fn = lambda: (s.need(("r", 4)), f0())
        s.G.append(w)
        for p in range(5):
            for h in range(2):
                u_, r, d = RU + 2 * h, RES + 2 * p + h, accr(p, 0) + 2 * h
                put(s.G, f"v_lshlrev_b32 v{u_}, 16, v{r}")
                put(s.G, f"v_and_b32 v{u_ + 1}, s{sRS + 1}, v{r}")
                put(s.G, f"v_fmac_f32 v{d}, s{sRS}, v{u_}")
                put(s.G, f"v_fmac_f32 v{d + 1}, s{sRS}, v{u_ + 1}", ("res", p) if h else None)

    def unpark(u):
        ok = lambda: "vpk" in done and ("k", u, 4) in done and s.eta[("k", u, 4)] <= s.t
        plan(("k", u, 4))
        s.L.append(Item("s", 4, lambda: (s.need("vpk"), s.need(("k", u, 4)), a.wait_tag(f"k{u}")), until=("k", u, 4), gate=ok))
        for p in range(5):
            put(s.L, f"ds_read_b128 {R(preg(u, p), 4)}, v{vpk} offset:{(u - NP) * TILE + p * 1024}", ("p", u, p))
            sched.add(("p", u, p))

    def g_bar():
        for u in parked:
            s.need(("p", u, 4))
        put(s.C, "s_waitcnt lgkmcnt(0)")
        put(s.C, "s_barrier")

    for u in parked:
        at(("g", u - NP), lambda u=u: unpark(u))
    at(("g", FZ.gbar), g_bar)
    def post_at(where):
        if not final and FZ.post == where:
            vm(s.C, f"buffer_store_dword v{vl0 + 1}, v{vpl}, s[{SRDF}:{SRDF + 3}], 0 offen offset:{POST} sc1", key="post",
               again=False, part=0.2)
            s.need("post")

    q_check(0)
    if final:
        if FZ.split0:
            q_check(1)
        s.C += epi
    seen = set()
    for n, un in enumerate(units):
        tailq = un[0][1] if len({u for u, _ in un}) > 1 or KT == 1 and un[0][0] == NS - 1 else None
        s.need(("qok", n))
        left = 5 * len(un)
        if tailq == 1:
            res_ops()
        if tailq == 0:
            s.need(("wr", 2, 4))
            put(s.C, "s_waitcnt lgkmcnt(0)")
            put(s.C, "s_barrier", "bar1")
            s.need("bar1")
            post_at("bar1")
            writes(3)
            reads(s.L, 1)
            reads(s.L, 2)
        elif tailq is not None and tailq > 1:
            writes(tailq - 1)
        for u, q in un:
            if u not in seen:
                fine("g", u)
                if u == 1:
                    note("g1")
                for p in range(5):
                    plan(("p", u, p))
                    s.need(("p", u, p))
                seen.add(u)
            for p in range(5):
                if left == min(FZ.qc_rem, 5 * len(un)) and n + 1 < len(units) and not (final and FZ.split0 and n == 0):
                    q_check(n + 1)
                if tailq == 0:
                    s.need(("res", p))
                if s.eta.get(("p", u, p), 0) > s.t:
                    s.stall += s.eta[("p", u, p)] - s.t
                    if FZ.verbose:
                        print(f"  {s.t:6.0f} STALL p {u} {p} {s.eta[('p', u, p)] - s.t:.0f}", file=sys.stderr)
                    s.t = s.eta[("p", u, p)]
                s.mf(accr(p, q), preg(u, p), qreg(u, q), None if u == 0 else accr(p, q))
                left -= 1
            done[("qfree", u, q)] = s.t
    s.flush()
    assert not queue and not act, (queue, act)
    a("s_waitcnt lgkmcnt(0)")
    a("s_barrier")
    reads(s.L, 3)
    s.flush()
    post_at("bar2")
    for p in range(5):
        for h in (0, 2):
            a(f"v_pk_add_f32 {V(accr(p, 1) + h, 2)}, {V(accr(p, 1) + h, 2)}, {V(accr(p, 2) + h, 2)}")
    for p in range(5):
        for h in (0, 2):
            a(f"v_pk_add_f32 {V(accr(p, 0) + h, 2)}, {V(accr(p, 0) + h, 2)}, {V(accr(p, 1) + h, 2)}")
    for p in range(5):
        r = accr(p, 0)
        for h in (0, 2):
            a(f"v_pk_add_f32 {V(r + h, 2)}, {V(r + h, 2)}, {V(accr(p, 3) + h, 2)}")
        a(f"v_cvt_pk_bf16_f32 v{r}, v{r}, v{r + 1}")
        a(f"v_cvt_pk_bf16_f32 v{r + 1}, v{r + 2}, v{r + 3}")
        if final:
            a(f"buffer_store_dwordx2 {V(r, 2)}, v{vout}, s[{SRD1}:{SRD1 + 3}], 0 offen offset:{p * 32}")
        else:
            a(f"s_mov_b32 s{sOP}, {p * 4 * XP_STR}")
            a(f"buffer_store_dwordx2 {V(r, 2)}, v{vo2}, s[{SRDX}:{SRDX + 3}], s{sOP} offen sc1")
    if not final:
        for p in range(5):
            r = accr(p, 0)
            for h in range(2):
                a(f"v_add_u32 v{r + 2 + h}, s{sGB}, v{r + h}")
            if p == 0:
                a(f"v_and_b32 v{r + 2}, v{vout}, v{r + 2}")
        for p in range(5):
            for h in range(2):
                r = accr(p, 0) + 2 + h
                a(f"v_dot2c_f32_bf16 v{TMP + 2 + h}, v{r}, v{r}")
        z = TMP + 2
        a(f"v_add_f32 v{z}, v{z}, v{z + 1}")
        for op in ("v_permlane32_swap_b32", "v_permlane16_swap_b32"):
            a(f"v_mov_b32 v{z + 1}, v{z}")
            a(f"{op} v{z}, v{z + 1}")
            a(f"v_add_f32 v{z}, v{z}, v{z + 1}")
        a(f"v_cndmask_b32_e64 v{z}, 1.0, v{z}, s[{DIAG[0]}:{DIAG[0] + 1}]")
        a(f"{FZ.x_op} v{z}, v{vs}, s[{SRD1}:{SRD1 + 3}], 0 offen sc1".replace("-", "_"), tag="out")
    post_at("end")
    mk(a, name + "end")


def role_fused(a):
    if Cfg.stamp:
        mk.names.append("start")
        mk.pend.append(0)
    decode(a)
    for ph in range(2):
        a(f"s_cmp_ge_u32 s{sT}, {NCOL}")
        a(f"s_cbranch_scc1 idle{ph}", tag="nopad")
        pend = list(mk.pend)

        def idle(ph=ph, pend=pend):
            keep, mk.pend = mk.pend, pend
            a.label(f"idle{ph}")
            idle_phase(a, ph)
            a(f"s_branch join{ph}")
            mk.pend = keep
        a.tail.append(idle)
        n = col_phase(a, ph)
        a.label(f"join{ph}")
        if FZ.halt == 2 * ph + 1 or FZ.halt == 25 and ph:
            break
        mlp_phase(a, ph, n)
        if FZ.halt == 2 * ph + 2:
            break
    if Cfg.stamp:
        a("s_waitcnt vmcnt(0)")
        mk(a, "drain")
        mk.stash(a, 4)
        a(f"v_writelane_b32 v4, s{sCNT}, 63")
        srd_ws(a, SRD0, "STAMP", 1 << 21)
        a(f"s_lshl_b32 s{sA}, s2, 10")
        a(f"s_add_u32 s{sA}, s{sA}, {1 << 20}")
        a(f"v_lshl_add_u32 v5, v0, 2, s{sA}")
        a(f"buffer_store_dword v4, v5, s[{SRD0}:{SRD0 + 3}], 0 offen")
    return 160 * 1024


def tables():
    L = []
    c = np.sqrt(2.0 / DM) * np.cos(2 * np.pi * np.arange(DM) / DM)
    c[160] = 0
    c[480] = 0
    bits = model.bf16_bits(c.astype(np.float32))
    for n in range(DM):
        L.append(f".set cq{n}, {bits[n]}")
    bb = int(model.bf16_bits(np.float32([np.sqrt(1 / DM)]))[0])
    k2 = model2.kmap()
    L.append(".altmacro")
    L.append(".macro e8 a,b,c,d,e,f,g,h\n.short cq\\a, cq\\b, cq\\c, cq\\d, cq\\e, cq\\f, cq\\g, cq\\h\n.endm")
    L.append(".macro e6 a,b,c,d,e,f\n.short cq\\a, cq\\b, cq\\c, cq\\d, cq\\e, cq\\f\n.endm")
    L.append(".p2align 12\nft2:\n.set tt, 0\n.rept 40")
    for kb in range(80):
        L.append(".set td, tt\n.rept 16")
        ent = [f"%(({k2[4 * kb + j // 2]}*td+{160 * (j & 1)})%640)" for j in range(8)]
        if kb == 0:
            L.append(f".short {bb}+((td&1)<<15), {bb}")
            L.append("e6 " + ", ".join(ent[2:]))
        else:
            L.append("e8 " + ", ".join(ent))
        L.append(".set td, td+1\n.endr")
    L.append(".set tt, tt+16\n.endr\n.noaltmacro")
    return "\n".join(L) + "\n"


def plan():
    o = p0.PC.order[0]
    return [("p0_kernel", [(sum(p0.CNT[c] for c in o), lambda a: p0.role_front(a, "p0", o, o, {}))]),
            ("mk_kernel", [(256, role_fused)])]


if __name__ == "__main__":
    p0.CNT["1"] = 128
    p0.PC.order = ("x21c",)
    p0.PC.fused = 2
    p0.PC.fl_w = ""
    p0.PC.fill = 0
    p0.PC.w2t_in = 1
    p0.PC.w1frag = 1
    p0.PC.xscale = S_LO
    for opt in sys.argv[2:]:
        if opt == "stamp":
            Cfg.stamp = True
        else:
            k, v = opt.split("=", 1)
            tgt = [c for c in (FZ, p0.PC, Cfg) if hasattr(c, k)][0]
            v = eval(v)
            sp = lambda x: x.replace("_", " ") if isinstance(x, str) else tuple(map(sp, x)) if isinstance(x, tuple) else x
            setattr(tgt, k, sp(v))
    txt = generate(plan(), tables)
    o = p0.PC.order[0]
    txt = txt.replace(f"; roles p0_kernel {sum(p0.CNT[c] for c in o)}",
                      "; roles p0_kernel " + " ".join(str(p0.CNT[c]) for c in o))
    if Cfg.stamp:
        txt = txt.replace(".amdgcn_target", ("; clk\n" if FZ.clk else "") + f"; halt {FZ.halt}\n; marks " + " ".join(mk.names)
                          + "\n.amdgcn_target", 1)
    open(sys.argv[1], "w").write(txt)
```

```python
from gen import *
import model2
from p0 import Sched, fx

SCALE = float(np.sqrt(2.0 / DM))
SIGN2 = 0x80008000
REGB = 24576
FB = SS2_SIZE
DONE, DONE2 = 16, 12
aF, aD, aB, aDUM = 256 + 254, 256 + 255, 256 + 251, 256 + 253


class FC:
    fl_ld = " nt"
    fl_l2 = " nt"
    fl_l1 = ""
    fl_f = ""
    xscale = 0
    code_pf = 1
    c_early = 3
    warm = 0
    rot = 1
    peek = (0, 0)


def lane_blocks(a, v, t):
    a(f"v_and_b32 v{v}, 31, v{vL}")
    a(f"v_bfe_u32 v{t}, v{vL}, 5, 1")
    a(f"v_lshl_add_u32 v{v}, v{t}, 7, v{v}")
    a(f"v_lshl_add_u32 v{v}, s{sW}, 5, v{v}")
    a(f"v_lshlrev_b32 v{v}, 9, v{v}")


def post(a, srd_, base, step, t, wait=None):
    a(f"s_lshl_b32 s{sA}, s3, 9")
    a(f"v_lshl_add_u32 v{t + 2}, v0, 20, s{sA}")
    if wait:
        a(wait)
    a(f"v_accvgpr_read_b32 v{t + 1}, {R(aD)}")
    a(f"v_add_u32 v{t + 1}, {step}, v{t + 1}")
    if base:
        a(f"s_mov_b32 s{sOQ}, {base}")
    so = f"s{sOQ}" if base else "0"
    if step == 2:
        a(f"v_mov_b32 v{t}, 1")
        return f"buffer_store_dwordx2 {V(t, 2)}, v{t + 2}, s[{srd_}:{srd_ + 3}], {so} offen offset:{DONE2} sc1"
    return f"buffer_store_dword v{t + 1}, v{t + 2}, s[{srd_}:{srd_ + 3}], {so} offen offset:{DONE} sc1"


def front(a, mark):
    name = "f"
    vld, vr, vo = 4, 5, 9
    MK, M1, M2, M2N = 10, 14, 15, 16
    vph, vk0, vq20, vgf = 17, 18, 19, 35
    ACC1, A1, A2, Y, ACCX = 20, 36, 96, 144, 168
    TMP = Y
    DAT = 176
    sQ, sFT, sKD, sSC = sK0, sK1, 96, 97
    KINDS = ("x", "w1", "w2")
    NX = 2 * FC.warm + (0 if FC.peek[0] else 3)
    lbase = {"x": 0, "w1": 0, "w2": REGB}

    def frag(beta, j):
        return DAT + (beta * 5 + j) * 4

    a("s_cmp_ge_u32 s2, 8")
    a(f"s_cbranch_scc1 {name}_npf")
    if FC.code_pf:
        srd_code(a, SRD5, "mk_kernel")
        a(f"v_lshlrev_b32 v{vld}, 7, v0")
        for k in range(3):
            a(f"s_mov_b32 s{sOP}, {k << 15}")
            a.raw(f"    buffer_load_dword {R(aDUM)}, v{vld}, s[{SRD5}:{SRD5 + 3}], s{sOP} offen")
    a(f"s_add_u32 s{sT}, s2, 160")
    a.label(f"{name}_npf")
    a(f"s_sub_u32 s{sT}, s{sT}, 8")
    a("s_cmp_ge_u32 s2, 160")
    a(f"s_cselect_b32 s3, s2, s{sT}")
    a(f"s_lshl_b32 s{sE}, s{sW}, 10")
    a("s_cmp_ge_u32 s3, 128")
    a(f"s_cbranch_scc1 {name}_pb")

    def row_addr(v, t):
        a(f"s_and_b32 s{sA}, s{sW}, 1")
        a(f"s_lshl_b32 s{sA}, s{sA}, 1")
        a(f"s_xor_b32 s{sA}, s{sA}, s{sW}")
        a(f"s_lshl_b32 s{sA}, s{sA}, 2")
        a(f"v_or_b32 v{t}, s{sA}, v{vG}")
        a(f"v_xor_b32 v{t}, v{t}, v{vI}")
        a(f"v_mul_u32_u24 v{v}, 1280, v{v}")
        a(f"v_lshl_add_u32 v{v}, v{t}, 4, v{v}")

    def row_issue(v, fl, base):
        for j in range(5):
            a(f"s_add_u32 m0, s{sE}, {base + j * 4096 - j * 256}")
            a(f"buffer_load_dwordx4 v{v}, s[{SRD0}:{SRD0 + 3}], 0 offen offset:{j * 256}{fl} lds")

    def sync_start():
        t, z = TMP, TMP + 4
        srd_ws(a, SRD3, "SS2", SS2_SIZE + FLAG_SIZE)
        lane_blocks(a, t, t + 1)
        a(f"s_lshl_b32 s{sA}, s3, 2")
        a(f"v_and_or_b32 v{t + 3}, v0, 3, s{sA}")
        a(f"v_bfe_u32 v{t + 1}, v0, 2, 1")
        a(f"v_mad_u32_u24 v{t + 2}, v{t + 1}, 3, 4")
        a(f"v_lshlrev_b32 v{t + 3}, v{t + 2}, v{t + 3}")
        a(f"v_lshl_add_u32 v{t + 3}, v{t + 1}, 14, v{t + 3}")
        a(f"v_lshrrev_b32 v{t + 1}, 3, v0")
        a(f"v_lshl_add_u32 v{t + 3}, v{t + 1}, 20, v{t + 3}")
        for k in range(4):
            a(f"v_mov_b32 v{z + k}, 0")
        a(f"s_mov_b32 s{sOQ}, {FB}")
        a(f"s_lshl_b32 s{sA}, s3, 9")
        a(f"s_add_u32 s{sOP}, s{sA}, {FB}")
        a(f"buffer_load_dword {R(aF)}, v{t}, s[{SRD3}:{SRD3 + 3}], s{sOQ} offen offset:{DONE}{FC.fl_f}")
        a(f"buffer_load_dword {R(aD)}, off, s[{SRD3}:{SRD3 + 3}], s{sOP} offset:{DONE}{FC.fl_f}")
        a(f"buffer_store_dwordx4 {V(z, 4)}, v{t + 3}, s[{SRD3}:{SRD3 + 3}], 0 offen sc1")

    def w2_setup(v, t):
        a(f"s_lshl_b32 s{sC}, s{sT}, 4")
        a(f"s_cmp_eq_u32 s{sT}, 108")
        a(f"s_cselect_b32 s{sC}, 0, s{sC}")
        a(f"s_lshl2_add_u32 s{sC}, s{sW}, s{sC}")
        a(f"v_add_u32 v{v}, s{sC}, v{vG}")
        row_addr(v, t)
        a("s_waitcnt lgkmcnt(0)")
        a(f"s_cmp_eq_u32 s{sT}, 108")
        a(f"s_mov_b32 s{SRD0 + 2}, {FF * DM * 2}")
        a(f"s_mov_b32 s{SRD0 + 3}, 0x20000")
        a(f"s_cselect_b32 s{SRD0 + 2}, {DM * 2}, s{SRD0 + 2}")
        a(f"s_cselect_b32 s{SRD0}, s{P_B2}, s{P_W2}")
        a(f"s_cselect_b32 s{SRD0 + 1}, s{P_B2 + 1}, s{P_W2 + 1}")
        a(f"s_and_b32 s{SRD0 + 1}, s{SRD0 + 1}, 0xffff")

    REG = 5248

    def filter_setup():
        a(f"s_bfe_u32 s{sA}, s3, 0x20001")
        a(f"s_lshl_b32 s{sC}, s{sA}, 7")
        a(f"s_lshr_b32 s{sA}, s3, 5")
        a(f"s_lshl_b32 s{sA}, s{sA}, 9")
        a(f"s_add_u32 s{sC}, s{sC}, s{sA}")
        a(f"s_and_b32 s{sA}, s3, 8")
        a(f"s_lshl3_add_u32 s{sC}, s{sA}, s{sC}")
        a(f"s_and_b32 s{sA}, s3, 16")
        a(f"s_add_u32 s{sC}, s{sC}, s{sA}")
        a(f"s_and_b32 s{sA}, s3, 1")
        a(f"s_lshl3_add_u32 s{sC}, s{sA}, s{sC}")
        a(f"s_and_b32 s{sA}, s{sW}, 2")
        a(f"s_lshl4_add_u32 s{sC}, s{sA}, s{sC}")
        a(f"s_mul_i32 s{sC}, s{sC}, 642")
        a(f"s_add_u32 s{sD}, s{sC}, 4096")
        a(f"s_mul_i32 s{sF}, s{sW}, {REG}")
        a(f"s_mov_b32 s{SRD0 + 2}, {SEQ * 642}")
        a(f"s_add_u32 m0, s{sF}, {REGB}")
        a(f"s_bitcmp1_b32 s{sW}, 0")
        a(f"s_cselect_b32 s{SRD0}, s{P_WI}, s{P_WR}")
        a(f"s_cselect_b32 s{SRD0 + 1}, s{P_WI + 1}, s{P_WR + 1}")
        a(f"s_and_b32 s{SRD0 + 1}, s{SRD0 + 1}, 0xffff")

    def filter_loads(js):
        a(f"v_lshlrev_b32 v{vld}, 4, v{vL}")
        for j in js:
            if j == 4:
                a(f"s_add_u32 m0, s{sF}, {REGB + 4096}")
            if j == 5:
                a("s_mov_b64 exec, 1")
            a(f"buffer_load_dwordx4 v{vld}, s[{SRD0}:{SRD0 + 3}], s{sC if j < 4 else sD} offen offset:{(j & 3) * 1024}{FC.fl_ld} lds")
            if j == 5:
                a("s_mov_b64 exec, -1")

    a(f"s_and_b32 s{sC}, s{sT}, 1")
    a(f"s_lshl_b32 s{sC}, s{sC}, 3")
    a(f"s_lshr_b32 s{sA}, s{sT}, 5")
    a(f"s_lshl4_add_u32 s{sC}, s{sA}, s{sC}")
    a(f"s_bfe_u32 s{sA}, s{sT}, 0x20001")
    a(f"s_lshl_b32 s{sA}, s{sA}, 8")
    a(f"s_add_u32 s{sC}, s{sC}, s{sA}")
    a(f"s_and_b32 s{sA}, s{sT}, 8")
    a(f"s_lshl4_add_u32 s{sC}, s{sA}, s{sC}")
    a(f"s_and_b32 s{sA}, s{sT}, 16")
    a(f"s_lshl_b32 s{sA}, s{sA}, 6")
    a(f"s_add_u32 s{sC}, s{sC}, s{sA}")
    a(f"s_lshl1_add_u32 s{sC}, s{sW}, s{sC}")
    a(f"v_and_b32 v{vld}, 1, v{vG}")
    a(f"v_lshlrev_b32 v{vld}, 6, v{vld}")
    a(f"v_lshrrev_b32 v{vr + 1}, 1, v{vG}")
    a(f"v_add3_u32 v{vld}, v{vld}, v{vr + 1}, s{sC}")
    row_addr(vld, vr)
    a("s_waitcnt lgkmcnt(0)")
    srd(a, SRD0, P_X, 0, SEQ * DM * 2)
    row_issue(vld, FC.fl_ld, 0)
    filter_setup()
    filter_loads(range(FC.c_early))
    mark(a, "l1")
    srd_ws(a, SRD1, "XP0", XP_SIZE)
    a(f"s_mov_b32 s{sKD}, 0")
    a(f"s_branch {name}_gen")

    a.label(f"{name}_pb")
    a(f"s_sub_u32 s{sT}, 255, s3")
    a(f"s_and_b32 s{sA}, s{sT}, 7")
    a(f"s_lshr_b32 s{sB}, s{sT}, 5")
    a(f"s_lshl3_add_u32 s{sA}, s{sB}, s{sA}")
    a(f"s_bfe_u32 s{sB}, s{sT}, 0x20003")
    a(f"s_lshl2_add_u32 s{sFT}, s{sA}, s{sB}")
    a(f"s_and_b32 s{sA}, s3, 7")
    a(f"s_bfe_u32 s{sB}, s3, 0x10003")
    a(f"s_lshl1_add_u32 s{sA}, s{sA}, s{sB}")
    a(f"s_add_u32 s{sA}, s{sA}, 96")
    a(f"s_sub_u32 s{sB}, s3, 32")
    a("s_cmp_lt_u32 s3, 144")
    a(f"s_cselect_b32 s{sA}, s{sA}, s{sB}")
    a("s_cmp_lt_u32 s3, 160")
    a(f"s_cselect_b32 s{sFT}, s{sA}, s{sFT}")
    a(f"s_cmp_ge_u32 s{sFT}, 108")
    a(f"s_cbranch_scc1 {name}_p2")
    a(f"s_and_b32 s{sA}, s{sW}, 1")
    a(f"s_lshl_b32 s{sA}, s{sA}, 2")
    a(f"v_lshrrev_b32 v{vld}, 1, v{vL}")
    a(f"v_xor_b32 v{vld}, s{sA}, v{vld}")
    a(f"v_mul_u32_u24 v{vld}, {FF * 2}, v{vld}")
    a(f"v_and_b32 v{vr}, 1, v{vL}")
    a(f"v_lshl_add_u32 v{vld}, v{vr}, 4, v{vld}")
    a(f"s_mul_i32 s{sA}, s{sW}, {32 * FF * 2}")
    a(f"s_lshl_b32 s{sB}, s{sFT}, 5")
    a(f"s_add_u32 s{sA}, s{sA}, s{sB}")
    a(f"v_add_u32 v{vld}, s{sA}, v{vld}")
    a("s_waitcnt lgkmcnt(0)")
    srd(a, SRD0, P_W1, 0, DM * FF * 2)
    if FC.rot:
        a(f"s_and_b32 s{sC}, s{sFT}, 3")
    for j in range(5):
        if FC.rot:
            a(f"s_lshl_b32 s{sA}, s{sC}, 12")
            a(f"s_add_u32 m0, s{sE}, s{sA}")
            a(f"s_mul_i32 s{sOP}, s{sC}, {128 * FF * 2}")
        else:
            a(f"s_add_u32 m0, s{sE}, {j * 4096}")
            a(f"s_mov_b32 s{sOP}, {j * 128 * FF * 2}")
        a(f"buffer_load_dwordx4 v{vld}, s[{SRD0}:{SRD0 + 3}], s{sOP} offen{FC.fl_l1} lds")
        if FC.rot and j < 4:
            a(f"s_add_u32 s{sC}, s{sC}, 1")
            a(f"s_cmp_eq_u32 s{sC}, 5")
            a(f"s_cselect_b32 s{sC}, 0, s{sC}")
    srd(a, SRD2, P_B1, 0, FF * 2)
    a(f"v_lshl_add_u32 v{vld}, v{vI}, 1, s{sB}")
    a(f"buffer_load_ushort {R(aB)}, v{vld}, s[{SRD2}:{SRD2 + 3}], 0 offen")
    mark(a, "l1")
    srd_ws(a, SRD1, "W1F", W1F_SIZE)
    a(f"s_cmp_lt_u32 s{sT}, 96")
    a(f"s_cselect_b32 s{sT}, s{sT}, 112")
    a(f"s_mov_b32 s{sKD}, 1")
    a(f"s_branch {name}_gen")
    a.label(f"{name}_p2")
    a(f"s_sub_u32 s{sT}, s{sFT}, 12")
    w2_setup(vld, vr)
    row_issue(vld, FC.fl_l2, REGB)
    mark(a, "l1")
    sync_start()
    a(f"s_cmp_gt_u32 s{sT}, 108")
    a(f"s_cbranch_scc1 {name}_end")
    a.label(f"{name}_g2")
    srd_ws(a, SRD1, "WA2", WA2_SIZE)
    a(f"s_mov_b32 s{sKD}, 2")

    va0, va1, va2, vc, vt, LD, ST = 10, 11, 12, 13, 17, 176, 216
    k0, k1, k2 = 98, 99, 100

    def filter_addr():
        vo = vc
        srd_ws(a, SRD4, "WC", WC_SIZE)
        a(f"v_bfe_u32 v{vt}, v{vL}, 3, 1")
        a(f"v_lshlrev_b32 v{vt}, 2, v{vt}")
        a(f"v_add_u32 v{vt}, v{vt}, v{vG}")
        a(f"s_cmp_lt_u32 s{sW}, 2")
        a(f"s_cselect_b32 s{k0}, 1, -1")
        a(f"s_mul_i32 s{sA}, s{k0}, 80")
        a(f"s_mul_i32 s{sB}, s{k0}, 40")
        a(f"v_mul_i32_i24 v{va0}, s{sA}, v{vt}")
        a(f"v_and_b32 v{vt}, 7, v{vL}")
        a(f"v_mul_u32_u24 v{va1}, 642, v{vt}")
        a(f"v_add_u32 v{va0}, v{va0}, v{va1}")
        a(f"s_mul_i32 s{k1}, s{sW}, 5")
        a(f"s_sub_u32 s{k2}, 325, s{k1}")
        a(f"s_cmp_lt_u32 s{sW}, 2")
        a(f"s_cselect_b32 s{k2}, s{k1}, s{k2}")
        a(f"s_lshl_b32 s{k2}, s{k2}, 1")
        a(f"v_add_u32 v{va0}, s{k2}, v{va0}")
        a(f"v_add_u32 v{va1}, s{sB}, v{va0}")
        a(f"v_cmp_gt_u32 vcc, 8, v0")
        a(f"v_add_u32 v{va2}, 640, v{va0}")
        a(f"v_cndmask_b32 v{va2}, v{va0}, v{va2}, vcc")
        a(f"v_lshrrev_b32 v{vo}, 3, v{vL}")
        a(f"v_lshlrev_b32 v{vo}, 14, v{vo}")
        a(f"v_lshl_add_u32 v{vo}, v{vt}, 4, v{vo}")
        a(f"s_lshl_b32 s{sA}, s3, 7")
        a(f"s_lshr_b32 s{sB}, s{sW}, 1")
        a(f"s_lshl_b32 s{sB}, s{sB}, 17")
        a(f"s_add_u32 s{sA}, s{sA}, s{sB}")
        a(f"v_add_u32 v{vo}, s{sA}, v{vo}")
        a(f"s_sub_u32 s{k2}, s{k1}, 5")
        a(f"s_cmp_lt_u32 s{sW}, 2")
        a(f"s_cselect_b32 s{k1}, s{k1}, s{k2}")

    def filter_job():
        vo = vc
        a("s_barrier")
        mark(a, "b2")
        for n in range(5):
            for rl in range(2):
                for ph in range(2):
                    ad = va1 if ph else (va2 if n == 0 else va0)
                    for ar in range(2):
                        a(f"ds_read_u16 v{LD + n * 8 + (rl * 2 + ph) * 2 + ar}, v{ad} offset:{REGB + (rl * 2 + ar) * REG + 2 * n}")
        for n in range(5):
            for k in range(4):
                a(f"v_lshl_or_b32 v{ST + 4 * n + k}, v{LD + n * 8 + 2 * k + 1}, 16, v{LD + n * 8 + 2 * k}")
            if n == 0:
                a(f"s_cmp_eq_u32 s{k1}, 10")
                a(f"s_cselect_b32 s{sOP}, 0, s{k1}")
                a(f"s_lshl_b32 s{sOP}, s{sOP}, 18")
            else:
                a(f"s_add_i32 s{k1}, s{k1}, s{k0}")
                a(f"s_lshl_b32 s{sOP}, s{k1}, 18")
            a(f"buffer_store_dwordx4 {V(ST + 4 * n, 4)}, v{vo}, s[{SRD4}:{SRD4 + 3}], s{sOP} offen sc1")

    a.label(f"{name}_gen")
    a(f"s_mov_b32 s{sSC}, {fx(SCALE)}")
    a(f"s_cmp_eq_u32 s{sKD}, 0")
    a(f"s_cselect_b32 s{sSC}, {fx(SCALE * 2.0 ** FC.xscale)}, s{sSC}")
    a(f"v_bfe_u32 v{TMP}, v{vI}, 1, 1")
    a(f"v_lshlrev_b32 v{TMP}, 4, v{TMP}")
    a(f"v_mov_b32 v{TMP + 1}, 0xffff")
    a(f"v_lshlrev_b32 v{TMP}, v{TMP}, v{TMP + 1}")
    a(f"v_lshrrev_b32 v{TMP + 1}, 2, v{vI}")
    for k in range(4):
        a(f"v_cmp_eq_u32 vcc, {k}, v{TMP + 1}")
        a(f"v_cndmask_b32 v{MK + k}, 0, v{TMP}, vcc")
    a(f"v_and_b32 v{M2}, 1, v{vI}")
    a(f"v_cvt_f32_u32 v{vph}, v{M2}")
    a(f"v_mul_f32 v{vph}, 0.5, v{vph}")
    a(f"v_lshrrev_b32 v{vk0}, 1, v{vI}")
    a(f"v_cvt_f32_u32 v{vk0}, v{vk0}")
    a(f"v_mul_f32 v{vk0}, {fx(1 / 32)}, v{vk0}")
    a(f"v_cvt_f32_u32 v{vgf}, v{vG}")

    def gen_a1(base, fq, ph):
        t = TMP
        a(f"v_fma_f32 v{t}, v{vgf}, v{fq}, {ph}")
        for j in range(1, 5):
            a(f"v_fmamk_f32 v{t + j}, v{fq}, {fx(4.0 * j)}, v{t}")
        for j in range(5):
            a(f"v_cos_f32 v{t + j}, v{t + j}")
        for j in range(5):
            a(f"v_mul_f32 v{t + j}, s{sSC}, v{t + j}")
        for j in range(5):
            a(f"v_cvt_pk_bf16_f32 v{t + j}, v{t + j}, v{t + j}")
        for j in range(5):
            for k in range(4):
                a(f"v_and_b32 v{base + 4 * j + k}, v{MK + k}, v{t + j}")

    def angles(kf, ph):
        t = TMP
        a(f"v_mul_f32 v{t + 8}, v{vgf}, v{kf}")
        a(f"v_fma_f32 v{t}, v{t + 8}, 2.0, v{ph}")
        for k in range(1, 8):
            c = 16 * (k >> 2) + 8 * ((k >> 1) & 1) + (k & 1)
            a(f"v_fmamk_f32 v{t + k}, v{kf}, {fx(float(c))}, v{t}")

    def addresses(kind):
        if kind == "x":
            filter_loads(range(FC.c_early, 6))
            filter_addr()
        if kind == "w1":
            a(f"v_and_b32 v{vr}, 1, v{vG}")
            a(f"v_lshlrev_b32 v{vr}, 7, v{vr}")
            a(f"v_lshl_add_u32 v{vr}, v{vG}, 10, v{vr}")
            a(f"v_lshl_add_u32 v{vr}, v{vI}, 3, v{vr}")
            a(f"v_xor_b32 v{vr + 1}, 128, v{vr}")
        else:
            a(f"v_and_b32 v{vr}, 4, v{vI}")
            a(f"v_lshlrev_b32 v{vr}, 1, v{vr}")
            a(f"v_xor_b32 v{vr}, v{vr}, v{vI}")
            a(f"v_lshlrev_b32 v{vr + 1}, 2, v{vG}")
            a(f"v_xor_b32 v{vr}, v{vr}, v{vr + 1}")
            a(f"v_lshlrev_b32 v{vr}, 4, v{vr}")
            a(f"v_lshl_add_u32 v{vr}, v{vI}, 8, v{vr}")
            for k in (1, 2, 3):
                a(f"v_xor_b32 v{vr + k}, {16 * k}, v{vr}")
        if kind == "x":
            a(f"v_and_b32 v{vld}, 1, v{vI}")
            a(f"v_lshl_add_u32 v{vo}, v{vG}, 1, v{vld}")
            a(f"v_lshlrev_b32 v{vo}, 14, v{vo}")
            a(f"v_and_b32 v{vld}, 14, v{vI}")
            a(f"v_lshl_add_u32 v{vo}, v{vld}, 3, v{vo}")
            a(f"s_lshl_b32 s{sA}, s{sQ}, 18")
            a(f"s_lshl_b32 s{sB}, s{sT}, 7")
            a(f"s_mov_b32 vcc_lo, 0x55555555")
            a(f"s_mov_b32 vcc_hi, 0x55555555")
        elif kind == "w1":
            a(f"v_lshlrev_b32 v{vo}, 4, v{vL}")
            a(f"s_lshl_b32 s{sA}, s{sQ}, 11")
            a(f"s_mul_i32 s{sB}, s{sFT}, 20480")
        else:
            a(f"v_lshrrev_b32 v{vo}, 1, v{vG}")
            a(f"v_mul_u32_u24 v{vo}, {KB_STR}, v{vo}")
            a(f"v_lshrrev_b32 v{vld}, 2, v{vI}")
            a(f"v_lshl_add_u32 v{vo}, v{vld}, 7, v{vo}")
            a(f"v_and_b32 v{vld}, 3, v{vI}")
            a(f"v_lshl_add_u32 v{vo}, v{vld}, 4, v{vo}")
            a(f"v_and_b32 v{vld}, 1, v{vG}")
            a(f"v_lshl_add_u32 v{vo}, v{vld}, 6, v{vo}")
            a(f"s_lshl_b32 s{sA}, s{sQ}, 10")
            a(f"s_mul_i32 s{sB}, s{sT}, {2 * KB_STR}")
        a(f"s_add_u32 s{sA}, s{sA}, s{sB}")
        a(f"v_add_u32 v{vo}, s{sA}, v{vo}")

    def reads(kind, first):
        st = None
        if kind == "x":
            if FC.warm:
                a.raw(f"    buffer_load_dword {R(aDUM)}, v{vo}, s[{SRD1}:{SRD1 + 3}], 0 offen")
                a(f"s_add_i32 s{sOP}, s{k1}, s{k0}")
                a(f"s_lshl_b32 s{sOP}, s{sOP}, 18")
                a.raw(f"    buffer_load_dword {R(aDUM)}, v{vc}, s[{SRD4}:{SRD4 + 3}], s{sOP} offen")
            if not FC.peek[0]:
                sync_start()
            mark(a, "l2")
            a(f"s_waitcnt vmcnt({6 + NX})")
        elif kind == "w1":
            w2_setup(ACCX, ACCX + 1)
            if FC.warm:
                a.raw(f"    buffer_load_dword {R(aDUM)}, v{vo}, s[{SRD1}:{SRD1 + 3}], 0 offen")
            if not FC.peek[1]:
                sync_start()
            mark(a, "l2")
            a(f"s_waitcnt vmcnt({FC.warm + (0 if FC.peek[1] else 3)})")
        else:
            if first:
                st = post(a, SRD3, FB, 1, ACCX, "s_waitcnt vmcnt(0)")
                a(f"s_cmp_lt_u32 s3, 160")
                a(f"s_cselect_b32 s{sA}, {1 << 20}, 0")
                a(f"v_add_u32 v{ACCX + 2}, s{sA}, v{ACCX + 2}")
            a("s_waitcnt vmcnt(0)")
        a("s_barrier")
        if st:
            a(st)
        mark(a, "b2" if kind == "w2" else "b1")
        for beta in range(4):
            for j in range(5):
                if kind == "w1":
                    for eh in range(2):
                        a(f"ds_read_b64_tr_b16 {R(frag(beta, j) + 2 * eh, 2)}, v{vr + eh} offset:{4096 * j + 256 * beta}")
                else:
                    a(f"ds_read_b128 {R(frag(beta, j), 4)}, v{vr + beta} offset:{lbase[kind] + 4096 * j}")
        if kind == "w1":
            row_issue(ACCX, FC.fl_l2, REGB)

    def dispatch(pre):
        for kind in KINDS[1:]:
            a(f"s_cmp_eq_u32 s{sKD}, {kind[-1]}")
            a(f"s_cbranch_scc1 {pre}_{kind}")

    def stage1(sc, n, extra=None):
        for beta in range(4):
            c = 4 * n + beta
            acc = ACC1 + 4 * (c % 4)
            for j in range(5):
                sc.mfma(acc, A1 + 20 * n + 4 * j, frag(beta, j), None if j == 0 else acc,
                        needs=[("y", c - 4)] if j == 0 and c >= 4 else [])
            rdy = sc.n + 5
            if extra:
                extra(beta, acc, rdy, ("y", c))
            for h in range(2):
                sc.add(f"v_cvt_pk_bf16_f32 v{Y + 2 * c + h}, v{acc + 2 * h}, v{acc + 2 * h + 1}", rdy, ("y", c))

    par = {"even": True}
    QP = "quad_perm:[1,0,3,2] row_mask:0xf bank_mask:0xf"

    def stage2(kind, sc, n, u, mat, acc, needs, fix=None):
        for tl in range(2):
            for kp in range(2):
                d = acc + 4 * tl
                m, y = mat + (tl * 2 + kp) * 4, Y + 8 * n + 4 * kp
                nd = list(needs) + [("y", 4 * n + 2 * kp), ("y", 4 * n + 2 * kp + 1)]
                if kind == "w2":
                    sc.mfma(d, y, m, None if kp == 0 else d, needs=nd)
                else:
                    sc.mfma(d, m, y, None if kp == 0 else d, needs=nd)
        rdy, key = sc.n + 3, ("o", n, u)
        if fix:
            fix(rdy, key)
        for k in range(4):
            sc.add(f"v_cvt_pk_bf16_f32 v{acc + k}, v{acc + 2 * k}, v{acc + 2 * k + 1}", rdy, key)
        if kind == "x":
            for ph in range(2):
                lo = par["even"]
                for k in range(2):
                    if lo:
                        sc.add(f"v_cndmask_b32_dpp v{acc + 4 + k}, v{acc + 2 + k}, v{acc + k}, vcc {QP}", rdy, key)
                    else:
                        sc.add(f"v_cndmask_b32_dpp v{acc + 6 + k}, v{acc + k}, v{acc + 2 + k}, vcc {QP}", rdy, key)
                if ph == 0:
                    sc.add("s_not_b64 vcc, vcc", rdy, key)
                    par["even"] = not lo

            def st():
                a(f"s_mov_b32 s{sOP}, {(16 * n + 8 * u) * XP_STR}")
                a(f"buffer_store_dwordx4 {V(acc + 4, 4)}, v{vo}, s[{SRD1}:{SRD1 + 3}], s{sOP} offen sc1")
            sc.add(st, rdy, key)
        elif kind == "w1":
            def st():
                a(f"s_mov_b32 s{sOP}, {(2 * n + u) * 1024}")
                a(f"buffer_store_dwordx4 {V(acc, 4)}, v{vo}, s[{SRD1}:{SRD1 + 3}], s{sOP} offen sc1")
            sc.add(st, rdy, key)
        else:
            sc.add(f"v_permlane16_swap_b32 v{acc}, v{acc + 2}", rdy, key)
            sc.add(f"v_permlane16_swap_b32 v{acc + 1}, v{acc + 3}", rdy, key)
            sc.add(f"buffer_store_dwordx4 {V(acc, 4)}, v{vo}, s[{SRD1}:{SRD1 + 3}], 0 offen offset:{1024 * n + 512 * u} sc1",
                   rdy, key)

    a(f"s_cmp_eq_u32 s{sW}, 3")
    a(f"s_cbranch_scc1 {name}_sp")

    a(f"s_mul_i32 s{sQ}, s{sW}, 3")
    a(f"s_add_u32 s{sQ}, s{sQ}, 1")
    a(f"v_mul_f32 v{vph}, 0.5, v{vph}")
    a(f"v_cvt_f32_u32 v{vq20}, s{sQ}")
    a(f"v_fmamk_f32 v{vk0}, v{vq20}, {fx(1 / 640)}, v{vk0}")
    a(f"v_mul_f32 v{vq20}, {fx(1 / 20)}, v{vq20}")
    a(f"v_mul_u32_u24 v{M2}, 0x8000, v{M2}")
    a(f"v_lshl_or_b32 v{M2}, v{M2}, 16, v{M2}")
    a(f"v_xor_b32 v{M2N}, {SIGN2:#x}, v{M2}")
    a(f"v_and_b32 v{M1}, 1, v{vG}")
    a(f"v_mul_u32_u24 v{M1}, 0x8000, v{M1}")
    a(f"v_lshl_or_b32 v{M1}, v{M1}, 16, v{M1}")
    for n in range(3):
        if n:
            a(f"v_add_f32 v{vk0}, {fx(1 / 640)}, v{vk0}")
            a(f"v_add_f32 v{vq20}, {fx(1 / 20)}, v{vq20}")
        gen_a1(A1 + 20 * n, vq20, f"v{vph}")
        angles(vk0, vph)
        for k in range(8):
            a(f"v_sin_f32 v{TMP + 8 + k}, v{TMP + k}")
            a(f"v_cos_f32 v{TMP + k}, v{TMP + k}")
        b = A2 + 16 * n
        for k in range(8):
            a(f"v_cvt_pk_bf16_f32 v{b + k}, v{TMP + k}, v{TMP + 8 + k}")
            if k & 1:
                a(f"v_cvt_pk_bf16_f32 v{b + 8 + k}, -v{TMP + 8 + k}, v{TMP + k}")
        for k in range(8):
            a(f"v_xor_b32 v{b + 8 + k}, v{M1}, v{b + (8 if k & 1 else 0) + k}")
    dispatch(f"{name}_t")
    end = {"x": f"{name}_xend", "w1": f"{name}_1end", "w2": f"{name}_end"}
    for kind in KINDS:
        if kind != "x":
            a.label(f"{name}_t_{kind}")
        if kind != "w2":
            mark(a, "gen")
        par["even"] = True
        addresses(kind)
        reads(kind, True)
        sc = Sched(a)
        for n in range(3):
            stage1(sc, n)
            for k in range(16):
                sc.add(f"v_xor_b32 v{A1 + 20 * n + k}, v{M2N if k & 1 else M2}, v{A2 + 16 * n + k}", sc.n, ("d", n))
        bufs = [ACCX, ACC1, ACC1 + 8]
        hist = [[], [("y", 8), ("y", 9)], [("y", 10), ("y", 11)]]
        for k in range(6):
            n, u = divmod(k, 2)
            needs = hist[k] if k < 3 else [("o",) + divmod(k - 3, 2)]
            if u:
                needs = needs + [("d", n)]
            stage2(kind, sc, n, u, A1 + 20 * n if u else A2 + 16 * n, bufs[k % 3], needs)
        sc.flush()
        if kind == "x":
            a(f"s_waitcnt vmcnt({6 + NX})")
        a(f"s_branch {end[kind]}")

    a.label(f"{name}_sp")
    a(f"s_mov_b32 s{sQ}, 0")
    gen_a1(A1, vph, "0")
    a(f"v_mul_f32 v{vph}, 0.5, v{vph}")
    kf, ph = vq20, M1
    for tau in range(4):
        if tau == 0:
            a(f"v_cmp_eq_u32 vcc, 0, v{vI}")
            a(f"v_mov_b32 v{kf}, 0.5")
            a(f"v_cndmask_b32 v{kf}, v{vk0}, v{kf}, vcc")
            a(f"v_cmp_gt_u32 vcc, 2, v{vI}")
            a(f"v_mov_b32 v{ph}, {fx(0.125)}")
            a(f"v_cndmask_b32 v{ph}, v{vph}, v{ph}, vcc")
        else:
            a(f"v_add_f32 v{kf}, {fx(tau / 4 + (10 / 640 if tau >= 2 else 0))}, v{vk0}")
            a(f"v_mul_f32 v{ph}, {'-1.0' if tau >= 2 else '1.0'}, v{vph}")
        angles(kf, ph)
        for k in range(8):
            a(f"v_cos_f32 v{TMP + k}, v{TMP + k}")
        for k in range(8):
            d = A2 + 8 * tau + k
            a(f"v_cvt_pk_bf16_f32 v{d}, v{TMP + k}, 0" if tau < 2 else f"v_cvt_pk_bf16_f32 v{d}, 0, v{TMP + k}")
    dispatch(f"{name}_s")
    X0 = A2 + 32
    vs, vz, vb, GR, SM, T = X0, X0 + 1, X0 + 2, X0 + 4, X0 + 8, X0 + 12
    TR = A1 + 20
    DIAG = (4, 6, 30, 70)
    for kind in KINDS:
        if kind != "x":
            a.label(f"{name}_s_{kind}")
        if kind != "w2":
            mark(a, "gen")
        par["even"] = True
        addresses(kind)
        if kind == "x":
            srd_ws(a, SRD2, "SS0", SS_SIZE)
            a(f"s_lshr_b32 s{sA}, s{sT}, 4")
            a(f"s_lshl_b32 s{sA}, s{sA}, 10")
            a(f"s_and_b32 s{sB}, s{sT}, 7")
            a(f"s_lshl_b32 s{sB}, s{sB}, 7")
            a(f"s_add_u32 s{sA}, s{sA}, s{sB}")
            a(f"s_and_b32 s{sB}, s{sT}, 8")
            a(f"s_add_u32 s{sA}, s{sA}, s{sB}")
            a(f"v_lshrrev_b32 v{vs}, 1, v{vI}")
            a(f"v_lshlrev_b32 v{vs}, 4, v{vs}")
            a(f"v_lshl_add_u32 v{vs}, v{M2}, 2, v{vs}")
            a(f"v_lshl_add_u32 v{vs}, v{vG}, 20, v{vs}")
            a(f"v_add_u32 v{vs}, s{sA}, v{vs}")
            for r in range(4):
                m = 0x1000010000100001 << r
                a(f"s_mov_b32 s{DIAG[r]}, {m & 0xffffffff:#x}")
                a(f"s_mov_b32 s{DIAG[r] + 1}, {m >> 32:#x}")
        if kind == "w1":
            a(f"s_mov_b64 s[{sM0}:{sM1}], 0xffff")
        if kind == "w2":
            srd_ws(a, SRD2, "W2T", W2T_SIZE)
            a(f"v_bfe_u32 v{vz}, v{vI}, 1, 1")
            a(f"v_lshl_add_u32 v{vz}, v{vG}, 1, v{vz}")
            a(f"v_lshrrev_b32 v{vb}, 2, v{vI}")
            a(f"v_xor_b32 v{vz}, v{vz}, v{vb}")
            a(f"v_lshlrev_b32 v{vz}, 4, v{vz}")
            a(f"v_lshl_add_u32 v{vz}, v{vb}, 8, v{vz}")
            a(f"v_lshl_add_u32 v{vz}, v{M2}, 3, v{vz}")
            a(f"v_xor_b32 v{vb}, {1024 + 64}, v{vz}")
            a(f"s_mul_i32 s{sA}, s{sT}, {2 * KB_STR}")
            a(f"v_lshl_add_u32 v{vs}, v{vL}, 4, s{sA}")
        reads(kind, False)
        sc = Sched(a)

        def tr_read(n):
            h, x = divmod(n, 10)
            return [f"ds_read_b64_tr_b16 {V(TR + 4 * (n % 10) + 2 * eh, 2)}, v{vz + eh} "
                    f"offset:{REGB + (x >> 1) * 4096 + h * 2048 + 128 * ((x ^ h ^ eh) & 1)}" for eh in range(2)]

        def tr_store(n):
            if n % 4 == 0:
                a(f"s_mov_b32 s{sOQ}, {n * 1024}")
            a(f"buffer_store_dwordx4 {V(TR + 4 * (n % 10), 4)}, v{vs}, s[{SRD2}:{SRD2 + 3}], s{sOQ} offen offset:{(n % 4) * 1024} sc1")

        if kind == "w2":
            for n in range(10):
                for op in tr_read(n):
                    a(op)

        def sums(beta, acc, rdy, key):
            sc.add(f"v_add_f32 v{SM + beta}, v{acc}, v{acc + 2}", rdy, key)

        stage1(sc, 0, sums if kind == "x" else None)
        if kind == "x":
            for k in range(10):
                sc.mfma(GR, DAT + 4 * k, DAT + 4 * k, None if k == 0 else GR)

        def fix(rdy, key):
            sc.add(f"v_accvgpr_read_b32 v{vb}, {R(aB)}", rdy, key)
            sc.add(f"v_lshlrev_b32 v{vb}, 16, v{vb}", rdy, key)
            sc.add(f"v_cndmask_b32_e64 v{ACCX + 1}, v{ACCX + 1}, v{vb}, s[{sM0}:{sM1}]", rdy, key)

        if kind == "w2":
            sc.flush()
            for n in range(10):
                tr_store(n)
                for op in tr_read(n + 10):
                    a(op)
        stage2(kind, sc, 0, 0, A2, ACCX, [], fix if kind == "w1" else None)
        stage2(kind, sc, 0, 1, A2 + 16, ACC1, [("y", 0), ("y", 1)])
        if kind == "w2":
            for n in range(10, 20):
                tr_store(n)
        if kind == "x":
            sc.add(f"v_add_f32 v{SM}, v{SM}, v{SM + 1}")
            sc.add(f"v_add_f32 v{SM + 2}, v{SM + 2}, v{SM + 3}")
            sc.add(f"v_add_f32 v{SM}, v{SM}, v{SM + 2}")
            for op in ("v_permlane32_swap_b32", "v_permlane16_swap_b32"):
                sc.add(f"v_mov_b32 v{SM + 1}, v{SM}")
                sc.add(f"{op} v{SM}, v{SM + 1}")
                sc.add(f"v_add_f32 v{SM}, v{SM}, v{SM + 1}")
            sc.add(f"v_mul_f32 v{SM}, {fx(2.0 ** -FC.xscale)}, v{SM}")
            sc.add(f"v_mul_f32 v{SM}, v{SM}, v{SM}")
            for k in range(10, 20):
                sc.mfma(GR, DAT + 4 * k, DAT + 4 * k, GR)
        sc.flush()
        if kind == "x":
            for r in range(4):
                prev = "0" if r == 0 else f"v{T}"
                a(f"v_cndmask_b32_e64 v{T}, {prev}, v{GR + r}, s[{DIAG[r]}:{DIAG[r] + 1}]")
            for op in ("v_permlane32_swap_b32", "v_permlane16_swap_b32"):
                a(f"v_mov_b32 v{T + 1}, v{T}")
                a(f"{op} v{T}, v{T + 1}")
                a(f"v_add_f32 v{T}, v{T}, v{T + 1}")
            a(f"v_fmamk_f32 v{T}, v{SM}, {fx(-1.0 / (model2.SC * model2.SC * DM))}, v{T}")
            a(f"v_max_f32 v{T}, 0, v{T}")
            a(f"buffer_store_dword v{T}, v{vs}, s[{SRD2}:{SRD2 + 3}], 0 offen sc1")
            a(f"s_waitcnt vmcnt({3 + NX})")
        a(f"s_branch {end[kind]}")

    a.label(f"{name}_1end")
    mark(a, "j1")
    if FC.peek[1]:
        sync_start()
    a("s_cmp_ge_u32 s3, 160")
    a(f"s_cbranch_scc1 {name}_g2")
    a(f"s_branch {name}_end")
    a.label(f"{name}_xend")
    mark(a, "j1")
    filter_job()
    if FC.peek[0]:
        sync_start()
    a.label(f"{name}_end")
    mark(a, "j2")
    a(f"s_mov_b32 s{sT}, s2")
```

```python
from gen import *
import gen
import f0
import model2
from p0 import Sched, fx
from f0 import DONE, DONE2, aF
from asmlib import TRANS

GELU_K0 = -2.0 * 0.7978845608028654 * 1.4426950408889634
EPS = 1e-5
SPIN_MAX = 1 << 14
NCOL = 160
TILE = 20480
LDS_X = LDS_RED = 0
PX, READY, POST, HINT = 0, 4, 132, (260, 388)
S_LO, S_X = -97, (-24, 24)
UP = [s - S_LO for s in S_X]
T_X = [2.0 ** (d - 127) for d in UP]
T_H, H_OFF = T_X[0], -2.0 ** -40

SRDQ, SRDF, SRDW, SRDP = 8, 12, SRD4, SRD5
sDC, sRP, sHO, sTB = 16, 17, 18, 19
sRB, sMM, sFL, sCNT, sGA, sGB = 96, 97, 98, 99, 100, 101
sMSK, sCQ = 26, 27
sPK, sEB = 20, 21
vW, vo, vp, vd2 = 10, 11, 15, 14
WR, NW, NP = 256, 8, 11
aPO = WR
aST, aDUM, vdc = 256 + 252, 256 + 253, 256 + 254
NS = 14


class FZ:
    look = 10
    pre_p = (8, 8)
    burst = ((0, 8), (4, 0))
    period = (90, 90)
    stop = ("x2", "x2")
    hint_at = ("x1", "x1")
    po_every = 5
    cap = 12
    row = 70
    srow = 120
    lat = 750
    dbl = (12, 15)
    xc_at = 1
    b_pre = 0
    pure = (2, 1)
    in_b = (5, 3)
    in_e = 5
    g2pk = (1, 1)
    qdel = (1600, 1600)
    qc_rem = 7
    split0 = 1
    ktail = 3
    rd_at = (("b", 1), ("b", 8))
    x3 = (("g", 3), ("g", 6), ("g", 8))
    res_at = ("g", 7)
    ebar = 1
    e_ok = 17
    marks = None
    clk = 0
    halt = 0
    verbose = 0
    map = 2
    post = 'bar2'
    x_nocnt = 0
    x_op = 'buffer-atomic-add-f32'
    wgap = 48
    park = (3, 2)
    gbar = 5
    ft_pf = 1
    p_lead = 14
    r_q = 2
    qf = (" sc1", " sc1")
    xf = (" sc1", " sc1")
    hf = " sc1"
    d2_at = 30
    ack_at = 2
    single = 0
    drop = ("c1a", "c2a", "c1b2", "c2b2", "m1H", "m2H", "m1P", "m2P", "c2ld", "c2x1")


class Marks:
    def __init__(self):
        self.names, self.pend = [], []

    def __call__(self, a, name):
        if not Cfg.stamp or (name in FZ.drop if FZ.marks is None else name not in FZ.marks):
            return
        k = len(self.pend)
        assert k < 12, name
        self.pend.append(len(self.names))
        self.names.append(name)
        a(f"{'s_memtime' if FZ.clk else 's_memrealtime'} s[{sST + 2 * k}:{sST + 2 * k + 1}]")

    def fixed(self, a, name):
        if not Cfg.stamp or FZ.marks is not None:
            return
        name = "f" + name
        if name not in self.names:
            self.pend.append(len(self.names))
            self.names.append(name)
        k = self.pend.index(self.names.index(name))
        a(f"s_memrealtime s[{sST + 2 * k}:{sST + 2 * k + 1}]")

    def stash(self, a, tmp):
        if not self.pend:
            return
        a("s_waitcnt lgkmcnt(0)")
        a(f"v_accvgpr_read_b32 v{tmp}, {R(aST)}")
        for k, lane in enumerate(self.pend):
            a(f"v_writelane_b32 v{tmp}, s{sST + 2 * k}, {lane}")
        a(f"v_writelane_b32 v{tmp}, s{sCNT}, {len(self.names)}")
        self.names.append("#" + self.names[self.pend[-1]])
        assert len(self.names) < 63
        a(f"v_accvgpr_write_b32 {R(aST)}, v{tmp}")
        self.pend = []


mk = Marks()


def preg(u, p):
    return WR + (0 if u == NP else 4 * NW + 20 * (u % (NP + 1))) + 4 * p


def kblock(u):
    return 2 * (14 * (u & 1) + (u >> 1))


def decode(a):
    a(f"s_and_b32 s{sA}, s{sT}, 7")
    if FZ.map == 1:
        a(f"s_bfe_u32 s{sRB}, s{sT}, 0x10003")
        a(f"s_lshl1_add_u32 s{sRB}, s{sA}, s{sRB}")
        a(f"s_lshr_b32 s{sMM}, s{sT}, 4")
    else:
        a(f"s_lshr_b32 s{sB}, s{sA}, 1")
        a(f"s_lshl_b32 s{sB}, s{sB}, 2")
        a(f"s_bfe_u32 s{sRB}, s{sT}, {0x20006 if FZ.map == 2 else 0x20003:#x}")
        a(f"s_add_u32 s{sRB}, s{sRB}, s{sB}")
        a(f"s_and_b32 s{sA}, s{sA}, 1")
        a(f"s_lshl_b32 s{sA}, s{sA}, 3")
        a(f"s_bfe_u32 s{sMM}, s{sT}, {0x30003 if FZ.map == 2 else 0x30005:#x}")
        a(f"s_add_u32 s{sMM}, s{sMM}, s{sA}")
    a(f"s_lshl_b32 s{sFL}, s{sRB}, 7")
    a(f"s_mov_b32 s{sCNT}, 0")
    for k in range(4):
        a(f"v_accvgpr_write_b32 {R(aPO + k)}, -1")
    if Cfg.stamp:
        a(f"v_accvgpr_write_b32 {R(aST)}, 0")


def pre_setup(a, ph, t0):
    if not ph:
        a(f"s_and_b32 s{sA}, s{sMM}, 3")
        a(f"s_cmp_eq_u32 s{sA}, 3")
        a(f"s_cselect_b32 s{sMSK}, 0x40000000, 0")
        a(f"s_lshr_b32 s{sB}, s{sMM}, 3")
        a(f"s_lshl2_add_u32 s{sDC}, s{sB}, s{sA}")
        a(f"s_mul_i32 s{sTB}, s{sMM}, 7")
        a(f"s_lshr_b32 s{sB}, s{sMM}, 2")
        a(f"s_sub_u32 s{sTB}, s{sTB}, s{sB}")
        a(f"s_mul_i32 s{sPK}, s{sW}, {TILE // 4}")
        a(f"s_mul_i32 s{sEB}, s{sW}, {3 * TILE // 4}")
    a(f"s_mul_i32 s{sE}, s{sW}, {(2 if ph else 7) * TILE // 4}")
    a(f"s_add_u32 m0, s{sE}, {TILE}")
    a(f"v_lshlrev_b32 v{vW}, 4, v{vL}")
    a(f"s_mul_i32 s{sA}, s{sTB}, {TILE}")
    a(f"s_add_u32 s{sA}, s{sA}, {WS['W1F'] - TILE}")
    a(f"s_add_u32 s{SRDW}, s{P_WS}, s{sA}")
    a(f"s_addc_u32 s{SRDW + 1}, s{P_WS + 1}, 0")
    a(f"s_and_b32 s{SRDW + 1}, s{SRDW + 1}, 0xffff")
    a(f"s_mov_b32 s{SRDW + 2}, {8 * TILE}")
    a(f"s_cmp_lg_u32 s{sMSK}, 0")
    a(f"s_cselect_b32 s{SRDW + 2}, {7 * TILE}, s{SRDW + 2}")
    a(f"s_mov_b32 s{SRDW + 3}, 0x20000")
    a(f"v_lshrrev_b32 v{vo}, 1, v{vG}")
    a(f"v_and_b32 v{t0}, 1, v{vG}")
    if not ph:
        a(f"v_mad_u32_u24 v{vp}, v{vo}, 14, v{t0}")
        a(f"v_mul_u32_u24 v{vp}, {KB_STR}, v{vp}")
        a(f"v_lshl_add_u32 v{vp}, v{vI}, 4, v{vp}")
        a(f"s_mul_i32 s{sA}, s{sDC}, 1280")
        a(f"s_mul_i32 s{sB}, s{sW}, {54 * KB_STR}")
        a(f"s_add_u32 s{sA}, s{sA}, s{sB}")
        a(f"v_add_u32 v{vp}, s{sA}, v{vp}")
    a(f"v_lshlrev_b32 v{vo}, 15, v{vo}")
    a(f"v_lshl_add_u32 v{vo}, v{vI}, 5, v{vo}")
    a(f"v_lshl_add_u32 v{vo}, v{t0}, 4, v{vo}")
    a(f"s_lshl_b32 s{sA}, s{sTB}, 16")
    a(f"s_lshl4_add_u32 s{sA}, s{sFL}, s{sA}")
    a(f"s_lshl_b32 s{sB}, s{sW}, 9")
    a(f"s_add_u32 s{sA}, s{sA}, s{sB}")
    a(f"v_add_u32 v{vo}, s{sA}, v{vo}")
    if ph:
        a(f"s_add_u32 s{SRDP}, s{SRDP}, {WS['W2T'] - WS['WA2']}")
        a(f"s_addc_u32 s{SRDP + 1}, s{SRDP + 1}, 0")
    else:
        a(f"v_add_u32 v{t0}, s{sMSK}, v{vo}")
        srd_ws(a, SRDP, "WA2", 218 * KB_STR)
        a(f"s_add_u32 s{sA}, s{sW}, 1")
        a(f"s_mul_i32 s{sA}, s{sA}, {54 * KB_STR}")
        a(f"s_cmp_eq_u32 s{sW}, 3")
        a(f"s_cselect_b32 s{SRDP + 2}, s{SRDP + 2}, s{sA}")
        srd_ws(a, SRDF, "FLAG", FLAG_SIZE)
        srd_ws(a, SRDQ, "H", H_SIZE)


def w2_flags():
    return [f"s_mul_i32 s{sOP}, s{sW}, 27",
            f"v_min_u32 v{vd2}, 27, v{vL}",
            f"v_add_u32 v{vd2}, s{sOP}, v{vd2}",
            f"v_sub_u32 v{vd2}, 255, v{vd2}",
            f"v_lshlrev_b32 v{vd2}, 9, v{vd2}",
            f"buffer_load_dword v{vd2}, v{vd2}, s[{SRDF}:{SRDF + 3}], 0 offen offset:{DONE2} sc1"]


def w2_test(a, nm):
    a(f"v_cmp_eq_u32 vcc, 0, v{vd2}")
    a(f"s_cbranch_vccnz {nm}_w2")
    a.label(f"{nm}_w2ok", keep=True)

    def spin():
        a.label(f"{nm}_w2")
        for x in w2_flags():
            a(x)
        budget(a, f"{nm}_w2out")
        a(f"v_cmp_eq_u32 vcc, 0, v{vd2}")
        a(f"s_cbranch_vccnz {nm}_w2")
        a.label(f"{nm}_w2out")
        a("s_waitcnt vmcnt(0)")
        a(f"s_branch {nm}_w2ok")
    a.tail.append(spin)


def front_wait(a, nm, t):
    f0.lane_blocks(a, t, t + 1)
    a(f"v_accvgpr_read_b32 v{t + 2}, {R(aF)}")
    a.label(f"{nm}_fw")
    a(f"buffer_load_dword v{t + 1}, v{t}, s[{SRDF}:{SRDF + 3}], 0 offen offset:{DONE} sc1")
    budget(a, f"{nm}_fwok")
    a(f"v_cmp_eq_u32 vcc, v{t + 2}, v{t + 1}")
    a(f"s_cbranch_vccnz {nm}_fw")
    a.label(f"{nm}_fwok")
    a("s_waitcnt vmcnt(0)")


def pre_ops(ph, t0, nm):
    po, ops = [], []
    for k in range(0 if ph else 7):
        po.append([f"s_mov_b32 s{sOQ}, {k * 2 * H_STR}",
                   f"buffer_store_dwordx4 {R(aPO, 4)}, v{t0 if k == 6 else vo}, s[{SRDQ}:{SRDQ + 3}], s{sOQ} offen sc1"])
    n = 10 if ph else 35
    for k in range(n):
        g = [f"buffer_load_dwordx4 v{vW}, s[{SRDW}:{SRDW + 3}], m0 offen offset:{(k & 3) * 1024} lds"]
        if k & 3 == 3:
            g.append("s_add_u32 m0, m0, 4096")
        ops.append(g)
    for u in range(FZ.pre_p[ph]):
        for p in range(5):
            g = [f"buffer_load_dwordx4 {R(preg(u, p), 4)}, v{vp}, s[{SRDP}:{SRDP + 3}], s{sOP} offen offset:{p * 256}"]
            ops.append(([f"s_mov_b32 s{sOP}, {kblock(u) * KB_STR}"] if p == 0 else []) + g)
    if not ph:
        ops[n].insert(0, lambda a: w2_test(a, nm))
        ops.insert(FZ.d2_at, w2_flags())
    out = []
    for k, op in enumerate(ops):
        out.append(op)
        if k % FZ.po_every == FZ.po_every - 1 and po:
            out.append(po.pop(0))
    assert not po
    return out


class Paced:
    def __init__(self, a, ops, period):
        self.a, self.ops, self.period = a, ops, period
        self.on = False
        self.t = 0

    def burst(self, n):
        for _ in range(min(n, len(self.ops))):
            for x in self.ops.pop(0):
                x(self.a) if callable(x) else self.a(x)

    def __call__(self, text, tag=None):
        self.a(text, tag)
        if self.on:
            op = text.split()[0]
            self.t += 16 if op.startswith("v_mfma") else 8 if op in TRANS else 4
            if self.t >= self.period:
                self.t -= self.period
                self.burst(1)

    def __getattr__(self, n):
        return getattr(self.a, n)


def budget(a, out):
    a(f"s_add_u32 s{sCNT}, s{sCNT}, 1")
    a(f"s_cmp_ge_u32 s{sCNT}, {SPIN_MAX}")
    a(f"s_cbranch_scc1 {out}")


def col_phase(a0, ph):
    vx, vw, vl0, vt0, vh = 4, 5, 6, 12, 13
    raw, ss, wraw = 16, 32, 40
    M1, M2 = 56, 88
    T1, T2 = 120, 136
    ACC, FO, TMP, WU0 = 152, 184, 200, 232
    vmI, fi, fg, fa, fb = 176, 177, 178, 179, 180
    SL = ACC
    FGR = [TMP + 4 * k for k in range(8)] + [ss, ss + 4, 248, 252]
    WU = (WU0, T1)
    nm = f"c{ph + 1}"
    a = Paced(a0, pre_ops(ph, vt0, nm), FZ.period[ph])

    def point(name):
        mk(a0, nm + name)
        if name == FZ.hint_at[ph]:
            a0(f"buffer_store_dword v{vh}, v{vh}, s[{SRDF}:{SRDF + 3}], 0 offen sc1")
        if name == FZ.stop[ph]:
            a.on = False

    a(f"s_mul_i32 s{sB}, s{sW}, 3072")
    a(f"v_lshlrev_b32 v{vl0}, 4, v0")
    a(f"v_add_u32 v{vx}, s{sB}, v{vl0}")
    if not ph:
        a(f"s_lshl_b32 s{sB}, s{sW}, 10")
        a(f"v_add_u32 v{vw}, s{sB}, v{vl0}")
    a(f"s_lshl_b32 s{sF}, s{sT}, 14")

    def data_loads(e):
        if ph:
            for k in range(4):
                e(f"buffer_load_dwordx4 {V(raw + 4 * k, 4)}, v{vx}, s[{SRD0}:{SRD0 + 3}], s{sF} offen offset:{k * 1024} sc1")
            for k in range(4):
                e(f"buffer_load_dwordx3 {V(SL + 4 * k, 3)}, v{vx}, s[{SRD1}:{SRD1 + 3}], 0 offen offset:{k * 1024} sc1")
        else:
            for t in range(2):
                e(f"buffer_load_dwordx4 {V(ss + 4 * t, 4)}, v{vw}, s[{SRD1}:{SRD1 + 3}], 0 offen offset:{t * 1024} sc1")
            for k in range(4):
                e(f"buffer_load_dwordx4 {V(raw + 4 * k, 4)}, v{vx}, s[{SRD0}:{SRD0 + 3}], s{sF} offen offset:{k * 1024} sc1")

    def filter_loads():
        for k in range(4):
            a(f"buffer_load_dwordx4 {V(wraw + 4 * k, 4)}, v{vx}, s[{SRD2}:{SRD2 + 3}], s{sF} offen offset:{k * 1024}")

    def ack(n):
        if not ph and n == FZ.ack_at:
            st = f0.post(a0, SRDF, 0, 1, ACC, "s_waitcnt vmcnt(0)")
            a0("s_barrier")
            a0(st)
            point("ak")

    def pos(base, k, c):
        return base + (k >> 1) * 4 + (k & 1) * 2 + c

    srd_ws(a, SRD2, "WC", WC_SIZE)
    if ph:
        filter_loads()
        point("ld")
    else:
        srd_ws(a, SRD0, "XP0", XP_SIZE)
        srd_ws(a, SRD1, "SS0", SS_SIZE)
    pre_setup(a, ph, vt0)
    a(f"s_lshl_b32 s{sA}, s3, 9")
    a(f"s_add_u32 s{sA}, s{sA}, {HINT[ph]}")
    a(f"v_lshl_add_u32 v{vh}, v0, 20, s{sA}")
    if ph:
        a("s_barrier")
        a.burst(FZ.burst[ph][0])
    ack(0)
    for kk in (1, 2, 3):
        a(f"v_xor_b32 v{vl0 + kk}, {kk * 1024}, v{vl0}")
    a(f"v_and_b32 v{vmI}, 1, v{vI}")
    a(f"v_mul_u32_u24 v{vmI}, 0x8000, v{vmI}")
    a(f"v_lshl_or_b32 v{vmI}, v{vmI}, 16, v{vmI}")
    a(f"v_cvt_f32_u32 v{fi}, v{vI}")
    a(f"v_lshlrev_b32 v{fg}, 2, v{vG}")
    a(f"v_cvt_f32_u32 v{fg}, v{fg}")

    def m1(qb, t, var):
        return M1 + ((qb * 2 + t) * 2 + var) * 4

    def m2(kk, var):
        return M2 + (kk * 2 + var) * 4

    a(f"v_mul_f32 v{fa}, {fx(1 / 32)}, v{fi}")
    a(f"v_mul_f32 v{TMP}, v{fg}, v{fa}")
    for jj in range(1, 4):
        a(f"v_fmamk_f32 v{TMP + 3 * jj}, v{fa}, {fx(float(jj))}, v{TMP}")
    for jj in range(4):
        t = TMP + 3 * jj
        a(f"v_cos_f32 v{t + 1}, v{t}")
        a(f"v_sin_f32 v{t + 2}, v{t}")
    for jj in range(4):
        t = TMP + 3 * jj
        n = "-" if jj & 1 else ""
        m = "" if jj & 1 else "-"
        a(f"v_cvt_pk_bf16_f32 v{m1(0, 0, 0) + jj}, v{t + 1}, v{t + 2}")
        a(f"v_cvt_pk_bf16_f32 v{m1(0, 0, 1) + jj}, -v{t + 2}, v{t + 1}")
        a(f"v_cvt_pk_bf16_f32 v{m1(1, 0, 0) + jj}, {n}v{t + 1}, {n}v{t + 2}")
        a(f"v_cvt_pk_bf16_f32 v{m1(1, 0, 1) + jj}, {m}v{t + 2}, {n}v{t + 1}")
    for qb in range(2):
        for var in range(2):
            for jj in range(4):
                a(f"v_xor_b32 v{m1(qb, 1, var) + jj}, v{vmI}, v{m1(qb, 0, var) + jj}")
    ack(1)

    a(f"s_lshl_b32 s{sK0}, s{sW}, 4")
    a(f"v_cvt_f32_u32 v{fb}, s{sK0}")
    a(f"v_add_f32 v{TMP + 24}, v{fb}, v{fg}")
    a(f"v_add_f32 v{fb}, v{fb}, v{fi}")
    a(f"v_mul_f32 v{TMP + 25}, {fx(1 / 2048)}, v{fi}")
    a(f"v_add_f32 v{TMP + 26}, {fx(16 / 2048)}, v{TMP + 25}")
    for r in range(4):
        a(f"v_add_f32 v{TMP + r}, {fx(float(r))}, v{TMP + 24}")
    for qb in range(2):
        for r in range(4):
            t = TMP + 4 + (qb * 4 + r)
            a(f"v_mul_f32 v{t}, v{TMP + r}, v{TMP + 25 + qb}")
            a(f"v_cos_f32 v{T1 + qb * 8 + r}, v{t}")
            a(f"v_sin_f32 v{T1 + qb * 8 + 4 + r}, v{t}")
    ack(2)

    a(f"v_mul_f32 v{fa}, {fx(1 / 64)}, v{fb}")
    a(f"s_xor_b32 s{sK0}, s{sK0}, 16")
    a(f"v_cvt_f32_u32 v{TMP + 24}, s{sK0}")
    a(f"v_add_f32 v{TMP + 24}, v{TMP + 24}, v{fg}")
    for kk in range(2):
        for r in range(4):
            t = TMP + 12 + 3 * r
            if kk == 0:
                a(f"v_mul_f32 v{t}, v{TMP + r}, v{fa}")
            else:
                a(f"v_add_f32 v{t}, {fx(float(r))}, v{TMP + 24}")
                a(f"v_mul_f32 v{t}, v{t}, v{fa}")
            a(f"v_cos_f32 v{t + 1}, v{t}")
            a(f"v_sin_f32 v{t + 2}, v{t}")
        for r in range(4):
            t = TMP + 12 + 3 * r
            a(f"v_cvt_pk_bf16_f32 v{m2(kk, 0) + r}, v{t + 1}, v{t + 2}")
            a(f"v_cvt_pk_bf16_f32 v{m2(kk, 1) + r}, -v{t + 2}, v{t + 1}")
    for kk in range(2):
        for var in range(2):
            for r in range(4):
                a(f"v_xor_b32 v{m2(kk + 2, var) + r}, v{vmI}, v{m2(kk, var) + r}")

    ack(3)
    if not ph:
        point("cs")
        st = f0.post(a0, SRDF, 0, 2, ACC)
        front_wait(a0, nm, TMP)
        point("dr")
        data_loads(a)
        filter_loads()
        a("s_barrier")
        a(st)
        a.burst(FZ.burst[ph][1])
        mk.stash(a0, TMP)
        a.on = True
    else:
        point("cs")
        if FZ.post:
            a(f"v_lshlrev_b32 v{TMP}, 9, v0")
            a0.label(f"{nm}_poll")
            a0(f"buffer_load_dword v{TMP + 1}, v{TMP}, s[{SRDF}:{SRDF + 3}], 0 offen offset:{POST} sc1")
            budget(a0, f"{nm}_seen")
            a0(f"v_cmp_eq_u32 vcc, 0, v{TMP + 1}")
            a0(f"s_cbranch_vccnz {nm}_poll")
            a0.label(f"{nm}_seen")
            a0("s_waitcnt vmcnt(0)")
        else:
            a.wait_tag("out")
        point("dr")
        if FZ.halt == 25:
            mk.stash(a0, TMP)
            return 0
        data_loads(a)
        a.burst(FZ.burst[ph][1])
        mk.stash(a0, TMP)

    a(f"v_mul_f32 v{fa}, {fx(1 / 2048)}, v{fb}")
    a(f"v_mul_f32 v{TMP}, v{fg}, v{fa}")
    for k in range(1, 8):
        a(f"v_fmamk_f32 v{TMP + k}, v{fa}, {fx(float(16 * (k >> 2) + (k & 3)))}, v{TMP}")
    for k in range(8):
        u, r = divmod(k, 4)
        a(f"v_cos_f32 v{T2 + u * 8 + r}, v{TMP + k}")
        a(f"v_sin_f32 v{T2 + u * 8 + 4 + r}, v{TMP + k}")

    a0(f"s_mov_b32 s{sK1}, 0xffff0000")
    a0(f"s_cmp_eq_u32 s{sT}, 0")
    a0(f"s_cselect_b32 s{sK2}, 0, s{sK1}")
    a0(f"s_mov_b32 s{sK0}, {fx(-1 / 2048)}")
    a0(f"s_cselect_b32 s{sK3}, 0, s{sK0}")
    a(f"s_mov_b32 s{sA}, {fx(1 / DM)}")
    a(f"s_mov_b32 s{sB}, {fx(1 / 2048)}")
    a(f"s_mov_b32 s{sC}, {UP[ph] * 0x800080:#x}")
    a(f"v_mov_b32 v{fa}, {fx(1e-5)}")
    point("k")
    if ph:
        def test(e):
            e(f"v_max3_f32 v{fi}, |v{raw}|, |v{raw + 2}|, |v{raw + 4}|")
            e(f"v_max3_f32 v{fb}, |v{raw + 6}|, |v{raw + 8}|, |v{raw + 10}|")
            e(f"v_max3_f32 v{fi}, v{fi}, |v{raw + 12}|, |v{raw + 14}|")
            e(f"v_max_f32 v{fi}, v{fi}, v{fb}")
            e(f"v_min3_f32 v{fg}, v{SL + 2}, v{SL + 6}, v{SL + 10}")
            e(f"v_min_f32 v{fg}, v{fg}, v{SL + 14}")
            e(f"v_fmamk_f32 v{fg}, v{fi}, {fx(-8 / T_X[0])}, v{fg}")
            e(f"v_cmp_gt_f32 vcc, {fx(7.5)}, v{fg}")

        def var_ops(e):
            for k in range(8):
                e(f"v_fma_f32 v{ss + k}, v{SL + 4 * (k >> 1) + (k & 1)}, s{sA}, v{fa}")

        test(a0)
        var_ops(a0)
        a0(f"s_cbranch_vccnz {nm}_again", tag="nopad")
        a0.label(f"{nm}_ok", keep=True)

        def again():
            a0.label(f"{nm}_again")
            budget(a0, f"{nm}_ok")
            data_loads(a0)
            a0("s_waitcnt vmcnt(0)")
            test(a0)
            var_ops(a0)
            a0(f"s_cbranch_vccnz {nm}_again")
            a0(f"s_branch {nm}_ok")
        a0.tail.append(again)
        a.on = True
    else:
        for k in range(8):
            a(f"v_fma_f32 v{ss + k}, v{ss + k}, s{sA}, v{fa}")
    for k in range(8):
        a(f"v_rsq_f32 v{ss + k}, v{ss + k}")

    def acc(c, b, var):
        return ACC + c * 16 + (b * 2 + var) * 4

    def fo(c, b):
        return FO + c * 8 + b * 4

    def unpack(dst_, base, c, mask):
        ops = []
        for k in range(8):
            ops.append(f"v_lshlrev_b32 v{dst_ + 2 * k}, 16, v{pos(base, k, c)}")
            ops.append(f"v_and_b32 v{dst_ + 2 * k + 1}, s{mask}, v{pos(base, k, c)}")
        return ops

    def unpack_w(c):
        ops = []
        for k in range(8):
            u, r = divmod(k, 4)
            ops.append(f"v_lshlrev_b32 v{WU[c] + u * 8 + r}, 16, v{pos(wraw, k, c)}")
            ops.append(f"v_and_b32 v{WU[c] + u * 8 + 4 + r}, s{sK1}, v{pos(wraw, k, c)}")
        return ops

    def scale(c):
        t = TMP + 16 * c
        for k in range(8):
            h = k & 1
            a(f"v_pk_mul_f32 {V(t + 2 * k, 2)}, {V(t + 2 * k, 2)}, {V(ss + k - h, 2)} op_sel:[0,{h}] op_sel_hi:[1,{h}]")
        for k in range(8):
            a(f"v_cvt_pk_bf16_f32 v{fo(c, 0) + k}, v{t + 2 * k}, v{t + 2 * k + 1}")

    sc = Sched(a)

    def stage_a(c):
        for t in range(2):
            for qb in range(2):
                for var in range(2):
                    sc.mfma(acc(c, qb, var), fo(c, t), m1(qb, t, var), None if t == 0 else acc(c, qb, var))
        sc.flush()

    for op in unpack(TMP, raw, 0, sK2):
        a(op)
    scale(0)
    point("s0")
    for op in unpack(TMP + 16, raw, 1, sK1):
        sc.add(op)
    stage_a(0)
    scale(1)
    for op in unpack_w(0):
        sc.add(op)
    stage_a(1)
    point("a")

    def mm(c, b, var, f, kk, data_is_a):
        cc = None if kk == 0 else acc(c, b, var)
        if data_is_a:
            sc.mfma(acc(c, b, var), f, m2(kk, var), cc)
        else:
            sc.mfma(acc(c, b, var), m2(kk, var), f, cc)

    def exchange(n, data_is_a, cm, fill_own, fill_rest):
        for c in range(2):
            for b in range(2):
                cm(c, b)
                if n == 2 and c == b == 0:
                    a("s_barrier")
                a(f"ds_write_b128 v{vl0}, {V(fo(c, b), 4)} offset:{(c * 2 + b) * 4096}")
        a("s_waitcnt lgkmcnt(0)")
        a("s_barrier")
        point(f"b{n}")
        for c in range(2):
            for kk in (1, 2, 3):
                for b in range(2):
                    f = FGR[(c * 3 + kk - 1) * 2 + b]
                    a(f"ds_read_b128 {R(f, 4)}, v{vl0 + kk} offset:{(c * 2 + b) * 4096}")
        for op in fill_own:
            sc.add(op)
        for c in range(2):
            for b in range(2):
                for var in range(2):
                    mm(c, b, var, fo(c, b), 0, data_is_a)
        for op in fill_rest:
            sc.add(op)
        for c in range(2):
            for kk in (1, 2, 3):
                for b in range(2):
                    for var in range(2):
                        mm(c, b, var, FGR[(c * 3 + kk - 1) * 2 + b], kk, data_is_a)
        sc.flush()
        point(f"x{n}")

    def cm1(c, b):
        cmul_pack(a, fo(c, b), acc(c, b, 0), acc(c, b, 1), T1 + b * 8, T1 + b * 8 + 4, TMP + 8 * (2 * c + b))

    def cm2(c, b):
        cmul_pack(a, fo(c, b), acc(c, b, 0), acc(c, b, 1), WU[c] + b * 8, WU[c] + b * 8 + 4, TMP + 8 * (2 * c + b),
                  conj_w=True)

    exchange(1, False, cm1, unpack_w(1), [])
    exchange(2, True, cm2, unpack(WU[0], raw, 0, sK1), unpack(WU[1], raw, 1, sK1))
    for c in range(2):
        for u in range(2):
            cmul_pack(a, fo(c, u), acc(c, u, 0), acc(c, u, 1), T2 + u * 8, T2 + u * 8 + 4, TMP + 8 * (2 * c + u))
    while any(not callable(g[0]) and "lds" in g[0] or "store" in g[-1] for g in a.ops):
        a.burst(1)
    a.on = False
    for t in range(2):
        for c in range(2):
            for u in range(2):
                for var in range(2):
                    sc.mfma(acc(c, t, var), m1(t, u, var), fo(c, u), None if u == 0 else acc(c, t, var))
        rdy = sc.n + 2
        for rh in range(2):
            for c in range(2):
                for rl in range(2):
                    k = 4 * t + 2 * rh + rl
                    w = WU[c] + 2 * k
                    sc.add(f"v_fma_f32 v{w}, v{acc(c, t, 0) + 2 * rh + rl}, s{sB}, v{w}", rdy)
                    sc.add(f"v_fma_f32 v{w + 1}, v{acc(c, t, 1) + 2 * rh + rl}, s{sK0 if c else sK3}, v{w + 1}", rdy)
            for c in range(2):
                for rl in range(2):
                    k = 4 * t + 2 * rh + rl
                    w = WU[c] + 2 * k
                    sc.add(f"v_cvt_pk_bf16_f32 v{pos(raw, k, c)}, v{w}, v{w + 1}", rdy)
            k = 2 * t + rh
            for j in range(4):
                sc.add(f"v_add_u32 v{raw + 4 * k + j}, s{sC}, v{raw + 4 * k + j}", rdy)
            sc.add(f"buffer_store_dwordx4 {V(raw + 4 * k, 4)}, v{vx}, s[{SRD0}:{SRD0 + 3}], s{sF} offen offset:{k * 1024} sc1", rdy)
    sc.flush()
    point("st")
    n = len(a.ops)
    print(f"{nm}: {n} requests after the stores", file=sys.stderr)
    a.burst(n)
    mk.stash(a0, TMP)
    return n


def idle_phase(a, ph):
    nm = f"n{ph + 1}"
    vt0, vh = 12, 13
    if not ph:
        srd_ws(a, SRD0, "XP0", XP_SIZE)
    if FZ.ft_pf >> (1 - ph) & 1:
        srd_table(a, SRD1, "ft2")
        a(f"s_sub_u32 s{sA}, s{sT}, {NCOL}")
        a(f"s_lshr_b32 s{sA}, s{sA}, 3")
        a(f"s_mul_i32 s{sA}, s{sA}, {3 << 15}")
        a(f"v_lshl_add_u32 v{vh}, v0, 7, s{sA}")
        for k in range(3):
            a(f"s_mov_b32 s{sOP}, {k << 15}")
            a.raw(f"    buffer_load_dword {R(aDUM)}, v{vh}, s[{SRD1}:{SRD1 + 3}], s{sOP} offen")
    pre_setup(a, ph, vt0)
    if not ph:
        st = f0.post(a, SRDF, 0, 2, 20)
        front_wait(a, nm, 16)
        mk(a, nm + "dr")
    a("s_barrier")
    if not ph:
        a(st)
    for g in pre_ops(ph, vt0, nm):
        for x in g:
            x(a) if callable(x) else a(x)
    mk(a, nm + "is")
    a(f"v_mul_u32_u24 v{vh}, 5, v{vL}")
    a(f"v_lshrrev_b32 v{vh}, 1, v{vh}")
    a(f"v_lshlrev_b32 v{vh}, 9, v{vh}")
    a(f"s_mov_b32 s{sOP}, {HINT[ph]}")
    a("s_waitcnt vmcnt(0)")
    mk(a, nm + "dn")
    mk.stash(a, 16)
    if FZ.halt == 25 and ph:
        return
    a(f"s_cmp_lg_u32 s{sW}, 0")
    a(f"s_cbranch_scc1 {nm}_ok")
    a.label(f"{nm}_spin")
    a(f"buffer_load_dword v{vt0}, v{vh}, s[{SRDF}:{SRDF + 3}], s{sOP} offen sc1")
    budget(a, f"{nm}_ok")
    a(f"v_cmp_eq_u32 vcc, 0, v{vt0}")
    a(f"s_cbranch_vccnz {nm}_spin")
    a.label(f"{nm}_ok")
    a("s_barrier")


def classify(text):
    o = text.split()[0]
    if o.startswith("v_pk_") or o.startswith("v_dot2"):
        return "p", 4
    if o in TRANS or o.startswith("v_swap") or o.startswith("v_permlane"):
        return "v", 8
    if o.startswith("v_"):
        return "v", 4
    if o.startswith("ds_"):
        return "d", 4
    if o.startswith("buffer_"):
        return "b", 4
    if o.startswith("s_cbranch"):
        return "j", 10
    return "s", 4


class Item:
    def __init__(self, kind, cost, fn, key=None, gate=None, until=None, alt=None):
        self.kind, self.cost, self.fn, self.key, self.gate, self.until, self.alt = kind, cost, fn, key, gate, until, alt


class Slots:
    def __init__(self, a):
        self.a = a
        self.t, self.tM, self.tv, self.tc = 0, -100, -100, -100
        self.done, self.eta = {}, {}
        self.C, self.L, self.M, self.G = [], [], [], []
        self.fly = []
        self.feed = []
        self.pk = True
        self.stall = 0

    def item(self, op, key=None, gate=None, tag=None):
        k, c = classify(op)

        def fn():
            if op.startswith("v_cmp"):
                self.tc = self.t
            self.a(op, tag=tag)
        return Item(k, c, fn, key, gate)

    def mem(self, key, store=False, part=1.0):
        last = self.fly[-1] if self.fly else 0
        self.fly.append(max(self.t + FZ.lat, last + part * (FZ.srow if store else FZ.row)))
        self.eta[key] = self.fly[-1]
        if FZ.verbose:
            print(f"  {self.t:6.0f} issue {key} eta {self.fly[-1]:.0f} fly {self.inflight()}", file=sys.stderr)

    def inflight(self):
        return sum(1 for x in self.fly[-FZ.cap - 4:] if x > self.t)

    def run(self, it):
        if it.kind in "db":
            self.t = max(self.t, self.tv + 12)
        elif it.kind == "p":
            self.t = max(self.t, self.tM + 28)
        elif it.kind == "j":
            self.t = max(self.t, self.tc + 26)
        if it.kind in "vp":
            self.tv = self.t
        it.fn()
        self.t += it.cost
        if it.until is not None and self.eta.get(it.until, 0) > self.t:
            self.stall += self.eta[it.until] - self.t
            if FZ.verbose:
                print(f"  {self.t:6.0f} STALL {it.until} {self.eta[it.until] - self.t:.0f}", file=sys.stderr)
            self.t = self.eta[it.until]
        if it.key is not None:
            self.done[it.key] = self.t

    def ready(self, it):
        if it.kind == "j" and self.t < self.tc + 26:
            return False
        return it.gate is None or it.gate()

    def expand(self):
        while self.G and self.G[0].kind == "p" and not self.pk and self.G[0].alt:
            self.G[:1] = self.G[0].alt

    def heads(self, q, room, small):
        out = []
        for it in q:
            if it.kind == "p" or not self.ready(it) or it.cost > room or small and it.cost > 4:
                break
            if it.kind in "db" and any(x.kind == "v" for x in out) or it.kind == "j" and out:
                break
            out.append(it)
            room -= it.cost
        return out

    def place(self, picks):
        seqs = []
        for q, n in picks:
            seqs.append(q[:n])
            del q[:n]
        rank = lambda s: 0 if any(x.kind in "db" for x in s) else 2 if any(x.kind == "v" for x in s) else 1
        seqs.sort(key=lambda s: (rank(s), any(x.kind == "v" or x.until is not None for x in s)))
        for s in seqs:
            for it in s:
                self.run(it)

    def fill(self, room, streams, small=False):
        picks = []
        for q in streams:
            h = self.heads(q, room, small)
            if h:
                picks.append((q, len(h)))
                room -= sum(x.cost for x in h)
        return picks, room

    def mf(self, d, x, y, c, wait=None, urgent=False):
        self.t = self.tM = max(self.t, self.tM + 16)
        mfma(self.a, d, x, y, c)
        self.t += 8
        for f in self.feed:
            f()
        self.expand()
        W = [wait] if wait else []
        n = next((k for k, it in enumerate(self.G[:5]) if it.kind == "p"), None)
        if n is not None and self.pk:
            pre = self.G[:n + 1]
            cost = sum(x.cost for x in pre[:-1])
            if cost <= 16 and all(self.ready(x) and x.kind in "vps" for x in pre):
                picks, room = self.fill(20 - cost, (W, self.C, self.L, self.M), small=True)
                self.place(picks)
                while self.G and (n > 0 or self.G[0].kind == "p" and self.ready(self.G[0])):
                    self.run(self.G.pop(0))
                    n -= 1
                if self.G and self.G[0].kind in "vs" and self.G[0].until is None and self.ready(self.G[0]):
                    self.run(self.G.pop(0))
                else:
                    self.t += 4
                return
        if not W and self.C and self.C[0].cost >= 8 and self.ready(self.C[0]):
            self.run(self.C.pop(0))
            return
        picks, room = self.fill(8, (W, self.C, self.L, self.M, self.G), small=True)
        must = W or urgent or any(q is self.C for q, _ in picks)
        if room and not must and self.G and self.G[0].cost == 8 and self.ready(self.G[0]):
            self.run(self.G.pop(0))
            return
        self.place(picks)

    def need(self, key):
        while key not in self.done:
            q = next(q for q in (self.C, self.L, self.M, self.G) if any(it.key == key for it in q))
            self.run(q.pop(0))

    def pure(self, key):
        while key not in self.done:
            it = self.G.pop(0)
            self.run(it)
            if it.cost == 8:
                for f in self.feed:
                    f()
                picks, _ = self.fill(8, (self.M, self.L, self.C), small=True)
                self.place(picks)

    def flush(self):
        for q in (self.L, self.M, self.C, self.G):
            while q:
                self.run(q.pop(0))


def mlp_phase(a, final, behind):
    name = f"m{final + 1}"
    vx, vl0, vx2, vck, ve, vfl = 4, 5, 8, 9, 12, 14
    vq = (13, 4, 8, 10)
    X, ACC1, Z, vpl, vmk, CC = 16, 176, 232, 248, 249, 250
    GR, T = Z, Z + 8
    ACC2, EACC = 96, 176
    DIAG = (4, 6, 30, 70)
    sKC, sRS = sK0, sK2
    vo2, vs, vout, vor, vrd, vpk = 200, 201, 202, 203, 204, 205
    vred = (5, 6, 7)
    RES, RU, TMP = 208, 218, 244
    QS = (16, 32, 48, 64, 80, 176)
    QD = len(QS)
    SRDX, SRDH = SRD0, SRD3
    s = Slots(a)
    done = s.done
    act = {}
    log, sst, tested = [], {}, set()

    def fine(*key):
        if FZ.verbose:
            print(f"{s.t:6.0f} {key}", file=sys.stderr)
        if FZ.marks is not None:
            mk(a, name + key[0] + str(key[1]))
        for f in act.pop(key, ()):
            f()

    def at(key, f):
        act.setdefault(tuple(key), []).append(f)

    def note(tag):
        mk(a, name + tag)
        print(f"{name}{tag:4s} t={s.t:6.0f} stall={s.stall:.0f}", file=sys.stderr)

    def qreg(u, q):
        return QS[u % QD] + 4 * q

    def put(q, op, key=None, gate=None):
        q.append(s.item(op, key, gate))

    def vm(q, text, sreg=None, sexp=None, key=None, tag=None, again=True, gate=None, part=1.0, first=" sc1", m0=None):
        if m0 is not None and sst.get("m0") != m0:
            put(q, m0, gate=gate)
            sst["m0"] = m0
        if sreg is not None and sst.get(sreg) != sexp:
            put(q, sexp.replace("@", f"s{sreg}"), gate=gate)
            sst[sreg] = sexp

        def emit():
            a(text.replace("@", f"s{sreg}").replace(" sc1", first), tag=tag)
            log.append((key, text if again else None, sexp))
            s.mem(key, "store" in text, part)
        q.append(Item("b", 4, emit, key, gate))

    def wait_item(key, regs):
        return Item("s", 4, lambda: a.wait_regs(*regs), until=key)

    def lower(regs, thr):
        ops, r = [], [f"|v{x}|" for x in regs]
        while len(r) > 1:
            n = min(3, len(r))
            ops.append(f"{'v_min3_f32' if n == 3 else 'v_min_f32_e64'} v{vck}, " + ", ".join(r[:n]))
            r[:n] = [f"v{vck}"]
        return ops + [f"v_cmp_gt_f32 vcc, {fx(thr)}, v{vck}"]

    def unset(regs):
        ops, r = [], [f"v{x}" for x in regs]
        if len(r) > 2:
            n = len(r) - 1
            ops.append(f"{'v_max3_u32' if n == 3 else 'v_max_u32'} v{vck}, " + ", ".join(r[:n]))
            r[:n] = [f"v{vck}"]
        return ops + [f"v_cmp_u_f32 vcc, {r[0]}, {r[1]}"]

    def verify(keys, regs, test, lab, key):
        for k in keys:
            plan(k)

        def branch():
            idx = [k for k, e in enumerate(log) if e[0] in keys]
            rep = log[idx[0]:]
            assert len(idx) == len(keys) and not tested & {e[0] for e in rep}, lab
            tested.update(keys)
            young = len(log) - 1 - idx[-1]
            a(f"s_cbranch_vccnz {lab}_again", tag="nopad")
            a.label(f"{lab}_ok", keep=True)

            def stub():
                a.label(f"{lab}_again")
                a("s_nop 7")
                budget(a, f"{lab}_out")
                a(f"s_waitcnt vmcnt({max(0, 62 - len(rep))})")
                last = None
                for _, text, sexp in rep:
                    if text is None:
                        a.raw(f"    buffer_load_dword {R(aDUM)}, off, s[{SRDP}:{SRDP + 3}], 0")
                        continue
                    if sexp is not None and sexp != last:
                        a(sexp.replace("@", f"s{sRP}"))
                        last = sexp
                    a.raw("    " + text.replace("@", f"s{sRP}"))
                a(f"s_waitcnt vmcnt({young})")
                for x in test:
                    a(x)
                a(f"s_cbranch_vccnz {lab}_again")
                a.label(f"{lab}_out")
                a(f"s_branch {lab}_ok")
            a.tail.append(stub)
        w = wait_item(keys[-1], [V(r, 4) for r in regs])
        f0 = w.fn
        w.fn = lambda: ([s.need(k) for k in keys], f0())
        w.gate = lambda: all(k in done for k in keys)
        s.C.append(w)
        for x in test:
            put(s.C, x)
        s.C.append(Item("j", 10, branch, key))

    def xr(t, st):
        return X + t * 8 + st * 4

    def acc(ft, st):
        return ACC1 + (ft * 2 + st) * 4

    queue, sched = [], set()

    def x_load(t, h):
        return ("x", t, h), lambda key: vm(
            s.M, f"buffer_load_dwordx4 {V(xr(t, h), 4)}, v{vx2 if h else vx}, s[{SRDX}:{SRDX + 3}], @ offen sc1",
            sOQ, f"s_mov_b32 @, {8 * (19 - t) * XP_STR}", key, first=FZ.xf[final])

    def e_load(j):
        return ("e", j), lambda key: vm(
            s.M, f"buffer_load_dwordx4 v{vl0}, s[{SRD4}:{SRD4 + 3}], m0 offen offset:{(j & 3) * 1024} lds",
            key=key, tag="e", again=False, m0=f"s_add_u32 m0, s{sEB}, {2 * TILE + (j >> 2) * 4096}")

    def k_load(u, p):
        return ("k", u, p), lambda key: vm(
            s.M, f"buffer_load_dwordx4 v{vp}, s[{SRDP}:{SRDP + 3}], @ offen offset:{p * 256} lds",
            sF, f"s_mov_b32 @, {kblock(u) * KB_STR}", key, tag=f"k{u}", again=False,
            m0=f"s_add_u32 m0, s{sPK}, {(u - NP) * TILE + p * 768}")

    def p_load(u, p):
        return ("p", u, p), lambda key: vm(
            s.M, f"buffer_load_dwordx4 {R(preg(u, p), 4)}, v{vp}, s[{SRDP}:{SRDP + 3}], @ offen offset:{p * 256}",
            sF, f"s_mov_b32 @, {kblock(u) * KB_STR}", key)

    def q_load(u, q):
        return ("q", u, q), lambda key: vm(
            s.M, f"buffer_load_dwordx4 {V(qreg(u, q), 4)}, v{vq[q]}, s[{SRDQ}:{SRDQ + 3}], @ offen sc1",
            sOQ, f"s_mov_b32 @, {kblock(u) * H_STR}", key, first=FZ.qf[final])

    def r_load(p):
        srd_ = SRD2 if final else SRDX
        return ("r", p), lambda key: vm(
            s.M, f"buffer_load_dwordx2 {V(RES + 2 * p, 2)}, v{vo2}, s[{srd_}:{srd_ + 3}], @ offen sc1",
            sOP, f"s_mov_b32 @, {p * 4 * XP_STR}", key, part=0.6)

    def push(item, *gates, after=None, chain=None):
        queue.append((item[0], item[1], gates, after, chain))

    def issue(force=False):
        seen = set()
        for k, (key, f, gates, after, chain) in enumerate(queue):
            ok = all(g in done for g in gates) and chain not in seen
            if ok and after and not force:
                ok = done[after[0]] + after[1] <= s.t
            if ok:
                del queue[k]
                f(key)
                sched.add(key)
                return True
            if chain:
                seen.add(chain)
        return False

    def plan(key):
        while key not in sched:
            assert issue(True), key

    def feed_m():
        if not any(it.kind == "b" for it in s.M) and s.inflight() < FZ.cap:
            issue()
    s.feed.append(feed_m)

    KT = FZ.ktail
    units = [[(u, q) for q in range(4)] for u in range(NS - KT)]
    if FZ.split0:
        units[:1] = [units[0][:2], units[0][2:]]
    units += [[(u, q) for u in range(NS - KT, NS)] for q in (1, 2, 3, 0)]
    xorder = list(range(FZ.dbl[0] + 1)) + [19] + list(range(FZ.dbl[0] + 1, 19))
    for t in xorder:
        push(x_load(t, 0))
        push(x_load(t, 1))
    if final:
        for j in range(15):
            push(e_load(j), "ebar")
    for u in range(FZ.pre_p[final]):
        for p in range(5):
            done[("p", u, p)] = 0
            sched.add(("p", u, p))
    pushed = set(range(FZ.pre_p[final]))
    parked = set(range(NP, NP + FZ.park[final]))

    def push_p(u):
        if u < NS and u not in pushed:
            pushed.add(u)
            for p in range(5):
                if u in parked:
                    push(k_load(u, p), "xok" if u == NP else "ebar")
                else:
                    push(p_load(u, p), *(["xok"] if u < NP else [("xfree", 19)] if u == NP else [("qfree", u - NP - 1, 3)]))

    for u, q in [x for un in units for x in un]:
        for k in range(FZ.p_lead + 1):
            push_p(u + k)
        if (u, q) == (NS - KT, FZ.r_q):
            for p in range(5):
                push(r_load(p), "rgo")
        g = ["qset", ("gelu", u >> 1)] + ([] if final else ["ready"])
        if u >= QD:
            g.append(("qfree", u - QD, q))
        elif u < 5:
            g.append(("xfree", 2 * u + (q >> 1)))
        else:
            g.append("edone" if final else ("s5", 1))
        push(q_load(u, q), *g, after=(("gelu", u >> 1), FZ.qdel[final]), chain="q")

    a(f"s_lshl_b32 s{sC}, s{sRB}, 10")
    a(f"s_lshl_b32 s{sA}, s{sW}, 8")
    a(f"s_add_u32 s{sC}, s{sC}, s{sA}")
    a(f"v_lshlrev_b32 v{vx}, 15, v{vG}")
    a(f"v_lshl_add_u32 v{vx}, v{vI}, 4, v{vx}")
    a(f"v_add_u32 v{vx}, s{sC}, v{vx}")
    a(f"v_add_u32 v{vx2}, {XP_STR}, v{vx}")
    a(f"v_lshlrev_b32 v{vl0}, 4, v{vL}")
    a(f"v_add_u32 v{vl0 + 1}, 0x10000, v{vl0}")
    a(f"v_add_u32 v{vl0 + 2}, 0x20000, v{vl0}")
    a(f"s_mov_b64 s[{SRDH}:{SRDH + 1}], s[{SRDQ}:{SRDQ + 1}]")
    a(f"s_mov_b32 s{SRDH + 2}, {H_SIZE}")
    a(f"s_mov_b32 s{SRDH + 3}, 0x20000")
    a(f"v_cmp_eq_u32 vcc, 0, v{vG}")
    a(f"v_mov_b32 v{vmk}, 0xffff0000")
    a(f"v_cndmask_b32 v{vmk}, 0, v{vmk}, vcc")
    for r in range(4):
        m = 0x1000010000100001 << r
        a(f"s_mov_b32 s{DIAG[r]}, {m & 0xffffffff:#x}")
        a(f"s_mov_b32 s{DIAG[r] + 1}, {m >> 32:#x}")
    a(f"s_bfe_u32 s{sA}, s{sMM}, 0x10002")
    a(f"s_lshl_b32 s{sA}, s{sA}, 6")
    a(f"s_add_u32 s{sCQ}, s{sFL}, s{sA}")
    a(f"s_lshl4_add_u32 s{sD}, s{sW}, s{sCQ}")
    a(f"s_mul_i32 s{sA}, s{sW}, {54 * H_STR}")
    a(f"s_add_u32 s{SRDQ + 2}, s{sA}, {54 * H_STR}")
    a(f"s_lshl4_add_u32 s{sA}, s{sD}, s{sA}")
    a(f"v_lshrrev_b32 v{vq[0]}, 1, v{vG}")
    a(f"v_and_b32 v{vck}, 1, v{vG}")
    a(f"v_mad_u32_u24 v{vq[0]}, v{vq[0]}, 14, v{vck}")
    a(f"v_lshlrev_b32 v{vq[0]}, 15, v{vq[0]}")
    a(f"v_lshl_add_u32 v{vq[0]}, v{vI}, 4, v{vq[0]}")
    a(f"v_add_u32 v{vq[0]}, s{sA}, v{vq[0]}")
    a(f"v_xor_b32 v{vq[3]}, 0x300, v{vq[0]}")
    a(f"s_mov_b32 s{sKC}, {fx(H_OFF)}")
    a(f"s_mov_b32 s{sKC + 1}, {fx(H_OFF)}")
    a(f"s_mov_b32 s{sRS}, {fx(2.0 ** (-S_X[1] if final else -UP[0]))}")
    a(f"s_mov_b32 s{sRS + 1}, 0xffff0000")
    if final:
        srd_table(a, SRD4, "ft2")
        a(f"s_mul_i32 s{sB}, s{sMM}, 5")
        a(f"s_lshr_b32 s{sB}, s{sB}, 1")
        a(f"s_mul_i32 s{sA}, s{sB}, {TILE}")
        a(f"s_add_u32 s{SRD4}, s{SRD4}, s{sA}")
        a(f"s_addc_u32 s{SRD4 + 1}, s{SRD4 + 1}, 0")
        a(f"s_sub_u32 s{SRD4}, s{SRD4}, {2 * TILE}")
        a(f"s_subb_u32 s{SRD4 + 1}, s{SRD4 + 1}, 0")
        a(f"s_mov_b32 s{SRD4 + 2}, {5 * TILE}")
        a(f"s_lshl_b32 s{sA}, s{sB}, 16")
        a(f"s_add_u32 s{sA}, s{sA}, s{sC}")
        a(f"v_lshlrev_b32 v{ve}, 14, v{vG}")
        a(f"v_lshl_add_u32 v{ve}, v{vI}, 4, v{ve}")
        a(f"v_add_u32 v{ve}, s{sA}, v{ve}")
        srd_ws(a, SRD2, "X3", XP_SIZE)
        srd(a, SRD1, P_OUT, 0, SEQ * DM * 2)
        a(f"s_lshl_b32 s{sB}, s{sRB}, 13")
        a(f"s_lshl2_add_u32 s{sA}, s{sMM}, s{sW}")
        a(f"s_lshl_b32 s{sA}, s{sA}, 7")
        a(f"s_add_u32 s{sA}, s{sA}, s{sB}")
        a(f"v_lshl_add_u32 v{vpl}, v{vL}, 20, s{sA}")
        a(f"s_bfe_u32 s{sA}, s{sD}, 0x20005")
        a(f"s_lshl3_add_u32 s{sA}, s{sDC}, s{sA}")
        a(f"s_lshl_b32 s{sA}, s{sA}, 7")
        a(f"s_add_u32 s{sA}, s{sA}, s{sB}")
        a(f"v_and_b32 v{vfl}, 1, v{vI}")
        a(f"v_lshl_add_u32 v{vfl}, v{vfl}, 9, s{sA}")
    else:
        srd_ws(a, SRD1, "SS2", SS2_SIZE)
        a(f"s_lshl4_add_u32 s{sA}, s{sRB}, s{sMM}")
        a(f"s_lshl_b32 s{sA}, s{sA}, 9")
        a(f"v_lshl_add_u32 v{vpl}, v0, 20, s{sA}")
        a(f"s_lshl2_add_u32 s{sA}, s{sRB}, s{sW}")
        a(f"s_lshl_b32 s{sA}, s{sA}, 11")
        a(f"v_and_b32 v{vfl}, 3, v{vI}")
        a(f"v_lshl_add_u32 v{vfl}, v{vfl}, 9, s{sA}")
    a.raw(f"    s_waitcnt vmcnt({behind})")
    mk(a, name + "go")
    for _ in range(FZ.look):
        issue()
    s.flush()
    a("s_barrier")
    if not final:
        vm(s.M, f"buffer_store_dword v{vl0 + 1}, v{vpl}, s[{SRDF}:{SRDF + 3}], 0 offen offset:{READY} sc1", again=False, part=0.2)
    mk.stash(a, Z)

    TA, TB, TE = (0, 1, 2, 3), (4, 5, 6), (0, 1, 2)
    groups = [("a", TA, t) for t in range(19)] + [("b", TB, t) for t in range(20)]
    groups.insert(19 + FZ.b_pre, ("a", TA, 19))
    if final:
        groups += [("e", TE, t) for t in range(20)]
    seq = [(kind, ft, t) for kind, tl, t in groups for ft in tl]
    rd_ = {"n": 0, "free": 0}

    def wreg(n):
        return WR + (n % NW) * 4

    def feed_l():
        while rd_["n"] < min(rd_["free"] + NW, len(seq)) and len(s.L) < 2:
            kind, ft, t = seq[rd_["n"]]
            if kind == "e" and "e0" not in done:
                return
            off = (ft + (2 if kind == "e" else 1)) * TILE + (19 - t) * 1024
            put(s.L, f"ds_read_b128 {R(wreg(rd_['n']), 4)}, v{vl0 + (off >> 16)} offset:{off & 0xffff}", ("rd", rd_["n"]))
            rd_["n"] += 1
    s.feed.append(feed_l)

    def rd_need(n):
        while ("rd", n) not in done:
            feed_l()
            if not s.L:
                s.need("e0")
                continue
            s.run(s.L.pop(0))

    def prep_x(ts):
        keys = [("x", t, h) for t in xorder if t in ts for h in range(2)]
        regs = [xr(k[1], k[2]) for k in keys]
        verify(keys, regs, lower(regs, T_X[final]), f"{name}_x{ts[0]}", "xok" if xorder[-1] in ts else None)
        for t in ts:
            ops = [f"v_swap_b32 v{xr(t, 0) + 2}, v{xr(t, 1)}", f"v_swap_b32 v{xr(t, 0) + 3}, v{xr(t, 1) + 1}"]
            if t == 19:
                for st in range(2):
                    if final:
                        ops.append(f"v_accvgpr_write_b32 {R(vdc + st)}, v{xr(t, st)}")
                    ops.append(f"v_bfi_b32 v{xr(t, st)}, v{vmk}, 0, v{xr(t, st)}")
            for op in ops[:-1]:
                put(s.C, op)
            put(s.C, ops[-1], ("sw", t))

    def gram(t, wait=None):
        s.need(("sw", t))
        for st in range(2):
            s.mf(GR + 4 * st, xr(t, st), xr(t, st), None if t == 0 else GR + 4 * st, wait if st else None)

    def stats():
        t0 = s.tM + 40
        ops = []
        for r in range(4):
            for st in range(2):
                prev = "0" if r == 0 else f"v{T + 2 * st}"
                ops.append(f"v_cndmask_b32_e64 v{T + 2 * st}, {prev}, v{GR + 4 * st + r}, s[{DIAG[r]}:{DIAG[r] + 1}]")
        for op in ("v_permlane32_swap_b32", "v_permlane16_swap_b32"):
            ops += [f"v_mov_b32 v{T + 2 * st + 1}, v{T + 2 * st}" for st in range(2)]
            ops += [f"{op} v{T + 2 * st}, v{T + 2 * st + 1}" for st in range(2)]
            ops += [f"v_add_f32 v{T + 2 * st}, v{T + 2 * st}, v{T + 2 * st + 1}" for st in range(2)]
        ops += [f"v_fmamk_f32 v{T + 2 * st}, v{T + 2 * st}, {fx((1 + EPS) / DM)}, v{T + 4}" for st in range(2)]
        ops += [f"v_rsq_f32 v{T + 2 * st + 1}, v{T + 2 * st}" for st in range(2)]
        ops += [f"v_mul_f32 v{CC + 4 + st}, v{T + 2 * st}, v{T + 2 * st + 1}" for st in range(2)]
        ops += [f"v_cvt_pk_bf16_f32 v{T + 2 * st}, v{CC + 4 + st}, v{CC + 4 + st}" for st in range(2)]
        ops += [f"v_bfi_b32 v{xr(19, st)}, v{vmk}, v{T + 2 * st}, v{xr(19, st)}" for st in range(2)]
        late = [f"v_mul_f32 v{CC + st}, {fx(GELU_K0)}, v{T + 2 * st + 1}" for st in range(2)]
        late += [f"v_mul_f32 v{T + 2 * st}, v{T + 2 * st + 1}, v{T + 2 * st + 1}" for st in range(2)]
        late += [f"v_mul_f32 v{T + 2 * st}, {fx(0.044715)}, v{T + 2 * st}" for st in range(2)]
        late += [f"v_mul_f32 v{CC + 2 + st}, v{CC + st}, v{T + 2 * st}" for st in range(2)]
        if not final:
            late += [f"v_mul_f32 v{CC + 4 + st}, {fx(2.0 ** -S_LO)}, v{CC + 4 + st}" for st in range(2)]
        put(s.G, f"v_mov_b32 v{T + 4}, {fx(EPS * EPS * 4.0 ** S_X[final])}")
        put(s.G, f"v_xor_b32 v{vq[1]}, 0x100, v{vq[0]}")
        put(s.G, f"v_xor_b32 v{vq[2]}, 0x200, v{vq[0]}", "qset")
        put(s.G, ops[0], gate=lambda: s.t >= t0)
        for op in ops[1:-1]:
            put(s.G, op)
        put(s.G, ops[-1], "stats")
        for op in late:
            put(s.G, op)

    def poll(key, off):
        lab = f"{name}_{key}"
        text = f"buffer_load_dword v{vmk}, v{vfl}, s[{SRDF}:{SRDF + 3}], @ offen sc1"
        test = f"v_cmp_eq_u32 vcc, 0, v{vmk}"

        def branch():
            a(f"s_cbranch_vccnz {lab}_spin", tag="nopad")
            a.label(f"{lab}_ok", keep=True)

            def spin():
                a.label(f"{lab}_spin")
                a(f"s_mov_b32 s{sRP}, {off}")
                a(text.replace("@", f"s{sRP}"))
                a("s_waitcnt vmcnt(0)")
                budget(a, f"{lab}_ok")
                a(test)
                a(f"s_cbranch_vccnz {lab}_spin")
                a(f"s_branch {lab}_ok")
            a.tail.append(spin)

        def check():
            s.C.append(wait_item(("i", key), [f"v{vmk}"]))
            put(s.C, test)
            s.C.append(Item("j", 10, branch, key))
        return (lambda: vm(s.C, text, sE, f"s_mov_b32 @, {off}", ("i", key), again=False, part=0.2)), check

    if final:
        ix, cx = poll("rgo", PX)

        def signal():
            s.C.append(Item("s", 4, lambda: a.wait_tag("x3"), until="x3"))
            vm(s.C, f"buffer_store_dword v{vl0 + 1}, v{vpl}, s[{SRDF}:{SRDF + 3}], @ offen sc1", sE, f"s_mov_b32 @, {PX}",
               again=False, part=0.2)

        def e_ok():
            plan(("e", 14))
            s.C.append(Item("s", 4, lambda: (s.need(("e", 14)), a.wait_tag("e")), until=("e", 14),
                            gate=lambda: ("e", 14) in done))
            put(s.C, "s_barrier", "e0")
        at(("b", FZ.e_ok), e_ok)
        at(FZ.x3[0], signal)
        at(FZ.x3[1], ix)
        at(FZ.x3[2], lambda: (s.need("oset"), cx()))
    else:
        i_, c_ = poll("ready", READY)
        at(FZ.rd_at[0], lambda: (s.need("stats"), i_()))
        at(FZ.rd_at[1], c_)
        at(FZ.res_at, lambda: (s.need("oset"), done.setdefault("rgo", s.t)))

    at(("b", FZ.b_pre + FZ.ebar), lambda: put(s.C, "s_barrier", "ebar"))

    post = []

    def gelu(ft):
        Zs = Z + 8 * (ft & 1)
        prs = [(acc(ft, st) + h, Zs + st * 4 + h, st) for st in range(2) for h in (0, 2)]
        t0 = s.tM + 40

        def stage(pk, plain, key=None, gate=None):
            for n, (x, z, st) in enumerate(prs):
                k = key if n == 3 else None
                sel = f"op_sel:[0,{st},{st}] op_sel_hi:[1,{st},{st}]"
                it = s.item(pk.format(x=V(x, 2), z=V(z, 2), sel=sel), k, gate)
                it.alt = [s.item(plain.format(x=V(x + e), z=V(z + e), c0=V(CC + st), c2=V(CC + 2 + st), c4=V(CC + 4 + st)),
                                 k if e else None, gate) for e in range(2)]
                s.G.append(it)

        stage("v_pk_mul_f32 {z}, {x}, {x}", "v_mul_f32 {z}, {x}, {x}", gate=lambda: s.t >= t0)
        stage("v_pk_fma_f32 {z}, {z}, %s, %s {sel}" % (V(CC + 2, 2), V(CC, 2)), "v_fma_f32 {z}, {z}, {c2}, {c0}")
        stage("v_pk_mul_f32 {z}, {z}, {x}", "v_mul_f32 {z}, {z}, {x}")
        close()
        for k in range(8):
            put(s.G, f"v_exp_f32 v{Zs + k}, v{Zs + k}")
        stage("v_pk_fma_f32 {z}, {z}, %s, %s {sel}" % (V(CC + 4, 2), V(CC + 4, 2)), "v_fma_f32 {z}, {z}, {c4}, {c4}")
        for k in range(8):
            put(s.G, f"v_rcp_f32 v{Zs + k}, v{Zs + k}")
        if final:
            stage("v_pk_fma_f32 {z}, {z}, {x}, s[%d:%d]" % (sKC, sKC + 1), "v_fma_f32 {z}, {z}, {x}, s%d" % sKC, ("s5", ft))
        else:
            stage("v_pk_mul_f32 {z}, {z}, {x}", "v_mul_f32 {z}, {z}, {x}", ("s5", ft))

        def out():
            for k in range(4):
                put(s.G, f"v_cvt_pk_bf16_f32 v{Zs + k}, v{Zs + 2 * k}, v{Zs + 2 * k + 1}")
            if ft == 6:
                put(s.G, f"v_add_u32 v{vo}, s{sMSK}, v{vo}")
            put(s.G, f"v_permlane16_swap_b32 v{Zs}, v{Zs + 2}")
            put(s.G, f"v_permlane16_swap_b32 v{Zs + 1}, v{Zs + 3}")
            vm(s.G, f"buffer_store_dwordx4 {V(Zs, 4)}, v{vo}, s[{SRDH}:{SRDH + 3}], @ offen sc1", sHO,
               f"s_mov_b32 @, {ft * 2 * H_STR}", ("gelu", ft), again=False, first=FZ.hf)
        post.append(out)

    def close():
        while post:
            post.pop()()

    def out_setup():
        g = lambda op, key=None: put(s.G, op, key)
        g(f"v_lshl_add_u32 v{vpk}, v{vL}, 4, s{sPK}", "vpk")
        g(f"s_mul_i32 s{sGA}, s{sDC}, {20 * XP_STR}")
        g(f"s_lshl3_add_u32 s{sGA}, s{sD}, s{sGA}")
        g(f"v_lshlrev_b32 v{vo2}, 14, v{vG}")
        g(f"v_lshl_add_u32 v{vo2}, v{vI}, 3, v{vo2}")
        g(f"v_add_u32 v{vo2}, s{sGA}, v{vo2}", "oset")
        g(f"v_lshrrev_b32 v{vor}, 1, v{vG}")
        g(f"s_mov_b32 s{sGA}, {0x3f800000 + (0x3f80 if final else (127 + S_LO) << 7):#x}")
        g(f"v_mul_lo_u32 v{vor}, v{vor}, s{sGA}", "vor")
        g(f"v_lshl_add_u32 v{vrd}, v{vL}, 4, s{sEB}")
        for ql in (1, 2, 3):
            g(f"s_xor_b32 s{sGA}, s{sW}, {ql}")
            g(f"s_mul_i32 s{sGA}, s{sGA}, 15360")
            if ql > 1:
                g(f"s_add_u32 s{sGA}, s{sGA}, {(ql - 1) * 5120}")
            g(f"v_lshl_add_u32 v{vred[ql - 1]}, v{vL}, 4, s{sGA}")
        if final:
            g(f"s_bfe_u32 s{sGA}, s{sD}, 0x10004")
            g(f"s_lshl_b32 s{sGA}, s{sGA}, 3")
            g(f"s_lshr_b32 s{sGB}, s{sD}, 9")
            g(f"s_lshl4_add_u32 s{sGA}, s{sGB}, s{sGA}")
            g(f"s_bfe_u32 s{sGB}, s{sD}, 0x20005")
            g(f"s_lshl_b32 s{sGB}, s{sGB}, 8")
            g(f"s_add_u32 s{sGA}, s{sGA}, s{sGB}")
            g(f"s_and_b32 s{sGB}, s{sD}, 128")
            g(f"s_add_u32 s{sGA}, s{sGA}, s{sGB}")
            g(f"s_and_b32 s{sGB}, s{sD}, 256")
            g(f"s_lshl2_add_u32 s{sGA}, s{sGB}, s{sGA}")
            g(f"v_and_b32 v{vout}, 1, v{vI}")
            g(f"v_lshlrev_b32 v{vout}, 6, v{vout}")
            g(f"v_lshrrev_b32 v{vs}, 1, v{vI}")
            g(f"v_add3_u32 v{vout}, v{vout}, v{vs}, s{sGA}")
            g(f"v_mul_u32_u24 v{vout}, 1280, v{vout}")
            g(f"s_mul_i32 s{sGA}, s{sDC}, 160")
            g(f"v_lshl_add_u32 v{vout}, v{vG}, 3, v{vout}")
            g(f"v_add_u32 v{vout}, s{sGA}, v{vout}", "setup")
        else:
            g(f"v_lshrrev_b32 v{vs}, 1, v{vI}")
            g(f"v_lshlrev_b32 v{vs}, 4, v{vs}")
            g(f"v_and_b32 v{vout}, 1, v{vI}")
            g(f"v_lshl_add_u32 v{vs}, v{vout}, 2, v{vs}")
            g(f"v_and_b32 v{vout}, 1, v{vG}")
            g(f"v_lshl_add_u32 v{vs}, v{vout}, 3, v{vs}")
            g(f"v_lshrrev_b32 v{vout}, {0 if FZ.x_nocnt else 1}, v{vG}")
            g(f"v_lshl_add_u32 v{vs}, v{vout}, 20, v{vs}")
            g(f"s_lshl_b32 s{sGA}, s{sD}, 3")
            g(f"v_add_u32 v{vs}, s{sGA}, v{vs}")
            g(f"v_add_u32 v{vout}, s{sDC}, v{vG}")
            g(f"v_min_u32 v{vout}, 1, v{vout}")
            g(f"v_mul_u32_u24 v{vout}, 0xffff, v{vout}")
            g(f"v_lshlrev_b32 v{vout}, 16, v{vout}")
            g(f"v_or_b32 v{vout}, 0xffff, v{vout}")
            g(f"v_mov_b32 v{TMP + 2}, 0")
            g(f"v_mov_b32 v{TMP + 3}, 0")
            g(f"s_mov_b64 s[{DIAG[0]}:{DIAG[0] + 1}], 0xffff")
            g(f"s_mov_b32 s{sGB}, {-S_LO * 0x800080:#x}", "setup")

    gl, rest = {}, xorder[1:]
    for t in range(19):
        n = 2 if t in FZ.dbl else 1
        gl[t], rest = sorted(rest[:n]), rest[n:]
    rd_need(NW - 1)
    prep_x([0])
    n = 0

    def grp_wait(k):
        nx = sum(len(g[1]) for g in groups[:k + 1]) - 1
        if k >= len(groups):
            return None
        return Item("s", 4, lambda: (rd_need(nx), a.wait_regs(R(wreg(nx), 4))))

    gram(0, grp_wait(0))
    for k, (kind, tl, t) in enumerate(groups):
        fine(kind, t)
        grams = gl.get(t, []) if kind == "a" else []
        if kind == "a" and t == 19:
            s.need("stats")
        if kind == "e" and t == 0:
            s.need(("s5", 2))
            for st in range(2):
                put(s.C, f"v_accvgpr_read_b32 v{xr(19, st)}, {R(vdc + st)}", ("dc", st))
        if kind == "e" and t == 19:
            s.need(("dc", 1))
        hi = sum(len(g[1]) for g in groups[:k + 2])
        for j, ft in enumerate(tl):
            for st in range(2):
                if grams and 2 * j + st == (FZ.xc_at if len(grams) == 1 else 0):
                    prep_x(grams)
                d = (EACC if kind == "e" else ACC1) + (ft * 2 + st) * 4
                last = j == len(tl) - 1 and st and not grams
                if st:
                    rd_["free"] = n + 1
                s.mf(d, wreg(n), xr(t, st), None if t == 0 else d, grp_wait(k + 1) if last else None,
                     urgent=rd_["n"] - len(s.L) < hi)
            n += 1
        for g in grams:
            gram(g, grp_wait(k + 1) if g == grams[-1] else None)
        if grams and xorder[-1] in grams:
            stats()
        if kind == ("e" if final else "b"):
            done[("xfree", t)] = s.t
        if kind == "a" and t == 19:
            note("A")
            for ft in TA:
                gelu(ft)
            close()
            if FZ.pure[final]:
                s.pure(("gelu", FZ.pure[final] - 1))
        if kind == "b" and t == 19:
            for ft in TB:
                gelu(ft)
            close()
            if FZ.in_b[final]:
                s.pure(("gelu", FZ.in_b[final] - 1))
    if final:
        note("E")
        t0 = s.tM + 40
        for et in TE:
            d = EACC + et * 8
            for k in range(4):
                put(s.C, f"v_cvt_pk_bf16_f32 v{d + k}, v{d + 2 * k}, v{d + 2 * k + 1}", gate=lambda: s.t >= t0)
            vm(s.C, f"buffer_store_dwordx4 {V(d, 4)}, v{ve}, s[{SRD2}:{SRD2 + 3}], @ offen sc1",
               sE, f"s_mov_b32 @, {et * 4 * XP_STR}", {1: "edone", 2: "x3"}.get(et), tag="x3", again=False)
        epi, s.C = s.C, []
        s.pure(("gelu", FZ.in_e - 1))
    out_setup()
    s.pk = bool(FZ.g2pk[final])
    mk.stash(a, vck)

    def accr(p, q):
        return ACC2 + (q * 5 + p) * 4

    def q_check(n):
        keys = [("q",) + x for x in units[n]]
        regs = [qreg(*x) for x in units[n]]
        fix = [f"v_or_b32 v{qreg(u, q)}, v{qreg(u, q)}, v{vor}" for u, q in units[n] if u == NS - 1]
        if fix:
            s.need("vor")
        verify(keys, regs, fix + (lower(regs, T_H) if final else unset(regs)), f"{name}_q{n}", ("qok", n))

    def writes(q):
        t0 = s.tM + 40
        s.need("setup")
        for p in range(5):
            put(s.L, f"ds_write_b128 v{vred[q - 1]}, {R(accr(p, q), 4)} offset:{p * 1024}", ("wr", q, p),
                gate=lambda p=p: s.t >= max(t0 - 16 * (4 - p), t0 - 40 + FZ.wgap * p))

    def reads(q, k):
        for p in range(5):
            put(q, f"ds_read_b128 {R(accr(p, k), 4)}, v{vrd} offset:{(k - 1) * 5120 + p * 1024}")

    def res_ops():
        plan(("r", 4))
        w = wait_item(("r", 4), [V(RES, 10)])
        w.gate = lambda: s.eta.get(("r", 4), 1e9) <= s.t
        f0 = w.fn
        w.fn = lambda: (s.need(("r", 4)), f0())
        s.G.append(w)
        for p in range(5):
            for h in range(2):
                u_, r, d = RU + 2 * h, RES + 2 * p + h, accr(p, 0) + 2 * h
                put(s.G, f"v_lshlrev_b32 v{u_}, 16, v{r}")
                put(s.G, f"v_and_b32 v{u_ + 1}, s{sRS + 1}, v{r}")
                put(s.G, f"v_fmac_f32 v{d}, s{sRS}, v{u_}")
                put(s.G, f"v_fmac_f32 v{d + 1}, s{sRS}, v{u_ + 1}", ("res", p) if h else None)

    def unpark(u):
        ok = lambda: "vpk" in done and ("k", u, 4) in done and s.eta[("k", u, 4)] <= s.t
        plan(("k", u, 4))
        s.L.append(Item("s", 4, lambda: (s.need("vpk"), s.need(("k", u, 4)), a.wait_tag(f"k{u}")), until=("k", u, 4), gate=ok))
        for p in range(5):
            put(s.L, f"ds_read_b128 {R(preg(u, p), 4)}, v{vpk} offset:{(u - NP) * TILE + p * 1024}", ("p", u, p))
            sched.add(("p", u, p))

    def g_bar():
        for u in parked:
            s.need(("p", u, 4))
        put(s.C, "s_waitcnt lgkmcnt(0)")
        put(s.C, "s_barrier")

    for u in parked:
        at(("g", u - NP), lambda u=u: unpark(u))
    at(("g", FZ.gbar), g_bar)
    def post_at(where):
        if not final and FZ.post == where:
            vm(s.C, f"buffer_store_dword v{vl0 + 1}, v{vpl}, s[{SRDF}:{SRDF + 3}], 0 offen offset:{POST} sc1", key="post",
               again=False, part=0.2)
            s.need("post")

    q_check(0)
    if final:
        if FZ.split0:
            q_check(1)
        s.C += epi
    seen = set()
    for n, un in enumerate(units):
        tailq = un[0][1] if len({u for u, _ in un}) > 1 or KT == 1 and un[0][0] == NS - 1 else None
        s.need(("qok", n))
        left = 5 * len(un)
        if tailq == 1:
            res_ops()
        if tailq == 0:
            s.need(("wr", 2, 4))
            put(s.C, "s_waitcnt lgkmcnt(0)")
            put(s.C, "s_barrier", "bar1")
            s.need("bar1")
            post_at("bar1")
            writes(3)
            reads(s.L, 1)
            reads(s.L, 2)
        elif tailq is not None and tailq > 1:
            writes(tailq - 1)
        for u, q in un:
            if u not in seen:
                fine("g", u)
                if u == 1:
                    note("g1")
                for p in range(5):
                    plan(("p", u, p))
                    s.need(("p", u, p))
                seen.add(u)
            for p in range(5):
                if left == min(FZ.qc_rem, 5 * len(un)) and n + 1 < len(units) and not (final and FZ.split0 and n == 0):
                    q_check(n + 1)
                if tailq == 0:
                    s.need(("res", p))
                if s.eta.get(("p", u, p), 0) > s.t:
                    s.stall += s.eta[("p", u, p)] - s.t
                    if FZ.verbose:
                        print(f"  {s.t:6.0f} STALL p {u} {p} {s.eta[('p', u, p)] - s.t:.0f}", file=sys.stderr)
                    s.t = s.eta[("p", u, p)]
                s.mf(accr(p, q), preg(u, p), qreg(u, q), None if u == 0 else accr(p, q))
                left -= 1
            done[("qfree", u, q)] = s.t
    s.flush()
    assert not queue and not act, (queue, act)
    a("s_waitcnt lgkmcnt(0)")
    a("s_barrier")
    reads(s.L, 3)
    s.flush()
    post_at("bar2")
    for p in range(5):
        for h in (0, 2):
            a(f"v_pk_add_f32 {V(accr(p, 1) + h, 2)}, {V(accr(p, 1) + h, 2)}, {V(accr(p, 2) + h, 2)}")
    for p in range(5):
        for h in (0, 2):
            a(f"v_pk_add_f32 {V(accr(p, 0) + h, 2)}, {V(accr(p, 0) + h, 2)}, {V(accr(p, 1) + h, 2)}")
    for p in range(5):
        r = accr(p, 0)
        for h in (0, 2):
            a(f"v_pk_add_f32 {V(r + h, 2)}, {V(r + h, 2)}, {V(accr(p, 3) + h, 2)}")
        a(f"v_cvt_pk_bf16_f32 v{r}, v{r}, v{r + 1}")
        a(f"v_cvt_pk_bf16_f32 v{r + 1}, v{r + 2}, v{r + 3}")
        if final:
            a(f"buffer_store_dwordx2 {V(r, 2)}, v{vout}, s[{SRD1}:{SRD1 + 3}], 0 offen offset:{p * 32}")
        else:
            a(f"s_mov_b32 s{sOP}, {p * 4 * XP_STR}")
            a(f"buffer_store_dwordx2 {V(r, 2)}, v{vo2}, s[{SRDX}:{SRDX + 3}], s{sOP} offen sc1")
    if not final:
        for p in range(5):
            r = accr(p, 0)
            for h in range(2):
                a(f"v_add_u32 v{r + 2 + h}, s{sGB}, v{r + h}")
            if p == 0:
                a(f"v_and_b32 v{r + 2}, v{vout}, v{r + 2}")
        for p in range(5):
            for h in range(2):
                r = accr(p, 0) + 2 + h
                a(f"v_dot2c_f32_bf16 v{TMP + 2 + h}, v{r}, v{r}")
        z = TMP + 2
        a(f"v_add_f32 v{z}, v{z}, v{z + 1}")
        for op in ("v_permlane32_swap_b32", "v_permlane16_swap_b32"):
            a(f"v_mov_b32 v{z + 1}, v{z}")
            a(f"{op} v{z}, v{z + 1}")
            a(f"v_add_f32 v{z}, v{z}, v{z + 1}")
        a(f"v_cndmask_b32_e64 v{z}, 1.0, v{z}, s[{DIAG[0]}:{DIAG[0] + 1}]")
        a(f"{FZ.x_op} v{z}, v{vs}, s[{SRD1}:{SRD1 + 3}], 0 offen sc1".replace("-", "_"), tag="out")
    post_at("end")
    mk(a, name + "end")


def role_fused(a):
    if Cfg.stamp:
        mk.names.append("start")
        mk.pend.append(0)
    f0.front(a, mk.fixed)
    decode(a)
    mk.stash(a, 4)
    for ph in range(0 if FZ.halt == 10 else 2):
        a(f"s_cmp_ge_u32 s{sT}, {NCOL}")
        a(f"s_cbranch_scc1 idle{ph}", tag="nopad")
        pend = list(mk.pend)

        def idle(ph=ph, pend=pend):
            keep, mk.pend = mk.pend, pend
            a.label(f"idle{ph}")
            idle_phase(a, ph)
            a(f"s_branch join{ph}")
            mk.pend = keep
        a.tail.append(idle)
        n = col_phase(a, ph)
        a.label(f"join{ph}")
        if FZ.halt == 2 * ph + 1 or FZ.halt == 25 and ph:
            break
        mlp_phase(a, ph, n)
        if FZ.halt == 2 * ph + 2:
            break
    if Cfg.stamp:
        a("s_waitcnt vmcnt(0)")
        mk(a, "drain")
        mk.stash(a, 4)
        a(f"v_writelane_b32 v4, s{sCNT}, 63")
        srd_ws(a, SRD0, "STAMP", 1 << 21)
        a(f"s_lshl_b32 s{sA}, s2, 10")
        a(f"s_add_u32 s{sA}, s{sA}, {1 << 20}")
        a(f"v_lshl_add_u32 v5, v0, 2, s{sA}")
        a(f"buffer_store_dword v4, v5, s[{SRD0}:{SRD0 + 3}], 0 offen")
    return 160 * 1024


def tables():
    L = []
    c = np.sqrt(2.0 / DM) * np.cos(2 * np.pi * np.arange(DM) / DM)
    c[160] = 0
    c[480] = 0
    bits = model.bf16_bits(c.astype(np.float32))
    for n in range(DM):
        L.append(f".set cq{n}, {bits[n]}")
    bb = int(model.bf16_bits(np.float32([np.sqrt(1 / DM)]))[0])
    k2 = model2.kmap()
    L.append(".altmacro")
    L.append(".macro e8 a,b,c,d,e,f,g,h\n.short cq\\a, cq\\b, cq\\c, cq\\d, cq\\e, cq\\f, cq\\g, cq\\h\n.endm")
    L.append(".macro e6 a,b,c,d,e,f\n.short cq\\a, cq\\b, cq\\c, cq\\d, cq\\e, cq\\f\n.endm")
    L.append(".p2align 12\nft2:\n.set tt, 0\n.rept 40")
    for kb in range(80):
        L.append(".set td, tt\n.rept 16")
        ent = [f"%(({k2[4 * kb + j // 2]}*td+{160 * (j & 1)})%640)" for j in range(8)]
        if kb == 0:
            L.append(f".short {bb}+((td&1)<<15), {bb}")
            L.append("e6 " + ", ".join(ent[2:]))
        else:
            L.append("e8 " + ", ".join(ent))
        L.append(".set td, td+1\n.endr")
    L.append(".set tt, tt+16\n.endr\n.noaltmacro")
    return "\n".join(L) + "\n"


if __name__ == "__main__":
    f0.FC.xscale = S_LO
    for opt in sys.argv[2:]:
        if opt == "stamp":
            Cfg.stamp = True
        else:
            k, v = opt.split("=", 1)
            tgt = [c for c in (FZ, f0.FC, Cfg) if hasattr(c, k)][0]
            v = eval(v)
            sp = lambda x: x.replace("_", " ") if isinstance(x, str) else tuple(map(sp, x)) if isinstance(x, tuple) else x
            setattr(tgt, k, sp(v))
    txt = generate([("mk_kernel", [(256, role_fused)])], tables)
    if Cfg.stamp:
        txt = txt.replace(".amdgcn_target", ("; clk\n" if FZ.clk else "") + f"; halt {FZ.halt}\n; marks " + " ".join(mk.names)
                          + "\n.amdgcn_target", 1)
    if FZ.single:
        txt = txt.replace("@launch kernel=mk_kernel ", "@launch ")
        txt = txt.replace("mk_kernel", "interleave_layers__spectral_gfnet__mixer_channel_mlp__prompt_kernel")
    open(sys.argv[1], "w").write(txt)
```

```python
from gen import *
import model2
from p0 import Sched, fx

SCALE = float(np.sqrt(2.0 / DM))
SIGN2 = 0x80008000
REGB = 24576
FB = SS2_SIZE
READY, POST, HINT, DONE2, DONE = 4 << 15, 5 << 15, (6 << 15, 7 << 15), 8 << 15, 9 << 15
W2TOP = 252
aF, aD, aB, aDUM = 256 + 254, 256 + 255, 256 + 251, 256 + 253


class FC:
    fl_ld = " nt"
    fl_l2 = " nt"
    fl_l1 = " nt"
    fl_f = ""
    fs = (" sc1",) * 5
    xscale = 0
    code_pf = 1
    c_early = 3
    rot = 1
    t_pre = 6
    w_early = 4
    early = (0, 0)
    w2_pre = 1


def lane_blocks(a, v, t, base):
    a(f"v_and_b32 v{v}, 31, v{vL}")
    a(f"v_bfe_u32 v{t}, v{vL}, 5, 1")
    a(f"v_lshl_add_u32 v{v}, v{t}, 7, v{v}")
    a(f"v_lshl_add_u32 v{v}, s{sW}, 5, v{v}")
    a(f"v_lshlrev_b32 v{v}, 7, v{v}")
    a(f"v_add_u32 v{v}, {base + DONE}, v{v}")


def post(a, srd_, base, step, t, wait=None, both=False):
    a(f"s_lshl_b32 s{sA}, s3, 7")
    a(f"s_add_u32 s{sA}, s{sA}, {base + DONE}")
    if both:
        a(f"v_lshrrev_b32 v{t + 2}, 1, v0")
        a(f"v_lshl_add_u32 v{t + 2}, v{t + 2}, 20, s{sA}")
        a(f"v_and_b32 v{t}, 1, v0")
        a(f"v_lshlrev_b32 v{t + 1}, 15, v{t}")
        a(f"v_sub_u32 v{t + 2}, v{t + 2}, v{t + 1}")
    else:
        a(f"v_lshl_add_u32 v{t + 2}, v0, 20, s{sA}")
    if wait:
        a(wait)
    a(f"v_accvgpr_read_b32 v{t + 1}, {R(aD)}")
    a(f"v_add_u32 v{t + 1}, {step}, v{t + 1}")
    if both:
        a(f"v_or_b32 v{t + 1}, v{t}, v{t + 1}")
    return f"buffer_store_dword v{t + 1}, v{t + 2}, s[{srd_}:{srd_ + 3}], 0 offen sc1"


def front(a, mark):
    name = "f"
    vld, vr, vo = 4, 5, 9
    MK, M1, M2, M2N = 10, 14, 15, 16
    vph, vk0, vq20, vgf = 17, 18, 19, 35
    ACC1, A1, A2, Y, ACCX = 20, 36, 96, 144, 168
    TMP = Y
    DAT = 176
    sQ, sFT, sKD, sSC = sK0, sK1, 96, 97
    KINDS = ("x", "w1", "w2")
    NX = 0 if FC.early[0] else 3
    lbase = {"x": 0, "w1": 0, "w2": REGB}

    def frag(beta, j):
        return DAT + (beta * 5 + j) * 4

    a("s_cmp_ge_u32 s2, 8")
    a(f"s_cbranch_scc1 {name}_npf")
    if FC.code_pf:
        srd_code(a, SRD5, "mk_kernel")
        a(f"v_lshlrev_b32 v{vld}, 7, v0")
        for k in range(3):
            a(f"s_mov_b32 s{sOP}, {k << 15}")
            a.raw(f"    buffer_load_dword {R(aDUM)}, v{vld}, s[{SRD5}:{SRD5 + 3}], s{sOP} offen")
    a(f"s_add_u32 s{sT}, s2, 160")
    a.label(f"{name}_npf")
    a(f"s_sub_u32 s{sT}, s{sT}, 8")
    a("s_cmp_ge_u32 s2, 160")
    a(f"s_cselect_b32 s3, s2, s{sT}")
    a(f"s_lshl_b32 s{sE}, s{sW}, 10")
    a("s_cmp_ge_u32 s3, 128")
    a(f"s_cbranch_scc1 {name}_pb")

    def row_addr(v, t):
        a(f"s_and_b32 s{sA}, s{sW}, 1")
        a(f"s_lshl_b32 s{sA}, s{sA}, 1")
        a(f"s_xor_b32 s{sA}, s{sA}, s{sW}")
        a(f"s_lshl_b32 s{sA}, s{sA}, 2")
        a(f"v_or_b32 v{t}, s{sA}, v{vG}")
        a(f"v_xor_b32 v{t}, v{t}, v{vI}")
        a(f"v_mul_u32_u24 v{v}, 1280, v{v}")
        a(f"v_lshl_add_u32 v{v}, v{t}, 4, v{v}")

    def row_issue(v, fl, base):
        for j in range(5):
            a(f"s_add_u32 m0, s{sE}, {base + j * 4096 - j * 256}")
            a(f"buffer_load_dwordx4 v{v}, s[{SRD0}:{SRD0 + 3}], 0 offen offset:{j * 256}{fl} lds")

    def sync_start(part=3):
        t, z = TMP, TMP + 4
        if part & 1:
            sync_addr(t, z)
        if part & 2:
            srd_ws(a, SRD3, "SS2", SS2_SIZE + FLAG_SIZE)
            a(f"buffer_load_dword {R(aF)}, v{t}, s[{SRD3}:{SRD3 + 3}], 0 offen{FC.fl_f}")
            a(f"buffer_load_dword {R(aD)}, off, s[{SRD3}:{SRD3 + 3}], s{sOQ}{FC.fl_f}")
            a(f"buffer_store_dwordx4 {V(z, 4)}, v{t + 3}, s[{SRD3}:{SRD3 + 3}], 0 offen sc1")

    def sync_addr(t, z):
        lane_blocks(a, t, t + 1, FB)
        a(f"s_lshl_b32 s{sA}, s3, 2")
        a(f"v_and_or_b32 v{t + 3}, v0, 3, s{sA}")
        a(f"v_bfe_u32 v{t + 1}, v0, 2, 1")
        a(f"v_mad_u32_u24 v{t + 2}, v{t + 1}, 3, 4")
        a(f"v_lshlrev_b32 v{t + 3}, v{t + 2}, v{t + 3}")
        a(f"v_lshl_add_u32 v{t + 3}, v{t + 1}, 14, v{t + 3}")
        a(f"v_lshrrev_b32 v{t + 1}, 3, v0")
        a(f"v_lshl_add_u32 v{t + 3}, v{t + 1}, 20, v{t + 3}")
        for k in range(4):
            a(f"v_mov_b32 v{z + k}, 0")
        a(f"s_lshl_b32 s{sA}, s3, 7")
        a(f"s_add_u32 s{sOQ}, s{sA}, {FB + DONE}")
        a(f"s_add_u32 s{sA}, s{sA}, {FB + READY - (8 << 15)}")
        a(f"v_lshl_add_u32 v{t + 1}, v0, 15, s{sA}")
        a(f"v_subrev_u32 v{t + 2}, 8, v0")
        a(f"v_cmp_gt_u32 s[{sK2}:{sK3}], 5, v{t + 2}")
        a(f"v_cndmask_b32_e64 v{t + 3}, v{t + 3}, v{t + 1}, s[{sK2}:{sK3}]")

    def w2_setup(v, t):
        a(f"s_lshl_b32 s{sC}, s{sT}, 4")
        a(f"s_cmp_eq_u32 s{sT}, 108")
        a(f"s_cselect_b32 s{sC}, 0, s{sC}")
        a(f"s_lshl2_add_u32 s{sC}, s{sW}, s{sC}")
        a(f"v_add_u32 v{v}, s{sC}, v{vG}")
        row_addr(v, t)
        a("s_waitcnt lgkmcnt(0)")
        a(f"s_cmp_eq_u32 s{sT}, 108")
        a(f"s_mov_b32 s{SRD0 + 2}, {FF * DM * 2}")
        a(f"s_mov_b32 s{SRD0 + 3}, 0x20000")
        a(f"s_cselect_b32 s{SRD0 + 2}, {DM * 2}, s{SRD0 + 2}")
        a(f"s_cselect_b32 s{SRD0}, s{P_B2}, s{P_W2}")
        a(f"s_cselect_b32 s{SRD0 + 1}, s{P_B2 + 1}, s{P_W2 + 1}")
        a(f"s_and_b32 s{SRD0 + 1}, s{SRD0 + 1}, 0xffff")

    REG = 5248

    def filter_setup():
        a(f"s_bfe_u32 s{sA}, s3, 0x20001")
        a(f"s_lshl_b32 s{sC}, s{sA}, 7")
        a(f"s_lshr_b32 s{sA}, s3, 5")
        a(f"s_lshl_b32 s{sA}, s{sA}, 9")
        a(f"s_add_u32 s{sC}, s{sC}, s{sA}")
        a(f"s_and_b32 s{sA}, s3, 8")
        a(f"s_lshl3_add_u32 s{sC}, s{sA}, s{sC}")
        a(f"s_and_b32 s{sA}, s3, 16")
        a(f"s_add_u32 s{sC}, s{sC}, s{sA}")
        a(f"s_and_b32 s{sA}, s3, 1")
        a(f"s_lshl3_add_u32 s{sC}, s{sA}, s{sC}")
        a(f"s_and_b32 s{sA}, s{sW}, 2")
        a(f"s_lshl4_add_u32 s{sC}, s{sA}, s{sC}")
        a(f"s_mul_i32 s{sC}, s{sC}, 642")
        a(f"s_add_u32 s{sD}, s{sC}, 4096")
        a(f"s_mul_i32 s{sF}, s{sW}, {REG}")
        a(f"s_mov_b32 s{SRD0 + 2}, {SEQ * 642}")
        a(f"s_add_u32 m0, s{sF}, {REGB}")
        a(f"s_bitcmp1_b32 s{sW}, 0")
        a(f"s_cselect_b32 s{SRD0}, s{P_WI}, s{P_WR}")
        a(f"s_cselect_b32 s{SRD0 + 1}, s{P_WI + 1}, s{P_WR + 1}")
        a(f"s_and_b32 s{SRD0 + 1}, s{SRD0 + 1}, 0xffff")

    def filter_loads(js):
        a(f"v_lshlrev_b32 v{vld}, 4, v{vL}")
        for j in js:
            if j == 4:
                a(f"s_add_u32 m0, s{sF}, {REGB + 4096}")
            if j == 5:
                a("s_mov_b64 exec, 1")
            a(f"buffer_load_dwordx4 v{vld}, s[{SRD0}:{SRD0 + 3}], s{sC if j < 4 else sD} offen offset:{(j & 3) * 1024}{FC.fl_ld} lds")
            if j == 5:
                a("s_mov_b64 exec, -1")

    a(f"s_and_b32 s{sC}, s{sT}, 1")
    a(f"s_lshl_b32 s{sC}, s{sC}, 3")
    a(f"s_lshr_b32 s{sA}, s{sT}, 5")
    a(f"s_lshl4_add_u32 s{sC}, s{sA}, s{sC}")
    a(f"s_bfe_u32 s{sA}, s{sT}, 0x20001")
    a(f"s_lshl_b32 s{sA}, s{sA}, 8")
    a(f"s_add_u32 s{sC}, s{sC}, s{sA}")
    a(f"s_and_b32 s{sA}, s{sT}, 8")
    a(f"s_lshl4_add_u32 s{sC}, s{sA}, s{sC}")
    a(f"s_and_b32 s{sA}, s{sT}, 16")
    a(f"s_lshl_b32 s{sA}, s{sA}, 6")
    a(f"s_add_u32 s{sC}, s{sC}, s{sA}")
    a(f"s_lshl1_add_u32 s{sC}, s{sW}, s{sC}")
    a(f"v_and_b32 v{vld}, 1, v{vG}")
    a(f"v_lshlrev_b32 v{vld}, 6, v{vld}")
    a(f"v_lshrrev_b32 v{vr + 1}, 1, v{vG}")
    a(f"v_add3_u32 v{vld}, v{vld}, v{vr + 1}, s{sC}")
    row_addr(vld, vr)
    if FC.early[0]:
        sync_start(1)
    a("s_waitcnt lgkmcnt(0)")
    srd(a, SRD0, P_X, 0, SEQ * DM * 2)
    row_issue(vld, FC.fl_ld, 0)
    if FC.early[0]:
        sync_start(2)
    filter_setup()
    filter_loads(range(FC.c_early))
    mark(a, "l1")
    srd_ws(a, SRD1, "XP0", XP_SIZE)
    a(f"s_mov_b32 s{sKD}, 0")
    a(f"s_branch {name}_gen")

    a.label(f"{name}_pb")
    a(f"s_sub_u32 s{sT}, 255, s3")
    a(f"s_and_b32 s{sA}, s{sT}, 7")
    a(f"s_lshr_b32 s{sB}, s{sT}, 5")
    a(f"s_lshl3_add_u32 s{sA}, s{sB}, s{sA}")
    a(f"s_bfe_u32 s{sB}, s{sT}, 0x20003")
    a(f"s_lshl2_add_u32 s{sFT}, s{sA}, s{sB}")
    a(f"s_and_b32 s{sA}, s3, 7")
    a(f"s_bfe_u32 s{sB}, s3, 0x10003")
    a(f"s_lshl1_add_u32 s{sA}, s{sA}, s{sB}")
    a(f"s_add_u32 s{sA}, s{sA}, 92")
    a(f"s_cmp_lt_u32 s{sFT}, 92")
    a(f"s_cselect_b32 s{sFT}, s{sFT}, 108")
    a("s_cmp_lt_u32 s3, 144")
    a(f"s_cselect_b32 s{sFT}, s{sA}, s{sFT}")
    a(f"s_sub_u32 s{sT}, {W2TOP}, s3")
    a(f"s_min_u32 s{sT}, s{sT}, 112")
    a(f"s_cmp_ge_u32 s{sFT}, 108")
    a(f"s_cbranch_scc1 {name}_p2")
    a(f"s_and_b32 s{sA}, s{sW}, 1")
    a(f"s_lshl_b32 s{sA}, s{sA}, 2")
    a(f"v_lshrrev_b32 v{vld}, 1, v{vL}")
    a(f"v_xor_b32 v{vld}, s{sA}, v{vld}")
    a(f"v_mul_u32_u24 v{vld}, {FF * 2}, v{vld}")
    a(f"v_and_b32 v{vr}, 1, v{vL}")
    a(f"v_lshl_add_u32 v{vld}, v{vr}, 4, v{vld}")
    a(f"s_mul_i32 s{sA}, s{sW}, {32 * FF * 2}")
    a(f"s_lshl_b32 s{sB}, s{sFT}, 5")
    a(f"s_add_u32 s{sA}, s{sA}, s{sB}")
    a(f"v_add_u32 v{vld}, s{sA}, v{vld}")
    if FC.early[1]:
        sync_start(1)
    a("s_waitcnt lgkmcnt(0)")
    if FC.early[1] == 1:
        sync_start(2)
    srd(a, SRD0, P_W1, 0, DM * FF * 2)
    if FC.rot:
        a(f"s_and_b32 s{sC}, s{sFT}, 3")

    def w1_loads(js):
        for j in js:
            if FC.rot:
                a(f"s_lshl_b32 s{sA}, s{sC}, 12")
                a(f"s_add_u32 m0, s{sE}, s{sA}")
                a(f"s_mul_i32 s{sOP}, s{sC}, {128 * FF * 2}")
            else:
                a(f"s_add_u32 m0, s{sE}, {j * 4096}")
                a(f"s_mov_b32 s{sOP}, {j * 128 * FF * 2}")
            a(f"buffer_load_dwordx4 v{vld}, s[{SRD0}:{SRD0 + 3}], s{sOP} offen{FC.fl_l1} lds")
            if FC.rot and j < 4:
                a(f"s_add_u32 s{sC}, s{sC}, 1")
                a(f"s_cmp_eq_u32 s{sC}, 5")
                a(f"s_cselect_b32 s{sC}, 0, s{sC}")
            if j == 4:
                srd(a, SRD2, P_B1, 0, FF * 2)
                a(f"v_lshl_add_u32 v{vld}, v{vI}, 1, s{sB}")
                a(f"buffer_load_ushort {R(aB)}, v{vld}, s[{SRD2}:{SRD2 + 3}], 0 offen")

    w1_loads(range(FC.w_early))
    if FC.early[1] == 2:
        sync_start(2)
    mark(a, "l1")
    srd_ws(a, SRD1, "W1F", W1F_SIZE)
    a(f"s_mov_b32 s{sKD}, 1")
    a(f"s_branch {name}_gen")
    a.label(f"{name}_p2")
    w2_setup(vld, vr)
    row_issue(vld, FC.fl_l2, REGB)
    mark(a, "l1")
    sync_start()
    a(f"s_mov_b32 s{sKD}, 2")

    va0, va1, va2, vc, vt, LD, ST = 10, 11, 12, 13, 17, 176, 216
    k0, k1, k2 = 98, 99, 100

    def filter_addr():
        vo = vc
        srd_ws(a, SRD4, "WC", WC_SIZE)
        a(f"v_bfe_u32 v{vt}, v{vL}, 3, 1")
        a(f"v_lshlrev_b32 v{vt}, 2, v{vt}")
        a(f"v_add_u32 v{vt}, v{vt}, v{vG}")
        a(f"s_cmp_lt_u32 s{sW}, 2")
        a(f"s_cselect_b32 s{k0}, 1, -1")
        a(f"s_mul_i32 s{sA}, s{k0}, 80")
        a(f"s_mul_i32 s{sB}, s{k0}, 40")
        a(f"v_mul_i32_i24 v{va0}, s{sA}, v{vt}")
        a(f"v_and_b32 v{vt}, 7, v{vL}")
        a(f"v_mul_u32_u24 v{va1}, 642, v{vt}")
        a(f"v_add_u32 v{va0}, v{va0}, v{va1}")
        a(f"s_mul_i32 s{k1}, s{sW}, 5")
        a(f"s_sub_u32 s{k2}, 325, s{k1}")
        a(f"s_cmp_lt_u32 s{sW}, 2")
        a(f"s_cselect_b32 s{k2}, s{k1}, s{k2}")
        a(f"s_lshl_b32 s{k2}, s{k2}, 1")
        a(f"v_add_u32 v{va0}, s{k2}, v{va0}")
        a(f"v_add_u32 v{va1}, s{sB}, v{va0}")
        a(f"v_cmp_gt_u32 vcc, 8, v0")
        a(f"v_add_u32 v{va2}, 640, v{va0}")
        a(f"v_cndmask_b32 v{va2}, v{va0}, v{va2}, vcc")
        a(f"v_lshrrev_b32 v{vo}, 3, v{vL}")
        a(f"v_lshlrev_b32 v{vo}, 14, v{vo}")
        a(f"v_lshl_add_u32 v{vo}, v{vt}, 4, v{vo}")
        a(f"s_lshl_b32 s{sA}, s3, 7")
        a(f"s_lshr_b32 s{sB}, s{sW}, 1")
        a(f"s_lshl_b32 s{sB}, s{sB}, 17")
        a(f"s_add_u32 s{sA}, s{sA}, s{sB}")
        a(f"v_add_u32 v{vo}, s{sA}, v{vo}")
        a(f"s_sub_u32 s{k2}, s{k1}, 5")
        a(f"s_cmp_lt_u32 s{sW}, 2")
        a(f"s_cselect_b32 s{k1}, s{k1}, s{k2}")

    def filter_job():
        vo = vc
        a("s_barrier")
        mark(a, "b2")
        for n in range(5):
            for rl in range(2):
                for ph in range(2):
                    ad = va1 if ph else (va2 if n == 0 else va0)
                    for ar in range(2):
                        a(f"ds_read_u16 v{LD + n * 8 + (rl * 2 + ph) * 2 + ar}, v{ad} offset:{REGB + (rl * 2 + ar) * REG + 2 * n}")
        for n in range(5):
            for k in range(4):
                a(f"v_lshl_or_b32 v{ST + 4 * n + k}, v{LD + n * 8 + 2 * k + 1}, 16, v{LD + n * 8 + 2 * k}")
            if n == 0:
                a(f"s_cmp_eq_u32 s{k1}, 10")
                a(f"s_cselect_b32 s{sOP}, 0, s{k1}")
                a(f"s_lshl_b32 s{sOP}, s{sOP}, 18")
            else:
                a(f"s_add_i32 s{k1}, s{k1}, s{k0}")
                a(f"s_lshl_b32 s{sOP}, s{k1}, 18")
            a(f"buffer_store_dwordx4 {V(ST + 4 * n, 4)}, v{vo}, s[{SRD4}:{SRD4 + 3}], s{sOP} offen{FC.fs[1]}")

    a.label(f"{name}_gen")
    a(f"s_mov_b32 s{sSC}, {fx(SCALE)}")
    a(f"s_cmp_eq_u32 s{sKD}, 0")
    a(f"s_cselect_b32 s{sSC}, {fx(SCALE * 2.0 ** FC.xscale)}, s{sSC}")
    a(f"v_bfe_u32 v{TMP}, v{vI}, 1, 1")
    a(f"v_lshlrev_b32 v{TMP}, 4, v{TMP}")
    a(f"v_mov_b32 v{TMP + 1}, 0xffff")
    a(f"v_lshlrev_b32 v{TMP}, v{TMP}, v{TMP + 1}")
    a(f"v_lshrrev_b32 v{TMP + 1}, 2, v{vI}")
    for k in range(4):
        a(f"v_cmp_eq_u32 vcc, {k}, v{TMP + 1}")
        a(f"v_cndmask_b32 v{MK + k}, 0, v{TMP}, vcc")
    a(f"v_and_b32 v{M2}, 1, v{vI}")
    a(f"v_cvt_f32_u32 v{vph}, v{M2}")
    a(f"v_mul_f32 v{vph}, 0.5, v{vph}")
    a(f"v_lshrrev_b32 v{vk0}, 1, v{vI}")
    a(f"v_cvt_f32_u32 v{vk0}, v{vk0}")
    a(f"v_mul_f32 v{vk0}, {fx(1 / 32)}, v{vk0}")
    a(f"v_cvt_f32_u32 v{vgf}, v{vG}")

    def gen_a1(base, fq, ph):
        t = TMP
        a(f"v_fma_f32 v{t}, v{vgf}, v{fq}, {ph}")
        for j in range(1, 5):
            a(f"v_fmamk_f32 v{t + j}, v{fq}, {fx(4.0 * j)}, v{t}")
        for j in range(5):
            a(f"v_cos_f32 v{t + j}, v{t + j}")
        for j in range(5):
            a(f"v_mul_f32 v{t + j}, s{sSC}, v{t + j}")
        for j in range(5):
            a(f"v_cvt_pk_bf16_f32 v{t + j}, v{t + j}, v{t + j}")
        for j in range(5):
            for k in range(4):
                a(f"v_and_b32 v{base + 4 * j + k}, v{MK + k}, v{t + j}")

    def angles(kf, ph):
        t = TMP
        a(f"v_mul_f32 v{t + 8}, v{vgf}, v{kf}")
        a(f"v_fma_f32 v{t}, v{t + 8}, 2.0, v{ph}")
        for k in range(1, 8):
            c = 16 * (k >> 2) + 8 * ((k >> 1) & 1) + (k & 1)
            a(f"v_fmamk_f32 v{t + k}, v{kf}, {fx(float(c))}, v{t}")

    def entry(pre, kind):
        if kind != "x":
            a.label(f"{pre}_{kind}")
        if kind == "w2":
            a("s_waitcnt vmcnt(3)")
            a.label(f"{pre}_w2b")
            srd_ws(a, SRD1, "WA2", WA2_SIZE)
        else:
            mark(a, "gen")
        par["even"] = True

    def leave(pre, kind, n):
        if kind == "w1":
            mark(a, "j1")
            a(f"s_cmp_gt_u32 s{sT}, 108")
            a(f"s_cbranch_scc1 {name}_end")
            a(f"s_waitcnt vmcnt({n})")
            a(f"s_branch {pre}_w2b")
        else:
            a(f"s_branch {name}_xend" if kind == "x" else f"s_branch {name}_end")

    def addresses(kind):
        if kind == "x":
            filter_loads(range(FC.c_early, 6))
            filter_addr()
        if kind == "w1":
            w1_loads(range(FC.w_early, 5))
            a(f"v_and_b32 v{vr}, 1, v{vG}")
            a(f"v_lshlrev_b32 v{vr}, 7, v{vr}")
            a(f"v_lshl_add_u32 v{vr}, v{vG}, 10, v{vr}")
            a(f"v_lshl_add_u32 v{vr}, v{vI}, 3, v{vr}")
            a(f"v_xor_b32 v{vr + 1}, 128, v{vr}")
        else:
            a(f"v_and_b32 v{vr}, 4, v{vI}")
            a(f"v_lshlrev_b32 v{vr}, 1, v{vr}")
            a(f"v_xor_b32 v{vr}, v{vr}, v{vI}")
            a(f"v_lshlrev_b32 v{vr + 1}, 2, v{vG}")
            a(f"v_xor_b32 v{vr}, v{vr}, v{vr + 1}")
            a(f"v_lshlrev_b32 v{vr}, 4, v{vr}")
            a(f"v_lshl_add_u32 v{vr}, v{vI}, 8, v{vr}")
            for k in (1, 2, 3):
                a(f"v_xor_b32 v{vr + k}, {16 * k}, v{vr}")
        if kind == "x":
            a(f"v_and_b32 v{vld}, 1, v{vI}")
            a(f"v_lshl_add_u32 v{vo}, v{vG}, 1, v{vld}")
            a(f"v_lshlrev_b32 v{vo}, 14, v{vo}")
            a(f"v_and_b32 v{vld}, 14, v{vI}")
            a(f"v_lshl_add_u32 v{vo}, v{vld}, 3, v{vo}")
            a(f"s_lshl_b32 s{sA}, s{sQ}, 18")
            a(f"s_lshl_b32 s{sB}, s{sT}, 7")
            a(f"s_mov_b32 vcc_lo, 0x55555555")
            a(f"s_mov_b32 vcc_hi, 0x55555555")
        elif kind == "w1":
            a(f"v_lshlrev_b32 v{vo}, 4, v{vL}")
            a(f"s_lshl_b32 s{sA}, s{sQ}, 11")
            a(f"s_mul_i32 s{sB}, s{sFT}, 20480")
        else:
            a(f"v_lshrrev_b32 v{vo}, 1, v{vG}")
            a(f"v_mul_u32_u24 v{vo}, {KB_STR}, v{vo}")
            a(f"v_lshrrev_b32 v{vld}, 2, v{vI}")
            a(f"v_lshl_add_u32 v{vo}, v{vld}, 7, v{vo}")
            a(f"v_and_b32 v{vld}, 3, v{vI}")
            a(f"v_lshl_add_u32 v{vo}, v{vld}, 4, v{vo}")
            a(f"v_and_b32 v{vld}, 1, v{vG}")
            a(f"v_lshl_add_u32 v{vo}, v{vld}, 6, v{vo}")
            a(f"s_lshl_b32 s{sA}, s{sQ}, 10")
            a(f"s_mul_i32 s{sB}, s{sT}, {2 * KB_STR}")
        a(f"s_add_u32 s{sA}, s{sA}, s{sB}")
        a(f"v_add_u32 v{vo}, s{sA}, v{vo}")

    def reads(kind, first):
        if kind == "x":
            if not FC.early[0]:
                sync_start()
            mark(a, "l2")
            a("s_waitcnt vmcnt(9)")
        elif kind == "w1":
            w2_setup(ACCX, ACCX + 1)
            if not FC.early[1]:
                sync_start()
            if FC.w2_pre:
                row_issue(ACCX, FC.fl_l2, REGB)
            mark(a, "l2")
            a(f"s_waitcnt vmcnt({5 * FC.w2_pre + (0 if FC.early[1] == 1 else 3)})")
        a("s_barrier")
        mark(a, "b2" if kind == "w2" else "b1")
        for beta in range(4):
            for j in range(5):
                if kind == "w1":
                    for eh in range(2):
                        a(f"ds_read_b64_tr_b16 {R(frag(beta, j) + 2 * eh, 2)}, v{vr + eh} offset:{4096 * j + 256 * beta}")
                else:
                    a(f"ds_read_b128 {R(frag(beta, j), 4)}, v{vr + beta} offset:{lbase[kind] + 4096 * j}")
        if kind == "w1" and not FC.w2_pre:
            row_issue(ACCX, FC.fl_l2, REGB)

    def dispatch(pre):
        for kind in KINDS[1:]:
            a(f"s_cmp_eq_u32 s{sKD}, {kind[-1]}")
            a(f"s_cbranch_scc1 {pre}_{kind}")

    def stage1(sc, n, extra=None):
        for beta in range(4):
            c = 4 * n + beta
            acc = ACC1 + 4 * (c % 4)
            for j in range(5):
                sc.mfma(acc, A1 + 20 * n + 4 * j, frag(beta, j), None if j == 0 else acc,
                        needs=[("y", c - 4)] if j == 0 and c >= 4 else [])
            rdy = sc.n + 5
            if extra:
                extra(beta, acc, rdy, ("y", c))
            for h in range(2):
                sc.add(f"v_cvt_pk_bf16_f32 v{Y + 2 * c + h}, v{acc + 2 * h}, v{acc + 2 * h + 1}", rdy, ("y", c))

    par = {"even": True}
    QP = "quad_perm:[1,0,3,2] row_mask:0xf bank_mask:0xf"

    def stage2(kind, sc, n, u, mat, acc, needs, fix=None):
        for tl in range(2):
            for kp in range(2):
                d = acc + 4 * tl
                m, y = mat + (tl * 2 + kp) * 4, Y + 8 * n + 4 * kp
                nd = list(needs) + [("y", 4 * n + 2 * kp), ("y", 4 * n + 2 * kp + 1)]
                if kind == "w2":
                    sc.mfma(d, y, m, None if kp == 0 else d, needs=nd)
                else:
                    sc.mfma(d, m, y, None if kp == 0 else d, needs=nd)
        rdy, key = sc.n + 3, ("o", n, u)
        if fix:
            fix(rdy, key)
        for k in range(4):
            sc.add(f"v_cvt_pk_bf16_f32 v{acc + k}, v{acc + 2 * k}, v{acc + 2 * k + 1}", rdy, key)
        if kind == "x":
            for ph in range(2):
                lo = par["even"]
                for k in range(2):
                    if lo:
                        sc.add(f"v_cndmask_b32_dpp v{acc + 4 + k}, v{acc + 2 + k}, v{acc + k}, vcc {QP}", rdy, key)
                    else:
                        sc.add(f"v_cndmask_b32_dpp v{acc + 6 + k}, v{acc + k}, v{acc + 2 + k}, vcc {QP}", rdy, key)
                if ph == 0:
                    sc.add("s_not_b64 vcc, vcc", rdy, key)
                    par["even"] = not lo

            def st():
                a(f"s_mov_b32 s{sOP}, {(16 * n + 8 * u) * XP_STR}")
                a(f"buffer_store_dwordx4 {V(acc + 4, 4)}, v{vo}, s[{SRD1}:{SRD1 + 3}], s{sOP} offen{FC.fs[0]}")
            sc.add(st, rdy, key)
        elif kind == "w1":
            def st():
                a(f"s_mov_b32 s{sOP}, {(2 * n + u) * 1024}")
                a(f"buffer_store_dwordx4 {V(acc, 4)}, v{vo}, s[{SRD1}:{SRD1 + 3}], s{sOP} offen{FC.fs[2]}")
            sc.add(st, rdy, key)
        else:
            sc.add(f"v_permlane16_swap_b32 v{acc}, v{acc + 2}", rdy, key)
            sc.add(f"v_permlane16_swap_b32 v{acc + 1}, v{acc + 3}", rdy, key)
            sc.add(f"buffer_store_dwordx4 {V(acc, 4)}, v{vo}, s[{SRD1}:{SRD1 + 3}], 0 offen offset:{1024 * n + 512 * u}{FC.fs[3]}",
                   rdy, key)

    a(f"s_cmp_eq_u32 s{sW}, 3")
    a(f"s_cbranch_scc1 {name}_sp")

    a(f"s_mul_i32 s{sQ}, s{sW}, 3")
    a(f"s_add_u32 s{sQ}, s{sQ}, 1")
    a(f"v_mul_f32 v{vph}, 0.5, v{vph}")
    a(f"v_cvt_f32_u32 v{vq20}, s{sQ}")
    a(f"v_fmamk_f32 v{vk0}, v{vq20}, {fx(1 / 640)}, v{vk0}")
    a(f"v_mul_f32 v{vq20}, {fx(1 / 20)}, v{vq20}")
    a(f"v_mul_u32_u24 v{M2}, 0x8000, v{M2}")
    a(f"v_lshl_or_b32 v{M2}, v{M2}, 16, v{M2}")
    a(f"v_xor_b32 v{M2N}, {SIGN2:#x}, v{M2}")
    a(f"v_and_b32 v{M1}, 1, v{vG}")
    a(f"v_mul_u32_u24 v{M1}, 0x8000, v{M1}")
    a(f"v_lshl_or_b32 v{M1}, v{M1}, 16, v{M1}")
    for n in range(3):
        if n:
            a(f"v_add_f32 v{vk0}, {fx(1 / 640)}, v{vk0}")
            a(f"v_add_f32 v{vq20}, {fx(1 / 20)}, v{vq20}")
        gen_a1(A1 + 20 * n, vq20, f"v{vph}")
        angles(vk0, vph)
        for k in range(8):
            a(f"v_sin_f32 v{TMP + 8 + k}, v{TMP + k}")
            a(f"v_cos_f32 v{TMP + k}, v{TMP + k}")
        b = A2 + 16 * n
        for k in range(8):
            a(f"v_cvt_pk_bf16_f32 v{b + k}, v{TMP + k}, v{TMP + 8 + k}")
            if k & 1:
                a(f"v_cvt_pk_bf16_f32 v{b + 8 + k}, -v{TMP + 8 + k}, v{TMP + k}")
        for k in range(8):
            a(f"v_xor_b32 v{b + 8 + k}, v{M1}, v{b + (8 if k & 1 else 0) + k}")
    dispatch(f"{name}_t")
    for kind in KINDS:
        entry(f"{name}_t", kind)
        addresses(kind)
        reads(kind, True)
        sc = Sched(a)
        dm = [256 + 16 * n if kind == "w1" else A1 + 20 * n for n in range(3)]

        def keep(beta, acc, rdy, key, n):
            for k in range(4 * beta, 4 * beta + 4):
                sc.add(f"v_xor_b32 v{MK + (k & 3)}, v{M2N if k & 1 else M2}, v{A2 + 16 * n + k}", -1, ("d", n))
            for k in range(4 * beta, 4 * beta + 4):
                sc.add(f"v_accvgpr_write_b32 {R(dm[n] + k)}, v{MK + (k & 3)}", -1, ("d", n))

        for n in range(3):
            if kind == "w1":
                stage1(sc, n, lambda *x: keep(*x, n))
                continue
            stage1(sc, n)
            for k in range(16):
                sc.add(f"v_xor_b32 v{A1 + 20 * n + k}, v{M2N if k & 1 else M2}, v{A2 + 16 * n + k}", sc.n, ("d", n))
        if kind == "w2":
            st = post(a, SRD3, FB, 1, MK, "s_waitcnt vmcnt(0)")
            a(f"s_lshl_b32 s{sA}, s{sKD}, 19")
            a(f"s_and_b32 s{sA}, s{sA}, {1 << 20}")
            a(f"v_add_u32 v{MK + 2}, s{sA}, v{MK + 2}")
            a("s_barrier")
            a(st)
            mark(a, "p1")
        bufs = [ACCX, ACC1, ACC1 + 8]
        hist = [[], [("y", 8), ("y", 9)], [("y", 10), ("y", 11)]]
        for k in range(6):
            n, u = divmod(k, 2)
            needs = hist[k] if k < 3 else [("o",) + divmod(k - 3, 2)]
            if u:
                needs = needs + [("d", n)]
            stage2(kind, sc, n, u, dm[n] if u else A2 + 16 * n, bufs[k % 3], needs)
        sc.flush()
        if kind == "x":
            a(f"s_waitcnt vmcnt({6 + NX})")
        leave(f"{name}_t", kind, 6)

    a.label(f"{name}_sp")
    a(f"s_mov_b32 s{sQ}, 0")
    gen_a1(A1, vph, "0")
    a(f"v_mul_f32 v{vph}, 0.5, v{vph}")
    kf, ph = vq20, M1
    for tau in range(4):
        if tau == 0:
            a(f"v_cmp_eq_u32 vcc, 0, v{vI}")
            a(f"v_mov_b32 v{kf}, 0.5")
            a(f"v_cndmask_b32 v{kf}, v{vk0}, v{kf}, vcc")
            a(f"v_cmp_gt_u32 vcc, 2, v{vI}")
            a(f"v_mov_b32 v{ph}, {fx(0.125)}")
            a(f"v_cndmask_b32 v{ph}, v{vph}, v{ph}, vcc")
        else:
            a(f"v_add_f32 v{kf}, {fx(tau / 4 + (10 / 640 if tau >= 2 else 0))}, v{vk0}")
            a(f"v_mul_f32 v{ph}, {'-1.0' if tau >= 2 else '1.0'}, v{vph}")
        angles(kf, ph)
        for k in range(8):
            a(f"v_cos_f32 v{TMP + k}, v{TMP + k}")
        for k in range(8):
            d = A2 + 8 * tau + k
            a(f"v_cvt_pk_bf16_f32 v{d}, v{TMP + k}, 0" if tau < 2 else f"v_cvt_pk_bf16_f32 v{d}, 0, v{TMP + k}")
    dispatch(f"{name}_s")
    X0 = A2 + 32
    vs, vz, vb, GR, SM, T = X0, X0 + 1, X0 + 2, X0 + 4, X0 + 8, X0 + 12
    TR = A1 + 20
    DIAG = (4, 6, 30, 70)
    for kind in KINDS:
        entry(f"{name}_s", kind)
        addresses(kind)
        if kind == "x":
            srd_ws(a, SRD2, "SS0", SS_SIZE)
            a(f"s_lshr_b32 s{sA}, s{sT}, 4")
            a(f"s_lshl_b32 s{sA}, s{sA}, 10")
            a(f"s_and_b32 s{sB}, s{sT}, 7")
            a(f"s_lshl_b32 s{sB}, s{sB}, 7")
            a(f"s_add_u32 s{sA}, s{sA}, s{sB}")
            a(f"s_and_b32 s{sB}, s{sT}, 8")
            a(f"s_add_u32 s{sA}, s{sA}, s{sB}")
            a(f"v_lshrrev_b32 v{vs}, 1, v{vI}")
            a(f"v_lshlrev_b32 v{vs}, 4, v{vs}")
            a(f"v_lshl_add_u32 v{vs}, v{M2}, 2, v{vs}")
            a(f"v_lshl_add_u32 v{vs}, v{vG}, 20, v{vs}")
            a(f"v_add_u32 v{vs}, s{sA}, v{vs}")
            for r in range(4):
                m = 0x1000010000100001 << r
                a(f"s_mov_b32 s{DIAG[r]}, {m & 0xffffffff:#x}")
                a(f"s_mov_b32 s{DIAG[r] + 1}, {m >> 32:#x}")
        if kind == "w1":
            a(f"s_mov_b64 s[{sM0}:{sM1}], 0xffff")
        if kind == "w2":
            srd_ws(a, SRD2, "W2T", W2T_SIZE)
            a(f"v_bfe_u32 v{vz}, v{vI}, 1, 1")
            a(f"v_lshl_add_u32 v{vz}, v{vG}, 1, v{vz}")
            a(f"v_lshrrev_b32 v{vb}, 2, v{vI}")
            a(f"v_xor_b32 v{vz}, v{vz}, v{vb}")
            a(f"v_lshlrev_b32 v{vz}, 4, v{vz}")
            a(f"v_lshl_add_u32 v{vz}, v{vb}, 8, v{vz}")
            a(f"v_lshl_add_u32 v{vz}, v{M2}, 3, v{vz}")
            a(f"v_xor_b32 v{vb}, {1024 + 64}, v{vz}")
            a(f"s_mul_i32 s{sA}, s{sT}, {2 * KB_STR}")
            a(f"v_lshl_add_u32 v{vs}, v{vL}, 4, s{sA}")
        reads(kind, False)
        sc = Sched(a)

        def tr_read(n):
            h, x = divmod(n, 10)
            return [f"ds_read_b64_tr_b16 {V(TR + 4 * (n % 10) + 2 * eh, 2)}, v{vz + eh} "
                    f"offset:{REGB + (x >> 1) * 4096 + h * 2048 + 128 * ((x ^ h ^ eh) & 1)}" for eh in range(2)]

        def tr_store(n):
            if n % 4 == 0:
                a(f"s_mov_b32 s{sOQ}, {n * 1024}")
            a(f"buffer_store_dwordx4 {V(TR + 4 * (n % 10), 4)}, v{vs}, s[{SRD2}:{SRD2 + 3}], s{sOQ} offen offset:{(n % 4) * 1024}{FC.fs[4]}")

        if kind == "w2":
            for n in range(10):
                for op in tr_read(n):
                    a(op)

        def sums(beta, acc, rdy, key):
            sc.add(f"v_add_f32 v{SM + beta}, v{acc}, v{acc + 2}", rdy, key)

        stage1(sc, 0, sums if kind == "x" else None)
        if kind == "x":
            for k in range(10):
                sc.mfma(GR, DAT + 4 * k, DAT + 4 * k, None if k == 0 else GR)

        def fix(rdy, key):
            sc.add(f"v_accvgpr_read_b32 v{vb}, {R(aB)}", rdy, key)
            sc.add(f"v_lshlrev_b32 v{vb}, 16, v{vb}", rdy, key)
            sc.add(f"v_cndmask_b32_e64 v{ACCX + 1}, v{ACCX + 1}, v{vb}, s[{sM0}:{sM1}]", rdy, key)

        if kind == "w2":
            sc.flush()
            for n in range(10):
                tr_store(n)
                for op in tr_read(n + 10):
                    a(op)
                if n == FC.t_pre - 1:
                    a(f"s_waitcnt vmcnt({FC.t_pre})")
                    a("s_barrier")
        stage2(kind, sc, 0, 0, A2, ACCX, [], fix if kind == "w1" else None)
        stage2(kind, sc, 0, 1, A2 + 16, ACC1, [("y", 0), ("y", 1)])
        if kind == "w2":
            for n in range(10, 20):
                tr_store(n)
        if kind == "x":
            sc.add(f"v_add_f32 v{SM}, v{SM}, v{SM + 1}")
            sc.add(f"v_add_f32 v{SM + 2}, v{SM + 2}, v{SM + 3}")
            sc.add(f"v_add_f32 v{SM}, v{SM}, v{SM + 2}")
            for op in ("v_permlane32_swap_b32", "v_permlane16_swap_b32"):
                sc.add(f"v_mov_b32 v{SM + 1}, v{SM}")
                sc.add(f"{op} v{SM}, v{SM + 1}")
                sc.add(f"v_add_f32 v{SM}, v{SM}, v{SM + 1}")
            sc.add(f"v_mul_f32 v{SM}, {fx(2.0 ** -FC.xscale)}, v{SM}")
            sc.add(f"v_mul_f32 v{SM}, v{SM}, v{SM}")
            for k in range(10, 20):
                sc.mfma(GR, DAT + 4 * k, DAT + 4 * k, GR)
        sc.flush()
        if kind == "x":
            for r in range(4):
                prev = "0" if r == 0 else f"v{T}"
                a(f"v_cndmask_b32_e64 v{T}, {prev}, v{GR + r}, s[{DIAG[r]}:{DIAG[r] + 1}]")
            for op in ("v_permlane32_swap_b32", "v_permlane16_swap_b32"):
                a(f"v_mov_b32 v{T + 1}, v{T}")
                a(f"{op} v{T}, v{T + 1}")
                a(f"v_add_f32 v{T}, v{T}, v{T + 1}")
            a(f"v_fmamk_f32 v{T}, v{SM}, {fx(-1.0 / (model2.SC * model2.SC * DM))}, v{T}")
            a(f"v_max_f32 v{T}, 0, v{T}")
            a(f"buffer_store_dword v{T}, v{vs}, s[{SRD2}:{SRD2 + 3}], 0 offen sc1")
            a(f"s_waitcnt vmcnt({3 + NX})")
        leave(f"{name}_s", kind, 2)

    a.label(f"{name}_xend")
    mark(a, "j1")
    filter_job()
    a.label(f"{name}_end")
    mark(a, "j2")
    a(f"s_mov_b32 s{sT}, s2")
```

```python
from gen import *
import gen
import f0
import model2
from p0 import Sched, fx
from f0 import READY, POST, HINT, DONE, DONE2, aF
from asmlib import TRANS

GELU_K0 = -2.0 * 0.7978845608028654 * 1.4426950408889634
EPS = 1e-5
SPIN_MAX = 1 << 14
NCOL = 160
TILE = 20480
LDS_X = LDS_RED = 0
PX = 0
S_LO, S_X = -97, (-24, 24)
UP = [s - S_LO for s in S_X]
T_X = [2.0 ** (d - 127) for d in UP]
T_H, H_OFF = T_X[0], -2.0 ** -40

SRDQ, SRDF, SRDW, SRDP = 8, 12, SRD4, SRD5
sDC, sRP, sHO, sTB = 16, 17, 18, 19
sRB, sMM, sFL, sCNT, sGA, sGB = 96, 97, 98, 99, 100, 101
sMSK, sCQ = 26, 27
sPK, sEB = 20, 21
vW, vo, vp, vd2 = 10, 11, 15, 14
WR, NW, NP = 256, 8, 11
aPO = WR
aST, aDUM, vdc = 256 + 252, 256 + 253, 256 + 254
NS = 14


class FZ:
    look = 10
    pre_p = (8, 8)
    burst = ((0, 8), (4, 0))
    period = (90, 90)
    stop = ("x2", "x2")
    hint_at = ("x1", "x1")
    po_every = 5
    cap = 12
    row = 70
    srow = 120
    lat = 750
    dbl = (12, 15)
    xc_at = 1
    b_pre = 0
    pure = (2, 1)
    in_b = (5, 3)
    in_e = 5
    g2pk = (1, 1)
    qdel = (1600, 1600)
    qc_rem = 7
    split0 = 1
    ktail = 3
    rd_at = (("b", 1), ("b", 8))
    x3 = (("g", 3), ("g", 6), ("g", 8))
    res_at = ("g", 7)
    ebar = 1
    e_ok = 17
    marks = None
    clk = 0
    halt = 0
    verbose = 0
    map = 2
    post = 'bar2'
    x_nocnt = 0
    x_op = 'buffer-atomic-add-f32'
    wgap = 48
    park = (3, 2)
    gbar = 5
    ft_pf = 1
    p_lead = 14
    r_q = 2
    qf = (" sc1", " sc1")
    xf = (" sc1", " sc1")
    hf = " sc1"
    d2_at = 30
    ack_at = 2
    single = 0
    pof = " sc1"
    shrink = 1
    drop = ("c1a", "c2a", "c1b2", "c2b2", "m1H", "m2H", "m1P", "m2P", "c2ld", "c2x1")


class Marks:
    def __init__(self):
        self.names, self.pend = [], []

    def __call__(self, a, name):
        if not Cfg.stamp or (name in FZ.drop if FZ.marks is None else name not in FZ.marks):
            return
        k = len(self.pend)
        assert k < 12, name
        self.pend.append(len(self.names))
        self.names.append(name)
        a(f"{'s_memtime' if FZ.clk else 's_memrealtime'} s[{sST + 2 * k}:{sST + 2 * k + 1}]")

    def fixed(self, a, name):
        if not Cfg.stamp or FZ.marks is not None:
            return
        name = "f" + name
        if name not in self.names:
            self.pend.append(len(self.names))
            self.names.append(name)
        k = self.pend.index(self.names.index(name))
        a(f"s_memrealtime s[{sST + 2 * k}:{sST + 2 * k + 1}]")

    def stash(self, a, tmp):
        if not self.pend:
            return
        a("s_waitcnt lgkmcnt(0)")
        a(f"v_accvgpr_read_b32 v{tmp}, {R(aST)}")
        for k, lane in enumerate(self.pend):
            a(f"v_writelane_b32 v{tmp}, s{sST + 2 * k}, {lane}")
        a(f"v_writelane_b32 v{tmp}, s{sCNT}, {len(self.names)}")
        self.names.append("#" + self.names[self.pend[-1]])
        assert len(self.names) < 63
        a(f"v_accvgpr_write_b32 {R(aST)}, v{tmp}")
        self.pend = []


mk = Marks()


def preg(u, p):
    return WR + (0 if u == NP else 4 * NW + 20 * (u % (NP + 1))) + 4 * p


def kblock(u):
    return 2 * (14 * (u & 1) + (u >> 1))


def decode(a):
    a(f"s_and_b32 s{sA}, s{sT}, 7")
    if FZ.map == 1:
        a(f"s_bfe_u32 s{sRB}, s{sT}, 0x10003")
        a(f"s_lshl1_add_u32 s{sRB}, s{sA}, s{sRB}")
        a(f"s_lshr_b32 s{sMM}, s{sT}, 4")
    else:
        a(f"s_lshr_b32 s{sB}, s{sA}, 1")
        a(f"s_lshl_b32 s{sB}, s{sB}, 2")
        a(f"s_bfe_u32 s{sRB}, s{sT}, {0x20006 if FZ.map == 2 else 0x20003:#x}")
        a(f"s_add_u32 s{sRB}, s{sRB}, s{sB}")
        a(f"s_and_b32 s{sA}, s{sA}, 1")
        a(f"s_lshl_b32 s{sA}, s{sA}, 3")
        a(f"s_bfe_u32 s{sMM}, s{sT}, {0x30003 if FZ.map == 2 else 0x30005:#x}")
        a(f"s_add_u32 s{sMM}, s{sMM}, s{sA}")
    a(f"s_lshl_b32 s{sFL}, s{sRB}, 7")
    a(f"s_mov_b32 s{sCNT}, 0")
    for k in range(4):
        a(f"v_accvgpr_write_b32 {R(aPO + k)}, -1")
    if Cfg.stamp:
        a(f"v_accvgpr_write_b32 {R(aST)}, 0")


def pre_setup(a, ph, t0):
    if not ph:
        a(f"s_and_b32 s{sA}, s{sMM}, 3")
        a(f"s_cmp_eq_u32 s{sA}, 3")
        a(f"s_cselect_b32 s{sMSK}, 0x40000000, 0")
        a(f"s_lshr_b32 s{sB}, s{sMM}, 3")
        a(f"s_lshl2_add_u32 s{sDC}, s{sB}, s{sA}")
        a(f"s_mul_i32 s{sTB}, s{sMM}, 7")
        a(f"s_lshr_b32 s{sB}, s{sMM}, 2")
        a(f"s_sub_u32 s{sTB}, s{sTB}, s{sB}")
        a(f"s_mul_i32 s{sPK}, s{sW}, {TILE // 4}")
        a(f"s_mul_i32 s{sEB}, s{sW}, {3 * TILE // 4}")
    a(f"s_mul_i32 s{sE}, s{sW}, {(2 if ph else 7) * TILE // 4}")
    a(f"s_add_u32 m0, s{sE}, {TILE}")
    a(f"v_lshlrev_b32 v{vW}, 4, v{vL}")
    a(f"s_mul_i32 s{sA}, s{sTB}, {TILE}")
    a(f"s_add_u32 s{sA}, s{sA}, {WS['W1F'] - TILE}")
    a(f"s_add_u32 s{SRDW}, s{P_WS}, s{sA}")
    a(f"s_addc_u32 s{SRDW + 1}, s{P_WS + 1}, 0")
    a(f"s_and_b32 s{SRDW + 1}, s{SRDW + 1}, 0xffff")
    a(f"s_mov_b32 s{SRDW + 2}, {8 * TILE}")
    a(f"s_cmp_lg_u32 s{sMSK}, 0")
    a(f"s_cselect_b32 s{SRDW + 2}, {7 * TILE}, s{SRDW + 2}")
    a(f"s_mov_b32 s{SRDW + 3}, 0x20000")
    a(f"v_lshrrev_b32 v{vo}, 1, v{vG}")
    a(f"v_and_b32 v{t0}, 1, v{vG}")
    if not ph:
        a(f"v_mad_u32_u24 v{vp}, v{vo}, 14, v{t0}")
        a(f"v_mul_u32_u24 v{vp}, {KB_STR}, v{vp}")
        a(f"v_lshl_add_u32 v{vp}, v{vI}, 4, v{vp}")
        a(f"s_mul_i32 s{sA}, s{sDC}, 1280")
        a(f"s_mul_i32 s{sB}, s{sW}, {54 * KB_STR}")
        a(f"s_add_u32 s{sA}, s{sA}, s{sB}")
        a(f"v_add_u32 v{vp}, s{sA}, v{vp}")
    a(f"v_lshlrev_b32 v{vo}, 15, v{vo}")
    a(f"v_lshl_add_u32 v{vo}, v{vI}, 5, v{vo}")
    a(f"v_lshl_add_u32 v{vo}, v{t0}, 4, v{vo}")
    a(f"s_lshl_b32 s{sA}, s{sTB}, 16")
    a(f"s_lshl4_add_u32 s{sA}, s{sFL}, s{sA}")
    a(f"s_lshl_b32 s{sB}, s{sW}, 9")
    a(f"s_add_u32 s{sA}, s{sA}, s{sB}")
    a(f"v_add_u32 v{vo}, s{sA}, v{vo}")
    if ph:
        a(f"s_add_u32 s{SRDP}, s{SRDP}, {WS['W2T'] - WS['WA2']}")
        a(f"s_addc_u32 s{SRDP + 1}, s{SRDP + 1}, 0")
    else:
        a(f"v_add_u32 v{t0}, s{sMSK}, v{vo}")
        srd_ws(a, SRDP, "WA2", 218 * KB_STR)
        a(f"s_add_u32 s{sA}, s{sW}, 1")
        a(f"s_mul_i32 s{sA}, s{sA}, {54 * KB_STR}")
        a(f"s_cmp_eq_u32 s{sW}, 3")
        a(f"s_cselect_b32 s{SRDP + 2}, s{SRDP + 2}, s{sA}")
        srd_ws(a, SRDF, "FLAG", FLAG_SIZE)
        srd_ws(a, SRDQ, "H", H_SIZE)


def w2_flags():
    return [f"s_mul_i32 s{sOP}, s{sW}, 27",
            f"v_min_u32 v{vd2}, 27, v{vL}",
            f"v_add_u32 v{vd2}, s{sOP}, v{vd2}",
            f"v_sub_u32 v{vd2}, {f0.W2TOP}, v{vd2}",
            f"v_lshlrev_b32 v{vd2}, 7, v{vd2}",
            f"s_mov_b32 s{sOP}, {DONE2}",
            f"buffer_load_dword v{vd2}, v{vd2}, s[{SRDF}:{SRDF + 3}], s{sOP} offen sc1"]


def w2_test(a, nm):
    a(f"v_cmp_eq_u32 vcc, 0, v{vd2}")
    a(f"s_cbranch_vccnz {nm}_w2")
    a.label(f"{nm}_w2ok", keep=True)

    def spin():
        a.label(f"{nm}_w2")
        for x in w2_flags():
            a(x)
        budget(a, f"{nm}_w2out")
        a(f"v_cmp_eq_u32 vcc, 0, v{vd2}")
        a(f"s_cbranch_vccnz {nm}_w2")
        a.label(f"{nm}_w2out")
        a("s_waitcnt vmcnt(0)")
        a(f"s_branch {nm}_w2ok")
    a.tail.append(spin)


def front_wait(a, nm, t):
    f0.lane_blocks(a, t, t + 1, 0)
    a(f"v_accvgpr_read_b32 v{t + 2}, {R(aF)}")
    a.label(f"{nm}_fw")
    a(f"buffer_load_dword v{t + 1}, v{t}, s[{SRDF}:{SRDF + 3}], 0 offen sc1")
    budget(a, f"{nm}_fwok")
    a(f"v_cmp_eq_u32 vcc, v{t + 2}, v{t + 1}")
    if FZ.shrink:
        a(f"s_cbranch_vccz {nm}_fwok")
        a("s_mov_b64 exec, vcc")
        a(f"s_branch {nm}_fw")
    else:
        a(f"s_cbranch_vccnz {nm}_fw")
    a.label(f"{nm}_fwok")
    if FZ.shrink:
        a("s_mov_b64 exec, -1")
    a("s_waitcnt vmcnt(0)")


def pre_ops(ph, t0, nm):
    po, ops = [], []
    for k in range(0 if ph else 7):
        po.append([f"s_mov_b32 s{sOQ}, {k * 2 * H_STR}",
                   f"buffer_store_dwordx4 {R(aPO, 4)}, v{t0 if k == 6 else vo}, s[{SRDQ}:{SRDQ + 3}], s{sOQ} offen{FZ.pof}"])
    n = 10 if ph else 35
    for k in range(n):
        g = [f"buffer_load_dwordx4 v{vW}, s[{SRDW}:{SRDW + 3}], m0 offen offset:{(k & 3) * 1024} lds"]
        if k & 3 == 3:
            g.append("s_add_u32 m0, m0, 4096")
        ops.append(g)
    for u in range(FZ.pre_p[ph]):
        for p in range(5):
            g = [f"buffer_load_dwordx4 {R(preg(u, p), 4)}, v{vp}, s[{SRDP}:{SRDP + 3}], s{sOP} offen offset:{p * 256}"]
            ops.append(([f"s_mov_b32 s{sOP}, {kblock(u) * KB_STR}"] if p == 0 else []) + g)
    if not ph:
        ops[n].insert(0, lambda a: w2_test(a, nm))
        ops.insert(FZ.d2_at, w2_flags())
    out = []
    for k, op in enumerate(ops):
        out.append(op)
        if k % FZ.po_every == FZ.po_every - 1 and po:
            out.append(po.pop(0))
    assert not po
    return out


class Paced:
    def __init__(self, a, ops, period):
        self.a, self.ops, self.period = a, ops, period
        self.on = False
        self.t = 0

    def burst(self, n):
        for _ in range(min(n, len(self.ops))):
            for x in self.ops.pop(0):
                x(self.a) if callable(x) else self.a(x)

    def __call__(self, text, tag=None):
        self.a(text, tag)
        if self.on:
            op = text.split()[0]
            self.t += 16 if op.startswith("v_mfma") else 8 if op in TRANS else 4
            if self.t >= self.period:
                self.t -= self.period
                self.burst(1)

    def __getattr__(self, n):
        return getattr(self.a, n)


def budget(a, out):
    a(f"s_add_u32 s{sCNT}, s{sCNT}, 1")
    a(f"s_cmp_ge_u32 s{sCNT}, {SPIN_MAX}")
    a(f"s_cbranch_scc1 {out}")


def col_phase(a0, ph):
    vx, vw, vl0, vt0, vh = 4, 5, 6, 12, 13
    raw, ss, wraw = 16, 32, 40
    M1, M2 = 56, 88
    T1, T2 = 120, 136
    ACC, FO, TMP, WU0 = 152, 184, 200, 232
    vmI, fi, fg, fa, fb = 176, 177, 178, 179, 180
    SL = ACC
    FGR = [TMP + 4 * k for k in range(8)] + [ss, ss + 4, 248, 252]
    WU = (WU0, T1)
    nm = f"c{ph + 1}"
    a = Paced(a0, pre_ops(ph, vt0, nm), FZ.period[ph])

    def point(name):
        mk(a0, nm + name)
        if name == FZ.hint_at[ph]:
            a0(f"buffer_store_dword v{vh}, v{vh}, s[{SRDF}:{SRDF + 3}], 0 offen sc1")
        if name == FZ.stop[ph]:
            a.on = False

    a(f"s_mul_i32 s{sB}, s{sW}, 3072")
    a(f"v_lshlrev_b32 v{vl0}, 4, v0")
    a(f"v_add_u32 v{vx}, s{sB}, v{vl0}")
    if not ph:
        a(f"s_lshl_b32 s{sB}, s{sW}, 10")
        a(f"v_add_u32 v{vw}, s{sB}, v{vl0}")
    a(f"s_lshl_b32 s{sF}, s{sT}, 14")

    def data_loads(e):
        if ph:
            for k in range(4):
                e(f"buffer_load_dwordx4 {V(raw + 4 * k, 4)}, v{vx}, s[{SRD0}:{SRD0 + 3}], s{sF} offen offset:{k * 1024} sc1")
            for k in range(4):
                e(f"buffer_load_dwordx3 {V(SL + 4 * k, 3)}, v{vx}, s[{SRD1}:{SRD1 + 3}], 0 offen offset:{k * 1024} sc1")
        else:
            for t in range(2):
                e(f"buffer_load_dwordx4 {V(ss + 4 * t, 4)}, v{vw}, s[{SRD1}:{SRD1 + 3}], 0 offen offset:{t * 1024} sc1")
            for k in range(4):
                e(f"buffer_load_dwordx4 {V(raw + 4 * k, 4)}, v{vx}, s[{SRD0}:{SRD0 + 3}], s{sF} offen offset:{k * 1024} sc1")

    def filter_loads():
        for k in range(4):
            a(f"buffer_load_dwordx4 {V(wraw + 4 * k, 4)}, v{vx}, s[{SRD2}:{SRD2 + 3}], s{sF} offen offset:{k * 1024}")

    def ack(n):
        if not ph and n == FZ.ack_at:
            st = f0.post(a0, SRDF, 0, 1, ACC, "s_waitcnt vmcnt(0)", True)
            a0("s_barrier")
            a0(st)
            point("ak")

    def pos(base, k, c):
        return base + (k >> 1) * 4 + (k & 1) * 2 + c

    srd_ws(a, SRD2, "WC", WC_SIZE)
    if ph:
        filter_loads()
        point("ld")
    else:
        srd_ws(a, SRD0, "XP0", XP_SIZE)
        srd_ws(a, SRD1, "SS0", SS_SIZE)
    pre_setup(a, ph, vt0)
    a(f"s_lshl_b32 s{sA}, s3, 7")
    a(f"s_add_u32 s{sA}, s{sA}, {HINT[ph]}")
    a(f"v_lshl_add_u32 v{vh}, v0, 20, s{sA}")
    if ph:
        a("s_barrier")
        a.burst(FZ.burst[ph][0])
    ack(0)
    for kk in (1, 2, 3):
        a(f"v_xor_b32 v{vl0 + kk}, {kk * 1024}, v{vl0}")
    a(f"v_and_b32 v{vmI}, 1, v{vI}")
    a(f"v_mul_u32_u24 v{vmI}, 0x8000, v{vmI}")
    a(f"v_lshl_or_b32 v{vmI}, v{vmI}, 16, v{vmI}")
    a(f"v_cvt_f32_u32 v{fi}, v{vI}")
    a(f"v_lshlrev_b32 v{fg}, 2, v{vG}")
    a(f"v_cvt_f32_u32 v{fg}, v{fg}")

    def m1(qb, t, var):
        return M1 + ((qb * 2 + t) * 2 + var) * 4

    def m2(kk, var):
        return M2 + (kk * 2 + var) * 4

    a(f"v_mul_f32 v{fa}, {fx(1 / 32)}, v{fi}")
    a(f"v_mul_f32 v{TMP}, v{fg}, v{fa}")
    for jj in range(1, 4):
        a(f"v_fmamk_f32 v{TMP + 3 * jj}, v{fa}, {fx(float(jj))}, v{TMP}")
    for jj in range(4):
        t = TMP + 3 * jj
        a(f"v_cos_f32 v{t + 1}, v{t}")
        a(f"v_sin_f32 v{t + 2}, v{t}")
    for jj in range(4):
        t = TMP + 3 * jj
        n = "-" if jj & 1 else ""
        m = "" if jj & 1 else "-"
        a(f"v_cvt_pk_bf16_f32 v{m1(0, 0, 0) + jj}, v{t + 1}, v{t + 2}")
        a(f"v_cvt_pk_bf16_f32 v{m1(0, 0, 1) + jj}, -v{t + 2}, v{t + 1}")
        a(f"v_cvt_pk_bf16_f32 v{m1(1, 0, 0) + jj}, {n}v{t + 1}, {n}v{t + 2}")
        a(f"v_cvt_pk_bf16_f32 v{m1(1, 0, 1) + jj}, {m}v{t + 2}, {n}v{t + 1}")
    for qb in range(2):
        for var in range(2):
            for jj in range(4):
                a(f"v_xor_b32 v{m1(qb, 1, var) + jj}, v{vmI}, v{m1(qb, 0, var) + jj}")
    ack(1)

    a(f"s_lshl_b32 s{sK0}, s{sW}, 4")
    a(f"v_cvt_f32_u32 v{fb}, s{sK0}")
    a(f"v_add_f32 v{TMP + 24}, v{fb}, v{fg}")
    a(f"v_add_f32 v{fb}, v{fb}, v{fi}")
    a(f"v_mul_f32 v{TMP + 25}, {fx(1 / 2048)}, v{fi}")
    a(f"v_add_f32 v{TMP + 26}, {fx(16 / 2048)}, v{TMP + 25}")
    for r in range(4):
        a(f"v_add_f32 v{TMP + r}, {fx(float(r))}, v{TMP + 24}")
    for qb in range(2):
        for r in range(4):
            t = TMP + 4 + (qb * 4 + r)
            a(f"v_mul_f32 v{t}, v{TMP + r}, v{TMP + 25 + qb}")
            a(f"v_cos_f32 v{T1 + qb * 8 + r}, v{t}")
            a(f"v_sin_f32 v{T1 + qb * 8 + 4 + r}, v{t}")
    ack(2)

    a(f"v_mul_f32 v{fa}, {fx(1 / 64)}, v{fb}")
    a(f"s_xor_b32 s{sK0}, s{sK0}, 16")
    a(f"v_cvt_f32_u32 v{TMP + 24}, s{sK0}")
    a(f"v_add_f32 v{TMP + 24}, v{TMP + 24}, v{fg}")
    for kk in range(2):
        for r in range(4):
            t = TMP + 12 + 3 * r
            if kk == 0:
                a(f"v_mul_f32 v{t}, v{TMP + r}, v{fa}")
            else:
                a(f"v_add_f32 v{t}, {fx(float(r))}, v{TMP + 24}")
                a(f"v_mul_f32 v{t}, v{t}, v{fa}")
            a(f"v_cos_f32 v{t + 1}, v{t}")
            a(f"v_sin_f32 v{t + 2}, v{t}")
        for r in range(4):
            t = TMP + 12 + 3 * r
            a(f"v_cvt_pk_bf16_f32 v{m2(kk, 0) + r}, v{t + 1}, v{t + 2}")
            a(f"v_cvt_pk_bf16_f32 v{m2(kk, 1) + r}, -v{t + 2}, v{t + 1}")
    for kk in range(2):
        for var in range(2):
            for r in range(4):
                a(f"v_xor_b32 v{m2(kk + 2, var) + r}, v{vmI}, v{m2(kk, var) + r}")

    ack(3)
    if not ph:
        point("cs")
        st = f0.post(a0, SRDF, 0, 2, ACC)
        front_wait(a0, nm, TMP)
        point("dr")
        data_loads(a)
        filter_loads()
        a("s_barrier")
        a(st)
        a.burst(FZ.burst[ph][1])
        mk.stash(a0, TMP)
        a.on = True
    else:
        point("cs")
        if FZ.post:
            a(f"v_lshlrev_b32 v{TMP}, 7, v0")
            a(f"v_add_u32 v{TMP}, {POST}, v{TMP}")
            a0.label(f"{nm}_poll")
            a0(f"buffer_load_dword v{TMP + 1}, v{TMP}, s[{SRDF}:{SRDF + 3}], 0 offen sc1")
            budget(a0, f"{nm}_seen")
            a0(f"v_cmp_eq_u32 vcc, 0, v{TMP + 1}")
            a0(f"s_cbranch_vccnz {nm}_poll")
            a0.label(f"{nm}_seen")
            a0("s_waitcnt vmcnt(0)")
        else:
            a.wait_tag("out")
        point("dr")
        if FZ.halt == 25:
            mk.stash(a0, TMP)
            return 0
        data_loads(a)
        a.burst(FZ.burst[ph][1])
        mk.stash(a0, TMP)

    a(f"v_mul_f32 v{fa}, {fx(1 / 2048)}, v{fb}")
    a(f"v_mul_f32 v{TMP}, v{fg}, v{fa}")
    for k in range(1, 8):
        a(f"v_fmamk_f32 v{TMP + k}, v{fa}, {fx(float(16 * (k >> 2) + (k & 3)))}, v{TMP}")
    for k in range(8):
        u, r = divmod(k, 4)
        a(f"v_cos_f32 v{T2 + u * 8 + r}, v{TMP + k}")
        a(f"v_sin_f32 v{T2 + u * 8 + 4 + r}, v{TMP + k}")

    a0(f"s_mov_b32 s{sK1}, 0xffff0000")
    a0(f"s_cmp_eq_u32 s{sT}, 0")
    a0(f"s_cselect_b32 s{sK2}, 0, s{sK1}")
    a0(f"s_mov_b32 s{sK0}, {fx(-1 / 2048)}")
    a0(f"s_cselect_b32 s{sK3}, 0, s{sK0}")
    a(f"s_mov_b32 s{sA}, {fx(1 / DM)}")
    a(f"s_mov_b32 s{sB}, {fx(1 / 2048)}")
    a(f"s_mov_b32 s{sC}, {UP[ph] * 0x800080:#x}")
    a(f"v_mov_b32 v{fa}, {fx(1e-5)}")
    point("k")
    if ph:
        def test(e):
            e(f"v_max3_f32 v{fi}, |v{raw}|, |v{raw + 2}|, |v{raw + 4}|")
            e(f"v_max3_f32 v{fb}, |v{raw + 6}|, |v{raw + 8}|, |v{raw + 10}|")
            e(f"v_max3_f32 v{fi}, v{fi}, |v{raw + 12}|, |v{raw + 14}|")
            e(f"v_max_f32 v{fi}, v{fi}, v{fb}")
            e(f"v_min3_f32 v{fg}, v{SL + 2}, v{SL + 6}, v{SL + 10}")
            e(f"v_min_f32 v{fg}, v{fg}, v{SL + 14}")
            e(f"v_fmamk_f32 v{fg}, v{fi}, {fx(-8 / T_X[0])}, v{fg}")
            e(f"v_cmp_gt_f32 vcc, {fx(7.5)}, v{fg}")

        def var_ops(e):
            for k in range(8):
                e(f"v_fma_f32 v{ss + k}, v{SL + 4 * (k >> 1) + (k & 1)}, s{sA}, v{fa}")

        test(a0)
        var_ops(a0)
        a0(f"s_cbranch_vccnz {nm}_again", tag="nopad")
        a0.label(f"{nm}_ok", keep=True)

        def again():
            a0.label(f"{nm}_again")
            budget(a0, f"{nm}_ok")
            data_loads(a0)
            a0("s_waitcnt vmcnt(0)")
            test(a0)
            var_ops(a0)
            a0(f"s_cbranch_vccnz {nm}_again")
            a0(f"s_branch {nm}_ok")
        a0.tail.append(again)
        a.on = True
    else:
        for k in range(8):
            a(f"v_fma_f32 v{ss + k}, v{ss + k}, s{sA}, v{fa}")
    for k in range(8):
        a(f"v_rsq_f32 v{ss + k}, v{ss + k}")

    def acc(c, b, var):
        return ACC + c * 16 + (b * 2 + var) * 4

    def fo(c, b):
        return FO + c * 8 + b * 4

    def unpack(dst_, base, c, mask):
        ops = []
        for k in range(8):
            ops.append(f"v_lshlrev_b32 v{dst_ + 2 * k}, 16, v{pos(base, k, c)}")
            ops.append(f"v_and_b32 v{dst_ + 2 * k + 1}, s{mask}, v{pos(base, k, c)}")
        return ops

    def unpack_w(c):
        ops = []
        for k in range(8):
            u, r = divmod(k, 4)
            ops.append(f"v_lshlrev_b32 v{WU[c] + u * 8 + r}, 16, v{pos(wraw, k, c)}")
            ops.append(f"v_and_b32 v{WU[c] + u * 8 + 4 + r}, s{sK1}, v{pos(wraw, k, c)}")
        return ops

    def scale(c):
        t = TMP + 16 * c
        for k in range(8):
            h = k & 1
            a(f"v_pk_mul_f32 {V(t + 2 * k, 2)}, {V(t + 2 * k, 2)}, {V(ss + k - h, 2)} op_sel:[0,{h}] op_sel_hi:[1,{h}]")
        for k in range(8):
            a(f"v_cvt_pk_bf16_f32 v{fo(c, 0) + k}, v{t + 2 * k}, v{t + 2 * k + 1}")

    sc = Sched(a)

    def stage_a(c):
        for t in range(2):
            for qb in range(2):
                for var in range(2):
                    sc.mfma(acc(c, qb, var), fo(c, t), m1(qb, t, var), None if t == 0 else acc(c, qb, var))
        sc.flush()

    for op in unpack(TMP, raw, 0, sK2):
        a(op)
    scale(0)
    point("s0")
    for op in unpack(TMP + 16, raw, 1, sK1):
        sc.add(op)
    stage_a(0)
    scale(1)
    for op in unpack_w(0):
        sc.add(op)
    stage_a(1)
    point("a")

    def mm(c, b, var, f, kk, data_is_a):
        cc = None if kk == 0 else acc(c, b, var)
        if data_is_a:
            sc.mfma(acc(c, b, var), f, m2(kk, var), cc)
        else:
            sc.mfma(acc(c, b, var), m2(kk, var), f, cc)

    def exchange(n, data_is_a, cm, fill_own, fill_rest):
        for c in range(2):
            for b in range(2):
                cm(c, b)
                if n == 2 and c == b == 0:
                    a("s_barrier")
                a(f"ds_write_b128 v{vl0}, {V(fo(c, b), 4)} offset:{(c * 2 + b) * 4096}")
        a("s_waitcnt lgkmcnt(0)")
        a("s_barrier")
        point(f"b{n}")
        for c in range(2):
            for kk in (1, 2, 3):
                for b in range(2):
                    f = FGR[(c * 3 + kk - 1) * 2 + b]
                    a(f"ds_read_b128 {R(f, 4)}, v{vl0 + kk} offset:{(c * 2 + b) * 4096}")
        for op in fill_own:
            sc.add(op)
        for c in range(2):
            for b in range(2):
                for var in range(2):
                    mm(c, b, var, fo(c, b), 0, data_is_a)
        for op in fill_rest:
            sc.add(op)
        for c in range(2):
            for kk in (1, 2, 3):
                for b in range(2):
                    for var in range(2):
                        mm(c, b, var, FGR[(c * 3 + kk - 1) * 2 + b], kk, data_is_a)
        sc.flush()
        point(f"x{n}")

    def cm1(c, b):
        cmul_pack(a, fo(c, b), acc(c, b, 0), acc(c, b, 1), T1 + b * 8, T1 + b * 8 + 4, TMP + 8 * (2 * c + b))

    def cm2(c, b):
        cmul_pack(a, fo(c, b), acc(c, b, 0), acc(c, b, 1), WU[c] + b * 8, WU[c] + b * 8 + 4, TMP + 8 * (2 * c + b),
                  conj_w=True)

    exchange(1, False, cm1, unpack_w(1), [])
    exchange(2, True, cm2, unpack(WU[0], raw, 0, sK1), unpack(WU[1], raw, 1, sK1))
    for c in range(2):
        for u in range(2):
            cmul_pack(a, fo(c, u), acc(c, u, 0), acc(c, u, 1), T2 + u * 8, T2 + u * 8 + 4, TMP + 8 * (2 * c + u))
    while any(not callable(g[0]) and "lds" in g[0] or "store" in g[-1] for g in a.ops):
        a.burst(1)
    a.on = False
    for t in range(2):
        for c in range(2):
            for u in range(2):
                for var in range(2):
                    sc.mfma(acc(c, t, var), m1(t, u, var), fo(c, u), None if u == 0 else acc(c, t, var))
        rdy = sc.n + 2
        for rh in range(2):
            for c in range(2):
                for rl in range(2):
                    k = 4 * t + 2 * rh + rl
                    w = WU[c] + 2 * k
                    sc.add(f"v_fma_f32 v{w}, v{acc(c, t, 0) + 2 * rh + rl}, s{sB}, v{w}", rdy)
                    sc.add(f"v_fma_f32 v{w + 1}, v{acc(c, t, 1) + 2 * rh + rl}, s{sK0 if c else sK3}, v{w + 1}", rdy)
            for c in range(2):
                for rl in range(2):
                    k = 4 * t + 2 * rh + rl
                    w = WU[c] + 2 * k
                    sc.add(f"v_cvt_pk_bf16_f32 v{pos(raw, k, c)}, v{w}, v{w + 1}", rdy)
            k = 2 * t + rh
            for j in range(4):
                sc.add(f"v_add_u32 v{raw + 4 * k + j}, s{sC}, v{raw + 4 * k + j}", rdy)
            sc.add(f"buffer_store_dwordx4 {V(raw + 4 * k, 4)}, v{vx}, s[{SRD0}:{SRD0 + 3}], s{sF} offen offset:{k * 1024} sc1", rdy)
    sc.flush()
    point("st")
    n = len(a.ops)
    print(f"{nm}: {n} requests after the stores", file=sys.stderr)
    a.burst(n)
    mk.stash(a0, TMP)
    return n


def idle_phase(a, ph):
    nm = f"n{ph + 1}"
    vt0, vh = 12, 13
    if not ph:
        srd_ws(a, SRD0, "XP0", XP_SIZE)
    if FZ.ft_pf >> (1 - ph) & 1:
        srd_table(a, SRD1, "ft2")
        a(f"s_sub_u32 s{sA}, s{sT}, {NCOL}")
        a(f"s_lshr_b32 s{sA}, s{sA}, 3")
        a(f"s_mul_i32 s{sA}, s{sA}, {3 << 15}")
        a(f"v_lshl_add_u32 v{vh}, v0, 7, s{sA}")
        for k in range(3):
            a(f"s_mov_b32 s{sOP}, {k << 15}")
            a.raw(f"    buffer_load_dword {R(aDUM)}, v{vh}, s[{SRD1}:{SRD1 + 3}], s{sOP} offen")
    pre_setup(a, ph, vt0)
    if not ph:
        st = f0.post(a, SRDF, 0, 1, 20, "s_waitcnt vmcnt(0)", True)
        a("s_barrier")
        a(st)
        mk(a, nm + "ak")
        st = f0.post(a, SRDF, 0, 2, 24)
        front_wait(a, nm, 16)
        mk(a, nm + "dr")
    a("s_barrier")
    if not ph:
        a(st)
    for g in pre_ops(ph, vt0, nm):
        for x in g:
            x(a) if callable(x) else a(x)
    mk(a, nm + "is")
    a(f"v_mul_u32_u24 v{vh}, 5, v{vL}")
    a(f"v_lshrrev_b32 v{vh}, 1, v{vh}")
    a(f"v_lshlrev_b32 v{vh}, 7, v{vh}")
    a(f"s_mov_b32 s{sOP}, {HINT[ph]}")
    a("s_waitcnt vmcnt(0)")
    mk(a, nm + "dn")
    mk.stash(a, 16)
    if FZ.halt == 25 and ph:
        return
    a(f"s_cmp_lg_u32 s{sW}, 0")
    a(f"s_cbranch_scc1 {nm}_ok")
    a.label(f"{nm}_spin")
    a(f"buffer_load_dword v{vt0}, v{vh}, s[{SRDF}:{SRDF + 3}], s{sOP} offen sc1")
    budget(a, f"{nm}_ok")
    a(f"v_cmp_eq_u32 vcc, 0, v{vt0}")
    a(f"s_cbranch_vccnz {nm}_spin")
    a.label(f"{nm}_ok")
    a("s_barrier")


def classify(text):
    o = text.split()[0]
    if o.startswith("v_pk_") or o.startswith("v_dot2"):
        return "p", 4
    if o in TRANS or o.startswith("v_swap") or o.startswith("v_permlane"):
        return "v", 8
    if o.startswith("v_"):
        return "v", 4
    if o.startswith("ds_"):
        return "d", 4
    if o.startswith("buffer_"):
        return "b", 4
    if o.startswith("s_cbranch"):
        return "j", 10
    return "s", 4


class Item:
    def __init__(self, kind, cost, fn, key=None, gate=None, until=None, alt=None):
        self.kind, self.cost, self.fn, self.key, self.gate, self.until, self.alt = kind, cost, fn, key, gate, until, alt


class Slots:
    def __init__(self, a):
        self.a = a
        self.t, self.tM, self.tv, self.tc = 0, -100, -100, -100
        self.done, self.eta = {}, {}
        self.C, self.L, self.M, self.G = [], [], [], []
        self.fly = []
        self.feed = []
        self.pk = True
        self.stall = 0

    def item(self, op, key=None, gate=None, tag=None):
        k, c = classify(op)

        def fn():
            if op.startswith("v_cmp"):
                self.tc = self.t
            self.a(op, tag=tag)
        return Item(k, c, fn, key, gate)

    def mem(self, key, store=False, part=1.0):
        last = self.fly[-1] if self.fly else 0
        self.fly.append(max(self.t + FZ.lat, last + part * (FZ.srow if store else FZ.row)))
        self.eta[key] = self.fly[-1]
        if FZ.verbose:
            print(f"  {self.t:6.0f} issue {key} eta {self.fly[-1]:.0f} fly {self.inflight()}", file=sys.stderr)

    def inflight(self):
        return sum(1 for x in self.fly[-FZ.cap - 4:] if x > self.t)

    def run(self, it):
        if it.kind in "db":
            self.t = max(self.t, self.tv + 12)
        elif it.kind == "p":
            self.t = max(self.t, self.tM + 28)
        elif it.kind == "j":
            self.t = max(self.t, self.tc + 26)
        if it.kind in "vp":
            self.tv = self.t
        it.fn()
        self.t += it.cost
        if it.until is not None and self.eta.get(it.until, 0) > self.t:
            self.stall += self.eta[it.until] - self.t
            if FZ.verbose:
                print(f"  {self.t:6.0f} STALL {it.until} {self.eta[it.until] - self.t:.0f}", file=sys.stderr)
            self.t = self.eta[it.until]
        if it.key is not None:
            self.done[it.key] = self.t

    def ready(self, it):
        if it.kind == "j" and self.t < self.tc + 26:
            return False
        return it.gate is None or it.gate()

    def expand(self):
        while self.G and self.G[0].kind == "p" and not self.pk and self.G[0].alt:
            self.G[:1] = self.G[0].alt

    def heads(self, q, room, small):
        out = []
        for it in q:
            if it.kind == "p" or not self.ready(it) or it.cost > room or small and it.cost > 4:
                break
            if it.kind in "db" and any(x.kind == "v" for x in out) or it.kind == "j" and out:
                break
            out.append(it)
            room -= it.cost
        return out

    def place(self, picks):
        seqs = []
        for q, n in picks:
            seqs.append(q[:n])
            del q[:n]
        rank = lambda s: 0 if any(x.kind in "db" for x in s) else 2 if any(x.kind == "v" for x in s) else 1
        seqs.sort(key=lambda s: (rank(s), any(x.kind == "v" or x.until is not None for x in s)))
        for s in seqs:
            for it in s:
                self.run(it)

    def fill(self, room, streams, small=False):
        picks = []
        for q in streams:
            h = self.heads(q, room, small)
            if h:
                picks.append((q, len(h)))
                room -= sum(x.cost for x in h)
        return picks, room

    def mf(self, d, x, y, c, wait=None, urgent=False):
        self.t = self.tM = max(self.t, self.tM + 16)
        mfma(self.a, d, x, y, c)
        self.t += 8
        for f in self.feed:
            f()
        self.expand()
        W = [wait] if wait else []
        n = next((k for k, it in enumerate(self.G[:5]) if it.kind == "p"), None)
        if n is not None and self.pk:
            pre = self.G[:n + 1]
            cost = sum(x.cost for x in pre[:-1])
            if cost <= 16 and all(self.ready(x) and x.kind in "vps" for x in pre):
                picks, room = self.fill(20 - cost, (W, self.C, self.L, self.M), small=True)
                self.place(picks)
                while self.G and (n > 0 or self.G[0].kind == "p" and self.ready(self.G[0])):
                    self.run(self.G.pop(0))
                    n -= 1
                if self.G and self.G[0].kind in "vs" and self.G[0].until is None and self.ready(self.G[0]):
                    self.run(self.G.pop(0))
                else:
                    self.t += 4
                return
        if not W and self.C and self.C[0].cost >= 8 and self.ready(self.C[0]):
            self.run(self.C.pop(0))
            return
        picks, room = self.fill(8, (W, self.C, self.L, self.M, self.G), small=True)
        must = W or urgent or any(q is self.C for q, _ in picks)
        if room and not must and self.G and self.G[0].cost == 8 and self.ready(self.G[0]):
            self.run(self.G.pop(0))
            return
        self.place(picks)

    def need(self, key):
        while key not in self.done:
            q = next(q for q in (self.C, self.L, self.M, self.G) if any(it.key == key for it in q))
            self.run(q.pop(0))

    def pure(self, key):
        while key not in self.done:
            it = self.G.pop(0)
            self.run(it)
            if it.cost == 8:
                for f in self.feed:
                    f()
                picks, _ = self.fill(8, (self.M, self.L, self.C), small=True)
                self.place(picks)

    def flush(self):
        for q in (self.L, self.M, self.C, self.G):
            while q:
                self.run(q.pop(0))


def mlp_phase(a, final, behind):
    name = f"m{final + 1}"
    vx, vl0, vx2, vck, ve, vfl = 4, 5, 8, 9, 12, 14
    vq = (13, 4, 8, 10)
    X, ACC1, Z, vpl, vmk, CC = 16, 176, 232, 248, 249, 250
    GR, T = Z, Z + 8
    ACC2, EACC = 96, 176
    DIAG = (4, 6, 30, 70)
    sKC, sRS = sK0, sK2
    vo2, vs, vout, vor, vrd, vpk = 200, 201, 202, 203, 204, 205
    vred = (5, 6, 7)
    RES, RU, TMP = 208, 218, 244
    QS = (16, 32, 48, 64, 80, 176)
    QD = len(QS)
    SRDX, SRDH = SRD0, SRD3
    s = Slots(a)
    done = s.done
    act = {}
    log, sst, tested = [], {}, set()

    def fine(*key):
        if FZ.verbose:
            print(f"{s.t:6.0f} {key}", file=sys.stderr)
        if FZ.marks is not None:
            mk(a, name + key[0] + str(key[1]))
        for f in act.pop(key, ()):
            f()

    def at(key, f):
        act.setdefault(tuple(key), []).append(f)

    def note(tag):
        mk(a, name + tag)
        print(f"{name}{tag:4s} t={s.t:6.0f} stall={s.stall:.0f}", file=sys.stderr)

    def qreg(u, q):
        return QS[u % QD] + 4 * q

    def put(q, op, key=None, gate=None):
        q.append(s.item(op, key, gate))

    def vm(q, text, sreg=None, sexp=None, key=None, tag=None, again=True, gate=None, part=1.0, first=" sc1", m0=None):
        if m0 is not None and sst.get("m0") != m0:
            put(q, m0, gate=gate)
            sst["m0"] = m0
        if sreg is not None and sst.get(sreg) != sexp:
            put(q, sexp.replace("@", f"s{sreg}"), gate=gate)
            sst[sreg] = sexp

        def emit():
            a(text.replace("@", f"s{sreg}").replace(" sc1", first), tag=tag)
            log.append((key, text if again else None, sexp))
            s.mem(key, "store" in text, part)
        q.append(Item("b", 4, emit, key, gate))

    def wait_item(key, regs):
        return Item("s", 4, lambda: a.wait_regs(*regs), until=key)

    def lower(regs, thr):
        ops, r = [], [f"|v{x}|" for x in regs]
        while len(r) > 1:
            n = min(3, len(r))
            ops.append(f"{'v_min3_f32' if n == 3 else 'v_min_f32_e64'} v{vck}, " + ", ".join(r[:n]))
            r[:n] = [f"v{vck}"]
        return ops + [f"v_cmp_gt_f32 vcc, {fx(thr)}, v{vck}"]

    def unset(regs):
        ops, r = [], [f"v{x}" for x in regs]
        if len(r) > 2:
            n = len(r) - 1
            ops.append(f"{'v_max3_u32' if n == 3 else 'v_max_u32'} v{vck}, " + ", ".join(r[:n]))
            r[:n] = [f"v{vck}"]
        return ops + [f"v_cmp_u_f32 vcc, {r[0]}, {r[1]}"]

    def verify(keys, regs, test, lab, key):
        for k in keys:
            plan(k)

        def branch():
            idx = [k for k, e in enumerate(log) if e[0] in keys]
            rep = log[idx[0]:]
            assert len(idx) == len(keys) and not tested & {e[0] for e in rep}, lab
            tested.update(keys)
            young = len(log) - 1 - idx[-1]
            a(f"s_cbranch_vccnz {lab}_again", tag="nopad")
            a.label(f"{lab}_ok", keep=True)

            def stub():
                a.label(f"{lab}_again")
                a("s_nop 7")
                budget(a, f"{lab}_out")
                a(f"s_waitcnt vmcnt({max(0, 62 - len(rep))})")
                last = None
                for _, text, sexp in rep:
                    if text is None:
                        a.raw(f"    buffer_load_dword {R(aDUM)}, off, s[{SRDP}:{SRDP + 3}], 0")
                        continue
                    if sexp is not None and sexp != last:
                        a(sexp.replace("@", f"s{sRP}"))
                        last = sexp
                    a.raw("    " + text.replace("@", f"s{sRP}"))
                a(f"s_waitcnt vmcnt({young})")
                for x in test:
                    a(x)
                a(f"s_cbranch_vccnz {lab}_again")
                a.label(f"{lab}_out")
                a(f"s_branch {lab}_ok")
            a.tail.append(stub)
        w = wait_item(keys[-1], [V(r, 4) for r in regs])
        f0 = w.fn
        w.fn = lambda: ([s.need(k) for k in keys], f0())
        w.gate = lambda: all(k in done for k in keys)
        s.C.append(w)
        for x in test:
            put(s.C, x)
        s.C.append(Item("j", 10, branch, key))

    def xr(t, st):
        return X + t * 8 + st * 4

    def acc(ft, st):
        return ACC1 + (ft * 2 + st) * 4

    queue, sched = [], set()

    def x_load(t, h):
        return ("x", t, h), lambda key: vm(
            s.M, f"buffer_load_dwordx4 {V(xr(t, h), 4)}, v{vx2 if h else vx}, s[{SRDX}:{SRDX + 3}], @ offen sc1",
            sOQ, f"s_mov_b32 @, {8 * (19 - t) * XP_STR}", key, first=FZ.xf[final])

    def e_load(j):
        return ("e", j), lambda key: vm(
            s.M, f"buffer_load_dwordx4 v{vl0}, s[{SRD4}:{SRD4 + 3}], m0 offen offset:{(j & 3) * 1024} lds",
            key=key, tag="e", again=False, m0=f"s_add_u32 m0, s{sEB}, {2 * TILE + (j >> 2) * 4096}")

    def k_load(u, p):
        return ("k", u, p), lambda key: vm(
            s.M, f"buffer_load_dwordx4 v{vp}, s[{SRDP}:{SRDP + 3}], @ offen offset:{p * 256} lds",
            sF, f"s_mov_b32 @, {kblock(u) * KB_STR}", key, tag=f"k{u}", again=False,
            m0=f"s_add_u32 m0, s{sPK}, {(u - NP) * TILE + p * 768}")

    def p_load(u, p):
        return ("p", u, p), lambda key: vm(
            s.M, f"buffer_load_dwordx4 {R(preg(u, p), 4)}, v{vp}, s[{SRDP}:{SRDP + 3}], @ offen offset:{p * 256}",
            sF, f"s_mov_b32 @, {kblock(u) * KB_STR}", key)

    def q_load(u, q):
        return ("q", u, q), lambda key: vm(
            s.M, f"buffer_load_dwordx4 {V(qreg(u, q), 4)}, v{vq[q]}, s[{SRDQ}:{SRDQ + 3}], @ offen sc1",
            sOQ, f"s_mov_b32 @, {kblock(u) * H_STR}", key, first=FZ.qf[final])

    def r_load(p):
        srd_ = SRD2 if final else SRDX
        return ("r", p), lambda key: vm(
            s.M, f"buffer_load_dwordx2 {V(RES + 2 * p, 2)}, v{vo2}, s[{srd_}:{srd_ + 3}], @ offen sc1",
            sOP, f"s_mov_b32 @, {p * 4 * XP_STR}", key, part=0.6)

    def push(item, *gates, after=None, chain=None):
        queue.append((item[0], item[1], gates, after, chain))

    def issue(force=False):
        seen = set()
        for k, (key, f, gates, after, chain) in enumerate(queue):
            ok = all(g in done for g in gates) and chain not in seen
            if ok and after and not force:
                ok = done[after[0]] + after[1] <= s.t
            if ok:
                del queue[k]
                f(key)
                sched.add(key)
                return True
            if chain:
                seen.add(chain)
        return False

    def plan(key):
        while key not in sched:
            assert issue(True), key

    def feed_m():
        if not any(it.kind == "b" for it in s.M) and s.inflight() < FZ.cap:
            issue()
    s.feed.append(feed_m)

    KT = FZ.ktail
    units = [[(u, q) for q in range(4)] for u in range(NS - KT)]
    if FZ.split0:
        units[:1] = [units[0][:2], units[0][2:]]
    units += [[(u, q) for u in range(NS - KT, NS)] for q in (1, 2, 3, 0)]
    xorder = list(range(FZ.dbl[0] + 1)) + [19] + list(range(FZ.dbl[0] + 1, 19))
    for t in xorder:
        push(x_load(t, 0))
        push(x_load(t, 1))
    if final:
        for j in range(15):
            push(e_load(j), "ebar")
    for u in range(FZ.pre_p[final]):
        for p in range(5):
            done[("p", u, p)] = 0
            sched.add(("p", u, p))
    pushed = set(range(FZ.pre_p[final]))
    parked = set(range(NP, NP + FZ.park[final]))

    def push_p(u):
        if u < NS and u not in pushed:
            pushed.add(u)
            for p in range(5):
                if u in parked:
                    push(k_load(u, p), "xok" if u == NP else "ebar")
                else:
                    push(p_load(u, p), *(["xok"] if u < NP else [("xfree", 19)] if u == NP else [("qfree", u - NP - 1, 3)]))

    for u, q in [x for un in units for x in un]:
        for k in range(FZ.p_lead + 1):
            push_p(u + k)
        if (u, q) == (NS - KT, FZ.r_q):
            for p in range(5):
                push(r_load(p), "rgo")
        g = ["qset", ("gelu", u >> 1)] + ([] if final else ["ready"])
        if u >= QD:
            g.append(("qfree", u - QD, q))
        elif u < 5:
            g.append(("xfree", 2 * u + (q >> 1)))
        else:
            g.append("edone" if final else ("s5", 1))
        push(q_load(u, q), *g, after=(("gelu", u >> 1), FZ.qdel[final]), chain="q")

    a(f"s_lshl_b32 s{sC}, s{sRB}, 10")
    a(f"s_lshl_b32 s{sA}, s{sW}, 8")
    a(f"s_add_u32 s{sC}, s{sC}, s{sA}")
    a(f"v_lshlrev_b32 v{vx}, 15, v{vG}")
    a(f"v_lshl_add_u32 v{vx}, v{vI}, 4, v{vx}")
    a(f"v_add_u32 v{vx}, s{sC}, v{vx}")
    a(f"v_add_u32 v{vx2}, {XP_STR}, v{vx}")
    a(f"v_lshlrev_b32 v{vl0}, 4, v{vL}")
    a(f"v_add_u32 v{vl0 + 1}, 0x10000, v{vl0}")
    a(f"v_add_u32 v{vl0 + 2}, 0x20000, v{vl0}")
    a(f"s_mov_b64 s[{SRDH}:{SRDH + 1}], s[{SRDQ}:{SRDQ + 1}]")
    a(f"s_mov_b32 s{SRDH + 2}, {H_SIZE}")
    a(f"s_mov_b32 s{SRDH + 3}, 0x20000")
    a(f"v_cmp_eq_u32 vcc, 0, v{vG}")
    a(f"v_mov_b32 v{vmk}, 0xffff0000")
    a(f"v_cndmask_b32 v{vmk}, 0, v{vmk}, vcc")
    for r in range(4):
        m = 0x1000010000100001 << r
        a(f"s_mov_b32 s{DIAG[r]}, {m & 0xffffffff:#x}")
        a(f"s_mov_b32 s{DIAG[r] + 1}, {m >> 32:#x}")
    a(f"s_bfe_u32 s{sA}, s{sMM}, 0x10002")
    a(f"s_lshl_b32 s{sA}, s{sA}, 6")
    a(f"s_add_u32 s{sCQ}, s{sFL}, s{sA}")
    a(f"s_lshl4_add_u32 s{sD}, s{sW}, s{sCQ}")
    a(f"s_mul_i32 s{sA}, s{sW}, {54 * H_STR}")
    a(f"s_add_u32 s{SRDQ + 2}, s{sA}, {54 * H_STR}")
    a(f"s_lshl4_add_u32 s{sA}, s{sD}, s{sA}")
    a(f"v_lshrrev_b32 v{vq[0]}, 1, v{vG}")
    a(f"v_and_b32 v{vck}, 1, v{vG}")
    a(f"v_mad_u32_u24 v{vq[0]}, v{vq[0]}, 14, v{vck}")
    a(f"v_lshlrev_b32 v{vq[0]}, 15, v{vq[0]}")
    a(f"v_lshl_add_u32 v{vq[0]}, v{vI}, 4, v{vq[0]}")
    a(f"v_add_u32 v{vq[0]}, s{sA}, v{vq[0]}")
    a(f"v_xor_b32 v{vq[3]}, 0x300, v{vq[0]}")
    a(f"s_mov_b32 s{sKC}, {fx(H_OFF)}")
    a(f"s_mov_b32 s{sKC + 1}, {fx(H_OFF)}")
    a(f"s_mov_b32 s{sRS}, {fx(2.0 ** (-S_X[1] if final else -UP[0]))}")
    a(f"s_mov_b32 s{sRS + 1}, 0xffff0000")
    if final:
        srd_table(a, SRD4, "ft2")
        a(f"s_mul_i32 s{sB}, s{sMM}, 5")
        a(f"s_lshr_b32 s{sB}, s{sB}, 1")
        a(f"s_mul_i32 s{sA}, s{sB}, {TILE}")
        a(f"s_add_u32 s{SRD4}, s{SRD4}, s{sA}")
        a(f"s_addc_u32 s{SRD4 + 1}, s{SRD4 + 1}, 0")
        a(f"s_sub_u32 s{SRD4}, s{SRD4}, {2 * TILE}")
        a(f"s_subb_u32 s{SRD4 + 1}, s{SRD4 + 1}, 0")
        a(f"s_mov_b32 s{SRD4 + 2}, {5 * TILE}")
        a(f"s_lshl_b32 s{sA}, s{sB}, 16")
        a(f"s_add_u32 s{sA}, s{sA}, s{sC}")
        a(f"v_lshlrev_b32 v{ve}, 14, v{vG}")
        a(f"v_lshl_add_u32 v{ve}, v{vI}, 4, v{ve}")
        a(f"v_add_u32 v{ve}, s{sA}, v{ve}")
        srd_ws(a, SRD2, "X3", XP_SIZE)
        srd(a, SRD1, P_OUT, 0, SEQ * DM * 2)
        a(f"s_lshl_b32 s{sB}, s{sRB}, 13")
        a(f"s_lshl2_add_u32 s{sA}, s{sMM}, s{sW}")
        a(f"s_lshl_b32 s{sA}, s{sA}, 7")
        a(f"s_add_u32 s{sA}, s{sA}, s{sB}")
        a(f"v_lshl_add_u32 v{vpl}, v{vL}, 20, s{sA}")
        a(f"s_bfe_u32 s{sA}, s{sD}, 0x20005")
        a(f"s_lshl3_add_u32 s{sA}, s{sDC}, s{sA}")
        a(f"s_lshl_b32 s{sA}, s{sA}, 7")
        a(f"s_add_u32 s{sA}, s{sA}, s{sB}")
        a(f"v_and_b32 v{vfl}, 1, v{vI}")
        a(f"v_lshl_add_u32 v{vfl}, v{vfl}, 9, s{sA}")
    else:
        srd_ws(a, SRD1, "SS2", SS2_SIZE)
        a(f"s_lshl4_add_u32 s{sA}, s{sRB}, s{sMM}")
        a(f"s_lshl_b32 s{sA}, s{sA}, 7")
        a(f"s_add_u32 s{sA}, s{sA}, {READY}")
        a(f"v_lshl_add_u32 v{vpl}, v0, 20, s{sA}")
        a(f"s_lshl2_add_u32 s{sA}, s{sRB}, s{sW}")
        a(f"s_lshl_b32 s{sA}, s{sA}, 9")
        a(f"v_and_b32 v{vfl}, 3, v{vI}")
        a(f"v_lshl_add_u32 v{vfl}, v{vfl}, 7, s{sA}")
    a.raw(f"    s_waitcnt vmcnt({behind})")
    mk(a, name + "go")
    for _ in range(FZ.look):
        issue()
    s.flush()
    a("s_barrier")
    if not final:
        vm(s.M, f"buffer_store_dword v{vl0 + 1}, v{vpl}, s[{SRDF}:{SRDF + 3}], 0 offen sc1", again=False, part=0.2)
    mk.stash(a, Z)

    TA, TB, TE = (0, 1, 2, 3), (4, 5, 6), (0, 1, 2)
    groups = [("a", TA, t) for t in range(19)] + [("b", TB, t) for t in range(20)]
    groups.insert(19 + FZ.b_pre, ("a", TA, 19))
    if final:
        groups += [("e", TE, t) for t in range(20)]
    seq = [(kind, ft, t) for kind, tl, t in groups for ft in tl]
    rd_ = {"n": 0, "free": 0}

    def wreg(n):
        return WR + (n % NW) * 4

    def feed_l():
        while rd_["n"] < min(rd_["free"] + NW, len(seq)) and len(s.L) < 2:
            kind, ft, t = seq[rd_["n"]]
            if kind == "e" and "e0" not in done:
                return
            off = (ft + (2 if kind == "e" else 1)) * TILE + (19 - t) * 1024
            put(s.L, f"ds_read_b128 {R(wreg(rd_['n']), 4)}, v{vl0 + (off >> 16)} offset:{off & 0xffff}", ("rd", rd_["n"]))
            rd_["n"] += 1
    s.feed.append(feed_l)

    def rd_need(n):
        while ("rd", n) not in done:
            feed_l()
            if not s.L:
                s.need("e0")
                continue
            s.run(s.L.pop(0))

    def prep_x(ts):
        keys = [("x", t, h) for t in xorder if t in ts for h in range(2)]
        regs = [xr(k[1], k[2]) for k in keys]
        verify(keys, regs, lower(regs, T_X[final]), f"{name}_x{ts[0]}", "xok" if xorder[-1] in ts else None)
        for t in ts:
            ops = [f"v_swap_b32 v{xr(t, 0) + 2}, v{xr(t, 1)}", f"v_swap_b32 v{xr(t, 0) + 3}, v{xr(t, 1) + 1}"]
            if t == 19:
                for st in range(2):
                    if final:
                        ops.append(f"v_accvgpr_write_b32 {R(vdc + st)}, v{xr(t, st)}")
                    ops.append(f"v_bfi_b32 v{xr(t, st)}, v{vmk}, 0, v{xr(t, st)}")
            for op in ops[:-1]:
                put(s.C, op)
            put(s.C, ops[-1], ("sw", t))

    def gram(t, wait=None):
        s.need(("sw", t))
        for st in range(2):
            s.mf(GR + 4 * st, xr(t, st), xr(t, st), None if t == 0 else GR + 4 * st, wait if st else None)

    def stats():
        t0 = s.tM + 40
        ops = []
        for r in range(4):
            for st in range(2):
                prev = "0" if r == 0 else f"v{T + 2 * st}"
                ops.append(f"v_cndmask_b32_e64 v{T + 2 * st}, {prev}, v{GR + 4 * st + r}, s[{DIAG[r]}:{DIAG[r] + 1}]")
        for op in ("v_permlane32_swap_b32", "v_permlane16_swap_b32"):
            ops += [f"v_mov_b32 v{T + 2 * st + 1}, v{T + 2 * st}" for st in range(2)]
            ops += [f"{op} v{T + 2 * st}, v{T + 2 * st + 1}" for st in range(2)]
            ops += [f"v_add_f32 v{T + 2 * st}, v{T + 2 * st}, v{T + 2 * st + 1}" for st in range(2)]
        ops += [f"v_fmamk_f32 v{T + 2 * st}, v{T + 2 * st}, {fx((1 + EPS) / DM)}, v{T + 4}" for st in range(2)]
        ops += [f"v_rsq_f32 v{T + 2 * st + 1}, v{T + 2 * st}" for st in range(2)]
        ops += [f"v_mul_f32 v{CC + 4 + st}, v{T + 2 * st}, v{T + 2 * st + 1}" for st in range(2)]
        ops += [f"v_cvt_pk_bf16_f32 v{T + 2 * st}, v{CC + 4 + st}, v{CC + 4 + st}" for st in range(2)]
        ops += [f"v_bfi_b32 v{xr(19, st)}, v{vmk}, v{T + 2 * st}, v{xr(19, st)}" for st in range(2)]
        late = [f"v_mul_f32 v{CC + st}, {fx(GELU_K0)}, v{T + 2 * st + 1}" for st in range(2)]
        late += [f"v_mul_f32 v{T + 2 * st}, v{T + 2 * st + 1}, v{T + 2 * st + 1}" for st in range(2)]
        late += [f"v_mul_f32 v{T + 2 * st}, {fx(0.044715)}, v{T + 2 * st}" for st in range(2)]
        late += [f"v_mul_f32 v{CC + 2 + st}, v{CC + st}, v{T + 2 * st}" for st in range(2)]
        if not final:
            late += [f"v_mul_f32 v{CC + 4 + st}, {fx(2.0 ** -S_LO)}, v{CC + 4 + st}" for st in range(2)]
        put(s.G, f"v_mov_b32 v{T + 4}, {fx(EPS * EPS * 4.0 ** S_X[final])}")
        put(s.G, f"v_xor_b32 v{vq[1]}, 0x100, v{vq[0]}")
        put(s.G, f"v_xor_b32 v{vq[2]}, 0x200, v{vq[0]}", "qset")
        put(s.G, ops[0], gate=lambda: s.t >= t0)
        for op in ops[1:-1]:
            put(s.G, op)
        put(s.G, ops[-1], "stats")
        for op in late:
            put(s.G, op)

    def poll(key, off):
        lab = f"{name}_{key}"
        text = f"buffer_load_dword v{vmk}, v{vfl}, s[{SRDF}:{SRDF + 3}], @ offen sc1"
        test = f"v_cmp_eq_u32 vcc, 0, v{vmk}"

        def branch():
            a(f"s_cbranch_vccnz {lab}_spin", tag="nopad")
            a.label(f"{lab}_ok", keep=True)

            def spin():
                a.label(f"{lab}_spin")
                a(f"s_mov_b32 s{sRP}, {off}")
                a(text.replace("@", f"s{sRP}"))
                a("s_waitcnt vmcnt(0)")
                budget(a, f"{lab}_ok")
                a(test)
                a(f"s_cbranch_vccnz {lab}_spin")
                a(f"s_branch {lab}_ok")
            a.tail.append(spin)

        def check():
            s.C.append(wait_item(("i", key), [f"v{vmk}"]))
            put(s.C, test)
            s.C.append(Item("j", 10, branch, key))
        return (lambda: vm(s.C, text, sE, f"s_mov_b32 @, {off}", ("i", key), again=False, part=0.2)), check

    if final:
        ix, cx = poll("rgo", PX)

        def signal():
            s.C.append(Item("s", 4, lambda: a.wait_tag("x3"), until="x3"))
            vm(s.C, f"buffer_store_dword v{vl0 + 1}, v{vpl}, s[{SRDF}:{SRDF + 3}], @ offen sc1", sE, f"s_mov_b32 @, {PX}",
               again=False, part=0.2)

        def e_ok():
            plan(("e", 14))
            s.C.append(Item("s", 4, lambda: (s.need(("e", 14)), a.wait_tag("e")), until=("e", 14),
                            gate=lambda: ("e", 14) in done))
            put(s.C, "s_barrier", "e0")
        at(("b", FZ.e_ok), e_ok)
        at(FZ.x3[0], signal)
        at(FZ.x3[1], ix)
        at(FZ.x3[2], lambda: (s.need("oset"), cx()))
    else:
        i_, c_ = poll("ready", READY)
        at(FZ.rd_at[0], lambda: (s.need("stats"), i_()))
        at(FZ.rd_at[1], c_)
        at(FZ.res_at, lambda: (s.need("oset"), done.setdefault("rgo", s.t)))

    at(("b", FZ.b_pre + FZ.ebar), lambda: put(s.C, "s_barrier", "ebar"))

    post = []

    def gelu(ft):
        Zs = Z + 8 * (ft & 1)
        prs = [(acc(ft, st) + h, Zs + st * 4 + h, st) for st in range(2) for h in (0, 2)]
        t0 = s.tM + 40

        def stage(pk, plain, key=None, gate=None):
            for n, (x, z, st) in enumerate(prs):
                k = key if n == 3 else None
                sel = f"op_sel:[0,{st},{st}] op_sel_hi:[1,{st},{st}]"
                it = s.item(pk.format(x=V(x, 2), z=V(z, 2), sel=sel), k, gate)
                it.alt = [s.item(plain.format(x=V(x + e), z=V(z + e), c0=V(CC + st), c2=V(CC + 2 + st), c4=V(CC + 4 + st)),
                                 k if e else None, gate) for e in range(2)]
                s.G.append(it)

        stage("v_pk_mul_f32 {z}, {x}, {x}", "v_mul_f32 {z}, {x}, {x}", gate=lambda: s.t >= t0)
        stage("v_pk_fma_f32 {z}, {z}, %s, %s {sel}" % (V(CC + 2, 2), V(CC, 2)), "v_fma_f32 {z}, {z}, {c2}, {c0}")
        stage("v_pk_mul_f32 {z}, {z}, {x}", "v_mul_f32 {z}, {z}, {x}")
        close()
        for k in range(8):
            put(s.G, f"v_exp_f32 v{Zs + k}, v{Zs + k}")
        stage("v_pk_fma_f32 {z}, {z}, %s, %s {sel}" % (V(CC + 4, 2), V(CC + 4, 2)), "v_fma_f32 {z}, {z}, {c4}, {c4}")
        for k in range(8):
            put(s.G, f"v_rcp_f32 v{Zs + k}, v{Zs + k}")
        if final:
            stage("v_pk_fma_f32 {z}, {z}, {x}, s[%d:%d]" % (sKC, sKC + 1), "v_fma_f32 {z}, {z}, {x}, s%d" % sKC, ("s5", ft))
        else:
            stage("v_pk_mul_f32 {z}, {z}, {x}", "v_mul_f32 {z}, {z}, {x}", ("s5", ft))

        def out():
            for k in range(4):
                put(s.G, f"v_cvt_pk_bf16_f32 v{Zs + k}, v{Zs + 2 * k}, v{Zs + 2 * k + 1}")
            if ft == 6:
                put(s.G, f"v_add_u32 v{vo}, s{sMSK}, v{vo}")
            put(s.G, f"v_permlane16_swap_b32 v{Zs}, v{Zs + 2}")
            put(s.G, f"v_permlane16_swap_b32 v{Zs + 1}, v{Zs + 3}")
            vm(s.G, f"buffer_store_dwordx4 {V(Zs, 4)}, v{vo}, s[{SRDH}:{SRDH + 3}], @ offen sc1", sHO,
               f"s_mov_b32 @, {ft * 2 * H_STR}", ("gelu", ft), again=False, first=FZ.hf)
        post.append(out)

    def close():
        while post:
            post.pop()()

    def out_setup():
        g = lambda op, key=None: put(s.G, op, key)
        g(f"v_lshl_add_u32 v{vpk}, v{vL}, 4, s{sPK}", "vpk")
        g(f"s_mul_i32 s{sGA}, s{sDC}, {20 * XP_STR}")
        g(f"s_lshl3_add_u32 s{sGA}, s{sD}, s{sGA}")
        g(f"v_lshlrev_b32 v{vo2}, 14, v{vG}")
        g(f"v_lshl_add_u32 v{vo2}, v{vI}, 3, v{vo2}")
        g(f"v_add_u32 v{vo2}, s{sGA}, v{vo2}", "oset")
        g(f"v_lshrrev_b32 v{vor}, 1, v{vG}")
        g(f"s_mov_b32 s{sGA}, {0x3f800000 + (0x3f80 if final else (127 + S_LO) << 7):#x}")
        g(f"v_mul_lo_u32 v{vor}, v{vor}, s{sGA}", "vor")
        g(f"v_lshl_add_u32 v{vrd}, v{vL}, 4, s{sEB}")
        for ql in (1, 2, 3):
            g(f"s_xor_b32 s{sGA}, s{sW}, {ql}")
            g(f"s_mul_i32 s{sGA}, s{sGA}, 15360")
            if ql > 1:
                g(f"s_add_u32 s{sGA}, s{sGA}, {(ql - 1) * 5120}")
            g(f"v_lshl_add_u32 v{vred[ql - 1]}, v{vL}, 4, s{sGA}")
        if final:
            g(f"s_bfe_u32 s{sGA}, s{sD}, 0x10004")
            g(f"s_lshl_b32 s{sGA}, s{sGA}, 3")
            g(f"s_lshr_b32 s{sGB}, s{sD}, 9")
            g(f"s_lshl4_add_u32 s{sGA}, s{sGB}, s{sGA}")
            g(f"s_bfe_u32 s{sGB}, s{sD}, 0x20005")
            g(f"s_lshl_b32 s{sGB}, s{sGB}, 8")
            g(f"s_add_u32 s{sGA}, s{sGA}, s{sGB}")
            g(f"s_and_b32 s{sGB}, s{sD}, 128")
            g(f"s_add_u32 s{sGA}, s{sGA}, s{sGB}")
            g(f"s_and_b32 s{sGB}, s{sD}, 256")
            g(f"s_lshl2_add_u32 s{sGA}, s{sGB}, s{sGA}")
            g(f"v_and_b32 v{vout}, 1, v{vI}")
            g(f"v_lshlrev_b32 v{vout}, 6, v{vout}")
            g(f"v_lshrrev_b32 v{vs}, 1, v{vI}")
            g(f"v_add3_u32 v{vout}, v{vout}, v{vs}, s{sGA}")
            g(f"v_mul_u32_u24 v{vout}, 1280, v{vout}")
            g(f"s_mul_i32 s{sGA}, s{sDC}, 160")
            g(f"v_lshl_add_u32 v{vout}, v{vG}, 3, v{vout}")
            g(f"v_add_u32 v{vout}, s{sGA}, v{vout}", "setup")
        else:
            g(f"v_lshrrev_b32 v{vs}, 1, v{vI}")
            g(f"v_lshlrev_b32 v{vs}, 4, v{vs}")
            g(f"v_and_b32 v{vout}, 1, v{vI}")
            g(f"v_lshl_add_u32 v{vs}, v{vout}, 2, v{vs}")
            g(f"v_and_b32 v{vout}, 1, v{vG}")
            g(f"v_lshl_add_u32 v{vs}, v{vout}, 3, v{vs}")
            g(f"v_lshrrev_b32 v{vout}, {0 if FZ.x_nocnt else 1}, v{vG}")
            g(f"v_lshl_add_u32 v{vs}, v{vout}, 20, v{vs}")
            g(f"s_lshl_b32 s{sGA}, s{sD}, 3")
            g(f"v_add_u32 v{vs}, s{sGA}, v{vs}")
            g(f"v_add_u32 v{vout}, s{sDC}, v{vG}")
            g(f"v_min_u32 v{vout}, 1, v{vout}")
            g(f"v_mul_u32_u24 v{vout}, 0xffff, v{vout}")
            g(f"v_lshlrev_b32 v{vout}, 16, v{vout}")
            g(f"v_or_b32 v{vout}, 0xffff, v{vout}")
            g(f"v_mov_b32 v{TMP + 2}, 0")
            g(f"v_mov_b32 v{TMP + 3}, 0")
            g(f"s_mov_b64 s[{DIAG[0]}:{DIAG[0] + 1}], 0xffff")
            g(f"s_mov_b32 s{sGB}, {-S_LO * 0x800080:#x}", "setup")

    gl, rest = {}, xorder[1:]
    for t in range(19):
        n = 2 if t in FZ.dbl else 1
        gl[t], rest = sorted(rest[:n]), rest[n:]
    rd_need(NW - 1)
    prep_x([0])
    n = 0

    def grp_wait(k):
        nx = sum(len(g[1]) for g in groups[:k + 1]) - 1
        if k >= len(groups):
            return None
        return Item("s", 4, lambda: (rd_need(nx), a.wait_regs(R(wreg(nx), 4))))

    gram(0, grp_wait(0))
    for k, (kind, tl, t) in enumerate(groups):
        fine(kind, t)
        grams = gl.get(t, []) if kind == "a" else []
        if kind == "a" and t == 19:
            s.need("stats")
        if kind == "e" and t == 0:
            s.need(("s5", 2))
            for st in range(2):
                put(s.C, f"v_accvgpr_read_b32 v{xr(19, st)}, {R(vdc + st)}", ("dc", st))
        if kind == "e" and t == 19:
            s.need(("dc", 1))
        hi = sum(len(g[1]) for g in groups[:k + 2])
        for j, ft in enumerate(tl):
            for st in range(2):
                if grams and 2 * j + st == (FZ.xc_at if len(grams) == 1 else 0):
                    prep_x(grams)
                d = (EACC if kind == "e" else ACC1) + (ft * 2 + st) * 4
                last = j == len(tl) - 1 and st and not grams
                if st:
                    rd_["free"] = n + 1
                s.mf(d, wreg(n), xr(t, st), None if t == 0 else d, grp_wait(k + 1) if last else None,
                     urgent=rd_["n"] - len(s.L) < hi)
            n += 1
        for g in grams:
            gram(g, grp_wait(k + 1) if g == grams[-1] else None)
        if grams and xorder[-1] in grams:
            stats()
        if kind == ("e" if final else "b"):
            done[("xfree", t)] = s.t
        if kind == "a" and t == 19:
            note("A")
            for ft in TA:
                gelu(ft)
            close()
            if FZ.pure[final]:
                s.pure(("gelu", FZ.pure[final] - 1))
        if kind == "b" and t == 19:
            for ft in TB:
                gelu(ft)
            close()
            if FZ.in_b[final]:
                s.pure(("gelu", FZ.in_b[final] - 1))
    if final:
        note("E")
        t0 = s.tM + 40
        for et in TE:
            d = EACC + et * 8
            for k in range(4):
                put(s.C, f"v_cvt_pk_bf16_f32 v{d + k}, v{d + 2 * k}, v{d + 2 * k + 1}", gate=lambda: s.t >= t0)
            vm(s.C, f"buffer_store_dwordx4 {V(d, 4)}, v{ve}, s[{SRD2}:{SRD2 + 3}], @ offen sc1",
               sE, f"s_mov_b32 @, {et * 4 * XP_STR}", {1: "edone", 2: "x3"}.get(et), tag="x3", again=False)
        epi, s.C = s.C, []
        s.pure(("gelu", FZ.in_e - 1))
    out_setup()
    s.pk = bool(FZ.g2pk[final])
    mk.stash(a, vck)

    def accr(p, q):
        return ACC2 + (q * 5 + p) * 4

    def q_check(n):
        keys = [("q",) + x for x in units[n]]
        regs = [qreg(*x) for x in units[n]]
        fix = [f"v_or_b32 v{qreg(u, q)}, v{qreg(u, q)}, v{vor}" for u, q in units[n] if u == NS - 1]
        if fix:
            s.need("vor")
        verify(keys, regs, fix + (lower(regs, T_H) if final else unset(regs)), f"{name}_q{n}", ("qok", n))

    def writes(q):
        t0 = s.tM + 40
        s.need("setup")
        for p in range(5):
            put(s.L, f"ds_write_b128 v{vred[q - 1]}, {R(accr(p, q), 4)} offset:{p * 1024}", ("wr", q, p),
                gate=lambda p=p: s.t >= max(t0 - 16 * (4 - p), t0 - 40 + FZ.wgap * p))

    def reads(q, k):
        for p in range(5):
            put(q, f"ds_read_b128 {R(accr(p, k), 4)}, v{vrd} offset:{(k - 1) * 5120 + p * 1024}")

    def res_ops():
        plan(("r", 4))
        w = wait_item(("r", 4), [V(RES, 10)])
        w.gate = lambda: s.eta.get(("r", 4), 1e9) <= s.t
        f0 = w.fn
        w.fn = lambda: (s.need(("r", 4)), f0())
        s.G.append(w)
        for p in range(5):
            for h in range(2):
                u_, r, d = RU + 2 * h, RES + 2 * p + h, accr(p, 0) + 2 * h
                put(s.G, f"v_lshlrev_b32 v{u_}, 16, v{r}")
                put(s.G, f"v_and_b32 v{u_ + 1}, s{sRS + 1}, v{r}")
                put(s.G, f"v_fmac_f32 v{d}, s{sRS}, v{u_}")
                put(s.G, f"v_fmac_f32 v{d + 1}, s{sRS}, v{u_ + 1}", ("res", p) if h else None)

    def unpark(u):
        ok = lambda: "vpk" in done and ("k", u, 4) in done and s.eta[("k", u, 4)] <= s.t
        plan(("k", u, 4))
        s.L.append(Item("s", 4, lambda: (s.need("vpk"), s.need(("k", u, 4)), a.wait_tag(f"k{u}")), until=("k", u, 4), gate=ok))
        for p in range(5):
            put(s.L, f"ds_read_b128 {R(preg(u, p), 4)}, v{vpk} offset:{(u - NP) * TILE + p * 1024}", ("p", u, p))
            sched.add(("p", u, p))

    def g_bar():
        for u in parked:
            s.need(("p", u, 4))
        put(s.C, "s_waitcnt lgkmcnt(0)")
        put(s.C, "s_barrier")

    for u in parked:
        at(("g", u - NP), lambda u=u: unpark(u))
    at(("g", FZ.gbar), g_bar)
    def post_at(where):
        if not final and FZ.post == where:
            vm(s.C, f"buffer_store_dword v{vl0 + 1}, v{vpl}, s[{SRDF}:{SRDF + 3}], @ offen sc1", sE,
               f"s_mov_b32 @, {POST - READY}", key="post",
               again=False, part=0.2)
            s.need("post")

    q_check(0)
    if final:
        if FZ.split0:
            q_check(1)
        s.C += epi
    seen = set()
    for n, un in enumerate(units):
        tailq = un[0][1] if len({u for u, _ in un}) > 1 or KT == 1 and un[0][0] == NS - 1 else None
        s.need(("qok", n))
        left = 5 * len(un)
        if tailq == 1:
            res_ops()
        if tailq == 0:
            s.need(("wr", 2, 4))
            put(s.C, "s_waitcnt lgkmcnt(0)")
            put(s.C, "s_barrier", "bar1")
            s.need("bar1")
            post_at("bar1")
            writes(3)
            reads(s.L, 1)
            reads(s.L, 2)
        elif tailq is not None and tailq > 1:
            writes(tailq - 1)
        for u, q in un:
            if u not in seen:
                fine("g", u)
                if u == 1:
                    note("g1")
                for p in range(5):
                    plan(("p", u, p))
                    s.need(("p", u, p))
                seen.add(u)
            for p in range(5):
                if left == min(FZ.qc_rem, 5 * len(un)) and n + 1 < len(units) and not (final and FZ.split0 and n == 0):
                    q_check(n + 1)
                if tailq == 0:
                    s.need(("res", p))
                if s.eta.get(("p", u, p), 0) > s.t:
                    s.stall += s.eta[("p", u, p)] - s.t
                    if FZ.verbose:
                        print(f"  {s.t:6.0f} STALL p {u} {p} {s.eta[('p', u, p)] - s.t:.0f}", file=sys.stderr)
                    s.t = s.eta[("p", u, p)]
                s.mf(accr(p, q), preg(u, p), qreg(u, q), None if u == 0 else accr(p, q))
                left -= 1
            done[("qfree", u, q)] = s.t
    s.flush()
    assert not queue and not act, (queue, act)
    a("s_waitcnt lgkmcnt(0)")
    a("s_barrier")
    reads(s.L, 3)
    s.flush()
    post_at("bar2")
    for p in range(5):
        for h in (0, 2):
            a(f"v_pk_add_f32 {V(accr(p, 1) + h, 2)}, {V(accr(p, 1) + h, 2)}, {V(accr(p, 2) + h, 2)}")
    for p in range(5):
        for h in (0, 2):
            a(f"v_pk_add_f32 {V(accr(p, 0) + h, 2)}, {V(accr(p, 0) + h, 2)}, {V(accr(p, 1) + h, 2)}")
    for p in range(5):
        r = accr(p, 0)
        for h in (0, 2):
            a(f"v_pk_add_f32 {V(r + h, 2)}, {V(r + h, 2)}, {V(accr(p, 3) + h, 2)}")
        a(f"v_cvt_pk_bf16_f32 v{r}, v{r}, v{r + 1}")
        a(f"v_cvt_pk_bf16_f32 v{r + 1}, v{r + 2}, v{r + 3}")
        if final:
            a(f"buffer_store_dwordx2 {V(r, 2)}, v{vout}, s[{SRD1}:{SRD1 + 3}], 0 offen offset:{p * 32}")
        else:
            a(f"s_mov_b32 s{sOP}, {p * 4 * XP_STR}")
            a(f"buffer_store_dwordx2 {V(r, 2)}, v{vo2}, s[{SRDX}:{SRDX + 3}], s{sOP} offen sc1")
    if not final:
        for p in range(5):
            r = accr(p, 0)
            for h in range(2):
                a(f"v_add_u32 v{r + 2 + h}, s{sGB}, v{r + h}")
            if p == 0:
                a(f"v_and_b32 v{r + 2}, v{vout}, v{r + 2}")
        for p in range(5):
            for h in range(2):
                r = accr(p, 0) + 2 + h
                a(f"v_dot2c_f32_bf16 v{TMP + 2 + h}, v{r}, v{r}")
        z = TMP + 2
        a(f"v_add_f32 v{z}, v{z}, v{z + 1}")
        for op in ("v_permlane32_swap_b32", "v_permlane16_swap_b32"):
            a(f"v_mov_b32 v{z + 1}, v{z}")
            a(f"{op} v{z}, v{z + 1}")
            a(f"v_add_f32 v{z}, v{z}, v{z + 1}")
        a(f"v_cndmask_b32_e64 v{z}, 1.0, v{z}, s[{DIAG[0]}:{DIAG[0] + 1}]")
        a(f"{FZ.x_op} v{z}, v{vs}, s[{SRD1}:{SRD1 + 3}], 0 offen sc1".replace("-", "_"), tag="out")
    post_at("end")
    mk(a, name + "end")


def role_fused(a):
    if Cfg.stamp:
        mk.names.append("start")
        mk.pend.append(0)
    f0.front(a, mk.fixed)
    decode(a)
    mk.stash(a, 4)
    for ph in range(0 if FZ.halt == 10 else 2):
        a(f"s_cmp_ge_u32 s{sT}, {NCOL}")
        a(f"s_cbranch_scc1 idle{ph}", tag="nopad")
        pend = list(mk.pend)

        def idle(ph=ph, pend=pend):
            keep, mk.pend = mk.pend, pend
            a.label(f"idle{ph}")
            idle_phase(a, ph)
            a(f"s_branch join{ph}")
            mk.pend = keep
        a.tail.append(idle)
        n = col_phase(a, ph)
        a.label(f"join{ph}")
        if FZ.halt == 2 * ph + 1 or FZ.halt == 25 and ph:
            break
        mlp_phase(a, ph, n)
        if FZ.halt == 2 * ph + 2:
            break
    if Cfg.stamp:
        a("s_waitcnt vmcnt(0)")
        mk(a, "drain")
        mk.stash(a, 4)
        a(f"v_writelane_b32 v4, s{sCNT}, 63")
        srd_ws(a, SRD0, "STAMP", 1 << 21)
        a(f"s_lshl_b32 s{sA}, s2, 10")
        a(f"s_add_u32 s{sA}, s{sA}, {1 << 20}")
        a(f"v_lshl_add_u32 v5, v0, 2, s{sA}")
        a(f"buffer_store_dword v4, v5, s[{SRD0}:{SRD0 + 3}], 0 offen")
    return 160 * 1024


def tables():
    L = []
    c = np.sqrt(2.0 / DM) * np.cos(2 * np.pi * np.arange(DM) / DM)
    c[160] = 0
    c[480] = 0
    bits = model.bf16_bits(c.astype(np.float32))
    for n in range(DM):
        L.append(f".set cq{n}, {bits[n]}")
    bb = int(model.bf16_bits(np.float32([np.sqrt(1 / DM)]))[0])
    k2 = model2.kmap()
    L.append(".altmacro")
    L.append(".macro e8 a,b,c,d,e,f,g,h\n.short cq\\a, cq\\b, cq\\c, cq\\d, cq\\e, cq\\f, cq\\g, cq\\h\n.endm")
    L.append(".macro e6 a,b,c,d,e,f\n.short cq\\a, cq\\b, cq\\c, cq\\d, cq\\e, cq\\f\n.endm")
    L.append(".p2align 12\nft2:\n.set tt, 0\n.rept 40")
    for kb in range(80):
        L.append(".set td, tt\n.rept 16")
        ent = [f"%(({k2[4 * kb + j // 2]}*td+{160 * (j & 1)})%640)" for j in range(8)]
        if kb == 0:
            L.append(f".short {bb}+((td&1)<<15), {bb}")
            L.append("e6 " + ", ".join(ent[2:]))
        else:
            L.append("e8 " + ", ".join(ent))
        L.append(".set td, td+1\n.endr")
    L.append(".set tt, tt+16\n.endr\n.noaltmacro")
    return "\n".join(L) + "\n"


if __name__ == "__main__":
    f0.FC.xscale = S_LO
    for opt in sys.argv[2:]:
        if opt == "stamp":
            Cfg.stamp = True
        else:
            k, v = opt.split("=", 1)
            tgt = [c for c in (FZ, f0.FC, Cfg) if hasattr(c, k)][0]
            v = eval(v)
            sp = lambda x: x.replace("_", " ") if isinstance(x, str) else tuple(map(sp, x)) if isinstance(x, tuple) else x
            setattr(tgt, k, sp(v))
    txt = generate([("mk_kernel", [(256, role_fused)])], tables)
    if Cfg.stamp:
        txt = txt.replace(".amdgcn_target", ("; clk\n" if FZ.clk else "") + f"; halt {FZ.halt}\n; marks " + " ".join(mk.names)
                          + "\n.amdgcn_target", 1)
    if FZ.single:
        txt = txt.replace("@launch kernel=mk_kernel ", "@launch ")
        txt = txt.replace("mk_kernel", "interleave_layers__spectral_gfnet__mixer_channel_mlp__prompt_kernel")
    open(sys.argv[1], "w").write(txt)
```

```python
from gen import *
import model2
from p0 import Sched, fx

SCALE = float(np.sqrt(2.0 / DM))
SIGN2 = 0x80008000
REGB = 24576
FB = SS2_SIZE
READY, POST, HINT, DONE2, DONE = 4 << 15, 5 << 15, (6 << 15, 7 << 15), 8 << 15, 9 << 15
XCC = "hwreg(HW_REG_XCC_ID, 0, 3)"
W2TOP = 252
aF, aD, aB, aDUM = 256 + 254, 256 + 255, 256 + 251, 256 + 253


class FC:
    fl_ld = " nt"
    fl_l2 = " nt"
    fl_l1 = ""
    fl_f = ""
    fs = (" sc1",) * 5
    xscale = 0
    code_pf = 1
    c_early = 3
    rot = 1
    t_pre = 6
    w_early = 5
    early = (0, 1)
    w2_pre = 1


def lane_blocks(a, v, t, base):
    a(f"v_and_b32 v{v}, 31, v{vL}")
    a(f"v_bfe_u32 v{t}, v{vL}, 5, 1")
    a(f"v_lshl_add_u32 v{v}, v{t}, 7, v{v}")
    a(f"v_lshl_add_u32 v{v}, s{sW}, 5, v{v}")
    a(f"v_lshlrev_b32 v{v}, 7, v{v}")
    a(f"v_add_u32 v{v}, {base + DONE}, v{v}")


def post(a, srd_, base, step, t, wait=None, both=False):
    a(f"s_getreg_b32 s{sB}, {XCC}")
    a(f"s_add_u32 s{sB}, s{sB}, {8 * step}")
    a(f"s_lshl_b32 s{sA}, s3, 7")
    a(f"s_add_u32 s{sA}, s{sA}, {base + DONE}")
    if both:
        a(f"v_lshrrev_b32 v{t + 2}, 1, v0")
        a(f"v_lshl_add_u32 v{t + 2}, v{t + 2}, 20, s{sA}")
        a(f"v_and_b32 v{t}, 1, v0")
        a(f"v_lshlrev_b32 v{t + 1}, 15, v{t}")
        a(f"v_sub_u32 v{t + 2}, v{t + 2}, v{t + 1}")
    else:
        a(f"v_lshl_add_u32 v{t + 2}, v0, 20, s{sA}")
    if wait:
        a(wait)
    a(f"v_accvgpr_read_b32 v{t + 1}, {R(aD)}")
    a(f"v_and_b32 v{t + 1}, -8, v{t + 1}")
    a(f"v_add_u32 v{t + 1}, s{sB}, v{t + 1}")
    if both:
        a(f"v_or_b32 v{t + 1}, v{t}, v{t + 1}")
    return f"buffer_store_dword v{t + 1}, v{t + 2}, s[{srd_}:{srd_ + 3}], 0 offen sc1"


def front(a, mark):
    name = "f"
    vld, vr, vo = 4, 5, 9
    MK, M1, M2, M2N = 10, 14, 15, 16
    vph, vk0, vq20, vgf = 17, 18, 19, 35
    ACC1, A1, A2, Y, ACCX = 20, 36, 96, 144, 168
    TMP = Y
    DAT = 176
    sQ, sFT, sKD, sSC = sK0, sK1, 96, 97
    KINDS = ("x", "w1", "w2")
    NX = 0 if FC.early[0] else 3
    lbase = {"x": 0, "w1": 0, "w2": REGB}

    def frag(beta, j):
        return DAT + (beta * 5 + j) * 4

    a("s_cmp_ge_u32 s2, 8")
    a(f"s_cbranch_scc1 {name}_npf")
    if FC.code_pf:
        srd_code(a, SRD5, "mk_kernel")
        a(f"v_lshlrev_b32 v{vld}, 7, v0")
        for k in range(3):
            a(f"s_mov_b32 s{sOP}, {k << 15}")
            a.raw(f"    buffer_load_dword {R(aDUM)}, v{vld}, s[{SRD5}:{SRD5 + 3}], s{sOP} offen")
    a(f"s_add_u32 s{sT}, s2, 160")
    a.label(f"{name}_npf")
    a(f"s_sub_u32 s{sT}, s{sT}, 8")
    a("s_cmp_ge_u32 s2, 160")
    a(f"s_cselect_b32 s3, s2, s{sT}")
    a(f"s_lshl_b32 s{sE}, s{sW}, 10")
    a("s_cmp_ge_u32 s3, 128")
    a(f"s_cbranch_scc1 {name}_pb")

    def row_addr(v, t):
        a(f"s_and_b32 s{sA}, s{sW}, 1")
        a(f"s_lshl_b32 s{sA}, s{sA}, 1")
        a(f"s_xor_b32 s{sA}, s{sA}, s{sW}")
        a(f"s_lshl_b32 s{sA}, s{sA}, 2")
        a(f"v_or_b32 v{t}, s{sA}, v{vG}")
        a(f"v_xor_b32 v{t}, v{t}, v{vI}")
        a(f"v_mul_u32_u24 v{v}, 1280, v{v}")
        a(f"v_lshl_add_u32 v{v}, v{t}, 4, v{v}")

    def row_issue(v, fl, base):
        for j in range(5):
            a(f"s_add_u32 m0, s{sE}, {base + j * 4096 - j * 256}")
            a(f"buffer_load_dwordx4 v{v}, s[{SRD0}:{SRD0 + 3}], 0 offen offset:{j * 256}{fl} lds")

    def sync_start(part=3):
        t, z = TMP, TMP + 4
        if part & 1:
            sync_addr(t, z)
        if part & 2:
            srd_ws(a, SRD3, "SS2", SS2_SIZE + FLAG_SIZE)
            a(f"buffer_load_dword {R(aF)}, v{t}, s[{SRD3}:{SRD3 + 3}], 0 offen{FC.fl_f}")
            a(f"buffer_load_dword {R(aD)}, off, s[{SRD3}:{SRD3 + 3}], s{sOQ}{FC.fl_f}")
            a(f"buffer_store_dwordx4 {V(z, 4)}, v{t + 3}, s[{SRD3}:{SRD3 + 3}], 0 offen sc1")

    def sync_addr(t, z):
        lane_blocks(a, t, t + 1, FB)
        a(f"s_lshl_b32 s{sA}, s3, 2")
        a(f"v_and_or_b32 v{t + 3}, v0, 3, s{sA}")
        a(f"v_bfe_u32 v{t + 1}, v0, 2, 1")
        a(f"v_mad_u32_u24 v{t + 2}, v{t + 1}, 3, 4")
        a(f"v_lshlrev_b32 v{t + 3}, v{t + 2}, v{t + 3}")
        a(f"v_lshl_add_u32 v{t + 3}, v{t + 1}, 14, v{t + 3}")
        a(f"v_lshrrev_b32 v{t + 1}, 3, v0")
        a(f"v_lshl_add_u32 v{t + 3}, v{t + 1}, 20, v{t + 3}")
        for k in range(4):
            a(f"v_mov_b32 v{z + k}, 0")
        a(f"s_lshl_b32 s{sA}, s3, 7")
        a(f"s_add_u32 s{sOQ}, s{sA}, {FB + DONE}")
        a(f"s_add_u32 s{sA}, s{sA}, {FB + READY - (8 << 15)}")
        a(f"v_lshl_add_u32 v{t + 1}, v0, 15, s{sA}")
        a(f"v_subrev_u32 v{t + 2}, 8, v0")
        a(f"v_cmp_gt_u32 s[{sK2}:{sK3}], 5, v{t + 2}")
        a(f"v_cndmask_b32_e64 v{t + 3}, v{t + 3}, v{t + 1}, s[{sK2}:{sK3}]")

    def w2_setup(v, t):
        a(f"s_lshl_b32 s{sC}, s{sT}, 4")
        a(f"s_cmp_eq_u32 s{sT}, 108")
        a(f"s_cselect_b32 s{sC}, 0, s{sC}")
        a(f"s_lshl2_add_u32 s{sC}, s{sW}, s{sC}")
        a(f"v_add_u32 v{v}, s{sC}, v{vG}")
        row_addr(v, t)
        a("s_waitcnt lgkmcnt(0)")
        a(f"s_cmp_eq_u32 s{sT}, 108")
        a(f"s_mov_b32 s{SRD0 + 2}, {FF * DM * 2}")
        a(f"s_mov_b32 s{SRD0 + 3}, 0x20000")
        a(f"s_cselect_b32 s{SRD0 + 2}, {DM * 2}, s{SRD0 + 2}")
        a(f"s_cselect_b32 s{SRD0}, s{P_B2}, s{P_W2}")
        a(f"s_cselect_b32 s{SRD0 + 1}, s{P_B2 + 1}, s{P_W2 + 1}")
        a(f"s_and_b32 s{SRD0 + 1}, s{SRD0 + 1}, 0xffff")

    REG = 5248

    def filter_setup():
        a(f"s_bfe_u32 s{sA}, s3, 0x20001")
        a(f"s_lshl_b32 s{sC}, s{sA}, 7")
        a(f"s_lshr_b32 s{sA}, s3, 5")
        a(f"s_lshl_b32 s{sA}, s{sA}, 9")
        a(f"s_add_u32 s{sC}, s{sC}, s{sA}")
        a(f"s_and_b32 s{sA}, s3, 8")
        a(f"s_lshl3_add_u32 s{sC}, s{sA}, s{sC}")
        a(f"s_and_b32 s{sA}, s3, 16")
        a(f"s_add_u32 s{sC}, s{sC}, s{sA}")
        a(f"s_and_b32 s{sA}, s3, 1")
        a(f"s_lshl3_add_u32 s{sC}, s{sA}, s{sC}")
        a(f"s_and_b32 s{sA}, s{sW}, 2")
        a(f"s_lshl4_add_u32 s{sC}, s{sA}, s{sC}")
        a(f"s_mul_i32 s{sC}, s{sC}, 642")
        a(f"s_add_u32 s{sD}, s{sC}, 4096")
        a(f"s_mul_i32 s{sF}, s{sW}, {REG}")
        a(f"s_mov_b32 s{SRD0 + 2}, {SEQ * 642}")
        a(f"s_add_u32 m0, s{sF}, {REGB}")
        a(f"s_bitcmp1_b32 s{sW}, 0")
        a(f"s_cselect_b32 s{SRD0}, s{P_WI}, s{P_WR}")
        a(f"s_cselect_b32 s{SRD0 + 1}, s{P_WI + 1}, s{P_WR + 1}")
        a(f"s_and_b32 s{SRD0 + 1}, s{SRD0 + 1}, 0xffff")

    def filter_loads(js):
        a(f"v_lshlrev_b32 v{vld}, 4, v{vL}")
        for j in js:
            if j == 4:
                a(f"s_add_u32 m0, s{sF}, {REGB + 4096}")
            if j == 5:
                a("s_mov_b64 exec, 1")
            a(f"buffer_load_dwordx4 v{vld}, s[{SRD0}:{SRD0 + 3}], s{sC if j < 4 else sD} offen offset:{(j & 3) * 1024}{FC.fl_ld} lds")
            if j == 5:
                a("s_mov_b64 exec, -1")

    a(f"s_and_b32 s{sC}, s{sT}, 1")
    a(f"s_lshl_b32 s{sC}, s{sC}, 3")
    a(f"s_lshr_b32 s{sA}, s{sT}, 5")
    a(f"s_lshl4_add_u32 s{sC}, s{sA}, s{sC}")
    a(f"s_bfe_u32 s{sA}, s{sT}, 0x20001")
    a(f"s_lshl_b32 s{sA}, s{sA}, 8")
    a(f"s_add_u32 s{sC}, s{sC}, s{sA}")
    a(f"s_and_b32 s{sA}, s{sT}, 8")
    a(f"s_lshl4_add_u32 s{sC}, s{sA}, s{sC}")
    a(f"s_and_b32 s{sA}, s{sT}, 16")
    a(f"s_lshl_b32 s{sA}, s{sA}, 6")
    a(f"s_add_u32 s{sC}, s{sC}, s{sA}")
    a(f"s_lshl1_add_u32 s{sC}, s{sW}, s{sC}")
    a(f"v_and_b32 v{vld}, 1, v{vG}")
    a(f"v_lshlrev_b32 v{vld}, 6, v{vld}")
    a(f"v_lshrrev_b32 v{vr + 1}, 1, v{vG}")
    a(f"v_add3_u32 v{vld}, v{vld}, v{vr + 1}, s{sC}")
    row_addr(vld, vr)
    if FC.early[0]:
        sync_start(1)
    a("s_waitcnt lgkmcnt(0)")
    srd(a, SRD0, P_X, 0, SEQ * DM * 2)
    row_issue(vld, FC.fl_ld, 0)
    if FC.early[0]:
        sync_start(2)
    filter_setup()
    filter_loads(range(FC.c_early))
    mark(a, "l1")
    srd_ws(a, SRD1, "XP0", XP_SIZE)
    a(f"s_mov_b32 s{sKD}, 0")
    a(f"s_branch {name}_gen")

    a.label(f"{name}_pb")
    a(f"s_sub_u32 s{sT}, 255, s3")
    a(f"s_and_b32 s{sA}, s{sT}, 7")
    a(f"s_lshr_b32 s{sB}, s{sT}, 5")
    a(f"s_lshl3_add_u32 s{sA}, s{sB}, s{sA}")
    a(f"s_bfe_u32 s{sB}, s{sT}, 0x20003")
    a(f"s_lshl2_add_u32 s{sFT}, s{sA}, s{sB}")
    a(f"s_and_b32 s{sA}, s3, 7")
    a(f"s_bfe_u32 s{sB}, s3, 0x10003")
    a(f"s_lshl1_add_u32 s{sA}, s{sA}, s{sB}")
    a(f"s_add_u32 s{sA}, s{sA}, 92")
    a(f"s_cmp_lt_u32 s{sFT}, 92")
    a(f"s_cselect_b32 s{sFT}, s{sFT}, 108")
    a("s_cmp_lt_u32 s3, 144")
    a(f"s_cselect_b32 s{sFT}, s{sA}, s{sFT}")
    a(f"s_sub_u32 s{sT}, {W2TOP}, s3")
    a(f"s_min_u32 s{sT}, s{sT}, 112")
    a(f"s_cmp_ge_u32 s{sFT}, 108")
    a(f"s_cbranch_scc1 {name}_p2")
    a(f"s_and_b32 s{sA}, s{sW}, 1")
    a(f"s_lshl_b32 s{sA}, s{sA}, 2")
    a(f"v_lshrrev_b32 v{vld}, 1, v{vL}")
    a(f"v_xor_b32 v{vld}, s{sA}, v{vld}")
    a(f"v_mul_u32_u24 v{vld}, {FF * 2}, v{vld}")
    a(f"v_and_b32 v{vr}, 1, v{vL}")
    a(f"v_lshl_add_u32 v{vld}, v{vr}, 4, v{vld}")
    a(f"s_mul_i32 s{sA}, s{sW}, {32 * FF * 2}")
    a(f"s_lshl_b32 s{sB}, s{sFT}, 5")
    a(f"s_add_u32 s{sA}, s{sA}, s{sB}")
    a(f"v_add_u32 v{vld}, s{sA}, v{vld}")
    if FC.early[1]:
        sync_start(1)
    a("s_waitcnt lgkmcnt(0)")
    if FC.early[1] == 1:
        sync_start(2)
    srd(a, SRD0, P_W1, 0, DM * FF * 2)
    if FC.rot:
        a(f"s_and_b32 s{sC}, s{sFT}, 3")

    def w1_loads(js):
        for j in js:
            if FC.rot:
                a(f"s_lshl_b32 s{sA}, s{sC}, 12")
                a(f"s_add_u32 m0, s{sE}, s{sA}")
                a(f"s_mul_i32 s{sOP}, s{sC}, {128 * FF * 2}")
            else:
                a(f"s_add_u32 m0, s{sE}, {j * 4096}")
                a(f"s_mov_b32 s{sOP}, {j * 128 * FF * 2}")
            a(f"buffer_load_dwordx4 v{vld}, s[{SRD0}:{SRD0 + 3}], s{sOP} offen{FC.fl_l1} lds")
            if FC.rot and j < 4:
                a(f"s_add_u32 s{sC}, s{sC}, 1")
                a(f"s_cmp_eq_u32 s{sC}, 5")
                a(f"s_cselect_b32 s{sC}, 0, s{sC}")
            if j == 4:
                srd(a, SRD2, P_B1, 0, FF * 2)
                a(f"v_lshl_add_u32 v{vld}, v{vI}, 1, s{sB}")
                a(f"buffer_load_ushort {R(aB)}, v{vld}, s[{SRD2}:{SRD2 + 3}], 0 offen")

    w1_loads(range(FC.w_early))
    if FC.early[1] == 2:
        sync_start(2)
    mark(a, "l1")
    srd_ws(a, SRD1, "W1F", W1F_SIZE)
    a(f"s_mov_b32 s{sKD}, 1")
    a(f"s_branch {name}_gen")
    a.label(f"{name}_p2")
    w2_setup(vld, vr)
    row_issue(vld, FC.fl_l2, REGB)
    mark(a, "l1")
    sync_start()
    a(f"s_mov_b32 s{sKD}, 2")

    va0, va1, va2, vc, vt, LD, ST = 10, 11, 12, 13, 17, 176, 216
    k0, k1, k2 = 98, 99, 100

    def filter_addr():
        vo = vc
        srd_ws(a, SRD4, "WC", WC_SIZE)
        a(f"v_bfe_u32 v{vt}, v{vL}, 3, 1")
        a(f"v_lshlrev_b32 v{vt}, 2, v{vt}")
        a(f"v_add_u32 v{vt}, v{vt}, v{vG}")
        a(f"s_cmp_lt_u32 s{sW}, 2")
        a(f"s_cselect_b32 s{k0}, 1, -1")
        a(f"s_mul_i32 s{sA}, s{k0}, 80")
        a(f"s_mul_i32 s{sB}, s{k0}, 40")
        a(f"v_mul_i32_i24 v{va0}, s{sA}, v{vt}")
        a(f"v_and_b32 v{vt}, 7, v{vL}")
        a(f"v_mul_u32_u24 v{va1}, 642, v{vt}")
        a(f"v_add_u32 v{va0}, v{va0}, v{va1}")
        a(f"s_mul_i32 s{k1}, s{sW}, 5")
        a(f"s_sub_u32 s{k2}, 325, s{k1}")
        a(f"s_cmp_lt_u32 s{sW}, 2")
        a(f"s_cselect_b32 s{k2}, s{k1}, s{k2}")
        a(f"s_lshl_b32 s{k2}, s{k2}, 1")
        a(f"v_add_u32 v{va0}, s{k2}, v{va0}")
        a(f"v_add_u32 v{va1}, s{sB}, v{va0}")
        a(f"v_cmp_gt_u32 vcc, 8, v0")
        a(f"v_add_u32 v{va2}, 640, v{va0}")
        a(f"v_cndmask_b32 v{va2}, v{va0}, v{va2}, vcc")
        a(f"v_lshrrev_b32 v{vo}, 3, v{vL}")
        a(f"v_lshlrev_b32 v{vo}, 14, v{vo}")
        a(f"v_lshl_add_u32 v{vo}, v{vt}, 4, v{vo}")
        a(f"s_lshl_b32 s{sA}, s3, 7")
        a(f"s_lshr_b32 s{sB}, s{sW}, 1")
        a(f"s_lshl_b32 s{sB}, s{sB}, 17")
        a(f"s_add_u32 s{sA}, s{sA}, s{sB}")
        a(f"v_add_u32 v{vo}, s{sA}, v{vo}")
        a(f"s_sub_u32 s{k2}, s{k1}, 5")
        a(f"s_cmp_lt_u32 s{sW}, 2")
        a(f"s_cselect_b32 s{k1}, s{k1}, s{k2}")

    def filter_job():
        vo = vc
        a("s_barrier")
        mark(a, "b2")
        for n in range(5):
            for rl in range(2):
                for ph in range(2):
                    ad = va1 if ph else (va2 if n == 0 else va0)
                    for ar in range(2):
                        a(f"ds_read_u16 v{LD + n * 8 + (rl * 2 + ph) * 2 + ar}, v{ad} offset:{REGB + (rl * 2 + ar) * REG + 2 * n}")
        for n in range(5):
            for k in range(4):
                a(f"v_lshl_or_b32 v{ST + 4 * n + k}, v{LD + n * 8 + 2 * k + 1}, 16, v{LD + n * 8 + 2 * k}")
            if n == 0:
                a(f"s_cmp_eq_u32 s{k1}, 10")
                a(f"s_cselect_b32 s{sOP}, 0, s{k1}")
                a(f"s_lshl_b32 s{sOP}, s{sOP}, 18")
            else:
                a(f"s_add_i32 s{k1}, s{k1}, s{k0}")
                a(f"s_lshl_b32 s{sOP}, s{k1}, 18")
            a(f"buffer_store_dwordx4 {V(ST + 4 * n, 4)}, v{vo}, s[{SRD4}:{SRD4 + 3}], s{sOP} offen{FC.fs[1]}")

    a.label(f"{name}_gen")
    a(f"s_mov_b32 s{sSC}, {fx(SCALE)}")
    a(f"s_cmp_eq_u32 s{sKD}, 0")
    a(f"s_cselect_b32 s{sSC}, {fx(SCALE * 2.0 ** FC.xscale)}, s{sSC}")
    a(f"v_bfe_u32 v{TMP}, v{vI}, 1, 1")
    a(f"v_lshlrev_b32 v{TMP}, 4, v{TMP}")
    a(f"v_mov_b32 v{TMP + 1}, 0xffff")
    a(f"v_lshlrev_b32 v{TMP}, v{TMP}, v{TMP + 1}")
    a(f"v_lshrrev_b32 v{TMP + 1}, 2, v{vI}")
    for k in range(4):
        a(f"v_cmp_eq_u32 vcc, {k}, v{TMP + 1}")
        a(f"v_cndmask_b32 v{MK + k}, 0, v{TMP}, vcc")
    a(f"v_and_b32 v{M2}, 1, v{vI}")
    a(f"v_cvt_f32_u32 v{vph}, v{M2}")
    a(f"v_mul_f32 v{vph}, 0.5, v{vph}")
    a(f"v_lshrrev_b32 v{vk0}, 1, v{vI}")
    a(f"v_cvt_f32_u32 v{vk0}, v{vk0}")
    a(f"v_mul_f32 v{vk0}, {fx(1 / 32)}, v{vk0}")
    a(f"v_cvt_f32_u32 v{vgf}, v{vG}")

    def gen_a1(base, fq, ph):
        t = TMP
        a(f"v_fma_f32 v{t}, v{vgf}, v{fq}, {ph}")
        for j in range(1, 5):
            a(f"v_fmamk_f32 v{t + j}, v{fq}, {fx(4.0 * j)}, v{t}")
        for j in range(5):
            a(f"v_cos_f32 v{t + j}, v{t + j}")
        for j in range(5):
            a(f"v_mul_f32 v{t + j}, s{sSC}, v{t + j}")
        for j in range(5):
            a(f"v_cvt_pk_bf16_f32 v{t + j}, v{t + j}, v{t + j}")
        for j in range(5):
            for k in range(4):
                a(f"v_and_b32 v{base + 4 * j + k}, v{MK + k}, v{t + j}")

    def angles(kf, ph):
        t = TMP
        a(f"v_mul_f32 v{t + 8}, v{vgf}, v{kf}")
        a(f"v_fma_f32 v{t}, v{t + 8}, 2.0, v{ph}")
        for k in range(1, 8):
            c = 16 * (k >> 2) + 8 * ((k >> 1) & 1) + (k & 1)
            a(f"v_fmamk_f32 v{t + k}, v{kf}, {fx(float(c))}, v{t}")

    def entry(pre, kind):
        if kind != "x":
            a.label(f"{pre}_{kind}")
        if kind == "w2":
            a("s_waitcnt vmcnt(3)")
            a.label(f"{pre}_w2b")
            srd_ws(a, SRD1, "WA2", WA2_SIZE)
        else:
            mark(a, "gen")
        par["even"] = True

    def leave(pre, kind, n):
        if kind == "w1":
            mark(a, "j1")
            a(f"s_cmp_gt_u32 s{sT}, 108")
            a(f"s_cbranch_scc1 {name}_end")
            a(f"s_waitcnt vmcnt({n})")
            a(f"s_branch {pre}_w2b")
        else:
            a(f"s_branch {name}_xend" if kind == "x" else f"s_branch {name}_end")

    def addresses(kind):
        if kind == "x":
            filter_loads(range(FC.c_early, 6))
            filter_addr()
        if kind == "w1":
            w1_loads(range(FC.w_early, 5))
            a(f"v_and_b32 v{vr}, 1, v{vG}")
            a(f"v_lshlrev_b32 v{vr}, 7, v{vr}")
            a(f"v_lshl_add_u32 v{vr}, v{vG}, 10, v{vr}")
            a(f"v_lshl_add_u32 v{vr}, v{vI}, 3, v{vr}")
            a(f"v_xor_b32 v{vr + 1}, 128, v{vr}")
        else:
            a(f"v_and_b32 v{vr}, 4, v{vI}")
            a(f"v_lshlrev_b32 v{vr}, 1, v{vr}")
            a(f"v_xor_b32 v{vr}, v{vr}, v{vI}")
            a(f"v_lshlrev_b32 v{vr + 1}, 2, v{vG}")
            a(f"v_xor_b32 v{vr}, v{vr}, v{vr + 1}")
            a(f"v_lshlrev_b32 v{vr}, 4, v{vr}")
            a(f"v_lshl_add_u32 v{vr}, v{vI}, 8, v{vr}")
            for k in (1, 2, 3):
                a(f"v_xor_b32 v{vr + k}, {16 * k}, v{vr}")
        if kind == "x":
            a(f"v_and_b32 v{vld}, 1, v{vI}")
            a(f"v_lshl_add_u32 v{vo}, v{vG}, 1, v{vld}")
            a(f"v_lshlrev_b32 v{vo}, 14, v{vo}")
            a(f"v_and_b32 v{vld}, 14, v{vI}")
            a(f"v_lshl_add_u32 v{vo}, v{vld}, 3, v{vo}")
            a(f"s_lshl_b32 s{sA}, s{sQ}, 18")
            a(f"s_lshl_b32 s{sB}, s{sT}, 7")
            a(f"s_mov_b32 vcc_lo, 0x55555555")
            a(f"s_mov_b32 vcc_hi, 0x55555555")
        elif kind == "w1":
            a(f"v_lshlrev_b32 v{vo}, 4, v{vL}")
            a(f"s_lshl_b32 s{sA}, s{sQ}, 11")
            a(f"s_mul_i32 s{sB}, s{sFT}, 20480")
        else:
            a(f"v_lshrrev_b32 v{vo}, 1, v{vG}")
            a(f"v_mul_u32_u24 v{vo}, {KB_STR}, v{vo}")
            a(f"v_lshrrev_b32 v{vld}, 2, v{vI}")
            a(f"v_lshl_add_u32 v{vo}, v{vld}, 7, v{vo}")
            a(f"v_and_b32 v{vld}, 3, v{vI}")
            a(f"v_lshl_add_u32 v{vo}, v{vld}, 4, v{vo}")
            a(f"v_and_b32 v{vld}, 1, v{vG}")
            a(f"v_lshl_add_u32 v{vo}, v{vld}, 6, v{vo}")
            a(f"s_lshl_b32 s{sA}, s{sQ}, 10")
            a(f"s_mul_i32 s{sB}, s{sT}, {2 * KB_STR}")
        a(f"s_add_u32 s{sA}, s{sA}, s{sB}")
        a(f"v_add_u32 v{vo}, s{sA}, v{vo}")

    def reads(kind, first):
        if kind == "x":
            if not FC.early[0]:
                sync_start()
            mark(a, "l2")
            a("s_waitcnt vmcnt(9)")
        elif kind == "w1":
            w2_setup(ACCX, ACCX + 1)
            if not FC.early[1]:
                sync_start()
            if FC.w2_pre:
                row_issue(ACCX, FC.fl_l2, REGB)
            mark(a, "l2")
            a(f"s_waitcnt vmcnt({5 * FC.w2_pre + (0 if FC.early[1] == 1 else 3)})")
        a("s_barrier")
        mark(a, "b2" if kind == "w2" else "b1")
        for beta in range(4):
            for j in range(5):
                if kind == "w1":
                    for eh in range(2):
                        a(f"ds_read_b64_tr_b16 {R(frag(beta, j) + 2 * eh, 2)}, v{vr + eh} offset:{4096 * j + 256 * beta}")
                else:
                    a(f"ds_read_b128 {R(frag(beta, j), 4)}, v{vr + beta} offset:{lbase[kind] + 4096 * j}")
        if kind == "w1" and not FC.w2_pre:
            row_issue(ACCX, FC.fl_l2, REGB)

    def dispatch(pre):
        for kind in KINDS[1:]:
            a(f"s_cmp_eq_u32 s{sKD}, {kind[-1]}")
            a(f"s_cbranch_scc1 {pre}_{kind}")

    def stage1(sc, n, extra=None):
        for beta in range(4):
            c = 4 * n + beta
            acc = ACC1 + 4 * (c % 4)
            for j in range(5):
                sc.mfma(acc, A1 + 20 * n + 4 * j, frag(beta, j), None if j == 0 else acc,
                        needs=[("y", c - 4)] if j == 0 and c >= 4 else [])
            rdy = sc.n + 5
            if extra:
                extra(beta, acc, rdy, ("y", c))
            for h in range(2):
                sc.add(f"v_cvt_pk_bf16_f32 v{Y + 2 * c + h}, v{acc + 2 * h}, v{acc + 2 * h + 1}", rdy, ("y", c))

    par = {"even": True}
    QP = "quad_perm:[1,0,3,2] row_mask:0xf bank_mask:0xf"

    def stage2(kind, sc, n, u, mat, acc, needs, fix=None):
        for tl in range(2):
            for kp in range(2):
                d = acc + 4 * tl
                m, y = mat + (tl * 2 + kp) * 4, Y + 8 * n + 4 * kp
                nd = list(needs) + [("y", 4 * n + 2 * kp), ("y", 4 * n + 2 * kp + 1)]
                if kind == "w2":
                    sc.mfma(d, y, m, None if kp == 0 else d, needs=nd)
                else:
                    sc.mfma(d, m, y, None if kp == 0 else d, needs=nd)
        rdy, key = sc.n + 3, ("o", n, u)
        if fix:
            fix(rdy, key)
        for k in range(4):
            sc.add(f"v_cvt_pk_bf16_f32 v{acc + k}, v{acc + 2 * k}, v{acc + 2 * k + 1}", rdy, key)
        if kind == "x":
            for ph in range(2):
                lo = par["even"]
                for k in range(2):
                    if lo:
                        sc.add(f"v_cndmask_b32_dpp v{acc + 4 + k}, v{acc + 2 + k}, v{acc + k}, vcc {QP}", rdy, key)
                    else:
                        sc.add(f"v_cndmask_b32_dpp v{acc + 6 + k}, v{acc + k}, v{acc + 2 + k}, vcc {QP}", rdy, key)
                if ph == 0:
                    sc.add("s_not_b64 vcc, vcc", rdy, key)
                    par["even"] = not lo

            def st():
                a(f"s_mov_b32 s{sOP}, {(16 * n + 8 * u) * XP_STR}")
                a(f"buffer_store_dwordx4 {V(acc + 4, 4)}, v{vo}, s[{SRD1}:{SRD1 + 3}], s{sOP} offen{FC.fs[0]}")
            sc.add(st, rdy, key)
        elif kind == "w1":
            def st():
                a(f"s_mov_b32 s{sOP}, {(2 * n + u) * 1024}")
                a(f"buffer_store_dwordx4 {V(acc, 4)}, v{vo}, s[{SRD1}:{SRD1 + 3}], s{sOP} offen{FC.fs[2]}")
            sc.add(st, rdy, key)
        else:
            sc.add(f"v_permlane16_swap_b32 v{acc}, v{acc + 2}", rdy, key)
            sc.add(f"v_permlane16_swap_b32 v{acc + 1}, v{acc + 3}", rdy, key)
            sc.add(f"buffer_store_dwordx4 {V(acc, 4)}, v{vo}, s[{SRD1}:{SRD1 + 3}], 0 offen offset:{1024 * n + 512 * u}{FC.fs[3]}",
                   rdy, key)

    a(f"s_cmp_eq_u32 s{sW}, 3")
    a(f"s_cbranch_scc1 {name}_sp")

    a(f"s_mul_i32 s{sQ}, s{sW}, 3")
    a(f"s_add_u32 s{sQ}, s{sQ}, 1")
    a(f"v_mul_f32 v{vph}, 0.5, v{vph}")
    a(f"v_cvt_f32_u32 v{vq20}, s{sQ}")
    a(f"v_fmamk_f32 v{vk0}, v{vq20}, {fx(1 / 640)}, v{vk0}")
    a(f"v_mul_f32 v{vq20}, {fx(1 / 20)}, v{vq20}")
    a(f"v_mul_u32_u24 v{M2}, 0x8000, v{M2}")
    a(f"v_lshl_or_b32 v{M2}, v{M2}, 16, v{M2}")
    a(f"v_xor_b32 v{M2N}, {SIGN2:#x}, v{M2}")
    a(f"v_and_b32 v{M1}, 1, v{vG}")
    a(f"v_mul_u32_u24 v{M1}, 0x8000, v{M1}")
    a(f"v_lshl_or_b32 v{M1}, v{M1}, 16, v{M1}")
    for n in range(3):
        if n:
            a(f"v_add_f32 v{vk0}, {fx(1 / 640)}, v{vk0}")
            a(f"v_add_f32 v{vq20}, {fx(1 / 20)}, v{vq20}")
        gen_a1(A1 + 20 * n, vq20, f"v{vph}")
        angles(vk0, vph)
        for k in range(8):
            a(f"v_sin_f32 v{TMP + 8 + k}, v{TMP + k}")
            a(f"v_cos_f32 v{TMP + k}, v{TMP + k}")
        b = A2 + 16 * n
        for k in range(8):
            a(f"v_cvt_pk_bf16_f32 v{b + k}, v{TMP + k}, v{TMP + 8 + k}")
            if k & 1:
                a(f"v_cvt_pk_bf16_f32 v{b + 8 + k}, -v{TMP + 8 + k}, v{TMP + k}")
        for k in range(8):
            a(f"v_xor_b32 v{b + 8 + k}, v{M1}, v{b + (8 if k & 1 else 0) + k}")
    dispatch(f"{name}_t")
    for kind in KINDS:
        entry(f"{name}_t", kind)
        addresses(kind)
        reads(kind, True)
        sc = Sched(a)
        dm = [256 + 16 * n if kind == "w1" else A1 + 20 * n for n in range(3)]

        def keep(beta, acc, rdy, key, n):
            for k in range(4 * beta, 4 * beta + 4):
                sc.add(f"v_xor_b32 v{MK + (k & 3)}, v{M2N if k & 1 else M2}, v{A2 + 16 * n + k}", -1, ("d", n))
            for k in range(4 * beta, 4 * beta + 4):
                sc.add(f"v_accvgpr_write_b32 {R(dm[n] + k)}, v{MK + (k & 3)}", -1, ("d", n))

        for n in range(3):
            if kind == "w1":
                stage1(sc, n, lambda *x: keep(*x, n))
                continue
            stage1(sc, n)
            for k in range(16):
                sc.add(f"v_xor_b32 v{A1 + 20 * n + k}, v{M2N if k & 1 else M2}, v{A2 + 16 * n + k}", sc.n, ("d", n))
        if kind == "w2":
            st = post(a, SRD3, FB, 1, MK, "s_waitcnt vmcnt(0)")
            a(f"s_lshl_b32 s{sA}, s{sKD}, 19")
            a(f"s_and_b32 s{sA}, s{sA}, {1 << 20}")
            a(f"v_add_u32 v{MK + 2}, s{sA}, v{MK + 2}")
            a("s_barrier")
            a(st)
            mark(a, "p1")
        bufs = [ACCX, ACC1, ACC1 + 8]
        hist = [[], [("y", 8), ("y", 9)], [("y", 10), ("y", 11)]]
        for k in range(6):
            n, u = divmod(k, 2)
            needs = hist[k] if k < 3 else [("o",) + divmod(k - 3, 2)]
            if u:
                needs = needs + [("d", n)]
            stage2(kind, sc, n, u, dm[n] if u else A2 + 16 * n, bufs[k % 3], needs)
        sc.flush()
        if kind == "x":
            a(f"s_waitcnt vmcnt({6 + NX})")
        leave(f"{name}_t", kind, 6)

    a.label(f"{name}_sp")
    a(f"s_mov_b32 s{sQ}, 0")
    gen_a1(A1, vph, "0")
    a(f"v_mul_f32 v{vph}, 0.5, v{vph}")
    kf, ph = vq20, M1
    for tau in range(4):
        if tau == 0:
            a(f"v_cmp_eq_u32 vcc, 0, v{vI}")
            a(f"v_mov_b32 v{kf}, 0.5")
            a(f"v_cndmask_b32 v{kf}, v{vk0}, v{kf}, vcc")
            a(f"v_cmp_gt_u32 vcc, 2, v{vI}")
            a(f"v_mov_b32 v{ph}, {fx(0.125)}")
            a(f"v_cndmask_b32 v{ph}, v{vph}, v{ph}, vcc")
        else:
            a(f"v_add_f32 v{kf}, {fx(tau / 4 + (10 / 640 if tau >= 2 else 0))}, v{vk0}")
            a(f"v_mul_f32 v{ph}, {'-1.0' if tau >= 2 else '1.0'}, v{vph}")
        angles(kf, ph)
        for k in range(8):
            a(f"v_cos_f32 v{TMP + k}, v{TMP + k}")
        for k in range(8):
            d = A2 + 8 * tau + k
            a(f"v_cvt_pk_bf16_f32 v{d}, v{TMP + k}, 0" if tau < 2 else f"v_cvt_pk_bf16_f32 v{d}, 0, v{TMP + k}")
    dispatch(f"{name}_s")
    X0 = A2 + 32
    vs, vz, vb, GR, SM, T = X0, X0 + 1, X0 + 2, X0 + 4, X0 + 8, X0 + 12
    TR = A1 + 20
    DIAG = (4, 6, 30, 70)
    for kind in KINDS:
        entry(f"{name}_s", kind)
        addresses(kind)
        if kind == "x":
            srd_ws(a, SRD2, "SS0", SS_SIZE)
            a(f"s_lshr_b32 s{sA}, s{sT}, 4")
            a(f"s_lshl_b32 s{sA}, s{sA}, 10")
            a(f"s_and_b32 s{sB}, s{sT}, 7")
            a(f"s_lshl_b32 s{sB}, s{sB}, 7")
            a(f"s_add_u32 s{sA}, s{sA}, s{sB}")
            a(f"s_and_b32 s{sB}, s{sT}, 8")
            a(f"s_add_u32 s{sA}, s{sA}, s{sB}")
            a(f"v_lshrrev_b32 v{vs}, 1, v{vI}")
            a(f"v_lshlrev_b32 v{vs}, 4, v{vs}")
            a(f"v_lshl_add_u32 v{vs}, v{M2}, 2, v{vs}")
            a(f"v_lshl_add_u32 v{vs}, v{vG}, 20, v{vs}")
            a(f"v_add_u32 v{vs}, s{sA}, v{vs}")
            for r in range(4):
                m = 0x1000010000100001 << r
                a(f"s_mov_b32 s{DIAG[r]}, {m & 0xffffffff:#x}")
                a(f"s_mov_b32 s{DIAG[r] + 1}, {m >> 32:#x}")
        if kind == "w1":
            a(f"s_mov_b64 s[{sM0}:{sM1}], 0xffff")
        if kind == "w2":
            srd_ws(a, SRD2, "W2T", W2T_SIZE)
            a(f"v_bfe_u32 v{vz}, v{vI}, 1, 1")
            a(f"v_lshl_add_u32 v{vz}, v{vG}, 1, v{vz}")
            a(f"v_lshrrev_b32 v{vb}, 2, v{vI}")
            a(f"v_xor_b32 v{vz}, v{vz}, v{vb}")
            a(f"v_lshlrev_b32 v{vz}, 4, v{vz}")
            a(f"v_lshl_add_u32 v{vz}, v{vb}, 8, v{vz}")
            a(f"v_lshl_add_u32 v{vz}, v{M2}, 3, v{vz}")
            a(f"v_xor_b32 v{vb}, {1024 + 64}, v{vz}")
            a(f"s_mul_i32 s{sA}, s{sT}, {2 * KB_STR}")
            a(f"v_lshl_add_u32 v{vs}, v{vL}, 4, s{sA}")
        reads(kind, False)
        sc = Sched(a)

        def tr_read(n):
            h, x = divmod(n, 10)
            return [f"ds_read_b64_tr_b16 {V(TR + 4 * (n % 10) + 2 * eh, 2)}, v{vz + eh} "
                    f"offset:{REGB + (x >> 1) * 4096 + h * 2048 + 128 * ((x ^ h ^ eh) & 1)}" for eh in range(2)]

        def tr_store(n):
            if n % 4 == 0:
                a(f"s_mov_b32 s{sOQ}, {n * 1024}")
            a(f"buffer_store_dwordx4 {V(TR + 4 * (n % 10), 4)}, v{vs}, s[{SRD2}:{SRD2 + 3}], s{sOQ} offen offset:{(n % 4) * 1024}{FC.fs[4]}")

        if kind == "w2":
            for n in range(10):
                for op in tr_read(n):
                    a(op)

        def sums(beta, acc, rdy, key):
            sc.add(f"v_add_f32 v{SM + beta}, v{acc}, v{acc + 2}", rdy, key)

        stage1(sc, 0, sums if kind == "x" else None)
        if kind == "x":
            for k in range(10):
                sc.mfma(GR, DAT + 4 * k, DAT + 4 * k, None if k == 0 else GR)

        def fix(rdy, key):
            sc.add(f"v_accvgpr_read_b32 v{vb}, {R(aB)}", rdy, key)
            sc.add(f"v_lshlrev_b32 v{vb}, 16, v{vb}", rdy, key)
            sc.add(f"v_cndmask_b32_e64 v{ACCX + 1}, v{ACCX + 1}, v{vb}, s[{sM0}:{sM1}]", rdy, key)

        if kind == "w2":
            sc.flush()
            for n in range(10):
                tr_store(n)
                for op in tr_read(n + 10):
                    a(op)
                if n == FC.t_pre - 1:
                    a(f"s_waitcnt vmcnt({FC.t_pre})")
                    a("s_barrier")
        stage2(kind, sc, 0, 0, A2, ACCX, [], fix if kind == "w1" else None)
        stage2(kind, sc, 0, 1, A2 + 16, ACC1, [("y", 0), ("y", 1)])
        if kind == "w2":
            for n in range(10, 20):
                tr_store(n)
        if kind == "x":
            sc.add(f"v_add_f32 v{SM}, v{SM}, v{SM + 1}")
            sc.add(f"v_add_f32 v{SM + 2}, v{SM + 2}, v{SM + 3}")
            sc.add(f"v_add_f32 v{SM}, v{SM}, v{SM + 2}")
            for op in ("v_permlane32_swap_b32", "v_permlane16_swap_b32"):
                sc.add(f"v_mov_b32 v{SM + 1}, v{SM}")
                sc.add(f"{op} v{SM}, v{SM + 1}")
                sc.add(f"v_add_f32 v{SM}, v{SM}, v{SM + 1}")
            sc.add(f"v_mul_f32 v{SM}, {fx(2.0 ** -FC.xscale)}, v{SM}")
            sc.add(f"v_mul_f32 v{SM}, v{SM}, v{SM}")
            for k in range(10, 20):
                sc.mfma(GR, DAT + 4 * k, DAT + 4 * k, GR)
        sc.flush()
        if kind == "x":
            for r in range(4):
                prev = "0" if r == 0 else f"v{T}"
                a(f"v_cndmask_b32_e64 v{T}, {prev}, v{GR + r}, s[{DIAG[r]}:{DIAG[r] + 1}]")
            for op in ("v_permlane32_swap_b32", "v_permlane16_swap_b32"):
                a(f"v_mov_b32 v{T + 1}, v{T}")
                a(f"{op} v{T}, v{T + 1}")
                a(f"v_add_f32 v{T}, v{T}, v{T + 1}")
            a(f"v_fmamk_f32 v{T}, v{SM}, {fx(-1.0 / (model2.SC * model2.SC * DM))}, v{T}")
            a(f"v_max_f32 v{T}, 0, v{T}")
            a(f"buffer_store_dword v{T}, v{vs}, s[{SRD2}:{SRD2 + 3}], 0 offen sc1")
            a(f"s_waitcnt vmcnt({3 + NX})")
        leave(f"{name}_s", kind, 2)

    a.label(f"{name}_xend")
    mark(a, "j1")
    filter_job()
    a.label(f"{name}_end")
    mark(a, "j2")
    a(f"s_mov_b32 s{sT}, s2")
```

```python
from gen import *
import gen
import f0
import model2
from p0 import Sched, fx
from f0 import READY, POST, HINT, DONE, DONE2, aF
from asmlib import TRANS

GELU_K0 = -2.0 * 0.7978845608028654 * 1.4426950408889634
EPS = 1e-5
SPIN_MAX = 1 << 14
NCOL = 160
TILE = 20480
LDS_RK = 16384
LDS_X = LDS_RED = 0
PX = 0
S_LO, S_X = -97, (-24, 24)
UP = [s - S_LO for s in S_X]
T_X = [2.0 ** (d - 127) for d in UP]
T_H, H_OFF = T_X[0], -2.0 ** -40

SRDQ, SRDF, SRDW, SRDP = 8, 12, SRD4, SRD5
sDC, sRP, sHO, sTB = 16, 17, 18, 19
sRB, sMM, sFL, sCNT, sGA, sGB = 96, 97, 98, 99, 100, 101
sMSK, sCQ = 26, 27
sPK, sEB = 20, 21
vW, vo, vp, vd2 = 10, 11, 15, 14
WR, NW, NP = 256, 8, 11
aPO = WR
aST, aDUM, vdc = 256 + 252, 256 + 253, 256 + 254
NS = 14


class FZ:
    look = 10
    pre_p = (8, 8)
    burst = ((0, 8), (4, 0))
    period = (90, 90)
    stop = ("x2", "x2")
    hint_at = ("x1", "x1")
    po_every = 5
    cap = 12
    row = 70
    srow = 120
    lat = 750
    dbl = (12, 15)
    xc_at = 1
    b_pre = 0
    pure = (2, 1)
    in_b = (5, 3)
    in_e = 5
    g2pk = (1, 1)
    qdel = (1600, 1600)
    qc_rem = 7
    split0 = 1
    ktail = 3
    rd_at = (("b", 1), ("b", 8))
    x3 = (("g", 3), ("g", 6), ("g", 8))
    res_at = ("g", 7)
    ebar = 1
    e_ok = 17
    marks = None
    clk = 0
    halt = 0
    verbose = 0
    map = 2
    post = 'bar2'
    x_nocnt = 0
    x_op = 'buffer-atomic-add-f32'
    wgap = 48
    park = (3, 2)
    gbar = 5
    ft_pf = 1
    p_lead = 14
    r_q = 2
    qf = (" sc1", " sc1")
    xf = (" sc1", " sc1")
    hf = " sc1"
    d2_at = 30
    ack_at = 2
    single = 0
    virt = 1
    dbg = None
    pof = " sc1"
    shrink = 1
    drop = ("c1a", "c2a", "c1b2", "c2b2", "m1H", "m2H", "m1P", "m2P", "c2ld", "c2x1")


class Marks:
    def __init__(self):
        self.names, self.pend = [], []

    def __call__(self, a, name):
        if not Cfg.stamp or (name in FZ.drop if FZ.marks is None else name not in FZ.marks):
            return
        k = len(self.pend)
        assert k < 12, name
        self.pend.append(len(self.names))
        self.names.append(name)
        a(f"{'s_memtime' if FZ.clk else 's_memrealtime'} s[{sST + 2 * k}:{sST + 2 * k + 1}]")

    def fixed(self, a, name):
        if not Cfg.stamp or FZ.marks is not None:
            return
        name = "f" + name
        if name not in self.names:
            self.pend.append(len(self.names))
            self.names.append(name)
        k = self.pend.index(self.names.index(name))
        a(f"s_memrealtime s[{sST + 2 * k}:{sST + 2 * k + 1}]")

    def stash(self, a, tmp):
        if not self.pend:
            return
        a("s_waitcnt lgkmcnt(0)")
        a(f"v_accvgpr_read_b32 v{tmp}, {R(aST)}")
        for k, lane in enumerate(self.pend):
            a(f"v_writelane_b32 v{tmp}, s{sST + 2 * k}, {lane}")
        a(f"v_writelane_b32 v{tmp}, s{sCNT}, {len(self.names)}")
        self.names.append("#" + self.names[self.pend[-1]])
        assert len(self.names) < 63
        a(f"v_accvgpr_write_b32 {R(aST)}, v{tmp}")
        self.pend = []


mk = Marks()


def preg(u, p):
    return WR + (0 if u == NP else 4 * NW + 20 * (u % (NP + 1))) + 4 * p


def kblock(u):
    return 2 * (14 * (u & 1) + (u >> 1))


def decode(a, sT):
    a(f"s_and_b32 s{sA}, s{sT}, 7")
    if FZ.map == 1:
        a(f"s_bfe_u32 s{sRB}, s{sT}, 0x10003")
        a(f"s_lshl1_add_u32 s{sRB}, s{sA}, s{sRB}")
        a(f"s_lshr_b32 s{sMM}, s{sT}, 4")
    else:
        a(f"s_lshr_b32 s{sB}, s{sA}, 1")
        a(f"s_lshl_b32 s{sB}, s{sB}, 2")
        a(f"s_bfe_u32 s{sRB}, s{sT}, {0x20006 if FZ.map == 2 else 0x20003:#x}")
        a(f"s_add_u32 s{sRB}, s{sRB}, s{sB}")
        a(f"s_and_b32 s{sA}, s{sA}, 1")
        a(f"s_lshl_b32 s{sA}, s{sA}, 3")
        a(f"s_bfe_u32 s{sMM}, s{sT}, {0x30003 if FZ.map == 2 else 0x30005:#x}")
        a(f"s_add_u32 s{sMM}, s{sMM}, s{sA}")
    a(f"s_lshl_b32 s{sFL}, s{sRB}, 7")


def begin(a):
    srd_ws(a, SRDF, "FLAG", FLAG_SIZE)
    srd_ws(a, SRDQ, "H", H_SIZE)
    a(f"s_mov_b32 s{sCNT}, 0")
    for k in range(4):
        a(f"v_accvgpr_write_b32 {R(aPO + k)}, -1")
    if Cfg.stamp:
        a(f"v_accvgpr_write_b32 {R(aST)}, 0")


def pre_setup(a, ph, t0):
    if not ph:
        a(f"s_and_b32 s{sA}, s{sMM}, 3")
        a(f"s_cmp_eq_u32 s{sA}, 3")
        a(f"s_cselect_b32 s{sMSK}, 0x40000000, 0")
        a(f"s_lshr_b32 s{sB}, s{sMM}, 3")
        a(f"s_lshl2_add_u32 s{sDC}, s{sB}, s{sA}")
        a(f"s_mul_i32 s{sTB}, s{sMM}, 7")
        a(f"s_lshr_b32 s{sB}, s{sMM}, 2")
        a(f"s_sub_u32 s{sTB}, s{sTB}, s{sB}")
        a(f"s_mul_i32 s{sPK}, s{sW}, {TILE // 4}")
        a(f"s_mul_i32 s{sEB}, s{sW}, {3 * TILE // 4}")
    a(f"s_mul_i32 s{sE}, s{sW}, {(2 if ph else 7) * TILE // 4}")
    a(f"s_add_u32 m0, s{sE}, {TILE}")
    a(f"v_lshlrev_b32 v{vW}, 4, v{vL}")
    a(f"s_mul_i32 s{sA}, s{sTB}, {TILE}")
    a(f"s_add_u32 s{sA}, s{sA}, {WS['W1F'] - TILE}")
    a(f"s_add_u32 s{SRDW}, s{P_WS}, s{sA}")
    a(f"s_addc_u32 s{SRDW + 1}, s{P_WS + 1}, 0")
    a(f"s_and_b32 s{SRDW + 1}, s{SRDW + 1}, 0xffff")
    a(f"s_mov_b32 s{SRDW + 2}, {8 * TILE}")
    a(f"s_cmp_lg_u32 s{sMSK}, 0")
    a(f"s_cselect_b32 s{SRDW + 2}, {7 * TILE}, s{SRDW + 2}")
    a(f"s_mov_b32 s{SRDW + 3}, 0x20000")
    a(f"v_lshrrev_b32 v{vo}, 1, v{vG}")
    a(f"v_and_b32 v{t0}, 1, v{vG}")
    if not ph:
        a(f"v_mad_u32_u24 v{vp}, v{vo}, 14, v{t0}")
        a(f"v_mul_u32_u24 v{vp}, {KB_STR}, v{vp}")
        a(f"v_lshl_add_u32 v{vp}, v{vI}, 4, v{vp}")
        a(f"s_mul_i32 s{sA}, s{sDC}, 1280")
        a(f"s_mul_i32 s{sB}, s{sW}, {54 * KB_STR}")
        a(f"s_add_u32 s{sA}, s{sA}, s{sB}")
        a(f"v_add_u32 v{vp}, s{sA}, v{vp}")
    a(f"v_lshlrev_b32 v{vo}, 15, v{vo}")
    a(f"v_lshl_add_u32 v{vo}, v{vI}, 5, v{vo}")
    a(f"v_lshl_add_u32 v{vo}, v{t0}, 4, v{vo}")
    a(f"s_lshl_b32 s{sA}, s{sTB}, 16")
    a(f"s_lshl4_add_u32 s{sA}, s{sFL}, s{sA}")
    a(f"s_lshl_b32 s{sB}, s{sW}, 9")
    a(f"s_add_u32 s{sA}, s{sA}, s{sB}")
    a(f"v_add_u32 v{vo}, s{sA}, v{vo}")
    if ph:
        a(f"s_add_u32 s{SRDP}, s{SRDP}, {WS['W2T'] - WS['WA2']}")
        a(f"s_addc_u32 s{SRDP + 1}, s{SRDP + 1}, 0")
    else:
        a(f"v_add_u32 v{t0}, s{sMSK}, v{vo}")
        srd_ws(a, SRDP, "WA2", 218 * KB_STR)
        a(f"s_add_u32 s{sA}, s{sW}, 1")
        a(f"s_mul_i32 s{sA}, s{sA}, {54 * KB_STR}")
        a(f"s_cmp_eq_u32 s{sW}, 3")
        a(f"s_cselect_b32 s{SRDP + 2}, s{SRDP + 2}, s{sA}")


def rank_put(a, t):
    a(f"s_getreg_b32 s{sB}, {f0.XCC}")
    a(f"s_lshl_b32 s{sB}, s{sB}, 20")
    a(f"s_lshl_b32 s{sA}, s3, 7")
    a(f"s_add_u32 s{sA}, s{sA}, s{sB}")
    a(f"s_add_u32 s{sA}, s{sA}, {DONE}")
    a(f"v_and_b32 v{t + 1}, 7, v{t + 1}")
    a(f"v_lshl_add_u32 v{t + 1}, v{t + 1}, 20, v{t}")
    a(f"v_cmp_gt_u32 vcc, s{sA}, v{t + 1}")
    a(f"s_lshl_b32 s{sB}, s{sW}, 2")
    a(f"v_mov_b32 v{t}, s{sB}")
    a(f"s_bcnt1_i32_b64 s{sA}, vcc")
    a(f"v_mov_b32 v{t + 1}, s{sA}")
    a(f"ds_write_b32 v{t}, v{t + 1} offset:{LDS_RK}")
    a(f"v_mov_b32 v{t}, 0")
    a("s_waitcnt lgkmcnt(0)")


def rank_get(a, t):
    a(f"ds_read_b128 {V(t, 4)}, v{t} offset:{LDS_RK}")
    a(f"v_add_u32 v{t}, v{t}, v{t + 1}")
    a(f"v_add3_u32 v{t}, v{t}, v{t + 2}, v{t + 3}")
    a(f"v_readfirstlane_b32 s{sGA}, v{t}")
    a(f"s_and_b32 s{sA}, s{sGA}, 31")
    a(f"s_bfe_u32 s{sGA}, s{sGA}, 0x30005")
    a(f"s_lshl3_add_u32 s{sGA}, s{sA}, s{sGA}")
    decode(a, sGA if FZ.virt else sT)


def w2_flags():
    return [f"s_mul_i32 s{sOP}, s{sW}, 27",
            f"v_min_u32 v{vd2}, 27, v{vL}",
            f"v_add_u32 v{vd2}, s{sOP}, v{vd2}",
            f"v_sub_u32 v{vd2}, {f0.W2TOP}, v{vd2}",
            f"v_lshlrev_b32 v{vd2}, 7, v{vd2}",
            f"s_mov_b32 s{sOP}, {DONE2}",
            f"buffer_load_dword v{vd2}, v{vd2}, s[{SRDF}:{SRDF + 3}], s{sOP} offen sc1"]


def w2_test(a, nm):
    a(f"v_cmp_eq_u32 vcc, 0, v{vd2}")
    a(f"s_cbranch_vccnz {nm}_w2")
    a.label(f"{nm}_w2ok", keep=True)

    def spin():
        a.label(f"{nm}_w2")
        for x in w2_flags():
            a(x)
        budget(a, f"{nm}_w2out")
        a(f"v_cmp_eq_u32 vcc, 0, v{vd2}")
        a(f"s_cbranch_vccnz {nm}_w2")
        a.label(f"{nm}_w2out")
        a("s_waitcnt vmcnt(0)")
        a(f"s_branch {nm}_w2ok")
    a.tail.append(spin)


def front_wait(a, nm, t):
    f0.lane_blocks(a, t, t + 1, 0)
    a(f"v_accvgpr_read_b32 v{t + 2}, {R(aF)}")
    a.label(f"{nm}_fw")
    a(f"buffer_load_dword v{t + 1}, v{t}, s[{SRDF}:{SRDF + 3}], 0 offen sc1")
    budget(a, f"{nm}_fwok")
    a(f"v_cmp_eq_u32 vcc, v{t + 2}, v{t + 1}")
    if FZ.shrink:
        a(f"s_cbranch_vccz {nm}_fwok")
        a("s_mov_b64 exec, vcc")
        a(f"s_branch {nm}_fw")
    else:
        a(f"s_cbranch_vccnz {nm}_fw")
    a.label(f"{nm}_fwok")
    if FZ.shrink:
        a("s_mov_b64 exec, -1")
    a("s_waitcnt vmcnt(0)")


def pre_ops(ph, t0, nm):
    po, ops = [], []
    for k in range(0 if ph else 7):
        po.append([f"s_mov_b32 s{sOQ}, {k * 2 * H_STR}",
                   f"buffer_store_dwordx4 {R(aPO, 4)}, v{t0 if k == 6 else vo}, s[{SRDQ}:{SRDQ + 3}], s{sOQ} offen{FZ.pof}"])
    n = 10 if ph else 35
    for k in range(n):
        g = [f"buffer_load_dwordx4 v{vW}, s[{SRDW}:{SRDW + 3}], m0 offen offset:{(k & 3) * 1024} lds"]
        if k & 3 == 3:
            g.append("s_add_u32 m0, m0, 4096")
        ops.append(g)
    for u in range(FZ.pre_p[ph]):
        for p in range(5):
            g = [f"buffer_load_dwordx4 {R(preg(u, p), 4)}, v{vp}, s[{SRDP}:{SRDP + 3}], s{sOP} offen offset:{p * 256}"]
            ops.append(([f"s_mov_b32 s{sOP}, {kblock(u) * KB_STR}"] if p == 0 else []) + g)
    if not ph:
        ops[n].insert(0, lambda a: w2_test(a, nm))
        ops.insert(FZ.d2_at, w2_flags())
    out = []
    for k, op in enumerate(ops):
        out.append(op)
        if k % FZ.po_every == FZ.po_every - 1 and po:
            out.append(po.pop(0))
    assert not po
    return out


class Paced:
    def __init__(self, a, ops, period):
        self.a, self.ops, self.period = a, ops, period
        self.on = False
        self.t = 0

    def burst(self, n):
        for _ in range(min(n, len(self.ops))):
            for x in self.ops.pop(0):
                x(self.a) if callable(x) else self.a(x)

    def __call__(self, text, tag=None):
        self.a(text, tag)
        if self.on:
            op = text.split()[0]
            self.t += 16 if op.startswith("v_mfma") else 8 if op in TRANS else 4
            if self.t >= self.period:
                self.t -= self.period
                self.burst(1)

    def __getattr__(self, n):
        return getattr(self.a, n)


def budget(a, out):
    a(f"s_add_u32 s{sCNT}, s{sCNT}, 1")
    a(f"s_cmp_ge_u32 s{sCNT}, {SPIN_MAX}")
    a(f"s_cbranch_scc1 {out}")


def col_phase(a0, ph):
    vx, vw, vl0, vt0, vh = 4, 5, 6, 12, 13
    raw, ss, wraw = 16, 32, 40
    M1, M2 = 56, 88
    T1, T2 = 120, 136
    ACC, FO, TMP, WU0 = 152, 184, 200, 232
    vmI, fi, fg, fa, fb = 176, 177, 178, 179, 180
    SL = ACC
    FGR = [TMP + 4 * k for k in range(8)] + [ss, ss + 4, 248, 252]
    WU = (WU0, T1)
    nm = f"c{ph + 1}"
    a = Paced(a0, pre_ops(ph, vt0, nm), FZ.period[ph])

    def point(name):
        mk(a0, nm + name)
        if name == FZ.hint_at[ph]:
            a0(f"buffer_store_dword v{vh}, v{vh}, s[{SRDF}:{SRDF + 3}], 0 offen sc1")
        if name == FZ.stop[ph]:
            a.on = False

    a(f"s_mul_i32 s{sB}, s{sW}, 3072")
    a(f"v_lshlrev_b32 v{vl0}, 4, v0")
    a(f"v_add_u32 v{vx}, s{sB}, v{vl0}")
    if not ph:
        a(f"s_lshl_b32 s{sB}, s{sW}, 10")
        a(f"v_add_u32 v{vw}, s{sB}, v{vl0}")
    a(f"s_lshl_b32 s{sF}, s{sT}, 14")

    def data_loads(e):
        if ph:
            for k in range(4):
                e(f"buffer_load_dwordx4 {V(raw + 4 * k, 4)}, v{vx}, s[{SRD0}:{SRD0 + 3}], s{sF} offen offset:{k * 1024} sc1")
            for k in range(4):
                e(f"buffer_load_dwordx3 {V(SL + 4 * k, 3)}, v{vx}, s[{SRD1}:{SRD1 + 3}], 0 offen offset:{k * 1024} sc1")
        else:
            for t in range(2):
                e(f"buffer_load_dwordx4 {V(ss + 4 * t, 4)}, v{vw}, s[{SRD1}:{SRD1 + 3}], 0 offen offset:{t * 1024} sc1")
            for k in range(4):
                e(f"buffer_load_dwordx4 {V(raw + 4 * k, 4)}, v{vx}, s[{SRD0}:{SRD0 + 3}], s{sF} offen offset:{k * 1024} sc1")

    def filter_loads():
        for k in range(4):
            a(f"buffer_load_dwordx4 {V(wraw + 4 * k, 4)}, v{vx}, s[{SRD2}:{SRD2 + 3}], s{sF} offen offset:{k * 1024}")

    def ack(n):
        if not ph and n == FZ.ack_at:
            st = f0.post(a0, SRDF, 0, 1, ACC, "s_waitcnt vmcnt(0)", True)
            a0("s_barrier")
            a0(st)
            point("ak")

    def pos(base, k, c):
        return base + (k >> 1) * 4 + (k & 1) * 2 + c

    srd_ws(a, SRD2, "WC", WC_SIZE)
    if ph:
        filter_loads()
        point("ld")
    else:
        srd_ws(a, SRD0, "XP0", XP_SIZE)
        srd_ws(a, SRD1, "SS0", SS_SIZE)
    if ph:
        pre_setup(a, ph, vt0)
    a(f"s_lshl_b32 s{sA}, s3, 7")
    a(f"s_add_u32 s{sA}, s{sA}, {HINT[ph]}")
    a(f"v_lshl_add_u32 v{vh}, v0, 20, s{sA}")
    if ph:
        a("s_barrier")
        a.burst(FZ.burst[ph][0])
    ack(0)
    for kk in (1, 2, 3):
        a(f"v_xor_b32 v{vl0 + kk}, {kk * 1024}, v{vl0}")
    a(f"v_and_b32 v{vmI}, 1, v{vI}")
    a(f"v_mul_u32_u24 v{vmI}, 0x8000, v{vmI}")
    a(f"v_lshl_or_b32 v{vmI}, v{vmI}, 16, v{vmI}")
    a(f"v_cvt_f32_u32 v{fi}, v{vI}")
    a(f"v_lshlrev_b32 v{fg}, 2, v{vG}")
    a(f"v_cvt_f32_u32 v{fg}, v{fg}")

    def m1(qb, t, var):
        return M1 + ((qb * 2 + t) * 2 + var) * 4

    def m2(kk, var):
        return M2 + (kk * 2 + var) * 4

    a(f"v_mul_f32 v{fa}, {fx(1 / 32)}, v{fi}")
    a(f"v_mul_f32 v{TMP}, v{fg}, v{fa}")
    for jj in range(1, 4):
        a(f"v_fmamk_f32 v{TMP + 3 * jj}, v{fa}, {fx(float(jj))}, v{TMP}")
    for jj in range(4):
        t = TMP + 3 * jj
        a(f"v_cos_f32 v{t + 1}, v{t}")
        a(f"v_sin_f32 v{t + 2}, v{t}")
    for jj in range(4):
        t = TMP + 3 * jj
        n = "-" if jj & 1 else ""
        m = "" if jj & 1 else "-"
        a(f"v_cvt_pk_bf16_f32 v{m1(0, 0, 0) + jj}, v{t + 1}, v{t + 2}")
        a(f"v_cvt_pk_bf16_f32 v{m1(0, 0, 1) + jj}, -v{t + 2}, v{t + 1}")
        a(f"v_cvt_pk_bf16_f32 v{m1(1, 0, 0) + jj}, {n}v{t + 1}, {n}v{t + 2}")
        a(f"v_cvt_pk_bf16_f32 v{m1(1, 0, 1) + jj}, {m}v{t + 2}, {n}v{t + 1}")
    for qb in range(2):
        for var in range(2):
            for jj in range(4):
                a(f"v_xor_b32 v{m1(qb, 1, var) + jj}, v{vmI}, v{m1(qb, 0, var) + jj}")
    ack(1)

    a(f"s_lshl_b32 s{sK0}, s{sW}, 4")
    a(f"v_cvt_f32_u32 v{fb}, s{sK0}")
    a(f"v_add_f32 v{TMP + 24}, v{fb}, v{fg}")
    a(f"v_add_f32 v{fb}, v{fb}, v{fi}")
    a(f"v_mul_f32 v{TMP + 25}, {fx(1 / 2048)}, v{fi}")
    a(f"v_add_f32 v{TMP + 26}, {fx(16 / 2048)}, v{TMP + 25}")
    for r in range(4):
        a(f"v_add_f32 v{TMP + r}, {fx(float(r))}, v{TMP + 24}")
    for qb in range(2):
        for r in range(4):
            t = TMP + 4 + (qb * 4 + r)
            a(f"v_mul_f32 v{t}, v{TMP + r}, v{TMP + 25 + qb}")
            a(f"v_cos_f32 v{T1 + qb * 8 + r}, v{t}")
            a(f"v_sin_f32 v{T1 + qb * 8 + 4 + r}, v{t}")
    ack(2)

    a(f"v_mul_f32 v{fa}, {fx(1 / 64)}, v{fb}")
    a(f"s_xor_b32 s{sK0}, s{sK0}, 16")
    a(f"v_cvt_f32_u32 v{TMP + 24}, s{sK0}")
    a(f"v_add_f32 v{TMP + 24}, v{TMP + 24}, v{fg}")
    for kk in range(2):
        for r in range(4):
            t = TMP + 12 + 3 * r
            if kk == 0:
                a(f"v_mul_f32 v{t}, v{TMP + r}, v{fa}")
            else:
                a(f"v_add_f32 v{t}, {fx(float(r))}, v{TMP + 24}")
                a(f"v_mul_f32 v{t}, v{t}, v{fa}")
            a(f"v_cos_f32 v{t + 1}, v{t}")
            a(f"v_sin_f32 v{t + 2}, v{t}")
        for r in range(4):
            t = TMP + 12 + 3 * r
            a(f"v_cvt_pk_bf16_f32 v{m2(kk, 0) + r}, v{t + 1}, v{t + 2}")
            a(f"v_cvt_pk_bf16_f32 v{m2(kk, 1) + r}, -v{t + 2}, v{t + 1}")
    for kk in range(2):
        for var in range(2):
            for r in range(4):
                a(f"v_xor_b32 v{m2(kk + 2, var) + r}, v{vmI}, v{m2(kk, var) + r}")

    ack(3)
    if not ph:
        point("cs")
        st = f0.post(a0, SRDF, 0, 2, ACC)
        front_wait(a0, nm, TMP)
        point("dr")
        data_loads(a)
        filter_loads()
        rank_put(a, TMP)
        a("s_barrier")
        a(st)
        rank_get(a, TMP)
        pre_setup(a, ph, vt0)
        a.burst(FZ.burst[ph][1])
        mk.stash(a0, TMP)
        a.on = True
    else:
        point("cs")
        if FZ.post:
            a(f"v_lshlrev_b32 v{TMP}, 7, v0")
            a(f"v_add_u32 v{TMP}, {POST}, v{TMP}")
            a0.label(f"{nm}_poll")
            a0(f"buffer_load_dword v{TMP + 1}, v{TMP}, s[{SRDF}:{SRDF + 3}], 0 offen sc1")
            budget(a0, f"{nm}_seen")
            a0(f"v_cmp_eq_u32 vcc, 0, v{TMP + 1}")
            a0(f"s_cbranch_vccnz {nm}_poll")
            a0.label(f"{nm}_seen")
            a0("s_waitcnt vmcnt(0)")
        else:
            a.wait_tag("out")
        point("dr")
        if FZ.halt == 25:
            mk.stash(a0, TMP)
            return 0
        data_loads(a)
        a.burst(FZ.burst[ph][1])
        mk.stash(a0, TMP)

    a(f"v_mul_f32 v{fa}, {fx(1 / 2048)}, v{fb}")
    a(f"v_mul_f32 v{TMP}, v{fg}, v{fa}")
    for k in range(1, 8):
        a(f"v_fmamk_f32 v{TMP + k}, v{fa}, {fx(float(16 * (k >> 2) + (k & 3)))}, v{TMP}")
    for k in range(8):
        u, r = divmod(k, 4)
        a(f"v_cos_f32 v{T2 + u * 8 + r}, v{TMP + k}")
        a(f"v_sin_f32 v{T2 + u * 8 + 4 + r}, v{TMP + k}")

    a0(f"s_mov_b32 s{sK1}, 0xffff0000")
    a0(f"s_cmp_eq_u32 s{sT}, 0")
    a0(f"s_cselect_b32 s{sK2}, 0, s{sK1}")
    a0(f"s_mov_b32 s{sK0}, {fx(-1 / 2048)}")
    a0(f"s_cselect_b32 s{sK3}, 0, s{sK0}")
    a(f"s_mov_b32 s{sA}, {fx(1 / DM)}")
    a(f"s_mov_b32 s{sB}, {fx(1 / 2048)}")
    a(f"s_mov_b32 s{sC}, {UP[ph] * 0x800080:#x}")
    a(f"v_mov_b32 v{fa}, {fx(1e-5)}")
    point("k")
    if ph:
        def test(e):
            e(f"v_max3_f32 v{fi}, |v{raw}|, |v{raw + 2}|, |v{raw + 4}|")
            e(f"v_max3_f32 v{fb}, |v{raw + 6}|, |v{raw + 8}|, |v{raw + 10}|")
            e(f"v_max3_f32 v{fi}, v{fi}, |v{raw + 12}|, |v{raw + 14}|")
            e(f"v_max_f32 v{fi}, v{fi}, v{fb}")
            e(f"v_min3_f32 v{fg}, v{SL + 2}, v{SL + 6}, v{SL + 10}")
            e(f"v_min_f32 v{fg}, v{fg}, v{SL + 14}")
            e(f"v_fmamk_f32 v{fg}, v{fi}, {fx(-8 / T_X[0])}, v{fg}")
            e(f"v_cmp_gt_f32 vcc, {fx(7.5)}, v{fg}")

        def var_ops(e):
            for k in range(8):
                e(f"v_fma_f32 v{ss + k}, v{SL + 4 * (k >> 1) + (k & 1)}, s{sA}, v{fa}")

        test(a0)
        var_ops(a0)
        a0(f"s_cbranch_vccnz {nm}_again", tag="nopad")
        a0.label(f"{nm}_ok", keep=True)

        def again():
            a0.label(f"{nm}_again")
            budget(a0, f"{nm}_ok")
            data_loads(a0)
            a0("s_waitcnt vmcnt(0)")
            test(a0)
            var_ops(a0)
            a0(f"s_cbranch_vccnz {nm}_again")
            a0(f"s_branch {nm}_ok")
        a0.tail.append(again)
        a.on = True
    else:
        for k in range(8):
            a(f"v_fma_f32 v{ss + k}, v{ss + k}, s{sA}, v{fa}")
    for k in range(8):
        a(f"v_rsq_f32 v{ss + k}, v{ss + k}")

    def acc(c, b, var):
        return ACC + c * 16 + (b * 2 + var) * 4

    def fo(c, b):
        return FO + c * 8 + b * 4

    def unpack(dst_, base, c, mask):
        ops = []
        for k in range(8):
            ops.append(f"v_lshlrev_b32 v{dst_ + 2 * k}, 16, v{pos(base, k, c)}")
            ops.append(f"v_and_b32 v{dst_ + 2 * k + 1}, s{mask}, v{pos(base, k, c)}")
        return ops

    def unpack_w(c):
        ops = []
        for k in range(8):
            u, r = divmod(k, 4)
            ops.append(f"v_lshlrev_b32 v{WU[c] + u * 8 + r}, 16, v{pos(wraw, k, c)}")
            ops.append(f"v_and_b32 v{WU[c] + u * 8 + 4 + r}, s{sK1}, v{pos(wraw, k, c)}")
        return ops

    def scale(c):
        t = TMP + 16 * c
        for k in range(8):
            h = k & 1
            a(f"v_pk_mul_f32 {V(t + 2 * k, 2)}, {V(t + 2 * k, 2)}, {V(ss + k - h, 2)} op_sel:[0,{h}] op_sel_hi:[1,{h}]")
        for k in range(8):
            a(f"v_cvt_pk_bf16_f32 v{fo(c, 0) + k}, v{t + 2 * k}, v{t + 2 * k + 1}")

    sc = Sched(a)

    def stage_a(c):
        for t in range(2):
            for qb in range(2):
                for var in range(2):
                    sc.mfma(acc(c, qb, var), fo(c, t), m1(qb, t, var), None if t == 0 else acc(c, qb, var))
        sc.flush()

    for op in unpack(TMP, raw, 0, sK2):
        a(op)
    scale(0)
    point("s0")
    for op in unpack(TMP + 16, raw, 1, sK1):
        sc.add(op)
    stage_a(0)
    scale(1)
    for op in unpack_w(0):
        sc.add(op)
    stage_a(1)
    point("a")

    def mm(c, b, var, f, kk, data_is_a):
        cc = None if kk == 0 else acc(c, b, var)
        if data_is_a:
            sc.mfma(acc(c, b, var), f, m2(kk, var), cc)
        else:
            sc.mfma(acc(c, b, var), m2(kk, var), f, cc)

    def exchange(n, data_is_a, cm, fill_own, fill_rest):
        for c in range(2):
            for b in range(2):
                cm(c, b)
                if n == 2 and c == b == 0:
                    a("s_barrier")
                a(f"ds_write_b128 v{vl0}, {V(fo(c, b), 4)} offset:{(c * 2 + b) * 4096}")
        a("s_waitcnt lgkmcnt(0)")
        a("s_barrier")
        point(f"b{n}")
        for c in range(2):
            for kk in (1, 2, 3):
                for b in range(2):
                    f = FGR[(c * 3 + kk - 1) * 2 + b]
                    a(f"ds_read_b128 {R(f, 4)}, v{vl0 + kk} offset:{(c * 2 + b) * 4096}")
        for op in fill_own:
            sc.add(op)
        for c in range(2):
            for b in range(2):
                for var in range(2):
                    mm(c, b, var, fo(c, b), 0, data_is_a)
        for op in fill_rest:
            sc.add(op)
        for c in range(2):
            for kk in (1, 2, 3):
                for b in range(2):
                    for var in range(2):
                        mm(c, b, var, FGR[(c * 3 + kk - 1) * 2 + b], kk, data_is_a)
        sc.flush()
        point(f"x{n}")

    def cm1(c, b):
        cmul_pack(a, fo(c, b), acc(c, b, 0), acc(c, b, 1), T1 + b * 8, T1 + b * 8 + 4, TMP + 8 * (2 * c + b))

    def cm2(c, b):
        cmul_pack(a, fo(c, b), acc(c, b, 0), acc(c, b, 1), WU[c] + b * 8, WU[c] + b * 8 + 4, TMP + 8 * (2 * c + b),
                  conj_w=True)

    exchange(1, False, cm1, unpack_w(1), [])
    exchange(2, True, cm2, unpack(WU[0], raw, 0, sK1), unpack(WU[1], raw, 1, sK1))
    for c in range(2):
        for u in range(2):
            cmul_pack(a, fo(c, u), acc(c, u, 0), acc(c, u, 1), T2 + u * 8, T2 + u * 8 + 4, TMP + 8 * (2 * c + u))
    while any(not callable(g[0]) and "lds" in g[0] or "store" in g[-1] for g in a.ops):
        a.burst(1)
    a.on = False
    for t in range(2):
        for c in range(2):
            for u in range(2):
                for var in range(2):
                    sc.mfma(acc(c, t, var), m1(t, u, var), fo(c, u), None if u == 0 else acc(c, t, var))
        rdy = sc.n + 2
        for rh in range(2):
            for c in range(2):
                for rl in range(2):
                    k = 4 * t + 2 * rh + rl
                    w = WU[c] + 2 * k
                    sc.add(f"v_fma_f32 v{w}, v{acc(c, t, 0) + 2 * rh + rl}, s{sB}, v{w}", rdy)
                    sc.add(f"v_fma_f32 v{w + 1}, v{acc(c, t, 1) + 2 * rh + rl}, s{sK0 if c else sK3}, v{w + 1}", rdy)
            for c in range(2):
                for rl in range(2):
                    k = 4 * t + 2 * rh + rl
                    w = WU[c] + 2 * k
                    sc.add(f"v_cvt_pk_bf16_f32 v{pos(raw, k, c)}, v{w}, v{w + 1}", rdy)
            k = 2 * t + rh
            for j in range(4):
                sc.add(f"v_add_u32 v{raw + 4 * k + j}, s{sC}, v{raw + 4 * k + j}", rdy)
            sc.add(f"buffer_store_dwordx4 {V(raw + 4 * k, 4)}, v{vx}, s[{SRD0}:{SRD0 + 3}], s{sF} offen offset:{k * 1024} sc1", rdy)
    sc.flush()
    point("st")
    n = len(a.ops)
    print(f"{nm}: {n} requests after the stores", file=sys.stderr)
    a.burst(n)
    mk.stash(a0, TMP)
    return n


def idle_phase(a, ph):
    nm = f"n{ph + 1}"
    vt0, vh = 12, 13
    if not ph:
        srd_ws(a, SRD0, "XP0", XP_SIZE)
    if FZ.ft_pf >> (1 - ph) & 1:
        srd_table(a, SRD1, "ft2")
        a(f"s_and_b32 s{sA}, s{sRB}, 3")
        a(f"s_and_b32 s{sB}, s{sMM}, 7")
        a(f"s_lshl3_add_u32 s{sA}, s{sA}, s{sB}")
        a(f"s_sub_u32 s{sA}, 31, s{sA}")
        a(f"s_mul_i32 s{sA}, s{sA}, {3 << 15}")
        a(f"v_lshl_add_u32 v{vh}, v0, 7, s{sA}")
        for k in range(3):
            a(f"s_mov_b32 s{sOP}, {k << 15}")
            a.raw(f"    buffer_load_dword {R(aDUM)}, v{vh}, s[{SRD1}:{SRD1 + 3}], s{sOP} offen")
    if ph:
        pre_setup(a, ph, vt0)
    else:
        st = f0.post(a, SRDF, 0, 1, 20, "s_waitcnt vmcnt(0)", True)
        a("s_barrier")
        a(st)
        mk(a, nm + "ak")
        st = f0.post(a, SRDF, 0, 2, 24)
        front_wait(a, nm, 16)
        mk(a, nm + "dr")
        rank_put(a, 16)
    a("s_barrier")
    if not ph:
        a(st)
        rank_get(a, 16)
        pre_setup(a, ph, vt0)
    for g in pre_ops(ph, vt0, nm):
        for x in g:
            x(a) if callable(x) else a(x)
    mk(a, nm + "is")
    a(f"v_mul_u32_u24 v{vh}, 5, v{vL}")
    a(f"v_lshrrev_b32 v{vh}, 1, v{vh}")
    a(f"v_lshlrev_b32 v{vh}, 7, v{vh}")
    a(f"s_mov_b32 s{sOP}, {HINT[ph]}")
    a("s_waitcnt vmcnt(0)")
    mk(a, nm + "dn")
    mk.stash(a, 16)
    if FZ.halt == 25 and ph:
        return
    a(f"s_cmp_lg_u32 s{sW}, 0")
    a(f"s_cbranch_scc1 {nm}_ok")
    a.label(f"{nm}_spin")
    a(f"buffer_load_dword v{vt0}, v{vh}, s[{SRDF}:{SRDF + 3}], s{sOP} offen sc1")
    budget(a, f"{nm}_ok")
    a(f"v_cmp_eq_u32 vcc, 0, v{vt0}")
    a(f"s_cbranch_vccnz {nm}_spin")
    a.label(f"{nm}_ok")
    a("s_barrier")


def classify(text):
    o = text.split()[0]
    if o.startswith("v_pk_") or o.startswith("v_dot2"):
        return "p", 4
    if o in TRANS or o.startswith("v_swap") or o.startswith("v_permlane"):
        return "v", 8
    if o.startswith("v_"):
        return "v", 4
    if o.startswith("ds_"):
        return "d", 4
    if o.startswith("buffer_"):
        return "b", 4
    if o.startswith("s_cbranch"):
        return "j", 10
    return "s", 4


class Item:
    def __init__(self, kind, cost, fn, key=None, gate=None, until=None, alt=None):
        self.kind, self.cost, self.fn, self.key, self.gate, self.until, self.alt = kind, cost, fn, key, gate, until, alt


class Slots:
    def __init__(self, a):
        self.a = a
        self.t, self.tM, self.tv, self.tc = 0, -100, -100, -100
        self.done, self.eta = {}, {}
        self.C, self.L, self.M, self.G = [], [], [], []
        self.fly = []
        self.feed = []
        self.pk = True
        self.stall = 0

    def item(self, op, key=None, gate=None, tag=None):
        k, c = classify(op)

        def fn():
            if op.startswith("v_cmp"):
                self.tc = self.t
            self.a(op, tag=tag)
        return Item(k, c, fn, key, gate)

    def mem(self, key, store=False, part=1.0):
        last = self.fly[-1] if self.fly else 0
        self.fly.append(max(self.t + FZ.lat, last + part * (FZ.srow if store else FZ.row)))
        self.eta[key] = self.fly[-1]
        if FZ.verbose:
            print(f"  {self.t:6.0f} issue {key} eta {self.fly[-1]:.0f} fly {self.inflight()}", file=sys.stderr)

    def inflight(self):
        return sum(1 for x in self.fly[-FZ.cap - 4:] if x > self.t)

    def run(self, it):
        if it.kind in "db":
            self.t = max(self.t, self.tv + 12)
        elif it.kind == "p":
            self.t = max(self.t, self.tM + 28)
        elif it.kind == "j":
            self.t = max(self.t, self.tc + 26)
        if it.kind in "vp":
            self.tv = self.t
        it.fn()
        self.t += it.cost
        if it.until is not None and self.eta.get(it.until, 0) > self.t:
            self.stall += self.eta[it.until] - self.t
            if FZ.verbose:
                print(f"  {self.t:6.0f} STALL {it.until} {self.eta[it.until] - self.t:.0f}", file=sys.stderr)
            self.t = self.eta[it.until]
        if it.key is not None:
            self.done[it.key] = self.t

    def ready(self, it):
        if it.kind == "j" and self.t < self.tc + 26:
            return False
        return it.gate is None or it.gate()

    def expand(self):
        while self.G and self.G[0].kind == "p" and not self.pk and self.G[0].alt:
            self.G[:1] = self.G[0].alt

    def heads(self, q, room, small):
        out = []
        for it in q:
            if it.kind == "p" or not self.ready(it) or it.cost > room or small and it.cost > 4:
                break
            if it.kind in "db" and any(x.kind == "v" for x in out) or it.kind == "j" and out:
                break
            out.append(it)
            room -= it.cost
        return out

    def place(self, picks):
        seqs = []
        for q, n in picks:
            seqs.append(q[:n])
            del q[:n]
        rank = lambda s: 0 if any(x.kind in "db" for x in s) else 2 if any(x.kind == "v" for x in s) else 1
        seqs.sort(key=lambda s: (rank(s), any(x.kind == "v" or x.until is not None for x in s)))
        for s in seqs:
            for it in s:
                self.run(it)

    def fill(self, room, streams, small=False):
        picks = []
        for q in streams:
            h = self.heads(q, room, small)
            if h:
                picks.append((q, len(h)))
                room -= sum(x.cost for x in h)
        return picks, room

    def mf(self, d, x, y, c, wait=None, urgent=False):
        self.t = self.tM = max(self.t, self.tM + 16)
        mfma(self.a, d, x, y, c)
        self.t += 8
        for f in self.feed:
            f()
        self.expand()
        W = [wait] if wait else []
        n = next((k for k, it in enumerate(self.G[:5]) if it.kind == "p"), None)
        if n is not None and self.pk:
            pre = self.G[:n + 1]
            cost = sum(x.cost for x in pre[:-1])
            if cost <= 16 and all(self.ready(x) and x.kind in "vps" for x in pre):
                picks, room = self.fill(20 - cost, (W, self.C, self.L, self.M), small=True)
                self.place(picks)
                while self.G and (n > 0 or self.G[0].kind == "p" and self.ready(self.G[0])):
                    self.run(self.G.pop(0))
                    n -= 1
                if self.G and self.G[0].kind in "vs" and self.G[0].until is None and self.ready(self.G[0]):
                    self.run(self.G.pop(0))
                else:
                    self.t += 4
                return
        if not W and self.C and self.C[0].cost >= 8 and self.ready(self.C[0]):
            self.run(self.C.pop(0))
            return
        picks, room = self.fill(8, (W, self.C, self.L, self.M, self.G), small=True)
        must = W or urgent or any(q is self.C for q, _ in picks)
        if room and not must and self.G and self.G[0].cost == 8 and self.ready(self.G[0]):
            self.run(self.G.pop(0))
            return
        self.place(picks)

    def need(self, key):
        while key not in self.done:
            q = next(q for q in (self.C, self.L, self.M, self.G) if any(it.key == key for it in q))
            self.run(q.pop(0))

    def pure(self, key):
        while key not in self.done:
            it = self.G.pop(0)
            self.run(it)
            if it.cost == 8:
                for f in self.feed:
                    f()
                picks, _ = self.fill(8, (self.M, self.L, self.C), small=True)
                self.place(picks)

    def flush(self):
        for q in (self.L, self.M, self.C, self.G):
            while q:
                self.run(q.pop(0))


def mlp_phase(a, final, behind):
    name = f"m{final + 1}"
    vx, vl0, vx2, vck, ve, vfl = 4, 5, 8, 9, 12, 14
    vq = (13, 4, 8, 10)
    X, ACC1, Z, vpl, vmk, CC = 16, 176, 232, 248, 249, 250
    GR, T = Z, Z + 8
    ACC2, EACC = 96, 176
    DIAG = (4, 6, 30, 70)
    sKC, sRS = sK0, sK2
    vo2, vs, vout, vor, vrd, vpk = 200, 201, 202, 203, 204, 205
    vred = (5, 6, 7)
    RES, RU, TMP = 208, 218, 244
    QS = (16, 32, 48, 64, 80, 176)
    QD = len(QS)
    SRDX, SRDH = SRD0, SRD3
    s = Slots(a)
    done = s.done
    act = {}
    log, sst, tested = [], {}, set()

    def fine(*key):
        if FZ.verbose:
            print(f"{s.t:6.0f} {key}", file=sys.stderr)
        if FZ.marks is not None:
            mk(a, name + key[0] + str(key[1]))
        for f in act.pop(key, ()):
            f()

    def at(key, f):
        act.setdefault(tuple(key), []).append(f)

    def note(tag):
        mk(a, name + tag)
        print(f"{name}{tag:4s} t={s.t:6.0f} stall={s.stall:.0f}", file=sys.stderr)

    def qreg(u, q):
        return QS[u % QD] + 4 * q

    def put(q, op, key=None, gate=None):
        q.append(s.item(op, key, gate))

    def vm(q, text, sreg=None, sexp=None, key=None, tag=None, again=True, gate=None, part=1.0, first=" sc1", m0=None):
        if m0 is not None and sst.get("m0") != m0:
            put(q, m0, gate=gate)
            sst["m0"] = m0
        if sreg is not None and sst.get(sreg) != sexp:
            put(q, sexp.replace("@", f"s{sreg}"), gate=gate)
            sst[sreg] = sexp

        def emit():
            a(text.replace("@", f"s{sreg}").replace(" sc1", first), tag=tag)
            log.append((key, text if again else None, sexp))
            s.mem(key, "store" in text, part)
        q.append(Item("b", 4, emit, key, gate))

    def wait_item(key, regs):
        return Item("s", 4, lambda: a.wait_regs(*regs), until=key)

    def lower(regs, thr):
        ops, r = [], [f"|v{x}|" for x in regs]
        while len(r) > 1:
            n = min(3, len(r))
            ops.append(f"{'v_min3_f32' if n == 3 else 'v_min_f32_e64'} v{vck}, " + ", ".join(r[:n]))
            r[:n] = [f"v{vck}"]
        return ops + [f"v_cmp_gt_f32 vcc, {fx(thr)}, v{vck}"]

    def unset(regs):
        ops, r = [], [f"v{x}" for x in regs]
        if len(r) > 2:
            n = len(r) - 1
            ops.append(f"{'v_max3_u32' if n == 3 else 'v_max_u32'} v{vck}, " + ", ".join(r[:n]))
            r[:n] = [f"v{vck}"]
        return ops + [f"v_cmp_u_f32 vcc, {r[0]}, {r[1]}"]

    def verify(keys, regs, test, lab, key):
        for k in keys:
            plan(k)

        def branch():
            idx = [k for k, e in enumerate(log) if e[0] in keys]
            rep = log[idx[0]:]
            assert len(idx) == len(keys) and not tested & {e[0] for e in rep}, lab
            tested.update(keys)
            young = len(log) - 1 - idx[-1]
            a(f"s_cbranch_vccnz {lab}_again", tag="nopad")
            a.label(f"{lab}_ok", keep=True)

            def stub():
                a.label(f"{lab}_again")
                a("s_nop 7")
                budget(a, f"{lab}_out")
                a(f"s_waitcnt vmcnt({max(0, 62 - len(rep))})")
                last = None
                for _, text, sexp in rep:
                    if text is None:
                        a.raw(f"    buffer_load_dword {R(aDUM)}, off, s[{SRDP}:{SRDP + 3}], 0")
                        continue
                    if sexp is not None and sexp != last:
                        a(sexp.replace("@", f"s{sRP}"))
                        last = sexp
                    a.raw("    " + text.replace("@", f"s{sRP}"))
                a(f"s_waitcnt vmcnt({young})")
                for x in test:
                    a(x)
                a(f"s_cbranch_vccnz {lab}_again")
                a.label(f"{lab}_out")
                a(f"s_branch {lab}_ok")
            a.tail.append(stub)
        w = wait_item(keys[-1], [V(r, 4) for r in regs])
        f0 = w.fn
        w.fn = lambda: ([s.need(k) for k in keys], f0())
        w.gate = lambda: all(k in done for k in keys)
        s.C.append(w)
        for x in test:
            put(s.C, x)
        s.C.append(Item("j", 10, branch, key))

    def xr(t, st):
        return X + t * 8 + st * 4

    def acc(ft, st):
        return ACC1 + (ft * 2 + st) * 4

    queue, sched = [], set()

    def x_load(t, h):
        return ("x", t, h), lambda key: vm(
            s.M, f"buffer_load_dwordx4 {V(xr(t, h), 4)}, v{vx2 if h else vx}, s[{SRDX}:{SRDX + 3}], @ offen sc1",
            sOQ, f"s_mov_b32 @, {8 * (19 - t) * XP_STR}", key, first=FZ.xf[final])

    def e_load(j):
        return ("e", j), lambda key: vm(
            s.M, f"buffer_load_dwordx4 v{vl0}, s[{SRD4}:{SRD4 + 3}], m0 offen offset:{(j & 3) * 1024} lds",
            key=key, tag="e", again=False, m0=f"s_add_u32 m0, s{sEB}, {2 * TILE + (j >> 2) * 4096}")

    def k_load(u, p):
        return ("k", u, p), lambda key: vm(
            s.M, f"buffer_load_dwordx4 v{vp}, s[{SRDP}:{SRDP + 3}], @ offen offset:{p * 256} lds",
            sF, f"s_mov_b32 @, {kblock(u) * KB_STR}", key, tag=f"k{u}", again=False,
            m0=f"s_add_u32 m0, s{sPK}, {(u - NP) * TILE + p * 768}")

    def p_load(u, p):
        return ("p", u, p), lambda key: vm(
            s.M, f"buffer_load_dwordx4 {R(preg(u, p), 4)}, v{vp}, s[{SRDP}:{SRDP + 3}], @ offen offset:{p * 256}",
            sF, f"s_mov_b32 @, {kblock(u) * KB_STR}", key)

    def q_load(u, q):
        return ("q", u, q), lambda key: vm(
            s.M, f"buffer_load_dwordx4 {V(qreg(u, q), 4)}, v{vq[q]}, s[{SRDQ}:{SRDQ + 3}], @ offen sc1",
            sOQ, f"s_mov_b32 @, {kblock(u) * H_STR}", key, first=FZ.qf[final])

    def r_load(p):
        srd_ = SRD2 if final else SRDX
        return ("r", p), lambda key: vm(
            s.M, f"buffer_load_dwordx2 {V(RES + 2 * p, 2)}, v{vo2}, s[{srd_}:{srd_ + 3}], @ offen sc1",
            sOP, f"s_mov_b32 @, {p * 4 * XP_STR}", key, part=0.6)

    def push(item, *gates, after=None, chain=None):
        queue.append((item[0], item[1], gates, after, chain))

    def issue(force=False):
        seen = set()
        for k, (key, f, gates, after, chain) in enumerate(queue):
            ok = all(g in done for g in gates) and chain not in seen
            if ok and after and not force:
                ok = done[after[0]] + after[1] <= s.t
            if ok:
                del queue[k]
                f(key)
                sched.add(key)
                return True
            if chain:
                seen.add(chain)
        return False

    def plan(key):
        while key not in sched:
            assert issue(True), key

    def feed_m():
        if not any(it.kind == "b" for it in s.M) and s.inflight() < FZ.cap:
            issue()
    s.feed.append(feed_m)

    KT = FZ.ktail
    units = [[(u, q) for q in range(4)] for u in range(NS - KT)]
    if FZ.split0:
        units[:1] = [units[0][:2], units[0][2:]]
    units += [[(u, q) for u in range(NS - KT, NS)] for q in (1, 2, 3, 0)]
    xorder = list(range(FZ.dbl[0] + 1)) + [19] + list(range(FZ.dbl[0] + 1, 19))
    for t in xorder:
        push(x_load(t, 0))
        push(x_load(t, 1))
    if final:
        for j in range(15):
            push(e_load(j), "ebar")
    for u in range(FZ.pre_p[final]):
        for p in range(5):
            done[("p", u, p)] = 0
            sched.add(("p", u, p))
    pushed = set(range(FZ.pre_p[final]))
    parked = set(range(NP, NP + FZ.park[final]))

    def push_p(u):
        if u < NS and u not in pushed:
            pushed.add(u)
            for p in range(5):
                if u in parked:
                    push(k_load(u, p), "xok" if u == NP else "ebar")
                else:
                    push(p_load(u, p), *(["xok"] if u < NP else [("xfree", 19)] if u == NP else [("qfree", u - NP - 1, 3)]))

    for u, q in [x for un in units for x in un]:
        for k in range(FZ.p_lead + 1):
            push_p(u + k)
        if (u, q) == (NS - KT, FZ.r_q):
            for p in range(5):
                push(r_load(p), "rgo")
        g = ["qset", ("gelu", u >> 1)] + ([] if final else ["ready"])
        if u >= QD:
            g.append(("qfree", u - QD, q))
        elif u < 5:
            g.append(("xfree", 2 * u + (q >> 1)))
        else:
            g.append("edone" if final else ("s5", 1))
        push(q_load(u, q), *g, after=(("gelu", u >> 1), FZ.qdel[final]), chain="q")

    a(f"s_lshl_b32 s{sC}, s{sRB}, 10")
    a(f"s_lshl_b32 s{sA}, s{sW}, 8")
    a(f"s_add_u32 s{sC}, s{sC}, s{sA}")
    a(f"v_lshlrev_b32 v{vx}, 15, v{vG}")
    a(f"v_lshl_add_u32 v{vx}, v{vI}, 4, v{vx}")
    a(f"v_add_u32 v{vx}, s{sC}, v{vx}")
    a(f"v_add_u32 v{vx2}, {XP_STR}, v{vx}")
    a(f"v_lshlrev_b32 v{vl0}, 4, v{vL}")
    a(f"v_add_u32 v{vl0 + 1}, 0x10000, v{vl0}")
    a(f"v_add_u32 v{vl0 + 2}, 0x20000, v{vl0}")
    a(f"s_mov_b64 s[{SRDH}:{SRDH + 1}], s[{SRDQ}:{SRDQ + 1}]")
    a(f"s_mov_b32 s{SRDH + 2}, {H_SIZE}")
    a(f"s_mov_b32 s{SRDH + 3}, 0x20000")
    a(f"v_cmp_eq_u32 vcc, 0, v{vG}")
    a(f"v_mov_b32 v{vmk}, 0xffff0000")
    a(f"v_cndmask_b32 v{vmk}, 0, v{vmk}, vcc")
    for r in range(4):
        m = 0x1000010000100001 << r
        a(f"s_mov_b32 s{DIAG[r]}, {m & 0xffffffff:#x}")
        a(f"s_mov_b32 s{DIAG[r] + 1}, {m >> 32:#x}")
    a(f"s_bfe_u32 s{sA}, s{sMM}, 0x10002")
    a(f"s_lshl_b32 s{sA}, s{sA}, 6")
    a(f"s_add_u32 s{sCQ}, s{sFL}, s{sA}")
    a(f"s_lshl4_add_u32 s{sD}, s{sW}, s{sCQ}")
    a(f"s_mul_i32 s{sA}, s{sW}, {54 * H_STR}")
    a(f"s_add_u32 s{SRDQ + 2}, s{sA}, {54 * H_STR}")
    a(f"s_lshl4_add_u32 s{sA}, s{sD}, s{sA}")
    a(f"v_lshrrev_b32 v{vq[0]}, 1, v{vG}")
    a(f"v_and_b32 v{vck}, 1, v{vG}")
    a(f"v_mad_u32_u24 v{vq[0]}, v{vq[0]}, 14, v{vck}")
    a(f"v_lshlrev_b32 v{vq[0]}, 15, v{vq[0]}")
    a(f"v_lshl_add_u32 v{vq[0]}, v{vI}, 4, v{vq[0]}")
    a(f"v_add_u32 v{vq[0]}, s{sA}, v{vq[0]}")
    a(f"v_xor_b32 v{vq[3]}, 0x300, v{vq[0]}")
    a(f"s_mov_b32 s{sKC}, {fx(H_OFF)}")
    a(f"s_mov_b32 s{sKC + 1}, {fx(H_OFF)}")
    a(f"s_mov_b32 s{sRS}, {fx(2.0 ** (-S_X[1] if final else -UP[0]))}")
    a(f"s_mov_b32 s{sRS + 1}, 0xffff0000")
    if final:
        srd_table(a, SRD4, "ft2")
        a(f"s_mul_i32 s{sB}, s{sMM}, 5")
        a(f"s_lshr_b32 s{sB}, s{sB}, 1")
        a(f"s_mul_i32 s{sA}, s{sB}, {TILE}")
        a(f"s_add_u32 s{SRD4}, s{SRD4}, s{sA}")
        a(f"s_addc_u32 s{SRD4 + 1}, s{SRD4 + 1}, 0")
        a(f"s_sub_u32 s{SRD4}, s{SRD4}, {2 * TILE}")
        a(f"s_subb_u32 s{SRD4 + 1}, s{SRD4 + 1}, 0")
        a(f"s_mov_b32 s{SRD4 + 2}, {5 * TILE}")
        a(f"s_lshl_b32 s{sA}, s{sB}, 16")
        a(f"s_add_u32 s{sA}, s{sA}, s{sC}")
        a(f"v_lshlrev_b32 v{ve}, 14, v{vG}")
        a(f"v_lshl_add_u32 v{ve}, v{vI}, 4, v{ve}")
        a(f"v_add_u32 v{ve}, s{sA}, v{ve}")
        srd_ws(a, SRD2, "X3", XP_SIZE)
        srd(a, SRD1, P_OUT, 0, SEQ * DM * 2)
        a(f"s_lshl_b32 s{sB}, s{sRB}, 13")
        a(f"s_lshl2_add_u32 s{sA}, s{sMM}, s{sW}")
        a(f"s_lshl_b32 s{sA}, s{sA}, 7")
        a(f"s_add_u32 s{sA}, s{sA}, s{sB}")
        a(f"v_lshl_add_u32 v{vpl}, v{vL}, 20, s{sA}")
        a(f"s_bfe_u32 s{sA}, s{sD}, 0x20005")
        a(f"s_lshl3_add_u32 s{sA}, s{sDC}, s{sA}")
        a(f"s_lshl_b32 s{sA}, s{sA}, 7")
        a(f"s_add_u32 s{sA}, s{sA}, s{sB}")
        a(f"v_and_b32 v{vfl}, 1, v{vI}")
        a(f"v_lshl_add_u32 v{vfl}, v{vfl}, 9, s{sA}")
    else:
        srd_ws(a, SRD1, "SS2", SS2_SIZE)
        a(f"s_lshl4_add_u32 s{sA}, s{sRB}, s{sMM}")
        a(f"s_lshl_b32 s{sA}, s{sA}, 7")
        a(f"s_add_u32 s{sA}, s{sA}, {READY}")
        a(f"v_lshl_add_u32 v{vpl}, v0, 20, s{sA}")
        a(f"s_lshl2_add_u32 s{sA}, s{sRB}, s{sW}")
        a(f"s_lshl_b32 s{sA}, s{sA}, 9")
        a(f"v_and_b32 v{vfl}, 3, v{vI}")
        a(f"v_lshl_add_u32 v{vfl}, v{vfl}, 7, s{sA}")
    a.raw(f"    s_waitcnt vmcnt({behind})")
    mk(a, name + "go")
    for _ in range(FZ.look):
        issue()
    s.flush()
    a("s_barrier")
    if not final:
        vm(s.M, f"buffer_store_dword v{vl0 + 1}, v{vpl}, s[{SRDF}:{SRDF + 3}], 0 offen sc1", again=False, part=0.2)
    mk.stash(a, Z)

    TA, TB, TE = (0, 1, 2, 3), (4, 5, 6), (0, 1, 2)
    groups = [("a", TA, t) for t in range(19)] + [("b", TB, t) for t in range(20)]
    groups.insert(19 + FZ.b_pre, ("a", TA, 19))
    if final:
        groups += [("e", TE, t) for t in range(20)]
    seq = [(kind, ft, t) for kind, tl, t in groups for ft in tl]
    rd_ = {"n": 0, "free": 0}

    def wreg(n):
        return WR + (n % NW) * 4

    def feed_l():
        while rd_["n"] < min(rd_["free"] + NW, len(seq)) and len(s.L) < 2:
            kind, ft, t = seq[rd_["n"]]
            if kind == "e" and "e0" not in done:
                return
            off = (ft + (2 if kind == "e" else 1)) * TILE + (19 - t) * 1024
            put(s.L, f"ds_read_b128 {R(wreg(rd_['n']), 4)}, v{vl0 + (off >> 16)} offset:{off & 0xffff}", ("rd", rd_["n"]))
            rd_["n"] += 1
    s.feed.append(feed_l)

    def rd_need(n):
        while ("rd", n) not in done:
            feed_l()
            if not s.L:
                s.need("e0")
                continue
            s.run(s.L.pop(0))

    def prep_x(ts):
        keys = [("x", t, h) for t in xorder if t in ts for h in range(2)]
        regs = [xr(k[1], k[2]) for k in keys]
        verify(keys, regs, lower(regs, T_X[final]), f"{name}_x{ts[0]}", "xok" if xorder[-1] in ts else None)
        for t in ts:
            ops = [f"v_swap_b32 v{xr(t, 0) + 2}, v{xr(t, 1)}", f"v_swap_b32 v{xr(t, 0) + 3}, v{xr(t, 1) + 1}"]
            if t == 19:
                for st in range(2):
                    if final:
                        ops.append(f"v_accvgpr_write_b32 {R(vdc + st)}, v{xr(t, st)}")
                    ops.append(f"v_bfi_b32 v{xr(t, st)}, v{vmk}, 0, v{xr(t, st)}")
            for op in ops[:-1]:
                put(s.C, op)
            put(s.C, ops[-1], ("sw", t))

    def gram(t, wait=None):
        s.need(("sw", t))
        for st in range(2):
            s.mf(GR + 4 * st, xr(t, st), xr(t, st), None if t == 0 else GR + 4 * st, wait if st else None)

    def stats():
        t0 = s.tM + 40
        ops = []
        for r in range(4):
            for st in range(2):
                prev = "0" if r == 0 else f"v{T + 2 * st}"
                ops.append(f"v_cndmask_b32_e64 v{T + 2 * st}, {prev}, v{GR + 4 * st + r}, s[{DIAG[r]}:{DIAG[r] + 1}]")
        for op in ("v_permlane32_swap_b32", "v_permlane16_swap_b32"):
            ops += [f"v_mov_b32 v{T + 2 * st + 1}, v{T + 2 * st}" for st in range(2)]
            ops += [f"{op} v{T + 2 * st}, v{T + 2 * st + 1}" for st in range(2)]
            ops += [f"v_add_f32 v{T + 2 * st}, v{T + 2 * st}, v{T + 2 * st + 1}" for st in range(2)]
        ops += [f"v_fmamk_f32 v{T + 2 * st}, v{T + 2 * st}, {fx((1 + EPS) / DM)}, v{T + 4}" for st in range(2)]
        ops += [f"v_rsq_f32 v{T + 2 * st + 1}, v{T + 2 * st}" for st in range(2)]
        ops += [f"v_mul_f32 v{CC + 4 + st}, v{T + 2 * st}, v{T + 2 * st + 1}" for st in range(2)]
        ops += [f"v_cvt_pk_bf16_f32 v{T + 2 * st}, v{CC + 4 + st}, v{CC + 4 + st}" for st in range(2)]
        ops += [f"v_bfi_b32 v{xr(19, st)}, v{vmk}, v{T + 2 * st}, v{xr(19, st)}" for st in range(2)]
        late = [f"v_mul_f32 v{CC + st}, {fx(GELU_K0)}, v{T + 2 * st + 1}" for st in range(2)]
        late += [f"v_mul_f32 v{T + 2 * st}, v{T + 2 * st + 1}, v{T + 2 * st + 1}" for st in range(2)]
        late += [f"v_mul_f32 v{T + 2 * st}, {fx(0.044715)}, v{T + 2 * st}" for st in range(2)]
        late += [f"v_mul_f32 v{CC + 2 + st}, v{CC + st}, v{T + 2 * st}" for st in range(2)]
        if not final:
            late += [f"v_mul_f32 v{CC + 4 + st}, {fx(2.0 ** -S_LO)}, v{CC + 4 + st}" for st in range(2)]
        put(s.G, f"v_mov_b32 v{T + 4}, {fx(EPS * EPS * 4.0 ** S_X[final])}")
        put(s.G, f"v_xor_b32 v{vq[1]}, 0x100, v{vq[0]}")
        put(s.G, f"v_xor_b32 v{vq[2]}, 0x200, v{vq[0]}", "qset")
        put(s.G, ops[0], gate=lambda: s.t >= t0)
        for op in ops[1:-1]:
            put(s.G, op)
        put(s.G, ops[-1], "stats")
        for op in late:
            put(s.G, op)

    def poll(key, off):
        lab = f"{name}_{key}"
        text = f"buffer_load_dword v{vmk}, v{vfl}, s[{SRDF}:{SRDF + 3}], @ offen sc1"
        test = f"v_cmp_eq_u32 vcc, 0, v{vmk}"

        def branch():
            a(f"s_cbranch_vccnz {lab}_spin", tag="nopad")
            a.label(f"{lab}_ok", keep=True)

            def spin():
                a.label(f"{lab}_spin")
                a(f"s_mov_b32 s{sRP}, {off}")
                a(text.replace("@", f"s{sRP}"))
                a("s_waitcnt vmcnt(0)")
                budget(a, f"{lab}_ok")
                a(test)
                a(f"s_cbranch_vccnz {lab}_spin")
                a(f"s_branch {lab}_ok")
            a.tail.append(spin)

        def check():
            s.C.append(wait_item(("i", key), [f"v{vmk}"]))
            put(s.C, test)
            s.C.append(Item("j", 10, branch, key))
        return (lambda: vm(s.C, text, sE, f"s_mov_b32 @, {off}", ("i", key), again=False, part=0.2)), check

    if final:
        ix, cx = poll("rgo", PX)

        def signal():
            s.C.append(Item("s", 4, lambda: a.wait_tag("x3"), until="x3"))
            vm(s.C, f"buffer_store_dword v{vl0 + 1}, v{vpl}, s[{SRDF}:{SRDF + 3}], @ offen sc1", sE, f"s_mov_b32 @, {PX}",
               again=False, part=0.2)

        def e_ok():
            plan(("e", 14))
            s.C.append(Item("s", 4, lambda: (s.need(("e", 14)), a.wait_tag("e")), until=("e", 14),
                            gate=lambda: ("e", 14) in done))
            put(s.C, "s_barrier", "e0")
        at(("b", FZ.e_ok), e_ok)
        at(FZ.x3[0], signal)
        at(FZ.x3[1], ix)
        at(FZ.x3[2], lambda: (s.need("oset"), cx()))
    else:
        i_, c_ = poll("ready", READY)
        at(FZ.rd_at[0], lambda: (s.need("stats"), i_()))
        at(FZ.rd_at[1], c_)
        at(FZ.res_at, lambda: (s.need("oset"), done.setdefault("rgo", s.t)))

    at(("b", FZ.b_pre + FZ.ebar), lambda: put(s.C, "s_barrier", "ebar"))

    post = []

    def gelu(ft):
        Zs = Z + 8 * (ft & 1)
        prs = [(acc(ft, st) + h, Zs + st * 4 + h, st) for st in range(2) for h in (0, 2)]
        t0 = s.tM + 40

        def stage(pk, plain, key=None, gate=None):
            for n, (x, z, st) in enumerate(prs):
                k = key if n == 3 else None
                sel = f"op_sel:[0,{st},{st}] op_sel_hi:[1,{st},{st}]"
                it = s.item(pk.format(x=V(x, 2), z=V(z, 2), sel=sel), k, gate)
                it.alt = [s.item(plain.format(x=V(x + e), z=V(z + e), c0=V(CC + st), c2=V(CC + 2 + st), c4=V(CC + 4 + st)),
                                 k if e else None, gate) for e in range(2)]
                s.G.append(it)

        stage("v_pk_mul_f32 {z}, {x}, {x}", "v_mul_f32 {z}, {x}, {x}", gate=lambda: s.t >= t0)
        stage("v_pk_fma_f32 {z}, {z}, %s, %s {sel}" % (V(CC + 2, 2), V(CC, 2)), "v_fma_f32 {z}, {z}, {c2}, {c0}")
        stage("v_pk_mul_f32 {z}, {z}, {x}", "v_mul_f32 {z}, {z}, {x}")
        close()
        for k in range(8):
            put(s.G, f"v_exp_f32 v{Zs + k}, v{Zs + k}")
        stage("v_pk_fma_f32 {z}, {z}, %s, %s {sel}" % (V(CC + 4, 2), V(CC + 4, 2)), "v_fma_f32 {z}, {z}, {c4}, {c4}")
        for k in range(8):
            put(s.G, f"v_rcp_f32 v{Zs + k}, v{Zs + k}")
        if final:
            stage("v_pk_fma_f32 {z}, {z}, {x}, s[%d:%d]" % (sKC, sKC + 1), "v_fma_f32 {z}, {z}, {x}, s%d" % sKC, ("s5", ft))
        else:
            stage("v_pk_mul_f32 {z}, {z}, {x}", "v_mul_f32 {z}, {z}, {x}", ("s5", ft))

        def out():
            for k in range(4):
                put(s.G, f"v_cvt_pk_bf16_f32 v{Zs + k}, v{Zs + 2 * k}, v{Zs + 2 * k + 1}")
            if ft == 6:
                put(s.G, f"v_add_u32 v{vo}, s{sMSK}, v{vo}")
            put(s.G, f"v_permlane16_swap_b32 v{Zs}, v{Zs + 2}")
            put(s.G, f"v_permlane16_swap_b32 v{Zs + 1}, v{Zs + 3}")
            vm(s.G, f"buffer_store_dwordx4 {V(Zs, 4)}, v{vo}, s[{SRDH}:{SRDH + 3}], @ offen sc1", sHO,
               f"s_mov_b32 @, {ft * 2 * H_STR}", ("gelu", ft), again=False, first=FZ.hf)
        post.append(out)

    def close():
        while post:
            post.pop()()

    def out_setup():
        g = lambda op, key=None: put(s.G, op, key)
        g(f"v_lshl_add_u32 v{vpk}, v{vL}, 4, s{sPK}", "vpk")
        g(f"s_mul_i32 s{sGA}, s{sDC}, {20 * XP_STR}")
        g(f"s_lshl3_add_u32 s{sGA}, s{sD}, s{sGA}")
        g(f"v_lshlrev_b32 v{vo2}, 14, v{vG}")
        g(f"v_lshl_add_u32 v{vo2}, v{vI}, 3, v{vo2}")
        g(f"v_add_u32 v{vo2}, s{sGA}, v{vo2}", "oset")
        g(f"v_lshrrev_b32 v{vor}, 1, v{vG}")
        g(f"s_mov_b32 s{sGA}, {0x3f800000 + (0x3f80 if final else (127 + S_LO) << 7):#x}")
        g(f"v_mul_lo_u32 v{vor}, v{vor}, s{sGA}", "vor")
        g(f"v_lshl_add_u32 v{vrd}, v{vL}, 4, s{sEB}")
        for ql in (1, 2, 3):
            g(f"s_xor_b32 s{sGA}, s{sW}, {ql}")
            g(f"s_mul_i32 s{sGA}, s{sGA}, 15360")
            if ql > 1:
                g(f"s_add_u32 s{sGA}, s{sGA}, {(ql - 1) * 5120}")
            g(f"v_lshl_add_u32 v{vred[ql - 1]}, v{vL}, 4, s{sGA}")
        if final:
            g(f"s_bfe_u32 s{sGA}, s{sD}, 0x10004")
            g(f"s_lshl_b32 s{sGA}, s{sGA}, 3")
            g(f"s_lshr_b32 s{sGB}, s{sD}, 9")
            g(f"s_lshl4_add_u32 s{sGA}, s{sGB}, s{sGA}")
            g(f"s_bfe_u32 s{sGB}, s{sD}, 0x20005")
            g(f"s_lshl_b32 s{sGB}, s{sGB}, 8")
            g(f"s_add_u32 s{sGA}, s{sGA}, s{sGB}")
            g(f"s_and_b32 s{sGB}, s{sD}, 128")
            g(f"s_add_u32 s{sGA}, s{sGA}, s{sGB}")
            g(f"s_and_b32 s{sGB}, s{sD}, 256")
            g(f"s_lshl2_add_u32 s{sGA}, s{sGB}, s{sGA}")
            g(f"v_and_b32 v{vout}, 1, v{vI}")
            g(f"v_lshlrev_b32 v{vout}, 6, v{vout}")
            g(f"v_lshrrev_b32 v{vs}, 1, v{vI}")
            g(f"v_add3_u32 v{vout}, v{vout}, v{vs}, s{sGA}")
            g(f"v_mul_u32_u24 v{vout}, 1280, v{vout}")
            g(f"s_mul_i32 s{sGA}, s{sDC}, 160")
            g(f"v_lshl_add_u32 v{vout}, v{vG}, 3, v{vout}")
            g(f"v_add_u32 v{vout}, s{sGA}, v{vout}", "setup")
        else:
            g(f"v_lshrrev_b32 v{vs}, 1, v{vI}")
            g(f"v_lshlrev_b32 v{vs}, 4, v{vs}")
            g(f"v_and_b32 v{vout}, 1, v{vI}")
            g(f"v_lshl_add_u32 v{vs}, v{vout}, 2, v{vs}")
            g(f"v_and_b32 v{vout}, 1, v{vG}")
            g(f"v_lshl_add_u32 v{vs}, v{vout}, 3, v{vs}")
            g(f"v_lshrrev_b32 v{vout}, {0 if FZ.x_nocnt else 1}, v{vG}")
            g(f"v_lshl_add_u32 v{vs}, v{vout}, 20, v{vs}")
            g(f"s_lshl_b32 s{sGA}, s{sD}, 3")
            g(f"v_add_u32 v{vs}, s{sGA}, v{vs}")
            g(f"v_add_u32 v{vout}, s{sDC}, v{vG}")
            g(f"v_min_u32 v{vout}, 1, v{vout}")
            g(f"v_mul_u32_u24 v{vout}, 0xffff, v{vout}")
            g(f"v_lshlrev_b32 v{vout}, 16, v{vout}")
            g(f"v_or_b32 v{vout}, 0xffff, v{vout}")
            g(f"v_mov_b32 v{TMP + 2}, 0")
            g(f"v_mov_b32 v{TMP + 3}, 0")
            g(f"s_mov_b64 s[{DIAG[0]}:{DIAG[0] + 1}], 0xffff")
            g(f"s_mov_b32 s{sGB}, {-S_LO * 0x800080:#x}", "setup")

    gl, rest = {}, xorder[1:]
    for t in range(19):
        n = 2 if t in FZ.dbl else 1
        gl[t], rest = sorted(rest[:n]), rest[n:]
    rd_need(NW - 1)
    prep_x([0])
    n = 0

    def grp_wait(k):
        nx = sum(len(g[1]) for g in groups[:k + 1]) - 1
        if k >= len(groups):
            return None
        return Item("s", 4, lambda: (rd_need(nx), a.wait_regs(R(wreg(nx), 4))))

    gram(0, grp_wait(0))
    for k, (kind, tl, t) in enumerate(groups):
        fine(kind, t)
        grams = gl.get(t, []) if kind == "a" else []
        if kind == "a" and t == 19:
            s.need("stats")
        if kind == "e" and t == 0:
            s.need(("s5", 2))
            for st in range(2):
                put(s.C, f"v_accvgpr_read_b32 v{xr(19, st)}, {R(vdc + st)}", ("dc", st))
        if kind == "e" and t == 19:
            s.need(("dc", 1))
        hi = sum(len(g[1]) for g in groups[:k + 2])
        for j, ft in enumerate(tl):
            for st in range(2):
                if grams and 2 * j + st == (FZ.xc_at if len(grams) == 1 else 0):
                    prep_x(grams)
                d = (EACC if kind == "e" else ACC1) + (ft * 2 + st) * 4
                last = j == len(tl) - 1 and st and not grams
                if st:
                    rd_["free"] = n + 1
                s.mf(d, wreg(n), xr(t, st), None if t == 0 else d, grp_wait(k + 1) if last else None,
                     urgent=rd_["n"] - len(s.L) < hi)
            n += 1
        for g in grams:
            gram(g, grp_wait(k + 1) if g == grams[-1] else None)
        if grams and xorder[-1] in grams:
            stats()
        if kind == ("e" if final else "b"):
            done[("xfree", t)] = s.t
        if kind == "a" and t == 19:
            note("A")
            for ft in TA:
                gelu(ft)
            close()
            if FZ.pure[final]:
                s.pure(("gelu", FZ.pure[final] - 1))
        if kind == "b" and t == 19:
            for ft in TB:
                gelu(ft)
            close()
            if FZ.in_b[final]:
                s.pure(("gelu", FZ.in_b[final] - 1))
    if final:
        note("E")
        t0 = s.tM + 40
        for et in TE:
            d = EACC + et * 8
            for k in range(4):
                put(s.C, f"v_cvt_pk_bf16_f32 v{d + k}, v{d + 2 * k}, v{d + 2 * k + 1}", gate=lambda: s.t >= t0)
            vm(s.C, f"buffer_store_dwordx4 {V(d, 4)}, v{ve}, s[{SRD2}:{SRD2 + 3}], @ offen sc1",
               sE, f"s_mov_b32 @, {et * 4 * XP_STR}", {1: "edone", 2: "x3"}.get(et), tag="x3", again=False)
        epi, s.C = s.C, []
        s.pure(("gelu", FZ.in_e - 1))
    out_setup()
    s.pk = bool(FZ.g2pk[final])
    mk.stash(a, vck)

    def accr(p, q):
        return ACC2 + (q * 5 + p) * 4

    def q_check(n):
        keys = [("q",) + x for x in units[n]]
        regs = [qreg(*x) for x in units[n]]
        fix = [f"v_or_b32 v{qreg(u, q)}, v{qreg(u, q)}, v{vor}" for u, q in units[n] if u == NS - 1]
        if fix:
            s.need("vor")
        verify(keys, regs, fix + (lower(regs, T_H) if final else unset(regs)), f"{name}_q{n}", ("qok", n))

    def writes(q):
        t0 = s.tM + 40
        s.need("setup")
        for p in range(5):
            put(s.L, f"ds_write_b128 v{vred[q - 1]}, {R(accr(p, q), 4)} offset:{p * 1024}", ("wr", q, p),
                gate=lambda p=p: s.t >= max(t0 - 16 * (4 - p), t0 - 40 + FZ.wgap * p))

    def reads(q, k):
        for p in range(5):
            put(q, f"ds_read_b128 {R(accr(p, k), 4)}, v{vrd} offset:{(k - 1) * 5120 + p * 1024}")

    def res_ops():
        plan(("r", 4))
        w = wait_item(("r", 4), [V(RES, 10)])
        w.gate = lambda: s.eta.get(("r", 4), 1e9) <= s.t
        f0 = w.fn
        w.fn = lambda: (s.need(("r", 4)), f0())
        s.G.append(w)
        for p in range(5):
            for h in range(2):
                u_, r, d = RU + 2 * h, RES + 2 * p + h, accr(p, 0) + 2 * h
                put(s.G, f"v_lshlrev_b32 v{u_}, 16, v{r}")
                put(s.G, f"v_and_b32 v{u_ + 1}, s{sRS + 1}, v{r}")
                put(s.G, f"v_fmac_f32 v{d}, s{sRS}, v{u_}")
                put(s.G, f"v_fmac_f32 v{d + 1}, s{sRS}, v{u_ + 1}", ("res", p) if h else None)

    def unpark(u):
        ok = lambda: "vpk" in done and ("k", u, 4) in done and s.eta[("k", u, 4)] <= s.t
        plan(("k", u, 4))
        s.L.append(Item("s", 4, lambda: (s.need("vpk"), s.need(("k", u, 4)), a.wait_tag(f"k{u}")), until=("k", u, 4), gate=ok))
        for p in range(5):
            put(s.L, f"ds_read_b128 {R(preg(u, p), 4)}, v{vpk} offset:{(u - NP) * TILE + p * 1024}", ("p", u, p))
            sched.add(("p", u, p))

    def g_bar():
        for u in parked:
            s.need(("p", u, 4))
        put(s.C, "s_waitcnt lgkmcnt(0)")
        put(s.C, "s_barrier")

    for u in parked:
        at(("g", u - NP), lambda u=u: unpark(u))
    at(("g", FZ.gbar), g_bar)
    def post_at(where):
        if not final and FZ.post == where:
            vm(s.C, f"buffer_store_dword v{vl0 + 1}, v{vpl}, s[{SRDF}:{SRDF + 3}], @ offen sc1", sE,
               f"s_mov_b32 @, {POST - READY}", key="post",
               again=False, part=0.2)
            s.need("post")

    q_check(0)
    if final:
        if FZ.split0:
            q_check(1)
        s.C += epi
    seen = set()
    for n, un in enumerate(units):
        tailq = un[0][1] if len({u for u, _ in un}) > 1 or KT == 1 and un[0][0] == NS - 1 else None
        s.need(("qok", n))
        left = 5 * len(un)
        if tailq == 1:
            res_ops()
        if tailq == 0:
            s.need(("wr", 2, 4))
            put(s.C, "s_waitcnt lgkmcnt(0)")
            put(s.C, "s_barrier", "bar1")
            s.need("bar1")
            post_at("bar1")
            writes(3)
            reads(s.L, 1)
            reads(s.L, 2)
        elif tailq is not None and tailq > 1:
            writes(tailq - 1)
        for u, q in un:
            if u not in seen:
                fine("g", u)
                if u == 1:
                    note("g1")
                for p in range(5):
                    plan(("p", u, p))
                    s.need(("p", u, p))
                seen.add(u)
            for p in range(5):
                if left == min(FZ.qc_rem, 5 * len(un)) and n + 1 < len(units) and not (final and FZ.split0 and n == 0):
                    q_check(n + 1)
                if tailq == 0:
                    s.need(("res", p))
                if s.eta.get(("p", u, p), 0) > s.t:
                    s.stall += s.eta[("p", u, p)] - s.t
                    if FZ.verbose:
                        print(f"  {s.t:6.0f} STALL p {u} {p} {s.eta[('p', u, p)] - s.t:.0f}", file=sys.stderr)
                    s.t = s.eta[("p", u, p)]
                s.mf(accr(p, q), preg(u, p), qreg(u, q), None if u == 0 else accr(p, q))
                left -= 1
            done[("qfree", u, q)] = s.t
    s.flush()
    assert not queue and not act, (queue, act)
    a("s_waitcnt lgkmcnt(0)")
    a("s_barrier")
    reads(s.L, 3)
    s.flush()
    post_at("bar2")
    for p in range(5):
        for h in (0, 2):
            a(f"v_pk_add_f32 {V(accr(p, 1) + h, 2)}, {V(accr(p, 1) + h, 2)}, {V(accr(p, 2) + h, 2)}")
    for p in range(5):
        for h in (0, 2):
            a(f"v_pk_add_f32 {V(accr(p, 0) + h, 2)}, {V(accr(p, 0) + h, 2)}, {V(accr(p, 1) + h, 2)}")
    for p in range(5):
        r = accr(p, 0)
        for h in (0, 2):
            a(f"v_pk_add_f32 {V(r + h, 2)}, {V(r + h, 2)}, {V(accr(p, 3) + h, 2)}")
        a(f"v_cvt_pk_bf16_f32 v{r}, v{r}, v{r + 1}")
        a(f"v_cvt_pk_bf16_f32 v{r + 1}, v{r + 2}, v{r + 3}")
        if final:
            a(f"buffer_store_dwordx2 {V(r, 2)}, v{vout}, s[{SRD1}:{SRD1 + 3}], 0 offen offset:{p * 32}")
        else:
            a(f"s_mov_b32 s{sOP}, {p * 4 * XP_STR}")
            a(f"buffer_store_dwordx2 {V(r, 2)}, v{vo2}, s[{SRDX}:{SRDX + 3}], s{sOP} offen sc1")
    if not final:
        for p in range(5):
            r = accr(p, 0)
            for h in range(2):
                a(f"v_add_u32 v{r + 2 + h}, s{sGB}, v{r + h}")
            if p == 0:
                a(f"v_and_b32 v{r + 2}, v{vout}, v{r + 2}")
        for p in range(5):
            for h in range(2):
                r = accr(p, 0) + 2 + h
                a(f"v_dot2c_f32_bf16 v{TMP + 2 + h}, v{r}, v{r}")
        z = TMP + 2
        a(f"v_add_f32 v{z}, v{z}, v{z + 1}")
        for op in ("v_permlane32_swap_b32", "v_permlane16_swap_b32"):
            a(f"v_mov_b32 v{z + 1}, v{z}")
            a(f"{op} v{z}, v{z + 1}")
            a(f"v_add_f32 v{z}, v{z}, v{z + 1}")
        a(f"v_cndmask_b32_e64 v{z}, 1.0, v{z}, s[{DIAG[0]}:{DIAG[0] + 1}]")
        a(f"{FZ.x_op} v{z}, v{vs}, s[{SRD1}:{SRD1 + 3}], 0 offen sc1".replace("-", "_"), tag="out")
    post_at("end")
    mk(a, name + "end")


def role_fused(a):
    if Cfg.stamp:
        mk.names.append("start")
        mk.pend.append(0)
    f0.front(a, mk.fixed)
    begin(a)
    mk.stash(a, 4)
    for ph in range(0 if FZ.halt == 10 else 2):
        a(f"s_cmp_ge_u32 s{sT}, {NCOL}")
        a(f"s_cbranch_scc1 idle{ph}", tag="nopad")
        pend = list(mk.pend)

        def idle(ph=ph, pend=pend):
            keep, mk.pend = mk.pend, pend
            a.label(f"idle{ph}")
            idle_phase(a, ph)
            a(f"s_branch join{ph}")
            mk.pend = keep
        a.tail.append(idle)
        n = col_phase(a, ph)
        a.label(f"join{ph}")
        if FZ.halt == 2 * ph + 1 or FZ.halt == 25 and ph:
            break
        mlp_phase(a, ph, n)
        if FZ.halt == 2 * ph + 2:
            break
    if Cfg.stamp:
        a("s_waitcnt vmcnt(0)")
        mk(a, "drain")
        mk.stash(a, 4)
        a(f"v_writelane_b32 v4, s{sCNT}, 63")
        srd_ws(a, SRD0, "STAMP", 1 << 21)
        a(f"s_lshl_b32 s{sA}, s2, 10")
        a(f"s_add_u32 s{sA}, s{sA}, {1 << 20}")
        a(f"v_lshl_add_u32 v5, v0, 2, s{sA}")
        a(f"buffer_store_dword v4, v5, s[{SRD0}:{SRD0 + 3}], 0 offen")
        if FZ.dbg:
            a(f"s_load_dwordx2 s[{SRD1}:{SRD1 + 1}], s[0:1], 72")
            a(f"v_readlane_b32 s{sB}, v4, 0")
            a("v_mov_b32 v6, 0")
            for j, nm in enumerate(FZ.dbg[1:]):
                a(f"v_readlane_b32 s{sA}, v4, {mk.names.index(nm)}")
                a(f"s_sub_u32 s{sA}, s{sA}, s{sB}")
                a(f"v_writelane_b32 v6, s{sA}, {j}")
            a(f"s_sub_u32 s{sA}, s2, {FZ.dbg[0]}")
            a(f"s_lshl_b32 s{sA}, s{sA}, 10")
            a(f"v_lshl_add_u32 v5, v0, 2, s{sA}")
            a("s_waitcnt lgkmcnt(0)")
            srd(a, SRD1, SRD1, 0, 64)
            a(f"buffer_store_dword v6, v5, s[{SRD1}:{SRD1 + 3}], 0 offen")
    return 160 * 1024


def tables():
    L = []
    c = np.sqrt(2.0 / DM) * np.cos(2 * np.pi * np.arange(DM) / DM)
    c[160] = 0
    c[480] = 0
    bits = model.bf16_bits(c.astype(np.float32))
    for n in range(DM):
        L.append(f".set cq{n}, {bits[n]}")
    bb = int(model.bf16_bits(np.float32([np.sqrt(1 / DM)]))[0])
    k2 = model2.kmap()
    L.append(".altmacro")
    L.append(".macro e8 a,b,c,d,e,f,g,h\n.short cq\\a, cq\\b, cq\\c, cq\\d, cq\\e, cq\\f, cq\\g, cq\\h\n.endm")
    L.append(".macro e6 a,b,c,d,e,f\n.short cq\\a, cq\\b, cq\\c, cq\\d, cq\\e, cq\\f\n.endm")
    L.append(".p2align 12\nft2:\n.set tt, 0\n.rept 40")
    for kb in range(80):
        L.append(".set td, tt\n.rept 16")
        ent = [f"%(({k2[4 * kb + j // 2]}*td+{160 * (j & 1)})%640)" for j in range(8)]
        if kb == 0:
            L.append(f".short {bb}+((td&1)<<15), {bb}")
            L.append("e6 " + ", ".join(ent[2:]))
        else:
            L.append("e8 " + ", ".join(ent))
        L.append(".set td, td+1\n.endr")
    L.append(".set tt, tt+16\n.endr\n.noaltmacro")
    return "\n".join(L) + "\n"


if __name__ == "__main__":
    f0.FC.xscale = S_LO
    for opt in sys.argv[2:]:
        if opt == "stamp":
            Cfg.stamp = True
        else:
            k, v = opt.split("=", 1)
            tgt = [c for c in (FZ, f0.FC, Cfg) if hasattr(c, k)][0]
            v = eval(v)
            sp = lambda x: x.replace("_", " ") if isinstance(x, str) else tuple(map(sp, x)) if isinstance(x, tuple) else x
            setattr(tgt, k, sp(v))
    txt = generate([("mk_kernel", [(256, role_fused)])], tables)
    if Cfg.stamp:
        txt = txt.replace(".amdgcn_target", ("; clk\n" if FZ.clk else "") + f"; halt {FZ.halt}\n; marks " + " ".join(mk.names)
                          + "\n.amdgcn_target", 1)
    if FZ.single:
        txt = txt.replace("@launch kernel=mk_kernel ", "@launch ")
        txt = txt.replace("mk_kernel", "interleave_layers__spectral_gfnet__mixer_channel_mlp__prompt_kernel")
    open(sys.argv[1], "w").write(txt)
```

```python
from gen import *
import gen
import f0
import model2
from p0 import Sched, fx
from f0 import READY, POST, HINT, DONE, DONE2, aF
from asmlib import TRANS

GELU_K0 = -2.0 * 0.7978845608028654 * 1.4426950408889634
EPS = 1e-5
SPIN_MAX = 1 << 14
NCOL = 160
TILE = 20480
LDS_RK = 16384
LDS_X = LDS_RED = 0
PX = 0
S_LO, S_X = -97, (-24, 24)
UP = [s - S_LO for s in S_X]
T_X = [2.0 ** (d - 127) for d in UP]
T_H, H_OFF = T_X[0], -2.0 ** -40

SRDQ, SRDF, SRDW, SRDP = 8, 12, SRD4, SRD5
sDC, sRP, sHO, sTB = 16, 17, 18, 19
sRB, sMM, sFL, sCNT, sGA, sGB = 96, 97, 98, 99, 100, 101
sMSK, sCQ = 26, 27
sPK, sEB = 20, 21
vW, vo, vp, vd2 = 10, 11, 15, 14
WR, NW, NP = 256, 8, 11
aPO = WR
aST, aDUM, vdc = 256 + 252, 256 + 253, 256 + 254
NS = 14


class FZ:
    look = 10
    pre_p = (8, 8)
    burst = ((0, 8), (4, 0))
    period = (90, 90)
    stop = ("x2", "x2")
    hint_at = ("x1", "x1")
    po_every = 5
    cap = 12
    row = 70
    srow = 120
    lat = 750
    dbl = (12, 15)
    xc_at = 1
    b_pre = 0
    pure = (2, 1)
    in_b = (5, 3)
    in_e = 5
    g2pk = (1, 1)
    qdel = (1600, 1600)
    qc_rem = 7
    split0 = 1
    ktail = 3
    rd_at = (("b", 1), ("b", 8))
    x3 = (("g", 3), ("g", 6), ("g", 8))
    res_at = ("g", 7)
    ebar = 1
    e_ok = 17
    marks = None
    clk = 0
    halt = 0
    verbose = 0
    map = 2
    post = 'bar2'
    x_nocnt = 0
    x_op = 'buffer-atomic-add-f32'
    wgap = 48
    park = (3, 2)
    gbar = 5
    ft_pf = 1
    p_lead = 14
    r_q = 2
    qf = (" sc1", " sc1")
    xf = (" sc1", " sc1")
    hf = " sc1"
    d2_at = 30
    ack_at = 2
    single = 0
    probe_x = None
    probe = None
    virt = 1
    dbg = None
    pof = " sc1"
    shrink = 1
    drop = ("c1a", "c2a", "c1b2", "c2b2", "m1H", "m2H", "m1P", "m2P", "c2ld", "c2x1")


class Marks:
    def __init__(self):
        self.names, self.pend = [], []

    def __call__(self, a, name):
        if FZ.probe and name in FZ.probe[1:]:
            if FZ.probe_x is not None:
                a.raw(f"    s_and_b32 s{sST + 2}, s2, 7")
                a.raw(f"    s_cmp_lg_u32 s{sST + 2}, {FZ.probe_x}")
                a.raw(f"    s_cbranch_scc1 probe_{name}_x")
            a.label(f"probe_{name}", keep=True)
            a.raw(f"    s_memrealtime s[{sST + 2}:{sST + 3}]")
            a.raw("    s_waitcnt lgkmcnt(0)")
            a.raw(f"    s_sub_u32 s{sST + 2}, s{sST + 2}, s{sST}")
            a.raw(f"    s_cmp_lt_u32 s{sST + 2}, {FZ.probe[0] * 100}")
            a.raw(f"    s_cbranch_scc1 probe_{name}")
            a.label(f"probe_{name}_x", keep=True)
        if not Cfg.stamp or (name in FZ.drop if FZ.marks is None else name not in FZ.marks):
            return
        k = len(self.pend)
        assert k < 12, name
        self.pend.append(len(self.names))
        self.names.append(name)
        a(f"{'s_memtime' if FZ.clk else 's_memrealtime'} s[{sST + 2 * k}:{sST + 2 * k + 1}]")

    def fixed(self, a, name):
        if not Cfg.stamp or FZ.marks is not None:
            return
        name = "f" + name
        if name not in self.names:
            self.pend.append(len(self.names))
            self.names.append(name)
        k = self.pend.index(self.names.index(name))
        a(f"s_memrealtime s[{sST + 2 * k}:{sST + 2 * k + 1}]")

    def stash(self, a, tmp):
        if not self.pend:
            return
        a("s_waitcnt lgkmcnt(0)")
        a(f"v_accvgpr_read_b32 v{tmp}, {R(aST)}")
        for k, lane in enumerate(self.pend):
            a(f"v_writelane_b32 v{tmp}, s{sST + 2 * k}, {lane}")
        a(f"v_writelane_b32 v{tmp}, s{sCNT}, {len(self.names)}")
        self.names.append("#" + self.names[self.pend[-1]])
        assert len(self.names) < 63
        a(f"v_accvgpr_write_b32 {R(aST)}, v{tmp}")
        self.pend = []


mk = Marks()


def preg(u, p):
    return WR + (0 if u == NP else 4 * NW + 20 * (u % (NP + 1))) + 4 * p


def kblock(u):
    return 2 * (14 * (u & 1) + (u >> 1))


def decode(a, sT):
    a(f"s_and_b32 s{sA}, s{sT}, 7")
    if FZ.map == 1:
        a(f"s_bfe_u32 s{sRB}, s{sT}, 0x10003")
        a(f"s_lshl1_add_u32 s{sRB}, s{sA}, s{sRB}")
        a(f"s_lshr_b32 s{sMM}, s{sT}, 4")
    else:
        a(f"s_lshr_b32 s{sB}, s{sA}, 1")
        a(f"s_lshl_b32 s{sB}, s{sB}, 2")
        a(f"s_bfe_u32 s{sRB}, s{sT}, {0x20006 if FZ.map == 2 else 0x20003:#x}")
        a(f"s_add_u32 s{sRB}, s{sRB}, s{sB}")
        a(f"s_and_b32 s{sA}, s{sA}, 1")
        a(f"s_lshl_b32 s{sA}, s{sA}, 3")
        a(f"s_bfe_u32 s{sMM}, s{sT}, {0x30003 if FZ.map == 2 else 0x30005:#x}")
        a(f"s_add_u32 s{sMM}, s{sMM}, s{sA}")
    a(f"s_lshl_b32 s{sFL}, s{sRB}, 7")


def begin(a):
    srd_ws(a, SRDF, "FLAG", FLAG_SIZE)
    srd_ws(a, SRDQ, "H", H_SIZE)
    a(f"s_mov_b32 s{sCNT}, 0")
    for k in range(4):
        a(f"v_accvgpr_write_b32 {R(aPO + k)}, -1")
    if Cfg.stamp:
        a(f"v_accvgpr_write_b32 {R(aST)}, 0")


def pre_setup(a, ph, t0):
    if not ph:
        a(f"s_and_b32 s{sA}, s{sMM}, 3")
        a(f"s_cmp_eq_u32 s{sA}, 3")
        a(f"s_cselect_b32 s{sMSK}, 0x40000000, 0")
        a(f"s_lshr_b32 s{sB}, s{sMM}, 3")
        a(f"s_lshl2_add_u32 s{sDC}, s{sB}, s{sA}")
        a(f"s_mul_i32 s{sTB}, s{sMM}, 7")
        a(f"s_lshr_b32 s{sB}, s{sMM}, 2")
        a(f"s_sub_u32 s{sTB}, s{sTB}, s{sB}")
        a(f"s_mul_i32 s{sPK}, s{sW}, {TILE // 4}")
        a(f"s_mul_i32 s{sEB}, s{sW}, {3 * TILE // 4}")
    a(f"s_mul_i32 s{sE}, s{sW}, {(2 if ph else 7) * TILE // 4}")
    a(f"s_add_u32 m0, s{sE}, {TILE}")
    a(f"v_lshlrev_b32 v{vW}, 4, v{vL}")
    a(f"s_mul_i32 s{sA}, s{sTB}, {TILE}")
    a(f"s_add_u32 s{sA}, s{sA}, {WS['W1F'] - TILE}")
    a(f"s_add_u32 s{SRDW}, s{P_WS}, s{sA}")
    a(f"s_addc_u32 s{SRDW + 1}, s{P_WS + 1}, 0")
    a(f"s_and_b32 s{SRDW + 1}, s{SRDW + 1}, 0xffff")
    a(f"s_mov_b32 s{SRDW + 2}, {8 * TILE}")
    a(f"s_cmp_lg_u32 s{sMSK}, 0")
    a(f"s_cselect_b32 s{SRDW + 2}, {7 * TILE}, s{SRDW + 2}")
    a(f"s_mov_b32 s{SRDW + 3}, 0x20000")
    a(f"v_lshrrev_b32 v{vo}, 1, v{vG}")
    a(f"v_and_b32 v{t0}, 1, v{vG}")
    if not ph:
        a(f"v_mad_u32_u24 v{vp}, v{vo}, 14, v{t0}")
        a(f"v_mul_u32_u24 v{vp}, {KB_STR}, v{vp}")
        a(f"v_lshl_add_u32 v{vp}, v{vI}, 4, v{vp}")
        a(f"s_mul_i32 s{sA}, s{sDC}, 1280")
        a(f"s_mul_i32 s{sB}, s{sW}, {54 * KB_STR}")
        a(f"s_add_u32 s{sA}, s{sA}, s{sB}")
        a(f"v_add_u32 v{vp}, s{sA}, v{vp}")
    a(f"v_lshlrev_b32 v{vo}, 15, v{vo}")
    a(f"v_lshl_add_u32 v{vo}, v{vI}, 5, v{vo}")
    a(f"v_lshl_add_u32 v{vo}, v{t0}, 4, v{vo}")
    a(f"s_lshl_b32 s{sA}, s{sTB}, 16")
    a(f"s_lshl4_add_u32 s{sA}, s{sFL}, s{sA}")
    a(f"s_lshl_b32 s{sB}, s{sW}, 9")
    a(f"s_add_u32 s{sA}, s{sA}, s{sB}")
    a(f"v_add_u32 v{vo}, s{sA}, v{vo}")
    if ph:
        a(f"s_add_u32 s{SRDP}, s{SRDP}, {WS['W2T'] - WS['WA2']}")
        a(f"s_addc_u32 s{SRDP + 1}, s{SRDP + 1}, 0")
    else:
        a(f"v_add_u32 v{t0}, s{sMSK}, v{vo}")
        srd_ws(a, SRDP, "WA2", 218 * KB_STR)
        a(f"s_add_u32 s{sA}, s{sW}, 1")
        a(f"s_mul_i32 s{sA}, s{sA}, {54 * KB_STR}")
        a(f"s_cmp_eq_u32 s{sW}, 3")
        a(f"s_cselect_b32 s{SRDP + 2}, s{SRDP + 2}, s{sA}")


def rank_put(a, t):
    a(f"s_getreg_b32 s{sB}, {f0.XCC}")
    a(f"s_lshl_b32 s{sB}, s{sB}, 20")
    a(f"s_lshl_b32 s{sA}, s3, 7")
    a(f"s_add_u32 s{sA}, s{sA}, s{sB}")
    a(f"s_add_u32 s{sA}, s{sA}, {DONE}")
    a(f"v_and_b32 v{t + 1}, 7, v{t + 1}")
    a(f"v_lshl_add_u32 v{t + 1}, v{t + 1}, 20, v{t}")
    a(f"v_cmp_gt_u32 vcc, s{sA}, v{t + 1}")
    a(f"s_lshl_b32 s{sB}, s{sW}, 2")
    a(f"v_mov_b32 v{t}, s{sB}")
    a(f"s_bcnt1_i32_b64 s{sA}, vcc")
    a(f"v_mov_b32 v{t + 1}, s{sA}")
    a(f"ds_write_b32 v{t}, v{t + 1} offset:{LDS_RK}")
    a(f"v_mov_b32 v{t}, 0")
    a("s_waitcnt lgkmcnt(0)")


def rank_get(a, t):
    a(f"ds_read_b128 {V(t, 4)}, v{t} offset:{LDS_RK}")
    a(f"v_add_u32 v{t}, v{t}, v{t + 1}")
    a(f"v_add3_u32 v{t}, v{t}, v{t + 2}, v{t + 3}")
    a(f"v_readfirstlane_b32 s{sGA}, v{t}")
    a(f"s_and_b32 s{sA}, s{sGA}, 31")
    a(f"s_bfe_u32 s{sGA}, s{sGA}, 0x30005")
    a(f"s_lshl3_add_u32 s{sGA}, s{sA}, s{sGA}")
    decode(a, sGA if FZ.virt else sT)


def w2_flags():
    return [f"s_mul_i32 s{sOP}, s{sW}, 27",
            f"v_min_u32 v{vd2}, 27, v{vL}",
            f"v_add_u32 v{vd2}, s{sOP}, v{vd2}",
            f"v_sub_u32 v{vd2}, {f0.W2TOP}, v{vd2}",
            f"v_lshlrev_b32 v{vd2}, 7, v{vd2}",
            f"s_mov_b32 s{sOP}, {DONE2}",
            f"buffer_load_dword v{vd2}, v{vd2}, s[{SRDF}:{SRDF + 3}], s{sOP} offen sc1"]


def w2_test(a, nm):
    a(f"v_cmp_eq_u32 vcc, 0, v{vd2}")
    a(f"s_cbranch_vccnz {nm}_w2")
    a.label(f"{nm}_w2ok", keep=True)

    def spin():
        a.label(f"{nm}_w2")
        for x in w2_flags():
            a(x)
        budget(a, f"{nm}_w2out")
        a(f"v_cmp_eq_u32 vcc, 0, v{vd2}")
        a(f"s_cbranch_vccnz {nm}_w2")
        a.label(f"{nm}_w2out")
        a("s_waitcnt vmcnt(0)")
        a(f"s_branch {nm}_w2ok")
    a.tail.append(spin)


def front_wait(a, nm, t):
    f0.lane_blocks(a, t, t + 1, 0)
    a(f"v_accvgpr_read_b32 v{t + 2}, {R(aF)}")
    a.label(f"{nm}_fw")
    a(f"buffer_load_dword v{t + 1}, v{t}, s[{SRDF}:{SRDF + 3}], 0 offen sc1")
    budget(a, f"{nm}_fwok")
    a(f"v_cmp_eq_u32 vcc, v{t + 2}, v{t + 1}")
    if FZ.shrink:
        a(f"s_cbranch_vccz {nm}_fwok")
        a("s_mov_b64 exec, vcc")
        a(f"s_branch {nm}_fw")
    else:
        a(f"s_cbranch_vccnz {nm}_fw")
    a.label(f"{nm}_fwok")
    if FZ.shrink:
        a("s_mov_b64 exec, -1")
    a("s_waitcnt vmcnt(0)")


def pre_ops(ph, t0, nm):
    po, ops = [], []
    for k in range(0 if ph else 7):
        po.append([f"s_mov_b32 s{sOQ}, {k * 2 * H_STR}",
                   f"buffer_store_dwordx4 {R(aPO, 4)}, v{t0 if k == 6 else vo}, s[{SRDQ}:{SRDQ + 3}], s{sOQ} offen{FZ.pof}"])
    n = 10 if ph else 35
    for k in range(n):
        g = [f"buffer_load_dwordx4 v{vW}, s[{SRDW}:{SRDW + 3}], m0 offen offset:{(k & 3) * 1024} lds"]
        if k & 3 == 3:
            g.append("s_add_u32 m0, m0, 4096")
        ops.append(g)
    for u in range(FZ.pre_p[ph]):
        for p in range(5):
            g = [f"buffer_load_dwordx4 {R(preg(u, p), 4)}, v{vp}, s[{SRDP}:{SRDP + 3}], s{sOP} offen offset:{p * 256}"]
            ops.append(([f"s_mov_b32 s{sOP}, {kblock(u) * KB_STR}"] if p == 0 else []) + g)
    if not ph:
        ops[n].insert(0, lambda a: w2_test(a, nm))
        ops.insert(FZ.d2_at, w2_flags())
    out = []
    for k, op in enumerate(ops):
        out.append(op)
        if k % FZ.po_every == FZ.po_every - 1 and po:
            out.append(po.pop(0))
    assert not po
    return out


class Paced:
    def __init__(self, a, ops, period):
        self.a, self.ops, self.period = a, ops, period
        self.on = False
        self.t = 0

    def burst(self, n):
        for _ in range(min(n, len(self.ops))):
            for x in self.ops.pop(0):
                x(self.a) if callable(x) else self.a(x)

    def __call__(self, text, tag=None):
        self.a(text, tag)
        if self.on:
            op = text.split()[0]
            self.t += 16 if op.startswith("v_mfma") else 8 if op in TRANS else 4
            if self.t >= self.period:
                self.t -= self.period
                self.burst(1)

    def __getattr__(self, n):
        return getattr(self.a, n)


def budget(a, out):
    a(f"s_add_u32 s{sCNT}, s{sCNT}, 1")
    a(f"s_cmp_ge_u32 s{sCNT}, {SPIN_MAX}")
    a(f"s_cbranch_scc1 {out}")


def col_phase(a0, ph):
    vx, vw, vl0, vt0, vh = 4, 5, 6, 12, 13
    raw, ss, wraw = 16, 32, 40
    M1, M2 = 56, 88
    T1, T2 = 120, 136
    ACC, FO, TMP, WU0 = 152, 184, 200, 232
    vmI, fi, fg, fa, fb = 176, 177, 178, 179, 180
    SL = ACC
    FGR = [TMP + 4 * k for k in range(8)] + [ss, ss + 4, 248, 252]
    WU = (WU0, T1)
    nm = f"c{ph + 1}"
    a = Paced(a0, pre_ops(ph, vt0, nm), FZ.period[ph])

    def point(name):
        mk(a0, nm + name)
        if name == FZ.hint_at[ph]:
            a0(f"buffer_store_dword v{vh}, v{vh}, s[{SRDF}:{SRDF + 3}], 0 offen sc1")
        if name == FZ.stop[ph]:
            a.on = False

    a(f"s_mul_i32 s{sB}, s{sW}, 3072")
    a(f"v_lshlrev_b32 v{vl0}, 4, v0")
    a(f"v_add_u32 v{vx}, s{sB}, v{vl0}")
    if not ph:
        a(f"s_lshl_b32 s{sB}, s{sW}, 10")
        a(f"v_add_u32 v{vw}, s{sB}, v{vl0}")
    a(f"s_lshl_b32 s{sF}, s{sT}, 14")

    def data_loads(e):
        if ph:
            for k in range(4):
                e(f"buffer_load_dwordx4 {V(raw + 4 * k, 4)}, v{vx}, s[{SRD0}:{SRD0 + 3}], s{sF} offen offset:{k * 1024} sc1")
            for k in range(4):
                e(f"buffer_load_dwordx3 {V(SL + 4 * k, 3)}, v{vx}, s[{SRD1}:{SRD1 + 3}], 0 offen offset:{k * 1024} sc1")
        else:
            for t in range(2):
                e(f"buffer_load_dwordx4 {V(ss + 4 * t, 4)}, v{vw}, s[{SRD1}:{SRD1 + 3}], 0 offen offset:{t * 1024} sc1")
            for k in range(4):
                e(f"buffer_load_dwordx4 {V(raw + 4 * k, 4)}, v{vx}, s[{SRD0}:{SRD0 + 3}], s{sF} offen offset:{k * 1024} sc1")

    def filter_loads():
        for k in range(4):
            a(f"buffer_load_dwordx4 {V(wraw + 4 * k, 4)}, v{vx}, s[{SRD2}:{SRD2 + 3}], s{sF} offen offset:{k * 1024} sc1")

    def ack(n):
        if not ph and n == FZ.ack_at:
            st = f0.post(a0, SRDF, 0, 1, ACC, "s_waitcnt vmcnt(0)", True)
            a0("s_barrier")
            a0(st)
            point("ak")

    def pos(base, k, c):
        return base + (k >> 1) * 4 + (k & 1) * 2 + c

    srd_ws(a, SRD2, "WC", WC_SIZE)
    if ph:
        filter_loads()
        point("ld")
    else:
        srd_ws(a, SRD0, "XP0", XP_SIZE)
        srd_ws(a, SRD1, "SS0", SS_SIZE)
    if ph:
        pre_setup(a, ph, vt0)
    a(f"s_lshl_b32 s{sA}, s3, 7")
    a(f"s_add_u32 s{sA}, s{sA}, {HINT[ph]}")
    a(f"v_lshl_add_u32 v{vh}, v0, 20, s{sA}")
    if ph:
        a("s_barrier")
        a.burst(FZ.burst[ph][0])
    ack(0)
    for kk in (1, 2, 3):
        a(f"v_xor_b32 v{vl0 + kk}, {kk * 1024}, v{vl0}")
    a(f"v_and_b32 v{vmI}, 1, v{vI}")
    a(f"v_mul_u32_u24 v{vmI}, 0x8000, v{vmI}")
    a(f"v_lshl_or_b32 v{vmI}, v{vmI}, 16, v{vmI}")
    a(f"v_cvt_f32_u32 v{fi}, v{vI}")
    a(f"v_lshlrev_b32 v{fg}, 2, v{vG}")
    a(f"v_cvt_f32_u32 v{fg}, v{fg}")

    def m1(qb, t, var):
        return M1 + ((qb * 2 + t) * 2 + var) * 4

    def m2(kk, var):
        return M2 + (kk * 2 + var) * 4

    a(f"v_mul_f32 v{fa}, {fx(1 / 32)}, v{fi}")
    a(f"v_mul_f32 v{TMP}, v{fg}, v{fa}")
    for jj in range(1, 4):
        a(f"v_fmamk_f32 v{TMP + 3 * jj}, v{fa}, {fx(float(jj))}, v{TMP}")
    for jj in range(4):
        t = TMP + 3 * jj
        a(f"v_cos_f32 v{t + 1}, v{t}")
        a(f"v_sin_f32 v{t + 2}, v{t}")
    for jj in range(4):
        t = TMP + 3 * jj
        n = "-" if jj & 1 else ""
        m = "" if jj & 1 else "-"
        a(f"v_cvt_pk_bf16_f32 v{m1(0, 0, 0) + jj}, v{t + 1}, v{t + 2}")
        a(f"v_cvt_pk_bf16_f32 v{m1(0, 0, 1) + jj}, -v{t + 2}, v{t + 1}")
        a(f"v_cvt_pk_bf16_f32 v{m1(1, 0, 0) + jj}, {n}v{t + 1}, {n}v{t + 2}")
        a(f"v_cvt_pk_bf16_f32 v{m1(1, 0, 1) + jj}, {m}v{t + 2}, {n}v{t + 1}")
    for qb in range(2):
        for var in range(2):
            for jj in range(4):
                a(f"v_xor_b32 v{m1(qb, 1, var) + jj}, v{vmI}, v{m1(qb, 0, var) + jj}")
    ack(1)

    a(f"s_lshl_b32 s{sK0}, s{sW}, 4")
    a(f"v_cvt_f32_u32 v{fb}, s{sK0}")
    a(f"v_add_f32 v{TMP + 24}, v{fb}, v{fg}")
    a(f"v_add_f32 v{fb}, v{fb}, v{fi}")
    a(f"v_mul_f32 v{TMP + 25}, {fx(1 / 2048)}, v{fi}")
    a(f"v_add_f32 v{TMP + 26}, {fx(16 / 2048)}, v{TMP + 25}")
    for r in range(4):
        a(f"v_add_f32 v{TMP + r}, {fx(float(r))}, v{TMP + 24}")
    for qb in range(2):
        for r in range(4):
            t = TMP + 4 + (qb * 4 + r)
            a(f"v_mul_f32 v{t}, v{TMP + r}, v{TMP + 25 + qb}")
            a(f"v_cos_f32 v{T1 + qb * 8 + r}, v{t}")
            a(f"v_sin_f32 v{T1 + qb * 8 + 4 + r}, v{t}")
    ack(2)

    a(f"v_mul_f32 v{fa}, {fx(1 / 64)}, v{fb}")
    a(f"s_xor_b32 s{sK0}, s{sK0}, 16")
    a(f"v_cvt_f32_u32 v{TMP + 24}, s{sK0}")
    a(f"v_add_f32 v{TMP + 24}, v{TMP + 24}, v{fg}")
    for kk in range(2):
        for r in range(4):
            t = TMP + 12 + 3 * r
            if kk == 0:
                a(f"v_mul_f32 v{t}, v{TMP + r}, v{fa}")
            else:
                a(f"v_add_f32 v{t}, {fx(float(r))}, v{TMP + 24}")
                a(f"v_mul_f32 v{t}, v{t}, v{fa}")
            a(f"v_cos_f32 v{t + 1}, v{t}")
            a(f"v_sin_f32 v{t + 2}, v{t}")
        for r in range(4):
            t = TMP + 12 + 3 * r
            a(f"v_cvt_pk_bf16_f32 v{m2(kk, 0) + r}, v{t + 1}, v{t + 2}")
            a(f"v_cvt_pk_bf16_f32 v{m2(kk, 1) + r}, -v{t + 2}, v{t + 1}")
    for kk in range(2):
        for var in range(2):
            for r in range(4):
                a(f"v_xor_b32 v{m2(kk + 2, var) + r}, v{vmI}, v{m2(kk, var) + r}")

    ack(3)
    if not ph:
        point("cs")
        st = f0.post(a0, SRDF, 0, 2, ACC)
        front_wait(a0, nm, TMP)
        point("dr")
        data_loads(a)
        filter_loads()
        rank_put(a, TMP)
        a("s_barrier")
        a(st)
        rank_get(a, TMP)
        pre_setup(a, ph, vt0)
        a.burst(FZ.burst[ph][1])
        mk.stash(a0, TMP)
        a.on = True
    else:
        point("cs")
        if FZ.post:
            a(f"v_lshlrev_b32 v{TMP}, 7, v0")
            a(f"v_add_u32 v{TMP}, {POST}, v{TMP}")
            a0.label(f"{nm}_poll")
            a0(f"buffer_load_dword v{TMP + 1}, v{TMP}, s[{SRDF}:{SRDF + 3}], 0 offen sc1")
            budget(a0, f"{nm}_seen")
            a0(f"v_cmp_eq_u32 vcc, 0, v{TMP + 1}")
            a0(f"s_cbranch_vccnz {nm}_poll")
            a0.label(f"{nm}_seen")
            a0("s_waitcnt vmcnt(0)")
        else:
            a.wait_tag("out")
        point("dr")
        if FZ.halt == 25:
            mk.stash(a0, TMP)
            return 0
        data_loads(a)
        a.burst(FZ.burst[ph][1])
        mk.stash(a0, TMP)

    a(f"v_mul_f32 v{fa}, {fx(1 / 2048)}, v{fb}")
    a(f"v_mul_f32 v{TMP}, v{fg}, v{fa}")
    for k in range(1, 8):
        a(f"v_fmamk_f32 v{TMP + k}, v{fa}, {fx(float(16 * (k >> 2) + (k & 3)))}, v{TMP}")
    for k in range(8):
        u, r = divmod(k, 4)
        a(f"v_cos_f32 v{T2 + u * 8 + r}, v{TMP + k}")
        a(f"v_sin_f32 v{T2 + u * 8 + 4 + r}, v{TMP + k}")

    a0(f"s_mov_b32 s{sK1}, 0xffff0000")
    a0(f"s_cmp_eq_u32 s{sT}, 0")
    a0(f"s_cselect_b32 s{sK2}, 0, s{sK1}")
    a0(f"s_mov_b32 s{sK0}, {fx(-1 / 2048)}")
    a0(f"s_cselect_b32 s{sK3}, 0, s{sK0}")
    a(f"s_mov_b32 s{sA}, {fx(1 / DM)}")
    a(f"s_mov_b32 s{sB}, {fx(1 / 2048)}")
    a(f"s_mov_b32 s{sC}, {UP[ph] * 0x800080:#x}")
    a(f"v_mov_b32 v{fa}, {fx(1e-5)}")
    point("k")
    if ph:
        def test(e):
            e(f"v_max3_f32 v{fi}, |v{raw}|, |v{raw + 2}|, |v{raw + 4}|")
            e(f"v_max3_f32 v{fb}, |v{raw + 6}|, |v{raw + 8}|, |v{raw + 10}|")
            e(f"v_max3_f32 v{fi}, v{fi}, |v{raw + 12}|, |v{raw + 14}|")
            e(f"v_max_f32 v{fi}, v{fi}, v{fb}")
            e(f"v_min3_f32 v{fg}, v{SL + 2}, v{SL + 6}, v{SL + 10}")
            e(f"v_min_f32 v{fg}, v{fg}, v{SL + 14}")
            e(f"v_fmamk_f32 v{fg}, v{fi}, {fx(-8 / T_X[0])}, v{fg}")
            e(f"v_cmp_gt_f32 vcc, {fx(7.5)}, v{fg}")

        def var_ops(e):
            for k in range(8):
                e(f"v_fma_f32 v{ss + k}, v{SL + 4 * (k >> 1) + (k & 1)}, s{sA}, v{fa}")

        test(a0)
        var_ops(a0)
        a0(f"s_cbranch_vccnz {nm}_again", tag="nopad")
        a0.label(f"{nm}_ok", keep=True)

        def again():
            a0.label(f"{nm}_again")
            budget(a0, f"{nm}_ok")
            data_loads(a0)
            a0("s_waitcnt vmcnt(0)")
            test(a0)
            var_ops(a0)
            a0(f"s_cbranch_vccnz {nm}_again")
            a0(f"s_branch {nm}_ok")
        a0.tail.append(again)
        a.on = True
    else:
        for k in range(8):
            a(f"v_fma_f32 v{ss + k}, v{ss + k}, s{sA}, v{fa}")
    for k in range(8):
        a(f"v_rsq_f32 v{ss + k}, v{ss + k}")

    def acc(c, b, var):
        return ACC + c * 16 + (b * 2 + var) * 4

    def fo(c, b):
        return FO + c * 8 + b * 4

    def unpack(dst_, base, c, mask):
        ops = []
        for k in range(8):
            ops.append(f"v_lshlrev_b32 v{dst_ + 2 * k}, 16, v{pos(base, k, c)}")
            ops.append(f"v_and_b32 v{dst_ + 2 * k + 1}, s{mask}, v{pos(base, k, c)}")
        return ops

    def unpack_w(c):
        ops = []
        for k in range(8):
            u, r = divmod(k, 4)
            ops.append(f"v_lshlrev_b32 v{WU[c] + u * 8 + r}, 16, v{pos(wraw, k, c)}")
            ops.append(f"v_and_b32 v{WU[c] + u * 8 + 4 + r}, s{sK1}, v{pos(wraw, k, c)}")
        return ops

    def scale(c):
        t = TMP + 16 * c
        for k in range(8):
            h = k & 1
            a(f"v_pk_mul_f32 {V(t + 2 * k, 2)}, {V(t + 2 * k, 2)}, {V(ss + k - h, 2)} op_sel:[0,{h}] op_sel_hi:[1,{h}]")
        for k in range(8):
            a(f"v_cvt_pk_bf16_f32 v{fo(c, 0) + k}, v{t + 2 * k}, v{t + 2 * k + 1}")

    sc = Sched(a)

    def stage_a(c):
        for t in range(2):
            for qb in range(2):
                for var in range(2):
                    sc.mfma(acc(c, qb, var), fo(c, t), m1(qb, t, var), None if t == 0 else acc(c, qb, var))
        sc.flush()

    for op in unpack(TMP, raw, 0, sK2):
        a(op)
    scale(0)
    point("s0")
    for op in unpack(TMP + 16, raw, 1, sK1):
        sc.add(op)
    stage_a(0)
    scale(1)
    for op in unpack_w(0):
        sc.add(op)
    stage_a(1)
    point("a")

    def mm(c, b, var, f, kk, data_is_a):
        cc = None if kk == 0 else acc(c, b, var)
        if data_is_a:
            sc.mfma(acc(c, b, var), f, m2(kk, var), cc)
        else:
            sc.mfma(acc(c, b, var), m2(kk, var), f, cc)

    def exchange(n, data_is_a, cm, fill_own, fill_rest):
        for c in range(2):
            for b in range(2):
                cm(c, b)
                if n == 2 and c == b == 0:
                    a("s_barrier")
                a(f"ds_write_b128 v{vl0}, {V(fo(c, b), 4)} offset:{(c * 2 + b) * 4096}")
        a("s_waitcnt lgkmcnt(0)")
        a("s_barrier")
        point(f"b{n}")
        for c in range(2):
            for kk in (1, 2, 3):
                for b in range(2):
                    f = FGR[(c * 3 + kk - 1) * 2 + b]
                    a(f"ds_read_b128 {R(f, 4)}, v{vl0 + kk} offset:{(c * 2 + b) * 4096}")
        for op in fill_own:
            sc.add(op)
        for c in range(2):
            for b in range(2):
                for var in range(2):
                    mm(c, b, var, fo(c, b), 0, data_is_a)
        for op in fill_rest:
            sc.add(op)
        for c in range(2):
            for kk in (1, 2, 3):
                for b in range(2):
                    for var in range(2):
                        mm(c, b, var, FGR[(c * 3 + kk - 1) * 2 + b], kk, data_is_a)
        sc.flush()
        point(f"x{n}")

    def cm1(c, b):
        cmul_pack(a, fo(c, b), acc(c, b, 0), acc(c, b, 1), T1 + b * 8, T1 + b * 8 + 4, TMP + 8 * (2 * c + b))

    def cm2(c, b):
        cmul_pack(a, fo(c, b), acc(c, b, 0), acc(c, b, 1), WU[c] + b * 8, WU[c] + b * 8 + 4, TMP + 8 * (2 * c + b),
                  conj_w=True)

    exchange(1, False, cm1, unpack_w(1), [])
    exchange(2, True, cm2, unpack(WU[0], raw, 0, sK1), unpack(WU[1], raw, 1, sK1))
    for c in range(2):
        for u in range(2):
            cmul_pack(a, fo(c, u), acc(c, u, 0), acc(c, u, 1), T2 + u * 8, T2 + u * 8 + 4, TMP + 8 * (2 * c + u))
    while any(not callable(g[0]) and "lds" in g[0] or "store" in g[-1] for g in a.ops):
        a.burst(1)
    a.on = False
    for t in range(2):
        for c in range(2):
            for u in range(2):
                for var in range(2):
                    sc.mfma(acc(c, t, var), m1(t, u, var), fo(c, u), None if u == 0 else acc(c, t, var))
        rdy = sc.n + 2
        for rh in range(2):
            for c in range(2):
                for rl in range(2):
                    k = 4 * t + 2 * rh + rl
                    w = WU[c] + 2 * k
                    sc.add(f"v_fma_f32 v{w}, v{acc(c, t, 0) + 2 * rh + rl}, s{sB}, v{w}", rdy)
                    sc.add(f"v_fma_f32 v{w + 1}, v{acc(c, t, 1) + 2 * rh + rl}, s{sK0 if c else sK3}, v{w + 1}", rdy)
            for c in range(2):
                for rl in range(2):
                    k = 4 * t + 2 * rh + rl
                    w = WU[c] + 2 * k
                    sc.add(f"v_cvt_pk_bf16_f32 v{pos(raw, k, c)}, v{w}, v{w + 1}", rdy)
            k = 2 * t + rh
            for j in range(4):
                sc.add(f"v_add_u32 v{raw + 4 * k + j}, s{sC}, v{raw + 4 * k + j}", rdy)
            sc.add(f"buffer_store_dwordx4 {V(raw + 4 * k, 4)}, v{vx}, s[{SRD0}:{SRD0 + 3}], s{sF} offen offset:{k * 1024} sc1", rdy)
    sc.flush()
    point("st")
    n = len(a.ops)
    print(f"{nm}: {n} requests after the stores", file=sys.stderr)
    a.burst(n)
    mk.stash(a0, TMP)
    return n


def idle_phase(a, ph):
    nm = f"n{ph + 1}"
    vt0, vh = 12, 13
    if not ph:
        srd_ws(a, SRD0, "XP0", XP_SIZE)
    if FZ.ft_pf >> (1 - ph) & 1:
        srd_table(a, SRD1, "ft2")
        a(f"s_and_b32 s{sA}, s{sRB}, 3")
        a(f"s_and_b32 s{sB}, s{sMM}, 7")
        a(f"s_lshl3_add_u32 s{sA}, s{sA}, s{sB}")
        a(f"s_sub_u32 s{sA}, 31, s{sA}")
        a(f"s_mul_i32 s{sA}, s{sA}, {3 << 15}")
        a(f"v_lshl_add_u32 v{vh}, v0, 7, s{sA}")
        for k in range(3):
            a(f"s_mov_b32 s{sOP}, {k << 15}")
            a.raw(f"    buffer_load_dword {R(aDUM)}, v{vh}, s[{SRD1}:{SRD1 + 3}], s{sOP} offen")
    if ph:
        pre_setup(a, ph, vt0)
    else:
        st = f0.post(a, SRDF, 0, 1, 20, "s_waitcnt vmcnt(0)", True)
        a("s_barrier")
        a(st)
        mk(a, nm + "ak")
        st = f0.post(a, SRDF, 0, 2, 24)
        front_wait(a, nm, 16)
        mk(a, nm + "dr")
        rank_put(a, 16)
    a("s_barrier")
    if not ph:
        a(st)
        rank_get(a, 16)
        pre_setup(a, ph, vt0)
    for g in pre_ops(ph, vt0, nm):
        for x in g:
            x(a) if callable(x) else a(x)
    mk(a, nm + "is")
    a(f"v_mul_u32_u24 v{vh}, 5, v{vL}")
    a(f"v_lshrrev_b32 v{vh}, 1, v{vh}")
    a(f"v_lshlrev_b32 v{vh}, 7, v{vh}")
    a(f"s_mov_b32 s{sOP}, {HINT[ph]}")
    a("s_waitcnt vmcnt(0)")
    mk(a, nm + "dn")
    mk.stash(a, 16)
    if FZ.halt == 25 and ph:
        return
    a(f"s_cmp_lg_u32 s{sW}, 0")
    a(f"s_cbranch_scc1 {nm}_ok")
    a.label(f"{nm}_spin")
    a(f"buffer_load_dword v{vt0}, v{vh}, s[{SRDF}:{SRDF + 3}], s{sOP} offen sc1")
    budget(a, f"{nm}_ok")
    a(f"v_cmp_eq_u32 vcc, 0, v{vt0}")
    a(f"s_cbranch_vccnz {nm}_spin")
    a.label(f"{nm}_ok")
    a("s_barrier")


def classify(text):
    o = text.split()[0]
    if o.startswith("v_pk_") or o.startswith("v_dot2"):
        return "p", 4
    if o in TRANS or o.startswith("v_swap") or o.startswith("v_permlane"):
        return "v", 8
    if o.startswith("v_"):
        return "v", 4
    if o.startswith("ds_"):
        return "d", 4
    if o.startswith("buffer_"):
        return "b", 4
    if o.startswith("s_cbranch"):
        return "j", 10
    return "s", 4


class Item:
    def __init__(self, kind, cost, fn, key=None, gate=None, until=None, alt=None):
        self.kind, self.cost, self.fn, self.key, self.gate, self.until, self.alt = kind, cost, fn, key, gate, until, alt


class Slots:
    def __init__(self, a):
        self.a = a
        self.t, self.tM, self.tv, self.tc = 0, -100, -100, -100
        self.done, self.eta = {}, {}
        self.C, self.L, self.M, self.G = [], [], [], []
        self.fly = []
        self.feed = []
        self.pk = True
        self.stall = 0

    def item(self, op, key=None, gate=None, tag=None):
        k, c = classify(op)

        def fn():
            if op.startswith("v_cmp"):
                self.tc = self.t
            self.a(op, tag=tag)
        return Item(k, c, fn, key, gate)

    def mem(self, key, store=False, part=1.0):
        last = self.fly[-1] if self.fly else 0
        self.fly.append(max(self.t + FZ.lat, last + part * (FZ.srow if store else FZ.row)))
        self.eta[key] = self.fly[-1]
        if FZ.verbose:
            print(f"  {self.t:6.0f} issue {key} eta {self.fly[-1]:.0f} fly {self.inflight()}", file=sys.stderr)

    def inflight(self):
        return sum(1 for x in self.fly[-FZ.cap - 4:] if x > self.t)

    def run(self, it):
        if it.kind in "db":
            self.t = max(self.t, self.tv + 12)
        elif it.kind == "p":
            self.t = max(self.t, self.tM + 28)
        elif it.kind == "j":
            self.t = max(self.t, self.tc + 26)
        if it.kind in "vp":
            self.tv = self.t
        it.fn()
        self.t += it.cost
        if it.until is not None and self.eta.get(it.until, 0) > self.t:
            self.stall += self.eta[it.until] - self.t
            if FZ.verbose:
                print(f"  {self.t:6.0f} STALL {it.until} {self.eta[it.until] - self.t:.0f}", file=sys.stderr)
            self.t = self.eta[it.until]
        if it.key is not None:
            self.done[it.key] = self.t

    def ready(self, it):
        if it.kind == "j" and self.t < self.tc + 26:
            return False
        return it.gate is None or it.gate()

    def expand(self):
        while self.G and self.G[0].kind == "p" and not self.pk and self.G[0].alt:
            self.G[:1] = self.G[0].alt

    def heads(self, q, room, small):
        out = []
        for it in q:
            if it.kind == "p" or not self.ready(it) or it.cost > room or small and it.cost > 4:
                break
            if it.kind in "db" and any(x.kind == "v" for x in out) or it.kind == "j" and out:
                break
            out.append(it)
            room -= it.cost
        return out

    def place(self, picks):
        seqs = []
        for q, n in picks:
            seqs.append(q[:n])
            del q[:n]
        rank = lambda s: 0 if any(x.kind in "db" for x in s) else 2 if any(x.kind == "v" for x in s) else 1
        seqs.sort(key=lambda s: (rank(s), any(x.kind == "v" or x.until is not None for x in s)))
        for s in seqs:
            for it in s:
                self.run(it)

    def fill(self, room, streams, small=False):
        picks = []
        for q in streams:
            h = self.heads(q, room, small)
            if h:
                picks.append((q, len(h)))
                room -= sum(x.cost for x in h)
        return picks, room

    def mf(self, d, x, y, c, wait=None, urgent=False):
        self.t = self.tM = max(self.t, self.tM + 16)
        mfma(self.a, d, x, y, c)
        self.t += 8
        for f in self.feed:
            f()
        self.expand()
        W = [wait] if wait else []
        n = next((k for k, it in enumerate(self.G[:5]) if it.kind == "p"), None)
        if n is not None and self.pk:
            pre = self.G[:n + 1]
            cost = sum(x.cost for x in pre[:-1])
            if cost <= 16 and all(self.ready(x) and x.kind in "vps" for x in pre):
                picks, room = self.fill(20 - cost, (W, self.C, self.L, self.M), small=True)
                self.place(picks)
                while self.G and (n > 0 or self.G[0].kind == "p" and self.ready(self.G[0])):
                    self.run(self.G.pop(0))
                    n -= 1
                if self.G and self.G[0].kind in "vs" and self.G[0].until is None and self.ready(self.G[0]):
                    self.run(self.G.pop(0))
                else:
                    self.t += 4
                return
        if not W and self.C and self.C[0].cost >= 8 and self.ready(self.C[0]):
            self.run(self.C.pop(0))
            return
        picks, room = self.fill(8, (W, self.C, self.L, self.M, self.G), small=True)
        must = W or urgent or any(q is self.C for q, _ in picks)
        if room and not must and self.G and self.G[0].cost == 8 and self.ready(self.G[0]):
            self.run(self.G.pop(0))
            return
        self.place(picks)

    def need(self, key):
        while key not in self.done:
            q = next(q for q in (self.C, self.L, self.M, self.G) if any(it.key == key for it in q))
            self.run(q.pop(0))

    def pure(self, key):
        while key not in self.done:
            it = self.G.pop(0)
            self.run(it)
            if it.cost == 8:
                for f in self.feed:
                    f()
                picks, _ = self.fill(8, (self.M, self.L, self.C), small=True)
                self.place(picks)

    def flush(self):
        for q in (self.L, self.M, self.C, self.G):
            while q:
                self.run(q.pop(0))


def mlp_phase(a, final, behind):
    name = f"m{final + 1}"
    vx, vl0, vx2, vck, ve, vfl = 4, 5, 8, 9, 12, 14
    vq = (13, 4, 8, 10)
    X, ACC1, Z, vpl, vmk, CC = 16, 176, 232, 248, 249, 250
    GR, T = Z, Z + 8
    ACC2, EACC = 96, 176
    DIAG = (4, 6, 30, 70)
    sKC, sRS = sK0, sK2
    vo2, vs, vout, vor, vrd, vpk = 200, 201, 202, 203, 204, 205
    vred = (5, 6, 7)
    RES, RU, TMP = 208, 218, 244
    QS = (16, 32, 48, 64, 80, 176)
    QD = len(QS)
    SRDX, SRDH = SRD0, SRD3
    s = Slots(a)
    done = s.done
    act = {}
    log, sst, tested = [], {}, set()

    def fine(*key):
        if FZ.verbose:
            print(f"{s.t:6.0f} {key}", file=sys.stderr)
        if FZ.marks is not None:
            mk(a, name + key[0] + str(key[1]))
        for f in act.pop(key, ()):
            f()

    def at(key, f):
        act.setdefault(tuple(key), []).append(f)

    def note(tag):
        mk(a, name + tag)
        print(f"{name}{tag:4s} t={s.t:6.0f} stall={s.stall:.0f}", file=sys.stderr)

    def qreg(u, q):
        return QS[u % QD] + 4 * q

    def put(q, op, key=None, gate=None):
        q.append(s.item(op, key, gate))

    def vm(q, text, sreg=None, sexp=None, key=None, tag=None, again=True, gate=None, part=1.0, first=" sc1", m0=None):
        if m0 is not None and sst.get("m0") != m0:
            put(q, m0, gate=gate)
            sst["m0"] = m0
        if sreg is not None and sst.get(sreg) != sexp:
            put(q, sexp.replace("@", f"s{sreg}"), gate=gate)
            sst[sreg] = sexp

        def emit():
            a(text.replace("@", f"s{sreg}").replace(" sc1", first), tag=tag)
            log.append((key, text if again else None, sexp))
            s.mem(key, "store" in text, part)
        q.append(Item("b", 4, emit, key, gate))

    def wait_item(key, regs):
        return Item("s", 4, lambda: a.wait_regs(*regs), until=key)

    def lower(regs, thr):
        ops, r = [], [f"|v{x}|" for x in regs]
        while len(r) > 1:
            n = min(3, len(r))
            ops.append(f"{'v_min3_f32' if n == 3 else 'v_min_f32_e64'} v{vck}, " + ", ".join(r[:n]))
            r[:n] = [f"v{vck}"]
        return ops + [f"v_cmp_gt_f32 vcc, {fx(thr)}, v{vck}"]

    def unset(regs):
        ops, r = [], [f"v{x}" for x in regs]
        if len(r) > 2:
            n = len(r) - 1
            ops.append(f"{'v_max3_u32' if n == 3 else 'v_max_u32'} v{vck}, " + ", ".join(r[:n]))
            r[:n] = [f"v{vck}"]
        return ops + [f"v_cmp_u_f32 vcc, {r[0]}, {r[1]}"]

    def verify(keys, regs, test, lab, key):
        for k in keys:
            plan(k)

        def branch():
            idx = [k for k, e in enumerate(log) if e[0] in keys]
            rep = log[idx[0]:]
            assert len(idx) == len(keys) and not tested & {e[0] for e in rep}, lab
            tested.update(keys)
            young = len(log) - 1 - idx[-1]
            a(f"s_cbranch_vccnz {lab}_again", tag="nopad")
            a.label(f"{lab}_ok", keep=True)

            def stub():
                a.label(f"{lab}_again")
                a("s_nop 7")
                budget(a, f"{lab}_out")
                a(f"s_waitcnt vmcnt({max(0, 62 - len(rep))})")
                last = None
                for _, text, sexp in rep:
                    if text is None:
                        a.raw(f"    buffer_load_dword {R(aDUM)}, off, s[{SRDP}:{SRDP + 3}], 0")
                        continue
                    if sexp is not None and sexp != last:
                        a(sexp.replace("@", f"s{sRP}"))
                        last = sexp
                    a.raw("    " + text.replace("@", f"s{sRP}"))
                a(f"s_waitcnt vmcnt({young})")
                for x in test:
                    a(x)
                a(f"s_cbranch_vccnz {lab}_again")
                a.label(f"{lab}_out")
                a(f"s_branch {lab}_ok")
            a.tail.append(stub)
        w = wait_item(keys[-1], [V(r, 4) for r in regs])
        f0 = w.fn
        w.fn = lambda: ([s.need(k) for k in keys], f0())
        w.gate = lambda: all(k in done for k in keys)
        s.C.append(w)
        for x in test:
            put(s.C, x)
        s.C.append(Item("j", 10, branch, key))

    def xr(t, st):
        return X + t * 8 + st * 4

    def acc(ft, st):
        return ACC1 + (ft * 2 + st) * 4

    queue, sched = [], set()

    def x_load(t, h):
        return ("x", t, h), lambda key: vm(
            s.M, f"buffer_load_dwordx4 {V(xr(t, h), 4)}, v{vx2 if h else vx}, s[{SRDX}:{SRDX + 3}], @ offen sc1",
            sOQ, f"s_mov_b32 @, {8 * (19 - t) * XP_STR}", key, first=FZ.xf[final])

    def e_load(j):
        return ("e", j), lambda key: vm(
            s.M, f"buffer_load_dwordx4 v{vl0}, s[{SRD4}:{SRD4 + 3}], m0 offen offset:{(j & 3) * 1024} lds",
            key=key, tag="e", again=False, m0=f"s_add_u32 m0, s{sEB}, {2 * TILE + (j >> 2) * 4096}")

    def k_load(u, p):
        return ("k", u, p), lambda key: vm(
            s.M, f"buffer_load_dwordx4 v{vp}, s[{SRDP}:{SRDP + 3}], @ offen offset:{p * 256} lds",
            sF, f"s_mov_b32 @, {kblock(u) * KB_STR}", key, tag=f"k{u}", again=False,
            m0=f"s_add_u32 m0, s{sPK}, {(u - NP) * TILE + p * 768}")

    def p_load(u, p):
        return ("p", u, p), lambda key: vm(
            s.M, f"buffer_load_dwordx4 {R(preg(u, p), 4)}, v{vp}, s[{SRDP}:{SRDP + 3}], @ offen offset:{p * 256}",
            sF, f"s_mov_b32 @, {kblock(u) * KB_STR}", key)

    def q_load(u, q):
        return ("q", u, q), lambda key: vm(
            s.M, f"buffer_load_dwordx4 {V(qreg(u, q), 4)}, v{vq[q]}, s[{SRDQ}:{SRDQ + 3}], @ offen sc1",
            sOQ, f"s_mov_b32 @, {kblock(u) * H_STR}", key, first=FZ.qf[final])

    def r_load(p):
        srd_ = SRD2 if final else SRDX
        return ("r", p), lambda key: vm(
            s.M, f"buffer_load_dwordx2 {V(RES + 2 * p, 2)}, v{vo2}, s[{srd_}:{srd_ + 3}], @ offen sc1",
            sOP, f"s_mov_b32 @, {p * 4 * XP_STR}", key, part=0.6)

    def push(item, *gates, after=None, chain=None):
        queue.append((item[0], item[1], gates, after, chain))

    def issue(force=False):
        seen = set()
        for k, (key, f, gates, after, chain) in enumerate(queue):
            ok = all(g in done for g in gates) and chain not in seen
            if ok and after and not force:
                ok = done[after[0]] + after[1] <= s.t
            if ok:
                del queue[k]
                f(key)
                sched.add(key)
                return True
            if chain:
                seen.add(chain)
        return False

    def plan(key):
        while key not in sched:
            assert issue(True), key

    def feed_m():
        if not any(it.kind == "b" for it in s.M) and s.inflight() < FZ.cap:
            issue()
    s.feed.append(feed_m)

    KT = FZ.ktail
    units = [[(u, q) for q in range(4)] for u in range(NS - KT)]
    if FZ.split0:
        units[:1] = [units[0][:2], units[0][2:]]
    units += [[(u, q) for u in range(NS - KT, NS)] for q in (1, 2, 3, 0)]
    xorder = list(range(FZ.dbl[0] + 1)) + [19] + list(range(FZ.dbl[0] + 1, 19))
    for t in xorder:
        push(x_load(t, 0))
        push(x_load(t, 1))
    if final:
        for j in range(15):
            push(e_load(j), "ebar")
    for u in range(FZ.pre_p[final]):
        for p in range(5):
            done[("p", u, p)] = 0
            sched.add(("p", u, p))
    pushed = set(range(FZ.pre_p[final]))
    parked = set(range(NP, NP + FZ.park[final]))

    def push_p(u):
        if u < NS and u not in pushed:
            pushed.add(u)
            for p in range(5):
                if u in parked:
                    push(k_load(u, p), "xok" if u == NP else "ebar")
                else:
                    push(p_load(u, p), *(["xok"] if u < NP else [("xfree", 19)] if u == NP else [("qfree", u - NP - 1, 3)]))

    for u, q in [x for un in units for x in un]:
        for k in range(FZ.p_lead + 1):
            push_p(u + k)
        if (u, q) == (NS - KT, FZ.r_q):
            for p in range(5):
                push(r_load(p), "rgo")
        g = ["qset", ("gelu", u >> 1)] + ([] if final else ["ready"])
        if u >= QD:
            g.append(("qfree", u - QD, q))
        elif u < 5:
            g.append(("xfree", 2 * u + (q >> 1)))
        else:
            g.append("edone" if final else ("s5", 1))
        push(q_load(u, q), *g, after=(("gelu", u >> 1), FZ.qdel[final]), chain="q")

    a(f"s_lshl_b32 s{sC}, s{sRB}, 10")
    a(f"s_lshl_b32 s{sA}, s{sW}, 8")
    a(f"s_add_u32 s{sC}, s{sC}, s{sA}")
    a(f"v_lshlrev_b32 v{vx}, 15, v{vG}")
    a(f"v_lshl_add_u32 v{vx}, v{vI}, 4, v{vx}")
    a(f"v_add_u32 v{vx}, s{sC}, v{vx}")
    a(f"v_add_u32 v{vx2}, {XP_STR}, v{vx}")
    a(f"v_lshlrev_b32 v{vl0}, 4, v{vL}")
    a(f"v_add_u32 v{vl0 + 1}, 0x10000, v{vl0}")
    a(f"v_add_u32 v{vl0 + 2}, 0x20000, v{vl0}")
    a(f"s_mov_b64 s[{SRDH}:{SRDH + 1}], s[{SRDQ}:{SRDQ + 1}]")
    a(f"s_mov_b32 s{SRDH + 2}, {H_SIZE}")
    a(f"s_mov_b32 s{SRDH + 3}, 0x20000")
    a(f"v_cmp_eq_u32 vcc, 0, v{vG}")
    a(f"v_mov_b32 v{vmk}, 0xffff0000")
    a(f"v_cndmask_b32 v{vmk}, 0, v{vmk}, vcc")
    for r in range(4):
        m = 0x1000010000100001 << r
        a(f"s_mov_b32 s{DIAG[r]}, {m & 0xffffffff:#x}")
        a(f"s_mov_b32 s{DIAG[r] + 1}, {m >> 32:#x}")
    a(f"s_bfe_u32 s{sA}, s{sMM}, 0x10002")
    a(f"s_lshl_b32 s{sA}, s{sA}, 6")
    a(f"s_add_u32 s{sCQ}, s{sFL}, s{sA}")
    a(f"s_lshl4_add_u32 s{sD}, s{sW}, s{sCQ}")
    a(f"s_mul_i32 s{sA}, s{sW}, {54 * H_STR}")
    a(f"s_add_u32 s{SRDQ + 2}, s{sA}, {54 * H_STR}")
    a(f"s_lshl4_add_u32 s{sA}, s{sD}, s{sA}")
    a(f"v_lshrrev_b32 v{vq[0]}, 1, v{vG}")
    a(f"v_and_b32 v{vck}, 1, v{vG}")
    a(f"v_mad_u32_u24 v{vq[0]}, v{vq[0]}, 14, v{vck}")
    a(f"v_lshlrev_b32 v{vq[0]}, 15, v{vq[0]}")
    a(f"v_lshl_add_u32 v{vq[0]}, v{vI}, 4, v{vq[0]}")
    a(f"v_add_u32 v{vq[0]}, s{sA}, v{vq[0]}")
    a(f"v_xor_b32 v{vq[3]}, 0x300, v{vq[0]}")
    a(f"s_mov_b32 s{sKC}, {fx(H_OFF)}")
    a(f"s_mov_b32 s{sKC + 1}, {fx(H_OFF)}")
    a(f"s_mov_b32 s{sRS}, {fx(2.0 ** (-S_X[1] if final else -UP[0]))}")
    a(f"s_mov_b32 s{sRS + 1}, 0xffff0000")
    if final:
        srd_table(a, SRD4, "ft2")
        a(f"s_mul_i32 s{sB}, s{sMM}, 5")
        a(f"s_lshr_b32 s{sB}, s{sB}, 1")
        a(f"s_mul_i32 s{sA}, s{sB}, {TILE}")
        a(f"s_add_u32 s{SRD4}, s{SRD4}, s{sA}")
        a(f"s_addc_u32 s{SRD4 + 1}, s{SRD4 + 1}, 0")
        a(f"s_sub_u32 s{SRD4}, s{SRD4}, {2 * TILE}")
        a(f"s_subb_u32 s{SRD4 + 1}, s{SRD4 + 1}, 0")
        a(f"s_mov_b32 s{SRD4 + 2}, {5 * TILE}")
        a(f"s_lshl_b32 s{sA}, s{sB}, 16")
        a(f"s_add_u32 s{sA}, s{sA}, s{sC}")
        a(f"v_lshlrev_b32 v{ve}, 14, v{vG}")
        a(f"v_lshl_add_u32 v{ve}, v{vI}, 4, v{ve}")
        a(f"v_add_u32 v{ve}, s{sA}, v{ve}")
        srd_ws(a, SRD2, "X3", XP_SIZE)
        srd(a, SRD1, P_OUT, 0, SEQ * DM * 2)
        a(f"s_lshl_b32 s{sB}, s{sRB}, 13")
        a(f"s_lshl2_add_u32 s{sA}, s{sMM}, s{sW}")
        a(f"s_lshl_b32 s{sA}, s{sA}, 7")
        a(f"s_add_u32 s{sA}, s{sA}, s{sB}")
        a(f"v_lshl_add_u32 v{vpl}, v{vL}, 20, s{sA}")
        a(f"s_bfe_u32 s{sA}, s{sD}, 0x20005")
        a(f"s_lshl3_add_u32 s{sA}, s{sDC}, s{sA}")
        a(f"s_lshl_b32 s{sA}, s{sA}, 7")
        a(f"s_add_u32 s{sA}, s{sA}, s{sB}")
        a(f"v_and_b32 v{vfl}, 1, v{vI}")
        a(f"v_lshl_add_u32 v{vfl}, v{vfl}, 9, s{sA}")
    else:
        srd_ws(a, SRD1, "SS2", SS2_SIZE)
        a(f"s_lshl4_add_u32 s{sA}, s{sRB}, s{sMM}")
        a(f"s_lshl_b32 s{sA}, s{sA}, 7")
        a(f"s_add_u32 s{sA}, s{sA}, {READY}")
        a(f"v_lshl_add_u32 v{vpl}, v0, 20, s{sA}")
        a(f"s_lshl2_add_u32 s{sA}, s{sRB}, s{sW}")
        a(f"s_lshl_b32 s{sA}, s{sA}, 9")
        a(f"v_and_b32 v{vfl}, 3, v{vI}")
        a(f"v_lshl_add_u32 v{vfl}, v{vfl}, 7, s{sA}")
    a.raw(f"    s_waitcnt vmcnt({behind})")
    mk(a, name + "go")
    for _ in range(FZ.look):
        issue()
    s.flush()
    a("s_barrier")
    if not final:
        vm(s.M, f"buffer_store_dword v{vl0 + 1}, v{vpl}, s[{SRDF}:{SRDF + 3}], 0 offen sc1", again=False, part=0.2)
    mk.stash(a, Z)

    TA, TB, TE = (0, 1, 2, 3), (4, 5, 6), (0, 1, 2)
    groups = [("a", TA, t) for t in range(19)] + [("b", TB, t) for t in range(20)]
    groups.insert(19 + FZ.b_pre, ("a", TA, 19))
    if final:
        groups += [("e", TE, t) for t in range(20)]
    seq = [(kind, ft, t) for kind, tl, t in groups for ft in tl]
    rd_ = {"n": 0, "free": 0}

    def wreg(n):
        return WR + (n % NW) * 4

    def feed_l():
        while rd_["n"] < min(rd_["free"] + NW, len(seq)) and len(s.L) < 2:
            kind, ft, t = seq[rd_["n"]]
            if kind == "e" and "e0" not in done:
                return
            off = (ft + (2 if kind == "e" else 1)) * TILE + (19 - t) * 1024
            put(s.L, f"ds_read_b128 {R(wreg(rd_['n']), 4)}, v{vl0 + (off >> 16)} offset:{off & 0xffff}", ("rd", rd_["n"]))
            rd_["n"] += 1
    s.feed.append(feed_l)

    def rd_need(n):
        while ("rd", n) not in done:
            feed_l()
            if not s.L:
                s.need("e0")
                continue
            s.run(s.L.pop(0))

    def prep_x(ts):
        keys = [("x", t, h) for t in xorder if t in ts for h in range(2)]
        regs = [xr(k[1], k[2]) for k in keys]
        verify(keys, regs, lower(regs, T_X[final]), f"{name}_x{ts[0]}", "xok" if xorder[-1] in ts else None)
        for t in ts:
            ops = [f"v_swap_b32 v{xr(t, 0) + 2}, v{xr(t, 1)}", f"v_swap_b32 v{xr(t, 0) + 3}, v{xr(t, 1) + 1}"]
            if t == 19:
                for st in range(2):
                    if final:
                        ops.append(f"v_accvgpr_write_b32 {R(vdc + st)}, v{xr(t, st)}")
                    ops.append(f"v_bfi_b32 v{xr(t, st)}, v{vmk}, 0, v{xr(t, st)}")
            for op in ops[:-1]:
                put(s.C, op)
            put(s.C, ops[-1], ("sw", t))

    def gram(t, wait=None):
        s.need(("sw", t))
        for st in range(2):
            s.mf(GR + 4 * st, xr(t, st), xr(t, st), None if t == 0 else GR + 4 * st, wait if st else None)

    def stats():
        t0 = s.tM + 40
        ops = []
        for r in range(4):
            for st in range(2):
                prev = "0" if r == 0 else f"v{T + 2 * st}"
                ops.append(f"v_cndmask_b32_e64 v{T + 2 * st}, {prev}, v{GR + 4 * st + r}, s[{DIAG[r]}:{DIAG[r] + 1}]")
        for op in ("v_permlane32_swap_b32", "v_permlane16_swap_b32"):
            ops += [f"v_mov_b32 v{T + 2 * st + 1}, v{T + 2 * st}" for st in range(2)]
            ops += [f"{op} v{T + 2 * st}, v{T + 2 * st + 1}" for st in range(2)]
            ops += [f"v_add_f32 v{T + 2 * st}, v{T + 2 * st}, v{T + 2 * st + 1}" for st in range(2)]
        ops += [f"v_fmamk_f32 v{T + 2 * st}, v{T + 2 * st}, {fx((1 + EPS) / DM)}, v{T + 4}" for st in range(2)]
        ops += [f"v_rsq_f32 v{T + 2 * st + 1}, v{T + 2 * st}" for st in range(2)]
        ops += [f"v_mul_f32 v{CC + 4 + st}, v{T + 2 * st}, v{T + 2 * st + 1}" for st in range(2)]
        ops += [f"v_cvt_pk_bf16_f32 v{T + 2 * st}, v{CC + 4 + st}, v{CC + 4 + st}" for st in range(2)]
        ops += [f"v_bfi_b32 v{xr(19, st)}, v{vmk}, v{T + 2 * st}, v{xr(19, st)}" for st in range(2)]
        late = [f"v_mul_f32 v{CC + st}, {fx(GELU_K0)}, v{T + 2 * st + 1}" for st in range(2)]
        late += [f"v_mul_f32 v{T + 2 * st}, v{T + 2 * st + 1}, v{T + 2 * st + 1}" for st in range(2)]
        late += [f"v_mul_f32 v{T + 2 * st}, {fx(0.044715)}, v{T + 2 * st}" for st in range(2)]
        late += [f"v_mul_f32 v{CC + 2 + st}, v{CC + st}, v{T + 2 * st}" for st in range(2)]
        if not final:
            late += [f"v_mul_f32 v{CC + 4 + st}, {fx(2.0 ** -S_LO)}, v{CC + 4 + st}" for st in range(2)]
        put(s.G, f"v_mov_b32 v{T + 4}, {fx(EPS * EPS * 4.0 ** S_X[final])}")
        put(s.G, f"v_xor_b32 v{vq[1]}, 0x100, v{vq[0]}")
        put(s.G, f"v_xor_b32 v{vq[2]}, 0x200, v{vq[0]}", "qset")
        put(s.G, ops[0], gate=lambda: s.t >= t0)
        for op in ops[1:-1]:
            put(s.G, op)
        put(s.G, ops[-1], "stats")
        for op in late:
            put(s.G, op)

    def poll(key, off):
        lab = f"{name}_{key}"
        text = f"buffer_load_dword v{vmk}, v{vfl}, s[{SRDF}:{SRDF + 3}], @ offen sc1"
        test = f"v_cmp_eq_u32 vcc, 0, v{vmk}"

        def branch():
            a(f"s_cbranch_vccnz {lab}_spin", tag="nopad")
            a.label(f"{lab}_ok", keep=True)

            def spin():
                a.label(f"{lab}_spin")
                a(f"s_mov_b32 s{sRP}, {off}")
                a(text.replace("@", f"s{sRP}"))
                a("s_waitcnt vmcnt(0)")
                budget(a, f"{lab}_ok")
                a(test)
                a(f"s_cbranch_vccnz {lab}_spin")
                a(f"s_branch {lab}_ok")
            a.tail.append(spin)

        def check():
            s.C.append(wait_item(("i", key), [f"v{vmk}"]))
            put(s.C, test)
            s.C.append(Item("j", 10, branch, key))
        return (lambda: vm(s.C, text, sE, f"s_mov_b32 @, {off}", ("i", key), again=False, part=0.2)), check

    if final:
        ix, cx = poll("rgo", PX)

        def signal():
            s.C.append(Item("s", 4, lambda: a.wait_tag("x3"), until="x3"))
            vm(s.C, f"buffer_store_dword v{vl0 + 1}, v{vpl}, s[{SRDF}:{SRDF + 3}], @ offen sc1", sE, f"s_mov_b32 @, {PX}",
               again=False, part=0.2)

        def e_ok():
            plan(("e", 14))
            s.C.append(Item("s", 4, lambda: (s.need(("e", 14)), a.wait_tag("e")), until=("e", 14),
                            gate=lambda: ("e", 14) in done))
            put(s.C, "s_barrier", "e0")
        at(("b", FZ.e_ok), e_ok)
        at(FZ.x3[0], signal)
        at(FZ.x3[1], ix)
        at(FZ.x3[2], lambda: (s.need("oset"), cx()))
    else:
        i_, c_ = poll("ready", READY)
        at(FZ.rd_at[0], lambda: (s.need("stats"), i_()))
        at(FZ.rd_at[1], c_)
        at(FZ.res_at, lambda: (s.need("oset"), done.setdefault("rgo", s.t)))

    at(("b", FZ.b_pre + FZ.ebar), lambda: put(s.C, "s_barrier", "ebar"))

    post = []

    def gelu(ft):
        Zs = Z + 8 * (ft & 1)
        prs = [(acc(ft, st) + h, Zs + st * 4 + h, st) for st in range(2) for h in (0, 2)]
        t0 = s.tM + 40

        def stage(pk, plain, key=None, gate=None):
            for n, (x, z, st) in enumerate(prs):
                k = key if n == 3 else None
                sel = f"op_sel:[0,{st},{st}] op_sel_hi:[1,{st},{st}]"
                it = s.item(pk.format(x=V(x, 2), z=V(z, 2), sel=sel), k, gate)
                it.alt = [s.item(plain.format(x=V(x + e), z=V(z + e), c0=V(CC + st), c2=V(CC + 2 + st), c4=V(CC + 4 + st)),
                                 k if e else None, gate) for e in range(2)]
                s.G.append(it)

        stage("v_pk_mul_f32 {z}, {x}, {x}", "v_mul_f32 {z}, {x}, {x}", gate=lambda: s.t >= t0)
        stage("v_pk_fma_f32 {z}, {z}, %s, %s {sel}" % (V(CC + 2, 2), V(CC, 2)), "v_fma_f32 {z}, {z}, {c2}, {c0}")
        stage("v_pk_mul_f32 {z}, {z}, {x}", "v_mul_f32 {z}, {z}, {x}")
        close()
        for k in range(8):
            put(s.G, f"v_exp_f32 v{Zs + k}, v{Zs + k}")
        stage("v_pk_fma_f32 {z}, {z}, %s, %s {sel}" % (V(CC + 4, 2), V(CC + 4, 2)), "v_fma_f32 {z}, {z}, {c4}, {c4}")
        for k in range(8):
            put(s.G, f"v_rcp_f32 v{Zs + k}, v{Zs + k}")
        if final:
            stage("v_pk_fma_f32 {z}, {z}, {x}, s[%d:%d]" % (sKC, sKC + 1), "v_fma_f32 {z}, {z}, {x}, s%d" % sKC, ("s5", ft))
        else:
            stage("v_pk_mul_f32 {z}, {z}, {x}", "v_mul_f32 {z}, {z}, {x}", ("s5", ft))

        def out():
            for k in range(4):
                put(s.G, f"v_cvt_pk_bf16_f32 v{Zs + k}, v{Zs + 2 * k}, v{Zs + 2 * k + 1}")
            if ft == 6:
                put(s.G, f"v_add_u32 v{vo}, s{sMSK}, v{vo}")
            put(s.G, f"v_permlane16_swap_b32 v{Zs}, v{Zs + 2}")
            put(s.G, f"v_permlane16_swap_b32 v{Zs + 1}, v{Zs + 3}")
            vm(s.G, f"buffer_store_dwordx4 {V(Zs, 4)}, v{vo}, s[{SRDH}:{SRDH + 3}], @ offen sc1", sHO,
               f"s_mov_b32 @, {ft * 2 * H_STR}", ("gelu", ft), again=False, first=FZ.hf)
        post.append(out)

    def close():
        while post:
            post.pop()()

    def out_setup():
        g = lambda op, key=None: put(s.G, op, key)
        g(f"v_lshl_add_u32 v{vpk}, v{vL}, 4, s{sPK}", "vpk")
        g(f"s_mul_i32 s{sGA}, s{sDC}, {20 * XP_STR}")
        g(f"s_lshl3_add_u32 s{sGA}, s{sD}, s{sGA}")
        g(f"v_lshlrev_b32 v{vo2}, 14, v{vG}")
        g(f"v_lshl_add_u32 v{vo2}, v{vI}, 3, v{vo2}")
        g(f"v_add_u32 v{vo2}, s{sGA}, v{vo2}", "oset")
        g(f"v_lshrrev_b32 v{vor}, 1, v{vG}")
        g(f"s_mov_b32 s{sGA}, {0x3f800000 + (0x3f80 if final else (127 + S_LO) << 7):#x}")
        g(f"v_mul_lo_u32 v{vor}, v{vor}, s{sGA}", "vor")
        g(f"v_lshl_add_u32 v{vrd}, v{vL}, 4, s{sEB}")
        for ql in (1, 2, 3):
            g(f"s_xor_b32 s{sGA}, s{sW}, {ql}")
            g(f"s_mul_i32 s{sGA}, s{sGA}, 15360")
            if ql > 1:
                g(f"s_add_u32 s{sGA}, s{sGA}, {(ql - 1) * 5120}")
            g(f"v_lshl_add_u32 v{vred[ql - 1]}, v{vL}, 4, s{sGA}")
        if final:
            g(f"s_bfe_u32 s{sGA}, s{sD}, 0x10004")
            g(f"s_lshl_b32 s{sGA}, s{sGA}, 3")
            g(f"s_lshr_b32 s{sGB}, s{sD}, 9")
            g(f"s_lshl4_add_u32 s{sGA}, s{sGB}, s{sGA}")
            g(f"s_bfe_u32 s{sGB}, s{sD}, 0x20005")
            g(f"s_lshl_b32 s{sGB}, s{sGB}, 8")
            g(f"s_add_u32 s{sGA}, s{sGA}, s{sGB}")
            g(f"s_and_b32 s{sGB}, s{sD}, 128")
            g(f"s_add_u32 s{sGA}, s{sGA}, s{sGB}")
            g(f"s_and_b32 s{sGB}, s{sD}, 256")
            g(f"s_lshl2_add_u32 s{sGA}, s{sGB}, s{sGA}")
            g(f"v_and_b32 v{vout}, 1, v{vI}")
            g(f"v_lshlrev_b32 v{vout}, 6, v{vout}")
            g(f"v_lshrrev_b32 v{vs}, 1, v{vI}")
            g(f"v_add3_u32 v{vout}, v{vout}, v{vs}, s{sGA}")
            g(f"v_mul_u32_u24 v{vout}, 1280, v{vout}")
            g(f"s_mul_i32 s{sGA}, s{sDC}, 160")
            g(f"v_lshl_add_u32 v{vout}, v{vG}, 3, v{vout}")
            g(f"v_add_u32 v{vout}, s{sGA}, v{vout}", "setup")
        else:
            g(f"v_lshrrev_b32 v{vs}, 1, v{vI}")
            g(f"v_lshlrev_b32 v{vs}, 4, v{vs}")
            g(f"v_and_b32 v{vout}, 1, v{vI}")
            g(f"v_lshl_add_u32 v{vs}, v{vout}, 2, v{vs}")
            g(f"v_and_b32 v{vout}, 1, v{vG}")
            g(f"v_lshl_add_u32 v{vs}, v{vout}, 3, v{vs}")
            g(f"v_lshrrev_b32 v{vout}, {0 if FZ.x_nocnt else 1}, v{vG}")
            g(f"v_lshl_add_u32 v{vs}, v{vout}, 20, v{vs}")
            g(f"s_lshl_b32 s{sGA}, s{sD}, 3")
            g(f"v_add_u32 v{vs}, s{sGA}, v{vs}")
            g(f"v_add_u32 v{vout}, s{sDC}, v{vG}")
            g(f"v_min_u32 v{vout}, 1, v{vout}")
            g(f"v_mul_u32_u24 v{vout}, 0xffff, v{vout}")
            g(f"v_lshlrev_b32 v{vout}, 16, v{vout}")
            g(f"v_or_b32 v{vout}, 0xffff, v{vout}")
            g(f"v_mov_b32 v{TMP + 2}, 0")
            g(f"v_mov_b32 v{TMP + 3}, 0")
            g(f"s_mov_b64 s[{DIAG[0]}:{DIAG[0] + 1}], 0xffff")
            g(f"s_mov_b32 s{sGB}, {-S_LO * 0x800080:#x}", "setup")

    gl, rest = {}, xorder[1:]
    for t in range(19):
        n = 2 if t in FZ.dbl else 1
        gl[t], rest = sorted(rest[:n]), rest[n:]
    rd_need(NW - 1)
    prep_x([0])
    n = 0

    def grp_wait(k):
        nx = sum(len(g[1]) for g in groups[:k + 1]) - 1
        if k >= len(groups):
            return None
        return Item("s", 4, lambda: (rd_need(nx), a.wait_regs(R(wreg(nx), 4))))

    gram(0, grp_wait(0))
    for k, (kind, tl, t) in enumerate(groups):
        fine(kind, t)
        grams = gl.get(t, []) if kind == "a" else []
        if kind == "a" and t == 19:
            s.need("stats")
        if kind == "e" and t == 0:
            s.need(("s5", 2))
            for st in range(2):
                put(s.C, f"v_accvgpr_read_b32 v{xr(19, st)}, {R(vdc + st)}", ("dc", st))
        if kind == "e" and t == 19:
            s.need(("dc", 1))
        hi = sum(len(g[1]) for g in groups[:k + 2])
        for j, ft in enumerate(tl):
            for st in range(2):
                if grams and 2 * j + st == (FZ.xc_at if len(grams) == 1 else 0):
                    prep_x(grams)
                d = (EACC if kind == "e" else ACC1) + (ft * 2 + st) * 4
                last = j == len(tl) - 1 and st and not grams
                if st:
                    rd_["free"] = n + 1
                s.mf(d, wreg(n), xr(t, st), None if t == 0 else d, grp_wait(k + 1) if last else None,
                     urgent=rd_["n"] - len(s.L) < hi)
            n += 1
        for g in grams:
            gram(g, grp_wait(k + 1) if g == grams[-1] else None)
        if grams and xorder[-1] in grams:
            stats()
        if kind == ("e" if final else "b"):
            done[("xfree", t)] = s.t
        if kind == "a" and t == 19:
            note("A")
            for ft in TA:
                gelu(ft)
            close()
            if FZ.pure[final]:
                s.pure(("gelu", FZ.pure[final] - 1))
        if kind == "b" and t == 19:
            for ft in TB:
                gelu(ft)
            close()
            if FZ.in_b[final]:
                s.pure(("gelu", FZ.in_b[final] - 1))
    if final:
        note("E")
        t0 = s.tM + 40
        for et in TE:
            d = EACC + et * 8
            for k in range(4):
                put(s.C, f"v_cvt_pk_bf16_f32 v{d + k}, v{d + 2 * k}, v{d + 2 * k + 1}", gate=lambda: s.t >= t0)
            vm(s.C, f"buffer_store_dwordx4 {V(d, 4)}, v{ve}, s[{SRD2}:{SRD2 + 3}], @ offen sc1",
               sE, f"s_mov_b32 @, {et * 4 * XP_STR}", {1: "edone", 2: "x3"}.get(et), tag="x3", again=False)
        epi, s.C = s.C, []
        s.pure(("gelu", FZ.in_e - 1))
    out_setup()
    s.pk = bool(FZ.g2pk[final])
    mk.stash(a, vck)

    def accr(p, q):
        return ACC2 + (q * 5 + p) * 4

    def q_check(n):
        keys = [("q",) + x for x in units[n]]
        regs = [qreg(*x) for x in units[n]]
        fix = [f"v_or_b32 v{qreg(u, q)}, v{qreg(u, q)}, v{vor}" for u, q in units[n] if u == NS - 1]
        if fix:
            s.need("vor")
        verify(keys, regs, fix + (lower(regs, T_H) if final else unset(regs)), f"{name}_q{n}", ("qok", n))

    def writes(q):
        t0 = s.tM + 40
        s.need("setup")
        for p in range(5):
            put(s.L, f"ds_write_b128 v{vred[q - 1]}, {R(accr(p, q), 4)} offset:{p * 1024}", ("wr", q, p),
                gate=lambda p=p: s.t >= max(t0 - 16 * (4 - p), t0 - 40 + FZ.wgap * p))

    def reads(q, k):
        for p in range(5):
            put(q, f"ds_read_b128 {R(accr(p, k), 4)}, v{vrd} offset:{(k - 1) * 5120 + p * 1024}")

    def res_ops():
        plan(("r", 4))
        w = wait_item(("r", 4), [V(RES, 10)])
        w.gate = lambda: s.eta.get(("r", 4), 1e9) <= s.t
        f0 = w.fn
        w.fn = lambda: (s.need(("r", 4)), f0())
        s.G.append(w)
        for p in range(5):
            for h in range(2):
                u_, r, d = RU + 2 * h, RES + 2 * p + h, accr(p, 0) + 2 * h
                put(s.G, f"v_lshlrev_b32 v{u_}, 16, v{r}")
                put(s.G, f"v_and_b32 v{u_ + 1}, s{sRS + 1}, v{r}")
                put(s.G, f"v_fmac_f32 v{d}, s{sRS}, v{u_}")
                put(s.G, f"v_fmac_f32 v{d + 1}, s{sRS}, v{u_ + 1}", ("res", p) if h else None)

    def unpark(u):
        ok = lambda: "vpk" in done and ("k", u, 4) in done and s.eta[("k", u, 4)] <= s.t
        plan(("k", u, 4))
        s.L.append(Item("s", 4, lambda: (s.need("vpk"), s.need(("k", u, 4)), a.wait_tag(f"k{u}")), until=("k", u, 4), gate=ok))
        for p in range(5):
            put(s.L, f"ds_read_b128 {R(preg(u, p), 4)}, v{vpk} offset:{(u - NP) * TILE + p * 1024}", ("p", u, p))
            sched.add(("p", u, p))

    def g_bar():
        for u in parked:
            s.need(("p", u, 4))
        put(s.C, "s_waitcnt lgkmcnt(0)")
        put(s.C, "s_barrier")

    for u in parked:
        at(("g", u - NP), lambda u=u: unpark(u))
    at(("g", FZ.gbar), g_bar)
    def post_at(where):
        if not final and FZ.post == where:
            vm(s.C, f"buffer_store_dword v{vl0 + 1}, v{vpl}, s[{SRDF}:{SRDF + 3}], @ offen sc1", sE,
               f"s_mov_b32 @, {POST - READY}", key="post",
               again=False, part=0.2)
            s.need("post")

    q_check(0)
    if final:
        if FZ.split0:
            q_check(1)
        s.C += epi
    seen = set()
    for n, un in enumerate(units):
        tailq = un[0][1] if len({u for u, _ in un}) > 1 or KT == 1 and un[0][0] == NS - 1 else None
        s.need(("qok", n))
        left = 5 * len(un)
        if tailq == 1:
            res_ops()
        if tailq == 0:
            s.need(("wr", 2, 4))
            put(s.C, "s_waitcnt lgkmcnt(0)")
            put(s.C, "s_barrier", "bar1")
            s.need("bar1")
            post_at("bar1")
            writes(3)
            reads(s.L, 1)
            reads(s.L, 2)
        elif tailq is not None and tailq > 1:
            writes(tailq - 1)
        for u, q in un:
            if u not in seen:
                fine("g", u)
                if u == 1:
                    note("g1")
                for p in range(5):
                    plan(("p", u, p))
                    s.need(("p", u, p))
                seen.add(u)
            for p in range(5):
                if left == min(FZ.qc_rem, 5 * len(un)) and n + 1 < len(units) and not (final and FZ.split0 and n == 0):
                    q_check(n + 1)
                if tailq == 0:
                    s.need(("res", p))
                if s.eta.get(("p", u, p), 0) > s.t:
                    s.stall += s.eta[("p", u, p)] - s.t
                    if FZ.verbose:
                        print(f"  {s.t:6.0f} STALL p {u} {p} {s.eta[('p', u, p)] - s.t:.0f}", file=sys.stderr)
                    s.t = s.eta[("p", u, p)]
                s.mf(accr(p, q), preg(u, p), qreg(u, q), None if u == 0 else accr(p, q))
                left -= 1
            done[("qfree", u, q)] = s.t
    s.flush()
    assert not queue and not act, (queue, act)
    a("s_waitcnt lgkmcnt(0)")
    a("s_barrier")
    reads(s.L, 3)
    s.flush()
    post_at("bar2")
    for p in range(5):
        for h in (0, 2):
            a(f"v_pk_add_f32 {V(accr(p, 1) + h, 2)}, {V(accr(p, 1) + h, 2)}, {V(accr(p, 2) + h, 2)}")
    for p in range(5):
        for h in (0, 2):
            a(f"v_pk_add_f32 {V(accr(p, 0) + h, 2)}, {V(accr(p, 0) + h, 2)}, {V(accr(p, 1) + h, 2)}")
    for p in range(5):
        r = accr(p, 0)
        for h in (0, 2):
            a(f"v_pk_add_f32 {V(r + h, 2)}, {V(r + h, 2)}, {V(accr(p, 3) + h, 2)}")
        a(f"v_cvt_pk_bf16_f32 v{r}, v{r}, v{r + 1}")
        a(f"v_cvt_pk_bf16_f32 v{r + 1}, v{r + 2}, v{r + 3}")
        if final:
            a(f"buffer_store_dwordx2 {V(r, 2)}, v{vout}, s[{SRD1}:{SRD1 + 3}], 0 offen offset:{p * 32}")
        else:
            a(f"s_mov_b32 s{sOP}, {p * 4 * XP_STR}")
            a(f"buffer_store_dwordx2 {V(r, 2)}, v{vo2}, s[{SRDX}:{SRDX + 3}], s{sOP} offen sc1")
    if not final:
        for p in range(5):
            r = accr(p, 0)
            for h in range(2):
                a(f"v_add_u32 v{r + 2 + h}, s{sGB}, v{r + h}")
            if p == 0:
                a(f"v_and_b32 v{r + 2}, v{vout}, v{r + 2}")
        for p in range(5):
            for h in range(2):
                r = accr(p, 0) + 2 + h
                a(f"v_dot2c_f32_bf16 v{TMP + 2 + h}, v{r}, v{r}")
        z = TMP + 2
        a(f"v_add_f32 v{z}, v{z}, v{z + 1}")
        for op in ("v_permlane32_swap_b32", "v_permlane16_swap_b32"):
            a(f"v_mov_b32 v{z + 1}, v{z}")
            a(f"{op} v{z}, v{z + 1}")
            a(f"v_add_f32 v{z}, v{z}, v{z + 1}")
        a(f"v_cndmask_b32_e64 v{z}, 1.0, v{z}, s[{DIAG[0]}:{DIAG[0] + 1}]")
        a(f"{FZ.x_op} v{z}, v{vs}, s[{SRD1}:{SRD1 + 3}], 0 offen sc1".replace("-", "_"), tag="out")
    post_at("end")
    mk(a, name + "end")


def role_fused(a):
    if Cfg.stamp:
        mk.names.append("start")
        mk.pend.append(0)
    if FZ.probe:
        a(f"s_memrealtime s[{sST}:{sST + 1}]")
    f0.front(a, mk.fixed)
    begin(a)
    mk.stash(a, 4)
    for ph in range(0 if FZ.halt == 10 else 2):
        a(f"s_cmp_ge_u32 s{sT}, {NCOL}")
        a(f"s_cbranch_scc1 idle{ph}", tag="nopad")
        pend = list(mk.pend)

        def idle(ph=ph, pend=pend):
            keep, mk.pend = mk.pend, pend
            a.label(f"idle{ph}")
            idle_phase(a, ph)
            a(f"s_branch join{ph}")
            mk.pend = keep
        a.tail.append(idle)
        n = col_phase(a, ph)
        a.label(f"join{ph}")
        if FZ.halt == 2 * ph + 1 or FZ.halt == 25 and ph:
            break
        mlp_phase(a, ph, n)
        if FZ.halt == 2 * ph + 2:
            break
    if Cfg.stamp:
        a("s_waitcnt vmcnt(0)")
        mk(a, "drain")
        mk.stash(a, 4)
        a(f"v_writelane_b32 v4, s{sCNT}, 63")
        srd_ws(a, SRD0, "STAMP", 1 << 21)
        a(f"s_lshl_b32 s{sA}, s2, 10")
        a(f"s_add_u32 s{sA}, s{sA}, {1 << 20}")
        a(f"v_lshl_add_u32 v5, v0, 2, s{sA}")
        a(f"buffer_store_dword v4, v5, s[{SRD0}:{SRD0 + 3}], 0 offen")
        if FZ.dbg:
            a(f"s_load_dwordx2 s[{SRD1}:{SRD1 + 1}], s[0:1], 72")
            a(f"v_readlane_b32 s{sB}, v4, 0")
            a("v_mov_b32 v6, 0")
            for j, nm in enumerate(FZ.dbg[1:]):
                a(f"v_readlane_b32 s{sA}, v4, {mk.names.index(nm)}")
                a(f"s_sub_u32 s{sA}, s{sA}, s{sB}")
                a(f"v_writelane_b32 v6, s{sA}, {j}")
            a(f"s_sub_u32 s{sA}, s2, {FZ.dbg[0]}")
            a(f"s_lshl_b32 s{sA}, s{sA}, 10")
            a(f"v_lshl_add_u32 v5, v0, 2, s{sA}")
            a("s_waitcnt lgkmcnt(0)")
            srd(a, SRD1, SRD1, 0, 64)
            a(f"buffer_store_dword v6, v5, s[{SRD1}:{SRD1 + 3}], 0 offen")
    return 160 * 1024


def tables():
    L = []
    c = np.sqrt(2.0 / DM) * np.cos(2 * np.pi * np.arange(DM) / DM)
    c[160] = 0
    c[480] = 0
    bits = model.bf16_bits(c.astype(np.float32))
    for n in range(DM):
        L.append(f".set cq{n}, {bits[n]}")
    bb = int(model.bf16_bits(np.float32([np.sqrt(1 / DM)]))[0])
    k2 = model2.kmap()
    L.append(".altmacro")
    L.append(".macro e8 a,b,c,d,e,f,g,h\n.short cq\\a, cq\\b, cq\\c, cq\\d, cq\\e, cq\\f, cq\\g, cq\\h\n.endm")
    L.append(".macro e6 a,b,c,d,e,f\n.short cq\\a, cq\\b, cq\\c, cq\\d, cq\\e, cq\\f\n.endm")
    L.append(".p2align 12\nft2:\n.set tt, 0\n.rept 40")
    for kb in range(80):
        L.append(".set td, tt\n.rept 16")
        ent = [f"%(({k2[4 * kb + j // 2]}*td+{160 * (j & 1)})%640)" for j in range(8)]
        if kb == 0:
            L.append(f".short {bb}+((td&1)<<15), {bb}")
            L.append("e6 " + ", ".join(ent[2:]))
        else:
            L.append("e8 " + ", ".join(ent))
        L.append(".set td, td+1\n.endr")
    L.append(".set tt, tt+16\n.endr\n.noaltmacro")
    return "\n".join(L) + "\n"


if __name__ == "__main__":
    f0.FC.xscale = S_LO
    for opt in sys.argv[2:]:
        if opt == "stamp":
            Cfg.stamp = True
        else:
            k, v = opt.split("=", 1)
            tgt = [c for c in (FZ, f0.FC, Cfg) if hasattr(c, k)][0]
            v = eval(v)
            sp = lambda x: x.replace("_", " ") if isinstance(x, str) else tuple(map(sp, x)) if isinstance(x, tuple) else x
            setattr(tgt, k, sp(v))
    txt = generate([("mk_kernel", [(256, role_fused)])], tables)
    if Cfg.stamp:
        txt = txt.replace(".amdgcn_target", ("; clk\n" if FZ.clk else "") + f"; halt {FZ.halt}\n; marks " + " ".join(mk.names)
                          + "\n.amdgcn_target", 1)
    if FZ.single:
        txt = txt.replace("@launch kernel=mk_kernel ", "@launch ")
        txt = txt.replace("mk_kernel", "interleave_layers__spectral_gfnet__mixer_channel_mlp__prompt_kernel")
    open(sys.argv[1], "w").write(txt)
```

```python
from gen import *
import model2
from p0 import Sched, fx

SCALE = float(np.sqrt(2.0 / DM))
SIGN2 = 0x80008000
REGB = 24576
FB = SS2_SIZE
READY, POST, HINT, DONE2, DONE = 4 << 15, 5 << 15, (6 << 15, 7 << 15), 8 << 15, 9 << 15
XCC = "hwreg(HW_REG_XCC_ID, 0, 3)"
W2TOP = 252
aF, aD, aB, aDUM = 256 + 254, 256 + 255, 256 + 251, 256 + 253


class FC:
    fl_ld = " nt"
    fl_l2 = " nt"
    fl_l1 = ""
    fl_f = ""
    fs = (" sc1",) * 5
    xscale = 0
    code_pf = 1
    c_early = 3
    rot = 1
    t_pre = 6
    spread = 1
    pages = 0
    w_early = 5
    early = (0, 1)
    w2_pre = 1


def lane_blocks(a, v, t, base):
    a(f"v_and_b32 v{v}, 31, v{vL}")
    a(f"v_bfe_u32 v{t}, v{vL}, 5, 1")
    a(f"v_lshl_add_u32 v{v}, v{t}, 7, v{v}")
    a(f"v_lshl_add_u32 v{v}, s{sW}, 5, v{v}")
    a(f"v_lshlrev_b32 v{v}, 7, v{v}")
    a(f"v_add_u32 v{v}, {base + DONE}, v{v}")


def post(a, srd_, base, step, t, wait=None, both=False):
    a(f"s_getreg_b32 s{sB}, {XCC}")
    a(f"s_add_u32 s{sB}, s{sB}, {8 * step}")
    a(f"s_lshl_b32 s{sA}, s3, 7")
    a(f"s_add_u32 s{sA}, s{sA}, {base + DONE}")
    if both:
        a(f"v_lshrrev_b32 v{t + 2}, 1, v0")
        a(f"v_lshl_add_u32 v{t + 2}, v{t + 2}, 20, s{sA}")
        a(f"v_and_b32 v{t}, 1, v0")
        a(f"v_lshlrev_b32 v{t + 1}, 15, v{t}")
        a(f"v_sub_u32 v{t + 2}, v{t + 2}, v{t + 1}")
    else:
        a(f"v_lshl_add_u32 v{t + 2}, v0, 20, s{sA}")
    if wait:
        a(wait)
    a(f"v_accvgpr_read_b32 v{t + 1}, {R(aD)}")
    a(f"v_and_b32 v{t + 1}, -8, v{t + 1}")
    a(f"v_add_u32 v{t + 1}, s{sB}, v{t + 1}")
    if both:
        a(f"v_or_b32 v{t + 1}, v{t}, v{t + 1}")
    return f"buffer_store_dword v{t + 1}, v{t + 2}, s[{srd_}:{srd_ + 3}], 0 offen sc1"


def front(a, mark):
    name = "f"
    vld, vr, vo = 4, 5, 9
    MK, M1, M2, M2N = 10, 14, 15, 16
    vph, vk0, vq20, vgf = 17, 18, 19, 35
    ACC1, A1, A2, Y, ACCX = 20, 36, 96, 144, 168
    TMP = Y
    DAT = 176
    sQ, sFT, sKD, sSC = sK0, sK1, 96, 97
    KINDS = ("x", "w1", "w2")
    NX = 0 if FC.early[0] else 3
    NP = 2 if FC.pages else 0
    lbase = {"x": 0, "w1": 0, "w2": REGB}

    def frag(beta, j):
        return DAT + (beta * 5 + j) * 4

    a("s_cmp_ge_u32 s2, 8")
    a(f"s_cbranch_scc1 {name}_npf")
    if FC.code_pf:
        srd_code(a, SRD5, "mk_kernel")
        a(f"v_lshlrev_b32 v{vld}, 7, v0")
        for k in range(3):
            a(f"s_mov_b32 s{sOP}, {k << 15}")
            a.raw(f"    buffer_load_dword {R(aDUM)}, v{vld}, s[{SRD5}:{SRD5 + 3}], s{sOP} offen")
    a(f"s_add_u32 s{sT}, s2, 160")
    a.label(f"{name}_npf")
    a(f"s_sub_u32 s{sT}, s{sT}, 8")
    a("s_cmp_ge_u32 s2, 160")
    a(f"s_cselect_b32 s3, s2, s{sT}")
    a(f"s_lshl_b32 s{sE}, s{sW}, 10")
    a("s_cmp_ge_u32 s3, 128")
    a(f"s_cbranch_scc1 {name}_pb")
    if FC.spread:
        a(f"s_and_b32 s{sA}, s3, 7")
        a(f"s_lshr_b32 s{sT}, s3, 3")
        a(f"s_lshl4_add_u32 s{sT}, s{sA}, s{sT}")
        a(f"s_mov_b32 s3, s{sT}")

    def row_addr(v, t):
        a(f"s_and_b32 s{sA}, s{sW}, 1")
        a(f"s_lshl_b32 s{sA}, s{sA}, 1")
        a(f"s_xor_b32 s{sA}, s{sA}, s{sW}")
        a(f"s_lshl_b32 s{sA}, s{sA}, 2")
        a(f"v_or_b32 v{t}, s{sA}, v{vG}")
        a(f"v_xor_b32 v{t}, v{t}, v{vI}")
        a(f"v_mul_u32_u24 v{v}, 1280, v{v}")
        a(f"v_lshl_add_u32 v{v}, v{t}, 4, v{v}")

    def row_issue(v, fl, base):
        for j in range(5):
            a(f"s_add_u32 m0, s{sE}, {base + j * 4096 - j * 256}")
            a(f"buffer_load_dwordx4 v{v}, s[{SRD0}:{SRD0 + 3}], 0 offen offset:{j * 256}{fl} lds")

    def sync_start(part=3):
        t, z = TMP, TMP + 4
        if part & 1:
            sync_addr(t, z)
        if part & 2:
            srd_ws(a, SRD3, "SS2", SS2_SIZE + FLAG_SIZE)
            a(f"buffer_load_dword {R(aF)}, v{t}, s[{SRD3}:{SRD3 + 3}], 0 offen{FC.fl_f}")
            a(f"buffer_load_dword {R(aD)}, off, s[{SRD3}:{SRD3 + 3}], s{sOQ}{FC.fl_f}")
            a(f"buffer_store_dwordx4 {V(z, 4)}, v{t + 3}, s[{SRD3}:{SRD3 + 3}], 0 offen sc1")

    def sync_addr(t, z):
        lane_blocks(a, t, t + 1, FB)
        a(f"s_lshl_b32 s{sA}, s3, 2")
        a(f"v_and_or_b32 v{t + 3}, v0, 3, s{sA}")
        a(f"v_bfe_u32 v{t + 1}, v0, 2, 1")
        a(f"v_mad_u32_u24 v{t + 2}, v{t + 1}, 3, 4")
        a(f"v_lshlrev_b32 v{t + 3}, v{t + 2}, v{t + 3}")
        a(f"v_lshl_add_u32 v{t + 3}, v{t + 1}, 14, v{t + 3}")
        a(f"v_lshrrev_b32 v{t + 1}, 3, v0")
        a(f"v_lshl_add_u32 v{t + 3}, v{t + 1}, 20, v{t + 3}")
        for k in range(4):
            a(f"v_mov_b32 v{z + k}, 0")
        a(f"s_lshl_b32 s{sA}, s3, 7")
        a(f"s_add_u32 s{sOQ}, s{sA}, {FB + DONE}")
        a(f"s_add_u32 s{sA}, s{sA}, {FB + READY - (8 << 15)}")
        a(f"v_lshl_add_u32 v{t + 1}, v0, 15, s{sA}")
        a(f"v_subrev_u32 v{t + 2}, 8, v0")
        a(f"v_cmp_gt_u32 s[{sK2}:{sK3}], 5, v{t + 2}")
        a(f"v_cndmask_b32_e64 v{t + 3}, v{t + 3}, v{t + 1}, s[{sK2}:{sK3}]")

    def w2_setup(v, t):
        a(f"s_lshl_b32 s{sC}, s{sT}, 4")
        a(f"s_cmp_eq_u32 s{sT}, 108")
        a(f"s_cselect_b32 s{sC}, 0, s{sC}")
        a(f"s_lshl2_add_u32 s{sC}, s{sW}, s{sC}")
        a(f"v_add_u32 v{v}, s{sC}, v{vG}")
        row_addr(v, t)
        a("s_waitcnt lgkmcnt(0)")
        a(f"s_cmp_eq_u32 s{sT}, 108")
        a(f"s_mov_b32 s{SRD0 + 2}, {FF * DM * 2}")
        a(f"s_mov_b32 s{SRD0 + 3}, 0x20000")
        a(f"s_cselect_b32 s{SRD0 + 2}, {DM * 2}, s{SRD0 + 2}")
        a(f"s_cselect_b32 s{SRD0}, s{P_B2}, s{P_W2}")
        a(f"s_cselect_b32 s{SRD0 + 1}, s{P_B2 + 1}, s{P_W2 + 1}")
        a(f"s_and_b32 s{SRD0 + 1}, s{SRD0 + 1}, 0xffff")

    REG = 5248

    def filter_setup():
        a(f"s_bfe_u32 s{sA}, s3, 0x20001")
        a(f"s_lshl_b32 s{sC}, s{sA}, 7")
        a(f"s_lshr_b32 s{sA}, s3, 5")
        a(f"s_lshl_b32 s{sA}, s{sA}, 9")
        a(f"s_add_u32 s{sC}, s{sC}, s{sA}")
        a(f"s_and_b32 s{sA}, s3, 8")
        a(f"s_lshl3_add_u32 s{sC}, s{sA}, s{sC}")
        a(f"s_and_b32 s{sA}, s3, 16")
        a(f"s_add_u32 s{sC}, s{sC}, s{sA}")
        a(f"s_and_b32 s{sA}, s3, 1")
        a(f"s_lshl3_add_u32 s{sC}, s{sA}, s{sC}")
        a(f"s_and_b32 s{sA}, s{sW}, 2")
        a(f"s_lshl4_add_u32 s{sC}, s{sA}, s{sC}")
        a(f"s_mul_i32 s{sC}, s{sC}, 642")
        a(f"s_add_u32 s{sD}, s{sC}, 4096")
        a(f"s_mul_i32 s{sF}, s{sW}, {REG}")
        a(f"s_mov_b32 s{SRD0 + 2}, {SEQ * 642}")
        a(f"s_add_u32 m0, s{sF}, {REGB}")
        a(f"s_bitcmp1_b32 s{sW}, 0")
        a(f"s_cselect_b32 s{SRD0}, s{P_WI}, s{P_WR}")
        a(f"s_cselect_b32 s{SRD0 + 1}, s{P_WI + 1}, s{P_WR + 1}")
        a(f"s_and_b32 s{SRD0 + 1}, s{SRD0 + 1}, 0xffff")

    def filter_loads(js):
        a(f"v_lshlrev_b32 v{vld}, 4, v{vL}")
        for j in js:
            if j == 4:
                a(f"s_add_u32 m0, s{sF}, {REGB + 4096}")
            if j == 5:
                a("s_mov_b64 exec, 1")
            a(f"buffer_load_dwordx4 v{vld}, s[{SRD0}:{SRD0 + 3}], s{sC if j < 4 else sD} offen offset:{(j & 3) * 1024}{FC.fl_ld} lds")
            if j == 5:
                a("s_mov_b64 exec, -1")

    a(f"s_and_b32 s{sC}, s{sT}, 1")
    a(f"s_lshl_b32 s{sC}, s{sC}, 3")
    a(f"s_lshr_b32 s{sA}, s{sT}, 5")
    a(f"s_lshl4_add_u32 s{sC}, s{sA}, s{sC}")
    a(f"s_bfe_u32 s{sA}, s{sT}, 0x20001")
    a(f"s_lshl_b32 s{sA}, s{sA}, 8")
    a(f"s_add_u32 s{sC}, s{sC}, s{sA}")
    a(f"s_and_b32 s{sA}, s{sT}, 8")
    a(f"s_lshl4_add_u32 s{sC}, s{sA}, s{sC}")
    a(f"s_and_b32 s{sA}, s{sT}, 16")
    a(f"s_lshl_b32 s{sA}, s{sA}, 6")
    a(f"s_add_u32 s{sC}, s{sC}, s{sA}")
    a(f"s_lshl1_add_u32 s{sC}, s{sW}, s{sC}")
    a(f"v_and_b32 v{vld}, 1, v{vG}")
    a(f"v_lshlrev_b32 v{vld}, 6, v{vld}")
    a(f"v_lshrrev_b32 v{vr + 1}, 1, v{vG}")
    a(f"v_add3_u32 v{vld}, v{vld}, v{vr + 1}, s{sC}")
    row_addr(vld, vr)
    if FC.early[0]:
        sync_start(1)
    a("s_waitcnt lgkmcnt(0)")
    srd(a, SRD0, P_X, 0, SEQ * DM * 2)
    row_issue(vld, FC.fl_ld, 0)
    if FC.early[0]:
        sync_start(2)
    filter_setup()
    filter_loads(range(FC.c_early))
    mark(a, "l1")
    srd_ws(a, SRD1, "XP0", XP_SIZE)
    a(f"s_mov_b32 s{sKD}, 0")
    a(f"s_branch {name}_gen")

    a.label(f"{name}_pb")
    a(f"s_sub_u32 s{sT}, 255, s3")
    a(f"s_and_b32 s{sA}, s{sT}, 7")
    a(f"s_lshr_b32 s{sB}, s{sT}, 5")
    a(f"s_lshl3_add_u32 s{sA}, s{sB}, s{sA}")
    a(f"s_bfe_u32 s{sB}, s{sT}, 0x20003")
    a(f"s_lshl2_add_u32 s{sFT}, s{sA}, s{sB}")
    a(f"s_and_b32 s{sA}, s3, 7")
    a(f"s_bfe_u32 s{sB}, s3, 0x10003")
    a(f"s_lshl1_add_u32 s{sA}, s{sA}, s{sB}")
    a(f"s_add_u32 s{sA}, s{sA}, 92")
    a(f"s_cmp_lt_u32 s{sFT}, 92")
    a(f"s_cselect_b32 s{sFT}, s{sFT}, 108")
    a("s_cmp_lt_u32 s3, 144")
    a(f"s_cselect_b32 s{sFT}, s{sA}, s{sFT}")
    a(f"s_sub_u32 s{sT}, {W2TOP}, s3")
    a(f"s_min_u32 s{sT}, s{sT}, 112")
    a(f"s_cmp_ge_u32 s{sFT}, 108")
    a(f"s_cbranch_scc1 {name}_p2")
    a(f"s_and_b32 s{sA}, s{sW}, 1")
    a(f"s_lshl_b32 s{sA}, s{sA}, 2")
    a(f"v_lshrrev_b32 v{vld}, 1, v{vL}")
    a(f"v_xor_b32 v{vld}, s{sA}, v{vld}")
    a(f"v_mul_u32_u24 v{vld}, {FF * 2}, v{vld}")
    a(f"v_and_b32 v{vr}, 1, v{vL}")
    a(f"v_lshl_add_u32 v{vld}, v{vr}, 4, v{vld}")
    a(f"s_mul_i32 s{sA}, s{sW}, {32 * FF * 2}")
    a(f"s_lshl_b32 s{sB}, s{sFT}, 5")
    a(f"s_add_u32 s{sA}, s{sA}, s{sB}")
    a(f"v_add_u32 v{vld}, s{sA}, v{vld}")
    if FC.early[1]:
        sync_start(1)
    a("s_waitcnt lgkmcnt(0)")
    if FC.early[1] == 1:
        sync_start(2)
    srd(a, SRD0, P_W1, 0, DM * FF * 2)
    if FC.rot:
        a(f"s_and_b32 s{sC}, s{sFT}, 3")

    def w1_loads(js):
        for j in js:
            if FC.rot:
                a(f"s_lshl_b32 s{sA}, s{sC}, 12")
                a(f"s_add_u32 m0, s{sE}, s{sA}")
                a(f"s_mul_i32 s{sOP}, s{sC}, {128 * FF * 2}")
            else:
                a(f"s_add_u32 m0, s{sE}, {j * 4096}")
                a(f"s_mov_b32 s{sOP}, {j * 128 * FF * 2}")
            a(f"buffer_load_dwordx4 v{vld}, s[{SRD0}:{SRD0 + 3}], s{sOP} offen{FC.fl_l1} lds")
            if FC.rot and j < 4:
                a(f"s_add_u32 s{sC}, s{sC}, 1")
                a(f"s_cmp_eq_u32 s{sC}, 5")
                a(f"s_cselect_b32 s{sC}, 0, s{sC}")
            if j == 4:
                srd(a, SRD2, P_B1, 0, FF * 2)
                a(f"v_lshl_add_u32 v{vld}, v{vI}, 1, s{sB}")
                a(f"buffer_load_ushort {R(aB)}, v{vld}, s[{SRD2}:{SRD2 + 3}], 0 offen")

    w1_loads(range(FC.w_early))
    if FC.early[1] == 2:
        sync_start(2)
    mark(a, "l1")
    srd_ws(a, SRD1, "W1F", W1F_SIZE)
    a(f"s_mov_b32 s{sKD}, 1")
    a(f"s_branch {name}_gen")
    a.label(f"{name}_p2")
    w2_setup(vld, vr)
    row_issue(vld, FC.fl_l2, REGB)
    mark(a, "l1")
    sync_start()
    a(f"s_mov_b32 s{sKD}, 2")

    va0, va1, va2, vc, vt, LD, ST = 10, 11, 12, 13, 17, 176, 216
    k0, k1, k2 = 98, 99, 100

    def filter_addr():
        vo = vc
        srd_ws(a, SRD4, "WC", WC_SIZE)
        a(f"v_bfe_u32 v{vt}, v{vL}, 3, 1")
        a(f"v_lshlrev_b32 v{vt}, 2, v{vt}")
        a(f"v_add_u32 v{vt}, v{vt}, v{vG}")
        a(f"s_cmp_lt_u32 s{sW}, 2")
        a(f"s_cselect_b32 s{k0}, 1, -1")
        a(f"s_mul_i32 s{sA}, s{k0}, 80")
        a(f"s_mul_i32 s{sB}, s{k0}, 40")
        a(f"v_mul_i32_i24 v{va0}, s{sA}, v{vt}")
        a(f"v_and_b32 v{vt}, 7, v{vL}")
        a(f"v_mul_u32_u24 v{va1}, 642, v{vt}")
        a(f"v_add_u32 v{va0}, v{va0}, v{va1}")
        a(f"s_mul_i32 s{k1}, s{sW}, 5")
        a(f"s_sub_u32 s{k2}, 325, s{k1}")
        a(f"s_cmp_lt_u32 s{sW}, 2")
        a(f"s_cselect_b32 s{k2}, s{k1}, s{k2}")
        a(f"s_lshl_b32 s{k2}, s{k2}, 1")
        a(f"v_add_u32 v{va0}, s{k2}, v{va0}")
        a(f"v_add_u32 v{va1}, s{sB}, v{va0}")
        a(f"v_cmp_gt_u32 vcc, 8, v0")
        a(f"v_add_u32 v{va2}, 640, v{va0}")
        a(f"v_cndmask_b32 v{va2}, v{va0}, v{va2}, vcc")
        a(f"v_lshrrev_b32 v{vo}, 3, v{vL}")
        a(f"v_lshlrev_b32 v{vo}, 14, v{vo}")
        a(f"v_lshl_add_u32 v{vo}, v{vt}, 4, v{vo}")
        a(f"s_lshl_b32 s{sA}, s3, 7")
        a(f"s_lshr_b32 s{sB}, s{sW}, 1")
        a(f"s_lshl_b32 s{sB}, s{sB}, 17")
        a(f"s_add_u32 s{sA}, s{sA}, s{sB}")
        a(f"v_add_u32 v{vo}, s{sA}, v{vo}")
        a(f"s_sub_u32 s{k2}, s{k1}, 5")
        a(f"s_cmp_lt_u32 s{sW}, 2")
        a(f"s_cselect_b32 s{k1}, s{k1}, s{k2}")

    def filter_job():
        vo = vc
        a("s_barrier")
        mark(a, "b2")
        for n in range(5):
            for rl in range(2):
                for ph in range(2):
                    ad = va1 if ph else (va2 if n == 0 else va0)
                    for ar in range(2):
                        a(f"ds_read_u16 v{LD + n * 8 + (rl * 2 + ph) * 2 + ar}, v{ad} offset:{REGB + (rl * 2 + ar) * REG + 2 * n}")
        for n in range(5):
            for k in range(4):
                a(f"v_lshl_or_b32 v{ST + 4 * n + k}, v{LD + n * 8 + 2 * k + 1}, 16, v{LD + n * 8 + 2 * k}")
            if n == 0:
                a(f"s_cmp_eq_u32 s{k1}, 10")
                a(f"s_cselect_b32 s{sOP}, 0, s{k1}")
                a(f"s_lshl_b32 s{sOP}, s{sOP}, 18")
            else:
                a(f"s_add_i32 s{k1}, s{k1}, s{k0}")
                a(f"s_lshl_b32 s{sOP}, s{k1}, 18")
            a(f"buffer_store_dwordx4 {V(ST + 4 * n, 4)}, v{vo}, s[{SRD4}:{SRD4 + 3}], s{sOP} offen{FC.fs[1]}")

    a.label(f"{name}_gen")
    if FC.pages:
        a(f"v_min_u32 v{vr}, 3, v0")
        a(f"v_mul_u32_u24 v{vr}, {SLOT - (1 << 21)}, v{vr}")
        a(f"v_lshlrev_b32 v{vr + 1}, 21, v0")
        a(f"v_add_u32 v{vr}, v{vr}, v{vr + 1}")
        srd(a, SRD5, P_WS, 0, WS["STAMP"])
        a.raw(f"    buffer_load_dword {R(aDUM)}, v{vr}, s[{SRD5}:{SRD5 + 3}], 0 offen sc1")
        srd(a, SRD5, P_OUT, 0, SEQ * DM * 2)
        a.raw(f"    buffer_load_dword {R(aDUM)}, v{vr + 1}, s[{SRD5}:{SRD5 + 3}], 0 offen sc1")
    a(f"s_mov_b32 s{sSC}, {fx(SCALE)}")
    a(f"s_cmp_eq_u32 s{sKD}, 0")
    a(f"s_cselect_b32 s{sSC}, {fx(SCALE * 2.0 ** FC.xscale)}, s{sSC}")
    a(f"v_bfe_u32 v{TMP}, v{vI}, 1, 1")
    a(f"v_lshlrev_b32 v{TMP}, 4, v{TMP}")
    a(f"v_mov_b32 v{TMP + 1}, 0xffff")
    a(f"v_lshlrev_b32 v{TMP}, v{TMP}, v{TMP + 1}")
    a(f"v_lshrrev_b32 v{TMP + 1}, 2, v{vI}")
    for k in range(4):
        a(f"v_cmp_eq_u32 vcc, {k}, v{TMP + 1}")
        a(f"v_cndmask_b32 v{MK + k}, 0, v{TMP}, vcc")
    a(f"v_and_b32 v{M2}, 1, v{vI}")
    a(f"v_cvt_f32_u32 v{vph}, v{M2}")
    a(f"v_mul_f32 v{vph}, 0.5, v{vph}")
    a(f"v_lshrrev_b32 v{vk0}, 1, v{vI}")
    a(f"v_cvt_f32_u32 v{vk0}, v{vk0}")
    a(f"v_mul_f32 v{vk0}, {fx(1 / 32)}, v{vk0}")
    a(f"v_cvt_f32_u32 v{vgf}, v{vG}")

    def gen_a1(base, fq, ph):
        t = TMP
        a(f"v_fma_f32 v{t}, v{vgf}, v{fq}, {ph}")
        for j in range(1, 5):
            a(f"v_fmamk_f32 v{t + j}, v{fq}, {fx(4.0 * j)}, v{t}")
        for j in range(5):
            a(f"v_cos_f32 v{t + j}, v{t + j}")
        for j in range(5):
            a(f"v_mul_f32 v{t + j}, s{sSC}, v{t + j}")
        for j in range(5):
            a(f"v_cvt_pk_bf16_f32 v{t + j}, v{t + j}, v{t + j}")
        for j in range(5):
            for k in range(4):
                a(f"v_and_b32 v{base + 4 * j + k}, v{MK + k}, v{t + j}")

    def angles(kf, ph):
        t = TMP
        a(f"v_mul_f32 v{t + 8}, v{vgf}, v{kf}")
        a(f"v_fma_f32 v{t}, v{t + 8}, 2.0, v{ph}")
        for k in range(1, 8):
            c = 16 * (k >> 2) + 8 * ((k >> 1) & 1) + (k & 1)
            a(f"v_fmamk_f32 v{t + k}, v{kf}, {fx(float(c))}, v{t}")

    def entry(pre, kind):
        if kind != "x":
            a.label(f"{pre}_{kind}")
        if kind == "w2":
            a(f"s_waitcnt vmcnt({3 + NP})")
            a.label(f"{pre}_w2b")
            srd_ws(a, SRD1, "WA2", WA2_SIZE)
        else:
            mark(a, "gen")
        par["even"] = True

    def leave(pre, kind, n):
        if kind == "w1":
            mark(a, "j1")
            a(f"s_cmp_gt_u32 s{sT}, 108")
            a(f"s_cbranch_scc1 {name}_end")
            if FC.w2_pre == 2:
                row_issue(vq20, FC.fl_l2, REGB)
                st = post(a, SRD3, FB, 1, MK, "s_waitcnt vmcnt(5)")
                a("s_barrier")
                a(st)
                mark(a, "p1")
                n = 1
            a(f"s_waitcnt vmcnt({n})")
            a(f"s_branch {pre}_w2b")
        else:
            a(f"s_branch {name}_xend" if kind == "x" else f"s_branch {name}_end")

    def addresses(kind):
        if kind == "x":
            filter_loads(range(FC.c_early, 6))
            filter_addr()
        if kind == "w1":
            w1_loads(range(FC.w_early, 5))
            a(f"v_and_b32 v{vr}, 1, v{vG}")
            a(f"v_lshlrev_b32 v{vr}, 7, v{vr}")
            a(f"v_lshl_add_u32 v{vr}, v{vG}, 10, v{vr}")
            a(f"v_lshl_add_u32 v{vr}, v{vI}, 3, v{vr}")
            a(f"v_xor_b32 v{vr + 1}, 128, v{vr}")
        else:
            a(f"v_and_b32 v{vr}, 4, v{vI}")
            a(f"v_lshlrev_b32 v{vr}, 1, v{vr}")
            a(f"v_xor_b32 v{vr}, v{vr}, v{vI}")
            a(f"v_lshlrev_b32 v{vr + 1}, 2, v{vG}")
            a(f"v_xor_b32 v{vr}, v{vr}, v{vr + 1}")
            a(f"v_lshlrev_b32 v{vr}, 4, v{vr}")
            a(f"v_lshl_add_u32 v{vr}, v{vI}, 8, v{vr}")
            for k in (1, 2, 3):
                a(f"v_xor_b32 v{vr + k}, {16 * k}, v{vr}")
        if kind == "x":
            a(f"v_and_b32 v{vld}, 1, v{vI}")
            a(f"v_lshl_add_u32 v{vo}, v{vG}, 1, v{vld}")
            a(f"v_lshlrev_b32 v{vo}, 14, v{vo}")
            a(f"v_and_b32 v{vld}, 14, v{vI}")
            a(f"v_lshl_add_u32 v{vo}, v{vld}, 3, v{vo}")
            a(f"s_lshl_b32 s{sA}, s{sQ}, 18")
            a(f"s_lshl_b32 s{sB}, s{sT}, 7")
            a(f"s_mov_b32 vcc_lo, 0x55555555")
            a(f"s_mov_b32 vcc_hi, 0x55555555")
        elif kind == "w1":
            a(f"v_lshlrev_b32 v{vo}, 4, v{vL}")
            a(f"s_lshl_b32 s{sA}, s{sQ}, 11")
            a(f"s_mul_i32 s{sB}, s{sFT}, 20480")
        else:
            a(f"v_lshrrev_b32 v{vo}, 1, v{vG}")
            a(f"v_mul_u32_u24 v{vo}, {KB_STR}, v{vo}")
            a(f"v_lshrrev_b32 v{vld}, 2, v{vI}")
            a(f"v_lshl_add_u32 v{vo}, v{vld}, 7, v{vo}")
            a(f"v_and_b32 v{vld}, 3, v{vI}")
            a(f"v_lshl_add_u32 v{vo}, v{vld}, 4, v{vo}")
            a(f"v_and_b32 v{vld}, 1, v{vG}")
            a(f"v_lshl_add_u32 v{vo}, v{vld}, 6, v{vo}")
            a(f"s_lshl_b32 s{sA}, s{sQ}, 10")
            a(f"s_mul_i32 s{sB}, s{sT}, {2 * KB_STR}")
        a(f"s_add_u32 s{sA}, s{sA}, s{sB}")
        a(f"v_add_u32 v{vo}, s{sA}, v{vo}")

    def reads(kind, first):
        if kind == "x":
            if not FC.early[0]:
                sync_start()
            mark(a, "l2")
            a(f"s_waitcnt vmcnt({9 + NP})")
        elif kind == "w1":
            w2_setup(vq20, ACCX + 1)
            if not FC.early[1]:
                sync_start()
            if FC.w2_pre == 1:
                row_issue(vq20, FC.fl_l2, REGB)
            mark(a, "l2")
            a(f"s_waitcnt vmcnt({5 * (FC.w2_pre == 1) + (0 if FC.early[1] == 1 else 3) + (NP if FC.w_early == 5 else 0)})")
        a("s_barrier")
        mark(a, "b2" if kind == "w2" else "b1")
        for beta in range(4):
            for j in range(5):
                if kind == "w1":
                    for eh in range(2):
                        a(f"ds_read_b64_tr_b16 {R(frag(beta, j) + 2 * eh, 2)}, v{vr + eh} offset:{4096 * j + 256 * beta}")
                else:
                    a(f"ds_read_b128 {R(frag(beta, j), 4)}, v{vr + beta} offset:{lbase[kind] + 4096 * j}")
        if kind == "w1" and not FC.w2_pre:
            row_issue(vq20, FC.fl_l2, REGB)

    def dispatch(pre):
        for kind in KINDS[1:]:
            a(f"s_cmp_eq_u32 s{sKD}, {kind[-1]}")
            a(f"s_cbranch_scc1 {pre}_{kind}")

    def stage1(sc, n, extra=None):
        for beta in range(4):
            c = 4 * n + beta
            acc = ACC1 + 4 * (c % 4)
            for j in range(5):
                sc.mfma(acc, A1 + 20 * n + 4 * j, frag(beta, j), None if j == 0 else acc,
                        needs=[("y", c - 4)] if j == 0 and c >= 4 else [])
            rdy = sc.n + 5
            if extra:
                extra(beta, acc, rdy, ("y", c))
            for h in range(2):
                sc.add(f"v_cvt_pk_bf16_f32 v{Y + 2 * c + h}, v{acc + 2 * h}, v{acc + 2 * h + 1}", rdy, ("y", c))

    par = {"even": True}
    QP = "quad_perm:[1,0,3,2] row_mask:0xf bank_mask:0xf"

    def stage2(kind, sc, n, u, mat, acc, needs, fix=None):
        for tl in range(2):
            for kp in range(2):
                d = acc + 4 * tl
                m, y = mat + (tl * 2 + kp) * 4, Y + 8 * n + 4 * kp
                nd = list(needs) + [("y", 4 * n + 2 * kp), ("y", 4 * n + 2 * kp + 1)]
                if kind == "w2":
                    sc.mfma(d, y, m, None if kp == 0 else d, needs=nd)
                else:
                    sc.mfma(d, m, y, None if kp == 0 else d, needs=nd)
        rdy, key = sc.n + 3, ("o", n, u)
        if fix:
            fix(rdy, key)
        for k in range(4):
            sc.add(f"v_cvt_pk_bf16_f32 v{acc + k}, v{acc + 2 * k}, v{acc + 2 * k + 1}", rdy, key)
        if kind == "x":
            for ph in range(2):
                lo = par["even"]
                for k in range(2):
                    if lo:
                        sc.add(f"v_cndmask_b32_dpp v{acc + 4 + k}, v{acc + 2 + k}, v{acc + k}, vcc {QP}", rdy, key)
                    else:
                        sc.add(f"v_cndmask_b32_dpp v{acc + 6 + k}, v{acc + k}, v{acc + 2 + k}, vcc {QP}", rdy, key)
                if ph == 0:
                    sc.add("s_not_b64 vcc, vcc", rdy, key)
                    par["even"] = not lo

            def st():
                a(f"s_mov_b32 s{sOP}, {(16 * n + 8 * u) * XP_STR}")
                a(f"buffer_store_dwordx4 {V(acc + 4, 4)}, v{vo}, s[{SRD1}:{SRD1 + 3}], s{sOP} offen{FC.fs[0]}")
            sc.add(st, rdy, key)
        elif kind == "w1":
            def st():
                a(f"s_mov_b32 s{sOP}, {(2 * n + u) * 1024}")
                a(f"buffer_store_dwordx4 {V(acc, 4)}, v{vo}, s[{SRD1}:{SRD1 + 3}], s{sOP} offen{FC.fs[2]}")
            sc.add(st, rdy, key)
        else:
            sc.add(f"v_permlane16_swap_b32 v{acc}, v{acc + 2}", rdy, key)
            sc.add(f"v_permlane16_swap_b32 v{acc + 1}, v{acc + 3}", rdy, key)
            sc.add(f"buffer_store_dwordx4 {V(acc, 4)}, v{vo}, s[{SRD1}:{SRD1 + 3}], 0 offen offset:{1024 * n + 512 * u}{FC.fs[3]}",
                   rdy, key)

    a(f"s_cmp_eq_u32 s{sW}, 3")
    a(f"s_cbranch_scc1 {name}_sp")

    a(f"s_mul_i32 s{sQ}, s{sW}, 3")
    a(f"s_add_u32 s{sQ}, s{sQ}, 1")
    a(f"v_mul_f32 v{vph}, 0.5, v{vph}")
    a(f"v_cvt_f32_u32 v{vq20}, s{sQ}")
    a(f"v_fmamk_f32 v{vk0}, v{vq20}, {fx(1 / 640)}, v{vk0}")
    a(f"v_mul_f32 v{vq20}, {fx(1 / 20)}, v{vq20}")
    a(f"v_mul_u32_u24 v{M2}, 0x8000, v{M2}")
    a(f"v_lshl_or_b32 v{M2}, v{M2}, 16, v{M2}")
    a(f"v_xor_b32 v{M2N}, {SIGN2:#x}, v{M2}")
    a(f"v_and_b32 v{M1}, 1, v{vG}")
    a(f"v_mul_u32_u24 v{M1}, 0x8000, v{M1}")
    a(f"v_lshl_or_b32 v{M1}, v{M1}, 16, v{M1}")
    for n in range(3):
        if n:
            a(f"v_add_f32 v{vk0}, {fx(1 / 640)}, v{vk0}")
            a(f"v_add_f32 v{vq20}, {fx(1 / 20)}, v{vq20}")
        gen_a1(A1 + 20 * n, vq20, f"v{vph}")
        angles(vk0, vph)
        for k in range(8):
            a(f"v_sin_f32 v{TMP + 8 + k}, v{TMP + k}")
            a(f"v_cos_f32 v{TMP + k}, v{TMP + k}")
        b = A2 + 16 * n
        for k in range(8):
            a(f"v_cvt_pk_bf16_f32 v{b + k}, v{TMP + k}, v{TMP + 8 + k}")
            if k & 1:
                a(f"v_cvt_pk_bf16_f32 v{b + 8 + k}, -v{TMP + 8 + k}, v{TMP + k}")
        for k in range(8):
            a(f"v_xor_b32 v{b + 8 + k}, v{M1}, v{b + (8 if k & 1 else 0) + k}")
    dispatch(f"{name}_t")
    for kind in KINDS:
        entry(f"{name}_t", kind)
        addresses(kind)
        reads(kind, True)
        sc = Sched(a)
        dm = [256 + 16 * n if kind == "w1" else A1 + 20 * n for n in range(3)]

        def keep(beta, acc, rdy, key, n):
            for k in range(4 * beta, 4 * beta + 4):
                sc.add(f"v_xor_b32 v{MK + (k & 3)}, v{M2N if k & 1 else M2}, v{A2 + 16 * n + k}", -1, ("d", n))
            for k in range(4 * beta, 4 * beta + 4):
                sc.add(f"v_accvgpr_write_b32 {R(dm[n] + k)}, v{MK + (k & 3)}", -1, ("d", n))

        for n in range(3):
            if kind == "w1":
                stage1(sc, n, lambda *x: keep(*x, n))
                continue
            stage1(sc, n)
            for k in range(16):
                sc.add(f"v_xor_b32 v{A1 + 20 * n + k}, v{M2N if k & 1 else M2}, v{A2 + 16 * n + k}", sc.n, ("d", n))
        if kind == "w2" and FC.w2_pre != 2:
            st = post(a, SRD3, FB, 1, MK, "s_waitcnt vmcnt(0)")
            a(f"s_lshl_b32 s{sA}, s{sKD}, 19")
            a(f"s_and_b32 s{sA}, s{sA}, {1 << 20}")
            a(f"v_add_u32 v{MK + 2}, s{sA}, v{MK + 2}")
            a("s_barrier")
            a(st)
            mark(a, "p1")
        bufs = [ACCX, ACC1, ACC1 + 8]
        hist = [[], [("y", 8), ("y", 9)], [("y", 10), ("y", 11)]]
        for k in range(6):
            n, u = divmod(k, 2)
            needs = hist[k] if k < 3 else [("o",) + divmod(k - 3, 2)]
            if u:
                needs = needs + [("d", n)]
            stage2(kind, sc, n, u, dm[n] if u else A2 + 16 * n, bufs[k % 3], needs)
        sc.flush()
        if kind == "x":
            a(f"s_waitcnt vmcnt({6 + NX})")
        leave(f"{name}_t", kind, 6)

    a.label(f"{name}_sp")
    a(f"s_mov_b32 s{sQ}, 0")
    gen_a1(A1, vph, "0")
    a(f"v_mul_f32 v{vph}, 0.5, v{vph}")
    kf, ph = vq20, M1
    for tau in range(4):
        if tau == 0:
            a(f"v_cmp_eq_u32 vcc, 0, v{vI}")
            a(f"v_mov_b32 v{kf}, 0.5")
            a(f"v_cndmask_b32 v{kf}, v{vk0}, v{kf}, vcc")
            a(f"v_cmp_gt_u32 vcc, 2, v{vI}")
            a(f"v_mov_b32 v{ph}, {fx(0.125)}")
            a(f"v_cndmask_b32 v{ph}, v{vph}, v{ph}, vcc")
        else:
            a(f"v_add_f32 v{kf}, {fx(tau / 4 + (10 / 640 if tau >= 2 else 0))}, v{vk0}")
            a(f"v_mul_f32 v{ph}, {'-1.0' if tau >= 2 else '1.0'}, v{vph}")
        angles(kf, ph)
        for k in range(8):
            a(f"v_cos_f32 v{TMP + k}, v{TMP + k}")
        for k in range(8):
            d = A2 + 8 * tau + k
            a(f"v_cvt_pk_bf16_f32 v{d}, v{TMP + k}, 0" if tau < 2 else f"v_cvt_pk_bf16_f32 v{d}, 0, v{TMP + k}")
    dispatch(f"{name}_s")
    X0 = A2 + 32
    vs, vz, vb, GR, SM, T = X0, X0 + 1, X0 + 2, X0 + 4, X0 + 8, X0 + 12
    TR = A1 + 20
    DIAG = (4, 6, 30, 70)
    for kind in KINDS:
        entry(f"{name}_s", kind)
        addresses(kind)
        if kind == "x":
            srd_ws(a, SRD2, "SS0", SS_SIZE)
            a(f"s_lshr_b32 s{sA}, s{sT}, 4")
            a(f"s_lshl_b32 s{sA}, s{sA}, 10")
            a(f"s_and_b32 s{sB}, s{sT}, 7")
            a(f"s_lshl_b32 s{sB}, s{sB}, 7")
            a(f"s_add_u32 s{sA}, s{sA}, s{sB}")
            a(f"s_and_b32 s{sB}, s{sT}, 8")
            a(f"s_add_u32 s{sA}, s{sA}, s{sB}")
            a(f"v_lshrrev_b32 v{vs}, 1, v{vI}")
            a(f"v_lshlrev_b32 v{vs}, 4, v{vs}")
            a(f"v_lshl_add_u32 v{vs}, v{M2}, 2, v{vs}")
            a(f"v_lshl_add_u32 v{vs}, v{vG}, 20, v{vs}")
            a(f"v_add_u32 v{vs}, s{sA}, v{vs}")
            for r in range(4):
                m = 0x1000010000100001 << r
                a(f"s_mov_b32 s{DIAG[r]}, {m & 0xffffffff:#x}")
                a(f"s_mov_b32 s{DIAG[r] + 1}, {m >> 32:#x}")
        if kind == "w1":
            a(f"s_mov_b64 s[{sM0}:{sM1}], 0xffff")
        if kind == "w2":
            srd_ws(a, SRD2, "W2T", W2T_SIZE)
            a(f"v_bfe_u32 v{vz}, v{vI}, 1, 1")
            a(f"v_lshl_add_u32 v{vz}, v{vG}, 1, v{vz}")
            a(f"v_lshrrev_b32 v{vb}, 2, v{vI}")
            a(f"v_xor_b32 v{vz}, v{vz}, v{vb}")
            a(f"v_lshlrev_b32 v{vz}, 4, v{vz}")
            a(f"v_lshl_add_u32 v{vz}, v{vb}, 8, v{vz}")
            a(f"v_lshl_add_u32 v{vz}, v{M2}, 3, v{vz}")
            a(f"v_xor_b32 v{vb}, {1024 + 64}, v{vz}")
            a(f"s_mul_i32 s{sA}, s{sT}, {2 * KB_STR}")
            a(f"v_lshl_add_u32 v{vs}, v{vL}, 4, s{sA}")
        reads(kind, False)
        sc = Sched(a)

        def tr_read(n):
            h, x = divmod(n, 10)
            return [f"ds_read_b64_tr_b16 {V(TR + 4 * (n % 10) + 2 * eh, 2)}, v{vz + eh} "
                    f"offset:{REGB + (x >> 1) * 4096 + h * 2048 + 128 * ((x ^ h ^ eh) & 1)}" for eh in range(2)]

        def tr_store(n):
            if n % 4 == 0:
                a(f"s_mov_b32 s{sOQ}, {n * 1024}")
            a(f"buffer_store_dwordx4 {V(TR + 4 * (n % 10), 4)}, v{vs}, s[{SRD2}:{SRD2 + 3}], s{sOQ} offen offset:{(n % 4) * 1024}{FC.fs[4]}")

        if kind == "w2":
            for n in range(10):
                for op in tr_read(n):
                    a(op)

        def sums(beta, acc, rdy, key):
            sc.add(f"v_add_f32 v{SM + beta}, v{acc}, v{acc + 2}", rdy, key)

        stage1(sc, 0, sums if kind == "x" else None)
        if kind == "x":
            for k in range(10):
                sc.mfma(GR, DAT + 4 * k, DAT + 4 * k, None if k == 0 else GR)

        def fix(rdy, key):
            sc.add(f"v_accvgpr_read_b32 v{vb}, {R(aB)}", rdy, key)
            sc.add(f"v_lshlrev_b32 v{vb}, 16, v{vb}", rdy, key)
            sc.add(f"v_cndmask_b32_e64 v{ACCX + 1}, v{ACCX + 1}, v{vb}, s[{sM0}:{sM1}]", rdy, key)

        if kind == "w2":
            sc.flush()
            for n in range(10):
                tr_store(n)
                for op in tr_read(n + 10):
                    a(op)
                if n == FC.t_pre - 1 and FC.w2_pre != 2:
                    a(f"s_waitcnt vmcnt({FC.t_pre})")
                    a("s_barrier")
        stage2(kind, sc, 0, 0, A2, ACCX, [], fix if kind == "w1" else None)
        stage2(kind, sc, 0, 1, A2 + 16, ACC1, [("y", 0), ("y", 1)])
        if kind == "w2":
            for n in range(10, 20):
                tr_store(n)
        if kind == "x":
            sc.add(f"v_add_f32 v{SM}, v{SM}, v{SM + 1}")
            sc.add(f"v_add_f32 v{SM + 2}, v{SM + 2}, v{SM + 3}")
            sc.add(f"v_add_f32 v{SM}, v{SM}, v{SM + 2}")
            for op in ("v_permlane32_swap_b32", "v_permlane16_swap_b32"):
                sc.add(f"v_mov_b32 v{SM + 1}, v{SM}")
                sc.add(f"{op} v{SM}, v{SM + 1}")
                sc.add(f"v_add_f32 v{SM}, v{SM}, v{SM + 1}")
            sc.add(f"v_mul_f32 v{SM}, {fx(2.0 ** -FC.xscale)}, v{SM}")
            sc.add(f"v_mul_f32 v{SM}, v{SM}, v{SM}")
            for k in range(10, 20):
                sc.mfma(GR, DAT + 4 * k, DAT + 4 * k, GR)
        sc.flush()
        if kind == "x":
            for r in range(4):
                prev = "0" if r == 0 else f"v{T}"
                a(f"v_cndmask_b32_e64 v{T}, {prev}, v{GR + r}, s[{DIAG[r]}:{DIAG[r] + 1}]")
            for op in ("v_permlane32_swap_b32", "v_permlane16_swap_b32"):
                a(f"v_mov_b32 v{T + 1}, v{T}")
                a(f"{op} v{T}, v{T + 1}")
                a(f"v_add_f32 v{T}, v{T}, v{T + 1}")
            a(f"v_fmamk_f32 v{T}, v{SM}, {fx(-1.0 / (model2.SC * model2.SC * DM))}, v{T}")
            a(f"v_max_f32 v{T}, 0, v{T}")
            a(f"buffer_store_dword v{T}, v{vs}, s[{SRD2}:{SRD2 + 3}], 0 offen sc1")
            a(f"s_waitcnt vmcnt({3 + NX})")
        leave(f"{name}_s", kind, 2)

    a.label(f"{name}_xend")
    mark(a, "j1")
    filter_job()
    a.label(f"{name}_end")
    mark(a, "j2")
    a(f"s_mov_b32 s{sT}, s2")
```

```python
import sys
import struct
import numpy as np

sys.path.insert(0, "gen")
from asmlib import Asm, Inst, R, V, A, S
import model

SEQ, DM, FF = 2048, 640, 1728

XP_STR = SEQ * 8
XP_SIZE = 160 * XP_STR
H_STR = SEQ * 16
H_SIZE = 216 * H_STR
W1F_STR = FF * 16
W1F_SIZE = 80 * W1F_STR
KB_STR = DM * 16
WA2_SIZE = 224 * KB_STR
W2T_SIZE = 224 * KB_STR
FT_SIZE = 80 * KB_STR
WC_SIZE = 320 * 8192
SS_SIZE = 8192
SS2_SIZE = 16384
FLAG_SIZE = 320 * 1024

SLOT = 0x238000
WS = {"W1F": 0x8000, "WA2": SLOT + 0x1000, "W2T": 2 * SLOT + 0x1000}
_off = 3 * SLOT
for _name, _size in (("XP0", XP_SIZE), ("WC", WC_SIZE), ("SS0", SS_SIZE), ("SS2", SS2_SIZE), ("FLAG", FLAG_SIZE),
                     ("H", H_SIZE), ("X3", XP_SIZE), ("STAMP", 1 << 21)):
    WS[_name] = _off
    _off += (_size + 4095) // 4096 * 4096
WS_END = _off

P_X, P_WR, P_WI, P_W1, P_B1, P_W2, P_B2, P_OUT, P_WS = 8, 10, 12, 16, 18, 20, 22, 24, 28
SRD0, SRD1, SRD2, SRD3, SRD4, SRD5 = 32, 36, 40, 44, 48, 52
sW, sT, sA, sB, sC, sD, sE, sF = 56, 57, 58, 59, 60, 61, 62, 63
sOP, sOQ = 64, 65
sK0, sK1, sK2, sK3 = 66, 67, 68, 69
sM0, sM1 = 70, 71
sST = 72
vI, vG, vL = 1, 2, 3


def f32bits(x):
    return struct.unpack("<I", struct.pack("<f", x))[0]


def srd(a, dst, base, off, size):
    if off:
        a(f"s_add_u32 s{dst}, s{base}, {off}")
        a(f"s_addc_u32 s{dst + 1}, s{base + 1}, 0")
        a(f"s_and_b32 s{dst + 1}, s{dst + 1}, 0xffff")
    else:
        a(f"s_mov_b32 s{dst}, s{base}")
        a(f"s_and_b32 s{dst + 1}, s{base + 1}, 0xffff")
    a(f"s_mov_b32 s{dst + 2}, {size}")
    a(f"s_mov_b32 s{dst + 3}, 0x20000")


def srd_ws(a, dst, name, size):
    srd(a, dst, P_WS, WS[name], size)


def srd_table(a, dst, sym):
    a(f"s_getpc_b64 s[{dst}:{dst + 1}]")
    a(f"s_add_u32 s{dst}, s{dst}, {sym}@rel32@lo+4")
    a(f"s_addc_u32 s{dst + 1}, s{dst + 1}, {sym}@rel32@hi+12")
    a(f"s_and_b32 s{dst + 1}, s{dst + 1}, 0xffff")
    a(f"s_mov_b32 s{dst + 2}, {FT_SIZE}")
    a(f"s_mov_b32 s{dst + 3}, 0x20000")


def srd_code(a, dst, kern):
    a(f"s_getpc_b64 s[{dst}:{dst + 1}]")
    a(f"s_add_u32 s{dst}, s{dst}, {kern}_code@rel32@lo+4")
    a(f"s_addc_u32 s{dst + 1}, s{dst + 1}, {kern}_code@rel32@hi+12")
    a(f"s_and_b32 s{dst + 1}, s{dst + 1}, 0xffff")
    a(f"s_mov_b32 s{dst + 2}, {kern}_cend-{kern}_code")
    a(f"s_mov_b32 s{dst + 3}, 0x20000")


class Cfg:
    stamp = False
    clk = False
    nodot = 0
    g2depth = 7
    g2lay = 0
    plan = 0
    pdepth = 4
    st_flags = ""
    dcbias = 0
    rho = 0


def mark(a, n):
    if Cfg.stamp:
        op = "s_memtime" if Cfg.clk and n < 11 else "s_memrealtime"
        a(f"{op} s[{sST + 2 * n}:{sST + 2 * n + 1}]")


def mfma(a, d, x, y, c):
    a(f"v_mfma_f32_16x16x32_bf16 {R(d, 4)}, {R(x, 4)}, {R(y, 4)}, {'0' if c is None else R(c, 4)}")


def gemm_ks(a, nsteps, depth, acc, ring, vred, p_is_a, issue_p, issue_q, q_regs=16, prep_q=None,
            after_prologue=None, step_hook=None):
    stage = 20 + q_regs

    def accr(p, q):
        return acc + (q * 5 + p) * 4

    def preg(t, p):
        return ring + (t % depth) * stage + p * 4

    def qbase(t):
        return ring + (t % depth) * stage + 20

    def load_step(t):
        ops = []
        for q in range(4):
            ops.append(("q", q))
        for p in range(5):
            ops.append(("p", p))
        order = [ops[0], ops[4], ops[5], ops[1], ops[6], ops[7], ops[8], ops[2], ops[3]]
        for kind, j in order:
            if kind == "p":
                issue_p(t, j, preg(t, j))
            else:
                issue_q(t, j, qbase(t))

    for t in range(min(depth, nsteps)):
        load_step(t)
    if after_prologue:
        after_prologue()

    vw = [vred, vred + 1, vred + 2]
    vr = vred + 3
    a(f"v_lshlrev_b32 v{vr}, 4, v{vL}")
    for ql in (1, 2, 3):
        a(f"s_xor_b32 s{sA}, s{sW}, {ql}")
        a(f"s_mul_i32 s{sA}, s{sA}, 15360")
        a(f"s_add_u32 s{sA}, s{sA}, {(ql - 1) * 5120}")
        a(f"v_add_u32 v{vw[ql - 1]}, s{sA}, v{vr}")
    a(f"s_mul_i32 s{sA}, s{sW}, 15360")
    a(f"v_add_u32 v{vr}, s{sA}, v{vr}")

    def wr(q, p):
        a(f"ds_write_b128 v{vw[q - 1]}, {R(accr(p, q), 4)} offset:{p * 1024}")

    mark(a, 1)
    for t in range(nsteps):
        last = t == nsteps - 1
        if t == 1:
            mark(a, 2)
        if t == depth:
            mark(a, 3)
        if step_hook:
            step_hook(t, qbase(t))
        if prep_q:
            qf = prep_q(t, qbase(t))
        else:
            qf = [qbase(t) + q * 4 for q in range(4)]
        qorder = (1, 2, 3, 0) if last else (0, 1, 2, 3)
        nxt = t + depth
        for n, q in enumerate(qorder):
            for p in range(5):
                c = None if t == 0 else accr(p, q)
                if p_is_a:
                    mfma(a, accr(p, q), preg(t, p), qf[q], c)
                else:
                    mfma(a, accr(p, q), qf[q], preg(t, p), c)
                if last and n >= 2:
                    wr(qorder[n - 2], p)
                if nxt < nsteps:
                    if n == 3:
                        issue_p(nxt, p, preg(nxt, p))
                    if p == 4 and (not prep_q):
                        issue_q(nxt, q, qbase(nxt))
                    if prep_q and n == 0 and p < 4:
                        issue_q(nxt, p, qbase(nxt))
        if last:
            for p in range(5):
                wr(3, p)
    mark(a, 4)
    a("s_waitcnt lgkmcnt(0)")
    a("s_barrier")
    mark(a, 5)
    for p in range(5):
        for src in range(3):
            a(f"ds_read_b128 {R(accr(p, src + 1), 4)}, v{vr} offset:{src * 5120 + p * 1024}")
    for p in range(5):
        for h in (0, 2):
            d = accr(p, 0) + h
            a(f"v_pk_add_f32 {V(accr(p, 1) + h, 2)}, {V(accr(p, 1) + h, 2)}, {V(accr(p, 2) + h, 2)}")
            a(f"v_pk_add_f32 {V(d, 2)}, {V(d, 2)}, {V(accr(p, 3) + h, 2)}")
        for h in (0, 2):
            d = accr(p, 0) + h
            a(f"v_pk_add_f32 {V(d, 2)}, {V(d, 2)}, {V(accr(p, 1) + h, 2)}")
    return [accr(p, 0) for p in range(5)]


KS_LDS = 61440


def p_loader(a, vp, srd_p, step_bytes):
    state = {"t": None}

    def issue(t, p, dst):
        if state["t"] != t:
            a(f"s_mov_b32 s{sOP}, {t * step_bytes}")
            state["t"] = t
        a(f"buffer_load_dwordx4 {R(dst, 4)}, v{vp}, s[{srd_p}:{srd_p + 3}], s{sOP} offen offset:{p * 256}")
    return issue


def p_addr(a, vp, s_c, wave_steps):
    a(f"v_mul_u32_u24 v{vp}, {DM}, v{vG}")
    a(f"v_add_lshl_u32 v{vp}, v{vp}, v{vI}, 4")
    a(f"s_mul_i32 s{sA}, s{s_c}, 1280")
    a(f"s_mul_i32 s{sB}, s{sW}, {wave_steps * 4 * KB_STR}")
    a(f"s_add_u32 s{sA}, s{sA}, s{sB}")
    a(f"v_add_u32 v{vp}, s{sA}, v{vp}")


def rowmajor_q(a, vq, s_row0, srd_q):
    a(f"v_mul_u32_u24 v{vq}, 1280, v{vI}")
    a(f"v_lshl_add_u32 v{vq}, v{vG}, 4, v{vq}")
    a(f"s_mul_i32 s{sA}, s{s_row0}, 1280")
    a(f"s_mul_i32 s{sB}, s{sW}, 320")
    a(f"s_add_u32 s{sA}, s{sA}, s{sB}")
    for ql in (3, 2, 1, 0):
        a(f"s_xor_b32 s{sB}, s{sW}, {ql}")
        a(f"s_mul_i32 s{sB}, s{sB}, {16 * 1280}")
        a(f"s_add_u32 s{sB}, s{sB}, s{sA}")
        a(f"v_add_u32 v{vq + ql}, s{sB}, v{vq}")

    def issue(t, q, qb):
        a(f"buffer_load_dwordx4 {R(qb + q * 4, 4)}, v{vq + q}, s[{srd_q}:{srd_q + 3}], 0 offen offset:{t * 64}")
    return issue


def role_xhat0(a, depth):
    vp, vq, vred, vo, acc = 4, 5, 9, 13, 16
    ring = 256
    a(f"s_and_b32 s{sC}, s{sT}, 7")
    a(f"s_lshl_b32 s{sC}, s{sC}, 2")
    a(f"s_bfe_u32 s{sD}, s{sT}, 0x20003")
    a(f"s_add_u32 s{sC}, s{sC}, s{sD}")
    a(f"s_lshl_b32 s{sC}, s{sC}, 6")
    a(f"s_lshr_b32 s{sD}, s{sT}, 5")
    srd_table(a, SRD0, "ft1")
    p_addr(a, vp, sD, 5)
    iq = rowmajor_q(a, vq, sC, SRD1)
    a("s_waitcnt lgkmcnt(0)")
    srd(a, SRD1, P_X, 0, SEQ * DM * 2)
    ip = p_loader(a, vp, SRD0, 4 * KB_STR)

    def post():
        srd_ws(a, SRD2, "XP0", XP_SIZE)
        a(f"s_mul_i32 s{sA}, s{sD}, {20 * XP_STR}")
        a(f"s_lshl_b32 s{sB}, s{sW}, 4")
        a(f"s_add_u32 s{sB}, s{sB}, s{sC}")
        a(f"s_lshl_b32 s{sB}, s{sB}, 3")
        a(f"s_add_u32 s{sA}, s{sA}, s{sB}")
        a(f"v_lshlrev_b32 v{vo}, 14, v{vG}")
        a(f"v_lshl_add_u32 v{vo}, v{vI}, 3, v{vo}")
        a(f"v_add_u32 v{vo}, s{sA}, v{vo}")

    res = gemm_ks(a, 5, depth, acc, ring, vred, True, ip, iq, after_prologue=post)
    for p, r in enumerate(res):
        a(f"v_cvt_pk_bf16_f32 v{r}, v{r}, v{r + 1}")
        a(f"v_cvt_pk_bf16_f32 v{r + 1}, v{r + 2}, v{r + 3}")
        a(f"s_mov_b32 s{sOP}, {p * 4 * XP_STR}")
        a(f"buffer_store_dwordx2 {V(r, 2)}, v{vo}, s[{SRD2}:{SRD2 + 3}], s{sOP} offen{Cfg.st_flags}")
    return KS_LDS


def role_w2f(a, depth, ring=256):
    vp, vq, vred, vo, acc = 4, 5, 9, 13, 16
    a(f"s_and_b32 s{sD}, s{sT}, 7")
    a(f"s_lshr_b32 s{sE}, s{sT}, 3")
    a(f"s_lshl_b32 s{sC}, s{sE}, 6")
    a(f"s_cmp_eq_u32 s{sE}, 27")
    a(f"s_cselect_b32 s{sC}, 0, s{sC}")
    srd_table(a, SRD0, "ft1")
    p_addr(a, vp, sD, 5)
    iq = rowmajor_q(a, vq, sC, SRD1)
    a("s_waitcnt lgkmcnt(0)")
    a(f"s_cmp_eq_u32 s{sE}, 27")
    a(f"s_cselect_b32 s{SRD1}, s{P_B2}, s{P_W2}")
    a(f"s_cselect_b32 s{SRD1 + 1}, s{P_B2 + 1}, s{P_W2 + 1}")
    a(f"s_mov_b32 s{SRD1 + 2}, {FF * DM * 2}")
    a(f"s_cselect_b32 s{SRD1 + 2}, {DM * 2}, s{SRD1 + 2}")
    a(f"s_and_b32 s{SRD1 + 1}, s{SRD1 + 1}, 0xffff")
    a(f"s_mov_b32 s{SRD1 + 3}, 0x20000")
    ip = p_loader(a, vp, SRD0, 4 * KB_STR)

    def post():
        srd_ws(a, SRD2, "WA2", WA2_SIZE)
        a(f"s_lshl_b32 s{sA}, s{sE}, 2")
        a(f"s_add_u32 s{sA}, s{sA}, s{sW}")
        a(f"s_mul_i32 s{sA}, s{sA}, {2 * KB_STR}")
        a(f"s_mul_i32 s{sB}, s{sD}, 1280")
        a(f"s_add_u32 s{sA}, s{sA}, s{sB}")
        a(f"v_lshrrev_b32 v{vo}, 1, v{vG}")
        a(f"v_mul_u32_u24 v{vo}, {KB_STR}, v{vo}")
        a(f"v_lshl_add_u32 v{vo}, v{vI}, 4, v{vo}")
        a(f"v_and_b32 v{vo + 1}, 1, v{vG}")
        a(f"v_lshl_add_u32 v{vo}, v{vo + 1}, 3, v{vo}")
        a(f"v_add_u32 v{vo}, s{sA}, v{vo}")

    res = gemm_ks(a, 5, depth, acc, ring, vred, False, ip, iq, after_prologue=post)
    for p, r in enumerate(res):
        a(f"v_cvt_pk_bf16_f32 v{r}, v{r}, v{r + 1}")
        a(f"v_cvt_pk_bf16_f32 v{r + 1}, v{r + 2}, v{r + 3}")
        a(f"buffer_store_dwordx2 {V(r, 2)}, v{vo}, s[{SRD2}:{SRD2 + 3}], 0 offen offset:{p * 256}{Cfg.st_flags}")
    return KS_LDS


def role_w1f(a, depth):
    vp, vq, vred, vo, acc, qt = 4, 5, 9, 13, 16, 96
    ring = 112
    a(f"s_and_b32 s{sD}, s{sT}, 7")
    a(f"s_lshr_b32 s{sE}, s{sT}, 3")
    srd_table(a, SRD0, "ft1")
    p_addr(a, vp, sD, 5)
    a(f"v_mul_u32_u24 v{vq}, {8 * FF * 2}, v{vG}")
    a(f"v_lshl_add_u32 v{vq}, v{vI}, 3, v{vq}")
    a(f"s_mul_i32 s{sA}, s{sW}, {160 * FF * 2}")
    a(f"s_lshl_b32 s{sB}, s{sE}, 7")
    a(f"s_add_u32 s{sA}, s{sA}, s{sB}")
    a(f"v_add_u32 v{vq}, s{sA}, v{vq}")
    a(f"s_mov_b32 s{sA}, 0x05040100")
    a(f"s_bitcmp1_b32 s{sW}, 0")
    a(f"s_cselect_b32 s{sK0}, 0x07060302, s{sA}")
    a(f"s_cselect_b32 s{sK1}, s{sA}, 0x07060302")
    a(f"s_bitcmp1_b32 s{sW}, 1")
    a(f"s_cselect_b64 s[{sM0}:{sM1}], -1, 0")
    a("s_waitcnt lgkmcnt(0)")
    srd(a, SRD1, P_W1, 0, DM * FF * 2)
    ip = p_loader(a, vp, SRD0, 4 * KB_STR)

    def iq(t, q, qb):
        for j in (2 * q, 2 * q + 1):
            off = (t * 32 + j) * FF * 2
            if j & 1:
                a(f"buffer_load_dwordx2 {R(qb + j * 2, 2)}, v{vq}, s[{SRD1}:{SRD1 + 3}], s{sOQ} offen offset:{FF * 2}")
            else:
                a(f"s_mov_b32 s{sOQ}, {off}")
                a(f"buffer_load_dwordx2 {R(qb + j * 2, 2)}, v{vq}, s[{SRD1}:{SRD1 + 3}], s{sOQ} offen")

    def prep(t, qb):
        a(f"s_mov_b64 exec, s[{sM0}:{sM1}]")
        for j in range(8):
            a(f"v_swap_b32 v{qb + 2 * j}, v{qb + 2 * j + 1}")
        a("s_mov_b64 exec, -1")
        for ql in range(4):
            for m in range(4):
                sel = sK1 if ql & 1 else sK0
                a(f"v_perm_b32 v{qt + ql * 4 + m}, v{qb + (2 * m + 1) * 2 + (ql >> 1)}, v{qb + (2 * m) * 2 + (ql >> 1)}, s{sel}")
        return [qt + ql * 4 for ql in range(4)]

    def post():
        srd_ws(a, SRD2, "W1F", W1F_SIZE)
        a(f"s_mul_i32 s{sA}, s{sD}, {10 * W1F_STR}")
        a(f"s_lshl_b32 s{sB}, s{sE}, 6")
        a(f"s_add_u32 s{sB}, s{sB}, s{sW}")
        a(f"s_lshl_b32 s{sB}, s{sB}, 4")
        a(f"s_add_u32 s{sA}, s{sA}, s{sB}")
        a(f"v_lshrrev_b32 v{vo}, 1, v{vG}")
        a(f"v_mul_u32_u24 v{vo}, {W1F_STR}, v{vo}")
        a(f"v_lshl_add_u32 v{vo}, v{vI}, 6, v{vo}")
        a(f"v_and_b32 v{vo + 1}, 1, v{vG}")
        a(f"v_lshl_add_u32 v{vo}, v{vo + 1}, 3, v{vo}")
        a(f"v_add_u32 v{vo}, s{sA}, v{vo}")
        if Cfg.dcbias:
            srd(a, SRD3, P_B1, 0, FF * 2)
            a(f"s_lshr_b32 s{sB}, s{sB}, 3")
            a(f"v_lshl_add_u32 v6, v{vI}, 3, s{sB}")
            a(f"buffer_load_ushort v7, v6, s[{SRD3}:{SRD3 + 3}], 0 offen")
            a(f"s_cmp_eq_u32 s{sD}, 0")
            a(f"s_cselect_b32 s{sK2}, 0xffff, 0")
            a(f"s_mov_b32 s{sK3}, 0")

    res = gemm_ks(a, 5, depth, acc, ring, vred, True, ip, iq, prep_q=prep, after_prologue=post)
    if Cfg.dcbias:
        a(f"v_lshlrev_b32 v7, 16, v7")
        a(f"v_cndmask_b32_e64 v{res[0] + 1}, v{res[0] + 1}, v7, s[{sK2}:{sK3}]")
    for p, r in enumerate(res):
        a(f"v_cvt_pk_bf16_f32 v{r}, v{r}, v{r + 1}")
        a(f"v_cvt_pk_bf16_f32 v{r + 1}, v{r + 2}, v{r + 3}")
        a(f"s_mov_b32 s{sOP}, {p * 2 * W1F_STR}")
        a(f"buffer_store_dwordx2 {V(r, 2)}, v{vo}, s[{SRD2}:{SRD2 + 3}], s{sOP} offen{Cfg.st_flags}")
    return KS_LDS


def role_wc(a):
    va, vo, vo3, vt, ld, st = 4, 5, 6, 7, 8, 40
    a(f"s_mul_hi_u32 s{sC}, s{sT}, {(1 << 32) // 5 + 1}")
    a(f"s_mul_i32 s{sD}, s{sC}, 5")
    a(f"s_sub_u32 s{sD}, s{sT}, s{sD}")
    a(f"s_lshl_b32 s{sD}, s{sD}, 2")
    a(f"s_add_u32 s{sD}, s{sD}, s{sW}")
    a(f"s_lshl_b32 s{sD}, s{sD}, 2")
    a(f"v_add_u32 v{vt}, s{sD}, v{vG}")
    a(f"v_mul_u32_u24 v{va}, 642, v{vI}")
    a(f"v_lshl_add_u32 v{va}, v{vt}, 3, v{va}")
    a(f"s_mul_i32 s{sA}, s{sC}, {128 * 642}")
    a(f"s_add_u32 s{sA}, s{sA}, 2")
    a(f"v_add_u32 v{va}, s{sA}, v{va}")
    a(f"s_lshr_b32 s{sA}, s{sC}, 2")
    a(f"s_lshl_b32 s{sA}, s{sA}, 11")
    a(f"s_and_b32 s{sB}, s{sC}, 3")
    a(f"s_lshl_b32 s{sB}, s{sB}, 8")
    a(f"s_add_u32 s{sA}, s{sA}, s{sB}")
    a(f"v_lshlrev_b32 v{vo3}, 4, v{vI}")
    a(f"v_add_u32 v{vo3}, s{sA}, v{vo3}")
    a(f"v_lshl_add_u32 v{vo}, v{vt}, 15, v{vo3}")
    a(f"v_cmp_eq_u32 vcc, 79, v{vt}")
    a(f"v_add_u32 v{vt}, {4 * 8192}, v{vo}")
    a(f"v_cndmask_b32 v{vo3}, v{vt}, v{vo3}, vcc")
    a(f"s_mov_b32 s{sK0}, 0x05040100")
    a(f"s_mov_b32 s{sK1}, 0x07060302")
    a("s_waitcnt lgkmcnt(0)")
    srd(a, SRD0, P_WR, 0, SEQ * 642)
    srd(a, SRD1, P_WI, 0, SEQ * 642)
    srd_ws(a, SRD2, "WC", WC_SIZE)
    for u in range(2):
        for r in range(4):
            a(f"s_mov_b32 s{sOP}, {(32 * r + 16 * u) * 642}")
            b = ld + (u * 4 + r) * 4
            a(f"buffer_load_dwordx2 {V(b, 2)}, v{va}, s[{SRD0}:{SRD0 + 3}], s{sOP} offen")
            a(f"buffer_load_dwordx2 {V(b + 2, 2)}, v{va}, s[{SRD1}:{SRD1 + 3}], s{sOP} offen")
    for u in range(2):
        for e in range(4):
            o = st + (u * 4 + e) * 4
            for r in range(4):
                b = ld + (u * 4 + r) * 4
                a(f"v_perm_b32 v{o + r}, v{b + 2 + (e >> 1)}, v{b + (e >> 1)}, s{sK1 if e & 1 else sK0}")
            if e < 3:
                a(f"s_mov_b32 s{sOP}, {(e + 1) * 8192}")
                a(f"buffer_store_dwordx4 {V(o, 4)}, v{vo}, s[{SRD2}:{SRD2 + 3}], s{sOP} offen offset:{u * 1024}{Cfg.st_flags}")
            else:
                a(f"buffer_store_dwordx4 {V(o, 4)}, v{vo3}, s[{SRD2}:{SRD2 + 3}], 0 offen offset:{u * 1024}{Cfg.st_flags}")
    return 0


def dpp_rowsum(a, v, t):
    for k in (8, 4, 2, 1):
        a(f"v_add_f32_dpp v{v}, v{v}, v{v} row_ror:{k} row_mask:0xf bank_mask:0xf")


def role_stats(a):
    va, vo, vt, vz, vone, sm, sq, t0, ld = 4, 5, 6, 7, 8, 10, 12, 16, 20
    a(f"s_lshl_b32 s{sA}, s{sT}, 5")
    a(f"s_lshl_b32 s{sB}, s{sW}, 3")
    a(f"s_add_u32 s{sA}, s{sA}, s{sB}")
    a(f"v_add_u32 v{vt}, s{sA}, v{vG}")
    a(f"v_mul_u32_u24 v{va}, 1280, v{vt}")
    a(f"v_lshl_add_u32 v{va}, v{vI}, 4, v{va}")
    a("s_waitcnt lgkmcnt(0)")
    srd(a, SRD0, P_X, 0, SEQ * DM * 2)
    a(f"s_mov_b32 s{sOP}, {4 * 1280}")
    for h in range(2):
        for j in range(5):
            so = f"s{sOP}" if h else "0"
            a(f"buffer_load_dwordx4 {V(ld + (h * 5 + j) * 4, 4)}, v{va}, s[{SRD0}:{SRD0 + 3}], {so} offen offset:{j * 256}")
    srd_ws(a, SRD1, "SS0", 2 * SS_SIZE)
    a(f"v_bfe_u32 v{vo}, v{vt}, 4, 2")
    a(f"v_lshlrev_b32 v{vo}, 3, v{vo}")
    a(f"v_lshrrev_b32 v{vz}, 8, v{vt}")
    a(f"v_add_u32 v{vo}, v{vo}, v{vz}")
    a(f"v_and_b32 v{vz}, 15, v{vt}")
    a(f"v_lshl_add_u32 v{vo}, v{vo}, 4, v{vz}")
    a(f"v_bfe_u32 v{vz}, v{vt}, 6, 2")
    a(f"v_lshl_add_u32 v{vo}, v{vo}, 2, v{vz}")
    a(f"v_lshlrev_b32 v{vo}, 2, v{vo}")
    a(f"v_mov_b32 v{vz}, 0")
    a(f"v_mov_b32 v{vone}, 0x3f803f80")
    a(f"s_mov_b32 s{sOQ}, {WS['SS2'] - WS['SS0']}")
    a(f"s_mov_b32 s{sK0}, 0xffff0000")
    for h in range(2):
        a(f"buffer_store_dword v{vz}, v{vo}, s[{SRD1}:{SRD1 + 3}], s{sOQ} offen offset:{h * 64}")
    if Cfg.dcbias:
        srd_ws(a, SRD2, "FLAG", FLAG_SIZE)
        a(f"s_lshl_b32 s{sA}, s{sT}, 10")
        a(f"v_lshl_add_u32 v9, v0, 2, s{sA}")
        a(f"buffer_store_dword v{vz}, v9, s[{SRD2}:{SRD2 + 3}], 0 offen")
    for h in range(2):
        a(f"v_mov_b32 v{sm + h}, 0")
        a(f"v_mov_b32 v{sq + 2 * h}, 0")
        a(f"v_mov_b32 v{sq + 2 * h + 1}, 0")
    for h in range(2):
        for k in range(20):
            a(f"v_dot2c_f32_bf16 v{sm + h}, v{ld + h * 20 + k}, v{vone}")
    for h in range(2):
        dpp_rowsum(a, sm + h, t0)
        a(f"v_mul_f32 v{sm + h}, {f32bits(-1.0 / DM):#x}, v{sm + h}")
    for k in range(20):
        for h in range(2):
            x = ld + h * 20 + k
            t = t0 + 2 * h
            a(f"v_lshlrev_b32 v{t}, 16, v{x}")
            a(f"v_and_b32 v{t + 1}, s{sK0}, v{x}")
            a(f"v_add_f32 v{t}, v{t}, v{sm + h}")
            a(f"v_add_f32 v{t + 1}, v{t + 1}, v{sm + h}")
            a(f"v_fmac_f32 v{sq + 2 * h}, v{t}, v{t}")
            a(f"v_fmac_f32 v{sq + 2 * h + 1}, v{t + 1}, v{t + 1}")
    for h in range(2):
        a(f"v_add_f32 v{sq + 2 * h}, v{sq + 2 * h}, v{sq + 2 * h + 1}")
        dpp_rowsum(a, sq + 2 * h, t0)
        a(f"buffer_store_dword v{sq + 2 * h}, v{vo}, s[{SRD1}:{SRD1 + 3}], 0 offen offset:{h * 64}")
    return 0


def role_w2t(a, rep=1):
    va, vo, vt, ld, st = 4, 6, 8, 12, 44
    a(f"s_mul_i32 s{sA}, s{sT}, {256 * rep}")
    for n in range(rep):
        a(f"v_add_u32 v{vo + n}, s{sA}, v0")
        if n:
            a(f"v_add_u32 v{vo + n}, {256 * n}, v{vo + n}")
        a(f"v_lshrrev_b32 v{vt}, 5, v{vo + n}")
        a(f"v_mul_u32_u24 v{vt}, 52429, v{vt}")
        a(f"v_lshrrev_b32 v{vt}, 18, v{vt}")
        a(f"v_mul_u32_u24 v{va + n}, {10240 - 1280}, v{vt}")
        a(f"v_lshl_add_u32 v{va + n}, v{vo + n}, 3, v{va + n}")
        a(f"v_lshlrev_b32 v{vo + n}, 6, v{vo + n}")
    a(f"s_mov_b32 s{sK0}, 0x05040100")
    a(f"s_mov_b32 s{sK1}, 0x07060302")
    a(f"s_mov_b32 s{sOP}, {4 * 1280}")
    a("s_waitcnt lgkmcnt(0)")
    srd(a, SRD0, P_W2, 0, FF * DM * 2)
    srd_ws(a, SRD1, "W2T", W2T_SIZE)
    for n in range(rep):
        for j in range(8):
            so = f"s{sOP}" if j >= 4 else "0"
            a(f"buffer_load_dwordx2 {V(ld + 16 * n + 2 * j, 2)}, v{va + n}, s[{SRD0}:{SRD0 + 3}], {so} offen offset:{(j & 3) * 1280}")
    for n in range(rep):
        l, o = ld + 16 * n, st + 16 * n
        for e in range(4):
            for m in range(4):
                a(f"v_perm_b32 v{o + e * 4 + m}, v{l + (2 * m + 1) * 2 + (e >> 1)}, v{l + 2 * m * 2 + (e >> 1)}, s{sK1 if e & 1 else sK0}")
            a(f"buffer_store_dwordx4 {V(o + e * 4, 4)}, v{vo + n}, s[{SRD1}:{SRD1 + 3}], 0 offen offset:{e * 16}")
    return 0


def cmul_pack(a, dst, re, im, c, s, tmp, conj_w=False):
    for h in (0, 2):
        t0, t1 = tmp + 2 * h, tmp + 2 * h + 2
        a(f"v_pk_mul_f32 {V(t0, 2)}, {V(re + h, 2)}, {V(c + h, 2)}")
        a(f"v_pk_mul_f32 {V(t1, 2)}, {V(im + h, 2)}, {V(c + h, 2)}")
    for h in (0, 2):
        t0, t1 = tmp + 2 * h, tmp + 2 * h + 2
        if conj_w:
            a(f"v_pk_fma_f32 {V(t0, 2)}, {V(im + h, 2)}, {V(s + h, 2)}, {V(t0, 2)} neg_lo:[1,0,0] neg_hi:[1,0,0]")
            a(f"v_pk_fma_f32 {V(t1, 2)}, {V(re + h, 2)}, {V(s + h, 2)}, {V(t1, 2)}")
        else:
            a(f"v_pk_fma_f32 {V(t0, 2)}, {V(im + h, 2)}, {V(s + h, 2)}, {V(t0, 2)}")
            a(f"v_pk_fma_f32 {V(t1, 2)}, {V(re + h, 2)}, {V(s + h, 2)}, {V(t1, 2)} neg_lo:[1,0,0] neg_hi:[1,0,0]")
    for h in (0, 2):
        t0, t1 = tmp + 2 * h, tmp + 2 * h + 2
        n = "-" if conj_w else ""
        a(f"v_cvt_pk_bf16_f32 v{dst + h}, v{t0}, {n}v{t1}")
        a(f"v_cvt_pk_bf16_f32 v{dst + h + 1}, v{t0 + 1}, {n}v{t1 + 1}")


def role_col(a, src, ssn, dst):
    vx, vw, vl0, vmI = 4, 5, 6, 10
    fi, fg, fa, fb = 11, 12, 13, 14
    raw, ss, wraw = 16, 24, 32
    M1, M2 = 40, 72
    T1, T2 = 104, 120
    WU = 136
    ACC = 152
    FO, FG = 168, 176
    TMP = 200

    a(f"s_and_b32 s{sA}, s{sT}, 7")
    a(f"s_lshr_b32 s{sB}, s{sT}, 4")
    a(f"s_lshl_b32 s{sB}, s{sB}, 3")
    a(f"s_add_u32 s{sC}, s{sA}, s{sB}")
    a(f"s_bfe_u32 s{sD}, s{sT}, 0x10003")
    a(f"s_lshl1_add_u32 s{sE}, s{sC}, s{sD}")
    a(f"s_lshl_b32 s{sA}, s{sC}, 14")
    a(f"s_lshl2_add_u32 s{sA}, s{sD}, s{sA}")
    a(f"s_lshl_b32 s{sB}, s{sW}, 7")
    a(f"s_add_u32 s{sA}, s{sA}, s{sB}")
    a(f"v_lshlrev_b32 v{vx}, 11, v{vG}")
    a(f"v_lshl_add_u32 v{vx}, v{vI}, 3, v{vx}")
    a(f"v_add_u32 v{vx}, s{sA}, v{vx}")
    a(f"s_lshl_b32 s{sB}, s{sW}, 11")
    a(f"v_lshlrev_b32 v{vw}, 4, v{vL}")
    a(f"v_add_u32 v{vw}, s{sB}, v{vw}")
    a(f"s_lshl_b32 s{sF}, s{sE}, 13")
    a(f"s_mov_b32 s{sOP}, 8192")
    a("s_waitcnt lgkmcnt(0)")
    srd_ws(a, SRD0, src, XP_SIZE)
    srd_ws(a, SRD1, ssn, SS_SIZE)
    for t in range(2):
        a(f"buffer_load_dwordx4 {V(ss + 4 * t, 4)}, v{vw}, s[{SRD1}:{SRD1 + 3}], 0 offen offset:{t * 1024}")
    for t in range(2):
        for jj in range(4):
            so = f"s{sOP}" if t else "0"
            a(f"buffer_load_dword v{raw + 4 * t + jj}, v{vx}, s[{SRD0}:{SRD0 + 3}], {so} offen offset:{jj * 512}")
    srd_ws(a, SRD2, "WC", WC_SIZE)
    for u in range(2):
        a(f"buffer_load_dwordx4 {V(wraw + 4 * u, 4)}, v{vw}, s[{SRD2}:{SRD2 + 3}], s{sF} offen offset:{u * 1024}")
    srd_ws(a, SRD3, dst, XP_SIZE)

    mark(a, 1)
    a(f"v_lshlrev_b32 v{vl0}, 4, v0")
    for kk in (1, 2, 3):
        a(f"v_xor_b32 v{vl0 + kk}, {kk * 1024}, v{vl0}")
    a(f"v_and_b32 v{vmI}, 1, v{vI}")
    a(f"v_mul_u32_u24 v{vmI}, 0x8000, v{vmI}")
    a(f"v_lshl_or_b32 v{vmI}, v{vmI}, 16, v{vmI}")
    a(f"s_mov_b32 s{sK0}, 0x80008000")
    a(f"v_cvt_f32_u32 v{fi}, v{vI}")
    a(f"v_lshlrev_b32 v{fg}, 2, v{vG}")
    a(f"v_cvt_f32_u32 v{fg}, v{fg}")

    def m1(qb, t, var):
        return M1 + ((qb * 2 + t) * 2 + var) * 4

    def m2(kk, var):
        return M2 + (kk * 2 + var) * 4

    a(f"v_mul_f32 v{fa}, {f32bits(1 / 32):#x}, v{fi}")
    for jj in range(4):
        t = TMP + 3 * jj
        a(f"v_add_f32 v{t}, {float(jj)}, v{fg}" if jj in (0, 1, 2) else f"v_add_f32 v{t}, {f32bits(3.0):#x}, v{fg}")
        a(f"v_mul_f32 v{t}, v{t}, v{fa}")
        a(f"v_fract_f32 v{t}, v{t}")
        a(f"v_cos_f32 v{t + 1}, v{t}")
        a(f"v_sin_f32 v{t + 2}, v{t}")
    for jj in range(4):
        t = TMP + 3 * jj
        n = "-" if jj & 1 else ""
        m = "" if jj & 1 else "-"
        a(f"v_cvt_pk_bf16_f32 v{m1(0, 0, 0) + jj}, v{t + 1}, v{t + 2}")
        a(f"v_cvt_pk_bf16_f32 v{m1(0, 0, 1) + jj}, -v{t + 2}, v{t + 1}")
        a(f"v_cvt_pk_bf16_f32 v{m1(1, 0, 0) + jj}, {n}v{t + 1}, {n}v{t + 2}")
        a(f"v_cvt_pk_bf16_f32 v{m1(1, 0, 1) + jj}, {m}v{t + 2}, {n}v{t + 1}")
    for qb in range(2):
        for var in range(2):
            for jj in range(4):
                a(f"v_xor_b32 v{m1(qb, 1, var) + jj}, v{vmI}, v{m1(qb, 0, var) + jj}")

    a(f"s_lshl_b32 s{sA}, s{sW}, 4")
    a(f"v_cvt_f32_u32 v{fb}, s{sA}")
    a(f"v_add_f32 v{TMP + 24}, v{fb}, v{fg}")
    a(f"v_add_f32 v{fb}, v{fb}, v{fi}")
    a(f"v_mul_f32 v{TMP + 25}, {f32bits(1 / 2048):#x}, v{fi}")
    a(f"v_add_f32 v{TMP + 26}, {f32bits(16 / 2048):#x}, v{TMP + 25}")
    for r in range(4):
        t = TMP + r
        a(f"v_add_f32 v{t}, {f32bits(float(r)):#x}, v{TMP + 24}")
    for qb in range(2):
        for r in range(4):
            t = TMP + 4 + (qb * 4 + r)
            a(f"v_mul_f32 v{t}, v{TMP + r}, v{TMP + 25 + qb}")
            a(f"v_cos_f32 v{T1 + qb * 8 + r}, v{t}")
            a(f"v_sin_f32 v{T1 + qb * 8 + 4 + r}, v{t}")

    a(f"v_mul_f32 v{fa}, {f32bits(1 / 64):#x}, v{fb}")
    a(f"s_xor_b32 s{sA}, s{sA}, 16")
    a(f"v_cvt_f32_u32 v{TMP + 24}, s{sA}")
    a(f"v_add_f32 v{TMP + 24}, v{TMP + 24}, v{fg}")
    for kk in range(2):
        for r in range(4):
            t = TMP + 12 + 3 * r
            if kk == 0:
                a(f"v_mul_f32 v{t}, v{TMP + r}, v{fa}")
            else:
                a(f"v_add_f32 v{t}, {f32bits(float(r)):#x}, v{TMP + 24}")
                a(f"v_mul_f32 v{t}, v{t}, v{fa}")
            a(f"v_fract_f32 v{t}, v{t}")
            a(f"v_cos_f32 v{t + 1}, v{t}")
            a(f"v_sin_f32 v{t + 2}, v{t}")
        for r in range(4):
            t = TMP + 12 + 3 * r
            a(f"v_cvt_pk_bf16_f32 v{m2(kk, 0) + r}, v{t + 1}, v{t + 2}")
            a(f"v_cvt_pk_bf16_f32 v{m2(kk, 1) + r}, -v{t + 2}, v{t + 1}")
    for kk in range(2):
        for var in range(2):
            for r in range(4):
                a(f"v_xor_b32 v{m2(kk + 2, var) + r}, v{vmI}, v{m2(kk, var) + r}")

    a(f"v_mul_f32 v{fa}, {f32bits(1 / 2048):#x}, v{fb}")
    for u in range(2):
        for r in range(4):
            t = TMP + (u * 4 + r)
            a(f"v_add_f32 v{t}, {f32bits(float(16 * u + r)):#x}, v{fg}")
            a(f"v_mul_f32 v{t}, v{t}, v{fa}")
            a(f"v_cos_f32 v{T2 + u * 8 + r}, v{t}")
            a(f"v_sin_f32 v{T2 + u * 8 + 4 + r}, v{t}")

    a(f"s_mov_b32 s{sK1}, 0xffff0000")
    a(f"s_cmp_eq_u32 s{sE}, 0")
    a(f"s_cselect_b32 s{sK2}, 0, s{sK1}")
    a(f"s_cselect_b32 s{sK3}, 0, {f32bits(-1 / 2048):#x}")
    a(f"s_mov_b32 s{sA}, {f32bits(1 / DM):#x}")
    a(f"s_mov_b32 s{sB}, {f32bits(1 / 2048):#x}")
    a(f"v_mov_b32 v{fa}, {f32bits(1e-5):#x}")
    mark(a, 2)
    for k in range(8):
        a(f"v_fma_f32 v{ss + k}, v{ss + k}, s{sA}, v{fa}")
    for k in range(8):
        a(f"v_rsq_f32 v{ss + k}, v{ss + k}")
    for k in range(8):
        t = TMP + 2 * k
        a(f"v_lshlrev_b32 v{t}, 16, v{raw + k}")
        a(f"v_and_b32 v{t + 1}, s{sK2}, v{raw + k}")
    for k in range(8):
        t = TMP + 2 * k
        a(f"v_mul_f32 v{t}, v{t}, v{ss + k}")
        a(f"v_mul_f32 v{t + 1}, v{t + 1}, v{ss + k}")
    for k in range(8):
        t = TMP + 2 * k
        a(f"v_cvt_pk_bf16_f32 v{FG + k}, v{t}, v{t + 1}")

    def acc(b, var):
        return ACC + (b * 2 + var) * 4

    mark(a, 3)
    for t in range(2):
        for qb in range(2):
            for var in range(2):
                mfma(a, acc(qb, var), FG + 4 * t, m1(qb, t, var), None if t == 0 else acc(qb, var))
    for u in range(2):
        for r in range(4):
            a(f"v_lshlrev_b32 v{WU + u * 8 + r}, 16, v{wraw + u * 4 + r}")
            a(f"v_and_b32 v{WU + u * 8 + 4 + r}, s{sK1}, v{wraw + u * 4 + r}")

    def exchange(base, data_is_a):
        for b in range(2):
            a(f"ds_write_b128 v{vl0}, {V(FO + 4 * b, 4)} offset:{base + b * 4096}")
        for b in range(2):
            for var in range(2):
                if data_is_a:
                    mfma(a, acc(b, var), FO + 4 * b, m2(0, var), None)
                else:
                    mfma(a, acc(b, var), m2(0, var), FO + 4 * b, None)
        a("s_waitcnt lgkmcnt(0)")
        a("s_barrier")
        for kk in (1, 2, 3):
            for b in range(2):
                a(f"ds_read_b128 {V(FG + ((kk - 1) * 2 + b) * 4, 4)}, v{vl0 + kk} offset:{base + b * 4096}")
        for kk in (1, 2, 3):
            for b in range(2):
                for var in range(2):
                    f = FG + ((kk - 1) * 2 + b) * 4
                    if data_is_a:
                        mfma(a, acc(b, var), f, m2(kk, var), acc(b, var))
                    else:
                        mfma(a, acc(b, var), m2(kk, var), f, acc(b, var))

    for qb in range(2):
        cmul_pack(a, FO + 4 * qb, acc(qb, 0), acc(qb, 1), T1 + qb * 8, T1 + qb * 8 + 4, TMP + 8 * qb)
    exchange(0, False)
    mark(a, 4)
    for u in range(2):
        cmul_pack(a, FO + 4 * u, acc(u, 0), acc(u, 1), WU + u * 8, WU + u * 8 + 4, TMP + 8 * u, conj_w=True)
    exchange(8192, True)
    mark(a, 5)
    for k in range(8):
        a(f"v_lshlrev_b32 v{WU + 2 * k}, 16, v{raw + k}")
        a(f"v_and_b32 v{WU + 2 * k + 1}, s{sK1}, v{raw + k}")
    for u in range(2):
        cmul_pack(a, FO + 4 * u, acc(u, 0), acc(u, 1), T2 + u * 8, T2 + u * 8 + 4, TMP + 8 * u)
    for u in range(2):
        for t in range(2):
            for var in range(2):
                mfma(a, acc(t, var), m1(t, u, var), FO + 4 * u, None if u == 0 else acc(t, var))
    for t in range(2):
        for jj in range(4):
            k = 4 * t + jj
            a(f"v_fma_f32 v{WU + 2 * k}, v{acc(t, 0) + jj}, s{sB}, v{WU + 2 * k}")
            a(f"v_fma_f32 v{WU + 2 * k + 1}, v{acc(t, 1) + jj}, s{sK3}, v{WU + 2 * k + 1}")
        for jj in range(4):
            k = 4 * t + jj
            a(f"v_cvt_pk_bf16_f32 v{raw + k}, v{WU + 2 * k}, v{WU + 2 * k + 1}")
            so = f"s{sOP}" if t else "0"
            a(f"buffer_store_dword v{raw + k}, v{vx}, s[{SRD3}:{SRD3 + 3}], {so} offen offset:{jj * 512}{Cfg.st_flags}")
    return 16384


def role_g1(a, src):
    vx, vw, vl, vo, vb, vm = 4, 5, 6, 7, 8, 9
    sq = 10
    X = 16
    ACC = 176
    BR = 232
    TMP = 246
    WR = 256
    NW = 14

    a(f"s_and_b32 s{sA}, s{sT}, 7")
    a(f"s_lshr_b32 s{sB}, s{sA}, 1")
    a(f"s_lshl_b32 s{sB}, s{sB}, 2")
    a(f"s_bfe_u32 s{sC}, s{sT}, 0x20003")
    a(f"s_add_u32 s{sC}, s{sC}, s{sB}")
    a(f"s_and_b32 s{sA}, s{sA}, 1")
    a(f"s_lshl_b32 s{sA}, s{sA}, 3")
    a(f"s_lshr_b32 s{sD}, s{sT}, 5")
    a(f"s_add_u32 s{sD}, s{sD}, s{sA}")
    a(f"s_mul_i32 s{sD}, s{sD}, 27")
    a(f"s_lshr_b32 s{sD}, s{sD}, 2")
    a(f"s_lshl_b32 s{sC}, s{sC}, 7")
    a(f"s_lshl_b32 s{sA}, s{sW}, 5")
    a(f"s_add_u32 s{sC}, s{sC}, s{sA}")
    a(f"v_lshlrev_b32 v{vx}, 15, v{vG}")
    a(f"v_lshl_add_u32 v{vx}, v{vI}, 4, v{vx}")
    a(f"s_lshl_b32 s{sA}, s{sC}, 3")
    a(f"v_add_u32 v{vx}, s{sA}, v{vx}")
    a(f"v_mul_u32_u24 v{vw}, {FF}, v{vG}")
    a(f"v_add_lshl_u32 v{vw}, v{vw}, v{vI}, 4")
    a(f"s_mul_i32 s{sA}, s{sW}, {4 * W1F_STR}")
    a(f"s_lshl_b32 s{sB}, s{sD}, 8")
    a(f"s_add_u32 s{sA}, s{sA}, s{sB}")
    a(f"v_add_u32 v{vw}, s{sA}, v{vw}")
    a(f"s_mul_i32 s{sE}, s{sW}, 7168")
    a(f"v_lshlrev_b32 v{vl}, 4, v{vL}")
    a("s_waitcnt lgkmcnt(0)")
    srd_ws(a, SRD0, "W1F", W1F_SIZE)
    srd_ws(a, SRD1, src, XP_SIZE)

    def xr(ks, st):
        return X + ks * 8 + st * 4

    def issue_chunk(c):
        a(f"s_mov_b32 s{sOP}, {c * 16 * W1F_STR}")
        for ft in range(7):
            a(f"s_add_u32 m0, s{sE}, {c * 28672 + ft * 1024 - ft * 256}")
            a(f"buffer_load_dwordx4 v{vw}, s[{SRD0}:{SRD0 + 3}], s{sOP} offen offset:{ft * 256} lds", tag=f"w{c}")
        for k in range(4):
            ks = 4 * c + k
            for h in range(2):
                a(f"s_mov_b32 s{sOQ}, {(8 * ks + h) * XP_STR}")
                a(f"buffer_load_dwordx4 {V(xr(ks, h), 4)}, v{vx}, s[{SRD1}:{SRD1 + 3}], s{sOQ} offen")

    for c in range(4):
        issue_chunk(c)
    srd(a, SRD2, P_B1, 0, FF * 2)
    srd_ws(a, SRD3, "H", H_SIZE)
    a(f"s_lshl_b32 s{sA}, s{sD}, 5")
    a(f"v_lshlrev_b32 v{vb}, 3, v{vG}")
    a(f"v_add_u32 v{vb}, s{sA}, v{vb}")
    a(f"v_lshrrev_b32 v{vo}, 1, v{vG}")
    a(f"v_mul_u32_u24 v{vo}, {H_STR}, v{vo}")
    a(f"v_lshl_add_u32 v{vo}, v{vI}, 5, v{vo}")
    a(f"v_and_b32 v{vm}, 1, v{vG}")
    a(f"v_lshl_add_u32 v{vo}, v{vm}, 4, v{vo}")
    a(f"s_mul_i32 s{sA}, s{sD}, {2 * H_STR}")
    a(f"s_lshl_b32 s{sB}, s{sC}, 4")
    a(f"s_add_u32 s{sA}, s{sA}, s{sB}")
    a(f"v_add_u32 v{vo}, s{sA}, v{vo}")
    a(f"v_cmp_eq_u32 vcc, 0, v{vG}")
    a(f"v_mov_b32 v{vm}, 0xffff")
    a(f"v_cndmask_b32 v{vm}, -1, v{vm}, vcc")
    for k in range(4):
        a(f"v_mov_b32 v{sq + k}, 0")

    def acc(ft, st):
        return ACC + (ft * 2 + st) * 4

    seq = [(ks, ft) for ks in range(20) for ft in range(7)]

    def wreg(n):
        return WR + (n % NW) * 4

    def rd(n):
        ks, ft = seq[n]
        off = (ks * 7 + ft) * 1024
        if off >= 65536:
            a(f"ds_read_b128 {R(wreg(n), 4)}, v{TMP + (off >> 16)} offset:{off & 0xffff}")
        else:
            a(f"ds_read_b128 {R(wreg(n), 4)}, v{vl} offset:{off}")

    a(f"v_add_u32 v{TMP + 1}, 0x10000, v{vl}")
    a(f"v_add_u32 v{TMP + 2}, 0x20000, v{vl}")
    AHEAD = 8
    nread = 0
    for c in range(5):
        if c == 0:
            mark(a, 1)
        a.wait_tag(f"w{c}")
        a("s_barrier")
        if c in (0, 1, 4):
            mark(a, {0: 2, 1: 3, 4: 4}[c])
        if c == 0:
            issue_chunk(4)
            for ft in range(7):
                a(f"buffer_load_dwordx2 {V(BR + 2 * ft, 2)}, v{vb}, s[{SRD2}:{SRD2 + 3}], 0 offen offset:{ft * 32}")
        hi = (c + 1) * 28
        for n in range(c * 28, hi):
            ks, ft = seq[n]
            while nread < min(hi, n + AHEAD):
                rd(nread)
                nread += 1
            if ft == 0:
                a(f"v_swap_b32 v{xr(ks, 0) + 2}, v{xr(ks, 1)}")
                a(f"v_swap_b32 v{xr(ks, 0) + 3}, v{xr(ks, 1) + 1}")
                if ks == 0:
                    a(f"v_and_b32 v{xr(0, 0)}, v{vm}, v{xr(0, 0)}")
                    a(f"v_and_b32 v{xr(0, 1)}, v{vm}, v{xr(0, 1)}")
            for st in range(2):
                mfma(a, acc(ft, st), wreg(n), xr(ks, st), None if ks == 0 else acc(ft, st))
                if 1 <= ft <= 4 and not Cfg.nodot:
                    x = xr(ks, st) + ft - 1
                    a(f"v_dot2c_f32_bf16 v{sq + st * 2 + (ft & 1)}, v{x}, v{x}")

    mark(a, 5)
    t = TMP + 4
    for st in range(2):
        s = sq + 2 * st
        a(f"v_add_f32 v{s}, v{s}, v{s + 1}")
    for op in ("v_permlane32_swap_b32", "v_permlane16_swap_b32"):
        for st in range(2):
            s = sq + 2 * st
            a(f"v_mov_b32 v{s + 1}, v{s}")
        for st in range(2):
            s = sq + 2 * st
            a(f"{op} v{s}, v{s + 1}")
        for st in range(2):
            s = sq + 2 * st
            a(f"v_add_f32 v{s}, v{s}, v{s + 1}")
    a(f"v_mov_b32 v{t}, {f32bits(1e-5):#x}")
    for st in range(2):
        s = sq + 2 * st
        a(f"v_mul_f32 v{s}, {f32bits(1 / DM):#x}, v{s}")
        a(f"v_add_f32 v{s + 1}, v{s}, v{t}")
        a(f"v_rsq_f32 v{s + 1}, v{s + 1}")
    for st in range(2):
        s = sq + 2 * st
        a(f"v_mul_f32 v{s}, v{s}, v{s + 1}")
        a(f"v_fma_f32 v{s}, v{s}, v{s + 1}, v{t}")
        a(f"v_rsq_f32 v{s}, v{s}")
    for st in range(2):
        s = sq + 2 * st
        a(f"v_mul_f32 v{s}, v{s}, v{s + 1}")

    k0 = -2.0 * 0.7978845608028654 * 1.4426950408889634
    a(f"s_mov_b32 s{sK0}, {f32bits(k0 * 0.044715):#x}")
    a(f"s_mov_b32 s{sK1}, s{sK0}")
    a(f"s_mov_b32 s{sK2}, 0xffff0000")
    a(f"v_mov_b32 v{TMP + 4}, {f32bits(k0):#x}")
    a(f"v_mov_b32 v{TMP + 5}, {f32bits(k0):#x}")
    for ft in range(7):
        B = X + ft * 16
        Z = B + 4
        O = B + 12
        for h in range(2):
            a(f"v_lshlrev_b32 v{B + 2 * h}, 16, v{BR + 2 * ft + h}")
            a(f"v_and_b32 v{B + 2 * h + 1}, s{sK2}, v{BR + 2 * ft + h}")
        prs = [(acc(ft, st) + h, Z + st * 4 + h, B + h, sq + 2 * st) for st in range(2) for h in (0, 2)]
        for x, z, b, s in prs:
            a(f"v_pk_fma_f32 {V(x, 2)}, {V(x, 2)}, {V(s, 2)}, {V(b, 2)} op_sel_hi:[1,0,1]")
        for x, z, b, s in prs:
            a(f"v_pk_mul_f32 {V(z, 2)}, {V(x, 2)}, {V(x, 2)}")
        for x, z, b, s in prs:
            a(f"v_pk_fma_f32 {V(z, 2)}, {V(z, 2)}, s[{sK0}:{sK1}], {V(TMP + 4, 2)}")
        for x, z, b, s in prs:
            a(f"v_pk_mul_f32 {V(z, 2)}, {V(z, 2)}, {V(x, 2)}")
        for k in range(8):
            a(f"v_exp_f32 v{Z + k}, v{Z + k}")
        for x, z, b, s in prs:
            a(f"v_pk_add_f32 {V(z, 2)}, {V(z, 2)}, 1.0 op_sel_hi:[1,0]")
        for k in range(8):
            a(f"v_rcp_f32 v{Z + k}, v{Z + k}")
        for x, z, b, s in prs:
            a(f"v_pk_mul_f32 {V(z, 2)}, {V(z, 2)}, {V(x, 2)}")
        for k in range(4):
            a(f"v_cvt_pk_bf16_f32 v{O + k}, v{Z + 2 * k}, v{Z + 2 * k + 1}")
        a(f"s_mov_b32 s{sOP}, {ft * 2 * H_STR}")
        a(f"v_permlane16_swap_b32 v{O}, v{O + 2}")
        a(f"v_permlane16_swap_b32 v{O + 1}, v{O + 3}")
        a(f"buffer_store_dwordx4 {V(O, 4)}, v{vo}, s[{SRD3}:{SRD3 + 3}], s{sOP} offen{Cfg.st_flags}")
    return 140 * 1024


def role_g2(a, final):
    vp, vq, vred, vo, acc = 4, 5, 9, 13, 16
    vp2, vq2, vone, vs, RES, TMP = 96, 97, 101, 102, 104, 116
    ring = 256
    depth = Cfg.g2depth
    a(f"s_and_b32 s{sA}, s{sT}, 7")
    a(f"s_lshr_b32 s{sB}, s{sA}, 1")
    a(f"s_lshl_b32 s{sB}, s{sB}, 3")
    a(f"s_bfe_u32 s{sC}, s{sT}, 0x30003")
    a(f"s_add_u32 s{sC}, s{sC}, s{sB}")
    a(f"s_lshl_b32 s{sC}, s{sC}, 6")
    a(f"s_and_b32 s{sA}, s{sA}, 1")
    a(f"s_lshl_b32 s{sA}, s{sA}, 2")
    a(f"s_lshr_b32 s{sD}, s{sT}, 6")
    a(f"s_add_u32 s{sD}, s{sD}, s{sA}")
    p_addr(a, vp, sD, 14)
    a(f"v_mul_u32_u24 v{vq}, {H_STR}, v{vG}")
    a(f"v_lshl_add_u32 v{vq}, v{vI}, 4, v{vq}")
    a(f"s_mul_i32 s{sA}, s{sW}, {14 * 4 * H_STR}")
    a(f"s_lshl_b32 s{sB}, s{sC}, 4")
    a(f"s_add_u32 s{sA}, s{sA}, s{sB}")
    for ql in (3, 2, 1, 0):
        a(f"s_xor_b32 s{sB}, s{sW}, {ql}")
        a(f"s_lshl_b32 s{sB}, s{sB}, 8")
        a(f"s_add_u32 s{sB}, s{sB}, s{sA}")
        a(f"v_add_u32 v{vq + ql}, s{sB}, v{vq}")
    if Cfg.g2lay & 1:
        a(f"s_mul_i32 s{sA}, s{sD}, {54 * 5120}")
        a(f"s_mul_i32 s{sB}, s{sW}, {13 * 5120}")
        a(f"s_add_u32 s{sA}, s{sA}, s{sB}")
        a(f"v_lshlrev_b32 v{vp}, 4, v{vL}")
        a(f"v_add_u32 v{vp}, s{sA}, v{vp}")
    if Cfg.g2lay & 2:
        a(f"s_mul_i32 s{sA}, s{sC}, {54 * 64}")
        a(f"s_mul_i32 s{sB}, s{sW}, {13 * 4096}")
        a(f"s_add_u32 s{sA}, s{sA}, s{sB}")
        a(f"v_lshlrev_b32 v{vq}, 4, v{vL}")
        for ql in (3, 2, 1, 0):
            a(f"s_xor_b32 s{sB}, s{sW}, {ql}")
            a(f"s_lshl_b32 s{sB}, s{sB}, 10")
            a(f"s_add_u32 s{sB}, s{sB}, s{sA}")
            a(f"v_add_u32 v{vq + ql}, s{sB}, v{vq}")
    a("s_waitcnt lgkmcnt(0)")
    if final:
        srd_ws(a, SRD0, "W2T", W2T_SIZE)
    else:
        srd_ws(a, SRD0, "WA2", WA2_SIZE)
    srd_ws(a, SRD1, "H", H_SIZE)
    st = {"p": None, "q": None}

    def ip(t, p, dst):
        if t < 14:
            if Cfg.g2lay & 1:
                a(f"s_mov_b32 s{sOP}, {t * 5120 + p * 1024}")
                a(f"buffer_load_dwordx4 {R(dst, 4)}, v{vp}, s[{SRD0}:{SRD0 + 3}], s{sOP} offen")
                return
            if st["p"] != t:
                a(f"s_mov_b32 s{sOP}, {t * 4 * KB_STR}")
            a(f"buffer_load_dwordx4 {R(dst, 4)}, v{vp}, s[{SRD0}:{SRD0 + 3}], s{sOP} offen offset:{p * 256}")
        else:
            if st["p"] != t:
                a(f"s_mov_b32 s{sOP}, {(t - 14) * 4 * KB_STR}")
            a(f"buffer_load_dwordx4 {R(dst, 4)}, v{vp2}, s[{SRD4}:{SRD4 + 3}], s{sOP} offen offset:{p * 256}")
        st["p"] = t

    def iq(t, q, qb):
        if t < 14:
            if st["q"] != t:
                a(f"s_mov_b32 s{sOQ}, {t * (4096 if Cfg.g2lay & 2 else 4 * H_STR)}")
            a(f"buffer_load_dwordx4 {R(qb + q * 4, 4)}, v{vq + q}, s[{SRD1}:{SRD1 + 3}], s{sOQ} offen")
        else:
            if st["q"] != t:
                a(f"s_mov_b32 s{sOQ}, {(t - 14) * 8 * XP_STR}")
                a(f"s_mov_b32 s{sF}, {((t - 14) * 8 + 1) * XP_STR}")
            a(f"buffer_load_dwordx2 {R(qb + q * 4, 2)}, v{vq2 + q}, s[{SRD5}:{SRD5 + 3}], s{sOQ} offen")
            a(f"buffer_load_dwordx2 {R(qb + q * 4 + 2, 2)}, v{vq2 + q}, s[{SRD5}:{SRD5 + 3}], s{sF} offen")
        st["q"] = t

    def post():
        a(f"s_lshl_b32 s{sE}, s{sW}, 4")
        a(f"s_add_u32 s{sE}, s{sE}, s{sC}")
        if final:
            srd_table(a, SRD4, "ft2")
            srd_ws(a, SRD5, "XP3", XP_SIZE)
            srd(a, SRD2, P_OUT, 0, SEQ * DM * 2)
            srd(a, SRD3, P_B2, 0, DM * 2)
            p_addr(a, vp2, sD, 5)
            a(f"v_lshlrev_b32 v{vq2}, 15, v{vG}")
            a(f"v_lshl_add_u32 v{vq2}, v{vI}, 3, v{vq2}")
            a(f"s_mul_i32 s{sA}, s{sW}, {40 * XP_STR}")
            a(f"s_lshl_b32 s{sB}, s{sC}, 3")
            a(f"s_add_u32 s{sA}, s{sA}, s{sB}")
            for ql in (3, 2, 1, 0):
                a(f"s_xor_b32 s{sB}, s{sW}, {ql}")
                a(f"s_lshl_b32 s{sB}, s{sB}, 7")
                a(f"s_add_u32 s{sB}, s{sB}, s{sA}")
                a(f"v_add_u32 v{vq2 + ql}, s{sB}, v{vq2}")
            a(f"s_mul_i32 s{sA}, s{sD}, 160")
            a(f"v_lshlrev_b32 v{vs}, 3, v{vG}")
            a(f"v_add_u32 v{vs}, s{sA}, v{vs}")
            a(f"v_mul_u32_u24 v{vo}, 1280, v{vI}")
            a(f"v_add_u32 v{vo}, v{vo}, v{vs}")
            a(f"s_mul_i32 s{sA}, s{sE}, 1280")
            a(f"v_add_u32 v{vo}, s{sA}, v{vo}")
        else:
            srd_ws(a, SRD2, "XP2", XP_SIZE)
            srd_ws(a, SRD3, "XP1", XP_SIZE)
            srd_ws(a, SRD4, "SS2", SS_SIZE)
            a(f"s_mul_i32 s{sA}, s{sD}, {20 * XP_STR}")
            a(f"s_lshl_b32 s{sB}, s{sE}, 3")
            a(f"s_add_u32 s{sA}, s{sA}, s{sB}")
            a(f"v_lshlrev_b32 v{vo}, 14, v{vG}")
            a(f"v_lshl_add_u32 v{vo}, v{vI}, 3, v{vo}")
            a(f"v_add_u32 v{vo}, s{sA}, v{vo}")
            a(f"s_lshl_b32 s{sA}, s{sW}, 3")
            a(f"s_lshr_b32 s{sB}, s{sC}, 8")
            a(f"s_add_u32 s{sA}, s{sA}, s{sB}")
            a(f"s_lshl_b32 s{sA}, s{sA}, 8")
            a(f"s_bfe_u32 s{sB}, s{sC}, 0x20006")
            a(f"s_lshl2_add_u32 s{sA}, s{sB}, s{sA}")
            a(f"v_lshlrev_b32 v{vs}, 4, v{vI}")
            a(f"v_add_u32 v{vs}, s{sA}, v{vs}")
            a(f"v_lshl_add_u32 v{vs}, v{vG}, 20, v{vs}")
            a(f"s_cmp_eq_u32 s{sW}, 3")
            a(f"s_cselect_b32 s{sA}, 0x3f80, 0")
            a(f"v_mov_b32 v{vone}, s{sA}")
            a(f"v_cmp_eq_u32 vcc, 0, v{vG}")
            a(f"v_cndmask_b32 v{vone}, 0, v{vone}, vcc")
            a(f"s_cmp_eq_u32 s{sD}, 0")
            a(f"s_cselect_b32 s{sA}, 0, 1.0")
            a(f"v_mov_b32 v{vp2}, s{sA}")
            a(f"v_cndmask_b32 v{vp2}, 1.0, v{vp2}, vcc")

    def prep(t, qb):
        if t == 3:
            for p in range(5):
                if final:
                    a(f"buffer_load_dwordx2 {V(RES + 2 * p, 2)}, v{vs}, s[{SRD3}:{SRD3 + 3}], 0 offen offset:{p * 32}")
                else:
                    a(f"s_mov_b32 s{sF}, {p * 4 * XP_STR}")
                    a(f"buffer_load_dwordx2 {V(RES + 2 * p, 2)}, v{vo}, s[{SRD3}:{SRD3 + 3}], s{sF} offen")
        if t == 12 and not final:
            for q in range(4):
                a(f"v_accvgpr_read_b32 v{TMP + q}, {R(qb + q * 4)}")
            for q in range(4):
                a(f"v_or_b32 v{TMP + q}, v{TMP + q}, v{vone}")
            for q in range(4):
                a(f"v_accvgpr_write_b32 {R(qb + q * 4)}, v{TMP + q}")
        return [qb + q * 4 for q in range(4)]

    res = gemm_ks_hook(a, 19 if final else 14, depth, acc, ring, vred, ip, iq, prep, post)
    a(f"s_mov_b32 s{sK2}, 0xffff0000")
    if not final:
        a(f"v_mov_b32 v{TMP + 8}, 0")
        a(f"v_mov_b32 v{TMP + 9}, 0")
    for p, r in enumerate(res):
        for h in range(2):
            a(f"v_lshlrev_b32 v{TMP + 2 * h}, 16, v{RES + 2 * p + h}")
            a(f"v_and_b32 v{TMP + 2 * h + 1}, s{sK2}, v{RES + 2 * p + h}")
        for h in (0, 2):
            a(f"v_pk_add_f32 {V(r + h, 2)}, {V(r + h, 2)}, {V(TMP + h, 2)}")
        a(f"v_cvt_pk_bf16_f32 v{r}, v{r}, v{r + 1}")
        a(f"v_cvt_pk_bf16_f32 v{r + 1}, v{r + 2}, v{r + 3}")
        if final:
            a(f"buffer_store_dwordx2 {V(r, 2)}, v{vo}, s[{SRD2}:{SRD2 + 3}], 0 offen offset:{p * 32}{Cfg.st_flags}")
        else:
            a(f"s_mov_b32 s{sOP}, {p * 4 * XP_STR}")
            a(f"buffer_store_dwordx2 {V(r, 2)}, v{vo}, s[{SRD2}:{SRD2 + 3}], s{sOP} offen{Cfg.st_flags}")
            if p == 0:
                a(f"v_lshlrev_b32 v{TMP + 4}, 16, v{r}")
                a(f"v_and_b32 v{TMP + 5}, s{sK2}, v{r}")
                a(f"v_mul_f32 v{TMP + 5}, v{TMP + 5}, v{vp2}")
                a(f"v_mul_f32 v{TMP + 8}, v{TMP + 4}, v{TMP + 4}")
                a(f"v_fmac_f32 v{TMP + 8}, v{TMP + 5}, v{TMP + 5}")
            else:
                a(f"v_dot2c_f32_bf16 v{TMP + 8}, v{r}, v{r}")
            a(f"v_dot2c_f32_bf16 v{TMP + 9}, v{r + 1}, v{r + 1}")
    if not final:
        s = TMP + 8
        a(f"v_add_f32 v{s}, v{s}, v{s + 1}")
        for op in ("v_permlane32_swap_b32", "v_permlane16_swap_b32"):
            a(f"v_mov_b32 v{s + 1}, v{s}")
            a(f"{op} v{s}, v{s + 1}")
            a(f"v_add_f32 v{s}, v{s}, v{s + 1}")
        a(f"buffer_atomic_add_f32 v{s}, v{vs}, s[{SRD4}:{SRD4 + 3}], 0 offen")
    return KS_LDS


def gemm_ks_hook(a, nsteps, depth, acc, ring, vred, ip, iq, hook, post):
    return gemm_ks(a, nsteps, depth, acc, ring, vred, True, ip, iq, after_prologue=post, step_hook=hook)


def build_kernel(name, idx, roles, block=256):
    a = Asm()
    a.raw(f".globl {name}\n.p2align 8\n.type {name},@function")
    a.label(name)
    a.label(name + "_code")
    a("s_load_dwordx16 s[8:23], s[0:1], 0")
    a("s_load_dwordx4 s[24:27], s[0:1], 64")
    a("s_load_dwordx2 s[28:29], s[0:1], 80")
    if Cfg.stamp:
        a(f"s_memrealtime s[{sST}:{sST + 1}]")
        for j in range(1, 10):
            a(f"s_mov_b32 s{sST + 2 * j}, 0")
    a(f"v_lshrrev_b32 v{vL}, 6, v0")
    a(f"v_and_b32 v{vI}, 15, v0")
    a(f"v_readfirstlane_b32 s{sW}, v{vL}")
    a(f"v_bfe_u32 v{vG}, v0, 4, 2")
    a(f"v_and_b32 v{vL}, 63, v0")
    lds = 0
    start = 0
    starts = [sum(c for c, _ in roles[:n]) for n in range(len(roles) + 1)]
    for n in range(len(roles), 0, -1):
        a(f"s_cmp_ge_u32 s2, {starts[n]}")
        a(f"s_cbranch_scc1 {name}_r{n}")
    for n, (count, fn) in enumerate(roles):
        if n:
            a.label(f"{name}_r{n}")
        a(f"s_sub_u32 s{sT}, s2, {start}")
        lds = max(lds, fn(a))
        if Cfg.stamp:
            mark(a, 10)
            a("s_waitcnt vmcnt(0)")
            mark(a, 11)
            a("s_waitcnt lgkmcnt(0)")
            a(f"s_mul_i32 s{sA}, s2, {block // 64}")
            a(f"s_add_u32 s{sA}, s{sA}, s{sW}")
            a(f"s_lshl_b32 s{sA}, s{sA}, 6")
            a(f"s_add_u32 s{sA}, s{sA}, {idx * 262144}")
            srd_ws(a, SRD0, "STAMP", 1 << 21)
            a("s_waitcnt lgkmcnt(0)")
            for j in range(12):
                a(f"v_mov_b32 v{4 + j}, s{sST + 2 * j}")
            a(f"v_mov_b32 v16, s{sA}")
            for j in range(3):
                a(f"buffer_store_dwordx4 v[{4 + 4 * j}:{7 + 4 * j}], v16, s[{SRD0}:{SRD0 + 3}], 0 offen offset:{16 * j}")
            a(f"s_getreg_b32 s{sB}, hwreg(HW_REG_XCC_ID)")
            a(f"v_mov_b32 v17, s{sB}")
            a(f"buffer_store_dword v17, v16, s[{SRD0}:{SRD0 + 3}], 0 offen offset:48")
        a("s_endpgm")
        for fn2 in a.tail:
            fn2()
        a.tail = []
        start += count
    a.label(f"{name}_r{len(roles)}")
    a("s_endpgm")
    a.label(name + "_cend")
    nv = na = 0
    ns = 0
    for it in a.items:
        if isinstance(it, Inst):
            for k, r in it.dst + it.src + it.srcc:
                if k == "v":
                    nv = max(nv, r + 1)
                elif k == "a":
                    na = max(na, r + 1)
                elif r < 102:
                    ns = max(ns, r + 1)
    acco = (nv + 3) // 4 * 4
    desc = f""".p2align 6
.amdhsa_kernel {name}
  .amdhsa_next_free_vgpr {acco + na}
  .amdhsa_next_free_sgpr {ns}
  .amdhsa_accum_offset {acco}
  .amdhsa_group_segment_fixed_size 0
  .amdhsa_kernarg_size 88
  .amdhsa_user_sgpr_count 2
  .amdhsa_user_sgpr_kernarg_segment_ptr 1
  .amdhsa_system_sgpr_workgroup_id_x 1
.end_amdhsa_kernel
"""
    launch = f"; @launch kernel={name} grid=({start},1,1) block=({block},1,1) lds={lds}"
    if Cfg.stamp:
        launch += "\n; roles " + name + " " + " ".join(str(c * block // 256) for c, _ in roles)
    return launch, a.finalize(), desc


def tables():
    L = []
    c = np.sqrt(2.0 / DM) * np.cos(2 * np.pi * np.arange(DM) / DM)
    c[160] = 0
    c[480] = 0
    bits = model.bf16_bits(c.astype(np.float32))
    for n in range(DM):
        L.append(f".set cq{n}, {bits[n]}")
    bb = int(model.bf16_bits(np.float32([np.sqrt(1 / DM)]))[0])
    L.append(".altmacro")
    L.append(".macro e8 a,b,c,d,e,f,g,h\n.short cq\\a, cq\\b, cq\\c, cq\\d, cq\\e, cq\\f, cq\\g, cq\\h\n.endm")
    L.append(".macro e6 a,b,c,d,e,f\n.short cq\\a, cq\\b, cq\\c, cq\\d, cq\\e, cq\\f\n.endm")
    L.append(".p2align 12\nft1:")
    L.append(".set td, 0\n.rept 80")
    L.append(".short " + ", ".join(str(bb | (0x8000 if j & 1 else 0)) for j in range(8)))
    L.append(".short " + ", ".join(str(bb) for j in range(8)))
    L.append(".set tm, 1\n.rept 319")
    L.append("e8 " + ", ".join(f"%((tm*(td+{j}))%640)" for j in range(8)))
    L.append("e8 " + ", ".join(f"%((tm*(td+{j})+160)%640)" for j in range(8)))
    L.append(".set tm, tm+1\n.endr\n.set td, td+8\n.endr")
    L.append(".p2align 12\nft2:")
    L.append(".set td, 0\n.rept 640")
    L.append(f".short {bb}+((td&1)<<15), {bb}")
    L.append("e6 " + ", ".join(f"%(({1 + j // 2}*td+{160 * (j & 1)})%640)" for j in range(6)))
    L.append(".set td, td+1\n.endr")
    L.append(".set tm, 4\n.rept 79\n.set td, 0\n.rept 640")
    L.append("e8 " + ", ".join(f"%(((tm+{j // 2})*td+{160 * (j & 1)})%640)" for j in range(8)))
    L.append(".set td, td+1\n.endr\n.set tm, tm+4\n.endr")
    L.append(".noaltmacro")
    return "\n".join(L) + "\n"


def generate(plan=None, tabs=None):
    if plan is None:
        plan = default_plan()
    launches, code, descs = [], [], []
    for idx, (name, roles, *blk) in enumerate(plan):
        l, c, d = build_kernel(name, idx, roles, *blk)
        launches.append(l)
        code.append(c)
        descs.append(d)
    out = "\n".join(launches) + "\n"
    out += '.amdgcn_target "amdgcn-amd-amdhsa--gfx950"\n.text\n'
    out += "".join(code)
    out += "text_last:\n"
    out += '.section .rodata,"a"\n'
    out += "".join(descs)
    out += (tabs or tables)()
    return out


def default_plan():
    tail = [
        ("g1a_kernel", [(256, lambda a: role_g1(a, "XP1"))]),
        ("g2a_kernel", [(256, lambda a: role_g2(a, False))]),
        ("c2_kernel", [(320, lambda a: role_col(a, "XP2", "SS2", "XP3")), (135, role_w2t)]),
        ("g1b_kernel", [(256, lambda a: role_g1(a, "XP3"))]),
        ("g2b_kernel", [(256, lambda a: role_g2(a, True))]),
    ]
    d = Cfg.pdepth
    if Cfg.plan == 1:
        return [
            ("p0_kernel", [(256, lambda a: role_xhat0(a, d))]),
            ("p1_kernel", [(80, role_wc), (64, role_stats)]),
            ("p2_kernel", [(224, lambda a: role_w2f(a, d))]),
            ("p3_kernel", [(216, lambda a: role_w1f(a, min(d, 4)))]),
            ("c1_kernel", [(320, lambda a: role_col(a, "XP0", "SS0", "XP1"))]),
        ] + tail[:3]
    if Cfg.plan == 2:
        return [
            ("p0_kernel", [(256, lambda a: role_xhat0(a, d)), (80, role_wc), (64, role_stats)]),
            ("c1_kernel", [(320, lambda a: role_col(a, "XP0", "SS0", "XP1")), (216, lambda a: role_w1f(a, min(d, 4))),
                           (224, lambda a: role_w2f(a, min(d, 4), 112))]),
        ] + tail
    return [
        ("p0_kernel", [(256, lambda a: role_xhat0(a, 4)), (80, role_wc), (64, role_stats),
                       (224, lambda a: role_w2f(a, 4))]),
        ("c1_kernel", [(320, lambda a: role_col(a, "XP0", "SS0", "XP1")), (216, lambda a: role_w1f(a, 4))]),
        ("g1a_kernel", [(256, lambda a: role_g1(a, "XP1"))]),
        ("g2a_kernel", [(256, lambda a: role_g2(a, False))]),
        ("c2_kernel", [(320, lambda a: role_col(a, "XP2", "SS2", "XP3")), (135, role_w2t)]),
        ("g1b_kernel", [(256, lambda a: role_g1(a, "XP3"))]),
        ("g2b_kernel", [(256, lambda a: role_g2(a, True))]),
    ]


if __name__ == "__main__":
    out = sys.argv[1]
    for opt in sys.argv[2:]:
        if opt == "stamp":
            Cfg.stamp = True
        if "=" in opt:
            k, v = opt.split("=")
            setattr(Cfg, k, int(v) if v.lstrip("-").isdigit() else v.replace("_", " "))
        if opt == "clk":
            Cfg.stamp = Cfg.clk = True
    open(out, "w").write(generate())
```

```python
from gen import *
import model2
from p0 import Sched, fx

SCALE = float(np.sqrt(2.0 / DM))
SIGN2 = 0x80008000
REGB = 24576
FB = SS2_SIZE
READY, POST, HINT, DONE2, DONE = 4 << 15, 5 << 15, (6 << 15, 7 << 15), 8 << 15, 9 << 15
XCC = "hwreg(HW_REG_XCC_ID, 0, 3)"
W2TOP = 252
aF, aD, aB, aDUM, aTR = 256 + 254, 256 + 255, 256 + 251, 256 + 253, 256 + 232


class FC:
    fl_ld = " nt"
    fl_l2 = " nt"
    fl_l1 = ""
    fl_f = ""
    fs = (" sc1",) * 5
    xscale = 0
    code_pf = 1
    c_early = 3
    rot = 1
    t_pre = 6
    spread = 1
    pages = 0
    w_early = 5
    early = (0, 1)
    po = (0, 0, 0)
    t_late = 1
    p1_at = 2
    w2_pre = 1


def lane_blocks(a, v, t, base):
    a(f"v_and_b32 v{v}, 31, v{vL}")
    a(f"v_bfe_u32 v{t}, v{vL}, 5, 1")
    a(f"v_lshl_add_u32 v{v}, v{t}, 7, v{v}")
    a(f"v_lshl_add_u32 v{v}, s{sW}, 5, v{v}")
    a(f"v_lshlrev_b32 v{v}, 7, v{v}")
    a(f"v_add_u32 v{v}, {base + DONE}, v{v}")


def post(a, srd_, base, step, t, wait=None, both=False):
    a(f"s_getreg_b32 s{sB}, {XCC}")
    a(f"s_add_u32 s{sB}, s{sB}, {8 * step}")
    a(f"s_lshl_b32 s{sA}, s3, 7")
    a(f"s_add_u32 s{sA}, s{sA}, {base + DONE}")
    if both:
        a(f"v_lshrrev_b32 v{t + 2}, 1, v0")
        a(f"v_lshl_add_u32 v{t + 2}, v{t + 2}, 20, s{sA}")
        a(f"v_and_b32 v{t}, 1, v0")
        a(f"v_lshlrev_b32 v{t + 1}, 15, v{t}")
        a(f"v_sub_u32 v{t + 2}, v{t + 2}, v{t + 1}")
    else:
        a(f"v_lshl_add_u32 v{t + 2}, v0, 20, s{sA}")
    if wait:
        a(wait)
    a(f"v_accvgpr_read_b32 v{t + 1}, {R(aD)}")
    a(f"v_and_b32 v{t + 1}, -8, v{t + 1}")
    a(f"v_add_u32 v{t + 1}, s{sB}, v{t + 1}")
    if both:
        a(f"v_or_b32 v{t + 1}, v{t}, v{t + 1}")
    return f"buffer_store_dword v{t + 1}, v{t + 2}, s[{srd_}:{srd_ + 3}], 0 offen sc1"


def front(a, mark):
    name = "f"
    vld, vr, vo = 4, 5, 9
    MK, M1, M2, M2N = 10, 14, 15, 16
    vph, vk0, vq20, vgf = 17, 18, 19, 35
    ACC1, A1, A2, Y, ACCX = 20, 36, 96, 144, 168
    TMP = Y
    DAT = 176
    sQ, sFT, sKD, sSC = sK0, sK1, 96, 97
    KINDS = ("x", "w1", "w2")
    NX = 0 if FC.early[0] else 3
    NP = 2 if FC.pages else 0
    lbase = {"x": 0, "w1": 0, "w2": REGB}

    def frag(beta, j):
        return DAT + (beta * 5 + j) * 4

    a("s_cmp_ge_u32 s2, 8")
    a(f"s_cbranch_scc1 {name}_npf")
    if FC.code_pf:
        srd_code(a, SRD5, "mk_kernel")
        a(f"v_lshlrev_b32 v{vld}, 7, v0")
        for k in range(3):
            a(f"s_mov_b32 s{sOP}, {k << 15}")
            a.raw(f"    buffer_load_dword {R(aDUM)}, v{vld}, s[{SRD5}:{SRD5 + 3}], s{sOP} offen")
    a(f"s_add_u32 s{sT}, s2, 160")
    a.label(f"{name}_npf")
    a(f"s_sub_u32 s{sT}, s{sT}, 8")
    a("s_cmp_ge_u32 s2, 160")
    a(f"s_cselect_b32 s3, s2, s{sT}")
    a(f"s_lshl_b32 s{sE}, s{sW}, 10")
    a("s_cmp_ge_u32 s3, 128")
    a(f"s_cbranch_scc1 {name}_pb")
    if FC.spread:
        a(f"s_and_b32 s{sA}, s3, 7")
        a(f"s_lshr_b32 s{sT}, s3, 3")
        a(f"s_lshl4_add_u32 s{sT}, s{sA}, s{sT}")
        a(f"s_mov_b32 s3, s{sT}")

    def row_addr(v, t):
        a(f"s_and_b32 s{sA}, s{sW}, 1")
        a(f"s_lshl_b32 s{sA}, s{sA}, 1")
        a(f"s_xor_b32 s{sA}, s{sA}, s{sW}")
        a(f"s_lshl_b32 s{sA}, s{sA}, 2")
        a(f"v_or_b32 v{t}, s{sA}, v{vG}")
        a(f"v_xor_b32 v{t}, v{t}, v{vI}")
        a(f"v_mul_u32_u24 v{v}, 1280, v{v}")
        a(f"v_lshl_add_u32 v{v}, v{t}, 4, v{v}")

    def row_issue(v, fl, base):
        for j in range(5):
            a(f"s_add_u32 m0, s{sE}, {base + j * 4096 - j * 256}")
            a(f"buffer_load_dwordx4 v{v}, s[{SRD0}:{SRD0 + 3}], 0 offen offset:{j * 256}{fl} lds")

    def sync_start(part=3):
        t, z = TMP, TMP + 4
        if part & 1:
            sync_addr(t, z)
        if part & 2:
            srd_ws(a, SRD3, "SS2", SS2_SIZE + FLAG_SIZE)
            a(f"buffer_load_dword {R(aF)}, v{t}, s[{SRD3}:{SRD3 + 3}], 0 offen{FC.fl_f}")
            a(f"buffer_load_dword {R(aD)}, off, s[{SRD3}:{SRD3 + 3}], s{sOQ}{FC.fl_f}")
            a(f"buffer_store_dwordx4 {V(z, 4)}, v{t + 3}, s[{SRD3}:{SRD3 + 3}], 0 offen sc1")

    def sync_addr(t, z):
        lane_blocks(a, t, t + 1, FB)
        a(f"s_lshl_b32 s{sA}, s3, 2")
        a(f"v_and_or_b32 v{t + 3}, v0, 3, s{sA}")
        a(f"v_bfe_u32 v{t + 1}, v0, 2, 1")
        a(f"v_mad_u32_u24 v{t + 2}, v{t + 1}, 3, 4")
        a(f"v_lshlrev_b32 v{t + 3}, v{t + 2}, v{t + 3}")
        a(f"v_lshl_add_u32 v{t + 3}, v{t + 1}, 14, v{t + 3}")
        a(f"v_lshrrev_b32 v{t + 1}, 3, v0")
        a(f"v_lshl_add_u32 v{t + 3}, v{t + 1}, 20, v{t + 3}")
        for k in range(4):
            a(f"v_mov_b32 v{z + k}, 0")
        a(f"s_lshl_b32 s{sA}, s3, 7")
        a(f"s_add_u32 s{sOQ}, s{sA}, {FB + DONE}")
        a(f"s_add_u32 s{sA}, s{sA}, {FB + READY - (8 << 15)}")
        a(f"v_lshl_add_u32 v{t + 1}, v0, 15, s{sA}")
        a(f"v_subrev_u32 v{t + 2}, 8, v0")
        a(f"v_cmp_gt_u32 s[{sK2}:{sK3}], 5, v{t + 2}")
        a(f"v_cndmask_b32_e64 v{t + 3}, v{t + 3}, v{t + 1}, s[{sK2}:{sK3}]")

    def w2_setup(v, t):
        a(f"s_lshl_b32 s{sC}, s{sT}, 4")
        a(f"s_cmp_eq_u32 s{sT}, 108")
        a(f"s_cselect_b32 s{sC}, 0, s{sC}")
        a(f"s_lshl2_add_u32 s{sC}, s{sW}, s{sC}")
        a(f"v_add_u32 v{v}, s{sC}, v{vG}")
        row_addr(v, t)
        a("s_waitcnt lgkmcnt(0)")
        a(f"s_cmp_eq_u32 s{sT}, 108")
        a(f"s_mov_b32 s{SRD0 + 2}, {FF * DM * 2}")
        a(f"s_mov_b32 s{SRD0 + 3}, 0x20000")
        a(f"s_cselect_b32 s{SRD0 + 2}, {DM * 2}, s{SRD0 + 2}")
        a(f"s_cselect_b32 s{SRD0}, s{P_B2}, s{P_W2}")
        a(f"s_cselect_b32 s{SRD0 + 1}, s{P_B2 + 1}, s{P_W2 + 1}")
        a(f"s_and_b32 s{SRD0 + 1}, s{SRD0 + 1}, 0xffff")

    REG = 5248

    def mark_unset(n, v):
        k0 = sum(FC.po[:n])
        if not FC.po[n]:
            return
        if not k0:
            srd_ws(a, SRD5, "H", H_SIZE)
            for k in range(4):
                a(f"v_accvgpr_write_b32 {R(256 + k)}, -1")
        a(f"v_lshlrev_b32 v{v}, 4, v0")
        a(f"s_mul_i32 s{sOP}, s3, {14 * 4096}")
        for k in range(k0, k0 + FC.po[n]):
            if k:
                a(f"s_add_u32 s{sOP}, s{sOP}, {4096 * (k if k == k0 else 1)}")
            a(f"buffer_store_dwordx4 {R(256, 4)}, v{v}, s[{SRD5}:{SRD5 + 3}], s{sOP} offen sc1")

    def filter_setup():
        a(f"s_bfe_u32 s{sA}, s3, 0x20001")
        a(f"s_lshl_b32 s{sC}, s{sA}, 7")
        a(f"s_lshr_b32 s{sA}, s3, 5")
        a(f"s_lshl_b32 s{sA}, s{sA}, 9")
        a(f"s_add_u32 s{sC}, s{sC}, s{sA}")
        a(f"s_and_b32 s{sA}, s3, 8")
        a(f"s_lshl3_add_u32 s{sC}, s{sA}, s{sC}")
        a(f"s_and_b32 s{sA}, s3, 16")
        a(f"s_add_u32 s{sC}, s{sC}, s{sA}")
        a(f"s_and_b32 s{sA}, s3, 1")
        a(f"s_lshl3_add_u32 s{sC}, s{sA}, s{sC}")
        a(f"s_and_b32 s{sA}, s{sW}, 2")
        a(f"s_lshl4_add_u32 s{sC}, s{sA}, s{sC}")
        a(f"s_mul_i32 s{sC}, s{sC}, 642")
        a(f"s_add_u32 s{sD}, s{sC}, 4096")
        a(f"s_mul_i32 s{sF}, s{sW}, {REG}")
        a(f"s_mov_b32 s{SRD0 + 2}, {SEQ * 642}")
        a(f"s_add_u32 m0, s{sF}, {REGB}")
        a(f"s_bitcmp1_b32 s{sW}, 0")
        a(f"s_cselect_b32 s{SRD0}, s{P_WI}, s{P_WR}")
        a(f"s_cselect_b32 s{SRD0 + 1}, s{P_WI + 1}, s{P_WR + 1}")
        a(f"s_and_b32 s{SRD0 + 1}, s{SRD0 + 1}, 0xffff")

    def filter_loads(js):
        a(f"v_lshlrev_b32 v{vld}, 4, v{vL}")
        for j in js:
            if j == 4:
                a(f"s_add_u32 m0, s{sF}, {REGB + 4096}")
            if j == 5:
                a("s_mov_b64 exec, 1")
            a(f"buffer_load_dwordx4 v{vld}, s[{SRD0}:{SRD0 + 3}], s{sC if j < 4 else sD} offen offset:{(j & 3) * 1024}{FC.fl_ld} lds")
            if j == 5:
                a("s_mov_b64 exec, -1")

    a(f"s_and_b32 s{sC}, s{sT}, 1")
    a(f"s_lshl_b32 s{sC}, s{sC}, 3")
    a(f"s_lshr_b32 s{sA}, s{sT}, 5")
    a(f"s_lshl4_add_u32 s{sC}, s{sA}, s{sC}")
    a(f"s_bfe_u32 s{sA}, s{sT}, 0x20001")
    a(f"s_lshl_b32 s{sA}, s{sA}, 8")
    a(f"s_add_u32 s{sC}, s{sC}, s{sA}")
    a(f"s_and_b32 s{sA}, s{sT}, 8")
    a(f"s_lshl4_add_u32 s{sC}, s{sA}, s{sC}")
    a(f"s_and_b32 s{sA}, s{sT}, 16")
    a(f"s_lshl_b32 s{sA}, s{sA}, 6")
    a(f"s_add_u32 s{sC}, s{sC}, s{sA}")
    a(f"s_lshl1_add_u32 s{sC}, s{sW}, s{sC}")
    a(f"v_and_b32 v{vld}, 1, v{vG}")
    a(f"v_lshlrev_b32 v{vld}, 6, v{vld}")
    a(f"v_lshrrev_b32 v{vr + 1}, 1, v{vG}")
    a(f"v_add3_u32 v{vld}, v{vld}, v{vr + 1}, s{sC}")
    row_addr(vld, vr)
    if FC.early[0]:
        sync_start(1)
    a("s_waitcnt lgkmcnt(0)")
    srd(a, SRD0, P_X, 0, SEQ * DM * 2)
    row_issue(vld, FC.fl_ld, 0)
    if FC.early[0]:
        sync_start(2)
    filter_setup()
    filter_loads(range(FC.c_early))
    mark_unset(0, vr + 3)
    mark(a, "l1")
    srd_ws(a, SRD1, "XP0", XP_SIZE)
    a(f"s_mov_b32 s{sKD}, 0")
    a(f"s_branch {name}_gen")

    a.label(f"{name}_pb")
    a(f"s_sub_u32 s{sT}, 255, s3")
    a(f"s_and_b32 s{sA}, s{sT}, 7")
    a(f"s_lshr_b32 s{sB}, s{sT}, 5")
    a(f"s_lshl3_add_u32 s{sA}, s{sB}, s{sA}")
    a(f"s_bfe_u32 s{sB}, s{sT}, 0x20003")
    a(f"s_lshl2_add_u32 s{sFT}, s{sA}, s{sB}")
    a(f"s_and_b32 s{sA}, s3, 7")
    a(f"s_bfe_u32 s{sB}, s3, 0x10003")
    a(f"s_lshl1_add_u32 s{sA}, s{sA}, s{sB}")
    a(f"s_add_u32 s{sA}, s{sA}, 92")
    a(f"s_cmp_lt_u32 s{sFT}, 92")
    a(f"s_cselect_b32 s{sFT}, s{sFT}, 108")
    a("s_cmp_lt_u32 s3, 144")
    a(f"s_cselect_b32 s{sFT}, s{sA}, s{sFT}")
    a(f"s_sub_u32 s{sT}, {W2TOP}, s3")
    a(f"s_min_u32 s{sT}, s{sT}, 112")
    a(f"s_cmp_ge_u32 s{sFT}, 108")
    a(f"s_cbranch_scc1 {name}_p2")
    a(f"s_and_b32 s{sA}, s{sW}, 1")
    a(f"s_lshl_b32 s{sA}, s{sA}, 2")
    a(f"v_lshrrev_b32 v{vld}, 1, v{vL}")
    a(f"v_xor_b32 v{vld}, s{sA}, v{vld}")
    a(f"v_mul_u32_u24 v{vld}, {FF * 2}, v{vld}")
    a(f"v_and_b32 v{vr}, 1, v{vL}")
    a(f"v_lshl_add_u32 v{vld}, v{vr}, 4, v{vld}")
    a(f"s_mul_i32 s{sA}, s{sW}, {32 * FF * 2}")
    a(f"s_lshl_b32 s{sB}, s{sFT}, 5")
    a(f"s_add_u32 s{sA}, s{sA}, s{sB}")
    a(f"v_add_u32 v{vld}, s{sA}, v{vld}")
    if FC.early[1]:
        sync_start(1)
    a("s_waitcnt lgkmcnt(0)")
    if FC.early[1] == 1:
        sync_start(2)
    srd(a, SRD0, P_W1, 0, DM * FF * 2)
    if FC.rot:
        a(f"s_and_b32 s{sC}, s{sFT}, 3")

    def w1_loads(js):
        for j in js:
            if FC.rot:
                a(f"s_lshl_b32 s{sA}, s{sC}, 12")
                a(f"s_add_u32 m0, s{sE}, s{sA}")
                a(f"s_mul_i32 s{sOP}, s{sC}, {128 * FF * 2}")
            else:
                a(f"s_add_u32 m0, s{sE}, {j * 4096}")
                a(f"s_mov_b32 s{sOP}, {j * 128 * FF * 2}")
            a(f"buffer_load_dwordx4 v{vld}, s[{SRD0}:{SRD0 + 3}], s{sOP} offen{FC.fl_l1} lds")
            if FC.rot and j < 4:
                a(f"s_add_u32 s{sC}, s{sC}, 1")
                a(f"s_cmp_eq_u32 s{sC}, 5")
                a(f"s_cselect_b32 s{sC}, 0, s{sC}")
            if j == 4:
                srd(a, SRD2, P_B1, 0, FF * 2)
                a(f"v_lshl_add_u32 v{vld}, v{vI}, 1, s{sB}")
                a(f"buffer_load_ushort {R(aB)}, v{vld}, s[{SRD2}:{SRD2 + 3}], 0 offen")

    w1_loads(range(FC.w_early))
    if FC.early[1] == 2:
        sync_start(2)
    mark(a, "l1")
    srd_ws(a, SRD1, "W1F", W1F_SIZE)
    a(f"s_mov_b32 s{sKD}, 1")
    a(f"s_branch {name}_gen")
    a.label(f"{name}_p2")
    w2_setup(vld, vr)
    row_issue(vld, FC.fl_l2, REGB)
    mark(a, "l1")
    sync_start()
    a(f"s_mov_b32 s{sKD}, 2")

    va0, va1, va2, vc, vt, LD, ST = 10, 11, 12, 13, 17, 176, 216
    k0, k1, k2 = 98, 99, 100

    def filter_addr():
        vo = vc
        srd_ws(a, SRD4, "WC", WC_SIZE)
        a(f"v_bfe_u32 v{vt}, v{vL}, 3, 1")
        a(f"v_lshlrev_b32 v{vt}, 2, v{vt}")
        a(f"v_add_u32 v{vt}, v{vt}, v{vG}")
        a(f"s_cmp_lt_u32 s{sW}, 2")
        a(f"s_cselect_b32 s{k0}, 1, -1")
        a(f"s_mul_i32 s{sA}, s{k0}, 80")
        a(f"s_mul_i32 s{sB}, s{k0}, 40")
        a(f"v_mul_i32_i24 v{va0}, s{sA}, v{vt}")
        a(f"v_and_b32 v{vt}, 7, v{vL}")
        a(f"v_mul_u32_u24 v{va1}, 642, v{vt}")
        a(f"v_add_u32 v{va0}, v{va0}, v{va1}")
        a(f"s_mul_i32 s{k1}, s{sW}, 5")
        a(f"s_sub_u32 s{k2}, 325, s{k1}")
        a(f"s_cmp_lt_u32 s{sW}, 2")
        a(f"s_cselect_b32 s{k2}, s{k1}, s{k2}")
        a(f"s_lshl_b32 s{k2}, s{k2}, 1")
        a(f"v_add_u32 v{va0}, s{k2}, v{va0}")
        a(f"v_add_u32 v{va1}, s{sB}, v{va0}")
        a(f"v_cmp_gt_u32 vcc, 8, v0")
        a(f"v_add_u32 v{va2}, 640, v{va0}")
        a(f"v_cndmask_b32 v{va2}, v{va0}, v{va2}, vcc")
        a(f"v_lshrrev_b32 v{vo}, 3, v{vL}")
        a(f"v_lshlrev_b32 v{vo}, 14, v{vo}")
        a(f"v_lshl_add_u32 v{vo}, v{vt}, 4, v{vo}")
        a(f"s_lshl_b32 s{sA}, s3, 7")
        a(f"s_lshr_b32 s{sB}, s{sW}, 1")
        a(f"s_lshl_b32 s{sB}, s{sB}, 17")
        a(f"s_add_u32 s{sA}, s{sA}, s{sB}")
        a(f"v_add_u32 v{vo}, s{sA}, v{vo}")
        a(f"s_sub_u32 s{k2}, s{k1}, 5")
        a(f"s_cmp_lt_u32 s{sW}, 2")
        a(f"s_cselect_b32 s{k1}, s{k1}, s{k2}")

    def filter_job():
        vo = vc
        a("s_barrier")
        mark(a, "b2")
        for n in range(5):
            for rl in range(2):
                for ph in range(2):
                    ad = va1 if ph else (va2 if n == 0 else va0)
                    for ar in range(2):
                        a(f"ds_read_u16 v{LD + n * 8 + (rl * 2 + ph) * 2 + ar}, v{ad} offset:{REGB + (rl * 2 + ar) * REG + 2 * n}")
        for n in range(5):
            for k in range(4):
                a(f"v_lshl_or_b32 v{ST + 4 * n + k}, v{LD + n * 8 + 2 * k + 1}, 16, v{LD + n * 8 + 2 * k}")
            if n == 0:
                a(f"s_cmp_eq_u32 s{k1}, 10")
                a(f"s_cselect_b32 s{sOP}, 0, s{k1}")
                a(f"s_lshl_b32 s{sOP}, s{sOP}, 18")
            else:
                a(f"s_add_i32 s{k1}, s{k1}, s{k0}")
                a(f"s_lshl_b32 s{sOP}, s{k1}, 18")
            a(f"buffer_store_dwordx4 {V(ST + 4 * n, 4)}, v{vo}, s[{SRD4}:{SRD4 + 3}], s{sOP} offen{FC.fs[1]}")

    a.label(f"{name}_gen")
    if FC.pages:
        a(f"v_min_u32 v{vr}, 3, v0")
        a(f"v_mul_u32_u24 v{vr}, {SLOT - (1 << 21)}, v{vr}")
        a(f"v_lshlrev_b32 v{vr + 1}, 21, v0")
        a(f"v_add_u32 v{vr}, v{vr}, v{vr + 1}")
        srd(a, SRD5, P_WS, 0, WS["STAMP"])
        a.raw(f"    buffer_load_dword {R(aDUM)}, v{vr}, s[{SRD5}:{SRD5 + 3}], 0 offen sc1")
        srd(a, SRD5, P_OUT, 0, SEQ * DM * 2)
        a.raw(f"    buffer_load_dword {R(aDUM)}, v{vr + 1}, s[{SRD5}:{SRD5 + 3}], 0 offen sc1")
    a(f"s_mov_b32 s{sSC}, {fx(SCALE)}")
    a(f"s_cmp_eq_u32 s{sKD}, 0")
    a(f"s_cselect_b32 s{sSC}, {fx(SCALE * 2.0 ** FC.xscale)}, s{sSC}")
    a(f"v_bfe_u32 v{TMP}, v{vI}, 1, 1")
    a(f"v_lshlrev_b32 v{TMP}, 4, v{TMP}")
    a(f"v_mov_b32 v{TMP + 1}, 0xffff")
    a(f"v_lshlrev_b32 v{TMP}, v{TMP}, v{TMP + 1}")
    a(f"v_lshrrev_b32 v{TMP + 1}, 2, v{vI}")
    for k in range(4):
        a(f"v_cmp_eq_u32 vcc, {k}, v{TMP + 1}")
        a(f"v_cndmask_b32 v{MK + k}, 0, v{TMP}, vcc")
    a(f"v_and_b32 v{M2}, 1, v{vI}")
    a(f"v_cvt_f32_u32 v{vph}, v{M2}")
    a(f"v_mul_f32 v{vph}, 0.5, v{vph}")
    a(f"v_lshrrev_b32 v{vk0}, 1, v{vI}")
    a(f"v_cvt_f32_u32 v{vk0}, v{vk0}")
    a(f"v_mul_f32 v{vk0}, {fx(1 / 32)}, v{vk0}")
    a(f"v_cvt_f32_u32 v{vgf}, v{vG}")

    def gen_a1(base, fq, ph):
        t = TMP
        a(f"v_fma_f32 v{t}, v{vgf}, v{fq}, {ph}")
        for j in range(1, 5):
            a(f"v_fmamk_f32 v{t + j}, v{fq}, {fx(4.0 * j)}, v{t}")
        for j in range(5):
            a(f"v_cos_f32 v{t + j}, v{t + j}")
        for j in range(5):
            a(f"v_mul_f32 v{t + j}, s{sSC}, v{t + j}")
        for j in range(5):
            a(f"v_cvt_pk_bf16_f32 v{t + j}, v{t + j}, v{t + j}")
        for j in range(5):
            for k in range(4):
                a(f"v_and_b32 v{base + 4 * j + k}, v{MK + k}, v{t + j}")

    def angles(kf, ph):
        t = TMP
        a(f"v_mul_f32 v{t + 8}, v{vgf}, v{kf}")
        a(f"v_fma_f32 v{t}, v{t + 8}, 2.0, v{ph}")
        for k in range(1, 8):
            c = 16 * (k >> 2) + 8 * ((k >> 1) & 1) + (k & 1)
            a(f"v_fmamk_f32 v{t + k}, v{kf}, {fx(float(c))}, v{t}")

    def entry(pre, kind):
        if kind != "x":
            a.label(f"{pre}_{kind}")
        if kind == "w2":
            a(f"s_waitcnt vmcnt({3 + NP})")
            a.label(f"{pre}_w2b")
            srd_ws(a, SRD1, "WA2", WA2_SIZE)
        else:
            mark(a, "gen")
        par["even"] = True

    def leave(pre, kind, n):
        if kind == "w1":
            mark(a, "j1")
            a(f"s_cmp_gt_u32 s{sT}, 108")
            a(f"s_cbranch_scc1 {name}_end")
            if FC.w2_pre == 2:
                row_issue(vq20, FC.fl_l2, REGB)
                st = post(a, SRD3, FB, 1, MK, "s_waitcnt vmcnt(5)")
                a("s_barrier")
                a(st)
                mark(a, "p1")
                n = 1
            a(f"s_waitcnt vmcnt({n})")
            a(f"s_branch {pre}_w2b")
        else:
            if kind == "w2":
                a("s_waitcnt lgkmcnt(0)")
            a(f"s_branch {name}_xend" if kind == "x" else f"s_branch {name}_end")

    def addresses(kind):
        if kind == "x":
            filter_loads(range(FC.c_early, 6))
            filter_addr()
        if kind == "w1":
            w1_loads(range(FC.w_early, 5))
            a(f"v_and_b32 v{vr}, 1, v{vG}")
            a(f"v_lshlrev_b32 v{vr}, 7, v{vr}")
            a(f"v_lshl_add_u32 v{vr}, v{vG}, 10, v{vr}")
            a(f"v_lshl_add_u32 v{vr}, v{vI}, 3, v{vr}")
            a(f"v_xor_b32 v{vr + 1}, 128, v{vr}")
        else:
            a(f"v_and_b32 v{vr}, 4, v{vI}")
            a(f"v_lshlrev_b32 v{vr}, 1, v{vr}")
            a(f"v_xor_b32 v{vr}, v{vr}, v{vI}")
            a(f"v_lshlrev_b32 v{vr + 1}, 2, v{vG}")
            a(f"v_xor_b32 v{vr}, v{vr}, v{vr + 1}")
            a(f"v_lshlrev_b32 v{vr}, 4, v{vr}")
            a(f"v_lshl_add_u32 v{vr}, v{vI}, 8, v{vr}")
            for k in (1, 2, 3):
                a(f"v_xor_b32 v{vr + k}, {16 * k}, v{vr}")
        if kind == "x":
            a(f"v_and_b32 v{vld}, 1, v{vI}")
            a(f"v_lshl_add_u32 v{vo}, v{vG}, 1, v{vld}")
            a(f"v_lshlrev_b32 v{vo}, 14, v{vo}")
            a(f"v_and_b32 v{vld}, 14, v{vI}")
            a(f"v_lshl_add_u32 v{vo}, v{vld}, 3, v{vo}")
            a(f"s_lshl_b32 s{sA}, s{sQ}, 18")
            a(f"s_lshl_b32 s{sB}, s{sT}, 7")
            a(f"s_mov_b32 vcc_lo, 0x55555555")
            a(f"s_mov_b32 vcc_hi, 0x55555555")
        elif kind == "w1":
            a(f"v_lshlrev_b32 v{vo}, 4, v{vL}")
            a(f"s_lshl_b32 s{sA}, s{sQ}, 11")
            a(f"s_mul_i32 s{sB}, s{sFT}, 20480")
        else:
            a(f"v_lshrrev_b32 v{vo}, 1, v{vG}")
            a(f"v_mul_u32_u24 v{vo}, {KB_STR}, v{vo}")
            a(f"v_lshrrev_b32 v{vld}, 2, v{vI}")
            a(f"v_lshl_add_u32 v{vo}, v{vld}, 7, v{vo}")
            a(f"v_and_b32 v{vld}, 3, v{vI}")
            a(f"v_lshl_add_u32 v{vo}, v{vld}, 4, v{vo}")
            a(f"v_and_b32 v{vld}, 1, v{vG}")
            a(f"v_lshl_add_u32 v{vo}, v{vld}, 6, v{vo}")
            a(f"s_lshl_b32 s{sA}, s{sQ}, 10")
            a(f"s_mul_i32 s{sB}, s{sT}, {2 * KB_STR}")
        a(f"s_add_u32 s{sA}, s{sA}, s{sB}")
        a(f"v_add_u32 v{vo}, s{sA}, v{vo}")

    def reads(kind, first):
        if kind == "x":
            if not FC.early[0]:
                sync_start()
            mark(a, "l2")
            a(f"s_waitcnt vmcnt({9 + NP + FC.po[0]})")
        elif kind == "w1":
            w2_setup(vq20, ACCX + 1)
            if not FC.early[1]:
                sync_start()
            if FC.w2_pre == 1:
                row_issue(vq20, FC.fl_l2, REGB)
            mark(a, "l2")
            a(f"s_waitcnt vmcnt({5 * (FC.w2_pre == 1) + (0 if FC.early[1] == 1 else 3) + (NP if FC.w_early == 5 else 0)})")
        a("s_barrier")
        mark(a, "b2" if kind == "w2" else "b1")
        for beta in range(4):
            for j in range(5):
                if kind == "w1":
                    for eh in range(2):
                        a(f"ds_read_b64_tr_b16 {R(frag(beta, j) + 2 * eh, 2)}, v{vr + eh} offset:{4096 * j + 256 * beta}")
                else:
                    a(f"ds_read_b128 {R(frag(beta, j), 4)}, v{vr + beta} offset:{lbase[kind] + 4096 * j}")
        if kind == "w1" and not FC.w2_pre:
            row_issue(vq20, FC.fl_l2, REGB)
        if kind == "x":
            mark_unset(1, vld)
        if kind == "w2" and FC.t_late == 2:
            relayout()

    def relayout():
        z, b = vph, vk0
        a(f"v_bfe_u32 v{z}, v{vI}, 1, 1")
        a(f"v_lshl_add_u32 v{z}, v{vG}, 1, v{z}")
        a(f"v_lshrrev_b32 v{b}, 2, v{vI}")
        a(f"v_xor_b32 v{z}, v{z}, v{b}")
        a(f"v_lshlrev_b32 v{z}, 4, v{z}")
        a(f"v_lshl_add_u32 v{z}, v{b}, 8, v{z}")
        a(f"v_and_b32 v{b}, 1, v{vI}")
        a(f"v_lshl_add_u32 v{z}, v{b}, 3, v{z}")
        a(f"s_lshr_b32 s{sA}, s{sW}, 1")
        a(f"s_xor_b32 s{sB}, s{sA}, s{sW}")
        a(f"s_and_b32 s{sB}, s{sB}, 1")
        a(f"s_lshl4_add_u32 s{sA}, s{sA}, s{sB}")
        a(f"s_lshl_b32 s{sA}, s{sA}, 7")
        a(f"v_add_u32 v{z}, s{sA}, v{z}")
        a(f"v_xor_b32 v{b}, {1024 + 128 + 64}, v{z}")
        for j in range(5):
            for eh in range(2):
                a(f"ds_read_b64_tr_b16 {R(aTR + 4 * j + 2 * eh, 2)}, v{z + eh} offset:{REGB + j * 4096}")

    def dispatch(pre):
        for kind in KINDS[1:]:
            a(f"s_cmp_eq_u32 s{sKD}, {kind[-1]}")
            a(f"s_cbranch_scc1 {pre}_{kind}")

    def stage1(sc, n, extra=None):
        for beta in range(4):
            c = 4 * n + beta
            acc = ACC1 + 4 * (c % 4)
            for j in range(5):
                sc.mfma(acc, A1 + 20 * n + 4 * j, frag(beta, j), None if j == 0 else acc,
                        needs=[("y", c - 4)] if j == 0 and c >= 4 else [])
            rdy = sc.n + 5
            if extra:
                extra(beta, acc, rdy, ("y", c))
            for h in range(2):
                sc.add(f"v_cvt_pk_bf16_f32 v{Y + 2 * c + h}, v{acc + 2 * h}, v{acc + 2 * h + 1}", rdy, ("y", c))

    par = {"even": True}
    QP = "quad_perm:[1,0,3,2] row_mask:0xf bank_mask:0xf"

    def stage2(kind, sc, n, u, mat, acc, needs, fix=None):
        for tl in range(2):
            for kp in range(2):
                d = acc + 4 * tl
                m, y = mat + (tl * 2 + kp) * 4, Y + 8 * n + 4 * kp
                nd = list(needs) + [("y", 4 * n + 2 * kp), ("y", 4 * n + 2 * kp + 1)]
                if kind == "w2":
                    sc.mfma(d, y, m, None if kp == 0 else d, needs=nd)
                else:
                    sc.mfma(d, m, y, None if kp == 0 else d, needs=nd)
        rdy, key = sc.n + 3, ("o", n, u)
        if fix:
            fix(rdy, key)
        for k in range(4):
            sc.add(f"v_cvt_pk_bf16_f32 v{acc + k}, v{acc + 2 * k}, v{acc + 2 * k + 1}", rdy, key)
        if kind == "x":
            for ph in range(2):
                lo = par["even"]
                for k in range(2):
                    if lo:
                        sc.add(f"v_cndmask_b32_dpp v{acc + 4 + k}, v{acc + 2 + k}, v{acc + k}, vcc {QP}", rdy, key)
                    else:
                        sc.add(f"v_cndmask_b32_dpp v{acc + 6 + k}, v{acc + k}, v{acc + 2 + k}, vcc {QP}", rdy, key)
                if ph == 0:
                    sc.add("s_not_b64 vcc, vcc", rdy, key)
                    par["even"] = not lo

            def st():
                a(f"s_mov_b32 s{sOP}, {(16 * n + 8 * u) * XP_STR}")
                a(f"buffer_store_dwordx4 {V(acc + 4, 4)}, v{vo}, s[{SRD1}:{SRD1 + 3}], s{sOP} offen{FC.fs[0]}")
            sc.add(st, rdy, key)
        elif kind == "w1":
            def st():
                a(f"s_mov_b32 s{sOP}, {(2 * n + u) * 1024}")
                a(f"buffer_store_dwordx4 {V(acc, 4)}, v{vo}, s[{SRD1}:{SRD1 + 3}], s{sOP} offen{FC.fs[2]}")
            sc.add(st, rdy, key)
        else:
            sc.add(f"v_permlane16_swap_b32 v{acc}, v{acc + 2}", rdy, key)
            sc.add(f"v_permlane16_swap_b32 v{acc + 1}, v{acc + 3}", rdy, key)
            sc.add(f"buffer_store_dwordx4 {V(acc, 4)}, v{vo}, s[{SRD1}:{SRD1 + 3}], 0 offen offset:{1024 * n + 512 * u}{FC.fs[3]}",
                   rdy, key)

    a(f"s_cmp_eq_u32 s{sW}, 3")
    a(f"s_cbranch_scc1 {name}_sp")

    a(f"s_mul_i32 s{sQ}, s{sW}, 3")
    a(f"s_add_u32 s{sQ}, s{sQ}, 1")
    a(f"v_mul_f32 v{vph}, 0.5, v{vph}")
    a(f"v_cvt_f32_u32 v{vq20}, s{sQ}")
    a(f"v_fmamk_f32 v{vk0}, v{vq20}, {fx(1 / 640)}, v{vk0}")
    a(f"v_mul_f32 v{vq20}, {fx(1 / 20)}, v{vq20}")
    a(f"v_mul_u32_u24 v{M2}, 0x8000, v{M2}")
    a(f"v_lshl_or_b32 v{M2}, v{M2}, 16, v{M2}")
    a(f"v_xor_b32 v{M2N}, {SIGN2:#x}, v{M2}")
    a(f"v_and_b32 v{M1}, 1, v{vG}")
    a(f"v_mul_u32_u24 v{M1}, 0x8000, v{M1}")
    a(f"v_lshl_or_b32 v{M1}, v{M1}, 16, v{M1}")
    for n in range(3):
        if n:
            a(f"v_add_f32 v{vk0}, {fx(1 / 640)}, v{vk0}")
            a(f"v_add_f32 v{vq20}, {fx(1 / 20)}, v{vq20}")
        gen_a1(A1 + 20 * n, vq20, f"v{vph}")
        angles(vk0, vph)
        for k in range(8):
            a(f"v_sin_f32 v{TMP + 8 + k}, v{TMP + k}")
            a(f"v_cos_f32 v{TMP + k}, v{TMP + k}")
        b = A2 + 16 * n
        for k in range(8):
            a(f"v_cvt_pk_bf16_f32 v{b + k}, v{TMP + k}, v{TMP + 8 + k}")
            if k & 1:
                a(f"v_cvt_pk_bf16_f32 v{b + 8 + k}, -v{TMP + 8 + k}, v{TMP + k}")
        for k in range(8):
            a(f"v_xor_b32 v{b + 8 + k}, v{M1}, v{b + (8 if k & 1 else 0) + k}")
    dispatch(f"{name}_t")
    for kind in KINDS:
        entry(f"{name}_t", kind)
        addresses(kind)
        reads(kind, True)
        sc = Sched(a)
        dm = [256 + 16 * n if kind == "w1" else A1 + 20 * n for n in range(3)]

        def keep(beta, acc, rdy, key, n):
            for k in range(4 * beta, 4 * beta + 4):
                sc.add(f"v_xor_b32 v{MK + (k & 3)}, v{M2N if k & 1 else M2}, v{A2 + 16 * n + k}", -1, ("d", n))
            for k in range(4 * beta, 4 * beta + 4):
                sc.add(f"v_accvgpr_write_b32 {R(dm[n] + k)}, v{MK + (k & 3)}", -1, ("d", n))

        for n in range(3):
            if kind == "w1":
                stage1(sc, n, lambda *x: keep(*x, n))
                continue
            stage1(sc, n)
            for k in range(16):
                sc.add(f"v_xor_b32 v{A1 + 20 * n + k}, v{M2N if k & 1 else M2}, v{A2 + 16 * n + k}", sc.n, ("d", n))
            if kind == "w2" and FC.w2_pre != 2 and n == FC.p1_at:
                st = post(a, SRD3, FB, 1, MK, "s_waitcnt vmcnt(0)")
                a(f"s_lshl_b32 s{sA}, s{sKD}, 19")
                a(f"s_and_b32 s{sA}, s{sA}, {1 << 20}")
                a(f"v_add_u32 v{MK + 2}, s{sA}, v{MK + 2}")
                a("s_barrier")
                a(st)
                mark(a, "p1")
                if FC.t_late == 1:
                    relayout()
        bufs = [ACCX, ACC1, ACC1 + 8]
        hist = [[], [("y", 8), ("y", 9)], [("y", 10), ("y", 11)]]
        for k in range(6):
            n, u = divmod(k, 2)
            needs = hist[k] if k < 3 else [("o",) + divmod(k - 3, 2)]
            if u:
                needs = needs + [("d", n)]
            stage2(kind, sc, n, u, dm[n] if u else A2 + 16 * n, bufs[k % 3], needs)
        sc.flush()
        if kind == "x":
            a(f"s_waitcnt vmcnt({6 + NX + FC.po[1]})")
        leave(f"{name}_t", kind, 6)

    a.label(f"{name}_sp")
    a(f"s_mov_b32 s{sQ}, 0")
    gen_a1(A1, vph, "0")
    a(f"v_mul_f32 v{vph}, 0.5, v{vph}")
    kf, ph = vq20, M1
    for tau in range(4):
        if tau == 0:
            a(f"v_cmp_eq_u32 vcc, 0, v{vI}")
            a(f"v_mov_b32 v{kf}, 0.5")
            a(f"v_cndmask_b32 v{kf}, v{vk0}, v{kf}, vcc")
            a(f"v_cmp_gt_u32 vcc, 2, v{vI}")
            a(f"v_mov_b32 v{ph}, {fx(0.125)}")
            a(f"v_cndmask_b32 v{ph}, v{vph}, v{ph}, vcc")
        else:
            a(f"v_add_f32 v{kf}, {fx(tau / 4 + (10 / 640 if tau >= 2 else 0))}, v{vk0}")
            a(f"v_mul_f32 v{ph}, {'-1.0' if tau >= 2 else '1.0'}, v{vph}")
        angles(kf, ph)
        for k in range(8):
            a(f"v_cos_f32 v{TMP + k}, v{TMP + k}")
        for k in range(8):
            d = A2 + 8 * tau + k
            a(f"v_cvt_pk_bf16_f32 v{d}, v{TMP + k}, 0" if tau < 2 else f"v_cvt_pk_bf16_f32 v{d}, 0, v{TMP + k}")
    dispatch(f"{name}_s")
    X0 = A2 + 32
    vs, vz, vb, GR, SM, T = X0, X0 + 1, X0 + 2, X0 + 4, X0 + 8, X0 + 12
    TR = A1 + 20
    DIAG = (4, 6, 30, 70)
    for kind in KINDS:
        entry(f"{name}_s", kind)
        addresses(kind)
        if kind == "x":
            srd_ws(a, SRD2, "SS0", SS_SIZE)
            a(f"s_lshr_b32 s{sA}, s{sT}, 4")
            a(f"s_lshl_b32 s{sA}, s{sA}, 10")
            a(f"s_and_b32 s{sB}, s{sT}, 7")
            a(f"s_lshl_b32 s{sB}, s{sB}, 7")
            a(f"s_add_u32 s{sA}, s{sA}, s{sB}")
            a(f"s_and_b32 s{sB}, s{sT}, 8")
            a(f"s_add_u32 s{sA}, s{sA}, s{sB}")
            a(f"v_lshrrev_b32 v{vs}, 1, v{vI}")
            a(f"v_lshlrev_b32 v{vs}, 4, v{vs}")
            a(f"v_lshl_add_u32 v{vs}, v{M2}, 2, v{vs}")
            a(f"v_lshl_add_u32 v{vs}, v{vG}, 20, v{vs}")
            a(f"v_add_u32 v{vs}, s{sA}, v{vs}")
            for r in range(4):
                m = 0x1000010000100001 << r
                a(f"s_mov_b32 s{DIAG[r]}, {m & 0xffffffff:#x}")
                a(f"s_mov_b32 s{DIAG[r] + 1}, {m >> 32:#x}")
        if kind == "w1":
            a(f"s_mov_b64 s[{sM0}:{sM1}], 0xffff")
        if kind == "w2" and not FC.t_late:
            srd_ws(a, SRD2, "W2T", W2T_SIZE)
            a(f"v_bfe_u32 v{vz}, v{vI}, 1, 1")
            a(f"v_lshl_add_u32 v{vz}, v{vG}, 1, v{vz}")
            a(f"v_lshrrev_b32 v{vb}, 2, v{vI}")
            a(f"v_xor_b32 v{vz}, v{vz}, v{vb}")
            a(f"v_lshlrev_b32 v{vz}, 4, v{vz}")
            a(f"v_lshl_add_u32 v{vz}, v{vb}, 8, v{vz}")
            a(f"v_lshl_add_u32 v{vz}, v{M2}, 3, v{vz}")
            a(f"v_xor_b32 v{vb}, {1024 + 64}, v{vz}")
            a(f"s_mul_i32 s{sA}, s{sT}, {2 * KB_STR}")
            a(f"v_lshl_add_u32 v{vs}, v{vL}, 4, s{sA}")
        reads(kind, False)
        sc = Sched(a)

        def tr_read(n):
            h, x = divmod(n, 10)
            return [f"ds_read_b64_tr_b16 {V(TR + 4 * (n % 10) + 2 * eh, 2)}, v{vz + eh} "
                    f"offset:{REGB + (x >> 1) * 4096 + h * 2048 + 128 * ((x ^ h ^ eh) & 1)}" for eh in range(2)]

        def tr_store(n):
            if n % 4 == 0:
                a(f"s_mov_b32 s{sOQ}, {n * 1024}")
            a(f"buffer_store_dwordx4 {V(TR + 4 * (n % 10), 4)}, v{vs}, s[{SRD2}:{SRD2 + 3}], s{sOQ} offen offset:{(n % 4) * 1024}{FC.fs[4]}")

        if kind == "w2" and not FC.t_late:
            for n in range(10):
                for op in tr_read(n):
                    a(op)

        def sums(beta, acc, rdy, key):
            sc.add(f"v_add_f32 v{SM + beta}, v{acc}, v{acc + 2}", rdy, key)

        stage1(sc, 0, sums if kind == "x" else None)
        if kind == "x":
            for k in range(10):
                sc.mfma(GR, DAT + 4 * k, DAT + 4 * k, None if k == 0 else GR)

        def fix(rdy, key):
            sc.add(f"v_accvgpr_read_b32 v{vb}, {R(aB)}", rdy, key)
            sc.add(f"v_lshlrev_b32 v{vb}, 16, v{vb}", rdy, key)
            sc.add(f"v_cndmask_b32_e64 v{ACCX + 1}, v{ACCX + 1}, v{vb}, s[{sM0}:{sM1}]", rdy, key)

        if kind == "w2" and FC.t_late:
            if FC.t_late == 1:
                relayout()
            a("s_waitcnt vmcnt(0)")
            a("s_barrier")
        elif kind == "w2":
            sc.flush()
            for n in range(10):
                tr_store(n)
                for op in tr_read(n + 10):
                    a(op)
                if n == FC.t_pre - 1 and FC.w2_pre != 2:
                    a(f"s_waitcnt vmcnt({FC.t_pre})")
                    a("s_barrier")
        stage2(kind, sc, 0, 0, A2, ACCX, [], fix if kind == "w1" else None)
        stage2(kind, sc, 0, 1, A2 + 16, ACC1, [("y", 0), ("y", 1)])
        if kind == "w2" and not FC.t_late:
            for n in range(10, 20):
                tr_store(n)
        if kind == "x":
            sc.add(f"v_add_f32 v{SM}, v{SM}, v{SM + 1}")
            sc.add(f"v_add_f32 v{SM + 2}, v{SM + 2}, v{SM + 3}")
            sc.add(f"v_add_f32 v{SM}, v{SM}, v{SM + 2}")
            for op in ("v_permlane32_swap_b32", "v_permlane16_swap_b32"):
                sc.add(f"v_mov_b32 v{SM + 1}, v{SM}")
                sc.add(f"{op} v{SM}, v{SM + 1}")
                sc.add(f"v_add_f32 v{SM}, v{SM}, v{SM + 1}")
            sc.add(f"v_mul_f32 v{SM}, {fx(2.0 ** -FC.xscale)}, v{SM}")
            sc.add(f"v_mul_f32 v{SM}, v{SM}, v{SM}")
            for k in range(10, 20):
                sc.mfma(GR, DAT + 4 * k, DAT + 4 * k, GR)
        sc.flush()
        if kind == "x":
            for r in range(4):
                prev = "0" if r == 0 else f"v{T}"
                a(f"v_cndmask_b32_e64 v{T}, {prev}, v{GR + r}, s[{DIAG[r]}:{DIAG[r] + 1}]")
            for op in ("v_permlane32_swap_b32", "v_permlane16_swap_b32"):
                a(f"v_mov_b32 v{T + 1}, v{T}")
                a(f"{op} v{T}, v{T + 1}")
                a(f"v_add_f32 v{T}, v{T}, v{T + 1}")
            a(f"v_fmamk_f32 v{T}, v{SM}, {fx(-1.0 / (model2.SC * model2.SC * DM))}, v{T}")
            a(f"v_max_f32 v{T}, 0, v{T}")
            a(f"buffer_store_dword v{T}, v{vs}, s[{SRD2}:{SRD2 + 3}], 0 offen sc1")
            a(f"s_waitcnt vmcnt({3 + NX + FC.po[1]})")
        leave(f"{name}_s", kind, 2)

    a.label(f"{name}_xend")
    mark(a, "j1")
    filter_job()
    mark_unset(2, vld)
    a.label(f"{name}_end")
    mark(a, "j2")
    a(f"s_mov_b32 s{sT}, s2")
```

```python
from gen import *
import gen
import f0
import model2
from p0 import Sched, fx
from f0 import READY, POST, HINT, DONE, DONE2, aF
from asmlib import TRANS

GELU_K0 = -2.0 * 0.7978845608028654 * 1.4426950408889634
EPS = 1e-5
SPIN_MAX = 1 << 14
NCOL = 160
TILE = 20480
LDS_RK = 16384
LDS_X = LDS_RED = 0
PX = 0
S_LO, S_X = -97, (-24, 24)
UP = [s - S_LO for s in S_X]
T_X = [2.0 ** (d - 127) for d in UP]
T_H, H_OFF = T_X[0], -2.0 ** -40

SRDQ, SRDF, SRDW, SRDP = 8, 12, SRD4, SRD5
sDC, sRP, sHO, sTB = 16, 17, 18, 19
sRB, sMM, sFL, sCNT, sGA, sGB = 96, 97, 98, 99, 100, 101
sMSK, sCQ = 26, 27
sPK, sEB = 20, 21
vW, vo, vp, vd2, vtc = 10, 11, 15, 14, 5
WR, NW, NP = 256, 8, 11
aPO = WR
aST, aDUM, vdc = 256 + 252, 256 + 253, 256 + 254
NS = 14


class FZ:
    look = 10
    pre_p = (8, 8)
    burst = ((0, 8), (4, 0))
    period = (90, 90)
    stop = ("x2", "x2")
    hint_at = ("x1", "x1")
    po_every = 5
    cap = 12
    row = 70
    srow = 120
    lat = 750
    dbl = (12, 15)
    xc_at = 1
    b_pre = 0
    pure = (2, 1)
    in_b = (5, 3)
    in_e = 5
    g2pk = (1, 1)
    qdel = (1600, 1600)
    qc_rem = 7
    split0 = 1
    ktail = 3
    rd_at = (("b", 1), ("b", 8))
    x3 = (("g", 3), ("g", 6), ("g", 8))
    res_at = ("g", 7)
    ebar = 1
    e_ok = 17
    marks = None
    clk = 0
    halt = 0
    verbose = 0
    map = 2
    post = 'bar2'
    x_nocnt = 0
    x_op = 'buffer-atomic-add-f32'
    wgap = 48
    park = (3, 2)
    gbar = 5
    ft_pf = 1
    p_lead = (14, 14)
    r_q = 2
    qf = (" sc1", " sc1")
    xf = (" sc1", " sc1")
    hf = " sc1"
    d2_at = (30, 30)
    t2_at = (35, 35)
    d3_at = 0
    t_gate = ()
    tch = 0
    tch_at = ("g", 1)
    h_early = (12, 0)
    p_early = 1
    ack_at = 2
    single = 0
    probe_x = None
    probe = None
    virt = 1
    dbg = None
    pof = " sc1"
    shrink = 1
    drop = ("c1a", "c2a", "c1b2", "c2b2", "m1H", "m2H", "m1P", "m2P", "c2ld", "c2x1", "c1rp", "c1rb", "c1ru", "c1rv")


class Marks:
    def __init__(self):
        self.names, self.pend = [], []

    def __call__(self, a, name):
        if FZ.probe and name in FZ.probe[1:]:
            if FZ.probe_x is not None:
                a.raw(f"    s_and_b32 s{sST + 2}, s2, 7")
                a.raw(f"    s_cmp_lg_u32 s{sST + 2}, {FZ.probe_x}")
                a.raw(f"    s_cbranch_scc1 probe_{name}_x")
            a.label(f"probe_{name}", keep=True)
            a.raw(f"    s_memrealtime s[{sST + 2}:{sST + 3}]")
            a.raw("    s_waitcnt lgkmcnt(0)")
            a.raw(f"    s_sub_u32 s{sST + 2}, s{sST + 2}, s{sST}")
            a.raw(f"    s_cmp_lt_u32 s{sST + 2}, {FZ.probe[0] * 100}")
            a.raw(f"    s_cbranch_scc1 probe_{name}")
            a.label(f"probe_{name}_x", keep=True)
        if not Cfg.stamp or (name in FZ.drop if FZ.marks is None else name not in FZ.marks):
            return
        k = len(self.pend)
        assert k < 12, name
        self.pend.append(len(self.names))
        self.names.append(name)
        a(f"{'s_memtime' if FZ.clk else 's_memrealtime'} s[{sST + 2 * k}:{sST + 2 * k + 1}]")

    def fixed(self, a, name):
        if not Cfg.stamp or FZ.marks is not None:
            return
        name = "f" + name
        if name not in self.names:
            self.pend.append(len(self.names))
            self.names.append(name)
        k = self.pend.index(self.names.index(name))
        a(f"s_memrealtime s[{sST + 2 * k}:{sST + 2 * k + 1}]")

    def stash(self, a, tmp):
        if not self.pend:
            return
        a("s_waitcnt lgkmcnt(0)")
        a(f"v_accvgpr_read_b32 v{tmp}, {R(aST)}")
        for k, lane in enumerate(self.pend):
            a(f"v_writelane_b32 v{tmp}, s{sST + 2 * k}, {lane}")
        a(f"v_writelane_b32 v{tmp}, s{sCNT}, {len(self.names)}")
        self.names.append("#" + self.names[self.pend[-1]])
        assert len(self.names) < 63
        a(f"v_accvgpr_write_b32 {R(aST)}, v{tmp}")
        self.pend = []


mk = Marks()


def preg(u, p):
    return WR + (0 if u == NP else 4 * NW + 20 * (u % (NP + 1))) + 4 * p


def kblock(u):
    return 2 * (14 * (u & 1) + (u >> 1))


def decode(a, sT):
    a(f"s_and_b32 s{sA}, s{sT}, 7")
    if FZ.map == 1:
        a(f"s_bfe_u32 s{sRB}, s{sT}, 0x10003")
        a(f"s_lshl1_add_u32 s{sRB}, s{sA}, s{sRB}")
        a(f"s_lshr_b32 s{sMM}, s{sT}, 4")
    else:
        a(f"s_lshr_b32 s{sB}, s{sA}, 1")
        a(f"s_lshl_b32 s{sB}, s{sB}, 2")
        a(f"s_bfe_u32 s{sRB}, s{sT}, {0x20006 if FZ.map == 2 else 0x20003:#x}")
        a(f"s_add_u32 s{sRB}, s{sRB}, s{sB}")
        a(f"s_and_b32 s{sA}, s{sA}, 1")
        a(f"s_lshl_b32 s{sA}, s{sA}, 3")
        a(f"s_bfe_u32 s{sMM}, s{sT}, {0x30003 if FZ.map == 2 else 0x30005:#x}")
        a(f"s_add_u32 s{sMM}, s{sMM}, s{sA}")
    a(f"s_lshl_b32 s{sFL}, s{sRB}, 7")


def begin(a):
    srd_ws(a, SRDF, "FLAG", FLAG_SIZE)
    srd_ws(a, SRDQ, "H", H_SIZE)
    a(f"s_mov_b32 s{sCNT}, 0")
    for k in range(0 if any(f0.FC.po) else 4):
        a(f"v_accvgpr_write_b32 {R(aPO + k)}, -1")
    if Cfg.stamp:
        a(f"v_accvgpr_write_b32 {R(aST)}, 0")


def pre_setup(a, ph, t0, tt):
    if not ph:
        a(f"s_and_b32 s{sA}, s{sMM}, 3")
        a(f"s_cmp_eq_u32 s{sA}, 3")
        a(f"s_cselect_b32 s{sMSK}, 0x40000000, 0")
        a(f"s_lshr_b32 s{sB}, s{sMM}, 3")
        a(f"s_lshl2_add_u32 s{sDC}, s{sB}, s{sA}")
        a(f"s_mul_i32 s{sTB}, s{sMM}, 7")
        a(f"s_lshr_b32 s{sB}, s{sMM}, 2")
        a(f"s_sub_u32 s{sTB}, s{sTB}, s{sB}")
        a(f"s_mul_i32 s{sPK}, s{sW}, {TILE // 4}")
        a(f"s_mul_i32 s{sEB}, s{sW}, {3 * TILE // 4}")
    a(f"s_mul_i32 s{sE}, s{sW}, {(2 if ph else 7) * TILE // 4}")
    a(f"s_add_u32 m0, s{sE}, {TILE}")
    a(f"v_lshlrev_b32 v{vW}, 4, v{vL}")
    a(f"s_mul_i32 s{sA}, s{sTB}, {TILE}")
    a(f"s_add_u32 s{sA}, s{sA}, {WS['W1F'] - TILE}")
    a(f"s_add_u32 s{SRDW}, s{P_WS}, s{sA}")
    a(f"s_addc_u32 s{SRDW + 1}, s{P_WS + 1}, 0")
    a(f"s_and_b32 s{SRDW + 1}, s{SRDW + 1}, 0xffff")
    a(f"s_mov_b32 s{SRDW + 2}, {8 * TILE}")
    a(f"s_cmp_lg_u32 s{sMSK}, 0")
    a(f"s_cselect_b32 s{SRDW + 2}, {7 * TILE}, s{SRDW + 2}")
    a(f"s_mov_b32 s{SRDW + 3}, 0x20000")
    if not ph and FZ.tch & 1:
        a(f"s_and_b32 s{sA}, s{sRB}, 3")
        a(f"s_lshl_b32 s{sA}, s{sA}, 13")
        a(f"v_lshl_add_u32 v{tt}, v{vL}, 7, s{sA}")
        a(f"buffer_load_dword {R(aDUM)}, v{tt}, s[{SRDW}:{SRDW + 3}], m0 offen offset:3072", tag="touch")
    a(f"v_lshrrev_b32 v{vo}, 1, v{vG}")
    a(f"v_and_b32 v{t0}, 1, v{vG}")
    if not ph:
        a(f"v_mad_u32_u24 v{vp}, v{vo}, 14, v{t0}")
        a(f"v_mul_u32_u24 v{vp}, {KB_STR}, v{vp}")
        a(f"v_lshl_add_u32 v{vp}, v{vI}, 4, v{vp}")
        a(f"s_mul_i32 s{sA}, s{sDC}, 1280")
        a(f"s_mul_i32 s{sB}, s{sW}, {54 * KB_STR}")
        a(f"s_add_u32 s{sA}, s{sA}, s{sB}")
        a(f"v_add_u32 v{vp}, s{sA}, v{vp}")
        if FZ.tch & 2:
            a(f"s_add_u32 s{sA}, s{sA}, {2 * KB_STR}")
            a(f"s_and_b32 s{sB}, s{sRB}, 3")
            a(f"s_and_b32 s{sC}, s{sMM}, 4")
            a(f"s_lshl3_add_u32 s{sB}, s{sB}, s{sC}")
            a(f"s_lshl_b32 s{sB}, s{sB}, 4")
            a(f"v_add_u32 v{vtc}, s{sB}, v{vL}")
            a(f"v_mul_u32_u24 v{tt + 1}, 6554, v{vtc}")
            a(f"v_lshrrev_b32 v{tt + 1}, 16, v{tt + 1}")
            a(f"v_mul_u32_u24 v{tt + 1}, {KB_STR - 1280}, v{tt + 1}")
            a(f"v_lshl_add_u32 v{vtc}, v{vtc}, 7, v{tt + 1}")
            a(f"v_add_u32 v{vtc}, s{sA}, v{vtc}")
    a(f"v_lshlrev_b32 v{vo}, 15, v{vo}")
    a(f"v_lshl_add_u32 v{vo}, v{vI}, 5, v{vo}")
    a(f"v_lshl_add_u32 v{vo}, v{t0}, 4, v{vo}")
    a(f"s_lshl_b32 s{sA}, s{sTB}, 16")
    a(f"s_lshl4_add_u32 s{sA}, s{sFL}, s{sA}")
    a(f"s_lshl_b32 s{sB}, s{sW}, 9")
    a(f"s_add_u32 s{sA}, s{sA}, s{sB}")
    a(f"v_add_u32 v{vo}, s{sA}, v{vo}")
    if ph:
        a(f"s_add_u32 s{SRDP}, s{SRDP}, {WS['W2T'] - WS['WA2']}")
        a(f"s_addc_u32 s{SRDP + 1}, s{SRDP + 1}, 0")
    else:
        a(f"v_add_u32 v{t0}, s{sMSK}, v{vo}")
        srd_ws(a, SRDP, "WA2", 218 * KB_STR)
        a(f"s_add_u32 s{sA}, s{sW}, 1")
        a(f"s_mul_i32 s{sA}, s{sA}, {54 * KB_STR}")
        a(f"s_cmp_eq_u32 s{sW}, 3")
        a(f"s_cselect_b32 s{SRDP + 2}, s{SRDP + 2}, s{sA}")


def rank_put(a, t):
    a(f"s_getreg_b32 s{sB}, {f0.XCC}")
    a(f"s_lshl_b32 s{sB}, s{sB}, 20")
    a(f"s_lshl_b32 s{sA}, s3, 7")
    a(f"s_add_u32 s{sA}, s{sA}, s{sB}")
    a(f"s_add_u32 s{sA}, s{sA}, {DONE}")
    a(f"v_and_b32 v{t + 1}, 7, v{t + 1}")
    a(f"v_lshl_add_u32 v{t + 1}, v{t + 1}, 20, v{t}")
    a(f"v_cmp_gt_u32 vcc, s{sA}, v{t + 1}")
    a(f"s_lshl_b32 s{sB}, s{sW}, 2")
    a(f"v_mov_b32 v{t}, s{sB}")
    a(f"s_bcnt1_i32_b64 s{sA}, vcc")
    a(f"v_mov_b32 v{t + 1}, s{sA}")
    a(f"ds_write_b32 v{t}, v{t + 1} offset:{LDS_RK}")
    a(f"v_mov_b32 v{t}, 0")
    a("s_waitcnt lgkmcnt(0)")


def rank_get(a, t):
    a(f"ds_read_b128 {V(t, 4)}, v{t} offset:{LDS_RK}")
    a(f"v_add_u32 v{t}, v{t}, v{t + 1}")
    a(f"v_add3_u32 v{t}, v{t}, v{t + 2}, v{t + 3}")
    a(f"v_readfirstlane_b32 s{sGA}, v{t}")
    a(f"s_and_b32 s{sA}, s{sGA}, 31")
    a(f"s_bfe_u32 s{sGA}, s{sGA}, 0x30005")
    a(f"s_lshl3_add_u32 s{sGA}, s{sA}, s{sGA}")
    decode(a, sGA if FZ.virt else sT)


def w2_flags(ph):
    return [f"s_mul_i32 s{sOP}, s{sW}, 27",
            f"v_min_u32 v{vd2}, 27, v{vL}",
            f"v_add_u32 v{vd2}, s{sOP}, v{vd2}",
            f"v_sub_u32 v{vd2}, {f0.W2TOP}, v{vd2}",
            f"v_lshlrev_b32 v{vd2}, 7, v{vd2}",
            f"s_mov_b32 s{sOP}, {DONE2 + 4 * ph}",
            f"buffer_load_dword v{vd2}, v{vd2}, s[{SRDF}:{SRDF + 3}], s{sOP} offen sc1"]


def w2_test(a, nm, ph):
    a(f"v_cmp_eq_u32 vcc, 0, v{vd2}")
    a(f"s_cbranch_vccnz {nm}_w2")
    a.label(f"{nm}_w2ok", keep=True)

    def spin():
        a.label(f"{nm}_w2")
        for x in w2_flags(ph):
            a(x)
        budget(a, f"{nm}_w2out")
        a(f"v_cmp_eq_u32 vcc, 0, v{vd2}")
        a(f"s_cbranch_vccnz {nm}_w2")
        a.label(f"{nm}_w2out")
        a("s_waitcnt vmcnt(0)")
        a(f"s_branch {nm}_w2ok")
    a.tail.append(spin)


def front_wait(a, nm, t, between=None):
    f0.lane_blocks(a, t, t + 1, 0)
    ld = f"buffer_load_dword v{t + 1}, v{t}, s[{SRDF}:{SRDF + 3}], 0 offen sc1"
    if between:
        a(ld)
        between()
        a(f"v_accvgpr_read_b32 v{t + 2}, {R(aF)}")
        a.wait_regs(f"v{t + 1}")
        a(f"s_branch {nm}_fwt")
    else:
        a(f"v_accvgpr_read_b32 v{t + 2}, {R(aF)}")
    a.label(f"{nm}_fw")
    a(ld)
    budget(a, f"{nm}_fwok")
    if between:
        a("s_waitcnt vmcnt(0)")
        a.label(f"{nm}_fwt")
    a(f"v_cmp_eq_u32 vcc, v{t + 2}, v{t + 1}")
    if FZ.shrink:
        a(f"s_cbranch_vccz {nm}_fwok")
        a("s_mov_b64 exec, vcc")
        a(f"s_branch {nm}_fw")
    else:
        a(f"s_cbranch_vccnz {nm}_fw")
    a.label(f"{nm}_fwok")
    if FZ.shrink:
        a("s_mov_b64 exec, -1")
    if not between:
        a("s_waitcnt vmcnt(0)")


def pre_ops(ph, t0, nm):
    po, ops = [], []
    for k in range(0 if ph or any(f0.FC.po) else 7):
        po.append([f"s_mov_b32 s{sOQ}, {k * 2 * H_STR}",
                   f"buffer_store_dwordx4 {R(aPO, 4)}, v{t0 if k == 6 else vo}, s[{SRDQ}:{SRDQ + 3}], s{sOQ} offen{FZ.pof}"])
    n = 10 if ph else 35
    for k in range(n):
        g = [f"buffer_load_dwordx4 v{vW}, s[{SRDW}:{SRDW + 3}], m0 offen offset:{(k & 3) * 1024} lds"]
        if k & 3 == 3:
            g.append("s_add_u32 m0, m0, 4096")
        ops.append(g)
    for u in range(FZ.pre_p[ph]):
        for p in range(5):
            g = [f"buffer_load_dwordx4 {R(preg(u, p), 4)}, v{vp}, s[{SRDP}:{SRDP + 3}], s{sOP} offen offset:{p * 256}"]
            ops.append(([f"s_mov_b32 s{sOP}, {kblock(u) * KB_STR}"] if p == 0 else []) + g)
    if not ph:
        k = nm[0] == "n"
        if FZ.tch & 2:
            ops.insert(FZ.t2_at[k], [lambda a: a(
                f"buffer_load_dword {R(aDUM)}, v{vtc}, s[{SRDP}:{SRDP + 3}], 0 offen", tag="touch")])
        ops[FZ.t2_at[k]].insert(0, lambda a: w2_test(a, nm, 0))
        ops.insert(FZ.d2_at[k], w2_flags(0))
    elif f0.FC.t_late:
        ops[n].insert(0, lambda a: w2_test(a, nm, 1))
        ops.insert(FZ.d3_at, w2_flags(1))
    out = []
    for k, op in enumerate(ops):
        out.append(op)
        if k % FZ.po_every == FZ.po_every - 1 and po:
            out.append(po.pop(0))
    assert not po
    return out


class Paced:
    def __init__(self, a, ops, period):
        self.a, self.ops, self.period = a, ops, period
        self.on = False
        self.t = 0

    def burst(self, n):
        for _ in range(min(n, len(self.ops))):
            for x in self.ops.pop(0):
                x(self.a) if callable(x) else self.a(x)

    def __call__(self, text, tag=None):
        self.a(text, tag)
        if self.on:
            op = text.split()[0]
            self.t += 16 if op.startswith("v_mfma") else 8 if op in TRANS else 4
            if self.t >= self.period:
                self.t -= self.period
                self.burst(1)

    def __getattr__(self, n):
        return getattr(self.a, n)


def budget(a, out):
    a(f"s_add_u32 s{sCNT}, s{sCNT}, 1")
    a(f"s_cmp_ge_u32 s{sCNT}, {SPIN_MAX}")
    a(f"s_cbranch_scc1 {out}")


def col_phase(a0, ph):
    vx, vw, vl0, vt0, vh = 4, 5, 6, 12, 13
    raw, ss, wraw = 16, 32, 40
    M1, M2 = 56, 88
    T1, T2 = 120, 136
    ACC, FO, TMP, WU0 = 152, 184, 200, 232
    vmI, fi, fg, fa, fb = 176, 177, 178, 179, 180
    SL = ACC
    FGR = [TMP + 4 * k for k in range(8)] + [ss, ss + 4, 248, 252]
    WU = (WU0, T1)
    nm = f"c{ph + 1}"
    a = Paced(a0, pre_ops(ph, vt0, nm), FZ.period[ph])

    def point(name):
        mk(a0, nm + name)
        if name == FZ.hint_at[ph]:
            a0(f"buffer_store_dword v{vh}, v{vh}, s[{SRDF}:{SRDF + 3}], 0 offen sc1")
        if name == FZ.stop[ph]:
            a.on = False

    a(f"s_mul_i32 s{sB}, s{sW}, 3072")
    a(f"v_lshlrev_b32 v{vl0}, 4, v0")
    a(f"v_add_u32 v{vx}, s{sB}, v{vl0}")
    if not ph:
        a(f"s_lshl_b32 s{sB}, s{sW}, 10")
        a(f"v_add_u32 v{vw}, s{sB}, v{vl0}")
    a(f"s_lshl_b32 s{sF}, s{sT}, 14")

    def data_loads(e):
        if ph:
            for k in range(4):
                e(f"buffer_load_dwordx4 {V(raw + 4 * k, 4)}, v{vx}, s[{SRD0}:{SRD0 + 3}], s{sF} offen offset:{k * 1024} sc1")
            for k in range(4):
                e(f"buffer_load_dwordx3 {V(SL + 4 * k, 3)}, v{vx}, s[{SRD1}:{SRD1 + 3}], 0 offen offset:{k * 1024} sc1")
        else:
            for t in range(2):
                e(f"buffer_load_dwordx4 {V(ss + 4 * t, 4)}, v{vw}, s[{SRD1}:{SRD1 + 3}], 0 offen offset:{t * 1024} sc1")
            for k in range(4):
                e(f"buffer_load_dwordx4 {V(raw + 4 * k, 4)}, v{vx}, s[{SRD0}:{SRD0 + 3}], s{sF} offen offset:{k * 1024} sc1")

    def filter_loads():
        for k in range(4):
            a(f"buffer_load_dwordx4 {V(wraw + 4 * k, 4)}, v{vx}, s[{SRD2}:{SRD2 + 3}], s{sF} offen offset:{k * 1024} sc1")

    def ack(n):
        if not ph and n == FZ.ack_at:
            st = f0.post(a0, SRDF, 0, 1, ACC, "s_waitcnt vmcnt(0)", True)
            a0("s_barrier")
            a0(st)
            point("ak")

    def pos(base, k, c):
        return base + (k >> 1) * 4 + (k & 1) * 2 + c

    srd_ws(a, SRD2, "WC", WC_SIZE)
    if ph:
        filter_loads()
        point("ld")
    else:
        srd_ws(a, SRD0, "XP0", XP_SIZE)
        srd_ws(a, SRD1, "SS0", SS_SIZE)
    if ph:
        pre_setup(a, ph, vt0, TMP + 8)
    a(f"s_lshl_b32 s{sA}, s3, 7")
    a(f"s_add_u32 s{sA}, s{sA}, {HINT[ph]}")
    a(f"v_lshl_add_u32 v{vh}, v0, 20, s{sA}")
    if ph:
        a("s_barrier")
        a.burst(FZ.burst[ph][0])
    ack(0)
    for kk in (1, 2, 3):
        a(f"v_xor_b32 v{vl0 + kk}, {kk * 1024}, v{vl0}")
    a(f"v_and_b32 v{vmI}, 1, v{vI}")
    a(f"v_mul_u32_u24 v{vmI}, 0x8000, v{vmI}")
    a(f"v_lshl_or_b32 v{vmI}, v{vmI}, 16, v{vmI}")
    a(f"v_cvt_f32_u32 v{fi}, v{vI}")
    a(f"v_lshlrev_b32 v{fg}, 2, v{vG}")
    a(f"v_cvt_f32_u32 v{fg}, v{fg}")

    def m1(qb, t, var):
        return M1 + ((qb * 2 + t) * 2 + var) * 4

    def m2(kk, var):
        return M2 + (kk * 2 + var) * 4

    a(f"v_mul_f32 v{fa}, {fx(1 / 32)}, v{fi}")
    a(f"v_mul_f32 v{TMP}, v{fg}, v{fa}")
    for jj in range(1, 4):
        a(f"v_fmamk_f32 v{TMP + 3 * jj}, v{fa}, {fx(float(jj))}, v{TMP}")
    for jj in range(4):
        t = TMP + 3 * jj
        a(f"v_cos_f32 v{t + 1}, v{t}")
        a(f"v_sin_f32 v{t + 2}, v{t}")
    for jj in range(4):
        t = TMP + 3 * jj
        n = "-" if jj & 1 else ""
        m = "" if jj & 1 else "-"
        a(f"v_cvt_pk_bf16_f32 v{m1(0, 0, 0) + jj}, v{t + 1}, v{t + 2}")
        a(f"v_cvt_pk_bf16_f32 v{m1(0, 0, 1) + jj}, -v{t + 2}, v{t + 1}")
        a(f"v_cvt_pk_bf16_f32 v{m1(1, 0, 0) + jj}, {n}v{t + 1}, {n}v{t + 2}")
        a(f"v_cvt_pk_bf16_f32 v{m1(1, 0, 1) + jj}, {m}v{t + 2}, {n}v{t + 1}")
    for qb in range(2):
        for var in range(2):
            for jj in range(4):
                a(f"v_xor_b32 v{m1(qb, 1, var) + jj}, v{vmI}, v{m1(qb, 0, var) + jj}")
    ack(1)

    a(f"s_lshl_b32 s{sK0}, s{sW}, 4")
    a(f"v_cvt_f32_u32 v{fb}, s{sK0}")
    a(f"v_add_f32 v{TMP + 24}, v{fb}, v{fg}")
    a(f"v_add_f32 v{fb}, v{fb}, v{fi}")
    a(f"v_mul_f32 v{TMP + 25}, {fx(1 / 2048)}, v{fi}")
    a(f"v_add_f32 v{TMP + 26}, {fx(16 / 2048)}, v{TMP + 25}")
    for r in range(4):
        a(f"v_add_f32 v{TMP + r}, {fx(float(r))}, v{TMP + 24}")
    for qb in range(2):
        for r in range(4):
            t = TMP + 4 + (qb * 4 + r)
            a(f"v_mul_f32 v{t}, v{TMP + r}, v{TMP + 25 + qb}")
            a(f"v_cos_f32 v{T1 + qb * 8 + r}, v{t}")
            a(f"v_sin_f32 v{T1 + qb * 8 + 4 + r}, v{t}")
    ack(2)

    a(f"v_mul_f32 v{fa}, {fx(1 / 64)}, v{fb}")
    a(f"s_xor_b32 s{sK0}, s{sK0}, 16")
    a(f"v_cvt_f32_u32 v{TMP + 24}, s{sK0}")
    a(f"v_add_f32 v{TMP + 24}, v{TMP + 24}, v{fg}")
    for kk in range(2):
        for r in range(4):
            t = TMP + 12 + 3 * r
            if kk == 0:
                a(f"v_mul_f32 v{t}, v{TMP + r}, v{fa}")
            else:
                a(f"v_add_f32 v{t}, {fx(float(r))}, v{TMP + 24}")
                a(f"v_mul_f32 v{t}, v{t}, v{fa}")
            a(f"v_cos_f32 v{t + 1}, v{t}")
            a(f"v_sin_f32 v{t + 2}, v{t}")
        for r in range(4):
            t = TMP + 12 + 3 * r
            a(f"v_cvt_pk_bf16_f32 v{m2(kk, 0) + r}, v{t + 1}, v{t + 2}")
            a(f"v_cvt_pk_bf16_f32 v{m2(kk, 1) + r}, -v{t + 2}, v{t + 1}")
    for kk in range(2):
        for var in range(2):
            for r in range(4):
                a(f"v_xor_b32 v{m2(kk + 2, var) + r}, v{vmI}, v{m2(kk, var) + r}")

    ack(3)
    if not ph:
        point("cs")
        st = f0.post(a0, SRDF, 0, 2, ACC)
        front_wait(a0, nm, TMP)
        point("dr")
        data_loads(a)
        filter_loads()
        rank_put(a, TMP)
        point("rp")
        a("s_barrier")
        point("rb")
        a(st)
        rank_get(a, TMP)
        pre_setup(a, ph, vt0, TMP + 8)
        point("ru")
        a.burst(FZ.burst[ph][1])
        point("rv")
        mk.stash(a0, TMP)
        a.on = True
    else:
        point("cs")
        if FZ.post:
            a(f"v_lshlrev_b32 v{TMP}, 7, v0")
            a(f"v_add_u32 v{TMP}, {POST}, v{TMP}")
            a0.label(f"{nm}_poll")
            a0(f"buffer_load_dword v{TMP + 1}, v{TMP}, s[{SRDF}:{SRDF + 3}], 0 offen sc1")
            budget(a0, f"{nm}_seen")
            a0(f"v_cmp_eq_u32 vcc, 0, v{TMP + 1}")
            a0(f"s_cbranch_vccnz {nm}_poll")
            a0.label(f"{nm}_seen")
            a0("s_waitcnt vmcnt(0)")
        else:
            a.wait_tag("out")
        point("dr")
        if FZ.halt == 25:
            mk.stash(a0, TMP)
            return 0
        data_loads(a)
        a.burst(FZ.burst[ph][1])
        mk.stash(a0, TMP)

    a(f"v_mul_f32 v{fa}, {fx(1 / 2048)}, v{fb}")
    a(f"v_mul_f32 v{TMP}, v{fg}, v{fa}")
    for k in range(1, 8):
        a(f"v_fmamk_f32 v{TMP + k}, v{fa}, {fx(float(16 * (k >> 2) + (k & 3)))}, v{TMP}")
    for k in range(8):
        u, r = divmod(k, 4)
        a(f"v_cos_f32 v{T2 + u * 8 + r}, v{TMP + k}")
        a(f"v_sin_f32 v{T2 + u * 8 + 4 + r}, v{TMP + k}")

    a0(f"s_mov_b32 s{sK1}, 0xffff0000")
    a0(f"s_cmp_eq_u32 s{sT}, 0")
    a0(f"s_cselect_b32 s{sK2}, 0, s{sK1}")
    a0(f"s_mov_b32 s{sK0}, {fx(-1 / 2048)}")
    a0(f"s_cselect_b32 s{sK3}, 0, s{sK0}")
    a(f"s_mov_b32 s{sA}, {fx(1 / DM)}")
    a(f"s_mov_b32 s{sB}, {fx(1 / 2048)}")
    a(f"s_mov_b32 s{sC}, {UP[ph] * 0x800080:#x}")
    a(f"v_mov_b32 v{fa}, {fx(1e-5)}")
    point("k")
    if ph:
        def test(e):
            e(f"v_max3_f32 v{fi}, |v{raw}|, |v{raw + 2}|, |v{raw + 4}|")
            e(f"v_max3_f32 v{fb}, |v{raw + 6}|, |v{raw + 8}|, |v{raw + 10}|")
            e(f"v_max3_f32 v{fi}, v{fi}, |v{raw + 12}|, |v{raw + 14}|")
            e(f"v_max_f32 v{fi}, v{fi}, v{fb}")
            e(f"v_min3_f32 v{fg}, v{SL + 2}, v{SL + 6}, v{SL + 10}")
            e(f"v_min_f32 v{fg}, v{fg}, v{SL + 14}")
            e(f"v_fmamk_f32 v{fg}, v{fi}, {fx(-8 / T_X[0])}, v{fg}")
            e(f"v_cmp_gt_f32 vcc, {fx(7.5)}, v{fg}")

        def var_ops(e):
            for k in range(8):
                e(f"v_fma_f32 v{ss + k}, v{SL + 4 * (k >> 1) + (k & 1)}, s{sA}, v{fa}")

        test(a0)
        var_ops(a0)
        a0(f"s_cbranch_vccnz {nm}_again", tag="nopad")
        a0.label(f"{nm}_ok", keep=True)

        def again():
            a0.label(f"{nm}_again")
            budget(a0, f"{nm}_ok")
            data_loads(a0)
            a0("s_waitcnt vmcnt(0)")
            test(a0)
            var_ops(a0)
            a0(f"s_cbranch_vccnz {nm}_again")
            a0(f"s_branch {nm}_ok")
        a0.tail.append(again)
        a.on = True
    else:
        for k in range(8):
            a(f"v_fma_f32 v{ss + k}, v{ss + k}, s{sA}, v{fa}")
    for k in range(8):
        a(f"v_rsq_f32 v{ss + k}, v{ss + k}")

    def acc(c, b, var):
        return ACC + c * 16 + (b * 2 + var) * 4

    def fo(c, b):
        return FO + c * 8 + b * 4

    def unpack(dst_, base, c, mask):
        ops = []
        for k in range(8):
            ops.append(f"v_lshlrev_b32 v{dst_ + 2 * k}, 16, v{pos(base, k, c)}")
            ops.append(f"v_and_b32 v{dst_ + 2 * k + 1}, s{mask}, v{pos(base, k, c)}")
        return ops

    def unpack_w(c):
        ops = []
        for k in range(8):
            u, r = divmod(k, 4)
            ops.append(f"v_lshlrev_b32 v{WU[c] + u * 8 + r}, 16, v{pos(wraw, k, c)}")
            ops.append(f"v_and_b32 v{WU[c] + u * 8 + 4 + r}, s{sK1}, v{pos(wraw, k, c)}")
        return ops

    def scale(c):
        t = TMP + 16 * c
        for k in range(8):
            h = k & 1
            a(f"v_pk_mul_f32 {V(t + 2 * k, 2)}, {V(t + 2 * k, 2)}, {V(ss + k - h, 2)} op_sel:[0,{h}] op_sel_hi:[1,{h}]")
        for k in range(8):
            a(f"v_cvt_pk_bf16_f32 v{fo(c, 0) + k}, v{t + 2 * k}, v{t + 2 * k + 1}")

    sc = Sched(a)

    def stage_a(c):
        for t in range(2):
            for qb in range(2):
                for var in range(2):
                    sc.mfma(acc(c, qb, var), fo(c, t), m1(qb, t, var), None if t == 0 else acc(c, qb, var))
        sc.flush()

    for op in unpack(TMP, raw, 0, sK2):
        a(op)
    scale(0)
    point("s0")
    for op in unpack(TMP + 16, raw, 1, sK1):
        sc.add(op)
    stage_a(0)
    scale(1)
    for op in unpack_w(0):
        sc.add(op)
    stage_a(1)
    point("a")

    def mm(c, b, var, f, kk, data_is_a):
        cc = None if kk == 0 else acc(c, b, var)
        if data_is_a:
            sc.mfma(acc(c, b, var), f, m2(kk, var), cc)
        else:
            sc.mfma(acc(c, b, var), m2(kk, var), f, cc)

    def exchange(n, data_is_a, cm, fill_own, fill_rest):
        for c in range(2):
            for b in range(2):
                cm(c, b)
                if n == 2 and c == b == 0:
                    a("s_barrier")
                a(f"ds_write_b128 v{vl0}, {V(fo(c, b), 4)} offset:{(c * 2 + b) * 4096}")
        a("s_waitcnt lgkmcnt(0)")
        a("s_barrier")
        point(f"b{n}")
        for c in range(2):
            for kk in (1, 2, 3):
                for b in range(2):
                    f = FGR[(c * 3 + kk - 1) * 2 + b]
                    a(f"ds_read_b128 {R(f, 4)}, v{vl0 + kk} offset:{(c * 2 + b) * 4096}")
        for op in fill_own:
            sc.add(op)
        for c in range(2):
            for b in range(2):
                for var in range(2):
                    mm(c, b, var, fo(c, b), 0, data_is_a)
        for op in fill_rest:
            sc.add(op)
        for c in range(2):
            for kk in (1, 2, 3):
                for b in range(2):
                    for var in range(2):
                        mm(c, b, var, FGR[(c * 3 + kk - 1) * 2 + b], kk, data_is_a)
        sc.flush()
        point(f"x{n}")

    def cm1(c, b):
        cmul_pack(a, fo(c, b), acc(c, b, 0), acc(c, b, 1), T1 + b * 8, T1 + b * 8 + 4, TMP + 8 * (2 * c + b))

    def cm2(c, b):
        cmul_pack(a, fo(c, b), acc(c, b, 0), acc(c, b, 1), WU[c] + b * 8, WU[c] + b * 8 + 4, TMP + 8 * (2 * c + b),
                  conj_w=True)

    exchange(1, False, cm1, unpack_w(1), [])
    exchange(2, True, cm2, unpack(WU[0], raw, 0, sK1), unpack(WU[1], raw, 1, sK1))
    for c in range(2):
        for u in range(2):
            cmul_pack(a, fo(c, u), acc(c, u, 0), acc(c, u, 1), T2 + u * 8, T2 + u * 8 + 4, TMP + 8 * (2 * c + u))
    while any(not callable(x) and (" lds" in x or "store" in x) for g in a.ops for x in g):
        a.burst(1)
    a.on = False
    for t in range(2):
        for c in range(2):
            for u in range(2):
                for var in range(2):
                    sc.mfma(acc(c, t, var), m1(t, u, var), fo(c, u), None if u == 0 else acc(c, t, var))
        rdy = sc.n + 2
        for rh in range(2):
            for c in range(2):
                for rl in range(2):
                    k = 4 * t + 2 * rh + rl
                    w = WU[c] + 2 * k
                    sc.add(f"v_fma_f32 v{w}, v{acc(c, t, 0) + 2 * rh + rl}, s{sB}, v{w}", rdy)
                    sc.add(f"v_fma_f32 v{w + 1}, v{acc(c, t, 1) + 2 * rh + rl}, s{sK0 if c else sK3}, v{w + 1}", rdy)
            for c in range(2):
                for rl in range(2):
                    k = 4 * t + 2 * rh + rl
                    w = WU[c] + 2 * k
                    sc.add(f"v_cvt_pk_bf16_f32 v{pos(raw, k, c)}, v{w}, v{w + 1}", rdy)
            k = 2 * t + rh
            for j in range(4):
                sc.add(f"v_add_u32 v{raw + 4 * k + j}, s{sC}, v{raw + 4 * k + j}", rdy)
            sc.add(f"buffer_store_dwordx4 {V(raw + 4 * k, 4)}, v{vx}, s[{SRD0}:{SRD0 + 3}], s{sF} offen offset:{k * 1024} sc1", rdy)
    sc.flush()
    point("st")
    n = len(a.ops)
    print(f"{nm}: {n} requests after the stores", file=sys.stderr)
    a.burst(n)
    mk.stash(a0, TMP)
    return n


def idle_phase(a, ph):
    nm = f"n{ph + 1}"
    vt0, vh = 12, 13
    if not ph:
        srd_ws(a, SRD0, "XP0", XP_SIZE)
    if FZ.ft_pf >> (1 - ph) & 1:
        srd_table(a, SRD1, "ft2")
        a(f"s_and_b32 s{sA}, s{sRB}, 3")
        a(f"s_and_b32 s{sB}, s{sMM}, 7")
        a(f"s_lshl3_add_u32 s{sA}, s{sA}, s{sB}")
        a(f"s_sub_u32 s{sA}, 31, s{sA}")
        a(f"s_mul_i32 s{sA}, s{sA}, {3 << 15}")
        a(f"v_lshl_add_u32 v{vh}, v0, 7, s{sA}")
        for k in range(3):
            a(f"s_mov_b32 s{sOP}, {k << 15}")
            a.raw(f"    buffer_load_dword {R(aDUM)}, v{vh}, s[{SRD1}:{SRD1 + 3}], s{sOP} offen")
    if ph:
        pre_setup(a, ph, vt0, 28)
    else:
        sts = []

        def ack():
            st = f0.post(a, SRDF, 0, 1, 20, f"s_waitcnt vmcnt({FZ.p_early})", True)
            a("s_barrier")
            a(st)
            mk(a, nm + "ak")
            sts.append(f0.post(a, SRDF, 0, 2, 24))
        if not FZ.p_early:
            ack()
        front_wait(a, nm, 16, ack if FZ.p_early else None)
        st = sts[0]
        mk(a, nm + "dr")
        rank_put(a, 16)
    a("s_barrier")
    if not ph:
        a(st)
        rank_get(a, 16)
        pre_setup(a, ph, vt0, 28)
    ops = pre_ops(ph, vt0, nm)
    he = FZ.h_early[ph]
    ld = f"buffer_load_dword v{vt0}, v{vh}, s[{SRDF}:{SRDF + 3}], s{sOQ} offen sc1"
    if he:
        ops.insert(len(ops) - he, [f"s_mul_i32 s{sOQ}, s{sW}, {40 * 128}",
                                   f"s_add_u32 s{sOQ}, s{sOQ}, {HINT[ph]}",
                                   f"v_min_u32 v{vh}, 39, v{vL}",
                                   f"v_lshlrev_b32 v{vh}, 7, v{vh}", ld])
    for g in ops:
        for x in g:
            x(a) if callable(x) else a(x)
    mk(a, nm + "is")
    if he:
        a(f"v_cmp_eq_u32 vcc, 0, v{vt0}")
        a(f"s_cbranch_vccz {nm}_ok")
    else:
        a(f"v_mul_u32_u24 v{vh}, 5, v{vL}")
        a(f"v_lshrrev_b32 v{vh}, 1, v{vh}")
        a(f"v_lshlrev_b32 v{vh}, 7, v{vh}")
        a(f"s_mov_b32 s{sOQ}, {HINT[ph]}")
        a("s_waitcnt vmcnt(0)")
        mk(a, nm + "dn")
        mk.stash(a, 16)
        if FZ.halt == 25 and ph:
            return
        a(f"s_cmp_lg_u32 s{sW}, 0")
        a(f"s_cbranch_scc1 {nm}_ok")
    a.label(f"{nm}_spin")
    a(ld)
    budget(a, f"{nm}_ok")
    a(f"v_cmp_eq_u32 vcc, 0, v{vt0}")
    a(f"s_cbranch_vccnz {nm}_spin")
    a.label(f"{nm}_ok")
    if he:
        mk(a, nm + "dn")
        mk.stash(a, 16)
    a("s_barrier")


def classify(text):
    o = text.split()[0]
    if o.startswith("v_pk_") or o.startswith("v_dot2"):
        return "p", 4
    if o in TRANS or o.startswith("v_swap") or o.startswith("v_permlane"):
        return "v", 8
    if o.startswith("v_"):
        return "v", 4
    if o.startswith("ds_"):
        return "d", 4
    if o.startswith("buffer_"):
        return "b", 4
    if o.startswith("s_cbranch"):
        return "j", 10
    return "s", 4


class Item:
    def __init__(self, kind, cost, fn, key=None, gate=None, until=None, alt=None):
        self.kind, self.cost, self.fn, self.key, self.gate, self.until, self.alt = kind, cost, fn, key, gate, until, alt


class Slots:
    def __init__(self, a):
        self.a = a
        self.t, self.tM, self.tv, self.tc = 0, -100, -100, -100
        self.done, self.eta = {}, {}
        self.C, self.L, self.M, self.G = [], [], [], []
        self.fly = []
        self.feed = []
        self.pk = True
        self.stall = 0

    def item(self, op, key=None, gate=None, tag=None):
        k, c = classify(op)

        def fn():
            if op.startswith("v_cmp"):
                self.tc = self.t
            self.a(op, tag=tag)
        return Item(k, c, fn, key, gate)

    def mem(self, key, store=False, part=1.0):
        last = self.fly[-1] if self.fly else 0
        self.fly.append(max(self.t + FZ.lat, last + part * (FZ.srow if store else FZ.row)))
        self.eta[key] = self.fly[-1]
        if FZ.verbose:
            print(f"  {self.t:6.0f} issue {key} eta {self.fly[-1]:.0f} fly {self.inflight()}", file=sys.stderr)

    def inflight(self):
        return sum(1 for x in self.fly[-FZ.cap - 4:] if x > self.t)

    def run(self, it):
        if it.kind in "db":
            self.t = max(self.t, self.tv + 12)
        elif it.kind == "p":
            self.t = max(self.t, self.tM + 28)
        elif it.kind == "j":
            self.t = max(self.t, self.tc + 26)
        if it.kind in "vp":
            self.tv = self.t
        it.fn()
        self.t += it.cost
        if it.until is not None and self.eta.get(it.until, 0) > self.t:
            self.stall += self.eta[it.until] - self.t
            if FZ.verbose:
                print(f"  {self.t:6.0f} STALL {it.until} {self.eta[it.until] - self.t:.0f}", file=sys.stderr)
            self.t = self.eta[it.until]
        if it.key is not None:
            self.done[it.key] = self.t

    def ready(self, it):
        if it.kind == "j" and self.t < self.tc + 26:
            return False
        return it.gate is None or it.gate()

    def expand(self):
        while self.G and self.G[0].kind == "p" and not self.pk and self.G[0].alt:
            self.G[:1] = self.G[0].alt

    def heads(self, q, room, small):
        out = []
        for it in q:
            if it.kind == "p" or not self.ready(it) or it.cost > room or small and it.cost > 4:
                break
            if it.kind in "db" and any(x.kind == "v" for x in out) or it.kind == "j" and out:
                break
            out.append(it)
            room -= it.cost
        return out

    def place(self, picks):
        seqs = []
        for q, n in picks:
            seqs.append(q[:n])
            del q[:n]
        rank = lambda s: 0 if any(x.kind in "db" for x in s) else 2 if any(x.kind == "v" for x in s) else 1
        seqs.sort(key=lambda s: (rank(s), any(x.kind == "v" or x.until is not None for x in s)))
        for s in seqs:
            for it in s:
                self.run(it)

    def fill(self, room, streams, small=False):
        picks = []
        for q in streams:
            h = self.heads(q, room, small)
            if h:
                picks.append((q, len(h)))
                room -= sum(x.cost for x in h)
        return picks, room

    def mf(self, d, x, y, c, wait=None, urgent=False):
        self.t = self.tM = max(self.t, self.tM + 16)
        mfma(self.a, d, x, y, c)
        self.t += 8
        for f in self.feed:
            f()
        self.expand()
        W = [wait] if wait else []
        n = next((k for k, it in enumerate(self.G[:5]) if it.kind == "p"), None)
        if n is not None and self.pk:
            pre = self.G[:n + 1]
            cost = sum(x.cost for x in pre[:-1])
            if cost <= 16 and all(self.ready(x) and x.kind in "vps" for x in pre):
                picks, room = self.fill(20 - cost, (W, self.C, self.L, self.M), small=True)
                self.place(picks)
                while self.G and (n > 0 or self.G[0].kind == "p" and self.ready(self.G[0])):
                    self.run(self.G.pop(0))
                    n -= 1
                if self.G and self.G[0].kind in "vs" and self.G[0].until is None and self.ready(self.G[0]):
                    self.run(self.G.pop(0))
                else:
                    self.t += 4
                return
        if not W and self.C and self.C[0].cost >= 8 and self.ready(self.C[0]):
            self.run(self.C.pop(0))
            return
        picks, room = self.fill(8, (W, self.C, self.L, self.M, self.G), small=True)
        must = W or urgent or any(q is self.C for q, _ in picks)
        if room and not must and self.G and self.G[0].cost == 8 and self.ready(self.G[0]):
            self.run(self.G.pop(0))
            return
        self.place(picks)

    def need(self, key):
        while key not in self.done:
            q = next(q for q in (self.C, self.L, self.M, self.G) if any(it.key == key for it in q))
            self.run(q.pop(0))

    def pure(self, key):
        while key not in self.done:
            it = self.G.pop(0)
            self.run(it)
            if it.cost == 8:
                for f in self.feed:
                    f()
                picks, _ = self.fill(8, (self.M, self.L, self.C), small=True)
                self.place(picks)

    def flush(self):
        for q in (self.L, self.M, self.C, self.G):
            while q:
                self.run(q.pop(0))


def mlp_phase(a, final, behind):
    name = f"m{final + 1}"
    vx, vl0, vx2, vck, ve, vfl = 4, 5, 8, 9, 12, 14
    vq = (13, 4, 8, 10)
    X, ACC1, Z, vpl, vmk, CC = 16, 176, 232, 248, 249, 250
    GR, T = Z, Z + 8
    ACC2, EACC = 96, 176
    DIAG = (4, 6, 30, 70)
    sKC, sRS = sK0, sK2
    vo2, vs, vout, vor, vrd, vpk = 200, 201, 202, 203, 204, 205
    vred = (5, 6, 7)
    RES, RU, TMP = 208, 218, 244
    QS = (16, 32, 48, 64, 80, 176)
    QD = len(QS)
    SRDX, SRDH = SRD0, SRD3
    s = Slots(a)
    done = s.done
    act = {}
    log, sst, tested = [], {}, set()

    def fine(*key):
        if FZ.verbose:
            print(f"{s.t:6.0f} {key}", file=sys.stderr)
        if FZ.marks is not None:
            mk(a, name + key[0] + str(key[1]))
        for f in act.pop(key, ()):
            f()

    def at(key, f):
        act.setdefault(tuple(key), []).append(f)

    def note(tag):
        mk(a, name + tag)
        print(f"{name}{tag:4s} t={s.t:6.0f} stall={s.stall:.0f}", file=sys.stderr)

    def qreg(u, q):
        return QS[u % QD] + 4 * q

    def put(q, op, key=None, gate=None):
        q.append(s.item(op, key, gate))

    def vm(q, text, sreg=None, sexp=None, key=None, tag=None, again=True, gate=None, part=1.0, first=" sc1", m0=None):
        if m0 is not None and sst.get("m0") != m0:
            put(q, m0, gate=gate)
            sst["m0"] = m0
        if sreg is not None and sst.get(sreg) != sexp:
            put(q, sexp.replace("@", f"s{sreg}"), gate=gate)
            sst[sreg] = sexp

        def emit():
            a(text.replace("@", f"s{sreg}").replace(" sc1", first), tag=tag)
            log.append((key, text if again else None, sexp))
            s.mem(key, "store" in text, part)
        q.append(Item("b", 4, emit, key, gate))

    def wait_item(key, regs):
        return Item("s", 4, lambda: a.wait_regs(*regs), until=key)

    def lower(regs, thr):
        ops, r = [], [f"|v{x}|" for x in regs]
        while len(r) > 1:
            n = min(3, len(r))
            ops.append(f"{'v_min3_f32' if n == 3 else 'v_min_f32_e64'} v{vck}, " + ", ".join(r[:n]))
            r[:n] = [f"v{vck}"]
        return ops + [f"v_cmp_gt_f32 vcc, {fx(thr)}, v{vck}"]

    def unset(regs):
        ops, r = [], [f"v{x}" for x in regs]
        if len(r) > 2:
            n = len(r) - 1
            ops.append(f"{'v_max3_u32' if n == 3 else 'v_max_u32'} v{vck}, " + ", ".join(r[:n]))
            r[:n] = [f"v{vck}"]
        return ops + [f"v_cmp_u_f32 vcc, {r[0]}, {r[1]}"]

    def verify(keys, regs, test, lab, key):
        for k in keys:
            plan(k)

        def branch():
            idx = [k for k, e in enumerate(log) if e[0] in keys]
            rep = log[idx[0]:]
            assert len(idx) == len(keys) and not tested & {e[0] for e in rep}, lab
            tested.update(keys)
            young = len(log) - 1 - idx[-1]
            a(f"s_cbranch_vccnz {lab}_again", tag="nopad")
            a.label(f"{lab}_ok", keep=True)

            def stub():
                a.label(f"{lab}_again")
                a("s_nop 7")
                budget(a, f"{lab}_out")
                a(f"s_waitcnt vmcnt({max(0, 62 - len(rep))})")
                last = None
                for _, text, sexp in rep:
                    if text is None:
                        a.raw(f"    buffer_load_dword {R(aDUM)}, off, s[{SRDP}:{SRDP + 3}], 0")
                        continue
                    if sexp is not None and sexp != last:
                        a(sexp.replace("@", f"s{sRP}"))
                        last = sexp
                    a.raw("    " + text.replace("@", f"s{sRP}"))
                a(f"s_waitcnt vmcnt({young})")
                for x in test:
                    a(x)
                a(f"s_cbranch_vccnz {lab}_again")
                a.label(f"{lab}_out")
                a(f"s_branch {lab}_ok")
            a.tail.append(stub)
        w = wait_item(keys[-1], [V(r, 4) for r in regs])
        f0 = w.fn
        w.fn = lambda: ([s.need(k) for k in keys], f0())
        w.gate = lambda: all(k in done for k in keys)
        s.C.append(w)
        for x in test:
            put(s.C, x)
        s.C.append(Item("j", 10, branch, key))

    def xr(t, st):
        return X + t * 8 + st * 4

    def acc(ft, st):
        return ACC1 + (ft * 2 + st) * 4

    queue, sched = [], set()

    def x_load(t, h):
        return ("x", t, h), lambda key: vm(
            s.M, f"buffer_load_dwordx4 {V(xr(t, h), 4)}, v{vx2 if h else vx}, s[{SRDX}:{SRDX + 3}], @ offen sc1",
            sOQ, f"s_mov_b32 @, {8 * (19 - t) * XP_STR}", key, first=FZ.xf[final])

    def e_load(j):
        return ("e", j), lambda key: vm(
            s.M, f"buffer_load_dwordx4 v{vl0}, s[{SRD4}:{SRD4 + 3}], m0 offen offset:{(j & 3) * 1024} lds",
            key=key, tag="e", again=False, m0=f"s_add_u32 m0, s{sEB}, {2 * TILE + (j >> 2) * 4096}")

    def k_load(u, p):
        return ("k", u, p), lambda key: vm(
            s.M, f"buffer_load_dwordx4 v{vp}, s[{SRDP}:{SRDP + 3}], @ offen offset:{p * 256} lds",
            sF, f"s_mov_b32 @, {kblock(u) * KB_STR}", key, tag=f"k{u}", again=False,
            m0=f"s_add_u32 m0, s{sPK}, {(u - NP) * TILE + p * 768}")

    def p_load(u, p):
        return ("p", u, p), lambda key: vm(
            s.M, f"buffer_load_dwordx4 {R(preg(u, p), 4)}, v{vp}, s[{SRDP}:{SRDP + 3}], @ offen offset:{p * 256}",
            sF, f"s_mov_b32 @, {kblock(u) * KB_STR}", key)

    def q_load(u, q):
        return ("q", u, q), lambda key: vm(
            s.M, f"buffer_load_dwordx4 {V(qreg(u, q), 4)}, v{vq[q]}, s[{SRDQ}:{SRDQ + 3}], @ offen sc1",
            sOQ, f"s_mov_b32 @, {kblock(u) * H_STR}", key, first=FZ.qf[final])

    def r_load(p):
        srd_ = SRD2 if final else SRDX
        return ("r", p), lambda key: vm(
            s.M, f"buffer_load_dwordx2 {V(RES + 2 * p, 2)}, v{vo2}, s[{srd_}:{srd_ + 3}], @ offen sc1",
            sOP, f"s_mov_b32 @, {p * 4 * XP_STR}", key, part=0.6)

    def push(item, *gates, after=None, chain=None):
        queue.append((item[0], item[1], gates, after, chain))

    def issue(force=False):
        seen = set()
        for k, (key, f, gates, after, chain) in enumerate(queue):
            ok = all(g in done for g in gates) and chain not in seen
            if ok and after and not force:
                ok = done[after[0]] + after[1] <= s.t
            if ok:
                del queue[k]
                f(key)
                sched.add(key)
                return True
            if chain:
                seen.add(chain)
        return False

    def plan(key):
        while key not in sched:
            assert issue(True), key

    def feed_m():
        if not any(it.kind == "b" for it in s.M) and s.inflight() < FZ.cap:
            issue()
    s.feed.append(feed_m)

    KT = FZ.ktail
    units = [[(u, q) for q in range(4)] for u in range(NS - KT)]
    if FZ.split0:
        units[:1] = [units[0][:2], units[0][2:]]
    units += [[(u, q) for u in range(NS - KT, NS)] for q in (1, 2, 3, 0)]
    xorder = list(range(FZ.dbl[0] + 1)) + [19] + list(range(FZ.dbl[0] + 1, 19))
    for t in xorder:
        push(x_load(t, 0))
        push(x_load(t, 1))
    if not final and f0.FC.t_late:
        for j in range(5):
            push((("t", j), lambda key, j=j: vm(
                s.M, f"buffer_store_dwordx4 {R(f0.aTR + 4 * j, 4)}, v{vl0}, s[{SRD4}:{SRD4 + 3}], @ offen offset:{(j & 1) * 2048} sc1",
                sF, f"s_mov_b32 @, {(j >> 1) * 4096}", key, again=False)), *FZ.t_gate)
    if final:
        for j in range(15):
            push(e_load(j), "ebar")
    for u in range(FZ.pre_p[final]):
        for p in range(5):
            done[("p", u, p)] = 0
            sched.add(("p", u, p))
    pushed = set(range(FZ.pre_p[final]))
    parked = set(range(NP, NP + FZ.park[final]))

    def push_p(u):
        if u < NS and u not in pushed:
            pushed.add(u)
            for p in range(5):
                if u in parked:
                    push(k_load(u, p), "xok" if u == NP else "ebar")
                else:
                    push(p_load(u, p), *([("t", 4)] if u == 10 and not final and f0.FC.t_late else []), *(["xok"] if u < NP else [("xfree", 19)] if u == NP else [("qfree", u - NP - 1, 3)]))

    for u, q in [x for un in units for x in un]:
        for k in range(FZ.p_lead[final] + 1):
            push_p(u + k)
        if (u, q) == (NS - KT, FZ.r_q):
            for p in range(5):
                push(r_load(p), "rgo")
        g = ["qset", ("gelu", u >> 1)] + ([] if final else ["ready"])
        if u >= QD:
            g.append(("qfree", u - QD, q))
        elif u < 5:
            g.append(("xfree", 2 * u + (q >> 1)))
        else:
            g.append("edone" if final else ("s5", 1))
        push(q_load(u, q), *g, after=(("gelu", u >> 1), FZ.qdel[final]), chain="q")

    a(f"s_lshl_b32 s{sC}, s{sRB}, 10")
    a(f"s_lshl_b32 s{sA}, s{sW}, 8")
    a(f"s_add_u32 s{sC}, s{sC}, s{sA}")
    a(f"v_lshlrev_b32 v{vx}, 15, v{vG}")
    a(f"v_lshl_add_u32 v{vx}, v{vI}, 4, v{vx}")
    a(f"v_add_u32 v{vx}, s{sC}, v{vx}")
    a(f"v_add_u32 v{vx2}, {XP_STR}, v{vx}")
    a(f"v_lshlrev_b32 v{vl0}, 4, v{vL}")
    a(f"v_add_u32 v{vl0 + 1}, 0x10000, v{vl0}")
    a(f"v_add_u32 v{vl0 + 2}, 0x20000, v{vl0}")
    a(f"s_mov_b64 s[{SRDH}:{SRDH + 1}], s[{SRDQ}:{SRDQ + 1}]")
    a(f"s_mov_b32 s{SRDH + 2}, {H_SIZE}")
    a(f"s_mov_b32 s{SRDH + 3}, 0x20000")
    a(f"v_cmp_eq_u32 vcc, 0, v{vG}")
    a(f"v_mov_b32 v{vmk}, 0xffff0000")
    a(f"v_cndmask_b32 v{vmk}, 0, v{vmk}, vcc")
    for r in range(4):
        m = 0x1000010000100001 << r
        a(f"s_mov_b32 s{DIAG[r]}, {m & 0xffffffff:#x}")
        a(f"s_mov_b32 s{DIAG[r] + 1}, {m >> 32:#x}")
    a(f"s_bfe_u32 s{sA}, s{sMM}, 0x10002")
    a(f"s_lshl_b32 s{sA}, s{sA}, 6")
    a(f"s_add_u32 s{sCQ}, s{sFL}, s{sA}")
    a(f"s_lshl4_add_u32 s{sD}, s{sW}, s{sCQ}")
    a(f"s_mul_i32 s{sA}, s{sW}, {54 * H_STR}")
    a(f"s_add_u32 s{SRDQ + 2}, s{sA}, {54 * H_STR}")
    a(f"s_lshl4_add_u32 s{sA}, s{sD}, s{sA}")
    a(f"v_lshrrev_b32 v{vq[0]}, 1, v{vG}")
    a(f"v_and_b32 v{vck}, 1, v{vG}")
    a(f"v_mad_u32_u24 v{vq[0]}, v{vq[0]}, 14, v{vck}")
    a(f"v_lshlrev_b32 v{vq[0]}, 15, v{vq[0]}")
    a(f"v_lshl_add_u32 v{vq[0]}, v{vI}, 4, v{vq[0]}")
    a(f"v_add_u32 v{vq[0]}, s{sA}, v{vq[0]}")
    a(f"v_xor_b32 v{vq[3]}, 0x300, v{vq[0]}")
    a(f"s_mov_b32 s{sKC}, {fx(H_OFF)}")
    a(f"s_mov_b32 s{sKC + 1}, {fx(H_OFF)}")
    a(f"s_mov_b32 s{sRS}, {fx(2.0 ** (-S_X[1] if final else -UP[0]))}")
    a(f"s_mov_b32 s{sRS + 1}, 0xffff0000")
    if final:
        srd_table(a, SRD4, "ft2")
        a(f"s_mul_i32 s{sB}, s{sMM}, 5")
        a(f"s_lshr_b32 s{sB}, s{sB}, 1")
        a(f"s_mul_i32 s{sA}, s{sB}, {TILE}")
        a(f"s_add_u32 s{SRD4}, s{SRD4}, s{sA}")
        a(f"s_addc_u32 s{SRD4 + 1}, s{SRD4 + 1}, 0")
        a(f"s_sub_u32 s{SRD4}, s{SRD4}, {2 * TILE}")
        a(f"s_subb_u32 s{SRD4 + 1}, s{SRD4 + 1}, 0")
        a(f"s_mov_b32 s{SRD4 + 2}, {5 * TILE}")
        a(f"s_lshl_b32 s{sA}, s{sB}, 16")
        a(f"s_add_u32 s{sA}, s{sA}, s{sC}")
        a(f"v_lshlrev_b32 v{ve}, 14, v{vG}")
        a(f"v_lshl_add_u32 v{ve}, v{vI}, 4, v{ve}")
        a(f"v_add_u32 v{ve}, s{sA}, v{ve}")
        srd_ws(a, SRD2, "X3", XP_SIZE)
        srd(a, SRD1, P_OUT, 0, SEQ * DM * 2)
        a(f"s_lshl_b32 s{sB}, s{sRB}, 13")
        a(f"s_lshl2_add_u32 s{sA}, s{sMM}, s{sW}")
        a(f"s_lshl_b32 s{sA}, s{sA}, 7")
        a(f"s_add_u32 s{sA}, s{sA}, s{sB}")
        a(f"v_lshl_add_u32 v{vpl}, v{vL}, 20, s{sA}")
        a(f"s_bfe_u32 s{sA}, s{sD}, 0x20005")
        a(f"s_lshl3_add_u32 s{sA}, s{sDC}, s{sA}")
        a(f"s_lshl_b32 s{sA}, s{sA}, 7")
        a(f"s_add_u32 s{sA}, s{sA}, s{sB}")
        a(f"v_and_b32 v{vfl}, 1, v{vI}")
        a(f"v_lshl_add_u32 v{vfl}, v{vfl}, 9, s{sA}")
    else:
        srd_ws(a, SRD1, "SS2", SS2_SIZE)
        if f0.FC.t_late:
            srd_ws(a, SRD4, "W2T", 9216)
            a(f"s_sub_u32 s{sA}, {f0.W2TOP}, s3")
            a(f"s_cmp_gt_u32 s{sA}, 108")
            a(f"s_cselect_b32 s{SRD4 + 2}, 0, s{SRD4 + 2}")
            a(f"s_cselect_b32 s{sA}, 0, s{sA}")
            a(f"s_lshr_b32 s{sB}, s{sW}, 1")
            a(f"s_lshl1_add_u32 s{sA}, s{sA}, s{sB}")
            a(f"s_mul_i32 s{sA}, s{sA}, {KB_STR}")
            a(f"s_and_b32 s{sB}, s{sW}, 1")
            a(f"s_lshl_b32 s{sB}, s{sB}, 10")
            a(f"s_add_u32 s{sA}, s{sA}, s{sB}")
            a(f"s_add_u32 s{SRD4}, s{SRD4}, s{sA}")
            a(f"s_addc_u32 s{SRD4 + 1}, s{SRD4 + 1}, 0")
        if FZ.tch & 4:
            srd_ws(a, SRD4, "W2T", 190 * KB_STR)
            a(f"s_and_b32 s{sA}, s{sMM}, 4")
            a(f"s_mul_i32 s{sA}, s{sA}, {7 * KB_STR}")
            a(f"s_and_b32 s{sB}, s{sRB}, 3")
            a(f"s_mul_i32 s{sB}, s{sB}, {2 * KB_STR}")
            a(f"s_add_u32 s{sA}, s{sA}, s{sB}")
            a(f"s_add_u32 s{SRD4}, s{SRD4}, s{sA}")
            a(f"s_addc_u32 s{SRD4 + 1}, s{SRD4 + 1}, 0")

            def touch():
                put(s.C, f"v_min_u32 v{vck}, 9, v{vI}")
                put(s.C, f"v_mul_u32_u24 v{vck}, 112, v{vck}")
                put(s.C, f"v_add_u32 v{vck}, v{vck}, v{vp}")
                for k in range(2):
                    vm(s.C, f"buffer_load_dword {R(aDUM)}, v{vck}, s[{SRD4}:{SRD4 + 3}], @ offen", sE,
                       f"s_mov_b32 @, {8 * k * KB_STR}", tag="touch", again=False)
            at(FZ.tch_at, touch)
        a(f"s_lshl4_add_u32 s{sA}, s{sRB}, s{sMM}")
        a(f"s_lshl_b32 s{sA}, s{sA}, 7")
        a(f"s_add_u32 s{sA}, s{sA}, {READY}")
        a(f"v_lshl_add_u32 v{vpl}, v0, 20, s{sA}")
        a(f"s_lshl2_add_u32 s{sA}, s{sRB}, s{sW}")
        a(f"s_lshl_b32 s{sA}, s{sA}, 9")
        a(f"v_and_b32 v{vfl}, 3, v{vI}")
        a(f"v_lshl_add_u32 v{vfl}, v{vfl}, 7, s{sA}")
    a.raw(f"    s_waitcnt vmcnt({behind})")
    mk(a, name + "go")
    for _ in range(FZ.look):
        issue()
    s.flush()
    a("s_barrier")
    if not final and not any(f0.FC.po):
        vm(s.M, f"buffer_store_dword v{vl0 + 1}, v{vpl}, s[{SRDF}:{SRDF + 3}], 0 offen sc1", again=False, part=0.2)
    mk.stash(a, Z)

    TA, TB, TE = (0, 1, 2, 3), (4, 5, 6), (0, 1, 2)
    groups = [("a", TA, t) for t in range(19)] + [("b", TB, t) for t in range(20)]
    groups.insert(19 + FZ.b_pre, ("a", TA, 19))
    if final:
        groups += [("e", TE, t) for t in range(20)]
    seq = [(kind, ft, t) for kind, tl, t in groups for ft in tl]
    rd_ = {"n": 0, "free": 0}

    def wreg(n):
        return WR + (n % NW) * 4

    def feed_l():
        while rd_["n"] < min(rd_["free"] + NW, len(seq)) and len(s.L) < 2:
            kind, ft, t = seq[rd_["n"]]
            if kind == "e" and "e0" not in done:
                return
            off = (ft + (2 if kind == "e" else 1)) * TILE + (19 - t) * 1024
            put(s.L, f"ds_read_b128 {R(wreg(rd_['n']), 4)}, v{vl0 + (off >> 16)} offset:{off & 0xffff}", ("rd", rd_["n"]))
            rd_["n"] += 1
    s.feed.append(feed_l)

    def rd_need(n):
        while ("rd", n) not in done:
            feed_l()
            if not s.L:
                s.need("e0")
                continue
            s.run(s.L.pop(0))

    def prep_x(ts):
        keys = [("x", t, h) for t in xorder if t in ts for h in range(2)]
        regs = [xr(k[1], k[2]) for k in keys]
        verify(keys, regs, lower(regs, T_X[final]), f"{name}_x{ts[0]}", "xok" if xorder[-1] in ts else None)
        for t in ts:
            ops = [f"v_swap_b32 v{xr(t, 0) + 2}, v{xr(t, 1)}", f"v_swap_b32 v{xr(t, 0) + 3}, v{xr(t, 1) + 1}"]
            if t == 19:
                for st in range(2):
                    if final:
                        ops.append(f"v_accvgpr_write_b32 {R(vdc + st)}, v{xr(t, st)}")
                    ops.append(f"v_bfi_b32 v{xr(t, st)}, v{vmk}, 0, v{xr(t, st)}")
            for op in ops[:-1]:
                put(s.C, op)
            put(s.C, ops[-1], ("sw", t))

    def gram(t, wait=None):
        s.need(("sw", t))
        for st in range(2):
            s.mf(GR + 4 * st, xr(t, st), xr(t, st), None if t == 0 else GR + 4 * st, wait if st else None)

    def stats():
        t0 = s.tM + 40
        ops = []
        for r in range(4):
            for st in range(2):
                prev = "0" if r == 0 else f"v{T + 2 * st}"
                ops.append(f"v_cndmask_b32_e64 v{T + 2 * st}, {prev}, v{GR + 4 * st + r}, s[{DIAG[r]}:{DIAG[r] + 1}]")
        for op in ("v_permlane32_swap_b32", "v_permlane16_swap_b32"):
            ops += [f"v_mov_b32 v{T + 2 * st + 1}, v{T + 2 * st}" for st in range(2)]
            ops += [f"{op} v{T + 2 * st}, v{T + 2 * st + 1}" for st in range(2)]
            ops += [f"v_add_f32 v{T + 2 * st}, v{T + 2 * st}, v{T + 2 * st + 1}" for st in range(2)]
        ops += [f"v_fmamk_f32 v{T + 2 * st}, v{T + 2 * st}, {fx((1 + EPS) / DM)}, v{T + 4}" for st in range(2)]
        ops += [f"v_rsq_f32 v{T + 2 * st + 1}, v{T + 2 * st}" for st in range(2)]
        ops += [f"v_mul_f32 v{CC + 4 + st}, v{T + 2 * st}, v{T + 2 * st + 1}" for st in range(2)]
        ops += [f"v_cvt_pk_bf16_f32 v{T + 2 * st}, v{CC + 4 + st}, v{CC + 4 + st}" for st in range(2)]
        ops += [f"v_bfi_b32 v{xr(19, st)}, v{vmk}, v{T + 2 * st}, v{xr(19, st)}" for st in range(2)]
        late = [f"v_mul_f32 v{CC + st}, {fx(GELU_K0)}, v{T + 2 * st + 1}" for st in range(2)]
        late += [f"v_mul_f32 v{T + 2 * st}, v{T + 2 * st + 1}, v{T + 2 * st + 1}" for st in range(2)]
        late += [f"v_mul_f32 v{T + 2 * st}, {fx(0.044715)}, v{T + 2 * st}" for st in range(2)]
        late += [f"v_mul_f32 v{CC + 2 + st}, v{CC + st}, v{T + 2 * st}" for st in range(2)]
        if not final:
            late += [f"v_mul_f32 v{CC + 4 + st}, {fx(2.0 ** -S_LO)}, v{CC + 4 + st}" for st in range(2)]
        put(s.G, f"v_mov_b32 v{T + 4}, {fx(EPS * EPS * 4.0 ** S_X[final])}")
        put(s.G, f"v_xor_b32 v{vq[1]}, 0x100, v{vq[0]}")
        put(s.G, f"v_xor_b32 v{vq[2]}, 0x200, v{vq[0]}", "qset")
        put(s.G, ops[0], gate=lambda: s.t >= t0)
        for op in ops[1:-1]:
            put(s.G, op)
        put(s.G, ops[-1], "stats")
        for op in late:
            put(s.G, op)

    def poll(key, off):
        lab = f"{name}_{key}"
        text = f"buffer_load_dword v{vmk}, v{vfl}, s[{SRDF}:{SRDF + 3}], @ offen sc1"
        test = f"v_cmp_eq_u32 vcc, 0, v{vmk}"

        def branch():
            a(f"s_cbranch_vccnz {lab}_spin", tag="nopad")
            a.label(f"{lab}_ok", keep=True)

            def spin():
                a.label(f"{lab}_spin")
                a(f"s_mov_b32 s{sRP}, {off}")
                a(text.replace("@", f"s{sRP}"))
                a("s_waitcnt vmcnt(0)")
                budget(a, f"{lab}_ok")
                a(test)
                a(f"s_cbranch_vccnz {lab}_spin")
                a(f"s_branch {lab}_ok")
            a.tail.append(spin)

        def check():
            s.C.append(wait_item(("i", key), [f"v{vmk}"]))
            put(s.C, test)
            s.C.append(Item("j", 10, branch, key))
        return (lambda: vm(s.C, text, sE, f"s_mov_b32 @, {off}", ("i", key), again=False, part=0.2)), check

    if final:
        ix, cx = poll("rgo", PX)

        def signal():
            s.C.append(Item("s", 4, lambda: a.wait_tag("x3"), until="x3"))
            vm(s.C, f"buffer_store_dword v{vl0 + 1}, v{vpl}, s[{SRDF}:{SRDF + 3}], @ offen sc1", sE, f"s_mov_b32 @, {PX}",
               again=False, part=0.2)

        def e_ok():
            plan(("e", 14))
            s.C.append(Item("s", 4, lambda: (s.need(("e", 14)), a.wait_tag("e")), until=("e", 14),
                            gate=lambda: ("e", 14) in done))
            put(s.C, "s_barrier", "e0")
        at(("b", FZ.e_ok), e_ok)
        at(FZ.x3[0], signal)
        at(FZ.x3[1], ix)
        at(FZ.x3[2], lambda: (s.need("oset"), cx()))
    else:
        if any(f0.FC.po):
            done["ready"] = 0
        else:
            i_, c_ = poll("ready", READY)
            at(FZ.rd_at[0], lambda: (s.need("stats"), i_()))
            at(FZ.rd_at[1], c_)
        at(FZ.res_at, lambda: (s.need("oset"), done.setdefault("rgo", s.t)))

    at(("b", FZ.b_pre + FZ.ebar), lambda: put(s.C, "s_barrier", "ebar"))

    post = []

    def gelu(ft):
        Zs = Z + 8 * (ft & 1)
        prs = [(acc(ft, st) + h, Zs + st * 4 + h, st) for st in range(2) for h in (0, 2)]
        t0 = s.tM + 40

        def stage(pk, plain, key=None, gate=None):
            for n, (x, z, st) in enumerate(prs):
                k = key if n == 3 else None
                sel = f"op_sel:[0,{st},{st}] op_sel_hi:[1,{st},{st}]"
                it = s.item(pk.format(x=V(x, 2), z=V(z, 2), sel=sel), k, gate)
                it.alt = [s.item(plain.format(x=V(x + e), z=V(z + e), c0=V(CC + st), c2=V(CC + 2 + st), c4=V(CC + 4 + st)),
                                 k if e else None, gate) for e in range(2)]
                s.G.append(it)

        stage("v_pk_mul_f32 {z}, {x}, {x}", "v_mul_f32 {z}, {x}, {x}", gate=lambda: s.t >= t0)
        stage("v_pk_fma_f32 {z}, {z}, %s, %s {sel}" % (V(CC + 2, 2), V(CC, 2)), "v_fma_f32 {z}, {z}, {c2}, {c0}")
        stage("v_pk_mul_f32 {z}, {z}, {x}", "v_mul_f32 {z}, {z}, {x}")
        close()
        for k in range(8):
            put(s.G, f"v_exp_f32 v{Zs + k}, v{Zs + k}")
        stage("v_pk_fma_f32 {z}, {z}, %s, %s {sel}" % (V(CC + 4, 2), V(CC + 4, 2)), "v_fma_f32 {z}, {z}, {c4}, {c4}")
        for k in range(8):
            put(s.G, f"v_rcp_f32 v{Zs + k}, v{Zs + k}")
        if final:
            stage("v_pk_fma_f32 {z}, {z}, {x}, s[%d:%d]" % (sKC, sKC + 1), "v_fma_f32 {z}, {z}, {x}, s%d" % sKC, ("s5", ft))
        else:
            stage("v_pk_mul_f32 {z}, {z}, {x}", "v_mul_f32 {z}, {z}, {x}", ("s5", ft))

        def out():
            for k in range(4):
                put(s.G, f"v_cvt_pk_bf16_f32 v{Zs + k}, v{Zs + 2 * k}, v{Zs + 2 * k + 1}")
            if ft == 6:
                put(s.G, f"v_add_u32 v{vo}, s{sMSK}, v{vo}")
            put(s.G, f"v_permlane16_swap_b32 v{Zs}, v{Zs + 2}")
            put(s.G, f"v_permlane16_swap_b32 v{Zs + 1}, v{Zs + 3}")
            vm(s.G, f"buffer_store_dwordx4 {V(Zs, 4)}, v{vo}, s[{SRDH}:{SRDH + 3}], @ offen sc1", sHO,
               f"s_mov_b32 @, {ft * 2 * H_STR}", ("gelu", ft), again=False, first=FZ.hf)
        post.append(out)

    def close():
        while post:
            post.pop()()

    def out_setup():
        g = lambda op, key=None: put(s.G, op, key)
        g(f"v_lshl_add_u32 v{vpk}, v{vL}, 4, s{sPK}", "vpk")
        g(f"s_mul_i32 s{sGA}, s{sDC}, {20 * XP_STR}")
        g(f"s_lshl3_add_u32 s{sGA}, s{sD}, s{sGA}")
        g(f"v_lshlrev_b32 v{vo2}, 14, v{vG}")
        g(f"v_lshl_add_u32 v{vo2}, v{vI}, 3, v{vo2}")
        g(f"v_add_u32 v{vo2}, s{sGA}, v{vo2}", "oset")
        g(f"v_lshrrev_b32 v{vor}, 1, v{vG}")
        g(f"s_mov_b32 s{sGA}, {0x3f800000 + (0x3f80 if final else (127 + S_LO) << 7):#x}")
        g(f"v_mul_lo_u32 v{vor}, v{vor}, s{sGA}", "vor")
        g(f"v_lshl_add_u32 v{vrd}, v{vL}, 4, s{sEB}")
        for ql in (1, 2, 3):
            g(f"s_xor_b32 s{sGA}, s{sW}, {ql}")
            g(f"s_mul_i32 s{sGA}, s{sGA}, 15360")
            if ql > 1:
                g(f"s_add_u32 s{sGA}, s{sGA}, {(ql - 1) * 5120}")
            g(f"v_lshl_add_u32 v{vred[ql - 1]}, v{vL}, 4, s{sGA}")
        if final:
            g(f"s_bfe_u32 s{sGA}, s{sD}, 0x10004")
            g(f"s_lshl_b32 s{sGA}, s{sGA}, 3")
            g(f"s_lshr_b32 s{sGB}, s{sD}, 9")
            g(f"s_lshl4_add_u32 s{sGA}, s{sGB}, s{sGA}")
            g(f"s_bfe_u32 s{sGB}, s{sD}, 0x20005")
            g(f"s_lshl_b32 s{sGB}, s{sGB}, 8")
            g(f"s_add_u32 s{sGA}, s{sGA}, s{sGB}")
            g(f"s_and_b32 s{sGB}, s{sD}, 128")
            g(f"s_add_u32 s{sGA}, s{sGA}, s{sGB}")
            g(f"s_and_b32 s{sGB}, s{sD}, 256")
            g(f"s_lshl2_add_u32 s{sGA}, s{sGB}, s{sGA}")
            g(f"v_and_b32 v{vout}, 1, v{vI}")
            g(f"v_lshlrev_b32 v{vout}, 6, v{vout}")
            g(f"v_lshrrev_b32 v{vs}, 1, v{vI}")
            g(f"v_add3_u32 v{vout}, v{vout}, v{vs}, s{sGA}")
            g(f"v_mul_u32_u24 v{vout}, 1280, v{vout}")
            g(f"s_mul_i32 s{sGA}, s{sDC}, 160")
            g(f"v_lshl_add_u32 v{vout}, v{vG}, 3, v{vout}")
            g(f"v_add_u32 v{vout}, s{sGA}, v{vout}", "setup")
        else:
            g(f"v_lshrrev_b32 v{vs}, 1, v{vI}")
            g(f"v_lshlrev_b32 v{vs}, 4, v{vs}")
            g(f"v_and_b32 v{vout}, 1, v{vI}")
            g(f"v_lshl_add_u32 v{vs}, v{vout}, 2, v{vs}")
            g(f"v_and_b32 v{vout}, 1, v{vG}")
            g(f"v_lshl_add_u32 v{vs}, v{vout}, 3, v{vs}")
            g(f"v_lshrrev_b32 v{vout}, {0 if FZ.x_nocnt else 1}, v{vG}")
            g(f"v_lshl_add_u32 v{vs}, v{vout}, 20, v{vs}")
            g(f"s_lshl_b32 s{sGA}, s{sD}, 3")
            g(f"v_add_u32 v{vs}, s{sGA}, v{vs}")
            g(f"v_add_u32 v{vout}, s{sDC}, v{vG}")
            g(f"v_min_u32 v{vout}, 1, v{vout}")
            g(f"v_mul_u32_u24 v{vout}, 0xffff, v{vout}")
            g(f"v_lshlrev_b32 v{vout}, 16, v{vout}")
            g(f"v_or_b32 v{vout}, 0xffff, v{vout}")
            g(f"v_mov_b32 v{TMP + 2}, 0")
            g(f"v_mov_b32 v{TMP + 3}, 0")
            g(f"s_mov_b64 s[{DIAG[0]}:{DIAG[0] + 1}], 0xffff")
            g(f"s_mov_b32 s{sGB}, {-S_LO * 0x800080:#x}", "setup")

    gl, rest = {}, xorder[1:]
    for t in range(19):
        n = 2 if t in FZ.dbl else 1
        gl[t], rest = sorted(rest[:n]), rest[n:]
    rd_need(NW - 1)
    prep_x([0])
    n = 0

    def grp_wait(k):
        nx = sum(len(g[1]) for g in groups[:k + 1]) - 1
        if k >= len(groups):
            return None
        return Item("s", 4, lambda: (rd_need(nx), a.wait_regs(R(wreg(nx), 4))))

    gram(0, grp_wait(0))
    for k, (kind, tl, t) in enumerate(groups):
        fine(kind, t)
        grams = gl.get(t, []) if kind == "a" else []
        if kind == "a" and t == 19:
            s.need("stats")
        if kind == "e" and t == 0:
            s.need(("s5", 2))
            for st in range(2):
                put(s.C, f"v_accvgpr_read_b32 v{xr(19, st)}, {R(vdc + st)}", ("dc", st))
        if kind == "e" and t == 19:
            s.need(("dc", 1))
        hi = sum(len(g[1]) for g in groups[:k + 2])
        for j, ft in enumerate(tl):
            for st in range(2):
                if grams and 2 * j + st == (FZ.xc_at if len(grams) == 1 else 0):
                    prep_x(grams)
                d = (EACC if kind == "e" else ACC1) + (ft * 2 + st) * 4
                last = j == len(tl) - 1 and st and not grams
                if st:
                    rd_["free"] = n + 1
                s.mf(d, wreg(n), xr(t, st), None if t == 0 else d, grp_wait(k + 1) if last else None,
                     urgent=rd_["n"] - len(s.L) < hi)
            n += 1
        for g in grams:
            gram(g, grp_wait(k + 1) if g == grams[-1] else None)
        if grams and xorder[-1] in grams:
            stats()
        if kind == ("e" if final else "b"):
            done[("xfree", t)] = s.t
        if kind == "a" and t == 19:
            note("A")
            for ft in TA:
                gelu(ft)
            close()
            if FZ.pure[final]:
                s.pure(("gelu", FZ.pure[final] - 1))
        if kind == "b" and t == 19:
            for ft in TB:
                gelu(ft)
            close()
            if FZ.in_b[final]:
                s.pure(("gelu", FZ.in_b[final] - 1))
    if final:
        note("E")
        t0 = s.tM + 40
        for et in TE:
            d = EACC + et * 8
            for k in range(4):
                put(s.C, f"v_cvt_pk_bf16_f32 v{d + k}, v{d + 2 * k}, v{d + 2 * k + 1}", gate=lambda: s.t >= t0)
            vm(s.C, f"buffer_store_dwordx4 {V(d, 4)}, v{ve}, s[{SRD2}:{SRD2 + 3}], @ offen sc1",
               sE, f"s_mov_b32 @, {et * 4 * XP_STR}", {1: "edone", 2: "x3"}.get(et), tag="x3", again=False)
        epi, s.C = s.C, []
        s.pure(("gelu", FZ.in_e - 1))
    out_setup()
    s.pk = bool(FZ.g2pk[final])
    mk.stash(a, vck)

    def accr(p, q):
        return ACC2 + (q * 5 + p) * 4

    def q_check(n):
        keys = [("q",) + x for x in units[n]]
        regs = [qreg(*x) for x in units[n]]
        fix = [f"v_or_b32 v{qreg(u, q)}, v{qreg(u, q)}, v{vor}" for u, q in units[n] if u == NS - 1]
        if fix:
            s.need("vor")
        verify(keys, regs, fix + (lower(regs, T_H) if final else unset(regs)), f"{name}_q{n}", ("qok", n))

    def writes(q):
        t0 = s.tM + 40
        s.need("setup")
        for p in range(5):
            put(s.L, f"ds_write_b128 v{vred[q - 1]}, {R(accr(p, q), 4)} offset:{p * 1024}", ("wr", q, p),
                gate=lambda p=p: s.t >= max(t0 - 16 * (4 - p), t0 - 40 + FZ.wgap * p))

    def reads(q, k):
        for p in range(5):
            put(q, f"ds_read_b128 {R(accr(p, k), 4)}, v{vrd} offset:{(k - 1) * 5120 + p * 1024}")

    def res_ops():
        plan(("r", 4))
        w = wait_item(("r", 4), [V(RES, 10)])
        w.gate = lambda: s.eta.get(("r", 4), 1e9) <= s.t
        f0 = w.fn
        w.fn = lambda: (s.need(("r", 4)), f0())
        s.G.append(w)
        for p in range(5):
            for h in range(2):
                u_, r, d = RU + 2 * h, RES + 2 * p + h, accr(p, 0) + 2 * h
                put(s.G, f"v_lshlrev_b32 v{u_}, 16, v{r}")
                put(s.G, f"v_and_b32 v{u_ + 1}, s{sRS + 1}, v{r}")
                put(s.G, f"v_fmac_f32 v{d}, s{sRS}, v{u_}")
                put(s.G, f"v_fmac_f32 v{d + 1}, s{sRS}, v{u_ + 1}", ("res", p) if h else None)

    def unpark(u):
        ok = lambda: "vpk" in done and ("k", u, 4) in done and s.eta[("k", u, 4)] <= s.t
        plan(("k", u, 4))
        s.L.append(Item("s", 4, lambda: (s.need("vpk"), s.need(("k", u, 4)), a.wait_tag(f"k{u}")), until=("k", u, 4), gate=ok))
        for p in range(5):
            put(s.L, f"ds_read_b128 {R(preg(u, p), 4)}, v{vpk} offset:{(u - NP) * TILE + p * 1024}", ("p", u, p))
            sched.add(("p", u, p))

    def g_bar():
        for u in parked:
            s.need(("p", u, 4))
        put(s.C, "s_waitcnt lgkmcnt(0)")
        put(s.C, "s_barrier")
        if not final and f0.FC.t_late:
            put(s.C, f"s_lshl4_add_u32 s{sE}, s{sRB}, s{sMM}")
            put(s.C, f"s_sub_u32 s{sE}, s3, s{sE}")
            put(s.C, f"s_lshl_b32 s{sE}, s{sE}, 7")
            vm(s.C, f"buffer_store_dword v{vl0 + 1}, v{vpl}, s[{SRDF}:{SRDF + 3}], @ offen sc1", sE,
               f"s_add_u32 @, s{sE}, {DONE2 + 4 - READY}", again=False, part=0.2)

    for u in parked:
        at(("g", u - NP), lambda u=u: unpark(u))
    at(("g", FZ.gbar), g_bar)
    def post_at(where):
        if not final and FZ.post == where:
            vm(s.C, f"buffer_store_dword v{vl0 + 1}, v{vpl}, s[{SRDF}:{SRDF + 3}], @ offen sc1", sE,
               f"s_mov_b32 @, {POST - READY}", key="post",
               again=False, part=0.2)
            s.need("post")

    q_check(0)
    if final:
        if FZ.split0:
            q_check(1)
        s.C += epi
    seen = set()
    for n, un in enumerate(units):
        tailq = un[0][1] if len({u for u, _ in un}) > 1 or KT == 1 and un[0][0] == NS - 1 else None
        s.need(("qok", n))
        left = 5 * len(un)
        if tailq == 1:
            res_ops()
        if tailq == 0:
            s.need(("wr", 2, 4))
            put(s.C, "s_waitcnt lgkmcnt(0)")
            put(s.C, "s_barrier", "bar1")
            s.need("bar1")
            post_at("bar1")
            writes(3)
            reads(s.L, 1)
            reads(s.L, 2)
        elif tailq is not None and tailq > 1:
            writes(tailq - 1)
        for u, q in un:
            if u not in seen:
                fine("g", u)
                if u == 1:
                    note("g1")
                for p in range(5):
                    plan(("p", u, p))
                    s.need(("p", u, p))
                seen.add(u)
            for p in range(5):
                if left == min(FZ.qc_rem, 5 * len(un)) and n + 1 < len(units) and not (final and FZ.split0 and n == 0):
                    q_check(n + 1)
                if tailq == 0:
                    s.need(("res", p))
                if s.eta.get(("p", u, p), 0) > s.t:
                    s.stall += s.eta[("p", u, p)] - s.t
                    if FZ.verbose:
                        print(f"  {s.t:6.0f} STALL p {u} {p} {s.eta[('p', u, p)] - s.t:.0f}", file=sys.stderr)
                    s.t = s.eta[("p", u, p)]
                s.mf(accr(p, q), preg(u, p), qreg(u, q), None if u == 0 else accr(p, q))
                left -= 1
            done[("qfree", u, q)] = s.t
    s.flush()
    assert not queue and not act, (queue, act)
    a("s_waitcnt lgkmcnt(0)")
    a("s_barrier")
    reads(s.L, 3)
    s.flush()
    post_at("bar2")
    for p in range(5):
        for h in (0, 2):
            a(f"v_pk_add_f32 {V(accr(p, 1) + h, 2)}, {V(accr(p, 1) + h, 2)}, {V(accr(p, 2) + h, 2)}")
    for p in range(5):
        for h in (0, 2):
            a(f"v_pk_add_f32 {V(accr(p, 0) + h, 2)}, {V(accr(p, 0) + h, 2)}, {V(accr(p, 1) + h, 2)}")
    for p in range(5):
        r = accr(p, 0)
        for h in (0, 2):
            a(f"v_pk_add_f32 {V(r + h, 2)}, {V(r + h, 2)}, {V(accr(p, 3) + h, 2)}")
        a(f"v_cvt_pk_bf16_f32 v{r}, v{r}, v{r + 1}")
        a(f"v_cvt_pk_bf16_f32 v{r + 1}, v{r + 2}, v{r + 3}")
        if final:
            a(f"buffer_store_dwordx2 {V(r, 2)}, v{vout}, s[{SRD1}:{SRD1 + 3}], 0 offen offset:{p * 32}")
        else:
            a(f"s_mov_b32 s{sOP}, {p * 4 * XP_STR}")
            a(f"buffer_store_dwordx2 {V(r, 2)}, v{vo2}, s[{SRDX}:{SRDX + 3}], s{sOP} offen sc1")
    if not final:
        for p in range(5):
            r = accr(p, 0)
            for h in range(2):
                a(f"v_add_u32 v{r + 2 + h}, s{sGB}, v{r + h}")
            if p == 0:
                a(f"v_and_b32 v{r + 2}, v{vout}, v{r + 2}")
        for p in range(5):
            for h in range(2):
                r = accr(p, 0) + 2 + h
                a(f"v_dot2c_f32_bf16 v{TMP + 2 + h}, v{r}, v{r}")
        z = TMP + 2
        a(f"v_add_f32 v{z}, v{z}, v{z + 1}")
        for op in ("v_permlane32_swap_b32", "v_permlane16_swap_b32"):
            a(f"v_mov_b32 v{z + 1}, v{z}")
            a(f"{op} v{z}, v{z + 1}")
            a(f"v_add_f32 v{z}, v{z}, v{z + 1}")
        a(f"v_cndmask_b32_e64 v{z}, 1.0, v{z}, s[{DIAG[0]}:{DIAG[0] + 1}]")
        a(f"{FZ.x_op} v{z}, v{vs}, s[{SRD1}:{SRD1 + 3}], 0 offen sc1".replace("-", "_"), tag="out")
    post_at("end")
    mk(a, name + "end")


def role_fused(a):
    if Cfg.stamp:
        mk.names.append("start")
        mk.pend.append(0)
    if FZ.probe:
        a(f"s_memrealtime s[{sST}:{sST + 1}]")
    f0.front(a, mk.fixed)
    begin(a)
    mk.stash(a, 4)
    for ph in range(0 if FZ.halt == 10 else 2):
        a(f"s_cmp_ge_u32 s{sT}, {NCOL}")
        a(f"s_cbranch_scc1 idle{ph}", tag="nopad")
        pend = list(mk.pend)

        def idle(ph=ph, pend=pend):
            keep, mk.pend = mk.pend, pend
            a.label(f"idle{ph}")
            idle_phase(a, ph)
            a(f"s_branch join{ph}")
            mk.pend = keep
        a.tail.append(idle)
        n = col_phase(a, ph)
        a.label(f"join{ph}")
        if FZ.halt == 2 * ph + 1 or FZ.halt == 25 and ph:
            break
        mlp_phase(a, ph, n)
        if FZ.halt == 2 * ph + 2:
            break
    if Cfg.stamp:
        a("s_waitcnt vmcnt(0)")
        mk(a, "drain")
        mk.stash(a, 4)
        a(f"v_writelane_b32 v4, s{sCNT}, 63")
        srd_ws(a, SRD0, "STAMP", 1 << 21)
        a(f"s_lshl_b32 s{sA}, s2, 10")
        a(f"s_add_u32 s{sA}, s{sA}, {1 << 20}")
        a(f"v_lshl_add_u32 v5, v0, 2, s{sA}")
        a(f"buffer_store_dword v4, v5, s[{SRD0}:{SRD0 + 3}], 0 offen")
        if FZ.dbg:
            a(f"s_load_dwordx2 s[{SRD1}:{SRD1 + 1}], s[0:1], 72")
            a(f"v_readlane_b32 s{sB}, v4, 0")
            a("v_mov_b32 v6, 0")
            for j, nm in enumerate(FZ.dbg[1:]):
                a(f"v_readlane_b32 s{sA}, v4, {mk.names.index(nm)}")
                a(f"s_sub_u32 s{sA}, s{sA}, s{sB}")
                a(f"v_writelane_b32 v6, s{sA}, {j}")
            a(f"s_sub_u32 s{sA}, s2, {FZ.dbg[0]}")
            a(f"s_lshl_b32 s{sA}, s{sA}, 10")
            a(f"v_lshl_add_u32 v5, v0, 2, s{sA}")
            a("s_waitcnt lgkmcnt(0)")
            srd(a, SRD1, SRD1, 0, 64)
            a(f"buffer_store_dword v6, v5, s[{SRD1}:{SRD1 + 3}], 0 offen")
    return 160 * 1024


def tables():
    L = []
    c = np.sqrt(2.0 / DM) * np.cos(2 * np.pi * np.arange(DM) / DM)
    c[160] = 0
    c[480] = 0
    bits = model.bf16_bits(c.astype(np.float32))
    for n in range(DM):
        L.append(f".set cq{n}, {bits[n]}")
    bb = int(model.bf16_bits(np.float32([np.sqrt(1 / DM)]))[0])
    k2 = model2.kmap()
    L.append(".altmacro")
    L.append(".macro e8 a,b,c,d,e,f,g,h\n.short cq\\a, cq\\b, cq\\c, cq\\d, cq\\e, cq\\f, cq\\g, cq\\h\n.endm")
    L.append(".macro e6 a,b,c,d,e,f\n.short cq\\a, cq\\b, cq\\c, cq\\d, cq\\e, cq\\f\n.endm")
    L.append(".p2align 12\nft2:\n.set tt, 0\n.rept 40")
    for kb in range(80):
        L.append(".set td, tt\n.rept 16")
        ent = [f"%(({k2[4 * kb + j // 2]}*td+{160 * (j & 1)})%640)" for j in range(8)]
        if kb == 0:
            L.append(f".short {bb}+((td&1)<<15), {bb}")
            L.append("e6 " + ", ".join(ent[2:]))
        else:
            L.append("e8 " + ", ".join(ent))
        L.append(".set td, td+1\n.endr")
    L.append(".set tt, tt+16\n.endr\n.noaltmacro")
    return "\n".join(L) + "\n"


if __name__ == "__main__":
    f0.FC.xscale = S_LO
    for opt in sys.argv[2:]:
        if opt == "stamp":
            Cfg.stamp = True
        else:
            k, v = opt.split("=", 1)
            tgt = [c for c in (FZ, f0.FC, Cfg) if hasattr(c, k)][0]
            v = eval(v)
            sp = lambda x: x.replace("_", " ") if isinstance(x, str) else tuple(map(sp, x)) if isinstance(x, tuple) else x
            setattr(tgt, k, sp(v))
    txt = generate([("mk_kernel", [(256, role_fused)])], tables)
    if Cfg.stamp:
        txt = txt.replace(".amdgcn_target", ("; clk\n" if FZ.clk else "") + f"; halt {FZ.halt}\n; marks " + " ".join(mk.names)
                          + "\n.amdgcn_target", 1)
    if FZ.single:
        txt = txt.replace("@launch kernel=mk_kernel ", "@launch ")
        txt = txt.replace("mk_kernel", "interleave_layers__spectral_gfnet__mixer_channel_mlp__prompt_kernel")
    open(sys.argv[1], "w").write(txt)
```

```python
from gen import *
import model2
from p0 import Sched, fx

SCALE = float(np.sqrt(2.0 / DM))
SIGN2 = 0x80008000
REGB = 24576
FB = SS2_SIZE
READY, POST, HINT, DONE2, DONE = 4 << 15, 5 << 15, (6 << 15, 7 << 15), 8 << 15, 9 << 15
XCC = "hwreg(HW_REG_XCC_ID, 0, 3)"
W2TOP = 252
aF, aD, aB, aDUM, aTR = 256 + 254, 256 + 255, 256 + 251, 256 + 253, 256 + 232


class FC:
    fl_ld = " nt"
    fl_l2 = " nt"
    fl_l1 = ""
    fl_f = ""
    fs = (" sc1",) * 5
    xscale = 0
    code_pf = 1
    c_early = 3
    rot = 1
    t_pre = 6
    spread = 1
    pages = 0
    w_early = 5
    early = (0, 1)
    po = (0, 0, 0)
    t_late = 1
    p1_at = 1
    w2_pre = 1


def lane_blocks(a, v, t, base):
    a(f"v_and_b32 v{v}, 31, v{vL}")
    a(f"v_bfe_u32 v{t}, v{vL}, 5, 1")
    a(f"v_lshl_add_u32 v{v}, v{t}, 7, v{v}")
    a(f"v_lshl_add_u32 v{v}, s{sW}, 5, v{v}")
    a(f"v_lshlrev_b32 v{v}, 7, v{v}")
    a(f"v_add_u32 v{v}, {base + DONE}, v{v}")


def post(a, srd_, base, step, t, wait=None, both=False):
    a(f"s_getreg_b32 s{sB}, {XCC}")
    a(f"s_add_u32 s{sB}, s{sB}, {8 * step}")
    a(f"s_lshl_b32 s{sA}, s3, 7")
    a(f"s_add_u32 s{sA}, s{sA}, {base + DONE}")
    if both:
        a(f"v_lshrrev_b32 v{t + 2}, 1, v0")
        a(f"v_lshl_add_u32 v{t + 2}, v{t + 2}, 20, s{sA}")
        a(f"v_and_b32 v{t}, 1, v0")
        a(f"v_lshlrev_b32 v{t + 1}, 15, v{t}")
        a(f"v_sub_u32 v{t + 2}, v{t + 2}, v{t + 1}")
    else:
        a(f"v_lshl_add_u32 v{t + 2}, v0, 20, s{sA}")
    if wait:
        a(wait)
    a(f"v_accvgpr_read_b32 v{t + 1}, {R(aD)}")
    a(f"v_and_b32 v{t + 1}, -8, v{t + 1}")
    a(f"v_add_u32 v{t + 1}, s{sB}, v{t + 1}")
    if both:
        a(f"v_or_b32 v{t + 1}, v{t}, v{t + 1}")
    return f"buffer_store_dword v{t + 1}, v{t + 2}, s[{srd_}:{srd_ + 3}], 0 offen sc1"


def front(a, mark):
    name = "f"
    vld, vr, vo = 4, 5, 9
    MK, M1, M2, M2N = 10, 14, 15, 16
    vph, vk0, vq20, vgf = 17, 18, 19, 35
    ACC1, A1, A2, Y, ACCX = 20, 36, 96, 144, 168
    TMP = Y
    DAT = 176
    sQ, sFT, sKD, sSC = sK0, sK1, 96, 97
    KINDS = ("x", "w1", "w2")
    NX = 0 if FC.early[0] else 3
    NP = 2 if FC.pages else 0
    lbase = {"x": 0, "w1": 0, "w2": REGB}

    def frag(beta, j):
        return DAT + (beta * 5 + j) * 4

    a("s_cmp_ge_u32 s2, 8")
    a(f"s_cbranch_scc1 {name}_npf")
    if FC.code_pf:
        srd_code(a, SRD5, "mk_kernel")
        a(f"v_lshlrev_b32 v{vld}, 7, v0")
        for k in range(3):
            a(f"s_mov_b32 s{sOP}, {k << 15}")
            a.raw(f"    buffer_load_dword {R(aDUM)}, v{vld}, s[{SRD5}:{SRD5 + 3}], s{sOP} offen")
    a(f"s_add_u32 s{sT}, s2, 160")
    a.label(f"{name}_npf")
    a(f"s_sub_u32 s{sT}, s{sT}, 8")
    a("s_cmp_ge_u32 s2, 160")
    a(f"s_cselect_b32 s3, s2, s{sT}")
    a(f"s_lshl_b32 s{sE}, s{sW}, 10")
    a("s_cmp_ge_u32 s3, 128")
    a(f"s_cbranch_scc1 {name}_pb")
    if FC.spread:
        a(f"s_and_b32 s{sA}, s3, 7")
        a(f"s_lshr_b32 s{sT}, s3, 3")
        a(f"s_lshl4_add_u32 s{sT}, s{sA}, s{sT}")
        a(f"s_mov_b32 s3, s{sT}")

    def row_addr(v, t):
        a(f"s_and_b32 s{sA}, s{sW}, 1")
        a(f"s_lshl_b32 s{sA}, s{sA}, 1")
        a(f"s_xor_b32 s{sA}, s{sA}, s{sW}")
        a(f"s_lshl_b32 s{sA}, s{sA}, 2")
        a(f"v_or_b32 v{t}, s{sA}, v{vG}")
        a(f"v_xor_b32 v{t}, v{t}, v{vI}")
        a(f"v_mul_u32_u24 v{v}, 1280, v{v}")
        a(f"v_lshl_add_u32 v{v}, v{t}, 4, v{v}")

    def row_issue(v, fl, base):
        for j in range(5):
            a(f"s_add_u32 m0, s{sE}, {base + j * 4096 - j * 256}")
            a(f"buffer_load_dwordx4 v{v}, s[{SRD0}:{SRD0 + 3}], 0 offen offset:{j * 256}{fl} lds")

    def sync_start(part=3):
        t, z = TMP, TMP + 4
        if part & 1:
            sync_addr(t, z)
        if part & 2:
            srd_ws(a, SRD3, "SS2", SS2_SIZE + FLAG_SIZE)
            a(f"buffer_load_dword {R(aF)}, v{t}, s[{SRD3}:{SRD3 + 3}], 0 offen{FC.fl_f}")
            a(f"buffer_load_dword {R(aD)}, off, s[{SRD3}:{SRD3 + 3}], s{sOQ}{FC.fl_f}")
            a(f"buffer_store_dwordx4 {V(z, 4)}, v{t + 3}, s[{SRD3}:{SRD3 + 3}], 0 offen sc1")

    def sync_addr(t, z):
        lane_blocks(a, t, t + 1, FB)
        a(f"s_lshl_b32 s{sA}, s3, 2")
        a(f"v_and_or_b32 v{t + 3}, v0, 3, s{sA}")
        a(f"v_bfe_u32 v{t + 1}, v0, 2, 1")
        a(f"v_mad_u32_u24 v{t + 2}, v{t + 1}, 3, 4")
        a(f"v_lshlrev_b32 v{t + 3}, v{t + 2}, v{t + 3}")
        a(f"v_lshl_add_u32 v{t + 3}, v{t + 1}, 14, v{t + 3}")
        a(f"v_lshrrev_b32 v{t + 1}, 3, v0")
        a(f"v_lshl_add_u32 v{t + 3}, v{t + 1}, 20, v{t + 3}")
        for k in range(4):
            a(f"v_mov_b32 v{z + k}, 0")
        a(f"s_lshl_b32 s{sA}, s3, 7")
        a(f"s_add_u32 s{sOQ}, s{sA}, {FB + DONE}")
        a(f"s_add_u32 s{sA}, s{sA}, {FB + READY - (8 << 15)}")
        a(f"v_lshl_add_u32 v{t + 1}, v0, 15, s{sA}")
        a(f"v_subrev_u32 v{t + 2}, 8, v0")
        a(f"v_cmp_gt_u32 s[{sK2}:{sK3}], 5, v{t + 2}")
        a(f"v_cndmask_b32_e64 v{t + 3}, v{t + 3}, v{t + 1}, s[{sK2}:{sK3}]")

    def w2_setup(v, t):
        a(f"s_lshl_b32 s{sC}, s{sT}, 4")
        a(f"s_cmp_eq_u32 s{sT}, 108")
        a(f"s_cselect_b32 s{sC}, 0, s{sC}")
        a(f"s_lshl2_add_u32 s{sC}, s{sW}, s{sC}")
        a(f"v_add_u32 v{v}, s{sC}, v{vG}")
        row_addr(v, t)
        a("s_waitcnt lgkmcnt(0)")
        a(f"s_cmp_eq_u32 s{sT}, 108")
        a(f"s_mov_b32 s{SRD0 + 2}, {FF * DM * 2}")
        a(f"s_mov_b32 s{SRD0 + 3}, 0x20000")
        a(f"s_cselect_b32 s{SRD0 + 2}, {DM * 2}, s{SRD0 + 2}")
        a(f"s_cselect_b32 s{SRD0}, s{P_B2}, s{P_W2}")
        a(f"s_cselect_b32 s{SRD0 + 1}, s{P_B2 + 1}, s{P_W2 + 1}")
        a(f"s_and_b32 s{SRD0 + 1}, s{SRD0 + 1}, 0xffff")

    REG = 5248

    def mark_unset(n, v):
        k0 = sum(FC.po[:n])
        if not FC.po[n]:
            return
        if not k0:
            srd_ws(a, SRD5, "H", H_SIZE)
            for k in range(4):
                a(f"v_accvgpr_write_b32 {R(256 + k)}, -1")
        a(f"v_lshlrev_b32 v{v}, 4, v0")
        a(f"s_mul_i32 s{sOP}, s3, {14 * 4096}")
        for k in range(k0, k0 + FC.po[n]):
            if k:
                a(f"s_add_u32 s{sOP}, s{sOP}, {4096 * (k if k == k0 else 1)}")
            a(f"buffer_store_dwordx4 {R(256, 4)}, v{v}, s[{SRD5}:{SRD5 + 3}], s{sOP} offen sc1")

    def filter_setup():
        a(f"s_bfe_u32 s{sA}, s3, 0x20001")
        a(f"s_lshl_b32 s{sC}, s{sA}, 7")
        a(f"s_lshr_b32 s{sA}, s3, 5")
        a(f"s_lshl_b32 s{sA}, s{sA}, 9")
        a(f"s_add_u32 s{sC}, s{sC}, s{sA}")
        a(f"s_and_b32 s{sA}, s3, 8")
        a(f"s_lshl3_add_u32 s{sC}, s{sA}, s{sC}")
        a(f"s_and_b32 s{sA}, s3, 16")
        a(f"s_add_u32 s{sC}, s{sC}, s{sA}")
        a(f"s_and_b32 s{sA}, s3, 1")
        a(f"s_lshl3_add_u32 s{sC}, s{sA}, s{sC}")
        a(f"s_and_b32 s{sA}, s{sW}, 2")
        a(f"s_lshl4_add_u32 s{sC}, s{sA}, s{sC}")
        a(f"s_mul_i32 s{sC}, s{sC}, 642")
        a(f"s_add_u32 s{sD}, s{sC}, 4096")
        a(f"s_mul_i32 s{sF}, s{sW}, {REG}")
        a(f"s_mov_b32 s{SRD0 + 2}, {SEQ * 642}")
        a(f"s_add_u32 m0, s{sF}, {REGB}")
        a(f"s_bitcmp1_b32 s{sW}, 0")
        a(f"s_cselect_b32 s{SRD0}, s{P_WI}, s{P_WR}")
        a(f"s_cselect_b32 s{SRD0 + 1}, s{P_WI + 1}, s{P_WR + 1}")
        a(f"s_and_b32 s{SRD0 + 1}, s{SRD0 + 1}, 0xffff")

    def filter_loads(js):
        a(f"v_lshlrev_b32 v{vld}, 4, v{vL}")
        for j in js:
            if j == 4:
                a(f"s_add_u32 m0, s{sF}, {REGB + 4096}")
            if j == 5:
                a("s_mov_b64 exec, 1")
            a(f"buffer_load_dwordx4 v{vld}, s[{SRD0}:{SRD0 + 3}], s{sC if j < 4 else sD} offen offset:{(j & 3) * 1024}{FC.fl_ld} lds")
            if j == 5:
                a("s_mov_b64 exec, -1")

    a(f"s_and_b32 s{sC}, s{sT}, 1")
    a(f"s_lshl_b32 s{sC}, s{sC}, 3")
    a(f"s_lshr_b32 s{sA}, s{sT}, 5")
    a(f"s_lshl4_add_u32 s{sC}, s{sA}, s{sC}")
    a(f"s_bfe_u32 s{sA}, s{sT}, 0x20001")
    a(f"s_lshl_b32 s{sA}, s{sA}, 8")
    a(f"s_add_u32 s{sC}, s{sC}, s{sA}")
    a(f"s_and_b32 s{sA}, s{sT}, 8")
    a(f"s_lshl4_add_u32 s{sC}, s{sA}, s{sC}")
    a(f"s_and_b32 s{sA}, s{sT}, 16")
    a(f"s_lshl_b32 s{sA}, s{sA}, 6")
    a(f"s_add_u32 s{sC}, s{sC}, s{sA}")
    a(f"s_lshl1_add_u32 s{sC}, s{sW}, s{sC}")
    a(f"v_and_b32 v{vld}, 1, v{vG}")
    a(f"v_lshlrev_b32 v{vld}, 6, v{vld}")
    a(f"v_lshrrev_b32 v{vr + 1}, 1, v{vG}")
    a(f"v_add3_u32 v{vld}, v{vld}, v{vr + 1}, s{sC}")
    row_addr(vld, vr)
    if FC.early[0]:
        sync_start(1)
    a("s_waitcnt lgkmcnt(0)")
    srd(a, SRD0, P_X, 0, SEQ * DM * 2)
    row_issue(vld, FC.fl_ld, 0)
    if FC.early[0]:
        sync_start(2)
    filter_setup()
    filter_loads(range(FC.c_early))
    mark_unset(0, vr + 3)
    mark(a, "l1")
    srd_ws(a, SRD1, "XP0", XP_SIZE)
    a(f"s_mov_b32 s{sKD}, 0")
    a(f"s_branch {name}_gen")

    a.label(f"{name}_pb")
    a(f"s_sub_u32 s{sT}, 255, s3")
    a(f"s_and_b32 s{sA}, s{sT}, 7")
    a(f"s_lshr_b32 s{sB}, s{sT}, 5")
    a(f"s_lshl3_add_u32 s{sA}, s{sB}, s{sA}")
    a(f"s_bfe_u32 s{sB}, s{sT}, 0x20003")
    a(f"s_lshl2_add_u32 s{sFT}, s{sA}, s{sB}")
    a(f"s_and_b32 s{sA}, s3, 7")
    a(f"s_bfe_u32 s{sB}, s3, 0x10003")
    a(f"s_lshl1_add_u32 s{sA}, s{sA}, s{sB}")
    a(f"s_add_u32 s{sA}, s{sA}, 92")
    a(f"s_cmp_lt_u32 s{sFT}, 92")
    a(f"s_cselect_b32 s{sFT}, s{sFT}, 108")
    a("s_cmp_lt_u32 s3, 144")
    a(f"s_cselect_b32 s{sFT}, s{sA}, s{sFT}")
    a(f"s_sub_u32 s{sT}, {W2TOP}, s3")
    a(f"s_min_u32 s{sT}, s{sT}, 112")
    a(f"s_cmp_ge_u32 s{sFT}, 108")
    a(f"s_cbranch_scc1 {name}_p2")
    a(f"s_and_b32 s{sA}, s{sW}, 1")
    a(f"s_lshl_b32 s{sA}, s{sA}, 2")
    a(f"v_lshrrev_b32 v{vld}, 1, v{vL}")
    a(f"v_xor_b32 v{vld}, s{sA}, v{vld}")
    a(f"v_mul_u32_u24 v{vld}, {FF * 2}, v{vld}")
    a(f"v_and_b32 v{vr}, 1, v{vL}")
    a(f"v_lshl_add_u32 v{vld}, v{vr}, 4, v{vld}")
    a(f"s_mul_i32 s{sA}, s{sW}, {32 * FF * 2}")
    a(f"s_lshl_b32 s{sB}, s{sFT}, 5")
    a(f"s_add_u32 s{sA}, s{sA}, s{sB}")
    a(f"v_add_u32 v{vld}, s{sA}, v{vld}")
    if FC.early[1]:
        sync_start(1)
    a("s_waitcnt lgkmcnt(0)")
    if FC.early[1] == 1:
        sync_start(2)
    srd(a, SRD0, P_W1, 0, DM * FF * 2)
    if FC.rot:
        a(f"s_and_b32 s{sC}, s{sFT}, 3")

    def w1_loads(js):
        for j in js:
            if FC.rot:
                a(f"s_lshl_b32 s{sA}, s{sC}, 12")
                a(f"s_add_u32 m0, s{sE}, s{sA}")
                a(f"s_mul_i32 s{sOP}, s{sC}, {128 * FF * 2}")
            else:
                a(f"s_add_u32 m0, s{sE}, {j * 4096}")
                a(f"s_mov_b32 s{sOP}, {j * 128 * FF * 2}")
            a(f"buffer_load_dwordx4 v{vld}, s[{SRD0}:{SRD0 + 3}], s{sOP} offen{FC.fl_l1} lds")
            if FC.rot and j < 4:
                a(f"s_add_u32 s{sC}, s{sC}, 1")
                a(f"s_cmp_eq_u32 s{sC}, 5")
                a(f"s_cselect_b32 s{sC}, 0, s{sC}")
            if j == 4:
                srd(a, SRD2, P_B1, 0, FF * 2)
                a(f"v_lshl_add_u32 v{vld}, v{vI}, 1, s{sB}")
                a(f"buffer_load_ushort {R(aB)}, v{vld}, s[{SRD2}:{SRD2 + 3}], 0 offen")

    w1_loads(range(FC.w_early))
    if FC.early[1] == 2:
        sync_start(2)
    mark(a, "l1")
    srd_ws(a, SRD1, "W1F", W1F_SIZE)
    a(f"s_mov_b32 s{sKD}, 1")
    a(f"s_branch {name}_gen")
    a.label(f"{name}_p2")
    w2_setup(vld, vr)
    row_issue(vld, FC.fl_l2, REGB)
    mark(a, "l1")
    sync_start()
    a(f"s_mov_b32 s{sKD}, 2")

    va0, va1, va2, vc, vt, LD, ST = 10, 11, 12, 13, 17, 176, 216
    k0, k1, k2 = 98, 99, 100

    def filter_addr():
        vo = vc
        srd_ws(a, SRD4, "WC", WC_SIZE)
        a(f"v_bfe_u32 v{vt}, v{vL}, 3, 1")
        a(f"v_lshlrev_b32 v{vt}, 2, v{vt}")
        a(f"v_add_u32 v{vt}, v{vt}, v{vG}")
        a(f"s_cmp_lt_u32 s{sW}, 2")
        a(f"s_cselect_b32 s{k0}, 1, -1")
        a(f"s_mul_i32 s{sA}, s{k0}, 80")
        a(f"s_mul_i32 s{sB}, s{k0}, 40")
        a(f"v_mul_i32_i24 v{va0}, s{sA}, v{vt}")
        a(f"v_and_b32 v{vt}, 7, v{vL}")
        a(f"v_mul_u32_u24 v{va1}, 642, v{vt}")
        a(f"v_add_u32 v{va0}, v{va0}, v{va1}")
        a(f"s_mul_i32 s{k1}, s{sW}, 5")
        a(f"s_sub_u32 s{k2}, 325, s{k1}")
        a(f"s_cmp_lt_u32 s{sW}, 2")
        a(f"s_cselect_b32 s{k2}, s{k1}, s{k2}")
        a(f"s_lshl_b32 s{k2}, s{k2}, 1")
        a(f"v_add_u32 v{va0}, s{k2}, v{va0}")
        a(f"v_add_u32 v{va1}, s{sB}, v{va0}")
        a(f"v_cmp_gt_u32 vcc, 8, v0")
        a(f"v_add_u32 v{va2}, 640, v{va0}")
        a(f"v_cndmask_b32 v{va2}, v{va0}, v{va2}, vcc")
        a(f"v_lshrrev_b32 v{vo}, 3, v{vL}")
        a(vstr(vo, vo, WC_STR))
        a(f"v_lshl_add_u32 v{vo}, v{vt}, 4, v{vo}")
        a(f"s_lshl_b32 s{sA}, s3, 7")
        a(f"s_lshr_b32 s{sB}, s{sW}, 1")
        a(sstr(sB, sB, 8 * WC_STR))
        a(f"s_add_u32 s{sA}, s{sA}, s{sB}")
        a(f"v_add_u32 v{vo}, s{sA}, v{vo}")
        a(f"s_sub_u32 s{k2}, s{k1}, 5")
        a(f"s_cmp_lt_u32 s{sW}, 2")
        a(f"s_cselect_b32 s{k1}, s{k1}, s{k2}")

    def filter_job():
        vo = vc
        a("s_barrier")
        mark(a, "b2")
        for n in range(5):
            for rl in range(2):
                for ph in range(2):
                    ad = va1 if ph else (va2 if n == 0 else va0)
                    for ar in range(2):
                        a(f"ds_read_u16 v{LD + n * 8 + (rl * 2 + ph) * 2 + ar}, v{ad} offset:{REGB + (rl * 2 + ar) * REG + 2 * n}")
        for n in range(5):
            for k in range(4):
                a(f"v_lshl_or_b32 v{ST + 4 * n + k}, v{LD + n * 8 + 2 * k + 1}, 16, v{LD + n * 8 + 2 * k}")
            if n == 0:
                a(f"s_cmp_eq_u32 s{k1}, 10")
                a(f"s_cselect_b32 s{sOP}, 0, s{k1}")
                a(sstr(sOP, sOP, 16 * WC_STR))
            else:
                a(f"s_add_i32 s{k1}, s{k1}, s{k0}")
                a(sstr(sOP, k1, 16 * WC_STR))
            a(f"buffer_store_dwordx4 {V(ST + 4 * n, 4)}, v{vo}, s[{SRD4}:{SRD4 + 3}], s{sOP} offen{FC.fs[1]}")

    a.label(f"{name}_gen")
    if FC.pages:
        a(f"v_min_u32 v{vr}, 3, v0")
        a(f"v_mul_u32_u24 v{vr}, {SLOT - (1 << 21)}, v{vr}")
        a(f"v_lshlrev_b32 v{vr + 1}, 21, v0")
        a(f"v_add_u32 v{vr}, v{vr}, v{vr + 1}")
        srd(a, SRD5, P_WS, 0, WS["STAMP"])
        a.raw(f"    buffer_load_dword {R(aDUM)}, v{vr}, s[{SRD5}:{SRD5 + 3}], 0 offen sc1")
        srd(a, SRD5, P_OUT, 0, SEQ * DM * 2)
        a.raw(f"    buffer_load_dword {R(aDUM)}, v{vr + 1}, s[{SRD5}:{SRD5 + 3}], 0 offen sc1")
    a(f"s_mov_b32 s{sSC}, {fx(SCALE)}")
    a(f"s_cmp_eq_u32 s{sKD}, 0")
    a(f"s_cselect_b32 s{sSC}, {fx(SCALE * 2.0 ** FC.xscale)}, s{sSC}")
    a(f"v_bfe_u32 v{TMP}, v{vI}, 1, 1")
    a(f"v_lshlrev_b32 v{TMP}, 4, v{TMP}")
    a(f"v_mov_b32 v{TMP + 1}, 0xffff")
    a(f"v_lshlrev_b32 v{TMP}, v{TMP}, v{TMP + 1}")
    a(f"v_lshrrev_b32 v{TMP + 1}, 2, v{vI}")
    for k in range(4):
        a(f"v_cmp_eq_u32 vcc, {k}, v{TMP + 1}")
        a(f"v_cndmask_b32 v{MK + k}, 0, v{TMP}, vcc")
    a(f"v_and_b32 v{M2}, 1, v{vI}")
    a(f"v_cvt_f32_u32 v{vph}, v{M2}")
    a(f"v_mul_f32 v{vph}, 0.5, v{vph}")
    a(f"v_lshrrev_b32 v{vk0}, 1, v{vI}")
    a(f"v_cvt_f32_u32 v{vk0}, v{vk0}")
    a(f"v_mul_f32 v{vk0}, {fx(1 / 32)}, v{vk0}")
    a(f"v_cvt_f32_u32 v{vgf}, v{vG}")

    def gen_a1(base, fq, ph):
        t = TMP
        a(f"v_fma_f32 v{t}, v{vgf}, v{fq}, {ph}")
        for j in range(1, 5):
            a(f"v_fmamk_f32 v{t + j}, v{fq}, {fx(4.0 * j)}, v{t}")
        for j in range(5):
            a(f"v_cos_f32 v{t + j}, v{t + j}")
        for j in range(5):
            a(f"v_mul_f32 v{t + j}, s{sSC}, v{t + j}")
        for j in range(5):
            a(f"v_cvt_pk_bf16_f32 v{t + j}, v{t + j}, v{t + j}")
        for j in range(5):
            for k in range(4):
                a(f"v_and_b32 v{base + 4 * j + k}, v{MK + k}, v{t + j}")

    def angles(kf, ph):
        t = TMP
        a(f"v_mul_f32 v{t + 8}, v{vgf}, v{kf}")
        a(f"v_fma_f32 v{t}, v{t + 8}, 2.0, v{ph}")
        for k in range(1, 8):
            c = 16 * (k >> 2) + 8 * ((k >> 1) & 1) + (k & 1)
            a(f"v_fmamk_f32 v{t + k}, v{kf}, {fx(float(c))}, v{t}")

    def entry(pre, kind):
        if kind != "x":
            a.label(f"{pre}_{kind}")
        if kind == "w2":
            a(f"s_waitcnt vmcnt({3 + NP})")
            a.label(f"{pre}_w2b")
            srd_ws(a, SRD1, "WA2", WA2_SIZE)
        else:
            mark(a, "gen")
        par["even"] = True

    def leave(pre, kind, n):
        if kind == "w1":
            mark(a, "j1")
            a(f"s_cmp_gt_u32 s{sT}, 108")
            a(f"s_cbranch_scc1 {name}_end")
            if FC.w2_pre == 2:
                row_issue(vq20, FC.fl_l2, REGB)
                st = post(a, SRD3, FB, 1, MK, "s_waitcnt vmcnt(5)")
                a("s_barrier")
                a(st)
                mark(a, "p1")
                n = 1
            a(f"s_waitcnt vmcnt({n})")
            a(f"s_branch {pre}_w2b")
        else:
            if kind == "w2":
                a("s_waitcnt lgkmcnt(0)")
            a(f"s_branch {name}_xend" if kind == "x" else f"s_branch {name}_end")

    def addresses(kind):
        if kind == "x":
            filter_loads(range(FC.c_early, 6))
            filter_addr()
        if kind == "w1":
            w1_loads(range(FC.w_early, 5))
            a(f"v_and_b32 v{vr}, 1, v{vG}")
            a(f"v_lshlrev_b32 v{vr}, 7, v{vr}")
            a(f"v_lshl_add_u32 v{vr}, v{vG}, 10, v{vr}")
            a(f"v_lshl_add_u32 v{vr}, v{vI}, 3, v{vr}")
            a(f"v_xor_b32 v{vr + 1}, 128, v{vr}")
        else:
            a(f"v_and_b32 v{vr}, 4, v{vI}")
            a(f"v_lshlrev_b32 v{vr}, 1, v{vr}")
            a(f"v_xor_b32 v{vr}, v{vr}, v{vI}")
            a(f"v_lshlrev_b32 v{vr + 1}, 2, v{vG}")
            a(f"v_xor_b32 v{vr}, v{vr}, v{vr + 1}")
            a(f"v_lshlrev_b32 v{vr}, 4, v{vr}")
            a(f"v_lshl_add_u32 v{vr}, v{vI}, 8, v{vr}")
            for k in (1, 2, 3):
                a(f"v_xor_b32 v{vr + k}, {16 * k}, v{vr}")
        if kind == "x":
            a(f"v_and_b32 v{vld}, 1, v{vI}")
            a(f"v_lshl_add_u32 v{vo}, v{vG}, 1, v{vld}")
            a(vstr(vo, vo, XP_STR))
            a(f"v_and_b32 v{vld}, 14, v{vI}")
            a(f"v_lshl_add_u32 v{vo}, v{vld}, 3, v{vo}")
            a(sstr(sA, sQ, 16 * XP_STR))
            a(f"s_lshl_b32 s{sB}, s{sT}, 7")
            a(f"s_mov_b32 vcc_lo, 0x55555555")
            a(f"s_mov_b32 vcc_hi, 0x55555555")
        elif kind == "w1":
            a(f"v_lshlrev_b32 v{vo}, 4, v{vL}")
            a(f"s_lshl_b32 s{sA}, s{sQ}, 11")
            a(f"s_mul_i32 s{sB}, s{sFT}, 20480")
        else:
            a(f"v_lshrrev_b32 v{vo}, 1, v{vG}")
            a(f"v_mul_u32_u24 v{vo}, {KB_STR}, v{vo}")
            a(f"v_lshrrev_b32 v{vld}, 2, v{vI}")
            a(f"v_lshl_add_u32 v{vo}, v{vld}, 7, v{vo}")
            a(f"v_and_b32 v{vld}, 3, v{vI}")
            a(f"v_lshl_add_u32 v{vo}, v{vld}, 4, v{vo}")
            a(f"v_and_b32 v{vld}, 1, v{vG}")
            a(f"v_lshl_add_u32 v{vo}, v{vld}, 6, v{vo}")
            a(f"s_lshl_b32 s{sA}, s{sQ}, 10")
            a(f"s_mul_i32 s{sB}, s{sT}, {2 * KB_STR}")
        a(f"s_add_u32 s{sA}, s{sA}, s{sB}")
        a(f"v_add_u32 v{vo}, s{sA}, v{vo}")

    def reads(kind, first):
        if kind == "x":
            if not FC.early[0]:
                sync_start()
            mark(a, "l2")
            a(f"s_waitcnt vmcnt({9 + NP + FC.po[0]})")
        elif kind == "w1":
            w2_setup(vq20, ACCX + 1)
            if not FC.early[1]:
                sync_start()
            if FC.w2_pre == 1:
                row_issue(vq20, FC.fl_l2, REGB)
            mark(a, "l2")
            a(f"s_waitcnt vmcnt({5 * (FC.w2_pre == 1) + (0 if FC.early[1] == 1 else 3) + (NP if FC.w_early == 5 else 0)})")
        a("s_barrier")
        mark(a, "b2" if kind == "w2" else "b1")
        for beta in range(4):
            for j in range(5):
                if kind == "w1":
                    for eh in range(2):
                        a(f"ds_read_b64_tr_b16 {R(frag(beta, j) + 2 * eh, 2)}, v{vr + eh} offset:{4096 * j + 256 * beta}")
                else:
                    a(f"ds_read_b128 {R(frag(beta, j), 4)}, v{vr + beta} offset:{lbase[kind] + 4096 * j}")
        if kind == "w1" and not FC.w2_pre:
            row_issue(vq20, FC.fl_l2, REGB)
        if kind == "x":
            mark_unset(1, vld)
        if kind == "w2" and FC.t_late == 2:
            relayout()

    def relayout():
        z, b = vph, vk0
        a(f"v_bfe_u32 v{z}, v{vI}, 1, 1")
        a(f"v_lshl_add_u32 v{z}, v{vG}, 1, v{z}")
        a(f"v_lshrrev_b32 v{b}, 2, v{vI}")
        a(f"v_xor_b32 v{z}, v{z}, v{b}")
        a(f"v_lshlrev_b32 v{z}, 4, v{z}")
        a(f"v_lshl_add_u32 v{z}, v{b}, 8, v{z}")
        a(f"v_and_b32 v{b}, 1, v{vI}")
        a(f"v_lshl_add_u32 v{z}, v{b}, 3, v{z}")
        a(f"s_lshr_b32 s{sA}, s{sW}, 1")
        a(f"s_xor_b32 s{sB}, s{sA}, s{sW}")
        a(f"s_and_b32 s{sB}, s{sB}, 1")
        a(f"s_lshl4_add_u32 s{sA}, s{sA}, s{sB}")
        a(f"s_lshl_b32 s{sA}, s{sA}, 7")
        a(f"v_add_u32 v{z}, s{sA}, v{z}")
        a(f"v_xor_b32 v{b}, {1024 + 128 + 64}, v{z}")
        for j in range(5):
            for eh in range(2):
                a(f"ds_read_b64_tr_b16 {R(aTR + 4 * j + 2 * eh, 2)}, v{z + eh} offset:{REGB + j * 4096}")

    def dispatch(pre):
        for kind in KINDS[1:]:
            a(f"s_cmp_eq_u32 s{sKD}, {kind[-1]}")
            a(f"s_cbranch_scc1 {pre}_{kind}")

    def stage1(sc, n, extra=None):
        for beta in range(4):
            c = 4 * n + beta
            acc = ACC1 + 4 * (c % 4)
            for j in range(5):
                sc.mfma(acc, A1 + 20 * n + 4 * j, frag(beta, j), None if j == 0 else acc,
                        needs=[("y", c - 4)] if j == 0 and c >= 4 else [])
            rdy = sc.n + 5
            if extra:
                extra(beta, acc, rdy, ("y", c))
            for h in range(2):
                sc.add(f"v_cvt_pk_bf16_f32 v{Y + 2 * c + h}, v{acc + 2 * h}, v{acc + 2 * h + 1}", rdy, ("y", c))

    par = {"even": True}
    QP = "quad_perm:[1,0,3,2] row_mask:0xf bank_mask:0xf"

    def stage2(kind, sc, n, u, mat, acc, needs, fix=None):
        for tl in range(2):
            for kp in range(2):
                d = acc + 4 * tl
                m, y = mat + (tl * 2 + kp) * 4, Y + 8 * n + 4 * kp
                nd = list(needs) + [("y", 4 * n + 2 * kp), ("y", 4 * n + 2 * kp + 1)]
                if kind == "w2":
                    sc.mfma(d, y, m, None if kp == 0 else d, needs=nd)
                else:
                    sc.mfma(d, m, y, None if kp == 0 else d, needs=nd)
        rdy, key = sc.n + 3, ("o", n, u)
        if fix:
            fix(rdy, key)
        for k in range(4):
            sc.add(f"v_cvt_pk_bf16_f32 v{acc + k}, v{acc + 2 * k}, v{acc + 2 * k + 1}", rdy, key)
        if kind == "x":
            for ph in range(2):
                lo = par["even"]
                for k in range(2):
                    if lo:
                        sc.add(f"v_cndmask_b32_dpp v{acc + 4 + k}, v{acc + 2 + k}, v{acc + k}, vcc {QP}", rdy, key)
                    else:
                        sc.add(f"v_cndmask_b32_dpp v{acc + 6 + k}, v{acc + k}, v{acc + 2 + k}, vcc {QP}", rdy, key)
                if ph == 0:
                    sc.add("s_not_b64 vcc, vcc", rdy, key)
                    par["even"] = not lo

            def st():
                a(f"s_mov_b32 s{sOP}, {(16 * n + 8 * u) * XP_STR}")
                a(f"buffer_store_dwordx4 {V(acc + 4, 4)}, v{vo}, s[{SRD1}:{SRD1 + 3}], s{sOP} offen{FC.fs[0]}")
            sc.add(st, rdy, key)
        elif kind == "w1":
            def st():
                a(f"s_mov_b32 s{sOP}, {(2 * n + u) * 1024}")
                a(f"buffer_store_dwordx4 {V(acc, 4)}, v{vo}, s[{SRD1}:{SRD1 + 3}], s{sOP} offen{FC.fs[2]}")
            sc.add(st, rdy, key)
        else:
            sc.add(f"v_permlane16_swap_b32 v{acc}, v{acc + 2}", rdy, key)
            sc.add(f"v_permlane16_swap_b32 v{acc + 1}, v{acc + 3}", rdy, key)
            sc.add(f"buffer_store_dwordx4 {V(acc, 4)}, v{vo}, s[{SRD1}:{SRD1 + 3}], 0 offen offset:{1024 * n + 512 * u}{FC.fs[3]}",
                   rdy, key)

    a(f"s_cmp_eq_u32 s{sW}, 3")
    a(f"s_cbranch_scc1 {name}_sp")

    a(f"s_mul_i32 s{sQ}, s{sW}, 3")
    a(f"s_add_u32 s{sQ}, s{sQ}, 1")
    a(f"v_mul_f32 v{vph}, 0.5, v{vph}")
    a(f"v_cvt_f32_u32 v{vq20}, s{sQ}")
    a(f"v_fmamk_f32 v{vk0}, v{vq20}, {fx(1 / 640)}, v{vk0}")
    a(f"v_mul_f32 v{vq20}, {fx(1 / 20)}, v{vq20}")
    a(f"v_mul_u32_u24 v{M2}, 0x8000, v{M2}")
    a(f"v_lshl_or_b32 v{M2}, v{M2}, 16, v{M2}")
    a(f"v_xor_b32 v{M2N}, {SIGN2:#x}, v{M2}")
    a(f"v_and_b32 v{M1}, 1, v{vG}")
    a(f"v_mul_u32_u24 v{M1}, 0x8000, v{M1}")
    a(f"v_lshl_or_b32 v{M1}, v{M1}, 16, v{M1}")
    for n in range(3):
        if n:
            a(f"v_add_f32 v{vk0}, {fx(1 / 640)}, v{vk0}")
            a(f"v_add_f32 v{vq20}, {fx(1 / 20)}, v{vq20}")
        gen_a1(A1 + 20 * n, vq20, f"v{vph}")
        angles(vk0, vph)
        for k in range(8):
            a(f"v_sin_f32 v{TMP + 8 + k}, v{TMP + k}")
            a(f"v_cos_f32 v{TMP + k}, v{TMP + k}")
        b = A2 + 16 * n
        for k in range(8):
            a(f"v_cvt_pk_bf16_f32 v{b + k}, v{TMP + k}, v{TMP + 8 + k}")
            if k & 1:
                a(f"v_cvt_pk_bf16_f32 v{b + 8 + k}, -v{TMP + 8 + k}, v{TMP + k}")
        for k in range(8):
            a(f"v_xor_b32 v{b + 8 + k}, v{M1}, v{b + (8 if k & 1 else 0) + k}")
    dispatch(f"{name}_t")
    for kind in KINDS:
        entry(f"{name}_t", kind)
        addresses(kind)
        reads(kind, True)
        sc = Sched(a)
        dm = [256 + 16 * n if kind == "w1" else A1 + 20 * n for n in range(3)]

        def keep(beta, acc, rdy, key, n):
            for k in range(4 * beta, 4 * beta + 4):
                sc.add(f"v_xor_b32 v{MK + (k & 3)}, v{M2N if k & 1 else M2}, v{A2 + 16 * n + k}", -1, ("d", n))
            for k in range(4 * beta, 4 * beta + 4):
                sc.add(f"v_accvgpr_write_b32 {R(dm[n] + k)}, v{MK + (k & 3)}", -1, ("d", n))

        for n in range(3):
            if kind == "w1":
                stage1(sc, n, lambda *x: keep(*x, n))
                continue
            stage1(sc, n)
            for k in range(16):
                sc.add(f"v_xor_b32 v{A1 + 20 * n + k}, v{M2N if k & 1 else M2}, v{A2 + 16 * n + k}", sc.n, ("d", n))
            if kind == "w2" and FC.w2_pre != 2 and n == FC.p1_at:
                st = post(a, SRD3, FB, 1, MK, "s_waitcnt vmcnt(0)")
                a(f"s_lshl_b32 s{sA}, s{sKD}, 19")
                a(f"s_and_b32 s{sA}, s{sA}, {1 << 20}")
                a(f"v_add_u32 v{MK + 2}, s{sA}, v{MK + 2}")
                a("s_barrier")
                a(st)
                mark(a, "p1")
                if FC.t_late == 1:
                    relayout()
        bufs = [ACCX, ACC1, ACC1 + 8]
        hist = [[], [("y", 8), ("y", 9)], [("y", 10), ("y", 11)]]
        for k in range(6):
            n, u = divmod(k, 2)
            needs = hist[k] if k < 3 else [("o",) + divmod(k - 3, 2)]
            if u:
                needs = needs + [("d", n)]
            stage2(kind, sc, n, u, dm[n] if u else A2 + 16 * n, bufs[k % 3], needs)
        sc.flush()
        if kind == "x":
            a(f"s_waitcnt vmcnt({6 + NX + FC.po[1]})")
        leave(f"{name}_t", kind, 6)

    a.label(f"{name}_sp")
    a(f"s_mov_b32 s{sQ}, 0")
    gen_a1(A1, vph, "0")
    a(f"v_mul_f32 v{vph}, 0.5, v{vph}")
    kf, ph = vq20, M1
    for tau in range(4):
        if tau == 0:
            a(f"v_cmp_eq_u32 vcc, 0, v{vI}")
            a(f"v_mov_b32 v{kf}, 0.5")
            a(f"v_cndmask_b32 v{kf}, v{vk0}, v{kf}, vcc")
            a(f"v_cmp_gt_u32 vcc, 2, v{vI}")
            a(f"v_mov_b32 v{ph}, {fx(0.125)}")
            a(f"v_cndmask_b32 v{ph}, v{vph}, v{ph}, vcc")
        else:
            a(f"v_add_f32 v{kf}, {fx(tau / 4 + (10 / 640 if tau >= 2 else 0))}, v{vk0}")
            a(f"v_mul_f32 v{ph}, {'-1.0' if tau >= 2 else '1.0'}, v{vph}")
        angles(kf, ph)
        for k in range(8):
            a(f"v_cos_f32 v{TMP + k}, v{TMP + k}")
        for k in range(8):
            d = A2 + 8 * tau + k
            a(f"v_cvt_pk_bf16_f32 v{d}, v{TMP + k}, 0" if tau < 2 else f"v_cvt_pk_bf16_f32 v{d}, 0, v{TMP + k}")
    dispatch(f"{name}_s")
    X0 = A2 + 32
    vs, vz, vb, GR, SM, T = X0, X0 + 1, X0 + 2, X0 + 4, X0 + 8, X0 + 12
    TR = A1 + 20
    DIAG = (4, 6, 30, 70)
    for kind in KINDS:
        entry(f"{name}_s", kind)
        addresses(kind)
        if kind == "x":
            srd_ws(a, SRD2, "SS0", SS_SIZE)
            a(f"s_lshr_b32 s{sA}, s{sT}, 4")
            a(f"s_lshl_b32 s{sA}, s{sA}, 10")
            a(f"s_and_b32 s{sB}, s{sT}, 7")
            a(f"s_lshl_b32 s{sB}, s{sB}, 7")
            a(f"s_add_u32 s{sA}, s{sA}, s{sB}")
            a(f"s_and_b32 s{sB}, s{sT}, 8")
            a(f"s_add_u32 s{sA}, s{sA}, s{sB}")
            a(f"v_lshrrev_b32 v{vs}, 1, v{vI}")
            a(f"v_lshlrev_b32 v{vs}, 4, v{vs}")
            a(f"v_lshl_add_u32 v{vs}, v{M2}, 2, v{vs}")
            a(f"v_lshl_add_u32 v{vs}, v{vG}, 20, v{vs}")
            a(f"v_add_u32 v{vs}, s{sA}, v{vs}")
            for r in range(4):
                m = 0x1000010000100001 << r
                a(f"s_mov_b32 s{DIAG[r]}, {m & 0xffffffff:#x}")
                a(f"s_mov_b32 s{DIAG[r] + 1}, {m >> 32:#x}")
        if kind == "w1":
            a(f"s_mov_b64 s[{sM0}:{sM1}], 0xffff")
        if kind == "w2" and not FC.t_late:
            srd_ws(a, SRD2, "W2T", W2T_SIZE)
            a(f"v_bfe_u32 v{vz}, v{vI}, 1, 1")
            a(f"v_lshl_add_u32 v{vz}, v{vG}, 1, v{vz}")
            a(f"v_lshrrev_b32 v{vb}, 2, v{vI}")
            a(f"v_xor_b32 v{vz}, v{vz}, v{vb}")
            a(f"v_lshlrev_b32 v{vz}, 4, v{vz}")
            a(f"v_lshl_add_u32 v{vz}, v{vb}, 8, v{vz}")
            a(f"v_lshl_add_u32 v{vz}, v{M2}, 3, v{vz}")
            a(f"v_xor_b32 v{vb}, {1024 + 64}, v{vz}")
            a(f"s_mul_i32 s{sA}, s{sT}, {2 * KB_STR}")
            a(f"v_lshl_add_u32 v{vs}, v{vL}, 4, s{sA}")
        reads(kind, False)
        sc = Sched(a)

        def tr_read(n):
            h, x = divmod(n, 10)
            return [f"ds_read_b64_tr_b16 {V(TR + 4 * (n % 10) + 2 * eh, 2)}, v{vz + eh} "
                    f"offset:{REGB + (x >> 1) * 4096 + h * 2048 + 128 * ((x ^ h ^ eh) & 1)}" for eh in range(2)]

        def tr_store(n):
            if n % 4 == 0:
                a(f"s_mov_b32 s{sOQ}, {n * 1024}")
            a(f"buffer_store_dwordx4 {V(TR + 4 * (n % 10), 4)}, v{vs}, s[{SRD2}:{SRD2 + 3}], s{sOQ} offen offset:{(n % 4) * 1024}{FC.fs[4]}")

        if kind == "w2" and not FC.t_late:
            for n in range(10):
                for op in tr_read(n):
                    a(op)

        def sums(beta, acc, rdy, key):
            sc.add(f"v_add_f32 v{SM + beta}, v{acc}, v{acc + 2}", rdy, key)

        stage1(sc, 0, sums if kind == "x" else None)
        if kind == "x":
            for k in range(10):
                sc.mfma(GR, DAT + 4 * k, DAT + 4 * k, None if k == 0 else GR)

        def fix(rdy, key):
            sc.add(f"v_accvgpr_read_b32 v{vb}, {R(aB)}", rdy, key)
            sc.add(f"v_lshlrev_b32 v{vb}, 16, v{vb}", rdy, key)
            sc.add(f"v_cndmask_b32_e64 v{ACCX + 1}, v{ACCX + 1}, v{vb}, s[{sM0}:{sM1}]", rdy, key)

        if kind == "w2" and FC.t_late:
            if FC.t_late == 1:
                relayout()
            a("s_waitcnt vmcnt(0)")
            a("s_barrier")
        elif kind == "w2":
            sc.flush()
            for n in range(10):
                tr_store(n)
                for op in tr_read(n + 10):
                    a(op)
                if n == FC.t_pre - 1 and FC.w2_pre != 2:
                    a(f"s_waitcnt vmcnt({FC.t_pre})")
                    a("s_barrier")
        stage2(kind, sc, 0, 0, A2, ACCX, [], fix if kind == "w1" else None)
        stage2(kind, sc, 0, 1, A2 + 16, ACC1, [("y", 0), ("y", 1)])
        if kind == "w2" and not FC.t_late:
            for n in range(10, 20):
                tr_store(n)
        if kind == "x":
            sc.add(f"v_add_f32 v{SM}, v{SM}, v{SM + 1}")
            sc.add(f"v_add_f32 v{SM + 2}, v{SM + 2}, v{SM + 3}")
            sc.add(f"v_add_f32 v{SM}, v{SM}, v{SM + 2}")
            for op in ("v_permlane32_swap_b32", "v_permlane16_swap_b32"):
                sc.add(f"v_mov_b32 v{SM + 1}, v{SM}")
                sc.add(f"{op} v{SM}, v{SM + 1}")
                sc.add(f"v_add_f32 v{SM}, v{SM}, v{SM + 1}")
            sc.add(f"v_mul_f32 v{SM}, {fx(2.0 ** -FC.xscale)}, v{SM}")
            sc.add(f"v_mul_f32 v{SM}, v{SM}, v{SM}")
            for k in range(10, 20):
                sc.mfma(GR, DAT + 4 * k, DAT + 4 * k, GR)
        sc.flush()
        if kind == "x":
            for r in range(4):
                prev = "0" if r == 0 else f"v{T}"
                a(f"v_cndmask_b32_e64 v{T}, {prev}, v{GR + r}, s[{DIAG[r]}:{DIAG[r] + 1}]")
            for op in ("v_permlane32_swap_b32", "v_permlane16_swap_b32"):
                a(f"v_mov_b32 v{T + 1}, v{T}")
                a(f"{op} v{T}, v{T + 1}")
                a(f"v_add_f32 v{T}, v{T}, v{T + 1}")
            a(f"v_fmamk_f32 v{T}, v{SM}, {fx(-1.0 / (model2.SC * model2.SC * DM))}, v{T}")
            a(f"v_max_f32 v{T}, 0, v{T}")
            a(f"buffer_store_dword v{T}, v{vs}, s[{SRD2}:{SRD2 + 3}], 0 offen sc1")
            a(f"s_waitcnt vmcnt({3 + NX + FC.po[1]})")
        leave(f"{name}_s", kind, 2)

    a.label(f"{name}_xend")
    mark(a, "j1")
    filter_job()
    mark_unset(2, vld)
    a.label(f"{name}_end")
    mark(a, "j2")
    a(f"s_mov_b32 s{sT}, s2")
```

```python
import sys
import struct
import numpy as np

sys.path.insert(0, "gen")
from asmlib import Asm, Inst, R, V, A, S
import model

SEQ, DM, FF = 2048, 640, 1728

import os
XPAD, HPAD = int(os.environ.get('XPAD', 0)), int(os.environ.get('HPAD', 0))
XP_STR = SEQ * 8 + XPAD
XP_SIZE = 160 * XP_STR
H_STR = SEQ * 16 + HPAD
H_SIZE = 216 * H_STR
W1F_STR = FF * 16
W1F_SIZE = 80 * W1F_STR
KB_STR = DM * 16
WA2_SIZE = 224 * KB_STR
W2T_SIZE = 224 * KB_STR
FT_SIZE = 80 * KB_STR
WC_STR = 16384 + int(os.environ.get('WPAD', 0))
WC_SIZE = 160 * WC_STR
SS_SIZE = 8192
SS2_SIZE = 16384
FLAG_SIZE = 320 * 1024

SLOT = 0x238000
WS = {"W1F": 0x8000, "WA2": SLOT + 0x1000, "W2T": 2 * SLOT + 0x1000}
_off = 3 * SLOT
for _name, _size in (("XP0", XP_SIZE), ("WC", WC_SIZE), ("SS0", SS_SIZE), ("SS2", SS2_SIZE), ("FLAG", FLAG_SIZE),
                     ("H", H_SIZE), ("X3", XP_SIZE), ("STAMP", 1 << 21)):
    WS[_name] = _off
    _off += (_size + 4095) // 4096 * 4096
WS_END = _off

P_X, P_WR, P_WI, P_W1, P_B1, P_W2, P_B2, P_OUT, P_WS = 8, 10, 12, 16, 18, 20, 22, 24, 28
SRD0, SRD1, SRD2, SRD3, SRD4, SRD5 = 32, 36, 40, 44, 48, 52
sW, sT, sA, sB, sC, sD, sE, sF = 56, 57, 58, 59, 60, 61, 62, 63
sOP, sOQ = 64, 65
sK0, sK1, sK2, sK3 = 66, 67, 68, 69
sM0, sM1 = 70, 71
sST = 72
vI, vG, vL = 1, 2, 3


def f32bits(x):
    return struct.unpack("<I", struct.pack("<f", x))[0]


def srd(a, dst, base, off, size):
    if off:
        a(f"s_add_u32 s{dst}, s{base}, {off}")
        a(f"s_addc_u32 s{dst + 1}, s{base + 1}, 0")
        a(f"s_and_b32 s{dst + 1}, s{dst + 1}, 0xffff")
    else:
        a(f"s_mov_b32 s{dst}, s{base}")
        a(f"s_and_b32 s{dst + 1}, s{base + 1}, 0xffff")
    a(f"s_mov_b32 s{dst + 2}, {size}")
    a(f"s_mov_b32 s{dst + 3}, 0x20000")


def srd_ws(a, dst, name, size):
    srd(a, dst, P_WS, WS[name], size)


def srd_table(a, dst, sym):
    a(f"s_getpc_b64 s[{dst}:{dst + 1}]")
    a(f"s_add_u32 s{dst}, s{dst}, {sym}@rel32@lo+4")
    a(f"s_addc_u32 s{dst + 1}, s{dst + 1}, {sym}@rel32@hi+12")
    a(f"s_and_b32 s{dst + 1}, s{dst + 1}, 0xffff")
    a(f"s_mov_b32 s{dst + 2}, {FT_SIZE}")
    a(f"s_mov_b32 s{dst + 3}, 0x20000")


def srd_code(a, dst, kern):
    a(f"s_getpc_b64 s[{dst}:{dst + 1}]")
    a(f"s_add_u32 s{dst}, s{dst}, {kern}_code@rel32@lo+4")
    a(f"s_addc_u32 s{dst + 1}, s{dst + 1}, {kern}_code@rel32@hi+12")
    a(f"s_and_b32 s{dst + 1}, s{dst + 1}, 0xffff")
    a(f"s_mov_b32 s{dst + 2}, {kern}_cend-{kern}_code")
    a(f"s_mov_b32 s{dst + 3}, 0x20000")


class Cfg:
    stamp = False
    clk = False
    nodot = 0
    g2depth = 7
    g2lay = 0
    plan = 0
    pdepth = 4
    st_flags = ""
    dcbias = 0
    rho = 0


def mark(a, n):
    if Cfg.stamp:
        op = "s_memtime" if Cfg.clk and n < 11 else "s_memrealtime"
        a(f"{op} s[{sST + 2 * n}:{sST + 2 * n + 1}]")


def mfma(a, d, x, y, c):
    a(f"v_mfma_f32_16x16x32_bf16 {R(d, 4)}, {R(x, 4)}, {R(y, 4)}, {'0' if c is None else R(c, 4)}")


def gemm_ks(a, nsteps, depth, acc, ring, vred, p_is_a, issue_p, issue_q, q_regs=16, prep_q=None,
            after_prologue=None, step_hook=None):
    stage = 20 + q_regs

    def accr(p, q):
        return acc + (q * 5 + p) * 4

    def preg(t, p):
        return ring + (t % depth) * stage + p * 4

    def qbase(t):
        return ring + (t % depth) * stage + 20

    def load_step(t):
        ops = []
        for q in range(4):
            ops.append(("q", q))
        for p in range(5):
            ops.append(("p", p))
        order = [ops[0], ops[4], ops[5], ops[1], ops[6], ops[7], ops[8], ops[2], ops[3]]
        for kind, j in order:
            if kind == "p":
                issue_p(t, j, preg(t, j))
            else:
                issue_q(t, j, qbase(t))

    for t in range(min(depth, nsteps)):
        load_step(t)
    if after_prologue:
        after_prologue()

    vw = [vred, vred + 1, vred + 2]
    vr = vred + 3
    a(f"v_lshlrev_b32 v{vr}, 4, v{vL}")
    for ql in (1, 2, 3):
        a(f"s_xor_b32 s{sA}, s{sW}, {ql}")
        a(f"s_mul_i32 s{sA}, s{sA}, 15360")
        a(f"s_add_u32 s{sA}, s{sA}, {(ql - 1) * 5120}")
        a(f"v_add_u32 v{vw[ql - 1]}, s{sA}, v{vr}")
    a(f"s_mul_i32 s{sA}, s{sW}, 15360")
    a(f"v_add_u32 v{vr}, s{sA}, v{vr}")

    def wr(q, p):
        a(f"ds_write_b128 v{vw[q - 1]}, {R(accr(p, q), 4)} offset:{p * 1024}")

    mark(a, 1)
    for t in range(nsteps):
        last = t == nsteps - 1
        if t == 1:
            mark(a, 2)
        if t == depth:
            mark(a, 3)
        if step_hook:
            step_hook(t, qbase(t))
        if prep_q:
            qf = prep_q(t, qbase(t))
        else:
            qf = [qbase(t) + q * 4 for q in range(4)]
        qorder = (1, 2, 3, 0) if last else (0, 1, 2, 3)
        nxt = t + depth
        for n, q in enumerate(qorder):
            for p in range(5):
                c = None if t == 0 else accr(p, q)
                if p_is_a:
                    mfma(a, accr(p, q), preg(t, p), qf[q], c)
                else:
                    mfma(a, accr(p, q), qf[q], preg(t, p), c)
                if last and n >= 2:
                    wr(qorder[n - 2], p)
                if nxt < nsteps:
                    if n == 3:
                        issue_p(nxt, p, preg(nxt, p))
                    if p == 4 and (not prep_q):
                        issue_q(nxt, q, qbase(nxt))
                    if prep_q and n == 0 and p < 4:
                        issue_q(nxt, p, qbase(nxt))
        if last:
            for p in range(5):
                wr(3, p)
    mark(a, 4)
    a("s_waitcnt lgkmcnt(0)")
    a("s_barrier")
    mark(a, 5)
    for p in range(5):
        for src in range(3):
            a(f"ds_read_b128 {R(accr(p, src + 1), 4)}, v{vr} offset:{src * 5120 + p * 1024}")
    for p in range(5):
        for h in (0, 2):
            d = accr(p, 0) + h
            a(f"v_pk_add_f32 {V(accr(p, 1) + h, 2)}, {V(accr(p, 1) + h, 2)}, {V(accr(p, 2) + h, 2)}")
            a(f"v_pk_add_f32 {V(d, 2)}, {V(d, 2)}, {V(accr(p, 3) + h, 2)}")
        for h in (0, 2):
            d = accr(p, 0) + h
            a(f"v_pk_add_f32 {V(d, 2)}, {V(d, 2)}, {V(accr(p, 1) + h, 2)}")
    return [accr(p, 0) for p in range(5)]


KS_LDS = 61440


def p_loader(a, vp, srd_p, step_bytes):
    state = {"t": None}

    def issue(t, p, dst):
        if state["t"] != t:
            a(f"s_mov_b32 s{sOP}, {t * step_bytes}")
            state["t"] = t
        a(f"buffer_load_dwordx4 {R(dst, 4)}, v{vp}, s[{srd_p}:{srd_p + 3}], s{sOP} offen offset:{p * 256}")
    return issue


def p_addr(a, vp, s_c, wave_steps):
    a(f"v_mul_u32_u24 v{vp}, {DM}, v{vG}")
    a(f"v_add_lshl_u32 v{vp}, v{vp}, v{vI}, 4")
    a(f"s_mul_i32 s{sA}, s{s_c}, 1280")
    a(f"s_mul_i32 s{sB}, s{sW}, {wave_steps * 4 * KB_STR}")
    a(f"s_add_u32 s{sA}, s{sA}, s{sB}")
    a(f"v_add_u32 v{vp}, s{sA}, v{vp}")


def rowmajor_q(a, vq, s_row0, srd_q):
    a(f"v_mul_u32_u24 v{vq}, 1280, v{vI}")
    a(f"v_lshl_add_u32 v{vq}, v{vG}, 4, v{vq}")
    a(f"s_mul_i32 s{sA}, s{s_row0}, 1280")
    a(f"s_mul_i32 s{sB}, s{sW}, 320")
    a(f"s_add_u32 s{sA}, s{sA}, s{sB}")
    for ql in (3, 2, 1, 0):
        a(f"s_xor_b32 s{sB}, s{sW}, {ql}")
        a(f"s_mul_i32 s{sB}, s{sB}, {16 * 1280}")
        a(f"s_add_u32 s{sB}, s{sB}, s{sA}")
        a(f"v_add_u32 v{vq + ql}, s{sB}, v{vq}")

    def issue(t, q, qb):
        a(f"buffer_load_dwordx4 {R(qb + q * 4, 4)}, v{vq + q}, s[{srd_q}:{srd_q + 3}], 0 offen offset:{t * 64}")
    return issue


def role_xhat0(a, depth):
    vp, vq, vred, vo, acc = 4, 5, 9, 13, 16
    ring = 256
    a(f"s_and_b32 s{sC}, s{sT}, 7")
    a(f"s_lshl_b32 s{sC}, s{sC}, 2")
    a(f"s_bfe_u32 s{sD}, s{sT}, 0x20003")
    a(f"s_add_u32 s{sC}, s{sC}, s{sD}")
    a(f"s_lshl_b32 s{sC}, s{sC}, 6")
    a(f"s_lshr_b32 s{sD}, s{sT}, 5")
    srd_table(a, SRD0, "ft1")
    p_addr(a, vp, sD, 5)
    iq = rowmajor_q(a, vq, sC, SRD1)
    a("s_waitcnt lgkmcnt(0)")
    srd(a, SRD1, P_X, 0, SEQ * DM * 2)
    ip = p_loader(a, vp, SRD0, 4 * KB_STR)

    def post():
        srd_ws(a, SRD2, "XP0", XP_SIZE)
        a(f"s_mul_i32 s{sA}, s{sD}, {20 * XP_STR}")
        a(f"s_lshl_b32 s{sB}, s{sW}, 4")
        a(f"s_add_u32 s{sB}, s{sB}, s{sC}")
        a(f"s_lshl_b32 s{sB}, s{sB}, 3")
        a(f"s_add_u32 s{sA}, s{sA}, s{sB}")
        a(f"v_lshlrev_b32 v{vo}, 14, v{vG}")
        a(f"v_lshl_add_u32 v{vo}, v{vI}, 3, v{vo}")
        a(f"v_add_u32 v{vo}, s{sA}, v{vo}")

    res = gemm_ks(a, 5, depth, acc, ring, vred, True, ip, iq, after_prologue=post)
    for p, r in enumerate(res):
        a(f"v_cvt_pk_bf16_f32 v{r}, v{r}, v{r + 1}")
        a(f"v_cvt_pk_bf16_f32 v{r + 1}, v{r + 2}, v{r + 3}")
        a(f"s_mov_b32 s{sOP}, {p * 4 * XP_STR}")
        a(f"buffer_store_dwordx2 {V(r, 2)}, v{vo}, s[{SRD2}:{SRD2 + 3}], s{sOP} offen{Cfg.st_flags}")
    return KS_LDS


def role_w2f(a, depth, ring=256):
    vp, vq, vred, vo, acc = 4, 5, 9, 13, 16
    a(f"s_and_b32 s{sD}, s{sT}, 7")
    a(f"s_lshr_b32 s{sE}, s{sT}, 3")
    a(f"s_lshl_b32 s{sC}, s{sE}, 6")
    a(f"s_cmp_eq_u32 s{sE}, 27")
    a(f"s_cselect_b32 s{sC}, 0, s{sC}")
    srd_table(a, SRD0, "ft1")
    p_addr(a, vp, sD, 5)
    iq = rowmajor_q(a, vq, sC, SRD1)
    a("s_waitcnt lgkmcnt(0)")
    a(f"s_cmp_eq_u32 s{sE}, 27")
    a(f"s_cselect_b32 s{SRD1}, s{P_B2}, s{P_W2}")
    a(f"s_cselect_b32 s{SRD1 + 1}, s{P_B2 + 1}, s{P_W2 + 1}")
    a(f"s_mov_b32 s{SRD1 + 2}, {FF * DM * 2}")
    a(f"s_cselect_b32 s{SRD1 + 2}, {DM * 2}, s{SRD1 + 2}")
    a(f"s_and_b32 s{SRD1 + 1}, s{SRD1 + 1}, 0xffff")
    a(f"s_mov_b32 s{SRD1 + 3}, 0x20000")
    ip = p_loader(a, vp, SRD0, 4 * KB_STR)

    def post():
        srd_ws(a, SRD2, "WA2", WA2_SIZE)
        a(f"s_lshl_b32 s{sA}, s{sE}, 2")
        a(f"s_add_u32 s{sA}, s{sA}, s{sW}")
        a(f"s_mul_i32 s{sA}, s{sA}, {2 * KB_STR}")
        a(f"s_mul_i32 s{sB}, s{sD}, 1280")
        a(f"s_add_u32 s{sA}, s{sA}, s{sB}")
        a(f"v_lshrrev_b32 v{vo}, 1, v{vG}")
        a(f"v_mul_u32_u24 v{vo}, {KB_STR}, v{vo}")
        a(f"v_lshl_add_u32 v{vo}, v{vI}, 4, v{vo}")
        a(f"v_and_b32 v{vo + 1}, 1, v{vG}")
        a(f"v_lshl_add_u32 v{vo}, v{vo + 1}, 3, v{vo}")
        a(f"v_add_u32 v{vo}, s{sA}, v{vo}")

    res = gemm_ks(a, 5, depth, acc, ring, vred, False, ip, iq, after_prologue=post)
    for p, r in enumerate(res):
        a(f"v_cvt_pk_bf16_f32 v{r}, v{r}, v{r + 1}")
        a(f"v_cvt_pk_bf16_f32 v{r + 1}, v{r + 2}, v{r + 3}")
        a(f"buffer_store_dwordx2 {V(r, 2)}, v{vo}, s[{SRD2}:{SRD2 + 3}], 0 offen offset:{p * 256}{Cfg.st_flags}")
    return KS_LDS


def role_w1f(a, depth):
    vp, vq, vred, vo, acc, qt = 4, 5, 9, 13, 16, 96
    ring = 112
    a(f"s_and_b32 s{sD}, s{sT}, 7")
    a(f"s_lshr_b32 s{sE}, s{sT}, 3")
    srd_table(a, SRD0, "ft1")
    p_addr(a, vp, sD, 5)
    a(f"v_mul_u32_u24 v{vq}, {8 * FF * 2}, v{vG}")
    a(f"v_lshl_add_u32 v{vq}, v{vI}, 3, v{vq}")
    a(f"s_mul_i32 s{sA}, s{sW}, {160 * FF * 2}")
    a(f"s_lshl_b32 s{sB}, s{sE}, 7")
    a(f"s_add_u32 s{sA}, s{sA}, s{sB}")
    a(f"v_add_u32 v{vq}, s{sA}, v{vq}")
    a(f"s_mov_b32 s{sA}, 0x05040100")
    a(f"s_bitcmp1_b32 s{sW}, 0")
    a(f"s_cselect_b32 s{sK0}, 0x07060302, s{sA}")
    a(f"s_cselect_b32 s{sK1}, s{sA}, 0x07060302")
    a(f"s_bitcmp1_b32 s{sW}, 1")
    a(f"s_cselect_b64 s[{sM0}:{sM1}], -1, 0")
    a("s_waitcnt lgkmcnt(0)")
    srd(a, SRD1, P_W1, 0, DM * FF * 2)
    ip = p_loader(a, vp, SRD0, 4 * KB_STR)

    def iq(t, q, qb):
        for j in (2 * q, 2 * q + 1):
            off = (t * 32 + j) * FF * 2
            if j & 1:
                a(f"buffer_load_dwordx2 {R(qb + j * 2, 2)}, v{vq}, s[{SRD1}:{SRD1 + 3}], s{sOQ} offen offset:{FF * 2}")
            else:
                a(f"s_mov_b32 s{sOQ}, {off}")
                a(f"buffer_load_dwordx2 {R(qb + j * 2, 2)}, v{vq}, s[{SRD1}:{SRD1 + 3}], s{sOQ} offen")

    def prep(t, qb):
        a(f"s_mov_b64 exec, s[{sM0}:{sM1}]")
        for j in range(8):
            a(f"v_swap_b32 v{qb + 2 * j}, v{qb + 2 * j + 1}")
        a("s_mov_b64 exec, -1")
        for ql in range(4):
            for m in range(4):
                sel = sK1 if ql & 1 else sK0
                a(f"v_perm_b32 v{qt + ql * 4 + m}, v{qb + (2 * m + 1) * 2 + (ql >> 1)}, v{qb + (2 * m) * 2 + (ql >> 1)}, s{sel}")
        return [qt + ql * 4 for ql in range(4)]

    def post():
        srd_ws(a, SRD2, "W1F", W1F_SIZE)
        a(f"s_mul_i32 s{sA}, s{sD}, {10 * W1F_STR}")
        a(f"s_lshl_b32 s{sB}, s{sE}, 6")
        a(f"s_add_u32 s{sB}, s{sB}, s{sW}")
        a(f"s_lshl_b32 s{sB}, s{sB}, 4")
        a(f"s_add_u32 s{sA}, s{sA}, s{sB}")
        a(f"v_lshrrev_b32 v{vo}, 1, v{vG}")
        a(f"v_mul_u32_u24 v{vo}, {W1F_STR}, v{vo}")
        a(f"v_lshl_add_u32 v{vo}, v{vI}, 6, v{vo}")
        a(f"v_and_b32 v{vo + 1}, 1, v{vG}")
        a(f"v_lshl_add_u32 v{vo}, v{vo + 1}, 3, v{vo}")
        a(f"v_add_u32 v{vo}, s{sA}, v{vo}")
        if Cfg.dcbias:
            srd(a, SRD3, P_B1, 0, FF * 2)
            a(f"s_lshr_b32 s{sB}, s{sB}, 3")
            a(f"v_lshl_add_u32 v6, v{vI}, 3, s{sB}")
            a(f"buffer_load_ushort v7, v6, s[{SRD3}:{SRD3 + 3}], 0 offen")
            a(f"s_cmp_eq_u32 s{sD}, 0")
            a(f"s_cselect_b32 s{sK2}, 0xffff, 0")
            a(f"s_mov_b32 s{sK3}, 0")

    res = gemm_ks(a, 5, depth, acc, ring, vred, True, ip, iq, prep_q=prep, after_prologue=post)
    if Cfg.dcbias:
        a(f"v_lshlrev_b32 v7, 16, v7")
        a(f"v_cndmask_b32_e64 v{res[0] + 1}, v{res[0] + 1}, v7, s[{sK2}:{sK3}]")
    for p, r in enumerate(res):
        a(f"v_cvt_pk_bf16_f32 v{r}, v{r}, v{r + 1}")
        a(f"v_cvt_pk_bf16_f32 v{r + 1}, v{r + 2}, v{r + 3}")
        a(f"s_mov_b32 s{sOP}, {p * 2 * W1F_STR}")
        a(f"buffer_store_dwordx2 {V(r, 2)}, v{vo}, s[{SRD2}:{SRD2 + 3}], s{sOP} offen{Cfg.st_flags}")
    return KS_LDS


def role_wc(a):
    va, vo, vo3, vt, ld, st = 4, 5, 6, 7, 8, 40
    a(f"s_mul_hi_u32 s{sC}, s{sT}, {(1 << 32) // 5 + 1}")
    a(f"s_mul_i32 s{sD}, s{sC}, 5")
    a(f"s_sub_u32 s{sD}, s{sT}, s{sD}")
    a(f"s_lshl_b32 s{sD}, s{sD}, 2")
    a(f"s_add_u32 s{sD}, s{sD}, s{sW}")
    a(f"s_lshl_b32 s{sD}, s{sD}, 2")
    a(f"v_add_u32 v{vt}, s{sD}, v{vG}")
    a(f"v_mul_u32_u24 v{va}, 642, v{vI}")
    a(f"v_lshl_add_u32 v{va}, v{vt}, 3, v{va}")
    a(f"s_mul_i32 s{sA}, s{sC}, {128 * 642}")
    a(f"s_add_u32 s{sA}, s{sA}, 2")
    a(f"v_add_u32 v{va}, s{sA}, v{va}")
    a(f"s_lshr_b32 s{sA}, s{sC}, 2")
    a(f"s_lshl_b32 s{sA}, s{sA}, 11")
    a(f"s_and_b32 s{sB}, s{sC}, 3")
    a(f"s_lshl_b32 s{sB}, s{sB}, 8")
    a(f"s_add_u32 s{sA}, s{sA}, s{sB}")
    a(f"v_lshlrev_b32 v{vo3}, 4, v{vI}")
    a(f"v_add_u32 v{vo3}, s{sA}, v{vo3}")
    a(f"v_lshl_add_u32 v{vo}, v{vt}, 15, v{vo3}")
    a(f"v_cmp_eq_u32 vcc, 79, v{vt}")
    a(f"v_add_u32 v{vt}, {4 * 8192}, v{vo}")
    a(f"v_cndmask_b32 v{vo3}, v{vt}, v{vo3}, vcc")
    a(f"s_mov_b32 s{sK0}, 0x05040100")
    a(f"s_mov_b32 s{sK1}, 0x07060302")
    a("s_waitcnt lgkmcnt(0)")
    srd(a, SRD0, P_WR, 0, SEQ * 642)
    srd(a, SRD1, P_WI, 0, SEQ * 642)
    srd_ws(a, SRD2, "WC", WC_SIZE)
    for u in range(2):
        for r in range(4):
            a(f"s_mov_b32 s{sOP}, {(32 * r + 16 * u) * 642}")
            b = ld + (u * 4 + r) * 4
            a(f"buffer_load_dwordx2 {V(b, 2)}, v{va}, s[{SRD0}:{SRD0 + 3}], s{sOP} offen")
            a(f"buffer_load_dwordx2 {V(b + 2, 2)}, v{va}, s[{SRD1}:{SRD1 + 3}], s{sOP} offen")
    for u in range(2):
        for e in range(4):
            o = st + (u * 4 + e) * 4
            for r in range(4):
                b = ld + (u * 4 + r) * 4
                a(f"v_perm_b32 v{o + r}, v{b + 2 + (e >> 1)}, v{b + (e >> 1)}, s{sK1 if e & 1 else sK0}")
            if e < 3:
                a(f"s_mov_b32 s{sOP}, {(e + 1) * 8192}")
                a(f"buffer_store_dwordx4 {V(o, 4)}, v{vo}, s[{SRD2}:{SRD2 + 3}], s{sOP} offen offset:{u * 1024}{Cfg.st_flags}")
            else:
                a(f"buffer_store_dwordx4 {V(o, 4)}, v{vo3}, s[{SRD2}:{SRD2 + 3}], 0 offen offset:{u * 1024}{Cfg.st_flags}")
    return 0


def dpp_rowsum(a, v, t):
    for k in (8, 4, 2, 1):
        a(f"v_add_f32_dpp v{v}, v{v}, v{v} row_ror:{k} row_mask:0xf bank_mask:0xf")


def role_stats(a):
    va, vo, vt, vz, vone, sm, sq, t0, ld = 4, 5, 6, 7, 8, 10, 12, 16, 20
    a(f"s_lshl_b32 s{sA}, s{sT}, 5")
    a(f"s_lshl_b32 s{sB}, s{sW}, 3")
    a(f"s_add_u32 s{sA}, s{sA}, s{sB}")
    a(f"v_add_u32 v{vt}, s{sA}, v{vG}")
    a(f"v_mul_u32_u24 v{va}, 1280, v{vt}")
    a(f"v_lshl_add_u32 v{va}, v{vI}, 4, v{va}")
    a("s_waitcnt lgkmcnt(0)")
    srd(a, SRD0, P_X, 0, SEQ * DM * 2)
    a(f"s_mov_b32 s{sOP}, {4 * 1280}")
    for h in range(2):
        for j in range(5):
            so = f"s{sOP}" if h else "0"
            a(f"buffer_load_dwordx4 {V(ld + (h * 5 + j) * 4, 4)}, v{va}, s[{SRD0}:{SRD0 + 3}], {so} offen offset:{j * 256}")
    srd_ws(a, SRD1, "SS0", 2 * SS_SIZE)
    a(f"v_bfe_u32 v{vo}, v{vt}, 4, 2")
    a(f"v_lshlrev_b32 v{vo}, 3, v{vo}")
    a(f"v_lshrrev_b32 v{vz}, 8, v{vt}")
    a(f"v_add_u32 v{vo}, v{vo}, v{vz}")
    a(f"v_and_b32 v{vz}, 15, v{vt}")
    a(f"v_lshl_add_u32 v{vo}, v{vo}, 4, v{vz}")
    a(f"v_bfe_u32 v{vz}, v{vt}, 6, 2")
    a(f"v_lshl_add_u32 v{vo}, v{vo}, 2, v{vz}")
    a(f"v_lshlrev_b32 v{vo}, 2, v{vo}")
    a(f"v_mov_b32 v{vz}, 0")
    a(f"v_mov_b32 v{vone}, 0x3f803f80")
    a(f"s_mov_b32 s{sOQ}, {WS['SS2'] - WS['SS0']}")
    a(f"s_mov_b32 s{sK0}, 0xffff0000")
    for h in range(2):
        a(f"buffer_store_dword v{vz}, v{vo}, s[{SRD1}:{SRD1 + 3}], s{sOQ} offen offset:{h * 64}")
    if Cfg.dcbias:
        srd_ws(a, SRD2, "FLAG", FLAG_SIZE)
        a(f"s_lshl_b32 s{sA}, s{sT}, 10")
        a(f"v_lshl_add_u32 v9, v0, 2, s{sA}")
        a(f"buffer_store_dword v{vz}, v9, s[{SRD2}:{SRD2 + 3}], 0 offen")
    for h in range(2):
        a(f"v_mov_b32 v{sm + h}, 0")
        a(f"v_mov_b32 v{sq + 2 * h}, 0")
        a(f"v_mov_b32 v{sq + 2 * h + 1}, 0")
    for h in range(2):
        for k in range(20):
            a(f"v_dot2c_f32_bf16 v{sm + h}, v{ld + h * 20 + k}, v{vone}")
    for h in range(2):
        dpp_rowsum(a, sm + h, t0)
        a(f"v_mul_f32 v{sm + h}, {f32bits(-1.0 / DM):#x}, v{sm + h}")
    for k in range(20):
        for h in range(2):
            x = ld + h * 20 + k
            t = t0 + 2 * h
            a(f"v_lshlrev_b32 v{t}, 16, v{x}")
            a(f"v_and_b32 v{t + 1}, s{sK0}, v{x}")
            a(f"v_add_f32 v{t}, v{t}, v{sm + h}")
            a(f"v_add_f32 v{t + 1}, v{t + 1}, v{sm + h}")
            a(f"v_fmac_f32 v{sq + 2 * h}, v{t}, v{t}")
            a(f"v_fmac_f32 v{sq + 2 * h + 1}, v{t + 1}, v{t + 1}")
    for h in range(2):
        a(f"v_add_f32 v{sq + 2 * h}, v{sq + 2 * h}, v{sq + 2 * h + 1}")
        dpp_rowsum(a, sq + 2 * h, t0)
        a(f"buffer_store_dword v{sq + 2 * h}, v{vo}, s[{SRD1}:{SRD1 + 3}], 0 offen offset:{h * 64}")
    return 0


def role_w2t(a, rep=1):
    va, vo, vt, ld, st = 4, 6, 8, 12, 44
    a(f"s_mul_i32 s{sA}, s{sT}, {256 * rep}")
    for n in range(rep):
        a(f"v_add_u32 v{vo + n}, s{sA}, v0")
        if n:
            a(f"v_add_u32 v{vo + n}, {256 * n}, v{vo + n}")
        a(f"v_lshrrev_b32 v{vt}, 5, v{vo + n}")
        a(f"v_mul_u32_u24 v{vt}, 52429, v{vt}")
        a(f"v_lshrrev_b32 v{vt}, 18, v{vt}")
        a(f"v_mul_u32_u24 v{va + n}, {10240 - 1280}, v{vt}")
        a(f"v_lshl_add_u32 v{va + n}, v{vo + n}, 3, v{va + n}")
        a(f"v_lshlrev_b32 v{vo + n}, 6, v{vo + n}")
    a(f"s_mov_b32 s{sK0}, 0x05040100")
    a(f"s_mov_b32 s{sK1}, 0x07060302")
    a(f"s_mov_b32 s{sOP}, {4 * 1280}")
    a("s_waitcnt lgkmcnt(0)")
    srd(a, SRD0, P_W2, 0, FF * DM * 2)
    srd_ws(a, SRD1, "W2T", W2T_SIZE)
    for n in range(rep):
        for j in range(8):
            so = f"s{sOP}" if j >= 4 else "0"
            a(f"buffer_load_dwordx2 {V(ld + 16 * n + 2 * j, 2)}, v{va + n}, s[{SRD0}:{SRD0 + 3}], {so} offen offset:{(j & 3) * 1280}")
    for n in range(rep):
        l, o = ld + 16 * n, st + 16 * n
        for e in range(4):
            for m in range(4):
                a(f"v_perm_b32 v{o + e * 4 + m}, v{l + (2 * m + 1) * 2 + (e >> 1)}, v{l + 2 * m * 2 + (e >> 1)}, s{sK1 if e & 1 else sK0}")
            a(f"buffer_store_dwordx4 {V(o + e * 4, 4)}, v{vo + n}, s[{SRD1}:{SRD1 + 3}], 0 offen offset:{e * 16}")
    return 0


def cmul_pack(a, dst, re, im, c, s, tmp, conj_w=False):
    for h in (0, 2):
        t0, t1 = tmp + 2 * h, tmp + 2 * h + 2
        a(f"v_pk_mul_f32 {V(t0, 2)}, {V(re + h, 2)}, {V(c + h, 2)}")
        a(f"v_pk_mul_f32 {V(t1, 2)}, {V(im + h, 2)}, {V(c + h, 2)}")
    for h in (0, 2):
        t0, t1 = tmp + 2 * h, tmp + 2 * h + 2
        if conj_w:
            a(f"v_pk_fma_f32 {V(t0, 2)}, {V(im + h, 2)}, {V(s + h, 2)}, {V(t0, 2)} neg_lo:[1,0,0] neg_hi:[1,0,0]")
            a(f"v_pk_fma_f32 {V(t1, 2)}, {V(re + h, 2)}, {V(s + h, 2)}, {V(t1, 2)}")
        else:
            a(f"v_pk_fma_f32 {V(t0, 2)}, {V(im + h, 2)}, {V(s + h, 2)}, {V(t0, 2)}")
            a(f"v_pk_fma_f32 {V(t1, 2)}, {V(re + h, 2)}, {V(s + h, 2)}, {V(t1, 2)} neg_lo:[1,0,0] neg_hi:[1,0,0]")
    for h in (0, 2):
        t0, t1 = tmp + 2 * h, tmp + 2 * h + 2
        n = "-" if conj_w else ""
        a(f"v_cvt_pk_bf16_f32 v{dst + h}, v{t0}, {n}v{t1}")
        a(f"v_cvt_pk_bf16_f32 v{dst + h + 1}, v{t0 + 1}, {n}v{t1 + 1}")


def role_col(a, src, ssn, dst):
    vx, vw, vl0, vmI = 4, 5, 6, 10
    fi, fg, fa, fb = 11, 12, 13, 14
    raw, ss, wraw = 16, 24, 32
    M1, M2 = 40, 72
    T1, T2 = 104, 120
    WU = 136
    ACC = 152
    FO, FG = 168, 176
    TMP = 200

    a(f"s_and_b32 s{sA}, s{sT}, 7")
    a(f"s_lshr_b32 s{sB}, s{sT}, 4")
    a(f"s_lshl_b32 s{sB}, s{sB}, 3")
    a(f"s_add_u32 s{sC}, s{sA}, s{sB}")
    a(f"s_bfe_u32 s{sD}, s{sT}, 0x10003")
    a(f"s_lshl1_add_u32 s{sE}, s{sC}, s{sD}")
    a(f"s_lshl_b32 s{sA}, s{sC}, 14")
    a(f"s_lshl2_add_u32 s{sA}, s{sD}, s{sA}")
    a(f"s_lshl_b32 s{sB}, s{sW}, 7")
    a(f"s_add_u32 s{sA}, s{sA}, s{sB}")
    a(f"v_lshlrev_b32 v{vx}, 11, v{vG}")
    a(f"v_lshl_add_u32 v{vx}, v{vI}, 3, v{vx}")
    a(f"v_add_u32 v{vx}, s{sA}, v{vx}")
    a(f"s_lshl_b32 s{sB}, s{sW}, 11")
    a(f"v_lshlrev_b32 v{vw}, 4, v{vL}")
    a(f"v_add_u32 v{vw}, s{sB}, v{vw}")
    a(f"s_lshl_b32 s{sF}, s{sE}, 13")
    a(f"s_mov_b32 s{sOP}, 8192")
    a("s_waitcnt lgkmcnt(0)")
    srd_ws(a, SRD0, src, XP_SIZE)
    srd_ws(a, SRD1, ssn, SS_SIZE)
    for t in range(2):
        a(f"buffer_load_dwordx4 {V(ss + 4 * t, 4)}, v{vw}, s[{SRD1}:{SRD1 + 3}], 0 offen offset:{t * 1024}")
    for t in range(2):
        for jj in range(4):
            so = f"s{sOP}" if t else "0"
            a(f"buffer_load_dword v{raw + 4 * t + jj}, v{vx}, s[{SRD0}:{SRD0 + 3}], {so} offen offset:{jj * 512}")
    srd_ws(a, SRD2, "WC", WC_SIZE)
    for u in range(2):
        a(f"buffer_load_dwordx4 {V(wraw + 4 * u, 4)}, v{vw}, s[{SRD2}:{SRD2 + 3}], s{sF} offen offset:{u * 1024}")
    srd_ws(a, SRD3, dst, XP_SIZE)

    mark(a, 1)
    a(f"v_lshlrev_b32 v{vl0}, 4, v0")
    for kk in (1, 2, 3):
        a(f"v_xor_b32 v{vl0 + kk}, {kk * 1024}, v{vl0}")
    a(f"v_and_b32 v{vmI}, 1, v{vI}")
    a(f"v_mul_u32_u24 v{vmI}, 0x8000, v{vmI}")
    a(f"v_lshl_or_b32 v{vmI}, v{vmI}, 16, v{vmI}")
    a(f"s_mov_b32 s{sK0}, 0x80008000")
    a(f"v_cvt_f32_u32 v{fi}, v{vI}")
    a(f"v_lshlrev_b32 v{fg}, 2, v{vG}")
    a(f"v_cvt_f32_u32 v{fg}, v{fg}")

    def m1(qb, t, var):
        return M1 + ((qb * 2 + t) * 2 + var) * 4

    def m2(kk, var):
        return M2 + (kk * 2 + var) * 4

    a(f"v_mul_f32 v{fa}, {f32bits(1 / 32):#x}, v{fi}")
    for jj in range(4):
        t = TMP + 3 * jj
        a(f"v_add_f32 v{t}, {float(jj)}, v{fg}" if jj in (0, 1, 2) else f"v_add_f32 v{t}, {f32bits(3.0):#x}, v{fg}")
        a(f"v_mul_f32 v{t}, v{t}, v{fa}")
        a(f"v_fract_f32 v{t}, v{t}")
        a(f"v_cos_f32 v{t + 1}, v{t}")
        a(f"v_sin_f32 v{t + 2}, v{t}")
    for jj in range(4):
        t = TMP + 3 * jj
        n = "-" if jj & 1 else ""
        m = "" if jj & 1 else "-"
        a(f"v_cvt_pk_bf16_f32 v{m1(0, 0, 0) + jj}, v{t + 1}, v{t + 2}")
        a(f"v_cvt_pk_bf16_f32 v{m1(0, 0, 1) + jj}, -v{t + 2}, v{t + 1}")
        a(f"v_cvt_pk_bf16_f32 v{m1(1, 0, 0) + jj}, {n}v{t + 1}, {n}v{t + 2}")
        a(f"v_cvt_pk_bf16_f32 v{m1(1, 0, 1) + jj}, {m}v{t + 2}, {n}v{t + 1}")
    for qb in range(2):
        for var in range(2):
            for jj in range(4):
                a(f"v_xor_b32 v{m1(qb, 1, var) + jj}, v{vmI}, v{m1(qb, 0, var) + jj}")

    a(f"s_lshl_b32 s{sA}, s{sW}, 4")
    a(f"v_cvt_f32_u32 v{fb}, s{sA}")
    a(f"v_add_f32 v{TMP + 24}, v{fb}, v{fg}")
    a(f"v_add_f32 v{fb}, v{fb}, v{fi}")
    a(f"v_mul_f32 v{TMP + 25}, {f32bits(1 / 2048):#x}, v{fi}")
    a(f"v_add_f32 v{TMP + 26}, {f32bits(16 / 2048):#x}, v{TMP + 25}")
    for r in range(4):
        t = TMP + r
        a(f"v_add_f32 v{t}, {f32bits(float(r)):#x}, v{TMP + 24}")
    for qb in range(2):
        for r in range(4):
            t = TMP + 4 + (qb * 4 + r)
            a(f"v_mul_f32 v{t}, v{TMP + r}, v{TMP + 25 + qb}")
            a(f"v_cos_f32 v{T1 + qb * 8 + r}, v{t}")
            a(f"v_sin_f32 v{T1 + qb * 8 + 4 + r}, v{t}")

    a(f"v_mul_f32 v{fa}, {f32bits(1 / 64):#x}, v{fb}")
    a(f"s_xor_b32 s{sA}, s{sA}, 16")
    a(f"v_cvt_f32_u32 v{TMP + 24}, s{sA}")
    a(f"v_add_f32 v{TMP + 24}, v{TMP + 24}, v{fg}")
    for kk in range(2):
        for r in range(4):
            t = TMP + 12 + 3 * r
            if kk == 0:
                a(f"v_mul_f32 v{t}, v{TMP + r}, v{fa}")
            else:
                a(f"v_add_f32 v{t}, {f32bits(float(r)):#x}, v{TMP + 24}")
                a(f"v_mul_f32 v{t}, v{t}, v{fa}")
            a(f"v_fract_f32 v{t}, v{t}")
            a(f"v_cos_f32 v{t + 1}, v{t}")
            a(f"v_sin_f32 v{t + 2}, v{t}")
        for r in range(4):
            t = TMP + 12 + 3 * r
            a(f"v_cvt_pk_bf16_f32 v{m2(kk, 0) + r}, v{t + 1}, v{t + 2}")
            a(f"v_cvt_pk_bf16_f32 v{m2(kk, 1) + r}, -v{t + 2}, v{t + 1}")
    for kk in range(2):
        for var in range(2):
            for r in range(4):
                a(f"v_xor_b32 v{m2(kk + 2, var) + r}, v{vmI}, v{m2(kk, var) + r}")

    a(f"v_mul_f32 v{fa}, {f32bits(1 / 2048):#x}, v{fb}")
    for u in range(2):
        for r in range(4):
            t = TMP + (u * 4 + r)
            a(f"v_add_f32 v{t}, {f32bits(float(16 * u + r)):#x}, v{fg}")
            a(f"v_mul_f32 v{t}, v{t}, v{fa}")
            a(f"v_cos_f32 v{T2 + u * 8 + r}, v{t}")
            a(f"v_sin_f32 v{T2 + u * 8 + 4 + r}, v{t}")

    a(f"s_mov_b32 s{sK1}, 0xffff0000")
    a(f"s_cmp_eq_u32 s{sE}, 0")
    a(f"s_cselect_b32 s{sK2}, 0, s{sK1}")
    a(f"s_cselect_b32 s{sK3}, 0, {f32bits(-1 / 2048):#x}")
    a(f"s_mov_b32 s{sA}, {f32bits(1 / DM):#x}")
    a(f"s_mov_b32 s{sB}, {f32bits(1 / 2048):#x}")
    a(f"v_mov_b32 v{fa}, {f32bits(1e-5):#x}")
    mark(a, 2)
    for k in range(8):
        a(f"v_fma_f32 v{ss + k}, v{ss + k}, s{sA}, v{fa}")
    for k in range(8):
        a(f"v_rsq_f32 v{ss + k}, v{ss + k}")
    for k in range(8):
        t = TMP + 2 * k
        a(f"v_lshlrev_b32 v{t}, 16, v{raw + k}")
        a(f"v_and_b32 v{t + 1}, s{sK2}, v{raw + k}")
    for k in range(8):
        t = TMP + 2 * k
        a(f"v_mul_f32 v{t}, v{t}, v{ss + k}")
        a(f"v_mul_f32 v{t + 1}, v{t + 1}, v{ss + k}")
    for k in range(8):
        t = TMP + 2 * k
        a(f"v_cvt_pk_bf16_f32 v{FG + k}, v{t}, v{t + 1}")

    def acc(b, var):
        return ACC + (b * 2 + var) * 4

    mark(a, 3)
    for t in range(2):
        for qb in range(2):
            for var in range(2):
                mfma(a, acc(qb, var), FG + 4 * t, m1(qb, t, var), None if t == 0 else acc(qb, var))
    for u in range(2):
        for r in range(4):
            a(f"v_lshlrev_b32 v{WU + u * 8 + r}, 16, v{wraw + u * 4 + r}")
            a(f"v_and_b32 v{WU + u * 8 + 4 + r}, s{sK1}, v{wraw + u * 4 + r}")

    def exchange(base, data_is_a):
        for b in range(2):
            a(f"ds_write_b128 v{vl0}, {V(FO + 4 * b, 4)} offset:{base + b * 4096}")
        for b in range(2):
            for var in range(2):
                if data_is_a:
                    mfma(a, acc(b, var), FO + 4 * b, m2(0, var), None)
                else:
                    mfma(a, acc(b, var), m2(0, var), FO + 4 * b, None)
        a("s_waitcnt lgkmcnt(0)")
        a("s_barrier")
        for kk in (1, 2, 3):
            for b in range(2):
                a(f"ds_read_b128 {V(FG + ((kk - 1) * 2 + b) * 4, 4)}, v{vl0 + kk} offset:{base + b * 4096}")
        for kk in (1, 2, 3):
            for b in range(2):
                for var in range(2):
                    f = FG + ((kk - 1) * 2 + b) * 4
                    if data_is_a:
                        mfma(a, acc(b, var), f, m2(kk, var), acc(b, var))
                    else:
                        mfma(a, acc(b, var), m2(kk, var), f, acc(b, var))

    for qb in range(2):
        cmul_pack(a, FO + 4 * qb, acc(qb, 0), acc(qb, 1), T1 + qb * 8, T1 + qb * 8 + 4, TMP + 8 * qb)
    exchange(0, False)
    mark(a, 4)
    for u in range(2):
        cmul_pack(a, FO + 4 * u, acc(u, 0), acc(u, 1), WU + u * 8, WU + u * 8 + 4, TMP + 8 * u, conj_w=True)
    exchange(8192, True)
    mark(a, 5)
    for k in range(8):
        a(f"v_lshlrev_b32 v{WU + 2 * k}, 16, v{raw + k}")
        a(f"v_and_b32 v{WU + 2 * k + 1}, s{sK1}, v{raw + k}")
    for u in range(2):
        cmul_pack(a, FO + 4 * u, acc(u, 0), acc(u, 1), T2 + u * 8, T2 + u * 8 + 4, TMP + 8 * u)
    for u in range(2):
        for t in range(2):
            for var in range(2):
                mfma(a, acc(t, var), m1(t, u, var), FO + 4 * u, None if u == 0 else acc(t, var))
    for t in range(2):
        for jj in range(4):
            k = 4 * t + jj
            a(f"v_fma_f32 v{WU + 2 * k}, v{acc(t, 0) + jj}, s{sB}, v{WU + 2 * k}")
            a(f"v_fma_f32 v{WU + 2 * k + 1}, v{acc(t, 1) + jj}, s{sK3}, v{WU + 2 * k + 1}")
        for jj in range(4):
            k = 4 * t + jj
            a(f"v_cvt_pk_bf16_f32 v{raw + k}, v{WU + 2 * k}, v{WU + 2 * k + 1}")
            so = f"s{sOP}" if t else "0"
            a(f"buffer_store_dword v{raw + k}, v{vx}, s[{SRD3}:{SRD3 + 3}], {so} offen offset:{jj * 512}{Cfg.st_flags}")
    return 16384


def role_g1(a, src):
    vx, vw, vl, vo, vb, vm = 4, 5, 6, 7, 8, 9
    sq = 10
    X = 16
    ACC = 176
    BR = 232
    TMP = 246
    WR = 256
    NW = 14

    a(f"s_and_b32 s{sA}, s{sT}, 7")
    a(f"s_lshr_b32 s{sB}, s{sA}, 1")
    a(f"s_lshl_b32 s{sB}, s{sB}, 2")
    a(f"s_bfe_u32 s{sC}, s{sT}, 0x20003")
    a(f"s_add_u32 s{sC}, s{sC}, s{sB}")
    a(f"s_and_b32 s{sA}, s{sA}, 1")
    a(f"s_lshl_b32 s{sA}, s{sA}, 3")
    a(f"s_lshr_b32 s{sD}, s{sT}, 5")
    a(f"s_add_u32 s{sD}, s{sD}, s{sA}")
    a(f"s_mul_i32 s{sD}, s{sD}, 27")
    a(f"s_lshr_b32 s{sD}, s{sD}, 2")
    a(f"s_lshl_b32 s{sC}, s{sC}, 7")
    a(f"s_lshl_b32 s{sA}, s{sW}, 5")
    a(f"s_add_u32 s{sC}, s{sC}, s{sA}")
    a(f"v_lshlrev_b32 v{vx}, 15, v{vG}")
    a(f"v_lshl_add_u32 v{vx}, v{vI}, 4, v{vx}")
    a(f"s_lshl_b32 s{sA}, s{sC}, 3")
    a(f"v_add_u32 v{vx}, s{sA}, v{vx}")
    a(f"v_mul_u32_u24 v{vw}, {FF}, v{vG}")
    a(f"v_add_lshl_u32 v{vw}, v{vw}, v{vI}, 4")
    a(f"s_mul_i32 s{sA}, s{sW}, {4 * W1F_STR}")
    a(f"s_lshl_b32 s{sB}, s{sD}, 8")
    a(f"s_add_u32 s{sA}, s{sA}, s{sB}")
    a(f"v_add_u32 v{vw}, s{sA}, v{vw}")
    a(f"s_mul_i32 s{sE}, s{sW}, 7168")
    a(f"v_lshlrev_b32 v{vl}, 4, v{vL}")
    a("s_waitcnt lgkmcnt(0)")
    srd_ws(a, SRD0, "W1F", W1F_SIZE)
    srd_ws(a, SRD1, src, XP_SIZE)

    def xr(ks, st):
        return X + ks * 8 + st * 4

    def issue_chunk(c):
        a(f"s_mov_b32 s{sOP}, {c * 16 * W1F_STR}")
        for ft in range(7):
            a(f"s_add_u32 m0, s{sE}, {c * 28672 + ft * 1024 - ft * 256}")
            a(f"buffer_load_dwordx4 v{vw}, s[{SRD0}:{SRD0 + 3}], s{sOP} offen offset:{ft * 256} lds", tag=f"w{c}")
        for k in range(4):
            ks = 4 * c + k
            for h in range(2):
                a(f"s_mov_b32 s{sOQ}, {(8 * ks + h) * XP_STR}")
                a(f"buffer_load_dwordx4 {V(xr(ks, h), 4)}, v{vx}, s[{SRD1}:{SRD1 + 3}], s{sOQ} offen")

    for c in range(4):
        issue_chunk(c)
    srd(a, SRD2, P_B1, 0, FF * 2)
    srd_ws(a, SRD3, "H", H_SIZE)
    a(f"s_lshl_b32 s{sA}, s{sD}, 5")
    a(f"v_lshlrev_b32 v{vb}, 3, v{vG}")
    a(f"v_add_u32 v{vb}, s{sA}, v{vb}")
    a(f"v_lshrrev_b32 v{vo}, 1, v{vG}")
    a(f"v_mul_u32_u24 v{vo}, {H_STR}, v{vo}")
    a(f"v_lshl_add_u32 v{vo}, v{vI}, 5, v{vo}")
    a(f"v_and_b32 v{vm}, 1, v{vG}")
    a(f"v_lshl_add_u32 v{vo}, v{vm}, 4, v{vo}")
    a(f"s_mul_i32 s{sA}, s{sD}, {2 * H_STR}")
    a(f"s_lshl_b32 s{sB}, s{sC}, 4")
    a(f"s_add_u32 s{sA}, s{sA}, s{sB}")
    a(f"v_add_u32 v{vo}, s{sA}, v{vo}")
    a(f"v_cmp_eq_u32 vcc, 0, v{vG}")
    a(f"v_mov_b32 v{vm}, 0xffff")
    a(f"v_cndmask_b32 v{vm}, -1, v{vm}, vcc")
    for k in range(4):
        a(f"v_mov_b32 v{sq + k}, 0")

    def acc(ft, st):
        return ACC + (ft * 2 + st) * 4

    seq = [(ks, ft) for ks in range(20) for ft in range(7)]

    def wreg(n):
        return WR + (n % NW) * 4

    def rd(n):
        ks, ft = seq[n]
        off = (ks * 7 + ft) * 1024
        if off >= 65536:
            a(f"ds_read_b128 {R(wreg(n), 4)}, v{TMP + (off >> 16)} offset:{off & 0xffff}")
        else:
            a(f"ds_read_b128 {R(wreg(n), 4)}, v{vl} offset:{off}")

    a(f"v_add_u32 v{TMP + 1}, 0x10000, v{vl}")
    a(f"v_add_u32 v{TMP + 2}, 0x20000, v{vl}")
    AHEAD = 8
    nread = 0
    for c in range(5):
        if c == 0:
            mark(a, 1)
        a.wait_tag(f"w{c}")
        a("s_barrier")
        if c in (0, 1, 4):
            mark(a, {0: 2, 1: 3, 4: 4}[c])
        if c == 0:
            issue_chunk(4)
            for ft in range(7):
                a(f"buffer_load_dwordx2 {V(BR + 2 * ft, 2)}, v{vb}, s[{SRD2}:{SRD2 + 3}], 0 offen offset:{ft * 32}")
        hi = (c + 1) * 28
        for n in range(c * 28, hi):
            ks, ft = seq[n]
            while nread < min(hi, n + AHEAD):
                rd(nread)
                nread += 1
            if ft == 0:
                a(f"v_swap_b32 v{xr(ks, 0) + 2}, v{xr(ks, 1)}")
                a(f"v_swap_b32 v{xr(ks, 0) + 3}, v{xr(ks, 1) + 1}")
                if ks == 0:
                    a(f"v_and_b32 v{xr(0, 0)}, v{vm}, v{xr(0, 0)}")
                    a(f"v_and_b32 v{xr(0, 1)}, v{vm}, v{xr(0, 1)}")
            for st in range(2):
                mfma(a, acc(ft, st), wreg(n), xr(ks, st), None if ks == 0 else acc(ft, st))
                if 1 <= ft <= 4 and not Cfg.nodot:
                    x = xr(ks, st) + ft - 1
                    a(f"v_dot2c_f32_bf16 v{sq + st * 2 + (ft & 1)}, v{x}, v{x}")

    mark(a, 5)
    t = TMP + 4
    for st in range(2):
        s = sq + 2 * st
        a(f"v_add_f32 v{s}, v{s}, v{s + 1}")
    for op in ("v_permlane32_swap_b32", "v_permlane16_swap_b32"):
        for st in range(2):
            s = sq + 2 * st
            a(f"v_mov_b32 v{s + 1}, v{s}")
        for st in range(2):
            s = sq + 2 * st
            a(f"{op} v{s}, v{s + 1}")
        for st in range(2):
            s = sq + 2 * st
            a(f"v_add_f32 v{s}, v{s}, v{s + 1}")
    a(f"v_mov_b32 v{t}, {f32bits(1e-5):#x}")
    for st in range(2):
        s = sq + 2 * st
        a(f"v_mul_f32 v{s}, {f32bits(1 / DM):#x}, v{s}")
        a(f"v_add_f32 v{s + 1}, v{s}, v{t}")
        a(f"v_rsq_f32 v{s + 1}, v{s + 1}")
    for st in range(2):
        s = sq + 2 * st
        a(f"v_mul_f32 v{s}, v{s}, v{s + 1}")
        a(f"v_fma_f32 v{s}, v{s}, v{s + 1}, v{t}")
        a(f"v_rsq_f32 v{s}, v{s}")
    for st in range(2):
        s = sq + 2 * st
        a(f"v_mul_f32 v{s}, v{s}, v{s + 1}")

    k0 = -2.0 * 0.7978845608028654 * 1.4426950408889634
    a(f"s_mov_b32 s{sK0}, {f32bits(k0 * 0.044715):#x}")
    a(f"s_mov_b32 s{sK1}, s{sK0}")
    a(f"s_mov_b32 s{sK2}, 0xffff0000")
    a(f"v_mov_b32 v{TMP + 4}, {f32bits(k0):#x}")
    a(f"v_mov_b32 v{TMP + 5}, {f32bits(k0):#x}")
    for ft in range(7):
        B = X + ft * 16
        Z = B + 4
        O = B + 12
        for h in range(2):
            a(f"v_lshlrev_b32 v{B + 2 * h}, 16, v{BR + 2 * ft + h}")
            a(f"v_and_b32 v{B + 2 * h + 1}, s{sK2}, v{BR + 2 * ft + h}")
        prs = [(acc(ft, st) + h, Z + st * 4 + h, B + h, sq + 2 * st) for st in range(2) for h in (0, 2)]
        for x, z, b, s in prs:
            a(f"v_pk_fma_f32 {V(x, 2)}, {V(x, 2)}, {V(s, 2)}, {V(b, 2)} op_sel_hi:[1,0,1]")
        for x, z, b, s in prs:
            a(f"v_pk_mul_f32 {V(z, 2)}, {V(x, 2)}, {V(x, 2)}")
        for x, z, b, s in prs:
            a(f"v_pk_fma_f32 {V(z, 2)}, {V(z, 2)}, s[{sK0}:{sK1}], {V(TMP + 4, 2)}")
        for x, z, b, s in prs:
            a(f"v_pk_mul_f32 {V(z, 2)}, {V(z, 2)}, {V(x, 2)}")
        for k in range(8):
            a(f"v_exp_f32 v{Z + k}, v{Z + k}")
        for x, z, b, s in prs:
            a(f"v_pk_add_f32 {V(z, 2)}, {V(z, 2)}, 1.0 op_sel_hi:[1,0]")
        for k in range(8):
            a(f"v_rcp_f32 v{Z + k}, v{Z + k}")
        for x, z, b, s in prs:
            a(f"v_pk_mul_f32 {V(z, 2)}, {V(z, 2)}, {V(x, 2)}")
        for k in range(4):
            a(f"v_cvt_pk_bf16_f32 v{O + k}, v{Z + 2 * k}, v{Z + 2 * k + 1}")
        a(f"s_mov_b32 s{sOP}, {ft * 2 * H_STR}")
        a(f"v_permlane16_swap_b32 v{O}, v{O + 2}")
        a(f"v_permlane16_swap_b32 v{O + 1}, v{O + 3}")
        a(f"buffer_store_dwordx4 {V(O, 4)}, v{vo}, s[{SRD3}:{SRD3 + 3}], s{sOP} offen{Cfg.st_flags}")
    return 140 * 1024


def role_g2(a, final):
    vp, vq, vred, vo, acc = 4, 5, 9, 13, 16
    vp2, vq2, vone, vs, RES, TMP = 96, 97, 101, 102, 104, 116
    ring = 256
    depth = Cfg.g2depth
    a(f"s_and_b32 s{sA}, s{sT}, 7")
    a(f"s_lshr_b32 s{sB}, s{sA}, 1")
    a(f"s_lshl_b32 s{sB}, s{sB}, 3")
    a(f"s_bfe_u32 s{sC}, s{sT}, 0x30003")
    a(f"s_add_u32 s{sC}, s{sC}, s{sB}")
    a(f"s_lshl_b32 s{sC}, s{sC}, 6")
    a(f"s_and_b32 s{sA}, s{sA}, 1")
    a(f"s_lshl_b32 s{sA}, s{sA}, 2")
    a(f"s_lshr_b32 s{sD}, s{sT}, 6")
    a(f"s_add_u32 s{sD}, s{sD}, s{sA}")
    p_addr(a, vp, sD, 14)
    a(f"v_mul_u32_u24 v{vq}, {H_STR}, v{vG}")
    a(f"v_lshl_add_u32 v{vq}, v{vI}, 4, v{vq}")
    a(f"s_mul_i32 s{sA}, s{sW}, {14 * 4 * H_STR}")
    a(f"s_lshl_b32 s{sB}, s{sC}, 4")
    a(f"s_add_u32 s{sA}, s{sA}, s{sB}")
    for ql in (3, 2, 1, 0):
        a(f"s_xor_b32 s{sB}, s{sW}, {ql}")
        a(f"s_lshl_b32 s{sB}, s{sB}, 8")
        a(f"s_add_u32 s{sB}, s{sB}, s{sA}")
        a(f"v_add_u32 v{vq + ql}, s{sB}, v{vq}")
    if Cfg.g2lay & 1:
        a(f"s_mul_i32 s{sA}, s{sD}, {54 * 5120}")
        a(f"s_mul_i32 s{sB}, s{sW}, {13 * 5120}")
        a(f"s_add_u32 s{sA}, s{sA}, s{sB}")
        a(f"v_lshlrev_b32 v{vp}, 4, v{vL}")
        a(f"v_add_u32 v{vp}, s{sA}, v{vp}")
    if Cfg.g2lay & 2:
        a(f"s_mul_i32 s{sA}, s{sC}, {54 * 64}")
        a(f"s_mul_i32 s{sB}, s{sW}, {13 * 4096}")
        a(f"s_add_u32 s{sA}, s{sA}, s{sB}")
        a(f"v_lshlrev_b32 v{vq}, 4, v{vL}")
        for ql in (3, 2, 1, 0):
            a(f"s_xor_b32 s{sB}, s{sW}, {ql}")
            a(f"s_lshl_b32 s{sB}, s{sB}, 10")
            a(f"s_add_u32 s{sB}, s{sB}, s{sA}")
            a(f"v_add_u32 v{vq + ql}, s{sB}, v{vq}")
    a("s_waitcnt lgkmcnt(0)")
    if final:
        srd_ws(a, SRD0, "W2T", W2T_SIZE)
    else:
        srd_ws(a, SRD0, "WA2", WA2_SIZE)
    srd_ws(a, SRD1, "H", H_SIZE)
    st = {"p": None, "q": None}

    def ip(t, p, dst):
        if t < 14:
            if Cfg.g2lay & 1:
                a(f"s_mov_b32 s{sOP}, {t * 5120 + p * 1024}")
                a(f"buffer_load_dwordx4 {R(dst, 4)}, v{vp}, s[{SRD0}:{SRD0 + 3}], s{sOP} offen")
                return
            if st["p"] != t:
                a(f"s_mov_b32 s{sOP}, {t * 4 * KB_STR}")
            a(f"buffer_load_dwordx4 {R(dst, 4)}, v{vp}, s[{SRD0}:{SRD0 + 3}], s{sOP} offen offset:{p * 256}")
        else:
            if st["p"] != t:
                a(f"s_mov_b32 s{sOP}, {(t - 14) * 4 * KB_STR}")
            a(f"buffer_load_dwordx4 {R(dst, 4)}, v{vp2}, s[{SRD4}:{SRD4 + 3}], s{sOP} offen offset:{p * 256}")
        st["p"] = t

    def iq(t, q, qb):
        if t < 14:
            if st["q"] != t:
                a(f"s_mov_b32 s{sOQ}, {t * (4096 if Cfg.g2lay & 2 else 4 * H_STR)}")
            a(f"buffer_load_dwordx4 {R(qb + q * 4, 4)}, v{vq + q}, s[{SRD1}:{SRD1 + 3}], s{sOQ} offen")
        else:
            if st["q"] != t:
                a(f"s_mov_b32 s{sOQ}, {(t - 14) * 8 * XP_STR}")
                a(f"s_mov_b32 s{sF}, {((t - 14) * 8 + 1) * XP_STR}")
            a(f"buffer_load_dwordx2 {R(qb + q * 4, 2)}, v{vq2 + q}, s[{SRD5}:{SRD5 + 3}], s{sOQ} offen")
            a(f"buffer_load_dwordx2 {R(qb + q * 4 + 2, 2)}, v{vq2 + q}, s[{SRD5}:{SRD5 + 3}], s{sF} offen")
        st["q"] = t

    def post():
        a(f"s_lshl_b32 s{sE}, s{sW}, 4")
        a(f"s_add_u32 s{sE}, s{sE}, s{sC}")
        if final:
            srd_table(a, SRD4, "ft2")
            srd_ws(a, SRD5, "XP3", XP_SIZE)
            srd(a, SRD2, P_OUT, 0, SEQ * DM * 2)
            srd(a, SRD3, P_B2, 0, DM * 2)
            p_addr(a, vp2, sD, 5)
            a(f"v_lshlrev_b32 v{vq2}, 15, v{vG}")
            a(f"v_lshl_add_u32 v{vq2}, v{vI}, 3, v{vq2}")
            a(f"s_mul_i32 s{sA}, s{sW}, {40 * XP_STR}")
            a(f"s_lshl_b32 s{sB}, s{sC}, 3")
            a(f"s_add_u32 s{sA}, s{sA}, s{sB}")
            for ql in (3, 2, 1, 0):
                a(f"s_xor_b32 s{sB}, s{sW}, {ql}")
                a(f"s_lshl_b32 s{sB}, s{sB}, 7")
                a(f"s_add_u32 s{sB}, s{sB}, s{sA}")
                a(f"v_add_u32 v{vq2 + ql}, s{sB}, v{vq2}")
            a(f"s_mul_i32 s{sA}, s{sD}, 160")
            a(f"v_lshlrev_b32 v{vs}, 3, v{vG}")
            a(f"v_add_u32 v{vs}, s{sA}, v{vs}")
            a(f"v_mul_u32_u24 v{vo}, 1280, v{vI}")
            a(f"v_add_u32 v{vo}, v{vo}, v{vs}")
            a(f"s_mul_i32 s{sA}, s{sE}, 1280")
            a(f"v_add_u32 v{vo}, s{sA}, v{vo}")
        else:
            srd_ws(a, SRD2, "XP2", XP_SIZE)
            srd_ws(a, SRD3, "XP1", XP_SIZE)
            srd_ws(a, SRD4, "SS2", SS_SIZE)
            a(f"s_mul_i32 s{sA}, s{sD}, {20 * XP_STR}")
            a(f"s_lshl_b32 s{sB}, s{sE}, 3")
            a(f"s_add_u32 s{sA}, s{sA}, s{sB}")
            a(f"v_lshlrev_b32 v{vo}, 14, v{vG}")
            a(f"v_lshl_add_u32 v{vo}, v{vI}, 3, v{vo}")
            a(f"v_add_u32 v{vo}, s{sA}, v{vo}")
            a(f"s_lshl_b32 s{sA}, s{sW}, 3")
            a(f"s_lshr_b32 s{sB}, s{sC}, 8")
            a(f"s_add_u32 s{sA}, s{sA}, s{sB}")
            a(f"s_lshl_b32 s{sA}, s{sA}, 8")
            a(f"s_bfe_u32 s{sB}, s{sC}, 0x20006")
            a(f"s_lshl2_add_u32 s{sA}, s{sB}, s{sA}")
            a(f"v_lshlrev_b32 v{vs}, 4, v{vI}")
            a(f"v_add_u32 v{vs}, s{sA}, v{vs}")
            a(f"v_lshl_add_u32 v{vs}, v{vG}, 20, v{vs}")
            a(f"s_cmp_eq_u32 s{sW}, 3")
            a(f"s_cselect_b32 s{sA}, 0x3f80, 0")
            a(f"v_mov_b32 v{vone}, s{sA}")
            a(f"v_cmp_eq_u32 vcc, 0, v{vG}")
            a(f"v_cndmask_b32 v{vone}, 0, v{vone}, vcc")
            a(f"s_cmp_eq_u32 s{sD}, 0")
            a(f"s_cselect_b32 s{sA}, 0, 1.0")
            a(f"v_mov_b32 v{vp2}, s{sA}")
            a(f"v_cndmask_b32 v{vp2}, 1.0, v{vp2}, vcc")

    def prep(t, qb):
        if t == 3:
            for p in range(5):
                if final:
                    a(f"buffer_load_dwordx2 {V(RES + 2 * p, 2)}, v{vs}, s[{SRD3}:{SRD3 + 3}], 0 offen offset:{p * 32}")
                else:
                    a(f"s_mov_b32 s{sF}, {p * 4 * XP_STR}")
                    a(f"buffer_load_dwordx2 {V(RES + 2 * p, 2)}, v{vo}, s[{SRD3}:{SRD3 + 3}], s{sF} offen")
        if t == 12 and not final:
            for q in range(4):
                a(f"v_accvgpr_read_b32 v{TMP + q}, {R(qb + q * 4)}")
            for q in range(4):
                a(f"v_or_b32 v{TMP + q}, v{TMP + q}, v{vone}")
            for q in range(4):
                a(f"v_accvgpr_write_b32 {R(qb + q * 4)}, v{TMP + q}")
        return [qb + q * 4 for q in range(4)]

    res = gemm_ks_hook(a, 19 if final else 14, depth, acc, ring, vred, ip, iq, prep, post)
    a(f"s_mov_b32 s{sK2}, 0xffff0000")
    if not final:
        a(f"v_mov_b32 v{TMP + 8}, 0")
        a(f"v_mov_b32 v{TMP + 9}, 0")
    for p, r in enumerate(res):
        for h in range(2):
            a(f"v_lshlrev_b32 v{TMP + 2 * h}, 16, v{RES + 2 * p + h}")
            a(f"v_and_b32 v{TMP + 2 * h + 1}, s{sK2}, v{RES + 2 * p + h}")
        for h in (0, 2):
            a(f"v_pk_add_f32 {V(r + h, 2)}, {V(r + h, 2)}, {V(TMP + h, 2)}")
        a(f"v_cvt_pk_bf16_f32 v{r}, v{r}, v{r + 1}")
        a(f"v_cvt_pk_bf16_f32 v{r + 1}, v{r + 2}, v{r + 3}")
        if final:
            a(f"buffer_store_dwordx2 {V(r, 2)}, v{vo}, s[{SRD2}:{SRD2 + 3}], 0 offen offset:{p * 32}{Cfg.st_flags}")
        else:
            a(f"s_mov_b32 s{sOP}, {p * 4 * XP_STR}")
            a(f"buffer_store_dwordx2 {V(r, 2)}, v{vo}, s[{SRD2}:{SRD2 + 3}], s{sOP} offen{Cfg.st_flags}")
            if p == 0:
                a(f"v_lshlrev_b32 v{TMP + 4}, 16, v{r}")
                a(f"v_and_b32 v{TMP + 5}, s{sK2}, v{r}")
                a(f"v_mul_f32 v{TMP + 5}, v{TMP + 5}, v{vp2}")
                a(f"v_mul_f32 v{TMP + 8}, v{TMP + 4}, v{TMP + 4}")
                a(f"v_fmac_f32 v{TMP + 8}, v{TMP + 5}, v{TMP + 5}")
            else:
                a(f"v_dot2c_f32_bf16 v{TMP + 8}, v{r}, v{r}")
            a(f"v_dot2c_f32_bf16 v{TMP + 9}, v{r + 1}, v{r + 1}")
    if not final:
        s = TMP + 8
        a(f"v_add_f32 v{s}, v{s}, v{s + 1}")
        for op in ("v_permlane32_swap_b32", "v_permlane16_swap_b32"):
            a(f"v_mov_b32 v{s + 1}, v{s}")
            a(f"{op} v{s}, v{s + 1}")
            a(f"v_add_f32 v{s}, v{s}, v{s + 1}")
        a(f"buffer_atomic_add_f32 v{s}, v{vs}, s[{SRD4}:{SRD4 + 3}], 0 offen")
    return KS_LDS


def gemm_ks_hook(a, nsteps, depth, acc, ring, vred, ip, iq, hook, post):
    return gemm_ks(a, nsteps, depth, acc, ring, vred, True, ip, iq, after_prologue=post, step_hook=hook)


def build_kernel(name, idx, roles, block=256):
    a = Asm()
    a.raw(f".globl {name}\n.p2align 8\n.type {name},@function")
    a.label(name)
    a.label(name + "_code")
    a("s_load_dwordx16 s[8:23], s[0:1], 0")
    a("s_load_dwordx4 s[24:27], s[0:1], 64")
    a("s_load_dwordx2 s[28:29], s[0:1], 80")
    if Cfg.stamp:
        a(f"s_memrealtime s[{sST}:{sST + 1}]")
        for j in range(1, 10):
            a(f"s_mov_b32 s{sST + 2 * j}, 0")
    a(f"v_lshrrev_b32 v{vL}, 6, v0")
    a(f"v_and_b32 v{vI}, 15, v0")
    a(f"v_readfirstlane_b32 s{sW}, v{vL}")
    a(f"v_bfe_u32 v{vG}, v0, 4, 2")
    a(f"v_and_b32 v{vL}, 63, v0")
    lds = 0
    start = 0
    starts = [sum(c for c, _ in roles[:n]) for n in range(len(roles) + 1)]
    for n in range(len(roles), 0, -1):
        a(f"s_cmp_ge_u32 s2, {starts[n]}")
        a(f"s_cbranch_scc1 {name}_r{n}")
    for n, (count, fn) in enumerate(roles):
        if n:
            a.label(f"{name}_r{n}")
        a(f"s_sub_u32 s{sT}, s2, {start}")
        lds = max(lds, fn(a))
        if Cfg.stamp:
            mark(a, 10)
            a("s_waitcnt vmcnt(0)")
            mark(a, 11)
            a("s_waitcnt lgkmcnt(0)")
            a(f"s_mul_i32 s{sA}, s2, {block // 64}")
            a(f"s_add_u32 s{sA}, s{sA}, s{sW}")
            a(f"s_lshl_b32 s{sA}, s{sA}, 6")
            a(f"s_add_u32 s{sA}, s{sA}, {idx * 262144}")
            srd_ws(a, SRD0, "STAMP", 1 << 21)
            a("s_waitcnt lgkmcnt(0)")
            for j in range(12):
                a(f"v_mov_b32 v{4 + j}, s{sST + 2 * j}")
            a(f"v_mov_b32 v16, s{sA}")
            for j in range(3):
                a(f"buffer_store_dwordx4 v[{4 + 4 * j}:{7 + 4 * j}], v16, s[{SRD0}:{SRD0 + 3}], 0 offen offset:{16 * j}")
            a(f"s_getreg_b32 s{sB}, hwreg(HW_REG_XCC_ID)")
            a(f"v_mov_b32 v17, s{sB}")
            a(f"buffer_store_dword v17, v16, s[{SRD0}:{SRD0 + 3}], 0 offen offset:48")
        a("s_endpgm")
        for fn2 in a.tail:
            fn2()
        a.tail = []
        start += count
    a.label(f"{name}_r{len(roles)}")
    a("s_endpgm")
    a.label(name + "_cend")
    nv = na = 0
    ns = 0
    for it in a.items:
        if isinstance(it, Inst):
            for k, r in it.dst + it.src + it.srcc:
                if k == "v":
                    nv = max(nv, r + 1)
                elif k == "a":
                    na = max(na, r + 1)
                elif r < 102:
                    ns = max(ns, r + 1)
    acco = (nv + 3) // 4 * 4
    desc = f""".p2align 6
.amdhsa_kernel {name}
  .amdhsa_next_free_vgpr {acco + na}
  .amdhsa_next_free_sgpr {ns}
  .amdhsa_accum_offset {acco}
  .amdhsa_group_segment_fixed_size 0
  .amdhsa_kernarg_size 88
  .amdhsa_user_sgpr_count 2
  .amdhsa_user_sgpr_kernarg_segment_ptr 1
  .amdhsa_system_sgpr_workgroup_id_x 1
.end_amdhsa_kernel
"""
    launch = f"; @launch kernel={name} grid=({start},1,1) block=({block},1,1) lds={lds}"
    if Cfg.stamp:
        launch += "\n; roles " + name + " " + " ".join(str(c * block // 256) for c, _ in roles)
    return launch, a.finalize(), desc


def tables():
    L = []
    c = np.sqrt(2.0 / DM) * np.cos(2 * np.pi * np.arange(DM) / DM)
    c[160] = 0
    c[480] = 0
    bits = model.bf16_bits(c.astype(np.float32))
    for n in range(DM):
        L.append(f".set cq{n}, {bits[n]}")
    bb = int(model.bf16_bits(np.float32([np.sqrt(1 / DM)]))[0])
    L.append(".altmacro")
    L.append(".macro e8 a,b,c,d,e,f,g,h\n.short cq\\a, cq\\b, cq\\c, cq\\d, cq\\e, cq\\f, cq\\g, cq\\h\n.endm")
    L.append(".macro e6 a,b,c,d,e,f\n.short cq\\a, cq\\b, cq\\c, cq\\d, cq\\e, cq\\f\n.endm")
    L.append(".p2align 12\nft1:")
    L.append(".set td, 0\n.rept 80")
    L.append(".short " + ", ".join(str(bb | (0x8000 if j & 1 else 0)) for j in range(8)))
    L.append(".short " + ", ".join(str(bb) for j in range(8)))
    L.append(".set tm, 1\n.rept 319")
    L.append("e8 " + ", ".join(f"%((tm*(td+{j}))%640)" for j in range(8)))
    L.append("e8 " + ", ".join(f"%((tm*(td+{j})+160)%640)" for j in range(8)))
    L.append(".set tm, tm+1\n.endr\n.set td, td+8\n.endr")
    L.append(".p2align 12\nft2:")
    L.append(".set td, 0\n.rept 640")
    L.append(f".short {bb}+((td&1)<<15), {bb}")
    L.append("e6 " + ", ".join(f"%(({1 + j // 2}*td+{160 * (j & 1)})%640)" for j in range(6)))
    L.append(".set td, td+1\n.endr")
    L.append(".set tm, 4\n.rept 79\n.set td, 0\n.rept 640")
    L.append("e8 " + ", ".join(f"%(((tm+{j // 2})*td+{160 * (j & 1)})%640)" for j in range(8)))
    L.append(".set td, td+1\n.endr\n.set tm, tm+4\n.endr")
    L.append(".noaltmacro")
    return "\n".join(L) + "\n"


def generate(plan=None, tabs=None):
    if plan is None:
        plan = default_plan()
    launches, code, descs = [], [], []
    for idx, (name, roles, *blk) in enumerate(plan):
        l, c, d = build_kernel(name, idx, roles, *blk)
        launches.append(l)
        code.append(c)
        descs.append(d)
    out = "\n".join(launches) + "\n"
    out += '.amdgcn_target "amdgcn-amd-amdhsa--gfx950"\n.text\n'
    out += "".join(code)
    out += "text_last:\n"
    out += '.section .rodata,"a"\n'
    out += "".join(descs)
    out += (tabs or tables)()
    return out


def default_plan():
    tail = [
        ("g1a_kernel", [(256, lambda a: role_g1(a, "XP1"))]),
        ("g2a_kernel", [(256, lambda a: role_g2(a, False))]),
        ("c2_kernel", [(320, lambda a: role_col(a, "XP2", "SS2", "XP3")), (135, role_w2t)]),
        ("g1b_kernel", [(256, lambda a: role_g1(a, "XP3"))]),
        ("g2b_kernel", [(256, lambda a: role_g2(a, True))]),
    ]
    d = Cfg.pdepth
    if Cfg.plan == 1:
        return [
            ("p0_kernel", [(256, lambda a: role_xhat0(a, d))]),
            ("p1_kernel", [(80, role_wc), (64, role_stats)]),
            ("p2_kernel", [(224, lambda a: role_w2f(a, d))]),
            ("p3_kernel", [(216, lambda a: role_w1f(a, min(d, 4)))]),
            ("c1_kernel", [(320, lambda a: role_col(a, "XP0", "SS0", "XP1"))]),
        ] + tail[:3]
    if Cfg.plan == 2:
        return [
            ("p0_kernel", [(256, lambda a: role_xhat0(a, d)), (80, role_wc), (64, role_stats)]),
            ("c1_kernel", [(320, lambda a: role_col(a, "XP0", "SS0", "XP1")), (216, lambda a: role_w1f(a, min(d, 4))),
                           (224, lambda a: role_w2f(a, min(d, 4), 112))]),
        ] + tail
    return [
        ("p0_kernel", [(256, lambda a: role_xhat0(a, 4)), (80, role_wc), (64, role_stats),
                       (224, lambda a: role_w2f(a, 4))]),
        ("c1_kernel", [(320, lambda a: role_col(a, "XP0", "SS0", "XP1")), (216, lambda a: role_w1f(a, 4))]),
        ("g1a_kernel", [(256, lambda a: role_g1(a, "XP1"))]),
        ("g2a_kernel", [(256, lambda a: role_g2(a, False))]),
        ("c2_kernel", [(320, lambda a: role_col(a, "XP2", "SS2", "XP3")), (135, role_w2t)]),
        ("g1b_kernel", [(256, lambda a: role_g1(a, "XP3"))]),
        ("g2b_kernel", [(256, lambda a: role_g2(a, True))]),
    ]


if __name__ == "__main__":
    out = sys.argv[1]
    for opt in sys.argv[2:]:
        if opt == "stamp":
            Cfg.stamp = True
        if "=" in opt:
            k, v = opt.split("=")
            setattr(Cfg, k, int(v) if v.lstrip("-").isdigit() else v.replace("_", " "))
        if opt == "clk":
            Cfg.stamp = Cfg.clk = True
    open(out, "w").write(generate())


def vstr(dst, src, stride):
    if stride & (stride - 1) == 0:
        return f"v_lshlrev_b32 v{dst}, {stride.bit_length() - 1}, v{src}"
    return f"v_mul_u32_u24 v{dst}, {stride}, v{src}"


def sstr(dst, src, stride):
    if stride & (stride - 1) == 0:
        return f"s_lshl_b32 s{dst}, s{src}, {stride.bit_length() - 1}"
    return f"s_mul_i32 s{dst}, s{src}, {stride}"
```

```python
from gen import *
import gen
import f0
import model2
from p0 import Sched, fx
from f0 import READY, POST, HINT, DONE, DONE2, aF
from asmlib import TRANS

GELU_K0 = -2.0 * 0.7978845608028654 * 1.4426950408889634
EPS = 1e-5
SPIN_MAX = 1 << 14
NCOL = 160
TILE = 20480
LDS_RK = 16384
LDS_X = LDS_RED = 0
PX = 0
S_LO, S_X = -97, (-24, 24)
UP = [s - S_LO for s in S_X]
T_X = [2.0 ** (d - 127) for d in UP]
T_H, H_OFF = T_X[0], -2.0 ** -40

SRDQ, SRDF, SRDW, SRDP = 8, 12, SRD4, SRD5
sDC, sRP, sHO, sTB = 16, 17, 18, 19
sRB, sMM, sFL, sCNT, sGA, sGB = 96, 97, 98, 99, 100, 101
sMSK, sCQ = 26, 27
sPK, sEB = 20, 21
vW, vo, vp, vd2, vtc = 10, 11, 15, 14, 5
WR, NW, NP = 256, 8, 11
aPO = WR
aST, aDUM, vdc = 256 + 252, 256 + 253, 256 + 254
NS = 14


class FZ:
    look = 10
    pre_p = (8, 8)
    burst = ((0, 8), (4, 0))
    period = (90, 90)
    stop = ("x2", "x2")
    hint_at = ("x1", "x1")
    po_every = 5
    cap = 12
    row = 70
    srow = 120
    lat = 750
    dbl = (12, 15)
    xc_at = 1
    b_pre = 0
    pure = (2, 1)
    in_b = (5, 3)
    in_e = 5
    g2pk = (1, 1)
    qdel = (1600, 1600)
    qc_rem = 7
    split0 = 1
    ktail = 3
    rd_at = (("b", 1), ("b", 8))
    x3 = (("g", 3), ("g", 6), ("g", 8))
    res_at = ("g", 7)
    ebar = 1
    e_ok = 17
    marks = None
    clk = 0
    halt = 0
    verbose = 0
    map = 2
    post = 'bar2'
    x_nocnt = 0
    x_op = 'buffer-atomic-add-f32'
    wgap = 48
    park = (3, 2)
    gbar = 5
    ft_pf = 1
    p_lead = (14, 14)
    r_q = 2
    qf = (" sc1", " sc1")
    xf = (" sc1", " sc1")
    hf = " sc1"
    d2_at = (30, 30)
    t2_at = (35, 35)
    d3_at = 0
    t_gate = ()
    tch = 0
    tch_at = ("g", 1)
    h_early = (12, 0)
    p_early = 1
    ack_at = 2
    single = 0
    probe_x = None
    probe = None
    virt = 1
    dbg = None
    pof = " sc1"
    shrink = 1
    drop = ("c1a", "c2a", "c1b2", "c2b2", "m1H", "m2H", "m1P", "m2P", "c2ld", "c2x1", "c1rp", "c1rb", "c1ru", "c1rv")


class Marks:
    def __init__(self):
        self.names, self.pend = [], []

    def __call__(self, a, name):
        if FZ.probe and name in FZ.probe[1:]:
            if FZ.probe_x is not None:
                a.raw(f"    s_and_b32 s{sST + 2}, s2, 7")
                a.raw(f"    s_cmp_lg_u32 s{sST + 2}, {FZ.probe_x}")
                a.raw(f"    s_cbranch_scc1 probe_{name}_x")
            a.label(f"probe_{name}", keep=True)
            a.raw(f"    s_memrealtime s[{sST + 2}:{sST + 3}]")
            a.raw("    s_waitcnt lgkmcnt(0)")
            a.raw(f"    s_sub_u32 s{sST + 2}, s{sST + 2}, s{sST}")
            a.raw(f"    s_cmp_lt_u32 s{sST + 2}, {FZ.probe[0] * 100}")
            a.raw(f"    s_cbranch_scc1 probe_{name}")
            a.label(f"probe_{name}_x", keep=True)
        if not Cfg.stamp or (name in FZ.drop if FZ.marks is None else name not in FZ.marks):
            return
        k = len(self.pend)
        assert k < 12, name
        self.pend.append(len(self.names))
        self.names.append(name)
        a(f"{'s_memtime' if FZ.clk else 's_memrealtime'} s[{sST + 2 * k}:{sST + 2 * k + 1}]")

    def fixed(self, a, name):
        if not Cfg.stamp or FZ.marks is not None:
            return
        name = "f" + name
        if name not in self.names:
            self.pend.append(len(self.names))
            self.names.append(name)
        k = self.pend.index(self.names.index(name))
        a(f"s_memrealtime s[{sST + 2 * k}:{sST + 2 * k + 1}]")

    def stash(self, a, tmp):
        if not self.pend:
            return
        a("s_waitcnt lgkmcnt(0)")
        a(f"v_accvgpr_read_b32 v{tmp}, {R(aST)}")
        for k, lane in enumerate(self.pend):
            a(f"v_writelane_b32 v{tmp}, s{sST + 2 * k}, {lane}")
        a(f"v_writelane_b32 v{tmp}, s{sCNT}, {len(self.names)}")
        self.names.append("#" + self.names[self.pend[-1]])
        assert len(self.names) < 63
        a(f"v_accvgpr_write_b32 {R(aST)}, v{tmp}")
        self.pend = []


mk = Marks()


def preg(u, p):
    return WR + (0 if u == NP else 4 * NW + 20 * (u % (NP + 1))) + 4 * p


def kblock(u):
    return 2 * (14 * (u & 1) + (u >> 1))


def decode(a, sT):
    a(f"s_and_b32 s{sA}, s{sT}, 7")
    if FZ.map == 1:
        a(f"s_bfe_u32 s{sRB}, s{sT}, 0x10003")
        a(f"s_lshl1_add_u32 s{sRB}, s{sA}, s{sRB}")
        a(f"s_lshr_b32 s{sMM}, s{sT}, 4")
    else:
        a(f"s_lshr_b32 s{sB}, s{sA}, 1")
        a(f"s_lshl_b32 s{sB}, s{sB}, 2")
        a(f"s_bfe_u32 s{sRB}, s{sT}, {0x20006 if FZ.map == 2 else 0x20003:#x}")
        a(f"s_add_u32 s{sRB}, s{sRB}, s{sB}")
        a(f"s_and_b32 s{sA}, s{sA}, 1")
        a(f"s_lshl_b32 s{sA}, s{sA}, 3")
        a(f"s_bfe_u32 s{sMM}, s{sT}, {0x30003 if FZ.map == 2 else 0x30005:#x}")
        a(f"s_add_u32 s{sMM}, s{sMM}, s{sA}")
    a(f"s_lshl_b32 s{sFL}, s{sRB}, 7")


def begin(a):
    srd_ws(a, SRDF, "FLAG", FLAG_SIZE)
    srd_ws(a, SRDQ, "H", H_SIZE)
    a(f"s_mov_b32 s{sCNT}, 0")
    for k in range(0 if any(f0.FC.po) else 4):
        a(f"v_accvgpr_write_b32 {R(aPO + k)}, -1")
    if Cfg.stamp:
        a(f"v_accvgpr_write_b32 {R(aST)}, 0")


def pre_setup(a, ph, t0, tt):
    if not ph:
        a(f"s_and_b32 s{sA}, s{sMM}, 3")
        a(f"s_cmp_eq_u32 s{sA}, 3")
        a(f"s_cselect_b32 s{sMSK}, 0x40000000, 0")
        a(f"s_lshr_b32 s{sB}, s{sMM}, 3")
        a(f"s_lshl2_add_u32 s{sDC}, s{sB}, s{sA}")
        a(f"s_mul_i32 s{sTB}, s{sMM}, 7")
        a(f"s_lshr_b32 s{sB}, s{sMM}, 2")
        a(f"s_sub_u32 s{sTB}, s{sTB}, s{sB}")
        a(f"s_mul_i32 s{sPK}, s{sW}, {TILE // 4}")
        a(f"s_mul_i32 s{sEB}, s{sW}, {3 * TILE // 4}")
    a(f"s_mul_i32 s{sE}, s{sW}, {(2 if ph else 7) * TILE // 4}")
    a(f"s_add_u32 m0, s{sE}, {TILE}")
    a(f"v_lshlrev_b32 v{vW}, 4, v{vL}")
    a(f"s_mul_i32 s{sA}, s{sTB}, {TILE}")
    a(f"s_add_u32 s{sA}, s{sA}, {WS['W1F'] - TILE}")
    a(f"s_add_u32 s{SRDW}, s{P_WS}, s{sA}")
    a(f"s_addc_u32 s{SRDW + 1}, s{P_WS + 1}, 0")
    a(f"s_and_b32 s{SRDW + 1}, s{SRDW + 1}, 0xffff")
    a(f"s_mov_b32 s{SRDW + 2}, {8 * TILE}")
    a(f"s_cmp_lg_u32 s{sMSK}, 0")
    a(f"s_cselect_b32 s{SRDW + 2}, {7 * TILE}, s{SRDW + 2}")
    a(f"s_mov_b32 s{SRDW + 3}, 0x20000")
    if not ph and FZ.tch & 1:
        a(f"s_and_b32 s{sA}, s{sRB}, 3")
        a(f"s_lshl_b32 s{sA}, s{sA}, 13")
        a(f"v_lshl_add_u32 v{tt}, v{vL}, 7, s{sA}")
        a(f"buffer_load_dword {R(aDUM)}, v{tt}, s[{SRDW}:{SRDW + 3}], m0 offen offset:3072", tag="touch")
    a(f"v_lshrrev_b32 v{vo}, 1, v{vG}")
    a(f"v_and_b32 v{t0}, 1, v{vG}")
    if not ph:
        a(f"v_mad_u32_u24 v{vp}, v{vo}, 14, v{t0}")
        a(f"v_mul_u32_u24 v{vp}, {KB_STR}, v{vp}")
        a(f"v_lshl_add_u32 v{vp}, v{vI}, 4, v{vp}")
        a(f"s_mul_i32 s{sA}, s{sDC}, 1280")
        a(f"s_mul_i32 s{sB}, s{sW}, {54 * KB_STR}")
        a(f"s_add_u32 s{sA}, s{sA}, s{sB}")
        a(f"v_add_u32 v{vp}, s{sA}, v{vp}")
        if FZ.tch & 2:
            a(f"s_add_u32 s{sA}, s{sA}, {2 * KB_STR}")
            a(f"s_and_b32 s{sB}, s{sRB}, 3")
            a(f"s_and_b32 s{sC}, s{sMM}, 4")
            a(f"s_lshl3_add_u32 s{sB}, s{sB}, s{sC}")
            a(f"s_lshl_b32 s{sB}, s{sB}, 4")
            a(f"v_add_u32 v{vtc}, s{sB}, v{vL}")
            a(f"v_mul_u32_u24 v{tt + 1}, 6554, v{vtc}")
            a(f"v_lshrrev_b32 v{tt + 1}, 16, v{tt + 1}")
            a(f"v_mul_u32_u24 v{tt + 1}, {KB_STR - 1280}, v{tt + 1}")
            a(f"v_lshl_add_u32 v{vtc}, v{vtc}, 7, v{tt + 1}")
            a(f"v_add_u32 v{vtc}, s{sA}, v{vtc}")
    a(vstr(vo, vo, H_STR))
    a(f"v_lshl_add_u32 v{vo}, v{vI}, 5, v{vo}")
    a(f"v_lshl_add_u32 v{vo}, v{t0}, 4, v{vo}")
    a(sstr(sA, sTB, 2 * H_STR))
    a(f"s_lshl4_add_u32 s{sA}, s{sFL}, s{sA}")
    a(f"s_lshl_b32 s{sB}, s{sW}, 9")
    a(f"s_add_u32 s{sA}, s{sA}, s{sB}")
    a(f"v_add_u32 v{vo}, s{sA}, v{vo}")
    if ph:
        a(f"s_add_u32 s{SRDP}, s{SRDP}, {WS['W2T'] - WS['WA2']}")
        a(f"s_addc_u32 s{SRDP + 1}, s{SRDP + 1}, 0")
    else:
        a(f"v_add_u32 v{t0}, s{sMSK}, v{vo}")
        srd_ws(a, SRDP, "WA2", 218 * KB_STR)
        a(f"s_add_u32 s{sA}, s{sW}, 1")
        a(f"s_mul_i32 s{sA}, s{sA}, {54 * KB_STR}")
        a(f"s_cmp_eq_u32 s{sW}, 3")
        a(f"s_cselect_b32 s{SRDP + 2}, s{SRDP + 2}, s{sA}")


def rank_put(a, t):
    a(f"s_getreg_b32 s{sB}, {f0.XCC}")
    a(f"s_lshl_b32 s{sB}, s{sB}, 20")
    a(f"s_lshl_b32 s{sA}, s3, 7")
    a(f"s_add_u32 s{sA}, s{sA}, s{sB}")
    a(f"s_add_u32 s{sA}, s{sA}, {DONE}")
    a(f"v_and_b32 v{t + 1}, 7, v{t + 1}")
    a(f"v_lshl_add_u32 v{t + 1}, v{t + 1}, 20, v{t}")
    a(f"v_cmp_gt_u32 vcc, s{sA}, v{t + 1}")
    a(f"s_lshl_b32 s{sB}, s{sW}, 2")
    a(f"v_mov_b32 v{t}, s{sB}")
    a(f"s_bcnt1_i32_b64 s{sA}, vcc")
    a(f"v_mov_b32 v{t + 1}, s{sA}")
    a(f"ds_write_b32 v{t}, v{t + 1} offset:{LDS_RK}")
    a(f"v_mov_b32 v{t}, 0")
    a("s_waitcnt lgkmcnt(0)")


def rank_get(a, t):
    a(f"ds_read_b128 {V(t, 4)}, v{t} offset:{LDS_RK}")
    a(f"v_add_u32 v{t}, v{t}, v{t + 1}")
    a(f"v_add3_u32 v{t}, v{t}, v{t + 2}, v{t + 3}")
    a(f"v_readfirstlane_b32 s{sGA}, v{t}")
    a(f"s_and_b32 s{sA}, s{sGA}, 31")
    a(f"s_bfe_u32 s{sGA}, s{sGA}, 0x30005")
    a(f"s_lshl3_add_u32 s{sGA}, s{sA}, s{sGA}")
    decode(a, sGA if FZ.virt else sT)


def w2_flags(ph):
    return [f"s_mul_i32 s{sOP}, s{sW}, 27",
            f"v_min_u32 v{vd2}, 27, v{vL}",
            f"v_add_u32 v{vd2}, s{sOP}, v{vd2}",
            f"v_sub_u32 v{vd2}, {f0.W2TOP}, v{vd2}",
            f"v_lshlrev_b32 v{vd2}, 7, v{vd2}",
            f"s_mov_b32 s{sOP}, {DONE2 + 4 * ph}",
            f"buffer_load_dword v{vd2}, v{vd2}, s[{SRDF}:{SRDF + 3}], s{sOP} offen sc1"]


def w2_test(a, nm, ph):
    a(f"v_cmp_eq_u32 vcc, 0, v{vd2}")
    a(f"s_cbranch_vccnz {nm}_w2")
    a.label(f"{nm}_w2ok", keep=True)

    def spin():
        a.label(f"{nm}_w2")
        for x in w2_flags(ph):
            a(x)
        budget(a, f"{nm}_w2out")
        a(f"v_cmp_eq_u32 vcc, 0, v{vd2}")
        a(f"s_cbranch_vccnz {nm}_w2")
        a.label(f"{nm}_w2out")
        a("s_waitcnt vmcnt(0)")
        a(f"s_branch {nm}_w2ok")
    a.tail.append(spin)


def front_wait(a, nm, t, between=None):
    f0.lane_blocks(a, t, t + 1, 0)
    ld = f"buffer_load_dword v{t + 1}, v{t}, s[{SRDF}:{SRDF + 3}], 0 offen sc1"
    if between:
        a(ld)
        between()
        a(f"v_accvgpr_read_b32 v{t + 2}, {R(aF)}")
        a.wait_regs(f"v{t + 1}")
        a(f"s_branch {nm}_fwt")
    else:
        a(f"v_accvgpr_read_b32 v{t + 2}, {R(aF)}")
    a.label(f"{nm}_fw")
    a(ld)
    budget(a, f"{nm}_fwok")
    if between:
        a("s_waitcnt vmcnt(0)")
        a.label(f"{nm}_fwt")
    a(f"v_cmp_eq_u32 vcc, v{t + 2}, v{t + 1}")
    if FZ.shrink:
        a(f"s_cbranch_vccz {nm}_fwok")
        a("s_mov_b64 exec, vcc")
        a(f"s_branch {nm}_fw")
    else:
        a(f"s_cbranch_vccnz {nm}_fw")
    a.label(f"{nm}_fwok")
    if FZ.shrink:
        a("s_mov_b64 exec, -1")
    if not between:
        a("s_waitcnt vmcnt(0)")


def pre_ops(ph, t0, nm):
    po, ops = [], []
    for k in range(0 if ph or any(f0.FC.po) else 7):
        po.append([f"s_mov_b32 s{sOQ}, {k * 2 * H_STR}",
                   f"buffer_store_dwordx4 {R(aPO, 4)}, v{t0 if k == 6 else vo}, s[{SRDQ}:{SRDQ + 3}], s{sOQ} offen{FZ.pof}"])
    n = 10 if ph else 35
    for k in range(n):
        g = [f"buffer_load_dwordx4 v{vW}, s[{SRDW}:{SRDW + 3}], m0 offen offset:{(k & 3) * 1024} lds"]
        if k & 3 == 3:
            g.append("s_add_u32 m0, m0, 4096")
        ops.append(g)
    for u in range(FZ.pre_p[ph]):
        for p in range(5):
            g = [f"buffer_load_dwordx4 {R(preg(u, p), 4)}, v{vp}, s[{SRDP}:{SRDP + 3}], s{sOP} offen offset:{p * 256}"]
            ops.append(([f"s_mov_b32 s{sOP}, {kblock(u) * KB_STR}"] if p == 0 else []) + g)
    if not ph:
        k = nm[0] == "n"
        if FZ.tch & 2:
            ops.insert(FZ.t2_at[k], [lambda a: a(
                f"buffer_load_dword {R(aDUM)}, v{vtc}, s[{SRDP}:{SRDP + 3}], 0 offen", tag="touch")])
        ops[FZ.t2_at[k]].insert(0, lambda a: w2_test(a, nm, 0))
        ops.insert(FZ.d2_at[k], w2_flags(0))
    elif f0.FC.t_late:
        ops[n].insert(0, lambda a: w2_test(a, nm, 1))
        ops.insert(FZ.d3_at, w2_flags(1))
    out = []
    for k, op in enumerate(ops):
        out.append(op)
        if k % FZ.po_every == FZ.po_every - 1 and po:
            out.append(po.pop(0))
    assert not po
    return out


class Paced:
    def __init__(self, a, ops, period):
        self.a, self.ops, self.period = a, ops, period
        self.on = False
        self.t = 0

    def burst(self, n):
        for _ in range(min(n, len(self.ops))):
            for x in self.ops.pop(0):
                x(self.a) if callable(x) else self.a(x)

    def __call__(self, text, tag=None):
        self.a(text, tag)
        if self.on:
            op = text.split()[0]
            self.t += 16 if op.startswith("v_mfma") else 8 if op in TRANS else 4
            if self.t >= self.period:
                self.t -= self.period
                self.burst(1)

    def __getattr__(self, n):
        return getattr(self.a, n)


def budget(a, out):
    a(f"s_add_u32 s{sCNT}, s{sCNT}, 1")
    a(f"s_cmp_ge_u32 s{sCNT}, {SPIN_MAX}")
    a(f"s_cbranch_scc1 {out}")


def col_phase(a0, ph):
    vx, vw, vl0, vt0, vh = 4, 5, 6, 12, 13
    raw, ss, wraw = 16, 32, 40
    M1, M2 = 56, 88
    T1, T2 = 120, 136
    ACC, FO, TMP, WU0 = 152, 184, 200, 232
    vmI, fi, fg, fa, fb = 176, 177, 178, 179, 180
    SL = ACC
    FGR = [TMP + 4 * k for k in range(8)] + [ss, ss + 4, 248, 252]
    WU = (WU0, T1)
    nm = f"c{ph + 1}"
    a = Paced(a0, pre_ops(ph, vt0, nm), FZ.period[ph])

    def point(name):
        mk(a0, nm + name)
        if name == FZ.hint_at[ph]:
            a0(f"buffer_store_dword v{vh}, v{vh}, s[{SRDF}:{SRDF + 3}], 0 offen sc1")
        if name == FZ.stop[ph]:
            a.on = False

    a(f"s_mul_i32 s{sB}, s{sW}, 3072")
    a(f"v_lshlrev_b32 v{vl0}, 4, v0")
    a(f"v_add_u32 v{vx}, s{sB}, v{vl0}")
    if not ph:
        a(f"s_lshl_b32 s{sB}, s{sW}, 10")
        a(f"v_add_u32 v{vw}, s{sB}, v{vl0}")
    a(sstr(sF, sT, XP_STR))

    def data_loads(e):
        if ph:
            for k in range(4):
                e(f"buffer_load_dwordx4 {V(raw + 4 * k, 4)}, v{vx}, s[{SRD0}:{SRD0 + 3}], s{sF} offen offset:{k * 1024} sc1")
            for k in range(4):
                e(f"buffer_load_dwordx3 {V(SL + 4 * k, 3)}, v{vx}, s[{SRD1}:{SRD1 + 3}], 0 offen offset:{k * 1024} sc1")
        else:
            for t in range(2):
                e(f"buffer_load_dwordx4 {V(ss + 4 * t, 4)}, v{vw}, s[{SRD1}:{SRD1 + 3}], 0 offen offset:{t * 1024} sc1")
            for k in range(4):
                e(f"buffer_load_dwordx4 {V(raw + 4 * k, 4)}, v{vx}, s[{SRD0}:{SRD0 + 3}], s{sF} offen offset:{k * 1024} sc1")

    def filter_loads():
        for k in range(4):
            a(f"buffer_load_dwordx4 {V(wraw + 4 * k, 4)}, v{vx}, s[{SRD2}:{SRD2 + 3}], s{sF} offen offset:{k * 1024} sc1")

    def ack(n):
        if not ph and n == FZ.ack_at:
            st = f0.post(a0, SRDF, 0, 1, ACC, "s_waitcnt vmcnt(0)", True)
            a0("s_barrier")
            a0(st)
            point("ak")

    def pos(base, k, c):
        return base + (k >> 1) * 4 + (k & 1) * 2 + c

    srd_ws(a, SRD2, "WC", max(WC_SIZE, XP_SIZE))
    if XP_STR != WC_STR:
        op = ("sub", "subb") if XP_STR > WC_STR else ("add", "addc")
        a(f"s_mul_i32 s{sA}, s{sT}, {abs(XP_STR - WC_STR)}")
        a(f"s_{op[0]}_u32 s{SRD2}, s{SRD2}, s{sA}")
        a(f"s_{op[1]}_u32 s{SRD2 + 1}, s{SRD2 + 1}, 0")
    if ph:
        filter_loads()
        point("ld")
    else:
        srd_ws(a, SRD0, "XP0", XP_SIZE)
        srd_ws(a, SRD1, "SS0", SS_SIZE)
    if ph:
        pre_setup(a, ph, vt0, TMP + 8)
    a(f"s_lshl_b32 s{sA}, s3, 7")
    a(f"s_add_u32 s{sA}, s{sA}, {HINT[ph]}")
    a(f"v_lshl_add_u32 v{vh}, v0, 20, s{sA}")
    if ph:
        a("s_barrier")
        a.burst(FZ.burst[ph][0])
    ack(0)
    for kk in (1, 2, 3):
        a(f"v_xor_b32 v{vl0 + kk}, {kk * 1024}, v{vl0}")
    a(f"v_and_b32 v{vmI}, 1, v{vI}")
    a(f"v_mul_u32_u24 v{vmI}, 0x8000, v{vmI}")
    a(f"v_lshl_or_b32 v{vmI}, v{vmI}, 16, v{vmI}")
    a(f"v_cvt_f32_u32 v{fi}, v{vI}")
    a(f"v_lshlrev_b32 v{fg}, 2, v{vG}")
    a(f"v_cvt_f32_u32 v{fg}, v{fg}")

    def m1(qb, t, var):
        return M1 + ((qb * 2 + t) * 2 + var) * 4

    def m2(kk, var):
        return M2 + (kk * 2 + var) * 4

    a(f"v_mul_f32 v{fa}, {fx(1 / 32)}, v{fi}")
    a(f"v_mul_f32 v{TMP}, v{fg}, v{fa}")
    for jj in range(1, 4):
        a(f"v_fmamk_f32 v{TMP + 3 * jj}, v{fa}, {fx(float(jj))}, v{TMP}")
    for jj in range(4):
        t = TMP + 3 * jj
        a(f"v_cos_f32 v{t + 1}, v{t}")
        a(f"v_sin_f32 v{t + 2}, v{t}")
    for jj in range(4):
        t = TMP + 3 * jj
        n = "-" if jj & 1 else ""
        m = "" if jj & 1 else "-"
        a(f"v_cvt_pk_bf16_f32 v{m1(0, 0, 0) + jj}, v{t + 1}, v{t + 2}")
        a(f"v_cvt_pk_bf16_f32 v{m1(0, 0, 1) + jj}, -v{t + 2}, v{t + 1}")
        a(f"v_cvt_pk_bf16_f32 v{m1(1, 0, 0) + jj}, {n}v{t + 1}, {n}v{t + 2}")
        a(f"v_cvt_pk_bf16_f32 v{m1(1, 0, 1) + jj}, {m}v{t + 2}, {n}v{t + 1}")
    for qb in range(2):
        for var in range(2):
            for jj in range(4):
                a(f"v_xor_b32 v{m1(qb, 1, var) + jj}, v{vmI}, v{m1(qb, 0, var) + jj}")
    ack(1)

    a(f"s_lshl_b32 s{sK0}, s{sW}, 4")
    a(f"v_cvt_f32_u32 v{fb}, s{sK0}")
    a(f"v_add_f32 v{TMP + 24}, v{fb}, v{fg}")
    a(f"v_add_f32 v{fb}, v{fb}, v{fi}")
    a(f"v_mul_f32 v{TMP + 25}, {fx(1 / 2048)}, v{fi}")
    a(f"v_add_f32 v{TMP + 26}, {fx(16 / 2048)}, v{TMP + 25}")
    for r in range(4):
        a(f"v_add_f32 v{TMP + r}, {fx(float(r))}, v{TMP + 24}")
    for qb in range(2):
        for r in range(4):
            t = TMP + 4 + (qb * 4 + r)
            a(f"v_mul_f32 v{t}, v{TMP + r}, v{TMP + 25 + qb}")
            a(f"v_cos_f32 v{T1 + qb * 8 + r}, v{t}")
            a(f"v_sin_f32 v{T1 + qb * 8 + 4 + r}, v{t}")
    ack(2)

    a(f"v_mul_f32 v{fa}, {fx(1 / 64)}, v{fb}")
    a(f"s_xor_b32 s{sK0}, s{sK0}, 16")
    a(f"v_cvt_f32_u32 v{TMP + 24}, s{sK0}")
    a(f"v_add_f32 v{TMP + 24}, v{TMP + 24}, v{fg}")
    for kk in range(2):
        for r in range(4):
            t = TMP + 12 + 3 * r
            if kk == 0:
                a(f"v_mul_f32 v{t}, v{TMP + r}, v{fa}")
            else:
                a(f"v_add_f32 v{t}, {fx(float(r))}, v{TMP + 24}")
                a(f"v_mul_f32 v{t}, v{t}, v{fa}")
            a(f"v_cos_f32 v{t + 1}, v{t}")
            a(f"v_sin_f32 v{t + 2}, v{t}")
        for r in range(4):
            t = TMP + 12 + 3 * r
            a(f"v_cvt_pk_bf16_f32 v{m2(kk, 0) + r}, v{t + 1}, v{t + 2}")
            a(f"v_cvt_pk_bf16_f32 v{m2(kk, 1) + r}, -v{t + 2}, v{t + 1}")
    for kk in range(2):
        for var in range(2):
            for r in range(4):
                a(f"v_xor_b32 v{m2(kk + 2, var) + r}, v{vmI}, v{m2(kk, var) + r}")

    ack(3)
    if not ph:
        point("cs")
        st = f0.post(a0, SRDF, 0, 2, ACC)
        front_wait(a0, nm, TMP)
        point("dr")
        data_loads(a)
        filter_loads()
        rank_put(a, TMP)
        point("rp")
        a("s_barrier")
        point("rb")
        a(st)
        rank_get(a, TMP)
        pre_setup(a, ph, vt0, TMP + 8)
        point("ru")
        a.burst(FZ.burst[ph][1])
        point("rv")
        mk.stash(a0, TMP)
        a.on = True
    else:
        point("cs")
        if FZ.post:
            a(f"v_lshlrev_b32 v{TMP}, 7, v0")
            a(f"v_add_u32 v{TMP}, {POST}, v{TMP}")
            a0.label(f"{nm}_poll")
            a0(f"buffer_load_dword v{TMP + 1}, v{TMP}, s[{SRDF}:{SRDF + 3}], 0 offen sc1")
            budget(a0, f"{nm}_seen")
            a0(f"v_cmp_eq_u32 vcc, 0, v{TMP + 1}")
            a0(f"s_cbranch_vccnz {nm}_poll")
            a0.label(f"{nm}_seen")
            a0("s_waitcnt vmcnt(0)")
        else:
            a.wait_tag("out")
        point("dr")
        if FZ.halt == 25:
            mk.stash(a0, TMP)
            return 0
        data_loads(a)
        a.burst(FZ.burst[ph][1])
        mk.stash(a0, TMP)

    a(f"v_mul_f32 v{fa}, {fx(1 / 2048)}, v{fb}")
    a(f"v_mul_f32 v{TMP}, v{fg}, v{fa}")
    for k in range(1, 8):
        a(f"v_fmamk_f32 v{TMP + k}, v{fa}, {fx(float(16 * (k >> 2) + (k & 3)))}, v{TMP}")
    for k in range(8):
        u, r = divmod(k, 4)
        a(f"v_cos_f32 v{T2 + u * 8 + r}, v{TMP + k}")
        a(f"v_sin_f32 v{T2 + u * 8 + 4 + r}, v{TMP + k}")

    a0(f"s_mov_b32 s{sK1}, 0xffff0000")
    a0(f"s_cmp_eq_u32 s{sT}, 0")
    a0(f"s_cselect_b32 s{sK2}, 0, s{sK1}")
    a0(f"s_mov_b32 s{sK0}, {fx(-1 / 2048)}")
    a0(f"s_cselect_b32 s{sK3}, 0, s{sK0}")
    a(f"s_mov_b32 s{sA}, {fx(1 / DM)}")
    a(f"s_mov_b32 s{sB}, {fx(1 / 2048)}")
    a(f"s_mov_b32 s{sC}, {UP[ph] * 0x800080:#x}")
    a(f"v_mov_b32 v{fa}, {fx(1e-5)}")
    point("k")
    if ph:
        def test(e):
            e(f"v_max3_f32 v{fi}, |v{raw}|, |v{raw + 2}|, |v{raw + 4}|")
            e(f"v_max3_f32 v{fb}, |v{raw + 6}|, |v{raw + 8}|, |v{raw + 10}|")
            e(f"v_max3_f32 v{fi}, v{fi}, |v{raw + 12}|, |v{raw + 14}|")
            e(f"v_max_f32 v{fi}, v{fi}, v{fb}")
            e(f"v_min3_f32 v{fg}, v{SL + 2}, v{SL + 6}, v{SL + 10}")
            e(f"v_min_f32 v{fg}, v{fg}, v{SL + 14}")
            e(f"v_fmamk_f32 v{fg}, v{fi}, {fx(-8 / T_X[0])}, v{fg}")
            e(f"v_cmp_gt_f32 vcc, {fx(7.5)}, v{fg}")

        def var_ops(e):
            for k in range(8):
                e(f"v_fma_f32 v{ss + k}, v{SL + 4 * (k >> 1) + (k & 1)}, s{sA}, v{fa}")

        test(a0)
        var_ops(a0)
        a0(f"s_cbranch_vccnz {nm}_again", tag="nopad")
        a0.label(f"{nm}_ok", keep=True)

        def again():
            a0.label(f"{nm}_again")
            budget(a0, f"{nm}_ok")
            data_loads(a0)
            a0("s_waitcnt vmcnt(0)")
            test(a0)
            var_ops(a0)
            a0(f"s_cbranch_vccnz {nm}_again")
            a0(f"s_branch {nm}_ok")
        a0.tail.append(again)
        a.on = True
    else:
        for k in range(8):
            a(f"v_fma_f32 v{ss + k}, v{ss + k}, s{sA}, v{fa}")
    for k in range(8):
        a(f"v_rsq_f32 v{ss + k}, v{ss + k}")

    def acc(c, b, var):
        return ACC + c * 16 + (b * 2 + var) * 4

    def fo(c, b):
        return FO + c * 8 + b * 4

    def unpack(dst_, base, c, mask):
        ops = []
        for k in range(8):
            ops.append(f"v_lshlrev_b32 v{dst_ + 2 * k}, 16, v{pos(base, k, c)}")
            ops.append(f"v_and_b32 v{dst_ + 2 * k + 1}, s{mask}, v{pos(base, k, c)}")
        return ops

    def unpack_w(c):
        ops = []
        for k in range(8):
            u, r = divmod(k, 4)
            ops.append(f"v_lshlrev_b32 v{WU[c] + u * 8 + r}, 16, v{pos(wraw, k, c)}")
            ops.append(f"v_and_b32 v{WU[c] + u * 8 + 4 + r}, s{sK1}, v{pos(wraw, k, c)}")
        return ops

    def scale(c):
        t = TMP + 16 * c
        for k in range(8):
            h = k & 1
            a(f"v_pk_mul_f32 {V(t + 2 * k, 2)}, {V(t + 2 * k, 2)}, {V(ss + k - h, 2)} op_sel:[0,{h}] op_sel_hi:[1,{h}]")
        for k in range(8):
            a(f"v_cvt_pk_bf16_f32 v{fo(c, 0) + k}, v{t + 2 * k}, v{t + 2 * k + 1}")

    sc = Sched(a)

    def stage_a(c):
        for t in range(2):
            for qb in range(2):
                for var in range(2):
                    sc.mfma(acc(c, qb, var), fo(c, t), m1(qb, t, var), None if t == 0 else acc(c, qb, var))
        sc.flush()

    for op in unpack(TMP, raw, 0, sK2):
        a(op)
    scale(0)
    point("s0")
    for op in unpack(TMP + 16, raw, 1, sK1):
        sc.add(op)
    stage_a(0)
    scale(1)
    for op in unpack_w(0):
        sc.add(op)
    stage_a(1)
    point("a")

    def mm(c, b, var, f, kk, data_is_a):
        cc = None if kk == 0 else acc(c, b, var)
        if data_is_a:
            sc.mfma(acc(c, b, var), f, m2(kk, var), cc)
        else:
            sc.mfma(acc(c, b, var), m2(kk, var), f, cc)

    def exchange(n, data_is_a, cm, fill_own, fill_rest):
        for c in range(2):
            for b in range(2):
                cm(c, b)
                if n == 2 and c == b == 0:
                    a("s_barrier")
                a(f"ds_write_b128 v{vl0}, {V(fo(c, b), 4)} offset:{(c * 2 + b) * 4096}")
        a("s_waitcnt lgkmcnt(0)")
        a("s_barrier")
        point(f"b{n}")
        for c in range(2):
            for kk in (1, 2, 3):
                for b in range(2):
                    f = FGR[(c * 3 + kk - 1) * 2 + b]
                    a(f"ds_read_b128 {R(f, 4)}, v{vl0 + kk} offset:{(c * 2 + b) * 4096}")
        for op in fill_own:
            sc.add(op)
        for c in range(2):
            for b in range(2):
                for var in range(2):
                    mm(c, b, var, fo(c, b), 0, data_is_a)
        for op in fill_rest:
            sc.add(op)
        for c in range(2):
            for kk in (1, 2, 3):
                for b in range(2):
                    for var in range(2):
                        mm(c, b, var, FGR[(c * 3 + kk - 1) * 2 + b], kk, data_is_a)
        sc.flush()
        point(f"x{n}")

    def cm1(c, b):
        cmul_pack(a, fo(c, b), acc(c, b, 0), acc(c, b, 1), T1 + b * 8, T1 + b * 8 + 4, TMP + 8 * (2 * c + b))

    def cm2(c, b):
        cmul_pack(a, fo(c, b), acc(c, b, 0), acc(c, b, 1), WU[c] + b * 8, WU[c] + b * 8 + 4, TMP + 8 * (2 * c + b),
                  conj_w=True)

    exchange(1, False, cm1, unpack_w(1), [])
    exchange(2, True, cm2, unpack(WU[0], raw, 0, sK1), unpack(WU[1], raw, 1, sK1))
    for c in range(2):
        for u in range(2):
            cmul_pack(a, fo(c, u), acc(c, u, 0), acc(c, u, 1), T2 + u * 8, T2 + u * 8 + 4, TMP + 8 * (2 * c + u))
    while any(not callable(x) and (" lds" in x or "store" in x) for g in a.ops for x in g):
        a.burst(1)
    a.on = False
    for t in range(2):
        for c in range(2):
            for u in range(2):
                for var in range(2):
                    sc.mfma(acc(c, t, var), m1(t, u, var), fo(c, u), None if u == 0 else acc(c, t, var))
        rdy = sc.n + 2
        for rh in range(2):
            for c in range(2):
                for rl in range(2):
                    k = 4 * t + 2 * rh + rl
                    w = WU[c] + 2 * k
                    sc.add(f"v_fma_f32 v{w}, v{acc(c, t, 0) + 2 * rh + rl}, s{sB}, v{w}", rdy)
                    sc.add(f"v_fma_f32 v{w + 1}, v{acc(c, t, 1) + 2 * rh + rl}, s{sK0 if c else sK3}, v{w + 1}", rdy)
            for c in range(2):
                for rl in range(2):
                    k = 4 * t + 2 * rh + rl
                    w = WU[c] + 2 * k
                    sc.add(f"v_cvt_pk_bf16_f32 v{pos(raw, k, c)}, v{w}, v{w + 1}", rdy)
            k = 2 * t + rh
            for j in range(4):
                sc.add(f"v_add_u32 v{raw + 4 * k + j}, s{sC}, v{raw + 4 * k + j}", rdy)
            sc.add(f"buffer_store_dwordx4 {V(raw + 4 * k, 4)}, v{vx}, s[{SRD0}:{SRD0 + 3}], s{sF} offen offset:{k * 1024} sc1", rdy)
    sc.flush()
    point("st")
    n = len(a.ops)
    print(f"{nm}: {n} requests after the stores", file=sys.stderr)
    a.burst(n)
    mk.stash(a0, TMP)
    return n


def idle_phase(a, ph):
    nm = f"n{ph + 1}"
    vt0, vh = 12, 13
    if not ph:
        srd_ws(a, SRD0, "XP0", XP_SIZE)
    if FZ.ft_pf >> (1 - ph) & 1:
        srd_table(a, SRD1, "ft2")
        a(f"s_and_b32 s{sA}, s{sRB}, 3")
        a(f"s_and_b32 s{sB}, s{sMM}, 7")
        a(f"s_lshl3_add_u32 s{sA}, s{sA}, s{sB}")
        a(f"s_sub_u32 s{sA}, 31, s{sA}")
        a(f"s_mul_i32 s{sA}, s{sA}, {3 << 15}")
        a(f"v_lshl_add_u32 v{vh}, v0, 7, s{sA}")
        for k in range(3):
            a(f"s_mov_b32 s{sOP}, {k << 15}")
            a.raw(f"    buffer_load_dword {R(aDUM)}, v{vh}, s[{SRD1}:{SRD1 + 3}], s{sOP} offen")
    if ph:
        pre_setup(a, ph, vt0, 28)
    else:
        sts = []

        def ack():
            st = f0.post(a, SRDF, 0, 1, 20, f"s_waitcnt vmcnt({FZ.p_early})", True)
            a("s_barrier")
            a(st)
            mk(a, nm + "ak")
            sts.append(f0.post(a, SRDF, 0, 2, 24))
        if not FZ.p_early:
            ack()
        front_wait(a, nm, 16, ack if FZ.p_early else None)
        st = sts[0]
        mk(a, nm + "dr")
        rank_put(a, 16)
    a("s_barrier")
    if not ph:
        a(st)
        rank_get(a, 16)
        pre_setup(a, ph, vt0, 28)
    ops = pre_ops(ph, vt0, nm)
    he = FZ.h_early[ph]
    ld = f"buffer_load_dword v{vt0}, v{vh}, s[{SRDF}:{SRDF + 3}], s{sOQ} offen sc1"
    if he:
        ops.insert(len(ops) - he, [f"s_mul_i32 s{sOQ}, s{sW}, {40 * 128}",
                                   f"s_add_u32 s{sOQ}, s{sOQ}, {HINT[ph]}",
                                   f"v_min_u32 v{vh}, 39, v{vL}",
                                   f"v_lshlrev_b32 v{vh}, 7, v{vh}", ld])
    for g in ops:
        for x in g:
            x(a) if callable(x) else a(x)
    mk(a, nm + "is")
    if he:
        a(f"v_cmp_eq_u32 vcc, 0, v{vt0}")
        a(f"s_cbranch_vccz {nm}_ok")
    else:
        a(f"v_mul_u32_u24 v{vh}, 5, v{vL}")
        a(f"v_lshrrev_b32 v{vh}, 1, v{vh}")
        a(f"v_lshlrev_b32 v{vh}, 7, v{vh}")
        a(f"s_mov_b32 s{sOQ}, {HINT[ph]}")
        a("s_waitcnt vmcnt(0)")
        mk(a, nm + "dn")
        mk.stash(a, 16)
        if FZ.halt == 25 and ph:
            return
        a(f"s_cmp_lg_u32 s{sW}, 0")
        a(f"s_cbranch_scc1 {nm}_ok")
    a.label(f"{nm}_spin")
    a(ld)
    budget(a, f"{nm}_ok")
    a(f"v_cmp_eq_u32 vcc, 0, v{vt0}")
    a(f"s_cbranch_vccnz {nm}_spin")
    a.label(f"{nm}_ok")
    if he:
        mk(a, nm + "dn")
        mk.stash(a, 16)
    a("s_barrier")


def classify(text):
    o = text.split()[0]
    if o.startswith("v_pk_") or o.startswith("v_dot2"):
        return "p", 4
    if o in TRANS or o.startswith("v_swap") or o.startswith("v_permlane"):
        return "v", 8
    if o.startswith("v_"):
        return "v", 4
    if o.startswith("ds_"):
        return "d", 4
    if o.startswith("buffer_"):
        return "b", 4
    if o.startswith("s_cbranch"):
        return "j", 10
    return "s", 4


class Item:
    def __init__(self, kind, cost, fn, key=None, gate=None, until=None, alt=None):
        self.kind, self.cost, self.fn, self.key, self.gate, self.until, self.alt = kind, cost, fn, key, gate, until, alt


class Slots:
    def __init__(self, a):
        self.a = a
        self.t, self.tM, self.tv, self.tc = 0, -100, -100, -100
        self.done, self.eta = {}, {}
        self.C, self.L, self.M, self.G = [], [], [], []
        self.fly = []
        self.feed = []
        self.pk = True
        self.stall = 0

    def item(self, op, key=None, gate=None, tag=None):
        k, c = classify(op)

        def fn():
            if op.startswith("v_cmp"):
                self.tc = self.t
            self.a(op, tag=tag)
        return Item(k, c, fn, key, gate)

    def mem(self, key, store=False, part=1.0):
        last = self.fly[-1] if self.fly else 0
        self.fly.append(max(self.t + FZ.lat, last + part * (FZ.srow if store else FZ.row)))
        self.eta[key] = self.fly[-1]
        if FZ.verbose:
            print(f"  {self.t:6.0f} issue {key} eta {self.fly[-1]:.0f} fly {self.inflight()}", file=sys.stderr)

    def inflight(self):
        return sum(1 for x in self.fly[-FZ.cap - 4:] if x > self.t)

    def run(self, it):
        if it.kind in "db":
            self.t = max(self.t, self.tv + 12)
        elif it.kind == "p":
            self.t = max(self.t, self.tM + 28)
        elif it.kind == "j":
            self.t = max(self.t, self.tc + 26)
        if it.kind in "vp":
            self.tv = self.t
        it.fn()
        self.t += it.cost
        if it.until is not None and self.eta.get(it.until, 0) > self.t:
            self.stall += self.eta[it.until] - self.t
            if FZ.verbose:
                print(f"  {self.t:6.0f} STALL {it.until} {self.eta[it.until] - self.t:.0f}", file=sys.stderr)
            self.t = self.eta[it.until]
        if it.key is not None:
            self.done[it.key] = self.t

    def ready(self, it):
        if it.kind == "j" and self.t < self.tc + 26:
            return False
        return it.gate is None or it.gate()

    def expand(self):
        while self.G and self.G[0].kind == "p" and not self.pk and self.G[0].alt:
            self.G[:1] = self.G[0].alt

    def heads(self, q, room, small):
        out = []
        for it in q:
            if it.kind == "p" or not self.ready(it) or it.cost > room or small and it.cost > 4:
                break
            if it.kind in "db" and any(x.kind == "v" for x in out) or it.kind == "j" and out:
                break
            out.append(it)
            room -= it.cost
        return out

    def place(self, picks):
        seqs = []
        for q, n in picks:
            seqs.append(q[:n])
            del q[:n]
        rank = lambda s: 0 if any(x.kind in "db" for x in s) else 2 if any(x.kind == "v" for x in s) else 1
        seqs.sort(key=lambda s: (rank(s), any(x.kind == "v" or x.until is not None for x in s)))
        for s in seqs:
            for it in s:
                self.run(it)

    def fill(self, room, streams, small=False):
        picks = []
        for q in streams:
            h = self.heads(q, room, small)
            if h:
                picks.append((q, len(h)))
                room -= sum(x.cost for x in h)
        return picks, room

    def mf(self, d, x, y, c, wait=None, urgent=False):
        self.t = self.tM = max(self.t, self.tM + 16)
        mfma(self.a, d, x, y, c)
        self.t += 8
        for f in self.feed:
            f()
        self.expand()
        W = [wait] if wait else []
        n = next((k for k, it in enumerate(self.G[:5]) if it.kind == "p"), None)
        if n is not None and self.pk:
            pre = self.G[:n + 1]
            cost = sum(x.cost for x in pre[:-1])
            if cost <= 16 and all(self.ready(x) and x.kind in "vps" for x in pre):
                picks, room = self.fill(20 - cost, (W, self.C, self.L, self.M), small=True)
                self.place(picks)
                while self.G and (n > 0 or self.G[0].kind == "p" and self.ready(self.G[0])):
                    self.run(self.G.pop(0))
                    n -= 1
                if self.G and self.G[0].kind in "vs" and self.G[0].until is None and self.ready(self.G[0]):
                    self.run(self.G.pop(0))
                else:
                    self.t += 4
                return
        if not W and self.C and self.C[0].cost >= 8 and self.ready(self.C[0]):
            self.run(self.C.pop(0))
            return
        picks, room = self.fill(8, (W, self.C, self.L, self.M, self.G), small=True)
        must = W or urgent or any(q is self.C for q, _ in picks)
        if room and not must and self.G and self.G[0].cost == 8 and self.ready(self.G[0]):
            self.run(self.G.pop(0))
            return
        self.place(picks)

    def need(self, key):
        while key not in self.done:
            q = next(q for q in (self.C, self.L, self.M, self.G) if any(it.key == key for it in q))
            self.run(q.pop(0))

    def pure(self, key):
        while key not in self.done:
            it = self.G.pop(0)
            self.run(it)
            if it.cost == 8:
                for f in self.feed:
                    f()
                picks, _ = self.fill(8, (self.M, self.L, self.C), small=True)
                self.place(picks)

    def flush(self):
        for q in (self.L, self.M, self.C, self.G):
            while q:
                self.run(q.pop(0))


def mlp_phase(a, final, behind):
    name = f"m{final + 1}"
    vx, vl0, vx2, vck, ve, vfl = 4, 5, 8, 9, 12, 14
    vq = (13, 4, 8, 10)
    X, ACC1, Z, vpl, vmk, CC = 16, 176, 232, 248, 249, 250
    GR, T = Z, Z + 8
    ACC2, EACC = 96, 176
    DIAG = (4, 6, 30, 70)
    sKC, sRS = sK0, sK2
    vo2, vs, vout, vor, vrd, vpk = 200, 201, 202, 203, 204, 205
    vred = (5, 6, 7)
    RES, RU, TMP = 208, 218, 244
    QS = (16, 32, 48, 64, 80, 176)
    QD = len(QS)
    SRDX, SRDH = SRD0, SRD3
    s = Slots(a)
    done = s.done
    act = {}
    log, sst, tested = [], {}, set()

    def fine(*key):
        if FZ.verbose:
            print(f"{s.t:6.0f} {key}", file=sys.stderr)
        if FZ.marks is not None:
            mk(a, name + key[0] + str(key[1]))
        for f in act.pop(key, ()):
            f()

    def at(key, f):
        act.setdefault(tuple(key), []).append(f)

    def note(tag):
        mk(a, name + tag)
        print(f"{name}{tag:4s} t={s.t:6.0f} stall={s.stall:.0f}", file=sys.stderr)

    def qreg(u, q):
        return QS[u % QD] + 4 * q

    def put(q, op, key=None, gate=None):
        q.append(s.item(op, key, gate))

    def vm(q, text, sreg=None, sexp=None, key=None, tag=None, again=True, gate=None, part=1.0, first=" sc1", m0=None):
        if m0 is not None and sst.get("m0") != m0:
            put(q, m0, gate=gate)
            sst["m0"] = m0
        if sreg is not None and sst.get(sreg) != sexp:
            put(q, sexp.replace("@", f"s{sreg}"), gate=gate)
            sst[sreg] = sexp

        def emit():
            a(text.replace("@", f"s{sreg}").replace(" sc1", first), tag=tag)
            log.append((key, text if again else None, sexp))
            s.mem(key, "store" in text, part)
        q.append(Item("b", 4, emit, key, gate))

    def wait_item(key, regs):
        return Item("s", 4, lambda: a.wait_regs(*regs), until=key)

    def lower(regs, thr):
        ops, r = [], [f"|v{x}|" for x in regs]
        while len(r) > 1:
            n = min(3, len(r))
            ops.append(f"{'v_min3_f32' if n == 3 else 'v_min_f32_e64'} v{vck}, " + ", ".join(r[:n]))
            r[:n] = [f"v{vck}"]
        return ops + [f"v_cmp_gt_f32 vcc, {fx(thr)}, v{vck}"]

    def unset(regs):
        ops, r = [], [f"v{x}" for x in regs]
        if len(r) > 2:
            n = len(r) - 1
            ops.append(f"{'v_max3_u32' if n == 3 else 'v_max_u32'} v{vck}, " + ", ".join(r[:n]))
            r[:n] = [f"v{vck}"]
        return ops + [f"v_cmp_u_f32 vcc, {r[0]}, {r[1]}"]

    def verify(keys, regs, test, lab, key):
        for k in keys:
            plan(k)

        def branch():
            idx = [k for k, e in enumerate(log) if e[0] in keys]
            rep = log[idx[0]:]
            assert len(idx) == len(keys) and not tested & {e[0] for e in rep}, lab
            tested.update(keys)
            young = len(log) - 1 - idx[-1]
            a(f"s_cbranch_vccnz {lab}_again", tag="nopad")
            a.label(f"{lab}_ok", keep=True)

            def stub():
                a.label(f"{lab}_again")
                a("s_nop 7")
                budget(a, f"{lab}_out")
                a(f"s_waitcnt vmcnt({max(0, 62 - len(rep))})")
                last = None
                for _, text, sexp in rep:
                    if text is None:
                        a.raw(f"    buffer_load_dword {R(aDUM)}, off, s[{SRDP}:{SRDP + 3}], 0")
                        continue
                    if sexp is not None and sexp != last:
                        a(sexp.replace("@", f"s{sRP}"))
                        last = sexp
                    a.raw("    " + text.replace("@", f"s{sRP}"))
                a(f"s_waitcnt vmcnt({young})")
                for x in test:
                    a(x)
                a(f"s_cbranch_vccnz {lab}_again")
                a.label(f"{lab}_out")
                a(f"s_branch {lab}_ok")
            a.tail.append(stub)
        w = wait_item(keys[-1], [V(r, 4) for r in regs])
        f0 = w.fn
        w.fn = lambda: ([s.need(k) for k in keys], f0())
        w.gate = lambda: all(k in done for k in keys)
        s.C.append(w)
        for x in test:
            put(s.C, x)
        s.C.append(Item("j", 10, branch, key))

    def xr(t, st):
        return X + t * 8 + st * 4

    def acc(ft, st):
        return ACC1 + (ft * 2 + st) * 4

    queue, sched = [], set()

    def x_load(t, h):
        return ("x", t, h), lambda key: vm(
            s.M, f"buffer_load_dwordx4 {V(xr(t, h), 4)}, v{vx2 if h else vx}, s[{SRDX}:{SRDX + 3}], @ offen sc1",
            sOQ, f"s_mov_b32 @, {8 * (19 - t) * XP_STR}", key, first=FZ.xf[final])

    def e_load(j):
        return ("e", j), lambda key: vm(
            s.M, f"buffer_load_dwordx4 v{vl0}, s[{SRD4}:{SRD4 + 3}], m0 offen offset:{(j & 3) * 1024} lds",
            key=key, tag="e", again=False, m0=f"s_add_u32 m0, s{sEB}, {2 * TILE + (j >> 2) * 4096}")

    def k_load(u, p):
        return ("k", u, p), lambda key: vm(
            s.M, f"buffer_load_dwordx4 v{vp}, s[{SRDP}:{SRDP + 3}], @ offen offset:{p * 256} lds",
            sF, f"s_mov_b32 @, {kblock(u) * KB_STR}", key, tag=f"k{u}", again=False,
            m0=f"s_add_u32 m0, s{sPK}, {(u - NP) * TILE + p * 768}")

    def p_load(u, p):
        return ("p", u, p), lambda key: vm(
            s.M, f"buffer_load_dwordx4 {R(preg(u, p), 4)}, v{vp}, s[{SRDP}:{SRDP + 3}], @ offen offset:{p * 256}",
            sF, f"s_mov_b32 @, {kblock(u) * KB_STR}", key)

    def q_load(u, q):
        return ("q", u, q), lambda key: vm(
            s.M, f"buffer_load_dwordx4 {V(qreg(u, q), 4)}, v{vq[q]}, s[{SRDQ}:{SRDQ + 3}], @ offen sc1",
            sOQ, f"s_mov_b32 @, {kblock(u) * H_STR}", key, first=FZ.qf[final])

    def r_load(p):
        srd_ = SRD2 if final else SRDX
        return ("r", p), lambda key: vm(
            s.M, f"buffer_load_dwordx2 {V(RES + 2 * p, 2)}, v{vo2}, s[{srd_}:{srd_ + 3}], @ offen sc1",
            sOP, f"s_mov_b32 @, {p * 4 * XP_STR}", key, part=0.6)

    def push(item, *gates, after=None, chain=None):
        queue.append((item[0], item[1], gates, after, chain))

    def issue(force=False):
        seen = set()
        for k, (key, f, gates, after, chain) in enumerate(queue):
            ok = all(g in done for g in gates) and chain not in seen
            if ok and after and not force:
                ok = done[after[0]] + after[1] <= s.t
            if ok:
                del queue[k]
                f(key)
                sched.add(key)
                return True
            if chain:
                seen.add(chain)
        return False

    def plan(key):
        while key not in sched:
            assert issue(True), key

    def feed_m():
        if not any(it.kind == "b" for it in s.M) and s.inflight() < FZ.cap:
            issue()
    s.feed.append(feed_m)

    KT = FZ.ktail
    units = [[(u, q) for q in range(4)] for u in range(NS - KT)]
    if FZ.split0:
        units[:1] = [units[0][:2], units[0][2:]]
    units += [[(u, q) for u in range(NS - KT, NS)] for q in (1, 2, 3, 0)]
    xorder = list(range(FZ.dbl[0] + 1)) + [19] + list(range(FZ.dbl[0] + 1, 19))
    for t in xorder:
        push(x_load(t, 0))
        push(x_load(t, 1))
    if not final and f0.FC.t_late:
        for j in range(5):
            push((("t", j), lambda key, j=j: vm(
                s.M, f"buffer_store_dwordx4 {R(f0.aTR + 4 * j, 4)}, v{vl0}, s[{SRD4}:{SRD4 + 3}], @ offen offset:{(j & 1) * 2048} sc1",
                sF, f"s_mov_b32 @, {(j >> 1) * 4096}", key, again=False)), *FZ.t_gate)
    if final:
        for j in range(15):
            push(e_load(j), "ebar")
    for u in range(FZ.pre_p[final]):
        for p in range(5):
            done[("p", u, p)] = 0
            sched.add(("p", u, p))
    pushed = set(range(FZ.pre_p[final]))
    parked = set(range(NP, NP + FZ.park[final]))

    def push_p(u):
        if u < NS and u not in pushed:
            pushed.add(u)
            for p in range(5):
                if u in parked:
                    push(k_load(u, p), "xok" if u == NP else "ebar")
                else:
                    push(p_load(u, p), *([("t", 4)] if u == 10 and not final and f0.FC.t_late else []), *(["xok"] if u < NP else [("xfree", 19)] if u == NP else [("qfree", u - NP - 1, 3)]))

    for u, q in [x for un in units for x in un]:
        for k in range(FZ.p_lead[final] + 1):
            push_p(u + k)
        if (u, q) == (NS - KT, FZ.r_q):
            for p in range(5):
                push(r_load(p), "rgo")
        g = ["qset", ("gelu", u >> 1)] + ([] if final else ["ready"])
        if u >= QD:
            g.append(("qfree", u - QD, q))
        elif u < 5:
            g.append(("xfree", 2 * u + (q >> 1)))
        else:
            g.append("edone" if final else ("s5", 1))
        push(q_load(u, q), *g, after=(("gelu", u >> 1), FZ.qdel[final]), chain="q")

    a(f"s_lshl_b32 s{sC}, s{sRB}, 10")
    a(f"s_lshl_b32 s{sA}, s{sW}, 8")
    a(f"s_add_u32 s{sC}, s{sC}, s{sA}")
    a(vstr(vx, vG, 2 * XP_STR))
    a(f"v_lshl_add_u32 v{vx}, v{vI}, 4, v{vx}")
    a(f"v_add_u32 v{vx}, s{sC}, v{vx}")
    a(f"v_add_u32 v{vx2}, {XP_STR}, v{vx}")
    a(f"v_lshlrev_b32 v{vl0}, 4, v{vL}")
    a(f"v_add_u32 v{vl0 + 1}, 0x10000, v{vl0}")
    a(f"v_add_u32 v{vl0 + 2}, 0x20000, v{vl0}")
    a(f"s_mov_b64 s[{SRDH}:{SRDH + 1}], s[{SRDQ}:{SRDQ + 1}]")
    a(f"s_mov_b32 s{SRDH + 2}, {H_SIZE}")
    a(f"s_mov_b32 s{SRDH + 3}, 0x20000")
    a(f"v_cmp_eq_u32 vcc, 0, v{vG}")
    a(f"v_mov_b32 v{vmk}, 0xffff0000")
    a(f"v_cndmask_b32 v{vmk}, 0, v{vmk}, vcc")
    for r in range(4):
        m = 0x1000010000100001 << r
        a(f"s_mov_b32 s{DIAG[r]}, {m & 0xffffffff:#x}")
        a(f"s_mov_b32 s{DIAG[r] + 1}, {m >> 32:#x}")
    a(f"s_bfe_u32 s{sA}, s{sMM}, 0x10002")
    a(f"s_lshl_b32 s{sA}, s{sA}, 6")
    a(f"s_add_u32 s{sCQ}, s{sFL}, s{sA}")
    a(f"s_lshl4_add_u32 s{sD}, s{sW}, s{sCQ}")
    a(f"s_mul_i32 s{sA}, s{sW}, {54 * H_STR}")
    a(f"s_add_u32 s{SRDQ + 2}, s{sA}, {54 * H_STR}")
    a(f"s_lshl4_add_u32 s{sA}, s{sD}, s{sA}")
    a(f"v_lshrrev_b32 v{vq[0]}, 1, v{vG}")
    a(f"v_and_b32 v{vck}, 1, v{vG}")
    a(f"v_mad_u32_u24 v{vq[0]}, v{vq[0]}, 14, v{vck}")
    a(vstr(vq[0], vq[0], H_STR))
    a(f"v_lshl_add_u32 v{vq[0]}, v{vI}, 4, v{vq[0]}")
    a(f"v_add_u32 v{vq[0]}, s{sA}, v{vq[0]}")
    a(f"v_xor_b32 v{vq[3]}, 0x300, v{vq[0]}")
    a(f"s_mov_b32 s{sKC}, {fx(H_OFF)}")
    a(f"s_mov_b32 s{sKC + 1}, {fx(H_OFF)}")
    a(f"s_mov_b32 s{sRS}, {fx(2.0 ** (-S_X[1] if final else -UP[0]))}")
    a(f"s_mov_b32 s{sRS + 1}, 0xffff0000")
    if final:
        srd_table(a, SRD4, "ft2")
        a(f"s_mul_i32 s{sB}, s{sMM}, 5")
        a(f"s_lshr_b32 s{sB}, s{sB}, 1")
        a(f"s_mul_i32 s{sA}, s{sB}, {TILE}")
        a(f"s_add_u32 s{SRD4}, s{SRD4}, s{sA}")
        a(f"s_addc_u32 s{SRD4 + 1}, s{SRD4 + 1}, 0")
        a(f"s_sub_u32 s{SRD4}, s{SRD4}, {2 * TILE}")
        a(f"s_subb_u32 s{SRD4 + 1}, s{SRD4 + 1}, 0")
        a(f"s_mov_b32 s{SRD4 + 2}, {5 * TILE}")
        a(sstr(sA, sB, 4 * XP_STR))
        a(f"s_add_u32 s{sA}, s{sA}, s{sC}")
        a(vstr(ve, vG, XP_STR))
        a(f"v_lshl_add_u32 v{ve}, v{vI}, 4, v{ve}")
        a(f"v_add_u32 v{ve}, s{sA}, v{ve}")
        srd_ws(a, SRD2, "X3", XP_SIZE)
        srd(a, SRD1, P_OUT, 0, SEQ * DM * 2)
        a(f"s_lshl_b32 s{sB}, s{sRB}, 13")
        a(f"s_lshl2_add_u32 s{sA}, s{sMM}, s{sW}")
        a(f"s_lshl_b32 s{sA}, s{sA}, 7")
        a(f"s_add_u32 s{sA}, s{sA}, s{sB}")
        a(f"v_lshl_add_u32 v{vpl}, v{vL}, 20, s{sA}")
        a(f"s_bfe_u32 s{sA}, s{sD}, 0x20005")
        a(f"s_lshl3_add_u32 s{sA}, s{sDC}, s{sA}")
        a(f"s_lshl_b32 s{sA}, s{sA}, 7")
        a(f"s_add_u32 s{sA}, s{sA}, s{sB}")
        a(f"v_and_b32 v{vfl}, 1, v{vI}")
        a(f"v_lshl_add_u32 v{vfl}, v{vfl}, 9, s{sA}")
    else:
        srd_ws(a, SRD1, "SS2", SS2_SIZE)
        if f0.FC.t_late:
            srd_ws(a, SRD4, "W2T", 9216)
            a(f"s_sub_u32 s{sA}, {f0.W2TOP}, s3")
            a(f"s_cmp_gt_u32 s{sA}, 108")
            a(f"s_cselect_b32 s{SRD4 + 2}, 0, s{SRD4 + 2}")
            a(f"s_cselect_b32 s{sA}, 0, s{sA}")
            a(f"s_lshr_b32 s{sB}, s{sW}, 1")
            a(f"s_lshl1_add_u32 s{sA}, s{sA}, s{sB}")
            a(f"s_mul_i32 s{sA}, s{sA}, {KB_STR}")
            a(f"s_and_b32 s{sB}, s{sW}, 1")
            a(f"s_lshl_b32 s{sB}, s{sB}, 10")
            a(f"s_add_u32 s{sA}, s{sA}, s{sB}")
            a(f"s_add_u32 s{SRD4}, s{SRD4}, s{sA}")
            a(f"s_addc_u32 s{SRD4 + 1}, s{SRD4 + 1}, 0")
        if FZ.tch & 4:
            srd_ws(a, SRD4, "W2T", 190 * KB_STR)
            a(f"s_and_b32 s{sA}, s{sMM}, 4")
            a(f"s_mul_i32 s{sA}, s{sA}, {7 * KB_STR}")
            a(f"s_and_b32 s{sB}, s{sRB}, 3")
            a(f"s_mul_i32 s{sB}, s{sB}, {2 * KB_STR}")
            a(f"s_add_u32 s{sA}, s{sA}, s{sB}")
            a(f"s_add_u32 s{SRD4}, s{SRD4}, s{sA}")
            a(f"s_addc_u32 s{SRD4 + 1}, s{SRD4 + 1}, 0")

            def touch():
                put(s.C, f"v_min_u32 v{vck}, 9, v{vI}")
                put(s.C, f"v_mul_u32_u24 v{vck}, 112, v{vck}")
                put(s.C, f"v_add_u32 v{vck}, v{vck}, v{vp}")
                for k in range(2):
                    vm(s.C, f"buffer_load_dword {R(aDUM)}, v{vck}, s[{SRD4}:{SRD4 + 3}], @ offen", sE,
                       f"s_mov_b32 @, {8 * k * KB_STR}", tag="touch", again=False)
            at(FZ.tch_at, touch)
        a(f"s_lshl4_add_u32 s{sA}, s{sRB}, s{sMM}")
        a(f"s_lshl_b32 s{sA}, s{sA}, 7")
        a(f"s_add_u32 s{sA}, s{sA}, {READY}")
        a(f"v_lshl_add_u32 v{vpl}, v0, 20, s{sA}")
        a(f"s_lshl2_add_u32 s{sA}, s{sRB}, s{sW}")
        a(f"s_lshl_b32 s{sA}, s{sA}, 9")
        a(f"v_and_b32 v{vfl}, 3, v{vI}")
        a(f"v_lshl_add_u32 v{vfl}, v{vfl}, 7, s{sA}")
    a.raw(f"    s_waitcnt vmcnt({behind})")
    mk(a, name + "go")
    for _ in range(FZ.look):
        issue()
    s.flush()
    a("s_barrier")
    if not final and not any(f0.FC.po):
        vm(s.M, f"buffer_store_dword v{vl0 + 1}, v{vpl}, s[{SRDF}:{SRDF + 3}], 0 offen sc1", again=False, part=0.2)
    mk.stash(a, Z)

    TA, TB, TE = (0, 1, 2, 3), (4, 5, 6), (0, 1, 2)
    groups = [("a", TA, t) for t in range(19)] + [("b", TB, t) for t in range(20)]
    groups.insert(19 + FZ.b_pre, ("a", TA, 19))
    if final:
        groups += [("e", TE, t) for t in range(20)]
    seq = [(kind, ft, t) for kind, tl, t in groups for ft in tl]
    rd_ = {"n": 0, "free": 0}

    def wreg(n):
        return WR + (n % NW) * 4

    def feed_l():
        while rd_["n"] < min(rd_["free"] + NW, len(seq)) and len(s.L) < 2:
            kind, ft, t = seq[rd_["n"]]
            if kind == "e" and "e0" not in done:
                return
            off = (ft + (2 if kind == "e" else 1)) * TILE + (19 - t) * 1024
            put(s.L, f"ds_read_b128 {R(wreg(rd_['n']), 4)}, v{vl0 + (off >> 16)} offset:{off & 0xffff}", ("rd", rd_["n"]))
            rd_["n"] += 1
    s.feed.append(feed_l)

    def rd_need(n):
        while ("rd", n) not in done:
            feed_l()
            if not s.L:
                s.need("e0")
                continue
            s.run(s.L.pop(0))

    def prep_x(ts):
        keys = [("x", t, h) for t in xorder if t in ts for h in range(2)]
        regs = [xr(k[1], k[2]) for k in keys]
        verify(keys, regs, lower(regs, T_X[final]), f"{name}_x{ts[0]}", "xok" if xorder[-1] in ts else None)
        for t in ts:
            ops = [f"v_swap_b32 v{xr(t, 0) + 2}, v{xr(t, 1)}", f"v_swap_b32 v{xr(t, 0) + 3}, v{xr(t, 1) + 1}"]
            if t == 19:
                for st in range(2):
                    if final:
                        ops.append(f"v_accvgpr_write_b32 {R(vdc + st)}, v{xr(t, st)}")
                    ops.append(f"v_bfi_b32 v{xr(t, st)}, v{vmk}, 0, v{xr(t, st)}")
            for op in ops[:-1]:
                put(s.C, op)
            put(s.C, ops[-1], ("sw", t))

    def gram(t, wait=None):
        s.need(("sw", t))
        for st in range(2):
            s.mf(GR + 4 * st, xr(t, st), xr(t, st), None if t == 0 else GR + 4 * st, wait if st else None)

    def stats():
        t0 = s.tM + 40
        ops = []
        for r in range(4):
            for st in range(2):
                prev = "0" if r == 0 else f"v{T + 2 * st}"
                ops.append(f"v_cndmask_b32_e64 v{T + 2 * st}, {prev}, v{GR + 4 * st + r}, s[{DIAG[r]}:{DIAG[r] + 1}]")
        for op in ("v_permlane32_swap_b32", "v_permlane16_swap_b32"):
            ops += [f"v_mov_b32 v{T + 2 * st + 1}, v{T + 2 * st}" for st in range(2)]
            ops += [f"{op} v{T + 2 * st}, v{T + 2 * st + 1}" for st in range(2)]
            ops += [f"v_add_f32 v{T + 2 * st}, v{T + 2 * st}, v{T + 2 * st + 1}" for st in range(2)]
        ops += [f"v_fmamk_f32 v{T + 2 * st}, v{T + 2 * st}, {fx((1 + EPS) / DM)}, v{T + 4}" for st in range(2)]
        ops += [f"v_rsq_f32 v{T + 2 * st + 1}, v{T + 2 * st}" for st in range(2)]
        ops += [f"v_mul_f32 v{CC + 4 + st}, v{T + 2 * st}, v{T + 2 * st + 1}" for st in range(2)]
        ops += [f"v_cvt_pk_bf16_f32 v{T + 2 * st}, v{CC + 4 + st}, v{CC + 4 + st}" for st in range(2)]
        ops += [f"v_bfi_b32 v{xr(19, st)}, v{vmk}, v{T + 2 * st}, v{xr(19, st)}" for st in range(2)]
        late = [f"v_mul_f32 v{CC + st}, {fx(GELU_K0)}, v{T + 2 * st + 1}" for st in range(2)]
        late += [f"v_mul_f32 v{T + 2 * st}, v{T + 2 * st + 1}, v{T + 2 * st + 1}" for st in range(2)]
        late += [f"v_mul_f32 v{T + 2 * st}, {fx(0.044715)}, v{T + 2 * st}" for st in range(2)]
        late += [f"v_mul_f32 v{CC + 2 + st}, v{CC + st}, v{T + 2 * st}" for st in range(2)]
        if not final:
            late += [f"v_mul_f32 v{CC + 4 + st}, {fx(2.0 ** -S_LO)}, v{CC + 4 + st}" for st in range(2)]
        put(s.G, f"v_mov_b32 v{T + 4}, {fx(EPS * EPS * 4.0 ** S_X[final])}")
        put(s.G, f"v_xor_b32 v{vq[1]}, 0x100, v{vq[0]}")
        put(s.G, f"v_xor_b32 v{vq[2]}, 0x200, v{vq[0]}", "qset")
        put(s.G, ops[0], gate=lambda: s.t >= t0)
        for op in ops[1:-1]:
            put(s.G, op)
        put(s.G, ops[-1], "stats")
        for op in late:
            put(s.G, op)

    def poll(key, off):
        lab = f"{name}_{key}"
        text = f"buffer_load_dword v{vmk}, v{vfl}, s[{SRDF}:{SRDF + 3}], @ offen sc1"
        test = f"v_cmp_eq_u32 vcc, 0, v{vmk}"

        def branch():
            a(f"s_cbranch_vccnz {lab}_spin", tag="nopad")
            a.label(f"{lab}_ok", keep=True)

            def spin():
                a.label(f"{lab}_spin")
                a(f"s_mov_b32 s{sRP}, {off}")
                a(text.replace("@", f"s{sRP}"))
                a("s_waitcnt vmcnt(0)")
                budget(a, f"{lab}_ok")
                a(test)
                a(f"s_cbranch_vccnz {lab}_spin")
                a(f"s_branch {lab}_ok")
            a.tail.append(spin)

        def check():
            s.C.append(wait_item(("i", key), [f"v{vmk}"]))
            put(s.C, test)
            s.C.append(Item("j", 10, branch, key))
        return (lambda: vm(s.C, text, sE, f"s_mov_b32 @, {off}", ("i", key), again=False, part=0.2)), check

    if final:
        ix, cx = poll("rgo", PX)

        def signal():
            s.C.append(Item("s", 4, lambda: a.wait_tag("x3"), until="x3"))
            vm(s.C, f"buffer_store_dword v{vl0 + 1}, v{vpl}, s[{SRDF}:{SRDF + 3}], @ offen sc1", sE, f"s_mov_b32 @, {PX}",
               again=False, part=0.2)

        def e_ok():
            plan(("e", 14))
            s.C.append(Item("s", 4, lambda: (s.need(("e", 14)), a.wait_tag("e")), until=("e", 14),
                            gate=lambda: ("e", 14) in done))
            put(s.C, "s_barrier", "e0")
        at(("b", FZ.e_ok), e_ok)
        at(FZ.x3[0], signal)
        at(FZ.x3[1], ix)
        at(FZ.x3[2], lambda: (s.need("oset"), cx()))
    else:
        if any(f0.FC.po):
            done["ready"] = 0
        else:
            i_, c_ = poll("ready", READY)
            at(FZ.rd_at[0], lambda: (s.need("stats"), i_()))
            at(FZ.rd_at[1], c_)
        at(FZ.res_at, lambda: (s.need("oset"), done.setdefault("rgo", s.t)))

    at(("b", FZ.b_pre + FZ.ebar), lambda: put(s.C, "s_barrier", "ebar"))

    post = []

    def gelu(ft):
        Zs = Z + 8 * (ft & 1)
        prs = [(acc(ft, st) + h, Zs + st * 4 + h, st) for st in range(2) for h in (0, 2)]
        t0 = s.tM + 40

        def stage(pk, plain, key=None, gate=None):
            for n, (x, z, st) in enumerate(prs):
                k = key if n == 3 else None
                sel = f"op_sel:[0,{st},{st}] op_sel_hi:[1,{st},{st}]"
                it = s.item(pk.format(x=V(x, 2), z=V(z, 2), sel=sel), k, gate)
                it.alt = [s.item(plain.format(x=V(x + e), z=V(z + e), c0=V(CC + st), c2=V(CC + 2 + st), c4=V(CC + 4 + st)),
                                 k if e else None, gate) for e in range(2)]
                s.G.append(it)

        stage("v_pk_mul_f32 {z}, {x}, {x}", "v_mul_f32 {z}, {x}, {x}", gate=lambda: s.t >= t0)
        stage("v_pk_fma_f32 {z}, {z}, %s, %s {sel}" % (V(CC + 2, 2), V(CC, 2)), "v_fma_f32 {z}, {z}, {c2}, {c0}")
        stage("v_pk_mul_f32 {z}, {z}, {x}", "v_mul_f32 {z}, {z}, {x}")
        close()
        for k in range(8):
            put(s.G, f"v_exp_f32 v{Zs + k}, v{Zs + k}")
        stage("v_pk_fma_f32 {z}, {z}, %s, %s {sel}" % (V(CC + 4, 2), V(CC + 4, 2)), "v_fma_f32 {z}, {z}, {c4}, {c4}")
        for k in range(8):
            put(s.G, f"v_rcp_f32 v{Zs + k}, v{Zs + k}")
        if final:
            stage("v_pk_fma_f32 {z}, {z}, {x}, s[%d:%d]" % (sKC, sKC + 1), "v_fma_f32 {z}, {z}, {x}, s%d" % sKC, ("s5", ft))
        else:
            stage("v_pk_mul_f32 {z}, {z}, {x}", "v_mul_f32 {z}, {z}, {x}", ("s5", ft))

        def out():
            for k in range(4):
                put(s.G, f"v_cvt_pk_bf16_f32 v{Zs + k}, v{Zs + 2 * k}, v{Zs + 2 * k + 1}")
            if ft == 6:
                put(s.G, f"v_add_u32 v{vo}, s{sMSK}, v{vo}")
            put(s.G, f"v_permlane16_swap_b32 v{Zs}, v{Zs + 2}")
            put(s.G, f"v_permlane16_swap_b32 v{Zs + 1}, v{Zs + 3}")
            vm(s.G, f"buffer_store_dwordx4 {V(Zs, 4)}, v{vo}, s[{SRDH}:{SRDH + 3}], @ offen sc1", sHO,
               f"s_mov_b32 @, {ft * 2 * H_STR}", ("gelu", ft), again=False, first=FZ.hf)
        post.append(out)

    def close():
        while post:
            post.pop()()

    def out_setup():
        g = lambda op, key=None: put(s.G, op, key)
        g(f"v_lshl_add_u32 v{vpk}, v{vL}, 4, s{sPK}", "vpk")
        g(f"s_mul_i32 s{sGA}, s{sDC}, {20 * XP_STR}")
        g(f"s_lshl3_add_u32 s{sGA}, s{sD}, s{sGA}")
        g(vstr(vo2, vG, XP_STR))
        g(f"v_lshl_add_u32 v{vo2}, v{vI}, 3, v{vo2}")
        g(f"v_add_u32 v{vo2}, s{sGA}, v{vo2}", "oset")
        g(f"v_lshrrev_b32 v{vor}, 1, v{vG}")
        g(f"s_mov_b32 s{sGA}, {0x3f800000 + (0x3f80 if final else (127 + S_LO) << 7):#x}")
        g(f"v_mul_lo_u32 v{vor}, v{vor}, s{sGA}", "vor")
        g(f"v_lshl_add_u32 v{vrd}, v{vL}, 4, s{sEB}")
        for ql in (1, 2, 3):
            g(f"s_xor_b32 s{sGA}, s{sW}, {ql}")
            g(f"s_mul_i32 s{sGA}, s{sGA}, 15360")
            if ql > 1:
                g(f"s_add_u32 s{sGA}, s{sGA}, {(ql - 1) * 5120}")
            g(f"v_lshl_add_u32 v{vred[ql - 1]}, v{vL}, 4, s{sGA}")
        if final:
            g(f"s_bfe_u32 s{sGA}, s{sD}, 0x10004")
            g(f"s_lshl_b32 s{sGA}, s{sGA}, 3")
            g(f"s_lshr_b32 s{sGB}, s{sD}, 9")
            g(f"s_lshl4_add_u32 s{sGA}, s{sGB}, s{sGA}")
            g(f"s_bfe_u32 s{sGB}, s{sD}, 0x20005")
            g(f"s_lshl_b32 s{sGB}, s{sGB}, 8")
            g(f"s_add_u32 s{sGA}, s{sGA}, s{sGB}")
            g(f"s_and_b32 s{sGB}, s{sD}, 128")
            g(f"s_add_u32 s{sGA}, s{sGA}, s{sGB}")
            g(f"s_and_b32 s{sGB}, s{sD}, 256")
            g(f"s_lshl2_add_u32 s{sGA}, s{sGB}, s{sGA}")
            g(f"v_and_b32 v{vout}, 1, v{vI}")
            g(f"v_lshlrev_b32 v{vout}, 6, v{vout}")
            g(f"v_lshrrev_b32 v{vs}, 1, v{vI}")
            g(f"v_add3_u32 v{vout}, v{vout}, v{vs}, s{sGA}")
            g(f"v_mul_u32_u24 v{vout}, 1280, v{vout}")
            g(f"s_mul_i32 s{sGA}, s{sDC}, 160")
            g(f"v_lshl_add_u32 v{vout}, v{vG}, 3, v{vout}")
            g(f"v_add_u32 v{vout}, s{sGA}, v{vout}", "setup")
        else:
            g(f"v_lshrrev_b32 v{vs}, 1, v{vI}")
            g(f"v_lshlrev_b32 v{vs}, 4, v{vs}")
            g(f"v_and_b32 v{vout}, 1, v{vI}")
            g(f"v_lshl_add_u32 v{vs}, v{vout}, 2, v{vs}")
            g(f"v_and_b32 v{vout}, 1, v{vG}")
            g(f"v_lshl_add_u32 v{vs}, v{vout}, 3, v{vs}")
            g(f"v_lshrrev_b32 v{vout}, {0 if FZ.x_nocnt else 1}, v{vG}")
            g(f"v_lshl_add_u32 v{vs}, v{vout}, 20, v{vs}")
            g(f"s_lshl_b32 s{sGA}, s{sD}, 3")
            g(f"v_add_u32 v{vs}, s{sGA}, v{vs}")
            g(f"v_add_u32 v{vout}, s{sDC}, v{vG}")
            g(f"v_min_u32 v{vout}, 1, v{vout}")
            g(f"v_mul_u32_u24 v{vout}, 0xffff, v{vout}")
            g(f"v_lshlrev_b32 v{vout}, 16, v{vout}")
            g(f"v_or_b32 v{vout}, 0xffff, v{vout}")
            g(f"v_mov_b32 v{TMP + 2}, 0")
            g(f"v_mov_b32 v{TMP + 3}, 0")
            g(f"s_mov_b64 s[{DIAG[0]}:{DIAG[0] + 1}], 0xffff")
            g(f"s_mov_b32 s{sGB}, {-S_LO * 0x800080:#x}", "setup")

    gl, rest = {}, xorder[1:]
    for t in range(19):
        n = 2 if t in FZ.dbl else 1
        gl[t], rest = sorted(rest[:n]), rest[n:]
    rd_need(NW - 1)
    prep_x([0])
    n = 0

    def grp_wait(k):
        nx = sum(len(g[1]) for g in groups[:k + 1]) - 1
        if k >= len(groups):
            return None
        return Item("s", 4, lambda: (rd_need(nx), a.wait_regs(R(wreg(nx), 4))))

    gram(0, grp_wait(0))
    for k, (kind, tl, t) in enumerate(groups):
        fine(kind, t)
        grams = gl.get(t, []) if kind == "a" else []
        if kind == "a" and t == 19:
            s.need("stats")
        if kind == "e" and t == 0:
            s.need(("s5", 2))
            for st in range(2):
                put(s.C, f"v_accvgpr_read_b32 v{xr(19, st)}, {R(vdc + st)}", ("dc", st))
        if kind == "e" and t == 19:
            s.need(("dc", 1))
        hi = sum(len(g[1]) for g in groups[:k + 2])
        for j, ft in enumerate(tl):
            for st in range(2):
                if grams and 2 * j + st == (FZ.xc_at if len(grams) == 1 else 0):
                    prep_x(grams)
                d = (EACC if kind == "e" else ACC1) + (ft * 2 + st) * 4
                last = j == len(tl) - 1 and st and not grams
                if st:
                    rd_["free"] = n + 1
                s.mf(d, wreg(n), xr(t, st), None if t == 0 else d, grp_wait(k + 1) if last else None,
                     urgent=rd_["n"] - len(s.L) < hi)
            n += 1
        for g in grams:
            gram(g, grp_wait(k + 1) if g == grams[-1] else None)
        if grams and xorder[-1] in grams:
            stats()
        if kind == ("e" if final else "b"):
            done[("xfree", t)] = s.t
        if kind == "a" and t == 19:
            note("A")
            for ft in TA:
                gelu(ft)
            close()
            if FZ.pure[final]:
                s.pure(("gelu", FZ.pure[final] - 1))
        if kind == "b" and t == 19:
            for ft in TB:
                gelu(ft)
            close()
            if FZ.in_b[final]:
                s.pure(("gelu", FZ.in_b[final] - 1))
    if final:
        note("E")
        t0 = s.tM + 40
        for et in TE:
            d = EACC + et * 8
            for k in range(4):
                put(s.C, f"v_cvt_pk_bf16_f32 v{d + k}, v{d + 2 * k}, v{d + 2 * k + 1}", gate=lambda: s.t >= t0)
            vm(s.C, f"buffer_store_dwordx4 {V(d, 4)}, v{ve}, s[{SRD2}:{SRD2 + 3}], @ offen sc1",
               sE, f"s_mov_b32 @, {et * 4 * XP_STR}", {1: "edone", 2: "x3"}.get(et), tag="x3", again=False)
        epi, s.C = s.C, []
        s.pure(("gelu", FZ.in_e - 1))
    out_setup()
    s.pk = bool(FZ.g2pk[final])
    mk.stash(a, vck)

    def accr(p, q):
        return ACC2 + (q * 5 + p) * 4

    def q_check(n):
        keys = [("q",) + x for x in units[n]]
        regs = [qreg(*x) for x in units[n]]
        fix = [f"v_or_b32 v{qreg(u, q)}, v{qreg(u, q)}, v{vor}" for u, q in units[n] if u == NS - 1]
        if fix:
            s.need("vor")
        verify(keys, regs, fix + (lower(regs, T_H) if final else unset(regs)), f"{name}_q{n}", ("qok", n))

    def writes(q):
        t0 = s.tM + 40
        s.need("setup")
        for p in range(5):
            put(s.L, f"ds_write_b128 v{vred[q - 1]}, {R(accr(p, q), 4)} offset:{p * 1024}", ("wr", q, p),
                gate=lambda p=p: s.t >= max(t0 - 16 * (4 - p), t0 - 40 + FZ.wgap * p))

    def reads(q, k):
        for p in range(5):
            put(q, f"ds_read_b128 {R(accr(p, k), 4)}, v{vrd} offset:{(k - 1) * 5120 + p * 1024}")

    def res_ops():
        plan(("r", 4))
        w = wait_item(("r", 4), [V(RES, 10)])
        w.gate = lambda: s.eta.get(("r", 4), 1e9) <= s.t
        f0 = w.fn
        w.fn = lambda: (s.need(("r", 4)), f0())
        s.G.append(w)
        for p in range(5):
            for h in range(2):
                u_, r, d = RU + 2 * h, RES + 2 * p + h, accr(p, 0) + 2 * h
                put(s.G, f"v_lshlrev_b32 v{u_}, 16, v{r}")
                put(s.G, f"v_and_b32 v{u_ + 1}, s{sRS + 1}, v{r}")
                put(s.G, f"v_fmac_f32 v{d}, s{sRS}, v{u_}")
                put(s.G, f"v_fmac_f32 v{d + 1}, s{sRS}, v{u_ + 1}", ("res", p) if h else None)

    def unpark(u):
        ok = lambda: "vpk" in done and ("k", u, 4) in done and s.eta[("k", u, 4)] <= s.t
        plan(("k", u, 4))
        s.L.append(Item("s", 4, lambda: (s.need("vpk"), s.need(("k", u, 4)), a.wait_tag(f"k{u}")), until=("k", u, 4), gate=ok))
        for p in range(5):
            put(s.L, f"ds_read_b128 {R(preg(u, p), 4)}, v{vpk} offset:{(u - NP) * TILE + p * 1024}", ("p", u, p))
            sched.add(("p", u, p))

    def g_bar():
        for u in parked:
            s.need(("p", u, 4))
        put(s.C, "s_waitcnt lgkmcnt(0)")
        put(s.C, "s_barrier")
        if not final and f0.FC.t_late:
            put(s.C, f"s_lshl4_add_u32 s{sE}, s{sRB}, s{sMM}")
            put(s.C, f"s_sub_u32 s{sE}, s3, s{sE}")
            put(s.C, f"s_lshl_b32 s{sE}, s{sE}, 7")
            vm(s.C, f"buffer_store_dword v{vl0 + 1}, v{vpl}, s[{SRDF}:{SRDF + 3}], @ offen sc1", sE,
               f"s_add_u32 @, s{sE}, {DONE2 + 4 - READY}", again=False, part=0.2)

    for u in parked:
        at(("g", u - NP), lambda u=u: unpark(u))
    at(("g", FZ.gbar), g_bar)
    def post_at(where):
        if not final and FZ.post == where:
            vm(s.C, f"buffer_store_dword v{vl0 + 1}, v{vpl}, s[{SRDF}:{SRDF + 3}], @ offen sc1", sE,
               f"s_mov_b32 @, {POST - READY}", key="post",
               again=False, part=0.2)
            s.need("post")

    q_check(0)
    if final:
        if FZ.split0:
            q_check(1)
        s.C += epi
    seen = set()
    for n, un in enumerate(units):
        tailq = un[0][1] if len({u for u, _ in un}) > 1 or KT == 1 and un[0][0] == NS - 1 else None
        s.need(("qok", n))
        left = 5 * len(un)
        if tailq == 1:
            res_ops()
        if tailq == 0:
            s.need(("wr", 2, 4))
            put(s.C, "s_waitcnt lgkmcnt(0)")
            put(s.C, "s_barrier", "bar1")
            s.need("bar1")
            post_at("bar1")
            writes(3)
            reads(s.L, 1)
            reads(s.L, 2)
        elif tailq is not None and tailq > 1:
            writes(tailq - 1)
        for u, q in un:
            if u not in seen:
                fine("g", u)
                if u == 1:
                    note("g1")
                for p in range(5):
                    plan(("p", u, p))
                    s.need(("p", u, p))
                seen.add(u)
            for p in range(5):
                if left == min(FZ.qc_rem, 5 * len(un)) and n + 1 < len(units) and not (final and FZ.split0 and n == 0):
                    q_check(n + 1)
                if tailq == 0:
                    s.need(("res", p))
                if s.eta.get(("p", u, p), 0) > s.t:
                    s.stall += s.eta[("p", u, p)] - s.t
                    if FZ.verbose:
                        print(f"  {s.t:6.0f} STALL p {u} {p} {s.eta[('p', u, p)] - s.t:.0f}", file=sys.stderr)
                    s.t = s.eta[("p", u, p)]
                s.mf(accr(p, q), preg(u, p), qreg(u, q), None if u == 0 else accr(p, q))
                left -= 1
            done[("qfree", u, q)] = s.t
    s.flush()
    assert not queue and not act, (queue, act)
    a("s_waitcnt lgkmcnt(0)")
    a("s_barrier")
    reads(s.L, 3)
    s.flush()
    post_at("bar2")
    for p in range(5):
        for h in (0, 2):
            a(f"v_pk_add_f32 {V(accr(p, 1) + h, 2)}, {V(accr(p, 1) + h, 2)}, {V(accr(p, 2) + h, 2)}")
    for p in range(5):
        for h in (0, 2):
            a(f"v_pk_add_f32 {V(accr(p, 0) + h, 2)}, {V(accr(p, 0) + h, 2)}, {V(accr(p, 1) + h, 2)}")
    for p in range(5):
        r = accr(p, 0)
        for h in (0, 2):
            a(f"v_pk_add_f32 {V(r + h, 2)}, {V(r + h, 2)}, {V(accr(p, 3) + h, 2)}")
        a(f"v_cvt_pk_bf16_f32 v{r}, v{r}, v{r + 1}")
        a(f"v_cvt_pk_bf16_f32 v{r + 1}, v{r + 2}, v{r + 3}")
        if final:
            a(f"buffer_store_dwordx2 {V(r, 2)}, v{vout}, s[{SRD1}:{SRD1 + 3}], 0 offen offset:{p * 32}")
        else:
            a(f"s_mov_b32 s{sOP}, {p * 4 * XP_STR}")
            a(f"buffer_store_dwordx2 {V(r, 2)}, v{vo2}, s[{SRDX}:{SRDX + 3}], s{sOP} offen sc1")
    if not final:
        for p in range(5):
            r = accr(p, 0)
            for h in range(2):
                a(f"v_add_u32 v{r + 2 + h}, s{sGB}, v{r + h}")
            if p == 0:
                a(f"v_and_b32 v{r + 2}, v{vout}, v{r + 2}")
        for p in range(5):
            for h in range(2):
                r = accr(p, 0) + 2 + h
                a(f"v_dot2c_f32_bf16 v{TMP + 2 + h}, v{r}, v{r}")
        z = TMP + 2
        a(f"v_add_f32 v{z}, v{z}, v{z + 1}")
        for op in ("v_permlane32_swap_b32", "v_permlane16_swap_b32"):
            a(f"v_mov_b32 v{z + 1}, v{z}")
            a(f"{op} v{z}, v{z + 1}")
            a(f"v_add_f32 v{z}, v{z}, v{z + 1}")
        a(f"v_cndmask_b32_e64 v{z}, 1.0, v{z}, s[{DIAG[0]}:{DIAG[0] + 1}]")
        a(f"{FZ.x_op} v{z}, v{vs}, s[{SRD1}:{SRD1 + 3}], 0 offen sc1".replace("-", "_"), tag="out")
    post_at("end")
    mk(a, name + "end")


def role_fused(a):
    if Cfg.stamp:
        mk.names.append("start")
        mk.pend.append(0)
    if FZ.probe:
        a(f"s_memrealtime s[{sST}:{sST + 1}]")
    f0.front(a, mk.fixed)
    begin(a)
    mk.stash(a, 4)
    for ph in range(0 if FZ.halt == 10 else 2):
        a(f"s_cmp_ge_u32 s{sT}, {NCOL}")
        a(f"s_cbranch_scc1 idle{ph}", tag="nopad")
        pend = list(mk.pend)

        def idle(ph=ph, pend=pend):
            keep, mk.pend = mk.pend, pend
            a.label(f"idle{ph}")
            idle_phase(a, ph)
            a(f"s_branch join{ph}")
            mk.pend = keep
        a.tail.append(idle)
        n = col_phase(a, ph)
        a.label(f"join{ph}")
        if FZ.halt == 2 * ph + 1 or FZ.halt == 25 and ph:
            break
        mlp_phase(a, ph, n)
        if FZ.halt == 2 * ph + 2:
            break
    if Cfg.stamp:
        a("s_waitcnt vmcnt(0)")
        mk(a, "drain")
        mk.stash(a, 4)
        a(f"v_writelane_b32 v4, s{sCNT}, 63")
        srd_ws(a, SRD0, "STAMP", 1 << 21)
        a(f"s_lshl_b32 s{sA}, s2, 10")
        a(f"s_add_u32 s{sA}, s{sA}, {1 << 20}")
        a(f"v_lshl_add_u32 v5, v0, 2, s{sA}")
        a(f"buffer_store_dword v4, v5, s[{SRD0}:{SRD0 + 3}], 0 offen")
        if FZ.dbg:
            a(f"s_load_dwordx2 s[{SRD1}:{SRD1 + 1}], s[0:1], 72")
            a(f"v_readlane_b32 s{sB}, v4, 0")
            a("v_mov_b32 v6, 0")
            for j, nm in enumerate(FZ.dbg[1:]):
                a(f"v_readlane_b32 s{sA}, v4, {mk.names.index(nm)}")
                a(f"s_sub_u32 s{sA}, s{sA}, s{sB}")
                a(f"v_writelane_b32 v6, s{sA}, {j}")
            a(f"s_sub_u32 s{sA}, s2, {FZ.dbg[0]}")
            a(f"s_lshl_b32 s{sA}, s{sA}, 10")
            a(f"v_lshl_add_u32 v5, v0, 2, s{sA}")
            a("s_waitcnt lgkmcnt(0)")
            srd(a, SRD1, SRD1, 0, 64)
            a(f"buffer_store_dword v6, v5, s[{SRD1}:{SRD1 + 3}], 0 offen")
    return 160 * 1024


def tables():
    L = []
    c = np.sqrt(2.0 / DM) * np.cos(2 * np.pi * np.arange(DM) / DM)
    c[160] = 0
    c[480] = 0
    bits = model.bf16_bits(c.astype(np.float32))
    for n in range(DM):
        L.append(f".set cq{n}, {bits[n]}")
    bb = int(model.bf16_bits(np.float32([np.sqrt(1 / DM)]))[0])
    k2 = model2.kmap()
    L.append(".altmacro")
    L.append(".macro e8 a,b,c,d,e,f,g,h\n.short cq\\a, cq\\b, cq\\c, cq\\d, cq\\e, cq\\f, cq\\g, cq\\h\n.endm")
    L.append(".macro e6 a,b,c,d,e,f\n.short cq\\a, cq\\b, cq\\c, cq\\d, cq\\e, cq\\f\n.endm")
    L.append(".p2align 12\nft2:\n.set tt, 0\n.rept 40")
    for kb in range(80):
        L.append(".set td, tt\n.rept 16")
        ent = [f"%(({k2[4 * kb + j // 2]}*td+{160 * (j & 1)})%640)" for j in range(8)]
        if kb == 0:
            L.append(f".short {bb}+((td&1)<<15), {bb}")
            L.append("e6 " + ", ".join(ent[2:]))
        else:
            L.append("e8 " + ", ".join(ent))
        L.append(".set td, td+1\n.endr")
    L.append(".set tt, tt+16\n.endr\n.noaltmacro")
    return "\n".join(L) + "\n"


if __name__ == "__main__":
    f0.FC.xscale = S_LO
    for opt in sys.argv[2:]:
        if opt == "stamp":
            Cfg.stamp = True
        else:
            k, v = opt.split("=", 1)
            tgt = [c for c in (FZ, f0.FC, Cfg) if hasattr(c, k)][0]
            v = eval(v)
            sp = lambda x: x.replace("_", " ") if isinstance(x, str) else tuple(map(sp, x)) if isinstance(x, tuple) else x
            setattr(tgt, k, sp(v))
    txt = generate([("mk_kernel", [(256, role_fused)])], tables)
    if Cfg.stamp:
        txt = txt.replace(".amdgcn_target", ("; clk\n" if FZ.clk else "") + f"; halt {FZ.halt}\n; marks " + " ".join(mk.names)
                          + "\n.amdgcn_target", 1)
    if FZ.single:
        txt = txt.replace("@launch kernel=mk_kernel ", "@launch ")
        txt = txt.replace("mk_kernel", "interleave_layers__spectral_gfnet__mixer_channel_mlp__prompt_kernel")
    open(sys.argv[1], "w").write(txt)
```

```python
import sys
import struct
import numpy as np

sys.path.insert(0, "gen")
from asmlib import Asm, Inst, R, V, A, S
import model

SEQ, DM, FF = 2048, 640, 1728

import os
XPAD, HPAD = int(os.environ.get('XPAD', 0)), int(os.environ.get('HPAD', 0))
XP_STR = SEQ * 8 + XPAD
XP_SIZE = 160 * XP_STR
H_STR = SEQ * 16 + HPAD
H_SIZE = 216 * H_STR
HC = int(os.environ.get('HC', 0))
if HC:
    H_STR = 2048
    H_GRP = 216 * H_STR + HPAD
    H_SIZE = 16 * H_GRP
W1F_STR = FF * 16
W1F_SIZE = 80 * W1F_STR
KB_STR = DM * 16
WA2_SIZE = 224 * KB_STR
W2T_SIZE = 224 * KB_STR
FT_SIZE = 80 * KB_STR
WC_STR = 16384 + int(os.environ.get('WPAD', 0))
WC_SIZE = 160 * WC_STR
SS_SIZE = 8192
SSW = int(os.environ.get('SSW', 0))
SS2_SIZE = 16384 << SSW
FLAG_SIZE = int(os.environ.get('FLAGK', 320)) * 1024

SLOT = 0x238000
WS = {"W1F": 0x8000, "WA2": SLOT + 0x1000, "W2T": 2 * SLOT + 0x1000}
_off = 3 * SLOT
for _name, _size in (("XP0", XP_SIZE), ("WC", WC_SIZE), ("SS0", SS_SIZE), ("SS2", SS2_SIZE), ("FLAG", FLAG_SIZE),
                     ("H", H_SIZE), ("X3", XP_SIZE), ("STAMP", 1 << 21)):
    WS[_name] = _off
    _off += (_size + 4095) // 4096 * 4096
WS_END = _off

P_X, P_WR, P_WI, P_W1, P_B1, P_W2, P_B2, P_OUT, P_WS = 8, 10, 12, 16, 18, 20, 22, 24, 28
SRD0, SRD1, SRD2, SRD3, SRD4, SRD5 = 32, 36, 40, 44, 48, 52
sW, sT, sA, sB, sC, sD, sE, sF = 56, 57, 58, 59, 60, 61, 62, 63
sOP, sOQ = 64, 65
sK0, sK1, sK2, sK3 = 66, 67, 68, 69
sM0, sM1 = 70, 71
sST = 72
vI, vG, vL = 1, 2, 3


def f32bits(x):
    return struct.unpack("<I", struct.pack("<f", x))[0]


def srd(a, dst, base, off, size):
    if off:
        a(f"s_add_u32 s{dst}, s{base}, {off}")
        a(f"s_addc_u32 s{dst + 1}, s{base + 1}, 0")
        a(f"s_and_b32 s{dst + 1}, s{dst + 1}, 0xffff")
    else:
        a(f"s_mov_b32 s{dst}, s{base}")
        a(f"s_and_b32 s{dst + 1}, s{base + 1}, 0xffff")
    a(f"s_mov_b32 s{dst + 2}, {size}")
    a(f"s_mov_b32 s{dst + 3}, 0x20000")


def srd_ws(a, dst, name, size):
    srd(a, dst, P_WS, WS[name], size)


def srd_table(a, dst, sym):
    a(f"s_getpc_b64 s[{dst}:{dst + 1}]")
    a(f"s_add_u32 s{dst}, s{dst}, {sym}@rel32@lo+4")
    a(f"s_addc_u32 s{dst + 1}, s{dst + 1}, {sym}@rel32@hi+12")
    a(f"s_and_b32 s{dst + 1}, s{dst + 1}, 0xffff")
    a(f"s_mov_b32 s{dst + 2}, {FT_SIZE}")
    a(f"s_mov_b32 s{dst + 3}, 0x20000")


def srd_code(a, dst, kern):
    a(f"s_getpc_b64 s[{dst}:{dst + 1}]")
    a(f"s_add_u32 s{dst}, s{dst}, {kern}_code@rel32@lo+4")
    a(f"s_addc_u32 s{dst + 1}, s{dst + 1}, {kern}_code@rel32@hi+12")
    a(f"s_and_b32 s{dst + 1}, s{dst + 1}, 0xffff")
    a(f"s_mov_b32 s{dst + 2}, {kern}_cend-{kern}_code")
    a(f"s_mov_b32 s{dst + 3}, 0x20000")


class Cfg:
    stamp = False
    clk = False
    nodot = 0
    g2depth = 7
    g2lay = 0
    plan = 0
    pdepth = 4
    st_flags = ""
    dcbias = 0
    rho = 0


def mark(a, n):
    if Cfg.stamp:
        op = "s_memtime" if Cfg.clk and n < 11 else "s_memrealtime"
        a(f"{op} s[{sST + 2 * n}:{sST + 2 * n + 1}]")


def mfma(a, d, x, y, c):
    a(f"v_mfma_f32_16x16x32_bf16 {R(d, 4)}, {R(x, 4)}, {R(y, 4)}, {'0' if c is None else R(c, 4)}")


def gemm_ks(a, nsteps, depth, acc, ring, vred, p_is_a, issue_p, issue_q, q_regs=16, prep_q=None,
            after_prologue=None, step_hook=None):
    stage = 20 + q_regs

    def accr(p, q):
        return acc + (q * 5 + p) * 4

    def preg(t, p):
        return ring + (t % depth) * stage + p * 4

    def qbase(t):
        return ring + (t % depth) * stage + 20

    def load_step(t):
        ops = []
        for q in range(4):
            ops.append(("q", q))
        for p in range(5):
            ops.append(("p", p))
        order = [ops[0], ops[4], ops[5], ops[1], ops[6], ops[7], ops[8], ops[2], ops[3]]
        for kind, j in order:
            if kind == "p":
                issue_p(t, j, preg(t, j))
            else:
                issue_q(t, j, qbase(t))

    for t in range(min(depth, nsteps)):
        load_step(t)
    if after_prologue:
        after_prologue()

    vw = [vred, vred + 1, vred + 2]
    vr = vred + 3
    a(f"v_lshlrev_b32 v{vr}, 4, v{vL}")
    for ql in (1, 2, 3):
        a(f"s_xor_b32 s{sA}, s{sW}, {ql}")
        a(f"s_mul_i32 s{sA}, s{sA}, 15360")
        a(f"s_add_u32 s{sA}, s{sA}, {(ql - 1) * 5120}")
        a(f"v_add_u32 v{vw[ql - 1]}, s{sA}, v{vr}")
    a(f"s_mul_i32 s{sA}, s{sW}, 15360")
    a(f"v_add_u32 v{vr}, s{sA}, v{vr}")

    def wr(q, p):
        a(f"ds_write_b128 v{vw[q - 1]}, {R(accr(p, q), 4)} offset:{p * 1024}")

    mark(a, 1)
    for t in range(nsteps):
        last = t == nsteps - 1
        if t == 1:
            mark(a, 2)
        if t == depth:
            mark(a, 3)
        if step_hook:
            step_hook(t, qbase(t))
        if prep_q:
            qf = prep_q(t, qbase(t))
        else:
            qf = [qbase(t) + q * 4 for q in range(4)]
        qorder = (1, 2, 3, 0) if last else (0, 1, 2, 3)
        nxt = t + depth
        for n, q in enumerate(qorder):
            for p in range(5):
                c = None if t == 0 else accr(p, q)
                if p_is_a:
                    mfma(a, accr(p, q), preg(t, p), qf[q], c)
                else:
                    mfma(a, accr(p, q), qf[q], preg(t, p), c)
                if last and n >= 2:
                    wr(qorder[n - 2], p)
                if nxt < nsteps:
                    if n == 3:
                        issue_p(nxt, p, preg(nxt, p))
                    if p == 4 and (not prep_q):
                        issue_q(nxt, q, qbase(nxt))
                    if prep_q and n == 0 and p < 4:
                        issue_q(nxt, p, qbase(nxt))
        if last:
            for p in range(5):
                wr(3, p)
    mark(a, 4)
    a("s_waitcnt lgkmcnt(0)")
    a("s_barrier")
    mark(a, 5)
    for p in range(5):
        for src in range(3):
            a(f"ds_read_b128 {R(accr(p, src + 1), 4)}, v{vr} offset:{src * 5120 + p * 1024}")
    for p in range(5):
        for h in (0, 2):
            d = accr(p, 0) + h
            a(f"v_pk_add_f32 {V(accr(p, 1) + h, 2)}, {V(accr(p, 1) + h, 2)}, {V(accr(p, 2) + h, 2)}")
            a(f"v_pk_add_f32 {V(d, 2)}, {V(d, 2)}, {V(accr(p, 3) + h, 2)}")
        for h in (0, 2):
            d = accr(p, 0) + h
            a(f"v_pk_add_f32 {V(d, 2)}, {V(d, 2)}, {V(accr(p, 1) + h, 2)}")
    return [accr(p, 0) for p in range(5)]


KS_LDS = 61440


def p_loader(a, vp, srd_p, step_bytes):
    state = {"t": None}

    def issue(t, p, dst):
        if state["t"] != t:
            a(f"s_mov_b32 s{sOP}, {t * step_bytes}")
            state["t"] = t
        a(f"buffer_load_dwordx4 {R(dst, 4)}, v{vp}, s[{srd_p}:{srd_p + 3}], s{sOP} offen offset:{p * 256}")
    return issue


def p_addr(a, vp, s_c, wave_steps):
    a(f"v_mul_u32_u24 v{vp}, {DM}, v{vG}")
    a(f"v_add_lshl_u32 v{vp}, v{vp}, v{vI}, 4")
    a(f"s_mul_i32 s{sA}, s{s_c}, 1280")
    a(f"s_mul_i32 s{sB}, s{sW}, {wave_steps * 4 * KB_STR}")
    a(f"s_add_u32 s{sA}, s{sA}, s{sB}")
    a(f"v_add_u32 v{vp}, s{sA}, v{vp}")


def rowmajor_q(a, vq, s_row0, srd_q):
    a(f"v_mul_u32_u24 v{vq}, 1280, v{vI}")
    a(f"v_lshl_add_u32 v{vq}, v{vG}, 4, v{vq}")
    a(f"s_mul_i32 s{sA}, s{s_row0}, 1280")
    a(f"s_mul_i32 s{sB}, s{sW}, 320")
    a(f"s_add_u32 s{sA}, s{sA}, s{sB}")
    for ql in (3, 2, 1, 0):
        a(f"s_xor_b32 s{sB}, s{sW}, {ql}")
        a(f"s_mul_i32 s{sB}, s{sB}, {16 * 1280}")
        a(f"s_add_u32 s{sB}, s{sB}, s{sA}")
        a(f"v_add_u32 v{vq + ql}, s{sB}, v{vq}")

    def issue(t, q, qb):
        a(f"buffer_load_dwordx4 {R(qb + q * 4, 4)}, v{vq + q}, s[{srd_q}:{srd_q + 3}], 0 offen offset:{t * 64}")
    return issue


def role_xhat0(a, depth):
    vp, vq, vred, vo, acc = 4, 5, 9, 13, 16
    ring = 256
    a(f"s_and_b32 s{sC}, s{sT}, 7")
    a(f"s_lshl_b32 s{sC}, s{sC}, 2")
    a(f"s_bfe_u32 s{sD}, s{sT}, 0x20003")
    a(f"s_add_u32 s{sC}, s{sC}, s{sD}")
    a(f"s_lshl_b32 s{sC}, s{sC}, 6")
    a(f"s_lshr_b32 s{sD}, s{sT}, 5")
    srd_table(a, SRD0, "ft1")
    p_addr(a, vp, sD, 5)
    iq = rowmajor_q(a, vq, sC, SRD1)
    a("s_waitcnt lgkmcnt(0)")
    srd(a, SRD1, P_X, 0, SEQ * DM * 2)
    ip = p_loader(a, vp, SRD0, 4 * KB_STR)

    def post():
        srd_ws(a, SRD2, "XP0", XP_SIZE)
        a(f"s_mul_i32 s{sA}, s{sD}, {20 * XP_STR}")
        a(f"s_lshl_b32 s{sB}, s{sW}, 4")
        a(f"s_add_u32 s{sB}, s{sB}, s{sC}")
        a(f"s_lshl_b32 s{sB}, s{sB}, 3")
        a(f"s_add_u32 s{sA}, s{sA}, s{sB}")
        a(f"v_lshlrev_b32 v{vo}, 14, v{vG}")
        a(f"v_lshl_add_u32 v{vo}, v{vI}, 3, v{vo}")
        a(f"v_add_u32 v{vo}, s{sA}, v{vo}")

    res = gemm_ks(a, 5, depth, acc, ring, vred, True, ip, iq, after_prologue=post)
    for p, r in enumerate(res):
        a(f"v_cvt_pk_bf16_f32 v{r}, v{r}, v{r + 1}")
        a(f"v_cvt_pk_bf16_f32 v{r + 1}, v{r + 2}, v{r + 3}")
        a(f"s_mov_b32 s{sOP}, {p * 4 * XP_STR}")
        a(f"buffer_store_dwordx2 {V(r, 2)}, v{vo}, s[{SRD2}:{SRD2 + 3}], s{sOP} offen{Cfg.st_flags}")
    return KS_LDS


def role_w2f(a, depth, ring=256):
    vp, vq, vred, vo, acc = 4, 5, 9, 13, 16
    a(f"s_and_b32 s{sD}, s{sT}, 7")
    a(f"s_lshr_b32 s{sE}, s{sT}, 3")
    a(f"s_lshl_b32 s{sC}, s{sE}, 6")
    a(f"s_cmp_eq_u32 s{sE}, 27")
    a(f"s_cselect_b32 s{sC}, 0, s{sC}")
    srd_table(a, SRD0, "ft1")
    p_addr(a, vp, sD, 5)
    iq = rowmajor_q(a, vq, sC, SRD1)
    a("s_waitcnt lgkmcnt(0)")
    a(f"s_cmp_eq_u32 s{sE}, 27")
    a(f"s_cselect_b32 s{SRD1}, s{P_B2}, s{P_W2}")
    a(f"s_cselect_b32 s{SRD1 + 1}, s{P_B2 + 1}, s{P_W2 + 1}")
    a(f"s_mov_b32 s{SRD1 + 2}, {FF * DM * 2}")
    a(f"s_cselect_b32 s{SRD1 + 2}, {DM * 2}, s{SRD1 + 2}")
    a(f"s_and_b32 s{SRD1 + 1}, s{SRD1 + 1}, 0xffff")
    a(f"s_mov_b32 s{SRD1 + 3}, 0x20000")
    ip = p_loader(a, vp, SRD0, 4 * KB_STR)

    def post():
        srd_ws(a, SRD2, "WA2", WA2_SIZE)
        a(f"s_lshl_b32 s{sA}, s{sE}, 2")
        a(f"s_add_u32 s{sA}, s{sA}, s{sW}")
        a(f"s_mul_i32 s{sA}, s{sA}, {2 * KB_STR}")
        a(f"s_mul_i32 s{sB}, s{sD}, 1280")
        a(f"s_add_u32 s{sA}, s{sA}, s{sB}")
        a(f"v_lshrrev_b32 v{vo}, 1, v{vG}")
        a(f"v_mul_u32_u24 v{vo}, {KB_STR}, v{vo}")
        a(f"v_lshl_add_u32 v{vo}, v{vI}, 4, v{vo}")
        a(f"v_and_b32 v{vo + 1}, 1, v{vG}")
        a(f"v_lshl_add_u32 v{vo}, v{vo + 1}, 3, v{vo}")
        a(f"v_add_u32 v{vo}, s{sA}, v{vo}")

    res = gemm_ks(a, 5, depth, acc, ring, vred, False, ip, iq, after_prologue=post)
    for p, r in enumerate(res):
        a(f"v_cvt_pk_bf16_f32 v{r}, v{r}, v{r + 1}")
        a(f"v_cvt_pk_bf16_f32 v{r + 1}, v{r + 2}, v{r + 3}")
        a(f"buffer_store_dwordx2 {V(r, 2)}, v{vo}, s[{SRD2}:{SRD2 + 3}], 0 offen offset:{p * 256}{Cfg.st_flags}")
    return KS_LDS


def role_w1f(a, depth):
    vp, vq, vred, vo, acc, qt = 4, 5, 9, 13, 16, 96
    ring = 112
    a(f"s_and_b32 s{sD}, s{sT}, 7")
    a(f"s_lshr_b32 s{sE}, s{sT}, 3")
    srd_table(a, SRD0, "ft1")
    p_addr(a, vp, sD, 5)
    a(f"v_mul_u32_u24 v{vq}, {8 * FF * 2}, v{vG}")
    a(f"v_lshl_add_u32 v{vq}, v{vI}, 3, v{vq}")
    a(f"s_mul_i32 s{sA}, s{sW}, {160 * FF * 2}")
    a(f"s_lshl_b32 s{sB}, s{sE}, 7")
    a(f"s_add_u32 s{sA}, s{sA}, s{sB}")
    a(f"v_add_u32 v{vq}, s{sA}, v{vq}")
    a(f"s_mov_b32 s{sA}, 0x05040100")
    a(f"s_bitcmp1_b32 s{sW}, 0")
    a(f"s_cselect_b32 s{sK0}, 0x07060302, s{sA}")
    a(f"s_cselect_b32 s{sK1}, s{sA}, 0x07060302")
    a(f"s_bitcmp1_b32 s{sW}, 1")
    a(f"s_cselect_b64 s[{sM0}:{sM1}], -1, 0")
    a("s_waitcnt lgkmcnt(0)")
    srd(a, SRD1, P_W1, 0, DM * FF * 2)
    ip = p_loader(a, vp, SRD0, 4 * KB_STR)

    def iq(t, q, qb):
        for j in (2 * q, 2 * q + 1):
            off = (t * 32 + j) * FF * 2
            if j & 1:
                a(f"buffer_load_dwordx2 {R(qb + j * 2, 2)}, v{vq}, s[{SRD1}:{SRD1 + 3}], s{sOQ} offen offset:{FF * 2}")
            else:
                a(f"s_mov_b32 s{sOQ}, {off}")
                a(f"buffer_load_dwordx2 {R(qb + j * 2, 2)}, v{vq}, s[{SRD1}:{SRD1 + 3}], s{sOQ} offen")

    def prep(t, qb):
        a(f"s_mov_b64 exec, s[{sM0}:{sM1}]")
        for j in range(8):
            a(f"v_swap_b32 v{qb + 2 * j}, v{qb + 2 * j + 1}")
        a("s_mov_b64 exec, -1")
        for ql in range(4):
            for m in range(4):
                sel = sK1 if ql & 1 else sK0
                a(f"v_perm_b32 v{qt + ql * 4 + m}, v{qb + (2 * m + 1) * 2 + (ql >> 1)}, v{qb + (2 * m) * 2 + (ql >> 1)}, s{sel}")
        return [qt + ql * 4 for ql in range(4)]

    def post():
        srd_ws(a, SRD2, "W1F", W1F_SIZE)
        a(f"s_mul_i32 s{sA}, s{sD}, {10 * W1F_STR}")
        a(f"s_lshl_b32 s{sB}, s{sE}, 6")
        a(f"s_add_u32 s{sB}, s{sB}, s{sW}")
        a(f"s_lshl_b32 s{sB}, s{sB}, 4")
        a(f"s_add_u32 s{sA}, s{sA}, s{sB}")
        a(f"v_lshrrev_b32 v{vo}, 1, v{vG}")
        a(f"v_mul_u32_u24 v{vo}, {W1F_STR}, v{vo}")
        a(f"v_lshl_add_u32 v{vo}, v{vI}, 6, v{vo}")
        a(f"v_and_b32 v{vo + 1}, 1, v{vG}")
        a(f"v_lshl_add_u32 v{vo}, v{vo + 1}, 3, v{vo}")
        a(f"v_add_u32 v{vo}, s{sA}, v{vo}")
        if Cfg.dcbias:
            srd(a, SRD3, P_B1, 0, FF * 2)
            a(f"s_lshr_b32 s{sB}, s{sB}, 3")
            a(f"v_lshl_add_u32 v6, v{vI}, 3, s{sB}")
            a(f"buffer_load_ushort v7, v6, s[{SRD3}:{SRD3 + 3}], 0 offen")
            a(f"s_cmp_eq_u32 s{sD}, 0")
            a(f"s_cselect_b32 s{sK2}, 0xffff, 0")
            a(f"s_mov_b32 s{sK3}, 0")

    res = gemm_ks(a, 5, depth, acc, ring, vred, True, ip, iq, prep_q=prep, after_prologue=post)
    if Cfg.dcbias:
        a(f"v_lshlrev_b32 v7, 16, v7")
        a(f"v_cndmask_b32_e64 v{res[0] + 1}, v{res[0] + 1}, v7, s[{sK2}:{sK3}]")
    for p, r in enumerate(res):
        a(f"v_cvt_pk_bf16_f32 v{r}, v{r}, v{r + 1}")
        a(f"v_cvt_pk_bf16_f32 v{r + 1}, v{r + 2}, v{r + 3}")
        a(f"s_mov_b32 s{sOP}, {p * 2 * W1F_STR}")
        a(f"buffer_store_dwordx2 {V(r, 2)}, v{vo}, s[{SRD2}:{SRD2 + 3}], s{sOP} offen{Cfg.st_flags}")
    return KS_LDS


def role_wc(a):
    va, vo, vo3, vt, ld, st = 4, 5, 6, 7, 8, 40
    a(f"s_mul_hi_u32 s{sC}, s{sT}, {(1 << 32) // 5 + 1}")
    a(f"s_mul_i32 s{sD}, s{sC}, 5")
    a(f"s_sub_u32 s{sD}, s{sT}, s{sD}")
    a(f"s_lshl_b32 s{sD}, s{sD}, 2")
    a(f"s_add_u32 s{sD}, s{sD}, s{sW}")
    a(f"s_lshl_b32 s{sD}, s{sD}, 2")
    a(f"v_add_u32 v{vt}, s{sD}, v{vG}")
    a(f"v_mul_u32_u24 v{va}, 642, v{vI}")
    a(f"v_lshl_add_u32 v{va}, v{vt}, 3, v{va}")
    a(f"s_mul_i32 s{sA}, s{sC}, {128 * 642}")
    a(f"s_add_u32 s{sA}, s{sA}, 2")
    a(f"v_add_u32 v{va}, s{sA}, v{va}")
    a(f"s_lshr_b32 s{sA}, s{sC}, 2")
    a(f"s_lshl_b32 s{sA}, s{sA}, 11")
    a(f"s_and_b32 s{sB}, s{sC}, 3")
    a(f"s_lshl_b32 s{sB}, s{sB}, 8")
    a(f"s_add_u32 s{sA}, s{sA}, s{sB}")
    a(f"v_lshlrev_b32 v{vo3}, 4, v{vI}")
    a(f"v_add_u32 v{vo3}, s{sA}, v{vo3}")
    a(f"v_lshl_add_u32 v{vo}, v{vt}, 15, v{vo3}")
    a(f"v_cmp_eq_u32 vcc, 79, v{vt}")
    a(f"v_add_u32 v{vt}, {4 * 8192}, v{vo}")
    a(f"v_cndmask_b32 v{vo3}, v{vt}, v{vo3}, vcc")
    a(f"s_mov_b32 s{sK0}, 0x05040100")
    a(f"s_mov_b32 s{sK1}, 0x07060302")
    a("s_waitcnt lgkmcnt(0)")
    srd(a, SRD0, P_WR, 0, SEQ * 642)
    srd(a, SRD1, P_WI, 0, SEQ * 642)
    srd_ws(a, SRD2, "WC", WC_SIZE)
    for u in range(2):
        for r in range(4):
            a(f"s_mov_b32 s{sOP}, {(32 * r + 16 * u) * 642}")
            b = ld + (u * 4 + r) * 4
            a(f"buffer_load_dwordx2 {V(b, 2)}, v{va}, s[{SRD0}:{SRD0 + 3}], s{sOP} offen")
            a(f"buffer_load_dwordx2 {V(b + 2, 2)}, v{va}, s[{SRD1}:{SRD1 + 3}], s{sOP} offen")
    for u in range(2):
        for e in range(4):
            o = st + (u * 4 + e) * 4
            for r in range(4):
                b = ld + (u * 4 + r) * 4
                a(f"v_perm_b32 v{o + r}, v{b + 2 + (e >> 1)}, v{b + (e >> 1)}, s{sK1 if e & 1 else sK0}")
            if e < 3:
                a(f"s_mov_b32 s{sOP}, {(e + 1) * 8192}")
                a(f"buffer_store_dwordx4 {V(o, 4)}, v{vo}, s[{SRD2}:{SRD2 + 3}], s{sOP} offen offset:{u * 1024}{Cfg.st_flags}")
            else:
                a(f"buffer_store_dwordx4 {V(o, 4)}, v{vo3}, s[{SRD2}:{SRD2 + 3}], 0 offen offset:{u * 1024}{Cfg.st_flags}")
    return 0


def dpp_rowsum(a, v, t):
    for k in (8, 4, 2, 1):
        a(f"v_add_f32_dpp v{v}, v{v}, v{v} row_ror:{k} row_mask:0xf bank_mask:0xf")


def role_stats(a):
    va, vo, vt, vz, vone, sm, sq, t0, ld = 4, 5, 6, 7, 8, 10, 12, 16, 20
    a(f"s_lshl_b32 s{sA}, s{sT}, 5")
    a(f"s_lshl_b32 s{sB}, s{sW}, 3")
    a(f"s_add_u32 s{sA}, s{sA}, s{sB}")
    a(f"v_add_u32 v{vt}, s{sA}, v{vG}")
    a(f"v_mul_u32_u24 v{va}, 1280, v{vt}")
    a(f"v_lshl_add_u32 v{va}, v{vI}, 4, v{va}")
    a("s_waitcnt lgkmcnt(0)")
    srd(a, SRD0, P_X, 0, SEQ * DM * 2)
    a(f"s_mov_b32 s{sOP}, {4 * 1280}")
    for h in range(2):
        for j in range(5):
            so = f"s{sOP}" if h else "0"
            a(f"buffer_load_dwordx4 {V(ld + (h * 5 + j) * 4, 4)}, v{va}, s[{SRD0}:{SRD0 + 3}], {so} offen offset:{j * 256}")
    srd_ws(a, SRD1, "SS0", 2 * SS_SIZE)
    a(f"v_bfe_u32 v{vo}, v{vt}, 4, 2")
    a(f"v_lshlrev_b32 v{vo}, 3, v{vo}")
    a(f"v_lshrrev_b32 v{vz}, 8, v{vt}")
    a(f"v_add_u32 v{vo}, v{vo}, v{vz}")
    a(f"v_and_b32 v{vz}, 15, v{vt}")
    a(f"v_lshl_add_u32 v{vo}, v{vo}, 4, v{vz}")
    a(f"v_bfe_u32 v{vz}, v{vt}, 6, 2")
    a(f"v_lshl_add_u32 v{vo}, v{vo}, 2, v{vz}")
    a(f"v_lshlrev_b32 v{vo}, 2, v{vo}")
    a(f"v_mov_b32 v{vz}, 0")
    a(f"v_mov_b32 v{vone}, 0x3f803f80")
    a(f"s_mov_b32 s{sOQ}, {WS['SS2'] - WS['SS0']}")
    a(f"s_mov_b32 s{sK0}, 0xffff0000")
    for h in range(2):
        a(f"buffer_store_dword v{vz}, v{vo}, s[{SRD1}:{SRD1 + 3}], s{sOQ} offen offset:{h * 64}")
    if Cfg.dcbias:
        srd_ws(a, SRD2, "FLAG", FLAG_SIZE)
        a(f"s_lshl_b32 s{sA}, s{sT}, 10")
        a(f"v_lshl_add_u32 v9, v0, 2, s{sA}")
        a(f"buffer_store_dword v{vz}, v9, s[{SRD2}:{SRD2 + 3}], 0 offen")
    for h in range(2):
        a(f"v_mov_b32 v{sm + h}, 0")
        a(f"v_mov_b32 v{sq + 2 * h}, 0")
        a(f"v_mov_b32 v{sq + 2 * h + 1}, 0")
    for h in range(2):
        for k in range(20):
            a(f"v_dot2c_f32_bf16 v{sm + h}, v{ld + h * 20 + k}, v{vone}")
    for h in range(2):
        dpp_rowsum(a, sm + h, t0)
        a(f"v_mul_f32 v{sm + h}, {f32bits(-1.0 / DM):#x}, v{sm + h}")
    for k in range(20):
        for h in range(2):
            x = ld + h * 20 + k
            t = t0 + 2 * h
            a(f"v_lshlrev_b32 v{t}, 16, v{x}")
            a(f"v_and_b32 v{t + 1}, s{sK0}, v{x}")
            a(f"v_add_f32 v{t}, v{t}, v{sm + h}")
            a(f"v_add_f32 v{t + 1}, v{t + 1}, v{sm + h}")
            a(f"v_fmac_f32 v{sq + 2 * h}, v{t}, v{t}")
            a(f"v_fmac_f32 v{sq + 2 * h + 1}, v{t + 1}, v{t + 1}")
    for h in range(2):
        a(f"v_add_f32 v{sq + 2 * h}, v{sq + 2 * h}, v{sq + 2 * h + 1}")
        dpp_rowsum(a, sq + 2 * h, t0)
        a(f"buffer_store_dword v{sq + 2 * h}, v{vo}, s[{SRD1}:{SRD1 + 3}], 0 offen offset:{h * 64}")
    return 0


def role_w2t(a, rep=1):
    va, vo, vt, ld, st = 4, 6, 8, 12, 44
    a(f"s_mul_i32 s{sA}, s{sT}, {256 * rep}")
    for n in range(rep):
        a(f"v_add_u32 v{vo + n}, s{sA}, v0")
        if n:
            a(f"v_add_u32 v{vo + n}, {256 * n}, v{vo + n}")
        a(f"v_lshrrev_b32 v{vt}, 5, v{vo + n}")
        a(f"v_mul_u32_u24 v{vt}, 52429, v{vt}")
        a(f"v_lshrrev_b32 v{vt}, 18, v{vt}")
        a(f"v_mul_u32_u24 v{va + n}, {10240 - 1280}, v{vt}")
        a(f"v_lshl_add_u32 v{va + n}, v{vo + n}, 3, v{va + n}")
        a(f"v_lshlrev_b32 v{vo + n}, 6, v{vo + n}")
    a(f"s_mov_b32 s{sK0}, 0x05040100")
    a(f"s_mov_b32 s{sK1}, 0x07060302")
    a(f"s_mov_b32 s{sOP}, {4 * 1280}")
    a("s_waitcnt lgkmcnt(0)")
    srd(a, SRD0, P_W2, 0, FF * DM * 2)
    srd_ws(a, SRD1, "W2T", W2T_SIZE)
    for n in range(rep):
        for j in range(8):
            so = f"s{sOP}" if j >= 4 else "0"
            a(f"buffer_load_dwordx2 {V(ld + 16 * n + 2 * j, 2)}, v{va + n}, s[{SRD0}:{SRD0 + 3}], {so} offen offset:{(j & 3) * 1280}")
    for n in range(rep):
        l, o = ld + 16 * n, st + 16 * n
        for e in range(4):
            for m in range(4):
                a(f"v_perm_b32 v{o + e * 4 + m}, v{l + (2 * m + 1) * 2 + (e >> 1)}, v{l + 2 * m * 2 + (e >> 1)}, s{sK1 if e & 1 else sK0}")
            a(f"buffer_store_dwordx4 {V(o + e * 4, 4)}, v{vo + n}, s[{SRD1}:{SRD1 + 3}], 0 offen offset:{e * 16}")
    return 0


def cmul_pack(a, dst, re, im, c, s, tmp, conj_w=False):
    for h in (0, 2):
        t0, t1 = tmp + 2 * h, tmp + 2 * h + 2
        a(f"v_pk_mul_f32 {V(t0, 2)}, {V(re + h, 2)}, {V(c + h, 2)}")
        a(f"v_pk_mul_f32 {V(t1, 2)}, {V(im + h, 2)}, {V(c + h, 2)}")
    for h in (0, 2):
        t0, t1 = tmp + 2 * h, tmp + 2 * h + 2
        if conj_w:
            a(f"v_pk_fma_f32 {V(t0, 2)}, {V(im + h, 2)}, {V(s + h, 2)}, {V(t0, 2)} neg_lo:[1,0,0] neg_hi:[1,0,0]")
            a(f"v_pk_fma_f32 {V(t1, 2)}, {V(re + h, 2)}, {V(s + h, 2)}, {V(t1, 2)}")
        else:
            a(f"v_pk_fma_f32 {V(t0, 2)}, {V(im + h, 2)}, {V(s + h, 2)}, {V(t0, 2)}")
            a(f"v_pk_fma_f32 {V(t1, 2)}, {V(re + h, 2)}, {V(s + h, 2)}, {V(t1, 2)} neg_lo:[1,0,0] neg_hi:[1,0,0]")
    for h in (0, 2):
        t0, t1 = tmp + 2 * h, tmp + 2 * h + 2
        n = "-" if conj_w else ""
        a(f"v_cvt_pk_bf16_f32 v{dst + h}, v{t0}, {n}v{t1}")
        a(f"v_cvt_pk_bf16_f32 v{dst + h + 1}, v{t0 + 1}, {n}v{t1 + 1}")


def role_col(a, src, ssn, dst):
    vx, vw, vl0, vmI = 4, 5, 6, 10
    fi, fg, fa, fb = 11, 12, 13, 14
    raw, ss, wraw = 16, 24, 32
    M1, M2 = 40, 72
    T1, T2 = 104, 120
    WU = 136
    ACC = 152
    FO, FG = 168, 176
    TMP = 200

    a(f"s_and_b32 s{sA}, s{sT}, 7")
    a(f"s_lshr_b32 s{sB}, s{sT}, 4")
    a(f"s_lshl_b32 s{sB}, s{sB}, 3")
    a(f"s_add_u32 s{sC}, s{sA}, s{sB}")
    a(f"s_bfe_u32 s{sD}, s{sT}, 0x10003")
    a(f"s_lshl1_add_u32 s{sE}, s{sC}, s{sD}")
    a(f"s_lshl_b32 s{sA}, s{sC}, 14")
    a(f"s_lshl2_add_u32 s{sA}, s{sD}, s{sA}")
    a(f"s_lshl_b32 s{sB}, s{sW}, 7")
    a(f"s_add_u32 s{sA}, s{sA}, s{sB}")
    a(f"v_lshlrev_b32 v{vx}, 11, v{vG}")
    a(f"v_lshl_add_u32 v{vx}, v{vI}, 3, v{vx}")
    a(f"v_add_u32 v{vx}, s{sA}, v{vx}")
    a(f"s_lshl_b32 s{sB}, s{sW}, 11")
    a(f"v_lshlrev_b32 v{vw}, 4, v{vL}")
    a(f"v_add_u32 v{vw}, s{sB}, v{vw}")
    a(f"s_lshl_b32 s{sF}, s{sE}, 13")
    a(f"s_mov_b32 s{sOP}, 8192")
    a("s_waitcnt lgkmcnt(0)")
    srd_ws(a, SRD0, src, XP_SIZE)
    srd_ws(a, SRD1, ssn, SS_SIZE)
    for t in range(2):
        a(f"buffer_load_dwordx4 {V(ss + 4 * t, 4)}, v{vw}, s[{SRD1}:{SRD1 + 3}], 0 offen offset:{t * 1024}")
    for t in range(2):
        for jj in range(4):
            so = f"s{sOP}" if t else "0"
            a(f"buffer_load_dword v{raw + 4 * t + jj}, v{vx}, s[{SRD0}:{SRD0 + 3}], {so} offen offset:{jj * 512}")
    srd_ws(a, SRD2, "WC", WC_SIZE)
    for u in range(2):
        a(f"buffer_load_dwordx4 {V(wraw + 4 * u, 4)}, v{vw}, s[{SRD2}:{SRD2 + 3}], s{sF} offen offset:{u * 1024}")
    srd_ws(a, SRD3, dst, XP_SIZE)

    mark(a, 1)
    a(f"v_lshlrev_b32 v{vl0}, 4, v0")
    for kk in (1, 2, 3):
        a(f"v_xor_b32 v{vl0 + kk}, {kk * 1024}, v{vl0}")
    a(f"v_and_b32 v{vmI}, 1, v{vI}")
    a(f"v_mul_u32_u24 v{vmI}, 0x8000, v{vmI}")
    a(f"v_lshl_or_b32 v{vmI}, v{vmI}, 16, v{vmI}")
    a(f"s_mov_b32 s{sK0}, 0x80008000")
    a(f"v_cvt_f32_u32 v{fi}, v{vI}")
    a(f"v_lshlrev_b32 v{fg}, 2, v{vG}")
    a(f"v_cvt_f32_u32 v{fg}, v{fg}")

    def m1(qb, t, var):
        return M1 + ((qb * 2 + t) * 2 + var) * 4

    def m2(kk, var):
        return M2 + (kk * 2 + var) * 4

    a(f"v_mul_f32 v{fa}, {f32bits(1 / 32):#x}, v{fi}")
    for jj in range(4):
        t = TMP + 3 * jj
        a(f"v_add_f32 v{t}, {float(jj)}, v{fg}" if jj in (0, 1, 2) else f"v_add_f32 v{t}, {f32bits(3.0):#x}, v{fg}")
        a(f"v_mul_f32 v{t}, v{t}, v{fa}")
        a(f"v_fract_f32 v{t}, v{t}")
        a(f"v_cos_f32 v{t + 1}, v{t}")
        a(f"v_sin_f32 v{t + 2}, v{t}")
    for jj in range(4):
        t = TMP + 3 * jj
        n = "-" if jj & 1 else ""
        m = "" if jj & 1 else "-"
        a(f"v_cvt_pk_bf16_f32 v{m1(0, 0, 0) + jj}, v{t + 1}, v{t + 2}")
        a(f"v_cvt_pk_bf16_f32 v{m1(0, 0, 1) + jj}, -v{t + 2}, v{t + 1}")
        a(f"v_cvt_pk_bf16_f32 v{m1(1, 0, 0) + jj}, {n}v{t + 1}, {n}v{t + 2}")
        a(f"v_cvt_pk_bf16_f32 v{m1(1, 0, 1) + jj}, {m}v{t + 2}, {n}v{t + 1}")
    for qb in range(2):
        for var in range(2):
            for jj in range(4):
                a(f"v_xor_b32 v{m1(qb, 1, var) + jj}, v{vmI}, v{m1(qb, 0, var) + jj}")

    a(f"s_lshl_b32 s{sA}, s{sW}, 4")
    a(f"v_cvt_f32_u32 v{fb}, s{sA}")
    a(f"v_add_f32 v{TMP + 24}, v{fb}, v{fg}")
    a(f"v_add_f32 v{fb}, v{fb}, v{fi}")
    a(f"v_mul_f32 v{TMP + 25}, {f32bits(1 / 2048):#x}, v{fi}")
    a(f"v_add_f32 v{TMP + 26}, {f32bits(16 / 2048):#x}, v{TMP + 25}")
    for r in range(4):
        t = TMP + r
        a(f"v_add_f32 v{t}, {f32bits(float(r)):#x}, v{TMP + 24}")
    for qb in range(2):
        for r in range(4):
            t = TMP + 4 + (qb * 4 + r)
            a(f"v_mul_f32 v{t}, v{TMP + r}, v{TMP + 25 + qb}")
            a(f"v_cos_f32 v{T1 + qb * 8 + r}, v{t}")
            a(f"v_sin_f32 v{T1 + qb * 8 + 4 + r}, v{t}")

    a(f"v_mul_f32 v{fa}, {f32bits(1 / 64):#x}, v{fb}")
    a(f"s_xor_b32 s{sA}, s{sA}, 16")
    a(f"v_cvt_f32_u32 v{TMP + 24}, s{sA}")
    a(f"v_add_f32 v{TMP + 24}, v{TMP + 24}, v{fg}")
    for kk in range(2):
        for r in range(4):
            t = TMP + 12 + 3 * r
            if kk == 0:
                a(f"v_mul_f32 v{t}, v{TMP + r}, v{fa}")
            else:
                a(f"v_add_f32 v{t}, {f32bits(float(r)):#x}, v{TMP + 24}")
                a(f"v_mul_f32 v{t}, v{t}, v{fa}")
            a(f"v_fract_f32 v{t}, v{t}")
            a(f"v_cos_f32 v{t + 1}, v{t}")
            a(f"v_sin_f32 v{t + 2}, v{t}")
        for r in range(4):
            t = TMP + 12 + 3 * r
            a(f"v_cvt_pk_bf16_f32 v{m2(kk, 0) + r}, v{t + 1}, v{t + 2}")
            a(f"v_cvt_pk_bf16_f32 v{m2(kk, 1) + r}, -v{t + 2}, v{t + 1}")
    for kk in range(2):
        for var in range(2):
            for r in range(4):
                a(f"v_xor_b32 v{m2(kk + 2, var) + r}, v{vmI}, v{m2(kk, var) + r}")

    a(f"v_mul_f32 v{fa}, {f32bits(1 / 2048):#x}, v{fb}")
    for u in range(2):
        for r in range(4):
            t = TMP + (u * 4 + r)
            a(f"v_add_f32 v{t}, {f32bits(float(16 * u + r)):#x}, v{fg}")
            a(f"v_mul_f32 v{t}, v{t}, v{fa}")
            a(f"v_cos_f32 v{T2 + u * 8 + r}, v{t}")
            a(f"v_sin_f32 v{T2 + u * 8 + 4 + r}, v{t}")

    a(f"s_mov_b32 s{sK1}, 0xffff0000")
    a(f"s_cmp_eq_u32 s{sE}, 0")
    a(f"s_cselect_b32 s{sK2}, 0, s{sK1}")
    a(f"s_cselect_b32 s{sK3}, 0, {f32bits(-1 / 2048):#x}")
    a(f"s_mov_b32 s{sA}, {f32bits(1 / DM):#x}")
    a(f"s_mov_b32 s{sB}, {f32bits(1 / 2048):#x}")
    a(f"v_mov_b32 v{fa}, {f32bits(1e-5):#x}")
    mark(a, 2)
    for k in range(8):
        a(f"v_fma_f32 v{ss + k}, v{ss + k}, s{sA}, v{fa}")
    for k in range(8):
        a(f"v_rsq_f32 v{ss + k}, v{ss + k}")
    for k in range(8):
        t = TMP + 2 * k
        a(f"v_lshlrev_b32 v{t}, 16, v{raw + k}")
        a(f"v_and_b32 v{t + 1}, s{sK2}, v{raw + k}")
    for k in range(8):
        t = TMP + 2 * k
        a(f"v_mul_f32 v{t}, v{t}, v{ss + k}")
        a(f"v_mul_f32 v{t + 1}, v{t + 1}, v{ss + k}")
    for k in range(8):
        t = TMP + 2 * k
        a(f"v_cvt_pk_bf16_f32 v{FG + k}, v{t}, v{t + 1}")

    def acc(b, var):
        return ACC + (b * 2 + var) * 4

    mark(a, 3)
    for t in range(2):
        for qb in range(2):
            for var in range(2):
                mfma(a, acc(qb, var), FG + 4 * t, m1(qb, t, var), None if t == 0 else acc(qb, var))
    for u in range(2):
        for r in range(4):
            a(f"v_lshlrev_b32 v{WU + u * 8 + r}, 16, v{wraw + u * 4 + r}")
            a(f"v_and_b32 v{WU + u * 8 + 4 + r}, s{sK1}, v{wraw + u * 4 + r}")

    def exchange(base, data_is_a):
        for b in range(2):
            a(f"ds_write_b128 v{vl0}, {V(FO + 4 * b, 4)} offset:{base + b * 4096}")
        for b in range(2):
            for var in range(2):
                if data_is_a:
                    mfma(a, acc(b, var), FO + 4 * b, m2(0, var), None)
                else:
                    mfma(a, acc(b, var), m2(0, var), FO + 4 * b, None)
        a("s_waitcnt lgkmcnt(0)")
        a("s_barrier")
        for kk in (1, 2, 3):
            for b in range(2):
                a(f"ds_read_b128 {V(FG + ((kk - 1) * 2 + b) * 4, 4)}, v{vl0 + kk} offset:{base + b * 4096}")
        for kk in (1, 2, 3):
            for b in range(2):
                for var in range(2):
                    f = FG + ((kk - 1) * 2 + b) * 4
                    if data_is_a:
                        mfma(a, acc(b, var), f, m2(kk, var), acc(b, var))
                    else:
                        mfma(a, acc(b, var), m2(kk, var), f, acc(b, var))

    for qb in range(2):
        cmul_pack(a, FO + 4 * qb, acc(qb, 0), acc(qb, 1), T1 + qb * 8, T1 + qb * 8 + 4, TMP + 8 * qb)
    exchange(0, False)
    mark(a, 4)
    for u in range(2):
        cmul_pack(a, FO + 4 * u, acc(u, 0), acc(u, 1), WU + u * 8, WU + u * 8 + 4, TMP + 8 * u, conj_w=True)
    exchange(8192, True)
    mark(a, 5)
    for k in range(8):
        a(f"v_lshlrev_b32 v{WU + 2 * k}, 16, v{raw + k}")
        a(f"v_and_b32 v{WU + 2 * k + 1}, s{sK1}, v{raw + k}")
    for u in range(2):
        cmul_pack(a, FO + 4 * u, acc(u, 0), acc(u, 1), T2 + u * 8, T2 + u * 8 + 4, TMP + 8 * u)
    for u in range(2):
        for t in range(2):
            for var in range(2):
                mfma(a, acc(t, var), m1(t, u, var), FO + 4 * u, None if u == 0 else acc(t, var))
    for t in range(2):
        for jj in range(4):
            k = 4 * t + jj
            a(f"v_fma_f32 v{WU + 2 * k}, v{acc(t, 0) + jj}, s{sB}, v{WU + 2 * k}")
            a(f"v_fma_f32 v{WU + 2 * k + 1}, v{acc(t, 1) + jj}, s{sK3}, v{WU + 2 * k + 1}")
        for jj in range(4):
            k = 4 * t + jj
            a(f"v_cvt_pk_bf16_f32 v{raw + k}, v{WU + 2 * k}, v{WU + 2 * k + 1}")
            so = f"s{sOP}" if t else "0"
            a(f"buffer_store_dword v{raw + k}, v{vx}, s[{SRD3}:{SRD3 + 3}], {so} offen offset:{jj * 512}{Cfg.st_flags}")
    return 16384


def role_g1(a, src):
    vx, vw, vl, vo, vb, vm = 4, 5, 6, 7, 8, 9
    sq = 10
    X = 16
    ACC = 176
    BR = 232
    TMP = 246
    WR = 256
    NW = 14

    a(f"s_and_b32 s{sA}, s{sT}, 7")
    a(f"s_lshr_b32 s{sB}, s{sA}, 1")
    a(f"s_lshl_b32 s{sB}, s{sB}, 2")
    a(f"s_bfe_u32 s{sC}, s{sT}, 0x20003")
    a(f"s_add_u32 s{sC}, s{sC}, s{sB}")
    a(f"s_and_b32 s{sA}, s{sA}, 1")
    a(f"s_lshl_b32 s{sA}, s{sA}, 3")
    a(f"s_lshr_b32 s{sD}, s{sT}, 5")
    a(f"s_add_u32 s{sD}, s{sD}, s{sA}")
    a(f"s_mul_i32 s{sD}, s{sD}, 27")
    a(f"s_lshr_b32 s{sD}, s{sD}, 2")
    a(f"s_lshl_b32 s{sC}, s{sC}, 7")
    a(f"s_lshl_b32 s{sA}, s{sW}, 5")
    a(f"s_add_u32 s{sC}, s{sC}, s{sA}")
    a(f"v_lshlrev_b32 v{vx}, 15, v{vG}")
    a(f"v_lshl_add_u32 v{vx}, v{vI}, 4, v{vx}")
    a(f"s_lshl_b32 s{sA}, s{sC}, 3")
    a(f"v_add_u32 v{vx}, s{sA}, v{vx}")
    a(f"v_mul_u32_u24 v{vw}, {FF}, v{vG}")
    a(f"v_add_lshl_u32 v{vw}, v{vw}, v{vI}, 4")
    a(f"s_mul_i32 s{sA}, s{sW}, {4 * W1F_STR}")
    a(f"s_lshl_b32 s{sB}, s{sD}, 8")
    a(f"s_add_u32 s{sA}, s{sA}, s{sB}")
    a(f"v_add_u32 v{vw}, s{sA}, v{vw}")
    a(f"s_mul_i32 s{sE}, s{sW}, 7168")
    a(f"v_lshlrev_b32 v{vl}, 4, v{vL}")
    a("s_waitcnt lgkmcnt(0)")
    srd_ws(a, SRD0, "W1F", W1F_SIZE)
    srd_ws(a, SRD1, src, XP_SIZE)

    def xr(ks, st):
        return X + ks * 8 + st * 4

    def issue_chunk(c):
        a(f"s_mov_b32 s{sOP}, {c * 16 * W1F_STR}")
        for ft in range(7):
            a(f"s_add_u32 m0, s{sE}, {c * 28672 + ft * 1024 - ft * 256}")
            a(f"buffer_load_dwordx4 v{vw}, s[{SRD0}:{SRD0 + 3}], s{sOP} offen offset:{ft * 256} lds", tag=f"w{c}")
        for k in range(4):
            ks = 4 * c + k
            for h in range(2):
                a(f"s_mov_b32 s{sOQ}, {(8 * ks + h) * XP_STR}")
                a(f"buffer_load_dwordx4 {V(xr(ks, h), 4)}, v{vx}, s[{SRD1}:{SRD1 + 3}], s{sOQ} offen")

    for c in range(4):
        issue_chunk(c)
    srd(a, SRD2, P_B1, 0, FF * 2)
    srd_ws(a, SRD3, "H", H_SIZE)
    a(f"s_lshl_b32 s{sA}, s{sD}, 5")
    a(f"v_lshlrev_b32 v{vb}, 3, v{vG}")
    a(f"v_add_u32 v{vb}, s{sA}, v{vb}")
    a(f"v_lshrrev_b32 v{vo}, 1, v{vG}")
    a(f"v_mul_u32_u24 v{vo}, {H_STR}, v{vo}")
    a(f"v_lshl_add_u32 v{vo}, v{vI}, 5, v{vo}")
    a(f"v_and_b32 v{vm}, 1, v{vG}")
    a(f"v_lshl_add_u32 v{vo}, v{vm}, 4, v{vo}")
    a(f"s_mul_i32 s{sA}, s{sD}, {2 * H_STR}")
    a(f"s_lshl_b32 s{sB}, s{sC}, 4")
    a(f"s_add_u32 s{sA}, s{sA}, s{sB}")
    a(f"v_add_u32 v{vo}, s{sA}, v{vo}")
    a(f"v_cmp_eq_u32 vcc, 0, v{vG}")
    a(f"v_mov_b32 v{vm}, 0xffff")
    a(f"v_cndmask_b32 v{vm}, -1, v{vm}, vcc")
    for k in range(4):
        a(f"v_mov_b32 v{sq + k}, 0")

    def acc(ft, st):
        return ACC + (ft * 2 + st) * 4

    seq = [(ks, ft) for ks in range(20) for ft in range(7)]

    def wreg(n):
        return WR + (n % NW) * 4

    def rd(n):
        ks, ft = seq[n]
        off = (ks * 7 + ft) * 1024
        if off >= 65536:
            a(f"ds_read_b128 {R(wreg(n), 4)}, v{TMP + (off >> 16)} offset:{off & 0xffff}")
        else:
            a(f"ds_read_b128 {R(wreg(n), 4)}, v{vl} offset:{off}")

    a(f"v_add_u32 v{TMP + 1}, 0x10000, v{vl}")
    a(f"v_add_u32 v{TMP + 2}, 0x20000, v{vl}")
    AHEAD = 8
    nread = 0
    for c in range(5):
        if c == 0:
            mark(a, 1)
        a.wait_tag(f"w{c}")
        a("s_barrier")
        if c in (0, 1, 4):
            mark(a, {0: 2, 1: 3, 4: 4}[c])
        if c == 0:
            issue_chunk(4)
            for ft in range(7):
                a(f"buffer_load_dwordx2 {V(BR + 2 * ft, 2)}, v{vb}, s[{SRD2}:{SRD2 + 3}], 0 offen offset:{ft * 32}")
        hi = (c + 1) * 28
        for n in range(c * 28, hi):
            ks, ft = seq[n]
            while nread < min(hi, n + AHEAD):
                rd(nread)
                nread += 1
            if ft == 0:
                a(f"v_swap_b32 v{xr(ks, 0) + 2}, v{xr(ks, 1)}")
                a(f"v_swap_b32 v{xr(ks, 0) + 3}, v{xr(ks, 1) + 1}")
                if ks == 0:
                    a(f"v_and_b32 v{xr(0, 0)}, v{vm}, v{xr(0, 0)}")
                    a(f"v_and_b32 v{xr(0, 1)}, v{vm}, v{xr(0, 1)}")
            for st in range(2):
                mfma(a, acc(ft, st), wreg(n), xr(ks, st), None if ks == 0 else acc(ft, st))
                if 1 <= ft <= 4 and not Cfg.nodot:
                    x = xr(ks, st) + ft - 1
                    a(f"v_dot2c_f32_bf16 v{sq + st * 2 + (ft & 1)}, v{x}, v{x}")

    mark(a, 5)
    t = TMP + 4
    for st in range(2):
        s = sq + 2 * st
        a(f"v_add_f32 v{s}, v{s}, v{s + 1}")
    for op in ("v_permlane32_swap_b32", "v_permlane16_swap_b32"):
        for st in range(2):
            s = sq + 2 * st
            a(f"v_mov_b32 v{s + 1}, v{s}")
        for st in range(2):
            s = sq + 2 * st
            a(f"{op} v{s}, v{s + 1}")
        for st in range(2):
            s = sq + 2 * st
            a(f"v_add_f32 v{s}, v{s}, v{s + 1}")
    a(f"v_mov_b32 v{t}, {f32bits(1e-5):#x}")
    for st in range(2):
        s = sq + 2 * st
        a(f"v_mul_f32 v{s}, {f32bits(1 / DM):#x}, v{s}")
        a(f"v_add_f32 v{s + 1}, v{s}, v{t}")
        a(f"v_rsq_f32 v{s + 1}, v{s + 1}")
    for st in range(2):
        s = sq + 2 * st
        a(f"v_mul_f32 v{s}, v{s}, v{s + 1}")
        a(f"v_fma_f32 v{s}, v{s}, v{s + 1}, v{t}")
        a(f"v_rsq_f32 v{s}, v{s}")
    for st in range(2):
        s = sq + 2 * st
        a(f"v_mul_f32 v{s}, v{s}, v{s + 1}")

    k0 = -2.0 * 0.7978845608028654 * 1.4426950408889634
    a(f"s_mov_b32 s{sK0}, {f32bits(k0 * 0.044715):#x}")
    a(f"s_mov_b32 s{sK1}, s{sK0}")
    a(f"s_mov_b32 s{sK2}, 0xffff0000")
    a(f"v_mov_b32 v{TMP + 4}, {f32bits(k0):#x}")
    a(f"v_mov_b32 v{TMP + 5}, {f32bits(k0):#x}")
    for ft in range(7):
        B = X + ft * 16
        Z = B + 4
        O = B + 12
        for h in range(2):
            a(f"v_lshlrev_b32 v{B + 2 * h}, 16, v{BR + 2 * ft + h}")
            a(f"v_and_b32 v{B + 2 * h + 1}, s{sK2}, v{BR + 2 * ft + h}")
        prs = [(acc(ft, st) + h, Z + st * 4 + h, B + h, sq + 2 * st) for st in range(2) for h in (0, 2)]
        for x, z, b, s in prs:
            a(f"v_pk_fma_f32 {V(x, 2)}, {V(x, 2)}, {V(s, 2)}, {V(b, 2)} op_sel_hi:[1,0,1]")
        for x, z, b, s in prs:
            a(f"v_pk_mul_f32 {V(z, 2)}, {V(x, 2)}, {V(x, 2)}")
        for x, z, b, s in prs:
            a(f"v_pk_fma_f32 {V(z, 2)}, {V(z, 2)}, s[{sK0}:{sK1}], {V(TMP + 4, 2)}")
        for x, z, b, s in prs:
            a(f"v_pk_mul_f32 {V(z, 2)}, {V(z, 2)}, {V(x, 2)}")
        for k in range(8):
            a(f"v_exp_f32 v{Z + k}, v{Z + k}")
        for x, z, b, s in prs:
            a(f"v_pk_add_f32 {V(z, 2)}, {V(z, 2)}, 1.0 op_sel_hi:[1,0]")
        for k in range(8):
            a(f"v_rcp_f32 v{Z + k}, v{Z + k}")
        for x, z, b, s in prs:
            a(f"v_pk_mul_f32 {V(z, 2)}, {V(z, 2)}, {V(x, 2)}")
        for k in range(4):
            a(f"v_cvt_pk_bf16_f32 v{O + k}, v{Z + 2 * k}, v{Z + 2 * k + 1}")
        a(f"s_mov_b32 s{sOP}, {ft * 2 * H_STR}")
        a(f"v_permlane16_swap_b32 v{O}, v{O + 2}")
        a(f"v_permlane16_swap_b32 v{O + 1}, v{O + 3}")
        a(f"buffer_store_dwordx4 {V(O, 4)}, v{vo}, s[{SRD3}:{SRD3 + 3}], s{sOP} offen{Cfg.st_flags}")
    return 140 * 1024


def role_g2(a, final):
    vp, vq, vred, vo, acc = 4, 5, 9, 13, 16
    vp2, vq2, vone, vs, RES, TMP = 96, 97, 101, 102, 104, 116
    ring = 256
    depth = Cfg.g2depth
    a(f"s_and_b32 s{sA}, s{sT}, 7")
    a(f"s_lshr_b32 s{sB}, s{sA}, 1")
    a(f"s_lshl_b32 s{sB}, s{sB}, 3")
    a(f"s_bfe_u32 s{sC}, s{sT}, 0x30003")
    a(f"s_add_u32 s{sC}, s{sC}, s{sB}")
    a(f"s_lshl_b32 s{sC}, s{sC}, 6")
    a(f"s_and_b32 s{sA}, s{sA}, 1")
    a(f"s_lshl_b32 s{sA}, s{sA}, 2")
    a(f"s_lshr_b32 s{sD}, s{sT}, 6")
    a(f"s_add_u32 s{sD}, s{sD}, s{sA}")
    p_addr(a, vp, sD, 14)
    a(f"v_mul_u32_u24 v{vq}, {H_STR}, v{vG}")
    a(f"v_lshl_add_u32 v{vq}, v{vI}, 4, v{vq}")
    a(f"s_mul_i32 s{sA}, s{sW}, {14 * 4 * H_STR}")
    a(f"s_lshl_b32 s{sB}, s{sC}, 4")
    a(f"s_add_u32 s{sA}, s{sA}, s{sB}")
    for ql in (3, 2, 1, 0):
        a(f"s_xor_b32 s{sB}, s{sW}, {ql}")
        a(f"s_lshl_b32 s{sB}, s{sB}, 8")
        a(f"s_add_u32 s{sB}, s{sB}, s{sA}")
        a(f"v_add_u32 v{vq + ql}, s{sB}, v{vq}")
    if Cfg.g2lay & 1:
        a(f"s_mul_i32 s{sA}, s{sD}, {54 * 5120}")
        a(f"s_mul_i32 s{sB}, s{sW}, {13 * 5120}")
        a(f"s_add_u32 s{sA}, s{sA}, s{sB}")
        a(f"v_lshlrev_b32 v{vp}, 4, v{vL}")
        a(f"v_add_u32 v{vp}, s{sA}, v{vp}")
    if Cfg.g2lay & 2:
        a(f"s_mul_i32 s{sA}, s{sC}, {54 * 64}")
        a(f"s_mul_i32 s{sB}, s{sW}, {13 * 4096}")
        a(f"s_add_u32 s{sA}, s{sA}, s{sB}")
        a(f"v_lshlrev_b32 v{vq}, 4, v{vL}")
        for ql in (3, 2, 1, 0):
            a(f"s_xor_b32 s{sB}, s{sW}, {ql}")
            a(f"s_lshl_b32 s{sB}, s{sB}, 10")
            a(f"s_add_u32 s{sB}, s{sB}, s{sA}")
            a(f"v_add_u32 v{vq + ql}, s{sB}, v{vq}")
    a("s_waitcnt lgkmcnt(0)")
    if final:
        srd_ws(a, SRD0, "W2T", W2T_SIZE)
    else:
        srd_ws(a, SRD0, "WA2", WA2_SIZE)
    srd_ws(a, SRD1, "H", H_SIZE)
    st = {"p": None, "q": None}

    def ip(t, p, dst):
        if t < 14:
            if Cfg.g2lay & 1:
                a(f"s_mov_b32 s{sOP}, {t * 5120 + p * 1024}")
                a(f"buffer_load_dwordx4 {R(dst, 4)}, v{vp}, s[{SRD0}:{SRD0 + 3}], s{sOP} offen")
                return
            if st["p"] != t:
                a(f"s_mov_b32 s{sOP}, {t * 4 * KB_STR}")
            a(f"buffer_load_dwordx4 {R(dst, 4)}, v{vp}, s[{SRD0}:{SRD0 + 3}], s{sOP} offen offset:{p * 256}")
        else:
            if st["p"] != t:
                a(f"s_mov_b32 s{sOP}, {(t - 14) * 4 * KB_STR}")
            a(f"buffer_load_dwordx4 {R(dst, 4)}, v{vp2}, s[{SRD4}:{SRD4 + 3}], s{sOP} offen offset:{p * 256}")
        st["p"] = t

    def iq(t, q, qb):
        if t < 14:
            if st["q"] != t:
                a(f"s_mov_b32 s{sOQ}, {t * (4096 if Cfg.g2lay & 2 else 4 * H_STR)}")
            a(f"buffer_load_dwordx4 {R(qb + q * 4, 4)}, v{vq + q}, s[{SRD1}:{SRD1 + 3}], s{sOQ} offen")
        else:
            if st["q"] != t:
                a(f"s_mov_b32 s{sOQ}, {(t - 14) * 8 * XP_STR}")
                a(f"s_mov_b32 s{sF}, {((t - 14) * 8 + 1) * XP_STR}")
            a(f"buffer_load_dwordx2 {R(qb + q * 4, 2)}, v{vq2 + q}, s[{SRD5}:{SRD5 + 3}], s{sOQ} offen")
            a(f"buffer_load_dwordx2 {R(qb + q * 4 + 2, 2)}, v{vq2 + q}, s[{SRD5}:{SRD5 + 3}], s{sF} offen")
        st["q"] = t

    def post():
        a(f"s_lshl_b32 s{sE}, s{sW}, 4")
        a(f"s_add_u32 s{sE}, s{sE}, s{sC}")
        if final:
            srd_table(a, SRD4, "ft2")
            srd_ws(a, SRD5, "XP3", XP_SIZE)
            srd(a, SRD2, P_OUT, 0, SEQ * DM * 2)
            srd(a, SRD3, P_B2, 0, DM * 2)
            p_addr(a, vp2, sD, 5)
            a(f"v_lshlrev_b32 v{vq2}, 15, v{vG}")
            a(f"v_lshl_add_u32 v{vq2}, v{vI}, 3, v{vq2}")
            a(f"s_mul_i32 s{sA}, s{sW}, {40 * XP_STR}")
            a(f"s_lshl_b32 s{sB}, s{sC}, 3")
            a(f"s_add_u32 s{sA}, s{sA}, s{sB}")
            for ql in (3, 2, 1, 0):
                a(f"s_xor_b32 s{sB}, s{sW}, {ql}")
                a(f"s_lshl_b32 s{sB}, s{sB}, 7")
                a(f"s_add_u32 s{sB}, s{sB}, s{sA}")
                a(f"v_add_u32 v{vq2 + ql}, s{sB}, v{vq2}")
            a(f"s_mul_i32 s{sA}, s{sD}, 160")
            a(f"v_lshlrev_b32 v{vs}, 3, v{vG}")
            a(f"v_add_u32 v{vs}, s{sA}, v{vs}")
            a(f"v_mul_u32_u24 v{vo}, 1280, v{vI}")
            a(f"v_add_u32 v{vo}, v{vo}, v{vs}")
            a(f"s_mul_i32 s{sA}, s{sE}, 1280")
            a(f"v_add_u32 v{vo}, s{sA}, v{vo}")
        else:
            srd_ws(a, SRD2, "XP2", XP_SIZE)
            srd_ws(a, SRD3, "XP1", XP_SIZE)
            srd_ws(a, SRD4, "SS2", SS_SIZE)
            a(f"s_mul_i32 s{sA}, s{sD}, {20 * XP_STR}")
            a(f"s_lshl_b32 s{sB}, s{sE}, 3")
            a(f"s_add_u32 s{sA}, s{sA}, s{sB}")
            a(f"v_lshlrev_b32 v{vo}, 14, v{vG}")
            a(f"v_lshl_add_u32 v{vo}, v{vI}, 3, v{vo}")
            a(f"v_add_u32 v{vo}, s{sA}, v{vo}")
            a(f"s_lshl_b32 s{sA}, s{sW}, 3")
            a(f"s_lshr_b32 s{sB}, s{sC}, 8")
            a(f"s_add_u32 s{sA}, s{sA}, s{sB}")
            a(f"s_lshl_b32 s{sA}, s{sA}, 8")
            a(f"s_bfe_u32 s{sB}, s{sC}, 0x20006")
            a(f"s_lshl2_add_u32 s{sA}, s{sB}, s{sA}")
            a(f"v_lshlrev_b32 v{vs}, 4, v{vI}")
            a(f"v_add_u32 v{vs}, s{sA}, v{vs}")
            a(f"v_lshl_add_u32 v{vs}, v{vG}, 20, v{vs}")
            a(f"s_cmp_eq_u32 s{sW}, 3")
            a(f"s_cselect_b32 s{sA}, 0x3f80, 0")
            a(f"v_mov_b32 v{vone}, s{sA}")
            a(f"v_cmp_eq_u32 vcc, 0, v{vG}")
            a(f"v_cndmask_b32 v{vone}, 0, v{vone}, vcc")
            a(f"s_cmp_eq_u32 s{sD}, 0")
            a(f"s_cselect_b32 s{sA}, 0, 1.0")
            a(f"v_mov_b32 v{vp2}, s{sA}")
            a(f"v_cndmask_b32 v{vp2}, 1.0, v{vp2}, vcc")

    def prep(t, qb):
        if t == 3:
            for p in range(5):
                if final:
                    a(f"buffer_load_dwordx2 {V(RES + 2 * p, 2)}, v{vs}, s[{SRD3}:{SRD3 + 3}], 0 offen offset:{p * 32}")
                else:
                    a(f"s_mov_b32 s{sF}, {p * 4 * XP_STR}")
                    a(f"buffer_load_dwordx2 {V(RES + 2 * p, 2)}, v{vo}, s[{SRD3}:{SRD3 + 3}], s{sF} offen")
        if t == 12 and not final:
            for q in range(4):
                a(f"v_accvgpr_read_b32 v{TMP + q}, {R(qb + q * 4)}")
            for q in range(4):
                a(f"v_or_b32 v{TMP + q}, v{TMP + q}, v{vone}")
            for q in range(4):
                a(f"v_accvgpr_write_b32 {R(qb + q * 4)}, v{TMP + q}")
        return [qb + q * 4 for q in range(4)]

    res = gemm_ks_hook(a, 19 if final else 14, depth, acc, ring, vred, ip, iq, prep, post)
    a(f"s_mov_b32 s{sK2}, 0xffff0000")
    if not final:
        a(f"v_mov_b32 v{TMP + 8}, 0")
        a(f"v_mov_b32 v{TMP + 9}, 0")
    for p, r in enumerate(res):
        for h in range(2):
            a(f"v_lshlrev_b32 v{TMP + 2 * h}, 16, v{RES + 2 * p + h}")
            a(f"v_and_b32 v{TMP + 2 * h + 1}, s{sK2}, v{RES + 2 * p + h}")
        for h in (0, 2):
            a(f"v_pk_add_f32 {V(r + h, 2)}, {V(r + h, 2)}, {V(TMP + h, 2)}")
        a(f"v_cvt_pk_bf16_f32 v{r}, v{r}, v{r + 1}")
        a(f"v_cvt_pk_bf16_f32 v{r + 1}, v{r + 2}, v{r + 3}")
        if final:
            a(f"buffer_store_dwordx2 {V(r, 2)}, v{vo}, s[{SRD2}:{SRD2 + 3}], 0 offen offset:{p * 32}{Cfg.st_flags}")
        else:
            a(f"s_mov_b32 s{sOP}, {p * 4 * XP_STR}")
            a(f"buffer_store_dwordx2 {V(r, 2)}, v{vo}, s[{SRD2}:{SRD2 + 3}], s{sOP} offen{Cfg.st_flags}")
            if p == 0:
                a(f"v_lshlrev_b32 v{TMP + 4}, 16, v{r}")
                a(f"v_and_b32 v{TMP + 5}, s{sK2}, v{r}")
                a(f"v_mul_f32 v{TMP + 5}, v{TMP + 5}, v{vp2}")
                a(f"v_mul_f32 v{TMP + 8}, v{TMP + 4}, v{TMP + 4}")
                a(f"v_fmac_f32 v{TMP + 8}, v{TMP + 5}, v{TMP + 5}")
            else:
                a(f"v_dot2c_f32_bf16 v{TMP + 8}, v{r}, v{r}")
            a(f"v_dot2c_f32_bf16 v{TMP + 9}, v{r + 1}, v{r + 1}")
    if not final:
        s = TMP + 8
        a(f"v_add_f32 v{s}, v{s}, v{s + 1}")
        for op in ("v_permlane32_swap_b32", "v_permlane16_swap_b32"):
            a(f"v_mov_b32 v{s + 1}, v{s}")
            a(f"{op} v{s}, v{s + 1}")
            a(f"v_add_f32 v{s}, v{s}, v{s + 1}")
        a(f"buffer_atomic_add_f32 v{s}, v{vs}, s[{SRD4}:{SRD4 + 3}], 0 offen")
    return KS_LDS


def gemm_ks_hook(a, nsteps, depth, acc, ring, vred, ip, iq, hook, post):
    return gemm_ks(a, nsteps, depth, acc, ring, vred, True, ip, iq, after_prologue=post, step_hook=hook)


def build_kernel(name, idx, roles, block=256):
    a = Asm()
    a.raw(f".globl {name}\n.p2align 8\n.type {name},@function")
    a.label(name)
    a.label(name + "_code")
    a("s_load_dwordx16 s[8:23], s[0:1], 0")
    a("s_load_dwordx4 s[24:27], s[0:1], 64")
    a("s_load_dwordx2 s[28:29], s[0:1], 80")
    if Cfg.stamp:
        a(f"s_memrealtime s[{sST}:{sST + 1}]")
        for j in range(1, 10):
            a(f"s_mov_b32 s{sST + 2 * j}, 0")
    a(f"v_lshrrev_b32 v{vL}, 6, v0")
    a(f"v_and_b32 v{vI}, 15, v0")
    a(f"v_readfirstlane_b32 s{sW}, v{vL}")
    a(f"v_bfe_u32 v{vG}, v0, 4, 2")
    a(f"v_and_b32 v{vL}, 63, v0")
    lds = 0
    start = 0
    starts = [sum(c for c, _ in roles[:n]) for n in range(len(roles) + 1)]
    for n in range(len(roles), 0, -1):
        a(f"s_cmp_ge_u32 s2, {starts[n]}")
        a(f"s_cbranch_scc1 {name}_r{n}")
    for n, (count, fn) in enumerate(roles):
        if n:
            a.label(f"{name}_r{n}")
        a(f"s_sub_u32 s{sT}, s2, {start}")
        lds = max(lds, fn(a))
        if Cfg.stamp:
            mark(a, 10)
            a("s_waitcnt vmcnt(0)")
            mark(a, 11)
            a("s_waitcnt lgkmcnt(0)")
            a(f"s_mul_i32 s{sA}, s2, {block // 64}")
            a(f"s_add_u32 s{sA}, s{sA}, s{sW}")
            a(f"s_lshl_b32 s{sA}, s{sA}, 6")
            a(f"s_add_u32 s{sA}, s{sA}, {idx * 262144}")
            srd_ws(a, SRD0, "STAMP", 1 << 21)
            a("s_waitcnt lgkmcnt(0)")
            for j in range(12):
                a(f"v_mov_b32 v{4 + j}, s{sST + 2 * j}")
            a(f"v_mov_b32 v16, s{sA}")
            for j in range(3):
                a(f"buffer_store_dwordx4 v[{4 + 4 * j}:{7 + 4 * j}], v16, s[{SRD0}:{SRD0 + 3}], 0 offen offset:{16 * j}")
            a(f"s_getreg_b32 s{sB}, hwreg(HW_REG_XCC_ID)")
            a(f"v_mov_b32 v17, s{sB}")
            a(f"buffer_store_dword v17, v16, s[{SRD0}:{SRD0 + 3}], 0 offen offset:48")
        a("s_endpgm")
        for fn2 in a.tail:
            fn2()
        a.tail = []
        start += count
    a.label(f"{name}_r{len(roles)}")
    a("s_endpgm")
    a.label(name + "_cend")
    nv = na = 0
    ns = 0
    for it in a.items:
        if isinstance(it, Inst):
            for k, r in it.dst + it.src + it.srcc:
                if k == "v":
                    nv = max(nv, r + 1)
                elif k == "a":
                    na = max(na, r + 1)
                elif r < 102:
                    ns = max(ns, r + 1)
    acco = (nv + 3) // 4 * 4
    desc = f""".p2align 6
.amdhsa_kernel {name}
  .amdhsa_next_free_vgpr {acco + na}
  .amdhsa_next_free_sgpr {ns}
  .amdhsa_accum_offset {acco}
  .amdhsa_group_segment_fixed_size 0
  .amdhsa_kernarg_size 88
  .amdhsa_user_sgpr_count 2
  .amdhsa_user_sgpr_kernarg_segment_ptr 1
  .amdhsa_system_sgpr_workgroup_id_x 1
.end_amdhsa_kernel
"""
    launch = f"; @launch kernel={name} grid=({start},1,1) block=({block},1,1) lds={lds}"
    if Cfg.stamp:
        launch += "\n; roles " + name + " " + " ".join(str(c * block // 256) for c, _ in roles)
    return launch, a.finalize(), desc


def tables():
    L = []
    c = np.sqrt(2.0 / DM) * np.cos(2 * np.pi * np.arange(DM) / DM)
    c[160] = 0
    c[480] = 0
    bits = model.bf16_bits(c.astype(np.float32))
    for n in range(DM):
        L.append(f".set cq{n}, {bits[n]}")
    bb = int(model.bf16_bits(np.float32([np.sqrt(1 / DM)]))[0])
    L.append(".altmacro")
    L.append(".macro e8 a,b,c,d,e,f,g,h\n.short cq\\a, cq\\b, cq\\c, cq\\d, cq\\e, cq\\f, cq\\g, cq\\h\n.endm")
    L.append(".macro e6 a,b,c,d,e,f\n.short cq\\a, cq\\b, cq\\c, cq\\d, cq\\e, cq\\f\n.endm")
    L.append(".p2align 12\nft1:")
    L.append(".set td, 0\n.rept 80")
    L.append(".short " + ", ".join(str(bb | (0x8000 if j & 1 else 0)) for j in range(8)))
    L.append(".short " + ", ".join(str(bb) for j in range(8)))
    L.append(".set tm, 1\n.rept 319")
    L.append("e8 " + ", ".join(f"%((tm*(td+{j}))%640)" for j in range(8)))
    L.append("e8 " + ", ".join(f"%((tm*(td+{j})+160)%640)" for j in range(8)))
    L.append(".set tm, tm+1\n.endr\n.set td, td+8\n.endr")
    L.append(".p2align 12\nft2:")
    L.append(".set td, 0\n.rept 640")
    L.append(f".short {bb}+((td&1)<<15), {bb}")
    L.append("e6 " + ", ".join(f"%(({1 + j // 2}*td+{160 * (j & 1)})%640)" for j in range(6)))
    L.append(".set td, td+1\n.endr")
    L.append(".set tm, 4\n.rept 79\n.set td, 0\n.rept 640")
    L.append("e8 " + ", ".join(f"%(((tm+{j // 2})*td+{160 * (j & 1)})%640)" for j in range(8)))
    L.append(".set td, td+1\n.endr\n.set tm, tm+4\n.endr")
    L.append(".noaltmacro")
    return "\n".join(L) + "\n"


def generate(plan=None, tabs=None):
    if plan is None:
        plan = default_plan()
    launches, code, descs = [], [], []
    for idx, (name, roles, *blk) in enumerate(plan):
        l, c, d = build_kernel(name, idx, roles, *blk)
        launches.append(l)
        code.append(c)
        descs.append(d)
    out = "\n".join(launches) + "\n"
    out += '.amdgcn_target "amdgcn-amd-amdhsa--gfx950"\n.text\n'
    out += "".join(code)
    out += "text_last:\n"
    out += '.section .rodata,"a"\n'
    out += "".join(descs)
    out += (tabs or tables)()
    return out


def default_plan():
    tail = [
        ("g1a_kernel", [(256, lambda a: role_g1(a, "XP1"))]),
        ("g2a_kernel", [(256, lambda a: role_g2(a, False))]),
        ("c2_kernel", [(320, lambda a: role_col(a, "XP2", "SS2", "XP3")), (135, role_w2t)]),
        ("g1b_kernel", [(256, lambda a: role_g1(a, "XP3"))]),
        ("g2b_kernel", [(256, lambda a: role_g2(a, True))]),
    ]
    d = Cfg.pdepth
    if Cfg.plan == 1:
        return [
            ("p0_kernel", [(256, lambda a: role_xhat0(a, d))]),
            ("p1_kernel", [(80, role_wc), (64, role_stats)]),
            ("p2_kernel", [(224, lambda a: role_w2f(a, d))]),
            ("p3_kernel", [(216, lambda a: role_w1f(a, min(d, 4)))]),
            ("c1_kernel", [(320, lambda a: role_col(a, "XP0", "SS0", "XP1"))]),
        ] + tail[:3]
    if Cfg.plan == 2:
        return [
            ("p0_kernel", [(256, lambda a: role_xhat0(a, d)), (80, role_wc), (64, role_stats)]),
            ("c1_kernel", [(320, lambda a: role_col(a, "XP0", "SS0", "XP1")), (216, lambda a: role_w1f(a, min(d, 4))),
                           (224, lambda a: role_w2f(a, min(d, 4), 112))]),
        ] + tail
    return [
        ("p0_kernel", [(256, lambda a: role_xhat0(a, 4)), (80, role_wc), (64, role_stats),
                       (224, lambda a: role_w2f(a, 4))]),
        ("c1_kernel", [(320, lambda a: role_col(a, "XP0", "SS0", "XP1")), (216, lambda a: role_w1f(a, 4))]),
        ("g1a_kernel", [(256, lambda a: role_g1(a, "XP1"))]),
        ("g2a_kernel", [(256, lambda a: role_g2(a, False))]),
        ("c2_kernel", [(320, lambda a: role_col(a, "XP2", "SS2", "XP3")), (135, role_w2t)]),
        ("g1b_kernel", [(256, lambda a: role_g1(a, "XP3"))]),
        ("g2b_kernel", [(256, lambda a: role_g2(a, True))]),
    ]


if __name__ == "__main__":
    out = sys.argv[1]
    for opt in sys.argv[2:]:
        if opt == "stamp":
            Cfg.stamp = True
        if "=" in opt:
            k, v = opt.split("=")
            setattr(Cfg, k, int(v) if v.lstrip("-").isdigit() else v.replace("_", " "))
        if opt == "clk":
            Cfg.stamp = Cfg.clk = True
    open(out, "w").write(generate())


def vstr(dst, src, stride):
    if stride & (stride - 1) == 0:
        return f"v_lshlrev_b32 v{dst}, {stride.bit_length() - 1}, v{src}"
    return f"v_mul_u32_u24 v{dst}, {stride}, v{src}"


def sstr(dst, src, stride):
    if stride & (stride - 1) == 0:
        return f"s_lshl_b32 s{dst}, s{src}, {stride.bit_length() - 1}"
    return f"s_mul_i32 s{dst}, s{src}, {stride}"
```

```python
from gen import *
import gen
import f0
import model2
from p0 import Sched, fx
from f0 import READY, POST, HINT, DONE, DONE2, aF
from asmlib import TRANS

GELU_K0 = -2.0 * 0.7978845608028654 * 1.4426950408889634
EPS = 1e-5
SPIN_MAX = 1 << 14
NCOL = 160
TILE = 20480
LDS_RK = 16384
LDS_X = LDS_RED = 0
PX = 0
S_LO, S_X = -97, (-24, 24)
UP = [s - S_LO for s in S_X]
T_X = [2.0 ** (d - 127) for d in UP]
T_H, H_OFF = T_X[0], -2.0 ** -40

SRDQ, SRDF, SRDW, SRDP = 8, 12, SRD4, SRD5
sDC, sRP, sHO, sTB = 16, 17, 18, 19
sRB, sMM, sFL, sCNT, sGA, sGB = 96, 97, 98, 99, 100, 101
sMSK, sCQ = 26, 27
sPK, sEB = 20, 21
vW, vo, vp, vd2, vtc = 10, 11, 15, 14, 5
WR, NW, NP = 256, 8, 11
aPO = WR
aST, aDUM, vdc = 256 + 252, 256 + 253, 256 + 254
NS = 14


class FZ:
    look = 10
    pre_p = (8, 8)
    burst = ((0, 8), (4, 0))
    period = (90, 90)
    stop = ("x2", "x2")
    hint_at = ("x1", "x1")
    po_every = 5
    cap = 12
    row = 70
    srow = 120
    lat = 750
    dbl = (12, 15)
    xc_at = 1
    b_pre = 0
    pure = (2, 1)
    in_b = (5, 3)
    in_e = 5
    g2pk = (1, 1)
    qdel = (1600, 1600)
    qc_rem = 7
    split0 = 1
    ktail = 3
    rd_at = (("b", 1), ("b", 8))
    x3 = (("g", 3), ("g", 6), ("g", 8))
    res_at = ("g", 7)
    ebar = 1
    e_ok = 17
    marks = None
    clk = 0
    halt = 0
    verbose = 0
    map = 2
    post = 'bar2'
    x_nocnt = 0
    x_op = 'buffer-atomic-add-f32'
    wgap = 48
    park = (3, 2)
    gbar = 5
    ft_pf = 1
    p_lead = (14, 14)
    r_q = 2
    qf = (" sc1", " sc1")
    xf = (" sc1", " sc1")
    hf = " sc1"
    d2_at = (30, 30)
    t2_at = (35, 35)
    d3_at = 0
    t_gate = ()
    tch = 0
    tch_at = ("g", 1)
    h_early = (12, 0)
    p_early = 1
    ack_at = 2
    single = 0
    probe_x = None
    probe = None
    virt = 1
    dbg = None
    pof = " sc1"
    shrink = 1
    drop = ("c1a", "c2a", "c1b2", "c2b2", "m1H", "m2H", "m1P", "m2P", "c2ld", "c2x1", "c1rp", "c1rb", "c1ru", "c1rv")


class Marks:
    def __init__(self):
        self.names, self.pend = [], []

    def __call__(self, a, name):
        if FZ.probe and name in FZ.probe[1:]:
            if FZ.probe_x is not None:
                a.raw(f"    s_and_b32 s{sST + 2}, s2, 7")
                a.raw(f"    s_cmp_lg_u32 s{sST + 2}, {FZ.probe_x}")
                a.raw(f"    s_cbranch_scc1 probe_{name}_x")
            a.label(f"probe_{name}", keep=True)
            a.raw(f"    s_memrealtime s[{sST + 2}:{sST + 3}]")
            a.raw("    s_waitcnt lgkmcnt(0)")
            a.raw(f"    s_sub_u32 s{sST + 2}, s{sST + 2}, s{sST}")
            a.raw(f"    s_cmp_lt_u32 s{sST + 2}, {FZ.probe[0] * 100}")
            a.raw(f"    s_cbranch_scc1 probe_{name}")
            a.label(f"probe_{name}_x", keep=True)
        if not Cfg.stamp or (name in FZ.drop if FZ.marks is None else name not in FZ.marks):
            return
        k = len(self.pend)
        assert k < 12, name
        self.pend.append(len(self.names))
        self.names.append(name)
        a(f"{'s_memtime' if FZ.clk else 's_memrealtime'} s[{sST + 2 * k}:{sST + 2 * k + 1}]")

    def fixed(self, a, name):
        if not Cfg.stamp or FZ.marks is not None:
            return
        name = "f" + name
        if name not in self.names:
            self.pend.append(len(self.names))
            self.names.append(name)
        k = self.pend.index(self.names.index(name))
        a(f"s_memrealtime s[{sST + 2 * k}:{sST + 2 * k + 1}]")

    def stash(self, a, tmp):
        if not self.pend:
            return
        a("s_waitcnt lgkmcnt(0)")
        a(f"v_accvgpr_read_b32 v{tmp}, {R(aST)}")
        for k, lane in enumerate(self.pend):
            a(f"v_writelane_b32 v{tmp}, s{sST + 2 * k}, {lane}")
        a(f"v_writelane_b32 v{tmp}, s{sCNT}, {len(self.names)}")
        self.names.append("#" + self.names[self.pend[-1]])
        assert len(self.names) < 63
        a(f"v_accvgpr_write_b32 {R(aST)}, v{tmp}")
        self.pend = []


mk = Marks()


def preg(u, p):
    return WR + (0 if u == NP else 4 * NW + 20 * (u % (NP + 1))) + 4 * p


def kblock(u):
    return 2 * (14 * (u & 1) + (u >> 1))


def decode(a, sT):
    a(f"s_and_b32 s{sA}, s{sT}, 7")
    if FZ.map == 1:
        a(f"s_bfe_u32 s{sRB}, s{sT}, 0x10003")
        a(f"s_lshl1_add_u32 s{sRB}, s{sA}, s{sRB}")
        a(f"s_lshr_b32 s{sMM}, s{sT}, 4")
    else:
        a(f"s_lshr_b32 s{sB}, s{sA}, 1")
        a(f"s_lshl_b32 s{sB}, s{sB}, 2")
        a(f"s_bfe_u32 s{sRB}, s{sT}, {0x20006 if FZ.map == 2 else 0x20003:#x}")
        a(f"s_add_u32 s{sRB}, s{sRB}, s{sB}")
        a(f"s_and_b32 s{sA}, s{sA}, 1")
        a(f"s_lshl_b32 s{sA}, s{sA}, 3")
        a(f"s_bfe_u32 s{sMM}, s{sT}, {0x30003 if FZ.map == 2 else 0x30005:#x}")
        a(f"s_add_u32 s{sMM}, s{sMM}, s{sA}")
    a(f"s_lshl_b32 s{sFL}, s{sRB}, 7")


def begin(a):
    srd_ws(a, SRDF, "FLAG", FLAG_SIZE)
    srd_ws(a, SRDQ, "H", H_SIZE)
    a(f"s_mov_b32 s{sCNT}, 0")
    for k in range(0 if any(f0.FC.po) else 4):
        a(f"v_accvgpr_write_b32 {R(aPO + k)}, -1")
    if Cfg.stamp:
        a(f"v_accvgpr_write_b32 {R(aST)}, 0")


def pre_setup(a, ph, t0, tt):
    if not ph:
        a(f"s_and_b32 s{sA}, s{sMM}, 3")
        a(f"s_cmp_eq_u32 s{sA}, 3")
        a(f"s_cselect_b32 s{sMSK}, 0x40000000, 0")
        a(f"s_lshr_b32 s{sB}, s{sMM}, 3")
        a(f"s_lshl2_add_u32 s{sDC}, s{sB}, s{sA}")
        a(f"s_mul_i32 s{sTB}, s{sMM}, 7")
        a(f"s_lshr_b32 s{sB}, s{sMM}, 2")
        a(f"s_sub_u32 s{sTB}, s{sTB}, s{sB}")
        a(f"s_mul_i32 s{sPK}, s{sW}, {TILE // 4}")
        a(f"s_mul_i32 s{sEB}, s{sW}, {3 * TILE // 4}")
        if HC:
            a(f"s_mul_i32 s{sA}, s{sRB}, {H_GRP - H_STR}")
            a(f"s_add_u32 s{SRDQ}, s{SRDQ}, s{sA}")
            a(f"s_addc_u32 s{SRDQ + 1}, s{SRDQ + 1}, 0")
            a(f"s_lshl4_add_u32 s{SRDQ + 2}, s{sFL}, {216 * H_STR}")
    a(f"s_mul_i32 s{sE}, s{sW}, {(2 if ph else 7) * TILE // 4}")
    a(f"s_add_u32 m0, s{sE}, {TILE}")
    a(f"v_lshlrev_b32 v{vW}, 4, v{vL}")
    a(f"s_mul_i32 s{sA}, s{sTB}, {TILE}")
    a(f"s_add_u32 s{sA}, s{sA}, {WS['W1F'] - TILE}")
    a(f"s_add_u32 s{SRDW}, s{P_WS}, s{sA}")
    a(f"s_addc_u32 s{SRDW + 1}, s{P_WS + 1}, 0")
    a(f"s_and_b32 s{SRDW + 1}, s{SRDW + 1}, 0xffff")
    a(f"s_mov_b32 s{SRDW + 2}, {8 * TILE}")
    a(f"s_cmp_lg_u32 s{sMSK}, 0")
    a(f"s_cselect_b32 s{SRDW + 2}, {7 * TILE}, s{SRDW + 2}")
    a(f"s_mov_b32 s{SRDW + 3}, 0x20000")
    if not ph and FZ.tch & 1:
        a(f"s_and_b32 s{sA}, s{sRB}, 3")
        a(f"s_lshl_b32 s{sA}, s{sA}, 13")
        a(f"v_lshl_add_u32 v{tt}, v{vL}, 7, s{sA}")
        a(f"buffer_load_dword {R(aDUM)}, v{tt}, s[{SRDW}:{SRDW + 3}], m0 offen offset:3072", tag="touch")
    a(f"v_lshrrev_b32 v{vo}, 1, v{vG}")
    a(f"v_and_b32 v{t0}, 1, v{vG}")
    if not ph:
        a(f"v_mad_u32_u24 v{vp}, v{vo}, 14, v{t0}")
        a(f"v_mul_u32_u24 v{vp}, {KB_STR}, v{vp}")
        a(f"v_lshl_add_u32 v{vp}, v{vI}, 4, v{vp}")
        a(f"s_mul_i32 s{sA}, s{sDC}, 1280")
        a(f"s_mul_i32 s{sB}, s{sW}, {54 * KB_STR}")
        a(f"s_add_u32 s{sA}, s{sA}, s{sB}")
        a(f"v_add_u32 v{vp}, s{sA}, v{vp}")
        if FZ.tch & 2:
            a(f"s_add_u32 s{sA}, s{sA}, {2 * KB_STR}")
            a(f"s_and_b32 s{sB}, s{sRB}, 3")
            a(f"s_and_b32 s{sC}, s{sMM}, 4")
            a(f"s_lshl3_add_u32 s{sB}, s{sB}, s{sC}")
            a(f"s_lshl_b32 s{sB}, s{sB}, 4")
            a(f"v_add_u32 v{vtc}, s{sB}, v{vL}")
            a(f"v_mul_u32_u24 v{tt + 1}, 6554, v{vtc}")
            a(f"v_lshrrev_b32 v{tt + 1}, 16, v{tt + 1}")
            a(f"v_mul_u32_u24 v{tt + 1}, {KB_STR - 1280}, v{tt + 1}")
            a(f"v_lshl_add_u32 v{vtc}, v{vtc}, 7, v{tt + 1}")
            a(f"v_add_u32 v{vtc}, s{sA}, v{vtc}")
    a(vstr(vo, vo, H_STR))
    a(f"v_lshl_add_u32 v{vo}, v{vI}, 5, v{vo}")
    a(f"v_lshl_add_u32 v{vo}, v{t0}, 4, v{vo}")
    a(sstr(sA, sTB, 2 * H_STR))
    a(f"s_lshl4_add_u32 s{sA}, s{sFL}, s{sA}")
    a(f"s_lshl_b32 s{sB}, s{sW}, 9")
    a(f"s_add_u32 s{sA}, s{sA}, s{sB}")
    a(f"v_add_u32 v{vo}, s{sA}, v{vo}")
    if ph:
        a(f"s_add_u32 s{SRDP}, s{SRDP}, {WS['W2T'] - WS['WA2']}")
        a(f"s_addc_u32 s{SRDP + 1}, s{SRDP + 1}, 0")
    else:
        a(f"v_add_u32 v{t0}, s{sMSK}, v{vo}")
        srd_ws(a, SRDP, "WA2", 218 * KB_STR)
        a(f"s_add_u32 s{sA}, s{sW}, 1")
        a(f"s_mul_i32 s{sA}, s{sA}, {54 * KB_STR}")
        a(f"s_cmp_eq_u32 s{sW}, 3")
        a(f"s_cselect_b32 s{SRDP + 2}, s{SRDP + 2}, s{sA}")


def rank_put(a, t):
    a(f"s_getreg_b32 s{sB}, {f0.XCC}")
    a(f"s_lshl_b32 s{sB}, s{sB}, 20")
    a(f"s_lshl_b32 s{sA}, s3, 7")
    a(f"s_add_u32 s{sA}, s{sA}, s{sB}")
    a(f"s_add_u32 s{sA}, s{sA}, {DONE}")
    a(f"v_and_b32 v{t + 1}, 7, v{t + 1}")
    a(f"v_lshl_add_u32 v{t + 1}, v{t + 1}, 20, v{t}")
    a(f"v_cmp_gt_u32 vcc, s{sA}, v{t + 1}")
    a(f"s_lshl_b32 s{sB}, s{sW}, 2")
    a(f"v_mov_b32 v{t}, s{sB}")
    a(f"s_bcnt1_i32_b64 s{sA}, vcc")
    a(f"v_mov_b32 v{t + 1}, s{sA}")
    a(f"ds_write_b32 v{t}, v{t + 1} offset:{LDS_RK}")
    a(f"v_mov_b32 v{t}, 0")
    a("s_waitcnt lgkmcnt(0)")


def rank_get(a, t):
    a(f"ds_read_b128 {V(t, 4)}, v{t} offset:{LDS_RK}")
    a(f"v_add_u32 v{t}, v{t}, v{t + 1}")
    a(f"v_add3_u32 v{t}, v{t}, v{t + 2}, v{t + 3}")
    a(f"v_readfirstlane_b32 s{sGA}, v{t}")
    a(f"s_and_b32 s{sA}, s{sGA}, 31")
    a(f"s_bfe_u32 s{sGA}, s{sGA}, 0x30005")
    a(f"s_lshl3_add_u32 s{sGA}, s{sA}, s{sGA}")
    decode(a, sGA if FZ.virt else sT)


def w2_flags(ph):
    return [f"s_mul_i32 s{sOP}, s{sW}, 27",
            f"v_min_u32 v{vd2}, 27, v{vL}",
            f"v_add_u32 v{vd2}, s{sOP}, v{vd2}",
            f"v_sub_u32 v{vd2}, {f0.W2TOP}, v{vd2}",
            f"v_lshlrev_b32 v{vd2}, 7, v{vd2}",
            f"s_mov_b32 s{sOP}, {DONE2 + 4 * ph}",
            f"buffer_load_dword v{vd2}, v{vd2}, s[{SRDF}:{SRDF + 3}], s{sOP} offen sc1"]


def w2_test(a, nm, ph):
    a(f"v_cmp_eq_u32 vcc, 0, v{vd2}")
    a(f"s_cbranch_vccnz {nm}_w2")
    a.label(f"{nm}_w2ok", keep=True)

    def spin():
        a.label(f"{nm}_w2")
        for x in w2_flags(ph):
            a(x)
        budget(a, f"{nm}_w2out")
        a(f"v_cmp_eq_u32 vcc, 0, v{vd2}")
        a(f"s_cbranch_vccnz {nm}_w2")
        a.label(f"{nm}_w2out")
        a("s_waitcnt vmcnt(0)")
        a(f"s_branch {nm}_w2ok")
    a.tail.append(spin)


def front_wait(a, nm, t, between=None):
    f0.lane_blocks(a, t, t + 1, 0)
    ld = f"buffer_load_dword v{t + 1}, v{t}, s[{SRDF}:{SRDF + 3}], 0 offen sc1"
    if between:
        a(ld)
        between()
        a(f"v_accvgpr_read_b32 v{t + 2}, {R(aF)}")
        a.wait_regs(f"v{t + 1}")
        a(f"s_branch {nm}_fwt")
    else:
        a(f"v_accvgpr_read_b32 v{t + 2}, {R(aF)}")
    a.label(f"{nm}_fw")
    a(ld)
    budget(a, f"{nm}_fwok")
    if between:
        a("s_waitcnt vmcnt(0)")
        a.label(f"{nm}_fwt")
    a(f"v_cmp_eq_u32 vcc, v{t + 2}, v{t + 1}")
    if FZ.shrink:
        a(f"s_cbranch_vccz {nm}_fwok")
        a("s_mov_b64 exec, vcc")
        a(f"s_branch {nm}_fw")
    else:
        a(f"s_cbranch_vccnz {nm}_fw")
    a.label(f"{nm}_fwok")
    if FZ.shrink:
        a("s_mov_b64 exec, -1")
    if not between:
        a("s_waitcnt vmcnt(0)")


def pre_ops(ph, t0, nm):
    po, ops = [], []
    for k in range(0 if ph or any(f0.FC.po) else 7):
        po.append([f"s_mov_b32 s{sOQ}, {k * 2 * H_STR}",
                   f"buffer_store_dwordx4 {R(aPO, 4)}, v{t0 if k == 6 else vo}, s[{SRDQ}:{SRDQ + 3}], s{sOQ} offen{FZ.pof}"])
    n = 10 if ph else 35
    for k in range(n):
        g = [f"buffer_load_dwordx4 v{vW}, s[{SRDW}:{SRDW + 3}], m0 offen offset:{(k & 3) * 1024} lds"]
        if k & 3 == 3:
            g.append("s_add_u32 m0, m0, 4096")
        ops.append(g)
    for u in range(FZ.pre_p[ph]):
        for p in range(5):
            g = [f"buffer_load_dwordx4 {R(preg(u, p), 4)}, v{vp}, s[{SRDP}:{SRDP + 3}], s{sOP} offen offset:{p * 256}"]
            ops.append(([f"s_mov_b32 s{sOP}, {kblock(u) * KB_STR}"] if p == 0 else []) + g)
    if not ph:
        k = nm[0] == "n"
        if FZ.tch & 2:
            ops.insert(FZ.t2_at[k], [lambda a: a(
                f"buffer_load_dword {R(aDUM)}, v{vtc}, s[{SRDP}:{SRDP + 3}], 0 offen", tag="touch")])
        ops[FZ.t2_at[k]].insert(0, lambda a: w2_test(a, nm, 0))
        ops.insert(FZ.d2_at[k], w2_flags(0))
    elif f0.FC.t_late:
        ops[n].insert(0, lambda a: w2_test(a, nm, 1))
        ops.insert(FZ.d3_at, w2_flags(1))
    out = []
    for k, op in enumerate(ops):
        out.append(op)
        if k % FZ.po_every == FZ.po_every - 1 and po:
            out.append(po.pop(0))
    assert not po
    return out


class Paced:
    def __init__(self, a, ops, period):
        self.a, self.ops, self.period = a, ops, period
        self.on = False
        self.t = 0

    def burst(self, n):
        for _ in range(min(n, len(self.ops))):
            for x in self.ops.pop(0):
                x(self.a) if callable(x) else self.a(x)

    def __call__(self, text, tag=None):
        self.a(text, tag)
        if self.on:
            op = text.split()[0]
            self.t += 16 if op.startswith("v_mfma") else 8 if op in TRANS else 4
            if self.t >= self.period:
                self.t -= self.period
                self.burst(1)

    def __getattr__(self, n):
        return getattr(self.a, n)


def budget(a, out):
    a(f"s_add_u32 s{sCNT}, s{sCNT}, 1")
    a(f"s_cmp_ge_u32 s{sCNT}, {SPIN_MAX}")
    a(f"s_cbranch_scc1 {out}")


def col_phase(a0, ph):
    vx, vw, vl0, vt0, vh = 4, 5, 6, 12, 13
    raw, ss, wraw = 16, 32, 40
    M1, M2 = 56, 88
    T1, T2 = 120, 136
    ACC, FO, TMP, WU0 = 152, 184, 200, 232
    vmI, fi, fg, fa, fb = 176, 177, 178, 179, 180
    SL = ACC
    FGR = [TMP + 4 * k for k in range(8)] + [ss, ss + 4, 248, 252]
    WU = (WU0, T1)
    nm = f"c{ph + 1}"
    a = Paced(a0, pre_ops(ph, vt0, nm), FZ.period[ph])

    def point(name):
        mk(a0, nm + name)
        if name == FZ.hint_at[ph]:
            a0(f"buffer_store_dword v{vh}, v{vh}, s[{SRDF}:{SRDF + 3}], 0 offen sc1")
        if name == FZ.stop[ph]:
            a.on = False

    a(f"s_mul_i32 s{sB}, s{sW}, 3072")
    a(f"v_lshlrev_b32 v{vl0}, 4, v0")
    a(f"v_add_u32 v{vx}, s{sB}, v{vl0}")
    if not ph:
        a(f"s_lshl_b32 s{sB}, s{sW}, 10")
        a(f"v_add_u32 v{vw}, s{sB}, v{vl0}")
    a(sstr(sF, sT, XP_STR))

    def data_loads(e):
        if ph:
            for k in range(4):
                e(f"buffer_load_dwordx4 {V(raw + 4 * k, 4)}, v{vx}, s[{SRD0}:{SRD0 + 3}], s{sF} offen offset:{k * 1024} sc1")
            for k in range(4):
                e(f"buffer_load_dwordx3 {V(SL + 4 * k, 3)}, v{vx}, s[{SRD1}:{SRD1 + 3}], 0 offen offset:{k * 1024} sc1")
        else:
            for t in range(2):
                e(f"buffer_load_dwordx4 {V(ss + 4 * t, 4)}, v{vw}, s[{SRD1}:{SRD1 + 3}], 0 offen offset:{t * 1024} sc1")
            for k in range(4):
                e(f"buffer_load_dwordx4 {V(raw + 4 * k, 4)}, v{vx}, s[{SRD0}:{SRD0 + 3}], s{sF} offen offset:{k * 1024} sc1")

    def filter_loads():
        for k in range(4):
            a(f"buffer_load_dwordx4 {V(wraw + 4 * k, 4)}, v{vx}, s[{SRD2}:{SRD2 + 3}], s{sF} offen offset:{k * 1024} sc1")

    def ack(n):
        if not ph and n == FZ.ack_at:
            st = f0.post(a0, SRDF, 0, 1, ACC, "s_waitcnt vmcnt(0)", True)
            a0("s_barrier")
            a0(st)
            point("ak")

    def pos(base, k, c):
        return base + (k >> 1) * 4 + (k & 1) * 2 + c

    srd_ws(a, SRD2, "WC", max(WC_SIZE, XP_SIZE))
    if XP_STR != WC_STR:
        op = ("sub", "subb") if XP_STR > WC_STR else ("add", "addc")
        a(f"s_mul_i32 s{sA}, s{sT}, {abs(XP_STR - WC_STR)}")
        a(f"s_{op[0]}_u32 s{SRD2}, s{SRD2}, s{sA}")
        a(f"s_{op[1]}_u32 s{SRD2 + 1}, s{SRD2 + 1}, 0")
    if ph:
        filter_loads()
        point("ld")
    else:
        srd_ws(a, SRD0, "XP0", XP_SIZE)
        srd_ws(a, SRD1, "SS0", SS_SIZE)
    if ph:
        pre_setup(a, ph, vt0, TMP + 8)
    a(f"s_lshl_b32 s{sA}, s3, 7")
    a(f"s_add_u32 s{sA}, s{sA}, {HINT[ph]}")
    a(f"v_lshl_add_u32 v{vh}, v0, 20, s{sA}")
    if ph:
        a("s_barrier")
        a.burst(FZ.burst[ph][0])
    ack(0)
    for kk in (1, 2, 3):
        a(f"v_xor_b32 v{vl0 + kk}, {kk * 1024}, v{vl0}")
    a(f"v_and_b32 v{vmI}, 1, v{vI}")
    a(f"v_mul_u32_u24 v{vmI}, 0x8000, v{vmI}")
    a(f"v_lshl_or_b32 v{vmI}, v{vmI}, 16, v{vmI}")
    a(f"v_cvt_f32_u32 v{fi}, v{vI}")
    a(f"v_lshlrev_b32 v{fg}, 2, v{vG}")
    a(f"v_cvt_f32_u32 v{fg}, v{fg}")

    def m1(qb, t, var):
        return M1 + ((qb * 2 + t) * 2 + var) * 4

    def m2(kk, var):
        return M2 + (kk * 2 + var) * 4

    a(f"v_mul_f32 v{fa}, {fx(1 / 32)}, v{fi}")
    a(f"v_mul_f32 v{TMP}, v{fg}, v{fa}")
    for jj in range(1, 4):
        a(f"v_fmamk_f32 v{TMP + 3 * jj}, v{fa}, {fx(float(jj))}, v{TMP}")
    for jj in range(4):
        t = TMP + 3 * jj
        a(f"v_cos_f32 v{t + 1}, v{t}")
        a(f"v_sin_f32 v{t + 2}, v{t}")
    for jj in range(4):
        t = TMP + 3 * jj
        n = "-" if jj & 1 else ""
        m = "" if jj & 1 else "-"
        a(f"v_cvt_pk_bf16_f32 v{m1(0, 0, 0) + jj}, v{t + 1}, v{t + 2}")
        a(f"v_cvt_pk_bf16_f32 v{m1(0, 0, 1) + jj}, -v{t + 2}, v{t + 1}")
        a(f"v_cvt_pk_bf16_f32 v{m1(1, 0, 0) + jj}, {n}v{t + 1}, {n}v{t + 2}")
        a(f"v_cvt_pk_bf16_f32 v{m1(1, 0, 1) + jj}, {m}v{t + 2}, {n}v{t + 1}")
    for qb in range(2):
        for var in range(2):
            for jj in range(4):
                a(f"v_xor_b32 v{m1(qb, 1, var) + jj}, v{vmI}, v{m1(qb, 0, var) + jj}")
    ack(1)

    a(f"s_lshl_b32 s{sK0}, s{sW}, 4")
    a(f"v_cvt_f32_u32 v{fb}, s{sK0}")
    a(f"v_add_f32 v{TMP + 24}, v{fb}, v{fg}")
    a(f"v_add_f32 v{fb}, v{fb}, v{fi}")
    a(f"v_mul_f32 v{TMP + 25}, {fx(1 / 2048)}, v{fi}")
    a(f"v_add_f32 v{TMP + 26}, {fx(16 / 2048)}, v{TMP + 25}")
    for r in range(4):
        a(f"v_add_f32 v{TMP + r}, {fx(float(r))}, v{TMP + 24}")
    for qb in range(2):
        for r in range(4):
            t = TMP + 4 + (qb * 4 + r)
            a(f"v_mul_f32 v{t}, v{TMP + r}, v{TMP + 25 + qb}")
            a(f"v_cos_f32 v{T1 + qb * 8 + r}, v{t}")
            a(f"v_sin_f32 v{T1 + qb * 8 + 4 + r}, v{t}")
    ack(2)

    a(f"v_mul_f32 v{fa}, {fx(1 / 64)}, v{fb}")
    a(f"s_xor_b32 s{sK0}, s{sK0}, 16")
    a(f"v_cvt_f32_u32 v{TMP + 24}, s{sK0}")
    a(f"v_add_f32 v{TMP + 24}, v{TMP + 24}, v{fg}")
    for kk in range(2):
        for r in range(4):
            t = TMP + 12 + 3 * r
            if kk == 0:
                a(f"v_mul_f32 v{t}, v{TMP + r}, v{fa}")
            else:
                a(f"v_add_f32 v{t}, {fx(float(r))}, v{TMP + 24}")
                a(f"v_mul_f32 v{t}, v{t}, v{fa}")
            a(f"v_cos_f32 v{t + 1}, v{t}")
            a(f"v_sin_f32 v{t + 2}, v{t}")
        for r in range(4):
            t = TMP + 12 + 3 * r
            a(f"v_cvt_pk_bf16_f32 v{m2(kk, 0) + r}, v{t + 1}, v{t + 2}")
            a(f"v_cvt_pk_bf16_f32 v{m2(kk, 1) + r}, -v{t + 2}, v{t + 1}")
    for kk in range(2):
        for var in range(2):
            for r in range(4):
                a(f"v_xor_b32 v{m2(kk + 2, var) + r}, v{vmI}, v{m2(kk, var) + r}")

    ack(3)
    if not ph:
        point("cs")
        st = f0.post(a0, SRDF, 0, 2, ACC)
        front_wait(a0, nm, TMP)
        point("dr")
        data_loads(a)
        filter_loads()
        rank_put(a, TMP)
        point("rp")
        a("s_barrier")
        point("rb")
        a(st)
        rank_get(a, TMP)
        pre_setup(a, ph, vt0, TMP + 8)
        point("ru")
        a.burst(FZ.burst[ph][1])
        point("rv")
        mk.stash(a0, TMP)
        a.on = True
    else:
        point("cs")
        if FZ.post:
            a(f"v_lshlrev_b32 v{TMP}, 7, v0")
            a(f"v_add_u32 v{TMP}, {POST}, v{TMP}")
            a0.label(f"{nm}_poll")
            a0(f"buffer_load_dword v{TMP + 1}, v{TMP}, s[{SRDF}:{SRDF + 3}], 0 offen sc1")
            budget(a0, f"{nm}_seen")
            a0(f"v_cmp_eq_u32 vcc, 0, v{TMP + 1}")
            a0(f"s_cbranch_vccnz {nm}_poll")
            a0.label(f"{nm}_seen")
            a0("s_waitcnt vmcnt(0)")
        else:
            a.wait_tag("out")
        point("dr")
        if FZ.halt == 25:
            mk.stash(a0, TMP)
            return 0
        data_loads(a)
        a.burst(FZ.burst[ph][1])
        mk.stash(a0, TMP)

    a(f"v_mul_f32 v{fa}, {fx(1 / 2048)}, v{fb}")
    a(f"v_mul_f32 v{TMP}, v{fg}, v{fa}")
    for k in range(1, 8):
        a(f"v_fmamk_f32 v{TMP + k}, v{fa}, {fx(float(16 * (k >> 2) + (k & 3)))}, v{TMP}")
    for k in range(8):
        u, r = divmod(k, 4)
        a(f"v_cos_f32 v{T2 + u * 8 + r}, v{TMP + k}")
        a(f"v_sin_f32 v{T2 + u * 8 + 4 + r}, v{TMP + k}")

    a0(f"s_mov_b32 s{sK1}, 0xffff0000")
    a0(f"s_cmp_eq_u32 s{sT}, 0")
    a0(f"s_cselect_b32 s{sK2}, 0, s{sK1}")
    a0(f"s_mov_b32 s{sK0}, {fx(-1 / 2048)}")
    a0(f"s_cselect_b32 s{sK3}, 0, s{sK0}")
    a(f"s_mov_b32 s{sA}, {fx(1 / DM)}")
    a(f"s_mov_b32 s{sB}, {fx(1 / 2048)}")
    a(f"s_mov_b32 s{sC}, {UP[ph] * 0x800080:#x}")
    a(f"v_mov_b32 v{fa}, {fx(1e-5)}")
    point("k")
    if ph:
        def test(e):
            e(f"v_max3_f32 v{fi}, |v{raw}|, |v{raw + 2}|, |v{raw + 4}|")
            e(f"v_max3_f32 v{fb}, |v{raw + 6}|, |v{raw + 8}|, |v{raw + 10}|")
            e(f"v_max3_f32 v{fi}, v{fi}, |v{raw + 12}|, |v{raw + 14}|")
            e(f"v_max_f32 v{fi}, v{fi}, v{fb}")
            e(f"v_min3_f32 v{fg}, v{SL + 2}, v{SL + 6}, v{SL + 10}")
            e(f"v_min_f32 v{fg}, v{fg}, v{SL + 14}")
            e(f"v_fmamk_f32 v{fg}, v{fi}, {fx(-8 / T_X[0])}, v{fg}")
            e(f"v_cmp_gt_f32 vcc, {fx(7.5)}, v{fg}")

        def var_ops(e):
            for k in range(8):
                e(f"v_fma_f32 v{ss + k}, v{SL + 4 * (k >> 1) + (k & 1)}, s{sA}, v{fa}")

        test(a0)
        var_ops(a0)
        a0(f"s_cbranch_vccnz {nm}_again", tag="nopad")
        a0.label(f"{nm}_ok", keep=True)

        def again():
            a0.label(f"{nm}_again")
            budget(a0, f"{nm}_ok")
            data_loads(a0)
            a0("s_waitcnt vmcnt(0)")
            test(a0)
            var_ops(a0)
            a0(f"s_cbranch_vccnz {nm}_again")
            a0(f"s_branch {nm}_ok")
        a0.tail.append(again)
        a.on = True
    else:
        for k in range(8):
            a(f"v_fma_f32 v{ss + k}, v{ss + k}, s{sA}, v{fa}")
    for k in range(8):
        a(f"v_rsq_f32 v{ss + k}, v{ss + k}")

    def acc(c, b, var):
        return ACC + c * 16 + (b * 2 + var) * 4

    def fo(c, b):
        return FO + c * 8 + b * 4

    def unpack(dst_, base, c, mask):
        ops = []
        for k in range(8):
            ops.append(f"v_lshlrev_b32 v{dst_ + 2 * k}, 16, v{pos(base, k, c)}")
            ops.append(f"v_and_b32 v{dst_ + 2 * k + 1}, s{mask}, v{pos(base, k, c)}")
        return ops

    def unpack_w(c):
        ops = []
        for k in range(8):
            u, r = divmod(k, 4)
            ops.append(f"v_lshlrev_b32 v{WU[c] + u * 8 + r}, 16, v{pos(wraw, k, c)}")
            ops.append(f"v_and_b32 v{WU[c] + u * 8 + 4 + r}, s{sK1}, v{pos(wraw, k, c)}")
        return ops

    def scale(c):
        t = TMP + 16 * c
        for k in range(8):
            h = k & 1
            a(f"v_pk_mul_f32 {V(t + 2 * k, 2)}, {V(t + 2 * k, 2)}, {V(ss + k - h, 2)} op_sel:[0,{h}] op_sel_hi:[1,{h}]")
        for k in range(8):
            a(f"v_cvt_pk_bf16_f32 v{fo(c, 0) + k}, v{t + 2 * k}, v{t + 2 * k + 1}")

    sc = Sched(a)

    def stage_a(c):
        for t in range(2):
            for qb in range(2):
                for var in range(2):
                    sc.mfma(acc(c, qb, var), fo(c, t), m1(qb, t, var), None if t == 0 else acc(c, qb, var))
        sc.flush()

    for op in unpack(TMP, raw, 0, sK2):
        a(op)
    scale(0)
    point("s0")
    for op in unpack(TMP + 16, raw, 1, sK1):
        sc.add(op)
    stage_a(0)
    scale(1)
    for op in unpack_w(0):
        sc.add(op)
    stage_a(1)
    point("a")

    def mm(c, b, var, f, kk, data_is_a):
        cc = None if kk == 0 else acc(c, b, var)
        if data_is_a:
            sc.mfma(acc(c, b, var), f, m2(kk, var), cc)
        else:
            sc.mfma(acc(c, b, var), m2(kk, var), f, cc)

    def exchange(n, data_is_a, cm, fill_own, fill_rest):
        for c in range(2):
            for b in range(2):
                cm(c, b)
                if n == 2 and c == b == 0:
                    a("s_barrier")
                a(f"ds_write_b128 v{vl0}, {V(fo(c, b), 4)} offset:{(c * 2 + b) * 4096}")
        a("s_waitcnt lgkmcnt(0)")
        a("s_barrier")
        point(f"b{n}")
        for c in range(2):
            for kk in (1, 2, 3):
                for b in range(2):
                    f = FGR[(c * 3 + kk - 1) * 2 + b]
                    a(f"ds_read_b128 {R(f, 4)}, v{vl0 + kk} offset:{(c * 2 + b) * 4096}")
        for op in fill_own:
            sc.add(op)
        for c in range(2):
            for b in range(2):
                for var in range(2):
                    mm(c, b, var, fo(c, b), 0, data_is_a)
        for op in fill_rest:
            sc.add(op)
        for c in range(2):
            for kk in (1, 2, 3):
                for b in range(2):
                    for var in range(2):
                        mm(c, b, var, FGR[(c * 3 + kk - 1) * 2 + b], kk, data_is_a)
        sc.flush()
        point(f"x{n}")

    def cm1(c, b):
        cmul_pack(a, fo(c, b), acc(c, b, 0), acc(c, b, 1), T1 + b * 8, T1 + b * 8 + 4, TMP + 8 * (2 * c + b))

    def cm2(c, b):
        cmul_pack(a, fo(c, b), acc(c, b, 0), acc(c, b, 1), WU[c] + b * 8, WU[c] + b * 8 + 4, TMP + 8 * (2 * c + b),
                  conj_w=True)

    exchange(1, False, cm1, unpack_w(1), [])
    exchange(2, True, cm2, unpack(WU[0], raw, 0, sK1), unpack(WU[1], raw, 1, sK1))
    for c in range(2):
        for u in range(2):
            cmul_pack(a, fo(c, u), acc(c, u, 0), acc(c, u, 1), T2 + u * 8, T2 + u * 8 + 4, TMP + 8 * (2 * c + u))
    while any(not callable(x) and (" lds" in x or "store" in x) for g in a.ops for x in g):
        a.burst(1)
    a.on = False
    for t in range(2):
        for c in range(2):
            for u in range(2):
                for var in range(2):
                    sc.mfma(acc(c, t, var), m1(t, u, var), fo(c, u), None if u == 0 else acc(c, t, var))
        rdy = sc.n + 2
        for rh in range(2):
            for c in range(2):
                for rl in range(2):
                    k = 4 * t + 2 * rh + rl
                    w = WU[c] + 2 * k
                    sc.add(f"v_fma_f32 v{w}, v{acc(c, t, 0) + 2 * rh + rl}, s{sB}, v{w}", rdy)
                    sc.add(f"v_fma_f32 v{w + 1}, v{acc(c, t, 1) + 2 * rh + rl}, s{sK0 if c else sK3}, v{w + 1}", rdy)
            for c in range(2):
                for rl in range(2):
                    k = 4 * t + 2 * rh + rl
                    w = WU[c] + 2 * k
                    sc.add(f"v_cvt_pk_bf16_f32 v{pos(raw, k, c)}, v{w}, v{w + 1}", rdy)
            k = 2 * t + rh
            for j in range(4):
                sc.add(f"v_add_u32 v{raw + 4 * k + j}, s{sC}, v{raw + 4 * k + j}", rdy)
            sc.add(f"buffer_store_dwordx4 {V(raw + 4 * k, 4)}, v{vx}, s[{SRD0}:{SRD0 + 3}], s{sF} offen offset:{k * 1024} sc1", rdy)
    sc.flush()
    point("st")
    n = len(a.ops)
    print(f"{nm}: {n} requests after the stores", file=sys.stderr)
    a.burst(n)
    mk.stash(a0, TMP)
    return n


def idle_phase(a, ph):
    nm = f"n{ph + 1}"
    vt0, vh = 12, 13
    if not ph:
        srd_ws(a, SRD0, "XP0", XP_SIZE)
    if FZ.ft_pf >> (1 - ph) & 1:
        srd_table(a, SRD1, "ft2")
        a(f"s_and_b32 s{sA}, s{sRB}, 3")
        a(f"s_and_b32 s{sB}, s{sMM}, 7")
        a(f"s_lshl3_add_u32 s{sA}, s{sA}, s{sB}")
        a(f"s_sub_u32 s{sA}, 31, s{sA}")
        a(f"s_mul_i32 s{sA}, s{sA}, {3 << 15}")
        a(f"v_lshl_add_u32 v{vh}, v0, 7, s{sA}")
        for k in range(3):
            a(f"s_mov_b32 s{sOP}, {k << 15}")
            a.raw(f"    buffer_load_dword {R(aDUM)}, v{vh}, s[{SRD1}:{SRD1 + 3}], s{sOP} offen")
    if ph:
        pre_setup(a, ph, vt0, 28)
    else:
        sts = []

        def ack():
            st = f0.post(a, SRDF, 0, 1, 20, f"s_waitcnt vmcnt({FZ.p_early})", True)
            a("s_barrier")
            a(st)
            mk(a, nm + "ak")
            sts.append(f0.post(a, SRDF, 0, 2, 24))
        if not FZ.p_early:
            ack()
        front_wait(a, nm, 16, ack if FZ.p_early else None)
        st = sts[0]
        mk(a, nm + "dr")
        rank_put(a, 16)
    a("s_barrier")
    if not ph:
        a(st)
        rank_get(a, 16)
        pre_setup(a, ph, vt0, 28)
    ops = pre_ops(ph, vt0, nm)
    he = FZ.h_early[ph]
    ld = f"buffer_load_dword v{vt0}, v{vh}, s[{SRDF}:{SRDF + 3}], s{sOQ} offen sc1"
    if he:
        ops.insert(len(ops) - he, [f"s_mul_i32 s{sOQ}, s{sW}, {40 * 128}",
                                   f"s_add_u32 s{sOQ}, s{sOQ}, {HINT[ph]}",
                                   f"v_min_u32 v{vh}, 39, v{vL}",
                                   f"v_lshlrev_b32 v{vh}, 7, v{vh}", ld])
    for g in ops:
        for x in g:
            x(a) if callable(x) else a(x)
    mk(a, nm + "is")
    if he:
        a(f"v_cmp_eq_u32 vcc, 0, v{vt0}")
        a(f"s_cbranch_vccz {nm}_ok")
    else:
        a(f"v_mul_u32_u24 v{vh}, 5, v{vL}")
        a(f"v_lshrrev_b32 v{vh}, 1, v{vh}")
        a(f"v_lshlrev_b32 v{vh}, 7, v{vh}")
        a(f"s_mov_b32 s{sOQ}, {HINT[ph]}")
        a("s_waitcnt vmcnt(0)")
        mk(a, nm + "dn")
        mk.stash(a, 16)
        if FZ.halt == 25 and ph:
            return
        a(f"s_cmp_lg_u32 s{sW}, 0")
        a(f"s_cbranch_scc1 {nm}_ok")
    a.label(f"{nm}_spin")
    a(ld)
    budget(a, f"{nm}_ok")
    a(f"v_cmp_eq_u32 vcc, 0, v{vt0}")
    a(f"s_cbranch_vccnz {nm}_spin")
    a.label(f"{nm}_ok")
    if he:
        mk(a, nm + "dn")
        mk.stash(a, 16)
    a("s_barrier")


def classify(text):
    o = text.split()[0]
    if o.startswith("v_pk_") or o.startswith("v_dot2"):
        return "p", 4
    if o in TRANS or o.startswith("v_swap") or o.startswith("v_permlane"):
        return "v", 8
    if o.startswith("v_"):
        return "v", 4
    if o.startswith("ds_"):
        return "d", 4
    if o.startswith("buffer_"):
        return "b", 4
    if o.startswith("s_cbranch"):
        return "j", 10
    return "s", 4


class Item:
    def __init__(self, kind, cost, fn, key=None, gate=None, until=None, alt=None):
        self.kind, self.cost, self.fn, self.key, self.gate, self.until, self.alt = kind, cost, fn, key, gate, until, alt


class Slots:
    def __init__(self, a):
        self.a = a
        self.t, self.tM, self.tv, self.tc = 0, -100, -100, -100
        self.done, self.eta = {}, {}
        self.C, self.L, self.M, self.G = [], [], [], []
        self.fly = []
        self.feed = []
        self.pk = True
        self.stall = 0

    def item(self, op, key=None, gate=None, tag=None):
        k, c = classify(op)

        def fn():
            if op.startswith("v_cmp"):
                self.tc = self.t
            self.a(op, tag=tag)
        return Item(k, c, fn, key, gate)

    def mem(self, key, store=False, part=1.0):
        last = self.fly[-1] if self.fly else 0
        self.fly.append(max(self.t + FZ.lat, last + part * (FZ.srow if store else FZ.row)))
        self.eta[key] = self.fly[-1]
        if FZ.verbose:
            print(f"  {self.t:6.0f} issue {key} eta {self.fly[-1]:.0f} fly {self.inflight()}", file=sys.stderr)

    def inflight(self):
        return sum(1 for x in self.fly[-FZ.cap - 4:] if x > self.t)

    def run(self, it):
        if it.kind in "db":
            self.t = max(self.t, self.tv + 12)
        elif it.kind == "p":
            self.t = max(self.t, self.tM + 28)
        elif it.kind == "j":
            self.t = max(self.t, self.tc + 26)
        if it.kind in "vp":
            self.tv = self.t
        it.fn()
        self.t += it.cost
        if it.until is not None and self.eta.get(it.until, 0) > self.t:
            self.stall += self.eta[it.until] - self.t
            if FZ.verbose:
                print(f"  {self.t:6.0f} STALL {it.until} {self.eta[it.until] - self.t:.0f}", file=sys.stderr)
            self.t = self.eta[it.until]
        if it.key is not None:
            self.done[it.key] = self.t

    def ready(self, it):
        if it.kind == "j" and self.t < self.tc + 26:
            return False
        return it.gate is None or it.gate()

    def expand(self):
        while self.G and self.G[0].kind == "p" and not self.pk and self.G[0].alt:
            self.G[:1] = self.G[0].alt

    def heads(self, q, room, small):
        out = []
        for it in q:
            if it.kind == "p" or not self.ready(it) or it.cost > room or small and it.cost > 4:
                break
            if it.kind in "db" and any(x.kind == "v" for x in out) or it.kind == "j" and out:
                break
            out.append(it)
            room -= it.cost
        return out

    def place(self, picks):
        seqs = []
        for q, n in picks:
            seqs.append(q[:n])
            del q[:n]
        rank = lambda s: 0 if any(x.kind in "db" for x in s) else 2 if any(x.kind == "v" for x in s) else 1
        seqs.sort(key=lambda s: (rank(s), any(x.kind == "v" or x.until is not None for x in s)))
        for s in seqs:
            for it in s:
                self.run(it)

    def fill(self, room, streams, small=False):
        picks = []
        for q in streams:
            h = self.heads(q, room, small)
            if h:
                picks.append((q, len(h)))
                room -= sum(x.cost for x in h)
        return picks, room

    def mf(self, d, x, y, c, wait=None, urgent=False):
        self.t = self.tM = max(self.t, self.tM + 16)
        mfma(self.a, d, x, y, c)
        self.t += 8
        for f in self.feed:
            f()
        self.expand()
        W = [wait] if wait else []
        n = next((k for k, it in enumerate(self.G[:5]) if it.kind == "p"), None)
        if n is not None and self.pk:
            pre = self.G[:n + 1]
            cost = sum(x.cost for x in pre[:-1])
            if cost <= 16 and all(self.ready(x) and x.kind in "vps" for x in pre):
                picks, room = self.fill(20 - cost, (W, self.C, self.L, self.M), small=True)
                self.place(picks)
                while self.G and (n > 0 or self.G[0].kind == "p" and self.ready(self.G[0])):
                    self.run(self.G.pop(0))
                    n -= 1
                if self.G and self.G[0].kind in "vs" and self.G[0].until is None and self.ready(self.G[0]):
                    self.run(self.G.pop(0))
                else:
                    self.t += 4
                return
        if not W and self.C and self.C[0].cost >= 8 and self.ready(self.C[0]):
            self.run(self.C.pop(0))
            return
        picks, room = self.fill(8, (W, self.C, self.L, self.M, self.G), small=True)
        must = W or urgent or any(q is self.C for q, _ in picks)
        if room and not must and self.G and self.G[0].cost == 8 and self.ready(self.G[0]):
            self.run(self.G.pop(0))
            return
        self.place(picks)

    def need(self, key):
        while key not in self.done:
            q = next(q for q in (self.C, self.L, self.M, self.G) if any(it.key == key for it in q))
            self.run(q.pop(0))

    def pure(self, key):
        while key not in self.done:
            it = self.G.pop(0)
            self.run(it)
            if it.cost == 8:
                for f in self.feed:
                    f()
                picks, _ = self.fill(8, (self.M, self.L, self.C), small=True)
                self.place(picks)

    def flush(self):
        for q in (self.L, self.M, self.C, self.G):
            while q:
                self.run(q.pop(0))


def mlp_phase(a, final, behind):
    name = f"m{final + 1}"
    vx, vl0, vx2, vck, ve, vfl = 4, 5, 8, 9, 12, 14
    vq = (13, 4, 8, 10)
    X, ACC1, Z, vpl, vmk, CC = 16, 176, 232, 248, 249, 250
    GR, T = Z, Z + 8
    ACC2, EACC = 96, 176
    DIAG = (4, 6, 30, 70)
    sKC, sRS = sK0, sK2
    vo2, vs, vout, vor, vrd, vpk = 200, 201, 202, 203, 204, 205
    vred = (5, 6, 7)
    RES, RU, TMP = 208, 218, 244
    QS = (16, 32, 48, 64, 80, 176)
    QD = len(QS)
    SRDX, SRDH = SRD0, SRD3
    s = Slots(a)
    done = s.done
    act = {}
    log, sst, tested = [], {}, set()

    def fine(*key):
        if FZ.verbose:
            print(f"{s.t:6.0f} {key}", file=sys.stderr)
        if FZ.marks is not None:
            mk(a, name + key[0] + str(key[1]))
        for f in act.pop(key, ()):
            f()

    def at(key, f):
        act.setdefault(tuple(key), []).append(f)

    def note(tag):
        mk(a, name + tag)
        print(f"{name}{tag:4s} t={s.t:6.0f} stall={s.stall:.0f}", file=sys.stderr)

    def qreg(u, q):
        return QS[u % QD] + 4 * q

    def put(q, op, key=None, gate=None):
        q.append(s.item(op, key, gate))

    def vm(q, text, sreg=None, sexp=None, key=None, tag=None, again=True, gate=None, part=1.0, first=" sc1", m0=None):
        if m0 is not None and sst.get("m0") != m0:
            put(q, m0, gate=gate)
            sst["m0"] = m0
        if sreg is not None and sst.get(sreg) != sexp:
            put(q, sexp.replace("@", f"s{sreg}"), gate=gate)
            sst[sreg] = sexp

        def emit():
            a(text.replace("@", f"s{sreg}").replace(" sc1", first), tag=tag)
            log.append((key, text if again else None, sexp))
            s.mem(key, "store" in text, part)
        q.append(Item("b", 4, emit, key, gate))

    def wait_item(key, regs):
        return Item("s", 4, lambda: a.wait_regs(*regs), until=key)

    def lower(regs, thr):
        ops, r = [], [f"|v{x}|" for x in regs]
        while len(r) > 1:
            n = min(3, len(r))
            ops.append(f"{'v_min3_f32' if n == 3 else 'v_min_f32_e64'} v{vck}, " + ", ".join(r[:n]))
            r[:n] = [f"v{vck}"]
        return ops + [f"v_cmp_gt_f32 vcc, {fx(thr)}, v{vck}"]

    def unset(regs):
        ops, r = [], [f"v{x}" for x in regs]
        if len(r) > 2:
            n = len(r) - 1
            ops.append(f"{'v_max3_u32' if n == 3 else 'v_max_u32'} v{vck}, " + ", ".join(r[:n]))
            r[:n] = [f"v{vck}"]
        return ops + [f"v_cmp_u_f32 vcc, {r[0]}, {r[1]}"]

    def verify(keys, regs, test, lab, key):
        for k in keys:
            plan(k)

        def branch():
            idx = [k for k, e in enumerate(log) if e[0] in keys]
            rep = log[idx[0]:]
            assert len(idx) == len(keys) and not tested & {e[0] for e in rep}, lab
            tested.update(keys)
            young = len(log) - 1 - idx[-1]
            a(f"s_cbranch_vccnz {lab}_again", tag="nopad")
            a.label(f"{lab}_ok", keep=True)

            def stub():
                a.label(f"{lab}_again")
                a("s_nop 7")
                budget(a, f"{lab}_out")
                a(f"s_waitcnt vmcnt({max(0, 62 - len(rep))})")
                last = None
                for _, text, sexp in rep:
                    if text is None:
                        a.raw(f"    buffer_load_dword {R(aDUM)}, off, s[{SRDP}:{SRDP + 3}], 0")
                        continue
                    if sexp is not None and sexp != last:
                        a(sexp.replace("@", f"s{sRP}"))
                        last = sexp
                    a.raw("    " + text.replace("@", f"s{sRP}"))
                a(f"s_waitcnt vmcnt({young})")
                for x in test:
                    a(x)
                a(f"s_cbranch_vccnz {lab}_again")
                a.label(f"{lab}_out")
                a(f"s_branch {lab}_ok")
            a.tail.append(stub)
        w = wait_item(keys[-1], [V(r, 4) for r in regs])
        f0 = w.fn
        w.fn = lambda: ([s.need(k) for k in keys], f0())
        w.gate = lambda: all(k in done for k in keys)
        s.C.append(w)
        for x in test:
            put(s.C, x)
        s.C.append(Item("j", 10, branch, key))

    def xr(t, st):
        return X + t * 8 + st * 4

    def acc(ft, st):
        return ACC1 + (ft * 2 + st) * 4

    queue, sched = [], set()

    def x_load(t, h):
        return ("x", t, h), lambda key: vm(
            s.M, f"buffer_load_dwordx4 {V(xr(t, h), 4)}, v{vx2 if h else vx}, s[{SRDX}:{SRDX + 3}], @ offen sc1",
            sOQ, f"s_mov_b32 @, {8 * (19 - t) * XP_STR}", key, first=FZ.xf[final])

    def e_load(j):
        return ("e", j), lambda key: vm(
            s.M, f"buffer_load_dwordx4 v{vl0}, s[{SRD4}:{SRD4 + 3}], m0 offen offset:{(j & 3) * 1024} lds",
            key=key, tag="e", again=False, m0=f"s_add_u32 m0, s{sEB}, {2 * TILE + (j >> 2) * 4096}")

    def k_load(u, p):
        return ("k", u, p), lambda key: vm(
            s.M, f"buffer_load_dwordx4 v{vp}, s[{SRDP}:{SRDP + 3}], @ offen offset:{p * 256} lds",
            sF, f"s_mov_b32 @, {kblock(u) * KB_STR}", key, tag=f"k{u}", again=False,
            m0=f"s_add_u32 m0, s{sPK}, {(u - NP) * TILE + p * 768}")

    def p_load(u, p):
        return ("p", u, p), lambda key: vm(
            s.M, f"buffer_load_dwordx4 {R(preg(u, p), 4)}, v{vp}, s[{SRDP}:{SRDP + 3}], @ offen offset:{p * 256}",
            sF, f"s_mov_b32 @, {kblock(u) * KB_STR}", key)

    def q_load(u, q):
        return ("q", u, q), lambda key: vm(
            s.M, f"buffer_load_dwordx4 {V(qreg(u, q), 4)}, v{vq[q]}, s[{SRDQ}:{SRDQ + 3}], @ offen sc1",
            sOQ, f"s_mov_b32 @, {kblock(u) * H_STR}", key, first=FZ.qf[final])

    def r_load(p):
        srd_ = SRD2 if final else SRDX
        return ("r", p), lambda key: vm(
            s.M, f"buffer_load_dwordx2 {V(RES + 2 * p, 2)}, v{vo2}, s[{srd_}:{srd_ + 3}], @ offen sc1",
            sOP, f"s_mov_b32 @, {p * 4 * XP_STR}", key, part=0.6)

    def push(item, *gates, after=None, chain=None):
        queue.append((item[0], item[1], gates, after, chain))

    def issue(force=False):
        seen = set()
        for k, (key, f, gates, after, chain) in enumerate(queue):
            ok = all(g in done for g in gates) and chain not in seen
            if ok and after and not force:
                ok = done[after[0]] + after[1] <= s.t
            if ok:
                del queue[k]
                f(key)
                sched.add(key)
                return True
            if chain:
                seen.add(chain)
        return False

    def plan(key):
        while key not in sched:
            assert issue(True), key

    def feed_m():
        if not any(it.kind == "b" for it in s.M) and s.inflight() < FZ.cap:
            issue()
    s.feed.append(feed_m)

    KT = FZ.ktail
    units = [[(u, q) for q in range(4)] for u in range(NS - KT)]
    if FZ.split0:
        units[:1] = [units[0][:2], units[0][2:]]
    units += [[(u, q) for u in range(NS - KT, NS)] for q in (1, 2, 3, 0)]
    xorder = list(range(FZ.dbl[0] + 1)) + [19] + list(range(FZ.dbl[0] + 1, 19))
    for t in xorder:
        push(x_load(t, 0))
        push(x_load(t, 1))
    if not final and f0.FC.t_late:
        for j in range(5):
            push((("t", j), lambda key, j=j: vm(
                s.M, f"buffer_store_dwordx4 {R(f0.aTR + 4 * j, 4)}, v{vl0}, s[{SRD4}:{SRD4 + 3}], @ offen offset:{(j & 1) * 2048} sc1",
                sF, f"s_mov_b32 @, {(j >> 1) * 4096}", key, again=False)), *FZ.t_gate)
    if final:
        for j in range(15):
            push(e_load(j), "ebar")
    for u in range(FZ.pre_p[final]):
        for p in range(5):
            done[("p", u, p)] = 0
            sched.add(("p", u, p))
    pushed = set(range(FZ.pre_p[final]))
    parked = set(range(NP, NP + FZ.park[final]))

    def push_p(u):
        if u < NS and u not in pushed:
            pushed.add(u)
            for p in range(5):
                if u in parked:
                    push(k_load(u, p), "xok" if u == NP else "ebar")
                else:
                    push(p_load(u, p), *([("t", 4)] if u == 10 and not final and f0.FC.t_late else []), *(["xok"] if u < NP else [("xfree", 19)] if u == NP else [("qfree", u - NP - 1, 3)]))

    for u, q in [x for un in units for x in un]:
        for k in range(FZ.p_lead[final] + 1):
            push_p(u + k)
        if (u, q) == (NS - KT, FZ.r_q):
            for p in range(5):
                push(r_load(p), "rgo")
        g = ["qset", ("gelu", u >> 1)] + ([] if final else ["ready"])
        if u >= QD:
            g.append(("qfree", u - QD, q))
        elif u < 5:
            g.append(("xfree", 2 * u + (q >> 1)))
        else:
            g.append("edone" if final else ("s5", 1))
        push(q_load(u, q), *g, after=(("gelu", u >> 1), FZ.qdel[final]), chain="q")

    a(f"s_lshl_b32 s{sC}, s{sRB}, 10")
    a(f"s_lshl_b32 s{sA}, s{sW}, 8")
    a(f"s_add_u32 s{sC}, s{sC}, s{sA}")
    a(vstr(vx, vG, 2 * XP_STR))
    a(f"v_lshl_add_u32 v{vx}, v{vI}, 4, v{vx}")
    a(f"v_add_u32 v{vx}, s{sC}, v{vx}")
    a(f"v_add_u32 v{vx2}, {XP_STR}, v{vx}")
    a(f"v_lshlrev_b32 v{vl0}, 4, v{vL}")
    a(f"v_add_u32 v{vl0 + 1}, 0x10000, v{vl0}")
    a(f"v_add_u32 v{vl0 + 2}, 0x20000, v{vl0}")
    a(f"s_mov_b64 s[{SRDH}:{SRDH + 1}], s[{SRDQ}:{SRDQ + 1}]")
    a(f"s_lshl4_add_u32 s{SRDH + 2}, s{sFL}, {216 * H_STR}" if HC else f"s_mov_b32 s{SRDH + 2}, {H_SIZE}")
    a(f"s_mov_b32 s{SRDH + 3}, 0x20000")
    a(f"v_cmp_eq_u32 vcc, 0, v{vG}")
    a(f"v_mov_b32 v{vmk}, 0xffff0000")
    a(f"v_cndmask_b32 v{vmk}, 0, v{vmk}, vcc")
    for r in range(4):
        m = 0x1000010000100001 << r
        a(f"s_mov_b32 s{DIAG[r]}, {m & 0xffffffff:#x}")
        a(f"s_mov_b32 s{DIAG[r] + 1}, {m >> 32:#x}")
    a(f"s_bfe_u32 s{sA}, s{sMM}, 0x10002")
    a(f"s_lshl_b32 s{sA}, s{sA}, 6")
    a(f"s_add_u32 s{sCQ}, s{sFL}, s{sA}")
    a(f"s_lshl4_add_u32 s{sD}, s{sW}, s{sCQ}")
    a(f"s_mul_i32 s{sA}, s{sW}, {54 * H_STR}")
    a(f"s_add_u32 s{SRDQ + 2}, s{sA}, {54 * H_STR}")
    if HC:
        a(f"s_lshl4_add_u32 s{SRDQ + 2}, s{sFL}, s{SRDQ + 2}")
    a(f"s_lshl4_add_u32 s{sA}, s{sD}, s{sA}")
    a(f"v_lshrrev_b32 v{vq[0]}, 1, v{vG}")
    a(f"v_and_b32 v{vck}, 1, v{vG}")
    a(f"v_mad_u32_u24 v{vq[0]}, v{vq[0]}, 14, v{vck}")
    a(vstr(vq[0], vq[0], H_STR))
    a(f"v_lshl_add_u32 v{vq[0]}, v{vI}, 4, v{vq[0]}")
    a(f"v_add_u32 v{vq[0]}, s{sA}, v{vq[0]}")
    a(f"v_xor_b32 v{vq[3]}, 0x300, v{vq[0]}")
    a(f"s_mov_b32 s{sKC}, {fx(H_OFF)}")
    a(f"s_mov_b32 s{sKC + 1}, {fx(H_OFF)}")
    a(f"s_mov_b32 s{sRS}, {fx(2.0 ** (-S_X[1] if final else -UP[0]))}")
    a(f"s_mov_b32 s{sRS + 1}, 0xffff0000")
    if final:
        srd_table(a, SRD4, "ft2")
        a(f"s_mul_i32 s{sB}, s{sMM}, 5")
        a(f"s_lshr_b32 s{sB}, s{sB}, 1")
        a(f"s_mul_i32 s{sA}, s{sB}, {TILE}")
        a(f"s_add_u32 s{SRD4}, s{SRD4}, s{sA}")
        a(f"s_addc_u32 s{SRD4 + 1}, s{SRD4 + 1}, 0")
        a(f"s_sub_u32 s{SRD4}, s{SRD4}, {2 * TILE}")
        a(f"s_subb_u32 s{SRD4 + 1}, s{SRD4 + 1}, 0")
        a(f"s_mov_b32 s{SRD4 + 2}, {5 * TILE}")
        a(sstr(sA, sB, 4 * XP_STR))
        a(f"s_add_u32 s{sA}, s{sA}, s{sC}")
        a(vstr(ve, vG, XP_STR))
        a(f"v_lshl_add_u32 v{ve}, v{vI}, 4, v{ve}")
        a(f"v_add_u32 v{ve}, s{sA}, v{ve}")
        srd_ws(a, SRD2, "X3", XP_SIZE)
        srd(a, SRD1, P_OUT, 0, SEQ * DM * 2)
        a(f"s_lshl_b32 s{sB}, s{sRB}, 13")
        a(f"s_lshl2_add_u32 s{sA}, s{sMM}, s{sW}")
        a(f"s_lshl_b32 s{sA}, s{sA}, 7")
        a(f"s_add_u32 s{sA}, s{sA}, s{sB}")
        a(f"v_lshl_add_u32 v{vpl}, v{vL}, 20, s{sA}")
        a(f"s_bfe_u32 s{sA}, s{sD}, 0x20005")
        a(f"s_lshl3_add_u32 s{sA}, s{sDC}, s{sA}")
        a(f"s_lshl_b32 s{sA}, s{sA}, 7")
        a(f"s_add_u32 s{sA}, s{sA}, s{sB}")
        a(f"v_and_b32 v{vfl}, 1, v{vI}")
        a(f"v_lshl_add_u32 v{vfl}, v{vfl}, 9, s{sA}")
    else:
        srd_ws(a, SRD1, "SS2", SS2_SIZE)
        if f0.FC.t_late:
            srd_ws(a, SRD4, "W2T", 9216)
            a(f"s_sub_u32 s{sA}, {f0.W2TOP}, s3")
            a(f"s_cmp_gt_u32 s{sA}, 108")
            a(f"s_cselect_b32 s{SRD4 + 2}, 0, s{SRD4 + 2}")
            a(f"s_cselect_b32 s{sA}, 0, s{sA}")
            a(f"s_lshr_b32 s{sB}, s{sW}, 1")
            a(f"s_lshl1_add_u32 s{sA}, s{sA}, s{sB}")
            a(f"s_mul_i32 s{sA}, s{sA}, {KB_STR}")
            a(f"s_and_b32 s{sB}, s{sW}, 1")
            a(f"s_lshl_b32 s{sB}, s{sB}, 10")
            a(f"s_add_u32 s{sA}, s{sA}, s{sB}")
            a(f"s_add_u32 s{SRD4}, s{SRD4}, s{sA}")
            a(f"s_addc_u32 s{SRD4 + 1}, s{SRD4 + 1}, 0")
        if FZ.tch & 4:
            srd_ws(a, SRD4, "W2T", 190 * KB_STR)
            a(f"s_and_b32 s{sA}, s{sMM}, 4")
            a(f"s_mul_i32 s{sA}, s{sA}, {7 * KB_STR}")
            a(f"s_and_b32 s{sB}, s{sRB}, 3")
            a(f"s_mul_i32 s{sB}, s{sB}, {2 * KB_STR}")
            a(f"s_add_u32 s{sA}, s{sA}, s{sB}")
            a(f"s_add_u32 s{SRD4}, s{SRD4}, s{sA}")
            a(f"s_addc_u32 s{SRD4 + 1}, s{SRD4 + 1}, 0")

            def touch():
                put(s.C, f"v_min_u32 v{vck}, 9, v{vI}")
                put(s.C, f"v_mul_u32_u24 v{vck}, 112, v{vck}")
                put(s.C, f"v_add_u32 v{vck}, v{vck}, v{vp}")
                for k in range(2):
                    vm(s.C, f"buffer_load_dword {R(aDUM)}, v{vck}, s[{SRD4}:{SRD4 + 3}], @ offen", sE,
                       f"s_mov_b32 @, {8 * k * KB_STR}", tag="touch", again=False)
            at(FZ.tch_at, touch)
        a(f"s_lshl4_add_u32 s{sA}, s{sRB}, s{sMM}")
        a(f"s_lshl_b32 s{sA}, s{sA}, 7")
        a(f"s_add_u32 s{sA}, s{sA}, {READY}")
        a(f"v_lshl_add_u32 v{vpl}, v0, 20, s{sA}")
        a(f"s_lshl2_add_u32 s{sA}, s{sRB}, s{sW}")
        a(f"s_lshl_b32 s{sA}, s{sA}, 9")
        a(f"v_and_b32 v{vfl}, 3, v{vI}")
        a(f"v_lshl_add_u32 v{vfl}, v{vfl}, 7, s{sA}")
    a.raw(f"    s_waitcnt vmcnt({behind})")
    mk(a, name + "go")
    for _ in range(FZ.look):
        issue()
    s.flush()
    a("s_barrier")
    if not final and not any(f0.FC.po):
        vm(s.M, f"buffer_store_dword v{vl0 + 1}, v{vpl}, s[{SRDF}:{SRDF + 3}], 0 offen sc1", again=False, part=0.2)
    mk.stash(a, Z)

    TA, TB, TE = (0, 1, 2, 3), (4, 5, 6), (0, 1, 2)
    groups = [("a", TA, t) for t in range(19)] + [("b", TB, t) for t in range(20)]
    groups.insert(19 + FZ.b_pre, ("a", TA, 19))
    if final:
        groups += [("e", TE, t) for t in range(20)]
    seq = [(kind, ft, t) for kind, tl, t in groups for ft in tl]
    rd_ = {"n": 0, "free": 0}

    def wreg(n):
        return WR + (n % NW) * 4

    def feed_l():
        while rd_["n"] < min(rd_["free"] + NW, len(seq)) and len(s.L) < 2:
            kind, ft, t = seq[rd_["n"]]
            if kind == "e" and "e0" not in done:
                return
            off = (ft + (2 if kind == "e" else 1)) * TILE + (19 - t) * 1024
            put(s.L, f"ds_read_b128 {R(wreg(rd_['n']), 4)}, v{vl0 + (off >> 16)} offset:{off & 0xffff}", ("rd", rd_["n"]))
            rd_["n"] += 1
    s.feed.append(feed_l)

    def rd_need(n):
        while ("rd", n) not in done:
            feed_l()
            if not s.L:
                s.need("e0")
                continue
            s.run(s.L.pop(0))

    def prep_x(ts):
        keys = [("x", t, h) for t in xorder if t in ts for h in range(2)]
        regs = [xr(k[1], k[2]) for k in keys]
        verify(keys, regs, lower(regs, T_X[final]), f"{name}_x{ts[0]}", "xok" if xorder[-1] in ts else None)
        for t in ts:
            ops = [f"v_swap_b32 v{xr(t, 0) + 2}, v{xr(t, 1)}", f"v_swap_b32 v{xr(t, 0) + 3}, v{xr(t, 1) + 1}"]
            if t == 19:
                for st in range(2):
                    if final:
                        ops.append(f"v_accvgpr_write_b32 {R(vdc + st)}, v{xr(t, st)}")
                    ops.append(f"v_bfi_b32 v{xr(t, st)}, v{vmk}, 0, v{xr(t, st)}")
            for op in ops[:-1]:
                put(s.C, op)
            put(s.C, ops[-1], ("sw", t))

    def gram(t, wait=None):
        s.need(("sw", t))
        for st in range(2):
            s.mf(GR + 4 * st, xr(t, st), xr(t, st), None if t == 0 else GR + 4 * st, wait if st else None)

    def stats():
        t0 = s.tM + 40
        ops = []
        for r in range(4):
            for st in range(2):
                prev = "0" if r == 0 else f"v{T + 2 * st}"
                ops.append(f"v_cndmask_b32_e64 v{T + 2 * st}, {prev}, v{GR + 4 * st + r}, s[{DIAG[r]}:{DIAG[r] + 1}]")
        for op in ("v_permlane32_swap_b32", "v_permlane16_swap_b32"):
            ops += [f"v_mov_b32 v{T + 2 * st + 1}, v{T + 2 * st}" for st in range(2)]
            ops += [f"{op} v{T + 2 * st}, v{T + 2 * st + 1}" for st in range(2)]
            ops += [f"v_add_f32 v{T + 2 * st}, v{T + 2 * st}, v{T + 2 * st + 1}" for st in range(2)]
        ops += [f"v_fmamk_f32 v{T + 2 * st}, v{T + 2 * st}, {fx((1 + EPS) / DM)}, v{T + 4}" for st in range(2)]
        ops += [f"v_rsq_f32 v{T + 2 * st + 1}, v{T + 2 * st}" for st in range(2)]
        ops += [f"v_mul_f32 v{CC + 4 + st}, v{T + 2 * st}, v{T + 2 * st + 1}" for st in range(2)]
        ops += [f"v_cvt_pk_bf16_f32 v{T + 2 * st}, v{CC + 4 + st}, v{CC + 4 + st}" for st in range(2)]
        ops += [f"v_bfi_b32 v{xr(19, st)}, v{vmk}, v{T + 2 * st}, v{xr(19, st)}" for st in range(2)]
        late = [f"v_mul_f32 v{CC + st}, {fx(GELU_K0)}, v{T + 2 * st + 1}" for st in range(2)]
        late += [f"v_mul_f32 v{T + 2 * st}, v{T + 2 * st + 1}, v{T + 2 * st + 1}" for st in range(2)]
        late += [f"v_mul_f32 v{T + 2 * st}, {fx(0.044715)}, v{T + 2 * st}" for st in range(2)]
        late += [f"v_mul_f32 v{CC + 2 + st}, v{CC + st}, v{T + 2 * st}" for st in range(2)]
        if not final:
            late += [f"v_mul_f32 v{CC + 4 + st}, {fx(2.0 ** -S_LO)}, v{CC + 4 + st}" for st in range(2)]
        put(s.G, f"v_mov_b32 v{T + 4}, {fx(EPS * EPS * 4.0 ** S_X[final])}")
        put(s.G, f"v_xor_b32 v{vq[1]}, 0x100, v{vq[0]}")
        put(s.G, f"v_xor_b32 v{vq[2]}, 0x200, v{vq[0]}", "qset")
        put(s.G, ops[0], gate=lambda: s.t >= t0)
        for op in ops[1:-1]:
            put(s.G, op)
        put(s.G, ops[-1], "stats")
        for op in late:
            put(s.G, op)

    def poll(key, off):
        lab = f"{name}_{key}"
        text = f"buffer_load_dword v{vmk}, v{vfl}, s[{SRDF}:{SRDF + 3}], @ offen sc1"
        test = f"v_cmp_eq_u32 vcc, 0, v{vmk}"

        def branch():
            a(f"s_cbranch_vccnz {lab}_spin", tag="nopad")
            a.label(f"{lab}_ok", keep=True)

            def spin():
                a.label(f"{lab}_spin")
                a(f"s_mov_b32 s{sRP}, {off}")
                a(text.replace("@", f"s{sRP}"))
                a("s_waitcnt vmcnt(0)")
                budget(a, f"{lab}_ok")
                a(test)
                a(f"s_cbranch_vccnz {lab}_spin")
                a(f"s_branch {lab}_ok")
            a.tail.append(spin)

        def check():
            s.C.append(wait_item(("i", key), [f"v{vmk}"]))
            put(s.C, test)
            s.C.append(Item("j", 10, branch, key))
        return (lambda: vm(s.C, text, sE, f"s_mov_b32 @, {off}", ("i", key), again=False, part=0.2)), check

    if final:
        ix, cx = poll("rgo", PX)

        def signal():
            s.C.append(Item("s", 4, lambda: a.wait_tag("x3"), until="x3"))
            vm(s.C, f"buffer_store_dword v{vl0 + 1}, v{vpl}, s[{SRDF}:{SRDF + 3}], @ offen sc1", sE, f"s_mov_b32 @, {PX}",
               again=False, part=0.2)

        def e_ok():
            plan(("e", 14))
            s.C.append(Item("s", 4, lambda: (s.need(("e", 14)), a.wait_tag("e")), until=("e", 14),
                            gate=lambda: ("e", 14) in done))
            put(s.C, "s_barrier", "e0")
        at(("b", FZ.e_ok), e_ok)
        at(FZ.x3[0], signal)
        at(FZ.x3[1], ix)
        at(FZ.x3[2], lambda: (s.need("oset"), cx()))
    else:
        if any(f0.FC.po):
            done["ready"] = 0
        else:
            i_, c_ = poll("ready", READY)
            at(FZ.rd_at[0], lambda: (s.need("stats"), i_()))
            at(FZ.rd_at[1], c_)
        at(FZ.res_at, lambda: (s.need("oset"), done.setdefault("rgo", s.t)))

    at(("b", FZ.b_pre + FZ.ebar), lambda: put(s.C, "s_barrier", "ebar"))

    post = []

    def gelu(ft):
        Zs = Z + 8 * (ft & 1)
        prs = [(acc(ft, st) + h, Zs + st * 4 + h, st) for st in range(2) for h in (0, 2)]
        t0 = s.tM + 40

        def stage(pk, plain, key=None, gate=None):
            for n, (x, z, st) in enumerate(prs):
                k = key if n == 3 else None
                sel = f"op_sel:[0,{st},{st}] op_sel_hi:[1,{st},{st}]"
                it = s.item(pk.format(x=V(x, 2), z=V(z, 2), sel=sel), k, gate)
                it.alt = [s.item(plain.format(x=V(x + e), z=V(z + e), c0=V(CC + st), c2=V(CC + 2 + st), c4=V(CC + 4 + st)),
                                 k if e else None, gate) for e in range(2)]
                s.G.append(it)

        stage("v_pk_mul_f32 {z}, {x}, {x}", "v_mul_f32 {z}, {x}, {x}", gate=lambda: s.t >= t0)
        stage("v_pk_fma_f32 {z}, {z}, %s, %s {sel}" % (V(CC + 2, 2), V(CC, 2)), "v_fma_f32 {z}, {z}, {c2}, {c0}")
        stage("v_pk_mul_f32 {z}, {z}, {x}", "v_mul_f32 {z}, {z}, {x}")
        close()
        for k in range(8):
            put(s.G, f"v_exp_f32 v{Zs + k}, v{Zs + k}")
        stage("v_pk_fma_f32 {z}, {z}, %s, %s {sel}" % (V(CC + 4, 2), V(CC + 4, 2)), "v_fma_f32 {z}, {z}, {c4}, {c4}")
        for k in range(8):
            put(s.G, f"v_rcp_f32 v{Zs + k}, v{Zs + k}")
        if final:
            stage("v_pk_fma_f32 {z}, {z}, {x}, s[%d:%d]" % (sKC, sKC + 1), "v_fma_f32 {z}, {z}, {x}, s%d" % sKC, ("s5", ft))
        else:
            stage("v_pk_mul_f32 {z}, {z}, {x}", "v_mul_f32 {z}, {z}, {x}", ("s5", ft))

        def out():
            for k in range(4):
                put(s.G, f"v_cvt_pk_bf16_f32 v{Zs + k}, v{Zs + 2 * k}, v{Zs + 2 * k + 1}")
            if ft == 6:
                put(s.G, f"v_add_u32 v{vo}, s{sMSK}, v{vo}")
            put(s.G, f"v_permlane16_swap_b32 v{Zs}, v{Zs + 2}")
            put(s.G, f"v_permlane16_swap_b32 v{Zs + 1}, v{Zs + 3}")
            vm(s.G, f"buffer_store_dwordx4 {V(Zs, 4)}, v{vo}, s[{SRDH}:{SRDH + 3}], @ offen sc1", sHO,
               f"s_mov_b32 @, {ft * 2 * H_STR}", ("gelu", ft), again=False, first=FZ.hf)
        post.append(out)

    def close():
        while post:
            post.pop()()

    def out_setup():
        g = lambda op, key=None: put(s.G, op, key)
        g(f"v_lshl_add_u32 v{vpk}, v{vL}, 4, s{sPK}", "vpk")
        g(f"s_mul_i32 s{sGA}, s{sDC}, {20 * XP_STR}")
        g(f"s_lshl3_add_u32 s{sGA}, s{sD}, s{sGA}")
        g(vstr(vo2, vG, XP_STR))
        g(f"v_lshl_add_u32 v{vo2}, v{vI}, 3, v{vo2}")
        g(f"v_add_u32 v{vo2}, s{sGA}, v{vo2}", "oset")
        g(f"v_lshrrev_b32 v{vor}, 1, v{vG}")
        g(f"s_mov_b32 s{sGA}, {0x3f800000 + (0x3f80 if final else (127 + S_LO) << 7):#x}")
        g(f"v_mul_lo_u32 v{vor}, v{vor}, s{sGA}", "vor")
        g(f"v_lshl_add_u32 v{vrd}, v{vL}, 4, s{sEB}")
        for ql in (1, 2, 3):
            g(f"s_xor_b32 s{sGA}, s{sW}, {ql}")
            g(f"s_mul_i32 s{sGA}, s{sGA}, 15360")
            if ql > 1:
                g(f"s_add_u32 s{sGA}, s{sGA}, {(ql - 1) * 5120}")
            g(f"v_lshl_add_u32 v{vred[ql - 1]}, v{vL}, 4, s{sGA}")
        if final:
            g(f"s_bfe_u32 s{sGA}, s{sD}, 0x10004")
            g(f"s_lshl_b32 s{sGA}, s{sGA}, 3")
            g(f"s_lshr_b32 s{sGB}, s{sD}, 9")
            g(f"s_lshl4_add_u32 s{sGA}, s{sGB}, s{sGA}")
            g(f"s_bfe_u32 s{sGB}, s{sD}, 0x20005")
            g(f"s_lshl_b32 s{sGB}, s{sGB}, 8")
            g(f"s_add_u32 s{sGA}, s{sGA}, s{sGB}")
            g(f"s_and_b32 s{sGB}, s{sD}, 128")
            g(f"s_add_u32 s{sGA}, s{sGA}, s{sGB}")
            g(f"s_and_b32 s{sGB}, s{sD}, 256")
            g(f"s_lshl2_add_u32 s{sGA}, s{sGB}, s{sGA}")
            g(f"v_and_b32 v{vout}, 1, v{vI}")
            g(f"v_lshlrev_b32 v{vout}, 6, v{vout}")
            g(f"v_lshrrev_b32 v{vs}, 1, v{vI}")
            g(f"v_add3_u32 v{vout}, v{vout}, v{vs}, s{sGA}")
            g(f"v_mul_u32_u24 v{vout}, 1280, v{vout}")
            g(f"s_mul_i32 s{sGA}, s{sDC}, 160")
            g(f"v_lshl_add_u32 v{vout}, v{vG}, 3, v{vout}")
            g(f"v_add_u32 v{vout}, s{sGA}, v{vout}", "setup")
        else:
            g(f"v_lshrrev_b32 v{vs}, 1, v{vI}")
            g(f"v_lshlrev_b32 v{vs}, 4, v{vs}")
            g(f"v_and_b32 v{vout}, 1, v{vI}")
            g(f"v_lshl_add_u32 v{vs}, v{vout}, 2, v{vs}")
            g(f"v_and_b32 v{vout}, 1, v{vG}")
            g(f"v_lshl_add_u32 v{vs}, v{vout}, 3, v{vs}")
            g(f"v_lshrrev_b32 v{vout}, {0 if FZ.x_nocnt else 1}, v{vG}")
            g(f"v_lshl_add_u32 v{vs}, v{vout}, 20, v{vs}")
            g(f"s_lshl_b32 s{sGA}, s{sD}, 3")
            g(f"v_add_u32 v{vs}, s{sGA}, v{vs}")
            g(f"v_add_u32 v{vout}, s{sDC}, v{vG}")
            g(f"v_min_u32 v{vout}, 1, v{vout}")
            g(f"v_mul_u32_u24 v{vout}, 0xffff, v{vout}")
            g(f"v_lshlrev_b32 v{vout}, 16, v{vout}")
            g(f"v_or_b32 v{vout}, 0xffff, v{vout}")
            g(f"v_mov_b32 v{TMP + 2}, 0")
            g(f"v_mov_b32 v{TMP + 3}, 0")
            g(f"s_mov_b64 s[{DIAG[0]}:{DIAG[0] + 1}], 0xffff")
            g(f"s_mov_b32 s{sGB}, {-S_LO * 0x800080:#x}", "setup")

    gl, rest = {}, xorder[1:]
    for t in range(19):
        n = 2 if t in FZ.dbl else 1
        gl[t], rest = sorted(rest[:n]), rest[n:]
    rd_need(NW - 1)
    prep_x([0])
    n = 0

    def grp_wait(k):
        nx = sum(len(g[1]) for g in groups[:k + 1]) - 1
        if k >= len(groups):
            return None
        return Item("s", 4, lambda: (rd_need(nx), a.wait_regs(R(wreg(nx), 4))))

    gram(0, grp_wait(0))
    for k, (kind, tl, t) in enumerate(groups):
        fine(kind, t)
        grams = gl.get(t, []) if kind == "a" else []
        if kind == "a" and t == 19:
            s.need("stats")
        if kind == "e" and t == 0:
            s.need(("s5", 2))
            for st in range(2):
                put(s.C, f"v_accvgpr_read_b32 v{xr(19, st)}, {R(vdc + st)}", ("dc", st))
        if kind == "e" and t == 19:
            s.need(("dc", 1))
        hi = sum(len(g[1]) for g in groups[:k + 2])
        for j, ft in enumerate(tl):
            for st in range(2):
                if grams and 2 * j + st == (FZ.xc_at if len(grams) == 1 else 0):
                    prep_x(grams)
                d = (EACC if kind == "e" else ACC1) + (ft * 2 + st) * 4
                last = j == len(tl) - 1 and st and not grams
                if st:
                    rd_["free"] = n + 1
                s.mf(d, wreg(n), xr(t, st), None if t == 0 else d, grp_wait(k + 1) if last else None,
                     urgent=rd_["n"] - len(s.L) < hi)
            n += 1
        for g in grams:
            gram(g, grp_wait(k + 1) if g == grams[-1] else None)
        if grams and xorder[-1] in grams:
            stats()
        if kind == ("e" if final else "b"):
            done[("xfree", t)] = s.t
        if kind == "a" and t == 19:
            note("A")
            for ft in TA:
                gelu(ft)
            close()
            if FZ.pure[final]:
                s.pure(("gelu", FZ.pure[final] - 1))
        if kind == "b" and t == 19:
            for ft in TB:
                gelu(ft)
            close()
            if FZ.in_b[final]:
                s.pure(("gelu", FZ.in_b[final] - 1))
    if final:
        note("E")
        t0 = s.tM + 40
        for et in TE:
            d = EACC + et * 8
            for k in range(4):
                put(s.C, f"v_cvt_pk_bf16_f32 v{d + k}, v{d + 2 * k}, v{d + 2 * k + 1}", gate=lambda: s.t >= t0)
            vm(s.C, f"buffer_store_dwordx4 {V(d, 4)}, v{ve}, s[{SRD2}:{SRD2 + 3}], @ offen sc1",
               sE, f"s_mov_b32 @, {et * 4 * XP_STR}", {1: "edone", 2: "x3"}.get(et), tag="x3", again=False)
        epi, s.C = s.C, []
        s.pure(("gelu", FZ.in_e - 1))
    out_setup()
    s.pk = bool(FZ.g2pk[final])
    mk.stash(a, vck)

    def accr(p, q):
        return ACC2 + (q * 5 + p) * 4

    def q_check(n):
        keys = [("q",) + x for x in units[n]]
        regs = [qreg(*x) for x in units[n]]
        fix = [f"v_or_b32 v{qreg(u, q)}, v{qreg(u, q)}, v{vor}" for u, q in units[n] if u == NS - 1]
        if fix:
            s.need("vor")
        verify(keys, regs, fix + (lower(regs, T_H) if final else unset(regs)), f"{name}_q{n}", ("qok", n))

    def writes(q):
        t0 = s.tM + 40
        s.need("setup")
        for p in range(5):
            put(s.L, f"ds_write_b128 v{vred[q - 1]}, {R(accr(p, q), 4)} offset:{p * 1024}", ("wr", q, p),
                gate=lambda p=p: s.t >= max(t0 - 16 * (4 - p), t0 - 40 + FZ.wgap * p))

    def reads(q, k):
        for p in range(5):
            put(q, f"ds_read_b128 {R(accr(p, k), 4)}, v{vrd} offset:{(k - 1) * 5120 + p * 1024}")

    def res_ops():
        plan(("r", 4))
        w = wait_item(("r", 4), [V(RES, 10)])
        w.gate = lambda: s.eta.get(("r", 4), 1e9) <= s.t
        f0 = w.fn
        w.fn = lambda: (s.need(("r", 4)), f0())
        s.G.append(w)
        for p in range(5):
            for h in range(2):
                u_, r, d = RU + 2 * h, RES + 2 * p + h, accr(p, 0) + 2 * h
                put(s.G, f"v_lshlrev_b32 v{u_}, 16, v{r}")
                put(s.G, f"v_and_b32 v{u_ + 1}, s{sRS + 1}, v{r}")
                put(s.G, f"v_fmac_f32 v{d}, s{sRS}, v{u_}")
                put(s.G, f"v_fmac_f32 v{d + 1}, s{sRS}, v{u_ + 1}", ("res", p) if h else None)

    def unpark(u):
        ok = lambda: "vpk" in done and ("k", u, 4) in done and s.eta[("k", u, 4)] <= s.t
        plan(("k", u, 4))
        s.L.append(Item("s", 4, lambda: (s.need("vpk"), s.need(("k", u, 4)), a.wait_tag(f"k{u}")), until=("k", u, 4), gate=ok))
        for p in range(5):
            put(s.L, f"ds_read_b128 {R(preg(u, p), 4)}, v{vpk} offset:{(u - NP) * TILE + p * 1024}", ("p", u, p))
            sched.add(("p", u, p))

    def g_bar():
        for u in parked:
            s.need(("p", u, 4))
        put(s.C, "s_waitcnt lgkmcnt(0)")
        put(s.C, "s_barrier")
        if not final and f0.FC.t_late:
            put(s.C, f"s_lshl4_add_u32 s{sE}, s{sRB}, s{sMM}")
            put(s.C, f"s_sub_u32 s{sE}, s3, s{sE}")
            put(s.C, f"s_lshl_b32 s{sE}, s{sE}, 7")
            vm(s.C, f"buffer_store_dword v{vl0 + 1}, v{vpl}, s[{SRDF}:{SRDF + 3}], @ offen sc1", sE,
               f"s_add_u32 @, s{sE}, {DONE2 + 4 - READY}", again=False, part=0.2)

    for u in parked:
        at(("g", u - NP), lambda u=u: unpark(u))
    at(("g", FZ.gbar), g_bar)
    def post_at(where):
        if not final and FZ.post == where:
            vm(s.C, f"buffer_store_dword v{vl0 + 1}, v{vpl}, s[{SRDF}:{SRDF + 3}], @ offen sc1", sE,
               f"s_mov_b32 @, {POST - READY}", key="post",
               again=False, part=0.2)
            s.need("post")

    q_check(0)
    if final:
        if FZ.split0:
            q_check(1)
        s.C += epi
    seen = set()
    for n, un in enumerate(units):
        tailq = un[0][1] if len({u for u, _ in un}) > 1 or KT == 1 and un[0][0] == NS - 1 else None
        s.need(("qok", n))
        left = 5 * len(un)
        if tailq == 1:
            res_ops()
        if tailq == 0:
            s.need(("wr", 2, 4))
            put(s.C, "s_waitcnt lgkmcnt(0)")
            put(s.C, "s_barrier", "bar1")
            s.need("bar1")
            post_at("bar1")
            writes(3)
            reads(s.L, 1)
            reads(s.L, 2)
        elif tailq is not None and tailq > 1:
            writes(tailq - 1)
        for u, q in un:
            if u not in seen:
                fine("g", u)
                if u == 1:
                    note("g1")
                for p in range(5):
                    plan(("p", u, p))
                    s.need(("p", u, p))
                seen.add(u)
            for p in range(5):
                if left == min(FZ.qc_rem, 5 * len(un)) and n + 1 < len(units) and not (final and FZ.split0 and n == 0):
                    q_check(n + 1)
                if tailq == 0:
                    s.need(("res", p))
                if s.eta.get(("p", u, p), 0) > s.t:
                    s.stall += s.eta[("p", u, p)] - s.t
                    if FZ.verbose:
                        print(f"  {s.t:6.0f} STALL p {u} {p} {s.eta[('p', u, p)] - s.t:.0f}", file=sys.stderr)
                    s.t = s.eta[("p", u, p)]
                s.mf(accr(p, q), preg(u, p), qreg(u, q), None if u == 0 else accr(p, q))
                left -= 1
            done[("qfree", u, q)] = s.t
    s.flush()
    assert not queue and not act, (queue, act)
    a("s_waitcnt lgkmcnt(0)")
    a("s_barrier")
    reads(s.L, 3)
    s.flush()
    post_at("bar2")
    for p in range(5):
        for h in (0, 2):
            a(f"v_pk_add_f32 {V(accr(p, 1) + h, 2)}, {V(accr(p, 1) + h, 2)}, {V(accr(p, 2) + h, 2)}")
    for p in range(5):
        for h in (0, 2):
            a(f"v_pk_add_f32 {V(accr(p, 0) + h, 2)}, {V(accr(p, 0) + h, 2)}, {V(accr(p, 1) + h, 2)}")
    for p in range(5):
        r = accr(p, 0)
        for h in (0, 2):
            a(f"v_pk_add_f32 {V(r + h, 2)}, {V(r + h, 2)}, {V(accr(p, 3) + h, 2)}")
        a(f"v_cvt_pk_bf16_f32 v{r}, v{r}, v{r + 1}")
        a(f"v_cvt_pk_bf16_f32 v{r + 1}, v{r + 2}, v{r + 3}")
        if final:
            a(f"buffer_store_dwordx2 {V(r, 2)}, v{vout}, s[{SRD1}:{SRD1 + 3}], 0 offen offset:{p * 32}")
        else:
            a(f"s_mov_b32 s{sOP}, {p * 4 * XP_STR}")
            a(f"buffer_store_dwordx2 {V(r, 2)}, v{vo2}, s[{SRDX}:{SRDX + 3}], s{sOP} offen sc1")
    if not final:
        for p in range(5):
            r = accr(p, 0)
            for h in range(2):
                a(f"v_add_u32 v{r + 2 + h}, s{sGB}, v{r + h}")
            if p == 0:
                a(f"v_and_b32 v{r + 2}, v{vout}, v{r + 2}")
        for p in range(5):
            for h in range(2):
                r = accr(p, 0) + 2 + h
                a(f"v_dot2c_f32_bf16 v{TMP + 2 + h}, v{r}, v{r}")
        z = TMP + 2
        a(f"v_add_f32 v{z}, v{z}, v{z + 1}")
        for op in ("v_permlane32_swap_b32", "v_permlane16_swap_b32"):
            a(f"v_mov_b32 v{z + 1}, v{z}")
            a(f"{op} v{z}, v{z + 1}")
            a(f"v_add_f32 v{z}, v{z}, v{z + 1}")
        a(f"v_cndmask_b32_e64 v{z}, 1.0, v{z}, s[{DIAG[0]}:{DIAG[0] + 1}]")
        a(f"{FZ.x_op} v{z}, v{vs}, s[{SRD1}:{SRD1 + 3}], 0 offen sc1".replace("-", "_"), tag="out")
    post_at("end")
    mk(a, name + "end")


def role_fused(a):
    if Cfg.stamp:
        mk.names.append("start")
        mk.pend.append(0)
    if FZ.probe:
        a(f"s_memrealtime s[{sST}:{sST + 1}]")
    f0.front(a, mk.fixed)
    begin(a)
    mk.stash(a, 4)
    for ph in range(0 if FZ.halt == 10 else 2):
        a(f"s_cmp_ge_u32 s{sT}, {NCOL}")
        a(f"s_cbranch_scc1 idle{ph}", tag="nopad")
        pend = list(mk.pend)

        def idle(ph=ph, pend=pend):
            keep, mk.pend = mk.pend, pend
            a.label(f"idle{ph}")
            idle_phase(a, ph)
            a(f"s_branch join{ph}")
            mk.pend = keep
        a.tail.append(idle)
        n = col_phase(a, ph)
        a.label(f"join{ph}")
        if FZ.halt == 2 * ph + 1 or FZ.halt == 25 and ph:
            break
        mlp_phase(a, ph, n)
        if FZ.halt == 2 * ph + 2:
            break
    if Cfg.stamp:
        a("s_waitcnt vmcnt(0)")
        mk(a, "drain")
        mk.stash(a, 4)
        a(f"v_writelane_b32 v4, s{sCNT}, 63")
        srd_ws(a, SRD0, "STAMP", 1 << 21)
        a(f"s_lshl_b32 s{sA}, s2, 10")
        a(f"s_add_u32 s{sA}, s{sA}, {1 << 20}")
        a(f"v_lshl_add_u32 v5, v0, 2, s{sA}")
        a(f"buffer_store_dword v4, v5, s[{SRD0}:{SRD0 + 3}], 0 offen")
        if FZ.dbg:
            a(f"s_load_dwordx2 s[{SRD1}:{SRD1 + 1}], s[0:1], 72")
            a(f"v_readlane_b32 s{sB}, v4, 0")
            a("v_mov_b32 v6, 0")
            for j, nm in enumerate(FZ.dbg[1:]):
                a(f"v_readlane_b32 s{sA}, v4, {mk.names.index(nm)}")
                a(f"s_sub_u32 s{sA}, s{sA}, s{sB}")
                a(f"v_writelane_b32 v6, s{sA}, {j}")
            a(f"s_sub_u32 s{sA}, s2, {FZ.dbg[0]}")
            a(f"s_lshl_b32 s{sA}, s{sA}, 10")
            a(f"v_lshl_add_u32 v5, v0, 2, s{sA}")
            a("s_waitcnt lgkmcnt(0)")
            srd(a, SRD1, SRD1, 0, 64)
            a(f"buffer_store_dword v6, v5, s[{SRD1}:{SRD1 + 3}], 0 offen")
    return 160 * 1024


def tables():
    L = []
    c = np.sqrt(2.0 / DM) * np.cos(2 * np.pi * np.arange(DM) / DM)
    c[160] = 0
    c[480] = 0
    bits = model.bf16_bits(c.astype(np.float32))
    for n in range(DM):
        L.append(f".set cq{n}, {bits[n]}")
    bb = int(model.bf16_bits(np.float32([np.sqrt(1 / DM)]))[0])
    k2 = model2.kmap()
    L.append(".altmacro")
    L.append(".macro e8 a,b,c,d,e,f,g,h\n.short cq\\a, cq\\b, cq\\c, cq\\d, cq\\e, cq\\f, cq\\g, cq\\h\n.endm")
    L.append(".macro e6 a,b,c,d,e,f\n.short cq\\a, cq\\b, cq\\c, cq\\d, cq\\e, cq\\f\n.endm")
    L.append(".p2align 12\nft2:\n.set tt, 0\n.rept 40")
    for kb in range(80):
        L.append(".set td, tt\n.rept 16")
        ent = [f"%(({k2[4 * kb + j // 2]}*td+{160 * (j & 1)})%640)" for j in range(8)]
        if kb == 0:
            L.append(f".short {bb}+((td&1)<<15), {bb}")
            L.append("e6 " + ", ".join(ent[2:]))
        else:
            L.append("e8 " + ", ".join(ent))
        L.append(".set td, td+1\n.endr")
    L.append(".set tt, tt+16\n.endr\n.noaltmacro")
    return "\n".join(L) + "\n"


if __name__ == "__main__":
    f0.FC.xscale = S_LO
    for opt in sys.argv[2:]:
        if opt == "stamp":
            Cfg.stamp = True
        else:
            k, v = opt.split("=", 1)
            tgt = [c for c in (FZ, f0.FC, Cfg) if hasattr(c, k)][0]
            v = eval(v)
            sp = lambda x: x.replace("_", " ") if isinstance(x, str) else tuple(map(sp, x)) if isinstance(x, tuple) else x
            setattr(tgt, k, sp(v))
    txt = generate([("mk_kernel", [(256, role_fused)])], tables)
    if Cfg.stamp:
        txt = txt.replace(".amdgcn_target", ("; clk\n" if FZ.clk else "") + f"; halt {FZ.halt}\n; marks " + " ".join(mk.names)
                          + "\n.amdgcn_target", 1)
    if FZ.single:
        txt = txt.replace("@launch kernel=mk_kernel ", "@launch ")
        txt = txt.replace("mk_kernel", "interleave_layers__spectral_gfnet__mixer_channel_mlp__prompt_kernel")
    open(sys.argv[1], "w").write(txt)
```

```python
from gen import *
import model2
from p0 import Sched, fx

SCALE = float(np.sqrt(2.0 / DM))
SIGN2 = 0x80008000
REGB = 24576
FB = SS2_SIZE
READY, POST, HINT, DONE2, DONE = 4 << 15, 5 << 15, (6 << 15, 7 << 15), 8 << 15, 9 << 15
XCC = "hwreg(HW_REG_XCC_ID, 0, 3)"
W2TOP = 252
aF, aD, aB, aDUM, aTR = 256 + 254, 256 + 255, 256 + 251, 256 + 253, 256 + 232


class FC:
    fl_ld = " nt"
    fl_l2 = " nt"
    fl_l1 = ""
    fl_f = ""
    fs = (" sc1",) * 5
    xscale = 0
    code_pf = 1
    c_early = 3
    rot = 1
    t_pre = 6
    spread = 1
    pages = 0
    w_early = 5
    early = (0, 1)
    po = (0, 0, 0)
    t_late = 1
    p1_at = 1
    w2_pre = 1


def lane_blocks(a, v, t, base):
    a(f"v_and_b32 v{v}, 31, v{vL}")
    a(f"v_bfe_u32 v{t}, v{vL}, 5, 1")
    a(f"v_lshl_add_u32 v{v}, v{t}, 7, v{v}")
    a(f"v_lshl_add_u32 v{v}, s{sW}, 5, v{v}")
    a(f"v_lshlrev_b32 v{v}, 7, v{v}")
    a(f"v_add_u32 v{v}, {base + DONE}, v{v}")


def post(a, srd_, base, step, t, wait=None, both=False):
    a(f"s_getreg_b32 s{sB}, {XCC}")
    a(f"s_add_u32 s{sB}, s{sB}, {8 * step}")
    a(f"s_lshl_b32 s{sA}, s3, 7")
    a(f"s_add_u32 s{sA}, s{sA}, {base + DONE}")
    if both:
        a(f"v_lshrrev_b32 v{t + 2}, 1, v0")
        a(f"v_lshl_add_u32 v{t + 2}, v{t + 2}, 20, s{sA}")
        a(f"v_and_b32 v{t}, 1, v0")
        a(f"v_lshlrev_b32 v{t + 1}, 15, v{t}")
        a(f"v_sub_u32 v{t + 2}, v{t + 2}, v{t + 1}")
    else:
        a(f"v_lshl_add_u32 v{t + 2}, v0, 20, s{sA}")
    if wait:
        a(wait)
    a(f"v_accvgpr_read_b32 v{t + 1}, {R(aD)}")
    a(f"v_and_b32 v{t + 1}, -8, v{t + 1}")
    a(f"v_add_u32 v{t + 1}, s{sB}, v{t + 1}")
    if both:
        a(f"v_or_b32 v{t + 1}, v{t}, v{t + 1}")
    return f"buffer_store_dword v{t + 1}, v{t + 2}, s[{srd_}:{srd_ + 3}], 0 offen sc1"


def front(a, mark):
    name = "f"
    vld, vr, vo = 4, 5, 9
    MK, M1, M2, M2N = 10, 14, 15, 16
    vph, vk0, vq20, vgf = 17, 18, 19, 35
    ACC1, A1, A2, Y, ACCX = 20, 36, 96, 144, 168
    TMP = Y
    DAT = 176
    sQ, sFT, sKD, sSC = sK0, sK1, 96, 97
    KINDS = ("x", "w1", "w2")
    NX = 0 if FC.early[0] else 3
    NP = 2 if FC.pages else 0
    lbase = {"x": 0, "w1": 0, "w2": REGB}

    def frag(beta, j):
        return DAT + (beta * 5 + j) * 4

    a("s_cmp_ge_u32 s2, 8")
    a(f"s_cbranch_scc1 {name}_npf")
    if FC.code_pf:
        srd_code(a, SRD5, "mk_kernel")
        a(f"v_lshlrev_b32 v{vld}, 7, v0")
        for k in range(3):
            a(f"s_mov_b32 s{sOP}, {k << 15}")
            a.raw(f"    buffer_load_dword {R(aDUM)}, v{vld}, s[{SRD5}:{SRD5 + 3}], s{sOP} offen")
    a(f"s_add_u32 s{sT}, s2, 160")
    a.label(f"{name}_npf")
    a(f"s_sub_u32 s{sT}, s{sT}, 8")
    a("s_cmp_ge_u32 s2, 160")
    a(f"s_cselect_b32 s3, s2, s{sT}")
    a(f"s_lshl_b32 s{sE}, s{sW}, 10")
    a("s_cmp_ge_u32 s3, 128")
    a(f"s_cbranch_scc1 {name}_pb")
    if FC.spread:
        a(f"s_and_b32 s{sA}, s3, 7")
        a(f"s_lshr_b32 s{sT}, s3, 3")
        a(f"s_lshl4_add_u32 s{sT}, s{sA}, s{sT}")
        a(f"s_mov_b32 s3, s{sT}")

    def row_addr(v, t):
        a(f"s_and_b32 s{sA}, s{sW}, 1")
        a(f"s_lshl_b32 s{sA}, s{sA}, 1")
        a(f"s_xor_b32 s{sA}, s{sA}, s{sW}")
        a(f"s_lshl_b32 s{sA}, s{sA}, 2")
        a(f"v_or_b32 v{t}, s{sA}, v{vG}")
        a(f"v_xor_b32 v{t}, v{t}, v{vI}")
        a(f"v_mul_u32_u24 v{v}, 1280, v{v}")
        a(f"v_lshl_add_u32 v{v}, v{t}, 4, v{v}")

    def row_issue(v, fl, base):
        for j in range(5):
            a(f"s_add_u32 m0, s{sE}, {base + j * 4096 - j * 256}")
            a(f"buffer_load_dwordx4 v{v}, s[{SRD0}:{SRD0 + 3}], 0 offen offset:{j * 256}{fl} lds")

    def sync_start(part=3):
        t, z = TMP, TMP + 4
        if part & 1:
            sync_addr(t, z)
        if part & 2:
            srd_ws(a, SRD3, "SS2", SS2_SIZE + FLAG_SIZE)
            a(f"buffer_load_dword {R(aF)}, v{t}, s[{SRD3}:{SRD3 + 3}], 0 offen{FC.fl_f}")
            a(f"buffer_load_dword {R(aD)}, off, s[{SRD3}:{SRD3 + 3}], s{sOQ}{FC.fl_f}")
            a(f"buffer_store_dwordx4 {V(z, 4)}, v{t + 3}, s[{SRD3}:{SRD3 + 3}], 0 offen sc1")

    def sync_addr(t, z):
        lane_blocks(a, t, t + 1, FB)
        a(f"s_lshl_b32 s{sA}, s3, 2")
        a(f"v_and_or_b32 v{t + 3}, v0, 3, s{sA}")
        a(f"v_bfe_u32 v{t + 1}, v0, 2, 1")
        a(f"v_mad_u32_u24 v{t + 2}, v{t + 1}, 3, 4")
        a(f"v_lshlrev_b32 v{t + 3}, v{t + 2}, v{t + 3}")
        if SSW:
            a(f"s_and_b32 s{sA}, s3, 2")
            a(f"s_lshl_b32 s{sA}, s{sA}, 13")
            a(f"v_add_u32 v{t + 3}, s{sA}, v{t + 3}")
            a(f"s_sub_u32 s{sA}, {FB}, s{sA}")
            a(f"v_mad_u32_u24 v{t + 3}, v{t + 1}, s{sA}, v{t + 3}")
        else:
            a(f"v_lshl_add_u32 v{t + 3}, v{t + 1}, 14, v{t + 3}")
        a(f"v_lshrrev_b32 v{t + 1}, 3, v0")
        a(f"v_lshl_add_u32 v{t + 3}, v{t + 1}, 20, v{t + 3}")
        for k in range(4):
            a(f"v_mov_b32 v{z + k}, 0")
        a(f"s_lshl_b32 s{sA}, s3, 7")
        a(f"s_add_u32 s{sOQ}, s{sA}, {FB + DONE}")
        a(f"s_add_u32 s{sA}, s{sA}, {FB + READY - (8 << 15)}")
        a(f"v_lshl_add_u32 v{t + 1}, v0, 15, s{sA}")
        a(f"v_subrev_u32 v{t + 2}, 8, v0")
        a(f"v_cmp_gt_u32 s[{sK2}:{sK3}], 5, v{t + 2}")
        a(f"v_cndmask_b32_e64 v{t + 3}, v{t + 3}, v{t + 1}, s[{sK2}:{sK3}]")

    def w2_setup(v, t):
        a(f"s_lshl_b32 s{sC}, s{sT}, 4")
        a(f"s_cmp_eq_u32 s{sT}, 108")
        a(f"s_cselect_b32 s{sC}, 0, s{sC}")
        a(f"s_lshl2_add_u32 s{sC}, s{sW}, s{sC}")
        a(f"v_add_u32 v{v}, s{sC}, v{vG}")
        row_addr(v, t)
        a("s_waitcnt lgkmcnt(0)")
        a(f"s_cmp_eq_u32 s{sT}, 108")
        a(f"s_mov_b32 s{SRD0 + 2}, {FF * DM * 2}")
        a(f"s_mov_b32 s{SRD0 + 3}, 0x20000")
        a(f"s_cselect_b32 s{SRD0 + 2}, {DM * 2}, s{SRD0 + 2}")
        a(f"s_cselect_b32 s{SRD0}, s{P_B2}, s{P_W2}")
        a(f"s_cselect_b32 s{SRD0 + 1}, s{P_B2 + 1}, s{P_W2 + 1}")
        a(f"s_and_b32 s{SRD0 + 1}, s{SRD0 + 1}, 0xffff")

    REG = 5248

    def mark_unset(n, v):
        k0 = sum(FC.po[:n])
        if not FC.po[n]:
            return
        if not k0:
            srd_ws(a, SRD5, "H", H_SIZE)
            for k in range(4):
                a(f"v_accvgpr_write_b32 {R(256 + k)}, -1")
        a(f"v_lshlrev_b32 v{v}, 4, v0")
        a(f"s_mul_i32 s{sOP}, s3, {14 * 4096}")
        for k in range(k0, k0 + FC.po[n]):
            if k:
                a(f"s_add_u32 s{sOP}, s{sOP}, {4096 * (k if k == k0 else 1)}")
            a(f"buffer_store_dwordx4 {R(256, 4)}, v{v}, s[{SRD5}:{SRD5 + 3}], s{sOP} offen sc1")

    def filter_setup():
        a(f"s_bfe_u32 s{sA}, s3, 0x20001")
        a(f"s_lshl_b32 s{sC}, s{sA}, 7")
        a(f"s_lshr_b32 s{sA}, s3, 5")
        a(f"s_lshl_b32 s{sA}, s{sA}, 9")
        a(f"s_add_u32 s{sC}, s{sC}, s{sA}")
        a(f"s_and_b32 s{sA}, s3, 8")
        a(f"s_lshl3_add_u32 s{sC}, s{sA}, s{sC}")
        a(f"s_and_b32 s{sA}, s3, 16")
        a(f"s_add_u32 s{sC}, s{sC}, s{sA}")
        a(f"s_and_b32 s{sA}, s3, 1")
        a(f"s_lshl3_add_u32 s{sC}, s{sA}, s{sC}")
        a(f"s_and_b32 s{sA}, s{sW}, 2")
        a(f"s_lshl4_add_u32 s{sC}, s{sA}, s{sC}")
        a(f"s_mul_i32 s{sC}, s{sC}, 642")
        a(f"s_add_u32 s{sD}, s{sC}, 4096")
        a(f"s_mul_i32 s{sF}, s{sW}, {REG}")
        a(f"s_mov_b32 s{SRD0 + 2}, {SEQ * 642}")
        a(f"s_add_u32 m0, s{sF}, {REGB}")
        a(f"s_bitcmp1_b32 s{sW}, 0")
        a(f"s_cselect_b32 s{SRD0}, s{P_WI}, s{P_WR}")
        a(f"s_cselect_b32 s{SRD0 + 1}, s{P_WI + 1}, s{P_WR + 1}")
        a(f"s_and_b32 s{SRD0 + 1}, s{SRD0 + 1}, 0xffff")

    def filter_loads(js):
        a(f"v_lshlrev_b32 v{vld}, 4, v{vL}")
        for j in js:
            if j == 4:
                a(f"s_add_u32 m0, s{sF}, {REGB + 4096}")
            if j == 5:
                a("s_mov_b64 exec, 1")
            a(f"buffer_load_dwordx4 v{vld}, s[{SRD0}:{SRD0 + 3}], s{sC if j < 4 else sD} offen offset:{(j & 3) * 1024}{FC.fl_ld} lds")
            if j == 5:
                a("s_mov_b64 exec, -1")

    a(f"s_and_b32 s{sC}, s{sT}, 1")
    a(f"s_lshl_b32 s{sC}, s{sC}, 3")
    a(f"s_lshr_b32 s{sA}, s{sT}, 5")
    a(f"s_lshl4_add_u32 s{sC}, s{sA}, s{sC}")
    a(f"s_bfe_u32 s{sA}, s{sT}, 0x20001")
    a(f"s_lshl_b32 s{sA}, s{sA}, 8")
    a(f"s_add_u32 s{sC}, s{sC}, s{sA}")
    a(f"s_and_b32 s{sA}, s{sT}, 8")
    a(f"s_lshl4_add_u32 s{sC}, s{sA}, s{sC}")
    a(f"s_and_b32 s{sA}, s{sT}, 16")
    a(f"s_lshl_b32 s{sA}, s{sA}, 6")
    a(f"s_add_u32 s{sC}, s{sC}, s{sA}")
    a(f"s_lshl1_add_u32 s{sC}, s{sW}, s{sC}")
    a(f"v_and_b32 v{vld}, 1, v{vG}")
    a(f"v_lshlrev_b32 v{vld}, 6, v{vld}")
    a(f"v_lshrrev_b32 v{vr + 1}, 1, v{vG}")
    a(f"v_add3_u32 v{vld}, v{vld}, v{vr + 1}, s{sC}")
    row_addr(vld, vr)
    if FC.early[0]:
        sync_start(1)
    a("s_waitcnt lgkmcnt(0)")
    srd(a, SRD0, P_X, 0, SEQ * DM * 2)
    row_issue(vld, FC.fl_ld, 0)
    if FC.early[0]:
        sync_start(2)
    filter_setup()
    filter_loads(range(FC.c_early))
    mark_unset(0, vr + 3)
    mark(a, "l1")
    srd_ws(a, SRD1, "XP0", XP_SIZE)
    a(f"s_mov_b32 s{sKD}, 0")
    a(f"s_branch {name}_gen")

    a.label(f"{name}_pb")
    a(f"s_sub_u32 s{sT}, 255, s3")
    a(f"s_and_b32 s{sA}, s{sT}, 7")
    a(f"s_lshr_b32 s{sB}, s{sT}, 5")
    a(f"s_lshl3_add_u32 s{sA}, s{sB}, s{sA}")
    a(f"s_bfe_u32 s{sB}, s{sT}, 0x20003")
    a(f"s_lshl2_add_u32 s{sFT}, s{sA}, s{sB}")
    a(f"s_and_b32 s{sA}, s3, 7")
    a(f"s_bfe_u32 s{sB}, s3, 0x10003")
    a(f"s_lshl1_add_u32 s{sA}, s{sA}, s{sB}")
    a(f"s_add_u32 s{sA}, s{sA}, 92")
    a(f"s_cmp_lt_u32 s{sFT}, 92")
    a(f"s_cselect_b32 s{sFT}, s{sFT}, 108")
    a("s_cmp_lt_u32 s3, 144")
    a(f"s_cselect_b32 s{sFT}, s{sA}, s{sFT}")
    a(f"s_sub_u32 s{sT}, {W2TOP}, s3")
    a(f"s_min_u32 s{sT}, s{sT}, 112")
    a(f"s_cmp_ge_u32 s{sFT}, 108")
    a(f"s_cbranch_scc1 {name}_p2")
    a(f"s_and_b32 s{sA}, s{sW}, 1")
    a(f"s_lshl_b32 s{sA}, s{sA}, 2")
    a(f"v_lshrrev_b32 v{vld}, 1, v{vL}")
    a(f"v_xor_b32 v{vld}, s{sA}, v{vld}")
    a(f"v_mul_u32_u24 v{vld}, {FF * 2}, v{vld}")
    a(f"v_and_b32 v{vr}, 1, v{vL}")
    a(f"v_lshl_add_u32 v{vld}, v{vr}, 4, v{vld}")
    a(f"s_mul_i32 s{sA}, s{sW}, {32 * FF * 2}")
    a(f"s_lshl_b32 s{sB}, s{sFT}, 5")
    a(f"s_add_u32 s{sA}, s{sA}, s{sB}")
    a(f"v_add_u32 v{vld}, s{sA}, v{vld}")
    if FC.early[1]:
        sync_start(1)
    a("s_waitcnt lgkmcnt(0)")
    if FC.early[1] == 1:
        sync_start(2)
    srd(a, SRD0, P_W1, 0, DM * FF * 2)
    if FC.rot:
        a(f"s_and_b32 s{sC}, s{sFT}, 3")

    def w1_loads(js):
        for j in js:
            if FC.rot:
                a(f"s_lshl_b32 s{sA}, s{sC}, 12")
                a(f"s_add_u32 m0, s{sE}, s{sA}")
                a(f"s_mul_i32 s{sOP}, s{sC}, {128 * FF * 2}")
            else:
                a(f"s_add_u32 m0, s{sE}, {j * 4096}")
                a(f"s_mov_b32 s{sOP}, {j * 128 * FF * 2}")
            a(f"buffer_load_dwordx4 v{vld}, s[{SRD0}:{SRD0 + 3}], s{sOP} offen{FC.fl_l1} lds")
            if FC.rot and j < 4:
                a(f"s_add_u32 s{sC}, s{sC}, 1")
                a(f"s_cmp_eq_u32 s{sC}, 5")
                a(f"s_cselect_b32 s{sC}, 0, s{sC}")
            if j == 4:
                srd(a, SRD2, P_B1, 0, FF * 2)
                a(f"v_lshl_add_u32 v{vld}, v{vI}, 1, s{sB}")
                a(f"buffer_load_ushort {R(aB)}, v{vld}, s[{SRD2}:{SRD2 + 3}], 0 offen")

    w1_loads(range(FC.w_early))
    if FC.early[1] == 2:
        sync_start(2)
    mark(a, "l1")
    srd_ws(a, SRD1, "W1F", W1F_SIZE)
    a(f"s_mov_b32 s{sKD}, 1")
    a(f"s_branch {name}_gen")
    a.label(f"{name}_p2")
    w2_setup(vld, vr)
    row_issue(vld, FC.fl_l2, REGB)
    mark(a, "l1")
    sync_start()
    a(f"s_mov_b32 s{sKD}, 2")

    va0, va1, va2, vc, vt, LD, ST = 10, 11, 12, 13, 17, 176, 216
    k0, k1, k2 = 98, 99, 100

    def filter_addr():
        vo = vc
        srd_ws(a, SRD4, "WC", WC_SIZE)
        a(f"v_bfe_u32 v{vt}, v{vL}, 3, 1")
        a(f"v_lshlrev_b32 v{vt}, 2, v{vt}")
        a(f"v_add_u32 v{vt}, v{vt}, v{vG}")
        a(f"s_cmp_lt_u32 s{sW}, 2")
        a(f"s_cselect_b32 s{k0}, 1, -1")
        a(f"s_mul_i32 s{sA}, s{k0}, 80")
        a(f"s_mul_i32 s{sB}, s{k0}, 40")
        a(f"v_mul_i32_i24 v{va0}, s{sA}, v{vt}")
        a(f"v_and_b32 v{vt}, 7, v{vL}")
        a(f"v_mul_u32_u24 v{va1}, 642, v{vt}")
        a(f"v_add_u32 v{va0}, v{va0}, v{va1}")
        a(f"s_mul_i32 s{k1}, s{sW}, 5")
        a(f"s_sub_u32 s{k2}, 325, s{k1}")
        a(f"s_cmp_lt_u32 s{sW}, 2")
        a(f"s_cselect_b32 s{k2}, s{k1}, s{k2}")
        a(f"s_lshl_b32 s{k2}, s{k2}, 1")
        a(f"v_add_u32 v{va0}, s{k2}, v{va0}")
        a(f"v_add_u32 v{va1}, s{sB}, v{va0}")
        a(f"v_cmp_gt_u32 vcc, 8, v0")
        a(f"v_add_u32 v{va2}, 640, v{va0}")
        a(f"v_cndmask_b32 v{va2}, v{va0}, v{va2}, vcc")
        a(f"v_lshrrev_b32 v{vo}, 3, v{vL}")
        a(vstr(vo, vo, WC_STR))
        a(f"v_lshl_add_u32 v{vo}, v{vt}, 4, v{vo}")
        a(f"s_lshl_b32 s{sA}, s3, 7")
        a(f"s_lshr_b32 s{sB}, s{sW}, 1")
        a(sstr(sB, sB, 8 * WC_STR))
        a(f"s_add_u32 s{sA}, s{sA}, s{sB}")
        a(f"v_add_u32 v{vo}, s{sA}, v{vo}")
        a(f"s_sub_u32 s{k2}, s{k1}, 5")
        a(f"s_cmp_lt_u32 s{sW}, 2")
        a(f"s_cselect_b32 s{k1}, s{k1}, s{k2}")

    def filter_job():
        vo = vc
        a("s_barrier")
        mark(a, "b2")
        for n in range(5):
            for rl in range(2):
                for ph in range(2):
                    ad = va1 if ph else (va2 if n == 0 else va0)
                    for ar in range(2):
                        a(f"ds_read_u16 v{LD + n * 8 + (rl * 2 + ph) * 2 + ar}, v{ad} offset:{REGB + (rl * 2 + ar) * REG + 2 * n}")
        for n in range(5):
            for k in range(4):
                a(f"v_lshl_or_b32 v{ST + 4 * n + k}, v{LD + n * 8 + 2 * k + 1}, 16, v{LD + n * 8 + 2 * k}")
            if n == 0:
                a(f"s_cmp_eq_u32 s{k1}, 10")
                a(f"s_cselect_b32 s{sOP}, 0, s{k1}")
                a(sstr(sOP, sOP, 16 * WC_STR))
            else:
                a(f"s_add_i32 s{k1}, s{k1}, s{k0}")
                a(sstr(sOP, k1, 16 * WC_STR))
            a(f"buffer_store_dwordx4 {V(ST + 4 * n, 4)}, v{vo}, s[{SRD4}:{SRD4 + 3}], s{sOP} offen{FC.fs[1]}")

    a.label(f"{name}_gen")
    if FC.pages:
        a(f"v_min_u32 v{vr}, 3, v0")
        a(f"v_mul_u32_u24 v{vr}, {SLOT - (1 << 21)}, v{vr}")
        a(f"v_lshlrev_b32 v{vr + 1}, 21, v0")
        a(f"v_add_u32 v{vr}, v{vr}, v{vr + 1}")
        srd(a, SRD5, P_WS, 0, WS["STAMP"])
        a.raw(f"    buffer_load_dword {R(aDUM)}, v{vr}, s[{SRD5}:{SRD5 + 3}], 0 offen sc1")
        srd(a, SRD5, P_OUT, 0, SEQ * DM * 2)
        a.raw(f"    buffer_load_dword {R(aDUM)}, v{vr + 1}, s[{SRD5}:{SRD5 + 3}], 0 offen sc1")
    a(f"s_mov_b32 s{sSC}, {fx(SCALE)}")
    a(f"s_cmp_eq_u32 s{sKD}, 0")
    a(f"s_cselect_b32 s{sSC}, {fx(SCALE * 2.0 ** FC.xscale)}, s{sSC}")
    a(f"v_bfe_u32 v{TMP}, v{vI}, 1, 1")
    a(f"v_lshlrev_b32 v{TMP}, 4, v{TMP}")
    a(f"v_mov_b32 v{TMP + 1}, 0xffff")
    a(f"v_lshlrev_b32 v{TMP}, v{TMP}, v{TMP + 1}")
    a(f"v_lshrrev_b32 v{TMP + 1}, 2, v{vI}")
    for k in range(4):
        a(f"v_cmp_eq_u32 vcc, {k}, v{TMP + 1}")
        a(f"v_cndmask_b32 v{MK + k}, 0, v{TMP}, vcc")
    a(f"v_and_b32 v{M2}, 1, v{vI}")
    a(f"v_cvt_f32_u32 v{vph}, v{M2}")
    a(f"v_mul_f32 v{vph}, 0.5, v{vph}")
    a(f"v_lshrrev_b32 v{vk0}, 1, v{vI}")
    a(f"v_cvt_f32_u32 v{vk0}, v{vk0}")
    a(f"v_mul_f32 v{vk0}, {fx(1 / 32)}, v{vk0}")
    a(f"v_cvt_f32_u32 v{vgf}, v{vG}")

    def gen_a1(base, fq, ph):
        t = TMP
        a(f"v_fma_f32 v{t}, v{vgf}, v{fq}, {ph}")
        for j in range(1, 5):
            a(f"v_fmamk_f32 v{t + j}, v{fq}, {fx(4.0 * j)}, v{t}")
        for j in range(5):
            a(f"v_cos_f32 v{t + j}, v{t + j}")
        for j in range(5):
            a(f"v_mul_f32 v{t + j}, s{sSC}, v{t + j}")
        for j in range(5):
            a(f"v_cvt_pk_bf16_f32 v{t + j}, v{t + j}, v{t + j}")
        for j in range(5):
            for k in range(4):
                a(f"v_and_b32 v{base + 4 * j + k}, v{MK + k}, v{t + j}")

    def angles(kf, ph):
        t = TMP
        a(f"v_mul_f32 v{t + 8}, v{vgf}, v{kf}")
        a(f"v_fma_f32 v{t}, v{t + 8}, 2.0, v{ph}")
        for k in range(1, 8):
            c = 16 * (k >> 2) + 8 * ((k >> 1) & 1) + (k & 1)
            a(f"v_fmamk_f32 v{t + k}, v{kf}, {fx(float(c))}, v{t}")

    def entry(pre, kind):
        if kind != "x":
            a.label(f"{pre}_{kind}")
        if kind == "w2":
            a(f"s_waitcnt vmcnt({3 + NP})")
            a.label(f"{pre}_w2b")
            srd_ws(a, SRD1, "WA2", WA2_SIZE)
        else:
            mark(a, "gen")
        par["even"] = True

    def leave(pre, kind, n):
        if kind == "w1":
            mark(a, "j1")
            a(f"s_cmp_gt_u32 s{sT}, 108")
            a(f"s_cbranch_scc1 {name}_end")
            if FC.w2_pre == 2:
                row_issue(vq20, FC.fl_l2, REGB)
                st = post(a, SRD3, FB, 1, MK, "s_waitcnt vmcnt(5)")
                a("s_barrier")
                a(st)
                mark(a, "p1")
                n = 1
            a(f"s_waitcnt vmcnt({n})")
            a(f"s_branch {pre}_w2b")
        else:
            if kind == "w2":
                a("s_waitcnt lgkmcnt(0)")
            a(f"s_branch {name}_xend" if kind == "x" else f"s_branch {name}_end")

    def addresses(kind):
        if kind == "x":
            filter_loads(range(FC.c_early, 6))
            filter_addr()
        if kind == "w1":
            w1_loads(range(FC.w_early, 5))
            a(f"v_and_b32 v{vr}, 1, v{vG}")
            a(f"v_lshlrev_b32 v{vr}, 7, v{vr}")
            a(f"v_lshl_add_u32 v{vr}, v{vG}, 10, v{vr}")
            a(f"v_lshl_add_u32 v{vr}, v{vI}, 3, v{vr}")
            a(f"v_xor_b32 v{vr + 1}, 128, v{vr}")
        else:
            a(f"v_and_b32 v{vr}, 4, v{vI}")
            a(f"v_lshlrev_b32 v{vr}, 1, v{vr}")
            a(f"v_xor_b32 v{vr}, v{vr}, v{vI}")
            a(f"v_lshlrev_b32 v{vr + 1}, 2, v{vG}")
            a(f"v_xor_b32 v{vr}, v{vr}, v{vr + 1}")
            a(f"v_lshlrev_b32 v{vr}, 4, v{vr}")
            a(f"v_lshl_add_u32 v{vr}, v{vI}, 8, v{vr}")
            for k in (1, 2, 3):
                a(f"v_xor_b32 v{vr + k}, {16 * k}, v{vr}")
        if kind == "x":
            a(f"v_and_b32 v{vld}, 1, v{vI}")
            a(f"v_lshl_add_u32 v{vo}, v{vG}, 1, v{vld}")
            a(vstr(vo, vo, XP_STR))
            a(f"v_and_b32 v{vld}, 14, v{vI}")
            a(f"v_lshl_add_u32 v{vo}, v{vld}, 3, v{vo}")
            a(sstr(sA, sQ, 16 * XP_STR))
            a(f"s_lshl_b32 s{sB}, s{sT}, 7")
            a(f"s_mov_b32 vcc_lo, 0x55555555")
            a(f"s_mov_b32 vcc_hi, 0x55555555")
        elif kind == "w1":
            a(f"v_lshlrev_b32 v{vo}, 4, v{vL}")
            a(f"s_lshl_b32 s{sA}, s{sQ}, 11")
            a(f"s_mul_i32 s{sB}, s{sFT}, 20480")
        else:
            a(f"v_lshrrev_b32 v{vo}, 1, v{vG}")
            a(f"v_mul_u32_u24 v{vo}, {KB_STR}, v{vo}")
            a(f"v_lshrrev_b32 v{vld}, 2, v{vI}")
            a(f"v_lshl_add_u32 v{vo}, v{vld}, 7, v{vo}")
            a(f"v_and_b32 v{vld}, 3, v{vI}")
            a(f"v_lshl_add_u32 v{vo}, v{vld}, 4, v{vo}")
            a(f"v_and_b32 v{vld}, 1, v{vG}")
            a(f"v_lshl_add_u32 v{vo}, v{vld}, 6, v{vo}")
            a(f"s_lshl_b32 s{sA}, s{sQ}, 10")
            a(f"s_mul_i32 s{sB}, s{sT}, {2 * KB_STR}")
        a(f"s_add_u32 s{sA}, s{sA}, s{sB}")
        a(f"v_add_u32 v{vo}, s{sA}, v{vo}")

    def reads(kind, first):
        if kind == "x":
            if not FC.early[0]:
                sync_start()
            mark(a, "l2")
            a(f"s_waitcnt vmcnt({9 + NP + FC.po[0]})")
        elif kind == "w1":
            w2_setup(vq20, ACCX + 1)
            if not FC.early[1]:
                sync_start()
            if FC.w2_pre == 1:
                row_issue(vq20, FC.fl_l2, REGB)
            mark(a, "l2")
            a(f"s_waitcnt vmcnt({5 * (FC.w2_pre == 1) + (0 if FC.early[1] == 1 else 3) + (NP if FC.w_early == 5 else 0)})")
        a("s_barrier")
        mark(a, "b2" if kind == "w2" else "b1")
        for beta in range(4):
            for j in range(5):
                if kind == "w1":
                    for eh in range(2):
                        a(f"ds_read_b64_tr_b16 {R(frag(beta, j) + 2 * eh, 2)}, v{vr + eh} offset:{4096 * j + 256 * beta}")
                else:
                    a(f"ds_read_b128 {R(frag(beta, j), 4)}, v{vr + beta} offset:{lbase[kind] + 4096 * j}")
        if kind == "w1" and not FC.w2_pre:
            row_issue(vq20, FC.fl_l2, REGB)
        if kind == "x":
            mark_unset(1, vld)
        if kind == "w2" and FC.t_late == 2:
            relayout()

    def relayout():
        z, b = vph, vk0
        a(f"v_bfe_u32 v{z}, v{vI}, 1, 1")
        a(f"v_lshl_add_u32 v{z}, v{vG}, 1, v{z}")
        a(f"v_lshrrev_b32 v{b}, 2, v{vI}")
        a(f"v_xor_b32 v{z}, v{z}, v{b}")
        a(f"v_lshlrev_b32 v{z}, 4, v{z}")
        a(f"v_lshl_add_u32 v{z}, v{b}, 8, v{z}")
        a(f"v_and_b32 v{b}, 1, v{vI}")
        a(f"v_lshl_add_u32 v{z}, v{b}, 3, v{z}")
        a(f"s_lshr_b32 s{sA}, s{sW}, 1")
        a(f"s_xor_b32 s{sB}, s{sA}, s{sW}")
        a(f"s_and_b32 s{sB}, s{sB}, 1")
        a(f"s_lshl4_add_u32 s{sA}, s{sA}, s{sB}")
        a(f"s_lshl_b32 s{sA}, s{sA}, 7")
        a(f"v_add_u32 v{z}, s{sA}, v{z}")
        a(f"v_xor_b32 v{b}, {1024 + 128 + 64}, v{z}")
        for j in range(5):
            for eh in range(2):
                a(f"ds_read_b64_tr_b16 {R(aTR + 4 * j + 2 * eh, 2)}, v{z + eh} offset:{REGB + j * 4096}")

    def dispatch(pre):
        for kind in KINDS[1:]:
            a(f"s_cmp_eq_u32 s{sKD}, {kind[-1]}")
            a(f"s_cbranch_scc1 {pre}_{kind}")

    def stage1(sc, n, extra=None):
        for beta in range(4):
            c = 4 * n + beta
            acc = ACC1 + 4 * (c % 4)
            for j in range(5):
                sc.mfma(acc, A1 + 20 * n + 4 * j, frag(beta, j), None if j == 0 else acc,
                        needs=[("y", c - 4)] if j == 0 and c >= 4 else [])
            rdy = sc.n + 5
            if extra:
                extra(beta, acc, rdy, ("y", c))
            for h in range(2):
                sc.add(f"v_cvt_pk_bf16_f32 v{Y + 2 * c + h}, v{acc + 2 * h}, v{acc + 2 * h + 1}", rdy, ("y", c))

    par = {"even": True}
    QP = "quad_perm:[1,0,3,2] row_mask:0xf bank_mask:0xf"

    def stage2(kind, sc, n, u, mat, acc, needs, fix=None):
        for tl in range(2):
            for kp in range(2):
                d = acc + 4 * tl
                m, y = mat + (tl * 2 + kp) * 4, Y + 8 * n + 4 * kp
                nd = list(needs) + [("y", 4 * n + 2 * kp), ("y", 4 * n + 2 * kp + 1)]
                if kind == "w2":
                    sc.mfma(d, y, m, None if kp == 0 else d, needs=nd)
                else:
                    sc.mfma(d, m, y, None if kp == 0 else d, needs=nd)
        rdy, key = sc.n + 3, ("o", n, u)
        if fix:
            fix(rdy, key)
        for k in range(4):
            sc.add(f"v_cvt_pk_bf16_f32 v{acc + k}, v{acc + 2 * k}, v{acc + 2 * k + 1}", rdy, key)
        if kind == "x":
            for ph in range(2):
                lo = par["even"]
                for k in range(2):
                    if lo:
                        sc.add(f"v_cndmask_b32_dpp v{acc + 4 + k}, v{acc + 2 + k}, v{acc + k}, vcc {QP}", rdy, key)
                    else:
                        sc.add(f"v_cndmask_b32_dpp v{acc + 6 + k}, v{acc + k}, v{acc + 2 + k}, vcc {QP}", rdy, key)
                if ph == 0:
                    sc.add("s_not_b64 vcc, vcc", rdy, key)
                    par["even"] = not lo

            def st():
                a(f"s_mov_b32 s{sOP}, {(16 * n + 8 * u) * XP_STR}")
                a(f"buffer_store_dwordx4 {V(acc + 4, 4)}, v{vo}, s[{SRD1}:{SRD1 + 3}], s{sOP} offen{FC.fs[0]}")
            sc.add(st, rdy, key)
        elif kind == "w1":
            def st():
                a(f"s_mov_b32 s{sOP}, {(2 * n + u) * 1024}")
                a(f"buffer_store_dwordx4 {V(acc, 4)}, v{vo}, s[{SRD1}:{SRD1 + 3}], s{sOP} offen{FC.fs[2]}")
            sc.add(st, rdy, key)
        else:
            sc.add(f"v_permlane16_swap_b32 v{acc}, v{acc + 2}", rdy, key)
            sc.add(f"v_permlane16_swap_b32 v{acc + 1}, v{acc + 3}", rdy, key)
            sc.add(f"buffer_store_dwordx4 {V(acc, 4)}, v{vo}, s[{SRD1}:{SRD1 + 3}], 0 offen offset:{1024 * n + 512 * u}{FC.fs[3]}",
                   rdy, key)

    a(f"s_cmp_eq_u32 s{sW}, 3")
    a(f"s_cbranch_scc1 {name}_sp")

    a(f"s_mul_i32 s{sQ}, s{sW}, 3")
    a(f"s_add_u32 s{sQ}, s{sQ}, 1")
    a(f"v_mul_f32 v{vph}, 0.5, v{vph}")
    a(f"v_cvt_f32_u32 v{vq20}, s{sQ}")
    a(f"v_fmamk_f32 v{vk0}, v{vq20}, {fx(1 / 640)}, v{vk0}")
    a(f"v_mul_f32 v{vq20}, {fx(1 / 20)}, v{vq20}")
    a(f"v_mul_u32_u24 v{M2}, 0x8000, v{M2}")
    a(f"v_lshl_or_b32 v{M2}, v{M2}, 16, v{M2}")
    a(f"v_xor_b32 v{M2N}, {SIGN2:#x}, v{M2}")
    a(f"v_and_b32 v{M1}, 1, v{vG}")
    a(f"v_mul_u32_u24 v{M1}, 0x8000, v{M1}")
    a(f"v_lshl_or_b32 v{M1}, v{M1}, 16, v{M1}")
    for n in range(3):
        if n:
            a(f"v_add_f32 v{vk0}, {fx(1 / 640)}, v{vk0}")
            a(f"v_add_f32 v{vq20}, {fx(1 / 20)}, v{vq20}")
        gen_a1(A1 + 20 * n, vq20, f"v{vph}")
        angles(vk0, vph)
        for k in range(8):
            a(f"v_sin_f32 v{TMP + 8 + k}, v{TMP + k}")
            a(f"v_cos_f32 v{TMP + k}, v{TMP + k}")
        b = A2 + 16 * n
        for k in range(8):
            a(f"v_cvt_pk_bf16_f32 v{b + k}, v{TMP + k}, v{TMP + 8 + k}")
            if k & 1:
                a(f"v_cvt_pk_bf16_f32 v{b + 8 + k}, -v{TMP + 8 + k}, v{TMP + k}")
        for k in range(8):
            a(f"v_xor_b32 v{b + 8 + k}, v{M1}, v{b + (8 if k & 1 else 0) + k}")
    dispatch(f"{name}_t")
    for kind in KINDS:
        entry(f"{name}_t", kind)
        addresses(kind)
        reads(kind, True)
        sc = Sched(a)
        dm = [256 + 16 * n if kind == "w1" else A1 + 20 * n for n in range(3)]

        def keep(beta, acc, rdy, key, n):
            for k in range(4 * beta, 4 * beta + 4):
                sc.add(f"v_xor_b32 v{MK + (k & 3)}, v{M2N if k & 1 else M2}, v{A2 + 16 * n + k}", -1, ("d", n))
            for k in range(4 * beta, 4 * beta + 4):
                sc.add(f"v_accvgpr_write_b32 {R(dm[n] + k)}, v{MK + (k & 3)}", -1, ("d", n))

        for n in range(3):
            if kind == "w1":
                stage1(sc, n, lambda *x: keep(*x, n))
                continue
            stage1(sc, n)
            for k in range(16):
                sc.add(f"v_xor_b32 v{A1 + 20 * n + k}, v{M2N if k & 1 else M2}, v{A2 + 16 * n + k}", sc.n, ("d", n))
            if kind == "w2" and FC.w2_pre != 2 and n == FC.p1_at:
                st = post(a, SRD3, FB, 1, MK, "s_waitcnt vmcnt(0)")
                a(f"s_lshl_b32 s{sA}, s{sKD}, 19")
                a(f"s_and_b32 s{sA}, s{sA}, {1 << 20}")
                a(f"v_add_u32 v{MK + 2}, s{sA}, v{MK + 2}")
                a("s_barrier")
                a(st)
                mark(a, "p1")
                if FC.t_late == 1:
                    relayout()
        bufs = [ACCX, ACC1, ACC1 + 8]
        hist = [[], [("y", 8), ("y", 9)], [("y", 10), ("y", 11)]]
        for k in range(6):
            n, u = divmod(k, 2)
            needs = hist[k] if k < 3 else [("o",) + divmod(k - 3, 2)]
            if u:
                needs = needs + [("d", n)]
            stage2(kind, sc, n, u, dm[n] if u else A2 + 16 * n, bufs[k % 3], needs)
        sc.flush()
        if kind == "x":
            a(f"s_waitcnt vmcnt({6 + NX + FC.po[1]})")
        leave(f"{name}_t", kind, 6)

    a.label(f"{name}_sp")
    a(f"s_mov_b32 s{sQ}, 0")
    gen_a1(A1, vph, "0")
    a(f"v_mul_f32 v{vph}, 0.5, v{vph}")
    kf, ph = vq20, M1
    for tau in range(4):
        if tau == 0:
            a(f"v_cmp_eq_u32 vcc, 0, v{vI}")
            a(f"v_mov_b32 v{kf}, 0.5")
            a(f"v_cndmask_b32 v{kf}, v{vk0}, v{kf}, vcc")
            a(f"v_cmp_gt_u32 vcc, 2, v{vI}")
            a(f"v_mov_b32 v{ph}, {fx(0.125)}")
            a(f"v_cndmask_b32 v{ph}, v{vph}, v{ph}, vcc")
        else:
            a(f"v_add_f32 v{kf}, {fx(tau / 4 + (10 / 640 if tau >= 2 else 0))}, v{vk0}")
            a(f"v_mul_f32 v{ph}, {'-1.0' if tau >= 2 else '1.0'}, v{vph}")
        angles(kf, ph)
        for k in range(8):
            a(f"v_cos_f32 v{TMP + k}, v{TMP + k}")
        for k in range(8):
            d = A2 + 8 * tau + k
            a(f"v_cvt_pk_bf16_f32 v{d}, v{TMP + k}, 0" if tau < 2 else f"v_cvt_pk_bf16_f32 v{d}, 0, v{TMP + k}")
    dispatch(f"{name}_s")
    X0 = A2 + 32
    vs, vz, vb, GR, SM, T = X0, X0 + 1, X0 + 2, X0 + 4, X0 + 8, X0 + 12
    TR = A1 + 20
    DIAG = (4, 6, 30, 70)
    for kind in KINDS:
        entry(f"{name}_s", kind)
        addresses(kind)
        if kind == "x":
            srd_ws(a, SRD2, "SS0", SS_SIZE)
            a(f"s_lshr_b32 s{sA}, s{sT}, 4")
            a(f"s_lshl_b32 s{sA}, s{sA}, 10")
            a(f"s_and_b32 s{sB}, s{sT}, 7")
            a(f"s_lshl_b32 s{sB}, s{sB}, 7")
            a(f"s_add_u32 s{sA}, s{sA}, s{sB}")
            a(f"s_and_b32 s{sB}, s{sT}, 8")
            a(f"s_add_u32 s{sA}, s{sA}, s{sB}")
            a(f"v_lshrrev_b32 v{vs}, 1, v{vI}")
            a(f"v_lshlrev_b32 v{vs}, 4, v{vs}")
            a(f"v_lshl_add_u32 v{vs}, v{M2}, 2, v{vs}")
            a(f"v_lshl_add_u32 v{vs}, v{vG}, 20, v{vs}")
            a(f"v_add_u32 v{vs}, s{sA}, v{vs}")
            for r in range(4):
                m = 0x1000010000100001 << r
                a(f"s_mov_b32 s{DIAG[r]}, {m & 0xffffffff:#x}")
                a(f"s_mov_b32 s{DIAG[r] + 1}, {m >> 32:#x}")
        if kind == "w1":
            a(f"s_mov_b64 s[{sM0}:{sM1}], 0xffff")
        if kind == "w2" and not FC.t_late:
            srd_ws(a, SRD2, "W2T", W2T_SIZE)
            a(f"v_bfe_u32 v{vz}, v{vI}, 1, 1")
            a(f"v_lshl_add_u32 v{vz}, v{vG}, 1, v{vz}")
            a(f"v_lshrrev_b32 v{vb}, 2, v{vI}")
            a(f"v_xor_b32 v{vz}, v{vz}, v{vb}")
            a(f"v_lshlrev_b32 v{vz}, 4, v{vz}")
            a(f"v_lshl_add_u32 v{vz}, v{vb}, 8, v{vz}")
            a(f"v_lshl_add_u32 v{vz}, v{M2}, 3, v{vz}")
            a(f"v_xor_b32 v{vb}, {1024 + 64}, v{vz}")
            a(f"s_mul_i32 s{sA}, s{sT}, {2 * KB_STR}")
            a(f"v_lshl_add_u32 v{vs}, v{vL}, 4, s{sA}")
        reads(kind, False)
        sc = Sched(a)

        def tr_read(n):
            h, x = divmod(n, 10)
            return [f"ds_read_b64_tr_b16 {V(TR + 4 * (n % 10) + 2 * eh, 2)}, v{vz + eh} "
                    f"offset:{REGB + (x >> 1) * 4096 + h * 2048 + 128 * ((x ^ h ^ eh) & 1)}" for eh in range(2)]

        def tr_store(n):
            if n % 4 == 0:
                a(f"s_mov_b32 s{sOQ}, {n * 1024}")
            a(f"buffer_store_dwordx4 {V(TR + 4 * (n % 10), 4)}, v{vs}, s[{SRD2}:{SRD2 + 3}], s{sOQ} offen offset:{(n % 4) * 1024}{FC.fs[4]}")

        if kind == "w2" and not FC.t_late:
            for n in range(10):
                for op in tr_read(n):
                    a(op)

        def sums(beta, acc, rdy, key):
            sc.add(f"v_add_f32 v{SM + beta}, v{acc}, v{acc + 2}", rdy, key)

        stage1(sc, 0, sums if kind == "x" else None)
        if kind == "x":
            for k in range(10):
                sc.mfma(GR, DAT + 4 * k, DAT + 4 * k, None if k == 0 else GR)

        def fix(rdy, key):
            sc.add(f"v_accvgpr_read_b32 v{vb}, {R(aB)}", rdy, key)
            sc.add(f"v_lshlrev_b32 v{vb}, 16, v{vb}", rdy, key)
            sc.add(f"v_cndmask_b32_e64 v{ACCX + 1}, v{ACCX + 1}, v{vb}, s[{sM0}:{sM1}]", rdy, key)

        if kind == "w2" and FC.t_late:
            if FC.t_late == 1:
                relayout()
            a("s_waitcnt vmcnt(0)")
            a("s_barrier")
        elif kind == "w2":
            sc.flush()
            for n in range(10):
                tr_store(n)
                for op in tr_read(n + 10):
                    a(op)
                if n == FC.t_pre - 1 and FC.w2_pre != 2:
                    a(f"s_waitcnt vmcnt({FC.t_pre})")
                    a("s_barrier")
        stage2(kind, sc, 0, 0, A2, ACCX, [], fix if kind == "w1" else None)
        stage2(kind, sc, 0, 1, A2 + 16, ACC1, [("y", 0), ("y", 1)])
        if kind == "w2" and not FC.t_late:
            for n in range(10, 20):
                tr_store(n)
        if kind == "x":
            sc.add(f"v_add_f32 v{SM}, v{SM}, v{SM + 1}")
            sc.add(f"v_add_f32 v{SM + 2}, v{SM + 2}, v{SM + 3}")
            sc.add(f"v_add_f32 v{SM}, v{SM}, v{SM + 2}")
            for op in ("v_permlane32_swap_b32", "v_permlane16_swap_b32"):
                sc.add(f"v_mov_b32 v{SM + 1}, v{SM}")
                sc.add(f"{op} v{SM}, v{SM + 1}")
                sc.add(f"v_add_f32 v{SM}, v{SM}, v{SM + 1}")
            sc.add(f"v_mul_f32 v{SM}, {fx(2.0 ** -FC.xscale)}, v{SM}")
            sc.add(f"v_mul_f32 v{SM}, v{SM}, v{SM}")
            for k in range(10, 20):
                sc.mfma(GR, DAT + 4 * k, DAT + 4 * k, GR)
        sc.flush()
        if kind == "x":
            for r in range(4):
                prev = "0" if r == 0 else f"v{T}"
                a(f"v_cndmask_b32_e64 v{T}, {prev}, v{GR + r}, s[{DIAG[r]}:{DIAG[r] + 1}]")
            for op in ("v_permlane32_swap_b32", "v_permlane16_swap_b32"):
                a(f"v_mov_b32 v{T + 1}, v{T}")
                a(f"{op} v{T}, v{T + 1}")
                a(f"v_add_f32 v{T}, v{T}, v{T + 1}")
            a(f"v_fmamk_f32 v{T}, v{SM}, {fx(-1.0 / (model2.SC * model2.SC * DM))}, v{T}")
            a(f"v_max_f32 v{T}, 0, v{T}")
            a(f"buffer_store_dword v{T}, v{vs}, s[{SRD2}:{SRD2 + 3}], 0 offen sc1")
            a(f"s_waitcnt vmcnt({3 + NX + FC.po[1]})")
        leave(f"{name}_s", kind, 2)

    a.label(f"{name}_xend")
    mark(a, "j1")
    filter_job()
    mark_unset(2, vld)
    a.label(f"{name}_end")
    mark(a, "j2")
    a(f"s_mov_b32 s{sT}, s2")
```

```python
from gen import *
import gen
import f0
import model2
from p0 import Sched, fx
from f0 import READY, POST, HINT, DONE, DONE2, aF
from asmlib import TRANS

GELU_K0 = -2.0 * 0.7978845608028654 * 1.4426950408889634
EPS = 1e-5
SPIN_MAX = 1 << 14
NCOL = 160
TILE = 20480
LDS_RK = 16384
LDS_X = LDS_RED = 0
PX = 0
S_LO, S_X = -97, (-24, 24)
UP = [s - S_LO for s in S_X]
T_X = [2.0 ** (d - 127) for d in UP]
T_H, H_OFF = T_X[0], -2.0 ** -40

SRDQ, SRDF, SRDW, SRDP = 8, 12, SRD4, SRD5
sDC, sRP, sHO, sTB = 16, 17, 18, 19
sRB, sMM, sFL, sCNT, sGA, sGB = 96, 97, 98, 99, 100, 101
sMSK, sCQ = 26, 27
sPK, sEB = 20, 21
vW, vo, vp, vd2, vtc = 10, 11, 15, 14, 5
WR, NW, NP = 256, 8, 11
aPO = WR
aST, aDUM, vdc = 256 + 252, 256 + 253, 256 + 254
NS = 14


class FZ:
    look = 10
    pre_p = (8, 8)
    burst = ((0, 8), (4, 0))
    period = (90, 90)
    stop = ("x2", "x2")
    hint_at = ("x1", "x1")
    po_every = 5
    cap = 12
    row = 70
    srow = 120
    lat = 750
    dbl = (12, 15)
    xc_at = 1
    b_pre = 0
    pure = (2, 1)
    in_b = (5, 3)
    in_e = 5
    g2pk = (1, 1)
    qdel = (1600, 1600)
    qc_rem = 7
    split0 = 1
    ktail = 3
    rd_at = (("b", 1), ("b", 8))
    x3 = (("g", 3), ("g", 6), ("g", 8))
    res_at = ("g", 7)
    ebar = 1
    e_ok = 17
    marks = None
    clk = 0
    halt = 0
    verbose = 0
    map = 2
    post = 'bar2'
    x_nocnt = 0
    x_op = 'buffer-atomic-add-f32'
    wgap = 48
    park = (3, 2)
    gbar = 5
    ft_pf = 1
    p_lead = (14, 14)
    r_q = 2
    qf = (" sc1", " sc1")
    xf = (" sc1", " sc1")
    hf = " sc1"
    d2_at = (30, 30)
    t2_at = (35, 35)
    d3_at = 0
    t_gate = ()
    tch = 0
    tch_at = ("g", 1)
    h_early = (12, 0)
    p_early = 1
    ack_at = 2
    single = 0
    probe_x = None
    probe = None
    virt = 1
    dbg = None
    pof = " sc1"
    shrink = 1
    drop = ("c1a", "c2a", "c1b2", "c2b2", "m1H", "m2H", "m1P", "m2P", "c2ld", "c2x1", "c1rp", "c1rb", "c1ru", "c1rv")


class Marks:
    def __init__(self):
        self.names, self.pend = [], []

    def __call__(self, a, name):
        if FZ.probe and name in FZ.probe[1:]:
            if FZ.probe_x is not None:
                a.raw(f"    s_and_b32 s{sST + 2}, s2, 7")
                a.raw(f"    s_cmp_lg_u32 s{sST + 2}, {FZ.probe_x}")
                a.raw(f"    s_cbranch_scc1 probe_{name}_x")
            a.label(f"probe_{name}", keep=True)
            a.raw(f"    s_memrealtime s[{sST + 2}:{sST + 3}]")
            a.raw("    s_waitcnt lgkmcnt(0)")
            a.raw(f"    s_sub_u32 s{sST + 2}, s{sST + 2}, s{sST}")
            a.raw(f"    s_cmp_lt_u32 s{sST + 2}, {FZ.probe[0] * 100}")
            a.raw(f"    s_cbranch_scc1 probe_{name}")
            a.label(f"probe_{name}_x", keep=True)
        if not Cfg.stamp or (name in FZ.drop if FZ.marks is None else name not in FZ.marks):
            return
        k = len(self.pend)
        assert k < 12, name
        self.pend.append(len(self.names))
        self.names.append(name)
        a(f"{'s_memtime' if FZ.clk else 's_memrealtime'} s[{sST + 2 * k}:{sST + 2 * k + 1}]")

    def fixed(self, a, name):
        if not Cfg.stamp or FZ.marks is not None:
            return
        name = "f" + name
        if name not in self.names:
            self.pend.append(len(self.names))
            self.names.append(name)
        k = self.pend.index(self.names.index(name))
        a(f"s_memrealtime s[{sST + 2 * k}:{sST + 2 * k + 1}]")

    def stash(self, a, tmp):
        if not self.pend:
            return
        a("s_waitcnt lgkmcnt(0)")
        a(f"v_accvgpr_read_b32 v{tmp}, {R(aST)}")
        for k, lane in enumerate(self.pend):
            a(f"v_writelane_b32 v{tmp}, s{sST + 2 * k}, {lane}")
        a(f"v_writelane_b32 v{tmp}, s{sCNT}, {len(self.names)}")
        self.names.append("#" + self.names[self.pend[-1]])
        assert len(self.names) < 63
        a(f"v_accvgpr_write_b32 {R(aST)}, v{tmp}")
        self.pend = []


mk = Marks()


def preg(u, p):
    return WR + (0 if u == NP else 4 * NW + 20 * (u % (NP + 1))) + 4 * p


def kblock(u):
    return 2 * (14 * (u & 1) + (u >> 1))


def decode(a, sT):
    a(f"s_and_b32 s{sA}, s{sT}, 7")
    if FZ.map == 1:
        a(f"s_bfe_u32 s{sRB}, s{sT}, 0x10003")
        a(f"s_lshl1_add_u32 s{sRB}, s{sA}, s{sRB}")
        a(f"s_lshr_b32 s{sMM}, s{sT}, 4")
    else:
        a(f"s_lshr_b32 s{sB}, s{sA}, 1")
        a(f"s_lshl_b32 s{sB}, s{sB}, 2")
        a(f"s_bfe_u32 s{sRB}, s{sT}, {0x20006 if FZ.map == 2 else 0x20003:#x}")
        a(f"s_add_u32 s{sRB}, s{sRB}, s{sB}")
        a(f"s_and_b32 s{sA}, s{sA}, 1")
        a(f"s_lshl_b32 s{sA}, s{sA}, 3")
        a(f"s_bfe_u32 s{sMM}, s{sT}, {0x30003 if FZ.map == 2 else 0x30005:#x}")
        a(f"s_add_u32 s{sMM}, s{sMM}, s{sA}")
    a(f"s_lshl_b32 s{sFL}, s{sRB}, 7")


def begin(a):
    srd_ws(a, SRDF, "FLAG", FLAG_SIZE)
    srd_ws(a, SRDQ, "H", H_SIZE)
    a(f"s_mov_b32 s{sCNT}, 0")
    for k in range(0 if any(f0.FC.po) else 4):
        a(f"v_accvgpr_write_b32 {R(aPO + k)}, -1")
    if Cfg.stamp:
        a(f"v_accvgpr_write_b32 {R(aST)}, 0")


def pre_setup(a, ph, t0, tt):
    if not ph:
        a(f"s_and_b32 s{sA}, s{sMM}, 3")
        a(f"s_cmp_eq_u32 s{sA}, 3")
        a(f"s_cselect_b32 s{sMSK}, 0x40000000, 0")
        a(f"s_lshr_b32 s{sB}, s{sMM}, 3")
        a(f"s_lshl2_add_u32 s{sDC}, s{sB}, s{sA}")
        a(f"s_mul_i32 s{sTB}, s{sMM}, 7")
        a(f"s_lshr_b32 s{sB}, s{sMM}, 2")
        a(f"s_sub_u32 s{sTB}, s{sTB}, s{sB}")
        a(f"s_mul_i32 s{sPK}, s{sW}, {TILE // 4}")
        a(f"s_mul_i32 s{sEB}, s{sW}, {3 * TILE // 4}")
        if HC:
            a(f"s_mul_i32 s{sA}, s{sRB}, {H_GRP - H_STR}")
            a(f"s_add_u32 s{SRDQ}, s{SRDQ}, s{sA}")
            a(f"s_addc_u32 s{SRDQ + 1}, s{SRDQ + 1}, 0")
            a(f"s_lshl4_add_u32 s{SRDQ + 2}, s{sFL}, {216 * H_STR}")
    a(f"s_mul_i32 s{sE}, s{sW}, {(2 if ph else 7) * TILE // 4}")
    a(f"s_add_u32 m0, s{sE}, {TILE}")
    a(f"v_lshlrev_b32 v{vW}, 4, v{vL}")
    a(f"s_mul_i32 s{sA}, s{sTB}, {TILE}")
    a(f"s_add_u32 s{sA}, s{sA}, {WS['W1F'] - TILE}")
    a(f"s_add_u32 s{SRDW}, s{P_WS}, s{sA}")
    a(f"s_addc_u32 s{SRDW + 1}, s{P_WS + 1}, 0")
    a(f"s_and_b32 s{SRDW + 1}, s{SRDW + 1}, 0xffff")
    a(f"s_mov_b32 s{SRDW + 2}, {8 * TILE}")
    a(f"s_cmp_lg_u32 s{sMSK}, 0")
    a(f"s_cselect_b32 s{SRDW + 2}, {7 * TILE}, s{SRDW + 2}")
    a(f"s_mov_b32 s{SRDW + 3}, 0x20000")
    if not ph and FZ.tch & 1:
        a(f"s_and_b32 s{sA}, s{sRB}, 3")
        a(f"s_lshl_b32 s{sA}, s{sA}, 13")
        a(f"v_lshl_add_u32 v{tt}, v{vL}, 7, s{sA}")
        a(f"buffer_load_dword {R(aDUM)}, v{tt}, s[{SRDW}:{SRDW + 3}], m0 offen offset:3072", tag="touch")
    a(f"v_lshrrev_b32 v{vo}, 1, v{vG}")
    a(f"v_and_b32 v{t0}, 1, v{vG}")
    if not ph:
        a(f"v_mad_u32_u24 v{vp}, v{vo}, 14, v{t0}")
        a(f"v_mul_u32_u24 v{vp}, {KB_STR}, v{vp}")
        a(f"v_lshl_add_u32 v{vp}, v{vI}, 4, v{vp}")
        a(f"s_mul_i32 s{sA}, s{sDC}, 1280")
        a(f"s_mul_i32 s{sB}, s{sW}, {54 * KB_STR}")
        a(f"s_add_u32 s{sA}, s{sA}, s{sB}")
        a(f"v_add_u32 v{vp}, s{sA}, v{vp}")
        if FZ.tch & 2:
            a(f"s_add_u32 s{sA}, s{sA}, {2 * KB_STR}")
            a(f"s_and_b32 s{sB}, s{sRB}, 3")
            a(f"s_and_b32 s{sC}, s{sMM}, 4")
            a(f"s_lshl3_add_u32 s{sB}, s{sB}, s{sC}")
            a(f"s_lshl_b32 s{sB}, s{sB}, 4")
            a(f"v_add_u32 v{vtc}, s{sB}, v{vL}")
            a(f"v_mul_u32_u24 v{tt + 1}, 6554, v{vtc}")
            a(f"v_lshrrev_b32 v{tt + 1}, 16, v{tt + 1}")
            a(f"v_mul_u32_u24 v{tt + 1}, {KB_STR - 1280}, v{tt + 1}")
            a(f"v_lshl_add_u32 v{vtc}, v{vtc}, 7, v{tt + 1}")
            a(f"v_add_u32 v{vtc}, s{sA}, v{vtc}")
    a(vstr(vo, vo, H_STR))
    a(f"v_lshl_add_u32 v{vo}, v{vI}, 5, v{vo}")
    a(f"v_lshl_add_u32 v{vo}, v{t0}, 4, v{vo}")
    a(sstr(sA, sTB, 2 * H_STR))
    a(f"s_lshl4_add_u32 s{sA}, s{sFL}, s{sA}")
    a(f"s_lshl_b32 s{sB}, s{sW}, 9")
    a(f"s_add_u32 s{sA}, s{sA}, s{sB}")
    a(f"v_add_u32 v{vo}, s{sA}, v{vo}")
    if ph:
        a(f"s_add_u32 s{SRDP}, s{SRDP}, {WS['W2T'] - WS['WA2']}")
        a(f"s_addc_u32 s{SRDP + 1}, s{SRDP + 1}, 0")
    else:
        a(f"v_add_u32 v{t0}, s{sMSK}, v{vo}")
        srd_ws(a, SRDP, "WA2", 218 * KB_STR)
        a(f"s_add_u32 s{sA}, s{sW}, 1")
        a(f"s_mul_i32 s{sA}, s{sA}, {54 * KB_STR}")
        a(f"s_cmp_eq_u32 s{sW}, 3")
        a(f"s_cselect_b32 s{SRDP + 2}, s{SRDP + 2}, s{sA}")


def rank_put(a, t):
    a(f"s_getreg_b32 s{sB}, {f0.XCC}")
    a(f"s_lshl_b32 s{sB}, s{sB}, 20")
    a(f"s_lshl_b32 s{sA}, s3, 7")
    a(f"s_add_u32 s{sA}, s{sA}, s{sB}")
    a(f"s_add_u32 s{sA}, s{sA}, {DONE}")
    a(f"v_and_b32 v{t + 1}, 7, v{t + 1}")
    a(f"v_lshl_add_u32 v{t + 1}, v{t + 1}, 20, v{t}")
    a(f"v_cmp_gt_u32 vcc, s{sA}, v{t + 1}")
    a(f"s_lshl_b32 s{sB}, s{sW}, 2")
    a(f"v_mov_b32 v{t}, s{sB}")
    a(f"s_bcnt1_i32_b64 s{sA}, vcc")
    a(f"v_mov_b32 v{t + 1}, s{sA}")
    a(f"ds_write_b32 v{t}, v{t + 1} offset:{LDS_RK}")
    a(f"v_mov_b32 v{t}, 0")
    a("s_waitcnt lgkmcnt(0)")


def rank_get(a, t):
    a(f"ds_read_b128 {V(t, 4)}, v{t} offset:{LDS_RK}")
    a(f"v_add_u32 v{t}, v{t}, v{t + 1}")
    a(f"v_add3_u32 v{t}, v{t}, v{t + 2}, v{t + 3}")
    a(f"v_readfirstlane_b32 s{sGA}, v{t}")
    a(f"s_and_b32 s{sA}, s{sGA}, 31")
    a(f"s_bfe_u32 s{sGA}, s{sGA}, 0x30005")
    a(f"s_lshl3_add_u32 s{sGA}, s{sA}, s{sGA}")
    decode(a, sGA if FZ.virt else sT)


def w2_flags(ph):
    return [f"s_mul_i32 s{sOP}, s{sW}, 27",
            f"v_min_u32 v{vd2}, 27, v{vL}",
            f"v_add_u32 v{vd2}, s{sOP}, v{vd2}",
            f"v_sub_u32 v{vd2}, {f0.W2TOP}, v{vd2}",
            f"v_lshlrev_b32 v{vd2}, 7, v{vd2}",
            f"s_mov_b32 s{sOP}, {DONE2 + 4 * ph}",
            f"buffer_load_dword v{vd2}, v{vd2}, s[{SRDF}:{SRDF + 3}], s{sOP} offen sc1"]


def w2_test(a, nm, ph):
    a(f"v_cmp_eq_u32 vcc, 0, v{vd2}")
    a(f"s_cbranch_vccnz {nm}_w2")
    a.label(f"{nm}_w2ok", keep=True)

    def spin():
        a.label(f"{nm}_w2")
        for x in w2_flags(ph):
            a(x)
        budget(a, f"{nm}_w2out")
        a(f"v_cmp_eq_u32 vcc, 0, v{vd2}")
        a(f"s_cbranch_vccnz {nm}_w2")
        a.label(f"{nm}_w2out")
        a("s_waitcnt vmcnt(0)")
        a(f"s_branch {nm}_w2ok")
    a.tail.append(spin)


def front_wait(a, nm, t, between=None):
    f0.lane_blocks(a, t, t + 1, 0)
    ld = f"buffer_load_dword v{t + 1}, v{t}, s[{SRDF}:{SRDF + 3}], 0 offen sc1"
    if between:
        a(ld)
        between()
        a(f"v_accvgpr_read_b32 v{t + 2}, {R(aF)}")
        a.wait_regs(f"v{t + 1}")
        a(f"s_branch {nm}_fwt")
    else:
        a(f"v_accvgpr_read_b32 v{t + 2}, {R(aF)}")
    a.label(f"{nm}_fw")
    a(ld)
    budget(a, f"{nm}_fwok")
    if between:
        a("s_waitcnt vmcnt(0)")
        a.label(f"{nm}_fwt")
    a(f"v_cmp_eq_u32 vcc, v{t + 2}, v{t + 1}")
    if FZ.shrink:
        a(f"s_cbranch_vccz {nm}_fwok")
        a("s_mov_b64 exec, vcc")
        a(f"s_branch {nm}_fw")
    else:
        a(f"s_cbranch_vccnz {nm}_fw")
    a.label(f"{nm}_fwok")
    if FZ.shrink:
        a("s_mov_b64 exec, -1")
    if not between:
        a("s_waitcnt vmcnt(0)")


def pre_ops(ph, t0, nm):
    po, ops = [], []
    for k in range(0 if ph or any(f0.FC.po) else 7):
        po.append([f"s_mov_b32 s{sOQ}, {k * 2 * H_STR}",
                   f"buffer_store_dwordx4 {R(aPO, 4)}, v{t0 if k == 6 else vo}, s[{SRDQ}:{SRDQ + 3}], s{sOQ} offen{FZ.pof}"])
    n = 10 if ph else 35
    for k in range(n):
        g = [f"buffer_load_dwordx4 v{vW}, s[{SRDW}:{SRDW + 3}], m0 offen offset:{(k & 3) * 1024} lds"]
        if k & 3 == 3:
            g.append("s_add_u32 m0, m0, 4096")
        ops.append(g)
    for u in range(FZ.pre_p[ph]):
        for p in range(5):
            g = [f"buffer_load_dwordx4 {R(preg(u, p), 4)}, v{vp}, s[{SRDP}:{SRDP + 3}], s{sOP} offen offset:{p * 256}"]
            ops.append(([f"s_mov_b32 s{sOP}, {kblock(u) * KB_STR}"] if p == 0 else []) + g)
    if not ph:
        k = nm[0] == "n"
        if FZ.tch & 2:
            ops.insert(FZ.t2_at[k], [lambda a: a(
                f"buffer_load_dword {R(aDUM)}, v{vtc}, s[{SRDP}:{SRDP + 3}], 0 offen", tag="touch")])
        ops[FZ.t2_at[k]].insert(0, lambda a: w2_test(a, nm, 0))
        ops.insert(FZ.d2_at[k], w2_flags(0))
    elif f0.FC.t_late:
        ops[n].insert(0, lambda a: w2_test(a, nm, 1))
        ops.insert(FZ.d3_at, w2_flags(1))
    out = []
    for k, op in enumerate(ops):
        out.append(op)
        if k % FZ.po_every == FZ.po_every - 1 and po:
            out.append(po.pop(0))
    assert not po
    return out


class Paced:
    def __init__(self, a, ops, period):
        self.a, self.ops, self.period = a, ops, period
        self.on = False
        self.t = 0

    def burst(self, n):
        for _ in range(min(n, len(self.ops))):
            for x in self.ops.pop(0):
                x(self.a) if callable(x) else self.a(x)

    def __call__(self, text, tag=None):
        self.a(text, tag)
        if self.on:
            op = text.split()[0]
            self.t += 16 if op.startswith("v_mfma") else 8 if op in TRANS else 4
            if self.t >= self.period:
                self.t -= self.period
                self.burst(1)

    def __getattr__(self, n):
        return getattr(self.a, n)


def budget(a, out):
    a(f"s_add_u32 s{sCNT}, s{sCNT}, 1")
    a(f"s_cmp_ge_u32 s{sCNT}, {SPIN_MAX}")
    a(f"s_cbranch_scc1 {out}")


def col_phase(a0, ph):
    vx, vw, vl0, vt0, vh = 4, 5, 6, 12, 13
    raw, ss, wraw = 16, 32, 40
    M1, M2 = 56, 88
    T1, T2 = 120, 136
    ACC, FO, TMP, WU0 = 152, 184, 200, 232
    vmI, fi, fg, fa, fb = 176, 177, 178, 179, 180
    SL = ACC
    FGR = [TMP + 4 * k for k in range(8)] + [ss, ss + 4, 248, 252]
    WU = (WU0, T1)
    nm = f"c{ph + 1}"
    a = Paced(a0, pre_ops(ph, vt0, nm), FZ.period[ph])

    def point(name):
        mk(a0, nm + name)
        if name == FZ.hint_at[ph]:
            a0(f"buffer_store_dword v{vh}, v{vh}, s[{SRDF}:{SRDF + 3}], 0 offen sc1")
        if name == FZ.stop[ph]:
            a.on = False

    a(f"s_mul_i32 s{sB}, s{sW}, 3072")
    a(f"v_lshlrev_b32 v{vl0}, 4, v0")
    a(f"v_add_u32 v{vx}, s{sB}, v{vl0}")
    if not ph:
        a(f"s_lshl_b32 s{sB}, s{sW}, 10")
        a(f"v_add_u32 v{vw}, s{sB}, v{vl0}")
    elif SSW:
        a(f"v_and_b32 v{vw}, 128, v{vx}")
        a(f"v_lshl_add_u32 v{vw}, v{vw}, 7, v{vx}")
    a(sstr(sF, sT, XP_STR))

    def data_loads(e):
        if ph:
            for k in range(4):
                e(f"buffer_load_dwordx4 {V(raw + 4 * k, 4)}, v{vx}, s[{SRD0}:{SRD0 + 3}], s{sF} offen offset:{k * 1024} sc1")
            for k in range(4):
                e(f"buffer_load_dwordx3 {V(SL + 4 * k, 3)}, v{vw if SSW else vx}, s[{SRD1}:{SRD1 + 3}], 0 offen offset:{k * 1024} sc1")
        else:
            for t in range(2):
                e(f"buffer_load_dwordx4 {V(ss + 4 * t, 4)}, v{vw}, s[{SRD1}:{SRD1 + 3}], 0 offen offset:{t * 1024} sc1")
            for k in range(4):
                e(f"buffer_load_dwordx4 {V(raw + 4 * k, 4)}, v{vx}, s[{SRD0}:{SRD0 + 3}], s{sF} offen offset:{k * 1024} sc1")

    def filter_loads():
        for k in range(4):
            a(f"buffer_load_dwordx4 {V(wraw + 4 * k, 4)}, v{vx}, s[{SRD2}:{SRD2 + 3}], s{sF} offen offset:{k * 1024} sc1")

    def ack(n):
        if not ph and n == FZ.ack_at:
            st = f0.post(a0, SRDF, 0, 1, ACC, "s_waitcnt vmcnt(0)", True)
            a0("s_barrier")
            a0(st)
            point("ak")

    def pos(base, k, c):
        return base + (k >> 1) * 4 + (k & 1) * 2 + c

    srd_ws(a, SRD2, "WC", max(WC_SIZE, XP_SIZE))
    if XP_STR != WC_STR:
        op = ("sub", "subb") if XP_STR > WC_STR else ("add", "addc")
        a(f"s_mul_i32 s{sA}, s{sT}, {abs(XP_STR - WC_STR)}")
        a(f"s_{op[0]}_u32 s{SRD2}, s{SRD2}, s{sA}")
        a(f"s_{op[1]}_u32 s{SRD2 + 1}, s{SRD2 + 1}, 0")
    if ph:
        filter_loads()
        point("ld")
    else:
        srd_ws(a, SRD0, "XP0", XP_SIZE)
        srd_ws(a, SRD1, "SS0", SS_SIZE)
    if ph:
        pre_setup(a, ph, vt0, TMP + 8)
    a(f"s_lshl_b32 s{sA}, s3, 7")
    a(f"s_add_u32 s{sA}, s{sA}, {HINT[ph]}")
    a(f"v_lshl_add_u32 v{vh}, v0, 20, s{sA}")
    if ph:
        a("s_barrier")
        a.burst(FZ.burst[ph][0])
    ack(0)
    for kk in (1, 2, 3):
        a(f"v_xor_b32 v{vl0 + kk}, {kk * 1024}, v{vl0}")
    a(f"v_and_b32 v{vmI}, 1, v{vI}")
    a(f"v_mul_u32_u24 v{vmI}, 0x8000, v{vmI}")
    a(f"v_lshl_or_b32 v{vmI}, v{vmI}, 16, v{vmI}")
    a(f"v_cvt_f32_u32 v{fi}, v{vI}")
    a(f"v_lshlrev_b32 v{fg}, 2, v{vG}")
    a(f"v_cvt_f32_u32 v{fg}, v{fg}")

    def m1(qb, t, var):
        return M1 + ((qb * 2 + t) * 2 + var) * 4

    def m2(kk, var):
        return M2 + (kk * 2 + var) * 4

    a(f"v_mul_f32 v{fa}, {fx(1 / 32)}, v{fi}")
    a(f"v_mul_f32 v{TMP}, v{fg}, v{fa}")
    for jj in range(1, 4):
        a(f"v_fmamk_f32 v{TMP + 3 * jj}, v{fa}, {fx(float(jj))}, v{TMP}")
    for jj in range(4):
        t = TMP + 3 * jj
        a(f"v_cos_f32 v{t + 1}, v{t}")
        a(f"v_sin_f32 v{t + 2}, v{t}")
    for jj in range(4):
        t = TMP + 3 * jj
        n = "-" if jj & 1 else ""
        m = "" if jj & 1 else "-"
        a(f"v_cvt_pk_bf16_f32 v{m1(0, 0, 0) + jj}, v{t + 1}, v{t + 2}")
        a(f"v_cvt_pk_bf16_f32 v{m1(0, 0, 1) + jj}, -v{t + 2}, v{t + 1}")
        a(f"v_cvt_pk_bf16_f32 v{m1(1, 0, 0) + jj}, {n}v{t + 1}, {n}v{t + 2}")
        a(f"v_cvt_pk_bf16_f32 v{m1(1, 0, 1) + jj}, {m}v{t + 2}, {n}v{t + 1}")
    for qb in range(2):
        for var in range(2):
            for jj in range(4):
                a(f"v_xor_b32 v{m1(qb, 1, var) + jj}, v{vmI}, v{m1(qb, 0, var) + jj}")
    ack(1)

    a(f"s_lshl_b32 s{sK0}, s{sW}, 4")
    a(f"v_cvt_f32_u32 v{fb}, s{sK0}")
    a(f"v_add_f32 v{TMP + 24}, v{fb}, v{fg}")
    a(f"v_add_f32 v{fb}, v{fb}, v{fi}")
    a(f"v_mul_f32 v{TMP + 25}, {fx(1 / 2048)}, v{fi}")
    a(f"v_add_f32 v{TMP + 26}, {fx(16 / 2048)}, v{TMP + 25}")
    for r in range(4):
        a(f"v_add_f32 v{TMP + r}, {fx(float(r))}, v{TMP + 24}")
    for qb in range(2):
        for r in range(4):
            t = TMP + 4 + (qb * 4 + r)
            a(f"v_mul_f32 v{t}, v{TMP + r}, v{TMP + 25 + qb}")
            a(f"v_cos_f32 v{T1 + qb * 8 + r}, v{t}")
            a(f"v_sin_f32 v{T1 + qb * 8 + 4 + r}, v{t}")
    ack(2)

    a(f"v_mul_f32 v{fa}, {fx(1 / 64)}, v{fb}")
    a(f"s_xor_b32 s{sK0}, s{sK0}, 16")
    a(f"v_cvt_f32_u32 v{TMP + 24}, s{sK0}")
    a(f"v_add_f32 v{TMP + 24}, v{TMP + 24}, v{fg}")
    for kk in range(2):
        for r in range(4):
            t = TMP + 12 + 3 * r
            if kk == 0:
                a(f"v_mul_f32 v{t}, v{TMP + r}, v{fa}")
            else:
                a(f"v_add_f32 v{t}, {fx(float(r))}, v{TMP + 24}")
                a(f"v_mul_f32 v{t}, v{t}, v{fa}")
            a(f"v_cos_f32 v{t + 1}, v{t}")
            a(f"v_sin_f32 v{t + 2}, v{t}")
        for r in range(4):
            t = TMP + 12 + 3 * r
            a(f"v_cvt_pk_bf16_f32 v{m2(kk, 0) + r}, v{t + 1}, v{t + 2}")
            a(f"v_cvt_pk_bf16_f32 v{m2(kk, 1) + r}, -v{t + 2}, v{t + 1}")
    for kk in range(2):
        for var in range(2):
            for r in range(4):
                a(f"v_xor_b32 v{m2(kk + 2, var) + r}, v{vmI}, v{m2(kk, var) + r}")

    ack(3)
    if not ph:
        point("cs")
        st = f0.post(a0, SRDF, 0, 2, ACC)
        front_wait(a0, nm, TMP)
        point("dr")
        data_loads(a)
        filter_loads()
        rank_put(a, TMP)
        point("rp")
        a("s_barrier")
        point("rb")
        a(st)
        rank_get(a, TMP)
        pre_setup(a, ph, vt0, TMP + 8)
        point("ru")
        a.burst(FZ.burst[ph][1])
        point("rv")
        mk.stash(a0, TMP)
        a.on = True
    else:
        point("cs")
        if FZ.post:
            a(f"v_lshlrev_b32 v{TMP}, 7, v0")
            a(f"v_add_u32 v{TMP}, {POST}, v{TMP}")
            a0.label(f"{nm}_poll")
            a0(f"buffer_load_dword v{TMP + 1}, v{TMP}, s[{SRDF}:{SRDF + 3}], 0 offen sc1")
            budget(a0, f"{nm}_seen")
            a0(f"v_cmp_eq_u32 vcc, 0, v{TMP + 1}")
            a0(f"s_cbranch_vccnz {nm}_poll")
            a0.label(f"{nm}_seen")
            a0("s_waitcnt vmcnt(0)")
        else:
            a.wait_tag("out")
        point("dr")
        if FZ.halt == 25:
            mk.stash(a0, TMP)
            return 0
        data_loads(a)
        a.burst(FZ.burst[ph][1])
        mk.stash(a0, TMP)

    a(f"v_mul_f32 v{fa}, {fx(1 / 2048)}, v{fb}")
    a(f"v_mul_f32 v{TMP}, v{fg}, v{fa}")
    for k in range(1, 8):
        a(f"v_fmamk_f32 v{TMP + k}, v{fa}, {fx(float(16 * (k >> 2) + (k & 3)))}, v{TMP}")
    for k in range(8):
        u, r = divmod(k, 4)
        a(f"v_cos_f32 v{T2 + u * 8 + r}, v{TMP + k}")
        a(f"v_sin_f32 v{T2 + u * 8 + 4 + r}, v{TMP + k}")

    a0(f"s_mov_b32 s{sK1}, 0xffff0000")
    a0(f"s_cmp_eq_u32 s{sT}, 0")
    a0(f"s_cselect_b32 s{sK2}, 0, s{sK1}")
    a0(f"s_mov_b32 s{sK0}, {fx(-1 / 2048)}")
    a0(f"s_cselect_b32 s{sK3}, 0, s{sK0}")
    a(f"s_mov_b32 s{sA}, {fx(1 / DM)}")
    a(f"s_mov_b32 s{sB}, {fx(1 / 2048)}")
    a(f"s_mov_b32 s{sC}, {UP[ph] * 0x800080:#x}")
    a(f"v_mov_b32 v{fa}, {fx(1e-5)}")
    point("k")
    if ph:
        def test(e):
            e(f"v_max3_f32 v{fi}, |v{raw}|, |v{raw + 2}|, |v{raw + 4}|")
            e(f"v_max3_f32 v{fb}, |v{raw + 6}|, |v{raw + 8}|, |v{raw + 10}|")
            e(f"v_max3_f32 v{fi}, v{fi}, |v{raw + 12}|, |v{raw + 14}|")
            e(f"v_max_f32 v{fi}, v{fi}, v{fb}")
            e(f"v_min3_f32 v{fg}, v{SL + 2}, v{SL + 6}, v{SL + 10}")
            e(f"v_min_f32 v{fg}, v{fg}, v{SL + 14}")
            e(f"v_fmamk_f32 v{fg}, v{fi}, {fx(-8 / T_X[0])}, v{fg}")
            e(f"v_cmp_gt_f32 vcc, {fx(7.5)}, v{fg}")

        def var_ops(e):
            for k in range(8):
                e(f"v_fma_f32 v{ss + k}, v{SL + 4 * (k >> 1) + (k & 1)}, s{sA}, v{fa}")

        test(a0)
        var_ops(a0)
        a0(f"s_cbranch_vccnz {nm}_again", tag="nopad")
        a0.label(f"{nm}_ok", keep=True)

        def again():
            a0.label(f"{nm}_again")
            budget(a0, f"{nm}_ok")
            data_loads(a0)
            a0("s_waitcnt vmcnt(0)")
            test(a0)
            var_ops(a0)
            a0(f"s_cbranch_vccnz {nm}_again")
            a0(f"s_branch {nm}_ok")
        a0.tail.append(again)
        a.on = True
    else:
        for k in range(8):
            a(f"v_fma_f32 v{ss + k}, v{ss + k}, s{sA}, v{fa}")
    for k in range(8):
        a(f"v_rsq_f32 v{ss + k}, v{ss + k}")

    def acc(c, b, var):
        return ACC + c * 16 + (b * 2 + var) * 4

    def fo(c, b):
        return FO + c * 8 + b * 4

    def unpack(dst_, base, c, mask):
        ops = []
        for k in range(8):
            ops.append(f"v_lshlrev_b32 v{dst_ + 2 * k}, 16, v{pos(base, k, c)}")
            ops.append(f"v_and_b32 v{dst_ + 2 * k + 1}, s{mask}, v{pos(base, k, c)}")
        return ops

    def unpack_w(c):
        ops = []
        for k in range(8):
            u, r = divmod(k, 4)
            ops.append(f"v_lshlrev_b32 v{WU[c] + u * 8 + r}, 16, v{pos(wraw, k, c)}")
            ops.append(f"v_and_b32 v{WU[c] + u * 8 + 4 + r}, s{sK1}, v{pos(wraw, k, c)}")
        return ops

    def scale(c):
        t = TMP + 16 * c
        for k in range(8):
            h = k & 1
            a(f"v_pk_mul_f32 {V(t + 2 * k, 2)}, {V(t + 2 * k, 2)}, {V(ss + k - h, 2)} op_sel:[0,{h}] op_sel_hi:[1,{h}]")
        for k in range(8):
            a(f"v_cvt_pk_bf16_f32 v{fo(c, 0) + k}, v{t + 2 * k}, v{t + 2 * k + 1}")

    sc = Sched(a)

    def stage_a(c):
        for t in range(2):
            for qb in range(2):
                for var in range(2):
                    sc.mfma(acc(c, qb, var), fo(c, t), m1(qb, t, var), None if t == 0 else acc(c, qb, var))
        sc.flush()

    for op in unpack(TMP, raw, 0, sK2):
        a(op)
    scale(0)
    point("s0")
    for op in unpack(TMP + 16, raw, 1, sK1):
        sc.add(op)
    stage_a(0)
    scale(1)
    for op in unpack_w(0):
        sc.add(op)
    stage_a(1)
    point("a")

    def mm(c, b, var, f, kk, data_is_a):
        cc = None if kk == 0 else acc(c, b, var)
        if data_is_a:
            sc.mfma(acc(c, b, var), f, m2(kk, var), cc)
        else:
            sc.mfma(acc(c, b, var), m2(kk, var), f, cc)

    def exchange(n, data_is_a, cm, fill_own, fill_rest):
        for c in range(2):
            for b in range(2):
                cm(c, b)
                if n == 2 and c == b == 0:
                    a("s_barrier")
                a(f"ds_write_b128 v{vl0}, {V(fo(c, b), 4)} offset:{(c * 2 + b) * 4096}")
        a("s_waitcnt lgkmcnt(0)")
        a("s_barrier")
        point(f"b{n}")
        for c in range(2):
            for kk in (1, 2, 3):
                for b in range(2):
                    f = FGR[(c * 3 + kk - 1) * 2 + b]
                    a(f"ds_read_b128 {R(f, 4)}, v{vl0 + kk} offset:{(c * 2 + b) * 4096}")
        for op in fill_own:
            sc.add(op)
        for c in range(2):
            for b in range(2):
                for var in range(2):
                    mm(c, b, var, fo(c, b), 0, data_is_a)
        for op in fill_rest:
            sc.add(op)
        for c in range(2):
            for kk in (1, 2, 3):
                for b in range(2):
                    for var in range(2):
                        mm(c, b, var, FGR[(c * 3 + kk - 1) * 2 + b], kk, data_is_a)
        sc.flush()
        point(f"x{n}")

    def cm1(c, b):
        cmul_pack(a, fo(c, b), acc(c, b, 0), acc(c, b, 1), T1 + b * 8, T1 + b * 8 + 4, TMP + 8 * (2 * c + b))

    def cm2(c, b):
        cmul_pack(a, fo(c, b), acc(c, b, 0), acc(c, b, 1), WU[c] + b * 8, WU[c] + b * 8 + 4, TMP + 8 * (2 * c + b),
                  conj_w=True)

    exchange(1, False, cm1, unpack_w(1), [])
    exchange(2, True, cm2, unpack(WU[0], raw, 0, sK1), unpack(WU[1], raw, 1, sK1))
    for c in range(2):
        for u in range(2):
            cmul_pack(a, fo(c, u), acc(c, u, 0), acc(c, u, 1), T2 + u * 8, T2 + u * 8 + 4, TMP + 8 * (2 * c + u))
    while any(not callable(x) and (" lds" in x or "store" in x) for g in a.ops for x in g):
        a.burst(1)
    a.on = False
    for t in range(2):
        for c in range(2):
            for u in range(2):
                for var in range(2):
                    sc.mfma(acc(c, t, var), m1(t, u, var), fo(c, u), None if u == 0 else acc(c, t, var))
        rdy = sc.n + 2
        for rh in range(2):
            for c in range(2):
                for rl in range(2):
                    k = 4 * t + 2 * rh + rl
                    w = WU[c] + 2 * k
                    sc.add(f"v_fma_f32 v{w}, v{acc(c, t, 0) + 2 * rh + rl}, s{sB}, v{w}", rdy)
                    sc.add(f"v_fma_f32 v{w + 1}, v{acc(c, t, 1) + 2 * rh + rl}, s{sK0 if c else sK3}, v{w + 1}", rdy)
            for c in range(2):
                for rl in range(2):
                    k = 4 * t + 2 * rh + rl
                    w = WU[c] + 2 * k
                    sc.add(f"v_cvt_pk_bf16_f32 v{pos(raw, k, c)}, v{w}, v{w + 1}", rdy)
            k = 2 * t + rh
            for j in range(4):
                sc.add(f"v_add_u32 v{raw + 4 * k + j}, s{sC}, v{raw + 4 * k + j}", rdy)
            sc.add(f"buffer_store_dwordx4 {V(raw + 4 * k, 4)}, v{vx}, s[{SRD0}:{SRD0 + 3}], s{sF} offen offset:{k * 1024} sc1", rdy)
    sc.flush()
    point("st")
    n = len(a.ops)
    print(f"{nm}: {n} requests after the stores", file=sys.stderr)
    a.burst(n)
    mk.stash(a0, TMP)
    return n


def idle_phase(a, ph):
    nm = f"n{ph + 1}"
    vt0, vh = 12, 13
    if not ph:
        srd_ws(a, SRD0, "XP0", XP_SIZE)
    if FZ.ft_pf >> (1 - ph) & 1:
        srd_table(a, SRD1, "ft2")
        a(f"s_and_b32 s{sA}, s{sRB}, 3")
        a(f"s_and_b32 s{sB}, s{sMM}, 7")
        a(f"s_lshl3_add_u32 s{sA}, s{sA}, s{sB}")
        a(f"s_sub_u32 s{sA}, 31, s{sA}")
        a(f"s_mul_i32 s{sA}, s{sA}, {3 << 15}")
        a(f"v_lshl_add_u32 v{vh}, v0, 7, s{sA}")
        for k in range(3):
            a(f"s_mov_b32 s{sOP}, {k << 15}")
            a.raw(f"    buffer_load_dword {R(aDUM)}, v{vh}, s[{SRD1}:{SRD1 + 3}], s{sOP} offen")
    if ph:
        pre_setup(a, ph, vt0, 28)
    else:
        sts = []

        def ack():
            st = f0.post(a, SRDF, 0, 1, 20, f"s_waitcnt vmcnt({FZ.p_early})", True)
            a("s_barrier")
            a(st)
            mk(a, nm + "ak")
            sts.append(f0.post(a, SRDF, 0, 2, 24))
        if not FZ.p_early:
            ack()
        front_wait(a, nm, 16, ack if FZ.p_early else None)
        st = sts[0]
        mk(a, nm + "dr")
        rank_put(a, 16)
    a("s_barrier")
    if not ph:
        a(st)
        rank_get(a, 16)
        pre_setup(a, ph, vt0, 28)
    ops = pre_ops(ph, vt0, nm)
    he = FZ.h_early[ph]
    ld = f"buffer_load_dword v{vt0}, v{vh}, s[{SRDF}:{SRDF + 3}], s{sOQ} offen sc1"
    if he:
        ops.insert(len(ops) - he, [f"s_mul_i32 s{sOQ}, s{sW}, {40 * 128}",
                                   f"s_add_u32 s{sOQ}, s{sOQ}, {HINT[ph]}",
                                   f"v_min_u32 v{vh}, 39, v{vL}",
                                   f"v_lshlrev_b32 v{vh}, 7, v{vh}", ld])
    for g in ops:
        for x in g:
            x(a) if callable(x) else a(x)
    mk(a, nm + "is")
    if he:
        a(f"v_cmp_eq_u32 vcc, 0, v{vt0}")
        a(f"s_cbranch_vccz {nm}_ok")
    else:
        a(f"v_mul_u32_u24 v{vh}, 5, v{vL}")
        a(f"v_lshrrev_b32 v{vh}, 1, v{vh}")
        a(f"v_lshlrev_b32 v{vh}, 7, v{vh}")
        a(f"s_mov_b32 s{sOQ}, {HINT[ph]}")
        a("s_waitcnt vmcnt(0)")
        mk(a, nm + "dn")
        mk.stash(a, 16)
        if FZ.halt == 25 and ph:
            return
        a(f"s_cmp_lg_u32 s{sW}, 0")
        a(f"s_cbranch_scc1 {nm}_ok")
    a.label(f"{nm}_spin")
    a(ld)
    budget(a, f"{nm}_ok")
    a(f"v_cmp_eq_u32 vcc, 0, v{vt0}")
    a(f"s_cbranch_vccnz {nm}_spin")
    a.label(f"{nm}_ok")
    if he:
        mk(a, nm + "dn")
        mk.stash(a, 16)
    a("s_barrier")


def classify(text):
    o = text.split()[0]
    if o.startswith("v_pk_") or o.startswith("v_dot2"):
        return "p", 4
    if o in TRANS or o.startswith("v_swap") or o.startswith("v_permlane"):
        return "v", 8
    if o.startswith("v_"):
        return "v", 4
    if o.startswith("ds_"):
        return "d", 4
    if o.startswith("buffer_"):
        return "b", 4
    if o.startswith("s_cbranch"):
        return "j", 10
    return "s", 4


class Item:
    def __init__(self, kind, cost, fn, key=None, gate=None, until=None, alt=None):
        self.kind, self.cost, self.fn, self.key, self.gate, self.until, self.alt = kind, cost, fn, key, gate, until, alt


class Slots:
    def __init__(self, a):
        self.a = a
        self.t, self.tM, self.tv, self.tc = 0, -100, -100, -100
        self.done, self.eta = {}, {}
        self.C, self.L, self.M, self.G = [], [], [], []
        self.fly = []
        self.feed = []
        self.pk = True
        self.stall = 0

    def item(self, op, key=None, gate=None, tag=None):
        k, c = classify(op)

        def fn():
            if op.startswith("v_cmp"):
                self.tc = self.t
            self.a(op, tag=tag)
        return Item(k, c, fn, key, gate)

    def mem(self, key, store=False, part=1.0):
        last = self.fly[-1] if self.fly else 0
        self.fly.append(max(self.t + FZ.lat, last + part * (FZ.srow if store else FZ.row)))
        self.eta[key] = self.fly[-1]
        if FZ.verbose:
            print(f"  {self.t:6.0f} issue {key} eta {self.fly[-1]:.0f} fly {self.inflight()}", file=sys.stderr)

    def inflight(self):
        return sum(1 for x in self.fly[-FZ.cap - 4:] if x > self.t)

    def run(self, it):
        if it.kind in "db":
            self.t = max(self.t, self.tv + 12)
        elif it.kind == "p":
            self.t = max(self.t, self.tM + 28)
        elif it.kind == "j":
            self.t = max(self.t, self.tc + 26)
        if it.kind in "vp":
            self.tv = self.t
        it.fn()
        self.t += it.cost
        if it.until is not None and self.eta.get(it.until, 0) > self.t:
            self.stall += self.eta[it.until] - self.t
            if FZ.verbose:
                print(f"  {self.t:6.0f} STALL {it.until} {self.eta[it.until] - self.t:.0f}", file=sys.stderr)
            self.t = self.eta[it.until]
        if it.key is not None:
            self.done[it.key] = self.t

    def ready(self, it):
        if it.kind == "j" and self.t < self.tc + 26:
            return False
        return it.gate is None or it.gate()

    def expand(self):
        while self.G and self.G[0].kind == "p" and not self.pk and self.G[0].alt:
            self.G[:1] = self.G[0].alt

    def heads(self, q, room, small):
        out = []
        for it in q:
            if it.kind == "p" or not self.ready(it) or it.cost > room or small and it.cost > 4:
                break
            if it.kind in "db" and any(x.kind == "v" for x in out) or it.kind == "j" and out:
                break
            out.append(it)
            room -= it.cost
        return out

    def place(self, picks):
        seqs = []
        for q, n in picks:
            seqs.append(q[:n])
            del q[:n]
        rank = lambda s: 0 if any(x.kind in "db" for x in s) else 2 if any(x.kind == "v" for x in s) else 1
        seqs.sort(key=lambda s: (rank(s), any(x.kind == "v" or x.until is not None for x in s)))
        for s in seqs:
            for it in s:
                self.run(it)

    def fill(self, room, streams, small=False):
        picks = []
        for q in streams:
            h = self.heads(q, room, small)
            if h:
                picks.append((q, len(h)))
                room -= sum(x.cost for x in h)
        return picks, room

    def mf(self, d, x, y, c, wait=None, urgent=False):
        self.t = self.tM = max(self.t, self.tM + 16)
        mfma(self.a, d, x, y, c)
        self.t += 8
        for f in self.feed:
            f()
        self.expand()
        W = [wait] if wait else []
        n = next((k for k, it in enumerate(self.G[:5]) if it.kind == "p"), None)
        if n is not None and self.pk:
            pre = self.G[:n + 1]
            cost = sum(x.cost for x in pre[:-1])
            if cost <= 16 and all(self.ready(x) and x.kind in "vps" for x in pre):
                picks, room = self.fill(20 - cost, (W, self.C, self.L, self.M), small=True)
                self.place(picks)
                while self.G and (n > 0 or self.G[0].kind == "p" and self.ready(self.G[0])):
                    self.run(self.G.pop(0))
                    n -= 1
                if self.G and self.G[0].kind in "vs" and self.G[0].until is None and self.ready(self.G[0]):
                    self.run(self.G.pop(0))
                else:
                    self.t += 4
                return
        if not W and self.C and self.C[0].cost >= 8 and self.ready(self.C[0]):
            self.run(self.C.pop(0))
            return
        picks, room = self.fill(8, (W, self.C, self.L, self.M, self.G), small=True)
        must = W or urgent or any(q is self.C for q, _ in picks)
        if room and not must and self.G and self.G[0].cost == 8 and self.ready(self.G[0]):
            self.run(self.G.pop(0))
            return
        self.place(picks)

    def need(self, key):
        while key not in self.done:
            q = next(q for q in (self.C, self.L, self.M, self.G) if any(it.key == key for it in q))
            self.run(q.pop(0))

    def pure(self, key):
        while key not in self.done:
            it = self.G.pop(0)
            self.run(it)
            if it.cost == 8:
                for f in self.feed:
                    f()
                picks, _ = self.fill(8, (self.M, self.L, self.C), small=True)
                self.place(picks)

    def flush(self):
        for q in (self.L, self.M, self.C, self.G):
            while q:
                self.run(q.pop(0))


def mlp_phase(a, final, behind):
    name = f"m{final + 1}"
    vx, vl0, vx2, vck, ve, vfl = 4, 5, 8, 9, 12, 14
    vq = (13, 4, 8, 10)
    X, ACC1, Z, vpl, vmk, CC = 16, 176, 232, 248, 249, 250
    GR, T = Z, Z + 8
    ACC2, EACC = 96, 176
    DIAG = (4, 6, 30, 70)
    sKC, sRS = sK0, sK2
    vo2, vs, vout, vor, vrd, vpk = 200, 201, 202, 203, 204, 205
    vred = (5, 6, 7)
    RES, RU, TMP = 208, 218, 244
    QS = (16, 32, 48, 64, 80, 176)
    QD = len(QS)
    SRDX, SRDH = SRD0, SRD3
    s = Slots(a)
    done = s.done
    act = {}
    log, sst, tested = [], {}, set()

    def fine(*key):
        if FZ.verbose:
            print(f"{s.t:6.0f} {key}", file=sys.stderr)
        if FZ.marks is not None:
            mk(a, name + key[0] + str(key[1]))
        for f in act.pop(key, ()):
            f()

    def at(key, f):
        act.setdefault(tuple(key), []).append(f)

    def note(tag):
        mk(a, name + tag)
        print(f"{name}{tag:4s} t={s.t:6.0f} stall={s.stall:.0f}", file=sys.stderr)

    def qreg(u, q):
        return QS[u % QD] + 4 * q

    def put(q, op, key=None, gate=None):
        q.append(s.item(op, key, gate))

    def vm(q, text, sreg=None, sexp=None, key=None, tag=None, again=True, gate=None, part=1.0, first=" sc1", m0=None):
        if m0 is not None and sst.get("m0") != m0:
            put(q, m0, gate=gate)
            sst["m0"] = m0
        if sreg is not None and sst.get(sreg) != sexp:
            put(q, sexp.replace("@", f"s{sreg}"), gate=gate)
            sst[sreg] = sexp

        def emit():
            a(text.replace("@", f"s{sreg}").replace(" sc1", first), tag=tag)
            log.append((key, text if again else None, sexp))
            s.mem(key, "store" in text, part)
        q.append(Item("b", 4, emit, key, gate))

    def wait_item(key, regs):
        return Item("s", 4, lambda: a.wait_regs(*regs), until=key)

    def lower(regs, thr):
        ops, r = [], [f"|v{x}|" for x in regs]
        while len(r) > 1:
            n = min(3, len(r))
            ops.append(f"{'v_min3_f32' if n == 3 else 'v_min_f32_e64'} v{vck}, " + ", ".join(r[:n]))
            r[:n] = [f"v{vck}"]
        return ops + [f"v_cmp_gt_f32 vcc, {fx(thr)}, v{vck}"]

    def unset(regs):
        ops, r = [], [f"v{x}" for x in regs]
        if len(r) > 2:
            n = len(r) - 1
            ops.append(f"{'v_max3_u32' if n == 3 else 'v_max_u32'} v{vck}, " + ", ".join(r[:n]))
            r[:n] = [f"v{vck}"]
        return ops + [f"v_cmp_u_f32 vcc, {r[0]}, {r[1]}"]

    def verify(keys, regs, test, lab, key):
        for k in keys:
            plan(k)

        def branch():
            idx = [k for k, e in enumerate(log) if e[0] in keys]
            rep = log[idx[0]:]
            assert len(idx) == len(keys) and not tested & {e[0] for e in rep}, lab
            tested.update(keys)
            young = len(log) - 1 - idx[-1]
            a(f"s_cbranch_vccnz {lab}_again", tag="nopad")
            a.label(f"{lab}_ok", keep=True)

            def stub():
                a.label(f"{lab}_again")
                a("s_nop 7")
                budget(a, f"{lab}_out")
                a(f"s_waitcnt vmcnt({max(0, 62 - len(rep))})")
                last = None
                for _, text, sexp in rep:
                    if text is None:
                        a.raw(f"    buffer_load_dword {R(aDUM)}, off, s[{SRDP}:{SRDP + 3}], 0")
                        continue
                    if sexp is not None and sexp != last:
                        a(sexp.replace("@", f"s{sRP}"))
                        last = sexp
                    a.raw("    " + text.replace("@", f"s{sRP}"))
                a(f"s_waitcnt vmcnt({young})")
                for x in test:
                    a(x)
                a(f"s_cbranch_vccnz {lab}_again")
                a.label(f"{lab}_out")
                a(f"s_branch {lab}_ok")
            a.tail.append(stub)
        w = wait_item(keys[-1], [V(r, 4) for r in regs])
        f0 = w.fn
        w.fn = lambda: ([s.need(k) for k in keys], f0())
        w.gate = lambda: all(k in done for k in keys)
        s.C.append(w)
        for x in test:
            put(s.C, x)
        s.C.append(Item("j", 10, branch, key))

    def xr(t, st):
        return X + t * 8 + st * 4

    def acc(ft, st):
        return ACC1 + (ft * 2 + st) * 4

    queue, sched = [], set()

    def x_load(t, h):
        return ("x", t, h), lambda key: vm(
            s.M, f"buffer_load_dwordx4 {V(xr(t, h), 4)}, v{vx2 if h else vx}, s[{SRDX}:{SRDX + 3}], @ offen sc1",
            sOQ, f"s_mov_b32 @, {8 * (19 - t) * XP_STR}", key, first=FZ.xf[final])

    def e_load(j):
        return ("e", j), lambda key: vm(
            s.M, f"buffer_load_dwordx4 v{vl0}, s[{SRD4}:{SRD4 + 3}], m0 offen offset:{(j & 3) * 1024} lds",
            key=key, tag="e", again=False, m0=f"s_add_u32 m0, s{sEB}, {2 * TILE + (j >> 2) * 4096}")

    def k_load(u, p):
        return ("k", u, p), lambda key: vm(
            s.M, f"buffer_load_dwordx4 v{vp}, s[{SRDP}:{SRDP + 3}], @ offen offset:{p * 256} lds",
            sF, f"s_mov_b32 @, {kblock(u) * KB_STR}", key, tag=f"k{u}", again=False,
            m0=f"s_add_u32 m0, s{sPK}, {(u - NP) * TILE + p * 768}")

    def p_load(u, p):
        return ("p", u, p), lambda key: vm(
            s.M, f"buffer_load_dwordx4 {R(preg(u, p), 4)}, v{vp}, s[{SRDP}:{SRDP + 3}], @ offen offset:{p * 256}",
            sF, f"s_mov_b32 @, {kblock(u) * KB_STR}", key)

    def q_load(u, q):
        return ("q", u, q), lambda key: vm(
            s.M, f"buffer_load_dwordx4 {V(qreg(u, q), 4)}, v{vq[q]}, s[{SRDQ}:{SRDQ + 3}], @ offen sc1",
            sOQ, f"s_mov_b32 @, {kblock(u) * H_STR}", key, first=FZ.qf[final])

    def r_load(p):
        srd_ = SRD2 if final else SRDX
        return ("r", p), lambda key: vm(
            s.M, f"buffer_load_dwordx2 {V(RES + 2 * p, 2)}, v{vo2}, s[{srd_}:{srd_ + 3}], @ offen sc1",
            sOP, f"s_mov_b32 @, {p * 4 * XP_STR}", key, part=0.6)

    def push(item, *gates, after=None, chain=None):
        queue.append((item[0], item[1], gates, after, chain))

    def issue(force=False):
        seen = set()
        for k, (key, f, gates, after, chain) in enumerate(queue):
            ok = all(g in done for g in gates) and chain not in seen
            if ok and after and not force:
                ok = done[after[0]] + after[1] <= s.t
            if ok:
                del queue[k]
                f(key)
                sched.add(key)
                return True
            if chain:
                seen.add(chain)
        return False

    def plan(key):
        while key not in sched:
            assert issue(True), key

    def feed_m():
        if not any(it.kind == "b" for it in s.M) and s.inflight() < FZ.cap:
            issue()
    s.feed.append(feed_m)

    KT = FZ.ktail
    units = [[(u, q) for q in range(4)] for u in range(NS - KT)]
    if FZ.split0:
        units[:1] = [units[0][:2], units[0][2:]]
    units += [[(u, q) for u in range(NS - KT, NS)] for q in (1, 2, 3, 0)]
    xorder = list(range(FZ.dbl[0] + 1)) + [19] + list(range(FZ.dbl[0] + 1, 19))
    for t in xorder:
        push(x_load(t, 0))
        push(x_load(t, 1))
    if not final and f0.FC.t_late:
        for j in range(5):
            push((("t", j), lambda key, j=j: vm(
                s.M, f"buffer_store_dwordx4 {R(f0.aTR + 4 * j, 4)}, v{vl0}, s[{SRD4}:{SRD4 + 3}], @ offen offset:{(j & 1) * 2048} sc1",
                sF, f"s_mov_b32 @, {(j >> 1) * 4096}", key, again=False)), *FZ.t_gate)
    if final:
        for j in range(15):
            push(e_load(j), "ebar")
    for u in range(FZ.pre_p[final]):
        for p in range(5):
            done[("p", u, p)] = 0
            sched.add(("p", u, p))
    pushed = set(range(FZ.pre_p[final]))
    parked = set(range(NP, NP + FZ.park[final]))

    def push_p(u):
        if u < NS and u not in pushed:
            pushed.add(u)
            for p in range(5):
                if u in parked:
                    push(k_load(u, p), "xok" if u == NP else "ebar")
                else:
                    push(p_load(u, p), *([("t", 4)] if u == 10 and not final and f0.FC.t_late else []), *(["xok"] if u < NP else [("xfree", 19)] if u == NP else [("qfree", u - NP - 1, 3)]))

    for u, q in [x for un in units for x in un]:
        for k in range(FZ.p_lead[final] + 1):
            push_p(u + k)
        if (u, q) == (NS - KT, FZ.r_q):
            for p in range(5):
                push(r_load(p), "rgo")
        g = ["qset", ("gelu", u >> 1)] + ([] if final else ["ready"])
        if u >= QD:
            g.append(("qfree", u - QD, q))
        elif u < 5:
            g.append(("xfree", 2 * u + (q >> 1)))
        else:
            g.append("edone" if final else ("s5", 1))
        push(q_load(u, q), *g, after=(("gelu", u >> 1), FZ.qdel[final]), chain="q")

    a(f"s_lshl_b32 s{sC}, s{sRB}, 10")
    a(f"s_lshl_b32 s{sA}, s{sW}, 8")
    a(f"s_add_u32 s{sC}, s{sC}, s{sA}")
    a(vstr(vx, vG, 2 * XP_STR))
    a(f"v_lshl_add_u32 v{vx}, v{vI}, 4, v{vx}")
    a(f"v_add_u32 v{vx}, s{sC}, v{vx}")
    a(f"v_add_u32 v{vx2}, {XP_STR}, v{vx}")
    a(f"v_lshlrev_b32 v{vl0}, 4, v{vL}")
    a(f"v_add_u32 v{vl0 + 1}, 0x10000, v{vl0}")
    a(f"v_add_u32 v{vl0 + 2}, 0x20000, v{vl0}")
    a(f"s_mov_b64 s[{SRDH}:{SRDH + 1}], s[{SRDQ}:{SRDQ + 1}]")
    a(f"s_lshl4_add_u32 s{SRDH + 2}, s{sFL}, {216 * H_STR}" if HC else f"s_mov_b32 s{SRDH + 2}, {H_SIZE}")
    a(f"s_mov_b32 s{SRDH + 3}, 0x20000")
    a(f"v_cmp_eq_u32 vcc, 0, v{vG}")
    a(f"v_mov_b32 v{vmk}, 0xffff0000")
    a(f"v_cndmask_b32 v{vmk}, 0, v{vmk}, vcc")
    for r in range(4):
        m = 0x1000010000100001 << r
        a(f"s_mov_b32 s{DIAG[r]}, {m & 0xffffffff:#x}")
        a(f"s_mov_b32 s{DIAG[r] + 1}, {m >> 32:#x}")
    a(f"s_bfe_u32 s{sA}, s{sMM}, 0x10002")
    a(f"s_lshl_b32 s{sA}, s{sA}, 6")
    a(f"s_add_u32 s{sCQ}, s{sFL}, s{sA}")
    a(f"s_lshl4_add_u32 s{sD}, s{sW}, s{sCQ}")
    a(f"s_mul_i32 s{sA}, s{sW}, {54 * H_STR}")
    a(f"s_add_u32 s{SRDQ + 2}, s{sA}, {54 * H_STR}")
    if HC:
        a(f"s_lshl4_add_u32 s{SRDQ + 2}, s{sFL}, s{SRDQ + 2}")
    a(f"s_lshl4_add_u32 s{sA}, s{sD}, s{sA}")
    a(f"v_lshrrev_b32 v{vq[0]}, 1, v{vG}")
    a(f"v_and_b32 v{vck}, 1, v{vG}")
    a(f"v_mad_u32_u24 v{vq[0]}, v{vq[0]}, 14, v{vck}")
    a(vstr(vq[0], vq[0], H_STR))
    a(f"v_lshl_add_u32 v{vq[0]}, v{vI}, 4, v{vq[0]}")
    a(f"v_add_u32 v{vq[0]}, s{sA}, v{vq[0]}")
    a(f"v_xor_b32 v{vq[3]}, 0x300, v{vq[0]}")
    a(f"s_mov_b32 s{sKC}, {fx(H_OFF)}")
    a(f"s_mov_b32 s{sKC + 1}, {fx(H_OFF)}")
    a(f"s_mov_b32 s{sRS}, {fx(2.0 ** (-S_X[1] if final else -UP[0]))}")
    a(f"s_mov_b32 s{sRS + 1}, 0xffff0000")
    if final:
        srd_table(a, SRD4, "ft2")
        a(f"s_mul_i32 s{sB}, s{sMM}, 5")
        a(f"s_lshr_b32 s{sB}, s{sB}, 1")
        a(f"s_mul_i32 s{sA}, s{sB}, {TILE}")
        a(f"s_add_u32 s{SRD4}, s{SRD4}, s{sA}")
        a(f"s_addc_u32 s{SRD4 + 1}, s{SRD4 + 1}, 0")
        a(f"s_sub_u32 s{SRD4}, s{SRD4}, {2 * TILE}")
        a(f"s_subb_u32 s{SRD4 + 1}, s{SRD4 + 1}, 0")
        a(f"s_mov_b32 s{SRD4 + 2}, {5 * TILE}")
        a(sstr(sA, sB, 4 * XP_STR))
        a(f"s_add_u32 s{sA}, s{sA}, s{sC}")
        a(vstr(ve, vG, XP_STR))
        a(f"v_lshl_add_u32 v{ve}, v{vI}, 4, v{ve}")
        a(f"v_add_u32 v{ve}, s{sA}, v{ve}")
        srd_ws(a, SRD2, "X3", XP_SIZE)
        srd(a, SRD1, P_OUT, 0, SEQ * DM * 2)
        a(f"s_lshl_b32 s{sB}, s{sRB}, 13")
        a(f"s_lshl2_add_u32 s{sA}, s{sMM}, s{sW}")
        a(f"s_lshl_b32 s{sA}, s{sA}, 7")
        a(f"s_add_u32 s{sA}, s{sA}, s{sB}")
        a(f"v_lshl_add_u32 v{vpl}, v{vL}, 20, s{sA}")
        a(f"s_bfe_u32 s{sA}, s{sD}, 0x20005")
        a(f"s_lshl3_add_u32 s{sA}, s{sDC}, s{sA}")
        a(f"s_lshl_b32 s{sA}, s{sA}, 7")
        a(f"s_add_u32 s{sA}, s{sA}, s{sB}")
        a(f"v_and_b32 v{vfl}, 1, v{vI}")
        a(f"v_lshl_add_u32 v{vfl}, v{vfl}, 9, s{sA}")
    else:
        srd_ws(a, SRD1, "SS2", SS2_SIZE)
        if f0.FC.t_late:
            srd_ws(a, SRD4, "W2T", 9216)
            a(f"s_sub_u32 s{sA}, {f0.W2TOP}, s3")
            a(f"s_cmp_gt_u32 s{sA}, 108")
            a(f"s_cselect_b32 s{SRD4 + 2}, 0, s{SRD4 + 2}")
            a(f"s_cselect_b32 s{sA}, 0, s{sA}")
            a(f"s_lshr_b32 s{sB}, s{sW}, 1")
            a(f"s_lshl1_add_u32 s{sA}, s{sA}, s{sB}")
            a(f"s_mul_i32 s{sA}, s{sA}, {KB_STR}")
            a(f"s_and_b32 s{sB}, s{sW}, 1")
            a(f"s_lshl_b32 s{sB}, s{sB}, 10")
            a(f"s_add_u32 s{sA}, s{sA}, s{sB}")
            a(f"s_add_u32 s{SRD4}, s{SRD4}, s{sA}")
            a(f"s_addc_u32 s{SRD4 + 1}, s{SRD4 + 1}, 0")
        if FZ.tch & 4:
            srd_ws(a, SRD4, "W2T", 190 * KB_STR)
            a(f"s_and_b32 s{sA}, s{sMM}, 4")
            a(f"s_mul_i32 s{sA}, s{sA}, {7 * KB_STR}")
            a(f"s_and_b32 s{sB}, s{sRB}, 3")
            a(f"s_mul_i32 s{sB}, s{sB}, {2 * KB_STR}")
            a(f"s_add_u32 s{sA}, s{sA}, s{sB}")
            a(f"s_add_u32 s{SRD4}, s{SRD4}, s{sA}")
            a(f"s_addc_u32 s{SRD4 + 1}, s{SRD4 + 1}, 0")

            def touch():
                put(s.C, f"v_min_u32 v{vck}, 9, v{vI}")
                put(s.C, f"v_mul_u32_u24 v{vck}, 112, v{vck}")
                put(s.C, f"v_add_u32 v{vck}, v{vck}, v{vp}")
                for k in range(2):
                    vm(s.C, f"buffer_load_dword {R(aDUM)}, v{vck}, s[{SRD4}:{SRD4 + 3}], @ offen", sE,
                       f"s_mov_b32 @, {8 * k * KB_STR}", tag="touch", again=False)
            at(FZ.tch_at, touch)
        a(f"s_lshl4_add_u32 s{sA}, s{sRB}, s{sMM}")
        a(f"s_lshl_b32 s{sA}, s{sA}, 7")
        a(f"s_add_u32 s{sA}, s{sA}, {READY}")
        a(f"v_lshl_add_u32 v{vpl}, v0, 20, s{sA}")
        a(f"s_lshl2_add_u32 s{sA}, s{sRB}, s{sW}")
        a(f"s_lshl_b32 s{sA}, s{sA}, 9")
        a(f"v_and_b32 v{vfl}, 3, v{vI}")
        a(f"v_lshl_add_u32 v{vfl}, v{vfl}, 7, s{sA}")
    a.raw(f"    s_waitcnt vmcnt({behind})")
    mk(a, name + "go")
    for _ in range(FZ.look):
        issue()
    s.flush()
    a("s_barrier")
    if not final and not any(f0.FC.po):
        vm(s.M, f"buffer_store_dword v{vl0 + 1}, v{vpl}, s[{SRDF}:{SRDF + 3}], 0 offen sc1", again=False, part=0.2)
    mk.stash(a, Z)

    TA, TB, TE = (0, 1, 2, 3), (4, 5, 6), (0, 1, 2)
    groups = [("a", TA, t) for t in range(19)] + [("b", TB, t) for t in range(20)]
    groups.insert(19 + FZ.b_pre, ("a", TA, 19))
    if final:
        groups += [("e", TE, t) for t in range(20)]
    seq = [(kind, ft, t) for kind, tl, t in groups for ft in tl]
    rd_ = {"n": 0, "free": 0}

    def wreg(n):
        return WR + (n % NW) * 4

    def feed_l():
        while rd_["n"] < min(rd_["free"] + NW, len(seq)) and len(s.L) < 2:
            kind, ft, t = seq[rd_["n"]]
            if kind == "e" and "e0" not in done:
                return
            off = (ft + (2 if kind == "e" else 1)) * TILE + (19 - t) * 1024
            put(s.L, f"ds_read_b128 {R(wreg(rd_['n']), 4)}, v{vl0 + (off >> 16)} offset:{off & 0xffff}", ("rd", rd_["n"]))
            rd_["n"] += 1
    s.feed.append(feed_l)

    def rd_need(n):
        while ("rd", n) not in done:
            feed_l()
            if not s.L:
                s.need("e0")
                continue
            s.run(s.L.pop(0))

    def prep_x(ts):
        keys = [("x", t, h) for t in xorder if t in ts for h in range(2)]
        regs = [xr(k[1], k[2]) for k in keys]
        verify(keys, regs, lower(regs, T_X[final]), f"{name}_x{ts[0]}", "xok" if xorder[-1] in ts else None)
        for t in ts:
            ops = [f"v_swap_b32 v{xr(t, 0) + 2}, v{xr(t, 1)}", f"v_swap_b32 v{xr(t, 0) + 3}, v{xr(t, 1) + 1}"]
            if t == 19:
                for st in range(2):
                    if final:
                        ops.append(f"v_accvgpr_write_b32 {R(vdc + st)}, v{xr(t, st)}")
                    ops.append(f"v_bfi_b32 v{xr(t, st)}, v{vmk}, 0, v{xr(t, st)}")
            for op in ops[:-1]:
                put(s.C, op)
            put(s.C, ops[-1], ("sw", t))

    def gram(t, wait=None):
        s.need(("sw", t))
        for st in range(2):
            s.mf(GR + 4 * st, xr(t, st), xr(t, st), None if t == 0 else GR + 4 * st, wait if st else None)

    def stats():
        t0 = s.tM + 40
        ops = []
        for r in range(4):
            for st in range(2):
                prev = "0" if r == 0 else f"v{T + 2 * st}"
                ops.append(f"v_cndmask_b32_e64 v{T + 2 * st}, {prev}, v{GR + 4 * st + r}, s[{DIAG[r]}:{DIAG[r] + 1}]")
        for op in ("v_permlane32_swap_b32", "v_permlane16_swap_b32"):
            ops += [f"v_mov_b32 v{T + 2 * st + 1}, v{T + 2 * st}" for st in range(2)]
            ops += [f"{op} v{T + 2 * st}, v{T + 2 * st + 1}" for st in range(2)]
            ops += [f"v_add_f32 v{T + 2 * st}, v{T + 2 * st}, v{T + 2 * st + 1}" for st in range(2)]
        ops += [f"v_fmamk_f32 v{T + 2 * st}, v{T + 2 * st}, {fx((1 + EPS) / DM)}, v{T + 4}" for st in range(2)]
        ops += [f"v_rsq_f32 v{T + 2 * st + 1}, v{T + 2 * st}" for st in range(2)]
        ops += [f"v_mul_f32 v{CC + 4 + st}, v{T + 2 * st}, v{T + 2 * st + 1}" for st in range(2)]
        ops += [f"v_cvt_pk_bf16_f32 v{T + 2 * st}, v{CC + 4 + st}, v{CC + 4 + st}" for st in range(2)]
        ops += [f"v_bfi_b32 v{xr(19, st)}, v{vmk}, v{T + 2 * st}, v{xr(19, st)}" for st in range(2)]
        late = [f"v_mul_f32 v{CC + st}, {fx(GELU_K0)}, v{T + 2 * st + 1}" for st in range(2)]
        late += [f"v_mul_f32 v{T + 2 * st}, v{T + 2 * st + 1}, v{T + 2 * st + 1}" for st in range(2)]
        late += [f"v_mul_f32 v{T + 2 * st}, {fx(0.044715)}, v{T + 2 * st}" for st in range(2)]
        late += [f"v_mul_f32 v{CC + 2 + st}, v{CC + st}, v{T + 2 * st}" for st in range(2)]
        if not final:
            late += [f"v_mul_f32 v{CC + 4 + st}, {fx(2.0 ** -S_LO)}, v{CC + 4 + st}" for st in range(2)]
        put(s.G, f"v_mov_b32 v{T + 4}, {fx(EPS * EPS * 4.0 ** S_X[final])}")
        put(s.G, f"v_xor_b32 v{vq[1]}, 0x100, v{vq[0]}")
        put(s.G, f"v_xor_b32 v{vq[2]}, 0x200, v{vq[0]}", "qset")
        put(s.G, ops[0], gate=lambda: s.t >= t0)
        for op in ops[1:-1]:
            put(s.G, op)
        put(s.G, ops[-1], "stats")
        for op in late:
            put(s.G, op)

    def poll(key, off):
        lab = f"{name}_{key}"
        text = f"buffer_load_dword v{vmk}, v{vfl}, s[{SRDF}:{SRDF + 3}], @ offen sc1"
        test = f"v_cmp_eq_u32 vcc, 0, v{vmk}"

        def branch():
            a(f"s_cbranch_vccnz {lab}_spin", tag="nopad")
            a.label(f"{lab}_ok", keep=True)

            def spin():
                a.label(f"{lab}_spin")
                a(f"s_mov_b32 s{sRP}, {off}")
                a(text.replace("@", f"s{sRP}"))
                a("s_waitcnt vmcnt(0)")
                budget(a, f"{lab}_ok")
                a(test)
                a(f"s_cbranch_vccnz {lab}_spin")
                a(f"s_branch {lab}_ok")
            a.tail.append(spin)

        def check():
            s.C.append(wait_item(("i", key), [f"v{vmk}"]))
            put(s.C, test)
            s.C.append(Item("j", 10, branch, key))
        return (lambda: vm(s.C, text, sE, f"s_mov_b32 @, {off}", ("i", key), again=False, part=0.2)), check

    if final:
        ix, cx = poll("rgo", PX)

        def signal():
            s.C.append(Item("s", 4, lambda: a.wait_tag("x3"), until="x3"))
            vm(s.C, f"buffer_store_dword v{vl0 + 1}, v{vpl}, s[{SRDF}:{SRDF + 3}], @ offen sc1", sE, f"s_mov_b32 @, {PX}",
               again=False, part=0.2)

        def e_ok():
            plan(("e", 14))
            s.C.append(Item("s", 4, lambda: (s.need(("e", 14)), a.wait_tag("e")), until=("e", 14),
                            gate=lambda: ("e", 14) in done))
            put(s.C, "s_barrier", "e0")
        at(("b", FZ.e_ok), e_ok)
        at(FZ.x3[0], signal)
        at(FZ.x3[1], ix)
        at(FZ.x3[2], lambda: (s.need("oset"), cx()))
    else:
        if any(f0.FC.po):
            done["ready"] = 0
        else:
            i_, c_ = poll("ready", READY)
            at(FZ.rd_at[0], lambda: (s.need("stats"), i_()))
            at(FZ.rd_at[1], c_)
        at(FZ.res_at, lambda: (s.need("oset"), done.setdefault("rgo", s.t)))

    at(("b", FZ.b_pre + FZ.ebar), lambda: put(s.C, "s_barrier", "ebar"))

    post = []

    def gelu(ft):
        Zs = Z + 8 * (ft & 1)
        prs = [(acc(ft, st) + h, Zs + st * 4 + h, st) for st in range(2) for h in (0, 2)]
        t0 = s.tM + 40

        def stage(pk, plain, key=None, gate=None):
            for n, (x, z, st) in enumerate(prs):
                k = key if n == 3 else None
                sel = f"op_sel:[0,{st},{st}] op_sel_hi:[1,{st},{st}]"
                it = s.item(pk.format(x=V(x, 2), z=V(z, 2), sel=sel), k, gate)
                it.alt = [s.item(plain.format(x=V(x + e), z=V(z + e), c0=V(CC + st), c2=V(CC + 2 + st), c4=V(CC + 4 + st)),
                                 k if e else None, gate) for e in range(2)]
                s.G.append(it)

        stage("v_pk_mul_f32 {z}, {x}, {x}", "v_mul_f32 {z}, {x}, {x}", gate=lambda: s.t >= t0)
        stage("v_pk_fma_f32 {z}, {z}, %s, %s {sel}" % (V(CC + 2, 2), V(CC, 2)), "v_fma_f32 {z}, {z}, {c2}, {c0}")
        stage("v_pk_mul_f32 {z}, {z}, {x}", "v_mul_f32 {z}, {z}, {x}")
        close()
        for k in range(8):
            put(s.G, f"v_exp_f32 v{Zs + k}, v{Zs + k}")
        stage("v_pk_fma_f32 {z}, {z}, %s, %s {sel}" % (V(CC + 4, 2), V(CC + 4, 2)), "v_fma_f32 {z}, {z}, {c4}, {c4}")
        for k in range(8):
            put(s.G, f"v_rcp_f32 v{Zs + k}, v{Zs + k}")
        if final:
            stage("v_pk_fma_f32 {z}, {z}, {x}, s[%d:%d]" % (sKC, sKC + 1), "v_fma_f32 {z}, {z}, {x}, s%d" % sKC, ("s5", ft))
        else:
            stage("v_pk_mul_f32 {z}, {z}, {x}", "v_mul_f32 {z}, {z}, {x}", ("s5", ft))

        def out():
            for k in range(4):
                put(s.G, f"v_cvt_pk_bf16_f32 v{Zs + k}, v{Zs + 2 * k}, v{Zs + 2 * k + 1}")
            if ft == 6:
                put(s.G, f"v_add_u32 v{vo}, s{sMSK}, v{vo}")
            put(s.G, f"v_permlane16_swap_b32 v{Zs}, v{Zs + 2}")
            put(s.G, f"v_permlane16_swap_b32 v{Zs + 1}, v{Zs + 3}")
            vm(s.G, f"buffer_store_dwordx4 {V(Zs, 4)}, v{vo}, s[{SRDH}:{SRDH + 3}], @ offen sc1", sHO,
               f"s_mov_b32 @, {ft * 2 * H_STR}", ("gelu", ft), again=False, first=FZ.hf)
        post.append(out)

    def close():
        while post:
            post.pop()()

    def out_setup():
        g = lambda op, key=None: put(s.G, op, key)
        g(f"v_lshl_add_u32 v{vpk}, v{vL}, 4, s{sPK}", "vpk")
        g(f"s_mul_i32 s{sGA}, s{sDC}, {20 * XP_STR}")
        g(f"s_lshl3_add_u32 s{sGA}, s{sD}, s{sGA}")
        g(vstr(vo2, vG, XP_STR))
        g(f"v_lshl_add_u32 v{vo2}, v{vI}, 3, v{vo2}")
        g(f"v_add_u32 v{vo2}, s{sGA}, v{vo2}", "oset")
        g(f"v_lshrrev_b32 v{vor}, 1, v{vG}")
        g(f"s_mov_b32 s{sGA}, {0x3f800000 + (0x3f80 if final else (127 + S_LO) << 7):#x}")
        g(f"v_mul_lo_u32 v{vor}, v{vor}, s{sGA}", "vor")
        g(f"v_lshl_add_u32 v{vrd}, v{vL}, 4, s{sEB}")
        for ql in (1, 2, 3):
            g(f"s_xor_b32 s{sGA}, s{sW}, {ql}")
            g(f"s_mul_i32 s{sGA}, s{sGA}, 15360")
            if ql > 1:
                g(f"s_add_u32 s{sGA}, s{sGA}, {(ql - 1) * 5120}")
            g(f"v_lshl_add_u32 v{vred[ql - 1]}, v{vL}, 4, s{sGA}")
        if final:
            g(f"s_bfe_u32 s{sGA}, s{sD}, 0x10004")
            g(f"s_lshl_b32 s{sGA}, s{sGA}, 3")
            g(f"s_lshr_b32 s{sGB}, s{sD}, 9")
            g(f"s_lshl4_add_u32 s{sGA}, s{sGB}, s{sGA}")
            g(f"s_bfe_u32 s{sGB}, s{sD}, 0x20005")
            g(f"s_lshl_b32 s{sGB}, s{sGB}, 8")
            g(f"s_add_u32 s{sGA}, s{sGA}, s{sGB}")
            g(f"s_and_b32 s{sGB}, s{sD}, 128")
            g(f"s_add_u32 s{sGA}, s{sGA}, s{sGB}")
            g(f"s_and_b32 s{sGB}, s{sD}, 256")
            g(f"s_lshl2_add_u32 s{sGA}, s{sGB}, s{sGA}")
            g(f"v_and_b32 v{vout}, 1, v{vI}")
            g(f"v_lshlrev_b32 v{vout}, 6, v{vout}")
            g(f"v_lshrrev_b32 v{vs}, 1, v{vI}")
            g(f"v_add3_u32 v{vout}, v{vout}, v{vs}, s{sGA}")
            g(f"v_mul_u32_u24 v{vout}, 1280, v{vout}")
            g(f"s_mul_i32 s{sGA}, s{sDC}, 160")
            g(f"v_lshl_add_u32 v{vout}, v{vG}, 3, v{vout}")
            g(f"v_add_u32 v{vout}, s{sGA}, v{vout}", "setup")
        else:
            g(f"v_lshrrev_b32 v{vs}, 1, v{vI}")
            g(f"v_lshlrev_b32 v{vs}, 4, v{vs}")
            g(f"v_and_b32 v{vout}, 1, v{vI}")
            g(f"v_lshl_add_u32 v{vs}, v{vout}, 2, v{vs}")
            g(f"v_and_b32 v{vout}, 1, v{vG}")
            g(f"v_lshl_add_u32 v{vs}, v{vout}, 3, v{vs}")
            g(f"v_lshrrev_b32 v{vout}, {0 if FZ.x_nocnt else 1}, v{vG}")
            g(f"v_lshl_add_u32 v{vs}, v{vout}, 20, v{vs}")
            g(f"s_lshl_b32 s{sGA}, s{sD}, 3")
            g(f"v_add_u32 v{vs}, s{sGA}, v{vs}")
            if SSW:
                g(f"v_and_b32 v{vout}, 128, v{vs}")
                g(f"v_lshl_add_u32 v{vs}, v{vout}, 7, v{vs}")
            g(f"v_add_u32 v{vout}, s{sDC}, v{vG}")
            g(f"v_min_u32 v{vout}, 1, v{vout}")
            g(f"v_mul_u32_u24 v{vout}, 0xffff, v{vout}")
            g(f"v_lshlrev_b32 v{vout}, 16, v{vout}")
            g(f"v_or_b32 v{vout}, 0xffff, v{vout}")
            g(f"v_mov_b32 v{TMP + 2}, 0")
            g(f"v_mov_b32 v{TMP + 3}, 0")
            g(f"s_mov_b64 s[{DIAG[0]}:{DIAG[0] + 1}], 0xffff")
            g(f"s_mov_b32 s{sGB}, {-S_LO * 0x800080:#x}", "setup")

    gl, rest = {}, xorder[1:]
    for t in range(19):
        n = 2 if t in FZ.dbl else 1
        gl[t], rest = sorted(rest[:n]), rest[n:]
    rd_need(NW - 1)
    prep_x([0])
    n = 0

    def grp_wait(k):
        nx = sum(len(g[1]) for g in groups[:k + 1]) - 1
        if k >= len(groups):
            return None
        return Item("s", 4, lambda: (rd_need(nx), a.wait_regs(R(wreg(nx), 4))))

    gram(0, grp_wait(0))
    for k, (kind, tl, t) in enumerate(groups):
        fine(kind, t)
        grams = gl.get(t, []) if kind == "a" else []
        if kind == "a" and t == 19:
            s.need("stats")
        if kind == "e" and t == 0:
            s.need(("s5", 2))
            for st in range(2):
                put(s.C, f"v_accvgpr_read_b32 v{xr(19, st)}, {R(vdc + st)}", ("dc", st))
        if kind == "e" and t == 19:
            s.need(("dc", 1))
        hi = sum(len(g[1]) for g in groups[:k + 2])
        for j, ft in enumerate(tl):
            for st in range(2):
                if grams and 2 * j + st == (FZ.xc_at if len(grams) == 1 else 0):
                    prep_x(grams)
                d = (EACC if kind == "e" else ACC1) + (ft * 2 + st) * 4
                last = j == len(tl) - 1 and st and not grams
                if st:
                    rd_["free"] = n + 1
                s.mf(d, wreg(n), xr(t, st), None if t == 0 else d, grp_wait(k + 1) if last else None,
                     urgent=rd_["n"] - len(s.L) < hi)
            n += 1
        for g in grams:
            gram(g, grp_wait(k + 1) if g == grams[-1] else None)
        if grams and xorder[-1] in grams:
            stats()
        if kind == ("e" if final else "b"):
            done[("xfree", t)] = s.t
        if kind == "a" and t == 19:
            note("A")
            for ft in TA:
                gelu(ft)
            close()
            if FZ.pure[final]:
                s.pure(("gelu", FZ.pure[final] - 1))
        if kind == "b" and t == 19:
            for ft in TB:
                gelu(ft)
            close()
            if FZ.in_b[final]:
                s.pure(("gelu", FZ.in_b[final] - 1))
    if final:
        note("E")
        t0 = s.tM + 40
        for et in TE:
            d = EACC + et * 8
            for k in range(4):
                put(s.C, f"v_cvt_pk_bf16_f32 v{d + k}, v{d + 2 * k}, v{d + 2 * k + 1}", gate=lambda: s.t >= t0)
            vm(s.C, f"buffer_store_dwordx4 {V(d, 4)}, v{ve}, s[{SRD2}:{SRD2 + 3}], @ offen sc1",
               sE, f"s_mov_b32 @, {et * 4 * XP_STR}", {1: "edone", 2: "x3"}.get(et), tag="x3", again=False)
        epi, s.C = s.C, []
        s.pure(("gelu", FZ.in_e - 1))
    out_setup()
    s.pk = bool(FZ.g2pk[final])
    mk.stash(a, vck)

    def accr(p, q):
        return ACC2 + (q * 5 + p) * 4

    def q_check(n):
        keys = [("q",) + x for x in units[n]]
        regs = [qreg(*x) for x in units[n]]
        fix = [f"v_or_b32 v{qreg(u, q)}, v{qreg(u, q)}, v{vor}" for u, q in units[n] if u == NS - 1]
        if fix:
            s.need("vor")
        verify(keys, regs, fix + (lower(regs, T_H) if final else unset(regs)), f"{name}_q{n}", ("qok", n))

    def writes(q):
        t0 = s.tM + 40
        s.need("setup")
        for p in range(5):
            put(s.L, f"ds_write_b128 v{vred[q - 1]}, {R(accr(p, q), 4)} offset:{p * 1024}", ("wr", q, p),
                gate=lambda p=p: s.t >= max(t0 - 16 * (4 - p), t0 - 40 + FZ.wgap * p))

    def reads(q, k):
        for p in range(5):
            put(q, f"ds_read_b128 {R(accr(p, k), 4)}, v{vrd} offset:{(k - 1) * 5120 + p * 1024}")

    def res_ops():
        plan(("r", 4))
        w = wait_item(("r", 4), [V(RES, 10)])
        w.gate = lambda: s.eta.get(("r", 4), 1e9) <= s.t
        f0 = w.fn
        w.fn = lambda: (s.need(("r", 4)), f0())
        s.G.append(w)
        for p in range(5):
            for h in range(2):
                u_, r, d = RU + 2 * h, RES + 2 * p + h, accr(p, 0) + 2 * h
                put(s.G, f"v_lshlrev_b32 v{u_}, 16, v{r}")
                put(s.G, f"v_and_b32 v{u_ + 1}, s{sRS + 1}, v{r}")
                put(s.G, f"v_fmac_f32 v{d}, s{sRS}, v{u_}")
                put(s.G, f"v_fmac_f32 v{d + 1}, s{sRS}, v{u_ + 1}", ("res", p) if h else None)

    def unpark(u):
        ok = lambda: "vpk" in done and ("k", u, 4) in done and s.eta[("k", u, 4)] <= s.t
        plan(("k", u, 4))
        s.L.append(Item("s", 4, lambda: (s.need("vpk"), s.need(("k", u, 4)), a.wait_tag(f"k{u}")), until=("k", u, 4), gate=ok))
        for p in range(5):
            put(s.L, f"ds_read_b128 {R(preg(u, p), 4)}, v{vpk} offset:{(u - NP) * TILE + p * 1024}", ("p", u, p))
            sched.add(("p", u, p))

    def g_bar():
        for u in parked:
            s.need(("p", u, 4))
        put(s.C, "s_waitcnt lgkmcnt(0)")
        put(s.C, "s_barrier")
        if not final and f0.FC.t_late:
            put(s.C, f"s_lshl4_add_u32 s{sE}, s{sRB}, s{sMM}")
            put(s.C, f"s_sub_u32 s{sE}, s3, s{sE}")
            put(s.C, f"s_lshl_b32 s{sE}, s{sE}, 7")
            vm(s.C, f"buffer_store_dword v{vl0 + 1}, v{vpl}, s[{SRDF}:{SRDF + 3}], @ offen sc1", sE,
               f"s_add_u32 @, s{sE}, {DONE2 + 4 - READY}", again=False, part=0.2)

    for u in parked:
        at(("g", u - NP), lambda u=u: unpark(u))
    at(("g", FZ.gbar), g_bar)
    def post_at(where):
        if not final and FZ.post == where:
            vm(s.C, f"buffer_store_dword v{vl0 + 1}, v{vpl}, s[{SRDF}:{SRDF + 3}], @ offen sc1", sE,
               f"s_mov_b32 @, {POST - READY}", key="post",
               again=False, part=0.2)
            s.need("post")

    q_check(0)
    if final:
        if FZ.split0:
            q_check(1)
        s.C += epi
    seen = set()
    for n, un in enumerate(units):
        tailq = un[0][1] if len({u for u, _ in un}) > 1 or KT == 1 and un[0][0] == NS - 1 else None
        s.need(("qok", n))
        left = 5 * len(un)
        if tailq == 1:
            res_ops()
        if tailq == 0:
            s.need(("wr", 2, 4))
            put(s.C, "s_waitcnt lgkmcnt(0)")
            put(s.C, "s_barrier", "bar1")
            s.need("bar1")
            post_at("bar1")
            writes(3)
            reads(s.L, 1)
            reads(s.L, 2)
        elif tailq is not None and tailq > 1:
            writes(tailq - 1)
        for u, q in un:
            if u not in seen:
                fine("g", u)
                if u == 1:
                    note("g1")
                for p in range(5):
                    plan(("p", u, p))
                    s.need(("p", u, p))
                seen.add(u)
            for p in range(5):
                if left == min(FZ.qc_rem, 5 * len(un)) and n + 1 < len(units) and not (final and FZ.split0 and n == 0):
                    q_check(n + 1)
                if tailq == 0:
                    s.need(("res", p))
                if s.eta.get(("p", u, p), 0) > s.t:
                    s.stall += s.eta[("p", u, p)] - s.t
                    if FZ.verbose:
                        print(f"  {s.t:6.0f} STALL p {u} {p} {s.eta[('p', u, p)] - s.t:.0f}", file=sys.stderr)
                    s.t = s.eta[("p", u, p)]
                s.mf(accr(p, q), preg(u, p), qreg(u, q), None if u == 0 else accr(p, q))
                left -= 1
            done[("qfree", u, q)] = s.t
    s.flush()
    assert not queue and not act, (queue, act)
    a("s_waitcnt lgkmcnt(0)")
    a("s_barrier")
    reads(s.L, 3)
    s.flush()
    post_at("bar2")
    for p in range(5):
        for h in (0, 2):
            a(f"v_pk_add_f32 {V(accr(p, 1) + h, 2)}, {V(accr(p, 1) + h, 2)}, {V(accr(p, 2) + h, 2)}")
    for p in range(5):
        for h in (0, 2):
            a(f"v_pk_add_f32 {V(accr(p, 0) + h, 2)}, {V(accr(p, 0) + h, 2)}, {V(accr(p, 1) + h, 2)}")
    for p in range(5):
        r = accr(p, 0)
        for h in (0, 2):
            a(f"v_pk_add_f32 {V(r + h, 2)}, {V(r + h, 2)}, {V(accr(p, 3) + h, 2)}")
        a(f"v_cvt_pk_bf16_f32 v{r}, v{r}, v{r + 1}")
        a(f"v_cvt_pk_bf16_f32 v{r + 1}, v{r + 2}, v{r + 3}")
        if final:
            a(f"buffer_store_dwordx2 {V(r, 2)}, v{vout}, s[{SRD1}:{SRD1 + 3}], 0 offen offset:{p * 32}")
        else:
            a(f"s_mov_b32 s{sOP}, {p * 4 * XP_STR}")
            a(f"buffer_store_dwordx2 {V(r, 2)}, v{vo2}, s[{SRDX}:{SRDX + 3}], s{sOP} offen sc1")
    if not final:
        for p in range(5):
            r = accr(p, 0)
            for h in range(2):
                a(f"v_add_u32 v{r + 2 + h}, s{sGB}, v{r + h}")
            if p == 0:
                a(f"v_and_b32 v{r + 2}, v{vout}, v{r + 2}")
        for p in range(5):
            for h in range(2):
                r = accr(p, 0) + 2 + h
                a(f"v_dot2c_f32_bf16 v{TMP + 2 + h}, v{r}, v{r}")
        z = TMP + 2
        a(f"v_add_f32 v{z}, v{z}, v{z + 1}")
        for op in ("v_permlane32_swap_b32", "v_permlane16_swap_b32"):
            a(f"v_mov_b32 v{z + 1}, v{z}")
            a(f"{op} v{z}, v{z + 1}")
            a(f"v_add_f32 v{z}, v{z}, v{z + 1}")
        a(f"v_cndmask_b32_e64 v{z}, 1.0, v{z}, s[{DIAG[0]}:{DIAG[0] + 1}]")
        a(f"{FZ.x_op} v{z}, v{vs}, s[{SRD1}:{SRD1 + 3}], 0 offen sc1".replace("-", "_"), tag="out")
    post_at("end")
    mk(a, name + "end")


def role_fused(a):
    if Cfg.stamp:
        mk.names.append("start")
        mk.pend.append(0)
    if FZ.probe:
        a(f"s_memrealtime s[{sST}:{sST + 1}]")
    f0.front(a, mk.fixed)
    begin(a)
    mk.stash(a, 4)
    for ph in range(0 if FZ.halt == 10 else 2):
        a(f"s_cmp_ge_u32 s{sT}, {NCOL}")
        a(f"s_cbranch_scc1 idle{ph}", tag="nopad")
        pend = list(mk.pend)

        def idle(ph=ph, pend=pend):
            keep, mk.pend = mk.pend, pend
            a.label(f"idle{ph}")
            idle_phase(a, ph)
            a(f"s_branch join{ph}")
            mk.pend = keep
        a.tail.append(idle)
        n = col_phase(a, ph)
        a.label(f"join{ph}")
        if FZ.halt == 2 * ph + 1 or FZ.halt == 25 and ph:
            break
        mlp_phase(a, ph, n)
        if FZ.halt == 2 * ph + 2:
            break
    if Cfg.stamp:
        a("s_waitcnt vmcnt(0)")
        mk(a, "drain")
        mk.stash(a, 4)
        a(f"v_writelane_b32 v4, s{sCNT}, 63")
        srd_ws(a, SRD0, "STAMP", 1 << 21)
        a(f"s_lshl_b32 s{sA}, s2, 10")
        a(f"s_add_u32 s{sA}, s{sA}, {1 << 20}")
        a(f"v_lshl_add_u32 v5, v0, 2, s{sA}")
        a(f"buffer_store_dword v4, v5, s[{SRD0}:{SRD0 + 3}], 0 offen")
        if FZ.dbg:
            a(f"s_load_dwordx2 s[{SRD1}:{SRD1 + 1}], s[0:1], 72")
            a(f"v_readlane_b32 s{sB}, v4, 0")
            a("v_mov_b32 v6, 0")
            for j, nm in enumerate(FZ.dbg[1:]):
                a(f"v_readlane_b32 s{sA}, v4, {mk.names.index(nm)}")
                a(f"s_sub_u32 s{sA}, s{sA}, s{sB}")
                a(f"v_writelane_b32 v6, s{sA}, {j}")
            a(f"s_sub_u32 s{sA}, s2, {FZ.dbg[0]}")
            a(f"s_lshl_b32 s{sA}, s{sA}, 10")
            a(f"v_lshl_add_u32 v5, v0, 2, s{sA}")
            a("s_waitcnt lgkmcnt(0)")
            srd(a, SRD1, SRD1, 0, 64)
            a(f"buffer_store_dword v6, v5, s[{SRD1}:{SRD1 + 3}], 0 offen")
    return 160 * 1024


def tables():
    L = []
    c = np.sqrt(2.0 / DM) * np.cos(2 * np.pi * np.arange(DM) / DM)
    c[160] = 0
    c[480] = 0
    bits = model.bf16_bits(c.astype(np.float32))
    for n in range(DM):
        L.append(f".set cq{n}, {bits[n]}")
    bb = int(model.bf16_bits(np.float32([np.sqrt(1 / DM)]))[0])
    k2 = model2.kmap()
    L.append(".altmacro")
    L.append(".macro e8 a,b,c,d,e,f,g,h\n.short cq\\a, cq\\b, cq\\c, cq\\d, cq\\e, cq\\f, cq\\g, cq\\h\n.endm")
    L.append(".macro e6 a,b,c,d,e,f\n.short cq\\a, cq\\b, cq\\c, cq\\d, cq\\e, cq\\f\n.endm")
    L.append(".p2align 12\nft2:\n.set tt, 0\n.rept 40")
    for kb in range(80):
        L.append(".set td, tt\n.rept 16")
        ent = [f"%(({k2[4 * kb + j // 2]}*td+{160 * (j & 1)})%640)" for j in range(8)]
        if kb == 0:
            L.append(f".short {bb}+((td&1)<<15), {bb}")
            L.append("e6 " + ", ".join(ent[2:]))
        else:
            L.append("e8 " + ", ".join(ent))
        L.append(".set td, td+1\n.endr")
    L.append(".set tt, tt+16\n.endr\n.noaltmacro")
    return "\n".join(L) + "\n"


if __name__ == "__main__":
    f0.FC.xscale = S_LO
    for opt in sys.argv[2:]:
        if opt == "stamp":
            Cfg.stamp = True
        else:
            k, v = opt.split("=", 1)
            tgt = [c for c in (FZ, f0.FC, Cfg) if hasattr(c, k)][0]
            v = eval(v)
            sp = lambda x: x.replace("_", " ") if isinstance(x, str) else tuple(map(sp, x)) if isinstance(x, tuple) else x
            setattr(tgt, k, sp(v))
    txt = generate([("mk_kernel", [(256, role_fused)])], tables)
    if Cfg.stamp:
        txt = txt.replace(".amdgcn_target", ("; clk\n" if FZ.clk else "") + f"; halt {FZ.halt}\n; marks " + " ".join(mk.names)
                          + "\n.amdgcn_target", 1)
    if FZ.single:
        txt = txt.replace("@launch kernel=mk_kernel ", "@launch ")
        txt = txt.replace("mk_kernel", "interleave_layers__spectral_gfnet__mixer_channel_mlp__prompt_kernel")
    open(sys.argv[1], "w").write(txt)
```
